```python
import torch

def _softmax(x, axis=-1):
    return torch.softmax(x, dim=axis)
def _gelu(x):
    return torch.nn.functional.gelu(x, approximate="tanh")
def _silu(x):
    return torch.nn.functional.silu(x)
def _sigmoid(x):
    return torch.sigmoid(x)
def _layernorm(x, axis=-1, eps=1e-5):
    m = x.mean(dim=axis, keepdim=True)
    v = x.var(dim=axis, keepdim=True, unbiased=False)
    return (x - m) / torch.sqrt(v + eps)
def _scatter_add(tgt, idx, src, axis=0):
    return tgt.clone().index_add_(axis, idx, src)
def _segment_sum(src, seg, n):
    out = torch.zeros((n,) + src.shape[1:], dtype=src.dtype)
    return out.index_add_(0, seg, src)
def _pad(x, pw):
    flat = tuple(v for pair in reversed(pw) for v in pair)
    return torch.nn.functional.pad(x, flat)

kernel_name = 'standalone__structured_sparse_n_m__ragged'

def setup_inputs():

    _w = (lambda a: (lambda t: t.to(torch.bfloat16) if t.is_floating_point() else t)(torch.as_tensor(a)))
    B, S, D = 16, 4096, 576
    assert D % 4 == 0, "d_model must be divisible by M=4 for 2:4 sparsity"
    return {
        "x": _w((lambda *s: torch.randn(*s, dtype=torch.bfloat16) * 0.05)(B, S, D)),
        "w": _w((lambda *s: torch.randn(*s, dtype=torch.bfloat16) * 0.05)(D, D)),
        "b": _w((lambda *s: torch.randn(*s, dtype=torch.bfloat16) * 0.05)(D)),
    }

def reference(x, w, b):
    B, S, D = x.shape
    N, M = 2, 4
    G = D // M
    wg = w.reshape(G, M, D)
    mag = torch.abs(wg)
    order = torch.argsort(mag, 1)
    thr = (lambda x, i, axis: torch.take_along_dim(x, i, dim=axis))(mag, order[:, M - N:M - N + 1, :], 1)
    mask = (lambda x, dt: x.to(dt))(mag >= thr, w.dtype)
    wp = (wg * mask).reshape(D, D)
    return torch.einsum("bsd,df->bsf", x, wp) + b
```

```python
import sys

NAME = "standalone__structured_sparse_n_m__ragged"
TB = 18432
NB = 8
XBYTES = 75497472
WBYTES = 663552
WSBYTES = 301989888
A_OFF = 0
I_OFF = 331776
I8_OFF = I_OFF + 36864
R1_OFF = I8_OFF + 5120
R8_OFF = R1_OFF + 4608
COPY = 393216
NTASK = 41
L_TAB = NB * TB
L_WV = L_TAB + 4096
WV_SZ = 2816
L_PL = L_WV + 4 * WV_SZ
LDS_BYTES = 163840
assert L_PL + 512 <= LDS_BYTES and L_WV % 256 == 0 and WV_SZ % 256 == 0

V_RD0, V_RD1, V_TAB, V_DMA, V_ST, V_ST8, V_BP, V_LANE = 0, 1, 2, 3, 4, 5, 6, 7
V_ACC = 8
V_B = 44
V_BR = 76
V_P = 92
V_T = 108
V_P8 = 112
V_X = 114
V_AD = 118
V_I = 138
V_I8 = 174
V_IR = 179
V_A = 186
S_X, S_OUT, S_WS, S_W, S_B, S_DBG = 16, 20, 24, 28, 32, 36
S_WAVE = 40
S_IT, S_BUF, S_DELTA, S_M0B, S_XOFF, S_OOFF = 41, 42, 43, 44, 45, 46
S_T0, S_T1, S_T2 = 47, 3, 92
S_MASK = 48
S_EVEN, S_ODD = 80, 82
S_TASK, S_TEND, S_BASE, S_MODE, S_CONT = 84, 85, 86, 87, 88
S_BAD = 90
S_C0 = 93
S_BUFN, S_CTB, S_OINC, S_XOFF5, S_M05, S_M0W, S_HALF = 4, 5, 6, 7, 8, 9, 10


def vr(b, n=1):
    return f"v{b}" if n == 1 else f"v[{b}:{b+n-1}]"


def sr(b, n=1):
    return f"s{b}" if n == 1 else f"s[{b}:{b+n-1}]"


def afrag(s, t):
    f = 9 * s + t
    return f"a[{4*f}:{4*f+3}]" if f < 64 else vr(V_A + 4 * (f - 64), 4)


def aidx(s, t):
    if t < 8:
        return V_I + 4 * s + (t >> 1), t & 1
    return V_I8 + (s >> 1), s & 1


BBUF = [0, 1, 2, 3, 0, 1, 0, 2, 3]
RBUF = [V_BR, V_BR + 8, V_BR, V_P, V_BR + 8]
RT = [[0, 1], [1, 2, 3], [3, 4, 5], [5, 6, 7], [7, 8]]


class Op:
    def __init__(self, text, kind, rd=(), wr=(), tag=""):
        self.text, self.kind, self.rd, self.wr, self.tag = text, kind, set(rd), set(wr), tag


def rng(b, n):
    return range(b, b + n)


class Gen:
    def __init__(self, **o):
        self.o = dict(fused=True, ld="nt", st="", bperm=True, nb0=8, stamp=False, nodma=False, wl="sc1", ws="sc1",
                      vmw=60, lper=9, drop=(), cyc=False, links=True, ng4=8, rpos=(18, 35, 50, 63, 75), rposl=(18, 36, 52, 66, 78),
                      lead=8, stg=(9, 16, 23, 30, 37), dmag=(43, 49, 55, 61, 67), gsp=2, eager=99, verbose=False, hack=None)
        self.o.update(o)
        self.L = []
        self.tailblocks = []

    def a(self, s):
        self.L.extend(s.split("\n"))

    def entry(self, label, nwg):
        a = self.a
        a(f".globl {label}\n.p2align 8\n.type {label},@function\n{label}:")
        a(f"s_cmp_ge_u32 s2, {nwg}")
        a(f"s_cbranch_scc1 L_end_{label}")
        if self.o["stamp"]:
            a("s_memrealtime s[100:101]")
        a("s_load_dwordx8 s[4:11], s[0:1], 0")
        a("s_load_dwordx4 s[12:15], s[0:1], 32")
        a("v_lshrrev_b32 v1, 6, v0")
        a(f"v_and_b32 v{V_LANE}, 63, v0")
        a(f"v_readfirstlane_b32 s{S_WAVE}, v1")
        for srd, size in ((S_X, XBYTES), (S_OUT, 0), (S_WS, WSBYTES), (S_W, WBYTES), (S_B, 1152), (S_DBG, 256)):
            a(f"s_mov_b32 s{srd+2}, {size}")
            a(f"s_mov_b32 s{srd+3}, 0x20000")

    def entry_wait(self):
        a = self.a
        a("s_waitcnt lgkmcnt(0)")
        for srd, p in ((S_W, 6), (S_X, 4), (S_WS, 14), (S_B, 8), (S_OUT, 10), (S_DBG, 12)):
            a(f"s_mov_b32 s{srd}, s{p}")
            a(f"s_and_b32 s{srd+1}, s{p+1}, 0xffff")

    def producer(self, sfx):
        a = self.a
        ws = self.o["ws"]
        W, Z, K = 8, 24, 28
        S1, S0 = 36, 44
        OA = 52
        IX = 60
        VL, VA, VI, VM0, VM1, VSEL = 62, 63, 64, 65, 66, 67
        T0, T1, T2, T3 = 68, 69, 70, 71
        ln = f"v{V_LANE}"
        a(f"L_prod{sfx}:")
        a(f"v_lshlrev_b32 v{T0}, 2, {ln}")
        a(f"v_add_u32 v{T0}, {L_PL}, v{T0}")
        a(f"v_mov_b32 v{T1}, 0")
        a(f"ds_write_b32 v{T0}, v{T1}")
        a(f"v_bfe_u32 v{T2}, {ln}, 1, 1")
        a(f"v_and_b32 v{T3}, 1, {ln}")
        a(f"s_lshl_b32 s{S_T2}, s{S_WAVE}, 4")
        a(f"s_cmp_ge_u32 s{S_TASK}, 36")
        a(f"s_cbranch_scc1 L_prod8{sfx}")
        a(f"s_and_b32 s{S_T0}, s{S_TASK}, 3")
        a(f"s_lshr_b32 s{S_T1}, s{S_TASK}, 2")
        a(f"s_lshl_b32 s{S_C0}, s{S_T1}, 6")
        a(f"s_add_u32 s{S_C0}, s{S_C0}, s{S_T2}")
        a(f"s_mul_i32 s{S_C0}, s{S_C0}, 1152")
        a(f"s_lshl_b32 s{S_C0+1}, s{S_T0}, 8")
        a(f"s_add_u32 s{S_C0}, s{S_C0}, s{S_C0+1}")
        a(f"v_lshl_add_u32 v{VL}, {ln}, 2, s{S_C0}")
        a(f"v_bfe_u32 v{T0}, {ln}, 1, 2")
        a(f"v_lshrrev_b32 v{T1}, 5, {ln}")
        a(f"v_lshl_add_u32 v{T0}, v{T1}, 2, v{T0}")
        a(f"v_bfe_u32 v{T1}, {ln}, 3, 2")
        a(f"v_lshlrev_b32 v{T3}, 1, v{T3}")
        a(f"v_lshl_add_u32 v{T1}, v{T1}, 2, v{T3}")
        a(f"s_mul_i32 s{S_C0}, s{S_T0}, 81")
        a(f"s_mul_i32 s{S_C0+1}, s{S_T1}, 9")
        a(f"s_add_u32 s{S_C0}, s{S_C0}, s{S_C0+1}")
        a(f"s_lshl_b32 s{S_C0}, s{S_C0}, 6")
        a(f"s_add_u32 s{S_C0}, s{S_C0}, s{S_T2}")
        a(f"v_lshl_add_u32 v{VA}, v{T0}, 6, v{T1}")
        a(f"v_add_lshl_u32 v{VA}, v{VA}, s{S_C0}, 4")
        a(f"s_mul_i32 s{S_C0}, s{S_T0}, 9")
        a(f"s_add_u32 s{S_C0}, s{S_C0}, s{S_T1}")
        a(f"s_lshl_b32 s{S_C0+2}, s{S_C0}, 7")
        a(f"s_add_u32 s{S_C0+2}, s{S_C0+2}, {R1_OFF}")
        a(f"s_lshl_b32 s{S_C0}, s{S_C0}, 6")
        a(f"s_add_u32 s{S_C0}, s{S_C0}, s{S_T2}")
        a(f"s_add_u32 s{S_C0}, s{S_C0}, {I_OFF // 16}")
        a(f"v_add3_u32 v{VI}, v{T1}, v{T2}, s{S_C0}")
        a(f"v_lshrrev_b32 v{T3}, 1, v{T0}")
        a(f"v_lshlrev_b32 v{T3}, 2, v{T3}")
        a(f"v_lshl_add_u32 v{VI}, v{VI}, 4, v{T3}")
        a(f"v_lshlrev_b32 v{VM0}, 11, v{T0}")
        a(f"v_lshl_add_u32 v{VM0}, v{T1}, 7, v{VM0}")
        a(f"v_add_u32 v{VM0}, s{S_T2}, v{VM0}")
        a(f"s_branch L_prodc{sfx}")
        a(f"L_prod8{sfx}:")
        a(f"s_sub_u32 s{S_T1}, s{S_TASK}, 36")
        a(f"v_bfe_u32 v{T1}, {ln}, 2, 2")
        a(f"v_lshlrev_b32 v{T3}, 1, v{T3}")
        a(f"v_lshl_add_u32 v{T1}, v{T1}, 2, v{T3}")
        a(f"v_lshrrev_b32 v{T0}, 4, {ln}")
        a(f"s_lshl_b32 s{S_C0}, s{S_T1}, 7")
        a(f"s_add_u32 s{S_C0}, s{S_C0}, s{S_T2}")
        a(f"v_lshl_add_u32 v{VL}, v{T2}, 6, s{S_C0}")
        a(f"v_mul_u32_u24 v{VL}, 1152, v{VL}")
        a(f"v_lshl_add_u32 v{T3}, v{T0}, 4, v{T1}")
        a(f"v_lshl_add_u32 v{VL}, v{T3}, 1, v{VL}")
        a(f"v_add_u32 v{VL}, 1024, v{VL}")
        a(f"s_lshl_b32 s{S_C0}, s{S_T1}, 2")
        a(f"s_add_u32 s{S_C0}, s{S_C0}, s{S_WAVE}")
        a(f"s_lshl_b32 s{S_C0}, s{S_C0}, 6")
        a(f"s_add_u32 s{S_C0}, s{S_C0}, {I8_OFF // 4}")
        a(f"v_add3_u32 v{VI}, v{T3}, v{T2}, s{S_C0}")
        a(f"v_lshlrev_b32 v{VI}, 2, v{VI}")
        a(f"s_mul_i32 s{S_C0}, s{S_T1}, 18")
        a(f"s_add_u32 s{S_C0}, s{S_C0}, 8")
        a(f"v_mul_u32_u24 v{VA}, 81, v{T0}")
        a(f"v_mad_u32_u24 v{VA}, v{T2}, 9, v{VA}")
        a(f"v_add_lshl_u32 v{VA}, v{VA}, s{S_C0}, 6")
        a(f"v_add3_u32 v{VA}, v{VA}, v{T1}, s{S_T2}")
        a(f"v_lshlrev_b32 v{VA}, 4, v{VA}")
        a(f"s_cmp_eq_u32 s{S_T1}, 4")
        a(f"s_cselect_b32 s{S_C0}, 30, 0")
        a(f"s_cselect_b32 s{S_C0+1}, -1, 0")
        a(f"v_and_b32 v{T3}, s{S_C0+1}, v{T2}")
        a(f"v_lshl_or_b32 v{VA}, v{T3}, s{S_C0}, v{VA}")
        a(f"s_lshl_b32 s{S_C0+2}, s{S_T1}, 7")
        a(f"s_add_u32 s{S_C0+2}, s{S_C0+2}, {R8_OFF}")
        a(f"v_add_u32 v{VM0}, 8, v{T0}")
        a(f"v_lshlrev_b32 v{VM0}, 11, v{VM0}")
        a(f"v_lshl_add_u32 v{VM0}, v{T1}, 7, v{VM0}")
        a(f"v_lshl_add_u32 v{VM0}, v{T2}, 6, v{VM0}")
        a(f"v_add_u32 v{VM0}, s{S_T2}, v{VM0}")
        a(f"L_prodc{sfx}:")
        if sfx == "":
            self.entry_wait()
        for q in range(4):
            if q:
                a(f"v_add_u32 v{VL}, 4608, v{VL}")
            for j in range(4):
                a(f"buffer_load_dword v{W+4*q+j}, v{VL}, {sr(S_W,4)}, 0 offen offset:{1152*j}")
        a(f"v_add_u32 v{VA}, s{S_BASE}, v{VA}")
        a(f"v_add_u32 v{VI}, s{S_BASE}, v{VI}")
        a(f"s_add_u32 s{S_C0+2}, s{S_C0+2}, s{S_BASE}")
        a(f"v_add_u32 v{VM1}, 128, v{VM0}")
        a(f"v_mov_b32 v{VSEL}, 0x05040100")
        a(f"v_mov_b32 v{T0}, 0x03020706")
        a(f"v_cmp_eq_u32 vcc, 1, v{T2}")
        a(f"s_mov_b32 s{S_C0+3}, 0xffff0000")
        a(f"s_mov_b32 s{S_C0+4}, 0x07060302")
        a(f"v_cndmask_b32 v{VSEL}, v{VSEL}, v{T0}, vcc")
        a("s_waitcnt lgkmcnt(0)")
        a("s_barrier")
        a(f"s_cmp_lg_u32 s{S_MODE}, 0")
        for q in range(4):
            a(f"s_waitcnt vmcnt({12-4*q})")
            for c in range(2):
                n = 2 * q + c
                for j in range(4):
                    if c == 0:
                        a(f"v_lshl_or_b32 v{Z+j}, v{W+4*q+j}, 16, {j}")
                    else:
                        a(f"v_and_or_b32 v{Z+j}, v{W+4*q+j}, s{S_C0+3}, {j}")
                for j in range(4):
                    a(f"v_alignbit_b32 v{Z+j}, v{Z+j}, v{Z+j}, 31")
                a(f"v_max3_u32 v{K}, v{Z}, v{Z+1}, v{Z+2}")
                a(f"v_med3_u32 v{K+1}, v{Z}, v{Z+1}, v{Z+2}")
                a(f"v_min3_u32 v{K+2}, v{Z}, v{Z+1}, v{Z+2}")
                a(f"v_med3_u32 v{K+4}, v{K}, v{K+1}, v{Z+3}")
                a(f"v_max_u32 v{K+3}, v{K}, v{Z+3}")
                a(f"v_and_b32 v{K+5}, -8, v{K+4}")
                a(f"v_med3_u32 v{S1+n}, v{K+1}, v{K+2}, v{Z+3}")
                a(f"v_max_u32 v{K+5}, 8, v{K+5}")
                a(f"v_min_u32 v{S0+n}, v{K+2}, v{Z+3}")
                a(f"v_cmp_ge_u32 {sr(S_MASK+4*n,2)}, v{S1+n}, v{K+5}")
                a(f"v_cmp_ge_u32 {sr(S_MASK+4*n+2,2)}, v{S0+n}, v{K+5}")
                a(f"s_cbranch_scc1 L_rm{n}{sfx}")
                a(f"L_rb{n}{sfx}:")
                self.tailblocks.append(
                    f"L_rm{n}{sfx}:\ns_nop 1\n"
                    f"v_cndmask_b32 v{K+3}, 0, v{S1+n}, {sr(S_MASK+4*n,2)}\n"
                    f"v_cndmask_b32 v{K+4}, 0, v{S0+n}, {sr(S_MASK+4*n+2,2)}\n"
                    f"s_branch L_rb{n}{sfx}")
                a(f"v_alignbit_b32 v{K+3}, v{K+3}, v{K+3}, 1")
                a(f"v_alignbit_b32 v{K+4}, v{K+4}, v{K+4}, 1")
                a(f"v_perm_b32 v{OA+4*c+q}, v{K+3}, v{K+4}, s{S_C0+4}")
                if q == 0:
                    a(f"v_lshl_or_b32 v{IX+c}, v{K+3}, 2, v{K+4}")
                else:
                    a(f"v_lshl_or_b32 v{K+3}, v{K+3}, 2, v{K+4}")
                    a(f"v_lshl_or_b32 v{IX+c}, v{K+3}, {4*q}, v{IX+c}")
        a(f"buffer_store_dwordx4 {vr(OA,4)}, v{VA}, {sr(S_WS,4)}, 0 offen {ws}")
        a(f"s_mov_b32 s{S_C0+4}, 0x05040100")
        a(f"v_perm_b32 v{IX}, v{IX+1}, v{IX}, s{S_C0+4}")
        a(f"buffer_store_dwordx4 {vr(OA+4,4)}, v{VA}, {sr(S_WS,4)}, 0 offen offset:16 {ws}")
        a(f"s_bcnt1_i32_b64 s{S_T0}, {sr(S_MASK,2)}")
        a(f"v_mov_b32_dpp v{IX+1}, v{IX} quad_perm:[2,3,0,1] row_mask:0xf bank_mask:0xf")
        a(f"v_perm_b32 v{IX}, v{IX+1}, v{IX}, v{VSEL}")
        a(f"buffer_store_dword v{IX}, v{VI}, {sr(S_WS,4)}, 0 offen {ws}")
        for n in range(1, 16):
            a(f"s_bcnt1_i32_b64 s{S_T1}, {sr(S_MASK+2*n,2)}")
            a(f"s_add_u32 s{S_T0}, s{S_T0}, s{S_T1}")
        a(f"s_cmp_eq_u32 s{S_T0}, 0")
        a(f"s_cbranch_scc1 L_nolist{sfx}")
        a(f"v_mov_b32 v{T0}, {L_PL + 128}")
        a(f"v_mov_b32 v{T1}, s{S_T0}")
        a("s_mov_b64 exec, 1")
        a(f"ds_add_rtn_u32 v{T1}, v{T0}, v{T1}")
        a("s_waitcnt lgkmcnt(0)")
        a(f"v_readfirstlane_b32 s{S_T0}, v{T1}")
        for n in range(8):
            q, c = n >> 1, n & 1
            for z in range(2):
                m = S_MASK + 4 * n + 2 * z
                key = (S1, S0)[z] + n
                a(f"s_cmp_eq_u64 {sr(m,2)}, 0")
                a(f"s_cbranch_scc1 L_nt{n}{sfx}")
                a(f"s_mov_b64 exec, {sr(m,2)}")
                a(f"v_mbcnt_lo_u32_b32 v{T0}, s{m}, 0")
                a(f"v_mbcnt_hi_u32_b32 v{T0}, s{m+1}, v{T0}")
                a(f"v_alignbit_b32 v{T1}, v{key}, v{key}, 1")
                a(f"v_add_u32 v{T0}, s{S_T0}, v{T0}")
                a(f"v_add3_u32 v{T1}, v{T1}, v{(VM0, VM1)[c]}, {4*q}")
                a(f"v_min_u32 v{T0}, 40, v{T0}")
                a(f"v_cmp_eq_u32 vcc, 32, v{T0}")
                a(f"s_bcnt1_i32_b64 s{S_T1}, {sr(m,2)}")
                a(f"s_add_u32 s{S_T0}, s{S_T0}, s{S_T1}")
                a(f"v_cndmask_b32 v{T0}, v{T0}, 40, vcc")
                a(f"v_lshlrev_b32 v{T0}, 2, v{T0}")
                a(f"v_add_u32 v{T0}, {L_PL}, v{T0}")
                a(f"ds_write_b32 v{T0}, v{T1}")
            a(f"L_nt{n}{sfx}:")
        a("s_mov_b64 exec, -1")
        a(f"L_nolist{sfx}:")
        a("s_waitcnt lgkmcnt(0)")
        a("s_barrier")
        a(f"s_cmp_lg_u32 s{S_WAVE}, 0")
        a(f"s_cbranch_scc1 L_nols{sfx}")
        a(f"v_lshlrev_b32 v{T0}, 2, {ln}")
        a(f"v_add_u32 v{T1}, {L_PL}, v{T0}")
        a(f"ds_read_b32 v{T1}, v{T1}")
        a(f"v_add_u32 v{T0}, s{S_C0+2}, v{T0}")
        a("s_waitcnt lgkmcnt(0)")
        a(f"v_readlane_b32 s{S_T0}, v{T1}, 32")
        a("s_nop 3")
        a(f"s_cmp_gt_u32 s{S_T0}, 32")
        a(f"s_cselect_b32 s{S_T0}, -1, 0")
        a(f"v_or_b32 v{T1}, s{S_T0}, v{T1}")
        a("s_mov_b32 exec_hi, 0")
        a(f"buffer_store_dword v{T1}, v{T0}, {sr(S_WS,4)}, 0 offen {ws}")
        a("s_mov_b64 exec, -1")
        a(f"L_nols{sfx}:")
        a("s_waitcnt vmcnt(0)")
        a("s_barrier")

    def lane_setup(self):
        a = self.a
        ln = f"v{V_LANE}"
        T0, T1, T2 = 72, 73, 74
        a(f"v_lshrrev_b32 v{T0}, 3, {ln}")
        a(f"v_and_b32 v{T1}, 7, {ln}")
        a(f"v_xor_b32 v{T1}, v{T1}, v{T0}")
        a(f"v_mul_u32_u24 v{T0}, 1152, v{T0}")
        a(f"s_and_b32 s{S_T0}, s{S_WAVE}, 1")
        a(f"s_mul_i32 s{S_T0}, s{S_T0}, 9216")
        a(f"s_lshr_b32 s{S_T1}, s{S_WAVE}, 1")
        a(f"s_lshl_b32 s{S_T1}, s{S_T1}, 7")
        a(f"s_add_u32 s{S_T0}, s{S_T0}, s{S_T1}")
        a(f"v_lshl_add_u32 v{T0}, v{T1}, 4, v{T0}")
        a(f"v_add_u32 v{V_DMA}, s{S_T0}, v{T0}")
        a(f"s_lshl_b32 s{S_M0B}, s{S_WAVE}, 10")
        a(f"s_mul_i32 s{S_XOFF}, s2, {TB}")
        a(f"s_mov_b32 s{S_OOFF}, s{S_XOFF}")

    def lane_setup2(self):
        a = self.a
        ln = f"v{V_LANE}"
        T0, T1, T2 = 72, 73, 74
        a(f"v_and_b32 v{T0}, 15, {ln}")
        a(f"v_lshrrev_b32 v{T1}, 4, {ln}")
        a(f"v_and_b32 v{T2}, 7, {ln}")
        a(f"v_xor_b32 v{T2}, v{T2}, v{T1}")
        a(f"v_lshlrev_b32 v{T2}, 4, v{T2}")
        a(f"v_lshl_add_u32 v{V_RD0}, v{T0}, 7, v{T2}")
        a(f"v_xor_b32 v{V_RD1}, 64, v{V_RD0}")
        a(f"s_lshl_b32 s{S_T0}, s{S_WAVE}, 10")
        a(f"s_add_u32 s{S_T0}, s{S_T0}, {L_TAB}")
        a(f"v_lshl_add_u32 v{V_TAB}, v{T1}, 4, s{S_T0}")
        a(f"v_and_b32 v{T2}, 14, {ln}")
        a(f"v_mul_u32_u24 v{V_ST}, 1152, v{T2}")
        a(f"v_and_b32 v{T2}, 1, {ln}")
        a(f"v_lshl_add_u32 v{V_ST}, v{T2}, 4, v{V_ST}")
        a(f"v_lshl_add_u32 v{V_ST}, v{T1}, 5, v{V_ST}")
        a(f"s_lshl_b32 s{S_T0}, s{S_WAVE}, 8")
        a(f"v_add_u32 v{V_ST}, s{S_T0}, v{V_ST}")
        if self.o["hack"] == "q4":
            a(f"v_lshrrev_b32 v{T2}, 3, {ln}")
            a(f"v_mul_u32_u24 v{V_ST}, 2304, v{T2}")
            a(f"v_and_b32 v{T2}, 7, {ln}")
            a(f"v_lshl_add_u32 v{V_ST}, v{T2}, 4, v{V_ST}")
            a(f"v_add_u32 v{V_ST}, s{S_T0}, v{V_ST}")
        a(f"s_lshl_b32 s{S_T0}, s{S_WAVE}, 5")
        a(f"s_add_u32 s{S_T0}, s{S_T0}, 1024")
        if self.o["bperm"]:
            a(f"v_lshrrev_b32 v{T0}, 2, {ln}")
            a(f"v_and_b32 v{T1}, 3, {ln}")
            a(f"v_lshl_add_u32 v{V_BP}, v{T1}, 4, v{T0}")
            a(f"v_lshlrev_b32 v{V_BP}, 2, v{V_BP}")
        a(f"v_mul_u32_u24 v{V_ST8}, 1152, v{T0}")
        a(f"v_lshl_add_u32 v{V_ST8}, v{T1}, 3, v{V_ST8}")
        a(f"v_add_u32 v{V_ST8}, s{S_T0}, v{V_ST8}")
        a(f"s_mov_b32 s{S_EVEN}, 0x55555555")
        a(f"s_mov_b32 s{S_EVEN+1}, 0x55555555")
        a(f"s_mov_b32 s{S_ODD}, 0xaaaaaaaa")
        a(f"s_mov_b32 s{S_ODD+1}, 0xaaaaaaaa")

    def dma_setup(self):
        a = self.a
        a(f"s_lshr_b32 s{S_T0}, s{S_WAVE}, 1")
        a(f"s_lshl_b32 s{S_T1}, s{S_T0}, 11")
        a(f"s_sub_u32 s{S_M05}, {16384-896}, s{S_T1}")
        a(f"s_lshl_b32 s{S_T1}, s{S_T0}, 7")
        a(f"s_add_u32 s{S_XOFF5}, s{S_XOFF}, 128")
        a(f"s_sub_u32 s{S_XOFF5}, s{S_XOFF5}, s{S_T1}")
        a(f"s_sub_u32 s{S_HALF}, s{S_T0}, 1")
        a(f"s_sub_u32 s{S_HALF+1}, 0, s{S_T0}")
        a(f"s_mov_b32 s{S_M0W}, s{S_M0B}")

    def dma_tile(self):
        a = self.a
        for j in range(5):
            a(f"s_add_u32 m0, s{S_M0B}, {3840*j if j < 4 else 's%d' % S_M05}")
            a("s_nop 0" if j < 4 else f"s_mov_b64 exec, {sr(S_HALF,2)}")
            a(f"buffer_load_dwordx4 v{V_DMA}, {sr(S_X,4)}, s{S_XOFF if j < 4 else S_XOFF5} offen offset:{256*j if j < 4 else 896} {self.o['ld']} lds")
        a("s_mov_b64 exec, -1")

    def prefetch(self, n):
        a = self.a
        a(f"s_mov_b32 s{S_IT}, {n}")
        a("L_pf:")
        self.dma_tile()
        a(f"s_add_u32 s{S_XOFF5}, s{S_XOFF5}, {256*TB}")
        a(f"s_add_u32 s{S_M0B}, s{S_M0B}, {TB}")
        a(f"s_add_u32 s{S_XOFF}, s{S_XOFF}, {256*TB}")
        a(f"s_sub_u32 s{S_IT}, s{S_IT}, 1")
        a(f"s_cmp_lg_u32 s{S_IT}, 0")
        a("s_cbranch_scc1 L_pf")

    def bias_load(self):
        a = self.a
        ln = f"v{V_LANE}"
        a(f"v_and_b32 v80, 3, {ln}")
        a(f"v_bfe_u32 v81, {ln}, 2, 2")
        a(f"v_bfe_u32 v82, {ln}, 4, 1")
        a("v_lshlrev_b32 v81, 3, v81")
        a("v_lshl_add_u32 v81, v80, 5, v81")
        a("v_lshl_add_u32 v81, v82, 7, v81")
        a(f"s_lshl_b32 s{S_T0}, s{S_WAVE}, 8")
        a(f"v_add_u32 v81, s{S_T0}, v81")
        a(f"s_lshl_b32 s{S_T0}, s{S_WAVE}, 5")
        a(f"s_add_u32 s{S_T0}, s{S_T0}, 1024")
        a(f"v_lshl_add_u32 v80, v80, 3, s{S_T0}")
        a(f"v_cmp_gt_u32 vcc, 32, {ln}")
        a("s_nop 1")
        a("v_cndmask_b32 v80, v80, v81, vcc")
        a(f"buffer_load_dwordx2 v[84:85], v80, {sr(S_B,4)}, 0 offen")

    def tables_init(self):
        a = self.a
        ln = f"v{V_LANE}"
        a(f"s_mul_i32 s{S_T0}, s{S_WAVE}, {WV_SZ}")
        a(f"s_add_u32 s{S_T0}, s{S_T0}, {L_WV}")
        a(f"v_lshl_add_u32 v88, {ln}, 4, s{S_T0}")
        a(f"v_lshl_add_u32 v89, {ln}, 2, s{S_T0}")
        for r in range(4):
            a(f"v_mov_b32 v{76+r}, 0")
        a("v_mov_b32 v90, 0xdddddddd")
        a("ds_write_b128 v88, v[76:79]")
        for r in range(7):
            a(f"ds_write_b32 v89, v90 offset:{1024+256*r}")
        a(f"v_mov_b32 v88, {L_PL + 256}")
        a("ds_write_b32 v88, v76")

    def bias_store(self):
        a = self.a
        ln = f"v{V_LANE}"
        a("v_lshlrev_b32 v76, 16, v84")
        a("v_and_b32 v77, 0xffff0000, v84")
        a("v_lshlrev_b32 v78, 16, v85")
        a("v_and_b32 v79, 0xffff0000, v85")
        a(f"s_lshl_b32 s{S_T0}, s{S_WAVE}, 10")
        a(f"s_add_u32 s{S_T0}, s{S_T0}, {L_TAB}")
        a(f"v_lshl_add_u32 v80, {ln}, 4, s{S_T0}")
        a("s_mov_b32 exec_hi, 15")
        a("ds_write_b128 v80, v[76:79]")
        a("s_mov_b64 exec, -1")

    def wload_list(self, VA, VI8):
        wl = self.o["wl"]
        G = []
        so = S_C0 + 6
        cur = None
        for sp in range(5):
            g = []
            if sp == 4:
                g.append(f"s_mov_b32 s{so}, 4096")
            g.append(f"buffer_load_dword v{V_I8+sp}, v{VI8}, {sr(S_WS,4)}, {'s%d' % so if sp == 4 else '0'} offen offset:{1024*(sp%4)} {wl}")
            G.append(g)
        for s in range(9):
            G.append([f"s_mov_b32 s{so-1}, {1024*s}",
                      f"buffer_load_dwordx4 {vr(V_I+4*s,4)}, v{VA+1}, {sr(S_WS,4)}, s{so-1} offen {wl}"])
            for t in range(9):
                f = 9 * s + t
                g = []
                if cur != f >> 2:
                    cur = f >> 2
                    g.append(f"s_mov_b32 s{so}, {4096*cur}")
                g.append(f"buffer_load_dwordx4 {afrag(s,t)}, v{VA}, {sr(S_WS,4)}, s{so} offen offset:{1024*(f&3)} {wl}")
                G.append(g)
        return G

    def waddr(self, VA, VI8):
        a = self.a
        ln = f"v{V_LANE}"
        a(f"s_mul_i32 s{S_T0}, s{S_WAVE}, 82944")
        a(f"s_add_u32 s{S_T0}, s{S_T0}, s{S_BASE}")
        a(f"v_lshl_add_u32 v{VA}, {ln}, 4, s{S_T0}")
        a(f"s_mul_i32 s{S_T0}, s{S_WAVE}, 9216")
        a(f"s_add_u32 s{S_T0}, s{S_T0}, s{S_BASE}")
        a(f"s_add_u32 s{S_T0}, s{S_T0}, {I_OFF}")
        a(f"v_lshl_add_u32 v{VA+1}, {ln}, 4, s{S_T0}")
        a(f"s_lshl_b32 s{S_T0}, s{S_WAVE}, 6")
        a(f"s_add_u32 s{S_T0}, s{S_T0}, s{S_BASE}")
        a(f"s_add_u32 s{S_T0}, s{S_T0}, {I8_OFF}")
        a(f"v_and_b32 v{VI8}, 15, {ln}")
        a(f"v_lshl_add_u32 v{VI8}, v{VI8}, 2, s{S_T0}")
        a(f"v_lshrrev_b32 v{VI8+1}, 4, {ln}")
        a(f"v_lshl_add_u32 v{VI8}, v{VI8+1}, 8, v{VI8}")

    def build(self):
        a = self.a
        ln = f"v{V_LANE}"
        wl = self.o["wl"]
        VA, VI8 = 104, 106
        E, TT, RK = 8, 16, 24
        T0, T1, T2, T3, T4 = 32, 33, 34, 35, 36
        ONE, HI, VW, VST, RX = 37, 38, 39, 40, 41
        RB = 44
        SW, SW8 = S_C0, S_C0 + 1
        a(f"s_mul_i32 s{S_T0}, s{S_WAVE}, 1152")
        a(f"s_add_u32 s{S_T0}, s{S_T0}, s{S_BASE}")
        a(f"s_add_u32 s{S_T0}, s{S_T0}, {R1_OFF}")
        a(f"v_lshl_add_u32 v{T0}, {ln}, 2, s{S_T0}")
        a(f"s_add_u32 s{S_T0}, s{S_BASE}, {R8_OFF}")
        a(f"v_lshl_add_u32 v{T1}, {ln}, 2, s{S_T0}")
        a(f"v_add_u32 v{T2}, 1024, v{T0}")
        a(f"v_add_u32 v{T3}, 384, v{T1}")
        a(f"v_cmp_gt_u32 vcc, 32, {ln}")
        self.waddr(VA, VI8)
        a(f"v_cndmask_b32 v{T2}, v{T3}, v{T2}, vcc")
        yield_point = len(self.L)
        pre = []
        for r in range(4):
            pre.append(f"buffer_load_dword v{E+r}, v{T0}, {sr(S_WS,4)}, 0 offen offset:{256*r} {wl}")
        pre.append(f"buffer_load_dword v{E+4}, v{T2}, {sr(S_WS,4)}, 0 offen {wl}")
        for r in range(2):
            pre.append(f"buffer_load_dword v{E+5+r}, v{T1}, {sr(S_WS,4)}, 0 offen offset:{256*r} {wl}")
        C = []
        g = lambda *x: C.append(list(x))
        g(f"s_mul_i32 s{SW}, s{S_WAVE}, {WV_SZ}", f"s_add_u32 s{SW}, s{SW}, {L_WV}", f"s_add_u32 s{SW8}, s{S_WAVE}, 8",
          f"v_mov_b32 v{ONE}, 1", f"v_lshrrev_b32 v{HI}, 5, {ln}", f"v_lshl_add_u32 v{VW}, {ln}, 2, s{SW}",
          f"s_mov_b64 {sr(S_BAD,2)}, 0")
        g(f"v_and_b32 v{T0}, 15, {ln}", f"v_and_b32 v{T1}, 7, {ln}", f"v_lshlrev_b32 v{T1}, 4, v{T1}",
          f"v_lshl_add_u32 v{RX}, v{T0}, 7, v{T1}", f"v_lshl_or_b32 v{RX}, v{RX}, 16, v{RX}")
        g("@WAIT_E")
        for r in range(7):
            m = S_MASK + 2 * r
            x = [f"v_bfe_u32 v{T0}, v{E+r}, 11, 4", f"v_cmp_eq_u32 vcc, -1, v{E+r}"]
            if r < 4:
                x += [f"v_cmp_ne_u32 {sr(m,2)}, 0, v{E+r}", f"v_min_u32 v{T0}, 8, v{T0}",
                      f"s_or_b64 {sr(S_BAD,2)}, {sr(S_BAD,2)}, vcc"]
            elif r > 4:
                x += [f"v_cmp_eq_u32 {sr(m,2)}, s{SW8}, v{T0}", f"v_min_u32 v{T0}, 8, v{T0}",
                      f"s_or_b64 {sr(S_BAD,2)}, {sr(S_BAD,2)}, vcc"]
            else:
                x += [f"v_cmp_ne_u32 {sr(m,2)}, 0, v{E+r}", f"v_cmp_eq_u32 {sr(m+2,2)}, s{SW8}, v{T0}",
                      f"v_min_u32 v{T0}, 8, v{T0}", f"s_or_b64 {sr(S_BAD,2)}, {sr(S_BAD,2)}, vcc",
                      "s_nop 1", f"s_mov_b32 s{m+1}, s{m+3}"]
            x += [f"v_lshl_add_u32 v{TT+r}, v{T0}, 2, s{SW}", f"s_mov_b64 exec, {sr(m,2)}",
                  f"ds_add_rtn_u32 v{RK+r}, v{TT+r}, v{ONE}", "s_mov_b64 exec, -1"]
            g(*x)
        g(f"ds_read_b32 v{T0}, v{VW}", f"v_mov_b32 v{VST}, 0", f"s_mov_b32 s{S_T0}, 0", f"s_mov_b32 s{S_T2}, 0")
        g("s_waitcnt lgkmcnt(0)")
        for t in range(9):
            lo, up = 32 * (t >> 1), 32 * (t >> 1) + (64 if t & 1 else 32)
            g(f"v_readlane_b32 s{S_T1}, v{T0}, {t}", f"s_max_u32 s{S_T0}, s{S_T0}, {lo}",
              f"v_writelane_b32 v{VST}, s{S_T0}, {t}", "s_nop 1", f"s_add_u32 s{S_T0}, s{S_T0}, s{S_T1}",
              f"s_cmp_gt_u32 s{S_T0}, {up}", f"s_addc_u32 s{S_T2}, s{S_T2}, 0")
        x = [f"s_or_b32 s{S_BAD}, s{S_BAD}, s{S_T2}", f"s_cmp_lg_u64 {sr(S_BAD,2)}, 0", f"s_cselect_b64 {sr(S_BAD,2)}, -1, 0",
             f"v_mov_b32 v{T1}, {L_PL + 256}", f"s_mov_b64 exec, {sr(S_BAD,2)}", f"ds_write_b32 v{T1}, v{ONE}", "s_mov_b64 exec, -1"]
        for r in range(7):
            x.append(f"s_andn2_b64 {sr(S_MASK+2*r,2)}, {sr(S_MASK+2*r,2)}, {sr(S_BAD,2)}")
        g(*x)
        ST = 60
        g(*[f"ds_bpermute_b32 v{ST+r}, v{TT+r}, v{VST}" for r in range(7)])
        g(f"s_mov_b32 s{S_C0+2}, 0xffff0000", f"s_add_u32 s{S_C0+3}, s{SW}, 256", f"s_add_u32 s{S_C0+4}, s{SW}, 1024", "s_waitcnt lgkmcnt(0)")
        for r in range(7):
            m = S_MASK + 2 * r
            x = [f"v_add_u32 v{RK+r}, v{RK+r}, v{ST+r}",
                 f"v_and_b32 v{T0}, 63, v{E+r}", f"v_lshlrev_b32 v{T0}, 1, v{T0}"]
            if r < 4:
                x += [f"v_lshl_add_u32 v{T0}, v{HI}, 11, v{T0}"]
                kb = 4096 * r
            elif r == 4:
                kb = 16384
            else:
                x += [f"v_lshl_add_u32 v{T0}, v{HI}, 12, v{T0}", f"v_and_b32 v{T1}, 64, v{E+r}",
                      f"v_lshl_add_u32 v{T0}, v{T1}, 5, v{T0}"]
                kb = 8192 * (r - 5)
            if kb:
                x += [f"v_add_u32 v{T0}, {kb}, v{T0}"]
            x += [f"v_and_or_b32 v{T0}, v{E+r}, s{S_C0+2}, v{T0}", f"v_lshl_add_u32 v{T1}, v{RK+r}, 2, s{S_C0+3}"]
            g(*x)
            g(f"v_bfe_u32 v{T2}, v{TT+r}, 2, 4", f"v_lshrrev_b32 v{T3}, 5, v{RK+r}", f"v_add_u32 v{T2}, v{T2}, v{T3}",
              f"v_and_b32 v{T3}, 1, v{T2}", f"v_lshrrev_b32 v{T2}, 1, v{T2}", f"v_and_b32 v{T4}, 7, v{RK+r}",
              f"v_lshl_add_u32 v{T3}, v{T3}, 3, v{T4}", f"v_lshlrev_b32 v{T3}, 1, v{T3}", f"v_lshlrev_b32 v{T3}, v{T3}, v{ONE}")
            g(f"v_bfe_u32 v{T4}, v{RK+r}, 3, 2", f"v_lshl_add_u32 v{T2}, v{T2}, 2, v{T4}", f"v_bfe_u32 v{T4}, v{E+r}, 7, 4",
              f"v_lshl_add_u32 v{T2}, v{T2}, 4, v{T4}", f"v_lshl_add_u32 v{T2}, v{T2}, 2, s{S_C0+4}",
              f"s_mov_b64 exec, {sr(m,2)}", f"ds_write_b32 v{T1}, v{T0}", f"ds_xor_b32 v{T2}, v{T3}", "s_mov_b64 exec, -1")
        g(f"v_lshrrev_b32 v{T0}, 4, {ln}", f"v_lshl_add_u32 v{T1}, v{T0}, 5, s{S_C0+3}", f"v_lshl_add_u32 v{T2}, v{T0}, 4, s{S_C0+3}",
          f"s_mov_b32 s{S_C0+2}, 0x07060302", f"s_mov_b32 s{S_C0+4}, 0x05040100")
        g(*[f"ds_read_b32 v{V_IR+r}, v{VW} offset:{1024+256*r}" for r in range(7)])
        for j in range(5):
            g(f"ds_read_b128 {vr(RB,4)}, v{T1} offset:{128*j}", f"ds_read_b128 {vr(RB+4,4)}, v{T1} offset:{128*j+16}",
              f"ds_read_b128 {vr(RB+8,4)}, v{T2} offset:{128*j}", f"ds_read_b128 {vr(RB+12,4)}, v{T2} offset:{128*j+64}")
            g("s_waitcnt lgkmcnt(2)", *[f"v_perm_b32 v{V_X+q}, v{RB+2*q+1}, v{RB+2*q}, s{S_C0+2}" for q in range(4)],
              f"ds_write_b128 v{V_TAB}, {vr(V_X,4)} offset:{576+64*j}")
            g("s_waitcnt lgkmcnt(1)", *[f"v_perm_b32 v{V_AD+4*j+q}, v{RB+8+2*q+1}, v{RB+8+2*q}, s{S_C0+4}" for q in range(4)],
              *[f"v_xor_b32 v{V_AD+4*j+q}, v{RX}, v{V_AD+4*j+q}" if self.o["hack"] != "bc" else f"v_mov_b32 v{V_AD+4*j+q}, 0" for q in range(4)])
        return yield_point, pre, C, self.wload_list(VA, VI8)

    def emit_build(self, pre, C, G):
        a = self.a
        for x in pre:
            a(x)
        nl = 0
        G = list(G)

        def load(n=1):
            nonlocal nl
            for _ in range(n):
                if G:
                    for x in G.pop(0):
                        a(x)
                    nl += 1
        acc = 0
        for grp in C:
            if grp[0] == "@WAIT_E":
                load(12)
                a(f"s_waitcnt vmcnt({nl})")
                continue
            if grp[0].startswith("s_waitcnt lgkmcnt"):
                load(2)
            for x in grp:
                a(x)
            acc += len(grp)
            while acc >= self.o["lper"]:
                acc -= self.o["lper"]
                load()
        load(len(G))

    def loop_ops(self, links):
        o = self.o
        acc = lambda t: rng(V_ACC + 4 * t, 4)
        bb = lambda s: V_B + 8 * BBUF[s]
        rt = RT if links else [[0, 1], [2, 3], [4, 5], [6, 7], [8]]
        ng = [8, 8, 8, 8, 8 if links else o["ng4"]]

        def M(s, t):
            ir, h = aidx(s, t)
            return Op(f"v_smfmac_f32_16x16x64_bf16 {vr(V_ACC+4*t,4)}, {afrag(s,t)}, {vr(bb(s),8)}, v{ir}" + (" abid:1" if h else ""),
                      "mx", rd=list(acc(t)) + list(rng(bb(s), 8)), wr=acc(t), tag=("M", s, t))

        def R(j, t):
            c = j + t
            return Op(f"v_smfmac_f32_16x16x64_bf16 {vr(V_ACC+4*t,4)}, {vr(V_X,4)}, {vr(RBUF[j],8)}, v{V_IR+(c>>1)}" + (" abid:1" if c & 1 else ""),
                      "mx", rd=list(acc(t)) + list(rng(RBUF[j], 8)) + list(rng(V_X, 4)), wr=acc(t), tag=("R", j, t))
        seq = []
        for t in range(9):
            seq += [M(0, t), M(1, t)]
        for s in range(2, 7):
            seq += [M(s, t) for t in range(9)]
        for t in range(9):
            seq += [M(7, t), M(8, t)]
        rpos = list(o["rposl"] if links else o["rpos"])
        for j in range(5):
            for n, t in enumerate(rt[j]):
                seq.insert(rpos[j] + n, R(j, t))
        N = len(seq)
        pos = {x.tag: i for i, x in enumerate(seq)}
        BAR = rpos[4] + len(rt[4]) - 1
        assert BAR == N - 15
        T = lambda g: (g - BAR - 1) % N
        first = lambda s: T(min(pos[("M", s, t)] for t in range(9)))
        lastu = lambda s: max(pos[("M", s, t)] for t in range(9))
        LEAD = o["lead"]
        ST = [[] for _ in range(N)]
        S = [[] for _ in range(N)]
        D = [[] for _ in range(N)]
        V = [[] for _ in range(N)]
        keep = lambda op: not any(d in op.text for d in o["drop"])

        def pdst(t, h):
            return V_P8 + h if t == 8 else V_P + 2 * t + h
        dq, vq = [], []
        for t in range(9):
            for h in range(2):
                V[2 * t + h].append(Op(f"v_cvt_pk_bf16_f32 v{pdst(t,h)}, v{V_ACC+4*t+2*h}, v{V_ACC+4*t+2*h+1}", "valu",
                                       rd=[V_ACC + 4 * t + 2 * h, V_ACC + 4 * t + 2 * h + 1], wr=[pdst(t, h)], tag="epi"))
            dq.append([Op(f"ds_read_b128 {vr(V_ACC+4*t,4)}, v{V_TAB} offset:{64*t}", "lds", rd=[V_TAB], wr=acc(t), tag="pre"),
                       2 * t + 2, 2 * t + 2, None])
        dpp = "quad_perm:[1,0,3,2] row_mask:0xf bank_mask:0xf"
        stg = [T(g) for g in o["stg"]]
        for v in range(2):
            p0, p1 = V_P + 8 * v, V_P + 8 * v + 4
            d0 = V_T if v == 0 else V_P
            for half in range(2):
                e = 2 * v + half
                for d in range(4):
                    if half == 0:
                        op = Op(f"v_cndmask_b32_dpp v{d0+d}, v{p1+d}, v{p0+d}, vcc {dpp}", "dpp", rd=[p0 + d, p1 + d], wr=[d0 + d], tag="epi")
                    else:
                        op = Op(f"v_cndmask_b32_dpp v{p1+d}, v{p0+d}, v{p1+d}, vcc {dpp}", "dpp", rd=[p0 + d, p1 + d], wr=[p1 + d], tag="epi")
                    vq.append([op, stg[e - 1] if e else 18, stg[e] - 4 + d, None])
                src = d0 if half == 0 else p1
                ST[stg[e]].append(Op(f"buffer_store_dwordx4 {vr(src,4)}, v{V_ST}, {sr(S_OUT,4)}, s{S_OOFF} offen offset:{1152*half+128*v} {o['st']}",
                                     "st", rd=list(rng(src, 4)) + [V_ST], tag="epi"))
                ST[stg[e]].append(Op(f"s_mov_b64 vcc, {sr((S_ODD, S_EVEN)[half],2)}", "salu", tag="epi"))
        if o["bperm"]:
            for h in range(2):
                dq.append([Op(f"ds_bpermute_b32 v{V_P8+h}, v{V_BP}, v{V_P8+h}", "lds", rd=[V_BP, V_P8 + h], wr=[V_P8 + h], tag="epi"),
                           18, stg[4] - LEAD - 2 + h, None])
        ST[stg[4]].append(Op(f"buffer_store_dwordx2 {vr(V_P8,2)}, v{V_ST8}, {sr(S_OUT,4)}, s{S_OOFF} offen {o['st']}", "st",
                             rd=[V_P8, V_P8 + 1, V_ST8], tag="epi"))
        rl = lambda j: T(rpos[j] + len(rt[j]) - 1)
        free = [rl(2), 0, rl(0), stg[2] + 1, rl(1)]
        for j in range(5):
            dl = T(rpos[j]) - LEAD - 1
            for b in range(ng[j]):
                r = RBUF[j] + b
                ad = V_AD + 4 * j + (b >> 1)
                av = Op(f"v_add_u32_sdwa v{r}, s{S_BUFN if j == 0 else S_BUF}, v{ad} dst_sel:DWORD dst_unused:UNUSED_PAD src0_sel:DWORD src1_sel:WORD_{b&1}",
                        "valu", rd=[ad], wr=[r], tag="pre" if j == 0 else "")
                gd = dl - o["gsp"] * (ng[j] - 1 - b)
                vq.append([av, free[j], (N - 2 - (7 - b)) if j == 0 else gd - 1, None])
                dq.append([Op(f"ds_read_u16 v{r}, v{r}", "lds", rd=[r], wr=[r], tag="pre"), 0, gd, None if j == 0 else av])
            dq.append([Op(f"ds_read_b128 {vr(V_X,4)}, v{V_TAB} offset:{576+64*j}", "lds", rd=[V_TAB], wr=rng(V_X, 4), tag="pre"),
                       0 if j == 0 else rl(j - 1), dl, None])
        prev = {0: None, 1: None, 2: 7, 3: 8, 4: 0, 5: 1, 6: 4, 7: 2, 8: 3}
        lastb = []
        for s in range(9):
            for h in range(2):
                op = Op(f"ds_read_b128 {vr(bb(s)+4*h,4)}, v{(V_RD0, V_RD1)[h]} offset:{2048*s}", "lds",
                        rd=[(V_RD0, V_RD1)[h]], wr=rng(bb(s) + 4 * h, 4), tag="pre")
                fs = first(s) if s < 7 else T(pos[("M", s, 0)])
                dq.append([op, 0 if prev[s] is None else T(lastu(prev[s])), fs - LEAD - 2 + h, None])
                lastb.append(op)
        for h in range(2):
            vq.append([Op(f"v_add_u32 v{V_RD0+h}, s{S_DELTA}, v{V_RD0+h}", "valu", rd=[V_RD0 + h], wr=[V_RD0 + h]), 0, N - 2, lastb])
        sq = []
        if not o["nodma"]:
            for j, g in enumerate(o["dmag"]):
                g = T(g)
                ld = f"buffer_load_dwordx4 v{V_DMA}, {sr(S_X,4)}, s{S_XOFF if j < 4 else S_XOFF5} offen offset:{256*j if j < 4 else 896} {o['ld']} lds"
                if j < 4:
                    D[g].append(Op(ld, "dma", rd=[V_DMA]))
                    S[g - 1].append(Op(f"s_add_u32 m0, s{S_M0B}, {3840*j}", "salu"))
                else:
                    D[g] += [Op(f"s_mov_b64 exec, {sr(S_HALF,2)}", "salu"), Op(ld, "dma", rd=[V_DMA]), Op("s_mov_b64 exec, -1", "salu")]
                    S[g - 1].append(Op(f"s_add_u32 m0, s{S_M0B}, s{S_M05}", "salu"))
                    V[g] = None
        placed = {}
        for g in range(N - 1):
            if not D[g] and g != T(N - 1):
                c = [x for x in dq if x[1] <= g and (x[3] is None or placed.get(id(x[3]), N) < g) and x[2] - g <= o["eager"]]
                if c:
                    x = min(c, key=lambda x: x[2])
                    dq.remove(x)
                    D[g].append(x[0])
                    placed[id(x[0])] = g
                    if g > x[2] and o["verbose"]:
                        print("; late D", g - x[2], x[0].text, file=sys.stderr)
            if V[g] is None:
                V[g] = []
                continue
            cap = 2 if (ST[g] and "x4" in ST[g][0].text) else 1
            while len(V[g]) < cap:
                c = [x for x in vq if x[1] <= g and (x[3] is None or all(placed.get(id(y), N) <= g for y in x[3]))]
                if not c:
                    break
                x = min(c, key=lambda x: x[2])
                vq.remove(x)
                V[g].append(x[0])
                placed[id(x[0])] = g
                assert g <= x[2] or x[0].kind != "dpp", ("late", x[0].text)
        assert not dq and not vq, ([x[0].text for x in dq], [x[0].text for x in vq])
        S[N - 1] += [Op(f"s_waitcnt vmcnt({o['vmw']})", "salu"), Op("s_barrier", "bar")]
        lastdma = T(o["dmag"][4])
        la = max(placed[id(x)] for gl in V for x in gl if id(x) in placed and f"s{S_BUF}," in x.text)
        fn = min(placed[id(x)] for gl in V for x in gl if id(x) in placed and (f"s{S_BUFN}," in x.text or f"s{S_DELTA}," in x.text))
        sq = [([f"s_mov_b32 s{S_BUF}, s{S_BUFN}"], 0, 17),
              ([f"s_cmp_eq_u32 s{S_BUFN}, {(NB-1)*TB}", f"s_cselect_b32 s{S_DELTA}, {-(NB-1)*TB}, s{S_CTB}", f"s_add_u32 s{S_BUFN}, s{S_BUFN}, s{S_DELTA}"], 18, fn),
              ([f"s_mov_b32 s{S_OUT+2}, {XBYTES}", f"s_add_u32 s{S_OOFF}, s{S_OOFF}, s{S_OINC}", f"s_mov_b32 s{S_OINC}, {256*TB}"], stg[4] + 1, N - 2),
              ([f"s_add_u32 s{S_IT}, s{S_IT}, 1"], 18, N - 2)]
        if not o["nodma"]:
            sq += [([f"s_add_u32 s{S_XOFF}, s{S_XOFF}, {256*TB}", f"s_add_u32 s{S_XOFF5}, s{S_XOFF5}, {256*TB}",
                     f"s_add_u32 s{S_M0B}, s{S_BUF}, s{S_M0W}"], lastdma + 1, N - 2),
                   ([f"s_cmp_lt_u32 s{S_IT}, {17-NB}", f"s_cselect_b32 s{S_X+2}, s{S_OUT+2}, 0"], 0, 12)]
        sq.append(([f"s_cmp_lt_u32 s{S_IT}, 16"], T(N - 1) - 1, T(N - 1) - 1))
        G = lambda A: [[x for x in A[T(g)] if keep(x)] for g in range(N)]
        return seq, G(ST), G(S), G(D), G(V), [(x, (lo + BAR + 1), (hi + BAR + 1)) for x, lo, hi in sq], BAR

    def assemble_loop(self, links, label):
        seq, ST, S, D, V, sq, BAR = self.loop_ops(links)
        N = len(seq)
        flat = []
        for rep in range(2):
            for g in range(N):
                a0 = rep * N + g
                flat.append((seq[g], a0 - 1))
                for x in ST[g]:
                    flat.append((x, a0 - 1))
                for x in D[g] + V[g]:
                    flat.append((x, a0))
        gap_of = {}
        k = 0
        lds = []
        for rep in range(2):
            for g in range(N):
                k += 1 + len(ST[g])
                for x in D[g] + V[g]:
                    if x.kind == "lds":
                        lds.append((k, rep * N + g))
                    k += 1
        done = -1
        W = {}
        minlead = 99
        for i, (op, wg) in enumerate(flat):
            touched = op.rd | op.wr
            need = -1
            for n, (k, g) in enumerate(lds):
                if k < i and n > done and (flat[k][0].wr & touched):
                    need = n
            if need >= 0:
                assert lds[need][1] < wg
                issued = [n for n, (k, g) in enumerate(lds) if g < wg]
                cnt = min(issued[-1] - need, 15)
                done = issued[-1] - cnt
                if wg >= N - 1 and wg < 2 * N - 1:
                    W[wg % N] = min(cnt, W.get(wg % N, 99))
                    if self.o["verbose"]:
                        print(f"; wait gap {wg % N} cnt {cnt} lead {wg - lds[need][1]} for {flat[lds[need][0]][0].text}", file=sys.stderr)
        for g, c in W.items():
            S[g].insert(0, Op(f"s_waitcnt lgkmcnt({c})", "salu"))
        if not self.o["drop"]:
            last = max(g for g in range(BAR + 1) if any(x.kind == "lds" for x in D[g]))
            assert any(W.get(g) == 0 for g in range(last + 1, BAR + 1)), "tile reads not drained at the barrier"

        def room(g):
            g %= N
            if g == BAR or g == N - 1 or any(x.kind == "dma" for x in D[g]):
                return False
            cap = 1 if D[g] else (2 if V[g] else 3)
            return len(S[g]) < cap and not ST[g]
        sccfree = lambda x: x.text.startswith(("s_waitcnt", "s_mov", "s_barrier"))
        locked = set()
        for texts, lo, hi in sq:
            g = lo
            for n, tx in enumerate(texts):
                while True:
                    assert g <= hi, ("no room", tx)
                    ok = room(g) and ((g % N) not in locked or tx.startswith("s_mov"))
                    if ok and tx.startswith("s_cmp") and n + 1 < len(texts):
                        g2 = g + 1
                        while not room(g2) and all(sccfree(x) for x in S[g2 % N]):
                            g2 += 1
                        ok = room(g2) and all(sccfree(x) for x in S[g2 % N])
                        if ok:
                            locked.update(z % N for z in range(g, g2))
                    if ok:
                        break
                    g += 1
                S[g % N].append(Op(tx, "salu"))
                if tx.startswith("s_cselect"):
                    locked.add(g % N)
                g += 1
        assert all(sccfree(x) for x in S[N - 1])
        body = []
        for g in range(N):
            body += [seq[g]] + ST[g] + S[g] + D[g] + V[g]
        body.append(Op(f"s_cbranch_scc1 {label}", "salu"))
        if not self.o["drop"]:
            m = len(body)
            for i, op in enumerate(body):
                for d in range(1, 10):
                    p = body[(i - d) % m]
                    ws = d - 1
                    if p.kind == "mx" and op.kind != "mx" and (p.wr & (op.rd | op.wr)):
                        assert ws >= 8, ("mx->x", p.text, op.text, ws)
                    if p.kind in ("valu", "dpp") and op.kind == "mx" and (p.wr & op.rd):
                        assert ws >= 2, ("valu->mx", p.text, op.text, ws)
                    if p.kind in ("valu", "dpp") and op.kind == "dpp" and (p.wr & op.rd):
                        assert ws >= 2, ("valu->dpp", p.text, op.text, ws)
                    if p.kind == "st" and (p.rd & op.wr):
                        assert ws >= 2, ("st war", p.text, op.text, ws)
        pro = [x for g in range(N) for x in V[g] if x.tag == "pre"] + [x for g in range(BAR + 1, N) for x in D[g] if x.tag == "pre"]
        epi = [x for g in range(BAR) for x in ST[g] + D[g] + V[g] if x.tag == "epi"]
        return pro, body, epi

    def main_loop(self, links, sfx):
        a = self.a
        pro, body, epi = self.assemble_loop(links, "L_loop" + sfx)
        for op in pro:
            a(op.text)
        a("s_waitcnt lgkmcnt(0)")
        a(".p2align 6")
        a(f"L_loop{sfx}:")
        for op in body:
            a(op.text)
        a("s_nop 7")
        for op in epi:
            if op.kind in ("dpp", "lds"):
                a("s_nop 1")
            if op.kind == "st":
                a("s_waitcnt lgkmcnt(0)")
            a(op.text)
            if op.kind == "st":
                a("s_nop 1")

    def loop_state(self):
        a = self.a
        a(f"s_mov_b32 s{S_IT}, 0")
        a(f"s_mov_b32 s{S_BUF}, 0")
        a(f"s_mov_b32 s{S_BUFN}, 0")
        a(f"s_mov_b32 s{S_CTB}, {TB}")
        a(f"s_mov_b32 s{S_OINC}, 0")
        a(f"s_mov_b64 vcc, {sr(S_EVEN,2)}")

    def stamp(self, n):
        if self.o["stamp"]:
            a = self.a
            a("s_memtime s[98:99]" if self.o["cyc"] and n in (5, 6) else "s_memrealtime s[98:99]")
            a("s_waitcnt lgkmcnt(0)")
            a(f"v_writelane_b32 v255, s98, {n}")

    def descriptor(self, label, vg, ag):
        self.a(f""".amdhsa_kernel {label}
  .amdhsa_next_free_vgpr {vg}
  .amdhsa_next_free_sgpr 102
  .amdhsa_accum_offset {ag}
  .amdhsa_group_segment_fixed_size 0
  .amdhsa_kernarg_size 48
  .amdhsa_user_sgpr_count 2
  .amdhsa_user_sgpr_kernarg_segment_ptr 1
  .amdhsa_system_sgpr_workgroup_id_x 1
.end_amdhsa_kernel""")

    def flush_tail(self):
        for b in self.tailblocks:
            self.a(b)
        self.tailblocks = []

    def gen(self):
        a = self.a
        o = self.o
        K = NAME + "_kernel"
        a(open("cdna_kernels/" + NAME + ".s.ref").read().split("; Override")[0].rstrip())
        if o["fused"]:
            a(f"; @launch grid=(256,1,1) block=(256,1,1) lds={LDS_BYTES}")
        else:
            a(f"; @launch kernel=prep_kernel grid=({NTASK},1,1) block=(256,1,1) lds={LDS_BYTES}")
            a(f"; @launch kernel={K} grid=(256,1,1) block=(256,1,1) lds={LDS_BYTES}")
        a('.amdgcn_target "amdgcn-amd-amdhsa--gfx950"\n.text')
        if not o["fused"]:
            self.entry("prep_kernel", NTASK)
            a(f"s_mov_b32 s{S_TASK}, s2\ns_mov_b32 s{S_BASE}, 0\ns_mov_b32 s{S_MODE}, 0")
            self.producer("")
            a("L_end_prep_kernel:\ns_endpgm")
            self.flush_tail()
        self.entry(K, 256)
        a(f"s_mov_b32 s{S_BASE}, 0\ns_mov_b32 s{S_MODE}, 0")
        if o["fused"]:
            a(f"s_mov_b32 s{S_TASK}, s2")
            a(f"s_cmp_ge_u32 s2, {NTASK}")
            a("s_cbranch_scc1 L_cons")
            self.producer("")
            a(f"s_cmp_lg_u32 s{S_WAVE}, 0")
            a("s_cbranch_scc1 L_cons2")
            a("v_mov_b32 v8, 1")
            a("s_mov_b64 exec, 1")
            a(f"buffer_atomic_add v8, off, {sr(S_DBG,4)}, 0 sc1")
            a("s_mov_b64 exec, -1")
            a("L_cons2:")
            self.lane_setup()
            a("s_branch L_cons3")
            a("L_cons:")
        self.lane_setup()
        self.entry_wait()
        a("L_cons3:")
        self.stamp(1)
        self.dma_setup()
        self.bias_load()
        self.prefetch(NB - 1)
        self.stamp(2)
        self.lane_setup2()
        self.tables_init()
        a(f"s_waitcnt vmcnt({5*(NB-1)})")
        self.bias_store()
        yp, pre, C, G = self.build()
        if o["fused"]:
            a(f"s_cmp_lg_u32 s{S_WAVE}, 0")
            a("s_cbranch_scc1 L_ready")
            a("L_poll:")
            a(f"buffer_load_dword v8, off, {sr(S_DBG,4)}, 0 sc1")
            a("s_waitcnt vmcnt(0)")
            a(f"v_readfirstlane_b32 s{S_T0}, v8")
            a("s_nop 3")
            a(f"s_cmp_lt_u32 s{S_T0}, {NTASK}")
            a("s_cbranch_scc1 L_poll")
            a("L_ready:")
        a("s_waitcnt lgkmcnt(0)")
        a("s_barrier")
        self.stamp(3)
        self.emit_build(pre, C, G)
        self.stamp(4)
        a("s_waitcnt vmcnt(0) lgkmcnt(0)")
        a("s_barrier")
        self.stamp(5)
        self.loop_state()
        self.main_loop(o["links"], "")
        self.stamp(6)
        if o["stamp"]:
            a("s_waitcnt vmcnt(0)")
            self.stamp(7)
            a("v_writelane_b32 v255, s100, 0")
            a(f"s_lshl_b32 s{S_T0}, s2, 2\ns_add_u32 s{S_T0}, s{S_T0}, s{S_WAVE}\ns_lshl_b32 s{S_T0}, s{S_T0}, 5")
            a(f"s_add_u32 s{S_T0}, s{S_T0}, {WSBYTES - 65536}")
            a(f"v_lshl_add_u32 v254, v{V_LANE}, 2, s{S_T0}")
            a("s_mov_b32 exec_lo, 0xff\ns_mov_b32 exec_hi, 0")
            a(f"buffer_store_dword v255, v254, {sr(S_WS,4)}, 0 offen")
        a(f"L_end_{K}:\ns_endpgm")
        self.flush_tail()
        a('.section .rodata,"a"\n.p2align 6')
        if not o["fused"]:
            self.descriptor("prep_kernel", 128, 128)
            a(".p2align 6")
        self.descriptor(K, 512, 256)
        return "\n".join(self.L) + "\n"


if __name__ == "__main__":
    opts = eval("dict(" + (sys.argv[2] if len(sys.argv) > 2 else "") + ")")
    out = sys.argv[1] if len(sys.argv) > 1 else "cdna_kernels/" + NAME + ".s"
    open(out, "w").write(Gen(**opts).gen())
```

```python
import sys

NAME = "standalone__structured_sparse_n_m__ragged"
TB = 18432
NB = 8
XBYTES = 75497472
WBYTES = 663552
WSBYTES = 301989888
A_OFF = 0
I_OFF = 331776
I8_OFF = I_OFF + 36864
R1_OFF = I8_OFF + 5120
R8_OFF = R1_OFF + 4608
COPY = 393216
NTASK = 41
L_TAB = NB * TB
L_WV = L_TAB + 4096
WV_SZ = 2816
L_PL = L_WV + 4 * WV_SZ
LDS_BYTES = 163840
assert L_PL + 512 <= LDS_BYTES and L_WV % 256 == 0 and WV_SZ % 256 == 0

V_RD0, V_RD1, V_TAB, V_DMA, V_ST, V_ST8, V_BP, V_LANE = 0, 1, 2, 3, 4, 5, 6, 7
V_ACC = 8
V_B = 44
V_BR = 76
V_P = 92
V_T = 108
V_P8 = 112
V_X = 114
V_AD = 118
V_I = 138
V_I8 = 174
V_IR = 179
V_A = 186
S_X, S_OUT, S_WS, S_W, S_B, S_DBG = 16, 20, 24, 28, 32, 36
S_WAVE = 40
S_IT, S_BUF, S_DELTA, S_M0B, S_XOFF, S_OOFF = 41, 42, 43, 44, 45, 46
S_T0, S_T1, S_T2 = 47, 3, 92
S_MASK = 48
S_EVEN, S_ODD = 80, 82
S_TASK, S_TEND, S_BASE, S_MODE, S_CONT = 84, 85, 86, 87, 88
S_BAD = 90
S_C0 = 93
S_BUFN, S_CTB, S_OINC, S_XOFF5, S_M05, S_M0W, S_HALF = 4, 5, 6, 7, 8, 9, 10


def vr(b, n=1):
    return f"v{b}" if n == 1 else f"v[{b}:{b+n-1}]"


def sr(b, n=1):
    return f"s{b}" if n == 1 else f"s[{b}:{b+n-1}]"


def afrag(s, t):
    f = 9 * s + t
    return f"a[{4*f}:{4*f+3}]" if f < 64 else vr(V_A + 4 * (f - 64), 4)


def aidx(s, t):
    if t < 8:
        return V_I + 4 * s + (t >> 1), t & 1
    return V_I8 + (s >> 1), s & 1


BBUF = [0, 1, 2, 3, 0, 1, 0, 2, 3]
RBUF = [V_BR, V_BR + 8, V_BR, V_P, V_BR + 8]
RT = [[0, 1], [1, 2, 3], [3, 4, 5], [5, 6, 7], [7, 8]]


class Op:
    def __init__(self, text, kind, rd=(), wr=(), tag=""):
        self.text, self.kind, self.rd, self.wr, self.tag = text, kind, set(rd), set(wr), tag


def rng(b, n):
    return range(b, b + n)


class Gen:
    def __init__(self, **o):
        self.o = dict(fused=True, ld="nt", st="", bperm=True, nb0=8, stamp=False, nodma=False, wl="sc1", ws="sc1",
                      vmw=60, lper=9, drop=(), cyc=False, links=True, ng4=8, rpos=(18, 35, 50, 63, 75), rposl=(18, 36, 52, 66, 78),
                      lead=8, stg=(9, 16, 23, 30, 37), dmag=(43, 49, 55, 61, 67), gsp=2, eager=99, verbose=False, hack=None, diag=None)
        self.o.update(o)
        self.L = []
        self.tailblocks = []

    def a(self, s):
        self.L.extend(s.split("\n"))

    def entry(self, label, nwg):
        a = self.a
        a(f".globl {label}\n.p2align 8\n.type {label},@function\n{label}:")
        a(f"s_cmp_ge_u32 s2, {nwg}")
        a(f"s_cbranch_scc1 L_end_{label}")
        if self.o["stamp"]:
            a("s_memrealtime s[100:101]")
        a("s_load_dwordx8 s[4:11], s[0:1], 0")
        a("s_load_dwordx4 s[12:15], s[0:1], 32")
        a("v_lshrrev_b32 v1, 6, v0")
        a(f"v_and_b32 v{V_LANE}, 63, v0")
        a(f"v_readfirstlane_b32 s{S_WAVE}, v1")
        for srd, size in ((S_X, XBYTES), (S_OUT, 0), (S_WS, WSBYTES), (S_W, WBYTES), (S_B, 1152), (S_DBG, 256)):
            a(f"s_mov_b32 s{srd+2}, {size}")
            a(f"s_mov_b32 s{srd+3}, 0x20000")

    def entry_wait(self):
        a = self.a
        a("s_waitcnt lgkmcnt(0)")
        for srd, p in ((S_W, 6), (S_X, 4), (S_WS, 14), (S_B, 8), (S_OUT, 10), (S_DBG, 12)):
            a(f"s_mov_b32 s{srd}, s{p}")
            a(f"s_and_b32 s{srd+1}, s{p+1}, 0xffff")

    def producer(self, sfx):
        a = self.a
        ws = self.o["ws"]
        W, Z, K = 8, 24, 28
        S1, S0 = 36, 44
        OA = 52
        IX = 60
        VL, VA, VI, VM0, VM1, VSEL = 62, 63, 64, 65, 66, 67
        T0, T1, T2, T3 = 68, 69, 70, 71
        ln = f"v{V_LANE}"
        a(f"L_prod{sfx}:")
        a(f"v_lshlrev_b32 v{T0}, 2, {ln}")
        a(f"v_add_u32 v{T0}, {L_PL}, v{T0}")
        a(f"v_mov_b32 v{T1}, 0")
        a(f"ds_write_b32 v{T0}, v{T1}")
        a(f"v_bfe_u32 v{T2}, {ln}, 1, 1")
        a(f"v_and_b32 v{T3}, 1, {ln}")
        a(f"s_lshl_b32 s{S_T2}, s{S_WAVE}, 4")
        a(f"s_cmp_ge_u32 s{S_TASK}, 36")
        a(f"s_cbranch_scc1 L_prod8{sfx}")
        a(f"s_and_b32 s{S_T0}, s{S_TASK}, 3")
        a(f"s_lshr_b32 s{S_T1}, s{S_TASK}, 2")
        a(f"s_lshl_b32 s{S_C0}, s{S_T1}, 6")
        a(f"s_add_u32 s{S_C0}, s{S_C0}, s{S_T2}")
        a(f"s_mul_i32 s{S_C0}, s{S_C0}, 1152")
        a(f"s_lshl_b32 s{S_C0+1}, s{S_T0}, 8")
        a(f"s_add_u32 s{S_C0}, s{S_C0}, s{S_C0+1}")
        a(f"v_lshl_add_u32 v{VL}, {ln}, 2, s{S_C0}")
        a(f"v_bfe_u32 v{T0}, {ln}, 1, 2")
        a(f"v_lshrrev_b32 v{T1}, 5, {ln}")
        a(f"v_lshl_add_u32 v{T0}, v{T1}, 2, v{T0}")
        a(f"v_bfe_u32 v{T1}, {ln}, 3, 2")
        a(f"v_lshlrev_b32 v{T3}, 1, v{T3}")
        a(f"v_lshl_add_u32 v{T1}, v{T1}, 2, v{T3}")
        a(f"s_mul_i32 s{S_C0}, s{S_T0}, 81")
        a(f"s_mul_i32 s{S_C0+1}, s{S_T1}, 9")
        a(f"s_add_u32 s{S_C0}, s{S_C0}, s{S_C0+1}")
        a(f"s_lshl_b32 s{S_C0}, s{S_C0}, 6")
        a(f"s_add_u32 s{S_C0}, s{S_C0}, s{S_T2}")
        a(f"v_lshl_add_u32 v{VA}, v{T0}, 6, v{T1}")
        a(f"v_add_lshl_u32 v{VA}, v{VA}, s{S_C0}, 4")
        a(f"s_mul_i32 s{S_C0}, s{S_T0}, 9")
        a(f"s_add_u32 s{S_C0}, s{S_C0}, s{S_T1}")
        a(f"s_lshl_b32 s{S_C0+2}, s{S_C0}, 7")
        a(f"s_add_u32 s{S_C0+2}, s{S_C0+2}, {R1_OFF}")
        a(f"s_lshl_b32 s{S_C0}, s{S_C0}, 6")
        a(f"s_add_u32 s{S_C0}, s{S_C0}, s{S_T2}")
        a(f"s_add_u32 s{S_C0}, s{S_C0}, {I_OFF // 16}")
        a(f"v_add3_u32 v{VI}, v{T1}, v{T2}, s{S_C0}")
        a(f"v_lshrrev_b32 v{T3}, 1, v{T0}")
        a(f"v_lshlrev_b32 v{T3}, 2, v{T3}")
        a(f"v_lshl_add_u32 v{VI}, v{VI}, 4, v{T3}")
        a(f"v_lshlrev_b32 v{VM0}, 11, v{T0}")
        a(f"v_lshl_add_u32 v{VM0}, v{T1}, 7, v{VM0}")
        a(f"v_add_u32 v{VM0}, s{S_T2}, v{VM0}")
        a(f"s_branch L_prodc{sfx}")
        a(f"L_prod8{sfx}:")
        a(f"s_sub_u32 s{S_T1}, s{S_TASK}, 36")
        a(f"v_bfe_u32 v{T1}, {ln}, 2, 2")
        a(f"v_lshlrev_b32 v{T3}, 1, v{T3}")
        a(f"v_lshl_add_u32 v{T1}, v{T1}, 2, v{T3}")
        a(f"v_lshrrev_b32 v{T0}, 4, {ln}")
        a(f"s_lshl_b32 s{S_C0}, s{S_T1}, 7")
        a(f"s_add_u32 s{S_C0}, s{S_C0}, s{S_T2}")
        a(f"v_lshl_add_u32 v{VL}, v{T2}, 6, s{S_C0}")
        a(f"v_mul_u32_u24 v{VL}, 1152, v{VL}")
        a(f"v_lshl_add_u32 v{T3}, v{T0}, 4, v{T1}")
        a(f"v_lshl_add_u32 v{VL}, v{T3}, 1, v{VL}")
        a(f"v_add_u32 v{VL}, 1024, v{VL}")
        a(f"s_lshl_b32 s{S_C0}, s{S_T1}, 2")
        a(f"s_add_u32 s{S_C0}, s{S_C0}, s{S_WAVE}")
        a(f"s_lshl_b32 s{S_C0}, s{S_C0}, 6")
        a(f"s_add_u32 s{S_C0}, s{S_C0}, {I8_OFF // 4}")
        a(f"v_add3_u32 v{VI}, v{T3}, v{T2}, s{S_C0}")
        a(f"v_lshlrev_b32 v{VI}, 2, v{VI}")
        a(f"s_mul_i32 s{S_C0}, s{S_T1}, 18")
        a(f"s_add_u32 s{S_C0}, s{S_C0}, 8")
        a(f"v_mul_u32_u24 v{VA}, 81, v{T0}")
        a(f"v_mad_u32_u24 v{VA}, v{T2}, 9, v{VA}")
        a(f"v_add_lshl_u32 v{VA}, v{VA}, s{S_C0}, 6")
        a(f"v_add3_u32 v{VA}, v{VA}, v{T1}, s{S_T2}")
        a(f"v_lshlrev_b32 v{VA}, 4, v{VA}")
        a(f"s_cmp_eq_u32 s{S_T1}, 4")
        a(f"s_cselect_b32 s{S_C0}, 30, 0")
        a(f"s_cselect_b32 s{S_C0+1}, -1, 0")
        a(f"v_and_b32 v{T3}, s{S_C0+1}, v{T2}")
        a(f"v_lshl_or_b32 v{VA}, v{T3}, s{S_C0}, v{VA}")
        a(f"s_lshl_b32 s{S_C0+2}, s{S_T1}, 7")
        a(f"s_add_u32 s{S_C0+2}, s{S_C0+2}, {R8_OFF}")
        a(f"v_add_u32 v{VM0}, 8, v{T0}")
        a(f"v_lshlrev_b32 v{VM0}, 11, v{VM0}")
        a(f"v_lshl_add_u32 v{VM0}, v{T1}, 7, v{VM0}")
        a(f"v_lshl_add_u32 v{VM0}, v{T2}, 6, v{VM0}")
        a(f"v_add_u32 v{VM0}, s{S_T2}, v{VM0}")
        a(f"L_prodc{sfx}:")
        if sfx == "":
            self.entry_wait()
        for q in range(4):
            if q:
                a(f"v_add_u32 v{VL}, 4608, v{VL}")
            for j in range(4):
                a(f"buffer_load_dword v{W+4*q+j}, v{VL}, {sr(S_W,4)}, 0 offen offset:{1152*j}")
        a(f"v_add_u32 v{VA}, s{S_BASE}, v{VA}")
        a(f"v_add_u32 v{VI}, s{S_BASE}, v{VI}")
        a(f"s_add_u32 s{S_C0+2}, s{S_C0+2}, s{S_BASE}")
        a(f"v_add_u32 v{VM1}, 128, v{VM0}")
        a(f"v_mov_b32 v{VSEL}, 0x05040100")
        a(f"v_mov_b32 v{T0}, 0x03020706")
        a(f"v_cmp_eq_u32 vcc, 1, v{T2}")
        a(f"s_mov_b32 s{S_C0+3}, 0xffff0000")
        a(f"s_mov_b32 s{S_C0+4}, 0x07060302")
        a(f"v_cndmask_b32 v{VSEL}, v{VSEL}, v{T0}, vcc")
        a("s_waitcnt lgkmcnt(0)")
        a("s_barrier")
        a(f"s_cmp_lg_u32 s{S_MODE}, 0")
        for q in range(4):
            a(f"s_waitcnt vmcnt({12-4*q})")
            for c in range(2):
                n = 2 * q + c
                for j in range(4):
                    if c == 0:
                        a(f"v_lshl_or_b32 v{Z+j}, v{W+4*q+j}, 16, {j}")
                    else:
                        a(f"v_and_or_b32 v{Z+j}, v{W+4*q+j}, s{S_C0+3}, {j}")
                for j in range(4):
                    a(f"v_alignbit_b32 v{Z+j}, v{Z+j}, v{Z+j}, 31")
                a(f"v_max3_u32 v{K}, v{Z}, v{Z+1}, v{Z+2}")
                a(f"v_med3_u32 v{K+1}, v{Z}, v{Z+1}, v{Z+2}")
                a(f"v_min3_u32 v{K+2}, v{Z}, v{Z+1}, v{Z+2}")
                a(f"v_med3_u32 v{K+4}, v{K}, v{K+1}, v{Z+3}")
                a(f"v_max_u32 v{K+3}, v{K}, v{Z+3}")
                a(f"v_and_b32 v{K+5}, -8, v{K+4}")
                a(f"v_med3_u32 v{S1+n}, v{K+1}, v{K+2}, v{Z+3}")
                a(f"v_max_u32 v{K+5}, 8, v{K+5}")
                a(f"v_min_u32 v{S0+n}, v{K+2}, v{Z+3}")
                a(f"v_cmp_ge_u32 {sr(S_MASK+4*n,2)}, v{S1+n}, v{K+5}")
                a(f"v_cmp_ge_u32 {sr(S_MASK+4*n+2,2)}, v{S0+n}, v{K+5}")
                a(f"s_cbranch_scc1 L_rm{n}{sfx}")
                a(f"L_rb{n}{sfx}:")
                self.tailblocks.append(
                    f"L_rm{n}{sfx}:\ns_nop 1\n"
                    f"v_cndmask_b32 v{K+3}, 0, v{S1+n}, {sr(S_MASK+4*n,2)}\n"
                    f"v_cndmask_b32 v{K+4}, 0, v{S0+n}, {sr(S_MASK+4*n+2,2)}\n"
                    f"s_branch L_rb{n}{sfx}")
                a(f"v_alignbit_b32 v{K+3}, v{K+3}, v{K+3}, 1")
                a(f"v_alignbit_b32 v{K+4}, v{K+4}, v{K+4}, 1")
                a(f"v_perm_b32 v{OA+4*c+q}, v{K+3}, v{K+4}, s{S_C0+4}")
                if q == 0:
                    a(f"v_lshl_or_b32 v{IX+c}, v{K+3}, 2, v{K+4}")
                else:
                    a(f"v_lshl_or_b32 v{K+3}, v{K+3}, 2, v{K+4}")
                    a(f"v_lshl_or_b32 v{IX+c}, v{K+3}, {4*q}, v{IX+c}")
        a(f"buffer_store_dwordx4 {vr(OA,4)}, v{VA}, {sr(S_WS,4)}, 0 offen {ws}")
        a(f"s_mov_b32 s{S_C0+4}, 0x05040100")
        a(f"v_perm_b32 v{IX}, v{IX+1}, v{IX}, s{S_C0+4}")
        a(f"buffer_store_dwordx4 {vr(OA+4,4)}, v{VA}, {sr(S_WS,4)}, 0 offen offset:16 {ws}")
        a(f"s_bcnt1_i32_b64 s{S_T0}, {sr(S_MASK,2)}")
        a(f"v_mov_b32_dpp v{IX+1}, v{IX} quad_perm:[2,3,0,1] row_mask:0xf bank_mask:0xf")
        a(f"v_perm_b32 v{IX}, v{IX+1}, v{IX}, v{VSEL}")
        a(f"buffer_store_dword v{IX}, v{VI}, {sr(S_WS,4)}, 0 offen {ws}")
        for n in range(1, 16):
            a(f"s_bcnt1_i32_b64 s{S_T1}, {sr(S_MASK+2*n,2)}")
            a(f"s_add_u32 s{S_T0}, s{S_T0}, s{S_T1}")
        a(f"s_cmp_eq_u32 s{S_T0}, 0")
        a(f"s_cbranch_scc1 L_nolist{sfx}")
        a(f"v_mov_b32 v{T0}, {L_PL + 128}")
        a(f"v_mov_b32 v{T1}, s{S_T0}")
        a("s_mov_b64 exec, 1")
        a(f"ds_add_rtn_u32 v{T1}, v{T0}, v{T1}")
        a("s_waitcnt lgkmcnt(0)")
        a(f"v_readfirstlane_b32 s{S_T0}, v{T1}")
        for n in range(8):
            q, c = n >> 1, n & 1
            for z in range(2):
                m = S_MASK + 4 * n + 2 * z
                key = (S1, S0)[z] + n
                a(f"s_cmp_eq_u64 {sr(m,2)}, 0")
                a(f"s_cbranch_scc1 L_nt{n}{sfx}")
                a(f"s_mov_b64 exec, {sr(m,2)}")
                a(f"v_mbcnt_lo_u32_b32 v{T0}, s{m}, 0")
                a(f"v_mbcnt_hi_u32_b32 v{T0}, s{m+1}, v{T0}")
                a(f"v_alignbit_b32 v{T1}, v{key}, v{key}, 1")
                a(f"v_add_u32 v{T0}, s{S_T0}, v{T0}")
                a(f"v_add3_u32 v{T1}, v{T1}, v{(VM0, VM1)[c]}, {4*q}")
                a(f"v_min_u32 v{T0}, 40, v{T0}")
                a(f"v_cmp_eq_u32 vcc, 32, v{T0}")
                a(f"s_bcnt1_i32_b64 s{S_T1}, {sr(m,2)}")
                a(f"s_add_u32 s{S_T0}, s{S_T0}, s{S_T1}")
                a(f"v_cndmask_b32 v{T0}, v{T0}, 40, vcc")
                a(f"v_lshlrev_b32 v{T0}, 2, v{T0}")
                a(f"v_add_u32 v{T0}, {L_PL}, v{T0}")
                a(f"ds_write_b32 v{T0}, v{T1}")
            a(f"L_nt{n}{sfx}:")
        a("s_mov_b64 exec, -1")
        a(f"L_nolist{sfx}:")
        a("s_waitcnt lgkmcnt(0)")
        a("s_barrier")
        a(f"s_cmp_lg_u32 s{S_WAVE}, 0")
        a(f"s_cbranch_scc1 L_nols{sfx}")
        a(f"v_lshlrev_b32 v{T0}, 2, {ln}")
        a(f"v_add_u32 v{T1}, {L_PL}, v{T0}")
        a(f"ds_read_b32 v{T1}, v{T1}")
        a(f"v_add_u32 v{T0}, s{S_C0+2}, v{T0}")
        a("s_waitcnt lgkmcnt(0)")
        a(f"v_readlane_b32 s{S_T0}, v{T1}, 32")
        a("s_nop 3")
        a(f"s_cmp_gt_u32 s{S_T0}, 32")
        a(f"s_cselect_b32 s{S_T0}, -1, 0")
        a(f"v_or_b32 v{T1}, s{S_T0}, v{T1}")
        a("s_mov_b32 exec_hi, 0")
        a(f"buffer_store_dword v{T1}, v{T0}, {sr(S_WS,4)}, 0 offen {ws}")
        a("s_mov_b64 exec, -1")
        a(f"L_nols{sfx}:")
        a("s_waitcnt vmcnt(0)")
        a("s_barrier")

    def lane_setup(self):
        a = self.a
        ln = f"v{V_LANE}"
        T0, T1, T2 = 72, 73, 74
        a(f"v_lshrrev_b32 v{T0}, 3, {ln}")
        a(f"v_and_b32 v{T1}, 7, {ln}")
        a(f"v_xor_b32 v{T1}, v{T1}, v{T0}")
        a(f"v_mul_u32_u24 v{T0}, 1152, v{T0}")
        a(f"s_and_b32 s{S_T0}, s{S_WAVE}, 1")
        a(f"s_mul_i32 s{S_T0}, s{S_T0}, 9216")
        a(f"s_lshr_b32 s{S_T1}, s{S_WAVE}, 1")
        a(f"s_lshl_b32 s{S_T1}, s{S_T1}, 7")
        a(f"s_add_u32 s{S_T0}, s{S_T0}, s{S_T1}")
        a(f"v_lshl_add_u32 v{T0}, v{T1}, 4, v{T0}")
        a(f"v_add_u32 v{V_DMA}, s{S_T0}, v{T0}")
        a(f"s_lshl_b32 s{S_M0B}, s{S_WAVE}, 10")
        a(f"s_mul_i32 s{S_XOFF}, s2, {TB}")
        a(f"s_mov_b32 s{S_OOFF}, s{S_XOFF}")

    def lane_setup2(self):
        a = self.a
        ln = f"v{V_LANE}"
        T0, T1, T2 = 72, 73, 74
        a(f"v_and_b32 v{T0}, 15, {ln}")
        a(f"v_lshrrev_b32 v{T1}, 4, {ln}")
        a(f"v_and_b32 v{T2}, 7, {ln}")
        a(f"v_xor_b32 v{T2}, v{T2}, v{T1}")
        a(f"v_lshlrev_b32 v{T2}, 4, v{T2}")
        a(f"v_lshl_add_u32 v{V_RD0}, v{T0}, 7, v{T2}")
        a(f"v_xor_b32 v{V_RD1}, 64, v{V_RD0}")
        a(f"s_lshl_b32 s{S_T0}, s{S_WAVE}, 10")
        a(f"s_add_u32 s{S_T0}, s{S_T0}, {L_TAB}")
        a(f"v_lshl_add_u32 v{V_TAB}, v{T1}, 4, s{S_T0}")
        a(f"v_and_b32 v{T2}, 14, {ln}")
        a(f"v_mul_u32_u24 v{V_ST}, 1152, v{T2}")
        a(f"v_and_b32 v{T2}, 1, {ln}")
        a(f"v_lshl_add_u32 v{V_ST}, v{T2}, 4, v{V_ST}")
        a(f"v_lshl_add_u32 v{V_ST}, v{T1}, 5, v{V_ST}")
        a(f"s_lshl_b32 s{S_T0}, s{S_WAVE}, 8")
        a(f"v_add_u32 v{V_ST}, s{S_T0}, v{V_ST}")
        if self.o["hack"] == "q4":
            a(f"v_lshrrev_b32 v{T2}, 3, {ln}")
            a(f"v_mul_u32_u24 v{V_ST}, 2304, v{T2}")
            a(f"v_and_b32 v{T2}, 7, {ln}")
            a(f"v_lshl_add_u32 v{V_ST}, v{T2}, 4, v{V_ST}")
            a(f"v_add_u32 v{V_ST}, s{S_T0}, v{V_ST}")
        a(f"s_lshl_b32 s{S_T0}, s{S_WAVE}, 5")
        a(f"s_add_u32 s{S_T0}, s{S_T0}, 1024")
        if self.o["bperm"]:
            a(f"v_lshrrev_b32 v{T0}, 2, {ln}")
            a(f"v_and_b32 v{T1}, 3, {ln}")
            a(f"v_lshl_add_u32 v{V_BP}, v{T1}, 4, v{T0}")
            a(f"v_lshlrev_b32 v{V_BP}, 2, v{V_BP}")
        a(f"v_mul_u32_u24 v{V_ST8}, 1152, v{T0}")
        a(f"v_lshl_add_u32 v{V_ST8}, v{T1}, 3, v{V_ST8}")
        a(f"v_add_u32 v{V_ST8}, s{S_T0}, v{V_ST8}")
        a(f"s_mov_b32 s{S_EVEN}, 0x55555555")
        a(f"s_mov_b32 s{S_EVEN+1}, 0x55555555")
        a(f"s_mov_b32 s{S_ODD}, 0xaaaaaaaa")
        a(f"s_mov_b32 s{S_ODD+1}, 0xaaaaaaaa")

    def dma_setup(self):
        a = self.a
        a(f"s_lshr_b32 s{S_T0}, s{S_WAVE}, 1")
        a(f"s_lshl_b32 s{S_T1}, s{S_T0}, 11")
        a(f"s_sub_u32 s{S_M05}, {16384-896}, s{S_T1}")
        a(f"s_lshl_b32 s{S_T1}, s{S_T0}, 7")
        a(f"s_add_u32 s{S_XOFF5}, s{S_XOFF}, 128")
        a(f"s_sub_u32 s{S_XOFF5}, s{S_XOFF5}, s{S_T1}")
        a(f"s_sub_u32 s{S_HALF}, s{S_T0}, 1")
        a(f"s_sub_u32 s{S_HALF+1}, 0, s{S_T0}")
        a(f"s_mov_b32 s{S_M0W}, s{S_M0B}")

    def dma_tile(self):
        a = self.a
        for j in range(5):
            a(f"s_add_u32 m0, s{S_M0B}, {3840*j if j < 4 else 's%d' % S_M05}")
            a("s_nop 0" if j < 4 else f"s_mov_b64 exec, {sr(S_HALF,2)}")
            a(f"buffer_load_dwordx4 v{V_DMA}, {sr(S_X,4)}, s{S_XOFF if j < 4 else S_XOFF5} offen offset:{256*j if j < 4 else 896} {self.o['ld']} lds")
        a("s_mov_b64 exec, -1")

    def prefetch(self, n):
        a = self.a
        a(f"s_mov_b32 s{S_IT}, {n}")
        a("L_pf:")
        self.dma_tile()
        a(f"s_add_u32 s{S_XOFF5}, s{S_XOFF5}, {256*TB}")
        a(f"s_add_u32 s{S_M0B}, s{S_M0B}, {TB}")
        a(f"s_add_u32 s{S_XOFF}, s{S_XOFF}, {256*TB}")
        a(f"s_sub_u32 s{S_IT}, s{S_IT}, 1")
        a(f"s_cmp_lg_u32 s{S_IT}, 0")
        a("s_cbranch_scc1 L_pf")

    def bias_load(self):
        a = self.a
        ln = f"v{V_LANE}"
        a(f"v_and_b32 v80, 3, {ln}")
        a(f"v_bfe_u32 v81, {ln}, 2, 2")
        a(f"v_bfe_u32 v82, {ln}, 4, 1")
        a("v_lshlrev_b32 v81, 3, v81")
        a("v_lshl_add_u32 v81, v80, 5, v81")
        a("v_lshl_add_u32 v81, v82, 7, v81")
        a(f"s_lshl_b32 s{S_T0}, s{S_WAVE}, 8")
        a(f"v_add_u32 v81, s{S_T0}, v81")
        a(f"s_lshl_b32 s{S_T0}, s{S_WAVE}, 5")
        a(f"s_add_u32 s{S_T0}, s{S_T0}, 1024")
        a(f"v_lshl_add_u32 v80, v80, 3, s{S_T0}")
        a(f"v_cmp_gt_u32 vcc, 32, {ln}")
        a("s_nop 1")
        a("v_cndmask_b32 v80, v80, v81, vcc")
        a(f"buffer_load_dwordx2 v[84:85], v80, {sr(S_B,4)}, 0 offen")

    def tables_init(self):
        a = self.a
        ln = f"v{V_LANE}"
        a(f"s_mul_i32 s{S_T0}, s{S_WAVE}, {WV_SZ}")
        a(f"s_add_u32 s{S_T0}, s{S_T0}, {L_WV}")
        a(f"v_lshl_add_u32 v88, {ln}, 4, s{S_T0}")
        a(f"v_lshl_add_u32 v89, {ln}, 2, s{S_T0}")
        for r in range(4):
            a(f"v_mov_b32 v{76+r}, 0")
        a("v_mov_b32 v90, 0xdddddddd")
        a("ds_write_b128 v88, v[76:79]")
        for r in range(7):
            a(f"ds_write_b32 v89, v90 offset:{1024+256*r}")
        a(f"v_mov_b32 v88, {L_PL + 256}")
        a("ds_write_b32 v88, v76")

    def bias_store(self):
        a = self.a
        ln = f"v{V_LANE}"
        a("v_lshlrev_b32 v76, 16, v84")
        a("v_and_b32 v77, 0xffff0000, v84")
        a("v_lshlrev_b32 v78, 16, v85")
        a("v_and_b32 v79, 0xffff0000, v85")
        a(f"s_lshl_b32 s{S_T0}, s{S_WAVE}, 10")
        a(f"s_add_u32 s{S_T0}, s{S_T0}, {L_TAB}")
        a(f"v_lshl_add_u32 v80, {ln}, 4, s{S_T0}")
        a("s_mov_b32 exec_hi, 15")
        a("ds_write_b128 v80, v[76:79]")
        a("s_mov_b64 exec, -1")

    def wload_list(self, VA, VI8):
        wl = self.o["wl"]
        G = []
        so = S_C0 + 6
        cur = None
        for sp in range(5):
            g = []
            if sp == 4:
                g.append(f"s_mov_b32 s{so}, 4096")
            g.append(f"buffer_load_dword v{V_I8+sp}, v{VI8}, {sr(S_WS,4)}, {'s%d' % so if sp == 4 else '0'} offen offset:{1024*(sp%4)} {wl}")
            G.append(g)
        for s in range(9):
            G.append([f"s_mov_b32 s{so-1}, {1024*s}",
                      f"buffer_load_dwordx4 {vr(V_I+4*s,4)}, v{VA+1}, {sr(S_WS,4)}, s{so-1} offen {wl}"])
            for t in range(9):
                f = 9 * s + t
                g = []
                if cur != f >> 2:
                    cur = f >> 2
                    g.append(f"s_mov_b32 s{so}, {4096*cur}")
                g.append(f"buffer_load_dwordx4 {afrag(s,t)}, v{VA}, {sr(S_WS,4)}, s{so} offen offset:{1024*(f&3)} {wl}")
                G.append(g)
        return G

    def waddr(self, VA, VI8):
        a = self.a
        ln = f"v{V_LANE}"
        a(f"s_mul_i32 s{S_T0}, s{S_WAVE}, 82944")
        a(f"s_add_u32 s{S_T0}, s{S_T0}, s{S_BASE}")
        a(f"v_lshl_add_u32 v{VA}, {ln}, 4, s{S_T0}")
        a(f"s_mul_i32 s{S_T0}, s{S_WAVE}, 9216")
        a(f"s_add_u32 s{S_T0}, s{S_T0}, s{S_BASE}")
        a(f"s_add_u32 s{S_T0}, s{S_T0}, {I_OFF}")
        a(f"v_lshl_add_u32 v{VA+1}, {ln}, 4, s{S_T0}")
        a(f"s_lshl_b32 s{S_T0}, s{S_WAVE}, 6")
        a(f"s_add_u32 s{S_T0}, s{S_T0}, s{S_BASE}")
        a(f"s_add_u32 s{S_T0}, s{S_T0}, {I8_OFF}")
        a(f"v_and_b32 v{VI8}, 15, {ln}")
        a(f"v_lshl_add_u32 v{VI8}, v{VI8}, 2, s{S_T0}")
        a(f"v_lshrrev_b32 v{VI8+1}, 4, {ln}")
        a(f"v_lshl_add_u32 v{VI8}, v{VI8+1}, 8, v{VI8}")

    def build(self):
        a = self.a
        ln = f"v{V_LANE}"
        wl = self.o["wl"]
        VA, VI8 = 104, 106
        E, TT, RK = 8, 16, 24
        T0, T1, T2, T3, T4 = 32, 33, 34, 35, 36
        ONE, HI, VW, VST, RX = 37, 38, 39, 40, 41
        RB = 44
        SW, SW8 = S_C0, S_C0 + 1
        a(f"s_mul_i32 s{S_T0}, s{S_WAVE}, 1152")
        a(f"s_add_u32 s{S_T0}, s{S_T0}, s{S_BASE}")
        a(f"s_add_u32 s{S_T0}, s{S_T0}, {R1_OFF}")
        a(f"v_lshl_add_u32 v{T0}, {ln}, 2, s{S_T0}")
        a(f"s_add_u32 s{S_T0}, s{S_BASE}, {R8_OFF}")
        a(f"v_lshl_add_u32 v{T1}, {ln}, 2, s{S_T0}")
        a(f"v_add_u32 v{T2}, 1024, v{T0}")
        a(f"v_add_u32 v{T3}, 384, v{T1}")
        a(f"v_cmp_gt_u32 vcc, 32, {ln}")
        self.waddr(VA, VI8)
        a(f"v_cndmask_b32 v{T2}, v{T3}, v{T2}, vcc")
        yield_point = len(self.L)
        pre = []
        for r in range(4):
            pre.append(f"buffer_load_dword v{E+r}, v{T0}, {sr(S_WS,4)}, 0 offen offset:{256*r} {wl}")
        pre.append(f"buffer_load_dword v{E+4}, v{T2}, {sr(S_WS,4)}, 0 offen {wl}")
        for r in range(2):
            pre.append(f"buffer_load_dword v{E+5+r}, v{T1}, {sr(S_WS,4)}, 0 offen offset:{256*r} {wl}")
        C = []
        g = lambda *x: C.append(list(x))
        g(f"s_mul_i32 s{SW}, s{S_WAVE}, {WV_SZ}", f"s_add_u32 s{SW}, s{SW}, {L_WV}", f"s_add_u32 s{SW8}, s{S_WAVE}, 8",
          f"v_mov_b32 v{ONE}, 1", f"v_lshrrev_b32 v{HI}, 5, {ln}", f"v_lshl_add_u32 v{VW}, {ln}, 2, s{SW}",
          f"s_mov_b64 {sr(S_BAD,2)}, 0")
        g(f"v_and_b32 v{T0}, 15, {ln}", f"v_and_b32 v{T1}, 7, {ln}", f"v_lshlrev_b32 v{T1}, 4, v{T1}",
          f"v_lshl_add_u32 v{RX}, v{T0}, 7, v{T1}", f"v_lshl_or_b32 v{RX}, v{RX}, 16, v{RX}")
        g("@WAIT_E")
        for r in range(7):
            m = S_MASK + 2 * r
            x = [f"v_bfe_u32 v{T0}, v{E+r}, 11, 4", f"v_cmp_eq_u32 vcc, -1, v{E+r}"]
            if r < 4:
                x += [f"v_cmp_ne_u32 {sr(m,2)}, 0, v{E+r}", f"v_min_u32 v{T0}, 8, v{T0}",
                      f"s_or_b64 {sr(S_BAD,2)}, {sr(S_BAD,2)}, vcc"]
            elif r > 4:
                x += [f"v_cmp_eq_u32 {sr(m,2)}, s{SW8}, v{T0}", f"v_min_u32 v{T0}, 8, v{T0}",
                      f"s_or_b64 {sr(S_BAD,2)}, {sr(S_BAD,2)}, vcc"]
            else:
                x += [f"v_cmp_ne_u32 {sr(m,2)}, 0, v{E+r}", f"v_cmp_eq_u32 {sr(m+2,2)}, s{SW8}, v{T0}",
                      f"v_min_u32 v{T0}, 8, v{T0}", f"s_or_b64 {sr(S_BAD,2)}, {sr(S_BAD,2)}, vcc",
                      "s_nop 1", f"s_mov_b32 s{m+1}, s{m+3}"]
            x += [f"v_lshl_add_u32 v{TT+r}, v{T0}, 2, s{SW}", f"s_mov_b64 exec, {sr(m,2)}",
                  f"ds_add_rtn_u32 v{RK+r}, v{TT+r}, v{ONE}", "s_mov_b64 exec, -1"]
            g(*x)
        g(f"ds_read_b32 v{T0}, v{VW}", f"v_mov_b32 v{VST}, 0", f"s_mov_b32 s{S_T0}, 0", f"s_mov_b32 s{S_T2}, 0")
        g("s_waitcnt lgkmcnt(0)")
        for t in range(9):
            lo, up = 32 * (t >> 1), 32 * (t >> 1) + (64 if t & 1 else 32)
            g(f"v_readlane_b32 s{S_T1}, v{T0}, {t}", f"s_max_u32 s{S_T0}, s{S_T0}, {lo}",
              f"v_writelane_b32 v{VST}, s{S_T0}, {t}", "s_nop 1", f"s_add_u32 s{S_T0}, s{S_T0}, s{S_T1}",
              f"s_cmp_gt_u32 s{S_T0}, {up}", f"s_addc_u32 s{S_T2}, s{S_T2}, 0")
        x = [f"s_or_b32 s{S_BAD}, s{S_BAD}, s{S_T2}", f"s_cmp_lg_u64 {sr(S_BAD,2)}, 0", f"s_cselect_b64 {sr(S_BAD,2)}, -1, 0",
             f"v_mov_b32 v{T1}, {L_PL + 256}", f"s_mov_b64 exec, {sr(S_BAD,2)}", f"ds_write_b32 v{T1}, v{ONE}", "s_mov_b64 exec, -1"]
        for r in range(7):
            x.append(f"s_andn2_b64 {sr(S_MASK+2*r,2)}, {sr(S_MASK+2*r,2)}, {sr(S_BAD,2)}")
        g(*x)
        ST = 60
        g(*[f"ds_bpermute_b32 v{ST+r}, v{TT+r}, v{VST}" for r in range(7)])
        g(f"s_mov_b32 s{S_C0+2}, 0xffff0000", f"s_add_u32 s{S_C0+3}, s{SW}, 256", f"s_add_u32 s{S_C0+4}, s{SW}, 1024", "s_waitcnt lgkmcnt(0)")
        for r in range(7):
            m = S_MASK + 2 * r
            x = [f"v_add_u32 v{RK+r}, v{RK+r}, v{ST+r}",
                 f"v_and_b32 v{T0}, 63, v{E+r}", f"v_lshlrev_b32 v{T0}, 1, v{T0}"]
            if r < 4:
                x += [f"v_lshl_add_u32 v{T0}, v{HI}, 11, v{T0}"]
                kb = 4096 * r
            elif r == 4:
                kb = 16384
            else:
                x += [f"v_lshl_add_u32 v{T0}, v{HI}, 12, v{T0}", f"v_and_b32 v{T1}, 64, v{E+r}",
                      f"v_lshl_add_u32 v{T0}, v{T1}, 5, v{T0}"]
                kb = 8192 * (r - 5)
            if kb:
                x += [f"v_add_u32 v{T0}, {kb}, v{T0}"]
            x += [f"v_and_or_b32 v{T0}, v{E+r}, s{S_C0+2}, v{T0}", f"v_lshl_add_u32 v{T1}, v{RK+r}, 2, s{S_C0+3}"]
            g(*x)
            g(f"v_bfe_u32 v{T2}, v{TT+r}, 2, 4", f"v_lshrrev_b32 v{T3}, 5, v{RK+r}", f"v_add_u32 v{T2}, v{T2}, v{T3}",
              f"v_and_b32 v{T3}, 1, v{T2}", f"v_lshrrev_b32 v{T2}, 1, v{T2}", f"v_and_b32 v{T4}, 7, v{RK+r}",
              f"v_lshl_add_u32 v{T3}, v{T3}, 3, v{T4}", f"v_lshlrev_b32 v{T3}, 1, v{T3}", f"v_lshlrev_b32 v{T3}, v{T3}, v{ONE}")
            g(f"v_bfe_u32 v{T4}, v{RK+r}, 3, 2", f"v_lshl_add_u32 v{T2}, v{T2}, 2, v{T4}", f"v_bfe_u32 v{T4}, v{E+r}, 7, 4",
              f"v_lshl_add_u32 v{T2}, v{T2}, 4, v{T4}", f"v_lshl_add_u32 v{T2}, v{T2}, 2, s{S_C0+4}",
              f"s_mov_b64 exec, {sr(m,2)}", f"ds_write_b32 v{T1}, v{T0}", f"ds_xor_b32 v{T2}, v{T3}", "s_mov_b64 exec, -1")
        g(f"v_lshrrev_b32 v{T0}, 4, {ln}", f"v_lshl_add_u32 v{T1}, v{T0}, 5, s{S_C0+3}", f"v_lshl_add_u32 v{T2}, v{T0}, 4, s{S_C0+3}",
          f"s_mov_b32 s{S_C0+2}, 0x07060302", f"s_mov_b32 s{S_C0+4}, 0x05040100")
        g(*[f"ds_read_b32 v{V_IR+r}, v{VW} offset:{1024+256*r}" for r in range(7)])
        for j in range(5):
            g(f"ds_read_b128 {vr(RB,4)}, v{T1} offset:{128*j}", f"ds_read_b128 {vr(RB+4,4)}, v{T1} offset:{128*j+16}",
              f"ds_read_b128 {vr(RB+8,4)}, v{T2} offset:{128*j}", f"ds_read_b128 {vr(RB+12,4)}, v{T2} offset:{128*j+64}")
            g("s_waitcnt lgkmcnt(2)", *[f"v_perm_b32 v{V_X+q}, v{RB+2*q+1}, v{RB+2*q}, s{S_C0+2}" for q in range(4)],
              f"ds_write_b128 v{V_TAB}, {vr(V_X,4)} offset:{576+64*j}")
            g("s_waitcnt lgkmcnt(1)", *[f"v_perm_b32 v{V_AD+4*j+q}, v{RB+8+2*q+1}, v{RB+8+2*q}, s{S_C0+4}" for q in range(4)],
              *[f"v_xor_b32 v{V_AD+4*j+q}, v{RX}, v{V_AD+4*j+q}" if self.o["hack"] != "bc" else f"v_mov_b32 v{V_AD+4*j+q}, 0" for q in range(4)])
        return yield_point, pre, C, self.wload_list(VA, VI8)

    def emit_build(self, pre, C, G):
        a = self.a
        for x in pre:
            a(x)
        nl = 0
        G = list(G)

        def load(n=1):
            nonlocal nl
            for _ in range(n):
                if G:
                    for x in G.pop(0):
                        a(x)
                    nl += 1
        acc = 0
        for grp in C:
            if grp[0] == "@WAIT_E":
                load(12)
                a(f"s_waitcnt vmcnt({nl})")
                continue
            if grp[0].startswith("s_waitcnt lgkmcnt"):
                load(2)
            for x in grp:
                a(x)
            acc += len(grp)
            while acc >= self.o["lper"]:
                acc -= self.o["lper"]
                load()
        load(len(G))

    def loop_ops(self, links):
        o = self.o
        acc = lambda t: rng(V_ACC + 4 * t, 4)
        bb = lambda s: V_B + 8 * BBUF[s]
        rt = RT if links else [[0, 1], [2, 3], [4, 5], [6, 7], [8]]
        ng = [8, 8, 8, 8, 8 if links else o["ng4"]]

        def M(s, t):
            ir, h = aidx(s, t)
            return Op(f"v_smfmac_f32_16x16x64_bf16 {vr(V_ACC+4*t,4)}, {afrag(s,t)}, {vr(bb(s),8)}, v{ir}" + (" abid:1" if h else ""),
                      "mx", rd=list(acc(t)) + list(rng(bb(s), 8)), wr=acc(t), tag=("M", s, t))

        def R(j, t):
            c = j + t
            return Op(f"v_smfmac_f32_16x16x64_bf16 {vr(V_ACC+4*t,4)}, {vr(V_X,4)}, {vr(RBUF[j],8)}, v{V_IR+(c>>1)}" + (" abid:1" if c & 1 else ""),
                      "mx", rd=list(acc(t)) + list(rng(RBUF[j], 8)) + list(rng(V_X, 4)), wr=acc(t), tag=("R", j, t))
        seq = []
        for t in range(9):
            seq += [M(0, t), M(1, t)]
        for s in range(2, 7):
            seq += [M(s, t) for t in range(9)]
        for t in range(9):
            seq += [M(7, t), M(8, t)]
        rpos = list(o["rposl"] if links else o["rpos"])
        for j in range(5):
            for n, t in enumerate(rt[j]):
                seq.insert(rpos[j] + n, R(j, t))
        N = len(seq)
        pos = {x.tag: i for i, x in enumerate(seq)}
        BAR = rpos[4] + len(rt[4]) - 1
        assert BAR == N - 15
        T = lambda g: (g - BAR - 1) % N
        first = lambda s: T(min(pos[("M", s, t)] for t in range(9)))
        lastu = lambda s: max(pos[("M", s, t)] for t in range(9))
        LEAD = o["lead"]
        ST = [[] for _ in range(N)]
        S = [[] for _ in range(N)]
        D = [[] for _ in range(N)]
        V = [[] for _ in range(N)]
        keep = lambda op: not any(d in op.text for d in o["drop"])

        def pdst(t, h):
            return V_P8 + h if t == 8 else V_P + 2 * t + h
        dq, vq = [], []
        for t in range(9):
            for h in range(2):
                V[2 * t + h].append(Op(f"v_cvt_pk_bf16_f32 v{pdst(t,h)}, v{V_ACC+4*t+2*h}, v{V_ACC+4*t+2*h+1}", "valu",
                                       rd=[V_ACC + 4 * t + 2 * h, V_ACC + 4 * t + 2 * h + 1], wr=[pdst(t, h)], tag="epi"))
            dq.append([Op(f"ds_read_b128 {vr(V_ACC+4*t,4)}, v{V_TAB} offset:{64*t}", "lds", rd=[V_TAB], wr=acc(t), tag="pre"),
                       2 * t + 2, 2 * t + 2, None])
        dpp = "quad_perm:[1,0,3,2] row_mask:0xf bank_mask:0xf"
        stg = [T(g) for g in o["stg"]]
        for v in range(2):
            p0, p1 = V_P + 8 * v, V_P + 8 * v + 4
            d0 = V_T if v == 0 else V_P
            for half in range(2):
                e = 2 * v + half
                for d in range(4):
                    if half == 0:
                        op = Op(f"v_cndmask_b32_dpp v{d0+d}, v{p1+d}, v{p0+d}, vcc {dpp}", "dpp", rd=[p0 + d, p1 + d], wr=[d0 + d], tag="epi")
                    else:
                        op = Op(f"v_cndmask_b32_dpp v{p1+d}, v{p0+d}, v{p1+d}, vcc {dpp}", "dpp", rd=[p0 + d, p1 + d], wr=[p1 + d], tag="epi")
                    vq.append([op, stg[e - 1] if e else 18, stg[e] - 4 + d, None])
                src = d0 if half == 0 else p1
                ST[stg[e]].append(Op(f"buffer_store_dwordx4 {vr(src,4)}, v{V_ST}, {sr(S_OUT,4)}, s{S_OOFF} offen offset:{1152*half+128*v} {o['st']}",
                                     "st", rd=list(rng(src, 4)) + [V_ST], tag="epi"))
                ST[stg[e]].append(Op(f"s_mov_b64 vcc, {sr((S_ODD, S_EVEN)[half],2)}", "salu", tag="epi"))
        if o["bperm"]:
            for h in range(2):
                dq.append([Op(f"ds_bpermute_b32 v{V_P8+h}, v{V_BP}, v{V_P8+h}", "lds", rd=[V_BP, V_P8 + h], wr=[V_P8 + h], tag="epi"),
                           18, stg[4] - LEAD - 2 + h, None])
        ST[stg[4]].append(Op(f"buffer_store_dwordx2 {vr(V_P8,2)}, v{V_ST8}, {sr(S_OUT,4)}, s{S_OOFF} offen {o['st']}", "st",
                             rd=[V_P8, V_P8 + 1, V_ST8], tag="epi"))
        rl = lambda j: T(rpos[j] + len(rt[j]) - 1)
        free = [rl(2), 0, rl(0), stg[2] + 1, rl(1)]
        for j in range(5):
            dl = T(rpos[j]) - LEAD - 1
            for b in range(ng[j]):
                r = RBUF[j] + b
                ad = V_AD + 4 * j + (b >> 1)
                av = Op(f"v_add_u32_sdwa v{r}, s{S_BUFN if j == 0 else S_BUF}, v{ad} dst_sel:DWORD dst_unused:UNUSED_PAD src0_sel:DWORD src1_sel:WORD_{b&1}",
                        "valu", rd=[ad], wr=[r], tag="pre" if j == 0 else "")
                gd = dl - o["gsp"] * (ng[j] - 1 - b)
                vq.append([av, free[j], (N - 2 - (7 - b)) if j == 0 else gd - 1, None])
                dq.append([Op(f"ds_read_u16 v{r}, v{r}", "lds", rd=[r], wr=[r], tag="pre"), 0, gd, None if j == 0 else av])
            dq.append([Op(f"ds_read_b128 {vr(V_X,4)}, v{V_TAB} offset:{576+64*j}", "lds", rd=[V_TAB], wr=rng(V_X, 4), tag="pre"),
                       0 if j == 0 else rl(j - 1), dl, None])
        prev = {0: None, 1: None, 2: 7, 3: 8, 4: 0, 5: 1, 6: 4, 7: 2, 8: 3}
        lastb = []
        for s in range(9):
            for h in range(2):
                op = Op(f"ds_read_b128 {vr(bb(s)+4*h,4)}, v{(V_RD0, V_RD1)[h]} offset:{2048*s}", "lds",
                        rd=[(V_RD0, V_RD1)[h]], wr=rng(bb(s) + 4 * h, 4), tag="pre")
                fs = first(s) if s < 7 else T(pos[("M", s, 0)])
                dq.append([op, 0 if prev[s] is None else T(lastu(prev[s])), fs - LEAD - 2 + h, None])
                lastb.append(op)
        for h in range(2):
            vq.append([Op(f"v_add_u32 v{V_RD0+h}, s{S_DELTA}, v{V_RD0+h}", "valu", rd=[V_RD0 + h], wr=[V_RD0 + h]), 0, N - 2, lastb])
        sq = []
        if not o["nodma"]:
            for j, g in enumerate(o["dmag"]):
                g = T(g)
                ld = f"buffer_load_dwordx4 v{V_DMA}, {sr(S_X,4)}, s{S_XOFF if j < 4 else S_XOFF5} offen offset:{256*j if j < 4 else 896} {o['ld']} lds"
                if j < 4:
                    D[g].append(Op(ld, "dma", rd=[V_DMA]))
                    S[g - 1].append(Op(f"s_add_u32 m0, s{S_M0B}, {3840*j}", "salu"))
                else:
                    D[g] += [Op(f"s_mov_b64 exec, {sr(S_HALF,2)}", "salu"), Op(ld, "dma", rd=[V_DMA]), Op("s_mov_b64 exec, -1", "salu")]
                    S[g - 1].append(Op(f"s_add_u32 m0, s{S_M0B}, s{S_M05}", "salu"))
                    V[g] = None
        placed = {}
        for g in range(N - 1):
            if not D[g] and g != T(N - 1):
                c = [x for x in dq if x[1] <= g and (x[3] is None or placed.get(id(x[3]), N) < g) and x[2] - g <= o["eager"]]
                if c:
                    x = min(c, key=lambda x: x[2])
                    dq.remove(x)
                    D[g].append(x[0])
                    placed[id(x[0])] = g
                    if g > x[2] and o["verbose"]:
                        print("; late D", g - x[2], x[0].text, file=sys.stderr)
            if V[g] is None:
                V[g] = []
                continue
            cap = 2 if (ST[g] and "x4" in ST[g][0].text) else 1
            while len(V[g]) < cap:
                c = [x for x in vq if x[1] <= g and (x[3] is None or all(placed.get(id(y), N) <= g for y in x[3]))]
                if not c:
                    break
                x = min(c, key=lambda x: x[2])
                vq.remove(x)
                V[g].append(x[0])
                placed[id(x[0])] = g
                assert g <= x[2] or x[0].kind != "dpp", ("late", x[0].text)
        assert not dq and not vq, ([x[0].text for x in dq], [x[0].text for x in vq])
        S[N - 1] += [Op(f"s_waitcnt vmcnt({o['vmw']})", "salu"), Op("s_barrier", "bar")]
        lastdma = T(o["dmag"][4])
        la = max(placed[id(x)] for gl in V for x in gl if id(x) in placed and f"s{S_BUF}," in x.text)
        fn = min(placed[id(x)] for gl in V for x in gl if id(x) in placed and (f"s{S_BUFN}," in x.text or f"s{S_DELTA}," in x.text))
        sq = [([f"s_mov_b32 s{S_BUF}, s{S_BUFN}"], 0, 17),
              ([f"s_cmp_eq_u32 s{S_BUFN}, {(NB-1)*TB}", f"s_cselect_b32 s{S_DELTA}, {-(NB-1)*TB}, s{S_CTB}", f"s_add_u32 s{S_BUFN}, s{S_BUFN}, s{S_DELTA}"], 18, fn),
              ([f"s_mov_b32 s{S_OUT+2}, {XBYTES}", f"s_add_u32 s{S_OOFF}, s{S_OOFF}, s{S_OINC}", f"s_mov_b32 s{S_OINC}, {256*TB}"], stg[4] + 1, N - 2),
              ([f"s_add_u32 s{S_IT}, s{S_IT}, 1"], 18, N - 2)]
        if not o["nodma"]:
            sq += [([f"s_add_u32 s{S_XOFF}, s{S_XOFF}, {256*TB}", f"s_add_u32 s{S_XOFF5}, s{S_XOFF5}, {256*TB}",
                     f"s_add_u32 s{S_M0B}, s{S_BUF}, s{S_M0W}"], lastdma + 1, N - 2),
                   ([f"s_cmp_lt_u32 s{S_IT}, {17-NB}", f"s_cselect_b32 s{S_X+2}, s{S_OUT+2}, 0"], 0, 12)]
        sq.append(([f"s_cmp_lt_u32 s{S_IT}, 16"], T(N - 1) - 1, T(N - 1) - 1))
        G = lambda A: [[x for x in A[T(g)] if keep(x)] for g in range(N)]
        return seq, G(ST), G(S), G(D), G(V), [(x, (lo + BAR + 1), (hi + BAR + 1)) for x, lo, hi in sq], BAR

    def assemble_loop(self, links, label):
        seq, ST, S, D, V, sq, BAR = self.loop_ops(links)
        N = len(seq)
        flat = []
        for rep in range(2):
            for g in range(N):
                a0 = rep * N + g
                flat.append((seq[g], a0 - 1))
                for x in ST[g]:
                    flat.append((x, a0 - 1))
                for x in D[g] + V[g]:
                    flat.append((x, a0))
        gap_of = {}
        k = 0
        lds = []
        for rep in range(2):
            for g in range(N):
                k += 1 + len(ST[g])
                for x in D[g] + V[g]:
                    if x.kind == "lds":
                        lds.append((k, rep * N + g))
                    k += 1
        done = -1
        W = {}
        minlead = 99
        for i, (op, wg) in enumerate(flat):
            touched = op.rd | op.wr
            need = -1
            for n, (k, g) in enumerate(lds):
                if k < i and n > done and (flat[k][0].wr & touched):
                    need = n
            if need >= 0:
                assert lds[need][1] < wg
                issued = [n for n, (k, g) in enumerate(lds) if g < wg]
                cnt = min(issued[-1] - need, 15)
                done = issued[-1] - cnt
                if wg >= N - 1 and wg < 2 * N - 1:
                    W[wg % N] = min(cnt, W.get(wg % N, 99))
                    if self.o["verbose"]:
                        print(f"; wait gap {wg % N} cnt {cnt} lead {wg - lds[need][1]} for {flat[lds[need][0]][0].text}", file=sys.stderr)
        for g, c in W.items():
            S[g].insert(0, Op(f"s_waitcnt lgkmcnt({c})", "salu"))
        if not self.o["drop"]:
            last = max(g for g in range(BAR + 1) if any(x.kind == "lds" for x in D[g]))
            assert any(W.get(g) == 0 for g in range(last + 1, BAR + 1)), "tile reads not drained at the barrier"

        def room(g):
            g %= N
            if g == BAR or g == N - 1 or any(x.kind == "dma" for x in D[g]):
                return False
            cap = 1 if D[g] else (2 if V[g] else 3)
            return len(S[g]) < cap and not ST[g]
        sccfree = lambda x: x.text.startswith(("s_waitcnt", "s_mov", "s_barrier"))
        locked = set()
        for texts, lo, hi in sq:
            g = lo
            for n, tx in enumerate(texts):
                while True:
                    assert g <= hi, ("no room", tx)
                    ok = room(g) and ((g % N) not in locked or tx.startswith("s_mov"))
                    if ok and tx.startswith("s_cmp") and n + 1 < len(texts):
                        g2 = g + 1
                        while not room(g2) and all(sccfree(x) for x in S[g2 % N]):
                            g2 += 1
                        ok = room(g2) and all(sccfree(x) for x in S[g2 % N])
                        if ok:
                            locked.update(z % N for z in range(g, g2))
                    if ok:
                        break
                    g += 1
                S[g % N].append(Op(tx, "salu"))
                if tx.startswith("s_cselect"):
                    locked.add(g % N)
                g += 1
        assert all(sccfree(x) for x in S[N - 1])
        body = []
        for g in range(N):
            body += [seq[g]] + ST[g] + S[g] + D[g] + V[g]
        body.append(Op(f"s_cbranch_scc1 {label}", "salu"))
        if not self.o["drop"]:
            m = len(body)
            for i, op in enumerate(body):
                for d in range(1, 10):
                    p = body[(i - d) % m]
                    ws = d - 1
                    if p.kind == "mx" and op.kind != "mx" and (p.wr & (op.rd | op.wr)):
                        assert ws >= 8, ("mx->x", p.text, op.text, ws)
                    if p.kind in ("valu", "dpp") and op.kind == "mx" and (p.wr & op.rd):
                        assert ws >= 2, ("valu->mx", p.text, op.text, ws)
                    if p.kind in ("valu", "dpp") and op.kind == "dpp" and (p.wr & op.rd):
                        assert ws >= 2, ("valu->dpp", p.text, op.text, ws)
                    if p.kind == "st" and (p.rd & op.wr):
                        assert ws >= 2, ("st war", p.text, op.text, ws)
        pro = [x for g in range(N) for x in V[g] if x.tag == "pre"] + [x for g in range(BAR + 1, N) for x in D[g] if x.tag == "pre"]
        epi = [x for g in range(BAR) for x in ST[g] + D[g] + V[g] if x.tag == "epi"]
        return pro, body, epi

    def main_loop(self, links, sfx):
        a = self.a
        pro, body, epi = self.assemble_loop(links, "L_loop" + sfx)
        for op in pro:
            a(op.text)
        a("s_waitcnt lgkmcnt(0)")
        a(".p2align 6")
        a(f"L_loop{sfx}:")
        for op in body:
            a(op.text)
        a("s_nop 7")
        for op in epi:
            if op.kind in ("dpp", "lds"):
                a("s_nop 1")
            if op.kind == "st":
                a("s_waitcnt lgkmcnt(0)")
            a(op.text)
            if op.kind == "st":
                a("s_nop 1")

    def loop_state(self):
        a = self.a
        a(f"s_mov_b32 s{S_IT}, 0")
        a(f"s_mov_b32 s{S_BUF}, 0")
        a(f"s_mov_b32 s{S_BUFN}, 0")
        a(f"s_mov_b32 s{S_CTB}, {TB}")
        a(f"s_mov_b32 s{S_OINC}, 0")
        a(f"s_mov_b64 vcc, {sr(S_EVEN,2)}")

    def stamp(self, n):
        if self.o["stamp"]:
            a = self.a
            a("s_memtime s[98:99]" if self.o["cyc"] and n in (5, 6) else "s_memrealtime s[98:99]")
            a("s_waitcnt lgkmcnt(0)")
            a(f"v_writelane_b32 v255, s98, {n}")

    def descriptor(self, label, vg, ag):
        self.a(f""".amdhsa_kernel {label}
  .amdhsa_next_free_vgpr {vg}
  .amdhsa_next_free_sgpr 102
  .amdhsa_accum_offset {ag}
  .amdhsa_group_segment_fixed_size 0
  .amdhsa_kernarg_size 48
  .amdhsa_user_sgpr_count 2
  .amdhsa_user_sgpr_kernarg_segment_ptr 1
  .amdhsa_system_sgpr_workgroup_id_x 1
.end_amdhsa_kernel""")

    def flush_tail(self):
        for b in self.tailblocks:
            self.a(b)
        self.tailblocks = []

    def gen(self):
        a = self.a
        o = self.o
        K = NAME + "_kernel"
        a(open("cdna_kernels/" + NAME + ".s.ref").read().split("; Override")[0].rstrip())
        if o["fused"]:
            a(f"; @launch grid=(256,1,1) block=(256,1,1) lds={LDS_BYTES}")
        else:
            a(f"; @launch kernel=prep_kernel grid=({NTASK},1,1) block=(256,1,1) lds={LDS_BYTES}")
            a(f"; @launch kernel={K} grid=(256,1,1) block=(256,1,1) lds={LDS_BYTES}")
        a('.amdgcn_target "amdgcn-amd-amdhsa--gfx950"\n.text')
        if not o["fused"]:
            self.entry("prep_kernel", NTASK)
            a(f"s_mov_b32 s{S_TASK}, s2\ns_mov_b32 s{S_BASE}, 0\ns_mov_b32 s{S_MODE}, 0")
            self.producer("")
            a("L_end_prep_kernel:\ns_endpgm")
            self.flush_tail()
        self.entry(K, 256)
        a(f"s_mov_b32 s{S_BASE}, 0\ns_mov_b32 s{S_MODE}, 0")
        if o["fused"]:
            a(f"s_mov_b32 s{S_TASK}, s2")
            a(f"s_cmp_ge_u32 s2, {NTASK}")
            a("s_cbranch_scc1 L_cons")
            self.producer("")
            a(f"s_cmp_lg_u32 s{S_WAVE}, 0")
            a("s_cbranch_scc1 L_cons2")
            a("v_mov_b32 v8, 1")
            a("s_mov_b64 exec, 1")
            a(f"buffer_atomic_add v8, off, {sr(S_DBG,4)}, 0 sc1")
            a("s_mov_b64 exec, -1")
            a("L_cons2:")
            self.lane_setup()
            a("s_branch L_cons3")
            a("L_cons:")
        self.lane_setup()
        self.entry_wait()
        a("L_cons3:")
        self.stamp(1)
        self.dma_setup()
        self.bias_load()
        self.prefetch(NB - 1)
        self.stamp(2)
        self.lane_setup2()
        self.tables_init()
        a(f"s_waitcnt vmcnt({5*(NB-1)})")
        self.bias_store()
        yp, pre, C, G = self.build()
        if o["fused"]:
            a(f"s_cmp_lg_u32 s{S_WAVE}, 0")
            a("s_cbranch_scc1 L_ready")
            a("L_poll:")
            a(f"buffer_load_dword v8, off, {sr(S_DBG,4)}, 0 sc1")
            a("s_waitcnt vmcnt(0)")
            a(f"v_readfirstlane_b32 s{S_T0}, v8")
            a("s_nop 3")
            a(f"s_cmp_lt_u32 s{S_T0}, {NTASK}")
            a("s_cbranch_scc1 L_poll")
            a("L_ready:")
        a("s_waitcnt lgkmcnt(0)")
        a("s_barrier")
        self.stamp(3)
        self.emit_build(pre, C, G)
        self.stamp(4)
        a("s_waitcnt vmcnt(0) lgkmcnt(0)")
        a("s_barrier")
        self.stamp(5)
        self.loop_state()
        self.main_loop(o["links"], "")
        self.stamp(6)
        if o["stamp"]:
            a("s_waitcnt vmcnt(0)")
            self.stamp(7)
            a("v_writelane_b32 v255, s100, 0")
            a(f"s_lshl_b32 s{S_T0}, s2, 2\ns_add_u32 s{S_T0}, s{S_T0}, s{S_WAVE}\ns_lshl_b32 s{S_T0}, s{S_T0}, 5")
            a(f"s_add_u32 s{S_T0}, s{S_T0}, {WSBYTES - 65536}")
            a(f"v_lshl_add_u32 v254, v{V_LANE}, 2, s{S_T0}")
            a("s_mov_b32 exec_lo, 0xff\ns_mov_b32 exec_hi, 0")
            a(f"buffer_store_dword v255, v254, {sr(S_WS,4)}, 0 offen")
            if o["diag"]:
                n1, n0, wg, mul = o["diag"]
                a(f"s_cmp_lg_u32 s2, {wg}\ns_cbranch_scc1 L_end_{K}\ns_cmp_lg_u32 s{S_WAVE}, 0\ns_cbranch_scc1 L_end_{K}")
                a(f"v_readlane_b32 s60, v255, {n1}\nv_readlane_b32 s61, v255, {n0}\ns_nop 3\ns_sub_u32 s60, s60, s61\ns_mul_i32 s60, s60, {mul}")
                a("s_min_u32 s60, s60, 100000\ns_add_u32 s60, s60, 10000")
                a("L_diag:\ns_sleep 1\ns_memrealtime s[62:63]\ns_waitcnt lgkmcnt(0)\ns_sub_u32 s62, s62, s100\ns_cmp_lt_u32 s62, s60\ns_cbranch_scc1 L_diag")
        a(f"L_end_{K}:\ns_endpgm")
        self.flush_tail()
        a('.section .rodata,"a"\n.p2align 6')
        if not o["fused"]:
            self.descriptor("prep_kernel", 128, 128)
            a(".p2align 6")
        self.descriptor(K, 512, 256)
        return "\n".join(self.L) + "\n"


if __name__ == "__main__":
    opts = eval("dict(" + (sys.argv[2] if len(sys.argv) > 2 else "") + ")")
    out = sys.argv[1] if len(sys.argv) > 1 else "cdna_kernels/" + NAME + ".s"
    open(out, "w").write(Gen(**opts).gen())
```

```python
import sys

NAME = "standalone__structured_sparse_n_m__ragged"
TB = 18432
NB = 8
XBYTES = 75497472
WBYTES = 663552
WSBYTES = 301989888
A_OFF = 0
I_OFF = 331776
I8_OFF = I_OFF + 36864
R1_OFF = I8_OFF + 5120
R8_OFF = R1_OFF + 9216
COPY = 393216
NTASK = 41
L_TAB = NB * TB
L_WV = L_TAB + 4096
WV_SZ = 2816
L_PL = L_WV + 4 * WV_SZ
LDS_BYTES = 163840
assert L_PL + 512 <= LDS_BYTES and L_WV % 256 == 0 and WV_SZ % 256 == 0

V_RD0, V_RD1, V_TAB, V_DMA, V_ST, V_ST8, V_BP, V_LANE = 0, 1, 2, 3, 4, 5, 6, 7
V_ACC = 8
V_B = 44
V_BR = 76
V_P = 92
V_T = 108
V_P8 = 112
V_X = 114
V_AD = 118
V_I = 138
V_I8 = 174
V_IR = 179
V_A = 186
S_X, S_OUT, S_WS, S_W, S_B, S_DBG = 16, 20, 24, 28, 32, 36
S_WAVE = 40
S_IT, S_BUF, S_DELTA, S_M0B, S_XOFF, S_OOFF = 41, 42, 43, 44, 45, 46
S_T0, S_T1, S_T2 = 47, 3, 92
S_MASK = 48
S_EVEN, S_ODD = 80, 82
S_TASK, S_TEND, S_BASE, S_MODE, S_CONT = 84, 85, 86, 87, 88
S_BAD = 90
S_MORE, S_LINK = 78, 89
S_C0 = 93
S_BUFN, S_CTB, S_OINC, S_XOFF5, S_M05, S_M0W, S_HALF = 4, 5, 6, 7, 8, 9, 10


def vr(b, n=1):
    return f"v{b}" if n == 1 else f"v[{b}:{b+n-1}]"


def sr(b, n=1):
    return f"s{b}" if n == 1 else f"s[{b}:{b+n-1}]"


def afrag(s, t):
    f = 9 * s + t
    return f"a[{4*f}:{4*f+3}]" if f < 64 else vr(V_A + 4 * (f - 64), 4)


def aidx(s, t):
    if t < 8:
        return V_I + 4 * s + (t >> 1), t & 1
    return V_I8 + (s >> 1), s & 1


BBUF = [0, 1, 2, 3, 0, 1, 0, 2, 3]
RBUF = [V_BR, V_BR + 8, V_BR, V_P, V_BR + 8]
RT = [[0, 1], [1, 2, 3], [3, 4, 5], [5, 6, 7], [7, 8]]


class Op:
    def __init__(self, text, kind, rd=(), wr=(), tag=""):
        self.text, self.kind, self.rd, self.wr, self.tag = text, kind, set(rd), set(wr), tag


def rng(b, n):
    return range(b, b + n)


class Gen:
    def __init__(self, **o):
        self.o = dict(fused=True, ld="nt", st="", bperm=True, nb0=3, stamp=False, nodma=False, wl="sc1", ws="sc1",
                      vmw=60, lper=9, drop=(), cyc=False, links=None, ng4=6, px=2, maxpoll=20000, warm=True, bcast=True, l0=12, rpos=(18, 35, 50, 63, 75), rposl=(18, 36, 52, 66, 78),
                      lead=8, stg=(9, 16, 23, 30, 37), dmag=(43, 49, 55, 61, 67), gsp=2, eager=99, verbose=False, hack=None, diag=None, sig=1, psleep=0, pl='sc1', fs='sc1', isort=False, order='hp')
        self.o.update(o)
        self.L = []
        self.tailblocks = []

    def a(self, s):
        self.L.extend(s.split("\n"))

    def entry(self, label, nwg):
        a = self.a
        a(f".globl {label}\n.p2align 8\n.type {label},@function\n{label}:")
        a(f"s_cmp_ge_u32 s2, {nwg}")
        a(f"s_cbranch_scc1 L_end_{label}")
        if self.o["stamp"]:
            a("s_memrealtime s[100:101]")
        a("s_load_dwordx8 s[4:11], s[0:1], 0")
        a("s_load_dwordx4 s[12:15], s[0:1], 32")
        a("v_lshrrev_b32 v1, 6, v0")
        a(f"v_and_b32 v{V_LANE}, 63, v0")
        a(f"v_readfirstlane_b32 s{S_WAVE}, v1")
        for srd, size in ((S_X, XBYTES), (S_OUT, 0), (S_WS, WSBYTES), (S_W, WBYTES), (S_B, 1152), (S_DBG, 256)):
            a(f"s_mov_b32 s{srd+2}, {size}")
            a(f"s_mov_b32 s{srd+3}, 0x20000")

    def entry_wait(self, first=None):
        a = self.a
        lst = ((S_W, 6), (S_X, 4), (S_WS, 14), (S_B, 8), (S_OUT, 10), (S_DBG, 12))
        if first is not False:
            a("s_waitcnt lgkmcnt(0)")
        for srd, p in (lst if first is None else (lst[:1] if first else lst[1:])):
            a(f"s_mov_b32 s{srd}, s{p}")
            a(f"s_and_b32 s{srd+1}, s{p+1}, 0xffff")

    def producer(self, sfx, generic):
        a = self.a
        ws = self.o["ws"]
        W, Z, K = 8, 24, 28
        OA, NB_, IX = 36, 44, 48
        VL, VA, VI, VM0, VM1, VSEL, CJ = 50, 51, 52, 53, 54, 55, 56
        F0, F1, H, U, T0, T1, T2, VLI = 58, 59, 60, 61, 62, 63, 64, 65
        C = S_MASK
        SEL = S_MASK + 16
        CNT = S_MASK + 27
        ln = f"v{V_LANE}"
        a(f"s_and_b32 s{C}, s{S_TASK}, 3")
        a(f"s_lshr_b32 s{C+1}, s{S_TASK}, 2")
        a(f"s_sub_u32 s{C+2}, s{S_TASK}, 36")
        a(f"s_lshl_b32 s{C+3}, s{S_WAVE}, 4")
        a(f"s_lshl_b32 s{C+4}, s{C+2}, 1")
        a(f"s_lshl_b32 s{C+5}, s{C}, 8")
        a(f"s_cmp_lt_u32 s{S_TASK}, 36")
        a(f"s_cselect_b32 s{C+4}, s{C+1}, s{C+4}")
        a(f"s_cselect_b32 s{C+5}, s{C+5}, 1024")
        a(f"s_cselect_b32 s{C+6}, 8, 73728")
        a(f"s_cselect_b32 s{C+7}, 32, 8")
        a(f"s_cselect_b32 s{C+8}, 16, 32")
        a(f"s_cselect_b32 s{C+9}, 128, 64")
        a(f"s_mul_i32 s{C+4}, s{C+4}, 73728")
        a(f"s_mul_i32 s{C+10}, s{S_WAVE}, 18432")
        a(f"v_and_b32 v{F0}, 1, {ln}")
        a(f"v_bfe_u32 v{F1}, {ln}, 1, 1")
        a(f"v_bfe_u32 v{H}, {ln}, 2, 2")
        a(f"v_bfe_u32 v{T0}, {ln}, 4, 1")
        a(f"v_lshrrev_b32 v{T1}, 5, {ln}")
        a(f"v_lshl_add_u32 v{VL}, v{F0}, 2, s{C+4}")
        a(f"v_mad_u32_u24 v{VL}, v{F1}, s{C+6}, v{VL}")
        a(f"v_mad_u32_u24 v{VL}, v{H}, s{C+7}, v{VL}")
        a(f"v_mad_u32_u24 v{VL}, v{T0}, s{C+8}, v{VL}")
        a(f"v_mad_u32_u24 v{VL}, v{T1}, s{C+9}, v{VL}")
        a(f"v_add_u32 v{VL}, s{C+5}, v{VL}")
        a(f"v_add_u32 v{VL}, s{C+10}, v{VL}")
        a(f"v_add_u32 v{T0}, 4608, v{VL}")
        a(f"v_add_u32 v{T1}, 9216, v{VL}")
        a(f"v_add_u32 v{T2}, 13824, v{VL}")
        if not generic:
            self.entry_wait(first=True)
        for q in range(4):
            for j in range(4):
                a(f"buffer_load_dword v{W+4*q+j}, v{(VL, T0, T1, T2)[q]}, {sr(S_W,4)}, 0 offen offset:{1152*j}")
        if not generic:
            self.stamp(8)
            self.entry_wait(first=False)
        a(f"s_mul_i32 s{C+4}, s{C}, 9")
        a(f"s_add_u32 s{C+4}, s{C+4}, s{C+1}")
        a(f"s_mul_i32 s{C+5}, s{C+4}, 9")
        a(f"s_mul_i32 s{C+6}, s{C+2}, 18")
        a(f"s_add_u32 s{C+6}, s{C+6}, 8")
        a(f"s_lshl_b32 s{C+7}, s{C+4}, 2")
        a(f"s_add_u32 s{C+7}, s{C+7}, s{S_WAVE}")
        a(f"s_lshl_b32 s{C+8}, s{C+2}, 2")
        a(f"s_add_u32 s{C+8}, s{C+8}, s{S_WAVE}")
        a(f"s_cmp_eq_u32 s{S_TASK}, 40")
        a(f"s_cselect_b32 s{C+9}, 0x100000, 9")
        a(f"s_cmp_lt_u32 s{S_TASK}, 36")
        a(f"s_cselect_b32 s{C+5}, s{C+5}, s{C+6}")
        a(f"s_cselect_b32 s{C+6}, 2, 81")
        a(f"s_cselect_b32 s{C+9}, 1, s{C+9}")
        a(f"s_cselect_b32 s{C+7}, s{C+7}, s{C+8}")
        a(f"s_mov_b32 s{C+8}, {I_OFF}")
        a(f"s_cselect_b32 s{C+8}, s{C+8}, {I8_OFF}")
        a(f"s_mov_b32 s{C+10}, {R1_OFF}")
        a(f"s_cselect_b32 s{C+10}, s{C+10}, {R8_OFF}")
        a(f"s_cselect_b32 s{C+11}, 16, 4")
        a(f"s_cselect_b32 s{C+12}, 4, 64")
        a(f"s_cselect_b32 s{C+13}, 12, 11")
        a(f"s_cselect_b32 s{C+14}, 0, 0x8000")
        a(f"v_lshrrev_b32 v{U}, 4, {ln}")
        a(f"v_lshlrev_b32 v{T0}, 1, v{F0}")
        a(f"v_lshl_add_u32 v{H}, v{H}, 2, v{T0}")
        a(f"v_mul_u32_u24 v{VA}, s{C+6}, v{U}")
        a(f"v_mad_u32_u24 v{VA}, v{F1}, s{C+9}, v{VA}")
        a(f"v_add_lshl_u32 v{VA}, v{VA}, s{C+5}, 6")
        a(f"v_add3_u32 v{VA}, v{VA}, v{H}, s{C+3}")
        a(f"v_lshl_add_u32 v{VA}, v{VA}, 4, s{S_BASE}")
        a(f"s_lshl_b32 s{C+4}, s{C+7}, 8")
        a(f"s_add_u32 s{C+4}, s{C+4}, s{C+8}")
        a(f"s_add_u32 s{C+4}, s{C+4}, s{S_BASE}")
        a(f"v_add_u32 v{T0}, v{H}, v{F1}")
        a(f"v_mul_u32_u24 v{VI}, s{C+11}, v{T0}")
        a(f"v_mad_u32_u24 v{VI}, v{U}, s{C+12}, v{VI}")
        a(f"v_add_u32 v{VI}, s{C+4}, v{VI}")
        if not generic:
            a(f"s_lshl_b32 s{C+4}, s{C+7}, 6")
            a(f"s_add_u32 s{C+10}, s{C+10}, s{C+4}")
            a(f"s_add_u32 s{C+10}, s{C+10}, s{S_BASE}")
            a(f"s_lshl_b32 s{C+4}, s{C+3}, 1")
            a(f"s_add_u32 s{C+4}, s{C+4}, s{C+14}")
            a(f"v_lshl_add_u32 v{T0}, v{U}, 1, v{F1}")
            a(f"v_lshlrev_b32 v{T0}, s{C+13}, v{T0}")
            a(f"v_lshl_add_u32 v{VM0}, v{H}, 7, v{T0}")
            a(f"v_add_u32 v{VM0}, s{C+4}, v{VM0}")
            a(f"v_add_u32 v{VM1}, 128, v{VM0}")
            a(f"v_lshl_add_u32 v{VLI}, {ln}, 2, s{C+10}")
            a(f"s_mov_b32 s{CNT}, 0")
            a(f"s_mov_b32 s{SEL+9}, 0x05060100")
        a(f"v_mov_b32 v{VSEL}, 0x05040100")
        a(f"v_mov_b32 v{T0}, 0x03020706")
        a(f"v_cmp_eq_u32 vcc, 1, v{F1}")
        a(f"v_mov_b32 v{CJ}, 0x0f0a0500")
        a(f"v_mov_b32 v{CJ+1}, 0xf0a05000")
        a(f"v_cndmask_b32 v{VSEL}, v{VSEL}, v{T0}, vcc")
        for c in range(2):
            for j in range(4):
                a(f"s_mov_b32 s{SEL+4*c+j}, {hex(((5+2*c) << 24) | ((4+2*c) << 16) | ((5+2*c) << 8) | j)}")
        a(f"s_mov_b32 s{SEL+8}, 0x05060102")
        if generic:
            a(f"s_cmp_lg_u32 s{S_MODE}, 0")
        sw = "src0_sel:WORD_1 src1_sel:WORD_1"
        for q in range(4):
            if generic or q == 0:
                a(f"s_waitcnt vmcnt({12-4*q})")
            if q in (0, 3) and not generic:
                self.stamp(9 + q // 3)
            for c in range(2):
                n = 2 * q + c
                for j in range(4):
                    a(f"v_perm_b32 v{Z+j}, v{W+4*q+j}, v{CJ+(q&1)}, s{SEL+4*c+j}")
                a(f"v_max3_f32 v{K}, |v{Z}|, |v{Z+1}|, |v{Z+2}|")
                a(f"v_med3_f32 v{K+1}, |v{Z}|, |v{Z+1}|, |v{Z+2}|")
                a(f"v_min3_f32 v{K+2}, |v{Z}|, |v{Z+1}|, |v{Z+2}|")
                a(f"v_med3_f32 v{K+4}, v{K}, v{K+1}, |v{Z+3}|")
                a(f"v_med3_f32 v{K+5}, v{K+1}, v{K+2}, |v{Z+3}|")
                a(f"v_max_f32 v{K+3}, v{K}, |v{Z+3}|")
                a(f"v_cmp_eq_u32_sdwa vcc, v{K+5}, v{K+4} {sw}")
                if generic:
                    a(f"s_cbranch_scc0 L_rb{n}{sfx}")
                    a(f"v_min_f32 v{K+2}, v{K+2}, |v{Z+3}|")
                    a(f"v_cndmask_b32 v{K+3}, 0, v{K+5}, vcc")
                    a(f"v_cmp_eq_u32_sdwa vcc, v{K+2}, v{K+4} {sw}")
                    a("s_nop 1")
                    a(f"v_cndmask_b32 v{K+4}, 0, v{K+2}, vcc")
                    a(f"L_rb{n}{sfx}:")
                a(f"v_perm_b32 v{OA+4*c+q}, v{K+3}, v{K+4}, s{SEL+8}")
                nb = NB_ + 2 * c + (q >> 1)
                if q & 1 == 0:
                    a(f"v_bfi_b32 v{nb}, 51, v{K+4}, v{K+3}")
                else:
                    a(f"v_bfi_b32 v{K+3}, 51, v{K+4}, v{K+3}")
                    a(f"v_or_b32 v{nb}, v{nb}, v{K+3}")
                if not generic:
                    if n == 0:
                        a("s_waitcnt vmcnt(0)")
                    a(f"s_cbranch_vccnz L_tie{n}{sfx}")
                    a(f"L_tb{n}{sfx}:")
                    blk = [f"L_tie{n}{sfx}:", "s_mov_b64 exec, vcc",
                           f"v_cmp_lt_u32 vcc, 0xffff, v{K+5}",
                           f"v_min_f32 v{K+2}, v{K+2}, |v{Z+3}|"]
                    for z, key in enumerate((K + 5, K + 2)):
                        blk += [f"v_perm_b32 v{T1}, v{key}, v{(VM0, VM1)[c]}, s{SEL+9}",
                                f"v_bfe_u32 v{T0}, v{key}, {4*(q&1)}, 2",
                                f"v_lshl_add_u32 v{T1}, v{T0}, 1, v{T1}",
                                f"v_mbcnt_lo_u32_b32 v{T0}, vcc_lo, 0",
                                f"v_mbcnt_hi_u32_b32 v{T0}, vcc_hi, v{T0}",
                                f"v_add_u32 v{T1}, {8*q}, v{T1}",
                                f"v_add_u32 v{T0}, s{CNT}, v{T0}",
                                f"s_bcnt1_i32_b64 s{C+4}, vcc",
                                f"s_add_u32 s{CNT}, s{CNT}, s{C+4}",
                                f"s_mov_b64 {sr(C,2)}, vcc",
                                "s_mov_b64 exec, vcc",
                                f"v_cmp_gt_u32 vcc, 15, v{T0}",
                                f"v_lshl_add_u32 v{T0}, v{T0}, 2, s{C+10}",
                                "s_nop 0",
                                "s_mov_b64 exec, vcc",
                                f"s_cbranch_execz L_ts{n}{z}{sfx}",
                                f"buffer_store_dword v{T1}, v{T0}, {sr(S_WS,4)}, 0 offen {ws}",
                                f"L_ts{n}{z}{sfx}:"]
                        if z == 0:
                            blk += [f"s_mov_b64 exec, {sr(C,2)}",
                                    f"v_cmp_eq_u32_sdwa vcc, v{K+2}, v{K+5} {sw}",
                                    "s_nop 4",
                                    f"s_cbranch_vccz L_te{n}{sfx}"]
                    blk += [f"L_te{n}{sfx}:", "s_mov_b64 exec, -1", f"s_branch L_tb{n}{sfx}"]
                    self.tailblocks.append("\n".join(blk))
        a(f"buffer_store_dwordx4 {vr(OA,4)}, v{VA}, {sr(S_WS,4)}, 0 offen {ws}")
        a(f"s_mov_b32 s{C+4}, 0x0c0c0400")
        a(f"s_mov_b32 s{C+5}, 0x04000c0c")
        a(f"v_perm_b32 v{IX}, v{NB_+1}, v{NB_}, s{C+4}")
        a(f"v_perm_b32 v{IX+1}, v{NB_+3}, v{NB_+2}, s{C+5}")
        a(f"v_or_b32 v{IX}, v{IX}, v{IX+1}")
        a(f"buffer_store_dwordx4 {vr(OA+4,4)}, v{VA}, {sr(S_WS,4)}, 0 offen offset:16 {ws}")
        if not generic:
            a(f"s_cmp_gt_u32 s{CNT}, 15")
            a(f"s_cselect_b32 s{C+4}, -1, 0")
            a(f"s_min_u32 s{CNT}, s{CNT}, 15")
            a(f"s_lshl_b32 s{C+5}, -1, s{CNT}")
            a(f"v_mov_b32 v{T0}, s{C+4}")
        else:
            a("s_nop 0")
        a(f"v_mov_b32_dpp v{IX+1}, v{IX} quad_perm:[2,3,0,1] row_mask:0xf bank_mask:0xf")
        a(f"v_perm_b32 v{IX}, v{IX+1}, v{IX}, v{VSEL}")
        a(f"buffer_store_dword v{IX}, v{VI}, {sr(S_WS,4)}, 0 offen {ws}")
        if not generic:
            a(f"s_and_b32 exec_lo, s{C+5}, 0xffff")
            a("s_mov_b32 exec_hi, 0")
            a(f"buffer_store_dword v{T0}, v{VLI}, {sr(S_WS,4)}, 0 offen {ws}")
            a("s_mov_b64 exec, -1")
            self.stamp(11)
            self.stamp(12)
        a("s_waitcnt vmcnt(0)")
        if not generic:
            self.stamp(13)

    def lane_setup(self):
        a = self.a
        ln = f"v{V_LANE}"
        T0, T1, T2 = 72, 73, 74
        a(f"v_lshrrev_b32 v{T0}, 3, {ln}")
        a(f"v_and_b32 v{T1}, 7, {ln}")
        a(f"v_xor_b32 v{T1}, v{T1}, v{T0}")
        a(f"v_mul_u32_u24 v{T0}, 1152, v{T0}")
        a(f"s_and_b32 s{S_T0}, s{S_WAVE}, 1")
        a(f"s_mul_i32 s{S_T0}, s{S_T0}, 9216")
        a(f"s_lshr_b32 s{S_T1}, s{S_WAVE}, 1")
        a(f"s_lshl_b32 s{S_T1}, s{S_T1}, 7")
        a(f"s_add_u32 s{S_T0}, s{S_T0}, s{S_T1}")
        a(f"v_lshl_add_u32 v{T0}, v{T1}, 4, v{T0}")
        a(f"v_add_u32 v{V_DMA}, s{S_T0}, v{T0}")
        a(f"s_lshl_b32 s{S_M0B}, s{S_WAVE}, 10")
        a(f"s_mul_i32 s{S_XOFF}, s2, {TB}")
        a(f"s_mov_b32 s{S_OOFF}, s{S_XOFF}")

    def lane_setup2(self):
        a = self.a
        ln = f"v{V_LANE}"
        T0, T1, T2 = 72, 73, 74
        a(f"v_and_b32 v{T0}, 15, {ln}")
        a(f"v_lshrrev_b32 v{T1}, 4, {ln}")
        a(f"v_and_b32 v{T2}, 7, {ln}")
        a(f"v_xor_b32 v{T2}, v{T2}, v{T1}")
        a(f"v_lshlrev_b32 v{T2}, 4, v{T2}")
        a(f"v_lshl_add_u32 v{V_RD0}, v{T0}, 7, v{T2}")
        a(f"v_xor_b32 v{V_RD1}, 64, v{V_RD0}")
        a(f"s_lshl_b32 s{S_T0}, s{S_WAVE}, 10")
        a(f"s_add_u32 s{S_T0}, s{S_T0}, {L_TAB}")
        a(f"v_lshl_add_u32 v{V_TAB}, v{T1}, 4, s{S_T0}")
        a(f"v_and_b32 v{T2}, 14, {ln}")
        a(f"v_mul_u32_u24 v{V_ST}, 1152, v{T2}")
        a(f"v_and_b32 v{T2}, 1, {ln}")
        a(f"v_lshl_add_u32 v{V_ST}, v{T2}, 4, v{V_ST}")
        a(f"v_lshl_add_u32 v{V_ST}, v{T1}, 5, v{V_ST}")
        a(f"s_lshl_b32 s{S_T0}, s{S_WAVE}, 8")
        a(f"v_add_u32 v{V_ST}, s{S_T0}, v{V_ST}")
        if self.o["hack"] == "q4":
            a(f"v_lshrrev_b32 v{T2}, 3, {ln}")
            a(f"v_mul_u32_u24 v{V_ST}, 2304, v{T2}")
            a(f"v_and_b32 v{T2}, 7, {ln}")
            a(f"v_lshl_add_u32 v{V_ST}, v{T2}, 4, v{V_ST}")
            a(f"v_add_u32 v{V_ST}, s{S_T0}, v{V_ST}")
        a(f"s_lshl_b32 s{S_T0}, s{S_WAVE}, 5")
        a(f"s_add_u32 s{S_T0}, s{S_T0}, 1024")
        if self.o["bperm"]:
            a(f"v_lshrrev_b32 v{T0}, 2, {ln}")
            a(f"v_and_b32 v{T1}, 3, {ln}")
            a(f"v_lshl_add_u32 v{V_BP}, v{T1}, 4, v{T0}")
            a(f"v_lshlrev_b32 v{V_BP}, 2, v{V_BP}")
        a(f"v_mul_u32_u24 v{V_ST8}, 1152, v{T0}")
        a(f"v_lshl_add_u32 v{V_ST8}, v{T1}, 3, v{V_ST8}")
        a(f"v_add_u32 v{V_ST8}, s{S_T0}, v{V_ST8}")
        a(f"s_mov_b32 s{S_EVEN}, 0x55555555")
        a(f"s_mov_b32 s{S_EVEN+1}, 0x55555555")
        a(f"s_mov_b32 s{S_ODD}, 0xaaaaaaaa")
        a(f"s_mov_b32 s{S_ODD+1}, 0xaaaaaaaa")

    def dma_setup(self):
        a = self.a
        a(f"s_lshr_b32 s{S_T0}, s{S_WAVE}, 1")
        a(f"s_lshl_b32 s{S_T1}, s{S_T0}, 11")
        a(f"s_sub_u32 s{S_M05}, {16384-896}, s{S_T1}")
        a(f"s_lshl_b32 s{S_T1}, s{S_T0}, 7")
        a(f"s_add_u32 s{S_XOFF5}, s{S_XOFF}, 128")
        a(f"s_sub_u32 s{S_XOFF5}, s{S_XOFF5}, s{S_T1}")
        a(f"s_sub_u32 s{S_HALF}, s{S_T0}, 1")
        a(f"s_sub_u32 s{S_HALF+1}, 0, s{S_T0}")
        a(f"s_mov_b32 s{S_M0W}, s{S_M0B}")

    def dma_tile(self):
        a = self.a
        for j in range(5):
            a(f"s_add_u32 m0, s{S_M0B}, {3840*j if j < 4 else 's%d' % S_M05}")
            a("s_nop 0" if j < 4 else f"s_mov_b64 exec, {sr(S_HALF,2)}")
            a(f"buffer_load_dwordx4 v{V_DMA}, {sr(S_X,4)}, s{S_XOFF if j < 4 else S_XOFF5} offen offset:{256*j if j < 4 else 896} {self.o['ld']} lds")
        a("s_mov_b64 exec, -1")

    def prefetch(self, n, lab="L_pf"):
        a = self.a
        if n == 0:
            return
        a(f"s_mov_b32 s{S_IT}, {n}")
        a(f"{lab}:")
        self.dma_tile()
        a(f"s_add_u32 s{S_XOFF5}, s{S_XOFF5}, {256*TB}")
        a(f"s_add_u32 s{S_M0B}, s{S_M0B}, {TB}")
        a(f"s_add_u32 s{S_XOFF}, s{S_XOFF}, {256*TB}")
        a(f"s_sub_u32 s{S_IT}, s{S_IT}, 1")
        a(f"s_cmp_lg_u32 s{S_IT}, 0")
        a(f"s_cbranch_scc1 {lab}")

    def bias_load(self):
        a = self.a
        ln = f"v{V_LANE}"
        a(f"v_and_b32 v80, 3, {ln}")
        a(f"v_bfe_u32 v81, {ln}, 2, 2")
        a(f"v_bfe_u32 v82, {ln}, 4, 1")
        a("v_lshlrev_b32 v81, 3, v81")
        a("v_lshl_add_u32 v81, v80, 5, v81")
        a("v_lshl_add_u32 v81, v82, 7, v81")
        a(f"s_lshl_b32 s{S_T0}, s{S_WAVE}, 8")
        a(f"v_add_u32 v81, s{S_T0}, v81")
        a(f"s_lshl_b32 s{S_T0}, s{S_WAVE}, 5")
        a(f"s_add_u32 s{S_T0}, s{S_T0}, 1024")
        a(f"v_lshl_add_u32 v80, v80, 3, s{S_T0}")
        a(f"v_cmp_gt_u32 vcc, 32, {ln}")
        a("s_nop 1")
        a("v_cndmask_b32 v80, v80, v81, vcc")
        a(f"buffer_load_dwordx2 v[84:85], v80, {sr(S_B,4)}, 0 offen")

    def tables_init(self):
        a = self.a
        ln = f"v{V_LANE}"
        a(f"s_mul_i32 s{S_T0}, s{S_WAVE}, {WV_SZ}")
        a(f"s_add_u32 s{S_T0}, s{S_T0}, {L_WV}")
        a(f"v_lshl_add_u32 v88, {ln}, 4, s{S_T0}")
        a(f"v_lshl_add_u32 v89, {ln}, 2, s{S_T0}")
        for r in range(4):
            a(f"v_mov_b32 v{76+r}, 0")
        a("v_mov_b32 v90, 0xdddddddd")
        a("ds_write_b128 v88, v[76:79]")
        for r in range(7):
            a(f"ds_write_b32 v89, v90 offset:{1024+256*r}")
        a(f"s_lshl_b32 s{S_T0}, s{S_WAVE}, 2")
        a(f"s_add_u32 s{S_T0}, s{S_T0}, {L_PL + 256}")
        a(f"v_mov_b32 v88, s{S_T0}")
        a("ds_write_b32 v88, v76")

    def bias_store(self):
        a = self.a
        ln = f"v{V_LANE}"
        a("v_lshlrev_b32 v76, 16, v84")
        a("v_and_b32 v77, 0xffff0000, v84")
        a("v_lshlrev_b32 v78, 16, v85")
        a("v_and_b32 v79, 0xffff0000, v85")
        a(f"s_lshl_b32 s{S_T0}, s{S_WAVE}, 10")
        a(f"s_add_u32 s{S_T0}, s{S_T0}, {L_TAB}")
        a(f"v_lshl_add_u32 v80, {ln}, 4, s{S_T0}")
        a("s_mov_b32 exec_hi, 15")
        a("ds_write_b128 v80, v[76:79]")
        a("s_mov_b64 exec, -1")

    def wload_list(self, VA, VI8):
        wl = self.o["wl"]
        G = []
        so = S_C0 + 6
        cur = None
        for sp in range(5):
            g = []
            if sp == 4:
                g.append(f"s_mov_b32 s{so}, 4096")
            g.append(f"buffer_load_dword v{V_I8+sp}, v{VI8}, {sr(S_WS,4)}, {'s%d' % so if sp == 4 else '0'} offen offset:{1024*(sp%4)} {wl}")
            G.append(g)
        for s in range(9):
            G.append([f"s_mov_b32 s{so-1}, {1024*s}",
                      f"buffer_load_dwordx4 {vr(V_I+4*s,4)}, v{VA+1}, {sr(S_WS,4)}, s{so-1} offen {wl}"])
            for t in range(9):
                f = 9 * s + t
                g = []
                if cur != f >> 2:
                    cur = f >> 2
                    g.append(f"s_mov_b32 s{so}, {4096*cur}")
                g.append(f"buffer_load_dwordx4 {afrag(s,t)}, v{VA}, {sr(S_WS,4)}, s{so} offen offset:{1024*(f&3)} {wl}")
                G.append(g)
        return G

    def waddr(self, VA, VI8):
        a = self.a
        ln = f"v{V_LANE}"
        a(f"s_mul_i32 s{S_T0}, s{S_WAVE}, 82944")
        a(f"s_add_u32 s{S_T0}, s{S_T0}, s{S_BASE}")
        a(f"v_lshl_add_u32 v{VA}, {ln}, 4, s{S_T0}")
        a(f"s_mul_i32 s{S_T0}, s{S_WAVE}, 9216")
        a(f"s_add_u32 s{S_T0}, s{S_T0}, s{S_BASE}")
        a(f"s_add_u32 s{S_T0}, s{S_T0}, {I_OFF}")
        a(f"v_lshl_add_u32 v{VA+1}, {ln}, 4, s{S_T0}")
        a(f"s_lshl_b32 s{S_T0}, s{S_WAVE}, 6")
        a(f"s_add_u32 s{S_T0}, s{S_T0}, s{S_BASE}")
        a(f"s_add_u32 s{S_T0}, s{S_T0}, {I8_OFF}")
        a(f"v_and_b32 v{VI8}, 15, {ln}")
        a(f"v_lshl_add_u32 v{VI8}, v{VI8}, 2, s{S_T0}")
        a(f"v_lshrrev_b32 v{VI8+1}, 4, {ln}")
        a(f"v_lshl_add_u32 v{VI8}, v{VI8+1}, 8, v{VI8}")

    def build(self):
        a = self.a
        o = self.o
        ln = f"v{V_LANE}"
        wl = o["wl"]
        VA, VI8 = 104, 106
        E, TT, RK, ST = 8, 24, 40, 56
        T0, T1, T2, T3, T4 = 72, 73, 74, 75, 88
        ONE, KB, VW, VST, RX, VWARM = 89, 90, 91, 92, 93, 94
        WARM = 76
        RB = 24
        SW, SW8 = S_C0, S_C0 + 1
        a(f"s_mul_i32 s{S_T0}, s{S_WAVE}, 2304")
        a(f"s_add_u32 s{S_T0}, s{S_T0}, {R1_OFF}")
        a(f"v_lshl_add_u32 v{T0}, {ln}, 6, s{S_T0}")
        a(f"s_mov_b32 s{S_T0}, {R8_OFF - 36*64}")
        a(f"v_lshl_add_u32 v{T1}, {ln}, 6, s{S_T0}")
        a(f"v_lshrrev_b32 v{T2}, 2, {ln}")
        a(f"v_cmp_gt_u32 vcc, 36, {ln}")
        a(f"v_lshlrev_b32 v{KB}, 11, v{T2}")
        a(f"v_subrev_u32 v{T2}, 9, v{T2}")
        a(f"v_lshlrev_b32 v{T2}, 12, v{T2}")
        a(f"v_cndmask_b32 v{T0}, v{T1}, v{T0}, vcc")
        a(f"v_cndmask_b32 v{KB}, v{T2}, v{KB}, vcc")
        a(f"v_cmp_gt_u32 vcc, 56, {ln}")
        a(f"v_mov_b32 v{T1}, 0x40000000")
        a(f"s_lshr_b32 s{S_T0}, s2, 3")
        a(f"s_lshl_b32 s{S_T0}, s{S_T0}, 2")
        a(f"s_add_u32 s{S_T0}, s{S_T0}, s{S_WAVE}")
        a(f"s_mul_i32 s{S_T0}, s{S_T0}, 3072")
        a(f"v_cndmask_b32 v{T0}, v{T1}, v{T0}, vcc")
        a(f"v_lshl_add_u32 v{VWARM}, {ln}, 4, s{S_T0}")
        self.waddr(VA, VI8)
        a(f"s_mul_i32 s{SW}, s{S_WAVE}, {WV_SZ}")
        a(f"s_add_u32 s{SW}, s{SW}, {L_WV}")
        a(f"s_add_u32 s{SW8}, s{S_WAVE}, 8")
        a(f"v_mov_b32 v{ONE}, 1")
        a(f"v_lshl_add_u32 v{VW}, {ln}, 2, s{SW}")
        a(f"v_and_b32 v{T2}, 15, {ln}")
        a(f"v_and_b32 v{T1}, 7, {ln}")
        a(f"v_lshlrev_b32 v{T1}, 4, v{T1}")
        a(f"v_lshl_add_u32 v{RX}, v{T2}, 7, v{T1}")
        a(f"v_lshl_or_b32 v{RX}, v{RX}, 16, v{RX}")
        a(f"s_add_u32 s{S_C0+3}, s{SW}, 256")
        a(f"s_add_u32 s{S_C0+4}, s{SW}, 1024")
        pre = [f"buffer_load_dwordx4 {vr(E+4*r,4)}, v{T0}, {sr(S_WS,4)}, 0 offen offset:{16*r} {wl}" for r in range(4)]
        warm = [[f"buffer_load_dwordx4 {vr(WARM+4*r,4)}, v{VWARM}, {sr(S_WS,4)}, 0 offen offset:{1024*r} {wl}"] for r in range(3)] if o["warm"] else []
        C = []
        g = lambda *x: C.append(list(x))

        def rank(r):
            m = S_MASK + 2 * r
            return [f"v_bfe_u32 v{T0}, v{E+r}, 12, 4", f"v_cmp_ne_u32 {sr(m,2)}, 0, v{E+r}", f"v_cmp_eq_u32 vcc, s{SW8}, v{T0}",
                    f"v_min_u32 v{T0}, 8, v{T0}", f"v_lshl_add_u32 v{TT+r}, v{T0}, 2, s{SW}",
                    f"s_and_b32 s{m+1}, s{m+1}, 15", f"s_or_b32 s{m+1}, s{m+1}, vcc_hi",
                    f"s_mov_b64 exec, {sr(m,2)}", f"ds_add_rtn_u32 v{RK+r}, v{TT+r}, v{ONE}", "s_mov_b64 exec, -1"]

        def place(r):
            m = S_MASK + 2 * r
            x1 = [f"v_add_u32 v{RK+r}, v{RK+r}, v{ST+r}",
                  f"v_bfe_u32 v{T0}, v{RK+r}, 2, 2", f"v_and_b32 v{T1}, 3, v{RK+r}", f"v_lshl_or_b32 v{T0}, v{T1}, 2, v{T0}",
                  f"v_and_or_b32 v{RK+r}, v{RK+r}, -16, v{T0}",
                  f"v_and_b32 v{T0}, 0xffff087e, v{E+r}", f"v_add_u32 v{T0}, v{KB}, v{T0}", f"v_lshl_add_u32 v{T1}, v{RK+r}, 2, s{S_C0+3}"]
            x2 = [f"v_bfe_u32 v{T2}, v{TT+r}, 2, 4", f"v_lshrrev_b32 v{T3}, 5, v{RK+r}", f"v_add_u32 v{T2}, v{T2}, v{T3}",
                  f"v_and_b32 v{T3}, 1, v{T2}", f"v_lshrrev_b32 v{T2}, 1, v{T2}", f"v_and_b32 v{T4}, 7, v{RK+r}",
                  f"v_lshl_add_u32 v{T3}, v{T3}, 3, v{T4}", f"v_lshlrev_b32 v{T3}, 1, v{T3}", f"v_lshlrev_b32 v{T3}, v{T3}, v{ONE}"]
            x3 = [f"v_bfe_u32 v{T4}, v{RK+r}, 3, 2", f"v_lshl_add_u32 v{T2}, v{T2}, 2, v{T4}", f"v_bfe_u32 v{T4}, v{E+r}, 7, 4",
                  f"v_lshl_add_u32 v{T2}, v{T2}, 4, v{T4}", f"v_lshl_add_u32 v{T2}, v{T2}, 2, s{S_C0+4}",
                  f"s_andn2_b64 exec, {sr(m,2)}, {sr(S_BAD,2)}", f"ds_write_b32 v{T1}, v{T0}", f"ds_xor_b32 v{T2}, v{T3}", "s_mov_b64 exec, -1"]
            return [x1, x2, x3]
        g("@WAIT_E")
        g(f"v_cmp_ne_u32 {sr(S_BAD,2)}, 0, v{E+15}", f"v_cmp_ne_u32 {sr(S_MORE,2)}, 0, v{E+8}")
        for r in range(8):
            g(*rank(r))
        g(f"s_cmp_lg_u64 {sr(S_MORE,2)}, 0", "s_cbranch_scc1 L_more1", "L_more1b:")
        self.tailblocks.append("\n".join(["L_more1:"] + [x for r in range(8, 15) for x in rank(r)] + ["s_branch L_more1b"]))
        g(f"ds_read_b32 v{T0}, v{VW}", f"v_mov_b32 v{VST}, 0", f"s_mov_b32 s{S_T0}, 0", f"s_mov_b32 s{S_T2}, 0", f"s_mov_b32 s{S_LINK}, 0")
        g("s_waitcnt lgkmcnt(0)")
        for t in range(9):
            lo = 32 * (t >> 1)
            x = [f"v_readlane_b32 s{S_T1}, v{T0}, {t}", f"s_max_u32 s{S_T0}, s{S_T0}, {lo}",
                 f"v_writelane_b32 v{VST}, s{S_T0}, {t}", "s_nop 1", f"s_add_u32 s{S_T0}, s{S_T0}, s{S_T1}",
                 f"s_cmp_gt_u32 s{S_T0}, {lo + (64 if t & 1 else 32)}", f"s_addc_u32 s{S_T2}, s{S_T2}, 0"]
            if t & 1 or t == 8:
                x += [f"s_cmp_gt_u32 s{S_T0}, {lo + (32 if t & 1 else 4*o['ng4'])}", f"s_addc_u32 s{S_LINK}, s{S_LINK}, 0"]
            g(*x)
        g(f"s_or_b32 s{S_BAD}, s{S_BAD}, s{S_T2}", f"s_cmp_lg_u64 {sr(S_BAD,2)}, 0", f"s_cselect_b64 {sr(S_BAD,2)}, -1, 0",
          f"v_mov_b32 v{T1}, {L_PL + 256}", f"s_mov_b64 exec, {sr(S_BAD,2)}", f"ds_write_b32 v{T1}, v{ONE}", "s_mov_b64 exec, -1")
        g(*[f"ds_bpermute_b32 v{ST+r}, v{TT+r}, v{VST}" for r in range(8)])
        g("s_waitcnt lgkmcnt(0)")
        for r in range(8):
            for x in place(r):
                g(*x)
        g(f"s_cmp_lg_u64 {sr(S_MORE,2)}, 0", "s_cbranch_scc1 L_more2", "L_more2b:")
        self.tailblocks.append("\n".join(["L_more2:"] + [f"ds_bpermute_b32 v{ST+r}, v{TT+r}, v{VST}" for r in range(8, 15)] + ["s_waitcnt lgkmcnt(0)"]
                                         + [y for r in range(8, 15) for x in place(r) for y in x] + ["s_branch L_more2b"]))
        g(f"v_lshrrev_b32 v{T0}, 4, {ln}", f"v_lshl_add_u32 v{T1}, v{T0}, 5, s{S_C0+3}", f"v_lshl_add_u32 v{T2}, v{T0}, 4, s{S_C0+3}",
          f"s_mov_b32 s{S_C0+2}, 0x07060302", f"s_mov_b32 s{S_C0+4}, 0x05040100", f"s_mov_b32 s{S_C0}, 0x00010001")
        g(*[f"ds_read_b32 v{V_IR+r}, v{VW} offset:{1024+256*r}" for r in range(7)])
        for j in range(5):
            g(f"ds_read_b128 {vr(RB,4)}, v{T1} offset:{128*j}", f"ds_read_b128 {vr(RB+4,4)}, v{T1} offset:{128*j+16}",
              f"ds_read_b128 {vr(RB+8,4)}, v{T2} offset:{128*j}", f"ds_read_b128 {vr(RB+12,4)}, v{T2} offset:{128*j+64}")
            g("s_waitcnt lgkmcnt(2)", *[f"v_perm_b32 v{V_X+q}, v{RB+2*q+1}, v{RB+2*q}, s{S_C0+2}" for q in range(4)],
              f"ds_write_b128 v{V_TAB}, {vr(V_X,4)} offset:{576+64*j}")
            g("s_waitcnt lgkmcnt(1)", *[f"v_perm_b32 v{V_AD+4*j+q}, v{RB+8+2*q+1}, v{RB+8+2*q}, s{S_C0+4}" for q in range(4)])
            if o["bcast"]:
                g(*[f"v_perm_b32 v{RB+q}, v{RB+8+2*q+1}, v{RB+8+2*q}, s{S_C0+2}" for q in range(4)],
                  *[f"v_pk_min_u16 v{RB+q}, v{RB+q}, s{S_C0}" for q in range(4)])
                g(*[f"v_pk_mul_lo_u16 v{RB+q}, v{RB+q}, v{RX}" for q in range(4)],
                  *[f"v_xor_b32 v{V_AD+4*j+q}, v{RB+q}, v{V_AD+4*j+q}" for q in range(4)])
            else:
                g(*[f"v_xor_b32 v{V_AD+4*j+q}, v{RX}, v{V_AD+4*j+q}" for q in range(4)])
        return pre, C, warm + self.wload_list(VA, VI8)

    def emit_build(self, pre, C, G):
        a = self.a
        for x in pre:
            a(x)
        nl = 0
        G = list(G)

        def load(n=1):
            nonlocal nl
            for _ in range(n):
                if G:
                    for x in G.pop(0):
                        a(x)
                    nl += 1
        acc = 0
        for grp in C:
            if grp[0] == "@WAIT_E":
                load(self.o["l0"])
                a(f"s_waitcnt vmcnt({nl})")
                continue
            if grp[0].startswith("s_waitcnt lgkmcnt"):
                load(2)
            for x in grp:
                a(x)
            acc += len(grp)
            while acc >= self.o["lper"]:
                acc -= self.o["lper"]
                load()
        load(len(G))

    def slow_path(self, K):
        a = self.a
        o = self.o
        VA, VI8 = 104, 106
        a("L_slow:")
        a("s_waitcnt vmcnt(0) lgkmcnt(0)")
        a(f"s_mov_b32 s{S_MODE}, 0")
        a("L_sm:")
        a(f"s_lshl_b32 s{S_BASE}, s2, 1")
        a(f"s_add_u32 s{S_BASE}, s{S_BASE}, s{S_MODE}")
        a(f"s_add_u32 s{S_BASE}, s{S_BASE}, 1")
        a(f"s_mul_i32 s{S_BASE}, s{S_BASE}, {COPY}")
        a(f"s_mov_b32 s{S_TASK}, 0")
        a("L_st:")
        self.producer("g", True)
        a(f"s_add_u32 s{S_TASK}, s{S_TASK}, 1")
        a(f"s_cmp_lt_u32 s{S_TASK}, {NTASK}")
        a("s_cbranch_scc1 L_st")
        a(f"s_add_u32 s{S_MODE}, s{S_MODE}, 1")
        a(f"s_cmp_lt_u32 s{S_MODE}, 2")
        a("s_cbranch_scc1 L_sm")
        self.lane_setup()
        self.dma_setup()
        a(f"s_mov_b32 s{S_OUT+2}, {XBYTES}")
        a(f"s_mov_b32 s{S_IT}, 0")
        a("L_stile:")
        a("s_barrier")
        self.dma_tile()
        for t in range(9):
            a(f"ds_read_b128 {vr(V_ACC+4*t,4)}, v{V_TAB} offset:{64*t}")
        a(f"s_mov_b32 s{S_MODE}, 0")
        a("L_spass:")
        a(f"s_lshl_b32 s{S_BASE}, s2, 1")
        a(f"s_add_u32 s{S_BASE}, s{S_BASE}, s{S_MODE}")
        a(f"s_add_u32 s{S_BASE}, s{S_BASE}, 1")
        a(f"s_mul_i32 s{S_BASE}, s{S_BASE}, {COPY}")
        self.waddr(VA, VI8)
        for grp in self.wload_list(VA, VI8):
            for x in grp:
                a(x)
        a("s_waitcnt vmcnt(0)")
        a("s_barrier")
        for s in range(9):
            a(f"ds_read_b128 {vr(V_B,4)}, v{V_RD0} offset:{2048*s}")
            a(f"ds_read_b128 {vr(V_B+4,4)}, v{V_RD1} offset:{2048*s}")
            a("s_waitcnt lgkmcnt(0)")
            for t in range(9):
                ir, h = aidx(s, t)
                a(f"v_smfmac_f32_16x16x64_bf16 {vr(V_ACC+4*t,4)}, {afrag(s,t)}, {vr(V_B,8)}, v{ir}" + (" abid:1" if h else ""))
            a("s_nop 7")
        a(f"s_add_u32 s{S_MODE}, s{S_MODE}, 1")
        a(f"s_cmp_lt_u32 s{S_MODE}, 2")
        a("s_cbranch_scc1 L_spass")
        for t in range(7):
            for h in range(2):
                a(f"v_cvt_pk_bf16_f32 v{V_P+2*t+h}, v{V_ACC+4*t+2*h}, v{V_ACC+4*t+2*h+1}")
        a(f"s_mov_b64 vcc, {sr(S_EVEN,2)}")
        self.emit_epi(self.assemble_loop(False, "")[2])
        for r in (S_XOFF, S_XOFF5, S_OOFF):
            a(f"s_add_u32 s{r}, s{r}, {256*TB}")
        a(f"s_add_u32 s{S_IT}, s{S_IT}, 1")
        a(f"s_cmp_lt_u32 s{S_IT}, 16")
        a("s_cbranch_scc1 L_stile")
        a("s_branch L_fin")

    def loop_ops(self, links):
        o = self.o
        acc = lambda t: rng(V_ACC + 4 * t, 4)
        bb = lambda s: V_B + 8 * BBUF[s]
        rt = RT if links else [[0, 1], [2, 3], [4, 5], [6, 7], [8]]
        ng = [8, 8, 8, 8, 8 if links else o["ng4"]]

        def M(s, t):
            ir, h = aidx(s, t)
            return Op(f"v_smfmac_f32_16x16x64_bf16 {vr(V_ACC+4*t,4)}, {afrag(s,t)}, {vr(bb(s),8)}, v{ir}" + (" abid:1" if h else ""),
                      "mx", rd=list(acc(t)) + list(rng(bb(s), 8)), wr=acc(t), tag=("M", s, t))

        def R(j, t):
            c = j + t
            return Op(f"v_smfmac_f32_16x16x64_bf16 {vr(V_ACC+4*t,4)}, {vr(V_X,4)}, {vr(RBUF[j],8)}, v{V_IR+(c>>1)}" + (" abid:1" if c & 1 else ""),
                      "mx", rd=list(acc(t)) + list(rng(RBUF[j], 8)) + list(rng(V_X, 4)), wr=acc(t), tag=("R", j, t))
        seq = []
        for t in range(9):
            seq += [M(0, t), M(1, t)]
        for s in range(2, 7):
            seq += [M(s, t) for t in range(9)]
        for t in range(9):
            seq += [M(7, t), M(8, t)]
        rpos = list(o["rposl"] if links else o["rpos"])
        for j in range(5):
            for n, t in enumerate(rt[j]):
                seq.insert(rpos[j] + n, R(j, t))
        N = len(seq)
        pos = {x.tag: i for i, x in enumerate(seq)}
        BAR = rpos[4] + len(rt[4]) - 1
        assert BAR == N - 15
        T = lambda g: (g - BAR - 1) % N
        first = lambda s: T(min(pos[("M", s, t)] for t in range(9)))
        lastu = lambda s: max(pos[("M", s, t)] for t in range(9))
        LEAD = o["lead"]
        ST = [[] for _ in range(N)]
        S = [[] for _ in range(N)]
        D = [[] for _ in range(N)]
        V = [[] for _ in range(N)]
        keep = lambda op: not any(d in op.text for d in o["drop"])

        def pdst(t, h):
            return V_P8 + h if t == 8 else V_P + 2 * t + h
        dq, vq = [], []
        for t in range(9):
            for h in range(2):
                V[2 * t + h].append(Op(f"v_cvt_pk_bf16_f32 v{pdst(t,h)}, v{V_ACC+4*t+2*h}, v{V_ACC+4*t+2*h+1}", "valu",
                                       rd=[V_ACC + 4 * t + 2 * h, V_ACC + 4 * t + 2 * h + 1], wr=[pdst(t, h)], tag="epi"))
            dq.append([Op(f"ds_read_b128 {vr(V_ACC+4*t,4)}, v{V_TAB} offset:{64*t}", "lds", rd=[V_TAB], wr=acc(t), tag="pre"),
                       2 * t + 2, 2 * t + 2, None])
        dpp = "quad_perm:[1,0,3,2] row_mask:0xf bank_mask:0xf"
        stg = [T(g) for g in o["stg"]]
        for v in range(2):
            p0, p1 = V_P + 8 * v, V_P + 8 * v + 4
            d0 = V_T if v == 0 else V_P
            for half in range(2):
                e = 2 * v + half
                for d in range(4):
                    if half == 0:
                        op = Op(f"v_cndmask_b32_dpp v{d0+d}, v{p1+d}, v{p0+d}, vcc {dpp}", "dpp", rd=[p0 + d, p1 + d], wr=[d0 + d], tag="epi")
                    else:
                        op = Op(f"v_cndmask_b32_dpp v{p1+d}, v{p0+d}, v{p1+d}, vcc {dpp}", "dpp", rd=[p0 + d, p1 + d], wr=[p1 + d], tag="epi")
                    vq.append([op, stg[e - 1] if e else 18, stg[e] - 4 + d, None])
                src = d0 if half == 0 else p1
                ST[stg[e]].append(Op(f"buffer_store_dwordx4 {vr(src,4)}, v{V_ST}, {sr(S_OUT,4)}, s{S_OOFF} offen offset:{1152*half+128*v} {o['st']}",
                                     "st", rd=list(rng(src, 4)) + [V_ST], tag="epi"))
                ST[stg[e]].append(Op(f"s_mov_b64 vcc, {sr((S_ODD, S_EVEN)[half],2)}", "salu", tag="epi"))
        if o["bperm"]:
            for h in range(2):
                dq.append([Op(f"ds_bpermute_b32 v{V_P8+h}, v{V_BP}, v{V_P8+h}", "lds", rd=[V_BP, V_P8 + h], wr=[V_P8 + h], tag="epi"),
                           18, stg[4] - LEAD - 2 + h, None])
        ST[stg[4]].append(Op(f"buffer_store_dwordx2 {vr(V_P8,2)}, v{V_ST8}, {sr(S_OUT,4)}, s{S_OOFF} offen {o['st']}", "st",
                             rd=[V_P8, V_P8 + 1, V_ST8], tag="epi"))
        rl = lambda j: T(rpos[j] + len(rt[j]) - 1)
        free = [rl(2), 0, rl(0), stg[2] + 1, rl(1)]
        for j in range(5):
            dl = T(rpos[j]) - LEAD - 1
            for b in range(ng[j]):
                r = RBUF[j] + b
                ad = V_AD + 4 * j + (b >> 1)
                av = Op(f"v_add_u32_sdwa v{r}, s{S_BUFN if j == 0 else S_BUF}, v{ad} dst_sel:DWORD dst_unused:UNUSED_PAD src0_sel:DWORD src1_sel:WORD_{b&1}",
                        "valu", rd=[ad], wr=[r], tag="pre" if j == 0 else "")
                gd = dl - o["gsp"] * (ng[j] - 1 - b)
                vq.append([av, free[j], (N - 2 - (7 - b)) if j == 0 else gd - 1, None])
                dq.append([Op(f"ds_read_u16 v{r}, v{r}", "lds", rd=[r], wr=[r], tag="pre"), 0, gd, None if j == 0 else av])
            dq.append([Op(f"ds_read_b128 {vr(V_X,4)}, v{V_TAB} offset:{576+64*j}", "lds", rd=[V_TAB], wr=rng(V_X, 4), tag="pre"),
                       0 if j == 0 else rl(j - 1), dl, None])
        prev = {0: None, 1: None, 2: 7, 3: 8, 4: 0, 5: 1, 6: 4, 7: 2, 8: 3}
        lastb = []
        for s in range(9):
            for h in range(2):
                op = Op(f"ds_read_b128 {vr(bb(s)+4*h,4)}, v{(V_RD0, V_RD1)[h]} offset:{2048*s}", "lds",
                        rd=[(V_RD0, V_RD1)[h]], wr=rng(bb(s) + 4 * h, 4), tag="pre")
                fs = first(s) if s < 7 else T(pos[("M", s, 0)])
                dq.append([op, 0 if prev[s] is None else T(lastu(prev[s])), fs - LEAD - 2 + h, None])
                lastb.append(op)
        for h in range(2):
            vq.append([Op(f"v_add_u32 v{V_RD0+h}, s{S_DELTA}, v{V_RD0+h}", "valu", rd=[V_RD0 + h], wr=[V_RD0 + h]), 0, N - 2, lastb])
        sq = []
        if not o["nodma"]:
            for j, g in enumerate(o["dmag"]):
                g = T(g)
                ld = f"buffer_load_dwordx4 v{V_DMA}, {sr(S_X,4)}, s{S_XOFF if j < 4 else S_XOFF5} offen offset:{256*j if j < 4 else 896} {o['ld']} lds"
                if j < 4:
                    D[g].append(Op(ld, "dma", rd=[V_DMA]))
                    S[g - 1].append(Op(f"s_add_u32 m0, s{S_M0B}, {3840*j}", "salu"))
                else:
                    D[g] += [Op(f"s_mov_b64 exec, {sr(S_HALF,2)}", "salu"), Op(ld, "dma", rd=[V_DMA]), Op("s_mov_b64 exec, -1", "salu")]
                    S[g - 1].append(Op(f"s_add_u32 m0, s{S_M0B}, s{S_M05}", "salu"))
                    V[g] = None
        placed = {}
        for g in range(N - 1):
            if not D[g] and g != T(N - 1):
                c = [x for x in dq if x[1] <= g and (x[3] is None or placed.get(id(x[3]), N) < g) and x[2] - g <= o["eager"]]
                if c:
                    x = min(c, key=lambda x: x[2])
                    dq.remove(x)
                    D[g].append(x[0])
                    placed[id(x[0])] = g
                    if g > x[2] and o["verbose"]:
                        print("; late D", g - x[2], x[0].text, file=sys.stderr)
            if V[g] is None:
                V[g] = []
                continue
            cap = 2 if (ST[g] and "x4" in ST[g][0].text) else 1
            while len(V[g]) < cap:
                c = [x for x in vq if x[1] <= g and (x[3] is None or all(placed.get(id(y), N) <= g for y in x[3]))]
                if not c:
                    break
                x = min(c, key=lambda x: x[2])
                vq.remove(x)
                V[g].append(x[0])
                placed[id(x[0])] = g
                assert g <= x[2] or x[0].kind != "dpp", ("late", x[0].text)
        assert not dq and not vq, ([x[0].text for x in dq], [x[0].text for x in vq])
        S[N - 1] += [Op(f"s_waitcnt vmcnt({min(o['vmw'], 10*(o['nb0']-1))})", "salu"), Op("s_barrier", "bar")]
        lastdma = T(o["dmag"][4])
        la = max(placed[id(x)] for gl in V for x in gl if id(x) in placed and f"s{S_BUF}," in x.text)
        fn = min(placed[id(x)] for gl in V for x in gl if id(x) in placed and (f"s{S_BUFN}," in x.text or f"s{S_DELTA}," in x.text))
        sq = [([f"s_mov_b32 s{S_BUF}, s{S_BUFN}"], 0, 17),
              ([f"s_cmp_eq_u32 s{S_BUFN}, {(NB-1)*TB}", f"s_cselect_b32 s{S_DELTA}, {-(NB-1)*TB}, s{S_CTB}", f"s_add_u32 s{S_BUFN}, s{S_BUFN}, s{S_DELTA}"], 18, fn),
              ([f"s_mov_b32 s{S_OUT+2}, {XBYTES}", f"s_add_u32 s{S_OOFF}, s{S_OOFF}, s{S_OINC}", f"s_mov_b32 s{S_OINC}, {256*TB}"], stg[4] + 1, N - 2),
              ([f"s_add_u32 s{S_IT}, s{S_IT}, 1"], 18, N - 2)]
        if not o["nodma"]:
            sq += [([f"s_add_u32 s{S_XOFF}, s{S_XOFF}, {256*TB}", f"s_add_u32 s{S_XOFF5}, s{S_XOFF5}, {256*TB}",
                     ], lastdma + 1, N - 2),
                   ([f"s_cmp_lt_u32 s{S_IT}, {16-o['nb0']}", f"s_cselect_b32 s{S_X+2}, s{S_OUT+2}, 0"], 0, 12),
                   ([f"s_add_u32 s{S_M0B}, s{S_M0B}, s{S_CTB}", f"s_cmp_ge_u32 s{S_M0B}, {NB*TB}", f"s_cselect_b32 s{S_M0B}, s{S_M0W}, s{S_M0B}"], 0, 12)]
        sq.append(([f"s_cmp_lt_u32 s{S_IT}, 16"], T(N - 1) - 1, T(N - 1) - 1))
        G = lambda A: [[x for x in A[T(g)] if keep(x)] for g in range(N)]
        return seq, G(ST), G(S), G(D), G(V), [(x, (lo + BAR + 1), (hi + BAR + 1)) for x, lo, hi in sq], BAR

    def assemble_loop(self, links, label):
        seq, ST, S, D, V, sq, BAR = self.loop_ops(links)
        N = len(seq)
        flat = []
        for rep in range(2):
            for g in range(N):
                a0 = rep * N + g
                flat.append((seq[g], a0 - 1))
                for x in ST[g]:
                    flat.append((x, a0 - 1))
                for x in D[g] + V[g]:
                    flat.append((x, a0))
        gap_of = {}
        k = 0
        lds = []
        for rep in range(2):
            for g in range(N):
                k += 1 + len(ST[g])
                for x in D[g] + V[g]:
                    if x.kind == "lds":
                        lds.append((k, rep * N + g))
                    k += 1
        done = -1
        W = {}
        minlead = 99
        for i, (op, wg) in enumerate(flat):
            touched = op.rd | op.wr
            need = -1
            for n, (k, g) in enumerate(lds):
                if k < i and n > done and (flat[k][0].wr & touched):
                    need = n
            if need >= 0:
                assert lds[need][1] < wg
                issued = [n for n, (k, g) in enumerate(lds) if g < wg]
                cnt = min(issued[-1] - need, 15)
                done = issued[-1] - cnt
                if wg >= N - 1 and wg < 2 * N - 1:
                    W[wg % N] = min(cnt, W.get(wg % N, 99))
                    if self.o["verbose"]:
                        print(f"; wait gap {wg % N} cnt {cnt} lead {wg - lds[need][1]} for {flat[lds[need][0]][0].text}", file=sys.stderr)
        for g, c in W.items():
            S[g].insert(0, Op(f"s_waitcnt lgkmcnt({c})", "salu"))
        if not self.o["drop"]:
            last = max(g for g in range(BAR + 1) if any(x.kind == "lds" for x in D[g]))
            assert any(W.get(g) == 0 for g in range(last + 1, BAR + 1)), "tile reads not drained at the barrier"

        def room(g):
            g %= N
            if g == BAR or g == N - 1 or any(x.kind == "dma" for x in D[g]):
                return False
            cap = 1 if D[g] else (2 if V[g] else 3)
            return len(S[g]) < cap and not ST[g]
        sccfree = lambda x: x.text.startswith(("s_waitcnt", "s_mov", "s_barrier"))
        locked = set()
        for texts, lo, hi in sq:
            g = lo
            for n, tx in enumerate(texts):
                while True:
                    assert g <= hi, ("no room", tx)
                    ok = room(g) and ((g % N) not in locked or tx.startswith("s_mov"))
                    if ok and tx.startswith("s_cmp") and n + 1 < len(texts):
                        g2 = g + 1
                        while not room(g2) and all(sccfree(x) for x in S[g2 % N]):
                            g2 += 1
                        ok = room(g2) and all(sccfree(x) for x in S[g2 % N])
                        if ok:
                            locked.update(z % N for z in range(g, g2))
                    if ok:
                        break
                    g += 1
                S[g % N].append(Op(tx, "salu"))
                if tx.startswith("s_cselect"):
                    locked.add(g % N)
                g += 1
        assert all(sccfree(x) for x in S[N - 1])
        body = []
        for g in range(N):
            body += [seq[g]] + ST[g] + S[g] + D[g] + V[g]
        body.append(Op(f"s_cbranch_scc1 {label}", "salu"))
        if not self.o["drop"]:
            m = len(body)
            for i, op in enumerate(body):
                for d in range(1, 10):
                    p = body[(i - d) % m]
                    ws = d - 1
                    if p.kind == "mx" and op.kind != "mx" and (p.wr & (op.rd | op.wr)):
                        assert ws >= 8, ("mx->x", p.text, op.text, ws)
                    if p.kind in ("valu", "dpp") and op.kind == "mx" and (p.wr & op.rd):
                        assert ws >= 2, ("valu->mx", p.text, op.text, ws)
                    if p.kind in ("valu", "dpp") and op.kind == "dpp" and (p.wr & op.rd):
                        assert ws >= 2, ("valu->dpp", p.text, op.text, ws)
                    if p.kind == "st" and (p.rd & op.wr):
                        assert ws >= 2, ("st war", p.text, op.text, ws)
        pro = [x for g in range(N) for x in V[g] if x.tag == "pre"] + [x for g in range(BAR + 1, N) for x in D[g] if x.tag == "pre"]
        epi = [x for g in range(BAR) for x in ST[g] + D[g] + V[g] if x.tag == "epi"]
        return pro, body, epi

    def emit_epi(self, epi):
        a = self.a
        a("s_nop 7")
        for op in epi:
            if op.kind in ("dpp", "lds"):
                a("s_nop 1")
            if op.kind == "st":
                a("s_waitcnt lgkmcnt(0)")
            a(op.text)
            if op.kind == "st":
                a("s_nop 1")

    def main_loop(self, links, sfx):
        a = self.a
        pro, body, epi = self.assemble_loop(links, "L_loop" + sfx)
        for op in pro:
            a(op.text)
        a("s_waitcnt lgkmcnt(0)")
        a(f"v_readfirstlane_b32 s{S_T0}, v{V_T}")
        a("s_nop 3")
        a(f"s_cmp_lg_u32 s{S_T0}, 0")
        a("s_cbranch_scc1 L_slow")
        a(".p2align 6")
        a(f"L_loop{sfx}:")
        for op in body:
            a(op.text)
        self.emit_epi(epi)

    def loop_state(self):
        a = self.a
        a(f"s_mov_b32 s{S_IT}, 0")
        a(f"s_mov_b32 s{S_BUF}, 0")
        a(f"s_mov_b32 s{S_BUFN}, 0")
        a(f"s_mov_b32 s{S_CTB}, {TB}")
        a(f"s_mov_b32 s{S_OINC}, 0")
        a(f"s_mov_b64 vcc, {sr(S_EVEN,2)}")

    def stamp(self, n):
        if self.o["stamp"]:
            a = self.a
            a("s_memtime s[98:99]" if self.o["cyc"] and n in (5, 6) else "s_memrealtime s[98:99]")
            a("s_waitcnt lgkmcnt(0)")
            a(f"v_writelane_b32 v255, s98, {n}")

    def descriptor(self, label, vg, ag):
        self.a(f""".amdhsa_kernel {label}
  .amdhsa_next_free_vgpr {vg}
  .amdhsa_next_free_sgpr 102
  .amdhsa_accum_offset {ag}
  .amdhsa_group_segment_fixed_size 0
  .amdhsa_float_denorm_mode_32 3
  .amdhsa_kernarg_size 48
  .amdhsa_user_sgpr_count 2
  .amdhsa_user_sgpr_kernarg_segment_ptr 1
  .amdhsa_system_sgpr_workgroup_id_x 1
.end_amdhsa_kernel""")

    def flush_tail(self):
        for b in self.tailblocks:
            self.a(b)
        self.tailblocks = []

    def gen(self):
        a = self.a
        o = self.o
        K = NAME + "_kernel"
        a(open("cdna_kernels/" + NAME + ".s.ref").read().split("; Override")[0].rstrip())
        if o["fused"]:
            a(f"; @launch grid=(256,1,1) block=(256,1,1) lds={LDS_BYTES}")
        else:
            a(f"; @launch kernel=prep_kernel grid=({NTASK},1,1) block=(256,1,1) lds={LDS_BYTES}")
            a(f"; @launch kernel={K} grid=(256,1,1) block=(256,1,1) lds={LDS_BYTES}")
        a('.amdgcn_target "amdgcn-amd-amdhsa--gfx950"\n.text')
        if not o["fused"]:
            self.entry("prep_kernel", NTASK)
            a(f"s_mov_b32 s{S_TASK}, s2\ns_mov_b32 s{S_BASE}, 0")
            self.producer("", False)
            a("L_end_prep_kernel:\ns_endpgm")
            self.flush_tail()
        self.entry(K, 256)
        a(f"s_mov_b32 s{S_BASE}, 0")
        a(f"s_mov_b32 s{S_IT}, {o['nb0']}")
        if o["fused"]:
            px = o["px"]
            a(f"s_lshr_b32 s{S_TASK}, s2, 3")
            a(f"s_mul_i32 s{S_TASK}, s{S_TASK}, {px}")
            a(f"s_and_b32 s{S_T0}, s2, 7")
            a(f"s_add_u32 s{S_TASK}, s{S_TASK}, s{S_T0}")
            a(f"s_cmp_lt_u32 s{S_T0}, {px}")
            a(f"s_cselect_b32 s{S_TASK}, s{S_TASK}, 63")
            a(f"s_cmp_ge_u32 s{S_TASK}, {NTASK}")
            a("s_cbranch_scc1 L_cons")
            self.producer("", False)
            a("s_barrier")
            a(f"s_cmp_lg_u32 s{S_WAVE}, 0")
            a("s_cbranch_scc1 L_cons2")
            a("v_mov_b32 v8, 1")
            a("s_mov_b64 exec, 1")
            a(f"buffer_atomic_add v8, off, {sr(S_DBG,4)}, 0 offset:128 sc0 sc1")
            a("v_mov_b32 v9, 1")
            a("s_waitcnt vmcnt(0)")
            a(f"v_readfirstlane_b32 s{S_T0}, v8")
            a("s_nop 3")
            a(f"s_cmp_lg_u32 s{S_T0}, {NTASK-1}")
            a("s_cbranch_scc1 L_notlast")
            a(f"buffer_store_dword v9, off, {sr(S_DBG,4)}, 0 {o['fs']}")
            a("L_notlast:")
            a("s_mov_b64 exec, -1")
            a("L_cons2:")
            self.lane_setup()
            a("s_branch L_cons3")
            self.flush_tail()
            a("L_cons:")
        self.lane_setup()
        self.entry_wait()
        a("L_cons3:")
        self.stamp(1)
        self.dma_setup()
        self.bias_load()
        self.prefetch(o["nb0"])
        self.stamp(2)
        self.lane_setup2()
        self.tables_init()
        a(f"s_waitcnt vmcnt({5*o['nb0']})")
        self.bias_store()
        pre, C, G = self.build()
        if o["fused"]:
            a(f"s_cmp_lg_u32 s{S_WAVE}, 0")
            a("s_cbranch_scc1 L_ready")
            a("s_mov_b64 exec, 1")
            a(f"s_mov_b32 s{S_T1}, {o['maxpoll']}")
            a("L_poll:")
            if o["psleep"]:
                a(f"s_sleep {o['psleep']}")
            a(f"buffer_load_dword v8, off, {sr(S_DBG,4)}, 0 {o['pl']}")
            a(f"s_sub_u32 s{S_T1}, s{S_T1}, 1")
            a("s_cbranch_scc1 L_giveup")
            a("s_waitcnt vmcnt(0)")
            a(f"v_readfirstlane_b32 s{S_T0}, v8")
            a("s_nop 3")
            a(f"s_cmp_eq_u32 s{S_T0}, 0")
            a("s_cbranch_scc1 L_poll")
            a("L_polled:")
            a("s_mov_b64 exec, -1")
            a("L_ready:")
            self.tailblocks.append(f"L_giveup:\ns_waitcnt vmcnt(0)\nv_mov_b32 v8, {L_PL + 256}\nv_mov_b32 v9, 1\nds_write_b32 v8, v9\ns_branch L_polled")
        a("s_waitcnt lgkmcnt(0)")
        a("s_barrier")
        self.stamp(3)
        self.emit_build(pre, C, G)
        self.stamp(4)
        self.loop_state()
        a(f"v_mov_b32 v{V_T}, {L_PL + 256}")
        a("s_waitcnt vmcnt(0) lgkmcnt(0)")
        a("s_barrier")
        self.stamp(5)
        a(f"ds_read_b32 v{V_T}, v{V_T}")
        if o["links"] is None:
            a(f"s_cmp_lg_u32 s{S_LINK}, 0")
            a("s_cbranch_scc1 L_linked")
        self.main_loop(bool(o["links"]), "")
        a("L_fin:")
        self.stamp(6)
        if o["stamp"]:
            a("s_waitcnt vmcnt(0)")
            self.stamp(7)
            a("v_writelane_b32 v255, s100, 0")
            a(f"s_lshl_b32 s{S_T0}, s2, 2\ns_add_u32 s{S_T0}, s{S_T0}, s{S_WAVE}\ns_lshl_b32 s{S_T0}, s{S_T0}, 6")
            a(f"s_add_u32 s{S_T0}, s{S_T0}, {WSBYTES - 65536}")
            a(f"v_lshl_add_u32 v254, v{V_LANE}, 2, s{S_T0}")
            a("s_mov_b32 exec_lo, 0xffff\ns_mov_b32 exec_hi, 0")
            a(f"buffer_store_dword v255, v254, {sr(S_WS,4)}, 0 offen")
            if o["diag"]:
                n1, n0, wg, mul = o["diag"]
                a(f"s_cmp_lg_u32 s2, {wg}\ns_cbranch_scc1 L_end_{K}\ns_cmp_lg_u32 s{S_WAVE}, 0\ns_cbranch_scc1 L_end_{K}")
                a(f"v_readlane_b32 s60, v255, {n1}\nv_readlane_b32 s61, v255, {n0}\ns_nop 3\ns_sub_u32 s60, s60, s61\ns_mul_i32 s60, s60, {mul}")
                a("s_min_u32 s60, s60, 100000\ns_add_u32 s60, s60, 10000")
                a("L_diag:\ns_sleep 1\ns_memrealtime s[62:63]\ns_waitcnt lgkmcnt(0)\ns_sub_u32 s62, s62, s100\ns_cmp_lt_u32 s62, s60\ns_cbranch_scc1 L_diag")
        a(f"L_end_{K}:\ns_endpgm")
        self.flush_tail()
        if o["links"] is None:
            a("L_linked:")
            self.main_loop(True, "k")
            a("s_branch L_fin")
        self.slow_path(K)
        a('.section .rodata,"a"\n.p2align 6')
        if not o["fused"]:
            self.descriptor("prep_kernel", 128, 128)
            a(".p2align 6")
        self.descriptor(K, 512, 256)
        return "\n".join(self.L) + "\n"


if __name__ == "__main__":
    opts = eval("dict(" + (sys.argv[2] if len(sys.argv) > 2 else "") + ")")
    out = sys.argv[1] if len(sys.argv) > 1 else "cdna_kernels/" + NAME + ".s"
    open(out, "w").write(Gen(**opts).gen())
```

```python
import sys

NAME = "standalone__structured_sparse_n_m__ragged"
TB = 18432
NB = 8
XBYTES = 75497472
WBYTES = 663552
WSBYTES = 301989888
A_OFF = 0
I_OFF = 331776
I8_OFF = I_OFF + 36864
R1_OFF = I8_OFF + 5120
R8_OFF = R1_OFF + 9216
COPY = 393216
NTASK = 41
L_WV = NB * TB
WV_SZ = 3584
O_X, O_K, O_M, O_BIAS, O_IDX = 64, 384, 704, 1024, 1792
L_PL = L_WV + 4 * WV_SZ
LDS_BYTES = 163840
assert L_PL + 512 <= LDS_BYTES and L_WV % 256 == 0 and WV_SZ % 256 == 0

V_RD0, V_RD1, V_TAB, V_DMA, V_ST, V_ST8, V_BP, V_LANE = 0, 1, 2, 3, 4, 5, 6, 7
V_ACC = 8
V_B = 44
V_BR = 76
V_P = 92
V_T = 108
V_P8 = 112
V_X = 114
V_AD = 118
V_I = 138
V_I8 = 174
V_IR = 179
V_A = 186
S_X, S_OUT, S_WS, S_W, S_B, S_DBG = 16, 20, 24, 28, 32, 36
S_WAVE = 40
S_IT, S_BUF, S_DELTA, S_M0B, S_XOFF, S_OOFF = 41, 42, 43, 44, 45, 46
S_T0, S_T1 = 47, 3
S_MASK = 48
S_EVEN, S_ODD = 80, 82
S_TASK, S_TEND, S_BASE, S_MODE, S_CONT = 84, 85, 86, 87, 88
S_BAD = 90
S_MORE, S_LINK = 78, 89
S_C0 = 93
S_BUFN, S_CTB, S_OINC, S_XOFF5, S_M05, S_M0W, S_HALF = 4, 5, 6, 7, 8, 9, 10
S_NMASK = 12
S_WMASK, S_WMASK2 = 92, 87
S_XINC, S_OINC2, S_NT = 13, 14, 15
S_DMASK, S_NB0 = 85, 88


def vr(b, n=1):
    return f"v{b}" if n == 1 else f"v[{b}:{b+n-1}]"


def sr(b, n=1):
    return f"s{b}" if n == 1 else f"s[{b}:{b+n-1}]"


def afrag(s, t):
    f = 9 * s + t
    return f"a[{4*f}:{4*f+3}]" if f < 64 else vr(V_A + 4 * (f - 64), 4)


def aidx(s, t):
    if t < 8:
        return V_I + 4 * s + (t >> 1), t & 1
    return V_I8 + (s >> 1), s & 1


BBUF = [0, 1, 2, 3, 0, 1, 0, 2, 3]
RT = [[0, 1], [1, 2, 3], [3, 4, 5], [5, 6, 7], [7, 8]]


class Op:
    def __init__(self, text, kind, rd=(), wr=(), tag=""):
        self.text, self.kind, self.rd, self.wr, self.tag = text, kind, set(rd), set(wr), tag


def rng(b, n):
    return range(b, b + n)


class Gen:
    def __init__(self, **o):
        self.o = dict(fused=True, ld="nt", st="", bperm=True, grp=None, nb0=3, gsh=3, gsh2=4, split=0, pad=0, st8=None, stamp=False, nodma=False, wl="sc1", ws="sc1",
                      vmw=20, lper=9, drop=(), cyc=False, links=None, ng4=8, px=2, maxpoll=20000, warm=True, bcast=True, l0=12, lw=2, cwarm=True, bar2=True, early=True, ltail=24, coal=True, rpos=(18, 35, 50, 63, 75), rposl=(18, 36, 52, 66, 78),
                      lead=8, stg=(9, 16, 23, 30, 37), dmag=(44, 52, 60, 63, 66), gsp=2, eager=99, verbose=False, hack=None, diag=None, sig=1, psleep=0, pl='sc1', fs='sc1', isort=False, trace=False, chain=True, ord1=(0,1,4,5,6,2,3,7,8), ord2=(0,4,5,1,6,7,2,3,8), align2=True, order='hp')
        self.o.update(o)
        grp = self.o["grp"] or [(self.o["nb0"], 0, 0)] * 2
        if len(grp) != 6:
            grp = list(grp[:-1]) * (4 // (len(grp) - 1)) + [grp[-1]] * 2
        sp = self.o["split"]
        if sp:
            self.o["gsh"], self.o["gsh2"] = 0, 3
        self.pol, self.nt = [], []
        for c, (n1, n2, its) in enumerate(grp):
            nt = 16 + (sp if c % 2 == 0 else -sp)
            nb = n1 + n2
            its = list(its) if isinstance(its, (list, tuple)) else [its]
            while len(its) < nt - nb:
                its.append(its[-1] + 1)
            assert len(its) == nt - nb and all(nb + n - 7 <= i <= nb + n - 2 for n, i in enumerate(its)) and n1 >= 1, (n1, n2, its)
            self.pol.append((n1, n2, its))
            self.nt.append(nt)
        self.n2min = min(p[1] for p in self.pol)
        req = []
        for (n1, n2, its), nt in zip(self.pol, self.nt):
            r = [63] * nt
            for tile in range(n1, nt):
                i = tile - 1
                a0 = -1 if tile < n1 + n2 else its[tile - n1 - n2]
                r[i] = sum(10 if j in its else 5 for j in range(a0 + 1, i + 1)) + 5 * max(0, n1 + n2 - 1 - tile)
                if a0 < 0:
                    r[i] -= 5
            if self.o["early"]:
                r[0] = min(r[0], 5 * n2 + (5 if 0 in its else 0))
            req.append(r)
        low = sorted({x for r in req for x in r if x < self.o["vmw"]})
        self.wlo = low[0] if low else 0
        best = None
        for hi in low or [0]:
            cost = sum(x - (hi if x >= hi else self.wlo) for r in req[:4] for x in r[1:] if x < self.o["vmw"])
            if best is None or cost < best[0]:
                best = (cost, hi)
        self.whi = best[1]
        self.wmask = [sum(1 << (i + 1) for i, x in enumerate(r) if x < self.o["vmw"]) for r in req]
        self.wmask2 = [sum(1 << (i + 1) for i, x in enumerate(r) if x < self.whi) for r in req]
        self.req = req
        self.L = []
        self.tailblocks = []

    def a(self, s):
        self.L.extend(s.split("\n"))

    def entry(self, label, nwg):
        a = self.a
        a(f".globl {label}\n.p2align 8\n.type {label},@function\n{label}:")
        a(f"s_cmp_ge_u32 s2, {nwg}")
        a(f"s_cbranch_scc1 L_end_{label}")
        if self.o["stamp"]:
            a("s_memrealtime s[100:101]")
        a("s_load_dwordx8 s[4:11], s[0:1], 0")
        a("s_load_dwordx4 s[12:15], s[0:1], 32")
        if self.o["cwarm"]:
            a("s_getpc_b64 s[96:97]")
            a("v_lshrrev_b32 v2, 1, v0")
            a("v_lshlrev_b32 v2, 7, v2")
            a("global_load_dword v120, v2, s[96:97]")
        a("v_lshrrev_b32 v1, 6, v0")
        a(f"v_and_b32 v{V_LANE}, 63, v0")
        a(f"v_readfirstlane_b32 s{S_WAVE}, v1")
        for srd, size in ((S_X, XBYTES), (S_OUT, 0), (S_WS, WSBYTES), (S_W, WBYTES), (S_B, 1152), (S_DBG, 256)):
            a(f"s_mov_b32 s{srd+2}, {size}")
            a(f"s_mov_b32 s{srd+3}, 0x20000")

    def entry_wait(self, first=None):
        a = self.a
        lst = ((S_W, 6), (S_X, 4), (S_WS, 14), (S_B, 8), (S_OUT, 10), (S_DBG, 12))
        if first is not False:
            a("s_waitcnt lgkmcnt(0)")
        for srd, p in (lst if first is None else (lst[:1] if first else lst[1:])):
            a(f"s_mov_b32 s{srd}, s{p}")
            a(f"s_and_b32 s{srd+1}, s{p+1}, 0xffff")

    def producer(self, sfx, generic):
        a = self.a
        ws = self.o["ws"]
        W, Z, K = 8, 24, 28
        OA, NB_, IX = 36, 44, 48
        VL, VA, VI, VM0, VM1, VSEL, CJ = 50, 51, 52, 53, 54, 55, 56
        F0, F1, H, U, T0, T1, T2, VLI, VA2 = 58, 59, 60, 61, 62, 63, 64, 65, 66
        C = S_MASK
        SEL = S_MASK + 16
        CNT = S_MASK + 27
        ln = f"v{V_LANE}"
        a(f"s_and_b32 s{C}, s{S_TASK}, 3")
        a(f"s_lshr_b32 s{C+1}, s{S_TASK}, 2")
        a(f"s_sub_u32 s{C+2}, s{S_TASK}, 36")
        a(f"s_lshl_b32 s{C+3}, s{S_WAVE}, 4")
        a(f"s_lshl_b32 s{C+4}, s{C+2}, 1")
        a(f"s_lshl_b32 s{C+5}, s{C}, 8")
        a(f"s_cmp_lt_u32 s{S_TASK}, 36")
        a(f"s_cselect_b32 s{C+4}, s{C+1}, s{C+4}")
        a(f"s_cselect_b32 s{C+5}, s{C+5}, 1024")
        a(f"s_cselect_b32 s{C+6}, 8, 73728")
        a(f"s_cselect_b32 s{C+7}, 32, 8")
        a(f"s_cselect_b32 s{C+8}, 16, 32")
        a(f"s_cselect_b32 s{C+9}, 128, 64")
        a(f"s_mul_i32 s{C+4}, s{C+4}, 73728")
        a(f"s_mul_i32 s{C+10}, s{S_WAVE}, 18432")
        a(f"v_and_b32 v{F0}, 1, {ln}")
        a(f"v_bfe_u32 v{F1}, {ln}, 1, 1")
        a(f"v_bfe_u32 v{H}, {ln}, 2, 2")
        a(f"v_bfe_u32 v{T0}, {ln}, 4, 1")
        a(f"v_lshrrev_b32 v{T1}, 5, {ln}")
        a(f"v_lshl_add_u32 v{VL}, v{F0}, 2, s{C+4}")
        a(f"v_mad_u32_u24 v{VL}, v{F1}, s{C+6}, v{VL}")
        a(f"v_mad_u32_u24 v{VL}, v{H}, s{C+7}, v{VL}")
        a(f"v_mad_u32_u24 v{VL}, v{T0}, s{C+8}, v{VL}")
        a(f"v_mad_u32_u24 v{VL}, v{T1}, s{C+9}, v{VL}")
        a(f"v_add_u32 v{VL}, s{C+5}, v{VL}")
        a(f"v_add_u32 v{VL}, s{C+10}, v{VL}")
        a(f"v_add_u32 v{T0}, 4608, v{VL}")
        a(f"v_add_u32 v{T1}, 9216, v{VL}")
        a(f"v_add_u32 v{T2}, 13824, v{VL}")
        if not generic:
            self.entry_wait(first=True)
        for q in range(4):
            for j in range(4):
                a(f"buffer_load_dword v{W+4*q+j}, v{(VL, T0, T1, T2)[q]}, {sr(S_W,4)}, 0 offen offset:{1152*j}")
        if not generic:
            self.stamp(8)
            self.entry_wait(first=False)
        a(f"s_mul_i32 s{C+4}, s{C}, 9")
        a(f"s_add_u32 s{C+4}, s{C+4}, s{C+1}")
        a(f"s_mul_i32 s{C+5}, s{C+4}, 9")
        a(f"s_mul_i32 s{C+6}, s{C+2}, 18")
        a(f"s_add_u32 s{C+6}, s{C+6}, 8")
        a(f"s_lshl_b32 s{C+7}, s{C+4}, 2")
        a(f"s_add_u32 s{C+7}, s{C+7}, s{S_WAVE}")
        a(f"s_lshl_b32 s{C+8}, s{C+2}, 2")
        a(f"s_add_u32 s{C+8}, s{C+8}, s{S_WAVE}")
        a(f"s_cmp_eq_u32 s{S_TASK}, 40")
        a(f"s_cselect_b32 s{C+9}, 0x100000, 9")
        a(f"s_cmp_lt_u32 s{S_TASK}, 36")
        a(f"s_cselect_b32 s{C+5}, s{C+5}, s{C+6}")
        a(f"s_cselect_b32 s{C+6}, 2, 81")
        a(f"s_cselect_b32 s{C+9}, 1, s{C+9}")
        a(f"s_cselect_b32 s{C+7}, s{C+7}, s{C+8}")
        a(f"s_mov_b32 s{C+8}, {I_OFF}")
        a(f"s_cselect_b32 s{C+8}, s{C+8}, {I8_OFF}")
        a(f"s_mov_b32 s{C+10}, {R1_OFF}")
        a(f"s_cselect_b32 s{C+10}, s{C+10}, {R8_OFF}")
        a(f"s_cselect_b32 s{C+11}, 16, 4")
        a(f"s_cselect_b32 s{C+12}, 4, 64")
        a(f"s_cselect_b32 s{C+13}, 12, 11")
        a(f"s_cselect_b32 s{C+14}, 1, 0x8001")
        a(f"v_lshrrev_b32 v{U}, 4, {ln}")
        a(f"v_lshlrev_b32 v{T0}, 1, v{F0}")
        a(f"v_lshl_add_u32 v{H}, v{H}, 2, v{T0}")
        a(f"v_add_u32 v{T0}, v{H}, v{F1}")
        a(f"v_mul_u32_u24 v{VA}, s{C+6}, v{U}")
        a(f"v_add_lshl_u32 v{VA}, v{VA}, s{C+5}, 6")
        a(f"v_add3_u32 v{VA}, v{VA}, v{T0}, s{C+3}")
        a(f"v_lshl_add_u32 v{VA}, v{VA}, 4, s{S_BASE}")
        a(f"s_lshl_b32 s{C+9}, s{C+9}, 10")
        a(f"v_add_u32 v{VA2}, s{C+9}, v{VA}")
        a(f"s_lshl_b32 s{C+4}, s{C+7}, 8")
        a(f"s_add_u32 s{C+4}, s{C+4}, s{C+8}")
        a(f"s_add_u32 s{C+4}, s{C+4}, s{S_BASE}")
        a(f"v_mul_u32_u24 v{VI}, s{C+11}, v{T0}")
        a(f"v_mad_u32_u24 v{VI}, v{U}, s{C+12}, v{VI}")
        a(f"v_add_u32 v{VI}, s{C+4}, v{VI}")
        if not generic:
            a(f"s_lshl_b32 s{C+4}, s{C+7}, 6")
            a(f"s_add_u32 s{C+10}, s{C+10}, s{C+4}")
            a(f"s_add_u32 s{C+10}, s{C+10}, s{S_BASE}")
            a(f"s_lshl_b32 s{C+4}, s{C+3}, 1")
            a(f"s_add_u32 s{C+4}, s{C+4}, s{C+14}")
            a(f"v_lshl_add_u32 v{T0}, v{U}, 1, v{F1}")
            a(f"v_lshlrev_b32 v{T0}, s{C+13}, v{T0}")
            a(f"v_lshl_add_u32 v{VM0}, v{H}, 7, v{T0}")
            a(f"v_add_u32 v{VM0}, s{C+4}, v{VM0}")
            a(f"v_lshl_add_u32 v{VLI}, {ln}, 2, s{C+10}")
            a(f"s_mov_b32 s{CNT}, 0")
            a(f"s_mov_b32 s{SEL+9}, 0x05060100")
            a(f"s_mov_b32 s{SEL+10}, 0xffff")
        a(f"v_mov_b32 v{VSEL}, 0x05040100")
        a(f"v_mov_b32 v{T0}, 0x03020706")
        a(f"v_cmp_eq_u32 vcc, 1, v{F1}")
        CJ, EF, EO = 68, 76, 82
        for n in range(8):
            a(f"v_mov_b32 v{CJ+n}, {hex(0x0f0a0500 | 0x01010101 * (((n >> 1) << 4) | ((n & 1) << 7)))}")
        a(f"v_cndmask_b32 v{VSEL}, v{VSEL}, v{T0}, vcc")
        if not generic:
            for r in range(3):
                a(f"v_mov_b64 {vr(EF+2*r,2)}, 0")
            a(f"v_mov_b32 v{EO}, 0")
        for c in range(2):
            for j in range(4):
                a(f"s_mov_b32 s{SEL+4*c+j}, {hex(((5+2*c) << 24) | ((4+2*c) << 16) | ((5+2*c) << 8) | j)}")
        a(f"s_mov_b32 s{SEL+8}, 0x05060102")
        if generic:
            a(f"s_cmp_lg_u32 s{S_MODE}, 0")
        sw = "src0_sel:WORD_1 src1_sel:WORD_1"
        for q in range(4):
            a(f"s_waitcnt vmcnt({12-4*q})")
            if q in (0, 3) and not generic:
                self.stamp(9 + q // 3)
            for c in range(2):
                n = 2 * q + c
                for j in range(4):
                    a(f"v_perm_b32 v{Z+j}, v{W+4*q+j}, v{CJ+n}, s{SEL+4*c+j}")
                a(f"v_max3_f32 v{K}, |v{Z}|, |v{Z+1}|, |v{Z+2}|")
                a(f"v_med3_f32 v{K+1}, |v{Z}|, |v{Z+1}|, |v{Z+2}|")
                a(f"v_min3_f32 v{K+2}, |v{Z}|, |v{Z+1}|, |v{Z+2}|")
                a(f"v_med3_f32 v{K+4}, v{K}, v{K+1}, |v{Z+3}|")
                a(f"v_med3_f32 v{K+5}, v{K+1}, v{K+2}, |v{Z+3}|")
                a(f"v_max_f32 v{K+3}, v{K}, |v{Z+3}|")
                if generic:
                    a(f"v_cmp_eq_u32_sdwa vcc, v{K+5}, v{K+4} {sw}")
                    a(f"s_cbranch_scc0 L_rb{n}{sfx}")
                    a(f"v_min_f32 v{K+2}, v{K+2}, |v{Z+3}|")
                    a(f"v_cndmask_b32 v{K+3}, 0, v{K+5}, vcc")
                    a(f"v_cmp_eq_u32_sdwa vcc, v{K+2}, v{K+4} {sw}")
                    a("s_nop 1")
                    a(f"v_cndmask_b32 v{K+4}, 0, v{K+2}, vcc")
                    a(f"L_rb{n}{sfx}:")
                a(f"v_perm_b32 v{OA+4*c+q}, v{K+3}, v{K+4}, s{SEL+8}")
                nb = NB_ + 2 * c + (q >> 1)
                if q & 1 == 0:
                    a(f"v_bfi_b32 v{nb}, 3, v{K+4}, v{K+3}")
                else:
                    a(f"v_bfi_b32 v{K+3}, 3, v{K+4}, v{K+3}")
                    a(f"v_lshlrev_b32 v{K+3}, 4, v{K+3}")
                    a(f"v_bfi_b32 v{nb}, 15, v{nb}, v{K+3}")
                if not generic:
                    a(f"v_cmpx_eq_u32_sdwa vcc, v{K+5}, v{K+4} {sw}")
                    if n >= 3:
                        a(f"v_or_b32 v{EO}, v{EO}, v{EF+4}")
                    if n >= 2:
                        a(f"v_mov_b64 {vr(EF+4,2)}, {vr(EF+2,2)}")
                    if n >= 1:
                        a(f"v_mov_b64 {vr(EF+2,2)}, {vr(EF,2)}")
                    a(f"v_mov_b32 v{EF}, v{K+5}")
                    a(f"v_min_f32 v{EF+1}, v{K+2}, |v{Z+3}|")
                    a("s_mov_b64 exec, -1")
        x2 = "quad_perm:[2,3,0,1] row_mask:0xf bank_mask:0xf"
        a("s_mov_b32 vcc_lo, 0x33333333")
        a("s_mov_b32 vcc_hi, 0x33333333")
        for d in range(4):
            a(f"v_cndmask_b32_dpp v{Z+d}, v{OA+4+d}, v{OA+d}, vcc {x2}")
        a("s_not_b64 vcc, vcc")
        a(f"buffer_store_dwordx4 {vr(Z,4)}, v{VA}, {sr(S_WS,4)}, 0 offen {ws}")
        for d in range(4):
            a(f"v_cndmask_b32_dpp v{OA+4+d}, v{OA+d}, v{OA+4+d}, vcc {x2}")
        a(f"s_mov_b32 s{C+4}, 0x0c0c0400")
        a(f"s_mov_b32 s{C+5}, 0x04000c0c")
        a(f"buffer_store_dwordx4 {vr(OA+4,4)}, v{VA2}, {sr(S_WS,4)}, 0 offen {ws}")
        a(f"v_perm_b32 v{IX}, v{NB_+1}, v{NB_}, s{C+4}")
        a(f"v_perm_b32 v{IX+1}, v{NB_+3}, v{NB_+2}, s{C+5}")
        a(f"v_or_b32 v{IX}, v{IX}, v{IX+1}")
        a("s_nop 1")
        a(f"v_mov_b32_dpp v{IX+1}, v{IX} quad_perm:[2,3,0,1] row_mask:0xf bank_mask:0xf")
        a(f"v_perm_b32 v{IX}, v{IX+1}, v{IX}, v{VSEL}")
        a(f"buffer_store_dword v{IX}, v{VI}, {sr(S_WS,4)}, 0 offen {ws}")
        if not generic:
            self.stamp(11)
            a(f"v_cmp_lt_u32 {sr(C+2,2)}, s{SEL+10}, v{EO}")
            a(f"L_emit{sfx}:")
            a(f"v_cmp_lt_u32 vcc, s{SEL+10}, v{EF}")
            a(f"v_cmp_eq_u32_sdwa {sr(C,2)}, v{EF+1}, v{EF} {sw}")
            a(f"v_perm_b32 v{T1}, v{EF}, v{VM0}, s{SEL+9}")
            a(f"v_bfe_u32 v{T0}, v{EF}, 2, 4")
            a(f"v_and_b32 v{T2}, 0x80, v{EF}")
            a(f"v_lshl_add_u32 v{T1}, v{T0}, 1, v{T1}")
            a(f"v_mbcnt_lo_u32_b32 v{T0}, vcc_lo, 0")
            a(f"v_mbcnt_hi_u32_b32 v{T0}, vcc_hi, v{T0}")
            a(f"v_add_u32 v{T1}, v{T2}, v{T1}")
            a(f"v_add_u32 v{T0}, s{CNT}, v{T0}")
            a(f"s_bcnt1_i32_b64 s{C+4}, vcc")
            a(f"s_add_u32 s{CNT}, s{CNT}, s{C+4}")
            a(f"v_cmp_gt_u32 {sr(C+4,2)}, 15, v{T0}")
            a(f"v_lshl_add_u32 v{T0}, v{T0}, 2, s{C+10}")
            a(f"s_and_b64 {sr(C,2)}, {sr(C,2)}, vcc")
            a(f"s_and_b64 exec, {sr(C+4,2)}, vcc")
            a(f"s_cbranch_execz L_emit1{sfx}")
            a(f"buffer_store_dword v{T1}, v{T0}, {sr(S_WS,4)}, 0 offen {ws}")
            a(f"L_emit1{sfx}:")
            a(f"s_mov_b64 exec, {sr(C,2)}")
            a(f"v_mov_b32 v{EF}, v{EF+1}")
            a(f"v_mov_b32 v{EF+1}, 0")
            a(f"s_not_b64 exec, exec")
            a(f"v_mov_b64 {vr(EF,2)}, {vr(EF+2,2)}")
            a(f"v_mov_b64 {vr(EF+2,2)}, {vr(EF+4,2)}")
            a(f"v_mov_b64 {vr(EF+4,2)}, 0")
            a("s_mov_b64 exec, -1")
            a(f"v_or3_b32 v{T0}, v{EF}, v{EF+2}, v{EF+4}")
            a(f"v_cmp_lt_u32 vcc, s{SEL+10}, v{T0}")
            a(f"s_cmp_lg_u64 {sr(C+2,2)}, 0")
            a(f"s_cselect_b32 s{C+4}, 99, s{CNT}")
            a(f"s_cmp_gt_u32 s{C+4}, 15")
            a(f"s_cselect_b32 s{C+4}, -1, 0")
            a(f"s_min_u32 s{C+5}, s{CNT}, 15")
            a(f"s_cbranch_vccnz L_emit{sfx}")
            a(f"s_lshl_b32 s{C+5}, -1, s{C+5}")
            a(f"v_mov_b32 v{T0}, s{C+4}")
            a(f"s_and_b32 exec_lo, s{C+5}, 0xffff")
            a("s_mov_b32 exec_hi, 0")
            a(f"buffer_store_dword v{T0}, v{VLI}, {sr(S_WS,4)}, 0 offen {ws}")
            a("s_mov_b64 exec, -1")
            self.stamp(12)
        a("s_waitcnt vmcnt(0)")
        if not generic:
            self.stamp(13)

    def lane_setup(self):
        a = self.a
        ln = f"v{V_LANE}"
        T0, T1, T2 = 72, 73, 74
        a(f"v_lshrrev_b32 v{T0}, 3, {ln}")
        a(f"v_and_b32 v{T1}, 7, {ln}")
        a(f"v_xor_b32 v{T1}, v{T1}, v{T0}")
        a(f"v_mul_u32_u24 v{T0}, 1152, v{T0}")
        a(f"s_and_b32 s{S_T0}, s{S_WAVE}, 1")
        a(f"s_mul_i32 s{S_T0}, s{S_T0}, 9216")
        a(f"s_lshr_b32 s{S_T1}, s{S_WAVE}, 1")
        a(f"s_lshl_b32 s{S_T1}, s{S_T1}, 7")
        a(f"s_add_u32 s{S_T0}, s{S_T0}, s{S_T1}")
        a(f"v_lshl_add_u32 v{T0}, v{T1}, 4, v{T0}")
        a(f"v_add_u32 v{V_DMA}, s{S_T0}, v{T0}")
        a(f"s_lshl_b32 s{S_M0B}, s{S_WAVE}, 10")
        if self.o["split"]:
            a(f"s_bitcmp1_b32 s2, 0")
            a(f"s_cselect_b32 s{S_XOFF}, 256, 1")
            a(f"s_add_u32 s{S_XOFF}, s{S_XOFF}, s2")
            a(f"s_mul_i32 s{S_XOFF}, s{S_XOFF}, {TB}")
        else:
            a(f"s_mul_i32 s{S_XOFF}, s2, {TB}")
        a(f"s_mov_b32 s{S_OOFF}, s{S_XOFF}")

    def lane_setup2(self):
        a = self.a
        ln = f"v{V_LANE}"
        T0, T1, T2 = 72, 73, 74
        a(f"v_and_b32 v{T0}, 15, {ln}")
        a(f"v_lshrrev_b32 v{T1}, 4, {ln}")
        a(f"v_and_b32 v{T2}, 7, {ln}")
        a(f"v_xor_b32 v{T2}, v{T2}, v{T1}")
        a(f"v_lshlrev_b32 v{T2}, 4, v{T2}")
        a(f"v_lshl_add_u32 v{V_RD0}, v{T0}, 7, v{T2}")
        a(f"v_xor_b32 v{V_RD1}, 64, v{V_RD0}")
        a(f"s_mul_i32 s{S_C0}, s{S_WAVE}, {WV_SZ}")
        a(f"s_add_u32 s{S_C0}, s{S_C0}, {L_WV}")
        a(f"v_lshl_add_u32 v{V_TAB}, v{T1}, 4, s{S_C0}")
        a(f"v_and_b32 v{T2}, 14, {ln}")
        a(f"v_mul_u32_u24 v{V_ST}, 1152, v{T2}")
        a(f"v_and_b32 v{T2}, 1, {ln}")
        a(f"v_lshl_add_u32 v{V_ST}, v{T2}, 4, v{V_ST}")
        a(f"v_lshl_add_u32 v{V_ST}, v{T1}, 5, v{V_ST}")
        a(f"s_lshl_b32 s{S_T0}, s{S_WAVE}, 8")
        a(f"v_add_u32 v{V_ST}, s{S_T0}, v{V_ST}")
        if self.o["hack"] == "q4":
            a(f"v_lshrrev_b32 v{T2}, 3, {ln}")
            a(f"v_mul_u32_u24 v{V_ST}, 2304, v{T2}")
            a(f"v_and_b32 v{T2}, 7, {ln}")
            a(f"v_lshl_add_u32 v{V_ST}, v{T2}, 4, v{V_ST}")
            a(f"v_add_u32 v{V_ST}, s{S_T0}, v{V_ST}")
        a(f"s_lshl_b32 s{S_T0}, s{S_WAVE}, 5")
        a(f"s_add_u32 s{S_T0}, s{S_T0}, 1024")
        if self.o["bperm"]:
            a(f"v_lshrrev_b32 v{T0}, 2, {ln}")
            a(f"v_and_b32 v{T1}, 3, {ln}")
            a(f"v_lshl_add_u32 v{V_BP}, v{T1}, 4, v{T0}")
            a(f"v_lshlrev_b32 v{V_BP}, 2, v{V_BP}")
        a(f"v_mul_u32_u24 v{V_ST8}, 1152, v{T0}")
        a(f"v_lshl_add_u32 v{V_ST8}, v{T1}, 3, v{V_ST8}")
        a(f"v_add_u32 v{V_ST8}, s{S_T0}, v{V_ST8}")
        a(f"s_mov_b32 s{S_EVEN}, 0x55555555")
        a(f"s_mov_b32 s{S_EVEN+1}, 0x55555555")
        a(f"s_mov_b32 s{S_ODD}, 0xaaaaaaaa")
        a(f"s_mov_b32 s{S_ODD+1}, 0xaaaaaaaa")

    def dma_setup(self):
        a = self.a
        a(f"s_lshr_b32 s{S_T0}, s{S_WAVE}, 1")
        a(f"s_lshl_b32 s{S_T1}, s{S_T0}, 11")
        a(f"s_sub_u32 s{S_M05}, {16384-896}, s{S_T1}")
        a(f"s_lshl_b32 s{S_T1}, s{S_T0}, 7")
        a(f"s_add_u32 s{S_XOFF5}, s{S_XOFF}, 128")
        a(f"s_sub_u32 s{S_XOFF5}, s{S_XOFF5}, s{S_T1}")
        a(f"s_sub_u32 s{S_HALF}, s{S_T0}, 1")
        a(f"s_sub_u32 s{S_HALF+1}, 0, s{S_T0}")
        a(f"s_mov_b32 s{S_M0W}, s{S_M0B}")
        a(f"s_mov_b32 s{S_XINC}, {256*TB}")
        if self.o["split"]:
            a(f"s_bitcmp1_b32 s2, 0")
            a(f"s_cselect_b32 s{S_XINC}, s{S_XINC}, {-TB}")
            a(f"s_cselect_b32 s{S_NT}, 15, 17")
        else:
            a(f"s_mov_b32 s{S_NT}, 16")
        a(f"s_mov_b32 s{S_OINC2}, s{S_XINC}")

    def dma_advance(self, first=False):
        x = [] if first else [f"s_add_u32 s{S_XOFF}, s{S_XOFF}, {256*TB}", f"s_add_u32 s{S_XOFF5}, s{S_XOFF5}, {256*TB}",
                              f"s_add_u32 s{S_M0B}, s{S_M0B}, s{S_CTB}"]
        return x + [f"s_cmp_ge_u32 s{S_M0B}, {NB*TB}", f"s_cselect_b32 s{S_M0B}, s{S_M0W}, s{S_M0B}"]

    def dma_tile(self):
        a = self.a
        for j in range(5):
            a(f"s_add_u32 m0, s{S_M0B}, {3840*j if j < 4 else 's%d' % S_M05}")
            a("s_nop 0" if j < 4 else f"s_mov_b64 exec, {sr(S_HALF,2)}")
            a(f"buffer_load_dwordx4 v{V_DMA}, {sr(S_X,4)}, s{S_XOFF if j < 4 else S_XOFF5} offen offset:{256*j if j < 4 else 896} {self.o['ld']} lds")
        a("s_mov_b64 exec, -1")

    def prefetch(self, sh, lab="L_pf"):
        a = self.a
        a(f"s_bfe_u32 s{S_NB0}, s{S_DMASK}, {hex(4 << 16 | sh)}")
        if sh != 20 and self.n2min == 0:
            a(f"s_cbranch_scc0 {lab}_e")
        a(f"{lab}:")
        self.dma_tile()
        a(f"s_add_u32 s{S_XOFF5}, s{S_XOFF5}, s{S_XINC}")
        a(f"s_add_u32 s{S_M0B}, s{S_M0B}, {TB}")
        a(f"s_add_u32 s{S_XOFF}, s{S_XOFF}, s{S_XINC}")
        a(f"s_mov_b32 s{S_XINC}, {256*TB}")
        a(f"s_sub_u32 s{S_NB0}, s{S_NB0}, 1")
        a(f"s_cmp_lg_u32 s{S_NB0}, 0")
        a(f"s_cbranch_scc1 {lab}")
        a(f"{lab}_e:")

    def bias_load(self):
        a = self.a
        ln = f"v{V_LANE}"
        a(f"v_and_b32 v80, 3, {ln}")
        a(f"v_bfe_u32 v81, {ln}, 2, 2")
        a(f"v_bfe_u32 v82, {ln}, 4, 1")
        a("v_lshlrev_b32 v81, 3, v81")
        a("v_lshl_add_u32 v81, v80, 5, v81")
        a("v_lshl_add_u32 v81, v82, 7, v81")
        a(f"s_lshl_b32 s{S_T0}, s{S_WAVE}, 8")
        a(f"v_add_u32 v81, s{S_T0}, v81")
        a(f"s_lshl_b32 s{S_T0}, s{S_WAVE}, 5")
        a(f"s_add_u32 s{S_T0}, s{S_T0}, 1024")
        a(f"v_lshl_add_u32 v80, v80, 3, s{S_T0}")
        a(f"v_cmp_gt_u32 vcc, 32, {ln}")
        a("s_nop 1")
        a("v_cndmask_b32 v80, v80, v81, vcc")
        a(f"buffer_load_dwordx2 v[110:111], v80, {sr(S_B,4)}, 0 offen")

    def tables_init(self):
        a = self.a
        ln = f"v{V_LANE}"
        a(f"v_lshl_add_u32 v109, {ln}, 4, s{S_C0}")
        a(f"v_lshl_add_u32 v89, {ln}, 2, s{S_C0}")
        for r in range(4):
            a(f"v_mov_b32 v{76+r}, 0")
        a("v_mov_b32 v90, 0xdddddddd")
        a("ds_write_b128 v109, v[76:79]")
        for r in range(7):
            a(f"ds_write_b32 v89, v90 offset:{O_IDX+256*r}")
        a(f"s_lshl_b32 s{S_T0}, s{S_WAVE}, 2")
        a(f"s_add_u32 s{S_T0}, s{S_T0}, {L_PL + 256}")
        a(f"v_mov_b32 v88, s{S_T0}")
        a("ds_write_b32 v88, v76")

    def bias_store(self):
        return ["v_lshlrev_b32 v114, 16, v110", "v_and_b32 v115, 0xffff0000, v110", "v_lshlrev_b32 v116, 16, v111",
                "v_and_b32 v117, 0xffff0000, v111", "s_mov_b32 exec_hi, 15", f"ds_write_b128 v109, v[114:117] offset:{O_BIAS}",
                "s_mov_b64 exec, -1"]

    def wload_list(self, VA, VI8):
        wl = self.o["wl"]
        G = []
        so = S_C0 + 6
        cur = None
        for sp in range(5):
            g = []
            if sp == 4:
                g.append(f"s_mov_b32 s{so}, 4096")
            g.append(f"buffer_load_dword v{V_I8+sp}, v{VI8}, {sr(S_WS,4)}, {'s%d' % so if sp == 4 else '0'} offen offset:{1024*(sp%4)} {wl}")
            G.append(g)
        for s in range(9):
            G.append([f"s_mov_b32 s{so-1}, {1024*s}",
                      f"buffer_load_dwordx4 {vr(V_I+4*s,4)}, v{VA+1}, {sr(S_WS,4)}, s{so-1} offen {wl}"])
            for t in range(9):
                f = 9 * s + t
                g = []
                if cur != f >> 2:
                    cur = f >> 2
                    g.append(f"s_mov_b32 s{so}, {4096*cur}")
                g.append(f"buffer_load_dwordx4 {afrag(s,t)}, v{VA}, {sr(S_WS,4)}, s{so} offen offset:{1024*(f&3)} {wl}")
                G.append(g)
        return G

    def waddr(self, VA, VI8):
        a = self.a
        ln = f"v{V_LANE}"
        a(f"s_mul_i32 s{S_T0}, s{S_WAVE}, 82944")
        a(f"s_add_u32 s{S_T0}, s{S_T0}, s{S_BASE}")
        a(f"v_lshl_add_u32 v{VA}, {ln}, 4, s{S_T0}")
        a(f"s_mul_i32 s{S_T0}, s{S_WAVE}, 9216")
        a(f"s_add_u32 s{S_T0}, s{S_T0}, s{S_BASE}")
        a(f"s_add_u32 s{S_T0}, s{S_T0}, {I_OFF}")
        a(f"v_lshl_add_u32 v{VA+1}, {ln}, 4, s{S_T0}")
        a(f"s_lshl_b32 s{S_T0}, s{S_WAVE}, 6")
        a(f"s_add_u32 s{S_T0}, s{S_T0}, s{S_BASE}")
        a(f"s_add_u32 s{S_T0}, s{S_T0}, {I8_OFF}")
        a(f"v_and_b32 v{VI8}, 15, {ln}")
        a(f"v_lshl_add_u32 v{VI8}, v{VI8}, 2, s{S_T0}")
        a(f"v_lshrrev_b32 v{VI8+1}, 4, {ln}")
        a(f"v_lshl_add_u32 v{VI8}, v{VI8+1}, 8, v{VI8}")

    def build(self):
        a = self.a
        o = self.o
        ln = f"v{V_LANE}"
        wl = o["wl"]
        VA, VI8 = 104, 106
        E, TT, RK, ST = 8, 24, 40, 56
        T0, T1, T2, T3 = 72, 73, 74, 75
        WARM = 76
        ONE, VW, KB, VST, RX, VWARM, CM, CV, TM, TBS, HI, AB, BM, VH, VK, LO = range(88, 104)
        SW = S_C0
        a(f"s_mul_i32 s{S_T0}, s{S_WAVE}, 2304")
        a(f"s_add_u32 s{S_T0}, s{S_T0}, {R1_OFF}")
        a(f"v_lshl_add_u32 v{T0}, {ln}, 6, s{S_T0}")
        a(f"s_mov_b32 s{S_T0}, {R8_OFF - 36*64}")
        a(f"v_lshl_add_u32 v{T1}, {ln}, 6, s{S_T0}")
        a(f"v_lshrrev_b32 v{T2}, 2, {ln}")
        a(f"v_cmp_gt_u32 vcc, 36, {ln}")
        a(f"v_lshlrev_b32 v{KB}, 11, v{T2}")
        a(f"v_subrev_u32 v{T2}, 9, v{T2}")
        a(f"v_lshlrev_b32 v{T2}, 12, v{T2}")
        a(f"v_cndmask_b32 v{T0}, v{T1}, v{T0}, vcc")
        a(f"v_cndmask_b32 v{KB}, v{T2}, v{KB}, vcc")
        a(f"s_lshl_b32 s{S_T0}, s{S_WAVE}, 12")
        a(f"s_add_u32 s{S_T0}, s{S_T0}, 0x8001")
        a(f"v_mov_b32 v{ONE}, 1")
        a(f"v_mov_b32 v{CM}, 0xf001")
        a(f"v_mov_b32 v{CV}, s{S_T0}")
        a(f"v_cndmask_b32 v{CM}, v{CM}, v{ONE}, vcc")
        a(f"v_cndmask_b32 v{CV}, v{CV}, v{ONE}, vcc")
        a(f"v_cndmask_b32 v{TM}, 0, 28, vcc")
        a(f"v_cndmask_b32 v{TBS}, 32, 0, vcc")
        a(f"v_add_u32 v{TBS}, s{SW}, v{TBS}")
        a(f"v_cmp_gt_u32 vcc, 56, {ln}")
        a(f"v_mov_b32 v{T1}, 0x40000000")
        a(f"s_lshr_b32 s{S_T0}, s2, 3")
        a(f"s_lshl_b32 s{S_T0}, s{S_T0}, 2")
        a(f"s_add_u32 s{S_T0}, s{S_T0}, s{S_WAVE}")
        a(f"s_mul_i32 s{S_T0}, s{S_T0}, 3072")
        a(f"v_cndmask_b32 v{T0}, v{T1}, v{T0}, vcc")
        a(f"v_lshl_add_u32 v{VWARM}, {ln}, 4, s{S_T0}")
        self.waddr(VA, VI8)
        a(f"v_and_b32 v{T2}, 15, {ln}")
        a(f"v_and_b32 v{T1}, 7, {ln}")
        a(f"v_lshlrev_b32 v{BM}, 1, v{T1}")
        a(f"v_lshlrev_b32 v{BM}, v{BM}, v{ONE}")
        a(f"v_lshlrev_b32 v{T1}, 4, v{T1}")
        a(f"v_lshl_add_u32 v{RX}, v{T2}, 7, v{T1}")
        a(f"v_lshl_or_b32 v{RX}, v{RX}, 16, v{RX}")
        a(f"v_lshrrev_b32 v{HI}, 5, {ln}")
        a(f"v_bfe_u32 v{AB}, {ln}, 3, 2")
        a(f"v_lshl_add_u32 v{AB}, v{AB}, 6, s{SW}")
        a(f"v_lshl_add_u32 v{VH}, {ln}, 1, s{SW}")
        a(f"v_lshrrev_b32 v{VK}, 4, {ln}")
        a(f"v_lshl_add_u32 v{VK}, v{VK}, 3, s{SW}")
        a(f"v_lshrrev_b32 v{LO}, 1, {ln}")
        a(f"v_lshlrev_b32 v{LO}, 5, v{LO}")
        a(f"s_mov_b32 s{S_LINK}, 0")
        pre = [f"buffer_load_dwordx4 {vr(E+4*r,4)}, v{T0}, {sr(S_WS,4)}, 0 offen offset:{16*r} {wl}" for r in range(4)]
        warm = [[f"buffer_load_dwordx4 {vr(WARM+4*r,4)}, v{VWARM}, {sr(S_WS,4)}, 0 offen offset:{1024*r} {wl}"] for r in range(3)] if o["warm"] else []
        C = []
        g = lambda *x: C.append(list(x))

        def rank(r):
            m = S_MASK + 2 * r
            return [f"v_and_b32 v{T1}, v{CM}, v{E+r}", f"v_lshrrev_b32 v{T0}, 10, v{E+r}", f"v_cmp_eq_u32 {sr(m,2)}, v{T1}, v{CV}",
                    f"v_and_or_b32 v{TT+r}, v{T0}, v{TM}, v{TBS}",
                    f"s_mov_b64 exec, {sr(m,2)}", f"ds_add_rtn_u32 v{RK+r}, v{TT+r}, v{ONE}", "s_mov_b64 exec, -1"]

        def place(r):
            m = S_MASK + 2 * r
            return [f"v_add_u32 v{T1}, v{RK+r}, v{ST+r}", f"v_and_b32 v{T0}, 0x87e, v{E+r}", f"v_lshl_add_u32 v{T1}, v{T1}, 1, s{SW}",
                    f"v_add_u32 v{T0}, v{KB}, v{T0}", f"s_andn2_b64 exec, {sr(m,2)}, {sr(S_BAD,2)}",
                    f"ds_write_b16_d16_hi v{T1}, v{E+r} offset:{O_X}", f"ds_write_b16 v{T1}, v{T0} offset:{O_K}",
                    f"ds_write_b16 v{T1}, v{E+r} offset:{O_M}", "s_mov_b64 exec, -1"]
        g("@WAIT_E")
        g(f"v_cmp_ne_u32 {sr(S_BAD,2)}, 0, v{E+15}", f"v_cmp_ne_u32 {sr(S_MORE,2)}, 0, v{E+8}")
        for r in range(8):
            g(*rank(r))
        g(f"s_cmp_lg_u64 {sr(S_MORE,2)}, 0", "s_cbranch_scc1 L_more1", "L_more1b:", f"ds_read_b32 v{T0}, v{VW}", f"v_mov_b32 v{T1}, 0")
        self.tailblocks.append("\n".join(["L_more1:"] + [x for r in range(8, 15) for x in rank(r)] + ["s_branch L_more1b"]))
        g("s_waitcnt lgkmcnt(0)", f"s_mov_b64 vcc, {sr(S_EVEN,2)}",
          f"v_cndmask_b32_dpp v{T1}, v{T0}, v{T1}, vcc quad_perm:[0,0,2,2] row_mask:0xf bank_mask:0xf",
          f"v_add_u32 v{VST}, v{LO}, v{T1}", f"v_add_u32 v{T1}, v{T0}, v{T1}", f"v_cmp_lt_u32 vcc, 32, v{T1}",
          f"s_or_b32 s{S_BAD}, s{S_BAD}, s{S_BAD+1}", f"s_and_b32 s{S_T0}, vcc_lo, 0x1ff", f"s_or_b32 s{S_T0}, s{S_T0}, s{S_BAD}",
          "s_cbranch_scc1 L_greedy", "L_greedyb:")
        x = ["L_greedy:", f"s_mov_b32 s{S_T0}, 0", f"s_mov_b32 s{S_LINK}, 1"]
        for t in range(9):
            lo = 32 * (t >> 1)
            x += [f"v_readlane_b32 s{S_T1}, v{T0}, {t}", f"s_max_u32 s{S_T0}, s{S_T0}, {lo}",
                  f"v_writelane_b32 v{VST}, s{S_T0}, {t}", "s_nop 1", f"s_add_u32 s{S_T0}, s{S_T0}, s{S_T1}",
                  f"s_cmp_gt_u32 s{S_T0}, {lo + (64 if t & 1 else 32)}", f"s_cselect_b32 s{S_BAD}, 1, s{S_BAD}"]
        x += [f"s_cmp_lg_u32 s{S_BAD}, 0", f"s_cselect_b64 {sr(S_BAD,2)}, -1, 0",
              f"v_mov_b32 v{T1}, {L_PL + 256}", f"s_mov_b64 exec, {sr(S_BAD,2)}", f"ds_write_b32 v{T1}, v{ONE}", "s_mov_b64 exec, -1",
              "s_branch L_greedyb"]
        self.tailblocks.append("\n".join(x))
        g(*[f"ds_bpermute_b32 v{ST+r}, v{TT+r}, v{VST}" for r in range(8)])
        for r in range(8):
            g(*([f"s_waitcnt lgkmcnt({(7, 9, 11, 13, 15, 15, 15, 15)[r] if r else 7})"] if r < 8 else []), *place(r))
        g(f"s_cmp_lg_u64 {sr(S_MORE,2)}, 0", "s_cbranch_scc1 L_more2", "L_more2b:",
          *[f"ds_read_u16 v{E+r}, v{VH} offset:{O_M+128*r}" for r in range(3)],
          *[f"ds_read2_b64 {vr(V_AD+4*j,4)}, v{VK} offset0:{(O_K+64*j)//8} offset1:{(O_K+64*j+32)//8}" for j in range(5)])
        self.tailblocks.append("\n".join(["L_more2:"] + [f"ds_bpermute_b32 v{ST+r}, v{TT+r}, v{VST}" for r in range(8, 15)] + ["s_waitcnt lgkmcnt(0)"]
                                         + [x for r in range(8, 15) for x in place(r)] + ["s_branch L_more2b"]))
        for r in range(3):
            g(*(["s_waitcnt lgkmcnt(5)"] if r == 0 else []),
              f"v_lshrrev_b32 v{T0}, 12, v{E+r}", f"v_cmp_ne_u32 vcc, 0, v{E+r}", f"v_min_u32 v{T0}, 8, v{T0}", f"v_add3_u32 v{T0}, v{T0}, v{HI}, {2*r}",
              f"v_lshlrev_b32 v{T1}, 4, v{T0}", f"v_lshrrev_b32 v{T0}, 1, v{T0}")
            g(f"v_lshlrev_b32 v{T1}, v{T1}, v{BM}", f"v_lshl_add_u32 v{T0}, v{T0}, 8, v{AB}", f"v_bfe_u32 v{T2}, v{E+r}, 7, 4",
              f"v_lshl_add_u32 v{T0}, v{T2}, 2, v{T0}", "s_mov_b64 exec, vcc", *(["s_mov_b32 exec_hi, 0"] if r == 2 else []),
              f"ds_xor_b32 v{T0}, v{T1} offset:{O_IDX}", "s_mov_b64 exec, -1")
        g(*[f"ds_read_b32 v{V_IR+r}, v{VW} offset:{O_IDX+256*r}" for r in range(7)])
        for j in range(5):
            g(*(["s_waitcnt lgkmcnt(10)"] if j == 0 else []), *[f"v_xor_b32 v{V_AD+4*j+q}, v{RX}, v{V_AD+4*j+q}" for q in range(4)])
        g(*self.bias_store())
        return pre, C, warm + self.wload_list(VA, VI8)

    def emit_build(self, pre, C, G):
        a = self.a
        for x in pre:
            a(x)
        nl = 0
        G = list(G)

        def load(n=1):
            nonlocal nl
            for _ in range(n):
                if G:
                    for x in G.pop(0):
                        a(x)
                    nl += 1
        acc = 0
        for grp in C:
            if grp[0] == "@WAIT_E":
                load(self.o["l0"])
                a(f"s_waitcnt vmcnt({nl})")
                continue
            if grp[0] in ("s_waitcnt lgkmcnt(0)", "s_waitcnt lgkmcnt(7)", "s_waitcnt lgkmcnt(5)"):
                load(self.o["lw"])
            for x in grp:
                a(x)
            acc += len(grp)
            while acc >= self.o["lper"]:
                acc -= self.o["lper"]
                load()
        load(len(G) - self.o["ltail"])
        assert len(G) == self.o["ltail"]
        self.late_loads = [x for grp in G for x in grp]

    def slow_path(self, K):
        a = self.a
        o = self.o
        VA, VI8 = 104, 106
        a("L_slow:")
        a("s_waitcnt vmcnt(0) lgkmcnt(0)")
        a(f"s_mov_b32 s{S_MODE}, 0")
        a("L_sm:")
        a(f"s_lshl_b32 s{S_BASE}, s2, 1")
        a(f"s_add_u32 s{S_BASE}, s{S_BASE}, s{S_MODE}")
        a(f"s_add_u32 s{S_BASE}, s{S_BASE}, 1")
        a(f"s_mul_i32 s{S_BASE}, s{S_BASE}, {COPY}")
        a(f"s_mov_b32 s{S_TASK}, 0")
        a("L_st:")
        self.producer("g", True)
        a(f"s_add_u32 s{S_TASK}, s{S_TASK}, 1")
        a(f"s_cmp_lt_u32 s{S_TASK}, {NTASK}")
        a("s_cbranch_scc1 L_st")
        a(f"s_add_u32 s{S_MODE}, s{S_MODE}, 1")
        a(f"s_cmp_lt_u32 s{S_MODE}, 2")
        a("s_cbranch_scc1 L_sm")
        self.lane_setup()
        self.dma_setup()
        a(f"s_mov_b32 s{S_OUT+2}, {XBYTES}")
        a(f"s_mov_b32 s{S_X+2}, {XBYTES}")
        a(f"s_mov_b32 s{S_IT}, 0")
        a("L_stile:")
        a("s_barrier")
        self.dma_tile()
        for t in range(9):
            a(f"ds_read_b128 {vr(V_ACC+4*t,4)}, v{V_TAB} offset:{O_BIAS+64*t}")
        a(f"s_mov_b32 s{S_MODE}, 0")
        a("L_spass:")
        a(f"s_lshl_b32 s{S_BASE}, s2, 1")
        a(f"s_add_u32 s{S_BASE}, s{S_BASE}, s{S_MODE}")
        a(f"s_add_u32 s{S_BASE}, s{S_BASE}, 1")
        a(f"s_mul_i32 s{S_BASE}, s{S_BASE}, {COPY}")
        self.waddr(VA, VI8)
        for grp in self.wload_list(VA, VI8):
            for x in grp:
                a(x)
        a("s_waitcnt vmcnt(0)")
        a("s_barrier")
        for s in range(9):
            a(f"ds_read_b128 {vr(V_B,4)}, v{V_RD0} offset:{2048*s}")
            a(f"ds_read_b128 {vr(V_B+4,4)}, v{V_RD1} offset:{2048*s}")
            a("s_waitcnt lgkmcnt(0)")
            for t in range(9):
                ir, h = aidx(s, t)
                a(f"v_smfmac_f32_16x16x64_bf16 {vr(V_ACC+4*t,4)}, {afrag(s,t)}, {vr(V_B,8)}, v{ir}" + (" abid:1" if h else ""))
            a("s_nop 7")
        a(f"s_add_u32 s{S_MODE}, s{S_MODE}, 1")
        a(f"s_cmp_lt_u32 s{S_MODE}, 2")
        a("s_cbranch_scc1 L_spass")
        for t in range(7):
            for h in range(2):
                a(f"v_cvt_pk_bf16_f32 v{V_P+2*t+h}, v{V_ACC+4*t+2*h}, v{V_ACC+4*t+2*h+1}")
        a(f"s_mov_b64 vcc, {sr(S_EVEN,2)}")
        self.emit_epi(self.assemble_loop(False, "")[2])
        for r in (S_XOFF, S_XOFF5, S_OOFF):
            a(f"s_add_u32 s{r}, s{r}, s{S_XINC}")
        a(f"s_mov_b32 s{S_XINC}, {256*TB}")
        a(f"s_add_u32 s{S_IT}, s{S_IT}, 1")
        a(f"s_cmp_lt_u32 s{S_IT}, s{S_NT}")
        a("s_cbranch_scc1 L_stile")
        a("s_branch L_fin")

    def loop_ops(self, links, dma):
        o = self.o
        acc = lambda t: rng(V_ACC + 4 * t, 4)
        ch = o["chain"]
        bb = lambda s: V_P if (ch and s == 6) else V_B + 8 * BBUF[s]
        RBUF = [V_BR, V_BR + 8, V_BR, V_P + 8 if ch else V_P, V_BR + 8]
        rt = RT if links else [[0, 1], [2, 3], [4, 5], [6, 7], [8]]
        ng = [8, 8, 8, 8, 8 if links else o["ng4"]]

        def M(s, t):
            ir, h = aidx(s, t)
            return Op(f"v_smfmac_f32_16x16x64_bf16 {vr(V_ACC+4*t,4)}, {afrag(s,t)}, {vr(bb(s),8)}, v{ir}" + (" abid:1" if h else ""),
                      "mx", rd=list(acc(t)) + list(rng(bb(s), 8)), wr=acc(t), tag=("M", s, t))

        def R(j, t):
            c = j + t
            return Op(f"v_smfmac_f32_16x16x64_bf16 {vr(V_ACC+4*t,4)}, {vr(V_X,4)}, {vr(RBUF[j],8)}, v{V_IR+(c>>1)}" + (" abid:1" if c & 1 else ""),
                      "mx", rd=list(acc(t)) + list(rng(RBUF[j], 8)) + list(rng(V_X, 4)), wr=acc(t), tag=("R", j, t))
        seq = []
        for t in range(9):
            seq += [M(0, t), M(1, t)]
        if ch:
            for steps, order, rs in (((2, 3), o["ord1"], (0, 1)), ((4, 5, 6), o["ord2"], (2, 3, 4))):
                for n, t in enumerate(order):
                    seq += [M(s, t) for s in steps]
                    if t // 2 in rs and t % 2 == 0:
                        j = t // 2
                        assert t == 8 or order[n + 1] == t + 1
                        seq += [R(j, t)] + ([R(j, t - 1)] if links and j else []) + ([R(j, t + 1)] if t < 8 else [])
        else:
            for s in range(2, 7):
                seq += [M(s, t) for t in range(9)]
        for t in range(9):
            seq += [M(7, t), M(8, t)]
        if ch:
            rpos = [min(i for i, x in enumerate(seq) if x.tag[:2] == ("R", j)) for j in range(5)]
        else:
            rpos = list(o["rposl"] if links else o["rpos"])
            for j in range(5):
                for n, t in enumerate(rt[j]):
                    seq.insert(rpos[j] + n, R(j, t))
        N = len(seq)
        pos = {x.tag: i for i, x in enumerate(seq)}
        BAR = rpos[4] + len(rt[4]) - 1
        c0 = N - 15 - BAR
        assert c0 == (4 if ch else 0)
        self.drain = rpos[4] - 1
        T = lambda g: (g - BAR - 1) % N
        first = lambda s: T(min(pos[("M", s, t)] for t in range(9)))
        lastu = lambda s: max(pos[("M", s, t)] for t in range(9))
        LEAD = o["lead"]
        ST = [[] for _ in range(N)]
        S = [[] for _ in range(N)]
        D = [[] for _ in range(N)]
        V = [[] for _ in range(N)]
        keep = lambda op: (dma or op.tag != "dma") and not any(d in op.text for d in o["drop"])

        def pdst(t, h):
            return V_P8 + h if t == 8 else V_P + 2 * t + h
        dq, vq = [], []
        for t in range(9):
            for h in range(2):
                V[c0 + 2 * t + h].append(Op(f"v_cvt_pk_bf16_f32 v{pdst(t,h)}, v{V_ACC+4*t+2*h}, v{V_ACC+4*t+2*h+1}", "valu",
                                       rd=[V_ACC + 4 * t + 2 * h, V_ACC + 4 * t + 2 * h + 1], wr=[pdst(t, h)], tag="epi"))
            dq.append([Op(f"ds_read_b128 {vr(V_ACC+4*t,4)}, v{V_TAB} offset:{O_BIAS+64*t}", "lds", rd=[V_TAB], wr=acc(t), tag="pre"),
                       c0 + 2 * t + 2, c0 + 2 * t + 2, None])
        dpp = "quad_perm:[1,0,3,2] row_mask:0xf bank_mask:0xf"
        stg = [T(g) for g in o["stg"]]
        for v in range(2):
            p0, p1 = V_P + 8 * v, V_P + 8 * v + 4
            d0 = V_T if v == 0 else V_P
            for half in range(2):
                e = 2 * v + half
                for d in range(4):
                    if half == 0:
                        op = Op(f"v_cndmask_b32_dpp v{d0+d}, v{p1+d}, v{p0+d}, vcc {dpp}", "dpp", rd=[p0 + d, p1 + d], wr=[d0 + d], tag="epi")
                    else:
                        op = Op(f"v_cndmask_b32_dpp v{p1+d}, v{p0+d}, v{p1+d}, vcc {dpp}", "dpp", rd=[p0 + d, p1 + d], wr=[p1 + d], tag="epi")
                    vq.append([op, stg[e - 1] if e else c0 + 18, stg[e] - 4 + d, None])
                src = d0 if half == 0 else p1
                ST[stg[e]].append(Op(f"buffer_store_dwordx4 {vr(src,4)}, v{V_ST}, {sr(S_OUT,4)}, s{S_OOFF} offen offset:{1152*half+128*v} {o['st']}",
                                     "st", rd=list(rng(src, 4)) + [V_ST], tag="epi"))
                ST[stg[e]].append(Op(f"s_mov_b64 vcc, {sr((S_ODD, S_EVEN)[half],2)}", "salu", tag="epi"))
        if o["bperm"]:
            for h in range(2):
                dq.append([Op(f"ds_bpermute_b32 v{V_P8+h}, v{V_BP}, v{V_P8+h}", "lds", rd=[V_BP, V_P8 + h], wr=[V_P8 + h], tag="epi"),
                           c0 + 18, stg[4] - LEAD - 2 + h, None])
        ST[stg[4]].append(Op(f"buffer_store_dwordx2 {vr(V_P8,2)}, v{V_ST8}, {sr(S_OUT,4)}, s{S_OOFF} offen {o['st'] if o['st8'] is None else o['st8']}", "st",
                             rd=[V_P8, V_P8 + 1, V_ST8], tag="epi"))
        rl = lambda j: T(rpos[j] + len(rt[j]) - 1)
        free = [rl(2), 1, rl(0), stg[3 if ch else 2] + 1, rl(1)]
        for j in range(5):
            dl = T(rpos[j]) - LEAD - 1
            for b in range(ng[j]):
                r = RBUF[j] + b
                ad = V_AD + 4 * j + (b >> 1)
                av = Op(f"v_add_u32_sdwa v{r}, s{S_BUFN if j == 0 else S_BUF}, v{ad} dst_sel:DWORD dst_unused:UNUSED_PAD src0_sel:DWORD src1_sel:WORD_{b&1}",
                        "valu", rd=[ad], wr=[r], tag="pre" if j == 0 else "")
                gd = dl - o["gsp"] * (ng[j] - 1 - b)
                vq.append([av, free[j], (N - 2 - (7 - b)) if j == 0 else gd - 1, None])
                dq.append([Op(f"ds_read_u16 v{r}, v{r}", "lds", rd=[r], wr=[r], tag="pre"), 0, gd, None if j == 0 else av])
            dq.append([Op(f"ds_read_b128 {vr(V_X,4)}, v{V_TAB} offset:{O_X+64*j}", "lds", rd=[V_TAB], wr=rng(V_X, 4), tag="pre"),
                       0 if j == 0 else rl(j - 1), dl, None])
        prev = {0: None, 1: None, 2: 7, 3: 8, 4: 0, 5: 1, 6: 4, 7: 2, 8: 3}
        lastb = []
        for s in range(9):
            for h in range(2):
                op = Op(f"ds_read_b128 {vr(bb(s)+4*h,4)}, v{(V_RD0, V_RD1)[h]} offset:{2048*s}", "lds",
                        rd=[(V_RD0, V_RD1)[h]], wr=rng(bb(s) + 4 * h, 4), tag="pre")
                fs = first(s) if s < 7 else (T(rpos[4]) - 2 * (9 - s) if ch else T(pos[("M", s, 0)]))
                rel = 0 if prev[s] is None else T(lastu(prev[s]))
                if ch and s == 6:
                    rel = stg[2] + 1
                dq.append([op, rel, fs - LEAD - 2 + h, None])
                lastb.append(op)
        for h in range(2):
            vq.append([Op(f"v_add_u32 v{V_RD0+h}, s{S_DELTA}, v{V_RD0+h}", "valu", rd=[V_RD0 + h], wr=[V_RD0 + h]), 0, N - 2, lastb])
        sq = []
        if not o["nodma"]:
            for j, g in enumerate(o["dmag"]):
                g = T(g)
                ld = f"buffer_load_dwordx4 v{V_DMA}, {sr(S_X,4)}, s{S_XOFF if j < 4 else S_XOFF5} offen offset:{256*j if j < 4 else 896} {o['ld']} lds"
                if j < 4:
                    D[g].append(Op(ld, "dma", rd=[V_DMA], tag="dma"))
                    S[g - 1].append(Op(f"s_add_u32 m0, s{S_M0B}, {3840*j}", "salu", tag="dma"))
                else:
                    D[g] += [Op(f"s_mov_b64 exec, {sr(S_HALF,2)}", "salu", tag="dma"), Op(ld, "dma", rd=[V_DMA], tag="dma"),
                             Op("s_mov_b64 exec, -1", "salu", tag="dma")]
                    S[g - 1].append(Op(f"s_add_u32 m0, s{S_M0B}, s{S_M05}", "salu", tag="dma"))
                    V[g] = None
        placed = {}
        for g in range(N - 1):
            if not D[g] and g != T(N - 1):
                c = [x for x in dq if x[1] <= g and (x[3] is None or placed.get(id(x[3]), N) < g) and x[2] - g <= o["eager"]]
                if c:
                    x = min(c, key=lambda x: x[2])
                    dq.remove(x)
                    D[g].append(x[0])
                    placed[id(x[0])] = g
                    if g > x[2] and o["verbose"]:
                        print("; late D", g - x[2], x[0].text, file=sys.stderr)
            if V[g] is None:
                V[g] = []
                continue
            cap = 2 if (ST[g] and "x4" in ST[g][0].text) else 1
            while len(V[g]) < cap:
                c = [x for x in vq if x[1] <= g and (x[3] is None or all(placed.get(id(y), N) <= g for y in x[3]))]
                if not c:
                    break
                x = min(c, key=lambda x: x[2])
                vq.remove(x)
                V[g].append(x[0])
                placed[id(x[0])] = g
                assert g <= x[2] or x[0].kind != "dpp", ("late", x[0].text)
        assert not dq and not vq, ([x[0].text for x in dq], [x[0].text for x in vq])
        S[N - 1] += [Op(f"s_waitcnt vmcnt({o['vmw']})", "salu"), Op("s_barrier", "bar")]
        lastdma = T(o["dmag"][4])
        la = max(placed[id(x)] for gl in V for x in gl if id(x) in placed and f"s{S_BUF}," in x.text)
        fn = min(placed[id(x)] for gl in V for x in gl if id(x) in placed and (f"s{S_BUFN}," in x.text or f"s{S_DELTA}," in x.text))
        sq = [([f"s_mov_b32 s{S_BUF}, s{S_BUFN}"], 0, 0),
              ([f"s_cmp_eq_u32 s{S_BUFN}, {(NB-1)*TB}", f"s_cselect_b32 s{S_DELTA}, {-(NB-1)*TB}, s{S_CTB}", f"s_add_u32 s{S_BUFN}, s{S_BUFN}, s{S_DELTA}"], c0 + 18, fn),
              ([f"s_mov_b32 s{S_OUT+2}, {XBYTES}", f"s_add_u32 s{S_OOFF}, s{S_OOFF}, s{S_OINC}", f"s_mov_b32 s{S_OINC}, s{S_OINC2}",
                f"s_mov_b32 s{S_OINC2}, {256*TB}"], stg[4] + 1, N - 2),
              ([f"s_add_u32 s{S_IT}, s{S_IT}, 1"], c0 + 18, N - 2)]
        if dma:
            sq += [(self.dma_advance(), lastdma + 1, N + 12)]
        sq.append(([f"s_bitcmp1_b32 s{S_DMASK if dma else S_NMASK}, s{S_IT}"], T(N - 1) - 1, T(N - 1) - 1))
        G = lambda A: [[x for x in A[T(g)] if keep(x)] for g in range(N)]
        return seq, G(ST), G(S), G(D), G(V), [(x, (lo + BAR + 1), (hi + BAR + 1)) for x, lo, hi in sq], BAR

    def assemble_loop(self, links, label, dma=True):
        seq, ST, S, D, V, sq, BAR = self.loop_ops(links, dma)
        N = len(seq)
        flat = []
        for rep in range(2):
            for g in range(N):
                a0 = rep * N + g
                flat.append((seq[g], a0 - 1))
                for x in ST[g]:
                    flat.append((x, a0 - 1))
                for x in D[g] + V[g]:
                    flat.append((x, a0))
        gap_of = {}
        k = 0
        lds = []
        for rep in range(2):
            for g in range(N):
                k += 1 + len(ST[g])
                for x in D[g] + V[g]:
                    if x.kind == "lds":
                        lds.append((k, rep * N + g))
                    k += 1
        done = -1
        W = {}
        minlead = 99
        for i, (op, wg) in enumerate(flat):
            touched = op.rd | op.wr
            need = -1
            for n, (k, g) in enumerate(lds):
                if k < i and n > done and (flat[k][0].wr & touched):
                    need = n
            if need >= 0:
                assert lds[need][1] < wg
                issued = [n for n, (k, g) in enumerate(lds) if g < wg]
                cnt = min(issued[-1] - need, 15)
                done = issued[-1] - cnt
                if wg >= N - 1 and wg < 2 * N - 1:
                    W[wg % N] = min(cnt, W.get(wg % N, 99))
                    if self.o["verbose"]:
                        print(f"; wait gap {wg % N} cnt {cnt} lead {wg - lds[need][1]} for {flat[lds[need][0]][0].text}", file=sys.stderr)
        W[self.drain] = 0
        for g, c in W.items():
            S[g].insert(0, Op(f"s_waitcnt lgkmcnt({c})", "salu"))
        if not self.o["drop"]:
            last = max(g for g in range(BAR + 1) if any(x.kind == "lds" for x in D[g]))
            assert any(W.get(g) == 0 for g in range(last + 1, BAR + 1)), "tile reads not drained at the barrier"

        def room(g, extra=0):
            g %= N
            if g == BAR or g == N - 1 or any(x.kind == "dma" for x in D[g]):
                return False
            cap = 1 if D[g] else (2 if V[g] else 3)
            return len(S[g]) + extra < cap and not ST[g]
        sccfree = lambda x: x.text.startswith(("s_waitcnt", "s_mov", "s_barrier"))
        locked = set()
        for texts, lo, hi in sq:
            g = lo
            n = 0
            while n < len(texts):
                chain = [texts[n]]
                if texts[n].startswith(("s_cmp", "s_bitcmp")):
                    while n + len(chain) < len(texts) and texts[n + len(chain)].startswith("s_cselect"):
                        chain.append(texts[n + len(chain)])
                while True:
                    assert g <= hi, ("no room", chain)
                    where, z = [], g
                    ok = room(g) and ((g % N) not in locked or chain[0].startswith("s_mov"))
                    cnt = {}
                    for k, tx in enumerate(chain):
                        while ok and not room(z, cnt.get(z, 0)):
                            z += 1
                            ok = z <= hi and all(sccfree(x) for x in S[z % N])
                        where.append(z)
                        cnt[z] = cnt.get(z, 0) + 1
                    if ok:
                        break
                    g += 1
                for z, tx in zip(where, chain):
                    S[z % N].append(Op(tx, "salu"))
                if len(chain) > 1:
                    locked.update(z % N for z in range(where[0], where[-1]))
                g = where[-1]
                n += len(chain)
        assert all(sccfree(x) for x in S[N - 1])
        if label:
            gz = self.drain - (2 if self.o["trace"] else 1)
            assert self.o["chain"] and (self.o["trace"] or (not (S[gz] or D[gz] or V[gz] or ST[gz]) and room(gz - 1) and (gz - 1) not in locked))
            assert all(x.kind not in ("dma", "st") for g in range(gz, N) for x in D[g] + ST[g]) and max(self.o["stg"]) < min(self.o["dmag"])
            S[gz - (0 if self.o["trace"] else 1)].append(Op(f"s_bitcmp1_b32 s{S_WMASK}, s{S_IT}", "salu"))
            S[gz] += [Op(f"s_cbranch_scc1 {label}_w", "salu"), Op(f"{label}_wb:", "label")]
            self.tailblocks.append(f"{label}_w:\ns_bitcmp1_b32 s{S_WMASK2}, s{S_IT}\ns_waitcnt vmcnt({self.whi})\n"
                                   f"s_cbranch_scc0 {label}_wb\ns_waitcnt vmcnt({self.wlo})\ns_branch {label}_wb")
        if self.o["trace"]:
            g0 = max(g for g, c in W.items() if c == 0 and g <= BAR)
            S[g0 - 1] += [Op("s_memrealtime s[98:99]", "salu"), Op("s_memtime s[96:97]", "salu"), Op(f"s_add_u32 s95, s{S_IT}, 32", "salu")]
            V[g0] += [Op(f"s_mov_b32 m0, s{S_IT}", "salu"), Op("v_writelane_b32 v254, s98, m0", "salu"), Op("s_mov_b32 m0, s95", "salu"), Op("v_writelane_b32 v254, s96, m0", "salu")]
        body = []
        for g in range(N):
            body += [seq[g]] + ST[g] + S[g] + D[g] + V[g]
            if self.o["pad"] and g % self.o["pad"] == 0 and g < N - 2:
                body.append(Op("s_nop 3", "salu"))
        body.append(Op(f"s_cbranch_scc1 {label}", "salu"))
        if not self.o["drop"]:
            real = [x for x in body if x.kind != "label"]
            m = len(real)
            for i, op in enumerate(real):
                for d in range(1, 10):
                    p = real[(i - d) % m]
                    ws = d - 1
                    if p.kind == "mx" and op.kind != "mx" and (p.wr & (op.rd | op.wr)):
                        assert ws >= 8, ("mx->x", p.text, op.text, ws)
                    if p.kind in ("valu", "dpp") and op.kind == "mx" and (p.wr & op.rd):
                        assert ws >= 2, ("valu->mx", p.text, op.text, ws)
                    if p.kind in ("valu", "dpp") and op.kind == "dpp" and (p.wr & op.rd):
                        assert ws >= 2, ("valu->dpp", p.text, op.text, ws)
                    if p.kind == "st" and (p.rd & op.wr):
                        assert ws >= 2, ("st war", p.text, op.text, ws)
        pro = [x for g in range(N) for x in V[g] if x.tag == "pre" or (g > BAR and "sdwa" in x.text)] \
            + [x for g in range(BAR + 1, N) for x in D[g] if x.tag == "pre"]
        epi = [x for g in range(BAR) for x in ST[g] + D[g] + V[g] if x.tag == "epi"]
        return pro, body, epi

    def emit_epi(self, epi):
        a = self.a
        a("s_nop 7")
        for op in epi:
            if op.kind in ("dpp", "lds"):
                a("s_nop 1")
            if op.kind == "st":
                a("s_waitcnt lgkmcnt(0)")
            a(op.text)
            if op.kind == "st":
                a("s_nop 1")

    def main_loop(self, links, sfx):
        a = self.a
        pro, body, epi = self.assemble_loop(links, "L_loop" + sfx)
        late = list(self.late_loads)
        for n, op in enumerate(pro):
            a(op.text)
            if n % 6 == 5:
                while late and not late[0].startswith("buffer"):
                    a(late.pop(0))
                if late:
                    a(late.pop(0))
        for x in late[:8]:
            a(x)
        a("s_waitcnt lgkmcnt(0)")
        a(f"v_readfirstlane_b32 s{S_T0}, v{V_T}")
        a("s_nop 3")
        a(f"s_cmp_lg_u32 s{S_T0}, 0")
        a("s_cbranch_scc1 L_slow")
        for x in late[8:]:
            a(x)
        if max(p[1] for p in self.pol):
            self.prefetch(24, "L_pf2" + sfx)
        for x in self.dma_advance(first=True):
            a(x)
        a(f"s_waitcnt vmcnt({(20 if self.o['early'] else 0) + 5 * self.n2min})")
        self.stamp(5)
        a(f"s_bitcmp1_b32 s{S_DMASK}, 0")
        a(f"s_cbranch_scc0 L_loopn{sfx}")
        a(".p2align 6")
        a(f"L_loop{sfx}:")
        for op in body:
            a(op.text)
        if self.o["align2"]:
            a(".p2align 3")
        a(f"L_loopn{sfx}:")
        for op in self.assemble_loop(links, "L_loopn" + sfx, False)[1]:
            a(op.text)
        a(f"s_cmp_lt_u32 s{S_IT}, s{S_NT}")
        a(f"s_cbranch_scc1 L_loop{sfx}")
        self.emit_epi(epi)

    def loop_state(self):
        a = self.a
        a(f"s_mov_b32 s{S_IT}, 0")
        a(f"s_mov_b32 s{S_BUF}, 0")
        a(f"s_mov_b32 s{S_BUFN}, 0")
        a(f"s_mov_b32 s{S_CTB}, {TB}")
        a(f"s_mov_b32 s{S_OINC}, 0")
        a(f"s_mov_b64 vcc, {sr(S_EVEN,2)}")
        a(f"s_bfm_b32 s{S_NMASK}, s{S_NT}, 0")
        a(f"s_andn2_b32 s{S_NMASK}, s{S_NMASK}, s{S_DMASK}")

    def stamp(self, n, r="s[98:99]"):
        if self.o["stamp"] and (self.o["stamp"] is True or n in self.o["stamp"]):
            a = self.a
            a(f"s_memtime {r}" if self.o["cyc"] and n in (5, 6) else f"s_memrealtime {r}")
            a("s_waitcnt lgkmcnt(0)")
            a(f"v_writelane_b32 v255, s{r[2:4]}, {n}")

    def descriptor(self, label, vg, ag):
        self.a(f""".amdhsa_kernel {label}
  .amdhsa_next_free_vgpr {vg}
  .amdhsa_next_free_sgpr 102
  .amdhsa_accum_offset {ag}
  .amdhsa_group_segment_fixed_size 0
  .amdhsa_float_denorm_mode_32 3
  .amdhsa_kernarg_size 48
  .amdhsa_user_sgpr_count 2
  .amdhsa_user_sgpr_kernarg_segment_ptr 1
  .amdhsa_system_sgpr_workgroup_id_x 1
.end_amdhsa_kernel""")

    def flush_tail(self):
        for b in self.tailblocks:
            self.a(b)
        self.tailblocks = []

    def gen(self):
        a = self.a
        o = self.o
        K = NAME + "_kernel"
        a(open("cdna_kernels/" + NAME + ".s.ref").read().split("; Override")[0].rstrip())
        if o["fused"]:
            a(f"; @launch grid=(256,1,1) block=(256,1,1) lds={LDS_BYTES}")
        else:
            a(f"; @launch kernel=prep_kernel grid=({NTASK},1,1) block=(256,1,1) lds={LDS_BYTES}")
            a(f"; @launch kernel={K} grid=(256,1,1) block=(256,1,1) lds={LDS_BYTES}")
        a('.amdgcn_target "amdgcn-amd-amdhsa--gfx950"\n.text')
        if not o["fused"]:
            self.entry("prep_kernel", NTASK)
            a(f"s_mov_b32 s{S_TASK}, s2\ns_mov_b32 s{S_BASE}, 0")
            self.producer("", False)
            a("L_end_prep_kernel:\ns_endpgm")
            self.flush_tail()
        self.entry(K, 256)
        a(f"s_mov_b32 s{S_BASE}, 0")
        msk = lambda p: hex(sum(1 << i for i in p[2]) | p[0] << 20 | p[1] << 24)
        def pick(reg, vals):
            if len(set(vals)) == 1:
                a(f"s_mov_b32 s{reg}, {vals[0]}")
                return
            a(f"s_mov_b32 s{reg}, {vals[1]}")
            a(f"s_mov_b32 s{S_T0}, {vals[3]}")
            a(f"s_bitcmp1_b32 s2, {o['gsh']}")
            a(f"s_cselect_b32 s{reg}, s{reg}, {vals[0]}")
            a(f"s_cselect_b32 s{S_T0}, s{S_T0}, {vals[2]}")
            a(f"s_bitcmp1_b32 s2, {o['gsh2']}")
            a(f"s_cselect_b32 s{reg}, s{S_T0}, s{reg}")
        if o["fused"]:
            px = o["px"]
            a(f"s_lshr_b32 s{S_TASK}, s2, 3")
            a(f"s_mul_i32 s{S_TASK}, s{S_TASK}, {px}")
            a(f"s_and_b32 s{S_T0}, s2, 7")
            a(f"s_add_u32 s{S_TASK}, s{S_TASK}, s{S_T0}")
            a(f"s_cmp_lt_u32 s{S_T0}, {px}")
            a(f"s_cselect_b32 s{S_TASK}, s{S_TASK}, 63")
            a(f"s_cmp_lt_u32 s{S_TASK}, {NTASK}")
            a("s_cbranch_scc1 L_prod")
        pick(S_DMASK, [msk(p) for p in self.pol[:4]])
        self.lane_setup()
        self.entry_wait()
        a("L_cons3:")
        self.stamp(1)
        self.dma_setup()
        self.prefetch(20)
        self.stamp(2)
        if o["fused"]:
            a("s_branch L_rest")
            a("L_prod:")
            self.producer("", False)
            pick(S_DMASK, [msk(p) for p in self.pol[4:]] * 2)
            a("s_barrier")
            a(f"s_cmp_lg_u32 s{S_WAVE}, 0")
            a("s_cbranch_scc1 L_cons2")
            a("v_mov_b32 v8, 1")
            a("s_mov_b64 exec, 1")
            a(f"buffer_atomic_add v8, off, {sr(S_DBG,4)}, 0 offset:128 sc0 sc1")
            a("v_mov_b32 v9, 1")
            a("s_waitcnt vmcnt(0)")
            a(f"v_readfirstlane_b32 s{S_T0}, v8")
            a("s_nop 3")
            a(f"s_cmp_lg_u32 s{S_T0}, {NTASK-1}")
            a("s_cbranch_scc1 L_notlast")
            a(f"buffer_store_dword v9, off, {sr(S_DBG,4)}, 0 {o['fs']}")
            a("L_notlast:")
            a("s_mov_b64 exec, -1")
            a("L_cons2:")
            self.lane_setup()
            if o["bar2"]:
                a("s_barrier")
            a("s_branch L_cons3")
            self.flush_tail()
            a("L_rest:")
        for reg, wm in ((S_WMASK, self.wmask), (S_WMASK2, self.wmask2)):
            pick(reg, [hex(x) for x in wm[:4]])
            if o["fused"]:
                pick(S_T1, [hex(x) for x in wm[4:]] * 2)
                a(f"s_cmp_lt_u32 s{S_TASK}, {NTASK}")
                a(f"s_cselect_b32 s{reg}, s{S_T1}, s{reg}")
        self.bias_load()
        self.lane_setup2()
        self.tables_init()
        pre, C, G = self.build()
        if o["fused"]:
            a(f"s_cmp_lg_u32 s{S_WAVE}, 0")
            a("s_cbranch_scc1 L_ready")
            a("s_mov_b64 exec, 1")
            a(f"s_mov_b32 s{S_T1}, {o['maxpoll']}")
            a("L_poll:")
            if o["psleep"]:
                a(f"s_sleep {o['psleep']}")
            a(f"buffer_load_dword v8, off, {sr(S_DBG,4)}, 0 {o['pl']}")
            a(f"s_sub_u32 s{S_T1}, s{S_T1}, 1")
            a("s_cbranch_scc1 L_giveup")
            a("s_waitcnt vmcnt(0)")
            a(f"v_readfirstlane_b32 s{S_T0}, v8")
            a("s_nop 3")
            a(f"s_cmp_eq_u32 s{S_T0}, 0")
            a("s_cbranch_scc1 L_poll")
            a("L_polled:")
            a("s_mov_b64 exec, -1")
            a("L_ready:")
            self.tailblocks.append(f"L_giveup:\ns_waitcnt vmcnt(0)\nv_mov_b32 v8, {L_PL + 256}\nv_mov_b32 v9, 1\nds_write_b32 v8, v9\ns_branch L_polled")
        a("s_waitcnt lgkmcnt(0)")
        a("s_barrier")
        self.stamp(3)
        self.emit_build(pre, C, G)
        self.stamp(4, "s[94:95]")
        self.loop_state()
        a(f"v_mov_b32 v{V_T}, {L_PL + 256}")
        a("s_waitcnt lgkmcnt(0)")
        a("s_barrier")
        a(f"ds_read_b32 v{V_T}, v{V_T}")
        if o["links"] is None:
            a(f"s_cmp_lg_u32 s{S_LINK}, 0")
            a("s_cbranch_scc1 L_linked")
        self.main_loop(bool(o["links"]), "")
        a("L_fin:")
        self.stamp(6)
        if o["stamp"]:
            a("s_waitcnt vmcnt(0)")
            self.stamp(7)
            a("v_writelane_b32 v255, s100, 0")
            a(f"s_lshl_b32 s{S_T0}, s2, 2\ns_add_u32 s{S_T0}, s{S_T0}, s{S_WAVE}\ns_lshl_b32 s{S_T0}, s{S_T0}, 6")
            a(f"s_add_u32 s{S_T0}, s{S_T0}, {WSBYTES - 65536}")
            if o["trace"]:
                a(f"s_lshl_b32 s{S_T1}, s2, 2\ns_add_u32 s{S_T1}, s{S_T1}, s{S_WAVE}\ns_lshl_b32 s{S_T1}, s{S_T1}, 8")
                a(f"s_add_u32 s{S_T1}, s{S_T1}, {WSBYTES - 65536 - 262144}")
                a(f"v_lshl_add_u32 v8, v{V_LANE}, 2, s{S_T1}")
                a(f"buffer_store_dword v254, v8, {sr(S_WS,4)}, 0 offen")
                a("s_nop 1")
            a(f"v_lshl_add_u32 v254, v{V_LANE}, 2, s{S_T0}")
            a("s_mov_b32 exec_lo, 0xffff\ns_mov_b32 exec_hi, 0")
            a(f"buffer_store_dword v255, v254, {sr(S_WS,4)}, 0 offen")
            if o["diag"]:
                n1, n0, wg, mul = o["diag"]
                a(f"s_cmp_lg_u32 s2, {wg}\ns_cbranch_scc1 L_end_{K}\ns_cmp_lg_u32 s{S_WAVE}, 0\ns_cbranch_scc1 L_end_{K}")
                a(f"v_readlane_b32 s60, v255, {n1}\nv_readlane_b32 s61, v255, {n0}\ns_nop 3\ns_sub_u32 s60, s60, s61\ns_mul_i32 s60, s60, {mul}")
                a("s_min_u32 s60, s60, 100000\ns_add_u32 s60, s60, 10000")
                a("L_diag:\ns_sleep 1\ns_memrealtime s[62:63]\ns_waitcnt lgkmcnt(0)\ns_sub_u32 s62, s62, s100\ns_cmp_lt_u32 s62, s60\ns_cbranch_scc1 L_diag")
        a(f"L_end_{K}:\ns_endpgm")
        self.flush_tail()
        if o["links"] is None:
            a("L_linked:")
            self.main_loop(True, "k")
            a("s_branch L_fin")
            self.flush_tail()
        self.slow_path(K)
        a('.section .rodata,"a"\n.p2align 6')
        if not o["fused"]:
            self.descriptor("prep_kernel", 128, 128)
            a(".p2align 6")
        self.descriptor(K, 512, 256)
        return "\n".join(self.L) + "\n"


if __name__ == "__main__":
    opts = eval("dict(" + (sys.argv[2] if len(sys.argv) > 2 else "") + ")")
    out = sys.argv[1] if len(sys.argv) > 1 else "cdna_kernels/" + NAME + ".s"
    open(out, "w").write(Gen(**opts).gen())
```

```python
import sys

NAME = "standalone__structured_sparse_n_m__ragged"
TB = 18432
TBL = TB + 128
NB = 8
CNT_OFF = 1 << 28
XBYTES = 75497472
WBYTES = 663552
WSBYTES = 301989888
A_OFF = 0
I_OFF = 331776
I8_OFF = I_OFF + 36864
R1_OFF = I8_OFF + 5120
R8_OFF = R1_OFF + 9216
COPY = 393216
NTASK = 41
L_WV = NB * TBL
WV_SZ = 3584
O_X, O_K, O_M, O_BIAS, O_IDX = 64, 384, 704, 1024, 1792
L_PL = L_WV + 4 * WV_SZ
LDS_BYTES = 163840
assert L_PL + 512 <= LDS_BYTES and L_WV % 256 == 0 and WV_SZ % 256 == 0

V_RD0, V_RD1, V_TAB, V_DMA, V_ST, V_ST8, V_BP, V_LANE = 0, 1, 2, 3, 4, 5, 6, 7
V_ACC = 8
V_B = 44
V_BR = 76
V_P = 92
V_T = 108
V_P8 = 112
V_X = 114
V_AD = 118
V_I = 138
V_I8 = 174
V_IR = 179
V_A = 186
S_X, S_OUT, S_WS, S_W, S_B, S_DBG = 16, 20, 24, 28, 32, 36
S_WAVE = 40
S_IT, S_BUF, S_DELTA, S_M0B, S_XOFF, S_OOFF = 41, 42, 43, 44, 45, 46
S_T0, S_T1 = 47, 3
S_MASK = 48
S_EVEN, S_ODD = 80, 82
S_TASK, S_TEND, S_BASE, S_MODE, S_CONT = 84, 85, 86, 87, 88
S_BAD = 90
S_MORE, S_LINK = 78, 89
S_C0 = 93
S_BUFN, S_CTB, S_OINC, S_XOFF5, S_M05, S_M0W, S_HALF = 4, 5, 6, 7, 8, 9, 10
S_NMASK = 12
S_WMASK, S_WMASK2 = 92, 87
S_XINC, S_OINC2, S_NT = 13, 14, 15
S_Q, S_CL, S_CB, S_K5, S_CL0, S_CT, S_W0 = 48, 56, 57, 58, 59, 60, 62
V_C = 7
S_DMASK, S_NB0 = 85, 88


def vr(b, n=1):
    return f"v{b}" if n == 1 else f"v[{b}:{b+n-1}]"


def sr(b, n=1):
    return f"s{b}" if n == 1 else f"s[{b}:{b+n-1}]"


def afrag(s, t):
    f = 9 * s + t
    return f"a[{4*f}:{4*f+3}]" if f < 64 else vr(V_A + 4 * (f - 64), 4)


def aidx(s, t):
    if t < 8:
        return V_I + 4 * s + (t >> 1), t & 1
    return V_I8 + (s >> 1), s & 1


BBUF = [0, 1, 2, 3, 0, 1, 0, 2, 3]
PEEL_T = [8, 0, 1, 2, 3, 4, 5, 6, 7]
RT = [[0, 1], [1, 2, 3], [3, 4, 5], [5, 6, 7], [7, 8]]


class Op:
    def __init__(self, text, kind, rd=(), wr=(), tag=""):
        self.text, self.kind, self.rd, self.wr, self.tag = text, kind, set(rd), set(wr), tag


def rng(b, n):
    return range(b, b + n)


class Gen:
    def __init__(self, **o):
        self.o = dict(fused=True, ld="nt", st="", bperm=True, grp=None, nb0=None, gsh=3, gsh2=4, split=0, dyn=None, psh=5, peel=False, ptail=10, vcap=18, stp=None, mbg=64, wbl2=None, stn=None, pad=0, st8='', stc=None, stamp=False, nodma=False, wl="sc1", ws="sc1",
                      vmw=20, lper=9, drop=(), cyc=False, links=None, ng4=8, px=2, maxpoll=20000, warm=True, bcast=True, l0=12, lw=2, cwarm=True, bar2=True, early=True, ltail=24, coal=True, rpos=(18, 35, 50, 63, 75), rposl=(18, 36, 52, 66, 78),
                      lead=8, stg=(9, 16, 23, 30, 37), dmag=(44, 52, 60, 63, 66), gsp=2, eager=99, verbose=False, hack=None, diag=None, sig=1, psleep=0, pl='sc1', fs='sc1', isort=False, trace=False, chain=True, ord1=(0,1,4,5,6,2,3,7,8), ord2=(0,4,5,1,6,7,2,3,8), align2=True, order='hp')
        self.o.update(o)
        if self.o["grp"] is None and self.o["nb0"] is None:
            self.o.update(grp=[(8, 0, 5), (3, 0, 0), (8, 0, 5), (3, 0, 0), (2, 2, 1), (1, 2, 0)], gsh=0, gsh2=3)
        grp = self.o["grp"] or [(self.o["nb0"], 0, 0)] * 2
        if len(grp) != 6:
            grp = list(grp[:-1]) * (4 // (len(grp) - 1)) + [grp[-1]] * 2
        sp = self.o["split"]
        if sp:
            self.o["gsh"], self.o["gsh2"] = 0, 3
        self.pol, self.nt = [], []
        for c, (n1, n2, its) in enumerate(grp):
            nt = 16 + (sp if c % 2 == 0 else -sp)
            nb = n1 + n2
            its = list(its) if isinstance(its, (list, tuple)) else [its]
            while len(its) < nt - nb:
                its.append(its[-1] + 1)
            assert len(its) == nt - nb and all(nb + n - 7 <= i <= nb + n - 2 for n, i in enumerate(its)) and n1 >= 1, (n1, n2, its)
            self.pol.append((n1, n2, its))
            self.nt.append(nt)
        self.dyn = self.o["dyn"]
        if self.dyn:
            NS, LK = self.dyn
            self.cl0 = NS - LK - 1
            assert not sp and all(its[NS - 1 - n1 - n2] == self.cl0 and its[-1] == 15 - LK for n1, n2, its in self.pol) and self.cl0 >= 1
        self.n2min = min(p[1] for p in self.pol)
        req = []
        for (n1, n2, its), nt in zip(self.pol, self.nt):
            r = [63] * nt
            for tile in range(n1, nt):
                i = tile - 1
                a0 = (1 if self.o["peel"] else -1) if tile < n1 + n2 else its[tile - n1 - n2]
                r[i] = sum(10 if j in its else 5 for j in range(a0 + 1, i + 1)) + 5 * max(0, n1 + n2 - 1 - tile)
                if a0 < 0:
                    r[i] -= 5
            if self.o["peel"]:
                assert n1 >= 3 and its[0] >= 2 and not sp
            elif self.o["early"]:
                r[0] = min(r[0], 5 * n2 + (5 if 0 in its else 0))
            if self.dyn:
                r = r[:self.cl0] + [5 * (self.dyn[1] - 1)]
            req.append(r)
        low = sorted({x for r in req for x in r if x < self.o["vmw"]})
        self.wlo = low[0] if low else 0
        best = None
        for hi in low or [0]:
            cost = sum(x - (hi if x >= hi else self.wlo) for r in req[:4] for x in r[1:] if x < self.o["vmw"])
            if best is None or cost < best[0]:
                best = (cost, hi)
        self.whi = best[1]
        self.wmask = [sum(1 << (i + 1) for i, x in enumerate(r) if x < self.o["vmw"]) for r in req]
        self.wmask2 = [sum(1 << (i + 1) for i, x in enumerate(r) if x < self.whi) for r in req]
        self.req = req
        self.L = []
        self.tailblocks = []

    def a(self, s):
        self.L.extend(s.split("\n"))

    def entry(self, label, nwg):
        a = self.a
        a(f".globl {label}\n.p2align 8\n.type {label},@function\n{label}:")
        a(f"s_cmp_ge_u32 s2, {nwg}")
        a(f"s_cbranch_scc1 L_end_{label}")
        if self.o["stamp"]:
            a("s_memrealtime s[100:101]")
        a("s_load_dwordx8 s[4:11], s[0:1], 0")
        a("s_load_dwordx4 s[12:15], s[0:1], 32")
        if self.o["cwarm"]:
            a("s_getpc_b64 s[96:97]")
            a("v_lshlrev_b32 v2, 7, v0")
            a(f"v_min_u32 v2, L_slow-{label}, v2")
            a("global_load_dword v120, v2, s[96:97]")
        a("v_lshrrev_b32 v1, 6, v0")
        a(f"v_and_b32 v{V_LANE}, 63, v0")
        a(f"v_readfirstlane_b32 s{S_WAVE}, v1")
        for srd, size in ((S_X, XBYTES), (S_OUT, 0), (S_WS, WSBYTES), (S_W, WBYTES), (S_B, 1152), (S_DBG, 256)):
            a(f"s_mov_b32 s{srd+2}, {size}")
            a(f"s_mov_b32 s{srd+3}, 0x20000")

    def entry_wait(self, first=None):
        a = self.a
        lst = ((S_W, 6), (S_X, 4), (S_WS, 14), (S_B, 8), (S_OUT, 10), (S_DBG, 12))
        if first is not False:
            a("s_waitcnt lgkmcnt(0)")
        for srd, p in (lst if first is None else (lst[:1] if first else lst[1:])):
            a(f"s_mov_b32 s{srd}, s{p}")
            a(f"s_and_b32 s{srd+1}, s{p+1}, 0xffff")

    def producer(self, sfx, generic):
        a = self.a
        ws = self.o["ws"]
        W, Z, K = 8, 24, 28
        OA, NB_, IX = 36, 44, 48
        VL, VA, VI, VM0, VM1, VSEL, CJ = 50, 51, 52, 53, 54, 55, 56
        F0, F1, H, U, T0, T1, T2, VLI, VA2 = 58, 59, 60, 61, 62, 63, 64, 65, 66
        C = S_MASK
        SEL = S_MASK + 16
        CNT = S_MASK + 27
        ln = f"v{V_LANE}"
        a(f"s_and_b32 s{C}, s{S_TASK}, 3")
        a(f"s_lshr_b32 s{C+1}, s{S_TASK}, 2")
        a(f"s_sub_u32 s{C+2}, s{S_TASK}, 36")
        a(f"s_lshl_b32 s{C+3}, s{S_WAVE}, 4")
        a(f"s_lshl_b32 s{C+4}, s{C+2}, 1")
        a(f"s_lshl_b32 s{C+5}, s{C}, 8")
        a(f"s_cmp_lt_u32 s{S_TASK}, 36")
        a(f"s_cselect_b32 s{C+4}, s{C+1}, s{C+4}")
        a(f"s_cselect_b32 s{C+5}, s{C+5}, 1024")
        a(f"s_cselect_b32 s{C+6}, 8, 73728")
        a(f"s_cselect_b32 s{C+7}, 32, 8")
        a(f"s_cselect_b32 s{C+8}, 16, 32")
        a(f"s_cselect_b32 s{C+9}, 128, 64")
        a(f"s_mul_i32 s{C+4}, s{C+4}, 73728")
        a(f"s_mul_i32 s{C+10}, s{S_WAVE}, 18432")
        a(f"v_and_b32 v{F0}, 1, {ln}")
        a(f"v_bfe_u32 v{F1}, {ln}, 1, 1")
        a(f"v_bfe_u32 v{H}, {ln}, 2, 2")
        a(f"v_bfe_u32 v{T0}, {ln}, 4, 1")
        a(f"v_lshrrev_b32 v{T1}, 5, {ln}")
        a(f"v_lshl_add_u32 v{VL}, v{F0}, 2, s{C+4}")
        a(f"v_mad_u32_u24 v{VL}, v{F1}, s{C+6}, v{VL}")
        a(f"v_mad_u32_u24 v{VL}, v{H}, s{C+7}, v{VL}")
        a(f"v_mad_u32_u24 v{VL}, v{T0}, s{C+8}, v{VL}")
        a(f"v_mad_u32_u24 v{VL}, v{T1}, s{C+9}, v{VL}")
        a(f"v_add_u32 v{VL}, s{C+5}, v{VL}")
        a(f"v_add_u32 v{VL}, s{C+10}, v{VL}")
        a(f"v_add_u32 v{T0}, 4608, v{VL}")
        a(f"v_add_u32 v{T1}, 9216, v{VL}")
        a(f"v_add_u32 v{T2}, 13824, v{VL}")
        if not generic:
            self.entry_wait(first=True)
        for q in range(4):
            for j in range(4):
                a(f"buffer_load_dword v{W+4*q+j}, v{(VL, T0, T1, T2)[q]}, {sr(S_W,4)}, 0 offen offset:{1152*j}")
        if not generic:
            self.stamp(8)
            self.entry_wait(first=False)
        a(f"s_mul_i32 s{C+4}, s{C}, 9")
        a(f"s_add_u32 s{C+4}, s{C+4}, s{C+1}")
        a(f"s_mul_i32 s{C+5}, s{C+4}, 9")
        a(f"s_mul_i32 s{C+6}, s{C+2}, 18")
        a(f"s_add_u32 s{C+6}, s{C+6}, 8")
        a(f"s_lshl_b32 s{C+7}, s{C+4}, 2")
        a(f"s_add_u32 s{C+7}, s{C+7}, s{S_WAVE}")
        a(f"s_lshl_b32 s{C+8}, s{C+2}, 2")
        a(f"s_add_u32 s{C+8}, s{C+8}, s{S_WAVE}")
        a(f"s_cmp_eq_u32 s{S_TASK}, 40")
        a(f"s_cselect_b32 s{C+9}, 0x100000, 9")
        a(f"s_cmp_lt_u32 s{S_TASK}, 36")
        a(f"s_cselect_b32 s{C+5}, s{C+5}, s{C+6}")
        a(f"s_cselect_b32 s{C+6}, 2, 81")
        a(f"s_cselect_b32 s{C+9}, 1, s{C+9}")
        a(f"s_cselect_b32 s{C+7}, s{C+7}, s{C+8}")
        a(f"s_mov_b32 s{C+8}, {I_OFF}")
        a(f"s_cselect_b32 s{C+8}, s{C+8}, {I8_OFF}")
        a(f"s_mov_b32 s{C+10}, {R1_OFF}")
        a(f"s_cselect_b32 s{C+10}, s{C+10}, {R8_OFF}")
        a(f"s_cselect_b32 s{C+11}, 16, 4")
        a(f"s_cselect_b32 s{C+12}, 4, 64")
        a(f"s_cselect_b32 s{C+13}, 12, 11")
        a(f"s_cselect_b32 s{C+14}, 1, 0x8001")
        a(f"v_lshrrev_b32 v{U}, 4, {ln}")
        a(f"v_lshlrev_b32 v{T0}, 1, v{F0}")
        a(f"v_lshl_add_u32 v{H}, v{H}, 2, v{T0}")
        a(f"v_add_u32 v{T0}, v{H}, v{F1}")
        a(f"v_mul_u32_u24 v{VA}, s{C+6}, v{U}")
        a(f"v_add_lshl_u32 v{VA}, v{VA}, s{C+5}, 6")
        a(f"v_add3_u32 v{VA}, v{VA}, v{T0}, s{C+3}")
        a(f"v_lshl_add_u32 v{VA}, v{VA}, 4, s{S_BASE}")
        a(f"s_lshl_b32 s{C+9}, s{C+9}, 10")
        a(f"v_add_u32 v{VA2}, s{C+9}, v{VA}")
        a(f"s_lshl_b32 s{C+4}, s{C+7}, 8")
        a(f"s_add_u32 s{C+4}, s{C+4}, s{C+8}")
        a(f"s_add_u32 s{C+4}, s{C+4}, s{S_BASE}")
        a(f"v_mul_u32_u24 v{VI}, s{C+11}, v{T0}")
        a(f"v_mad_u32_u24 v{VI}, v{U}, s{C+12}, v{VI}")
        a(f"v_add_u32 v{VI}, s{C+4}, v{VI}")
        if not generic:
            a(f"s_lshl_b32 s{C+4}, s{C+7}, 6")
            a(f"s_add_u32 s{C+10}, s{C+10}, s{C+4}")
            a(f"s_add_u32 s{C+10}, s{C+10}, s{S_BASE}")
            a(f"s_lshl_b32 s{C+4}, s{C+3}, 1")
            a(f"s_add_u32 s{C+4}, s{C+4}, s{C+14}")
            a(f"v_lshl_add_u32 v{T0}, v{U}, 1, v{F1}")
            a(f"v_lshlrev_b32 v{T0}, s{C+13}, v{T0}")
            a(f"v_lshl_add_u32 v{VM0}, v{H}, 7, v{T0}")
            a(f"v_add_u32 v{VM0}, s{C+4}, v{VM0}")
            a(f"v_lshl_add_u32 v{VLI}, {ln}, 2, s{C+10}")
            if self.dyn:
                a(f"s_lshl_b32 s{C+4}, s{S_TASK}, 2")
                a(f"s_add_u32 s{C+4}, s{C+4}, s{S_WAVE}")
                a(f"s_lshl_b32 s{C+4}, s{C+4}, 7")
                a(f"s_add_u32 s{C+4}, s{C+4}, {CNT_OFF}")
                a(f"v_writelane_b32 v{VLI}, s{C+4}, 16")
            a(f"s_mov_b32 s{CNT}, 0")
            a(f"s_mov_b32 s{SEL+9}, 0x05060100")
            a(f"s_mov_b32 s{SEL+10}, 0xffff")
        a(f"v_mov_b32 v{VSEL}, 0x05040100")
        a(f"v_mov_b32 v{T0}, 0x03020706")
        a(f"v_cmp_eq_u32 vcc, 1, v{F1}")
        CJ, EF, EO = 68, 76, 82
        for n in range(8):
            a(f"v_mov_b32 v{CJ+n}, {hex(0x0f0a0500 | 0x01010101 * (((n >> 1) << 4) | ((n & 1) << 7)))}")
        a(f"v_cndmask_b32 v{VSEL}, v{VSEL}, v{T0}, vcc")
        if not generic:
            for r in range(3):
                a(f"v_mov_b64 {vr(EF+2*r,2)}, 0")
            a(f"v_mov_b32 v{EO}, 0")
        for c in range(2):
            for j in range(4):
                a(f"s_mov_b32 s{SEL+4*c+j}, {hex(((5+2*c) << 24) | ((4+2*c) << 16) | ((5+2*c) << 8) | j)}")
        a(f"s_mov_b32 s{SEL+8}, 0x05060102")
        if generic:
            a(f"s_cmp_lg_u32 s{S_MODE}, 0")
        sw = "src0_sel:WORD_1 src1_sel:WORD_1"
        for q in range(4):
            a(f"s_waitcnt vmcnt({12-4*q})")
            if q in (0, 3) and not generic:
                self.stamp(9 + q // 3)
            for c in range(2):
                n = 2 * q + c
                for j in range(4):
                    a(f"v_perm_b32 v{Z+j}, v{W+4*q+j}, v{CJ+n}, s{SEL+4*c+j}")
                a(f"v_max3_f32 v{K}, |v{Z}|, |v{Z+1}|, |v{Z+2}|")
                a(f"v_med3_f32 v{K+1}, |v{Z}|, |v{Z+1}|, |v{Z+2}|")
                a(f"v_min3_f32 v{K+2}, |v{Z}|, |v{Z+1}|, |v{Z+2}|")
                a(f"v_med3_f32 v{K+4}, v{K}, v{K+1}, |v{Z+3}|")
                a(f"v_med3_f32 v{K+5}, v{K+1}, v{K+2}, |v{Z+3}|")
                a(f"v_max_f32 v{K+3}, v{K}, |v{Z+3}|")
                if generic:
                    a(f"v_cmp_eq_u32_sdwa vcc, v{K+5}, v{K+4} {sw}")
                    a(f"s_cbranch_scc0 L_rb{n}{sfx}")
                    a(f"v_min_f32 v{K+2}, v{K+2}, |v{Z+3}|")
                    a(f"v_cndmask_b32 v{K+3}, 0, v{K+5}, vcc")
                    a(f"v_cmp_eq_u32_sdwa vcc, v{K+2}, v{K+4} {sw}")
                    a("s_nop 1")
                    a(f"v_cndmask_b32 v{K+4}, 0, v{K+2}, vcc")
                    a(f"L_rb{n}{sfx}:")
                a(f"v_perm_b32 v{OA+4*c+q}, v{K+3}, v{K+4}, s{SEL+8}")
                nb = NB_ + 2 * c + (q >> 1)
                if q & 1 == 0:
                    a(f"v_bfi_b32 v{nb}, 3, v{K+4}, v{K+3}")
                else:
                    a(f"v_bfi_b32 v{K+3}, 3, v{K+4}, v{K+3}")
                    a(f"v_lshlrev_b32 v{K+3}, 4, v{K+3}")
                    a(f"v_bfi_b32 v{nb}, 15, v{nb}, v{K+3}")
                if not generic:
                    a(f"v_cmpx_eq_u32_sdwa vcc, v{K+5}, v{K+4} {sw}")
                    if n >= 3:
                        a(f"v_or_b32 v{EO}, v{EO}, v{EF+4}")
                    if n >= 2:
                        a(f"v_mov_b64 {vr(EF+4,2)}, {vr(EF+2,2)}")
                    if n >= 1:
                        a(f"v_mov_b64 {vr(EF+2,2)}, {vr(EF,2)}")
                    a(f"v_mov_b32 v{EF}, v{K+5}")
                    a(f"v_min_f32 v{EF+1}, v{K+2}, |v{Z+3}|")
                    a("s_mov_b64 exec, -1")
        x2 = "quad_perm:[2,3,0,1] row_mask:0xf bank_mask:0xf"
        a("s_mov_b32 vcc_lo, 0x33333333")
        a("s_mov_b32 vcc_hi, 0x33333333")
        for d in range(4):
            a(f"v_cndmask_b32_dpp v{Z+d}, v{OA+4+d}, v{OA+d}, vcc {x2}")
        a("s_not_b64 vcc, vcc")
        a(f"buffer_store_dwordx4 {vr(Z,4)}, v{VA}, {sr(S_WS,4)}, 0 offen {ws}")
        for d in range(4):
            a(f"v_cndmask_b32_dpp v{OA+4+d}, v{OA+d}, v{OA+4+d}, vcc {x2}")
        a(f"s_mov_b32 s{C+4}, 0x0c0c0400")
        a(f"s_mov_b32 s{C+5}, 0x04000c0c")
        a(f"buffer_store_dwordx4 {vr(OA+4,4)}, v{VA2}, {sr(S_WS,4)}, 0 offen {ws}")
        a(f"v_perm_b32 v{IX}, v{NB_+1}, v{NB_}, s{C+4}")
        a(f"v_perm_b32 v{IX+1}, v{NB_+3}, v{NB_+2}, s{C+5}")
        a(f"v_or_b32 v{IX}, v{IX}, v{IX+1}")
        a("s_nop 1")
        a(f"v_mov_b32_dpp v{IX+1}, v{IX} quad_perm:[2,3,0,1] row_mask:0xf bank_mask:0xf")
        a(f"v_perm_b32 v{IX}, v{IX+1}, v{IX}, v{VSEL}")
        a(f"buffer_store_dword v{IX}, v{VI}, {sr(S_WS,4)}, 0 offen {ws}")
        if not generic:
            self.stamp(11)
            a(f"v_cmp_lt_u32 {sr(C+2,2)}, s{SEL+10}, v{EO}")
            a(f"L_emit{sfx}:")
            a(f"v_cmp_lt_u32 vcc, s{SEL+10}, v{EF}")
            a(f"v_cmp_eq_u32_sdwa {sr(C,2)}, v{EF+1}, v{EF} {sw}")
            a(f"v_perm_b32 v{T1}, v{EF}, v{VM0}, s{SEL+9}")
            a(f"v_bfe_u32 v{T0}, v{EF}, 2, 4")
            a(f"v_and_b32 v{T2}, 0x80, v{EF}")
            a(f"v_lshl_add_u32 v{T1}, v{T0}, 1, v{T1}")
            a(f"v_mbcnt_lo_u32_b32 v{T0}, vcc_lo, 0")
            a(f"v_mbcnt_hi_u32_b32 v{T0}, vcc_hi, v{T0}")
            a(f"v_add_u32 v{T1}, v{T2}, v{T1}")
            a(f"v_add_u32 v{T0}, s{CNT}, v{T0}")
            a(f"s_bcnt1_i32_b64 s{C+4}, vcc")
            a(f"s_add_u32 s{CNT}, s{CNT}, s{C+4}")
            a(f"v_cmp_gt_u32 {sr(C+4,2)}, 15, v{T0}")
            a(f"v_lshl_add_u32 v{T0}, v{T0}, 2, s{C+10}")
            a(f"s_and_b64 {sr(C,2)}, {sr(C,2)}, vcc")
            a(f"s_and_b64 exec, {sr(C+4,2)}, vcc")
            a(f"s_cbranch_execz L_emit1{sfx}")
            a(f"buffer_store_dword v{T1}, v{T0}, {sr(S_WS,4)}, 0 offen {ws}")
            a(f"L_emit1{sfx}:")
            a(f"s_mov_b64 exec, {sr(C,2)}")
            a(f"v_mov_b32 v{EF}, v{EF+1}")
            a(f"v_mov_b32 v{EF+1}, 0")
            a(f"s_not_b64 exec, exec")
            a(f"v_mov_b64 {vr(EF,2)}, {vr(EF+2,2)}")
            a(f"v_mov_b64 {vr(EF+2,2)}, {vr(EF+4,2)}")
            a(f"v_mov_b64 {vr(EF+4,2)}, 0")
            a("s_mov_b64 exec, -1")
            a(f"v_or3_b32 v{T0}, v{EF}, v{EF+2}, v{EF+4}")
            a(f"v_cmp_lt_u32 vcc, s{SEL+10}, v{T0}")
            a(f"s_cmp_lg_u64 {sr(C+2,2)}, 0")
            a(f"s_cselect_b32 s{C+4}, 99, s{CNT}")
            a(f"s_cmp_gt_u32 s{C+4}, 15")
            a(f"s_cselect_b32 s{C+4}, -1, 0")
            a(f"s_min_u32 s{C+5}, s{CNT}, 15")
            a(f"s_cbranch_vccnz L_emit{sfx}")
            a(f"s_lshl_b32 s{C+5}, -1, s{C+5}")
            a(f"v_mov_b32 v{T0}, s{C+4}")
            a(f"s_and_b32 exec_lo, s{C+5}, {0x1ffff if self.dyn else 0xffff}")
            a("s_mov_b32 exec_hi, 0")
            a(f"buffer_store_dword v{T0}, v{VLI}, {sr(S_WS,4)}, 0 offen {ws}")
            a("s_mov_b64 exec, -1")
            self.stamp(12)
        a("s_waitcnt vmcnt(0)")
        if not generic:
            self.stamp(13)

    def lane_setup(self):
        a = self.a
        ln = f"v{V_LANE}"
        T0, T1, T2 = 72, 73, 74
        a(f"v_lshrrev_b32 v{T0}, 3, {ln}")
        a(f"v_and_b32 v{T1}, 7, {ln}")
        a(f"v_xor_b32 v{T1}, v{T1}, v{T0}")
        a(f"v_mul_u32_u24 v{T0}, 1152, v{T0}")
        a(f"s_and_b32 s{S_T0}, s{S_WAVE}, 1")
        a(f"s_mul_i32 s{S_T0}, s{S_T0}, 9216")
        a(f"s_lshr_b32 s{S_T1}, s{S_WAVE}, 1")
        a(f"s_lshl_b32 s{S_T1}, s{S_T1}, 7")
        a(f"s_add_u32 s{S_T0}, s{S_T0}, s{S_T1}")
        a(f"v_lshl_add_u32 v{T0}, v{T1}, 4, v{T0}")
        a(f"v_add_u32 v{V_DMA}, s{S_T0}, v{T0}")
        a(f"s_lshl_b32 s{S_M0B}, s{S_WAVE}, 10")
        if self.o["split"]:
            a(f"s_bitcmp1_b32 s2, 0")
            a(f"s_cselect_b32 s{S_XOFF}, 256, 1")
            a(f"s_add_u32 s{S_XOFF}, s{S_XOFF}, s2")
            a(f"s_mul_i32 s{S_XOFF}, s{S_XOFF}, {TB}")
        else:
            a(f"s_mul_i32 s{S_XOFF}, s2, {TB}")
        a(f"s_mov_b32 s{S_OOFF}, s{S_XOFF}")

    def lane_setup2(self):
        a = self.a
        ln = f"v{V_LANE}"
        T0, T1, T2 = 72, 73, 74
        a(f"v_and_b32 v{T0}, 15, {ln}")
        a(f"v_lshrrev_b32 v{T1}, 4, {ln}")
        a(f"v_and_b32 v{T2}, 7, {ln}")
        a(f"v_xor_b32 v{T2}, v{T2}, v{T1}")
        a(f"v_lshlrev_b32 v{T2}, 4, v{T2}")
        a(f"v_lshl_add_u32 v{V_RD0}, v{T0}, 7, v{T2}")
        a(f"v_xor_b32 v{V_RD1}, 64, v{V_RD0}")
        a(f"s_mul_i32 s{S_C0}, s{S_WAVE}, {WV_SZ}")
        a(f"s_add_u32 s{S_C0}, s{S_C0}, {L_WV}")
        a(f"v_lshl_add_u32 v{V_TAB}, v{T1}, 4, s{S_C0}")
        a(f"v_and_b32 v{T2}, 14, {ln}")
        a(f"v_mul_u32_u24 v{V_ST}, 1152, v{T2}")
        a(f"v_and_b32 v{T2}, 1, {ln}")
        a(f"v_lshl_add_u32 v{V_ST}, v{T2}, 4, v{V_ST}")
        a(f"v_lshl_add_u32 v{V_ST}, v{T1}, 5, v{V_ST}")
        a(f"s_lshl_b32 s{S_T0}, s{S_WAVE}, 8")
        a(f"v_add_u32 v{V_ST}, s{S_T0}, v{V_ST}")
        if self.o["hack"] == "q4":
            a(f"v_lshrrev_b32 v{T2}, 3, {ln}")
            a(f"v_mul_u32_u24 v{V_ST}, 2304, v{T2}")
            a(f"v_and_b32 v{T2}, 7, {ln}")
            a(f"v_lshl_add_u32 v{V_ST}, v{T2}, 4, v{V_ST}")
            a(f"v_add_u32 v{V_ST}, s{S_T0}, v{V_ST}")
        a(f"s_lshl_b32 s{S_T0}, s{S_WAVE}, 5")
        a(f"s_add_u32 s{S_T0}, s{S_T0}, 1024")
        if self.o["bperm"]:
            a(f"v_lshrrev_b32 v{T0}, 2, {ln}")
            a(f"v_and_b32 v{T1}, 3, {ln}")
            a(f"v_lshl_add_u32 v{V_BP}, v{T1}, 4, v{T0}")
            a(f"v_lshlrev_b32 v{V_BP}, 2, v{V_BP}")
        a(f"v_mul_u32_u24 v{V_ST8}, 1152, v{T0}")
        a(f"v_lshl_add_u32 v{V_ST8}, v{T1}, 3, v{V_ST8}")
        a(f"v_add_u32 v{V_ST8}, s{S_T0}, v{V_ST8}")
        a(f"s_mov_b32 s{S_EVEN}, 0x55555555")
        a(f"s_mov_b32 s{S_EVEN+1}, 0x55555555")
        a(f"s_mov_b32 s{S_ODD}, 0xaaaaaaaa")
        a(f"s_mov_b32 s{S_ODD+1}, 0xaaaaaaaa")

    def dma_setup(self):
        a = self.a
        a(f"s_lshr_b32 s{S_T0}, s{S_WAVE}, 1")
        a(f"s_lshl_b32 s{S_T1}, s{S_T0}, 11")
        a(f"s_sub_u32 s{S_M05}, {16384-896}, s{S_T1}")
        a(f"s_lshl_b32 s{S_T1}, s{S_T0}, 7")
        a(f"s_add_u32 s{S_XOFF5}, s{S_XOFF}, 128")
        a(f"s_sub_u32 s{S_XOFF5}, s{S_XOFF5}, s{S_T1}")
        a(f"s_sub_u32 s{S_HALF}, s{S_T0}, 1")
        a(f"s_sub_u32 s{S_HALF+1}, 0, s{S_T0}")
        a(f"s_mov_b32 s{S_M0W}, s{S_M0B}")
        a(f"s_mov_b32 s{S_XINC}, {256*TB}")
        if self.o["split"]:
            a(f"s_bitcmp1_b32 s2, 0")
            a(f"s_cselect_b32 s{S_XINC}, s{S_XINC}, {-TB}")
            a(f"s_cselect_b32 s{S_NT}, 15, 17")
        else:
            a(f"s_mov_b32 s{S_NT}, 16")
        a(f"s_mov_b32 s{S_OINC2}, s{S_XINC}")

    def dma_advance(self, first=False):
        x = [] if first else [f"s_add_u32 s{S_XOFF}, s{S_XOFF}, {256*TB}", f"s_add_u32 s{S_XOFF5}, s{S_XOFF5}, {256*TB}",
                              f"s_add_u32 s{S_M0B}, s{S_M0B}, s{S_CTB}"]
        return x + [f"s_cmp_ge_u32 s{S_M0B}, {NB*TBL}", f"s_cselect_b32 s{S_M0B}, s{S_M0W}, s{S_M0B}"]

    def dma_tile(self):
        a = self.a
        for j in range(5):
            a(f"s_add_u32 m0, s{S_M0B}, {3840*j if j < 4 else 's%d' % S_M05}")
            a("s_nop 0" if j < 4 else f"s_mov_b64 exec, {sr(S_HALF,2)}")
            a(f"buffer_load_dwordx4 v{V_DMA}, {sr(S_X,4)}, s{S_XOFF if j < 4 else S_XOFF5} offen offset:{256*j if j < 4 else 896} {self.o['ld']} lds")
        a("s_mov_b64 exec, -1")

    def prefetch(self, sh, lab="L_pf"):
        a = self.a
        a(f"s_bfe_u32 s{S_NB0}, s{S_DMASK}, {hex(4 << 16 | sh)}")
        if sh != 20 and self.n2min == 0:
            a(f"s_cbranch_scc0 {lab}_e")
        a(f"{lab}:")
        self.dma_tile()
        a(f"s_add_u32 s{S_XOFF5}, s{S_XOFF5}, s{S_XINC}")
        a(f"s_add_u32 s{S_M0B}, s{S_M0B}, {TBL}")
        a(f"s_add_u32 s{S_XOFF}, s{S_XOFF}, s{S_XINC}")
        a(f"s_mov_b32 s{S_XINC}, {256*TB}")
        a(f"s_sub_u32 s{S_NB0}, s{S_NB0}, 1")
        a(f"s_cmp_lg_u32 s{S_NB0}, 0")
        a(f"s_cbranch_scc1 {lab}")
        a(f"{lab}_e:")

    def bias_load(self):
        a = self.a
        ln = f"v{V_LANE}"
        a(f"v_and_b32 v80, 3, {ln}")
        a(f"v_bfe_u32 v81, {ln}, 2, 2")
        a(f"v_bfe_u32 v82, {ln}, 4, 1")
        a("v_lshlrev_b32 v81, 3, v81")
        a("v_lshl_add_u32 v81, v80, 5, v81")
        a("v_lshl_add_u32 v81, v82, 7, v81")
        a(f"s_lshl_b32 s{S_T0}, s{S_WAVE}, 8")
        a(f"v_add_u32 v81, s{S_T0}, v81")
        a(f"s_lshl_b32 s{S_T0}, s{S_WAVE}, 5")
        a(f"s_add_u32 s{S_T0}, s{S_T0}, 1024")
        a(f"v_lshl_add_u32 v80, v80, 3, s{S_T0}")
        a(f"v_cmp_gt_u32 vcc, 32, {ln}")
        a("s_nop 1")
        a("v_cndmask_b32 v80, v80, v81, vcc")
        a(f"buffer_load_dwordx2 v[110:111], v80, {sr(S_B,4)}, 0 offen")

    def tables_init(self):
        a = self.a
        ln = f"v{V_LANE}"
        a(f"v_lshl_add_u32 v109, {ln}, 4, s{S_C0}")
        a(f"v_lshl_add_u32 v89, {ln}, 2, s{S_C0}")
        for r in range(4):
            a(f"v_mov_b32 v{76+r}, 0")
        a("v_mov_b32 v90, 0xdddddddd")
        a("ds_write_b128 v109, v[76:79]")
        for r in range(7):
            a(f"ds_write_b32 v89, v90 offset:{O_IDX+256*r}")
        a(f"s_lshl_b32 s{S_T0}, s{S_WAVE}, 2")
        a(f"s_add_u32 s{S_T0}, s{S_T0}, {L_PL + 256}")
        a(f"v_mov_b32 v88, s{S_T0}")
        a("ds_write_b32 v88, v76")

    def bias_store(self):
        return ["v_lshlrev_b32 v114, 16, v110", "v_and_b32 v115, 0xffff0000, v110", "v_lshlrev_b32 v116, 16, v111",
                "v_and_b32 v117, 0xffff0000, v111", "s_mov_b32 exec_hi, 15", f"ds_write_b128 v109, v[114:117] offset:{O_BIAS}",
                "s_mov_b64 exec, -1"]

    def wload_list(self, VA, VI8, pairs=False):
        wl = self.o["wl"]
        G = []
        so = S_C0 + 6
        cur = None
        for sp in range(5):
            g = []
            if sp == 4:
                g.append(f"s_mov_b32 s{so}, 4096")
            g.append(f"buffer_load_dword v{V_I8+sp}, v{VI8}, {sr(S_WS,4)}, {'s%d' % so if sp == 4 else '0'} offen offset:{1024*(sp%4)} {wl}")
            G.append(g)
        order = [(s, t) for s in range(9) for t in [None] + list(range(9))]
        if pairs:
            order = order[:70] + [(7, None), (8, None)] + [(s, t) for t in PEEL_T for s in (7, 8)]
        for s, t in order:
            if t is None:
                G.append([f"s_mov_b32 s{so-1}, {1024*s}",
                          f"buffer_load_dwordx4 {vr(V_I+4*s,4)}, v{VA+1}, {sr(S_WS,4)}, s{so-1} offen {wl}"])
            else:
                f = 9 * s + t
                g = []
                if cur != f >> 2:
                    cur = f >> 2
                    g.append(f"s_mov_b32 s{so}, {4096*cur}")
                g.append(f"buffer_load_dwordx4 {afrag(s,t)}, v{VA}, {sr(S_WS,4)}, s{so} offen offset:{1024*(f&3)} {wl}")
                G.append(g)
        return G

    def waddr(self, VA, VI8):
        a = self.a
        ln = f"v{V_LANE}"
        a(f"s_mul_i32 s{S_T0}, s{S_WAVE}, 82944")
        a(f"s_add_u32 s{S_T0}, s{S_T0}, s{S_BASE}")
        a(f"v_lshl_add_u32 v{VA}, {ln}, 4, s{S_T0}")
        a(f"s_mul_i32 s{S_T0}, s{S_WAVE}, 9216")
        a(f"s_add_u32 s{S_T0}, s{S_T0}, s{S_BASE}")
        a(f"s_add_u32 s{S_T0}, s{S_T0}, {I_OFF}")
        a(f"v_lshl_add_u32 v{VA+1}, {ln}, 4, s{S_T0}")
        a(f"s_lshl_b32 s{S_T0}, s{S_WAVE}, 6")
        a(f"s_add_u32 s{S_T0}, s{S_T0}, s{S_BASE}")
        a(f"s_add_u32 s{S_T0}, s{S_T0}, {I8_OFF}")
        a(f"v_and_b32 v{VI8}, 15, {ln}")
        a(f"v_lshl_add_u32 v{VI8}, v{VI8}, 2, s{S_T0}")
        a(f"v_lshrrev_b32 v{VI8+1}, 4, {ln}")
        a(f"v_lshl_add_u32 v{VI8}, v{VI8+1}, 8, v{VI8}")

    def build(self):
        a = self.a
        o = self.o
        ln = f"v{V_LANE}"
        wl = o["wl"]
        VA, VI8 = (112 if o["peel"] else 104), 106
        E, TT, RK, ST = 8, 24, 40, 56
        T0, T1, T2, T3 = 72, 73, 74, 75
        WARM = 76
        ONE, VW, KB, VST, RX, VWARM, CM, CV, TM, TBS, HI, AB, BM, VH, VK, LO = range(88, 104)
        SW = S_C0
        a(f"s_mul_i32 s{S_T0}, s{S_WAVE}, 2304")
        a(f"s_add_u32 s{S_T0}, s{S_T0}, {R1_OFF}")
        a(f"v_lshl_add_u32 v{T0}, {ln}, 6, s{S_T0}")
        a(f"s_mov_b32 s{S_T0}, {R8_OFF - 36*64}")
        a(f"v_lshl_add_u32 v{T1}, {ln}, 6, s{S_T0}")
        a(f"v_lshrrev_b32 v{T2}, 2, {ln}")
        a(f"v_cmp_gt_u32 vcc, 36, {ln}")
        a(f"v_lshlrev_b32 v{KB}, 11, v{T2}")
        a(f"v_subrev_u32 v{T2}, 9, v{T2}")
        a(f"v_lshlrev_b32 v{T2}, 12, v{T2}")
        a(f"v_cndmask_b32 v{T0}, v{T1}, v{T0}, vcc")
        a(f"v_cndmask_b32 v{KB}, v{T2}, v{KB}, vcc")
        a(f"s_lshl_b32 s{S_T0}, s{S_WAVE}, 12")
        a(f"s_add_u32 s{S_T0}, s{S_T0}, 0x8001")
        a(f"v_mov_b32 v{ONE}, 1")
        a(f"v_mov_b32 v{CM}, 0xf001")
        a(f"v_mov_b32 v{CV}, s{S_T0}")
        a(f"v_cndmask_b32 v{CM}, v{CM}, v{ONE}, vcc")
        a(f"v_cndmask_b32 v{CV}, v{CV}, v{ONE}, vcc")
        a(f"v_cndmask_b32 v{TM}, 0, 28, vcc")
        a(f"v_cndmask_b32 v{TBS}, 32, 0, vcc")
        a(f"v_add_u32 v{TBS}, s{SW}, v{TBS}")
        a(f"v_cmp_gt_u32 vcc, 56, {ln}")
        a(f"v_mov_b32 v{T1}, 0x40000000")
        a(f"s_lshr_b32 s{S_T0}, s2, 3")
        a(f"s_lshl_b32 s{S_T0}, s{S_T0}, 2")
        a(f"s_add_u32 s{S_T0}, s{S_T0}, s{S_WAVE}")
        a(f"s_mul_i32 s{S_T0}, s{S_T0}, 3072")
        a(f"v_cndmask_b32 v{T0}, v{T1}, v{T0}, vcc")
        a(f"v_lshl_add_u32 v{VWARM}, {ln}, 4, s{S_T0}")
        self.waddr(VA, VI8)
        a(f"v_and_b32 v{T2}, 15, {ln}")
        a(f"v_and_b32 v{T1}, 7, {ln}")
        a(f"v_lshlrev_b32 v{BM}, 1, v{T1}")
        a(f"v_lshlrev_b32 v{BM}, v{BM}, v{ONE}")
        a(f"v_lshlrev_b32 v{T1}, 4, v{T1}")
        a(f"v_lshl_add_u32 v{RX}, v{T2}, 7, v{T1}")
        a(f"v_lshl_or_b32 v{RX}, v{RX}, 16, v{RX}")
        a(f"v_lshrrev_b32 v{HI}, 5, {ln}")
        a(f"v_bfe_u32 v{AB}, {ln}, 3, 2")
        a(f"v_lshl_add_u32 v{AB}, v{AB}, 6, s{SW}")
        a(f"v_lshl_add_u32 v{VH}, {ln}, 1, s{SW}")
        a(f"v_lshrrev_b32 v{VK}, 4, {ln}")
        a(f"v_lshl_add_u32 v{VK}, v{VK}, 3, s{SW}")
        a(f"v_lshrrev_b32 v{LO}, 1, {ln}")
        a(f"v_lshlrev_b32 v{LO}, 5, v{LO}")
        a(f"s_mov_b32 s{S_LINK}, 0")
        pre = [f"buffer_load_dwordx4 {vr(E+4*r,4)}, v{T0}, {sr(S_WS,4)}, 0 offen offset:{16*r} {wl}" for r in range(4)]
        warm = [[f"buffer_load_dwordx4 {vr(WARM+4*r,4)}, v{VWARM}, {sr(S_WS,4)}, 0 offen offset:{1024*r} {wl}"] for r in range(3)] if o["warm"] else []
        C = []
        g = lambda *x: C.append(list(x))

        def rank(r):
            m = S_MASK + 2 * r
            return [f"v_and_b32 v{T1}, v{CM}, v{E+r}", f"v_lshrrev_b32 v{T0}, 10, v{E+r}", f"v_cmp_eq_u32 {sr(m,2)}, v{T1}, v{CV}",
                    f"v_and_or_b32 v{TT+r}, v{T0}, v{TM}, v{TBS}",
                    f"s_mov_b64 exec, {sr(m,2)}", f"ds_add_rtn_u32 v{RK+r}, v{TT+r}, v{ONE}", "s_mov_b64 exec, -1"]

        def place(r):
            m = S_MASK + 2 * r
            return [f"v_add_u32 v{T1}, v{RK+r}, v{ST+r}", f"v_and_b32 v{T0}, 0x87e, v{E+r}", f"v_lshl_add_u32 v{T1}, v{T1}, 1, s{SW}",
                    f"v_add_u32 v{T0}, v{KB}, v{T0}", f"s_andn2_b64 exec, {sr(m,2)}, {sr(S_BAD,2)}",
                    f"ds_write_b16_d16_hi v{T1}, v{E+r} offset:{O_X}", f"ds_write_b16 v{T1}, v{T0} offset:{O_K}",
                    f"ds_write_b16 v{T1}, v{E+r} offset:{O_M}", "s_mov_b64 exec, -1"]
        g("@WAIT_E")
        g(f"v_cmp_ne_u32 {sr(S_BAD,2)}, 0, v{E+15}", f"v_cmp_ne_u32 {sr(S_MORE,2)}, 0, v{E+8}")
        for r in range(8):
            g(*rank(r))
        g(f"s_cmp_lg_u64 {sr(S_MORE,2)}, 0", "s_cbranch_scc1 L_more1", "L_more1b:", f"ds_read_b32 v{T0}, v{VW}", f"v_mov_b32 v{T1}, 0")
        self.tailblocks.append("\n".join(["L_more1:"] + [x for r in range(8, 15) for x in rank(r)] + ["s_branch L_more1b"]))
        g("s_waitcnt lgkmcnt(0)", f"s_mov_b64 vcc, {sr(S_EVEN,2)}",
          f"v_cndmask_b32_dpp v{T1}, v{T0}, v{T1}, vcc quad_perm:[0,0,2,2] row_mask:0xf bank_mask:0xf",
          f"v_add_u32 v{VST}, v{LO}, v{T1}", f"v_add_u32 v{T1}, v{T0}, v{T1}", f"v_cmp_lt_u32 vcc, 32, v{T1}",
          f"s_or_b32 s{S_BAD}, s{S_BAD}, s{S_BAD+1}", f"s_and_b32 s{S_T0}, vcc_lo, 0x1ff", f"s_or_b32 s{S_T0}, s{S_T0}, s{S_BAD}",
          "s_cbranch_scc1 L_greedy", "L_greedyb:")
        x = ["L_greedy:", f"s_mov_b32 s{S_T0}, 0", f"s_mov_b32 s{S_LINK}, 1"]
        for t in range(9):
            lo = 32 * (t >> 1)
            x += [f"v_readlane_b32 s{S_T1}, v{T0}, {t}", f"s_max_u32 s{S_T0}, s{S_T0}, {lo}",
                  f"v_writelane_b32 v{VST}, s{S_T0}, {t}", "s_nop 1", f"s_add_u32 s{S_T0}, s{S_T0}, s{S_T1}",
                  f"s_cmp_gt_u32 s{S_T0}, {lo + (64 if t & 1 else 32)}", f"s_cselect_b32 s{S_BAD}, 1, s{S_BAD}"]
        x += [f"s_cmp_lg_u32 s{S_BAD}, 0", f"s_cselect_b64 {sr(S_BAD,2)}, -1, 0",
              f"v_mov_b32 v{T1}, {L_PL + 256}", f"s_mov_b64 exec, {sr(S_BAD,2)}", f"ds_write_b32 v{T1}, v{ONE}", "s_mov_b64 exec, -1",
              "s_branch L_greedyb"]
        self.tailblocks.append("\n".join(x))
        g(*[f"ds_bpermute_b32 v{ST+r}, v{TT+r}, v{VST}" for r in range(8)])
        for r in range(8):
            g(*([f"s_waitcnt lgkmcnt({(7, 9, 11, 13, 15, 15, 15, 15)[r] if r else 7})"] if r < 8 else []), *place(r))
        g(f"s_cmp_lg_u64 {sr(S_MORE,2)}, 0", "s_cbranch_scc1 L_more2", "L_more2b:",
          *[f"ds_read_u16 v{E+r}, v{VH} offset:{O_M+128*r}" for r in range(3)],
          *[f"ds_read2_b64 {vr(V_AD+4*j,4)}, v{VK} offset0:{(O_K+64*j)//8} offset1:{(O_K+64*j+32)//8}" for j in range(5)])
        self.tailblocks.append("\n".join(["L_more2:"] + [f"ds_bpermute_b32 v{ST+r}, v{TT+r}, v{VST}" for r in range(8, 15)] + ["s_waitcnt lgkmcnt(0)"]
                                         + [x for r in range(8, 15) for x in place(r)] + ["s_branch L_more2b"]))
        for r in range(3):
            g(*(["s_waitcnt lgkmcnt(5)"] if r == 0 else []),
              f"v_lshrrev_b32 v{T0}, 12, v{E+r}", f"v_cmp_ne_u32 vcc, 0, v{E+r}", f"v_min_u32 v{T0}, 8, v{T0}", f"v_add3_u32 v{T0}, v{T0}, v{HI}, {2*r}",
              f"v_lshlrev_b32 v{T1}, 4, v{T0}", f"v_lshrrev_b32 v{T0}, 1, v{T0}")
            g(f"v_lshlrev_b32 v{T1}, v{T1}, v{BM}", f"v_lshl_add_u32 v{T0}, v{T0}, 8, v{AB}", f"v_bfe_u32 v{T2}, v{E+r}, 7, 4",
              f"v_lshl_add_u32 v{T0}, v{T2}, 2, v{T0}", "s_mov_b64 exec, vcc", *(["s_mov_b32 exec_hi, 0"] if r == 2 else []),
              f"ds_xor_b32 v{T0}, v{T1} offset:{O_IDX}", "s_mov_b64 exec, -1")
        g(*[f"ds_read_b32 v{V_IR+r}, v{VW} offset:{O_IDX+256*r}" for r in range(7)])
        for j in range(5):
            g(*(["s_waitcnt lgkmcnt(10)"] if j == 0 else []), *[f"v_xor_b32 v{V_AD+4*j+q}, v{RX}, v{V_AD+4*j+q}" for q in range(4)])
        g(*self.bias_store())
        return pre, C, warm + self.wload_list(VA, VI8, o['peel'])

    def emit_build(self, pre, C, G):
        a = self.a
        for x in pre:
            a(x)
        nl = 0
        G = list(G)
        G0 = list(G)

        def load(n=1):
            nonlocal nl
            for _ in range(n):
                if G:
                    for x in G.pop(0):
                        a(x)
                    nl += 1
        acc = 0
        for grp in C:
            if grp[0] == "@WAIT_E":
                load(self.o["l0"])
                a(f"s_waitcnt vmcnt({nl})")
                continue
            if grp[0] in ("s_waitcnt lgkmcnt(0)", "s_waitcnt lgkmcnt(7)", "s_waitcnt lgkmcnt(5)"):
                load(self.o["lw"])
            for x in grp:
                a(x)
            acc += len(grp)
            while acc >= self.o["lper"]:
                acc -= self.o["lper"]
                load()
        if self.o["peel"]:
            self.issued, self.pending = G0[:len(G0) - len(G)], G
            return
        load(len(G) - self.o["ltail"])
        assert len(G) == self.o["ltail"]
        self.late_loads = [x for grp in G for x in grp]

    @staticmethod
    def regs(txt):
        k, body = txt[0], txt[1:].strip("[]")
        lo, hi = (body.split(":") + [body])[:2]
        return [(256 if k == "a" else 0) + r for r in range(int(lo), int(hi) + 1)]

    def emit_line(self, ops, vm):
        a = self.a
        lds, hist = [], []

        def put(op):
            a(op.text)
            hist.append(op)
        for op in ops:
            touched = op.rd | op.wr
            for q, name, cap in ((lds, "lgkmcnt", 15), (vm, "vmcnt", self.o["vcap"])):
                hit = [i for i, w in enumerate(q) if w & touched]
                if hit:
                    n = min(len(q) - 1 - hit[-1], cap)
                    put(Op(f"s_waitcnt {name}({n})", "salu"))
                    del q[:len(q) - n]
            need = 0
            for d, p in enumerate(reversed(hist[-9:])):
                ws = sum(int(x.text[6:]) + 1 if x.text.startswith("s_nop") else 1 for x in hist[len(hist) - d:])
                r = 0
                if p.kind == "mx" and op.kind != "mx" and (p.wr & touched):
                    r = 8
                if p.kind in ("valu", "dpp") and op.kind in ("mx", "dpp") and (p.wr & op.rd):
                    r = 2
                if p.kind == "st" and (p.rd & op.wr):
                    r = 2
                need = max(need, r - ws)
            if need > 0:
                put(Op(f"s_nop {need-1}", "salu"))
            put(op)
            if op.kind == "lds":
                lds.append(op.wr)
            if op.kind in ("ld", "st"):
                vm.append(op.wr)

    def peel(self):
        o = self.o
        AX = V_BR
        acc = lambda m, t: (AX if m == 0 else V_ACC) + 4 * t
        Ba, Bb, Bc, Bd = (V_B + 8 * k for k in range(4))
        dst = lambda g: set(self.regs(g[-1].split()[1].rstrip(",")))
        vm = [dst(g) for g in self.issued]
        loads = [[Op(x, "salu") for x in g[:-1]] + [Op(g[-1], "ld", wr=dst(g))] for g in self.pending]

        def M(m, s, t, b):
            ir, h = aidx(s, t)
            return Op(f"v_smfmac_f32_16x16x64_bf16 {vr(acc(m,t),4)}, {afrag(s,t)}, {vr(b,8)}, v{ir}" + (" abid:1" if h else ""), "mx",
                      rd=list(rng(acc(m, t), 4)) + list(rng(b, 8)) + self.regs(afrag(s, t)) + [ir], wr=rng(acc(m, t), 4))

        def R(m, j, t):
            c, b = j + t, (Bc, Bd)[m]
            return Op(f"v_smfmac_f32_16x16x64_bf16 {vr(acc(m,t),4)}, {vr(V_X,4)}, {vr(b,8)}, v{V_IR+(c>>1)}" + (" abid:1" if c & 1 else ""), "mx",
                      rd=list(rng(acc(m, t), 4)) + list(rng(b, 8)) + list(rng(V_X, 4)), wr=rng(acc(m, t), 4))

        def B(m, s, b):
            return [Op(f"ds_read_b128 {vr(b+4*h,4)}, v{V_RD0+h} offset:{2048*s+TBL*m}", "lds", rd=[V_RD0 + h], wr=rng(b + 4 * h, 4)) for h in range(2)]

        def addr(j, b, r, base):
            ad = V_AD + 4 * j + (b >> 1)
            return Op(f"v_add_u32_sdwa v{r}, s{base}, v{ad} dst_sel:DWORD dst_unused:UNUSED_PAD src0_sel:DWORD src1_sel:WORD_{b&1}", "valu", rd=[ad], wr=[r])
        ops = [Op(f"ds_read_b32 v{V_X}, v{V_X}", "lds", rd=[V_X], wr=[V_X])] + B(0, 0, Ba)
        for m in range(2):
            ops += [Op(f"ds_read_b128 {vr(acc(m,t),4)}, v{V_TAB} offset:{O_BIAS+64*t}", "lds", rd=[V_TAB], wr=rng(acc(m, t), 4)) for t in range(9)]
            ops += loads.pop(0)
        ops += [Op(f"v_readfirstlane_b32 s{S_T0}, v{V_X}", "valu", rd=[V_X]), addr(0, 0, Bc, S_BUF), Op("s_nop 2", "salu"),
                Op(f"s_cmp_lg_u32 s{S_T0}, 0", "salu"), Op("s_cbranch_scc1 L_slow", "salu")]
        ngap = 126 + 26
        rho, credit = len(loads) / (ngap - o["ptail"]), 0.0

        def gap(mx, D=(), V=()):
            nonlocal credit
            ops.append(mx)
            credit += rho
            while credit >= 1 and loads:
                credit -= 1
                ops.extend(loads.pop(0))
            ops.extend(D)
            ops.extend(V)
        for s in range(7):
            for t in range(9):
                D, V = [], []
                if t == 0:
                    D += B(1, s, Bb)
                if s < 5:
                    if t == 8:
                        D.append(Op(f"ds_read_b128 {vr(V_X,4)}, v{V_TAB} offset:{O_X+64*s}", "lds", rd=[V_TAB], wr=rng(V_X, 4)))
                    else:
                        D += [Op(f"ds_read_u16 v{Bd+t}, v{Bc+t} offset:{TBL}", "lds", rd=[Bc + t], wr=[Bd + t]),
                              Op(f"ds_read_u16 v{Bc+t}, v{Bc+t}", "lds", rd=[Bc + t], wr=[Bc + t])]
                        if t < 7:
                            V.append(addr(s, t + 1, Bc + t + 1, S_BUF))
                elif t in (2, 3):
                    D.append(B(1, s + 2, Bc if s == 5 else Bd)[t - 2])
                gap(M(0, s, t, Ba), D, V)
            for t in range(9):
                gap(M(1, s, t, Bb), B(0, s + 1, Ba)[t:t + 1] if t < 2 else [])
            if s < 5:
                rs = [R(m, s, t) for m in (1, 0) for t in RT[s]]
                for n, x in enumerate(rs):
                    gap(x, [], [addr(s + 1, 0, Bc, S_BUF)] if n == len(rs) - 1 and s < 4 else [])
        assert not loads
        ops += B(0, 8, Bb)
        pk = lambda t, h: (AX + 32 + h) if t == 8 else AX + 2 * t + h
        cvt = lambda t: [Op(f"v_cvt_pk_bf16_f32 v{pk(t,h)}, v{acc(0,t)+2*h}, v{acc(0,t)+2*h+1}", "valu",
                            rd=[acc(0, t) + 2 * h, acc(0, t) + 2 * h + 1], wr=[pk(t, h)]) for h in range(2)]
        dpp = "quad_perm:[1,0,3,2] row_mask:0xf bank_mask:0xf"
        stp = o["st"] if o["stp"] is None else o["stp"]

        def exch(v):
            p0, p1, d0 = AX + 8 * v, AX + 8 * v + 4, (V_X, AX + 16)[v]
            x = []
            for half in range(2):
                for d in range(4):
                    if half == 0:
                        x.append(Op(f"v_cndmask_b32_dpp v{d0+d}, v{p1+d}, v{p0+d}, vcc {dpp}", "dpp", rd=[p0 + d, p1 + d], wr=[d0 + d]))
                    else:
                        x.append(Op(f"v_cndmask_b32_dpp v{p1+d}, v{p0+d}, v{p1+d}, vcc {dpp}", "dpp", rd=[p0 + d, p1 + d], wr=[p1 + d]))
                src = d0 if half == 0 else p1
                fl = stp[2 * v + half] if isinstance(stp, (tuple, list)) else stp
                x += [Op(f"buffer_store_dwordx4 {vr(src,4)}, v{V_ST}, {sr(S_OUT,4)}, s{S_OOFF} offen offset:{1152*half+128*v} {fl}", "st",
                         rd=list(rng(src, 4)) + [V_ST]), Op(f"s_mov_b64 vcc, {sr((S_ODD, S_EVEN)[half],2)}", "salu")]
            return x
        p8 = pk(8, 0)
        rdadv = [Op(f"v_add_u32 v{V_RD0+h}, {2*TBL}, v{V_RD0+h}", "valu", rd=[V_RD0 + h], wr=[V_RD0 + h]) for h in range(2)]
        after = {0: rdadv,
                 1: [Op(f"ds_bpermute_b32 v{p8+h}, v{V_BP}, v{p8+h}", "lds", rd=[V_BP, p8 + h], wr=[p8 + h]) for h in range(2)] if o["bperm"] else [],
                 3: [Op(f"buffer_store_dwordx2 {vr(p8,2)}, v{V_ST8}, {sr(S_OUT,4)}, s{S_OOFF} offen {o['st8']}", "st", rd=[p8, p8 + 1, V_ST8])],
                 5: exch(0)[:6], 6: exch(0)[6:], 7: [addr(0, b, V_BR + b, S_BUFN) for b in range(4)],
                 8: [addr(0, b, V_BR + b, S_BUFN) for b in range(4, 8)]}
        for n, t in enumerate(PEEL_T):
            ops += [M(0, 7, t, Ba), M(0, 8, t, Bb)]
            if n:
                ops += cvt(PEEL_T[n - 1])
            ops += after.get(n, [])
        ops += cvt(PEEL_T[-1]) + exch(1)
        self.emit_line(ops, vm)

    def slow_path(self, K):
        a = self.a
        o = self.o
        VA, VI8 = 104, 106
        a("L_slow:")
        a("s_waitcnt vmcnt(0) lgkmcnt(0)")
        a(f"s_mov_b32 s{S_MODE}, 0")
        a("L_sm:")
        a(f"s_lshl_b32 s{S_BASE}, s2, 1")
        a(f"s_add_u32 s{S_BASE}, s{S_BASE}, s{S_MODE}")
        a(f"s_add_u32 s{S_BASE}, s{S_BASE}, 1")
        a(f"s_mul_i32 s{S_BASE}, s{S_BASE}, {COPY}")
        a(f"s_mov_b32 s{S_TASK}, 0")
        a("L_st:")
        self.producer("g", True)
        a(f"s_add_u32 s{S_TASK}, s{S_TASK}, 1")
        a(f"s_cmp_lt_u32 s{S_TASK}, {NTASK}")
        a("s_cbranch_scc1 L_st")
        a(f"s_add_u32 s{S_MODE}, s{S_MODE}, 1")
        a(f"s_cmp_lt_u32 s{S_MODE}, 2")
        a("s_cbranch_scc1 L_sm")
        self.lane_setup()
        self.dma_setup()
        a(f"s_mov_b32 s{S_OUT+2}, {XBYTES}")
        a(f"s_mov_b32 s{S_X+2}, {XBYTES}")
        a(f"s_mov_b32 s{S_IT}, 0")
        a("L_stile:")
        a("s_barrier")
        self.dma_tile()
        for t in range(9):
            a(f"ds_read_b128 {vr(V_ACC+4*t,4)}, v{V_TAB} offset:{O_BIAS+64*t}")
        a(f"s_mov_b32 s{S_MODE}, 0")
        a("L_spass:")
        a(f"s_lshl_b32 s{S_BASE}, s2, 1")
        a(f"s_add_u32 s{S_BASE}, s{S_BASE}, s{S_MODE}")
        a(f"s_add_u32 s{S_BASE}, s{S_BASE}, 1")
        a(f"s_mul_i32 s{S_BASE}, s{S_BASE}, {COPY}")
        self.waddr(VA, VI8)
        for grp in self.wload_list(VA, VI8):
            for x in grp:
                a(x)
        a("s_waitcnt vmcnt(0)")
        a("s_barrier")
        for s in range(9):
            a(f"ds_read_b128 {vr(V_B,4)}, v{V_RD0} offset:{2048*s}")
            a(f"ds_read_b128 {vr(V_B+4,4)}, v{V_RD1} offset:{2048*s}")
            a("s_waitcnt lgkmcnt(0)")
            for t in range(9):
                ir, h = aidx(s, t)
                a(f"v_smfmac_f32_16x16x64_bf16 {vr(V_ACC+4*t,4)}, {afrag(s,t)}, {vr(V_B,8)}, v{ir}" + (" abid:1" if h else ""))
            a("s_nop 7")
        a(f"s_add_u32 s{S_MODE}, s{S_MODE}, 1")
        a(f"s_cmp_lt_u32 s{S_MODE}, 2")
        a("s_cbranch_scc1 L_spass")
        for t in range(7):
            for h in range(2):
                a(f"v_cvt_pk_bf16_f32 v{V_P+2*t+h}, v{V_ACC+4*t+2*h}, v{V_ACC+4*t+2*h+1}")
        a(f"s_mov_b64 vcc, {sr(S_EVEN,2)}")
        self.emit_epi(self.assemble_loop(False, "")[2])
        for r in (S_XOFF, S_XOFF5, S_OOFF):
            a(f"s_add_u32 s{r}, s{r}, s{S_XINC}")
        a(f"s_mov_b32 s{S_XINC}, {256*TB}")
        a(f"s_add_u32 s{S_IT}, s{S_IT}, 1")
        a(f"s_cmp_lt_u32 s{S_IT}, s{S_NT}")
        a("s_cbranch_scc1 L_stile")
        a("s_branch L_fin")

    def loop_ops(self, links, dma, clm=False):
        o = self.o
        acc = lambda t: rng(V_ACC + 4 * t, 4)
        ch = o["chain"]
        bb = lambda s: V_P if (ch and s == 6) else V_B + 8 * BBUF[s]
        RBUF = [V_BR, V_BR + 8, V_BR, V_P + 8 if ch else V_P, V_BR + 8]
        rt = RT if links else [[0, 1], [2, 3], [4, 5], [6, 7], [8]]
        ng = [8, 8, 8, 8, 8 if links else o["ng4"]]

        def M(s, t):
            ir, h = aidx(s, t)
            return Op(f"v_smfmac_f32_16x16x64_bf16 {vr(V_ACC+4*t,4)}, {afrag(s,t)}, {vr(bb(s),8)}, v{ir}" + (" abid:1" if h else ""),
                      "mx", rd=list(acc(t)) + list(rng(bb(s), 8)), wr=acc(t), tag=("M", s, t))

        def R(j, t):
            c = j + t
            return Op(f"v_smfmac_f32_16x16x64_bf16 {vr(V_ACC+4*t,4)}, {vr(V_X,4)}, {vr(RBUF[j],8)}, v{V_IR+(c>>1)}" + (" abid:1" if c & 1 else ""),
                      "mx", rd=list(acc(t)) + list(rng(RBUF[j], 8)) + list(rng(V_X, 4)), wr=acc(t), tag=("R", j, t))
        seq = []
        for t in range(9):
            seq += [M(0, t), M(1, t)]
        if ch:
            for steps, order, rs in (((2, 3), o["ord1"], (0, 1)), ((4, 5, 6), o["ord2"], (2, 3, 4))):
                for n, t in enumerate(order):
                    seq += [M(s, t) for s in steps]
                    if t // 2 in rs and t % 2 == 0:
                        j = t // 2
                        assert t == 8 or order[n + 1] == t + 1
                        seq += [R(j, t)] + ([R(j, t - 1)] if links and j else []) + ([R(j, t + 1)] if t < 8 else [])
        else:
            for s in range(2, 7):
                seq += [M(s, t) for t in range(9)]
        for t in range(9):
            seq += [M(7, t), M(8, t)]
        if ch:
            rpos = [min(i for i, x in enumerate(seq) if x.tag[:2] == ("R", j)) for j in range(5)]
        else:
            rpos = list(o["rposl"] if links else o["rpos"])
            for j in range(5):
                for n, t in enumerate(rt[j]):
                    seq.insert(rpos[j] + n, R(j, t))
        N = len(seq)
        pos = {x.tag: i for i, x in enumerate(seq)}
        BAR = rpos[4] + len(rt[4]) - 1
        c0 = N - 15 - BAR
        assert c0 == (4 if ch else 0)
        self.drain = rpos[4] - 1
        T = lambda g: (g - BAR - 1) % N
        first = lambda s: T(min(pos[("M", s, t)] for t in range(9)))
        lastu = lambda s: max(pos[("M", s, t)] for t in range(9))
        LEAD = o["lead"]
        ST = [[] for _ in range(N)]
        S = [[] for _ in range(N)]
        D = [[] for _ in range(N)]
        V = [[] for _ in range(N)]
        keep = lambda op: (dma or op.tag != "dma") and (clm or op.tag != "clm") and not any(d in op.text for d in o["drop"])

        def pdst(t, h):
            return V_P8 + h if t == 8 else V_P + 2 * t + h
        dq, vq = [], []
        for t in range(9):
            for h in range(2):
                V[c0 + 2 * t + h].append(Op(f"v_cvt_pk_bf16_f32 v{pdst(t,h)}, v{V_ACC+4*t+2*h}, v{V_ACC+4*t+2*h+1}", "valu",
                                       rd=[V_ACC + 4 * t + 2 * h, V_ACC + 4 * t + 2 * h + 1], wr=[pdst(t, h)], tag="epi"))
            dq.append([Op(f"ds_read_b128 {vr(V_ACC+4*t,4)}, v{V_TAB} offset:{O_BIAS+64*t}", "lds", rd=[V_TAB], wr=acc(t), tag="pre"),
                       c0 + 2 * t + 2, c0 + 2 * t + 2, None])
        def stf(e):
            f = o["stc"] if clm else (o["st"] if dma else o["stn"])
            f = o["st"] if f is None else f
            return f[e] if isinstance(f, (tuple, list)) else f
        dpp = "quad_perm:[1,0,3,2] row_mask:0xf bank_mask:0xf"
        stg = [T(g) for g in o["stg"]]
        for v in range(2):
            p0, p1 = V_P + 8 * v, V_P + 8 * v + 4
            d0 = V_T if v == 0 else V_P
            for half in range(2):
                e = 2 * v + half
                for d in range(4):
                    if half == 0:
                        op = Op(f"v_cndmask_b32_dpp v{d0+d}, v{p1+d}, v{p0+d}, vcc {dpp}", "dpp", rd=[p0 + d, p1 + d], wr=[d0 + d], tag="epi")
                    else:
                        op = Op(f"v_cndmask_b32_dpp v{p1+d}, v{p0+d}, v{p1+d}, vcc {dpp}", "dpp", rd=[p0 + d, p1 + d], wr=[p1 + d], tag="epi")
                    vq.append([op, stg[e - 1] if e else c0 + 18, stg[e] - 4 + d, None])
                src = d0 if half == 0 else p1
                ST[stg[e]].append(Op(f"buffer_store_dwordx4 {vr(src,4)}, v{V_ST}, {sr(S_OUT,4)}, s{S_OOFF} offen offset:{1152*half+128*v} {stf(e)}",
                                     "st", rd=list(rng(src, 4)) + [V_ST], tag="epi"))
                ST[stg[e]].append(Op(f"s_mov_b64 vcc, {sr((S_ODD, S_EVEN)[half],2)}", "salu", tag="epi"))
        if o["bperm"]:
            for h in range(2):
                dq.append([Op(f"ds_bpermute_b32 v{V_P8+h}, v{V_BP}, v{V_P8+h}", "lds", rd=[V_BP, V_P8 + h], wr=[V_P8 + h], tag="epi"),
                           c0 + 18, stg[4] - LEAD - 2 + h, None])
        ST[stg[4]].append(Op(f"buffer_store_dwordx2 {vr(V_P8,2)}, v{V_ST8}, {sr(S_OUT,4)}, s{S_OOFF} offen {o['st8']}", "st",
                             rd=[V_P8, V_P8 + 1, V_ST8], tag="epi"))
        rl = lambda j: T(rpos[j] + len(rt[j]) - 1)
        free = [rl(2), 1, rl(0), stg[3 if ch else 2] + 1, rl(1)]
        for j in range(5):
            dl = T(rpos[j]) - LEAD - 1
            for b in range(ng[j]):
                r = RBUF[j] + b
                ad = V_AD + 4 * j + (b >> 1)
                av = Op(f"v_add_u32_sdwa v{r}, s{S_BUFN if j == 0 else S_BUF}, v{ad} dst_sel:DWORD dst_unused:UNUSED_PAD src0_sel:DWORD src1_sel:WORD_{b&1}",
                        "valu", rd=[ad], wr=[r], tag="pre" if j == 0 else "")
                gd = dl - o["gsp"] * (ng[j] - 1 - b)
                vq.append([av, free[j], (N - 2 - (7 - b)) if j == 0 else gd - 1, None])
                dq.append([Op(f"ds_read_u16 v{r}, v{r}", "lds", rd=[r], wr=[r], tag="pre"), 0, gd, None if j == 0 else av])
            dq.append([Op(f"ds_read_b128 {vr(V_X,4)}, v{V_TAB} offset:{O_X+64*j}", "lds", rd=[V_TAB], wr=rng(V_X, 4), tag="pre"),
                       0 if j == 0 else rl(j - 1), dl, None])
        prev = {0: None, 1: None, 2: 7, 3: 8, 4: 0, 5: 1, 6: 4, 7: 2, 8: 3}
        lastb = []
        for s in range(9):
            for h in range(2):
                op = Op(f"ds_read_b128 {vr(bb(s)+4*h,4)}, v{(V_RD0, V_RD1)[h]} offset:{2048*s}", "lds",
                        rd=[(V_RD0, V_RD1)[h]], wr=rng(bb(s) + 4 * h, 4), tag="pre")
                fs = first(s) if s < 7 else (T(rpos[4]) - 2 * (9 - s) if ch else T(pos[("M", s, 0)]))
                rel = 0 if prev[s] is None else T(lastu(prev[s]))
                if ch and s == 6:
                    rel = stg[2] + 1
                dq.append([op, rel, fs - LEAD - 2 + h, None])
                lastb.append(op)
        for h in range(2):
            vq.append([Op(f"v_add_u32 v{V_RD0+h}, s{S_DELTA}, v{V_RD0+h}", "valu", rd=[V_RD0 + h], wr=[V_RD0 + h]), 0, N - 2, lastb])
        sq = []
        dmag = [g + (self.drain - 70) * (g > 50) for g in o["dmag"]]
        assert all(b - a_ >= 2 for a_, b in zip(dmag, dmag[1:]))
        if not o["nodma"]:
            for j, g in enumerate(dmag):
                g = T(g)
                ld = f"buffer_load_dwordx4 v{V_DMA}, {sr(S_X,4)}, s{S_XOFF if j < 4 else S_XOFF5} offen offset:{256*j if j < 4 else 896} {o['ld']} lds"
                if j < 4:
                    D[g].append(Op(ld, "dma", rd=[V_DMA], tag="dma"))
                    S[g - 1].append(Op(f"s_add_u32 m0, s{S_M0B}, {3840*j}", "salu", tag="dma"))
                else:
                    D[g] += [Op(f"s_mov_b64 exec, {sr(S_HALF,2)}", "salu", tag="dma"), Op(ld, "dma", rd=[V_DMA], tag="dma"),
                             Op("s_mov_b64 exec, -1", "salu", tag="dma")]
                    S[g - 1].append(Op(f"s_add_u32 m0, s{S_M0B}, s{S_M05}", "salu", tag="dma"))
                    V[g] = None
        XV = [[] for _ in range(N)]
        if self.dyn:
            gl = T(o["mbg"] + self.drain - 70) - 1
            XV[T(0)].append(Op(f"v_mov_b32 v{V_C}, 1", "valu", wr=[V_C], tag="clm"))
            D[T(1)].append(Op(f"buffer_atomic_add v{V_C}, v{V_BP}, {sr(S_B,4)}, 0 offen sc0 sc1", "dma", rd=[V_BP], tag="clm"))
            assert not D[gl + 1] and not S[gl + 1] and max(stg) <= gl
            S[gl + 1].append(Op(f"s_waitcnt vmcnt({5 + sum(1 for g in dmag if T(g) <= gl)})", "salu", tag="clm"))
            D[gl + 1] += [Op(f"s_mov_b64 exec, {sr(S_W0,2)}", "salu", tag="clm"),
                          Op(f"ds_write_b32 v{V_RD0}, v{V_C} offset:{TB}", "lds", rd=[V_RD0], tag="clm"), Op("s_mov_b64 exec, -1", "salu", tag="clm")]
            V[gl + 1] = None
            D[0].append(Op(f"ds_read_b32 v{V_C}, v{V_RD0} offset:{TB}", "lds", rd=[V_RD0], wr=[V_C], tag="clm"))
            XV[LEAD + 1].append(Op(f"v_readfirstlane_b32 s{S_CL}, v{V_C}", "valu", rd=[V_C], tag="clm"))
        placed = {}
        for g in range(N - 1):
            if not D[g] and g != T(N - 1):
                c = [x for x in dq if x[1] <= g and (x[3] is None or placed.get(id(x[3]), N) < g) and x[2] - g <= o["eager"]]
                if c:
                    x = min(c, key=lambda x: x[2])
                    dq.remove(x)
                    D[g].append(x[0])
                    placed[id(x[0])] = g
                    if g > x[2] and o["verbose"]:
                        print("; late D", g - x[2], x[0].text, file=sys.stderr)
            if V[g] is None:
                V[g] = []
                continue
            cap = 2 if (ST[g] and "x4" in ST[g][0].text) else 1
            while len(V[g]) < cap:
                c = [x for x in vq if x[1] <= g and (x[3] is None or all(placed.get(id(y), N) <= g for y in x[3]))]
                if not c:
                    break
                x = min(c, key=lambda x: x[2])
                vq.remove(x)
                V[g].append(x[0])
                placed[id(x[0])] = g
                assert g <= x[2] or x[0].kind != "dpp", ("late", x[0].text)
        assert not dq and not vq, ([x[0].text for x in dq], [x[0].text for x in vq])
        for g in range(N):
            V[g] += XV[g]
        if self.dyn:
            rdup = max(placed[id(x)] for gl_ in V for x in gl_ if id(x) in placed and f"s{S_DELTA}," in x.text)
            assert rdup <= gl and gl + 1 < T(self.drain) and T(min(o["stg"])) > T(1)
        S[N - 1] += ([] if clm else [Op(f"s_waitcnt vmcnt({o['vmw']})", "salu")]) + [Op("s_barrier", "bar")]
        lastdma = T(dmag[4])
        la = max(placed[id(x)] for gl in V for x in gl if id(x) in placed and f"s{S_BUF}," in x.text)
        fn = min(placed[id(x)] for gl in V for x in gl if id(x) in placed and (f"s{S_BUFN}," in x.text or f"s{S_DELTA}," in x.text))
        sq = [([f"s_mov_b32 s{S_BUF}, s{S_BUFN}"], 0, 0),
              ([f"s_cmp_eq_u32 s{S_BUFN}, {(NB-1)*TBL}", f"s_cselect_b32 s{S_DELTA}, {-(NB-1)*TBL}, s{S_CTB}", f"s_add_u32 s{S_BUFN}, s{S_BUFN}, s{S_DELTA}"], c0 + 18, fn),
              ]
        if self.dyn:
            LK = self.dyn[1]
            sq.append((([] if clm else [f"s_mov_b32 s{S_OUT+2}, {XBYTES}"]) + [f"s_mov_b32 s{S_OOFF}, s{S_Q}"]
                       + [f"s_mov_b32 s{S_Q+k}, s{S_Q+k+1}" for k in range(LK - 1)]
                       + [f"s_mov_b32 s{S_Q+LK-1}, s{S_XOFF}" if clm else f"s_add_u32 s{S_Q+LK-1}, s{S_Q+LK-1}, {256*TB}"], stg[4] + 1, N - 2))
        else:
            sq.append(([f"s_mov_b32 s{S_OUT+2}, {XBYTES}", f"s_add_u32 s{S_OOFF}, s{S_OOFF}, s{S_OINC}", f"s_mov_b32 s{S_OINC}, s{S_OINC2}",
                        f"s_mov_b32 s{S_OINC2}, {256*TB}"], stg[4] + 1, N - 2))
        if not clm or o["trace"]:
            sq.append(([f"s_add_u32 s{S_IT}, s{S_IT}, 1"], c0 + 18, N - 2))
        if clm:
            ps = o["psh"]
            sq += [([f"s_add_u32 s{S_XOFF5}, s{S_XOFF}, s{S_K5}"], c0 + 18, lastdma - 2),
                   (self.dma_advance()[2:], lastdma + 1, N + 8),
                   ([f"s_lshr_b32 s{S_CT}, s{S_CL}, {ps}", f"s_mul_i32 s{S_CT}, s{S_CT}, {(256 - (1 << ps))*TB}", f"s_mul_i32 s{S_CT+1}, s{S_CL}, {TB}",
                     f"s_add_u32 s{S_CT}, s{S_CT}, s{S_CB}", f"s_add_u32 s{S_XOFF}, s{S_CT}, s{S_CT+1}"], LEAD + 2, T(N - 1) - 2),
                   ([f"s_cmp_lt_u32 s{S_CL}, {(16 - self.dyn[0]) << ps}"], T(N - 1) - 1, T(N - 1) - 1)]
        else:
            if dma:
                sq += [(self.dma_advance(), lastdma + 1, N + 12)]
            sq.append(([f"s_bitcmp1_b32 s{S_DMASK if dma else S_NMASK}, s{S_IT}"], T(N - 1) - 1, T(N - 1) - 1))
        G = lambda A: [[x for x in A[T(g)] if keep(x)] for g in range(N)]
        return seq, G(ST), G(S), G(D), G(V), [(x, (lo + BAR + 1), (hi + BAR + 1)) for x, lo, hi in sq], BAR

    def assemble_loop(self, links, label, dma=True, clm=False):
        seq, ST, S, D, V, sq, BAR = self.loop_ops(links, dma, clm)
        N = len(seq)
        flat = []
        for rep in range(2):
            for g in range(N):
                a0 = rep * N + g
                flat.append((seq[g], a0 - 1))
                for x in ST[g]:
                    flat.append((x, a0 - 1))
                for x in D[g] + V[g]:
                    flat.append((x, a0))
        gap_of = {}
        k = 0
        lds = []
        for rep in range(2):
            for g in range(N):
                k += 1 + len(ST[g])
                for x in D[g] + V[g]:
                    if x.kind == "lds":
                        lds.append((k, rep * N + g))
                    k += 1
        done = -1
        W = {}
        minlead = 99
        for i, (op, wg) in enumerate(flat):
            touched = op.rd | op.wr
            need = -1
            for n, (k, g) in enumerate(lds):
                if k < i and n > done and (flat[k][0].wr & touched):
                    need = n
            if need >= 0:
                assert lds[need][1] < wg
                issued = [n for n, (k, g) in enumerate(lds) if g < wg]
                cnt = min(issued[-1] - need, 15)
                done = issued[-1] - cnt
                if wg >= N - 1 and wg < 2 * N - 1:
                    W[wg % N] = min(cnt, W.get(wg % N, 99))
                    if self.o["verbose"]:
                        print(f"; wait gap {wg % N} cnt {cnt} lead {wg - lds[need][1]} for {flat[lds[need][0]][0].text}", file=sys.stderr)
        W[self.drain] = 0
        if clm:
            mb = [g for g in range(N) if any("ds_write" in x.text for x in D[g])][0]
            assert not [g for g in W if mb < g < self.drain]
        for g, c in W.items():
            S[g].insert(0, Op(f"s_waitcnt lgkmcnt({c})", "salu"))
        if not self.o["drop"]:
            last = max(g for g in range(BAR + 1) if any(x.kind == "lds" for x in D[g]))
            assert any(W.get(g) == 0 for g in range(last + 1, BAR + 1)), "tile reads not drained at the barrier"

        def room(g, extra=0, resv=True):
            g %= N
            if g == BAR or g == N - 1 or any(x.kind == "dma" for x in D[g]):
                return False
            cap = 1 if D[g] else (2 if V[g] else 3)
            if label and not clm and resv:
                if g == self.drain - 1:
                    return False
                cap -= g == self.drain - 2
            return len(S[g]) + extra < cap and not ST[g]
        sccfree = lambda x: x.text.startswith(("s_waitcnt", "s_mov", "s_barrier"))
        locked = set()
        for texts, lo, hi in sq:
            g = lo
            n = 0
            while n < len(texts):
                chain = [texts[n]]
                if texts[n].startswith(("s_cmp", "s_bitcmp")):
                    while n + len(chain) < len(texts) and texts[n + len(chain)].startswith("s_cselect"):
                        chain.append(texts[n + len(chain)])
                while True:
                    assert g <= hi, ("no room", chain)
                    where, z = [], g
                    ok = room(g) and ((g % N) not in locked or chain[0].startswith("s_mov"))
                    cnt = {}
                    for k, tx in enumerate(chain):
                        while ok and not room(z, cnt.get(z, 0)):
                            z += 1
                            ok = z <= hi and all(sccfree(x) for x in S[z % N]) and (clm or z % N != self.drain - 1)
                        where.append(z)
                        cnt[z] = cnt.get(z, 0) + 1
                    if ok:
                        break
                    g += 1
                for z, tx in zip(where, chain):
                    S[z % N].append(Op(tx, "salu"))
                if len(chain) > 1:
                    locked.update(z % N for z in range(where[0], where[-1]))
                g = where[-1]
                n += len(chain)
        assert all(sccfree(x) for x in S[N - 1])
        if label and not clm:
            gz = self.drain - (2 if self.o["trace"] else 1)
            assert self.o["chain"] and (self.o["trace"] or (not (S[gz] or D[gz] or V[gz] or ST[gz]) and room(gz - 1, 0, False) and (gz - 1) not in locked))
            assert all(x.kind not in ("dma", "st") for g in range(gz, N) for x in D[g] + ST[g]) and max(self.o["stg"]) < min(self.o["dmag"])
            S[gz - (0 if self.o["trace"] else 1)].append(Op(f"s_bitcmp1_b32 s{S_WMASK}, s{S_IT}", "salu"))
            S[gz] += [Op(f"s_cbranch_scc1 {label}_w", "salu"), Op(f"{label}_wb:", "label")]
            self.tailblocks.append(f"{label}_w:\ns_bitcmp1_b32 s{S_WMASK2}, s{S_IT}\ns_waitcnt vmcnt({self.whi})\n"
                                   f"s_cbranch_scc0 {label}_wb\ns_waitcnt vmcnt({self.wlo})\ns_branch {label}_wb")
        if self.o["trace"]:
            g0 = max(g for g, c in W.items() if c == 0 and g <= BAR)
            S[g0 - 1] += [Op("s_memrealtime s[98:99]", "salu"), Op("s_memtime s[96:97]", "salu"), Op(f"s_add_u32 s95, s{S_IT}, 32", "salu")]
            V[g0] += [Op(f"s_mov_b32 m0, s{S_IT}", "salu"), Op("v_writelane_b32 v254, s98, m0", "salu"), Op("s_mov_b32 m0, s95", "salu"), Op("v_writelane_b32 v254, s96, m0", "salu")]
        body = []
        for g in range(N):
            body += [seq[g]] + ST[g] + S[g] + D[g] + V[g]
            if self.o["pad"] and g % self.o["pad"] == 0 and g < N - 2:
                body.append(Op("s_nop 3", "salu"))
        body.append(Op(f"s_cbranch_scc1 {label}", "salu"))
        if not self.o["drop"]:
            real = [x for x in body if x.kind != "label"]
            m = len(real)
            for i, op in enumerate(real):
                for d in range(1, 10):
                    p = real[(i - d) % m]
                    ws = d - 1
                    if p.kind == "mx" and op.kind != "mx" and (p.wr & (op.rd | op.wr)):
                        assert ws >= 8, ("mx->x", p.text, op.text, ws)
                    if p.kind in ("valu", "dpp") and op.kind == "mx" and (p.wr & op.rd):
                        assert ws >= 2, ("valu->mx", p.text, op.text, ws)
                    if p.kind in ("valu", "dpp") and op.kind == "dpp" and (p.wr & op.rd):
                        assert ws >= 2, ("valu->dpp", p.text, op.text, ws)
                    if p.kind == "st" and (p.rd & op.wr):
                        assert ws >= 2, ("st war", p.text, op.text, ws)
        pro = [x for g in range(N) for x in V[g] if x.tag == "pre" or (g > BAR and "sdwa" in x.text)] \
            + [x for g in range(BAR + 1, N) for x in D[g] if x.tag == "pre"]
        epi = [x for g in range(BAR) for x in ST[g] + D[g] + V[g] if x.tag == "epi"]
        return pro, body, epi

    def emit_epi(self, epi):
        a = self.a
        a("s_nop 7")
        for op in epi:
            if op.kind in ("dpp", "lds"):
                a("s_nop 1")
            if op.kind == "st":
                a("s_waitcnt lgkmcnt(0)")
            a(op.text)
            if op.kind == "st":
                a("s_nop 1")

    def main_loop(self, links, sfx):
        a = self.a
        pro, body, epi = self.assemble_loop(links, "L_loop" + sfx)
        if not self.o["peel"]:
            late = list(self.late_loads)
            for n, op in enumerate(pro):
                a(op.text)
                if n % 6 == 5:
                    while late and not late[0].startswith("buffer"):
                        a(late.pop(0))
                    if late:
                        a(late.pop(0))
            for x in late[:8]:
                a(x)
            a("s_waitcnt lgkmcnt(0)")
            a(f"v_readfirstlane_b32 s{S_T0}, v{V_T}")
            a("s_nop 3")
            a(f"s_cmp_lg_u32 s{S_T0}, 0")
            a("s_cbranch_scc1 L_slow")
            for x in late[8:]:
                a(x)
            if max(p[1] for p in self.pol):
                self.prefetch(24, "L_pf2" + sfx)
            for x in self.dma_advance(first=True):
                a(x)
            a(f"s_waitcnt vmcnt({(20 if self.o['early'] else 0) + 5 * self.n2min})")
            self.stamp(5)
            a(f"s_bitcmp1_b32 s{S_DMASK}, 0")
            a(f"s_cbranch_scc0 L_loopn{sfx}")
        a(".p2align 6")
        a(f"L_loop{sfx}:")
        for op in body:
            a(op.text)
        if self.o["wbl2"] is not None:
            a(f"s_lshr_b32 s{S_T0}, s2, 3")
            a(f"s_and_b32 s{S_T0}, s{S_T0}, {self.o['wbl2']}")
            a(f"s_or_b32 s{S_T0}, s{S_T0}, s{S_WAVE}")
            a(f"s_cbranch_scc1 L_loopn{sfx}")
            a("buffer_wbl2 sc1")
        if self.dyn:
            LK = self.dyn[1]
            a(f"s_cmp_lg_u32 s{S_IT}, {self.cl0}")
            a(f"s_cbranch_scc1 L_loopn{sfx}")
            a(".p2align 3")
            a(f"L_loopc{sfx}:")
            for op in self.assemble_loop(links, "L_loopc" + sfx, True, True)[1]:
                a(op.text)
            if self.o["trace"]:
                a(f"s_add_u32 s{S_NT}, s{S_IT}, {LK}")
                a(f"s_bfm_b32 s{S_NMASK}, s{S_NT}, 0")
                a(f"s_lshl_b32 s{S_WMASK}, {1 << (LK-1)}, s{S_IT}")
                a(f"s_lshl_b32 s{S_WMASK2}, {(1 << (LK-1)) if 5*(LK-1) < self.whi else 0}, s{S_IT}")
            else:
                a(f"s_mov_b32 s{S_IT}, 0")
                a(f"s_mov_b32 s{S_NT}, {LK}")
                a(f"s_mov_b32 s{S_NMASK}, {(1 << LK) - 1}")
                a(f"s_mov_b32 s{S_WMASK}, {1 << (LK-1)}")
                a(f"s_mov_b32 s{S_WMASK2}, {(1 << (LK-1)) if 5*(LK-1) < self.whi else 0}")
            a(f"s_mov_b32 s{S_CL0}, -1")
        if self.o["align2"]:
            a(".p2align 3")
        a(f"L_loopn{sfx}:")
        _, body, epi = self.assemble_loop(links, "L_loopn" + sfx, False)
        for op in body:
            a(op.text)
            if op.kind == "bar":
                a(f"L_loopn{sfx}_p3:")
        if self.dyn:
            a(f"s_cmp_eq_u32 s{S_IT}, s{S_CL0}")
            a(f"s_cbranch_scc1 L_loopc{sfx}")
        a(f"s_cmp_lt_u32 s{S_IT}, s{S_NT}")
        a(f"s_cbranch_scc1 L_loop{sfx}")
        self.emit_epi(epi)

    def loop_state(self):
        a = self.a
        pl = 2 if self.o["peel"] else 0
        a(f"s_mov_b32 s{S_IT}, {pl}")
        a(f"s_mov_b32 s{S_BUF}, 0")
        a(f"s_mov_b32 s{S_BUFN}, {pl*TBL}")
        if pl:
            a(f"s_mov_b32 s{S_OUT+2}, {XBYTES}")
        a(f"s_mov_b32 s{S_CTB}, {TBL}")
        a(f"s_mov_b32 s{S_OINC}, {256*TB if pl else 0}")
        a(f"s_mov_b64 vcc, {sr(S_EVEN,2)}")
        if self.dyn:
            NS, LK = self.dyn
            ps = self.o["psh"]
            a(f"s_andn2_b32 s{S_NMASK}, {(1 << self.cl0) - 1}, s{S_DMASK}")
            a(f"s_mov_b32 s{S_CL0}, {self.cl0}")
            a(f"s_add_u32 s{S_Q}, s{S_OOFF}, {pl*256*TB}")
            for k in range(1, LK):
                a(f"s_add_u32 s{S_Q+k}, s{S_Q+k-1}, {256*TB}")
            a(f"s_sub_u32 s{S_K5}, s{S_XOFF5}, s{S_XOFF}")
            a(f"s_lshr_b32 s{S_T0}, s2, {ps}")
            a(f"s_mul_i32 s{S_CB}, s{S_T0}, {TB << ps}")
            a(f"s_add_u32 s{S_CB}, s{S_CB}, {NS*256*TB}")
            a(f"s_lshl_b32 s{S_T0}, s{S_T0}, 7")
            a(f"s_add_u32 s{S_T0}, s{S_T0}, {CNT_OFF}")
            a(f"s_add_u32 s{S_B}, s{S_WS}, s{S_T0}")
            a(f"s_addc_u32 s{S_B+1}, s{S_WS+1}, 0")
            a(f"s_cmp_eq_u32 s{S_WAVE}, 0")
            a(f"s_cselect_b32 s{S_B+2}, 4, 0")
            a(f"s_cselect_b64 {sr(S_W0,2)}, 1, 0")
        else:
            a(f"s_bfm_b32 s{S_NMASK}, s{S_NT}, 0")
            a(f"s_andn2_b32 s{S_NMASK}, s{S_NMASK}, s{S_DMASK}")

    def stamp(self, n, r="s[98:99]"):
        if self.o["stamp"] and (self.o["stamp"] is True or n in self.o["stamp"]):
            a = self.a
            a(f"s_memtime {r}" if self.o["cyc"] and n in (5, 6) else f"s_memrealtime {r}")
            a("s_waitcnt lgkmcnt(0)")
            a(f"v_writelane_b32 v255, s{r[2:4]}, {n}")

    def descriptor(self, label, vg, ag):
        self.a(f""".amdhsa_kernel {label}
  .amdhsa_next_free_vgpr {vg}
  .amdhsa_next_free_sgpr 102
  .amdhsa_accum_offset {ag}
  .amdhsa_group_segment_fixed_size 0
  .amdhsa_float_denorm_mode_32 3
  .amdhsa_kernarg_size 48
  .amdhsa_user_sgpr_count 2
  .amdhsa_user_sgpr_kernarg_segment_ptr 1
  .amdhsa_system_sgpr_workgroup_id_x 1
.end_amdhsa_kernel""")

    def flush_tail(self):
        for b in self.tailblocks:
            self.a(b)
        self.tailblocks = []

    def gen(self):
        a = self.a
        o = self.o
        K = NAME + "_kernel"
        a(open("cdna_kernels/" + NAME + ".s.ref").read().split("; Override")[0].rstrip())
        if o["fused"]:
            a(f"; @launch grid=(256,1,1) block=(256,1,1) lds={LDS_BYTES}")
        else:
            a(f"; @launch kernel=prep_kernel grid=({NTASK},1,1) block=(256,1,1) lds={LDS_BYTES}")
            a(f"; @launch kernel={K} grid=(256,1,1) block=(256,1,1) lds={LDS_BYTES}")
        a('.amdgcn_target "amdgcn-amd-amdhsa--gfx950"\n.text')
        if not o["fused"]:
            self.entry("prep_kernel", NTASK)
            a(f"s_mov_b32 s{S_TASK}, s2\ns_mov_b32 s{S_BASE}, 0")
            self.producer("", False)
            a("L_end_prep_kernel:\ns_endpgm")
            self.flush_tail()
        self.entry(K, 256)
        a(f"s_mov_b32 s{S_BASE}, 0")
        msk = lambda p: hex(sum(1 << i for i in p[2] if not self.dyn or i < self.cl0) | p[0] << 20 | p[1] << 24)
        def pick(reg, vals):
            if len(set(vals)) == 1:
                a(f"s_mov_b32 s{reg}, {vals[0]}")
                return
            a(f"s_mov_b32 s{reg}, {vals[1]}")
            a(f"s_mov_b32 s{S_T0}, {vals[3]}")
            a(f"s_bitcmp1_b32 s2, {o['gsh']}")
            a(f"s_cselect_b32 s{reg}, s{reg}, {vals[0]}")
            a(f"s_cselect_b32 s{S_T0}, s{S_T0}, {vals[2]}")
            a(f"s_bitcmp1_b32 s2, {o['gsh2']}")
            a(f"s_cselect_b32 s{reg}, s{S_T0}, s{reg}")
        if o["fused"]:
            px = o["px"]
            a(f"s_lshr_b32 s{S_TASK}, s2, 3")
            a(f"s_mul_i32 s{S_TASK}, s{S_TASK}, {px}")
            a(f"s_and_b32 s{S_T0}, s2, 7")
            a(f"s_add_u32 s{S_TASK}, s{S_TASK}, s{S_T0}")
            a(f"s_cmp_lt_u32 s{S_T0}, {px}")
            a(f"s_cselect_b32 s{S_TASK}, s{S_TASK}, 63")
            a(f"s_cmp_lt_u32 s{S_TASK}, {NTASK}")
            a("s_cbranch_scc1 L_prod")
        pick(S_DMASK, [msk(p) for p in self.pol[:4]])
        self.lane_setup()
        self.entry_wait()
        a("L_cons3:")
        self.stamp(1)
        self.dma_setup()
        self.prefetch(20)
        self.stamp(2)
        if o["fused"]:
            a("s_branch L_rest")
            a("L_prod:")
            self.producer("", False)
            pick(S_DMASK, [msk(p) for p in self.pol[4:]] * 2)
            a("s_barrier")
            a(f"s_cmp_lg_u32 s{S_WAVE}, 0")
            a("s_cbranch_scc1 L_cons2")
            a("v_mov_b32 v8, 1")
            a("s_mov_b64 exec, 1")
            a(f"buffer_atomic_add v8, off, {sr(S_DBG,4)}, 0 offset:128 sc0 sc1")
            a("v_mov_b32 v9, 1")
            a("s_waitcnt vmcnt(0)")
            a(f"v_readfirstlane_b32 s{S_T0}, v8")
            a("s_nop 3")
            a(f"s_cmp_lg_u32 s{S_T0}, {NTASK-1}")
            a("s_cbranch_scc1 L_notlast")
            a(f"buffer_store_dword v9, off, {sr(S_DBG,4)}, 0 {o['fs']}")
            a("L_notlast:")
            a("s_mov_b64 exec, -1")
            a("L_cons2:")
            self.lane_setup()
            if o["bar2"]:
                a("s_barrier")
            a("s_branch L_cons3")
            self.flush_tail()
            a("L_rest:")
        for reg, wm in ((S_WMASK, self.wmask), (S_WMASK2, self.wmask2)):
            pick(reg, [hex(x) for x in wm[:4]])
            if o["fused"]:
                pick(S_T1, [hex(x) for x in wm[4:]] * 2)
                a(f"s_cmp_lt_u32 s{S_TASK}, {NTASK}")
                a(f"s_cselect_b32 s{reg}, s{S_T1}, s{reg}")
        self.bias_load()
        self.lane_setup2()
        self.tables_init()
        pre, C, G = self.build()
        if o["fused"]:
            a(f"s_cmp_lg_u32 s{S_WAVE}, 0")
            a("s_cbranch_scc1 L_ready")
            a("s_mov_b64 exec, 1")
            a(f"s_mov_b32 s{S_T1}, {o['maxpoll']}")
            a("L_poll:")
            if o["psleep"]:
                a(f"s_sleep {o['psleep']}")
            a(f"buffer_load_dword v8, off, {sr(S_DBG,4)}, 0 {o['pl']}")
            a(f"s_sub_u32 s{S_T1}, s{S_T1}, 1")
            a("s_cbranch_scc1 L_giveup")
            a("s_waitcnt vmcnt(0)")
            a(f"v_readfirstlane_b32 s{S_T0}, v8")
            a("s_nop 3")
            a(f"s_cmp_eq_u32 s{S_T0}, 0")
            a("s_cbranch_scc1 L_poll")
            a("L_polled:")
            a("s_mov_b64 exec, -1")
            a("L_ready:")
            self.tailblocks.append(f"L_giveup:\ns_waitcnt vmcnt(0)\nv_mov_b32 v8, {L_PL + 256}\nv_mov_b32 v9, 1\nds_write_b32 v8, v9\ns_branch L_polled")
        a("s_waitcnt lgkmcnt(0)")
        a("s_barrier")
        self.stamp(3)
        self.emit_build(pre, C, G)
        self.stamp(4, "s[94:95]")
        self.loop_state()
        a("s_waitcnt lgkmcnt(0)")
        a(f"v_mov_b32 v{V_X if o['peel'] else V_T}, {L_PL + 256}")
        a("s_barrier")
        if o["peel"]:
            self.peel()
            if max(p[1] for p in self.pol):
                self.prefetch(24, "L_pf2")
            for x in self.dma_advance(first=True):
                a(x)
            a(f"s_add_u32 s{S_OOFF}, s{S_OOFF}, {256*TB}")
            self.stamp(5)
            a("s_waitcnt lgkmcnt(0)")
            a("s_barrier")
            if o["links"] is None:
                a(f"s_cmp_lg_u32 s{S_LINK}, 0")
                a("s_cbranch_scc1 L_loopnk_p3")
            a("s_branch L_loopn_p3")
        else:
            a(f"ds_read_b32 v{V_T}, v{V_T}")
            if o["links"] is None:
                a(f"s_cmp_lg_u32 s{S_LINK}, 0")
                a("s_cbranch_scc1 L_linked")
        self.main_loop(bool(o["links"]), "")
        a("L_fin:")
        if o["stamp"]:
            a(f"v_mbcnt_lo_u32_b32 v{V_LANE}, -1, 0\nv_mbcnt_hi_u32_b32 v{V_LANE}, -1, v{V_LANE}")
        self.stamp(6)
        if o["stamp"]:
            a("s_waitcnt vmcnt(0)")
            self.stamp(7)
            a("v_writelane_b32 v255, s100, 0")
            a(f"s_lshl_b32 s{S_T0}, s2, 2\ns_add_u32 s{S_T0}, s{S_T0}, s{S_WAVE}\ns_lshl_b32 s{S_T0}, s{S_T0}, 6")
            a(f"s_add_u32 s{S_T0}, s{S_T0}, {WSBYTES - 65536}")
            if o["trace"]:
                a(f"s_lshl_b32 s{S_T1}, s2, 2\ns_add_u32 s{S_T1}, s{S_T1}, s{S_WAVE}\ns_lshl_b32 s{S_T1}, s{S_T1}, 8")
                a(f"s_add_u32 s{S_T1}, s{S_T1}, {WSBYTES - 65536 - 262144}")
                a(f"v_lshl_add_u32 v8, v{V_LANE}, 2, s{S_T1}")
                a(f"buffer_store_dword v254, v8, {sr(S_WS,4)}, 0 offen")
                a("s_nop 1")
            a(f"v_lshl_add_u32 v254, v{V_LANE}, 2, s{S_T0}")
            a("s_mov_b32 exec_lo, 0xffff\ns_mov_b32 exec_hi, 0")
            a(f"buffer_store_dword v255, v254, {sr(S_WS,4)}, 0 offen")
            if o["diag"]:
                n1, n0, wg, mul = o["diag"]
                a(f"s_cmp_lg_u32 s2, {wg}\ns_cbranch_scc1 L_end_{K}\ns_cmp_lg_u32 s{S_WAVE}, 0\ns_cbranch_scc1 L_end_{K}")
                a(f"v_readlane_b32 s60, v255, {n1}\nv_readlane_b32 s61, v255, {n0}\ns_nop 3\ns_sub_u32 s60, s60, s61\ns_mul_i32 s60, s60, {mul}")
                a("s_min_u32 s60, s60, 100000\ns_add_u32 s60, s60, 10000")
                a("L_diag:\ns_sleep 1\ns_memrealtime s[62:63]\ns_waitcnt lgkmcnt(0)\ns_sub_u32 s62, s62, s100\ns_cmp_lt_u32 s62, s60\ns_cbranch_scc1 L_diag")
        a(f"L_end_{K}:\ns_endpgm")
        self.flush_tail()
        if o["links"] is None:
            a("L_linked:")
            self.main_loop(True, "k")
            a("s_branch L_fin")
            self.flush_tail()
        self.slow_path(K)
        a('.section .rodata,"a"\n.p2align 6')
        if not o["fused"]:
            self.descriptor("prep_kernel", 128, 128)
            a(".p2align 6")
        self.descriptor(K, 512, 256)
        return "\n".join(self.L) + "\n"


if __name__ == "__main__":
    opts = eval("dict(" + (sys.argv[2] if len(sys.argv) > 2 else "") + ")")
    out = sys.argv[1] if len(sys.argv) > 1 else "cdna_kernels/" + NAME + ".s"
    open(out, "w").write(Gen(**opts).gen())
```

```python
import sys

NAME = "standalone__structured_sparse_n_m__ragged"
TB = 18432
TBL = TB + 128
NB = 8
CNT_OFF = 1 << 28
XBYTES = 75497472
WBYTES = 663552
WSBYTES = 301989888
A_OFF = 0
I_OFF = 331776
I8_OFF = I_OFF + 36864
R1_OFF = I8_OFF + 5120
R8_OFF = R1_OFF + 9216
COPY = 393216
NTASK = 41
L_WV = NB * TBL
WV_SZ = 3584
O_X, O_K, O_M, O_BIAS, O_IDX = 64, 384, 704, 1024, 1792
L_PL = L_WV + 4 * WV_SZ
LDS_BYTES = 163840
assert L_PL + 512 <= LDS_BYTES and L_WV % 256 == 0 and WV_SZ % 256 == 0

V_RD0, V_RD1, V_TAB, V_DMA, V_ST, V_ST8, V_BP, V_LANE = 0, 1, 2, 3, 4, 5, 6, 7
V_ACC = 8
V_B = 44
V_BR = 76
V_P = 92
V_T = 108
V_P8 = 112
V_X = 114
V_AD = 118
V_I = 138
V_I8 = 174
V_IR = 179
V_A = 186
S_X, S_OUT, S_WS, S_W, S_B, S_DBG = 16, 20, 24, 28, 32, 36
S_WAVE = 40
S_IT, S_BUF, S_DELTA, S_M0B, S_XOFF, S_OOFF = 41, 42, 43, 44, 45, 46
S_T0, S_T1 = 47, 3
S_MASK = 48
S_EVEN, S_ODD = 80, 82
S_TASK, S_TEND, S_BASE, S_MODE, S_CONT = 84, 85, 86, 87, 88
S_BAD = 90
S_MORE, S_LINK = 78, 89
S_C0 = 93
S_BUFN, S_CTB, S_OINC, S_XOFF5, S_M05, S_M0W, S_HALF = 4, 5, 6, 7, 8, 9, 10
S_NMASK = 12
S_WMASK, S_WMASK2 = 92, 87
S_XINC, S_OINC2, S_NT = 13, 14, 15
S_Q, S_CL, S_CB, S_K5, S_CL0, S_CT, S_W0 = 48, 56, 57, 58, 59, 60, 62
V_C = 7
S_DMASK, S_NB0 = 85, 88


def vr(b, n=1):
    return f"v{b}" if n == 1 else f"v[{b}:{b+n-1}]"


def sr(b, n=1):
    return f"s{b}" if n == 1 else f"s[{b}:{b+n-1}]"


def afrag(s, t):
    f = 9 * s + t
    return f"a[{4*f}:{4*f+3}]" if f < 64 else vr(V_A + 4 * (f - 64), 4)


def aidx(s, t):
    if t < 8:
        return V_I + 4 * s + (t >> 1), t & 1
    return V_I8 + (s >> 1), s & 1


BBUF = [0, 1, 2, 3, 0, 1, 0, 2, 3]
PEEL_T = [8, 0, 1, 2, 3, 4, 5, 6, 7]
RT = [[0, 1], [1, 2, 3], [3, 4, 5], [5, 6, 7], [7, 8]]


class Op:
    def __init__(self, text, kind, rd=(), wr=(), tag=""):
        self.text, self.kind, self.rd, self.wr, self.tag = text, kind, set(rd), set(wr), tag


def rng(b, n):
    return range(b, b + n)


class Gen:
    def __init__(self, **o):
        self.o = dict(fused=True, ld="nt", st="sc1", bperm=True, grp=None, nb0=None, gsh=3, gsh2=4, split=0, dyn=(10, 3), psh=5, peel=True, ptail=10, vcap=18, stp=None, ste=None, mbg=64, cwg=46, dwg=20, wbl2=None, stn=None, pad=0, dropm=(), st8='', stc=None, stamp=False, nodma=False, wl="sc1", ws="sc1",
                      vmw=20, lper=14, drop=(), cyc=False, links=None, ng4=8, px=2, maxpoll=20000, warm=True, bcast=True, l0=12, lw=2, cwarm=True, pfw=None, wtouch=False, bar2=True, early=True, ltail=24, coal=True, rpos=(18, 35, 50, 63, 75), rposl=(18, 36, 52, 66, 78),
                      lead=8, stg=(9, 16, 23, 30, 37), dmag=(44, 52, 60, 63, 66), gsp=2, eager=99, verbose=False, hack=None, diag=None, sig=1, psleep=0, pl='sc1', fs='sc1', isort=False, trace=False, chain=True, ord1=(0,1,4,5,6,2,3,7,8), ord2=(0,4,5,1,6,7,2,3,8), align2=True, order='hp')
        self.o.update(o)
        if self.o["grp"] is None and self.o["nb0"] is None:
            self.o.update(grp=[(3, 2, 2), (8, 0, 5), (3, 2, 2)])
        grp = self.o["grp"] or [(self.o["nb0"], 0, 0)] * 2
        if len(grp) != 6:
            grp = list(grp[:-1]) * (4 // (len(grp) - 1)) + [grp[-1]] * 2
        sp = self.o["split"]
        if sp:
            self.o["gsh"], self.o["gsh2"] = 0, 3
        self.pol, self.nt = [], []
        for c, (n1, n2, its) in enumerate(grp):
            nt = 16 + (sp if c % 2 == 0 else -sp)
            nb = n1 + n2
            its = list(its) if isinstance(its, (list, tuple)) else [its]
            while len(its) < nt - nb:
                its.append(its[-1] + 1)
            assert len(its) == nt - nb and all(nb + n - 7 <= i <= nb + n - 2 for n, i in enumerate(its)) and n1 >= 1, (n1, n2, its)
            self.pol.append((n1, n2, its))
            self.nt.append(nt)
        self.dyn = self.o["dyn"]
        if self.dyn:
            NS, LK = self.dyn
            self.cl0 = NS - LK - 1
            assert not sp and all(its[NS - 1 - n1 - n2] == self.cl0 and its[-1] == 15 - LK for n1, n2, its in self.pol) and self.cl0 >= 1
        self.n2min = min(p[1] for p in self.pol)
        req = []
        for (n1, n2, its), nt in zip(self.pol, self.nt):
            r = [63] * nt
            for tile in range(n1, nt):
                i = tile - 1
                a0 = (1 if self.o["peel"] else -1) if tile < n1 + n2 else its[tile - n1 - n2]
                r[i] = sum(10 if j in its else 5 for j in range(a0 + 1, i + 1)) + 5 * max(0, n1 + n2 - 1 - tile)
                if a0 < 0:
                    r[i] -= 5
            if self.o["peel"]:
                assert n1 >= 3 and its[0] >= 2 and not sp
            elif self.o["early"]:
                r[0] = min(r[0], 5 * n2 + (5 if 0 in its else 0))
            if self.dyn:
                r = r[:self.cl0] + [5 * (self.dyn[1] - 1)]
            req.append(r)
        low = sorted({x for r in req for x in r if x < self.o["vmw"]})
        self.wlo = low[0] if low else 0
        best = None
        for hi in low or [0]:
            cost = sum(x - (hi if x >= hi else self.wlo) for r in req[:4] for x in r[1:] if x < self.o["vmw"])
            if best is None or cost < best[0]:
                best = (cost, hi)
        self.whi = best[1]
        self.wmask = [sum(1 << (i + 1) for i, x in enumerate(r) if x < self.o["vmw"]) for r in req]
        self.wmask2 = [sum(1 << (i + 1) for i, x in enumerate(r) if x < self.whi) for r in req]
        self.req = req
        self.L = []
        self.tailblocks = []

    def a(self, s):
        self.L.extend(s.split("\n"))

    def entry(self, label, nwg):
        a = self.a
        a(f".globl {label}\n.p2align 8\n.type {label},@function\n{label}:")
        a("s_load_dwordx8 s[4:11], s[0:1], 0")
        a("s_load_dwordx4 s[12:15], s[0:1], 32")
        a(f"s_cmp_ge_u32 s2, {nwg}")
        a(f"s_cbranch_scc1 L_end_{label}")
        if self.o["stamp"]:
            a("s_memrealtime s[100:101]")
        a("v_lshlrev_b32 v3, 7, v0")
        if self.o["cwarm"]:
            a("s_getpc_b64 s[96:97]")
            a(f"v_min_u32 v2, L_slow-{label}, v3")
            a("global_load_dword v120, v2, s[96:97]")
        if self.o["wtouch"]:
            a(f"s_lshr_b32 s{S_T0}, s2, 3")
            a(f"s_mul_i32 s{S_T0}, s{S_T0}, {162*128}")
            a(f"v_add_u32 v3, s{S_T0}, v3")
            a(f"v_min_u32 v3, {WBYTES-128}, v3")
            a(f"s_and_b32 s{S_T0}, s2, {8 - self.o['px']}")
            a("s_waitcnt lgkmcnt(0)")
            a(f"s_cbranch_scc1 L_nt_{label}")
            a("global_load_dword v121, v3, s[6:7]")
            a(f"L_nt_{label}:")
        a("v_lshrrev_b32 v1, 6, v0")
        a(f"v_and_b32 v{V_LANE}, 63, v0")
        a(f"v_readfirstlane_b32 s{S_WAVE}, v1")

    def srds(self, which):
        for srd, p, size in ((S_W, 6, WBYTES), (S_X, 4, XBYTES), (S_WS, 14, WSBYTES), (S_B, 8, 1152), (S_OUT, 10, 0), (S_DBG, 12, 256)):
            if srd in which:
                self.a(f"s_mov_b32 s{srd+2}, {size}")
                self.a(f"s_mov_b32 s{srd+3}, 0x20000")
                self.a(f"s_mov_b32 s{srd}, s{p}")
                self.a(f"s_and_b32 s{srd+1}, s{p+1}, 0xffff")

    def entry_wait(self, first=None):
        lst = (S_W, S_X, S_WS, S_B, S_OUT, S_DBG)
        if first is not False:
            self.a("s_waitcnt lgkmcnt(0)")
        self.srds(lst if first is None else (lst[:1] if first else lst[1:]))

    def producer(self, sfx, generic):
        a = self.a
        ws = self.o["ws"]
        W, Z, K = 8, 24, 28
        OA, NB_, IX = 36, 44, 48
        VL, VA, VI, VM0, VM1, VSEL, CJ = 50, 51, 52, 53, 54, 55, 56
        F0, F1, H, U, T0, T1, T2, VLI, VA2 = 58, 59, 60, 61, 62, 63, 64, 65, 66
        C = S_MASK
        SEL = S_MASK + 16
        CNT = S_MASK + 27
        ln = f"v{V_LANE}"
        a(f"s_and_b32 s{C}, s{S_TASK}, 3")
        a(f"s_lshr_b32 s{C+1}, s{S_TASK}, 2")
        a(f"s_sub_u32 s{C+2}, s{S_TASK}, 36")
        a(f"s_lshl_b32 s{C+3}, s{S_WAVE}, 4")
        a(f"s_lshl_b32 s{C+4}, s{C+2}, 1")
        a(f"s_lshl_b32 s{C+5}, s{C}, 8")
        a(f"s_cmp_lt_u32 s{S_TASK}, 36")
        a(f"s_cselect_b32 s{C+4}, s{C+1}, s{C+4}")
        a(f"s_cselect_b32 s{C+5}, s{C+5}, 1024")
        a(f"s_cselect_b32 s{C+6}, 8, 73728")
        a(f"s_cselect_b32 s{C+7}, 32, 8")
        a(f"s_cselect_b32 s{C+8}, 16, 32")
        a(f"s_cselect_b32 s{C+9}, 128, 64")
        a(f"s_mul_i32 s{C+4}, s{C+4}, 73728")
        a(f"s_mul_i32 s{C+10}, s{S_WAVE}, 18432")
        a(f"v_and_b32 v{F0}, 1, {ln}")
        a(f"v_bfe_u32 v{F1}, {ln}, 1, 1")
        a(f"v_bfe_u32 v{H}, {ln}, 2, 2")
        a(f"v_bfe_u32 v{T0}, {ln}, 4, 1")
        a(f"v_lshrrev_b32 v{T1}, 5, {ln}")
        a(f"v_lshl_add_u32 v{VL}, v{F0}, 2, s{C+4}")
        a(f"v_mad_u32_u24 v{VL}, v{F1}, s{C+6}, v{VL}")
        a(f"v_mad_u32_u24 v{VL}, v{H}, s{C+7}, v{VL}")
        a(f"v_mad_u32_u24 v{VL}, v{T0}, s{C+8}, v{VL}")
        a(f"v_mad_u32_u24 v{VL}, v{T1}, s{C+9}, v{VL}")
        a(f"v_add_u32 v{VL}, s{C+5}, v{VL}")
        a(f"v_add_u32 v{VL}, s{C+10}, v{VL}")
        a(f"v_add_u32 v{T0}, 4608, v{VL}")
        a(f"v_add_u32 v{T1}, 9216, v{VL}")
        a(f"v_add_u32 v{T2}, 13824, v{VL}")
        if not generic:
            self.entry_wait(first=True)
        for q in range(4):
            for j in range(4):
                a(f"buffer_load_dword v{W+4*q+j}, v{(VL, T0, T1, T2)[q]}, {sr(S_W,4)}, 0 offen offset:{1152*j}")
        if not generic:
            self.stamp(8)
            self.entry_wait(first=False)
        a(f"s_mul_i32 s{C+4}, s{C}, 9")
        a(f"s_add_u32 s{C+4}, s{C+4}, s{C+1}")
        a(f"s_mul_i32 s{C+5}, s{C+4}, 9")
        a(f"s_mul_i32 s{C+6}, s{C+2}, 18")
        a(f"s_add_u32 s{C+6}, s{C+6}, 8")
        a(f"s_lshl_b32 s{C+7}, s{C+4}, 2")
        a(f"s_add_u32 s{C+7}, s{C+7}, s{S_WAVE}")
        a(f"s_lshl_b32 s{C+8}, s{C+2}, 2")
        a(f"s_add_u32 s{C+8}, s{C+8}, s{S_WAVE}")
        a(f"s_cmp_eq_u32 s{S_TASK}, 40")
        a(f"s_cselect_b32 s{C+9}, 0x100000, 9")
        a(f"s_cmp_lt_u32 s{S_TASK}, 36")
        a(f"s_cselect_b32 s{C+5}, s{C+5}, s{C+6}")
        a(f"s_cselect_b32 s{C+6}, 2, 81")
        a(f"s_cselect_b32 s{C+9}, 1, s{C+9}")
        a(f"s_cselect_b32 s{C+7}, s{C+7}, s{C+8}")
        a(f"s_mov_b32 s{C+8}, {I_OFF}")
        a(f"s_cselect_b32 s{C+8}, s{C+8}, {I8_OFF}")
        a(f"s_mov_b32 s{C+10}, {R1_OFF}")
        a(f"s_cselect_b32 s{C+10}, s{C+10}, {R8_OFF}")
        a(f"s_cselect_b32 s{C+11}, 16, 4")
        a(f"s_cselect_b32 s{C+12}, 4, 64")
        a(f"s_cselect_b32 s{C+13}, 12, 11")
        a(f"s_cselect_b32 s{C+14}, 1, 0x8001")
        a(f"v_lshrrev_b32 v{U}, 4, {ln}")
        a(f"v_lshlrev_b32 v{T0}, 1, v{F0}")
        a(f"v_lshl_add_u32 v{H}, v{H}, 2, v{T0}")
        a(f"v_add_u32 v{T0}, v{H}, v{F1}")
        a(f"v_mul_u32_u24 v{VA}, s{C+6}, v{U}")
        a(f"v_add_lshl_u32 v{VA}, v{VA}, s{C+5}, 6")
        a(f"v_add3_u32 v{VA}, v{VA}, v{T0}, s{C+3}")
        a(f"v_lshl_add_u32 v{VA}, v{VA}, 4, s{S_BASE}")
        a(f"s_lshl_b32 s{C+9}, s{C+9}, 10")
        a(f"v_add_u32 v{VA2}, s{C+9}, v{VA}")
        a(f"s_lshl_b32 s{C+4}, s{C+7}, 8")
        a(f"s_add_u32 s{C+4}, s{C+4}, s{C+8}")
        a(f"s_add_u32 s{C+4}, s{C+4}, s{S_BASE}")
        a(f"v_mul_u32_u24 v{VI}, s{C+11}, v{T0}")
        a(f"v_mad_u32_u24 v{VI}, v{U}, s{C+12}, v{VI}")
        a(f"v_add_u32 v{VI}, s{C+4}, v{VI}")
        if not generic:
            a(f"s_lshr_b32 s{C+4}, s{C+7}, 2")
            a(f"s_lshl_b32 s{C+4}, s{C+4}, 8")
            a(f"s_add_u32 s{C+10}, s{C+10}, s{C+4}")
            a(f"s_add_u32 s{C+10}, s{C+10}, s{C+3}")
            a(f"s_lshl_b32 s{C+4}, s{C+3}, 1")
            a(f"s_add_u32 s{C+4}, s{C+4}, s{C+14}")
            a(f"v_lshl_add_u32 v{T0}, v{U}, 1, v{F1}")
            a(f"v_lshlrev_b32 v{T0}, s{C+13}, v{T0}")
            a(f"v_lshl_add_u32 v{VM0}, v{H}, 7, v{T0}")
            a(f"v_add_u32 v{VM0}, s{C+4}, v{VM0}")
            a(f"v_and_b32 v{T0}, 12, {ln}")
            a(f"v_mad_u32_u24 v{T0}, v{T0}, 3, {ln}")
            a(f"v_lshl_add_u32 v{VLI}, v{T0}, 2, s{C+10}")
            if self.dyn:
                a(f"s_lshl_b32 s{C+4}, s{S_TASK}, 2")
                a(f"s_add_u32 s{C+4}, s{C+4}, s{S_WAVE}")
                a(f"s_lshl_b32 s{C+4}, s{C+4}, 7")
                a(f"s_add_u32 s{C+4}, s{C+4}, {CNT_OFF}")
                a(f"v_writelane_b32 v{VLI}, s{C+4}, 16")
            a(f"s_mov_b32 s{CNT}, 0")
            a(f"s_mov_b32 s{SEL+9}, 0x05060100")
            a(f"s_mov_b32 s{SEL+10}, 0xffff")
        a(f"v_mov_b32 v{VSEL}, 0x05040100")
        a(f"v_mov_b32 v{T0}, 0x03020706")
        a(f"v_cmp_eq_u32 vcc, 1, v{F1}")
        CJ, EF, EO = 68, 76, 82
        for n in range(8):
            a(f"v_mov_b32 v{CJ+n}, {hex(0x0f0a0500 | 0x01010101 * (((n >> 1) << 4) | ((n & 1) << 7)))}")
        a(f"v_cndmask_b32 v{VSEL}, v{VSEL}, v{T0}, vcc")
        if not generic:
            for r in range(3):
                a(f"v_mov_b64 {vr(EF+2*r,2)}, 0")
            a(f"v_mov_b32 v{EO}, 0")
        for c in range(2):
            for j in range(4):
                a(f"s_mov_b32 s{SEL+4*c+j}, {hex(((5+2*c) << 24) | ((4+2*c) << 16) | ((5+2*c) << 8) | j)}")
        a(f"s_mov_b32 s{SEL+8}, 0x05060102")
        if generic:
            a(f"s_cmp_lg_u32 s{S_MODE}, 0")
        sw = "src0_sel:WORD_1 src1_sel:WORD_1"
        for q in range(4):
            a(f"s_waitcnt vmcnt({12-4*q})")
            if q in (0, 3) and not generic:
                self.stamp(9 + q // 3)
            for c in range(2):
                n = 2 * q + c
                for j in range(4):
                    a(f"v_perm_b32 v{Z+j}, v{W+4*q+j}, v{CJ+n}, s{SEL+4*c+j}")
                a(f"v_max3_f32 v{K}, |v{Z}|, |v{Z+1}|, |v{Z+2}|")
                a(f"v_med3_f32 v{K+1}, |v{Z}|, |v{Z+1}|, |v{Z+2}|")
                a(f"v_min3_f32 v{K+2}, |v{Z}|, |v{Z+1}|, |v{Z+2}|")
                a(f"v_med3_f32 v{K+4}, v{K}, v{K+1}, |v{Z+3}|")
                a(f"v_med3_f32 v{K+5}, v{K+1}, v{K+2}, |v{Z+3}|")
                a(f"v_max_f32 v{K+3}, v{K}, |v{Z+3}|")
                if generic:
                    a(f"v_cmp_eq_u32_sdwa vcc, v{K+5}, v{K+4} {sw}")
                    a(f"s_cbranch_scc0 L_rb{n}{sfx}")
                    a(f"v_min_f32 v{K+2}, v{K+2}, |v{Z+3}|")
                    a(f"v_cndmask_b32 v{K+3}, 0, v{K+5}, vcc")
                    a(f"v_cmp_eq_u32_sdwa vcc, v{K+2}, v{K+4} {sw}")
                    a("s_nop 1")
                    a(f"v_cndmask_b32 v{K+4}, 0, v{K+2}, vcc")
                    a(f"L_rb{n}{sfx}:")
                a(f"v_perm_b32 v{OA+4*c+q}, v{K+3}, v{K+4}, s{SEL+8}")
                nb = NB_ + 2 * c + (q >> 1)
                if q & 1 == 0:
                    a(f"v_bfi_b32 v{nb}, 3, v{K+4}, v{K+3}")
                else:
                    a(f"v_bfi_b32 v{K+3}, 3, v{K+4}, v{K+3}")
                    a(f"v_lshlrev_b32 v{K+3}, 4, v{K+3}")
                    a(f"v_bfi_b32 v{nb}, 15, v{nb}, v{K+3}")
                if not generic:
                    a(f"v_cmpx_eq_u32_sdwa vcc, v{K+5}, v{K+4} {sw}")
                    if n >= 3:
                        a(f"v_or_b32 v{EO}, v{EO}, v{EF+4}")
                    if n >= 2:
                        a(f"v_mov_b64 {vr(EF+4,2)}, {vr(EF+2,2)}")
                    if n >= 1:
                        a(f"v_mov_b64 {vr(EF+2,2)}, {vr(EF,2)}")
                    a(f"v_mov_b32 v{EF}, v{K+5}")
                    a(f"v_min_f32 v{EF+1}, v{K+2}, |v{Z+3}|")
                    a("s_mov_b64 exec, -1")
        x2 = "quad_perm:[2,3,0,1] row_mask:0xf bank_mask:0xf"
        a("s_mov_b32 vcc_lo, 0x33333333")
        a("s_mov_b32 vcc_hi, 0x33333333")
        for d in range(4):
            a(f"v_cndmask_b32_dpp v{Z+d}, v{OA+4+d}, v{OA+d}, vcc {x2}")
        a("s_not_b64 vcc, vcc")
        a(f"buffer_store_dwordx4 {vr(Z,4)}, v{VA}, {sr(S_WS,4)}, 0 offen {ws}")
        for d in range(4):
            a(f"v_cndmask_b32_dpp v{OA+4+d}, v{OA+d}, v{OA+4+d}, vcc {x2}")
        a(f"s_mov_b32 s{C+4}, 0x0c0c0400")
        a(f"s_mov_b32 s{C+5}, 0x04000c0c")
        a(f"buffer_store_dwordx4 {vr(OA+4,4)}, v{VA2}, {sr(S_WS,4)}, 0 offen {ws}")
        a(f"v_perm_b32 v{IX}, v{NB_+1}, v{NB_}, s{C+4}")
        a(f"v_perm_b32 v{IX+1}, v{NB_+3}, v{NB_+2}, s{C+5}")
        a(f"v_or_b32 v{IX}, v{IX}, v{IX+1}")
        a("s_nop 1")
        a(f"v_mov_b32_dpp v{IX+1}, v{IX} quad_perm:[2,3,0,1] row_mask:0xf bank_mask:0xf")
        a(f"v_perm_b32 v{IX}, v{IX+1}, v{IX}, v{VSEL}")
        a(f"buffer_store_dword v{IX}, v{VI}, {sr(S_WS,4)}, 0 offen {ws}")
        if not generic:
            self.stamp(11)
            a(f"v_cmp_lt_u32 {sr(C+2,2)}, s{SEL+10}, v{EO}")
            a(f"L_emit{sfx}:")
            a(f"v_cmp_lt_u32 vcc, s{SEL+10}, v{EF}")
            a(f"v_cmp_eq_u32_sdwa {sr(C,2)}, v{EF+1}, v{EF} {sw}")
            a(f"v_perm_b32 v{T1}, v{EF}, v{VM0}, s{SEL+9}")
            a(f"v_bfe_u32 v{T0}, v{EF}, 2, 4")
            a(f"v_and_b32 v{T2}, 0x80, v{EF}")
            a(f"v_lshl_add_u32 v{T1}, v{T0}, 1, v{T1}")
            a(f"v_mbcnt_lo_u32_b32 v{T0}, vcc_lo, 0")
            a(f"v_mbcnt_hi_u32_b32 v{T0}, vcc_hi, v{T0}")
            a(f"v_add_u32 v{T1}, v{T2}, v{T1}")
            a(f"v_add_u32 v{T0}, s{CNT}, v{T0}")
            a(f"s_bcnt1_i32_b64 s{C+4}, vcc")
            a(f"s_add_u32 s{CNT}, s{CNT}, s{C+4}")
            a(f"v_cmp_gt_u32 {sr(C+4,2)}, 15, v{T0}")
            a(f"v_and_b32 v{T2}, 12, v{T0}")
            a(f"v_mad_u32_u24 v{T0}, v{T2}, 3, v{T0}")
            a(f"v_lshl_add_u32 v{T0}, v{T0}, 2, s{C+10}")
            a(f"s_and_b64 {sr(C,2)}, {sr(C,2)}, vcc")
            a(f"s_and_b64 exec, {sr(C+4,2)}, vcc")
            a(f"s_cbranch_execz L_emit1{sfx}")
            a(f"buffer_store_dword v{T1}, v{T0}, {sr(S_WS,4)}, 0 offen {ws}")
            a(f"L_emit1{sfx}:")
            a(f"s_mov_b64 exec, {sr(C,2)}")
            a(f"v_mov_b32 v{EF}, v{EF+1}")
            a(f"v_mov_b32 v{EF+1}, 0")
            a(f"s_not_b64 exec, exec")
            a(f"v_mov_b64 {vr(EF,2)}, {vr(EF+2,2)}")
            a(f"v_mov_b64 {vr(EF+2,2)}, {vr(EF+4,2)}")
            a(f"v_mov_b64 {vr(EF+4,2)}, 0")
            a("s_mov_b64 exec, -1")
            a(f"v_or3_b32 v{T0}, v{EF}, v{EF+2}, v{EF+4}")
            a(f"v_cmp_lt_u32 vcc, s{SEL+10}, v{T0}")
            a(f"s_cmp_lg_u64 {sr(C+2,2)}, 0")
            a(f"s_cselect_b32 s{C+4}, 99, s{CNT}")
            a(f"s_cmp_gt_u32 s{C+4}, 15")
            a(f"s_cselect_b32 s{C+4}, -1, 0")
            a(f"s_min_u32 s{C+5}, s{CNT}, 15")
            a(f"s_cbranch_vccnz L_emit{sfx}")
            a(f"s_lshl_b32 s{C+5}, -1, s{C+5}")
            a(f"v_mov_b32 v{T0}, s{C+4}")
            a(f"s_and_b32 exec_lo, s{C+5}, {0x1ffff if self.dyn else 0xffff}")
            a("s_mov_b32 exec_hi, 0")
            a(f"buffer_store_dword v{T0}, v{VLI}, {sr(S_WS,4)}, 0 offen {ws}")
            a("s_mov_b64 exec, -1")
            self.stamp(12)
        a("s_waitcnt vmcnt(0)")
        if not generic:
            self.stamp(13)

    def lane_setup(self):
        a = self.a
        ln = f"v{V_LANE}"
        T0, T1, T2 = 72, 73, 74
        a(f"v_lshrrev_b32 v{T0}, 3, {ln}")
        a(f"v_and_b32 v{T1}, 7, {ln}")
        a(f"v_xor_b32 v{T1}, v{T1}, v{T0}")
        a(f"v_mul_u32_u24 v{T0}, 1152, v{T0}")
        a(f"s_and_b32 s{S_T0}, s{S_WAVE}, 1")
        a(f"s_mul_i32 s{S_T0}, s{S_T0}, 9216")
        a(f"s_lshr_b32 s{S_T1}, s{S_WAVE}, 1")
        a(f"s_lshl_b32 s{S_T1}, s{S_T1}, 7")
        a(f"s_add_u32 s{S_T0}, s{S_T0}, s{S_T1}")
        a(f"v_lshl_add_u32 v{T0}, v{T1}, 4, v{T0}")
        a(f"v_add_u32 v{V_DMA}, s{S_T0}, v{T0}")
        a(f"s_lshl_b32 s{S_M0B}, s{S_WAVE}, 10")
        if self.o["split"]:
            a(f"s_bitcmp1_b32 s2, 0")
            a(f"s_cselect_b32 s{S_XOFF}, 256, 1")
            a(f"s_add_u32 s{S_XOFF}, s{S_XOFF}, s2")
            a(f"s_mul_i32 s{S_XOFF}, s{S_XOFF}, {TB}")
        else:
            a(f"s_mul_i32 s{S_XOFF}, s2, {TB}")
        a(f"s_mov_b32 s{S_OOFF}, s{S_XOFF}")

    def lane_setup2(self):
        a = self.a
        ln = f"v{V_LANE}"
        T0, T1, T2 = 72, 73, 74
        a(f"v_and_b32 v{T0}, 15, {ln}")
        a(f"v_lshrrev_b32 v{T1}, 4, {ln}")
        a(f"v_and_b32 v{T2}, 7, {ln}")
        a(f"v_xor_b32 v{T2}, v{T2}, v{T1}")
        a(f"v_lshlrev_b32 v{T2}, 4, v{T2}")
        a(f"v_lshl_add_u32 v{V_RD0}, v{T0}, 7, v{T2}")
        a(f"v_xor_b32 v{V_RD1}, 64, v{V_RD0}")
        a(f"s_mul_i32 s{S_C0}, s{S_WAVE}, {WV_SZ}")
        a(f"s_add_u32 s{S_C0}, s{S_C0}, {L_WV}")
        a(f"v_lshl_add_u32 v{V_TAB}, v{T1}, 4, s{S_C0}")
        a(f"v_and_b32 v{T2}, 14, {ln}")
        a(f"v_mul_u32_u24 v{V_ST}, 1152, v{T2}")
        a(f"v_and_b32 v{T2}, 1, {ln}")
        a(f"v_lshl_add_u32 v{V_ST}, v{T2}, 4, v{V_ST}")
        a(f"v_lshl_add_u32 v{V_ST}, v{T1}, 5, v{V_ST}")
        a(f"s_lshl_b32 s{S_T0}, s{S_WAVE}, 8")
        a(f"v_add_u32 v{V_ST}, s{S_T0}, v{V_ST}")
        if self.o["hack"] == "q4":
            a(f"v_lshrrev_b32 v{T2}, 3, {ln}")
            a(f"v_mul_u32_u24 v{V_ST}, 2304, v{T2}")
            a(f"v_and_b32 v{T2}, 7, {ln}")
            a(f"v_lshl_add_u32 v{V_ST}, v{T2}, 4, v{V_ST}")
            a(f"v_add_u32 v{V_ST}, s{S_T0}, v{V_ST}")
        a(f"s_lshl_b32 s{S_T0}, s{S_WAVE}, 5")
        a(f"s_add_u32 s{S_T0}, s{S_T0}, 1024")
        if self.o["bperm"]:
            a(f"v_lshrrev_b32 v{T0}, 2, {ln}")
            a(f"v_and_b32 v{T1}, 3, {ln}")
            a(f"v_lshl_add_u32 v{V_BP}, v{T1}, 4, v{T0}")
            a(f"v_lshlrev_b32 v{V_BP}, 2, v{V_BP}")
        else:
            a(f"v_lshlrev_b32 v{V_BP}, 2, {ln}")
        a(f"v_mul_u32_u24 v{V_ST8}, 1152, v{T0}")
        a(f"v_lshl_add_u32 v{V_ST8}, v{T1}, 3, v{V_ST8}")
        a(f"v_add_u32 v{V_ST8}, s{S_T0}, v{V_ST8}")
        a(f"s_mov_b32 s{S_EVEN}, 0x55555555")
        a(f"s_mov_b32 s{S_EVEN+1}, 0x55555555")
        a(f"s_mov_b32 s{S_ODD}, 0xaaaaaaaa")
        a(f"s_mov_b32 s{S_ODD+1}, 0xaaaaaaaa")

    def dma_setup(self):
        a = self.a
        a(f"s_lshr_b32 s{S_T0}, s{S_WAVE}, 1")
        a(f"s_lshl_b32 s{S_T1}, s{S_T0}, 11")
        a(f"s_sub_u32 s{S_M05}, {16384-896}, s{S_T1}")
        a(f"s_lshl_b32 s{S_T1}, s{S_T0}, 7")
        a(f"s_add_u32 s{S_XOFF5}, s{S_XOFF}, 128")
        a(f"s_sub_u32 s{S_XOFF5}, s{S_XOFF5}, s{S_T1}")
        a(f"s_sub_u32 s{S_HALF}, s{S_T0}, 1")
        a(f"s_sub_u32 s{S_HALF+1}, 0, s{S_T0}")
        a(f"s_mov_b32 s{S_M0W}, s{S_M0B}")
        a(f"s_mov_b32 s{S_XINC}, {256*TB}")
        if self.o["split"]:
            a(f"s_bitcmp1_b32 s2, 0")
            a(f"s_cselect_b32 s{S_XINC}, s{S_XINC}, {-TB}")
            a(f"s_cselect_b32 s{S_NT}, 15, 17")
        else:
            a(f"s_mov_b32 s{S_NT}, 16")
        a(f"s_mov_b32 s{S_OINC2}, s{S_XINC}")

    def dma_advance(self, first=False):
        x = [] if first else [f"s_add_u32 s{S_XOFF}, s{S_XOFF}, {256*TB}", f"s_add_u32 s{S_XOFF5}, s{S_XOFF5}, {256*TB}",
                              f"s_add_u32 s{S_M0B}, s{S_M0B}, s{S_CTB}"]
        return x + [f"s_cmp_ge_u32 s{S_M0B}, {NB*TBL}", f"s_cselect_b32 s{S_M0B}, s{S_M0W}, s{S_M0B}"]

    def dma_tile(self):
        a = self.a
        for j in range(5):
            a(f"s_add_u32 m0, s{S_M0B}, {3840*j if j < 4 else 's%d' % S_M05}")
            a("s_nop 0" if j < 4 else f"s_mov_b64 exec, {sr(S_HALF,2)}")
            a(f"buffer_load_dwordx4 v{V_DMA}, {sr(S_X,4)}, s{S_XOFF if j < 4 else S_XOFF5} offen offset:{256*j if j < 4 else 896} {self.o['ld']} lds")
        a("s_mov_b64 exec, -1")

    def prefetch(self, sh, lab="L_pf"):
        a = self.a
        a(f"s_bfe_u32 s{S_NB0}, s{S_DMASK}, {hex(4 << 16 | sh)}")
        if sh == 20 and self.o["pfw"]:
            a(f"s_cmp_ge_u32 s{S_NB0}, 6")
            a(f"s_cselect_b32 s{S_T1}, {self.o['pfw'][0]*TBL}, 0")
        if sh != 20 and self.n2min == 0:
            a(f"s_cbranch_scc0 {lab}_e")
        a(f"{lab}:")
        self.dma_tile()
        if sh == 20 and self.o["pfw"]:
            k, n = self.o["pfw"]
            a(f"s_cmp_ge_u32 s{S_M0B}, s{S_T1}")
            a(f"s_cbranch_scc1 {lab}_n")
            a(f"s_waitcnt vmcnt({n})")
            a(f"{lab}_n:")
        a(f"s_add_u32 s{S_XOFF5}, s{S_XOFF5}, s{S_XINC}")
        a(f"s_add_u32 s{S_M0B}, s{S_M0B}, {TBL}")
        a(f"s_add_u32 s{S_XOFF}, s{S_XOFF}, s{S_XINC}")
        a(f"s_mov_b32 s{S_XINC}, {256*TB}")
        a(f"s_sub_u32 s{S_NB0}, s{S_NB0}, 1")
        a(f"s_cmp_lg_u32 s{S_NB0}, 0")
        a(f"s_cbranch_scc1 {lab}")
        a(f"{lab}_e:")

    def bias_load(self):
        a = self.a
        ln = f"v{V_LANE}"
        a(f"v_and_b32 v80, 3, {ln}")
        a(f"v_bfe_u32 v81, {ln}, 2, 2")
        a(f"v_bfe_u32 v82, {ln}, 4, 1")
        a("v_lshlrev_b32 v81, 3, v81")
        a("v_lshl_add_u32 v81, v80, 5, v81")
        a("v_lshl_add_u32 v81, v82, 7, v81")
        a(f"s_lshl_b32 s{S_T0}, s{S_WAVE}, 8")
        a(f"v_add_u32 v81, s{S_T0}, v81")
        a(f"s_lshl_b32 s{S_T0}, s{S_WAVE}, 5")
        a(f"s_add_u32 s{S_T0}, s{S_T0}, 1024")
        a(f"v_lshl_add_u32 v80, v80, 3, s{S_T0}")
        a(f"v_cmp_gt_u32 vcc, 32, {ln}")
        a("s_nop 1")
        a("v_cndmask_b32 v80, v80, v81, vcc")
        a(f"buffer_load_dwordx2 v[110:111], v80, {sr(S_B,4)}, 0 offen")

    def tables_init(self):
        a = self.a
        ln = f"v{V_LANE}"
        a(f"v_lshl_add_u32 v109, {ln}, 4, s{S_C0}")
        a(f"v_lshl_add_u32 v89, {ln}, 2, s{S_C0}")
        for r in range(4):
            a(f"v_mov_b32 v{76+r}, 0")
        a("v_mov_b32 v90, 0xdddddddd")
        a("ds_write_b128 v109, v[76:79]")
        for r in range(7):
            a(f"ds_write_b32 v89, v90 offset:{O_IDX+256*r}")
        a(f"s_lshl_b32 s{S_T0}, s{S_WAVE}, 2")
        a(f"s_add_u32 s{S_T0}, s{S_T0}, {L_PL + 256}")
        a(f"v_mov_b32 v88, s{S_T0}")
        a("ds_write_b32 v88, v76")

    def bias_store(self):
        return ["v_lshlrev_b32 v114, 16, v110", "v_and_b32 v115, 0xffff0000, v110", "v_lshlrev_b32 v116, 16, v111",
                "v_and_b32 v117, 0xffff0000, v111", "s_mov_b32 exec_hi, 15", f"ds_write_b128 v109, v[114:117] offset:{O_BIAS}",
                "s_mov_b64 exec, -1"]

    def wload_list(self, VA, VI8, pairs=False):
        wl = self.o["wl"]
        G = []
        so = S_C0 + 6
        cur = None
        for sp in range(5):
            g = []
            if sp == 4:
                g.append(f"s_mov_b32 s{so}, 4096")
            g.append(f"buffer_load_dword v{V_I8+sp}, v{VI8}, {sr(S_WS,4)}, {'s%d' % so if sp == 4 else '0'} offen offset:{1024*(sp%4)} {wl}")
            G.append(g)
        order = [(s, t) for s in range(9) for t in [None] + list(range(9))]
        if pairs:
            order = order[:70] + [(7, None), (8, None)] + [(s, t) for t in PEEL_T for s in (7, 8)]
        for s, t in order:
            if t is None:
                G.append([f"s_mov_b32 s{so-1}, {1024*s}",
                          f"buffer_load_dwordx4 {vr(V_I+4*s,4)}, v{VA+1}, {sr(S_WS,4)}, s{so-1} offen {wl}"])
            else:
                f = 9 * s + t
                g = []
                if cur != f >> 2:
                    cur = f >> 2
                    g.append(f"s_mov_b32 s{so}, {4096*cur}")
                g.append(f"buffer_load_dwordx4 {afrag(s,t)}, v{VA}, {sr(S_WS,4)}, s{so} offen offset:{1024*(f&3)} {wl}")
                G.append(g)
        return G

    def waddr(self, VA, VI8):
        a = self.a
        ln = f"v{V_LANE}"
        a(f"s_mul_i32 s{S_T0}, s{S_WAVE}, 82944")
        a(f"s_add_u32 s{S_T0}, s{S_T0}, s{S_BASE}")
        a(f"v_lshl_add_u32 v{VA}, {ln}, 4, s{S_T0}")
        a(f"s_mul_i32 s{S_T0}, s{S_WAVE}, 9216")
        a(f"s_add_u32 s{S_T0}, s{S_T0}, s{S_BASE}")
        a(f"s_add_u32 s{S_T0}, s{S_T0}, {I_OFF}")
        a(f"v_lshl_add_u32 v{VA+1}, {ln}, 4, s{S_T0}")
        a(f"s_lshl_b32 s{S_T0}, s{S_WAVE}, 6")
        a(f"s_add_u32 s{S_T0}, s{S_T0}, s{S_BASE}")
        a(f"s_add_u32 s{S_T0}, s{S_T0}, {I8_OFF}")
        a(f"v_and_b32 v{VI8}, 15, {ln}")
        a(f"v_lshl_add_u32 v{VI8}, v{VI8}, 2, s{S_T0}")
        a(f"v_lshrrev_b32 v{VI8+1}, 4, {ln}")
        a(f"v_lshl_add_u32 v{VI8}, v{VI8+1}, 8, v{VI8}")

    def build(self):
        a = self.a
        o = self.o
        ln = f"v{V_LANE}"
        wl = o["wl"]
        VA, VI8 = (112 if o["peel"] else 104), 106
        E, TT, RK, ST = 8, 24, 40, 56
        T0, T1, T2, T3 = 72, 73, 74, 75
        WARM = 76
        ONE, VW, KB, VST, RX, VWARM, CM, CV, TM, TBS, HI, AB, BM, VH, VK, LO = range(88, 104)
        SW = S_C0
        a(f"s_mul_i32 s{S_T0}, s{S_WAVE}, 2304")
        a(f"s_add_u32 s{S_T0}, s{S_T0}, {R1_OFF}")
        a(f"v_and_b32 v{T1}, 60, {ln}")
        a(f"v_mad_u32_u24 v{T1}, v{T1}, 3, {ln}")
        a(f"v_lshl_add_u32 v{T0}, v{T1}, 4, s{S_T0}")
        a(f"s_mov_b32 s{S_T0}, {R8_OFF - 36*64}")
        a(f"v_lshl_add_u32 v{T1}, v{T1}, 4, s{S_T0}")
        a(f"v_lshrrev_b32 v{T2}, 2, {ln}")
        a(f"v_cmp_gt_u32 vcc, 36, {ln}")
        a(f"v_lshlrev_b32 v{KB}, 11, v{T2}")
        a(f"v_subrev_u32 v{T2}, 9, v{T2}")
        a(f"v_lshlrev_b32 v{T2}, 12, v{T2}")
        a(f"v_cndmask_b32 v{T0}, v{T1}, v{T0}, vcc")
        a(f"v_cndmask_b32 v{KB}, v{T2}, v{KB}, vcc")
        a(f"s_lshl_b32 s{S_T0}, s{S_WAVE}, 12")
        a(f"s_add_u32 s{S_T0}, s{S_T0}, 0x8001")
        a(f"v_mov_b32 v{ONE}, 1")
        a(f"v_mov_b32 v{CM}, 0xf001")
        a(f"v_mov_b32 v{CV}, s{S_T0}")
        a(f"v_cndmask_b32 v{CM}, v{CM}, v{ONE}, vcc")
        a(f"v_cndmask_b32 v{CV}, v{CV}, v{ONE}, vcc")
        a(f"v_cndmask_b32 v{TM}, 0, 28, vcc")
        a(f"v_cndmask_b32 v{TBS}, 32, 0, vcc")
        a(f"v_add_u32 v{TBS}, s{SW}, v{TBS}")
        a(f"v_cmp_gt_u32 vcc, 56, {ln}")
        a(f"v_mov_b32 v{T1}, 0x40000000")
        tw = o["warm"] == 2
        a(f"s_lshr_b32 s{S_T0}, s2, {4 if tw else 3}")
        a(f"s_lshl_b32 s{S_T0}, s{S_T0}, 2")
        a(f"s_add_u32 s{S_T0}, s{S_T0}, s{S_WAVE}")
        a(f"s_mul_i32 s{S_T0}, s{S_T0}, {6144 if tw else 3072}")
        a(f"v_cndmask_b32 v{T0}, v{T1}, v{T0}, vcc")
        if tw:
            a(f"v_min_u32 v{VWARM}, 47, {ln}")
            a(f"v_lshl_add_u32 v{VWARM}, v{VWARM}, 7, s{S_T0}")
        else:
            a(f"v_lshl_add_u32 v{VWARM}, {ln}, 4, s{S_T0}")
        self.waddr(VA, VI8)
        a(f"v_and_b32 v{T2}, 15, {ln}")
        a(f"v_and_b32 v{T1}, 7, {ln}")
        a(f"v_lshlrev_b32 v{BM}, 1, v{T1}")
        a(f"v_lshlrev_b32 v{BM}, v{BM}, v{ONE}")
        a(f"v_lshlrev_b32 v{T1}, 4, v{T1}")
        a(f"v_lshl_add_u32 v{RX}, v{T2}, 7, v{T1}")
        a(f"v_lshl_or_b32 v{RX}, v{RX}, 16, v{RX}")
        a(f"v_lshrrev_b32 v{HI}, 5, {ln}")
        a(f"v_bfe_u32 v{AB}, {ln}, 3, 2")
        a(f"v_lshl_add_u32 v{AB}, v{AB}, 6, s{SW}")
        a(f"v_lshl_add_u32 v{VH}, {ln}, 1, s{SW}")
        a(f"v_lshrrev_b32 v{VK}, 4, {ln}")
        a(f"v_lshl_add_u32 v{VK}, v{VK}, 3, s{SW}")
        a(f"v_lshrrev_b32 v{LO}, 1, {ln}")
        a(f"v_lshlrev_b32 v{LO}, 5, v{LO}")
        a(f"s_mov_b32 s{S_LINK}, 0")
        pre = [f"buffer_load_dwordx4 {vr(E+4*r,4)}, v{T0}, {sr(S_WS,4)}, 0 offen offset:{64*r} {wl}" for r in range(4)]
        warm = [[f"buffer_load_dwordx4 {vr(WARM+4*r,4)}, v{VWARM}, {sr(S_WS,4)}, 0 offen offset:{1024*r} {wl}"] for r in range(3)] if o["warm"] else []
        if tw:
            warm = [[f"buffer_load_dword v{WARM}, v{VWARM}, {sr(S_WS,4)}, 0 offen {wl}"]]
        C = []
        g = lambda *x: C.append(list(x))

        def rank(r):
            m = S_MASK + 2 * r
            return [f"v_and_b32 v{T1}, v{CM}, v{E+r}", f"v_lshrrev_b32 v{T0}, 10, v{E+r}", f"v_cmp_eq_u32 {sr(m,2)}, v{T1}, v{CV}",
                    f"v_and_or_b32 v{TT+r}, v{T0}, v{TM}, v{TBS}",
                    f"s_mov_b64 exec, {sr(m,2)}", f"ds_add_rtn_u32 v{RK+r}, v{TT+r}, v{ONE}", "s_mov_b64 exec, -1"]

        def place(r):
            m = S_MASK + 2 * r
            return [f"v_add_u32 v{T1}, v{RK+r}, v{ST+r}", f"v_and_b32 v{T0}, 0x87e, v{E+r}", f"v_lshl_add_u32 v{T1}, v{T1}, 1, s{SW}",
                    f"v_add_u32 v{T0}, v{KB}, v{T0}", f"s_andn2_b64 exec, {sr(m,2)}, {sr(S_BAD,2)}",
                    f"ds_write_b16_d16_hi v{T1}, v{E+r} offset:{O_X}", f"ds_write_b16 v{T1}, v{T0} offset:{O_K}",
                    f"ds_write_b16 v{T1}, v{E+r} offset:{O_M}", "s_mov_b64 exec, -1"]
        g("@WAIT_E")
        g(f"v_cmp_ne_u32 {sr(S_BAD,2)}, 0, v{E+15}", f"v_cmp_ne_u32 {sr(S_MORE,2)}, 0, v{E+8}")
        for r in range(8):
            g(*rank(r))
        g(f"s_cmp_lg_u64 {sr(S_MORE,2)}, 0", "s_cbranch_scc1 L_more1", "L_more1b:", f"ds_read_b32 v{T0}, v{VW}", f"v_mov_b32 v{T1}, 0")
        self.tailblocks.append("\n".join(["L_more1:"] + [x for r in range(8, 15) for x in rank(r)] + ["s_branch L_more1b"]))
        g("s_waitcnt lgkmcnt(0)", f"s_mov_b64 vcc, {sr(S_EVEN,2)}",
          f"v_cndmask_b32_dpp v{T1}, v{T0}, v{T1}, vcc quad_perm:[0,0,2,2] row_mask:0xf bank_mask:0xf",
          f"v_add_u32 v{VST}, v{LO}, v{T1}", f"v_add_u32 v{T1}, v{T0}, v{T1}", f"v_cmp_lt_u32 vcc, 32, v{T1}",
          f"s_or_b32 s{S_BAD}, s{S_BAD}, s{S_BAD+1}", f"s_and_b32 s{S_T0}, vcc_lo, 0x1ff", f"s_or_b32 s{S_T0}, s{S_T0}, s{S_BAD}",
          "s_cbranch_scc1 L_greedy", "L_greedyb:")
        x = ["L_greedy:", f"s_mov_b32 s{S_T0}, 0", f"s_mov_b32 s{S_LINK}, 1"]
        for t in range(9):
            lo = 32 * (t >> 1)
            x += [f"v_readlane_b32 s{S_T1}, v{T0}, {t}", f"s_max_u32 s{S_T0}, s{S_T0}, {lo}",
                  f"v_writelane_b32 v{VST}, s{S_T0}, {t}", "s_nop 1", f"s_add_u32 s{S_T0}, s{S_T0}, s{S_T1}",
                  f"s_cmp_gt_u32 s{S_T0}, {lo + (64 if t & 1 else 32)}", f"s_cselect_b32 s{S_BAD}, 1, s{S_BAD}"]
        x += [f"s_cmp_lg_u32 s{S_BAD}, 0", f"s_cselect_b64 {sr(S_BAD,2)}, -1, 0",
              f"v_mov_b32 v{T1}, {L_PL + 256}", f"s_mov_b64 exec, {sr(S_BAD,2)}", f"ds_write_b32 v{T1}, v{ONE}", "s_mov_b64 exec, -1",
              "s_branch L_greedyb"]
        self.tailblocks.append("\n".join(x))
        g(*[f"ds_bpermute_b32 v{ST+r}, v{TT+r}, v{VST}" for r in range(8)])
        for r in range(8):
            g(*([f"s_waitcnt lgkmcnt({(7, 9, 11, 13, 15, 15, 15, 15)[r] if r else 7})"] if r < 8 else []), *place(r))
        g(f"s_cmp_lg_u64 {sr(S_MORE,2)}, 0", "s_cbranch_scc1 L_more2", "L_more2b:",
          *[f"ds_read_u16 v{E+r}, v{VH} offset:{O_M+128*r}" for r in range(3)],
          *[f"ds_read2_b64 {vr(V_AD+4*j,4)}, v{VK} offset0:{(O_K+64*j)//8} offset1:{(O_K+64*j+32)//8}" for j in range(5)])
        self.tailblocks.append("\n".join(["L_more2:"] + [f"ds_bpermute_b32 v{ST+r}, v{TT+r}, v{VST}" for r in range(8, 15)] + ["s_waitcnt lgkmcnt(0)"]
                                         + [x for r in range(8, 15) for x in place(r)] + ["s_branch L_more2b"]))
        for r in range(3):
            g(*(["s_waitcnt lgkmcnt(5)"] if r == 0 else []),
              f"v_lshrrev_b32 v{T0}, 12, v{E+r}", f"v_cmp_ne_u32 vcc, 0, v{E+r}", f"v_min_u32 v{T0}, 8, v{T0}", f"v_add3_u32 v{T0}, v{T0}, v{HI}, {2*r}",
              f"v_lshlrev_b32 v{T1}, 4, v{T0}", f"v_lshrrev_b32 v{T0}, 1, v{T0}")
            g(f"v_lshlrev_b32 v{T1}, v{T1}, v{BM}", f"v_lshl_add_u32 v{T0}, v{T0}, 8, v{AB}", f"v_bfe_u32 v{T2}, v{E+r}, 7, 4",
              f"v_lshl_add_u32 v{T0}, v{T2}, 2, v{T0}", "s_mov_b64 exec, vcc", *(["s_mov_b32 exec_hi, 0"] if r == 2 else []),
              f"ds_xor_b32 v{T0}, v{T1} offset:{O_IDX}", "s_mov_b64 exec, -1")
        g(*[f"ds_read_b32 v{V_IR+r}, v{VW} offset:{O_IDX+256*r}" for r in range(7)])
        for j in range(5):
            g(*(["s_waitcnt lgkmcnt(10)"] if j == 0 else []), *[f"v_xor_b32 v{V_AD+4*j+q}, v{RX}, v{V_AD+4*j+q}" for q in range(4)])
        g(*self.bias_store())
        return pre, C, warm + self.wload_list(VA, VI8, o['peel'])

    def emit_build(self, pre, C, G):
        a = self.a
        for x in pre:
            a(x)
        nl = 0
        G = list(G)
        G0 = list(G)

        def load(n=1):
            nonlocal nl
            for _ in range(n):
                if G:
                    for x in G.pop(0):
                        a(x)
                    nl += 1
        acc = 0
        for grp in C:
            if grp[0] == "@WAIT_E":
                load(self.o["l0"])
                a(f"s_waitcnt vmcnt({nl})")
                continue
            if grp[0] in ("s_waitcnt lgkmcnt(0)", "s_waitcnt lgkmcnt(7)", "s_waitcnt lgkmcnt(5)"):
                load(self.o["lw"])
            for x in grp:
                a(x)
            acc += len(grp)
            while acc >= self.o["lper"]:
                acc -= self.o["lper"]
                load()
        if self.o["peel"]:
            self.issued, self.pending = G0[:len(G0) - len(G)], G
            return
        load(len(G) - self.o["ltail"])
        assert len(G) == self.o["ltail"]
        self.late_loads = [x for grp in G for x in grp]

    @staticmethod
    def regs(txt):
        k, body = txt[0], txt[1:].strip("[]")
        lo, hi = (body.split(":") + [body])[:2]
        return [(256 if k == "a" else 0) + r for r in range(int(lo), int(hi) + 1)]

    def emit_line(self, ops, vm, hist=()):
        a = self.a
        lds, hist = [], list(hist)

        def put(op):
            a(op.text)
            hist.append(op)
        for op in ops:
            touched = op.rd | op.wr
            for q, name, cap in ((lds, "lgkmcnt", 15), (vm, "vmcnt", self.o["vcap"])):
                hit = [i for i, w in enumerate(q) if w & touched]
                if hit:
                    n = min(len(q) - 1 - hit[-1], cap)
                    put(Op(f"s_waitcnt {name}({n})", "salu"))
                    del q[:len(q) - n]
            need = 0
            for d, p in enumerate(reversed(hist[-9:])):
                ws = sum(int(x.text[6:]) + 1 if x.text.startswith("s_nop") else 1 for x in hist[len(hist) - d:])
                r = 0
                if p.kind == "mx" and op.kind != "mx" and (p.wr & touched):
                    r = 8
                if p.kind in ("valu", "dpp") and op.kind in ("mx", "dpp") and (p.wr & op.rd):
                    r = 2
                if p.kind == "st" and (p.rd & op.wr):
                    r = 2
                need = max(need, r - ws)
            if need > 0:
                put(Op(f"s_nop {need-1}", "salu"))
            put(op)
            if op.kind == "lds":
                lds.append(op.wr)
            if op.kind in ("ld", "st"):
                vm.append(op.wr)

    def peel(self):
        o = self.o
        AX = V_BR
        acc = lambda m, t: (AX if m == 0 else V_ACC) + 4 * t
        Ba, Bb, Bc, Bd = (V_B + 8 * k for k in range(4))
        dst = lambda g: set(self.regs(g[-1].split()[1].rstrip(",")))
        vm = [dst(g) for g in self.issued]
        loads = [[Op(x, "salu") for x in g[:-1]] + [Op(g[-1], "ld", wr=dst(g))] for g in self.pending]

        def M(m, s, t, b):
            ir, h = aidx(s, t)
            return Op(f"v_smfmac_f32_16x16x64_bf16 {vr(acc(m,t),4)}, {afrag(s,t)}, {vr(b,8)}, v{ir}" + (" abid:1" if h else ""), "mx",
                      rd=list(rng(acc(m, t), 4)) + list(rng(b, 8)) + self.regs(afrag(s, t)) + [ir], wr=rng(acc(m, t), 4))

        def R(m, j, t):
            c, b = j + t, (Bc, Bd)[m]
            return Op(f"v_smfmac_f32_16x16x64_bf16 {vr(acc(m,t),4)}, {vr(V_X,4)}, {vr(b,8)}, v{V_IR+(c>>1)}" + (" abid:1" if c & 1 else ""), "mx",
                      rd=list(rng(acc(m, t), 4)) + list(rng(b, 8)) + list(rng(V_X, 4)), wr=rng(acc(m, t), 4))

        def B(m, s, b):
            return [Op(f"ds_read_b128 {vr(b+4*h,4)}, v{V_RD0+h} offset:{2048*s+TBL*m}", "lds", rd=[V_RD0 + h], wr=rng(b + 4 * h, 4)) for h in range(2)]

        def addr(j, b, r, base):
            ad = V_AD + 4 * j + (b >> 1)
            return Op(f"v_add_u32_sdwa v{r}, s{base}, v{ad} dst_sel:DWORD dst_unused:UNUSED_PAD src0_sel:DWORD src1_sel:WORD_{b&1}", "valu", rd=[ad], wr=[r])
        ops = [Op(f"ds_read_b32 v{V_X}, v{V_X}", "lds", rd=[V_X], wr=[V_X])] + B(0, 0, Ba)
        for m in range(2):
            ops += [Op(f"ds_read_b128 {vr(acc(m,t),4)}, v{V_TAB} offset:{O_BIAS+64*t}", "lds", rd=[V_TAB], wr=rng(acc(m, t), 4)) for t in range(9)]
            ops += loads.pop(0)
        ops += [Op(f"v_readfirstlane_b32 s{S_T0}, v{V_X}", "valu", rd=[V_X]), addr(0, 0, Bc, S_BUF), Op("s_nop 2", "salu"),
                Op(f"s_cmp_lg_u32 s{S_T0}, 0", "salu"), Op("s_cbranch_scc1 L_slow", "salu")]
        ngap = 126 + 26
        rho, credit = len(loads) / (ngap - o["ptail"]), 0.0

        def gap(mx, D=(), V=()):
            nonlocal credit
            ops.append(mx)
            credit += rho
            while credit >= 1 and loads:
                credit -= 1
                ops.extend(loads.pop(0))
            ops.extend(D)
            ops.extend(V)
        for s in range(7):
            for t in range(9):
                D, V = [], []
                if t == 0:
                    D += B(1, s, Bb)
                if s < 5:
                    if t == 8:
                        D.append(Op(f"ds_read_b128 {vr(V_X,4)}, v{V_TAB} offset:{O_X+64*s}", "lds", rd=[V_TAB], wr=rng(V_X, 4)))
                    else:
                        D += [Op(f"ds_read_u16 v{Bd+t}, v{Bc+t} offset:{TBL}", "lds", rd=[Bc + t], wr=[Bd + t]),
                              Op(f"ds_read_u16 v{Bc+t}, v{Bc+t}", "lds", rd=[Bc + t], wr=[Bc + t])]
                        if t < 7:
                            V.append(addr(s, t + 1, Bc + t + 1, S_BUF))
                elif t in (2, 3):
                    D.append(B(1, s + 2, Bc if s == 5 else Bd)[t - 2])
                gap(M(0, s, t, Ba), D, V)
            for t in range(9):
                gap(M(1, s, t, Bb), B(0, s + 1, Ba)[t:t + 1] if t < 2 else [])
            if s < 5:
                rs = [R(m, s, t) for m in (1, 0) for t in RT[s]]
                for n, x in enumerate(rs):
                    gap(x, [], [addr(s + 1, 0, Bc, S_BUF)] if n == len(rs) - 1 and s < 4 else [])
        assert not loads
        ops += B(0, 8, Bb)
        pk = lambda t, h: (AX + 32 + h) if t == 8 else AX + 2 * t + h
        cvt = lambda t: [Op(f"v_cvt_pk_bf16_f32 v{pk(t,h)}, v{acc(0,t)+2*h}, v{acc(0,t)+2*h+1}", "valu",
                            rd=[acc(0, t) + 2 * h, acc(0, t) + 2 * h + 1], wr=[pk(t, h)]) for h in range(2)]
        dpp = "quad_perm:[1,0,3,2] row_mask:0xf bank_mask:0xf"
        stp = o["st"] if o["stp"] is None else o["stp"]

        def exch(v):
            p0, p1, d0 = AX + 8 * v, AX + 8 * v + 4, (V_X, AX + 16)[v]
            x = []
            for half in range(2):
                for d in range(4):
                    if half == 0:
                        x.append(Op(f"v_cndmask_b32_dpp v{d0+d}, v{p1+d}, v{p0+d}, vcc {dpp}", "dpp", rd=[p0 + d, p1 + d], wr=[d0 + d]))
                    else:
                        x.append(Op(f"v_cndmask_b32_dpp v{p1+d}, v{p0+d}, v{p1+d}, vcc {dpp}", "dpp", rd=[p0 + d, p1 + d], wr=[p1 + d]))
                src = d0 if half == 0 else p1
                fl = stp[2 * v + half] if isinstance(stp, (tuple, list)) else stp
                x += [Op(f"buffer_store_dwordx4 {vr(src,4)}, v{V_ST}, {sr(S_OUT,4)}, s{S_OOFF} offen offset:{1152*half+128*v} {fl}", "st",
                         rd=list(rng(src, 4)) + [V_ST]), Op(f"s_mov_b64 vcc, {sr((S_ODD, S_EVEN)[half],2)}", "salu")]
            return x
        p8 = pk(8, 0)
        rdadv = [Op(f"v_add_u32 v{V_RD0+h}, {2*TBL}, v{V_RD0+h}", "valu", rd=[V_RD0 + h], wr=[V_RD0 + h]) for h in range(2)]
        after = {0: rdadv,
                 1: [Op(f"ds_bpermute_b32 v{p8+h}, v{V_BP}, v{p8+h}", "lds", rd=[V_BP, p8 + h], wr=[p8 + h]) for h in range(2)] if o["bperm"] else [],
                 3: [Op(f"buffer_store_dwordx2 {vr(p8,2)}, v{V_ST8}, {sr(S_OUT,4)}, s{S_OOFF} offen {o['st8']}", "st", rd=[p8, p8 + 1, V_ST8])],
                 5: exch(0)[:6], 6: exch(0)[6:], 7: [addr(0, b, V_BR + b, S_BUFN) for b in range(4)],
                 8: [addr(0, b, V_BR + b, S_BUFN) for b in range(4, 8)]}
        for n, t in enumerate(PEEL_T):
            ops += [M(0, 7, t, Ba), M(0, 8, t, Bb)]
            if n:
                ops += cvt(PEEL_T[n - 1])
            ops += after.get(n, [])
        ops += cvt(PEEL_T[-1]) + exch(1)
        self.emit_line(ops, vm)

    def slow_path(self, K):
        a = self.a
        o = self.o
        VA, VI8 = 104, 106
        a("L_slow:")
        a("s_waitcnt vmcnt(0) lgkmcnt(0)")
        a(f"s_mov_b32 s{S_MODE}, 0")
        a("L_sm:")
        a(f"s_lshl_b32 s{S_BASE}, s2, 1")
        a(f"s_add_u32 s{S_BASE}, s{S_BASE}, s{S_MODE}")
        a(f"s_add_u32 s{S_BASE}, s{S_BASE}, 1")
        a(f"s_mul_i32 s{S_BASE}, s{S_BASE}, {COPY}")
        a(f"s_mov_b32 s{S_TASK}, 0")
        a("L_st:")
        self.producer("g", True)
        a(f"s_add_u32 s{S_TASK}, s{S_TASK}, 1")
        a(f"s_cmp_lt_u32 s{S_TASK}, {NTASK}")
        a("s_cbranch_scc1 L_st")
        a(f"s_add_u32 s{S_MODE}, s{S_MODE}, 1")
        a(f"s_cmp_lt_u32 s{S_MODE}, 2")
        a("s_cbranch_scc1 L_sm")
        self.lane_setup()
        self.dma_setup()
        a(f"s_mov_b32 s{S_OUT+2}, {XBYTES}")
        a(f"s_mov_b32 s{S_X+2}, {XBYTES}")
        a(f"s_mov_b32 s{S_IT}, 0")
        a("L_stile:")
        a("s_barrier")
        self.dma_tile()
        for t in range(9):
            a(f"ds_read_b128 {vr(V_ACC+4*t,4)}, v{V_TAB} offset:{O_BIAS+64*t}")
        a(f"s_mov_b32 s{S_MODE}, 0")
        a("L_spass:")
        a(f"s_lshl_b32 s{S_BASE}, s2, 1")
        a(f"s_add_u32 s{S_BASE}, s{S_BASE}, s{S_MODE}")
        a(f"s_add_u32 s{S_BASE}, s{S_BASE}, 1")
        a(f"s_mul_i32 s{S_BASE}, s{S_BASE}, {COPY}")
        self.waddr(VA, VI8)
        for grp in self.wload_list(VA, VI8):
            for x in grp:
                a(x)
        a("s_waitcnt vmcnt(0)")
        a("s_barrier")
        for s in range(9):
            a(f"ds_read_b128 {vr(V_B,4)}, v{V_RD0} offset:{2048*s}")
            a(f"ds_read_b128 {vr(V_B+4,4)}, v{V_RD1} offset:{2048*s}")
            a("s_waitcnt lgkmcnt(0)")
            for t in range(9):
                ir, h = aidx(s, t)
                a(f"v_smfmac_f32_16x16x64_bf16 {vr(V_ACC+4*t,4)}, {afrag(s,t)}, {vr(V_B,8)}, v{ir}" + (" abid:1" if h else ""))
            a("s_nop 7")
        a(f"s_add_u32 s{S_MODE}, s{S_MODE}, 1")
        a(f"s_cmp_lt_u32 s{S_MODE}, 2")
        a("s_cbranch_scc1 L_spass")
        for t in range(7):
            for h in range(2):
                a(f"v_cvt_pk_bf16_f32 v{V_P+2*t+h}, v{V_ACC+4*t+2*h}, v{V_ACC+4*t+2*h+1}")
        a(f"s_mov_b64 vcc, {sr(S_EVEN,2)}")
        self.emit_epi(self.assemble_loop(False, "")[2])
        for r in (S_XOFF, S_XOFF5, S_OOFF):
            a(f"s_add_u32 s{r}, s{r}, s{S_XINC}")
        a(f"s_mov_b32 s{S_XINC}, {256*TB}")
        a(f"s_add_u32 s{S_IT}, s{S_IT}, 1")
        a(f"s_cmp_lt_u32 s{S_IT}, s{S_NT}")
        a("s_cbranch_scc1 L_stile")
        a("s_branch L_fin")

    def loop_ops(self, links, dma, clm=False):
        o = self.o
        acc = lambda t: rng(V_ACC + 4 * t, 4)
        ch = o["chain"]
        bb = lambda s: V_P if (ch and s == 6) else V_B + 8 * BBUF[s]
        RBUF = [V_BR, V_BR + 8, V_BR, V_P + 8 if ch else V_P, V_BR + 8]
        rt = RT if links else [[0, 1], [2, 3], [4, 5], [6, 7], [8]]
        ng = [8, 8, 8, 8, 8 if links else o["ng4"]]

        def M(s, t):
            ir, h = aidx(s, t)
            return Op(f"v_smfmac_f32_16x16x64_bf16 {vr(V_ACC+4*t,4)}, {afrag(s,t)}, {vr(bb(s),8)}, v{ir}" + (" abid:1" if h else ""),
                      "mx", rd=list(acc(t)) + list(rng(bb(s), 8)), wr=acc(t), tag=("M", s, t))

        def R(j, t):
            c = j + t
            return Op(f"v_smfmac_f32_16x16x64_bf16 {vr(V_ACC+4*t,4)}, {vr(V_X,4)}, {vr(RBUF[j],8)}, v{V_IR+(c>>1)}" + (" abid:1" if c & 1 else ""),
                      "mx", rd=list(acc(t)) + list(rng(RBUF[j], 8)) + list(rng(V_X, 4)), wr=acc(t), tag=("R", j, t))
        seq = []
        for t in range(9):
            seq += [M(0, t), M(1, t)]
        if ch:
            for steps, order, rs in (((2, 3), o["ord1"], (0, 1)), ((4, 5, 6), o["ord2"], (2, 3, 4))):
                for n, t in enumerate(order):
                    seq += [M(s, t) for s in steps]
                    if t // 2 in rs and t % 2 == 0:
                        j = t // 2
                        assert t == 8 or order[n + 1] == t + 1
                        seq += [R(j, t)] + ([R(j, t - 1)] if links and j else []) + ([R(j, t + 1)] if t < 8 else [])
        else:
            for s in range(2, 7):
                seq += [M(s, t) for t in range(9)]
        for t in range(9):
            seq += [M(7, t), M(8, t)]
        if ch:
            rpos = [min(i for i, x in enumerate(seq) if x.tag[:2] == ("R", j)) for j in range(5)]
        else:
            rpos = list(o["rposl"] if links else o["rpos"])
            for j in range(5):
                for n, t in enumerate(rt[j]):
                    seq.insert(rpos[j] + n, R(j, t))
        N = len(seq)
        pos = {x.tag: i for i, x in enumerate(seq)}
        BAR = rpos[4] + len(rt[4]) - 1
        c0 = N - 15 - BAR
        assert c0 == (4 if ch else 0)
        self.drain = rpos[4] - 1
        T = lambda g: (g - BAR - 1) % N
        first = lambda s: T(min(pos[("M", s, t)] for t in range(9)))
        lastu = lambda s: max(pos[("M", s, t)] for t in range(9))
        LEAD = o["lead"]
        ST = [[] for _ in range(N)]
        S = [[] for _ in range(N)]
        D = [[] for _ in range(N)]
        V = [[] for _ in range(N)]
        keep = lambda op: (dma or op.tag != "dma") and (clm or op.tag != "clm")

        def pdst(t, h):
            return V_P8 + h if t == 8 else V_P + 2 * t + h
        dq, vq = [], []
        for t in range(9):
            for h in range(2):
                V[c0 + 2 * t + h].append(Op(f"v_cvt_pk_bf16_f32 v{pdst(t,h)}, v{V_ACC+4*t+2*h}, v{V_ACC+4*t+2*h+1}", "valu",
                                       rd=[V_ACC + 4 * t + 2 * h, V_ACC + 4 * t + 2 * h + 1], wr=[pdst(t, h)], tag="epi"))
            dq.append([Op(f"ds_read_b128 {vr(V_ACC+4*t,4)}, v{V_TAB} offset:{O_BIAS+64*t}", "lds", rd=[V_TAB], wr=acc(t), tag="pre"),
                       c0 + 2 * t + 2, c0 + 2 * t + 2, None])
        def stf(e):
            f = o["stc"] if clm else (o["st"] if dma else o["stn"])
            f = o["st"] if f is None else f
            return f[e] if isinstance(f, (tuple, list)) else f
        dpp = "quad_perm:[1,0,3,2] row_mask:0xf bank_mask:0xf"
        stg = [T(g) for g in o["stg"]]
        for v in range(2):
            p0, p1 = V_P + 8 * v, V_P + 8 * v + 4
            d0 = V_T if v == 0 else V_P
            for half in range(2):
                e = 2 * v + half
                for d in range(4):
                    if half == 0:
                        op = Op(f"v_cndmask_b32_dpp v{d0+d}, v{p1+d}, v{p0+d}, vcc {dpp}", "dpp", rd=[p0 + d, p1 + d], wr=[d0 + d], tag="epi")
                    else:
                        op = Op(f"v_cndmask_b32_dpp v{p1+d}, v{p0+d}, v{p1+d}, vcc {dpp}", "dpp", rd=[p0 + d, p1 + d], wr=[p1 + d], tag="epi")
                    vq.append([op, stg[e - 1] if e else c0 + 18, stg[e] - 4 + d, None])
                src = d0 if half == 0 else p1
                ST[stg[e]].append(Op(f"buffer_store_dwordx4 {vr(src,4)}, v{V_ST}, {sr(S_OUT,4)}, s{S_OOFF} offen offset:{1152*half+128*v} {stf(e)}",
                                     "st", rd=list(rng(src, 4)) + [V_ST], tag="epi"))
                ST[stg[e]].append(Op(f"s_mov_b64 vcc, {sr((S_ODD, S_EVEN)[half],2)}", "salu", tag="epi"))
        if o["bperm"]:
            for h in range(2):
                dq.append([Op(f"ds_bpermute_b32 v{V_P8+h}, v{V_BP}, v{V_P8+h}", "lds", rd=[V_BP, V_P8 + h], wr=[V_P8 + h], tag="epi"),
                           c0 + 18, stg[4] - LEAD - 2 + h, None])
        ST[stg[4]].append(Op(f"buffer_store_dwordx2 {vr(V_P8,2)}, v{V_ST8}, {sr(S_OUT,4)}, s{S_OOFF} offen {o['st8']}", "st",
                             rd=[V_P8, V_P8 + 1, V_ST8], tag="epi"))
        rl = lambda j: T(rpos[j] + len(rt[j]) - 1)
        free = [rl(2), 1, rl(0), stg[3 if ch else 2] + 1, rl(1)]
        for j in range(5):
            dl = T(rpos[j]) - LEAD - 1
            for b in range(ng[j]):
                r = RBUF[j] + b
                ad = V_AD + 4 * j + (b >> 1)
                av = Op(f"v_add_u32_sdwa v{r}, s{S_BUFN if j == 0 else S_BUF}, v{ad} dst_sel:DWORD dst_unused:UNUSED_PAD src0_sel:DWORD src1_sel:WORD_{b&1}",
                        "valu", rd=[ad], wr=[r], tag="pre" if j == 0 else "")
                gd = dl - o["gsp"] * (ng[j] - 1 - b)
                vq.append([av, free[j], (N - 2 - (7 - b)) if j == 0 else gd - 1, None])
                dq.append([Op(f"ds_read_u16 v{r}, v{r}", "lds", rd=[r], wr=[r], tag="pre"), 0, gd, None if j == 0 else av])
            dq.append([Op(f"ds_read_b128 {vr(V_X,4)}, v{V_TAB} offset:{O_X+64*j}", "lds", rd=[V_TAB], wr=rng(V_X, 4), tag="pre"),
                       0 if j == 0 else rl(j - 1), dl, None])
        prev = {0: None, 1: None, 2: 7, 3: 8, 4: 0, 5: 1, 6: 4, 7: 2, 8: 3}
        lastb = []
        for s in range(9):
            for h in range(2):
                op = Op(f"ds_read_b128 {vr(bb(s)+4*h,4)}, v{(V_RD0, V_RD1)[h]} offset:{2048*s}", "lds",
                        rd=[(V_RD0, V_RD1)[h]], wr=rng(bb(s) + 4 * h, 4), tag="pre")
                fs = first(s) if s < 7 else (T(rpos[4]) - 2 * (9 - s) if ch else T(pos[("M", s, 0)]))
                rel = 0 if prev[s] is None else T(lastu(prev[s]))
                if ch and s == 6:
                    rel = stg[2] + 1
                dq.append([op, rel, fs - LEAD - 2 + h, None])
                lastb.append(op)
        for h in range(2):
            vq.append([Op(f"v_add_u32 v{V_RD0+h}, s{S_DELTA}, v{V_RD0+h}", "valu", rd=[V_RD0 + h], wr=[V_RD0 + h]), 0, N - 2, lastb])
        sq = []
        dmag = [g + (self.drain - 70) * (g > 50) for g in o["dmag"]]
        assert all(b - a_ >= 2 for a_, b in zip(dmag, dmag[1:]))
        if not o["nodma"]:
            for j, g in enumerate(dmag):
                g = T(g)
                ld = f"buffer_load_dwordx4 v{V_DMA}, {sr(S_X,4)}, s{S_XOFF if j < 4 else S_XOFF5} offen offset:{256*j if j < 4 else 896} {o['ld']} lds"
                if j < 4:
                    D[g].append(Op(ld, "dma", rd=[V_DMA], tag="dma"))
                    S[g - 1].append(Op(f"s_add_u32 m0, s{S_M0B}, {3840*j}", "salu", tag="dma"))
                else:
                    D[g] += [Op(f"s_mov_b64 exec, {sr(S_HALF,2)}", "salu", tag="dma"), Op(ld, "dma", rd=[V_DMA], tag="dma"),
                             Op("s_mov_b64 exec, -1", "salu", tag="dma")]
                    S[g - 1].append(Op(f"s_add_u32 m0, s{S_M0B}, s{S_M05}", "salu", tag="dma"))
                    V[g] = None
        XV = [[] for _ in range(N)]
        if self.dyn:
            gl = T(o["mbg"] + self.drain - 70) - 1
            XV[T(0)].append(Op(f"v_mov_b32 v{V_C}, 1", "valu", wr=[V_C], tag="clm"))
            D[T(1)].append(Op(f"buffer_atomic_add v{V_C}, v{V_BP}, {sr(S_B,4)}, 0 offen sc0 sc1", "dma", rd=[V_BP], tag="clm"))
            assert not D[gl + 1] and not S[gl + 1] and max(stg) <= gl
            gw = gl + 1 if o["cwg"] is None else T(o["cwg"])
            assert gw not in stg and T(1) < gw <= gl + 1
            S[gw].append(Op(f"s_waitcnt vmcnt({sum(1 for g in stg if g < gw) + sum(1 for g in dmag if T(g) < gw)})", "salu", tag="clm"))
            if o["dwg"] is not None and dma and not clm:
                gw = T(o["dwg"])
                assert gw not in stg
                S[gw].append(Op(f"s_waitcnt vmcnt({sum(1 for g in stg if g < gw) + sum(1 for g in dmag if T(g) < gw)})", "salu"))
            D[gl + 1] += [Op(f"s_mov_b64 exec, {sr(S_W0,2)}", "salu", tag="clm"),
                          Op(f"ds_write_b32 v{V_RD0}, v{V_C} offset:{TB}", "lds", rd=[V_RD0], tag="clm"), Op("s_mov_b64 exec, -1", "salu", tag="clm")]
            V[gl + 1] = None
            D[0].append(Op(f"ds_read_b32 v{V_C}, v{V_RD0} offset:{TB}", "lds", rd=[V_RD0], wr=[V_C], tag="clm"))
            XV[LEAD + 1].append(Op(f"v_readfirstlane_b32 s{S_CL}, v{V_C}", "valu", rd=[V_C], tag="clm"))
        placed = {}
        for g in range(N - 1):
            if not D[g] and g != T(N - 1):
                c = [x for x in dq if x[1] <= g and (x[3] is None or placed.get(id(x[3]), N) < g) and x[2] - g <= o["eager"]]
                if c:
                    x = min(c, key=lambda x: x[2])
                    dq.remove(x)
                    D[g].append(x[0])
                    placed[id(x[0])] = g
                    if g > x[2] and o["verbose"]:
                        print("; late D", g - x[2], x[0].text, file=sys.stderr)
            if V[g] is None:
                V[g] = []
                continue
            cap = 2 if (ST[g] and "x4" in ST[g][0].text) else 1
            while len(V[g]) < cap:
                c = [x for x in vq if x[1] <= g and (x[3] is None or all(placed.get(id(y), N) <= g for y in x[3]))]
                if not c:
                    break
                x = min(c, key=lambda x: x[2])
                vq.remove(x)
                V[g].append(x[0])
                placed[id(x[0])] = g
                assert g <= x[2] or x[0].kind != "dpp", ("late", x[0].text)
        assert not dq and not vq, ([x[0].text for x in dq], [x[0].text for x in vq])
        for g in range(N):
            V[g] += XV[g]
        if self.dyn:
            rdup = max(placed[id(x)] for gl_ in V for x in gl_ if id(x) in placed and f"s{S_DELTA}," in x.text)
            assert rdup <= gl and gl + 1 < T(self.drain) and T(min(o["stg"])) > T(1)
        S[N - 1] += ([] if clm else [Op(f"s_waitcnt vmcnt({o['vmw']})", "salu")]) + [Op("s_barrier", "bar")]
        lastdma = T(dmag[4])
        la = max(placed[id(x)] for gl in V for x in gl if id(x) in placed and f"s{S_BUF}," in x.text)
        fn = min(placed[id(x)] for gl in V for x in gl if id(x) in placed and (f"s{S_BUFN}," in x.text or f"s{S_DELTA}," in x.text))
        sq = [([f"s_mov_b32 s{S_BUF}, s{S_BUFN}"], 0, 0),
              ([f"s_cmp_eq_u32 s{S_BUFN}, {(NB-1)*TBL}", f"s_cselect_b32 s{S_DELTA}, {-(NB-1)*TBL}, s{S_CTB}", f"s_add_u32 s{S_BUFN}, s{S_BUFN}, s{S_DELTA}"], c0 + 18, fn),
              ]
        if self.dyn:
            LK = self.dyn[1]
            sq.append((([] if clm else [f"s_mov_b32 s{S_OUT+2}, {XBYTES}"]) + [f"s_mov_b32 s{S_OOFF}, s{S_Q}"]
                       + [f"s_mov_b32 s{S_Q+k}, s{S_Q+k+1}" for k in range(LK - 1)]
                       + [f"s_mov_b32 s{S_Q+LK-1}, s{S_XOFF}" if clm else f"s_add_u32 s{S_Q+LK-1}, s{S_Q+LK-1}, {256*TB}"], stg[4] + 1, N - 2))
        else:
            sq.append(([f"s_mov_b32 s{S_OUT+2}, {XBYTES}", f"s_add_u32 s{S_OOFF}, s{S_OOFF}, s{S_OINC}", f"s_mov_b32 s{S_OINC}, s{S_OINC2}",
                        f"s_mov_b32 s{S_OINC2}, {256*TB}"], stg[4] + 1, N - 2))
        if not clm or o["trace"]:
            sq.append(([f"s_add_u32 s{S_IT}, s{S_IT}, 1"], c0 + 18, N - 2))
        if clm:
            ps = o["psh"]
            sq += [([f"s_add_u32 s{S_XOFF5}, s{S_XOFF}, s{S_K5}"], c0 + 18, lastdma - 2),
                   (self.dma_advance()[2:], lastdma + 1, N + 8),
                   ([f"s_lshr_b32 s{S_CT}, s{S_CL}, {ps}", f"s_mul_i32 s{S_CT}, s{S_CT}, {(256 - (1 << ps))*TB}", f"s_mul_i32 s{S_CT+1}, s{S_CL}, {TB}",
                     f"s_add_u32 s{S_CT}, s{S_CT}, s{S_CB}", f"s_add_u32 s{S_XOFF}, s{S_CT}, s{S_CT+1}"], LEAD + 2, T(N - 1) - 2),
                   ([f"s_cmp_lt_u32 s{S_CL}, {(16 - self.dyn[0]) << ps}"], T(N - 1) - 1, T(N - 1) - 1)]
        else:
            if dma:
                sq += [(self.dma_advance(), lastdma + 1, N + 12)]
            sq.append(([f"s_bitcmp1_b32 s{S_DMASK if dma else S_NMASK}, s{S_IT}"], T(N - 1) - 1, T(N - 1) - 1))
        G = lambda A: [[x for x in A[T(g)] if keep(x)] for g in range(N)]
        return seq, G(ST), G(S), G(D), G(V), [(x, (lo + BAR + 1), (hi + BAR + 1)) for x, lo, hi in sq], BAR

    def assemble_loop(self, links, label, dma=True, clm=False):
        seq, ST, S, D, V, sq, BAR = self.loop_ops(links, dma, clm)
        N = len(seq)
        flat = []
        for rep in range(2):
            for g in range(N):
                a0 = rep * N + g
                flat.append((seq[g], a0 - 1))
                for x in ST[g]:
                    flat.append((x, a0 - 1))
                for x in D[g] + V[g]:
                    flat.append((x, a0))
        gap_of = {}
        k = 0
        lds = []
        for rep in range(2):
            for g in range(N):
                k += 1 + len(ST[g])
                for x in D[g] + V[g]:
                    if x.kind == "lds":
                        lds.append((k, rep * N + g))
                    k += 1
        done = -1
        W = {}
        minlead = 99
        for i, (op, wg) in enumerate(flat):
            touched = op.rd | op.wr
            need = -1
            for n, (k, g) in enumerate(lds):
                if k < i and n > done and (flat[k][0].wr & touched):
                    need = n
            if need >= 0:
                assert lds[need][1] < wg
                issued = [n for n, (k, g) in enumerate(lds) if g < wg]
                cnt = min(issued[-1] - need, 15)
                done = issued[-1] - cnt
                if wg >= N - 1 and wg < 2 * N - 1:
                    W[wg % N] = min(cnt, W.get(wg % N, 99))
                    if self.o["verbose"]:
                        print(f"; wait gap {wg % N} cnt {cnt} lead {wg - lds[need][1]} for {flat[lds[need][0]][0].text}", file=sys.stderr)
        W[self.drain] = 0
        if clm:
            mb = [g for g in range(N) if any("ds_write" in x.text for x in D[g])][0]
            assert not [g for g in W if mb < g < self.drain]
        for g, c in W.items():
            S[g].insert(0, Op(f"s_waitcnt lgkmcnt({c})", "salu"))
        if not self.o["drop"]:
            last = max(g for g in range(BAR + 1) if any(x.kind == "lds" for x in D[g]))
            assert any(W.get(g) == 0 for g in range(last + 1, BAR + 1)), "tile reads not drained at the barrier"

        def room(g, extra=0, resv=True):
            g %= N
            if g == BAR or g == N - 1 or any(x.kind == "dma" for x in D[g]):
                return False
            cap = 1 if D[g] else (2 if V[g] else 3)
            if label and not clm and resv:
                if g == self.drain - 1:
                    return False
                cap -= g == self.drain - 2
            return len(S[g]) + extra < cap and not ST[g]
        sccfree = lambda x: x.text.startswith(("s_waitcnt", "s_mov", "s_barrier"))
        locked = set()
        for texts, lo, hi in sq:
            g = lo
            n = 0
            while n < len(texts):
                chain = [texts[n]]
                if texts[n].startswith(("s_cmp", "s_bitcmp")):
                    while n + len(chain) < len(texts) and texts[n + len(chain)].startswith("s_cselect"):
                        chain.append(texts[n + len(chain)])
                while True:
                    assert g <= hi, ("no room", chain)
                    where, z = [], g
                    ok = room(g) and ((g % N) not in locked or chain[0].startswith("s_mov"))
                    cnt = {}
                    for k, tx in enumerate(chain):
                        while ok and not room(z, cnt.get(z, 0)):
                            z += 1
                            ok = z <= hi and all(sccfree(x) for x in S[z % N]) and (clm or z % N != self.drain - 1)
                        where.append(z)
                        cnt[z] = cnt.get(z, 0) + 1
                    if ok:
                        break
                    g += 1
                for z, tx in zip(where, chain):
                    S[z % N].append(Op(tx, "salu"))
                if len(chain) > 1:
                    locked.update(z % N for z in range(where[0], where[-1]))
                g = where[-1]
                n += len(chain)
        assert all(sccfree(x) for x in S[N - 1])
        if label and not clm:
            gz = self.drain - (2 if self.o["trace"] else 1)
            assert self.o["chain"] and (self.o["trace"] or (not (S[gz] or D[gz] or V[gz] or ST[gz]) and room(gz - 1, 0, False) and (gz - 1) not in locked))
            assert all(x.kind not in ("dma", "st") for g in range(gz, N) for x in D[g] + ST[g]) and max(self.o["stg"]) < min(self.o["dmag"])
            S[gz - (0 if self.o["trace"] else 1)].append(Op(f"s_bitcmp1_b32 s{S_WMASK}, s{S_IT}", "salu"))
            S[gz] += [Op(f"s_cbranch_scc1 {label}_w", "salu"), Op(f"{label}_wb:", "label")]
            self.tailblocks.append(f"{label}_w:\ns_bitcmp1_b32 s{S_WMASK2}, s{S_IT}\ns_waitcnt vmcnt({self.whi})\n"
                                   f"s_cbranch_scc0 {label}_wb\ns_waitcnt vmcnt({self.wlo})\ns_branch {label}_wb")
        if self.o["trace"]:
            g0 = max(g for g, c in W.items() if c == 0 and g <= BAR)
            S[g0 - 1] += [Op("s_memrealtime s[98:99]", "salu"), Op("s_memtime s[96:97]", "salu"), Op(f"s_add_u32 s95, s{S_IT}, 32", "salu")]
            V[g0] += [Op(f"s_mov_b32 m0, s{S_IT}", "salu"), Op("v_writelane_b32 v254, s98, m0", "salu"), Op("s_mov_b32 m0, s95", "salu"), Op("v_writelane_b32 v254, s96, m0", "salu")]
        body = []
        for g in range(N):
            body += [x for x in [seq[g]] if not any(d in x.text for d in self.o["dropm"])] + ST[g] + S[g] + D[g] + V[g]
            if self.o["pad"] and g % self.o["pad"] == 0 and g < N - 2:
                body.append(Op("s_nop 3", "salu"))
        body = [x for x in body if x.kind == "mx" or not any(d in x.text for d in self.o["drop"])]
        body.append(Op(f"s_cbranch_scc1 {label}", "salu"))
        if not self.o["drop"]:
            real = [x for x in body if x.kind != "label"]
            m = len(real)
            for i, op in enumerate(real):
                for d in range(1, 10):
                    p = real[(i - d) % m]
                    ws = d - 1
                    if p.kind == "mx" and op.kind != "mx" and (p.wr & (op.rd | op.wr)):
                        assert ws >= 8, ("mx->x", p.text, op.text, ws)
                    if p.kind in ("valu", "dpp") and op.kind == "mx" and (p.wr & op.rd):
                        assert ws >= 2, ("valu->mx", p.text, op.text, ws)
                    if p.kind in ("valu", "dpp") and op.kind == "dpp" and (p.wr & op.rd):
                        assert ws >= 2, ("valu->dpp", p.text, op.text, ws)
                    if p.kind == "st" and (p.rd & op.wr):
                        assert ws >= 2, ("st war", p.text, op.text, ws)
        pro = [x for g in range(N) for x in V[g] if x.tag == "pre" or (g > BAR and "sdwa" in x.text)] \
            + [x for g in range(BAR + 1, N) for x in D[g] if x.tag == "pre"]
        epi = [x for g in range(BAR) for x in ST[g] + D[g] + V[g] if x.tag == "epi"]
        return pro, body, epi

    def emit_epi(self, epi):
        cv = [x for x in epi if "v_cvt" in x.text]
        bp = [x for x in epi if x.kind == "lds"]
        rest = [x for x in epi if x not in cv and x not in bp]
        ops = rest[:6] + cv[2:] + bp + rest[6:12] + cv[:2] + rest[12:]
        if self.o["ste"] is not None:
            ops = [Op(x.text.replace(" sc1", " " + self.o["ste"]), x.kind, x.rd, x.wr) if x.kind == "st" else x for x in ops]
        hist = [Op("", "mx", wr=rng(V_ACC + 28, 8)), Op("", "valu", wr=rng(V_P, 14)), Op("", "salu")]
        self.emit_line(ops, [], hist)

    def main_loop(self, links, sfx):
        a = self.a
        pro, body, epi = self.assemble_loop(links, "L_loop" + sfx)
        if not self.o["peel"]:
            late = list(self.late_loads)
            for n, op in enumerate(pro):
                a(op.text)
                if n % 6 == 5:
                    while late and not late[0].startswith("buffer"):
                        a(late.pop(0))
                    if late:
                        a(late.pop(0))
            for x in late[:8]:
                a(x)
            a("s_waitcnt lgkmcnt(0)")
            a(f"v_readfirstlane_b32 s{S_T0}, v{V_T}")
            a("s_nop 3")
            a(f"s_cmp_lg_u32 s{S_T0}, 0")
            a("s_cbranch_scc1 L_slow")
            for x in late[8:]:
                a(x)
            if max(p[1] for p in self.pol):
                self.prefetch(24, "L_pf2" + sfx)
            for x in self.dma_advance(first=True):
                a(x)
            a(f"s_waitcnt vmcnt({(20 if self.o['early'] else 0) + 5 * self.n2min})")
            self.stamp(5)
            a(f"s_bitcmp1_b32 s{S_DMASK}, 0")
            a(f"s_cbranch_scc0 L_loopn{sfx}")
        a(".p2align 6")
        a(f"L_loop{sfx}:")
        for op in body:
            a(op.text)
        if self.o["wbl2"] is not None:
            a(f"s_lshr_b32 s{S_T0}, s2, 3")
            a(f"s_and_b32 s{S_T0}, s{S_T0}, {self.o['wbl2']}")
            a(f"s_or_b32 s{S_T0}, s{S_T0}, s{S_WAVE}")
            a(f"s_cbranch_scc1 L_loopn{sfx}")
            a("buffer_wbl2 sc1")
        if self.dyn:
            LK = self.dyn[1]
            a(f"s_cmp_lg_u32 s{S_IT}, {self.cl0}")
            a(f"s_cbranch_scc1 L_loopn{sfx}")
            a(".p2align 3")
            a(f"L_loopc{sfx}:")
            for op in self.assemble_loop(links, "L_loopc" + sfx, True, True)[1]:
                a(op.text)
            if self.o["trace"]:
                a(f"s_add_u32 s{S_NT}, s{S_IT}, {LK}")
                a(f"s_bfm_b32 s{S_NMASK}, s{S_NT}, 0")
                a(f"s_lshl_b32 s{S_WMASK}, {1 << (LK-1)}, s{S_IT}")
                a(f"s_lshl_b32 s{S_WMASK2}, {(1 << (LK-1)) if 5*(LK-1) < self.whi else 0}, s{S_IT}")
            else:
                a(f"s_mov_b32 s{S_IT}, 0")
                a(f"s_mov_b32 s{S_NT}, {LK}")
                a(f"s_mov_b32 s{S_NMASK}, {(1 << LK) - 1}")
                a(f"s_mov_b32 s{S_WMASK}, {(1 << (LK-1)) if 5*(LK-1) < self.o['vmw'] else 0}")
                a(f"s_mov_b32 s{S_WMASK2}, {(1 << (LK-1)) if 5*(LK-1) < self.whi else 0}")
            a(f"s_mov_b32 s{S_CL0}, -1")
        if self.o["align2"]:
            a(".p2align 3")
        a(f"L_loopn{sfx}:")
        _, body, epi = self.assemble_loop(links, "L_loopn" + sfx, False)
        for op in body:
            a(op.text)
            if op.kind == "bar":
                a(f"L_loopn{sfx}_p3:")
        if self.dyn:
            a(f"s_cmp_eq_u32 s{S_IT}, s{S_CL0}")
            a(f"s_cbranch_scc1 L_loopc{sfx}")
        a(f"s_cmp_lt_u32 s{S_IT}, s{S_NT}")
        a(f"s_cbranch_scc1 L_loop{sfx}")
        self.emit_epi(epi)

    def loop_state(self):
        a = self.a
        pl = 2 if self.o["peel"] else 0
        a(f"s_mov_b32 s{S_IT}, {pl}")
        a(f"s_mov_b32 s{S_BUF}, 0")
        a(f"s_mov_b32 s{S_BUFN}, {pl*TBL}")
        if pl:
            a(f"s_mov_b32 s{S_OUT+2}, {XBYTES}")
        a(f"s_mov_b32 s{S_CTB}, {TBL}")
        a(f"s_mov_b32 s{S_OINC}, {256*TB if pl else 0}")
        a(f"s_mov_b64 vcc, {sr(S_EVEN,2)}")
        if self.dyn:
            NS, LK = self.dyn
            ps = self.o["psh"]
            a(f"s_andn2_b32 s{S_NMASK}, {(1 << self.cl0) - 1}, s{S_DMASK}")
            a(f"s_mov_b32 s{S_CL0}, {self.cl0}")
            a(f"s_add_u32 s{S_Q}, s{S_OOFF}, {pl*256*TB}")
            for k in range(1, LK):
                a(f"s_add_u32 s{S_Q+k}, s{S_Q+k-1}, {256*TB}")
            a(f"s_sub_u32 s{S_K5}, s{S_XOFF5}, s{S_XOFF}")
            a(f"s_lshr_b32 s{S_T0}, s2, {ps}")
            a(f"s_mul_i32 s{S_CB}, s{S_T0}, {TB << ps}")
            a(f"s_add_u32 s{S_CB}, s{S_CB}, {NS*256*TB}")
            a(f"s_lshl_b32 s{S_T0}, s{S_T0}, 7")
            a(f"s_add_u32 s{S_T0}, s{S_T0}, {CNT_OFF}")
            a(f"s_add_u32 s{S_B}, s{S_WS}, s{S_T0}")
            a(f"s_addc_u32 s{S_B+1}, s{S_WS+1}, 0")
            a(f"s_cmp_eq_u32 s{S_WAVE}, 0")
            a(f"s_cselect_b32 s{S_B+2}, 4, 0")
            a(f"s_cselect_b64 {sr(S_W0,2)}, 1, 0")
        else:
            a(f"s_bfm_b32 s{S_NMASK}, s{S_NT}, 0")
            a(f"s_andn2_b32 s{S_NMASK}, s{S_NMASK}, s{S_DMASK}")

    def stamp(self, n, r="s[98:99]"):
        if self.o["stamp"] and (self.o["stamp"] is True or n in self.o["stamp"]):
            a = self.a
            a(f"s_memtime {r}" if self.o["cyc"] and n in (5, 6) else f"s_memrealtime {r}")
            a("s_waitcnt lgkmcnt(0)")
            a(f"v_writelane_b32 v255, s{r[2:4]}, {n}")

    def descriptor(self, label, vg, ag):
        self.a(f""".amdhsa_kernel {label}
  .amdhsa_next_free_vgpr {vg}
  .amdhsa_next_free_sgpr 102
  .amdhsa_accum_offset {ag}
  .amdhsa_group_segment_fixed_size 0
  .amdhsa_float_denorm_mode_32 3
  .amdhsa_kernarg_size 48
  .amdhsa_user_sgpr_count 2
  .amdhsa_user_sgpr_kernarg_segment_ptr 1
  .amdhsa_system_sgpr_workgroup_id_x 1
.end_amdhsa_kernel""")

    def flush_tail(self):
        for b in self.tailblocks:
            self.a(b)
        self.tailblocks = []

    def gen(self):
        a = self.a
        o = self.o
        K = NAME + "_kernel"
        a(open("cdna_kernels/" + NAME + ".s.ref").read().split("; Override")[0].rstrip())
        if o["fused"]:
            a(f"; @launch grid=(256,1,1) block=(256,1,1) lds={LDS_BYTES}")
        else:
            a(f"; @launch kernel=prep_kernel grid=({NTASK},1,1) block=(256,1,1) lds={LDS_BYTES}")
            a(f"; @launch kernel={K} grid=(256,1,1) block=(256,1,1) lds={LDS_BYTES}")
        a('.amdgcn_target "amdgcn-amd-amdhsa--gfx950"\n.text')
        if not o["fused"]:
            self.entry("prep_kernel", NTASK)
            a(f"s_mov_b32 s{S_TASK}, s2\ns_mov_b32 s{S_BASE}, 0")
            self.producer("", False)
            a("L_end_prep_kernel:\ns_endpgm")
            self.flush_tail()
        self.entry(K, 256)
        a(f"s_mov_b32 s{S_BASE}, 0")
        msk = lambda p: hex(sum(1 << i for i in p[2] if not self.dyn or i < self.cl0) | p[0] << 20 | p[1] << 24)
        def pick(reg, vals):
            if len(set(vals)) == 1:
                a(f"s_mov_b32 s{reg}, {vals[0]}")
                return
            a(f"s_mov_b32 s{reg}, {vals[1]}")
            a(f"s_mov_b32 s{S_T0}, {vals[3]}")
            a(f"s_bitcmp1_b32 s2, {o['gsh']}")
            a(f"s_cselect_b32 s{reg}, s{reg}, {vals[0]}")
            a(f"s_cselect_b32 s{S_T0}, s{S_T0}, {vals[2]}")
            a(f"s_bitcmp1_b32 s2, {o['gsh2']}")
            a(f"s_cselect_b32 s{reg}, s{S_T0}, s{reg}")
        if o["fused"]:
            px = o["px"]
            a(f"s_lshr_b32 s{S_TASK}, s2, 3")
            a(f"s_mul_i32 s{S_TASK}, s{S_TASK}, {px}")
            a(f"s_and_b32 s{S_T0}, s2, 7")
            a(f"s_add_u32 s{S_TASK}, s{S_TASK}, s{S_T0}")
            a(f"s_cmp_lt_u32 s{S_T0}, {px}")
            a(f"s_cselect_b32 s{S_TASK}, s{S_TASK}, 63")
            a(f"s_cmp_lt_u32 s{S_TASK}, {NTASK}")
            a("s_cbranch_scc1 L_prod")
        pick(S_DMASK, [msk(p) for p in self.pol[:4]])
        self.lane_setup()
        self.entry_wait()
        a("L_cons3:")
        self.stamp(1)
        self.dma_setup()
        self.prefetch(20)
        self.stamp(2)
        if o["fused"]:
            a("s_branch L_rest")
            a("L_prod:")
            self.producer("", False)
            pick(S_DMASK, [msk(p) for p in self.pol[4:]] * 2)
            a("s_barrier")
            a(f"s_cmp_lg_u32 s{S_WAVE}, 0")
            a("s_cbranch_scc1 L_cons2")
            a("v_mov_b32 v8, 1")
            a("s_mov_b64 exec, 1")
            a(f"buffer_atomic_add v8, off, {sr(S_DBG,4)}, 0 offset:128 sc0 sc1")
            a("v_mov_b32 v9, 1")
            a("s_waitcnt vmcnt(0)")
            a(f"v_readfirstlane_b32 s{S_T0}, v8")
            a("s_nop 3")
            a(f"s_cmp_lg_u32 s{S_T0}, {NTASK-1}")
            a("s_cbranch_scc1 L_notlast")
            a(f"buffer_store_dword v9, off, {sr(S_DBG,4)}, 0 {o['fs']}")
            a("L_notlast:")
            self.stamp(15)
            a("s_mov_b64 exec, -1")
            a("L_cons2:")
            self.lane_setup()
            if o["bar2"]:
                a("s_barrier")
            a("s_branch L_cons3")
            self.flush_tail()
            a("L_rest:")
        for reg, wm in ((S_WMASK, self.wmask), (S_WMASK2, self.wmask2)):
            pick(reg, [hex(x) for x in wm[:4]])
            if o["fused"]:
                pick(S_T1, [hex(x) for x in wm[4:]] * 2)
                a(f"s_cmp_lt_u32 s{S_TASK}, {NTASK}")
                a(f"s_cselect_b32 s{reg}, s{S_T1}, s{reg}")
        self.bias_load()
        self.lane_setup2()
        self.tables_init()
        pre, C, G = self.build()
        if o["fused"]:
            a(f"s_cmp_lg_u32 s{S_WAVE}, 0")
            a("s_cbranch_scc1 L_ready")
            a("s_mov_b64 exec, 1")
            a(f"s_mov_b32 s{S_T1}, {o['maxpoll']}")
            if o["stamp"] and (o["stamp"] is True or 14 in o["stamp"]):
                a("s_waitcnt vmcnt(0)")
                self.stamp(14)
            a("L_poll:")
            if o["psleep"]:
                a(f"s_sleep {o['psleep']}")
            a(f"buffer_load_dword v8, off, {sr(S_DBG,4)}, 0 {o['pl']}")
            a(f"s_sub_u32 s{S_T1}, s{S_T1}, 1")
            a("s_cbranch_scc1 L_giveup")
            a("s_waitcnt vmcnt(0)")
            a(f"v_readfirstlane_b32 s{S_T0}, v8")
            a("s_nop 3")
            a(f"s_cmp_eq_u32 s{S_T0}, 0")
            a("s_cbranch_scc1 L_poll")
            a("L_polled:")
            a("s_mov_b64 exec, -1")
            a("L_ready:")
            self.tailblocks.append(f"L_giveup:\ns_waitcnt vmcnt(0)\nv_mov_b32 v8, {L_PL + 256}\nv_mov_b32 v9, 1\nds_write_b32 v8, v9\ns_branch L_polled")
        a("s_waitcnt lgkmcnt(0)")
        a("s_barrier")
        self.stamp(3)
        self.emit_build(pre, C, G)
        self.stamp(4, "s[94:95]")
        self.loop_state()
        a("s_waitcnt lgkmcnt(0)")
        a(f"v_mov_b32 v{V_X if o['peel'] else V_T}, {L_PL + 256}")
        a("s_barrier")
        if o["peel"]:
            self.peel()
            if max(p[1] for p in self.pol):
                self.prefetch(24, "L_pf2")
            for x in self.dma_advance(first=True):
                a(x)
            a(f"s_add_u32 s{S_OOFF}, s{S_OOFF}, {256*TB}")
            self.stamp(5)
            a("s_waitcnt lgkmcnt(0)")
            a("s_barrier")
            if o["links"] is None:
                a(f"s_cmp_lg_u32 s{S_LINK}, 0")
                a("s_cbranch_scc1 L_loopnk_p3")
            a("s_branch L_loopn_p3")
        else:
            a(f"ds_read_b32 v{V_T}, v{V_T}")
            if o["links"] is None:
                a(f"s_cmp_lg_u32 s{S_LINK}, 0")
                a("s_cbranch_scc1 L_linked")
        self.main_loop(bool(o["links"]), "")
        a("L_fin:")
        if o["stamp"]:
            a(f"v_mbcnt_lo_u32_b32 v{V_LANE}, -1, 0\nv_mbcnt_hi_u32_b32 v{V_LANE}, -1, v{V_LANE}")
        self.stamp(6)
        if o["stamp"]:
            a("s_waitcnt vmcnt(0)")
            self.stamp(7)
            a("v_writelane_b32 v255, s100, 0")
            a(f"s_lshl_b32 s{S_T0}, s2, 2\ns_add_u32 s{S_T0}, s{S_T0}, s{S_WAVE}\ns_lshl_b32 s{S_T0}, s{S_T0}, 6")
            a(f"s_add_u32 s{S_T0}, s{S_T0}, {WSBYTES - 65536}")
            if o["trace"]:
                a(f"s_lshl_b32 s{S_T1}, s2, 2\ns_add_u32 s{S_T1}, s{S_T1}, s{S_WAVE}\ns_lshl_b32 s{S_T1}, s{S_T1}, 8")
                a(f"s_add_u32 s{S_T1}, s{S_T1}, {WSBYTES - 65536 - 262144}")
                a(f"v_lshl_add_u32 v8, v{V_LANE}, 2, s{S_T1}")
                a(f"buffer_store_dword v254, v8, {sr(S_WS,4)}, 0 offen")
                a("s_nop 1")
            a(f"v_lshl_add_u32 v254, v{V_LANE}, 2, s{S_T0}")
            a("s_mov_b32 exec_lo, 0xffff\ns_mov_b32 exec_hi, 0")
            a(f"buffer_store_dword v255, v254, {sr(S_WS,4)}, 0 offen")
            if o["diag"]:
                n1, n0, wg, mul = o["diag"]
                a(f"s_cmp_lg_u32 s2, {wg}\ns_cbranch_scc1 L_end_{K}\ns_cmp_lg_u32 s{S_WAVE}, 0\ns_cbranch_scc1 L_end_{K}")
                a(f"v_readlane_b32 s60, v255, {n1}\nv_readlane_b32 s61, v255, {n0}\ns_nop 3\ns_sub_u32 s60, s60, s61\ns_mul_i32 s60, s60, {mul}")
                a("s_min_u32 s60, s60, 100000\ns_add_u32 s60, s60, 10000")
                a("L_diag:\ns_sleep 1\ns_memrealtime s[62:63]\ns_waitcnt lgkmcnt(0)\ns_sub_u32 s62, s62, s100\ns_cmp_lt_u32 s62, s60\ns_cbranch_scc1 L_diag")
        a(f"L_end_{K}:\ns_endpgm")
        self.flush_tail()
        if o["links"] is None:
            a("L_linked:")
            self.main_loop(True, "k")
            a("s_branch L_fin")
            self.flush_tail()
        self.slow_path(K)
        a('.section .rodata,"a"\n.p2align 6')
        if not o["fused"]:
            self.descriptor("prep_kernel", 128, 128)
            a(".p2align 6")
        self.descriptor(K, 512, 256)
        return "\n".join(self.L) + "\n"


if __name__ == "__main__":
    opts = eval("dict(" + (sys.argv[2] if len(sys.argv) > 2 else "") + ")")
    out = sys.argv[1] if len(sys.argv) > 1 else "cdna_kernels/" + NAME + ".s"
    open(out, "w").write(Gen(**opts).gen())
```

```python
import sys

NAME = "standalone__structured_sparse_n_m__ragged"
TB = 18432
TBL = TB + 128
NB = 8
CNT_OFF = 1 << 28
XBYTES = 75497472
WBYTES = 663552
WSBYTES = 301989888
A_OFF = 0
I_OFF = 331776
I8_OFF = I_OFF + 36864
R1_OFF = I8_OFF + 5120
R8_OFF = R1_OFF + 9216
COPY = 393216
NTASK = 41
L_WV = NB * TBL
WV_SZ = 3584
O_X, O_K, O_M, O_BIAS, O_IDX = 64, 384, 704, 1024, 1792
L_PL = L_WV + 4 * WV_SZ
LDS_BYTES = 163840
assert L_PL + 512 <= LDS_BYTES and L_WV % 256 == 0 and WV_SZ % 256 == 0

V_RD0, V_RD1, V_TAB, V_DMA, V_ST, V_ST8, V_BP, V_LANE = 0, 1, 2, 3, 4, 5, 6, 7
V_ACC = 8
V_B = 44
V_BR = 76
V_P = 92
V_T = 108
V_P8 = 112
V_X = 114
V_AD = 118
V_I = 138
V_I8 = 174
V_IR = 179
V_A = 186
S_X, S_OUT, S_WS, S_W, S_B, S_DBG = 16, 20, 24, 28, 32, 36
S_WAVE = 40
S_IT, S_BUF, S_DELTA, S_M0B, S_XOFF, S_OOFF = 41, 42, 43, 44, 45, 46
S_T0, S_T1 = 47, 3
S_MASK = 48
S_EVEN, S_ODD = 80, 82
S_TASK, S_TEND, S_BASE, S_MODE, S_CONT = 84, 85, 86, 87, 88
S_BAD = 90
S_MORE, S_LINK = 78, 89
S_C0 = 93
S_BUFN, S_CTB, S_OINC, S_XOFF5, S_M05, S_M0W, S_HALF = 4, 5, 6, 7, 8, 9, 10
S_NMASK = 12
S_WMASK, S_WMASK2 = 92, 87
S_XINC, S_OINC2, S_NT = 13, 14, 15
S_Q, S_CL, S_CB, S_K5, S_CL0, S_CT, S_W0 = 48, 56, 57, 58, 59, 60, 62
V_C = 7
S_DMASK, S_NB0 = 85, 88


def vr(b, n=1):
    return f"v{b}" if n == 1 else f"v[{b}:{b+n-1}]"


def sr(b, n=1):
    return f"s{b}" if n == 1 else f"s[{b}:{b+n-1}]"


def afrag(s, t):
    f = 9 * s + t
    return f"a[{4*f}:{4*f+3}]" if f < 64 else vr(V_A + 4 * (f - 64), 4)


def aidx(s, t):
    if t < 8:
        return V_I + 4 * s + (t >> 1), t & 1
    return V_I8 + (s >> 1), s & 1


BBUF = [0, 1, 2, 3, 0, 1, 0, 2, 3]
PEEL_T = [8, 0, 1, 2, 3, 4, 5, 6, 7]
RT = [[0, 1], [1, 2, 3], [3, 4, 5], [5, 6, 7], [7, 8]]


class Op:
    def __init__(self, text, kind, rd=(), wr=(), tag=""):
        self.text, self.kind, self.rd, self.wr, self.tag = text, kind, set(rd), set(wr), tag


def rng(b, n):
    return range(b, b + n)


class Gen:
    def __init__(self, **o):
        self.o = dict(fused=True, ld="nt", st="sc1", bperm=True, grp=None, nb0=None, gsh=3, gsh2=4, split=0, dyn=(10, 3), psh=6, peel=True, ptail=10, vcap=18, stp=None, stt=None, ste=None, mbg=64, cwg=46, dwg=20, wbl2=None, stn=None, pad=0, dropm=(), st8='', stc=None, stamp=False, nodma=False, wl="sc1", ws="sc1",
                      vmw=20, lper=14, drop=(), cyc=False, links=None, ng4=8, px=2, maxpoll=20000, warm=True, bcast=True, l0=12, lw=2, cwarm=True, pspread=True, pfw=None, wtouch=False, bar2=True, early=True, ltail=24, coal=True, rpos=(18, 35, 50, 63, 75), rposl=(18, 36, 52, 66, 78),
                      lead=8, stg=(9, 16, 23, 30, 37), dmag=(44, 52, 60, 63, 66), gsp=2, eager=99, verbose=False, hack=None, diag=None, sig=1, psleep=0, pl='sc1', fs='sc1', isort=False, trace=False, chain=True, ord1=(0,1,4,5,6,2,3,7,8), ord2=(0,4,5,1,6,7,2,3,8), align2=True, order='hp')
        self.o.update(o)
        if self.o["grp"] is None and self.o["nb0"] is None:
            self.o.update(grp=[(3, 2, 2), (8, 0, 5), (3, 2, 2)])
        grp = self.o["grp"] or [(self.o["nb0"], 0, 0)] * 2
        if len(grp) != 6:
            grp = list(grp[:-1]) * (4 // (len(grp) - 1)) + [grp[-1]] * 2
        sp = self.o["split"]
        if sp:
            self.o["gsh"], self.o["gsh2"] = 0, 3
        self.pol, self.nt = [], []
        for c, (n1, n2, its) in enumerate(grp):
            nt = 16 + (sp if c % 2 == 0 else -sp)
            nb = n1 + n2
            its = list(its) if isinstance(its, (list, tuple)) else [its]
            while len(its) < nt - nb:
                its.append(its[-1] + 1)
            assert len(its) == nt - nb and all(nb + n - 7 <= i <= nb + n - 2 for n, i in enumerate(its)) and n1 >= 1, (n1, n2, its)
            self.pol.append((n1, n2, its))
            self.nt.append(nt)
        self.dyn = self.o["dyn"]
        if self.dyn:
            NS, LK = self.dyn
            self.cl0 = NS - LK - 1
            assert not sp and all(its[NS - 1 - n1 - n2] == self.cl0 and its[-1] == 15 - LK for n1, n2, its in self.pol) and self.cl0 >= 1
        self.n2min = min(p[1] for p in self.pol)
        req = []
        for (n1, n2, its), nt in zip(self.pol, self.nt):
            r = [63] * nt
            for tile in range(n1, nt):
                i = tile - 1
                a0 = (1 if self.o["peel"] else -1) if tile < n1 + n2 else its[tile - n1 - n2]
                r[i] = sum(10 if j in its else 5 for j in range(a0 + 1, i + 1)) + 5 * max(0, n1 + n2 - 1 - tile)
                if a0 < 0:
                    r[i] -= 5
            if self.o["peel"]:
                assert n1 >= 3 and its[0] >= 2 and not sp
            elif self.o["early"]:
                r[0] = min(r[0], 5 * n2 + (5 if 0 in its else 0))
            if self.dyn:
                r = r[:self.cl0] + [5 * (self.dyn[1] - 1)]
            req.append(r)
        low = sorted({x for r in req for x in r if x < self.o["vmw"]})
        self.wlo = low[0] if low else 0
        best = None
        for hi in low or [0]:
            cost = sum(x - (hi if x >= hi else self.wlo) for r in req[:4] for x in r[1:] if x < self.o["vmw"])
            if best is None or cost < best[0]:
                best = (cost, hi)
        self.whi = best[1]
        self.wmask = [sum(1 << (i + 1) for i, x in enumerate(r) if x < self.o["vmw"]) for r in req]
        self.wmask2 = [sum(1 << (i + 1) for i, x in enumerate(r) if x < self.whi) for r in req]
        self.req = req
        self.L = []
        self.tailblocks = []

    def a(self, s):
        self.L.extend(s.split("\n"))

    def entry(self, label, nwg):
        a = self.a
        a(f".globl {label}\n.p2align 8\n.type {label},@function\n{label}:")
        a("s_load_dwordx8 s[4:11], s[0:1], 0")
        a("s_load_dwordx4 s[12:15], s[0:1], 32")
        a(f"s_cmp_ge_u32 s2, {nwg}")
        a(f"s_cbranch_scc1 L_end_{label}")
        if self.o["stamp"]:
            a("s_memrealtime s[100:101]")
        a("v_lshlrev_b32 v3, 7, v0")
        if self.o["cwarm"]:
            a("s_getpc_b64 s[96:97]")
            a(f"v_min_u32 v2, L_slow-{label}, v3")
            a("global_load_dword v120, v2, s[96:97]")
        if self.o["wtouch"]:
            a(f"s_lshr_b32 s{S_T0}, s2, 3")
            a(f"s_mul_i32 s{S_T0}, s{S_T0}, {162*128}")
            a(f"v_add_u32 v3, s{S_T0}, v3")
            a(f"v_min_u32 v3, {WBYTES-128}, v3")
            a(f"s_and_b32 s{S_T0}, s2, {8 - self.o['px']}")
            a("s_waitcnt lgkmcnt(0)")
            a(f"s_cbranch_scc1 L_nt_{label}")
            a("global_load_dword v121, v3, s[6:7]")
            a(f"L_nt_{label}:")
        a("v_lshrrev_b32 v1, 6, v0")
        a(f"v_and_b32 v{V_LANE}, 63, v0")
        a(f"v_readfirstlane_b32 s{S_WAVE}, v1")

    def srds(self, which):
        for srd, p, size in ((S_W, 6, WBYTES), (S_X, 4, XBYTES), (S_WS, 14, WSBYTES), (S_B, 8, 1152), (S_OUT, 10, 0), (S_DBG, 12, 256)):
            if srd in which:
                self.a(f"s_mov_b32 s{srd+2}, {size}")
                self.a(f"s_mov_b32 s{srd+3}, 0x20000")
                self.a(f"s_mov_b32 s{srd}, s{p}")
                self.a(f"s_and_b32 s{srd+1}, s{p+1}, 0xffff")

    def entry_wait(self, first=None):
        lst = (S_W, S_X, S_WS, S_B, S_OUT, S_DBG)
        if first is not False:
            self.a("s_waitcnt lgkmcnt(0)")
        self.srds(lst if first is None else (lst[:1] if first else lst[1:]))

    def producer(self, sfx, generic):
        a = self.a
        ws = self.o["ws"]
        W, Z, K = 8, 24, 28
        OA, NB_, IX = 36, 44, 48
        VL, VA, VI, VM0, VM1, VSEL, CJ = 50, 51, 52, 53, 54, 55, 56
        F0, F1, H, U, T0, T1, T2, VLI, VA2 = 58, 59, 60, 61, 62, 63, 64, 65, 66
        C = S_MASK
        SEL = S_MASK + 16
        CNT = S_MASK + 27
        ln = f"v{V_LANE}"
        a(f"s_and_b32 s{C}, s{S_TASK}, 3")
        a(f"s_lshr_b32 s{C+1}, s{S_TASK}, 2")
        a(f"s_sub_u32 s{C+2}, s{S_TASK}, 36")
        a(f"s_lshl_b32 s{C+3}, s{S_WAVE}, 4")
        a(f"s_lshl_b32 s{C+4}, s{C+2}, 1")
        a(f"s_lshl_b32 s{C+5}, s{C}, 8")
        a(f"s_cmp_lt_u32 s{S_TASK}, 36")
        a(f"s_cselect_b32 s{C+4}, s{C+1}, s{C+4}")
        a(f"s_cselect_b32 s{C+5}, s{C+5}, 1024")
        a(f"s_cselect_b32 s{C+6}, 8, 73728")
        a(f"s_cselect_b32 s{C+7}, 32, 8")
        a(f"s_cselect_b32 s{C+8}, 16, 32")
        a(f"s_cselect_b32 s{C+9}, 128, 64")
        a(f"s_mul_i32 s{C+4}, s{C+4}, 73728")
        a(f"s_mul_i32 s{C+10}, s{S_WAVE}, 18432")
        a(f"v_and_b32 v{F0}, 1, {ln}")
        a(f"v_bfe_u32 v{F1}, {ln}, 1, 1")
        a(f"v_bfe_u32 v{H}, {ln}, 2, 2")
        a(f"v_bfe_u32 v{T0}, {ln}, 4, 1")
        a(f"v_lshrrev_b32 v{T1}, 5, {ln}")
        a(f"v_lshl_add_u32 v{VL}, v{F0}, 2, s{C+4}")
        a(f"v_mad_u32_u24 v{VL}, v{F1}, s{C+6}, v{VL}")
        a(f"v_mad_u32_u24 v{VL}, v{H}, s{C+7}, v{VL}")
        a(f"v_mad_u32_u24 v{VL}, v{T0}, s{C+8}, v{VL}")
        a(f"v_mad_u32_u24 v{VL}, v{T1}, s{C+9}, v{VL}")
        a(f"v_add_u32 v{VL}, s{C+5}, v{VL}")
        a(f"v_add_u32 v{VL}, s{C+10}, v{VL}")
        a(f"v_add_u32 v{T0}, 4608, v{VL}")
        a(f"v_add_u32 v{T1}, 9216, v{VL}")
        a(f"v_add_u32 v{T2}, 13824, v{VL}")
        if not generic:
            self.entry_wait(first=True)
        for q in range(4):
            for j in range(4):
                a(f"buffer_load_dword v{W+4*q+j}, v{(VL, T0, T1, T2)[q]}, {sr(S_W,4)}, 0 offen offset:{1152*j}")
        if not generic:
            self.stamp(8)
            self.entry_wait(first=False)
        a(f"s_mul_i32 s{C+4}, s{C}, 9")
        a(f"s_add_u32 s{C+4}, s{C+4}, s{C+1}")
        a(f"s_mul_i32 s{C+5}, s{C+4}, 9")
        a(f"s_mul_i32 s{C+6}, s{C+2}, 18")
        a(f"s_add_u32 s{C+6}, s{C+6}, 8")
        a(f"s_lshl_b32 s{C+7}, s{C+4}, 2")
        a(f"s_add_u32 s{C+7}, s{C+7}, s{S_WAVE}")
        a(f"s_lshl_b32 s{C+8}, s{C+2}, 2")
        a(f"s_add_u32 s{C+8}, s{C+8}, s{S_WAVE}")
        a(f"s_cmp_eq_u32 s{S_TASK}, 40")
        a(f"s_cselect_b32 s{C+9}, 0x100000, 9")
        a(f"s_cmp_lt_u32 s{S_TASK}, 36")
        a(f"s_cselect_b32 s{C+5}, s{C+5}, s{C+6}")
        a(f"s_cselect_b32 s{C+6}, 2, 81")
        a(f"s_cselect_b32 s{C+9}, 1, s{C+9}")
        a(f"s_cselect_b32 s{C+7}, s{C+7}, s{C+8}")
        a(f"s_mov_b32 s{C+8}, {I_OFF}")
        a(f"s_cselect_b32 s{C+8}, s{C+8}, {I8_OFF}")
        a(f"s_mov_b32 s{C+10}, {R1_OFF}")
        a(f"s_cselect_b32 s{C+10}, s{C+10}, {R8_OFF}")
        a(f"s_cselect_b32 s{C+11}, 16, 4")
        a(f"s_cselect_b32 s{C+12}, 4, 64")
        a(f"s_cselect_b32 s{C+13}, 12, 11")
        a(f"s_cselect_b32 s{C+14}, 1, 0x8001")
        a(f"v_lshrrev_b32 v{U}, 4, {ln}")
        a(f"v_lshlrev_b32 v{T0}, 1, v{F0}")
        a(f"v_lshl_add_u32 v{H}, v{H}, 2, v{T0}")
        a(f"v_add_u32 v{T0}, v{H}, v{F1}")
        a(f"v_mul_u32_u24 v{VA}, s{C+6}, v{U}")
        a(f"v_add_lshl_u32 v{VA}, v{VA}, s{C+5}, 6")
        a(f"v_add3_u32 v{VA}, v{VA}, v{T0}, s{C+3}")
        a(f"v_lshl_add_u32 v{VA}, v{VA}, 4, s{S_BASE}")
        a(f"s_lshl_b32 s{C+9}, s{C+9}, 10")
        a(f"v_add_u32 v{VA2}, s{C+9}, v{VA}")
        a(f"s_lshl_b32 s{C+4}, s{C+7}, 8")
        a(f"s_add_u32 s{C+4}, s{C+4}, s{C+8}")
        a(f"s_add_u32 s{C+4}, s{C+4}, s{S_BASE}")
        a(f"v_mul_u32_u24 v{VI}, s{C+11}, v{T0}")
        a(f"v_mad_u32_u24 v{VI}, v{U}, s{C+12}, v{VI}")
        a(f"v_add_u32 v{VI}, s{C+4}, v{VI}")
        if not generic:
            a(f"s_lshr_b32 s{C+4}, s{C+7}, 2")
            a(f"s_lshl_b32 s{C+4}, s{C+4}, 8")
            a(f"s_add_u32 s{C+10}, s{C+10}, s{C+4}")
            a(f"s_add_u32 s{C+10}, s{C+10}, s{C+3}")
            a(f"s_lshl_b32 s{C+4}, s{C+3}, 1")
            a(f"s_add_u32 s{C+4}, s{C+4}, s{C+14}")
            a(f"v_lshl_add_u32 v{T0}, v{U}, 1, v{F1}")
            a(f"v_lshlrev_b32 v{T0}, s{C+13}, v{T0}")
            a(f"v_lshl_add_u32 v{VM0}, v{H}, 7, v{T0}")
            a(f"v_add_u32 v{VM0}, s{C+4}, v{VM0}")
            a(f"v_and_b32 v{T0}, 12, {ln}")
            a(f"v_mad_u32_u24 v{T0}, v{T0}, 3, {ln}")
            a(f"v_lshl_add_u32 v{VLI}, v{T0}, 2, s{C+10}")
            if self.dyn:
                a(f"s_lshl_b32 s{C+4}, s{S_TASK}, 2")
                a(f"s_add_u32 s{C+4}, s{C+4}, s{S_WAVE}")
                a(f"s_lshl_b32 s{C+4}, s{C+4}, 7")
                a(f"s_add_u32 s{C+4}, s{C+4}, {CNT_OFF}")
                a(f"v_writelane_b32 v{VLI}, s{C+4}, 16")
            a(f"s_mov_b32 s{CNT}, 0")
            a(f"s_mov_b32 s{SEL+9}, 0x05060100")
            a(f"s_mov_b32 s{SEL+10}, 0xffff")
        a(f"v_mov_b32 v{VSEL}, 0x05040100")
        a(f"v_mov_b32 v{T0}, 0x03020706")
        a(f"v_cmp_eq_u32 vcc, 1, v{F1}")
        CJ, EF, EO = 68, 76, 82
        for n in range(8):
            a(f"v_mov_b32 v{CJ+n}, {hex(0x0f0a0500 | 0x01010101 * (((n >> 1) << 4) | ((n & 1) << 7)))}")
        a(f"v_cndmask_b32 v{VSEL}, v{VSEL}, v{T0}, vcc")
        if not generic:
            for r in range(3):
                a(f"v_mov_b64 {vr(EF+2*r,2)}, 0")
            a(f"v_mov_b32 v{EO}, 0")
        for c in range(2):
            for j in range(4):
                a(f"s_mov_b32 s{SEL+4*c+j}, {hex(((5+2*c) << 24) | ((4+2*c) << 16) | ((5+2*c) << 8) | j)}")
        a(f"s_mov_b32 s{SEL+8}, 0x05060102")
        if generic:
            a(f"s_cmp_lg_u32 s{S_MODE}, 0")
        sw = "src0_sel:WORD_1 src1_sel:WORD_1"
        for q in range(4):
            a(f"s_waitcnt vmcnt({12-4*q})")
            if q in (0, 3) and not generic:
                self.stamp(9 + q // 3)
            for c in range(2):
                n = 2 * q + c
                for j in range(4):
                    a(f"v_perm_b32 v{Z+j}, v{W+4*q+j}, v{CJ+n}, s{SEL+4*c+j}")
                a(f"v_max3_f32 v{K}, |v{Z}|, |v{Z+1}|, |v{Z+2}|")
                a(f"v_med3_f32 v{K+1}, |v{Z}|, |v{Z+1}|, |v{Z+2}|")
                a(f"v_min3_f32 v{K+2}, |v{Z}|, |v{Z+1}|, |v{Z+2}|")
                a(f"v_med3_f32 v{K+4}, v{K}, v{K+1}, |v{Z+3}|")
                a(f"v_med3_f32 v{K+5}, v{K+1}, v{K+2}, |v{Z+3}|")
                a(f"v_max_f32 v{K+3}, v{K}, |v{Z+3}|")
                if generic:
                    a(f"v_cmp_eq_u32_sdwa vcc, v{K+5}, v{K+4} {sw}")
                    a(f"s_cbranch_scc0 L_rb{n}{sfx}")
                    a(f"v_min_f32 v{K+2}, v{K+2}, |v{Z+3}|")
                    a(f"v_cndmask_b32 v{K+3}, 0, v{K+5}, vcc")
                    a(f"v_cmp_eq_u32_sdwa vcc, v{K+2}, v{K+4} {sw}")
                    a("s_nop 1")
                    a(f"v_cndmask_b32 v{K+4}, 0, v{K+2}, vcc")
                    a(f"L_rb{n}{sfx}:")
                a(f"v_perm_b32 v{OA+4*c+q}, v{K+3}, v{K+4}, s{SEL+8}")
                nb = NB_ + 2 * c + (q >> 1)
                if q & 1 == 0:
                    a(f"v_bfi_b32 v{nb}, 3, v{K+4}, v{K+3}")
                else:
                    a(f"v_bfi_b32 v{K+3}, 3, v{K+4}, v{K+3}")
                    a(f"v_lshlrev_b32 v{K+3}, 4, v{K+3}")
                    a(f"v_bfi_b32 v{nb}, 15, v{nb}, v{K+3}")
                if not generic:
                    a(f"v_cmpx_eq_u32_sdwa vcc, v{K+5}, v{K+4} {sw}")
                    if n >= 3:
                        a(f"v_or_b32 v{EO}, v{EO}, v{EF+4}")
                    if n >= 2:
                        a(f"v_mov_b64 {vr(EF+4,2)}, {vr(EF+2,2)}")
                    if n >= 1:
                        a(f"v_mov_b64 {vr(EF+2,2)}, {vr(EF,2)}")
                    a(f"v_mov_b32 v{EF}, v{K+5}")
                    a(f"v_min_f32 v{EF+1}, v{K+2}, |v{Z+3}|")
                    a("s_mov_b64 exec, -1")
        x2 = "quad_perm:[2,3,0,1] row_mask:0xf bank_mask:0xf"
        a("s_mov_b32 vcc_lo, 0x33333333")
        a("s_mov_b32 vcc_hi, 0x33333333")
        for d in range(4):
            a(f"v_cndmask_b32_dpp v{Z+d}, v{OA+4+d}, v{OA+d}, vcc {x2}")
        a("s_not_b64 vcc, vcc")
        a(f"buffer_store_dwordx4 {vr(Z,4)}, v{VA}, {sr(S_WS,4)}, 0 offen {ws}")
        for d in range(4):
            a(f"v_cndmask_b32_dpp v{OA+4+d}, v{OA+d}, v{OA+4+d}, vcc {x2}")
        a(f"s_mov_b32 s{C+4}, 0x0c0c0400")
        a(f"s_mov_b32 s{C+5}, 0x04000c0c")
        a(f"buffer_store_dwordx4 {vr(OA+4,4)}, v{VA2}, {sr(S_WS,4)}, 0 offen {ws}")
        a(f"v_perm_b32 v{IX}, v{NB_+1}, v{NB_}, s{C+4}")
        a(f"v_perm_b32 v{IX+1}, v{NB_+3}, v{NB_+2}, s{C+5}")
        a(f"v_or_b32 v{IX}, v{IX}, v{IX+1}")
        a("s_nop 1")
        a(f"v_mov_b32_dpp v{IX+1}, v{IX} quad_perm:[2,3,0,1] row_mask:0xf bank_mask:0xf")
        a(f"v_perm_b32 v{IX}, v{IX+1}, v{IX}, v{VSEL}")
        a(f"buffer_store_dword v{IX}, v{VI}, {sr(S_WS,4)}, 0 offen {ws}")
        if not generic:
            self.stamp(11)
            a(f"v_cmp_lt_u32 {sr(C+2,2)}, s{SEL+10}, v{EO}")
            a(f"L_emit{sfx}:")
            a(f"v_cmp_lt_u32 vcc, s{SEL+10}, v{EF}")
            a(f"v_cmp_eq_u32_sdwa {sr(C,2)}, v{EF+1}, v{EF} {sw}")
            a(f"v_perm_b32 v{T1}, v{EF}, v{VM0}, s{SEL+9}")
            a(f"v_bfe_u32 v{T0}, v{EF}, 2, 4")
            a(f"v_and_b32 v{T2}, 0x80, v{EF}")
            a(f"v_lshl_add_u32 v{T1}, v{T0}, 1, v{T1}")
            a(f"v_mbcnt_lo_u32_b32 v{T0}, vcc_lo, 0")
            a(f"v_mbcnt_hi_u32_b32 v{T0}, vcc_hi, v{T0}")
            a(f"v_add_u32 v{T1}, v{T2}, v{T1}")
            a(f"v_add_u32 v{T0}, s{CNT}, v{T0}")
            a(f"s_bcnt1_i32_b64 s{C+4}, vcc")
            a(f"s_add_u32 s{CNT}, s{CNT}, s{C+4}")
            a(f"v_cmp_gt_u32 {sr(C+4,2)}, 15, v{T0}")
            a(f"v_and_b32 v{T2}, 12, v{T0}")
            a(f"v_mad_u32_u24 v{T0}, v{T2}, 3, v{T0}")
            a(f"v_lshl_add_u32 v{T0}, v{T0}, 2, s{C+10}")
            a(f"s_and_b64 {sr(C,2)}, {sr(C,2)}, vcc")
            a(f"s_and_b64 exec, {sr(C+4,2)}, vcc")
            a(f"s_cbranch_execz L_emit1{sfx}")
            a(f"buffer_store_dword v{T1}, v{T0}, {sr(S_WS,4)}, 0 offen {ws}")
            a(f"L_emit1{sfx}:")
            a(f"s_mov_b64 exec, {sr(C,2)}")
            a(f"v_mov_b32 v{EF}, v{EF+1}")
            a(f"v_mov_b32 v{EF+1}, 0")
            a(f"s_not_b64 exec, exec")
            a(f"v_mov_b64 {vr(EF,2)}, {vr(EF+2,2)}")
            a(f"v_mov_b64 {vr(EF+2,2)}, {vr(EF+4,2)}")
            a(f"v_mov_b64 {vr(EF+4,2)}, 0")
            a("s_mov_b64 exec, -1")
            a(f"v_or3_b32 v{T0}, v{EF}, v{EF+2}, v{EF+4}")
            a(f"v_cmp_lt_u32 vcc, s{SEL+10}, v{T0}")
            a(f"s_cmp_lg_u64 {sr(C+2,2)}, 0")
            a(f"s_cselect_b32 s{C+4}, 99, s{CNT}")
            a(f"s_cmp_gt_u32 s{C+4}, 15")
            a(f"s_cselect_b32 s{C+4}, -1, 0")
            a(f"s_min_u32 s{C+5}, s{CNT}, 15")
            a(f"s_cbranch_vccnz L_emit{sfx}")
            a(f"s_lshl_b32 s{C+5}, -1, s{C+5}")
            a(f"v_mov_b32 v{T0}, s{C+4}")
            a(f"s_and_b32 exec_lo, s{C+5}, {0x1ffff if self.dyn else 0xffff}")
            a("s_mov_b32 exec_hi, 0")
            a(f"buffer_store_dword v{T0}, v{VLI}, {sr(S_WS,4)}, 0 offen {ws}")
            a("s_mov_b64 exec, -1")
            self.stamp(12)
        a("s_waitcnt vmcnt(0)")
        if not generic:
            self.stamp(13)

    def lane_setup(self):
        a = self.a
        ln = f"v{V_LANE}"
        T0, T1, T2 = 72, 73, 74
        a(f"v_lshrrev_b32 v{T0}, 3, {ln}")
        a(f"v_and_b32 v{T1}, 7, {ln}")
        a(f"v_xor_b32 v{T1}, v{T1}, v{T0}")
        a(f"v_mul_u32_u24 v{T0}, 1152, v{T0}")
        a(f"s_and_b32 s{S_T0}, s{S_WAVE}, 1")
        a(f"s_mul_i32 s{S_T0}, s{S_T0}, 9216")
        a(f"s_lshr_b32 s{S_T1}, s{S_WAVE}, 1")
        a(f"s_lshl_b32 s{S_T1}, s{S_T1}, 7")
        a(f"s_add_u32 s{S_T0}, s{S_T0}, s{S_T1}")
        a(f"v_lshl_add_u32 v{T0}, v{T1}, 4, v{T0}")
        a(f"v_add_u32 v{V_DMA}, s{S_T0}, v{T0}")
        a(f"s_lshl_b32 s{S_M0B}, s{S_WAVE}, 10")
        if self.o["split"]:
            a(f"s_bitcmp1_b32 s2, 0")
            a(f"s_cselect_b32 s{S_XOFF}, 256, 1")
            a(f"s_add_u32 s{S_XOFF}, s{S_XOFF}, s2")
            a(f"s_mul_i32 s{S_XOFF}, s{S_XOFF}, {TB}")
        else:
            a(f"s_mul_i32 s{S_XOFF}, s2, {TB}")
        a(f"s_mov_b32 s{S_OOFF}, s{S_XOFF}")

    def lane_setup2(self):
        a = self.a
        ln = f"v{V_LANE}"
        T0, T1, T2 = 72, 73, 74
        a(f"v_and_b32 v{T0}, 15, {ln}")
        a(f"v_lshrrev_b32 v{T1}, 4, {ln}")
        a(f"v_and_b32 v{T2}, 7, {ln}")
        a(f"v_xor_b32 v{T2}, v{T2}, v{T1}")
        a(f"v_lshlrev_b32 v{T2}, 4, v{T2}")
        a(f"v_lshl_add_u32 v{V_RD0}, v{T0}, 7, v{T2}")
        a(f"v_xor_b32 v{V_RD1}, 64, v{V_RD0}")
        a(f"s_mul_i32 s{S_C0}, s{S_WAVE}, {WV_SZ}")
        a(f"s_add_u32 s{S_C0}, s{S_C0}, {L_WV}")
        a(f"v_lshl_add_u32 v{V_TAB}, v{T1}, 4, s{S_C0}")
        a(f"v_and_b32 v{T2}, 14, {ln}")
        a(f"v_mul_u32_u24 v{V_ST}, 1152, v{T2}")
        a(f"v_and_b32 v{T2}, 1, {ln}")
        a(f"v_lshl_add_u32 v{V_ST}, v{T2}, 4, v{V_ST}")
        a(f"v_lshl_add_u32 v{V_ST}, v{T1}, 5, v{V_ST}")
        a(f"s_lshl_b32 s{S_T0}, s{S_WAVE}, 8")
        a(f"v_add_u32 v{V_ST}, s{S_T0}, v{V_ST}")
        if self.o["hack"] == "q4":
            a(f"v_lshrrev_b32 v{T2}, 3, {ln}")
            a(f"v_mul_u32_u24 v{V_ST}, 2304, v{T2}")
            a(f"v_and_b32 v{T2}, 7, {ln}")
            a(f"v_lshl_add_u32 v{V_ST}, v{T2}, 4, v{V_ST}")
            a(f"v_add_u32 v{V_ST}, s{S_T0}, v{V_ST}")
        a(f"s_lshl_b32 s{S_T0}, s{S_WAVE}, 5")
        a(f"s_add_u32 s{S_T0}, s{S_T0}, 1024")
        if self.o["bperm"]:
            a(f"v_lshrrev_b32 v{T0}, 2, {ln}")
            a(f"v_and_b32 v{T1}, 3, {ln}")
            a(f"v_lshl_add_u32 v{V_BP}, v{T1}, 4, v{T0}")
            a(f"v_lshlrev_b32 v{V_BP}, 2, v{V_BP}")
        else:
            a(f"v_lshlrev_b32 v{V_BP}, 2, {ln}")
        a(f"v_mul_u32_u24 v{V_ST8}, 1152, v{T0}")
        a(f"v_lshl_add_u32 v{V_ST8}, v{T1}, 3, v{V_ST8}")
        a(f"v_add_u32 v{V_ST8}, s{S_T0}, v{V_ST8}")
        a(f"s_mov_b32 s{S_EVEN}, 0x55555555")
        a(f"s_mov_b32 s{S_EVEN+1}, 0x55555555")
        a(f"s_mov_b32 s{S_ODD}, 0xaaaaaaaa")
        a(f"s_mov_b32 s{S_ODD+1}, 0xaaaaaaaa")

    def dma_setup(self):
        a = self.a
        a(f"s_lshr_b32 s{S_T0}, s{S_WAVE}, 1")
        a(f"s_lshl_b32 s{S_T1}, s{S_T0}, 11")
        a(f"s_sub_u32 s{S_M05}, {16384-896}, s{S_T1}")
        a(f"s_lshl_b32 s{S_T1}, s{S_T0}, 7")
        a(f"s_add_u32 s{S_XOFF5}, s{S_XOFF}, 128")
        a(f"s_sub_u32 s{S_XOFF5}, s{S_XOFF5}, s{S_T1}")
        a(f"s_sub_u32 s{S_HALF}, s{S_T0}, 1")
        a(f"s_sub_u32 s{S_HALF+1}, 0, s{S_T0}")
        a(f"s_mov_b32 s{S_M0W}, s{S_M0B}")
        a(f"s_mov_b32 s{S_XINC}, {256*TB}")
        if self.o["split"]:
            a(f"s_bitcmp1_b32 s2, 0")
            a(f"s_cselect_b32 s{S_XINC}, s{S_XINC}, {-TB}")
            a(f"s_cselect_b32 s{S_NT}, 15, 17")
        else:
            a(f"s_mov_b32 s{S_NT}, 16")
        a(f"s_mov_b32 s{S_OINC2}, s{S_XINC}")

    def dma_advance(self, first=False):
        x = [] if first else [f"s_add_u32 s{S_XOFF}, s{S_XOFF}, {256*TB}", f"s_add_u32 s{S_XOFF5}, s{S_XOFF5}, {256*TB}",
                              f"s_add_u32 s{S_M0B}, s{S_M0B}, s{S_CTB}"]
        return x + [f"s_cmp_ge_u32 s{S_M0B}, {NB*TBL}", f"s_cselect_b32 s{S_M0B}, s{S_M0W}, s{S_M0B}"]

    def dma_tile(self):
        a = self.a
        for j in range(5):
            a(f"s_add_u32 m0, s{S_M0B}, {3840*j if j < 4 else 's%d' % S_M05}")
            a("s_nop 0" if j < 4 else f"s_mov_b64 exec, {sr(S_HALF,2)}")
            a(f"buffer_load_dwordx4 v{V_DMA}, {sr(S_X,4)}, s{S_XOFF if j < 4 else S_XOFF5} offen offset:{256*j if j < 4 else 896} {self.o['ld']} lds")
        a("s_mov_b64 exec, -1")

    def prefetch(self, sh, lab="L_pf"):
        a = self.a
        a(f"s_bfe_u32 s{S_NB0}, s{S_DMASK}, {hex(4 << 16 | sh)}")
        if sh == 20 and self.o["pfw"]:
            a(f"s_cmp_ge_u32 s{S_NB0}, 6")
            a(f"s_cselect_b32 s{S_T1}, {self.o['pfw'][0]*TBL}, 0")
        if sh != 20 and self.n2min == 0:
            a(f"s_cbranch_scc0 {lab}_e")
        a(f"{lab}:")
        self.dma_tile()
        if sh == 20 and self.o["pfw"]:
            k, n = self.o["pfw"]
            a(f"s_cmp_ge_u32 s{S_M0B}, s{S_T1}")
            a(f"s_cbranch_scc1 {lab}_n")
            a(f"s_waitcnt vmcnt({n})")
            a(f"{lab}_n:")
        a(f"s_add_u32 s{S_XOFF5}, s{S_XOFF5}, s{S_XINC}")
        a(f"s_add_u32 s{S_M0B}, s{S_M0B}, {TBL}")
        a(f"s_add_u32 s{S_XOFF}, s{S_XOFF}, s{S_XINC}")
        a(f"s_mov_b32 s{S_XINC}, {256*TB}")
        a(f"s_sub_u32 s{S_NB0}, s{S_NB0}, 1")
        a(f"s_cmp_lg_u32 s{S_NB0}, 0")
        a(f"s_cbranch_scc1 {lab}")
        a(f"{lab}_e:")

    def bias_load(self):
        a = self.a
        ln = f"v{V_LANE}"
        a(f"v_and_b32 v80, 3, {ln}")
        a(f"v_bfe_u32 v81, {ln}, 2, 2")
        a(f"v_bfe_u32 v82, {ln}, 4, 1")
        a("v_lshlrev_b32 v81, 3, v81")
        a("v_lshl_add_u32 v81, v80, 5, v81")
        a("v_lshl_add_u32 v81, v82, 7, v81")
        a(f"s_lshl_b32 s{S_T0}, s{S_WAVE}, 8")
        a(f"v_add_u32 v81, s{S_T0}, v81")
        a(f"s_lshl_b32 s{S_T0}, s{S_WAVE}, 5")
        a(f"s_add_u32 s{S_T0}, s{S_T0}, 1024")
        a(f"v_lshl_add_u32 v80, v80, 3, s{S_T0}")
        a(f"v_cmp_gt_u32 vcc, 32, {ln}")
        a("s_nop 1")
        a("v_cndmask_b32 v80, v80, v81, vcc")
        a(f"buffer_load_dwordx2 v[110:111], v80, {sr(S_B,4)}, 0 offen")

    def tables_init(self):
        a = self.a
        ln = f"v{V_LANE}"
        a(f"v_lshl_add_u32 v109, {ln}, 4, s{S_C0}")
        a(f"v_lshl_add_u32 v89, {ln}, 2, s{S_C0}")
        for r in range(4):
            a(f"v_mov_b32 v{76+r}, 0")
        a("v_mov_b32 v90, 0xdddddddd")
        a("ds_write_b128 v109, v[76:79]")
        for r in range(7):
            a(f"ds_write_b32 v89, v90 offset:{O_IDX+256*r}")
        a(f"s_lshl_b32 s{S_T0}, s{S_WAVE}, 2")
        a(f"s_add_u32 s{S_T0}, s{S_T0}, {L_PL + 256}")
        a(f"v_mov_b32 v88, s{S_T0}")
        a("ds_write_b32 v88, v76")

    def bias_store(self):
        return ["v_lshlrev_b32 v114, 16, v110", "v_and_b32 v115, 0xffff0000, v110", "v_lshlrev_b32 v116, 16, v111",
                "v_and_b32 v117, 0xffff0000, v111", "s_mov_b32 exec_hi, 15", f"ds_write_b128 v109, v[114:117] offset:{O_BIAS}",
                "s_mov_b64 exec, -1"]

    def wload_list(self, VA, VI8, pairs=False):
        wl = self.o["wl"]
        G = []
        so = S_C0 + 6
        cur = None
        for sp in range(5):
            g = []
            if sp == 4:
                g.append(f"s_mov_b32 s{so}, 4096")
            g.append(f"buffer_load_dword v{V_I8+sp}, v{VI8}, {sr(S_WS,4)}, {'s%d' % so if sp == 4 else '0'} offen offset:{1024*(sp%4)} {wl}")
            G.append(g)
        order = [(s, t) for s in range(9) for t in [None] + list(range(9))]
        if pairs:
            order = order[:70] + [(7, None), (8, None)] + [(s, t) for t in PEEL_T for s in (7, 8)]
        for s, t in order:
            if t is None:
                G.append([f"s_mov_b32 s{so-1}, {1024*s}",
                          f"buffer_load_dwordx4 {vr(V_I+4*s,4)}, v{VA+1}, {sr(S_WS,4)}, s{so-1} offen {wl}"])
            else:
                f = 9 * s + t
                g = []
                if cur != f >> 2:
                    cur = f >> 2
                    g.append(f"s_mov_b32 s{so}, {4096*cur}")
                g.append(f"buffer_load_dwordx4 {afrag(s,t)}, v{VA}, {sr(S_WS,4)}, s{so} offen offset:{1024*(f&3)} {wl}")
                G.append(g)
        return G

    def waddr(self, VA, VI8):
        a = self.a
        ln = f"v{V_LANE}"
        a(f"s_mul_i32 s{S_T0}, s{S_WAVE}, 82944")
        a(f"s_add_u32 s{S_T0}, s{S_T0}, s{S_BASE}")
        a(f"v_lshl_add_u32 v{VA}, {ln}, 4, s{S_T0}")
        a(f"s_mul_i32 s{S_T0}, s{S_WAVE}, 9216")
        a(f"s_add_u32 s{S_T0}, s{S_T0}, s{S_BASE}")
        a(f"s_add_u32 s{S_T0}, s{S_T0}, {I_OFF}")
        a(f"v_lshl_add_u32 v{VA+1}, {ln}, 4, s{S_T0}")
        a(f"s_lshl_b32 s{S_T0}, s{S_WAVE}, 6")
        a(f"s_add_u32 s{S_T0}, s{S_T0}, s{S_BASE}")
        a(f"s_add_u32 s{S_T0}, s{S_T0}, {I8_OFF}")
        a(f"v_and_b32 v{VI8}, 15, {ln}")
        a(f"v_lshl_add_u32 v{VI8}, v{VI8}, 2, s{S_T0}")
        a(f"v_lshrrev_b32 v{VI8+1}, 4, {ln}")
        a(f"v_lshl_add_u32 v{VI8}, v{VI8+1}, 8, v{VI8}")

    def build(self):
        a = self.a
        o = self.o
        ln = f"v{V_LANE}"
        wl = o["wl"]
        VA, VI8 = (112 if o["peel"] else 104), 106
        E, TT, RK, ST = 8, 24, 40, 56
        T0, T1, T2, T3 = 72, 73, 74, 75
        WARM = 76
        ONE, VW, KB, VST, RX, VWARM, CM, CV, TM, TBS, HI, AB, BM, VH, VK, LO = range(88, 104)
        SW = S_C0
        a(f"s_mul_i32 s{S_T0}, s{S_WAVE}, 2304")
        a(f"s_add_u32 s{S_T0}, s{S_T0}, {R1_OFF}")
        a(f"v_and_b32 v{T1}, 60, {ln}")
        a(f"v_mad_u32_u24 v{T1}, v{T1}, 3, {ln}")
        a(f"v_lshl_add_u32 v{T0}, v{T1}, 4, s{S_T0}")
        a(f"s_mov_b32 s{S_T0}, {R8_OFF - 36*64}")
        a(f"v_lshl_add_u32 v{T1}, v{T1}, 4, s{S_T0}")
        a(f"v_lshrrev_b32 v{T2}, 2, {ln}")
        a(f"v_cmp_gt_u32 vcc, 36, {ln}")
        a(f"v_lshlrev_b32 v{KB}, 11, v{T2}")
        a(f"v_subrev_u32 v{T2}, 9, v{T2}")
        a(f"v_lshlrev_b32 v{T2}, 12, v{T2}")
        a(f"v_cndmask_b32 v{T0}, v{T1}, v{T0}, vcc")
        a(f"v_cndmask_b32 v{KB}, v{T2}, v{KB}, vcc")
        a(f"s_lshl_b32 s{S_T0}, s{S_WAVE}, 12")
        a(f"s_add_u32 s{S_T0}, s{S_T0}, 0x8001")
        a(f"v_mov_b32 v{ONE}, 1")
        a(f"v_mov_b32 v{CM}, 0xf001")
        a(f"v_mov_b32 v{CV}, s{S_T0}")
        a(f"v_cndmask_b32 v{CM}, v{CM}, v{ONE}, vcc")
        a(f"v_cndmask_b32 v{CV}, v{CV}, v{ONE}, vcc")
        a(f"v_cndmask_b32 v{TM}, 0, 28, vcc")
        a(f"v_cndmask_b32 v{TBS}, 32, 0, vcc")
        a(f"v_add_u32 v{TBS}, s{SW}, v{TBS}")
        a(f"v_cmp_gt_u32 vcc, 56, {ln}")
        a(f"v_mov_b32 v{T1}, 0x40000000")
        tw = o["warm"] == 2
        a(f"s_lshr_b32 s{S_T0}, s2, {4 if tw else 3}")
        a(f"s_lshl_b32 s{S_T0}, s{S_T0}, 2")
        a(f"s_add_u32 s{S_T0}, s{S_T0}, s{S_WAVE}")
        a(f"s_mul_i32 s{S_T0}, s{S_T0}, {6144 if tw else 3072}")
        a(f"v_cndmask_b32 v{T0}, v{T1}, v{T0}, vcc")
        if tw:
            a(f"v_min_u32 v{VWARM}, 47, {ln}")
            a(f"v_lshl_add_u32 v{VWARM}, v{VWARM}, 7, s{S_T0}")
        else:
            a(f"v_lshl_add_u32 v{VWARM}, {ln}, 4, s{S_T0}")
        self.waddr(VA, VI8)
        a(f"v_and_b32 v{T2}, 15, {ln}")
        a(f"v_and_b32 v{T1}, 7, {ln}")
        a(f"v_lshlrev_b32 v{BM}, 1, v{T1}")
        a(f"v_lshlrev_b32 v{BM}, v{BM}, v{ONE}")
        a(f"v_lshlrev_b32 v{T1}, 4, v{T1}")
        a(f"v_lshl_add_u32 v{RX}, v{T2}, 7, v{T1}")
        a(f"v_lshl_or_b32 v{RX}, v{RX}, 16, v{RX}")
        a(f"v_lshrrev_b32 v{HI}, 5, {ln}")
        a(f"v_bfe_u32 v{AB}, {ln}, 3, 2")
        a(f"v_lshl_add_u32 v{AB}, v{AB}, 6, s{SW}")
        a(f"v_lshl_add_u32 v{VH}, {ln}, 1, s{SW}")
        a(f"v_lshrrev_b32 v{VK}, 4, {ln}")
        a(f"v_lshl_add_u32 v{VK}, v{VK}, 3, s{SW}")
        a(f"v_lshrrev_b32 v{LO}, 1, {ln}")
        a(f"v_lshlrev_b32 v{LO}, 5, v{LO}")
        a(f"s_mov_b32 s{S_LINK}, 0")
        pre = [f"buffer_load_dwordx4 {vr(E+4*r,4)}, v{T0}, {sr(S_WS,4)}, 0 offen offset:{64*r} {wl}" for r in range(4)]
        warm = [[f"buffer_load_dwordx4 {vr(WARM+4*r,4)}, v{VWARM}, {sr(S_WS,4)}, 0 offen offset:{1024*r} {wl}"] for r in range(3)] if o["warm"] else []
        if tw:
            warm = [[f"buffer_load_dword v{WARM}, v{VWARM}, {sr(S_WS,4)}, 0 offen {wl}"]]
        C = []
        g = lambda *x: C.append(list(x))

        def rank(r):
            m = S_MASK + 2 * r
            return [f"v_and_b32 v{T1}, v{CM}, v{E+r}", f"v_lshrrev_b32 v{T0}, 10, v{E+r}", f"v_cmp_eq_u32 {sr(m,2)}, v{T1}, v{CV}",
                    f"v_and_or_b32 v{TT+r}, v{T0}, v{TM}, v{TBS}",
                    f"s_mov_b64 exec, {sr(m,2)}", f"ds_add_rtn_u32 v{RK+r}, v{TT+r}, v{ONE}", "s_mov_b64 exec, -1"]

        def place(r):
            m = S_MASK + 2 * r
            return [f"v_add_u32 v{T1}, v{RK+r}, v{ST+r}", f"v_and_b32 v{T0}, 0x87e, v{E+r}", f"v_lshl_add_u32 v{T1}, v{T1}, 1, s{SW}",
                    f"v_add_u32 v{T0}, v{KB}, v{T0}", f"s_andn2_b64 exec, {sr(m,2)}, {sr(S_BAD,2)}",
                    f"ds_write_b16_d16_hi v{T1}, v{E+r} offset:{O_X}", f"ds_write_b16 v{T1}, v{T0} offset:{O_K}",
                    f"ds_write_b16 v{T1}, v{E+r} offset:{O_M}", "s_mov_b64 exec, -1"]
        g("@WAIT_E")
        g(f"v_cmp_ne_u32 {sr(S_BAD,2)}, 0, v{E+15}", f"v_cmp_ne_u32 {sr(S_MORE,2)}, 0, v{E+8}")
        for r in range(8):
            g(*rank(r))
        g(f"s_cmp_lg_u64 {sr(S_MORE,2)}, 0", "s_cbranch_scc1 L_more1", "L_more1b:", f"ds_read_b32 v{T0}, v{VW}", f"v_mov_b32 v{T1}, 0")
        self.tailblocks.append("\n".join(["L_more1:"] + [x for r in range(8, 15) for x in rank(r)] + ["s_branch L_more1b"]))
        g("s_waitcnt lgkmcnt(0)", f"s_mov_b64 vcc, {sr(S_EVEN,2)}",
          f"v_cndmask_b32_dpp v{T1}, v{T0}, v{T1}, vcc quad_perm:[0,0,2,2] row_mask:0xf bank_mask:0xf",
          f"v_add_u32 v{VST}, v{LO}, v{T1}", f"v_add_u32 v{T1}, v{T0}, v{T1}", f"v_cmp_lt_u32 vcc, 32, v{T1}",
          f"s_or_b32 s{S_BAD}, s{S_BAD}, s{S_BAD+1}", f"s_and_b32 s{S_T0}, vcc_lo, 0x1ff", f"s_or_b32 s{S_T0}, s{S_T0}, s{S_BAD}",
          "s_cbranch_scc1 L_greedy", "L_greedyb:")
        x = ["L_greedy:", f"s_mov_b32 s{S_T0}, 0", f"s_mov_b32 s{S_LINK}, 1"]
        for t in range(9):
            lo = 32 * (t >> 1)
            x += [f"v_readlane_b32 s{S_T1}, v{T0}, {t}", f"s_max_u32 s{S_T0}, s{S_T0}, {lo}",
                  f"v_writelane_b32 v{VST}, s{S_T0}, {t}", "s_nop 1", f"s_add_u32 s{S_T0}, s{S_T0}, s{S_T1}",
                  f"s_cmp_gt_u32 s{S_T0}, {lo + (64 if t & 1 else 32)}", f"s_cselect_b32 s{S_BAD}, 1, s{S_BAD}"]
        x += [f"s_cmp_lg_u32 s{S_BAD}, 0", f"s_cselect_b64 {sr(S_BAD,2)}, -1, 0",
              f"v_mov_b32 v{T1}, {L_PL + 256}", f"s_mov_b64 exec, {sr(S_BAD,2)}", f"ds_write_b32 v{T1}, v{ONE}", "s_mov_b64 exec, -1",
              "s_branch L_greedyb"]
        self.tailblocks.append("\n".join(x))
        g(*[f"ds_bpermute_b32 v{ST+r}, v{TT+r}, v{VST}" for r in range(8)])
        for r in range(8):
            g(*([f"s_waitcnt lgkmcnt({(7, 9, 11, 13, 15, 15, 15, 15)[r] if r else 7})"] if r < 8 else []), *place(r))
        g(f"s_cmp_lg_u64 {sr(S_MORE,2)}, 0", "s_cbranch_scc1 L_more2", "L_more2b:",
          *[f"ds_read_u16 v{E+r}, v{VH} offset:{O_M+128*r}" for r in range(3)],
          *[f"ds_read2_b64 {vr(V_AD+4*j,4)}, v{VK} offset0:{(O_K+64*j)//8} offset1:{(O_K+64*j+32)//8}" for j in range(5)])
        self.tailblocks.append("\n".join(["L_more2:"] + [f"ds_bpermute_b32 v{ST+r}, v{TT+r}, v{VST}" for r in range(8, 15)] + ["s_waitcnt lgkmcnt(0)"]
                                         + [x for r in range(8, 15) for x in place(r)] + ["s_branch L_more2b"]))
        for r in range(3):
            g(*(["s_waitcnt lgkmcnt(5)"] if r == 0 else []),
              f"v_lshrrev_b32 v{T0}, 12, v{E+r}", f"v_cmp_ne_u32 vcc, 0, v{E+r}", f"v_min_u32 v{T0}, 8, v{T0}", f"v_add3_u32 v{T0}, v{T0}, v{HI}, {2*r}",
              f"v_lshlrev_b32 v{T1}, 4, v{T0}", f"v_lshrrev_b32 v{T0}, 1, v{T0}")
            g(f"v_lshlrev_b32 v{T1}, v{T1}, v{BM}", f"v_lshl_add_u32 v{T0}, v{T0}, 8, v{AB}", f"v_bfe_u32 v{T2}, v{E+r}, 7, 4",
              f"v_lshl_add_u32 v{T0}, v{T2}, 2, v{T0}", "s_mov_b64 exec, vcc", *(["s_mov_b32 exec_hi, 0"] if r == 2 else []),
              f"ds_xor_b32 v{T0}, v{T1} offset:{O_IDX}", "s_mov_b64 exec, -1")
        g(*[f"ds_read_b32 v{V_IR+r}, v{VW} offset:{O_IDX+256*r}" for r in range(7)])
        for j in range(5):
            g(*(["s_waitcnt lgkmcnt(10)"] if j == 0 else []), *[f"v_xor_b32 v{V_AD+4*j+q}, v{RX}, v{V_AD+4*j+q}" for q in range(4)])
        g(*self.bias_store())
        return pre, C, warm + self.wload_list(VA, VI8, o['peel'])

    def emit_build(self, pre, C, G):
        a = self.a
        for x in pre:
            a(x)
        nl = 0
        G = list(G)
        G0 = list(G)

        def load(n=1):
            nonlocal nl
            for _ in range(n):
                if G:
                    for x in G.pop(0):
                        a(x)
                    nl += 1
        acc = 0
        for grp in C:
            if grp[0] == "@WAIT_E":
                load(self.o["l0"])
                a(f"s_waitcnt vmcnt({nl})")
                continue
            if grp[0] in ("s_waitcnt lgkmcnt(0)", "s_waitcnt lgkmcnt(7)", "s_waitcnt lgkmcnt(5)"):
                load(self.o["lw"])
            for x in grp:
                a(x)
            acc += len(grp)
            while acc >= self.o["lper"]:
                acc -= self.o["lper"]
                load()
        if self.o["peel"]:
            self.issued, self.pending = G0[:len(G0) - len(G)], G
            return
        load(len(G) - self.o["ltail"])
        assert len(G) == self.o["ltail"]
        self.late_loads = [x for grp in G for x in grp]

    @staticmethod
    def regs(txt):
        k, body = txt[0], txt[1:].strip("[]")
        lo, hi = (body.split(":") + [body])[:2]
        return [(256 if k == "a" else 0) + r for r in range(int(lo), int(hi) + 1)]

    def emit_line(self, ops, vm, hist=()):
        a = self.a
        lds, hist = [], list(hist)

        def put(op):
            a(op.text)
            hist.append(op)
        for op in ops:
            touched = op.rd | op.wr
            for q, name, cap in ((lds, "lgkmcnt", 15), (vm, "vmcnt", self.o["vcap"])):
                hit = [i for i, w in enumerate(q) if w & touched]
                if hit:
                    n = min(len(q) - 1 - hit[-1], cap)
                    put(Op(f"s_waitcnt {name}({n})", "salu"))
                    del q[:len(q) - n]
            need = 0
            for d, p in enumerate(reversed(hist[-9:])):
                ws = sum(int(x.text[6:]) + 1 if x.text.startswith("s_nop") else 1 for x in hist[len(hist) - d:])
                r = 0
                if p.kind == "mx" and op.kind != "mx" and (p.wr & touched):
                    r = 8
                if p.kind in ("valu", "dpp") and op.kind in ("mx", "dpp") and (p.wr & op.rd):
                    r = 2
                if p.kind == "st" and (p.rd & op.wr):
                    r = 2
                need = max(need, r - ws)
            if need > 0:
                put(Op(f"s_nop {need-1}", "salu"))
            put(op)
            if op.kind == "lds":
                lds.append(op.wr)
            if op.kind in ("ld", "st"):
                vm.append(op.wr)

    def peel(self):
        o = self.o
        AX = V_BR
        acc = lambda m, t: (AX if m == 0 else V_ACC) + 4 * t
        Ba, Bb, Bc, Bd = (V_B + 8 * k for k in range(4))
        dst = lambda g: set(self.regs(g[-1].split()[1].rstrip(",")))
        vm = [dst(g) for g in self.issued]
        loads = [[Op(x, "salu") for x in g[:-1]] + [Op(g[-1], "ld", wr=dst(g))] for g in self.pending]

        def M(m, s, t, b):
            ir, h = aidx(s, t)
            return Op(f"v_smfmac_f32_16x16x64_bf16 {vr(acc(m,t),4)}, {afrag(s,t)}, {vr(b,8)}, v{ir}" + (" abid:1" if h else ""), "mx",
                      rd=list(rng(acc(m, t), 4)) + list(rng(b, 8)) + self.regs(afrag(s, t)) + [ir], wr=rng(acc(m, t), 4))

        def R(m, j, t):
            c, b = j + t, (Bc, Bd)[m]
            return Op(f"v_smfmac_f32_16x16x64_bf16 {vr(acc(m,t),4)}, {vr(V_X,4)}, {vr(b,8)}, v{V_IR+(c>>1)}" + (" abid:1" if c & 1 else ""), "mx",
                      rd=list(rng(acc(m, t), 4)) + list(rng(b, 8)) + list(rng(V_X, 4)), wr=rng(acc(m, t), 4))

        def B(m, s, b):
            return [Op(f"ds_read_b128 {vr(b+4*h,4)}, v{V_RD0+h} offset:{2048*s+TBL*m}", "lds", rd=[V_RD0 + h], wr=rng(b + 4 * h, 4)) for h in range(2)]

        def addr(j, b, r, base):
            ad = V_AD + 4 * j + (b >> 1)
            return Op(f"v_add_u32_sdwa v{r}, s{base}, v{ad} dst_sel:DWORD dst_unused:UNUSED_PAD src0_sel:DWORD src1_sel:WORD_{b&1}", "valu", rd=[ad], wr=[r])
        ops = [Op(f"ds_read_b32 v{V_X}, v{V_X}", "lds", rd=[V_X], wr=[V_X])] + B(0, 0, Ba)
        for m in range(2):
            ops += [Op(f"ds_read_b128 {vr(acc(m,t),4)}, v{V_TAB} offset:{O_BIAS+64*t}", "lds", rd=[V_TAB], wr=rng(acc(m, t), 4)) for t in range(9)]
            ops += loads.pop(0)
        ops += [Op(f"v_readfirstlane_b32 s{S_T0}, v{V_X}", "valu", rd=[V_X]), addr(0, 0, Bc, S_BUF), Op("s_nop 2", "salu"),
                Op(f"s_cmp_lg_u32 s{S_T0}, 0", "salu"), Op("s_cbranch_scc1 L_slow", "salu")]
        ngap = 126 + 26
        rho, credit = len(loads) / (ngap - o["ptail"]), 0.0

        def gap(mx, D=(), V=()):
            nonlocal credit
            ops.append(mx)
            credit += rho
            while credit >= 1 and loads:
                credit -= 1
                ops.extend(loads.pop(0))
            ops.extend(D)
            ops.extend(V)
        for s in range(7):
            for t in range(9):
                D, V = [], []
                if t == 0:
                    D += B(1, s, Bb)
                if s < 5:
                    if t == 8:
                        D.append(Op(f"ds_read_b128 {vr(V_X,4)}, v{V_TAB} offset:{O_X+64*s}", "lds", rd=[V_TAB], wr=rng(V_X, 4)))
                    else:
                        D += [Op(f"ds_read_u16 v{Bd+t}, v{Bc+t} offset:{TBL}", "lds", rd=[Bc + t], wr=[Bd + t]),
                              Op(f"ds_read_u16 v{Bc+t}, v{Bc+t}", "lds", rd=[Bc + t], wr=[Bc + t])]
                        if t < 7:
                            V.append(addr(s, t + 1, Bc + t + 1, S_BUF))
                elif t in (2, 3):
                    D.append(B(1, s + 2, Bc if s == 5 else Bd)[t - 2])
                gap(M(0, s, t, Ba), D, V)
            for t in range(9):
                gap(M(1, s, t, Bb), B(0, s + 1, Ba)[t:t + 1] if t < 2 else [])
            if s < 5:
                rs = [R(m, s, t) for m in (1, 0) for t in RT[s]]
                for n, x in enumerate(rs):
                    gap(x, [], [addr(s + 1, 0, Bc, S_BUF)] if n == len(rs) - 1 and s < 4 else [])
        assert not loads
        ops += B(0, 8, Bb)
        pk = lambda t, h: (AX + 32 + h) if t == 8 else AX + 2 * t + h
        cvt = lambda t: [Op(f"v_cvt_pk_bf16_f32 v{pk(t,h)}, v{acc(0,t)+2*h}, v{acc(0,t)+2*h+1}", "valu",
                            rd=[acc(0, t) + 2 * h, acc(0, t) + 2 * h + 1], wr=[pk(t, h)]) for h in range(2)]
        dpp = "quad_perm:[1,0,3,2] row_mask:0xf bank_mask:0xf"
        stp = o["st"] if o["stp"] is None else o["stp"]

        def exch(v):
            p0, p1, d0 = AX + 8 * v, AX + 8 * v + 4, (V_X, AX + 16)[v]
            x = []
            for half in range(2):
                for d in range(4):
                    if half == 0:
                        x.append(Op(f"v_cndmask_b32_dpp v{d0+d}, v{p1+d}, v{p0+d}, vcc {dpp}", "dpp", rd=[p0 + d, p1 + d], wr=[d0 + d]))
                    else:
                        x.append(Op(f"v_cndmask_b32_dpp v{p1+d}, v{p0+d}, v{p1+d}, vcc {dpp}", "dpp", rd=[p0 + d, p1 + d], wr=[p1 + d]))
                src = d0 if half == 0 else p1
                fl = stp[2 * v + half] if isinstance(stp, (tuple, list)) else stp
                x += [Op(f"buffer_store_dwordx4 {vr(src,4)}, v{V_ST}, {sr(S_OUT,4)}, s{S_OOFF} offen offset:{1152*half+128*v} {fl}", "st",
                         rd=list(rng(src, 4)) + [V_ST]), Op(f"s_mov_b64 vcc, {sr((S_ODD, S_EVEN)[half],2)}", "salu")]
            return x
        p8 = pk(8, 0)
        rdadv = [Op(f"v_add_u32 v{V_RD0+h}, {2*TBL}, v{V_RD0+h}", "valu", rd=[V_RD0 + h], wr=[V_RD0 + h]) for h in range(2)]
        after = {0: rdadv,
                 1: [Op(f"ds_bpermute_b32 v{p8+h}, v{V_BP}, v{p8+h}", "lds", rd=[V_BP, p8 + h], wr=[p8 + h]) for h in range(2)] if o["bperm"] else [],
                 3: [Op(f"buffer_store_dwordx2 {vr(p8,2)}, v{V_ST8}, {sr(S_OUT,4)}, s{S_OOFF} offen {o['st8']}", "st", rd=[p8, p8 + 1, V_ST8])],
                 5: exch(0)[:6], 6: exch(0)[6:], 7: [addr(0, b, V_BR + b, S_BUFN) for b in range(4)],
                 8: [addr(0, b, V_BR + b, S_BUFN) for b in range(4, 8)]}
        for n, t in enumerate(PEEL_T):
            ops += [M(0, 7, t, Ba), M(0, 8, t, Bb)]
            if n:
                ops += cvt(PEEL_T[n - 1])
            ops += after.get(n, [])
        ops += cvt(PEEL_T[-1]) + exch(1)
        self.emit_line(ops, vm)

    def slow_path(self, K):
        a = self.a
        o = self.o
        VA, VI8 = 104, 106
        a("L_slow:")
        a("s_waitcnt vmcnt(0) lgkmcnt(0)")
        a(f"s_mov_b32 s{S_MODE}, 0")
        a("L_sm:")
        a(f"s_lshl_b32 s{S_BASE}, s2, 1")
        a(f"s_add_u32 s{S_BASE}, s{S_BASE}, s{S_MODE}")
        a(f"s_add_u32 s{S_BASE}, s{S_BASE}, 1")
        a(f"s_mul_i32 s{S_BASE}, s{S_BASE}, {COPY}")
        a(f"s_mov_b32 s{S_TASK}, 0")
        a("L_st:")
        self.producer("g", True)
        a(f"s_add_u32 s{S_TASK}, s{S_TASK}, 1")
        a(f"s_cmp_lt_u32 s{S_TASK}, {NTASK}")
        a("s_cbranch_scc1 L_st")
        a(f"s_add_u32 s{S_MODE}, s{S_MODE}, 1")
        a(f"s_cmp_lt_u32 s{S_MODE}, 2")
        a("s_cbranch_scc1 L_sm")
        self.lane_setup()
        self.dma_setup()
        a(f"s_mov_b32 s{S_OUT+2}, {XBYTES}")
        a(f"s_mov_b32 s{S_X+2}, {XBYTES}")
        a(f"s_mov_b32 s{S_IT}, 0")
        a("L_stile:")
        a("s_barrier")
        self.dma_tile()
        for t in range(9):
            a(f"ds_read_b128 {vr(V_ACC+4*t,4)}, v{V_TAB} offset:{O_BIAS+64*t}")
        a(f"s_mov_b32 s{S_MODE}, 0")
        a("L_spass:")
        a(f"s_lshl_b32 s{S_BASE}, s2, 1")
        a(f"s_add_u32 s{S_BASE}, s{S_BASE}, s{S_MODE}")
        a(f"s_add_u32 s{S_BASE}, s{S_BASE}, 1")
        a(f"s_mul_i32 s{S_BASE}, s{S_BASE}, {COPY}")
        self.waddr(VA, VI8)
        for grp in self.wload_list(VA, VI8):
            for x in grp:
                a(x)
        a("s_waitcnt vmcnt(0)")
        a("s_barrier")
        for s in range(9):
            a(f"ds_read_b128 {vr(V_B,4)}, v{V_RD0} offset:{2048*s}")
            a(f"ds_read_b128 {vr(V_B+4,4)}, v{V_RD1} offset:{2048*s}")
            a("s_waitcnt lgkmcnt(0)")
            for t in range(9):
                ir, h = aidx(s, t)
                a(f"v_smfmac_f32_16x16x64_bf16 {vr(V_ACC+4*t,4)}, {afrag(s,t)}, {vr(V_B,8)}, v{ir}" + (" abid:1" if h else ""))
            a("s_nop 7")
        a(f"s_add_u32 s{S_MODE}, s{S_MODE}, 1")
        a(f"s_cmp_lt_u32 s{S_MODE}, 2")
        a("s_cbranch_scc1 L_spass")
        for t in range(7):
            for h in range(2):
                a(f"v_cvt_pk_bf16_f32 v{V_P+2*t+h}, v{V_ACC+4*t+2*h}, v{V_ACC+4*t+2*h+1}")
        a(f"s_mov_b64 vcc, {sr(S_EVEN,2)}")
        self.emit_epi(self.assemble_loop(False, "")[2])
        for r in (S_XOFF, S_XOFF5, S_OOFF):
            a(f"s_add_u32 s{r}, s{r}, s{S_XINC}")
        a(f"s_mov_b32 s{S_XINC}, {256*TB}")
        a(f"s_add_u32 s{S_IT}, s{S_IT}, 1")
        a(f"s_cmp_lt_u32 s{S_IT}, s{S_NT}")
        a("s_cbranch_scc1 L_stile")
        a("s_branch L_fin")

    def loop_ops(self, links, dma, clm=False):
        o = self.o
        acc = lambda t: rng(V_ACC + 4 * t, 4)
        ch = o["chain"]
        bb = lambda s: V_P if (ch and s == 6) else V_B + 8 * BBUF[s]
        RBUF = [V_BR, V_BR + 8, V_BR, V_P + 8 if ch else V_P, V_BR + 8]
        rt = RT if links else [[0, 1], [2, 3], [4, 5], [6, 7], [8]]
        ng = [8, 8, 8, 8, 8 if links else o["ng4"]]

        def M(s, t):
            ir, h = aidx(s, t)
            return Op(f"v_smfmac_f32_16x16x64_bf16 {vr(V_ACC+4*t,4)}, {afrag(s,t)}, {vr(bb(s),8)}, v{ir}" + (" abid:1" if h else ""),
                      "mx", rd=list(acc(t)) + list(rng(bb(s), 8)), wr=acc(t), tag=("M", s, t))

        def R(j, t):
            c = j + t
            return Op(f"v_smfmac_f32_16x16x64_bf16 {vr(V_ACC+4*t,4)}, {vr(V_X,4)}, {vr(RBUF[j],8)}, v{V_IR+(c>>1)}" + (" abid:1" if c & 1 else ""),
                      "mx", rd=list(acc(t)) + list(rng(RBUF[j], 8)) + list(rng(V_X, 4)), wr=acc(t), tag=("R", j, t))
        seq = []
        for t in range(9):
            seq += [M(0, t), M(1, t)]
        if ch:
            for steps, order, rs in (((2, 3), o["ord1"], (0, 1)), ((4, 5, 6), o["ord2"], (2, 3, 4))):
                for n, t in enumerate(order):
                    seq += [M(s, t) for s in steps]
                    if t // 2 in rs and t % 2 == 0:
                        j = t // 2
                        assert t == 8 or order[n + 1] == t + 1
                        seq += [R(j, t)] + ([R(j, t - 1)] if links and j else []) + ([R(j, t + 1)] if t < 8 else [])
        else:
            for s in range(2, 7):
                seq += [M(s, t) for t in range(9)]
        for t in range(9):
            seq += [M(7, t), M(8, t)]
        if ch:
            rpos = [min(i for i, x in enumerate(seq) if x.tag[:2] == ("R", j)) for j in range(5)]
        else:
            rpos = list(o["rposl"] if links else o["rpos"])
            for j in range(5):
                for n, t in enumerate(rt[j]):
                    seq.insert(rpos[j] + n, R(j, t))
        N = len(seq)
        pos = {x.tag: i for i, x in enumerate(seq)}
        BAR = rpos[4] + len(rt[4]) - 1
        c0 = N - 15 - BAR
        assert c0 == (4 if ch else 0)
        self.drain = rpos[4] - 1
        T = lambda g: (g - BAR - 1) % N
        first = lambda s: T(min(pos[("M", s, t)] for t in range(9)))
        lastu = lambda s: max(pos[("M", s, t)] for t in range(9))
        LEAD = o["lead"]
        ST = [[] for _ in range(N)]
        S = [[] for _ in range(N)]
        D = [[] for _ in range(N)]
        V = [[] for _ in range(N)]
        keep = lambda op: (dma or op.tag != "dma") and (clm or op.tag != "clm")

        def pdst(t, h):
            return V_P8 + h if t == 8 else V_P + 2 * t + h
        dq, vq = [], []
        for t in range(9):
            for h in range(2):
                V[c0 + 2 * t + h].append(Op(f"v_cvt_pk_bf16_f32 v{pdst(t,h)}, v{V_ACC+4*t+2*h}, v{V_ACC+4*t+2*h+1}", "valu",
                                       rd=[V_ACC + 4 * t + 2 * h, V_ACC + 4 * t + 2 * h + 1], wr=[pdst(t, h)], tag="epi"))
            dq.append([Op(f"ds_read_b128 {vr(V_ACC+4*t,4)}, v{V_TAB} offset:{O_BIAS+64*t}", "lds", rd=[V_TAB], wr=acc(t), tag="pre"),
                       c0 + 2 * t + 2, c0 + 2 * t + 2, None])
        def stf(e):
            f = o["stc"] if clm else (o["st"] if dma else o["stn"])
            f = o["st"] if f is None else f
            return f[e] if isinstance(f, (tuple, list)) else f
        dpp = "quad_perm:[1,0,3,2] row_mask:0xf bank_mask:0xf"
        stg = [T(g) for g in o["stg"]]
        for v in range(2):
            p0, p1 = V_P + 8 * v, V_P + 8 * v + 4
            d0 = V_T if v == 0 else V_P
            for half in range(2):
                e = 2 * v + half
                for d in range(4):
                    if half == 0:
                        op = Op(f"v_cndmask_b32_dpp v{d0+d}, v{p1+d}, v{p0+d}, vcc {dpp}", "dpp", rd=[p0 + d, p1 + d], wr=[d0 + d], tag="epi")
                    else:
                        op = Op(f"v_cndmask_b32_dpp v{p1+d}, v{p0+d}, v{p1+d}, vcc {dpp}", "dpp", rd=[p0 + d, p1 + d], wr=[p1 + d], tag="epi")
                    vq.append([op, stg[e - 1] if e else c0 + 18, stg[e] - 4 + d, None])
                src = d0 if half == 0 else p1
                ST[stg[e]].append(Op(f"buffer_store_dwordx4 {vr(src,4)}, v{V_ST}, {sr(S_OUT,4)}, s{S_OOFF} offen offset:{1152*half+128*v} {stf(e)}",
                                     "st", rd=list(rng(src, 4)) + [V_ST], tag="epi"))
                ST[stg[e]].append(Op(f"s_mov_b64 vcc, {sr((S_ODD, S_EVEN)[half],2)}", "salu", tag="epi"))
        if o["bperm"]:
            for h in range(2):
                dq.append([Op(f"ds_bpermute_b32 v{V_P8+h}, v{V_BP}, v{V_P8+h}", "lds", rd=[V_BP, V_P8 + h], wr=[V_P8 + h], tag="epi"),
                           c0 + 18, stg[4] - LEAD - 2 + h, None])
        ST[stg[4]].append(Op(f"buffer_store_dwordx2 {vr(V_P8,2)}, v{V_ST8}, {sr(S_OUT,4)}, s{S_OOFF} offen {o['st8']}", "st",
                             rd=[V_P8, V_P8 + 1, V_ST8], tag="epi"))
        rl = lambda j: T(rpos[j] + len(rt[j]) - 1)
        free = [rl(2), 1, rl(0), stg[3 if ch else 2] + 1, rl(1)]
        for j in range(5):
            dl = T(rpos[j]) - LEAD - 1
            for b in range(ng[j]):
                r = RBUF[j] + b
                ad = V_AD + 4 * j + (b >> 1)
                av = Op(f"v_add_u32_sdwa v{r}, s{S_BUFN if j == 0 else S_BUF}, v{ad} dst_sel:DWORD dst_unused:UNUSED_PAD src0_sel:DWORD src1_sel:WORD_{b&1}",
                        "valu", rd=[ad], wr=[r], tag="pre" if j == 0 else "")
                gd = dl - o["gsp"] * (ng[j] - 1 - b)
                vq.append([av, free[j], (N - 2 - (7 - b)) if j == 0 else gd - 1, None])
                dq.append([Op(f"ds_read_u16 v{r}, v{r}", "lds", rd=[r], wr=[r], tag="pre"), 0, gd, None if j == 0 else av])
            dq.append([Op(f"ds_read_b128 {vr(V_X,4)}, v{V_TAB} offset:{O_X+64*j}", "lds", rd=[V_TAB], wr=rng(V_X, 4), tag="pre"),
                       0 if j == 0 else rl(j - 1), dl, None])
        prev = {0: None, 1: None, 2: 7, 3: 8, 4: 0, 5: 1, 6: 4, 7: 2, 8: 3}
        lastb = []
        for s in range(9):
            for h in range(2):
                op = Op(f"ds_read_b128 {vr(bb(s)+4*h,4)}, v{(V_RD0, V_RD1)[h]} offset:{2048*s}", "lds",
                        rd=[(V_RD0, V_RD1)[h]], wr=rng(bb(s) + 4 * h, 4), tag="pre")
                fs = first(s) if s < 7 else (T(rpos[4]) - 2 * (9 - s) if ch else T(pos[("M", s, 0)]))
                rel = 0 if prev[s] is None else T(lastu(prev[s]))
                if ch and s == 6:
                    rel = stg[2] + 1
                dq.append([op, rel, fs - LEAD - 2 + h, None])
                lastb.append(op)
        for h in range(2):
            vq.append([Op(f"v_add_u32 v{V_RD0+h}, s{S_DELTA}, v{V_RD0+h}", "valu", rd=[V_RD0 + h], wr=[V_RD0 + h]), 0, N - 2, lastb])
        sq = []
        dmag = [g + (self.drain - 70) * (g > 50) for g in o["dmag"]]
        assert all(b - a_ >= 2 for a_, b in zip(dmag, dmag[1:]))
        if not o["nodma"]:
            for j, g in enumerate(dmag):
                g = T(g)
                ld = f"buffer_load_dwordx4 v{V_DMA}, {sr(S_X,4)}, s{S_XOFF if j < 4 else S_XOFF5} offen offset:{256*j if j < 4 else 896} {o['ld']} lds"
                if j < 4:
                    D[g].append(Op(ld, "dma", rd=[V_DMA], tag="dma"))
                    S[g - 1].append(Op(f"s_add_u32 m0, s{S_M0B}, {3840*j}", "salu", tag="dma"))
                else:
                    D[g] += [Op(f"s_mov_b64 exec, {sr(S_HALF,2)}", "salu", tag="dma"), Op(ld, "dma", rd=[V_DMA], tag="dma"),
                             Op("s_mov_b64 exec, -1", "salu", tag="dma")]
                    S[g - 1].append(Op(f"s_add_u32 m0, s{S_M0B}, s{S_M05}", "salu", tag="dma"))
                    V[g] = None
        XV = [[] for _ in range(N)]
        if self.dyn:
            gl = T(o["mbg"] + self.drain - 70) - 1
            XV[T(0)].append(Op(f"v_mov_b32 v{V_C}, 1", "valu", wr=[V_C], tag="clm"))
            D[T(1)].append(Op(f"buffer_atomic_add v{V_C}, v{V_BP}, {sr(S_B,4)}, 0 offen sc0 sc1", "dma", rd=[V_BP], tag="clm"))
            assert not D[gl + 1] and not S[gl + 1] and max(stg) <= gl
            gw = gl + 1 if o["cwg"] is None else T(o["cwg"])
            assert gw not in stg and T(1) < gw <= gl + 1
            S[gw].append(Op(f"s_waitcnt vmcnt({sum(1 for g in stg if g < gw) + sum(1 for g in dmag if T(g) < gw)})", "salu", tag="clm"))
            if o["dwg"] is not None and dma and not clm:
                gw = T(o["dwg"])
                assert gw not in stg
                S[gw].append(Op(f"s_waitcnt vmcnt({sum(1 for g in stg if g < gw) + sum(1 for g in dmag if T(g) < gw)})", "salu"))
            D[gl + 1] += [Op(f"s_mov_b64 exec, {sr(S_W0,2)}", "salu", tag="clm"),
                          Op(f"ds_write_b32 v{V_RD0}, v{V_C} offset:{TB}", "lds", rd=[V_RD0], tag="clm"), Op("s_mov_b64 exec, -1", "salu", tag="clm")]
            V[gl + 1] = None
            D[0].append(Op(f"ds_read_b32 v{V_C}, v{V_RD0} offset:{TB}", "lds", rd=[V_RD0], wr=[V_C], tag="clm"))
            XV[LEAD + 1].append(Op(f"v_readfirstlane_b32 s{S_CL}, v{V_C}", "valu", rd=[V_C], tag="clm"))
        placed = {}
        for g in range(N - 1):
            if not D[g] and g != T(N - 1):
                c = [x for x in dq if x[1] <= g and (x[3] is None or placed.get(id(x[3]), N) < g) and x[2] - g <= o["eager"]]
                if c:
                    x = min(c, key=lambda x: x[2])
                    dq.remove(x)
                    D[g].append(x[0])
                    placed[id(x[0])] = g
                    if g > x[2] and o["verbose"]:
                        print("; late D", g - x[2], x[0].text, file=sys.stderr)
            if V[g] is None:
                V[g] = []
                continue
            cap = 2 if (ST[g] and "x4" in ST[g][0].text) else 1
            while len(V[g]) < cap:
                c = [x for x in vq if x[1] <= g and (x[3] is None or all(placed.get(id(y), N) <= g for y in x[3]))]
                if not c:
                    break
                x = min(c, key=lambda x: x[2])
                vq.remove(x)
                V[g].append(x[0])
                placed[id(x[0])] = g
                assert g <= x[2] or x[0].kind != "dpp", ("late", x[0].text)
        assert not dq and not vq, ([x[0].text for x in dq], [x[0].text for x in vq])
        for g in range(N):
            V[g] += XV[g]
        if self.dyn:
            rdup = max(placed[id(x)] for gl_ in V for x in gl_ if id(x) in placed and f"s{S_DELTA}," in x.text)
            assert rdup <= gl and gl + 1 < T(self.drain) and T(min(o["stg"])) > T(1)
        S[N - 1] += ([] if clm else [Op(f"s_waitcnt vmcnt({o['vmw']})", "salu")]) + [Op("s_barrier", "bar")]
        lastdma = T(dmag[4])
        la = max(placed[id(x)] for gl in V for x in gl if id(x) in placed and f"s{S_BUF}," in x.text)
        fn = min(placed[id(x)] for gl in V for x in gl if id(x) in placed and (f"s{S_BUFN}," in x.text or f"s{S_DELTA}," in x.text))
        sq = [([f"s_mov_b32 s{S_BUF}, s{S_BUFN}"], 0, 0),
              ([f"s_cmp_eq_u32 s{S_BUFN}, {(NB-1)*TBL}", f"s_cselect_b32 s{S_DELTA}, {-(NB-1)*TBL}, s{S_CTB}", f"s_add_u32 s{S_BUFN}, s{S_BUFN}, s{S_DELTA}"], c0 + 18, fn),
              ]
        if self.dyn:
            LK = self.dyn[1]
            sq.append((([] if clm else [f"s_mov_b32 s{S_OUT+2}, {XBYTES}"]) + [f"s_mov_b32 s{S_OOFF}, s{S_Q}"]
                       + [f"s_mov_b32 s{S_Q+k}, s{S_Q+k+1}" for k in range(LK - 1)]
                       + [f"s_mov_b32 s{S_Q+LK-1}, s{S_XOFF}" if clm else f"s_add_u32 s{S_Q+LK-1}, s{S_Q+LK-1}, {256*TB}"], stg[4] + 1, N - 2))
        else:
            sq.append(([f"s_mov_b32 s{S_OUT+2}, {XBYTES}", f"s_add_u32 s{S_OOFF}, s{S_OOFF}, s{S_OINC}", f"s_mov_b32 s{S_OINC}, s{S_OINC2}",
                        f"s_mov_b32 s{S_OINC2}, {256*TB}"], stg[4] + 1, N - 2))
        if not clm or o["trace"]:
            sq.append(([f"s_add_u32 s{S_IT}, s{S_IT}, 1"], c0 + 18, N - 2))
        if clm:
            ps = o["psh"]
            sq += [([f"s_add_u32 s{S_XOFF5}, s{S_XOFF}, s{S_K5}"], c0 + 18, lastdma - 2),
                   (self.dma_advance()[2:], lastdma + 1, N + 8),
                   ([f"s_lshr_b32 s{S_CT}, s{S_CL}, {ps}", f"s_mul_i32 s{S_CT}, s{S_CT}, {(256 - (1 << ps))*TB}", f"s_mul_i32 s{S_CT+1}, s{S_CL}, {TB}",
                     f"s_add_u32 s{S_CT}, s{S_CT}, s{S_CB}", f"s_add_u32 s{S_XOFF}, s{S_CT}, s{S_CT+1}"], LEAD + 2, T(N - 1) - 2),
                   ([f"s_cmp_lt_u32 s{S_CL}, {(16 - self.dyn[0]) << ps}"], T(N - 1) - 1, T(N - 1) - 1)]
        else:
            if dma:
                sq += [(self.dma_advance(), lastdma + 1, N + 12)]
            sq.append(([f"s_bitcmp1_b32 s{S_DMASK if dma else S_NMASK}, s{S_IT}"], T(N - 1) - 1, T(N - 1) - 1))
        G = lambda A: [[x for x in A[T(g)] if keep(x)] for g in range(N)]
        return seq, G(ST), G(S), G(D), G(V), [(x, (lo + BAR + 1), (hi + BAR + 1)) for x, lo, hi in sq], BAR

    def assemble_loop(self, links, label, dma=True, clm=False):
        seq, ST, S, D, V, sq, BAR = self.loop_ops(links, dma, clm)
        N = len(seq)
        flat = []
        for rep in range(2):
            for g in range(N):
                a0 = rep * N + g
                flat.append((seq[g], a0 - 1))
                for x in ST[g]:
                    flat.append((x, a0 - 1))
                for x in D[g] + V[g]:
                    flat.append((x, a0))
        gap_of = {}
        k = 0
        lds = []
        for rep in range(2):
            for g in range(N):
                k += 1 + len(ST[g])
                for x in D[g] + V[g]:
                    if x.kind == "lds":
                        lds.append((k, rep * N + g))
                    k += 1
        done = -1
        W = {}
        minlead = 99
        for i, (op, wg) in enumerate(flat):
            touched = op.rd | op.wr
            need = -1
            for n, (k, g) in enumerate(lds):
                if k < i and n > done and (flat[k][0].wr & touched):
                    need = n
            if need >= 0:
                assert lds[need][1] < wg
                issued = [n for n, (k, g) in enumerate(lds) if g < wg]
                cnt = min(issued[-1] - need, 15)
                done = issued[-1] - cnt
                if wg >= N - 1 and wg < 2 * N - 1:
                    W[wg % N] = min(cnt, W.get(wg % N, 99))
                    if self.o["verbose"]:
                        print(f"; wait gap {wg % N} cnt {cnt} lead {wg - lds[need][1]} for {flat[lds[need][0]][0].text}", file=sys.stderr)
        W[self.drain] = 0
        if clm:
            mb = [g for g in range(N) if any("ds_write" in x.text for x in D[g])][0]
            assert not [g for g in W if mb < g < self.drain]
        for g, c in W.items():
            S[g].insert(0, Op(f"s_waitcnt lgkmcnt({c})", "salu"))
        if not self.o["drop"]:
            last = max(g for g in range(BAR + 1) if any(x.kind == "lds" for x in D[g]))
            assert any(W.get(g) == 0 for g in range(last + 1, BAR + 1)), "tile reads not drained at the barrier"

        def room(g, extra=0, resv=True):
            g %= N
            if g == BAR or g == N - 1 or any(x.kind == "dma" for x in D[g]):
                return False
            cap = 1 if D[g] else (2 if V[g] else 3)
            if label and not clm and resv:
                if g == self.drain - 1:
                    return False
                cap -= g == self.drain - 2
            return len(S[g]) + extra < cap and not ST[g]
        sccfree = lambda x: x.text.startswith(("s_waitcnt", "s_mov", "s_barrier"))
        locked = set()
        for texts, lo, hi in sq:
            g = lo
            n = 0
            while n < len(texts):
                chain = [texts[n]]
                if texts[n].startswith(("s_cmp", "s_bitcmp")):
                    while n + len(chain) < len(texts) and texts[n + len(chain)].startswith("s_cselect"):
                        chain.append(texts[n + len(chain)])
                while True:
                    assert g <= hi, ("no room", chain)
                    where, z = [], g
                    ok = room(g) and ((g % N) not in locked or chain[0].startswith("s_mov"))
                    cnt = {}
                    for k, tx in enumerate(chain):
                        while ok and not room(z, cnt.get(z, 0)):
                            z += 1
                            ok = z <= hi and all(sccfree(x) for x in S[z % N]) and (clm or z % N != self.drain - 1)
                        where.append(z)
                        cnt[z] = cnt.get(z, 0) + 1
                    if ok:
                        break
                    g += 1
                for z, tx in zip(where, chain):
                    S[z % N].append(Op(tx, "salu"))
                if len(chain) > 1:
                    locked.update(z % N for z in range(where[0], where[-1]))
                g = where[-1]
                n += len(chain)
        assert all(sccfree(x) for x in S[N - 1])
        if label and not clm:
            gz = self.drain - (2 if self.o["trace"] else 1)
            assert self.o["chain"] and (self.o["trace"] or (not (S[gz] or D[gz] or V[gz] or ST[gz]) and room(gz - 1, 0, False) and (gz - 1) not in locked))
            assert all(x.kind not in ("dma", "st") for g in range(gz, N) for x in D[g] + ST[g]) and max(self.o["stg"]) < min(self.o["dmag"])
            S[gz - (0 if self.o["trace"] else 1)].append(Op(f"s_bitcmp1_b32 s{S_WMASK}, s{S_IT}", "salu"))
            S[gz] += [Op(f"s_cbranch_scc1 {label}_w", "salu"), Op(f"{label}_wb:", "label")]
            self.tailblocks.append(f"{label}_w:\ns_bitcmp1_b32 s{S_WMASK2}, s{S_IT}\ns_waitcnt vmcnt({self.whi})\n"
                                   f"s_cbranch_scc0 {label}_wb\ns_waitcnt vmcnt({self.wlo})\ns_branch {label}_wb")
        if self.o["trace"]:
            g0 = max(g for g, c in W.items() if c == 0 and g <= BAR)
            S[g0 - 1] += [Op("s_memrealtime s[98:99]", "salu"), Op("s_memtime s[96:97]", "salu"), Op(f"s_add_u32 s95, s{S_IT}, 32", "salu")]
            V[g0] += [Op(f"s_mov_b32 m0, s{S_IT}", "salu"), Op("v_writelane_b32 v254, s98, m0", "salu"), Op("s_mov_b32 m0, s95", "salu"), Op("v_writelane_b32 v254, s96, m0", "salu")]
        body = []
        for g in range(N):
            body += [x for x in [seq[g]] if not any(d in x.text for d in self.o["dropm"])] + ST[g] + S[g] + D[g] + V[g]
            if self.o["pad"] and g % self.o["pad"] == 0 and g < N - 2:
                body.append(Op("s_nop 3", "salu"))
        body = [x for x in body if x.kind == "mx" or not any(d in x.text for d in self.o["drop"])]
        body.append(Op(f"s_cbranch_scc1 {label}", "salu"))
        if not self.o["drop"]:
            real = [x for x in body if x.kind != "label"]
            m = len(real)
            for i, op in enumerate(real):
                for d in range(1, 10):
                    p = real[(i - d) % m]
                    ws = d - 1
                    if p.kind == "mx" and op.kind != "mx" and (p.wr & (op.rd | op.wr)):
                        assert ws >= 8, ("mx->x", p.text, op.text, ws)
                    if p.kind in ("valu", "dpp") and op.kind == "mx" and (p.wr & op.rd):
                        assert ws >= 2, ("valu->mx", p.text, op.text, ws)
                    if p.kind in ("valu", "dpp") and op.kind == "dpp" and (p.wr & op.rd):
                        assert ws >= 2, ("valu->dpp", p.text, op.text, ws)
                    if p.kind == "st" and (p.rd & op.wr):
                        assert ws >= 2, ("st war", p.text, op.text, ws)
        pro = [x for g in range(N) for x in V[g] if x.tag == "pre" or (g > BAR and "sdwa" in x.text)] \
            + [x for g in range(BAR + 1, N) for x in D[g] if x.tag == "pre"]
        epi = [x for g in range(BAR) for x in ST[g] + D[g] + V[g] if x.tag == "epi"]
        return pro, body, epi

    def emit_epi(self, epi):
        cv = [x for x in epi if "v_cvt" in x.text]
        bp = [x for x in epi if x.kind == "lds"]
        rest = [x for x in epi if x not in cv and x not in bp]
        ops = rest[:6] + cv[2:] + bp + rest[6:12] + cv[:2] + rest[12:]
        if self.o["ste"] is not None:
            ops = [Op(x.text.replace(" sc1", " " + self.o["ste"]), x.kind, x.rd, x.wr) if x.kind == "st" else x for x in ops]
        hist = [Op("", "mx", wr=rng(V_ACC + 28, 8)), Op("", "valu", wr=rng(V_P, 14)), Op("", "salu")]
        self.emit_line(ops, [], hist)

    def main_loop(self, links, sfx):
        a = self.a
        pro, body, epi = self.assemble_loop(links, "L_loop" + sfx)
        if not self.o["peel"]:
            late = list(self.late_loads)
            for n, op in enumerate(pro):
                a(op.text)
                if n % 6 == 5:
                    while late and not late[0].startswith("buffer"):
                        a(late.pop(0))
                    if late:
                        a(late.pop(0))
            for x in late[:8]:
                a(x)
            a("s_waitcnt lgkmcnt(0)")
            a(f"v_readfirstlane_b32 s{S_T0}, v{V_T}")
            a("s_nop 3")
            a(f"s_cmp_lg_u32 s{S_T0}, 0")
            a("s_cbranch_scc1 L_slow")
            for x in late[8:]:
                a(x)
            if max(p[1] for p in self.pol):
                self.prefetch(24, "L_pf2" + sfx)
            for x in self.dma_advance(first=True):
                a(x)
            a(f"s_waitcnt vmcnt({(20 if self.o['early'] else 0) + 5 * self.n2min})")
            self.stamp(5)
            a(f"s_bitcmp1_b32 s{S_DMASK}, 0")
            a(f"s_cbranch_scc0 L_loopn{sfx}")
        a(".p2align 6")
        a(f"L_loop{sfx}:")
        for op in body:
            a(op.text)
        if self.o["wbl2"] is not None:
            a(f"s_lshr_b32 s{S_T0}, s2, 3")
            a(f"s_and_b32 s{S_T0}, s{S_T0}, {self.o['wbl2']}")
            a(f"s_or_b32 s{S_T0}, s{S_T0}, s{S_WAVE}")
            a(f"s_cbranch_scc1 L_loopn{sfx}")
            a("buffer_wbl2 sc1")
        if self.dyn:
            LK = self.dyn[1]
            a(f"s_cmp_lg_u32 s{S_IT}, {self.cl0}")
            a(f"s_cbranch_scc1 L_loopn{sfx}")
            a(".p2align 3")
            a(f"L_loopc{sfx}:")
            for op in self.assemble_loop(links, "L_loopc" + sfx, True, True)[1]:
                a(op.text)
            if self.o["trace"]:
                a(f"s_add_u32 s{S_NT}, s{S_IT}, {LK}")
                a(f"s_bfm_b32 s{S_NMASK}, s{S_NT}, 0")
                a(f"s_lshl_b32 s{S_WMASK}, {1 << (LK-1)}, s{S_IT}")
                a(f"s_lshl_b32 s{S_WMASK2}, {(1 << (LK-1)) if 5*(LK-1) < self.whi else 0}, s{S_IT}")
            else:
                a(f"s_mov_b32 s{S_IT}, 0")
                a(f"s_mov_b32 s{S_NT}, {LK}")
                a(f"s_mov_b32 s{S_NMASK}, {(1 << LK) - 1}")
                a(f"s_mov_b32 s{S_WMASK}, {(1 << (LK-1)) if 5*(LK-1) < self.o['vmw'] else 0}")
                a(f"s_mov_b32 s{S_WMASK2}, {(1 << (LK-1)) if 5*(LK-1) < self.whi else 0}")
            a(f"s_mov_b32 s{S_CL0}, -1")
            if self.o["stt"] is not None:
                keep, self.o["stn"] = self.o["stn"], self.o["stt"]
                for op in self.assemble_loop(links, "L_loopt" + sfx, False)[1][:-1]:
                    a(op.text)
                self.o["stn"] = keep
        if self.o["align2"]:
            a(".p2align 3")
        a(f"L_loopn{sfx}:")
        _, body, epi = self.assemble_loop(links, "L_loopn" + sfx, False)
        for op in body:
            a(op.text)
            if op.kind == "bar":
                a(f"L_loopn{sfx}_p3:")
        if self.dyn:
            a(f"s_cmp_eq_u32 s{S_IT}, s{S_CL0}")
            a(f"s_cbranch_scc1 L_loopc{sfx}")
        a(f"s_cmp_lt_u32 s{S_IT}, s{S_NT}")
        a(f"s_cbranch_scc1 L_loop{sfx}")
        self.emit_epi(epi)

    def loop_state(self):
        a = self.a
        pl = 2 if self.o["peel"] else 0
        a(f"s_mov_b32 s{S_IT}, {pl}")
        a(f"s_mov_b32 s{S_BUF}, 0")
        a(f"s_mov_b32 s{S_BUFN}, {pl*TBL}")
        if pl:
            a(f"s_mov_b32 s{S_OUT+2}, {XBYTES}")
        a(f"s_mov_b32 s{S_CTB}, {TBL}")
        a(f"s_mov_b32 s{S_OINC}, {256*TB if pl else 0}")
        a(f"s_mov_b64 vcc, {sr(S_EVEN,2)}")
        if self.dyn:
            NS, LK = self.dyn
            ps = self.o["psh"]
            a(f"s_andn2_b32 s{S_NMASK}, {(1 << self.cl0) - 1}, s{S_DMASK}")
            a(f"s_mov_b32 s{S_CL0}, {self.cl0}")
            a(f"s_add_u32 s{S_Q}, s{S_OOFF}, {pl*256*TB}")
            for k in range(1, LK):
                a(f"s_add_u32 s{S_Q+k}, s{S_Q+k-1}, {256*TB}")
            a(f"s_sub_u32 s{S_K5}, s{S_XOFF5}, s{S_XOFF}")
            a(f"s_lshr_b32 s{S_T0}, s2, {ps}")
            a(f"s_mul_i32 s{S_CB}, s{S_T0}, {TB << ps}")
            a(f"s_add_u32 s{S_CB}, s{S_CB}, {NS*256*TB}")
            a(f"s_lshl_b32 s{S_T0}, s{S_T0}, 7")
            a(f"s_add_u32 s{S_T0}, s{S_T0}, {CNT_OFF}")
            a(f"s_add_u32 s{S_B}, s{S_WS}, s{S_T0}")
            a(f"s_addc_u32 s{S_B+1}, s{S_WS+1}, 0")
            a(f"s_cmp_eq_u32 s{S_WAVE}, 0")
            a(f"s_cselect_b32 s{S_B+2}, 4, 0")
            a(f"s_cselect_b64 {sr(S_W0,2)}, 1, 0")
        else:
            a(f"s_bfm_b32 s{S_NMASK}, s{S_NT}, 0")
            a(f"s_andn2_b32 s{S_NMASK}, s{S_NMASK}, s{S_DMASK}")

    def stamp(self, n, r="s[98:99]"):
        if self.o["stamp"] and (self.o["stamp"] is True or n in self.o["stamp"]):
            a = self.a
            a(f"s_memtime {r}" if self.o["cyc"] and n in (5, 6) else f"s_memrealtime {r}")
            a("s_waitcnt lgkmcnt(0)")
            a(f"v_writelane_b32 v255, s{r[2:4]}, {n}")

    def descriptor(self, label, vg, ag):
        self.a(f""".amdhsa_kernel {label}
  .amdhsa_next_free_vgpr {vg}
  .amdhsa_next_free_sgpr 102
  .amdhsa_accum_offset {ag}
  .amdhsa_group_segment_fixed_size 0
  .amdhsa_float_denorm_mode_32 3
  .amdhsa_kernarg_size 48
  .amdhsa_user_sgpr_count 2
  .amdhsa_user_sgpr_kernarg_segment_ptr 1
  .amdhsa_system_sgpr_workgroup_id_x 1
.end_amdhsa_kernel""")

    def flush_tail(self):
        for b in self.tailblocks:
            self.a(b)
        self.tailblocks = []

    def gen(self):
        a = self.a
        o = self.o
        K = NAME + "_kernel"
        a(open("cdna_kernels/" + NAME + ".s.ref").read().split("; Override")[0].rstrip())
        if o["fused"]:
            a(f"; @launch grid=(256,1,1) block=(256,1,1) lds={LDS_BYTES}")
        else:
            a(f"; @launch kernel=prep_kernel grid=({NTASK},1,1) block=(256,1,1) lds={LDS_BYTES}")
            a(f"; @launch kernel={K} grid=(256,1,1) block=(256,1,1) lds={LDS_BYTES}")
        a('.amdgcn_target "amdgcn-amd-amdhsa--gfx950"\n.text')
        if not o["fused"]:
            self.entry("prep_kernel", NTASK)
            a(f"s_mov_b32 s{S_TASK}, s2\ns_mov_b32 s{S_BASE}, 0")
            self.producer("", False)
            a("L_end_prep_kernel:\ns_endpgm")
            self.flush_tail()
        self.entry(K, 256)
        a(f"s_mov_b32 s{S_BASE}, 0")
        msk = lambda p: hex(sum(1 << i for i in p[2] if not self.dyn or i < self.cl0) | p[0] << 20 | p[1] << 24)
        def pick(reg, vals):
            if len(set(vals)) == 1:
                a(f"s_mov_b32 s{reg}, {vals[0]}")
                return
            a(f"s_mov_b32 s{reg}, {vals[1]}")
            a(f"s_mov_b32 s{S_T0}, {vals[3]}")
            a(f"s_bitcmp1_b32 s2, {o['gsh']}")
            a(f"s_cselect_b32 s{reg}, s{reg}, {vals[0]}")
            a(f"s_cselect_b32 s{S_T0}, s{S_T0}, {vals[2]}")
            a(f"s_bitcmp1_b32 s2, {o['gsh2']}")
            a(f"s_cselect_b32 s{reg}, s{S_T0}, s{reg}")
        if o["fused"]:
            px = o["px"]
            if o["pspread"]:
                a(f"s_bfe_u32 s{S_TASK}, s2, {hex(2 << 16 | 3)}")
                a(f"s_mul_i32 s{S_TASK}, s{S_TASK}, {px}")
                a(f"s_and_b32 s{S_T0}, s2, 7")
                a(f"s_add_u32 s{S_TASK}, s{S_TASK}, s{S_T0}")
                a(f"s_lshr_b32 s{S_T1}, s2, 5")
                a(f"s_lshl3_add_u32 s{S_TASK}, s{S_TASK}, s{S_T1}")
            else:
                a(f"s_lshr_b32 s{S_TASK}, s2, 3")
                a(f"s_mul_i32 s{S_TASK}, s{S_TASK}, {px}")
                a(f"s_and_b32 s{S_T0}, s2, 7")
                a(f"s_add_u32 s{S_TASK}, s{S_TASK}, s{S_T0}")
            a(f"s_cmp_lt_u32 s{S_T0}, {px}")
            a(f"s_cselect_b32 s{S_TASK}, s{S_TASK}, 63")
            a(f"s_cmp_lt_u32 s{S_TASK}, {NTASK}")
            a("s_cbranch_scc1 L_prod")
        pick(S_DMASK, [msk(p) for p in self.pol[:4]])
        self.lane_setup()
        self.entry_wait()
        a("L_cons3:")
        self.stamp(1)
        self.dma_setup()
        self.prefetch(20)
        self.stamp(2)
        if o["fused"]:
            a("s_branch L_rest")
            a("L_prod:")
            self.producer("", False)
            pick(S_DMASK, [msk(p) for p in self.pol[4:]] * 2)
            a("s_barrier")
            a(f"s_cmp_lg_u32 s{S_WAVE}, 0")
            a("s_cbranch_scc1 L_cons2")
            a("v_mov_b32 v8, 1")
            a("s_mov_b64 exec, 1")
            if o["sig"] == 2:
                a(f"s_lshr_b32 s{S_T0}, s{S_TASK}, 1")
                a(f"s_lshl_b32 s{S_T0}, s{S_T0}, 2")
                a(f"s_bitcmp1_b32 s{S_TASK}, 0")
                a(f"s_cselect_b32 s{S_T1}, 128, 0")
                a(f"s_add_u32 s{S_T0}, s{S_T0}, s{S_T1}")
                a(f"v_mov_b32 v9, s{S_T0}")
                a(f"buffer_store_dword v8, v9, {sr(S_DBG,4)}, 0 offen {o['fs']}")
            else:
                a(f"buffer_atomic_add v8, off, {sr(S_DBG,4)}, 0 offset:128 sc0 sc1")
                a("v_mov_b32 v9, 1")
                a("s_waitcnt vmcnt(0)")
                a(f"v_readfirstlane_b32 s{S_T0}, v8")
                a("s_nop 3")
                a(f"s_cmp_lg_u32 s{S_T0}, {NTASK-1}")
                a("s_cbranch_scc1 L_notlast")
                a(f"buffer_store_dword v9, off, {sr(S_DBG,4)}, 0 {o['fs']}")
                if o["diag"] and o["diag"][2] == "last":
                    a("s_mov_b32 s101, -1")
            a("L_notlast:")
            self.stamp(15)
            a("s_mov_b64 exec, -1")
            a("L_cons2:")
            self.lane_setup()
            if o["bar2"]:
                a("s_barrier")
            a("s_branch L_cons3")
            self.flush_tail()
            a("L_rest:")
        for reg, wm in ((S_WMASK, self.wmask), (S_WMASK2, self.wmask2)):
            pick(reg, [hex(x) for x in wm[:4]])
            if o["fused"]:
                pick(S_T1, [hex(x) for x in wm[4:]] * 2)
                a(f"s_cmp_lt_u32 s{S_TASK}, {NTASK}")
                a(f"s_cselect_b32 s{reg}, s{S_T1}, s{reg}")
        self.bias_load()
        self.lane_setup2()
        self.tables_init()
        pre, C, G = self.build()
        if o["fused"]:
            a(f"s_cmp_lg_u32 s{S_WAVE}, 0")
            a("s_cbranch_scc1 L_ready")
            if o["sig"] == 2:
                a(f"v_lshlrev_b32 v9, 2, v{V_LANE}")
                a("s_waitcnt vmcnt(0)")
            else:
                a("s_mov_b64 exec, 1")
            a(f"s_mov_b32 s{S_T1}, {o['maxpoll']}")
            if o["stamp"] and (o["stamp"] is True or 14 in o["stamp"]):
                a("s_waitcnt vmcnt(0)")
                self.stamp(14)
            a("L_poll:")
            if o["psleep"]:
                a(f"s_sleep {o['psleep']}")
            a(f"buffer_load_dword v8, {'v9' if o['sig'] == 2 else 'off'}, {sr(S_DBG,4)}, 0 {'offen ' if o['sig'] == 2 else ''}{o['pl']}")
            a(f"s_sub_u32 s{S_T1}, s{S_T1}, 1")
            a("s_cbranch_scc1 L_giveup")
            a("s_waitcnt vmcnt(0)")
            if o["sig"] == 2:
                a("v_cmp_ne_u32 vcc, 0, v8")
                a(f"s_bcnt1_i32_b64 s{S_T0}, vcc")
                a(f"s_cmp_lt_u32 s{S_T0}, {NTASK}")
            else:
                a(f"v_readfirstlane_b32 s{S_T0}, v8")
                a("s_nop 3")
                a(f"s_cmp_eq_u32 s{S_T0}, 0")
            a("s_cbranch_scc1 L_poll")
            a("L_polled:")
            a("s_mov_b64 exec, -1")
            a("L_ready:")
            self.tailblocks.append(f"L_giveup:\ns_waitcnt vmcnt(0)\nv_mov_b32 v8, {L_PL + 256}\nv_mov_b32 v9, 1\nds_write_b32 v8, v9\ns_branch L_polled")
        a("s_waitcnt lgkmcnt(0)")
        a("s_barrier")
        self.stamp(3)
        self.emit_build(pre, C, G)
        self.stamp(4, "s[94:95]")
        self.loop_state()
        a("s_waitcnt lgkmcnt(0)")
        a(f"v_mov_b32 v{V_X if o['peel'] else V_T}, {L_PL + 256}")
        a("s_barrier")
        if o["peel"]:
            self.peel()
            if max(p[1] for p in self.pol):
                self.prefetch(24, "L_pf2")
            for x in self.dma_advance(first=True):
                a(x)
            a(f"s_add_u32 s{S_OOFF}, s{S_OOFF}, {256*TB}")
            self.stamp(5)
            a("s_waitcnt lgkmcnt(0)")
            a("s_barrier")
            if o["links"] is None:
                a(f"s_cmp_lg_u32 s{S_LINK}, 0")
                a("s_cbranch_scc1 L_loopnk_p3")
            a("s_branch L_loopn_p3")
        else:
            a(f"ds_read_b32 v{V_T}, v{V_T}")
            if o["links"] is None:
                a(f"s_cmp_lg_u32 s{S_LINK}, 0")
                a("s_cbranch_scc1 L_linked")
        self.main_loop(bool(o["links"]), "")
        a("L_fin:")
        if o["stamp"]:
            a(f"v_mbcnt_lo_u32_b32 v{V_LANE}, -1, 0\nv_mbcnt_hi_u32_b32 v{V_LANE}, -1, v{V_LANE}")
        self.stamp(6)
        if o["stamp"]:
            a("s_waitcnt vmcnt(0)")
            self.stamp(7)
            a("v_writelane_b32 v255, s100, 0")
            a(f"s_lshl_b32 s{S_T0}, s2, 2\ns_add_u32 s{S_T0}, s{S_T0}, s{S_WAVE}\ns_lshl_b32 s{S_T0}, s{S_T0}, 6")
            a(f"s_add_u32 s{S_T0}, s{S_T0}, {WSBYTES - 65536}")
            if o["trace"]:
                a(f"s_lshl_b32 s{S_T1}, s2, 2\ns_add_u32 s{S_T1}, s{S_T1}, s{S_WAVE}\ns_lshl_b32 s{S_T1}, s{S_T1}, 8")
                a(f"s_add_u32 s{S_T1}, s{S_T1}, {WSBYTES - 65536 - 262144}")
                a(f"v_lshl_add_u32 v8, v{V_LANE}, 2, s{S_T1}")
                a(f"buffer_store_dword v254, v8, {sr(S_WS,4)}, 0 offen")
                a("s_nop 1")
            a(f"v_lshl_add_u32 v254, v{V_LANE}, 2, s{S_T0}")
            a("s_mov_b32 exec_lo, 0xffff\ns_mov_b32 exec_hi, 0")
            a(f"buffer_store_dword v255, v254, {sr(S_WS,4)}, 0 offen")
            if o["diag"]:
                n1, n0, wg, mul = o["diag"]
                a(("s_cmp_lg_u32 s101, -1" if wg == "last" else f"s_cmp_lg_u32 s2, {wg}") + f"\ns_cbranch_scc1 L_end_{K}\ns_cmp_lg_u32 s{S_WAVE}, 0\ns_cbranch_scc1 L_end_{K}")
                a(f"v_readlane_b32 s60, v255, {n1}\nv_readlane_b32 s61, v255, {n0}\ns_nop 3\ns_sub_u32 s60, s60, s61\ns_mul_i32 s60, s60, {mul}")
                a("s_min_u32 s60, s60, 100000\ns_add_u32 s60, s60, 10000")
                a("L_diag:\ns_sleep 1\ns_memrealtime s[62:63]\ns_waitcnt lgkmcnt(0)\ns_sub_u32 s62, s62, s100\ns_cmp_lt_u32 s62, s60\ns_cbranch_scc1 L_diag")
        a(f"L_end_{K}:\ns_endpgm")
        self.flush_tail()
        if o["links"] is None:
            a("L_linked:")
            self.main_loop(True, "k")
            a("s_branch L_fin")
            self.flush_tail()
        self.slow_path(K)
        a('.section .rodata,"a"\n.p2align 6')
        if not o["fused"]:
            self.descriptor("prep_kernel", 128, 128)
            a(".p2align 6")
        self.descriptor(K, 512, 256)
        return "\n".join(self.L) + "\n"


if __name__ == "__main__":
    opts = eval("dict(" + (sys.argv[2] if len(sys.argv) > 2 else "") + ")")
    out = sys.argv[1] if len(sys.argv) > 1 else "cdna_kernels/" + NAME + ".s"
    open(out, "w").write(Gen(**opts).gen())
```

```python
import sys

NAME = "standalone__structured_sparse_n_m__ragged"
TB = 18432
TBL = TB + 128
NB = 8
CNT_OFF = 1 << 28
MB_OFF = CNT_OFF + (1 << 20)
XBYTES = 75497472
WBYTES = 663552
WSBYTES = 301989888
A_OFF = 0
I_OFF = 331776
I8_OFF = I_OFF + 36864
R1_OFF = I8_OFF + 5120
R8_OFF = R1_OFF + 9216
COPY = 393216
NTASK = 41
L_WV = NB * TBL
WV_SZ = 3584
O_X, O_K, O_M, O_BIAS, O_IDX = 64, 384, 704, 1024, 1792
L_PL = L_WV + 4 * WV_SZ
LDS_BYTES = 163840
assert L_PL + 512 <= LDS_BYTES and L_WV % 256 == 0 and WV_SZ % 256 == 0

V_RD0, V_RD1, V_TAB, V_DMA, V_ST, V_ST8, V_BP, V_LANE = 0, 1, 2, 3, 4, 5, 6, 7
V_ACC = 8
V_B = 44
V_BR = 76
V_P = 92
V_T = 108
V_P8 = 112
V_X = 114
V_AD = 118
V_I = 138
V_I8 = 174
V_IR = 179
V_A = 186
S_X, S_OUT, S_WS, S_W, S_B, S_DBG = 16, 20, 24, 28, 32, 36
S_WAVE = 40
S_IT, S_BUF, S_DELTA, S_M0B, S_XOFF, S_OOFF = 41, 42, 43, 44, 45, 46
S_T0, S_T1 = 47, 3
S_MASK = 48
S_EVEN, S_ODD = 80, 82
S_TASK, S_TEND, S_BASE, S_MODE, S_CONT = 84, 85, 86, 87, 88
S_BAD = 90
S_MORE, S_LINK = 78, 89
S_C0 = 93
S_BUFN, S_CTB, S_OINC, S_XOFF5, S_M05, S_M0W, S_HALF = 4, 5, 6, 7, 8, 9, 10
S_NMASK = 12
S_WMASK, S_WMASK2 = 92, 87
S_XINC, S_OINC2, S_NT = 13, 14, 15
S_Q, S_CL, S_CB, S_K5, S_CL0, S_CT, S_W0 = 48, 56, 57, 58, 59, 60, 62
V_C = 7
S_DMASK, S_NB0 = 85, 88


def vr(b, n=1):
    return f"v{b}" if n == 1 else f"v[{b}:{b+n-1}]"


def sr(b, n=1):
    return f"s{b}" if n == 1 else f"s[{b}:{b+n-1}]"


def afrag(s, t):
    f = 9 * s + t
    return f"a[{4*f}:{4*f+3}]" if f < 64 else vr(V_A + 4 * (f - 64), 4)


def aidx(s, t):
    if t < 8:
        return V_I + 4 * s + (t >> 1), t & 1
    return V_I8 + (s >> 1), s & 1


BBUF = [0, 1, 2, 3, 0, 1, 0, 2, 3]
PEEL_T = [8, 0, 1, 2, 3, 4, 5, 6, 7]
RT = [[0, 1], [1, 2, 3], [3, 4, 5], [5, 6, 7], [7, 8]]


class Op:
    def __init__(self, text, kind, rd=(), wr=(), tag=""):
        self.text, self.kind, self.rd, self.wr, self.tag = text, kind, set(rd), set(wr), tag


def rng(b, n):
    return range(b, b + n)


class Gen:
    def __init__(self, **o):
        self.o = dict(fused=True, ld="nt", st="sc1", bperm=True, grp=None, nb0=None, gsh=3, gsh2=4, split=0, dyn=(10, 3), psh=6, peel=True, ptail=10, vcap=18, stp=None, stt=None, ste=None, mbg=64, cwg=46, dwg=20, wbl2=None, stn=None, pad=0, dropm=(), st8='', stc=None, stamp=False, nodma=False, wl="sc1", ws="sc1",
                      vmw=20, lper=14, drop=(), cyc=False, links=None, ng4=8, px=2, maxpoll=20015, warm=True, bcast=True, l0=12, lw=2, cwarm=True, pspread=True, pfw=None, wtouch=False, bar2=True, early=True, ltail=24, coal=True, rpos=(18, 35, 50, 63, 75), rposl=(18, 36, 52, 66, 78),
                      lead=8, stg=(9, 16, 23, 30, 37), dmag=(44, 52, 60, 63, 66), gsp=2, eager=99, verbose=False, hack=None, diag=None, sig=1, psleep=0, pl='sc1', fs='sc1', isort=False, trace=False, chain=True, ord1=(0,1,4,5,6,2,3,7,8), ord2=(0,4,5,1,6,7,2,3,8), align2=True, order='hp')
        self.o.update(o)
        if self.o["grp"] is None and self.o["nb0"] is None:
            self.o.update(grp=[(3, 2, 2), (8, 0, 5), (3, 2, 2)])
        grp = self.o["grp"] or [(self.o["nb0"], 0, 0)] * 2
        if len(grp) != 6:
            grp = list(grp[:-1]) * (4 // (len(grp) - 1)) + [grp[-1]] * 2
        sp = self.o["split"]
        if sp:
            self.o["gsh"], self.o["gsh2"] = 0, 3
        self.pol, self.nt = [], []
        for c, (n1, n2, its) in enumerate(grp):
            nt = 16 + (sp if c % 2 == 0 else -sp)
            nb = n1 + n2
            its = list(its) if isinstance(its, (list, tuple)) else [its]
            while len(its) < nt - nb:
                its.append(its[-1] + 1)
            assert len(its) == nt - nb and all(nb + n - 7 <= i <= nb + n - 2 for n, i in enumerate(its)) and n1 >= 1, (n1, n2, its)
            self.pol.append((n1, n2, its))
            self.nt.append(nt)
        self.dyn = self.o["dyn"]
        if self.dyn:
            NS, LK = self.dyn
            self.cl0 = NS - LK - 1
            assert not sp and all(its[NS - 1 - n1 - n2] == self.cl0 and its[-1] == 15 - LK for n1, n2, its in self.pol) and self.cl0 >= 1
        self.n2min = min(p[1] for p in self.pol)
        req = []
        for (n1, n2, its), nt in zip(self.pol, self.nt):
            r = [63] * nt
            for tile in range(n1, nt):
                i = tile - 1
                a0 = (1 if self.o["peel"] else -1) if tile < n1 + n2 else its[tile - n1 - n2]
                r[i] = sum(10 if j in its else 5 for j in range(a0 + 1, i + 1)) + 5 * max(0, n1 + n2 - 1 - tile)
                if a0 < 0:
                    r[i] -= 5
            if self.o["peel"]:
                assert n1 >= 3 and its[0] >= 2 and not sp
            elif self.o["early"]:
                r[0] = min(r[0], 5 * n2 + (5 if 0 in its else 0))
            if self.dyn:
                r = r[:self.cl0] + [5 * (self.dyn[1] - 1)]
            req.append(r)
        low = sorted({x for r in req for x in r if x < self.o["vmw"]})
        self.wlo = low[0] if low else 0
        best = None
        for hi in low or [0]:
            cost = sum(x - (hi if x >= hi else self.wlo) for r in req[:4] for x in r[1:] if x < self.o["vmw"])
            if best is None or cost < best[0]:
                best = (cost, hi)
        self.whi = best[1]
        self.wmask = [sum(1 << (i + 1) for i, x in enumerate(r) if x < self.o["vmw"]) for r in req]
        self.wmask2 = [sum(1 << (i + 1) for i, x in enumerate(r) if x < self.whi) for r in req]
        self.req = req
        self.L = []
        self.tailblocks = []

    def a(self, s):
        self.L.extend(s.split("\n"))

    def entry(self, label, nwg):
        a = self.a
        a(f".globl {label}\n.p2align 8\n.type {label},@function\n{label}:")
        a("s_load_dwordx8 s[4:11], s[0:1], 0")
        a("s_load_dwordx4 s[12:15], s[0:1], 32")
        a(f"s_cmp_ge_u32 s2, {nwg}")
        a(f"s_cbranch_scc1 L_end_{label}")
        if self.o["stamp"]:
            a("s_memrealtime s[100:101]")
        a("v_lshlrev_b32 v3, 7, v0")
        if self.o["cwarm"]:
            a("s_getpc_b64 s[96:97]")
            a(f"v_min_u32 v2, L_slow-{label}, v3")
            a("global_load_dword v120, v2, s[96:97]")
        if self.o["wtouch"]:
            a(f"s_lshr_b32 s{S_T0}, s2, 3")
            a(f"s_mul_i32 s{S_T0}, s{S_T0}, {162*128}")
            a(f"v_add_u32 v3, s{S_T0}, v3")
            a(f"v_min_u32 v3, {WBYTES-128}, v3")
            a(f"s_and_b32 s{S_T0}, s2, {8 - self.o['px']}")
            a("s_waitcnt lgkmcnt(0)")
            a(f"s_cbranch_scc1 L_nt_{label}")
            a("global_load_dword v121, v3, s[6:7]")
            a(f"L_nt_{label}:")
        a("v_lshrrev_b32 v1, 6, v0")
        a(f"v_and_b32 v{V_LANE}, 63, v0")
        a(f"v_readfirstlane_b32 s{S_WAVE}, v1")

    def mb_addr(self, d, t):
        a = self.a
        a(f"s_lshr_b32 s{d}, s2, 4")
        a(f"s_and_b32 s{t}, s2, 7")
        a(f"s_lshl3_add_u32 s{d}, s{d}, s{t}")
        a(f"s_and_b32 s{t}, s2, 8")
        a(f"s_lshl4_add_u32 s{d}, s{t}, s{d}")
        a(f"s_lshl_b32 s{d}, s{d}, 7")
        a(f"s_add_u32 s{d}, s{d}, {MB_OFF}")

    def srds(self, which):
        for srd, p, size in ((S_W, 6, WBYTES), (S_X, 4, XBYTES), (S_WS, 14, WSBYTES), (S_B, 8, 1152), (S_OUT, 10, 0), (S_DBG, 12, 256)):
            if srd in which:
                self.a(f"s_mov_b32 s{srd+2}, {size}")
                self.a(f"s_mov_b32 s{srd+3}, 0x20000")
                self.a(f"s_mov_b32 s{srd}, s{p}")
                self.a(f"s_and_b32 s{srd+1}, s{p+1}, 0xffff")

    def entry_wait(self, first=None):
        lst = (S_W, S_X, S_WS, S_B, S_OUT, S_DBG)
        if first is not False:
            self.a("s_waitcnt lgkmcnt(0)")
        self.srds(lst if first is None else (lst[:1] if first else lst[1:]))

    def producer(self, sfx, generic):
        a = self.a
        ws = self.o["ws"]
        W, Z, K = 8, 24, 28
        OA, NB_, IX = 36, 44, 48
        VL, VA, VI, VM0, VM1, VSEL, CJ = 50, 51, 52, 53, 54, 55, 56
        F0, F1, H, U, T0, T1, T2, VLI, VA2 = 58, 59, 60, 61, 62, 63, 64, 65, 66
        C = S_MASK
        SEL = S_MASK + 16
        CNT = S_MASK + 27
        ln = f"v{V_LANE}"
        a(f"s_and_b32 s{C}, s{S_TASK}, 3")
        a(f"s_lshr_b32 s{C+1}, s{S_TASK}, 2")
        a(f"s_sub_u32 s{C+2}, s{S_TASK}, 36")
        a(f"s_lshl_b32 s{C+3}, s{S_WAVE}, 4")
        a(f"s_lshl_b32 s{C+4}, s{C+2}, 1")
        a(f"s_lshl_b32 s{C+5}, s{C}, 8")
        a(f"s_cmp_lt_u32 s{S_TASK}, 36")
        a(f"s_cselect_b32 s{C+4}, s{C+1}, s{C+4}")
        a(f"s_cselect_b32 s{C+5}, s{C+5}, 1024")
        a(f"s_cselect_b32 s{C+6}, 8, 73728")
        a(f"s_cselect_b32 s{C+7}, 32, 8")
        a(f"s_cselect_b32 s{C+8}, 16, 32")
        a(f"s_cselect_b32 s{C+9}, 128, 64")
        a(f"s_mul_i32 s{C+4}, s{C+4}, 73728")
        a(f"s_mul_i32 s{C+10}, s{S_WAVE}, 18432")
        a(f"v_and_b32 v{F0}, 1, {ln}")
        a(f"v_bfe_u32 v{F1}, {ln}, 1, 1")
        a(f"v_bfe_u32 v{H}, {ln}, 2, 2")
        a(f"v_bfe_u32 v{T0}, {ln}, 4, 1")
        a(f"v_lshrrev_b32 v{T1}, 5, {ln}")
        a(f"v_lshl_add_u32 v{VL}, v{F0}, 2, s{C+4}")
        a(f"v_mad_u32_u24 v{VL}, v{F1}, s{C+6}, v{VL}")
        a(f"v_mad_u32_u24 v{VL}, v{H}, s{C+7}, v{VL}")
        a(f"v_mad_u32_u24 v{VL}, v{T0}, s{C+8}, v{VL}")
        a(f"v_mad_u32_u24 v{VL}, v{T1}, s{C+9}, v{VL}")
        a(f"v_add_u32 v{VL}, s{C+5}, v{VL}")
        a(f"v_add_u32 v{VL}, s{C+10}, v{VL}")
        a(f"v_add_u32 v{T0}, 4608, v{VL}")
        a(f"v_add_u32 v{T1}, 9216, v{VL}")
        a(f"v_add_u32 v{T2}, 13824, v{VL}")
        if not generic:
            self.entry_wait(first=True)
        for q in range(4):
            for j in range(4):
                a(f"buffer_load_dword v{W+4*q+j}, v{(VL, T0, T1, T2)[q]}, {sr(S_W,4)}, 0 offen offset:{1152*j}")
        if not generic:
            self.stamp(8)
            self.entry_wait(first=False)
        a(f"s_mul_i32 s{C+4}, s{C}, 9")
        a(f"s_add_u32 s{C+4}, s{C+4}, s{C+1}")
        a(f"s_mul_i32 s{C+5}, s{C+4}, 9")
        a(f"s_mul_i32 s{C+6}, s{C+2}, 18")
        a(f"s_add_u32 s{C+6}, s{C+6}, 8")
        a(f"s_lshl_b32 s{C+7}, s{C+4}, 2")
        a(f"s_add_u32 s{C+7}, s{C+7}, s{S_WAVE}")
        a(f"s_lshl_b32 s{C+8}, s{C+2}, 2")
        a(f"s_add_u32 s{C+8}, s{C+8}, s{S_WAVE}")
        a(f"s_cmp_eq_u32 s{S_TASK}, 40")
        a(f"s_cselect_b32 s{C+9}, 0x100000, 9")
        a(f"s_cmp_lt_u32 s{S_TASK}, 36")
        a(f"s_cselect_b32 s{C+5}, s{C+5}, s{C+6}")
        a(f"s_cselect_b32 s{C+6}, 2, 81")
        a(f"s_cselect_b32 s{C+9}, 1, s{C+9}")
        a(f"s_cselect_b32 s{C+7}, s{C+7}, s{C+8}")
        a(f"s_mov_b32 s{C+8}, {I_OFF}")
        a(f"s_cselect_b32 s{C+8}, s{C+8}, {I8_OFF}")
        a(f"s_mov_b32 s{C+10}, {R1_OFF}")
        a(f"s_cselect_b32 s{C+10}, s{C+10}, {R8_OFF}")
        a(f"s_cselect_b32 s{C+11}, 16, 4")
        a(f"s_cselect_b32 s{C+12}, 4, 64")
        a(f"s_cselect_b32 s{C+13}, 12, 11")
        a(f"s_cselect_b32 s{C+14}, 1, 0x8001")
        a(f"v_lshrrev_b32 v{U}, 4, {ln}")
        a(f"v_lshlrev_b32 v{T0}, 1, v{F0}")
        a(f"v_lshl_add_u32 v{H}, v{H}, 2, v{T0}")
        a(f"v_add_u32 v{T0}, v{H}, v{F1}")
        a(f"v_mul_u32_u24 v{VA}, s{C+6}, v{U}")
        a(f"v_add_lshl_u32 v{VA}, v{VA}, s{C+5}, 6")
        a(f"v_add3_u32 v{VA}, v{VA}, v{T0}, s{C+3}")
        a(f"v_lshl_add_u32 v{VA}, v{VA}, 4, s{S_BASE}")
        a(f"s_lshl_b32 s{C+9}, s{C+9}, 10")
        a(f"v_add_u32 v{VA2}, s{C+9}, v{VA}")
        a(f"s_lshl_b32 s{C+4}, s{C+7}, 8")
        a(f"s_add_u32 s{C+4}, s{C+4}, s{C+8}")
        a(f"s_add_u32 s{C+4}, s{C+4}, s{S_BASE}")
        a(f"v_mul_u32_u24 v{VI}, s{C+11}, v{T0}")
        a(f"v_mad_u32_u24 v{VI}, v{U}, s{C+12}, v{VI}")
        a(f"v_add_u32 v{VI}, s{C+4}, v{VI}")
        if not generic:
            a(f"s_lshr_b32 s{C+4}, s{C+7}, 2")
            a(f"s_lshl_b32 s{C+4}, s{C+4}, 8")
            a(f"s_add_u32 s{C+10}, s{C+10}, s{C+4}")
            a(f"s_add_u32 s{C+10}, s{C+10}, s{C+3}")
            a(f"s_lshl_b32 s{C+4}, s{C+3}, 1")
            a(f"s_add_u32 s{C+4}, s{C+4}, s{C+14}")
            a(f"v_lshl_add_u32 v{T0}, v{U}, 1, v{F1}")
            a(f"v_lshlrev_b32 v{T0}, s{C+13}, v{T0}")
            a(f"v_lshl_add_u32 v{VM0}, v{H}, 7, v{T0}")
            a(f"v_add_u32 v{VM0}, s{C+4}, v{VM0}")
            a(f"v_and_b32 v{T0}, 12, {ln}")
            a(f"v_mad_u32_u24 v{T0}, v{T0}, 3, {ln}")
            a(f"v_lshl_add_u32 v{VLI}, v{T0}, 2, s{C+10}")
            if self.dyn:
                a(f"s_lshl_b32 s{C+4}, s{S_TASK}, 2")
                a(f"s_add_u32 s{C+4}, s{C+4}, s{S_WAVE}")
                a(f"s_lshl_b32 s{C+4}, s{C+4}, 7")
                a(f"s_add_u32 s{C+4}, s{C+4}, {CNT_OFF}")
                a(f"v_writelane_b32 v{VLI}, s{C+4}, 16")
            if self.o["sig"] == 3:
                self.mb_addr(C + 4, C + 5)
                a(f"v_writelane_b32 v{VLI}, s{C+4}, 17")
            a(f"s_mov_b32 s{CNT}, 0")
            a(f"s_mov_b32 s{SEL+9}, 0x05060100")
            a(f"s_mov_b32 s{SEL+10}, 0xffff")
        a(f"v_mov_b32 v{VSEL}, 0x05040100")
        a(f"v_mov_b32 v{T0}, 0x03020706")
        a(f"v_cmp_eq_u32 vcc, 1, v{F1}")
        CJ, EF, EO = 68, 76, 82
        for n in range(8):
            a(f"v_mov_b32 v{CJ+n}, {hex(0x0f0a0500 | 0x01010101 * (((n >> 1) << 4) | ((n & 1) << 7)))}")
        a(f"v_cndmask_b32 v{VSEL}, v{VSEL}, v{T0}, vcc")
        if not generic:
            for r in range(3):
                a(f"v_mov_b64 {vr(EF+2*r,2)}, 0")
            a(f"v_mov_b32 v{EO}, 0")
        for c in range(2):
            for j in range(4):
                a(f"s_mov_b32 s{SEL+4*c+j}, {hex(((5+2*c) << 24) | ((4+2*c) << 16) | ((5+2*c) << 8) | j)}")
        a(f"s_mov_b32 s{SEL+8}, 0x05060102")
        if generic:
            a(f"s_cmp_lg_u32 s{S_MODE}, 0")
        sw = "src0_sel:WORD_1 src1_sel:WORD_1"
        for q in range(4):
            a(f"s_waitcnt vmcnt({12-4*q})")
            if q in (0, 3) and not generic:
                self.stamp(9 + q // 3)
            for c in range(2):
                n = 2 * q + c
                for j in range(4):
                    a(f"v_perm_b32 v{Z+j}, v{W+4*q+j}, v{CJ+n}, s{SEL+4*c+j}")
                a(f"v_max3_f32 v{K}, |v{Z}|, |v{Z+1}|, |v{Z+2}|")
                a(f"v_med3_f32 v{K+1}, |v{Z}|, |v{Z+1}|, |v{Z+2}|")
                a(f"v_min3_f32 v{K+2}, |v{Z}|, |v{Z+1}|, |v{Z+2}|")
                a(f"v_med3_f32 v{K+4}, v{K}, v{K+1}, |v{Z+3}|")
                a(f"v_med3_f32 v{K+5}, v{K+1}, v{K+2}, |v{Z+3}|")
                a(f"v_max_f32 v{K+3}, v{K}, |v{Z+3}|")
                if generic:
                    a(f"v_cmp_eq_u32_sdwa vcc, v{K+5}, v{K+4} {sw}")
                    a(f"s_cbranch_scc0 L_rb{n}{sfx}")
                    a(f"v_min_f32 v{K+2}, v{K+2}, |v{Z+3}|")
                    a(f"v_cndmask_b32 v{K+3}, 0, v{K+5}, vcc")
                    a(f"v_cmp_eq_u32_sdwa vcc, v{K+2}, v{K+4} {sw}")
                    a("s_nop 1")
                    a(f"v_cndmask_b32 v{K+4}, 0, v{K+2}, vcc")
                    a(f"L_rb{n}{sfx}:")
                a(f"v_perm_b32 v{OA+4*c+q}, v{K+3}, v{K+4}, s{SEL+8}")
                nb = NB_ + 2 * c + (q >> 1)
                if q & 1 == 0:
                    a(f"v_bfi_b32 v{nb}, 3, v{K+4}, v{K+3}")
                else:
                    a(f"v_bfi_b32 v{K+3}, 3, v{K+4}, v{K+3}")
                    a(f"v_lshlrev_b32 v{K+3}, 4, v{K+3}")
                    a(f"v_bfi_b32 v{nb}, 15, v{nb}, v{K+3}")
                if not generic:
                    a(f"v_cmpx_eq_u32_sdwa vcc, v{K+5}, v{K+4} {sw}")
                    if n >= 3:
                        a(f"v_or_b32 v{EO}, v{EO}, v{EF+4}")
                    if n >= 2:
                        a(f"v_mov_b64 {vr(EF+4,2)}, {vr(EF+2,2)}")
                    if n >= 1:
                        a(f"v_mov_b64 {vr(EF+2,2)}, {vr(EF,2)}")
                    a(f"v_mov_b32 v{EF}, v{K+5}")
                    a(f"v_min_f32 v{EF+1}, v{K+2}, |v{Z+3}|")
                    a("s_mov_b64 exec, -1")
        x2 = "quad_perm:[2,3,0,1] row_mask:0xf bank_mask:0xf"
        a("s_mov_b32 vcc_lo, 0x33333333")
        a("s_mov_b32 vcc_hi, 0x33333333")
        for d in range(4):
            a(f"v_cndmask_b32_dpp v{Z+d}, v{OA+4+d}, v{OA+d}, vcc {x2}")
        a("s_not_b64 vcc, vcc")
        a(f"buffer_store_dwordx4 {vr(Z,4)}, v{VA}, {sr(S_WS,4)}, 0 offen {ws}")
        for d in range(4):
            a(f"v_cndmask_b32_dpp v{OA+4+d}, v{OA+d}, v{OA+4+d}, vcc {x2}")
        a(f"s_mov_b32 s{C+4}, 0x0c0c0400")
        a(f"s_mov_b32 s{C+5}, 0x04000c0c")
        a(f"buffer_store_dwordx4 {vr(OA+4,4)}, v{VA2}, {sr(S_WS,4)}, 0 offen {ws}")
        a(f"v_perm_b32 v{IX}, v{NB_+1}, v{NB_}, s{C+4}")
        a(f"v_perm_b32 v{IX+1}, v{NB_+3}, v{NB_+2}, s{C+5}")
        a(f"v_or_b32 v{IX}, v{IX}, v{IX+1}")
        a("s_nop 1")
        a(f"v_mov_b32_dpp v{IX+1}, v{IX} quad_perm:[2,3,0,1] row_mask:0xf bank_mask:0xf")
        a(f"v_perm_b32 v{IX}, v{IX+1}, v{IX}, v{VSEL}")
        a(f"buffer_store_dword v{IX}, v{VI}, {sr(S_WS,4)}, 0 offen {ws}")
        if not generic:
            self.stamp(11)
            a(f"v_cmp_lt_u32 {sr(C+2,2)}, s{SEL+10}, v{EO}")
            a(f"L_emit{sfx}:")
            a(f"v_cmp_lt_u32 vcc, s{SEL+10}, v{EF}")
            a(f"v_cmp_eq_u32_sdwa {sr(C,2)}, v{EF+1}, v{EF} {sw}")
            a(f"v_perm_b32 v{T1}, v{EF}, v{VM0}, s{SEL+9}")
            a(f"v_bfe_u32 v{T0}, v{EF}, 2, 4")
            a(f"v_and_b32 v{T2}, 0x80, v{EF}")
            a(f"v_lshl_add_u32 v{T1}, v{T0}, 1, v{T1}")
            a(f"v_mbcnt_lo_u32_b32 v{T0}, vcc_lo, 0")
            a(f"v_mbcnt_hi_u32_b32 v{T0}, vcc_hi, v{T0}")
            a(f"v_add_u32 v{T1}, v{T2}, v{T1}")
            a(f"v_add_u32 v{T0}, s{CNT}, v{T0}")
            a(f"s_bcnt1_i32_b64 s{C+4}, vcc")
            a(f"s_add_u32 s{CNT}, s{CNT}, s{C+4}")
            a(f"v_cmp_gt_u32 {sr(C+4,2)}, 15, v{T0}")
            a(f"v_and_b32 v{T2}, 12, v{T0}")
            a(f"v_mad_u32_u24 v{T0}, v{T2}, 3, v{T0}")
            a(f"v_lshl_add_u32 v{T0}, v{T0}, 2, s{C+10}")
            a(f"s_and_b64 {sr(C,2)}, {sr(C,2)}, vcc")
            a(f"s_and_b64 exec, {sr(C+4,2)}, vcc")
            a(f"s_cbranch_execz L_emit1{sfx}")
            a(f"buffer_store_dword v{T1}, v{T0}, {sr(S_WS,4)}, 0 offen {ws}")
            a(f"L_emit1{sfx}:")
            a(f"s_mov_b64 exec, {sr(C,2)}")
            a(f"v_mov_b32 v{EF}, v{EF+1}")
            a(f"v_mov_b32 v{EF+1}, 0")
            a(f"s_not_b64 exec, exec")
            a(f"v_mov_b64 {vr(EF,2)}, {vr(EF+2,2)}")
            a(f"v_mov_b64 {vr(EF+2,2)}, {vr(EF+4,2)}")
            a(f"v_mov_b64 {vr(EF+4,2)}, 0")
            a("s_mov_b64 exec, -1")
            a(f"v_or3_b32 v{T0}, v{EF}, v{EF+2}, v{EF+4}")
            a(f"v_cmp_lt_u32 vcc, s{SEL+10}, v{T0}")
            a(f"s_cmp_lg_u64 {sr(C+2,2)}, 0")
            a(f"s_cselect_b32 s{C+4}, 99, s{CNT}")
            a(f"s_cmp_gt_u32 s{C+4}, 15")
            a(f"s_cselect_b32 s{C+4}, -1, 0")
            a(f"s_min_u32 s{C+5}, s{CNT}, 15")
            a(f"s_cbranch_vccnz L_emit{sfx}")
            a(f"s_lshl_b32 s{C+5}, -1, s{C+5}")
            a(f"v_mov_b32 v{T0}, s{C+4}")
            a(f"s_and_b32 exec_lo, s{C+5}, {0xffff | (0x10000 if self.dyn else 0) | (0x20000 if self.o['sig'] == 3 else 0)}")
            a("s_mov_b32 exec_hi, 0")
            a(f"buffer_store_dword v{T0}, v{VLI}, {sr(S_WS,4)}, 0 offen {ws}")
            a("s_mov_b64 exec, -1")
            self.stamp(12)
        a("s_waitcnt vmcnt(0)")
        if not generic:
            self.stamp(13)

    def lane_setup(self):
        a = self.a
        ln = f"v{V_LANE}"
        T0, T1, T2 = 72, 73, 74
        a(f"v_lshrrev_b32 v{T0}, 3, {ln}")
        a(f"v_and_b32 v{T1}, 7, {ln}")
        a(f"v_xor_b32 v{T1}, v{T1}, v{T0}")
        a(f"v_mul_u32_u24 v{T0}, 1152, v{T0}")
        a(f"s_and_b32 s{S_T0}, s{S_WAVE}, 1")
        a(f"s_mul_i32 s{S_T0}, s{S_T0}, 9216")
        a(f"s_lshr_b32 s{S_T1}, s{S_WAVE}, 1")
        a(f"s_lshl_b32 s{S_T1}, s{S_T1}, 7")
        a(f"s_add_u32 s{S_T0}, s{S_T0}, s{S_T1}")
        a(f"v_lshl_add_u32 v{T0}, v{T1}, 4, v{T0}")
        a(f"v_add_u32 v{V_DMA}, s{S_T0}, v{T0}")
        a(f"s_lshl_b32 s{S_M0B}, s{S_WAVE}, 10")
        if self.o["split"]:
            a(f"s_bitcmp1_b32 s2, 0")
            a(f"s_cselect_b32 s{S_XOFF}, 256, 1")
            a(f"s_add_u32 s{S_XOFF}, s{S_XOFF}, s2")
            a(f"s_mul_i32 s{S_XOFF}, s{S_XOFF}, {TB}")
        else:
            a(f"s_mul_i32 s{S_XOFF}, s2, {TB}")
        a(f"s_mov_b32 s{S_OOFF}, s{S_XOFF}")

    def lane_setup2(self):
        a = self.a
        ln = f"v{V_LANE}"
        T0, T1, T2 = 72, 73, 74
        a(f"v_and_b32 v{T0}, 15, {ln}")
        a(f"v_lshrrev_b32 v{T1}, 4, {ln}")
        a(f"v_and_b32 v{T2}, 7, {ln}")
        a(f"v_xor_b32 v{T2}, v{T2}, v{T1}")
        a(f"v_lshlrev_b32 v{T2}, 4, v{T2}")
        a(f"v_lshl_add_u32 v{V_RD0}, v{T0}, 7, v{T2}")
        a(f"v_xor_b32 v{V_RD1}, 64, v{V_RD0}")
        a(f"s_mul_i32 s{S_C0}, s{S_WAVE}, {WV_SZ}")
        a(f"s_add_u32 s{S_C0}, s{S_C0}, {L_WV}")
        a(f"v_lshl_add_u32 v{V_TAB}, v{T1}, 4, s{S_C0}")
        a(f"v_and_b32 v{T2}, 14, {ln}")
        a(f"v_mul_u32_u24 v{V_ST}, 1152, v{T2}")
        a(f"v_and_b32 v{T2}, 1, {ln}")
        a(f"v_lshl_add_u32 v{V_ST}, v{T2}, 4, v{V_ST}")
        a(f"v_lshl_add_u32 v{V_ST}, v{T1}, 5, v{V_ST}")
        a(f"s_lshl_b32 s{S_T0}, s{S_WAVE}, 8")
        a(f"v_add_u32 v{V_ST}, s{S_T0}, v{V_ST}")
        if self.o["hack"] == "q4":
            a(f"v_lshrrev_b32 v{T2}, 3, {ln}")
            a(f"v_mul_u32_u24 v{V_ST}, 2304, v{T2}")
            a(f"v_and_b32 v{T2}, 7, {ln}")
            a(f"v_lshl_add_u32 v{V_ST}, v{T2}, 4, v{V_ST}")
            a(f"v_add_u32 v{V_ST}, s{S_T0}, v{V_ST}")
        a(f"s_lshl_b32 s{S_T0}, s{S_WAVE}, 5")
        a(f"s_add_u32 s{S_T0}, s{S_T0}, 1024")
        if self.o["bperm"]:
            a(f"v_lshrrev_b32 v{T0}, 2, {ln}")
            a(f"v_and_b32 v{T1}, 3, {ln}")
            a(f"v_lshl_add_u32 v{V_BP}, v{T1}, 4, v{T0}")
            a(f"v_lshlrev_b32 v{V_BP}, 2, v{V_BP}")
        else:
            a(f"v_lshlrev_b32 v{V_BP}, 2, {ln}")
        a(f"v_mul_u32_u24 v{V_ST8}, 1152, v{T0}")
        a(f"v_lshl_add_u32 v{V_ST8}, v{T1}, 3, v{V_ST8}")
        a(f"v_add_u32 v{V_ST8}, s{S_T0}, v{V_ST8}")
        a(f"s_mov_b32 s{S_EVEN}, 0x55555555")
        a(f"s_mov_b32 s{S_EVEN+1}, 0x55555555")
        a(f"s_mov_b32 s{S_ODD}, 0xaaaaaaaa")
        a(f"s_mov_b32 s{S_ODD+1}, 0xaaaaaaaa")

    def dma_setup(self):
        a = self.a
        a(f"s_lshr_b32 s{S_T0}, s{S_WAVE}, 1")
        a(f"s_lshl_b32 s{S_T1}, s{S_T0}, 11")
        a(f"s_sub_u32 s{S_M05}, {16384-896}, s{S_T1}")
        a(f"s_lshl_b32 s{S_T1}, s{S_T0}, 7")
        a(f"s_add_u32 s{S_XOFF5}, s{S_XOFF}, 128")
        a(f"s_sub_u32 s{S_XOFF5}, s{S_XOFF5}, s{S_T1}")
        a(f"s_sub_u32 s{S_HALF}, s{S_T0}, 1")
        a(f"s_sub_u32 s{S_HALF+1}, 0, s{S_T0}")
        a(f"s_mov_b32 s{S_M0W}, s{S_M0B}")
        a(f"s_mov_b32 s{S_XINC}, {256*TB}")
        if self.o["split"]:
            a(f"s_bitcmp1_b32 s2, 0")
            a(f"s_cselect_b32 s{S_XINC}, s{S_XINC}, {-TB}")
            a(f"s_cselect_b32 s{S_NT}, 15, 17")
        else:
            a(f"s_mov_b32 s{S_NT}, 16")
        a(f"s_mov_b32 s{S_OINC2}, s{S_XINC}")

    def dma_advance(self, first=False):
        x = [] if first else [f"s_add_u32 s{S_XOFF}, s{S_XOFF}, {256*TB}", f"s_add_u32 s{S_XOFF5}, s{S_XOFF5}, {256*TB}",
                              f"s_add_u32 s{S_M0B}, s{S_M0B}, s{S_CTB}"]
        return x + [f"s_cmp_ge_u32 s{S_M0B}, {NB*TBL}", f"s_cselect_b32 s{S_M0B}, s{S_M0W}, s{S_M0B}"]

    def dma_tile(self):
        a = self.a
        for j in range(5):
            a(f"s_add_u32 m0, s{S_M0B}, {3840*j if j < 4 else 's%d' % S_M05}")
            a("s_nop 0" if j < 4 else f"s_mov_b64 exec, {sr(S_HALF,2)}")
            a(f"buffer_load_dwordx4 v{V_DMA}, {sr(S_X,4)}, s{S_XOFF if j < 4 else S_XOFF5} offen offset:{256*j if j < 4 else 896} {self.o['ld']} lds")
        a("s_mov_b64 exec, -1")

    def prefetch(self, sh, lab="L_pf"):
        a = self.a
        a(f"s_bfe_u32 s{S_NB0}, s{S_DMASK}, {hex(4 << 16 | sh)}")
        if sh == 20 and self.o["pfw"]:
            a(f"s_cmp_ge_u32 s{S_NB0}, 6")
            a(f"s_cselect_b32 s{S_T1}, {self.o['pfw'][0]*TBL}, 0")
        if sh != 20 and self.n2min == 0:
            a(f"s_cbranch_scc0 {lab}_e")
        a(f"{lab}:")
        self.dma_tile()
        if sh == 20 and self.o["pfw"]:
            k, n = self.o["pfw"]
            a(f"s_cmp_ge_u32 s{S_M0B}, s{S_T1}")
            a(f"s_cbranch_scc1 {lab}_n")
            a(f"s_waitcnt vmcnt({n})")
            a(f"{lab}_n:")
        a(f"s_add_u32 s{S_XOFF5}, s{S_XOFF5}, s{S_XINC}")
        a(f"s_add_u32 s{S_M0B}, s{S_M0B}, {TBL}")
        a(f"s_add_u32 s{S_XOFF}, s{S_XOFF}, s{S_XINC}")
        a(f"s_mov_b32 s{S_XINC}, {256*TB}")
        a(f"s_sub_u32 s{S_NB0}, s{S_NB0}, 1")
        a(f"s_cmp_lg_u32 s{S_NB0}, 0")
        a(f"s_cbranch_scc1 {lab}")
        a(f"{lab}_e:")

    def bias_load(self):
        a = self.a
        ln = f"v{V_LANE}"
        a(f"v_and_b32 v80, 3, {ln}")
        a(f"v_bfe_u32 v81, {ln}, 2, 2")
        a(f"v_bfe_u32 v82, {ln}, 4, 1")
        a("v_lshlrev_b32 v81, 3, v81")
        a("v_lshl_add_u32 v81, v80, 5, v81")
        a("v_lshl_add_u32 v81, v82, 7, v81")
        a(f"s_lshl_b32 s{S_T0}, s{S_WAVE}, 8")
        a(f"v_add_u32 v81, s{S_T0}, v81")
        a(f"s_lshl_b32 s{S_T0}, s{S_WAVE}, 5")
        a(f"s_add_u32 s{S_T0}, s{S_T0}, 1024")
        a(f"v_lshl_add_u32 v80, v80, 3, s{S_T0}")
        a(f"v_cmp_gt_u32 vcc, 32, {ln}")
        a("s_nop 1")
        a("v_cndmask_b32 v80, v80, v81, vcc")
        a(f"buffer_load_dwordx2 v[110:111], v80, {sr(S_B,4)}, 0 offen")

    def tables_init(self):
        a = self.a
        ln = f"v{V_LANE}"
        a(f"v_lshl_add_u32 v109, {ln}, 4, s{S_C0}")
        a(f"v_lshl_add_u32 v89, {ln}, 2, s{S_C0}")
        for r in range(4):
            a(f"v_mov_b32 v{76+r}, 0")
        a("v_mov_b32 v90, 0xdddddddd")
        a("ds_write_b128 v109, v[76:79]")
        for r in range(7):
            a(f"ds_write_b32 v89, v90 offset:{O_IDX+256*r}")
        a(f"s_lshl_b32 s{S_T0}, s{S_WAVE}, 2")
        a(f"s_add_u32 s{S_T0}, s{S_T0}, {L_PL + 256}")
        a(f"v_mov_b32 v88, s{S_T0}")
        a("ds_write_b32 v88, v76")

    def bias_store(self):
        return ["v_lshlrev_b32 v114, 16, v110", "v_and_b32 v115, 0xffff0000, v110", "v_lshlrev_b32 v116, 16, v111",
                "v_and_b32 v117, 0xffff0000, v111", "s_mov_b32 exec_hi, 15", f"ds_write_b128 v109, v[114:117] offset:{O_BIAS}",
                "s_mov_b64 exec, -1"]

    def wload_list(self, VA, VI8, pairs=False):
        wl = self.o["wl"]
        G = []
        so = S_C0 + 6
        cur = None
        for sp in range(5):
            g = []
            if sp == 4:
                g.append(f"s_mov_b32 s{so}, 4096")
            g.append(f"buffer_load_dword v{V_I8+sp}, v{VI8}, {sr(S_WS,4)}, {'s%d' % so if sp == 4 else '0'} offen offset:{1024*(sp%4)} {wl}")
            G.append(g)
        order = [(s, t) for s in range(9) for t in [None] + list(range(9))]
        if pairs:
            order = order[:70] + [(7, None), (8, None)] + [(s, t) for t in PEEL_T for s in (7, 8)]
        for s, t in order:
            if t is None:
                G.append([f"s_mov_b32 s{so-1}, {1024*s}",
                          f"buffer_load_dwordx4 {vr(V_I+4*s,4)}, v{VA+1}, {sr(S_WS,4)}, s{so-1} offen {wl}"])
            else:
                f = 9 * s + t
                g = []
                if cur != f >> 2:
                    cur = f >> 2
                    g.append(f"s_mov_b32 s{so}, {4096*cur}")
                g.append(f"buffer_load_dwordx4 {afrag(s,t)}, v{VA}, {sr(S_WS,4)}, s{so} offen offset:{1024*(f&3)} {wl}")
                G.append(g)
        return G

    def waddr(self, VA, VI8):
        a = self.a
        ln = f"v{V_LANE}"
        a(f"s_mul_i32 s{S_T0}, s{S_WAVE}, 82944")
        a(f"s_add_u32 s{S_T0}, s{S_T0}, s{S_BASE}")
        a(f"v_lshl_add_u32 v{VA}, {ln}, 4, s{S_T0}")
        a(f"s_mul_i32 s{S_T0}, s{S_WAVE}, 9216")
        a(f"s_add_u32 s{S_T0}, s{S_T0}, s{S_BASE}")
        a(f"s_add_u32 s{S_T0}, s{S_T0}, {I_OFF}")
        a(f"v_lshl_add_u32 v{VA+1}, {ln}, 4, s{S_T0}")
        a(f"s_lshl_b32 s{S_T0}, s{S_WAVE}, 6")
        a(f"s_add_u32 s{S_T0}, s{S_T0}, s{S_BASE}")
        a(f"s_add_u32 s{S_T0}, s{S_T0}, {I8_OFF}")
        a(f"v_and_b32 v{VI8}, 15, {ln}")
        a(f"v_lshl_add_u32 v{VI8}, v{VI8}, 2, s{S_T0}")
        a(f"v_lshrrev_b32 v{VI8+1}, 4, {ln}")
        a(f"v_lshl_add_u32 v{VI8}, v{VI8+1}, 8, v{VI8}")

    def build(self):
        a = self.a
        o = self.o
        ln = f"v{V_LANE}"
        wl = o["wl"]
        VA, VI8 = (112 if o["peel"] else 104), 106
        E, TT, RK, ST = 8, 24, 40, 56
        T0, T1, T2, T3 = 72, 73, 74, 75
        WARM = 76
        ONE, VW, KB, VST, RX, VWARM, CM, CV, TM, TBS, HI, AB, BM, VH, VK, LO = range(88, 104)
        SW = S_C0
        a(f"s_mul_i32 s{S_T0}, s{S_WAVE}, 2304")
        a(f"s_add_u32 s{S_T0}, s{S_T0}, {R1_OFF}")
        a(f"v_and_b32 v{T1}, 60, {ln}")
        a(f"v_mad_u32_u24 v{T1}, v{T1}, 3, {ln}")
        a(f"v_lshl_add_u32 v{T0}, v{T1}, 4, s{S_T0}")
        a(f"s_mov_b32 s{S_T0}, {R8_OFF - 36*64}")
        a(f"v_lshl_add_u32 v{T1}, v{T1}, 4, s{S_T0}")
        a(f"v_lshrrev_b32 v{T2}, 2, {ln}")
        a(f"v_cmp_gt_u32 vcc, 36, {ln}")
        a(f"v_lshlrev_b32 v{KB}, 11, v{T2}")
        a(f"v_subrev_u32 v{T2}, 9, v{T2}")
        a(f"v_lshlrev_b32 v{T2}, 12, v{T2}")
        a(f"v_cndmask_b32 v{T0}, v{T1}, v{T0}, vcc")
        a(f"v_cndmask_b32 v{KB}, v{T2}, v{KB}, vcc")
        a(f"s_lshl_b32 s{S_T0}, s{S_WAVE}, 12")
        a(f"s_add_u32 s{S_T0}, s{S_T0}, 0x8001")
        a(f"v_mov_b32 v{ONE}, 1")
        a(f"v_mov_b32 v{CM}, 0xf001")
        a(f"v_mov_b32 v{CV}, s{S_T0}")
        a(f"v_cndmask_b32 v{CM}, v{CM}, v{ONE}, vcc")
        a(f"v_cndmask_b32 v{CV}, v{CV}, v{ONE}, vcc")
        a(f"v_cndmask_b32 v{TM}, 0, 28, vcc")
        a(f"v_cndmask_b32 v{TBS}, 32, 0, vcc")
        a(f"v_add_u32 v{TBS}, s{SW}, v{TBS}")
        a(f"v_cmp_gt_u32 vcc, 56, {ln}")
        a(f"v_mov_b32 v{T1}, 0x40000000")
        tw = o["warm"] == 2
        a(f"s_lshr_b32 s{S_T0}, s2, {4 if tw else 3}")
        a(f"s_lshl_b32 s{S_T0}, s{S_T0}, 2")
        a(f"s_add_u32 s{S_T0}, s{S_T0}, s{S_WAVE}")
        a(f"s_mul_i32 s{S_T0}, s{S_T0}, {6144 if tw else 3072}")
        a(f"v_cndmask_b32 v{T0}, v{T1}, v{T0}, vcc")
        if tw:
            a(f"v_min_u32 v{VWARM}, 47, {ln}")
            a(f"v_lshl_add_u32 v{VWARM}, v{VWARM}, 7, s{S_T0}")
        else:
            a(f"v_lshl_add_u32 v{VWARM}, {ln}, 4, s{S_T0}")
        self.waddr(VA, VI8)
        a(f"v_and_b32 v{T2}, 15, {ln}")
        a(f"v_and_b32 v{T1}, 7, {ln}")
        a(f"v_lshlrev_b32 v{BM}, 1, v{T1}")
        a(f"v_lshlrev_b32 v{BM}, v{BM}, v{ONE}")
        a(f"v_lshlrev_b32 v{T1}, 4, v{T1}")
        a(f"v_lshl_add_u32 v{RX}, v{T2}, 7, v{T1}")
        a(f"v_lshl_or_b32 v{RX}, v{RX}, 16, v{RX}")
        a(f"v_lshrrev_b32 v{HI}, 5, {ln}")
        a(f"v_bfe_u32 v{AB}, {ln}, 3, 2")
        a(f"v_lshl_add_u32 v{AB}, v{AB}, 6, s{SW}")
        a(f"v_lshl_add_u32 v{VH}, {ln}, 1, s{SW}")
        a(f"v_lshrrev_b32 v{VK}, 4, {ln}")
        a(f"v_lshl_add_u32 v{VK}, v{VK}, 3, s{SW}")
        a(f"v_lshrrev_b32 v{LO}, 1, {ln}")
        a(f"v_lshlrev_b32 v{LO}, 5, v{LO}")
        a(f"s_mov_b32 s{S_LINK}, 0")
        pre = [f"buffer_load_dwordx4 {vr(E+4*r,4)}, v{T0}, {sr(S_WS,4)}, 0 offen offset:{64*r} {wl}" for r in range(4)]
        warm = [[f"buffer_load_dwordx4 {vr(WARM+4*r,4)}, v{VWARM}, {sr(S_WS,4)}, 0 offen offset:{1024*r} {wl}"] for r in range(3)] if o["warm"] else []
        if tw:
            warm = [[f"buffer_load_dword v{WARM}, v{VWARM}, {sr(S_WS,4)}, 0 offen {wl}"]]
        C = []
        g = lambda *x: C.append(list(x))

        def rank(r):
            m = S_MASK + 2 * r
            return [f"v_and_b32 v{T1}, v{CM}, v{E+r}", f"v_lshrrev_b32 v{T0}, 10, v{E+r}", f"v_cmp_eq_u32 {sr(m,2)}, v{T1}, v{CV}",
                    f"v_and_or_b32 v{TT+r}, v{T0}, v{TM}, v{TBS}",
                    f"s_mov_b64 exec, {sr(m,2)}", f"ds_add_rtn_u32 v{RK+r}, v{TT+r}, v{ONE}", "s_mov_b64 exec, -1"]

        def place(r):
            m = S_MASK + 2 * r
            return [f"v_add_u32 v{T1}, v{RK+r}, v{ST+r}", f"v_and_b32 v{T0}, 0x87e, v{E+r}", f"v_lshl_add_u32 v{T1}, v{T1}, 1, s{SW}",
                    f"v_add_u32 v{T0}, v{KB}, v{T0}", f"s_andn2_b64 exec, {sr(m,2)}, {sr(S_BAD,2)}",
                    f"ds_write_b16_d16_hi v{T1}, v{E+r} offset:{O_X}", f"ds_write_b16 v{T1}, v{T0} offset:{O_K}",
                    f"ds_write_b16 v{T1}, v{E+r} offset:{O_M}", "s_mov_b64 exec, -1"]
        g("@WAIT_E")
        g(f"v_cmp_ne_u32 {sr(S_BAD,2)}, 0, v{E+15}", f"v_cmp_ne_u32 {sr(S_MORE,2)}, 0, v{E+8}")
        for r in range(8):
            g(*rank(r))
        g(f"s_cmp_lg_u64 {sr(S_MORE,2)}, 0", "s_cbranch_scc1 L_more1", "L_more1b:", f"ds_read_b32 v{T0}, v{VW}", f"v_mov_b32 v{T1}, 0")
        self.tailblocks.append("\n".join(["L_more1:"] + [x for r in range(8, 15) for x in rank(r)] + ["s_branch L_more1b"]))
        g("s_waitcnt lgkmcnt(0)", f"s_mov_b64 vcc, {sr(S_EVEN,2)}",
          f"v_cndmask_b32_dpp v{T1}, v{T0}, v{T1}, vcc quad_perm:[0,0,2,2] row_mask:0xf bank_mask:0xf",
          f"v_add_u32 v{VST}, v{LO}, v{T1}", f"v_add_u32 v{T1}, v{T0}, v{T1}", f"v_cmp_lt_u32 vcc, 32, v{T1}",
          f"s_or_b32 s{S_BAD}, s{S_BAD}, s{S_BAD+1}", f"s_and_b32 s{S_T0}, vcc_lo, 0x1ff", f"s_or_b32 s{S_T0}, s{S_T0}, s{S_BAD}",
          "s_cbranch_scc1 L_greedy", "L_greedyb:")
        x = ["L_greedy:", f"s_mov_b32 s{S_T0}, 0", f"s_mov_b32 s{S_LINK}, 1"]
        for t in range(9):
            lo = 32 * (t >> 1)
            x += [f"v_readlane_b32 s{S_T1}, v{T0}, {t}", f"s_max_u32 s{S_T0}, s{S_T0}, {lo}",
                  f"v_writelane_b32 v{VST}, s{S_T0}, {t}", "s_nop 1", f"s_add_u32 s{S_T0}, s{S_T0}, s{S_T1}",
                  f"s_cmp_gt_u32 s{S_T0}, {lo + (64 if t & 1 else 32)}", f"s_cselect_b32 s{S_BAD}, 1, s{S_BAD}"]
        x += [f"s_cmp_lg_u32 s{S_BAD}, 0", f"s_cselect_b64 {sr(S_BAD,2)}, -1, 0",
              f"v_mov_b32 v{T1}, {L_PL + 256}", f"s_mov_b64 exec, {sr(S_BAD,2)}", f"ds_write_b32 v{T1}, v{ONE}", "s_mov_b64 exec, -1",
              "s_branch L_greedyb"]
        self.tailblocks.append("\n".join(x))
        g(*[f"ds_bpermute_b32 v{ST+r}, v{TT+r}, v{VST}" for r in range(8)])
        for r in range(8):
            g(*([f"s_waitcnt lgkmcnt({(7, 9, 11, 13, 15, 15, 15, 15)[r] if r else 7})"] if r < 8 else []), *place(r))
        g(f"s_cmp_lg_u64 {sr(S_MORE,2)}, 0", "s_cbranch_scc1 L_more2", "L_more2b:",
          *[f"ds_read_u16 v{E+r}, v{VH} offset:{O_M+128*r}" for r in range(3)],
          *[f"ds_read2_b64 {vr(V_AD+4*j,4)}, v{VK} offset0:{(O_K+64*j)//8} offset1:{(O_K+64*j+32)//8}" for j in range(5)])
        self.tailblocks.append("\n".join(["L_more2:"] + [f"ds_bpermute_b32 v{ST+r}, v{TT+r}, v{VST}" for r in range(8, 15)] + ["s_waitcnt lgkmcnt(0)"]
                                         + [x for r in range(8, 15) for x in place(r)] + ["s_branch L_more2b"]))
        for r in range(3):
            g(*(["s_waitcnt lgkmcnt(5)"] if r == 0 else []),
              f"v_lshrrev_b32 v{T0}, 12, v{E+r}", f"v_cmp_ne_u32 vcc, 0, v{E+r}", f"v_min_u32 v{T0}, 8, v{T0}", f"v_add3_u32 v{T0}, v{T0}, v{HI}, {2*r}",
              f"v_lshlrev_b32 v{T1}, 4, v{T0}", f"v_lshrrev_b32 v{T0}, 1, v{T0}")
            g(f"v_lshlrev_b32 v{T1}, v{T1}, v{BM}", f"v_lshl_add_u32 v{T0}, v{T0}, 8, v{AB}", f"v_bfe_u32 v{T2}, v{E+r}, 7, 4",
              f"v_lshl_add_u32 v{T0}, v{T2}, 2, v{T0}", "s_mov_b64 exec, vcc", *(["s_mov_b32 exec_hi, 0"] if r == 2 else []),
              f"ds_xor_b32 v{T0}, v{T1} offset:{O_IDX}", "s_mov_b64 exec, -1")
        g(*[f"ds_read_b32 v{V_IR+r}, v{VW} offset:{O_IDX+256*r}" for r in range(7)])
        for j in range(5):
            g(*(["s_waitcnt lgkmcnt(10)"] if j == 0 else []), *[f"v_xor_b32 v{V_AD+4*j+q}, v{RX}, v{V_AD+4*j+q}" for q in range(4)])
        g(*self.bias_store())
        return pre, C, warm + self.wload_list(VA, VI8, o['peel'])

    def emit_build(self, pre, C, G):
        a = self.a
        for x in pre:
            a(x)
        nl = 0
        G = list(G)
        G0 = list(G)

        def load(n=1):
            nonlocal nl
            for _ in range(n):
                if G:
                    for x in G.pop(0):
                        a(x)
                    nl += 1
        acc = 0
        for grp in C:
            if grp[0] == "@WAIT_E":
                load(self.o["l0"])
                a(f"s_waitcnt vmcnt({nl})")
                continue
            if grp[0] in ("s_waitcnt lgkmcnt(0)", "s_waitcnt lgkmcnt(7)", "s_waitcnt lgkmcnt(5)"):
                load(self.o["lw"])
            for x in grp:
                a(x)
            acc += len(grp)
            while acc >= self.o["lper"]:
                acc -= self.o["lper"]
                load()
        if self.o["peel"]:
            self.issued, self.pending = G0[:len(G0) - len(G)], G
            return
        load(len(G) - self.o["ltail"])
        assert len(G) == self.o["ltail"]
        self.late_loads = [x for grp in G for x in grp]

    @staticmethod
    def regs(txt):
        k, body = txt[0], txt[1:].strip("[]")
        lo, hi = (body.split(":") + [body])[:2]
        return [(256 if k == "a" else 0) + r for r in range(int(lo), int(hi) + 1)]

    def emit_line(self, ops, vm, hist=()):
        a = self.a
        lds, hist = [], list(hist)

        def put(op):
            a(op.text)
            hist.append(op)
        for op in ops:
            touched = op.rd | op.wr
            for q, name, cap in ((lds, "lgkmcnt", 15), (vm, "vmcnt", self.o["vcap"])):
                hit = [i for i, w in enumerate(q) if w & touched]
                if hit:
                    n = min(len(q) - 1 - hit[-1], cap)
                    put(Op(f"s_waitcnt {name}({n})", "salu"))
                    del q[:len(q) - n]
            need = 0
            for d, p in enumerate(reversed(hist[-9:])):
                ws = sum(int(x.text[6:]) + 1 if x.text.startswith("s_nop") else 1 for x in hist[len(hist) - d:])
                r = 0
                if p.kind == "mx" and op.kind != "mx" and (p.wr & touched):
                    r = 8
                if p.kind in ("valu", "dpp") and op.kind in ("mx", "dpp") and (p.wr & op.rd):
                    r = 2
                if p.kind == "st" and (p.rd & op.wr):
                    r = 2
                need = max(need, r - ws)
            if need > 0:
                put(Op(f"s_nop {need-1}", "salu"))
            put(op)
            if op.kind == "lds":
                lds.append(op.wr)
            if op.kind in ("ld", "st"):
                vm.append(op.wr)

    def peel(self):
        o = self.o
        AX = V_BR
        acc = lambda m, t: (AX if m == 0 else V_ACC) + 4 * t
        Ba, Bb, Bc, Bd = (V_B + 8 * k for k in range(4))
        dst = lambda g: set(self.regs(g[-1].split()[1].rstrip(",")))
        vm = [dst(g) for g in self.issued]
        loads = [[Op(x, "salu") for x in g[:-1]] + [Op(g[-1], "ld", wr=dst(g))] for g in self.pending]

        def M(m, s, t, b):
            ir, h = aidx(s, t)
            return Op(f"v_smfmac_f32_16x16x64_bf16 {vr(acc(m,t),4)}, {afrag(s,t)}, {vr(b,8)}, v{ir}" + (" abid:1" if h else ""), "mx",
                      rd=list(rng(acc(m, t), 4)) + list(rng(b, 8)) + self.regs(afrag(s, t)) + [ir], wr=rng(acc(m, t), 4))

        def R(m, j, t):
            c, b = j + t, (Bc, Bd)[m]
            return Op(f"v_smfmac_f32_16x16x64_bf16 {vr(acc(m,t),4)}, {vr(V_X,4)}, {vr(b,8)}, v{V_IR+(c>>1)}" + (" abid:1" if c & 1 else ""), "mx",
                      rd=list(rng(acc(m, t), 4)) + list(rng(b, 8)) + list(rng(V_X, 4)), wr=rng(acc(m, t), 4))

        def B(m, s, b):
            return [Op(f"ds_read_b128 {vr(b+4*h,4)}, v{V_RD0+h} offset:{2048*s+TBL*m}", "lds", rd=[V_RD0 + h], wr=rng(b + 4 * h, 4)) for h in range(2)]

        def addr(j, b, r, base):
            ad = V_AD + 4 * j + (b >> 1)
            return Op(f"v_add_u32_sdwa v{r}, s{base}, v{ad} dst_sel:DWORD dst_unused:UNUSED_PAD src0_sel:DWORD src1_sel:WORD_{b&1}", "valu", rd=[ad], wr=[r])
        ops = [Op(f"ds_read_b32 v{V_X}, v{V_X}", "lds", rd=[V_X], wr=[V_X])] + B(0, 0, Ba)
        for m in range(2):
            ops += [Op(f"ds_read_b128 {vr(acc(m,t),4)}, v{V_TAB} offset:{O_BIAS+64*t}", "lds", rd=[V_TAB], wr=rng(acc(m, t), 4)) for t in range(9)]
            ops += loads.pop(0)
        ops += [Op(f"v_readfirstlane_b32 s{S_T0}, v{V_X}", "valu", rd=[V_X]), addr(0, 0, Bc, S_BUF), Op("s_nop 2", "salu"),
                Op(f"s_cmp_lg_u32 s{S_T0}, 0", "salu"), Op("s_cbranch_scc1 L_slow", "salu")]
        ngap = 126 + 26
        rho, credit = len(loads) / (ngap - o["ptail"]), 0.0

        def gap(mx, D=(), V=()):
            nonlocal credit
            ops.append(mx)
            credit += rho
            while credit >= 1 and loads:
                credit -= 1
                ops.extend(loads.pop(0))
            ops.extend(D)
            ops.extend(V)
        for s in range(7):
            for t in range(9):
                D, V = [], []
                if t == 0:
                    D += B(1, s, Bb)
                if s < 5:
                    if t == 8:
                        D.append(Op(f"ds_read_b128 {vr(V_X,4)}, v{V_TAB} offset:{O_X+64*s}", "lds", rd=[V_TAB], wr=rng(V_X, 4)))
                    else:
                        D += [Op(f"ds_read_u16 v{Bd+t}, v{Bc+t} offset:{TBL}", "lds", rd=[Bc + t], wr=[Bd + t]),
                              Op(f"ds_read_u16 v{Bc+t}, v{Bc+t}", "lds", rd=[Bc + t], wr=[Bc + t])]
                        if t < 7:
                            V.append(addr(s, t + 1, Bc + t + 1, S_BUF))
                elif t in (2, 3):
                    D.append(B(1, s + 2, Bc if s == 5 else Bd)[t - 2])
                gap(M(0, s, t, Ba), D, V)
            for t in range(9):
                gap(M(1, s, t, Bb), B(0, s + 1, Ba)[t:t + 1] if t < 2 else [])
            if s < 5:
                rs = [R(m, s, t) for m in (1, 0) for t in RT[s]]
                for n, x in enumerate(rs):
                    gap(x, [], [addr(s + 1, 0, Bc, S_BUF)] if n == len(rs) - 1 and s < 4 else [])
        assert not loads
        ops += B(0, 8, Bb)
        pk = lambda t, h: (AX + 32 + h) if t == 8 else AX + 2 * t + h
        cvt = lambda t: [Op(f"v_cvt_pk_bf16_f32 v{pk(t,h)}, v{acc(0,t)+2*h}, v{acc(0,t)+2*h+1}", "valu",
                            rd=[acc(0, t) + 2 * h, acc(0, t) + 2 * h + 1], wr=[pk(t, h)]) for h in range(2)]
        dpp = "quad_perm:[1,0,3,2] row_mask:0xf bank_mask:0xf"
        stp = o["st"] if o["stp"] is None else o["stp"]

        def exch(v):
            p0, p1, d0 = AX + 8 * v, AX + 8 * v + 4, (V_X, AX + 16)[v]
            x = []
            for half in range(2):
                for d in range(4):
                    if half == 0:
                        x.append(Op(f"v_cndmask_b32_dpp v{d0+d}, v{p1+d}, v{p0+d}, vcc {dpp}", "dpp", rd=[p0 + d, p1 + d], wr=[d0 + d]))
                    else:
                        x.append(Op(f"v_cndmask_b32_dpp v{p1+d}, v{p0+d}, v{p1+d}, vcc {dpp}", "dpp", rd=[p0 + d, p1 + d], wr=[p1 + d]))
                src = d0 if half == 0 else p1
                fl = stp[2 * v + half] if isinstance(stp, (tuple, list)) else stp
                x += [Op(f"buffer_store_dwordx4 {vr(src,4)}, v{V_ST}, {sr(S_OUT,4)}, s{S_OOFF} offen offset:{1152*half+128*v} {fl}", "st",
                         rd=list(rng(src, 4)) + [V_ST]), Op(f"s_mov_b64 vcc, {sr((S_ODD, S_EVEN)[half],2)}", "salu")]
            return x
        p8 = pk(8, 0)
        rdadv = [Op(f"v_add_u32 v{V_RD0+h}, {2*TBL}, v{V_RD0+h}", "valu", rd=[V_RD0 + h], wr=[V_RD0 + h]) for h in range(2)]
        after = {0: rdadv,
                 1: [Op(f"ds_bpermute_b32 v{p8+h}, v{V_BP}, v{p8+h}", "lds", rd=[V_BP, p8 + h], wr=[p8 + h]) for h in range(2)] if o["bperm"] else [],
                 3: [Op(f"buffer_store_dwordx2 {vr(p8,2)}, v{V_ST8}, {sr(S_OUT,4)}, s{S_OOFF} offen {o['st8']}", "st", rd=[p8, p8 + 1, V_ST8])],
                 5: exch(0)[:6], 6: exch(0)[6:], 7: [addr(0, b, V_BR + b, S_BUFN) for b in range(4)],
                 8: [addr(0, b, V_BR + b, S_BUFN) for b in range(4, 8)]}
        for n, t in enumerate(PEEL_T):
            ops += [M(0, 7, t, Ba), M(0, 8, t, Bb)]
            if n:
                ops += cvt(PEEL_T[n - 1])
            ops += after.get(n, [])
        ops += cvt(PEEL_T[-1]) + exch(1)
        self.emit_line(ops, vm)

    def slow_path(self, K):
        a = self.a
        o = self.o
        VA, VI8 = 104, 106
        a("L_slow:")
        a("s_waitcnt vmcnt(0) lgkmcnt(0)")
        a(f"s_mov_b32 s{S_MODE}, 0")
        a("L_sm:")
        a(f"s_lshl_b32 s{S_BASE}, s2, 1")
        a(f"s_add_u32 s{S_BASE}, s{S_BASE}, s{S_MODE}")
        a(f"s_add_u32 s{S_BASE}, s{S_BASE}, 1")
        a(f"s_mul_i32 s{S_BASE}, s{S_BASE}, {COPY}")
        a(f"s_mov_b32 s{S_TASK}, 0")
        a("L_st:")
        self.producer("g", True)
        a(f"s_add_u32 s{S_TASK}, s{S_TASK}, 1")
        a(f"s_cmp_lt_u32 s{S_TASK}, {NTASK}")
        a("s_cbranch_scc1 L_st")
        a(f"s_add_u32 s{S_MODE}, s{S_MODE}, 1")
        a(f"s_cmp_lt_u32 s{S_MODE}, 2")
        a("s_cbranch_scc1 L_sm")
        self.lane_setup()
        self.dma_setup()
        a(f"s_mov_b32 s{S_OUT+2}, {XBYTES}")
        a(f"s_mov_b32 s{S_X+2}, {XBYTES}")
        a(f"s_mov_b32 s{S_IT}, 0")
        a("L_stile:")
        a("s_barrier")
        self.dma_tile()
        for t in range(9):
            a(f"ds_read_b128 {vr(V_ACC+4*t,4)}, v{V_TAB} offset:{O_BIAS+64*t}")
        a(f"s_mov_b32 s{S_MODE}, 0")
        a("L_spass:")
        a(f"s_lshl_b32 s{S_BASE}, s2, 1")
        a(f"s_add_u32 s{S_BASE}, s{S_BASE}, s{S_MODE}")
        a(f"s_add_u32 s{S_BASE}, s{S_BASE}, 1")
        a(f"s_mul_i32 s{S_BASE}, s{S_BASE}, {COPY}")
        self.waddr(VA, VI8)
        for grp in self.wload_list(VA, VI8):
            for x in grp:
                a(x)
        a("s_waitcnt vmcnt(0)")
        a("s_barrier")
        for s in range(9):
            a(f"ds_read_b128 {vr(V_B,4)}, v{V_RD0} offset:{2048*s}")
            a(f"ds_read_b128 {vr(V_B+4,4)}, v{V_RD1} offset:{2048*s}")
            a("s_waitcnt lgkmcnt(0)")
            for t in range(9):
                ir, h = aidx(s, t)
                a(f"v_smfmac_f32_16x16x64_bf16 {vr(V_ACC+4*t,4)}, {afrag(s,t)}, {vr(V_B,8)}, v{ir}" + (" abid:1" if h else ""))
            a("s_nop 7")
        a(f"s_add_u32 s{S_MODE}, s{S_MODE}, 1")
        a(f"s_cmp_lt_u32 s{S_MODE}, 2")
        a("s_cbranch_scc1 L_spass")
        for t in range(7):
            for h in range(2):
                a(f"v_cvt_pk_bf16_f32 v{V_P+2*t+h}, v{V_ACC+4*t+2*h}, v{V_ACC+4*t+2*h+1}")
        a(f"s_mov_b64 vcc, {sr(S_EVEN,2)}")
        self.emit_epi(self.assemble_loop(False, "")[2])
        for r in (S_XOFF, S_XOFF5, S_OOFF):
            a(f"s_add_u32 s{r}, s{r}, s{S_XINC}")
        a(f"s_mov_b32 s{S_XINC}, {256*TB}")
        a(f"s_add_u32 s{S_IT}, s{S_IT}, 1")
        a(f"s_cmp_lt_u32 s{S_IT}, s{S_NT}")
        a("s_cbranch_scc1 L_stile")
        a("s_branch L_fin")

    def loop_ops(self, links, dma, clm=False):
        o = self.o
        acc = lambda t: rng(V_ACC + 4 * t, 4)
        ch = o["chain"]
        bb = lambda s: V_P if (ch and s == 6) else V_B + 8 * BBUF[s]
        RBUF = [V_BR, V_BR + 8, V_BR, V_P + 8 if ch else V_P, V_BR + 8]
        rt = RT if links else [[0, 1], [2, 3], [4, 5], [6, 7], [8]]
        ng = [8, 8, 8, 8, 8 if links else o["ng4"]]

        def M(s, t):
            ir, h = aidx(s, t)
            return Op(f"v_smfmac_f32_16x16x64_bf16 {vr(V_ACC+4*t,4)}, {afrag(s,t)}, {vr(bb(s),8)}, v{ir}" + (" abid:1" if h else ""),
                      "mx", rd=list(acc(t)) + list(rng(bb(s), 8)), wr=acc(t), tag=("M", s, t))

        def R(j, t):
            c = j + t
            return Op(f"v_smfmac_f32_16x16x64_bf16 {vr(V_ACC+4*t,4)}, {vr(V_X,4)}, {vr(RBUF[j],8)}, v{V_IR+(c>>1)}" + (" abid:1" if c & 1 else ""),
                      "mx", rd=list(acc(t)) + list(rng(RBUF[j], 8)) + list(rng(V_X, 4)), wr=acc(t), tag=("R", j, t))
        seq = []
        for t in range(9):
            seq += [M(0, t), M(1, t)]
        if ch:
            for steps, order, rs in (((2, 3), o["ord1"], (0, 1)), ((4, 5, 6), o["ord2"], (2, 3, 4))):
                for n, t in enumerate(order):
                    seq += [M(s, t) for s in steps]
                    if t // 2 in rs and t % 2 == 0:
                        j = t // 2
                        assert t == 8 or order[n + 1] == t + 1
                        seq += [R(j, t)] + ([R(j, t - 1)] if links and j else []) + ([R(j, t + 1)] if t < 8 else [])
        else:
            for s in range(2, 7):
                seq += [M(s, t) for t in range(9)]
        for t in range(9):
            seq += [M(7, t), M(8, t)]
        if ch:
            rpos = [min(i for i, x in enumerate(seq) if x.tag[:2] == ("R", j)) for j in range(5)]
        else:
            rpos = list(o["rposl"] if links else o["rpos"])
            for j in range(5):
                for n, t in enumerate(rt[j]):
                    seq.insert(rpos[j] + n, R(j, t))
        N = len(seq)
        pos = {x.tag: i for i, x in enumerate(seq)}
        BAR = rpos[4] + len(rt[4]) - 1
        c0 = N - 15 - BAR
        assert c0 == (4 if ch else 0)
        self.drain = rpos[4] - 1
        T = lambda g: (g - BAR - 1) % N
        first = lambda s: T(min(pos[("M", s, t)] for t in range(9)))
        lastu = lambda s: max(pos[("M", s, t)] for t in range(9))
        LEAD = o["lead"]
        ST = [[] for _ in range(N)]
        S = [[] for _ in range(N)]
        D = [[] for _ in range(N)]
        V = [[] for _ in range(N)]
        keep = lambda op: (dma or op.tag != "dma") and (clm or op.tag != "clm")

        def pdst(t, h):
            return V_P8 + h if t == 8 else V_P + 2 * t + h
        dq, vq = [], []
        for t in range(9):
            for h in range(2):
                V[c0 + 2 * t + h].append(Op(f"v_cvt_pk_bf16_f32 v{pdst(t,h)}, v{V_ACC+4*t+2*h}, v{V_ACC+4*t+2*h+1}", "valu",
                                       rd=[V_ACC + 4 * t + 2 * h, V_ACC + 4 * t + 2 * h + 1], wr=[pdst(t, h)], tag="epi"))
            dq.append([Op(f"ds_read_b128 {vr(V_ACC+4*t,4)}, v{V_TAB} offset:{O_BIAS+64*t}", "lds", rd=[V_TAB], wr=acc(t), tag="pre"),
                       c0 + 2 * t + 2, c0 + 2 * t + 2, None])
        def stf(e):
            f = o["stc"] if clm else (o["st"] if dma else o["stn"])
            f = o["st"] if f is None else f
            return f[e] if isinstance(f, (tuple, list)) else f
        dpp = "quad_perm:[1,0,3,2] row_mask:0xf bank_mask:0xf"
        stg = [T(g) for g in o["stg"]]
        for v in range(2):
            p0, p1 = V_P + 8 * v, V_P + 8 * v + 4
            d0 = V_T if v == 0 else V_P
            for half in range(2):
                e = 2 * v + half
                for d in range(4):
                    if half == 0:
                        op = Op(f"v_cndmask_b32_dpp v{d0+d}, v{p1+d}, v{p0+d}, vcc {dpp}", "dpp", rd=[p0 + d, p1 + d], wr=[d0 + d], tag="epi")
                    else:
                        op = Op(f"v_cndmask_b32_dpp v{p1+d}, v{p0+d}, v{p1+d}, vcc {dpp}", "dpp", rd=[p0 + d, p1 + d], wr=[p1 + d], tag="epi")
                    vq.append([op, stg[e - 1] if e else c0 + 18, stg[e] - 4 + d, None])
                src = d0 if half == 0 else p1
                ST[stg[e]].append(Op(f"buffer_store_dwordx4 {vr(src,4)}, v{V_ST}, {sr(S_OUT,4)}, s{S_OOFF} offen offset:{1152*half+128*v} {stf(e)}",
                                     "st", rd=list(rng(src, 4)) + [V_ST], tag="epi"))
                ST[stg[e]].append(Op(f"s_mov_b64 vcc, {sr((S_ODD, S_EVEN)[half],2)}", "salu", tag="epi"))
        if o["bperm"]:
            for h in range(2):
                dq.append([Op(f"ds_bpermute_b32 v{V_P8+h}, v{V_BP}, v{V_P8+h}", "lds", rd=[V_BP, V_P8 + h], wr=[V_P8 + h], tag="epi"),
                           c0 + 18, stg[4] - LEAD - 2 + h, None])
        ST[stg[4]].append(Op(f"buffer_store_dwordx2 {vr(V_P8,2)}, v{V_ST8}, {sr(S_OUT,4)}, s{S_OOFF} offen {o['st8']}", "st",
                             rd=[V_P8, V_P8 + 1, V_ST8], tag="epi"))
        rl = lambda j: T(rpos[j] + len(rt[j]) - 1)
        free = [rl(2), 1, rl(0), stg[3 if ch else 2] + 1, rl(1)]
        for j in range(5):
            dl = T(rpos[j]) - LEAD - 1
            for b in range(ng[j]):
                r = RBUF[j] + b
                ad = V_AD + 4 * j + (b >> 1)
                av = Op(f"v_add_u32_sdwa v{r}, s{S_BUFN if j == 0 else S_BUF}, v{ad} dst_sel:DWORD dst_unused:UNUSED_PAD src0_sel:DWORD src1_sel:WORD_{b&1}",
                        "valu", rd=[ad], wr=[r], tag="pre" if j == 0 else "")
                gd = dl - o["gsp"] * (ng[j] - 1 - b)
                vq.append([av, free[j], (N - 2 - (7 - b)) if j == 0 else gd - 1, None])
                dq.append([Op(f"ds_read_u16 v{r}, v{r}", "lds", rd=[r], wr=[r], tag="pre"), 0, gd, None if j == 0 else av])
            dq.append([Op(f"ds_read_b128 {vr(V_X,4)}, v{V_TAB} offset:{O_X+64*j}", "lds", rd=[V_TAB], wr=rng(V_X, 4), tag="pre"),
                       0 if j == 0 else rl(j - 1), dl, None])
        prev = {0: None, 1: None, 2: 7, 3: 8, 4: 0, 5: 1, 6: 4, 7: 2, 8: 3}
        lastb = []
        for s in range(9):
            for h in range(2):
                op = Op(f"ds_read_b128 {vr(bb(s)+4*h,4)}, v{(V_RD0, V_RD1)[h]} offset:{2048*s}", "lds",
                        rd=[(V_RD0, V_RD1)[h]], wr=rng(bb(s) + 4 * h, 4), tag="pre")
                fs = first(s) if s < 7 else (T(rpos[4]) - 2 * (9 - s) if ch else T(pos[("M", s, 0)]))
                rel = 0 if prev[s] is None else T(lastu(prev[s]))
                if ch and s == 6:
                    rel = stg[2] + 1
                dq.append([op, rel, fs - LEAD - 2 + h, None])
                lastb.append(op)
        for h in range(2):
            vq.append([Op(f"v_add_u32 v{V_RD0+h}, s{S_DELTA}, v{V_RD0+h}", "valu", rd=[V_RD0 + h], wr=[V_RD0 + h]), 0, N - 2, lastb])
        sq = []
        dmag = [g + (self.drain - 70) * (g > 50) for g in o["dmag"]]
        assert all(b - a_ >= 2 for a_, b in zip(dmag, dmag[1:]))
        if not o["nodma"]:
            for j, g in enumerate(dmag):
                g = T(g)
                ld = f"buffer_load_dwordx4 v{V_DMA}, {sr(S_X,4)}, s{S_XOFF if j < 4 else S_XOFF5} offen offset:{256*j if j < 4 else 896} {o['ld']} lds"
                if j < 4:
                    D[g].append(Op(ld, "dma", rd=[V_DMA], tag="dma"))
                    S[g - 1].append(Op(f"s_add_u32 m0, s{S_M0B}, {3840*j}", "salu", tag="dma"))
                else:
                    D[g] += [Op(f"s_mov_b64 exec, {sr(S_HALF,2)}", "salu", tag="dma"), Op(ld, "dma", rd=[V_DMA], tag="dma"),
                             Op("s_mov_b64 exec, -1", "salu", tag="dma")]
                    S[g - 1].append(Op(f"s_add_u32 m0, s{S_M0B}, s{S_M05}", "salu", tag="dma"))
                    V[g] = None
        XV = [[] for _ in range(N)]
        if self.dyn:
            gl = T(o["mbg"] + self.drain - 70) - 1
            XV[T(0)].append(Op(f"v_mov_b32 v{V_C}, 1", "valu", wr=[V_C], tag="clm"))
            D[T(1)].append(Op(f"buffer_atomic_add v{V_C}, v{V_BP}, {sr(S_B,4)}, 0 offen sc0 sc1", "dma", rd=[V_BP], tag="clm"))
            assert not D[gl + 1] and not S[gl + 1] and max(stg) <= gl
            gw = gl + 1 if o["cwg"] is None else T(o["cwg"])
            assert gw not in stg and T(1) < gw <= gl + 1
            S[gw].append(Op(f"s_waitcnt vmcnt({sum(1 for g in stg if g < gw) + sum(1 for g in dmag if T(g) < gw)})", "salu", tag="clm"))
            if o["dwg"] is not None and dma and not clm:
                gw = T(o["dwg"])
                assert gw not in stg
                S[gw].append(Op(f"s_waitcnt vmcnt({sum(1 for g in stg if g < gw) + sum(1 for g in dmag if T(g) < gw)})", "salu"))
            D[gl + 1] += [Op(f"s_mov_b64 exec, {sr(S_W0,2)}", "salu", tag="clm"),
                          Op(f"ds_write_b32 v{V_RD0}, v{V_C} offset:{TB}", "lds", rd=[V_RD0], tag="clm"), Op("s_mov_b64 exec, -1", "salu", tag="clm")]
            V[gl + 1] = None
            D[0].append(Op(f"ds_read_b32 v{V_C}, v{V_RD0} offset:{TB}", "lds", rd=[V_RD0], wr=[V_C], tag="clm"))
            XV[LEAD + 1].append(Op(f"v_readfirstlane_b32 s{S_CL}, v{V_C}", "valu", rd=[V_C], tag="clm"))
        placed = {}
        for g in range(N - 1):
            if not D[g] and g != T(N - 1):
                c = [x for x in dq if x[1] <= g and (x[3] is None or placed.get(id(x[3]), N) < g) and x[2] - g <= o["eager"]]
                if c:
                    x = min(c, key=lambda x: x[2])
                    dq.remove(x)
                    D[g].append(x[0])
                    placed[id(x[0])] = g
                    if g > x[2] and o["verbose"]:
                        print("; late D", g - x[2], x[0].text, file=sys.stderr)
            if V[g] is None:
                V[g] = []
                continue
            cap = 2 if (ST[g] and "x4" in ST[g][0].text) else 1
            while len(V[g]) < cap:
                c = [x for x in vq if x[1] <= g and (x[3] is None or all(placed.get(id(y), N) <= g for y in x[3]))]
                if not c:
                    break
                x = min(c, key=lambda x: x[2])
                vq.remove(x)
                V[g].append(x[0])
                placed[id(x[0])] = g
                assert g <= x[2] or x[0].kind != "dpp", ("late", x[0].text)
        assert not dq and not vq, ([x[0].text for x in dq], [x[0].text for x in vq])
        for g in range(N):
            V[g] += XV[g]
        if self.dyn:
            rdup = max(placed[id(x)] for gl_ in V for x in gl_ if id(x) in placed and f"s{S_DELTA}," in x.text)
            assert rdup <= gl and gl + 1 < T(self.drain) and T(min(o["stg"])) > T(1)
        S[N - 1] += ([] if clm else [Op(f"s_waitcnt vmcnt({o['vmw']})", "salu")]) + [Op("s_barrier", "bar")]
        lastdma = T(dmag[4])
        la = max(placed[id(x)] for gl in V for x in gl if id(x) in placed and f"s{S_BUF}," in x.text)
        fn = min(placed[id(x)] for gl in V for x in gl if id(x) in placed and (f"s{S_BUFN}," in x.text or f"s{S_DELTA}," in x.text))
        sq = [([f"s_mov_b32 s{S_BUF}, s{S_BUFN}"], 0, 0),
              ([f"s_cmp_eq_u32 s{S_BUFN}, {(NB-1)*TBL}", f"s_cselect_b32 s{S_DELTA}, {-(NB-1)*TBL}, s{S_CTB}", f"s_add_u32 s{S_BUFN}, s{S_BUFN}, s{S_DELTA}"], c0 + 18, fn),
              ]
        if self.dyn:
            LK = self.dyn[1]
            sq.append((([] if clm else [f"s_mov_b32 s{S_OUT+2}, {XBYTES}"]) + [f"s_mov_b32 s{S_OOFF}, s{S_Q}"]
                       + [f"s_mov_b32 s{S_Q+k}, s{S_Q+k+1}" for k in range(LK - 1)]
                       + [f"s_mov_b32 s{S_Q+LK-1}, s{S_XOFF}" if clm else f"s_add_u32 s{S_Q+LK-1}, s{S_Q+LK-1}, {256*TB}"], stg[4] + 1, N - 2))
        else:
            sq.append(([f"s_mov_b32 s{S_OUT+2}, {XBYTES}", f"s_add_u32 s{S_OOFF}, s{S_OOFF}, s{S_OINC}", f"s_mov_b32 s{S_OINC}, s{S_OINC2}",
                        f"s_mov_b32 s{S_OINC2}, {256*TB}"], stg[4] + 1, N - 2))
        if not clm or o["trace"]:
            sq.append(([f"s_add_u32 s{S_IT}, s{S_IT}, 1"], c0 + 18, N - 2))
        if clm:
            ps = o["psh"]
            sq += [([f"s_add_u32 s{S_XOFF5}, s{S_XOFF}, s{S_K5}"], c0 + 18, lastdma - 2),
                   (self.dma_advance()[2:], lastdma + 1, N + 8),
                   ([f"s_lshr_b32 s{S_CT}, s{S_CL}, {ps}", f"s_mul_i32 s{S_CT}, s{S_CT}, {(256 - (1 << ps))*TB}", f"s_mul_i32 s{S_CT+1}, s{S_CL}, {TB}",
                     f"s_add_u32 s{S_CT}, s{S_CT}, s{S_CB}", f"s_add_u32 s{S_XOFF}, s{S_CT}, s{S_CT+1}"], LEAD + 2, T(N - 1) - 2),
                   ([f"s_cmp_lt_u32 s{S_CL}, {(16 - self.dyn[0]) << ps}"], T(N - 1) - 1, T(N - 1) - 1)]
        else:
            if dma:
                sq += [(self.dma_advance(), lastdma + 1, N + 12)]
            sq.append(([f"s_bitcmp1_b32 s{S_DMASK if dma else S_NMASK}, s{S_IT}"], T(N - 1) - 1, T(N - 1) - 1))
        G = lambda A: [[x for x in A[T(g)] if keep(x)] for g in range(N)]
        return seq, G(ST), G(S), G(D), G(V), [(x, (lo + BAR + 1), (hi + BAR + 1)) for x, lo, hi in sq], BAR

    def assemble_loop(self, links, label, dma=True, clm=False):
        seq, ST, S, D, V, sq, BAR = self.loop_ops(links, dma, clm)
        N = len(seq)
        flat = []
        for rep in range(2):
            for g in range(N):
                a0 = rep * N + g
                flat.append((seq[g], a0 - 1))
                for x in ST[g]:
                    flat.append((x, a0 - 1))
                for x in D[g] + V[g]:
                    flat.append((x, a0))
        gap_of = {}
        k = 0
        lds = []
        for rep in range(2):
            for g in range(N):
                k += 1 + len(ST[g])
                for x in D[g] + V[g]:
                    if x.kind == "lds":
                        lds.append((k, rep * N + g))
                    k += 1
        done = -1
        W = {}
        minlead = 99
        for i, (op, wg) in enumerate(flat):
            touched = op.rd | op.wr
            need = -1
            for n, (k, g) in enumerate(lds):
                if k < i and n > done and (flat[k][0].wr & touched):
                    need = n
            if need >= 0:
                assert lds[need][1] < wg
                issued = [n for n, (k, g) in enumerate(lds) if g < wg]
                cnt = min(issued[-1] - need, 15)
                done = issued[-1] - cnt
                if wg >= N - 1 and wg < 2 * N - 1:
                    W[wg % N] = min(cnt, W.get(wg % N, 99))
                    if self.o["verbose"]:
                        print(f"; wait gap {wg % N} cnt {cnt} lead {wg - lds[need][1]} for {flat[lds[need][0]][0].text}", file=sys.stderr)
        W[self.drain] = 0
        if clm:
            mb = [g for g in range(N) if any("ds_write" in x.text for x in D[g])][0]
            assert not [g for g in W if mb < g < self.drain]
        for g, c in W.items():
            S[g].insert(0, Op(f"s_waitcnt lgkmcnt({c})", "salu"))
        if not self.o["drop"]:
            last = max(g for g in range(BAR + 1) if any(x.kind == "lds" for x in D[g]))
            assert any(W.get(g) == 0 for g in range(last + 1, BAR + 1)), "tile reads not drained at the barrier"

        def room(g, extra=0, resv=True):
            g %= N
            if g == BAR or g == N - 1 or any(x.kind == "dma" for x in D[g]):
                return False
            cap = 1 if D[g] else (2 if V[g] else 3)
            if label and not clm and resv:
                if g == self.drain - 1:
                    return False
                cap -= g == self.drain - 2
            return len(S[g]) + extra < cap and not ST[g]
        sccfree = lambda x: x.text.startswith(("s_waitcnt", "s_mov", "s_barrier"))
        locked = set()
        for texts, lo, hi in sq:
            g = lo
            n = 0
            while n < len(texts):
                chain = [texts[n]]
                if texts[n].startswith(("s_cmp", "s_bitcmp")):
                    while n + len(chain) < len(texts) and texts[n + len(chain)].startswith("s_cselect"):
                        chain.append(texts[n + len(chain)])
                while True:
                    assert g <= hi, ("no room", chain)
                    where, z = [], g
                    ok = room(g) and ((g % N) not in locked or chain[0].startswith("s_mov"))
                    cnt = {}
                    for k, tx in enumerate(chain):
                        while ok and not room(z, cnt.get(z, 0)):
                            z += 1
                            ok = z <= hi and all(sccfree(x) for x in S[z % N]) and (clm or z % N != self.drain - 1)
                        where.append(z)
                        cnt[z] = cnt.get(z, 0) + 1
                    if ok:
                        break
                    g += 1
                for z, tx in zip(where, chain):
                    S[z % N].append(Op(tx, "salu"))
                if len(chain) > 1:
                    locked.update(z % N for z in range(where[0], where[-1]))
                g = where[-1]
                n += len(chain)
        assert all(sccfree(x) for x in S[N - 1])
        if label and not clm:
            gz = self.drain - (2 if self.o["trace"] else 1)
            assert self.o["chain"] and (self.o["trace"] or (not (S[gz] or D[gz] or V[gz] or ST[gz]) and room(gz - 1, 0, False) and (gz - 1) not in locked))
            assert all(x.kind not in ("dma", "st") for g in range(gz, N) for x in D[g] + ST[g]) and max(self.o["stg"]) < min(self.o["dmag"])
            S[gz - (0 if self.o["trace"] else 1)].append(Op(f"s_bitcmp1_b32 s{S_WMASK}, s{S_IT}", "salu"))
            S[gz] += [Op(f"s_cbranch_scc1 {label}_w", "salu"), Op(f"{label}_wb:", "label")]
            self.tailblocks.append(f"{label}_w:\ns_bitcmp1_b32 s{S_WMASK2}, s{S_IT}\ns_waitcnt vmcnt({self.whi})\n"
                                   f"s_cbranch_scc0 {label}_wb\ns_waitcnt vmcnt({self.wlo})\ns_branch {label}_wb")
        if self.o["trace"]:
            g0 = max(g for g, c in W.items() if c == 0 and g <= BAR)
            S[g0 - 1] += [Op("s_memrealtime s[98:99]", "salu"), Op("s_memtime s[96:97]", "salu"), Op(f"s_add_u32 s95, s{S_IT}, 32", "salu")]
            V[g0] += [Op(f"s_mov_b32 m0, s{S_IT}", "salu"), Op("v_writelane_b32 v254, s98, m0", "salu"), Op("s_mov_b32 m0, s95", "salu"), Op("v_writelane_b32 v254, s96, m0", "salu")]
        body = []
        for g in range(N):
            body += [x for x in [seq[g]] if not any(d in x.text for d in self.o["dropm"])] + ST[g] + S[g] + D[g] + V[g]
            if self.o["pad"] and g % self.o["pad"] == 0 and g < N - 2:
                body.append(Op("s_nop 3", "salu"))
        body = [x for x in body if x.kind == "mx" or not any(d in x.text for d in self.o["drop"])]
        body.append(Op(f"s_cbranch_scc1 {label}", "salu"))
        if not self.o["drop"]:
            real = [x for x in body if x.kind != "label"]
            m = len(real)
            for i, op in enumerate(real):
                for d in range(1, 10):
                    p = real[(i - d) % m]
                    ws = d - 1
                    if p.kind == "mx" and op.kind != "mx" and (p.wr & (op.rd | op.wr)):
                        assert ws >= 8, ("mx->x", p.text, op.text, ws)
                    if p.kind in ("valu", "dpp") and op.kind == "mx" and (p.wr & op.rd):
                        assert ws >= 2, ("valu->mx", p.text, op.text, ws)
                    if p.kind in ("valu", "dpp") and op.kind == "dpp" and (p.wr & op.rd):
                        assert ws >= 2, ("valu->dpp", p.text, op.text, ws)
                    if p.kind == "st" and (p.rd & op.wr):
                        assert ws >= 2, ("st war", p.text, op.text, ws)
        pro = [x for g in range(N) for x in V[g] if x.tag == "pre" or (g > BAR and "sdwa" in x.text)] \
            + [x for g in range(BAR + 1, N) for x in D[g] if x.tag == "pre"]
        epi = [x for g in range(BAR) for x in ST[g] + D[g] + V[g] if x.tag == "epi"]
        return pro, body, epi

    def emit_epi(self, epi):
        cv = [x for x in epi if "v_cvt" in x.text]
        bp = [x for x in epi if x.kind == "lds"]
        rest = [x for x in epi if x not in cv and x not in bp]
        ops = rest[:6] + cv[2:] + bp + rest[6:12] + cv[:2] + rest[12:]
        if self.o["ste"] is not None:
            ops = [Op(x.text.replace(" sc1", " " + self.o["ste"]), x.kind, x.rd, x.wr) if x.kind == "st" else x for x in ops]
        hist = [Op("", "mx", wr=rng(V_ACC + 28, 8)), Op("", "valu", wr=rng(V_P, 14)), Op("", "salu")]
        self.emit_line(ops, [], hist)

    def main_loop(self, links, sfx):
        a = self.a
        pro, body, epi = self.assemble_loop(links, "L_loop" + sfx)
        if not self.o["peel"]:
            late = list(self.late_loads)
            for n, op in enumerate(pro):
                a(op.text)
                if n % 6 == 5:
                    while late and not late[0].startswith("buffer"):
                        a(late.pop(0))
                    if late:
                        a(late.pop(0))
            for x in late[:8]:
                a(x)
            a("s_waitcnt lgkmcnt(0)")
            a(f"v_readfirstlane_b32 s{S_T0}, v{V_T}")
            a("s_nop 3")
            a(f"s_cmp_lg_u32 s{S_T0}, 0")
            a("s_cbranch_scc1 L_slow")
            for x in late[8:]:
                a(x)
            if max(p[1] for p in self.pol):
                self.prefetch(24, "L_pf2" + sfx)
            for x in self.dma_advance(first=True):
                a(x)
            a(f"s_waitcnt vmcnt({(20 if self.o['early'] else 0) + 5 * self.n2min})")
            self.stamp(5)
            a(f"s_bitcmp1_b32 s{S_DMASK}, 0")
            a(f"s_cbranch_scc0 L_loopn{sfx}")
        a(".p2align 6")
        a(f"L_loop{sfx}:")
        for op in body:
            a(op.text)
        if self.o["wbl2"] is not None:
            a(f"s_lshr_b32 s{S_T0}, s2, 3")
            a(f"s_and_b32 s{S_T0}, s{S_T0}, {self.o['wbl2']}")
            a(f"s_or_b32 s{S_T0}, s{S_T0}, s{S_WAVE}")
            a(f"s_cbranch_scc1 L_loopn{sfx}")
            a("buffer_wbl2 sc1")
        if self.dyn:
            LK = self.dyn[1]
            a(f"s_cmp_lg_u32 s{S_IT}, {self.cl0}")
            a(f"s_cbranch_scc1 L_loopn{sfx}")
            a(".p2align 3")
            a(f"L_loopc{sfx}:")
            for op in self.assemble_loop(links, "L_loopc" + sfx, True, True)[1]:
                a(op.text)
            if self.o["trace"]:
                a(f"s_add_u32 s{S_NT}, s{S_IT}, {LK}")
                a(f"s_bfm_b32 s{S_NMASK}, s{S_NT}, 0")
                a(f"s_lshl_b32 s{S_WMASK}, {1 << (LK-1)}, s{S_IT}")
                a(f"s_lshl_b32 s{S_WMASK2}, {(1 << (LK-1)) if 5*(LK-1) < self.whi else 0}, s{S_IT}")
            else:
                a(f"s_mov_b32 s{S_IT}, 0")
                a(f"s_mov_b32 s{S_NT}, {LK}")
                a(f"s_mov_b32 s{S_NMASK}, {(1 << LK) - 1}")
                a(f"s_mov_b32 s{S_WMASK}, {(1 << (LK-1)) if 5*(LK-1) < self.o['vmw'] else 0}")
                a(f"s_mov_b32 s{S_WMASK2}, {(1 << (LK-1)) if 5*(LK-1) < self.whi else 0}")
            a(f"s_mov_b32 s{S_CL0}, -1")
            if self.o["stt"] is not None:
                keep, self.o["stn"] = self.o["stn"], self.o["stt"]
                for op in self.assemble_loop(links, "L_loopt" + sfx, False)[1][:-1]:
                    a(op.text)
                self.o["stn"] = keep
        if self.o["align2"]:
            a(".p2align 3")
        a(f"L_loopn{sfx}:")
        _, body, epi = self.assemble_loop(links, "L_loopn" + sfx, False)
        for op in body:
            a(op.text)
            if op.kind == "bar":
                a(f"L_loopn{sfx}_p3:")
        if self.dyn:
            a(f"s_cmp_eq_u32 s{S_IT}, s{S_CL0}")
            a(f"s_cbranch_scc1 L_loopc{sfx}")
        a(f"s_cmp_lt_u32 s{S_IT}, s{S_NT}")
        a(f"s_cbranch_scc1 L_loop{sfx}")
        self.emit_epi(epi)

    def loop_state(self):
        a = self.a
        pl = 2 if self.o["peel"] else 0
        a(f"s_mov_b32 s{S_IT}, {pl}")
        a(f"s_mov_b32 s{S_BUF}, 0")
        a(f"s_mov_b32 s{S_BUFN}, {pl*TBL}")
        if pl:
            a(f"s_mov_b32 s{S_OUT+2}, {XBYTES}")
        a(f"s_mov_b32 s{S_CTB}, {TBL}")
        a(f"s_mov_b32 s{S_OINC}, {256*TB if pl else 0}")
        a(f"s_mov_b64 vcc, {sr(S_EVEN,2)}")
        if self.dyn:
            NS, LK = self.dyn
            ps = self.o["psh"]
            a(f"s_andn2_b32 s{S_NMASK}, {(1 << self.cl0) - 1}, s{S_DMASK}")
            a(f"s_mov_b32 s{S_CL0}, {self.cl0}")
            a(f"s_add_u32 s{S_Q}, s{S_OOFF}, {pl*256*TB}")
            for k in range(1, LK):
                a(f"s_add_u32 s{S_Q+k}, s{S_Q+k-1}, {256*TB}")
            a(f"s_sub_u32 s{S_K5}, s{S_XOFF5}, s{S_XOFF}")
            a(f"s_lshr_b32 s{S_T0}, s2, {ps}")
            a(f"s_mul_i32 s{S_CB}, s{S_T0}, {TB << ps}")
            a(f"s_add_u32 s{S_CB}, s{S_CB}, {NS*256*TB}")
            a(f"s_lshl_b32 s{S_T0}, s{S_T0}, 7")
            a(f"s_add_u32 s{S_T0}, s{S_T0}, {CNT_OFF}")
            a(f"s_add_u32 s{S_B}, s{S_WS}, s{S_T0}")
            a(f"s_addc_u32 s{S_B+1}, s{S_WS+1}, 0")
            a(f"s_cmp_eq_u32 s{S_WAVE}, 0")
            a(f"s_cselect_b32 s{S_B+2}, 4, 0")
            a(f"s_cselect_b64 {sr(S_W0,2)}, 1, 0")
        else:
            a(f"s_bfm_b32 s{S_NMASK}, s{S_NT}, 0")
            a(f"s_andn2_b32 s{S_NMASK}, s{S_NMASK}, s{S_DMASK}")

    def stamp(self, n, r="s[98:99]"):
        if self.o["stamp"] and (self.o["stamp"] is True or n in self.o["stamp"]):
            a = self.a
            a(f"s_memtime {r}" if self.o["cyc"] and n in (5, 6) else f"s_memrealtime {r}")
            a("s_waitcnt lgkmcnt(0)")
            a(f"v_writelane_b32 v255, s{r[2:4]}, {n}")

    def descriptor(self, label, vg, ag):
        self.a(f""".amdhsa_kernel {label}
  .amdhsa_next_free_vgpr {vg}
  .amdhsa_next_free_sgpr 102
  .amdhsa_accum_offset {ag}
  .amdhsa_group_segment_fixed_size 0
  .amdhsa_float_denorm_mode_32 3
  .amdhsa_kernarg_size 48
  .amdhsa_user_sgpr_count 2
  .amdhsa_user_sgpr_kernarg_segment_ptr 1
  .amdhsa_system_sgpr_workgroup_id_x 1
.end_amdhsa_kernel""")

    def flush_tail(self):
        for b in self.tailblocks:
            self.a(b)
        self.tailblocks = []

    def gen(self):
        a = self.a
        o = self.o
        K = NAME + "_kernel"
        a(open("cdna_kernels/" + NAME + ".s.ref").read().split("; Override")[0].rstrip())
        if o["fused"]:
            a(f"; @launch grid=(256,1,1) block=(256,1,1) lds={LDS_BYTES}")
        else:
            a(f"; @launch kernel=prep_kernel grid=({NTASK},1,1) block=(256,1,1) lds={LDS_BYTES}")
            a(f"; @launch kernel={K} grid=(256,1,1) block=(256,1,1) lds={LDS_BYTES}")
        a('.amdgcn_target "amdgcn-amd-amdhsa--gfx950"\n.text')
        if not o["fused"]:
            self.entry("prep_kernel", NTASK)
            a(f"s_mov_b32 s{S_TASK}, s2\ns_mov_b32 s{S_BASE}, 0")
            self.producer("", False)
            a("L_end_prep_kernel:\ns_endpgm")
            self.flush_tail()
        self.entry(K, 256)
        a(f"s_mov_b32 s{S_BASE}, 0")
        msk = lambda p: hex(sum(1 << i for i in p[2] if not self.dyn or i < self.cl0) | p[0] << 20 | p[1] << 24)
        def pick(reg, vals):
            if len(set(vals)) == 1:
                a(f"s_mov_b32 s{reg}, {vals[0]}")
                return
            a(f"s_mov_b32 s{reg}, {vals[1]}")
            a(f"s_mov_b32 s{S_T0}, {vals[3]}")
            a(f"s_bitcmp1_b32 s2, {o['gsh']}")
            a(f"s_cselect_b32 s{reg}, s{reg}, {vals[0]}")
            a(f"s_cselect_b32 s{S_T0}, s{S_T0}, {vals[2]}")
            a(f"s_bitcmp1_b32 s2, {o['gsh2']}")
            a(f"s_cselect_b32 s{reg}, s{S_T0}, s{reg}")
        if o["fused"]:
            px = o["px"]
            if o["pspread"]:
                a(f"s_bfe_u32 s{S_TASK}, s2, {hex(2 << 16 | 3)}")
                a(f"s_mul_i32 s{S_TASK}, s{S_TASK}, {px}")
                a(f"s_and_b32 s{S_T0}, s2, 7")
                a(f"s_add_u32 s{S_TASK}, s{S_TASK}, s{S_T0}")
                a(f"s_lshr_b32 s{S_T1}, s2, 5")
                a(f"s_lshl3_add_u32 s{S_TASK}, s{S_TASK}, s{S_T1}")
            else:
                a(f"s_lshr_b32 s{S_TASK}, s2, 3")
                a(f"s_mul_i32 s{S_TASK}, s{S_TASK}, {px}")
                a(f"s_and_b32 s{S_T0}, s2, 7")
                a(f"s_add_u32 s{S_TASK}, s{S_TASK}, s{S_T0}")
            a(f"s_cmp_lt_u32 s{S_T0}, {px}")
            a(f"s_cselect_b32 s{S_TASK}, s{S_TASK}, 63")
            a(f"s_cmp_lt_u32 s{S_TASK}, {NTASK}")
            a("s_cbranch_scc1 L_prod")
        pick(S_DMASK, [msk(p) for p in self.pol[:4]])
        self.lane_setup()
        if o["fused"] and o["sig"] == 3:
            self.mb_addr(S_T0, S_T1)
            a(f"s_cmp_eq_u32 s{S_WAVE}, 0")
            a(f"s_cselect_b32 s{S_T0}, s{S_T0}, 0x40000000")
            a(f"v_mov_b32 v8, s{S_T0}")
            a("v_mov_b32 v9, 0")
        self.entry_wait()
        if o["fused"] and o["sig"] == 3:
            a("s_mov_b64 exec, 1")
            a(f"buffer_store_dword v9, v8, {sr(S_WS,4)}, 0 offen sc1")
            a("s_mov_b64 exec, -1")
        a("L_cons3:")
        self.stamp(1)
        self.dma_setup()
        self.prefetch(20)
        self.stamp(2)
        if o["fused"]:
            a("s_branch L_rest")
            a("L_prod:")
            self.producer("", False)
            pick(S_DMASK, [msk(p) for p in self.pol[4:]] * 2)
            a("s_barrier")
            a(f"s_cmp_lg_u32 s{S_WAVE}, 0")
            a("s_cbranch_scc1 L_cons2")
            a("v_mov_b32 v8, 1")
            a("s_mov_b64 exec, 1")
            if o["sig"] == 2:
                a(f"s_lshr_b32 s{S_T0}, s{S_TASK}, 1")
                a(f"s_lshl_b32 s{S_T0}, s{S_T0}, 2")
                a(f"s_bitcmp1_b32 s{S_TASK}, 0")
                a(f"s_cselect_b32 s{S_T1}, 128, 0")
                a(f"s_add_u32 s{S_T0}, s{S_T0}, s{S_T1}")
                a(f"v_mov_b32 v9, s{S_T0}")
                a(f"buffer_store_dword v8, v9, {sr(S_DBG,4)}, 0 offen {o['fs']}")
            else:
                a(f"buffer_atomic_add v8, off, {sr(S_DBG,4)}, 0 offset:128 sc0 sc1")
                if o["sig"] == 3:
                    a("s_mov_b64 exec, -1")
                    a(f"s_mov_b32 s{S_T1}, {MB_OFF}")
                    a(f"v_lshl_add_u32 v10, v{V_LANE}, 7, s{S_T1}")
                    for k in range(1, 4):
                        a(f"v_add_u32 v{10+k}, {8192*k}, v10")
                a("v_mov_b32 v9, 1")
                a("s_waitcnt vmcnt(0)")
                a(f"v_readfirstlane_b32 s{S_T0}, v8")
                a("s_nop 3")
                a(f"s_cmp_lg_u32 s{S_T0}, {NTASK-1}")
                a("s_cbranch_scc1 L_notlast")
                if o["sig"] == 3:
                    for k in range(4):
                        a(f"buffer_store_dword v9, v{10+k}, {sr(S_WS,4)}, 0 offen sc1")
                    a("s_mov_b64 exec, 1")
                a(f"buffer_store_dword v9, off, {sr(S_DBG,4)}, 0 {o['fs']}")
                if o["diag"] and o["diag"][2] == "last":
                    a("s_mov_b32 s101, -1")
            a("L_notlast:")
            self.stamp(15)
            a("s_mov_b64 exec, -1")
            a("L_cons2:")
            self.lane_setup()
            if o["bar2"]:
                a("s_barrier")
            a("s_branch L_cons3")
            self.flush_tail()
            a("L_rest:")
        for reg, wm in ((S_WMASK, self.wmask), (S_WMASK2, self.wmask2)):
            pick(reg, [hex(x) for x in wm[:4]])
            if o["fused"]:
                pick(S_T1, [hex(x) for x in wm[4:]] * 2)
                a(f"s_cmp_lt_u32 s{S_TASK}, {NTASK}")
                a(f"s_cselect_b32 s{reg}, s{S_T1}, s{reg}")
        self.bias_load()
        self.lane_setup2()
        self.tables_init()
        pre, C, G = self.build()
        if o["fused"]:
            a(f"s_cmp_lg_u32 s{S_WAVE}, 0")
            a("s_cbranch_scc1 L_ready")
            if o["sig"] == 2:
                a(f"v_lshlrev_b32 v9, 2, v{V_LANE}")
                a("s_waitcnt vmcnt(0)")
            else:
                a("s_mov_b64 exec, 1")
            a(f"s_mov_b32 s{S_T1}, {o['maxpoll']}")
            if o["stamp"] and (o["stamp"] is True or 14 in o["stamp"]):
                a("s_waitcnt vmcnt(0)")
                self.stamp(14)
            if o["sig"] == 3:
                self.mb_addr(S_T0, S_MASK)
                a(f"v_mov_b32 v9, s{S_T0}")
                a(f"s_waitcnt vmcnt({5*min(p[0] for p in self.pol)})")
            a("L_poll:")
            if o["psleep"]:
                a(f"s_sleep {o['psleep']}")
            if o["sig"] == 3:
                a(f"s_and_b32 s{S_T0}, s{S_T1}, 15")
                a("s_cbranch_scc0 L_polld")
                a(f"buffer_load_dword v8, v9, {sr(S_WS,4)}, 0 offen sc1")
                a("L_pollb:")
                self.tailblocks.append(f"L_polld:\nbuffer_load_dword v8, off, {sr(S_DBG,4)}, 0 sc1\ns_branch L_pollb")
            else:
                a(f"buffer_load_dword v8, {'v9' if o['sig'] == 2 else 'off'}, {sr(S_DBG,4)}, 0 {'offen ' if o['sig'] == 2 else ''}{o['pl']}")
            a(f"s_sub_u32 s{S_T1}, s{S_T1}, 1")
            a("s_cbranch_scc1 L_giveup")
            a("s_waitcnt vmcnt(0)")
            if o["sig"] == 2:
                a("v_cmp_ne_u32 vcc, 0, v8")
                a(f"s_bcnt1_i32_b64 s{S_T0}, vcc")
                a(f"s_cmp_lt_u32 s{S_T0}, {NTASK}")
            else:
                a(f"v_readfirstlane_b32 s{S_T0}, v8")
                a("s_nop 3")
                a(f"s_cmp_lg_u32 s{S_T0}, 1")
            a("s_cbranch_scc1 L_poll")
            a("L_polled:")
            a("s_mov_b64 exec, -1")
            a("L_ready:")
            self.tailblocks.append(f"L_giveup:\ns_waitcnt vmcnt(0)\nv_mov_b32 v8, {L_PL + 256}\nv_mov_b32 v9, 1\nds_write_b32 v8, v9\ns_branch L_polled")
        a("s_waitcnt lgkmcnt(0)")
        a("s_barrier")
        self.stamp(3)
        self.emit_build(pre, C, G)
        self.stamp(4, "s[94:95]")
        self.loop_state()
        a("s_waitcnt lgkmcnt(0)")
        a(f"v_mov_b32 v{V_X if o['peel'] else V_T}, {L_PL + 256}")
        a("s_barrier")
        if o["peel"]:
            self.peel()
            if max(p[1] for p in self.pol):
                self.prefetch(24, "L_pf2")
            for x in self.dma_advance(first=True):
                a(x)
            a(f"s_add_u32 s{S_OOFF}, s{S_OOFF}, {256*TB}")
            self.stamp(5)
            a("s_waitcnt lgkmcnt(0)")
            a("s_barrier")
            if o["links"] is None:
                a(f"s_cmp_lg_u32 s{S_LINK}, 0")
                a("s_cbranch_scc1 L_loopnk_p3")
            a("s_branch L_loopn_p3")
        else:
            a(f"ds_read_b32 v{V_T}, v{V_T}")
            if o["links"] is None:
                a(f"s_cmp_lg_u32 s{S_LINK}, 0")
                a("s_cbranch_scc1 L_linked")
        self.main_loop(bool(o["links"]), "")
        a("L_fin:")
        if o["stamp"]:
            a(f"v_mbcnt_lo_u32_b32 v{V_LANE}, -1, 0\nv_mbcnt_hi_u32_b32 v{V_LANE}, -1, v{V_LANE}")
        self.stamp(6)
        if o["stamp"]:
            a("s_waitcnt vmcnt(0)")
            self.stamp(7)
            a("v_writelane_b32 v255, s100, 0")
            a(f"s_lshl_b32 s{S_T0}, s2, 2\ns_add_u32 s{S_T0}, s{S_T0}, s{S_WAVE}\ns_lshl_b32 s{S_T0}, s{S_T0}, 6")
            a(f"s_add_u32 s{S_T0}, s{S_T0}, {WSBYTES - 65536}")
            if o["trace"]:
                a(f"s_lshl_b32 s{S_T1}, s2, 2\ns_add_u32 s{S_T1}, s{S_T1}, s{S_WAVE}\ns_lshl_b32 s{S_T1}, s{S_T1}, 8")
                a(f"s_add_u32 s{S_T1}, s{S_T1}, {WSBYTES - 65536 - 262144}")
                a(f"v_lshl_add_u32 v8, v{V_LANE}, 2, s{S_T1}")
                a(f"buffer_store_dword v254, v8, {sr(S_WS,4)}, 0 offen")
                a("s_nop 1")
            a(f"v_lshl_add_u32 v254, v{V_LANE}, 2, s{S_T0}")
            a("s_mov_b32 exec_lo, 0xffff\ns_mov_b32 exec_hi, 0")
            a(f"buffer_store_dword v255, v254, {sr(S_WS,4)}, 0 offen")
            if o["diag"]:
                n1, n0, wg, mul = o["diag"]
                a(("s_cmp_lg_u32 s101, -1" if wg == "last" else f"s_cmp_lg_u32 s2, {wg}") + f"\ns_cbranch_scc1 L_end_{K}\ns_cmp_lg_u32 s{S_WAVE}, 0\ns_cbranch_scc1 L_end_{K}")
                a(f"v_readlane_b32 s60, v255, {n1}\nv_readlane_b32 s61, v255, {n0}\ns_nop 3\ns_sub_u32 s60, s60, s61\ns_mul_i32 s60, s60, {mul}")
                a("s_min_u32 s60, s60, 100000\ns_add_u32 s60, s60, 10000")
                a("L_diag:\ns_sleep 1\ns_memrealtime s[62:63]\ns_waitcnt lgkmcnt(0)\ns_sub_u32 s62, s62, s100\ns_cmp_lt_u32 s62, s60\ns_cbranch_scc1 L_diag")
        a(f"L_end_{K}:\ns_endpgm")
        self.flush_tail()
        if o["links"] is None:
            a("L_linked:")
            self.main_loop(True, "k")
            a("s_branch L_fin")
            self.flush_tail()
        self.slow_path(K)
        a('.section .rodata,"a"\n.p2align 6')
        if not o["fused"]:
            self.descriptor("prep_kernel", 128, 128)
            a(".p2align 6")
        self.descriptor(K, 512, 256)
        return "\n".join(self.L) + "\n"


if __name__ == "__main__":
    opts = eval("dict(" + (sys.argv[2] if len(sys.argv) > 2 else "") + ")")
    out = sys.argv[1] if len(sys.argv) > 1 else "cdna_kernels/" + NAME + ".s"
    open(out, "w").write(Gen(**opts).gen())
```

```python
import sys

NAME = "standalone__structured_sparse_n_m__ragged"
TB = 18432
TBL = TB + 128
NB = 8
CNT_OFF = 0x60000
MB_OFF = 0x68000
PRIV0 = 2
XBYTES = 75497472
WBYTES = 663552
WSBYTES = 301989888
A_OFF = 0
I_OFF = 331776
I8_OFF = I_OFF + 36864
R1_OFF = I8_OFF + 5120
R8_OFF = R1_OFF + 9216
COPY = 393216
NTASK = 41
L_WV = NB * TBL
WV_SZ = 3584
O_X, O_K, O_M, O_BIAS, O_IDX = 64, 384, 704, 1024, 1792
L_PL = L_WV + 4 * WV_SZ
LDS_BYTES = 163840
assert L_PL + 512 <= LDS_BYTES and L_WV % 256 == 0 and WV_SZ % 256 == 0

V_RD0, V_RD1, V_TAB, V_DMA, V_ST, V_ST8, V_BP, V_LANE = 0, 1, 2, 3, 4, 5, 6, 7
V_ACC = 8
V_B = 44
V_BR = 76
V_P = 92
V_T = 108
V_P8 = 112
V_X = 114
V_AD = 118
V_I = 138
V_I8 = 174
V_IR = 179
V_A = 186
S_X, S_OUT, S_WS, S_W, S_B, S_DBG = 16, 20, 24, 28, 32, 36
S_WAVE = 40
S_IT, S_BUF, S_DELTA, S_M0B, S_XOFF, S_OOFF = 41, 42, 43, 44, 45, 46
S_T0, S_T1 = 47, 3
S_MASK = 48
S_EVEN, S_ODD = 80, 82
S_TASK, S_TEND, S_BASE, S_MODE, S_CONT = 84, 85, 86, 87, 88
S_BAD = 90
S_MORE, S_LINK = 78, 89
S_C0 = 93
S_BUFN, S_CTB, S_OINC, S_XOFF5, S_M05, S_M0W, S_HALF = 4, 5, 6, 7, 8, 9, 10
S_NMASK = 12
S_WMASK, S_WMASK2 = 92, 87
S_XINC, S_OINC2, S_NT = 13, 14, 15
S_Q, S_CL, S_CB, S_K5, S_CL0, S_CT, S_W0 = 48, 56, 57, 58, 59, 60, 62
V_C = 7
S_DMASK, S_NB0 = 85, 88


def vr(b, n=1):
    return f"v{b}" if n == 1 else f"v[{b}:{b+n-1}]"


def sr(b, n=1):
    return f"s{b}" if n == 1 else f"s[{b}:{b+n-1}]"


def afrag(s, t):
    f = 9 * s + t
    return f"a[{4*f}:{4*f+3}]" if f < 64 else vr(V_A + 4 * (f - 64), 4)


def aidx(s, t):
    if t < 8:
        return V_I + 4 * s + (t >> 1), t & 1
    return V_I8 + (s >> 1), s & 1


BBUF = [0, 1, 2, 3, 0, 1, 0, 2, 3]
PEEL_T = [8, 0, 1, 2, 3, 4, 5, 6, 7]
RT = [[0, 1], [1, 2, 3], [3, 4, 5], [5, 6, 7], [7, 8]]


class Op:
    def __init__(self, text, kind, rd=(), wr=(), tag=""):
        self.text, self.kind, self.rd, self.wr, self.tag = text, kind, set(rd), set(wr), tag


def rng(b, n):
    return range(b, b + n)


class Gen:
    def __init__(self, **o):
        self.o = dict(fused=True, ld="nt", st="sc1", bperm=True, grp=None, nb0=None, gsh=3, gsh2=4, split=0, dyn=(10, 3), psh=6, peel=True, ptail=10, vcap=18, stp=None, stt=None, ste=None, mbg=64, cwg=46, dwg=20, wbl2=None, stn=None, pad=0, dropm=(), st8='', stc=None, stamp=False, nodma=False, wl="sc1", ws="sc1",
                      vmw=20, lper=14, drop=(), cyc=False, links=None, ng4=8, px=2, maxpoll=20015, warm=True, bcast=True, l0=12, lw=2, cwarm=True, ptouch=False, pspread=True, pfw=None, wtouch=False, bar2=True, early=True, ltail=24, coal=True, rpos=(18, 35, 50, 63, 75), rposl=(18, 36, 52, 66, 78),
                      lead=8, stg=(9, 16, 23, 30, 37), dmag=(44, 52, 60, 63, 66), gsp=2, eager=99, verbose=False, hack=None, diag=None, sig=1, psleep=0, pl='sc1', fs='sc1', isort=False, trace=False, chain=True, ord1=(0,1,4,5,6,2,3,7,8), ord2=(0,4,5,1,6,7,2,3,8), align2=True, order='hp')
        self.o.update(o)
        if self.o["grp"] is None and self.o["nb0"] is None:
            self.o.update(grp=[(3, 2, 2), (8, 0, 5), (3, 2, 2)])
        grp = self.o["grp"] or [(self.o["nb0"], 0, 0)] * 2
        if len(grp) != 6:
            grp = list(grp[:-1]) * (4 // (len(grp) - 1)) + [grp[-1]] * 2
        sp = self.o["split"]
        if sp:
            self.o["gsh"], self.o["gsh2"] = 0, 3
        self.pol, self.nt = [], []
        for c, (n1, n2, its) in enumerate(grp):
            nt = 16 + (sp if c % 2 == 0 else -sp)
            nb = n1 + n2
            its = list(its) if isinstance(its, (list, tuple)) else [its]
            while len(its) < nt - nb:
                its.append(its[-1] + 1)
            assert len(its) == nt - nb and all(nb + n - 7 <= i <= nb + n - 2 for n, i in enumerate(its)) and n1 >= 1, (n1, n2, its)
            self.pol.append((n1, n2, its))
            self.nt.append(nt)
        self.dyn = self.o["dyn"]
        if self.dyn:
            NS, LK = self.dyn
            self.cl0 = NS - LK - 1
            assert not sp and all(its[NS - 1 - n1 - n2] == self.cl0 and its[-1] == 15 - LK for n1, n2, its in self.pol) and self.cl0 >= 1
        self.n2min = min(p[1] for p in self.pol)
        req = []
        for (n1, n2, its), nt in zip(self.pol, self.nt):
            r = [63] * nt
            for tile in range(n1, nt):
                i = tile - 1
                a0 = (1 if self.o["peel"] else -1) if tile < n1 + n2 else its[tile - n1 - n2]
                r[i] = sum(10 if j in its else 5 for j in range(a0 + 1, i + 1)) + 5 * max(0, n1 + n2 - 1 - tile)
                if a0 < 0:
                    r[i] -= 5
            if self.o["peel"]:
                assert n1 >= 3 and its[0] >= 2 and not sp
            elif self.o["early"]:
                r[0] = min(r[0], 5 * n2 + (5 if 0 in its else 0))
            if self.dyn:
                r = r[:self.cl0] + [5 * (self.dyn[1] - 1)]
            req.append(r)
        low = sorted({x for r in req for x in r if x < self.o["vmw"]})
        self.wlo = low[0] if low else 0
        best = None
        for hi in low or [0]:
            cost = sum(x - (hi if x >= hi else self.wlo) for r in req[:4] for x in r[1:] if x < self.o["vmw"])
            if best is None or cost < best[0]:
                best = (cost, hi)
        self.whi = best[1]
        self.wmask = [sum(1 << (i + 1) for i, x in enumerate(r) if x < self.o["vmw"]) for r in req]
        self.wmask2 = [sum(1 << (i + 1) for i, x in enumerate(r) if x < self.whi) for r in req]
        self.req = req
        self.L = []
        self.tailblocks = []

    def a(self, s):
        self.L.extend(s.split("\n"))

    def entry(self, label, nwg):
        a = self.a
        a(f".globl {label}\n.p2align 8\n.type {label},@function\n{label}:")
        a("s_load_dwordx8 s[4:11], s[0:1], 0")
        a("s_load_dwordx4 s[12:15], s[0:1], 32")
        a(f"s_cmp_ge_u32 s2, {nwg}")
        a(f"s_cbranch_scc1 L_end_{label}")
        if self.o["stamp"]:
            a("s_memrealtime s[100:101]")
        a("v_lshlrev_b32 v3, 7, v0")
        if self.o["cwarm"]:
            a("s_getpc_b64 s[96:97]")
            a(f"v_min_u32 v2, L_slow-{label}, v3")
            a("global_load_dword v120, v2, s[96:97]")
        if self.o["wtouch"]:
            a(f"s_lshr_b32 s{S_T0}, s2, 3")
            a(f"s_mul_i32 s{S_T0}, s{S_T0}, {162*128}")
            a(f"v_add_u32 v3, s{S_T0}, v3")
            a(f"v_min_u32 v3, {WBYTES-128}, v3")
            a(f"s_and_b32 s{S_T0}, s2, {8 - self.o['px']}")
            a("s_waitcnt lgkmcnt(0)")
            a(f"s_cbranch_scc1 L_nt_{label}")
            a("global_load_dword v121, v3, s[6:7]")
            a(f"L_nt_{label}:")
        a("v_lshrrev_b32 v1, 6, v0")
        a(f"v_and_b32 v{V_LANE}, 63, v0")
        a(f"v_readfirstlane_b32 s{S_WAVE}, v1")

    def mb_addr(self, d, t):
        a = self.a
        a(f"s_lshr_b32 s{d}, s2, 4")
        a(f"s_and_b32 s{t}, s2, 7")
        a(f"s_lshl3_add_u32 s{d}, s{d}, s{t}")
        a(f"s_and_b32 s{t}, s2, 8")
        a(f"s_lshl4_add_u32 s{d}, s{t}, s{d}")
        a(f"s_lshl_b32 s{d}, s{d}, 7")
        a(f"s_add_u32 s{d}, s{d}, {MB_OFF}")

    def ptouch(self):
        if self.o["ptouch"]:
            a = self.a
            a("s_mov_b64 exec, 1")
            a(f"s_mov_b32 s{S_T0}, {MB_OFF + 0x8000}")
            a(f"buffer_load_dword v122, off, {sr(S_WS,4)}, s{S_T0} sc1")
            a(f"buffer_load_dword v123, off, {sr(S_DBG,4)}, 0 sc1")
            a("s_mov_b64 exec, -1")

    def srds(self, which):
        for srd, p, size in ((S_W, 6, WBYTES), (S_X, 4, XBYTES), (S_WS, 14, WSBYTES), (S_B, 8, 1152), (S_OUT, 10, 0), (S_DBG, 12, 256)):
            if srd in which:
                self.a(f"s_mov_b32 s{srd+2}, {size}")
                self.a(f"s_mov_b32 s{srd+3}, 0x20000")
                self.a(f"s_mov_b32 s{srd}, s{p}")
                self.a(f"s_and_b32 s{srd+1}, s{p+1}, 0xffff")

    def entry_wait(self, first=None):
        lst = (S_W, S_X, S_WS, S_B, S_OUT, S_DBG)
        if first is not False:
            self.a("s_waitcnt lgkmcnt(0)")
        self.srds(lst if first is None else (lst[:1] if first else lst[1:]))

    def producer(self, sfx, generic):
        a = self.a
        ws = self.o["ws"]
        W, Z, K = 8, 24, 28
        OA, NB_, IX = 36, 44, 48
        VL, VA, VI, VM0, VM1, VSEL, CJ = 50, 51, 52, 53, 54, 55, 56
        F0, F1, H, U, T0, T1, T2, VLI, VA2 = 58, 59, 60, 61, 62, 63, 64, 65, 66
        C = S_MASK
        SEL = S_MASK + 16
        CNT = S_MASK + 27
        ln = f"v{V_LANE}"
        a(f"s_and_b32 s{C}, s{S_TASK}, 3")
        a(f"s_lshr_b32 s{C+1}, s{S_TASK}, 2")
        a(f"s_sub_u32 s{C+2}, s{S_TASK}, 36")
        a(f"s_lshl_b32 s{C+3}, s{S_WAVE}, 4")
        a(f"s_lshl_b32 s{C+4}, s{C+2}, 1")
        a(f"s_lshl_b32 s{C+5}, s{C}, 8")
        a(f"s_cmp_lt_u32 s{S_TASK}, 36")
        a(f"s_cselect_b32 s{C+4}, s{C+1}, s{C+4}")
        a(f"s_cselect_b32 s{C+5}, s{C+5}, 1024")
        a(f"s_cselect_b32 s{C+6}, 8, 73728")
        a(f"s_cselect_b32 s{C+7}, 32, 8")
        a(f"s_cselect_b32 s{C+8}, 16, 32")
        a(f"s_cselect_b32 s{C+9}, 128, 64")
        a(f"s_mul_i32 s{C+4}, s{C+4}, 73728")
        a(f"s_mul_i32 s{C+10}, s{S_WAVE}, 18432")
        a(f"v_and_b32 v{F0}, 1, {ln}")
        a(f"v_bfe_u32 v{F1}, {ln}, 1, 1")
        a(f"v_bfe_u32 v{H}, {ln}, 2, 2")
        a(f"v_bfe_u32 v{T0}, {ln}, 4, 1")
        a(f"v_lshrrev_b32 v{T1}, 5, {ln}")
        a(f"v_lshl_add_u32 v{VL}, v{F0}, 2, s{C+4}")
        a(f"v_mad_u32_u24 v{VL}, v{F1}, s{C+6}, v{VL}")
        a(f"v_mad_u32_u24 v{VL}, v{H}, s{C+7}, v{VL}")
        a(f"v_mad_u32_u24 v{VL}, v{T0}, s{C+8}, v{VL}")
        a(f"v_mad_u32_u24 v{VL}, v{T1}, s{C+9}, v{VL}")
        a(f"v_add_u32 v{VL}, s{C+5}, v{VL}")
        a(f"v_add_u32 v{VL}, s{C+10}, v{VL}")
        a(f"v_add_u32 v{T0}, 4608, v{VL}")
        a(f"v_add_u32 v{T1}, 9216, v{VL}")
        a(f"v_add_u32 v{T2}, 13824, v{VL}")
        if not generic:
            self.entry_wait(first=True)
        for q in range(4):
            for j in range(4):
                a(f"buffer_load_dword v{W+4*q+j}, v{(VL, T0, T1, T2)[q]}, {sr(S_W,4)}, 0 offen offset:{1152*j}")
        if not generic:
            self.stamp(8)
            self.entry_wait(first=False)
            self.ptouch()
        a(f"s_mul_i32 s{C+4}, s{C}, 9")
        a(f"s_add_u32 s{C+4}, s{C+4}, s{C+1}")
        a(f"s_mul_i32 s{C+5}, s{C+4}, 9")
        a(f"s_mul_i32 s{C+6}, s{C+2}, 18")
        a(f"s_add_u32 s{C+6}, s{C+6}, 8")
        a(f"s_lshl_b32 s{C+7}, s{C+4}, 2")
        a(f"s_add_u32 s{C+7}, s{C+7}, s{S_WAVE}")
        a(f"s_lshl_b32 s{C+8}, s{C+2}, 2")
        a(f"s_add_u32 s{C+8}, s{C+8}, s{S_WAVE}")
        a(f"s_cmp_eq_u32 s{S_TASK}, 40")
        a(f"s_cselect_b32 s{C+9}, 0x100000, 9")
        a(f"s_cmp_lt_u32 s{S_TASK}, 36")
        a(f"s_cselect_b32 s{C+5}, s{C+5}, s{C+6}")
        a(f"s_cselect_b32 s{C+6}, 2, 81")
        a(f"s_cselect_b32 s{C+9}, 1, s{C+9}")
        a(f"s_cselect_b32 s{C+7}, s{C+7}, s{C+8}")
        a(f"s_mov_b32 s{C+8}, {I_OFF}")
        a(f"s_cselect_b32 s{C+8}, s{C+8}, {I8_OFF}")
        a(f"s_mov_b32 s{C+10}, {R1_OFF}")
        a(f"s_cselect_b32 s{C+10}, s{C+10}, {R8_OFF}")
        a(f"s_cselect_b32 s{C+11}, 16, 4")
        a(f"s_cselect_b32 s{C+12}, 4, 64")
        a(f"s_cselect_b32 s{C+13}, 12, 11")
        a(f"s_cselect_b32 s{C+14}, 1, 0x8001")
        a(f"v_lshrrev_b32 v{U}, 4, {ln}")
        a(f"v_lshlrev_b32 v{T0}, 1, v{F0}")
        a(f"v_lshl_add_u32 v{H}, v{H}, 2, v{T0}")
        a(f"v_add_u32 v{T0}, v{H}, v{F1}")
        a(f"v_mul_u32_u24 v{VA}, s{C+6}, v{U}")
        a(f"v_add_lshl_u32 v{VA}, v{VA}, s{C+5}, 6")
        a(f"v_add3_u32 v{VA}, v{VA}, v{T0}, s{C+3}")
        a(f"v_lshl_add_u32 v{VA}, v{VA}, 4, s{S_BASE}")
        a(f"s_lshl_b32 s{C+9}, s{C+9}, 10")
        a(f"v_add_u32 v{VA2}, s{C+9}, v{VA}")
        a(f"s_lshl_b32 s{C+4}, s{C+7}, 8")
        a(f"s_add_u32 s{C+4}, s{C+4}, s{C+8}")
        a(f"s_add_u32 s{C+4}, s{C+4}, s{S_BASE}")
        a(f"v_mul_u32_u24 v{VI}, s{C+11}, v{T0}")
        a(f"v_mad_u32_u24 v{VI}, v{U}, s{C+12}, v{VI}")
        a(f"v_add_u32 v{VI}, s{C+4}, v{VI}")
        if not generic:
            a(f"s_lshr_b32 s{C+4}, s{C+7}, 2")
            a(f"s_lshl_b32 s{C+4}, s{C+4}, 8")
            a(f"s_add_u32 s{C+10}, s{C+10}, s{C+4}")
            a(f"s_add_u32 s{C+10}, s{C+10}, s{C+3}")
            a(f"s_lshl_b32 s{C+4}, s{C+3}, 1")
            a(f"s_add_u32 s{C+4}, s{C+4}, s{C+14}")
            a(f"v_lshl_add_u32 v{T0}, v{U}, 1, v{F1}")
            a(f"v_lshlrev_b32 v{T0}, s{C+13}, v{T0}")
            a(f"v_lshl_add_u32 v{VM0}, v{H}, 7, v{T0}")
            a(f"v_add_u32 v{VM0}, s{C+4}, v{VM0}")
            a(f"v_and_b32 v{T0}, 12, {ln}")
            a(f"v_mad_u32_u24 v{T0}, v{T0}, 3, {ln}")
            a(f"v_lshl_add_u32 v{VLI}, v{T0}, 2, s{C+10}")
            if self.dyn:
                a(f"s_lshl_b32 s{C+4}, s{S_TASK}, 2")
                a(f"s_add_u32 s{C+4}, s{C+4}, s{S_WAVE}")
                a(f"s_lshl_b32 s{C+4}, s{C+4}, 7")
                a(f"s_add_u32 s{C+4}, s{C+4}, {CNT_OFF}")
                a(f"v_writelane_b32 v{VLI}, s{C+4}, 16")
            if self.o["sig"] == 3:
                self.mb_addr(C + 4, C + 5)
                a(f"v_writelane_b32 v{VLI}, s{C+4}, 17")
            a(f"s_mov_b32 s{CNT}, 0")
            a(f"s_mov_b32 s{SEL+9}, 0x05060100")
            a(f"s_mov_b32 s{SEL+10}, 0xffff")
        a(f"v_mov_b32 v{VSEL}, 0x05040100")
        a(f"v_mov_b32 v{T0}, 0x03020706")
        a(f"v_cmp_eq_u32 vcc, 1, v{F1}")
        CJ, EF, EO = 68, 76, 82
        for n in range(8):
            a(f"v_mov_b32 v{CJ+n}, {hex(0x0f0a0500 | 0x01010101 * (((n >> 1) << 4) | ((n & 1) << 7)))}")
        a(f"v_cndmask_b32 v{VSEL}, v{VSEL}, v{T0}, vcc")
        if not generic:
            for r in range(3):
                a(f"v_mov_b64 {vr(EF+2*r,2)}, 0")
            a(f"v_mov_b32 v{EO}, 0")
        for c in range(2):
            for j in range(4):
                a(f"s_mov_b32 s{SEL+4*c+j}, {hex(((5+2*c) << 24) | ((4+2*c) << 16) | ((5+2*c) << 8) | j)}")
        a(f"s_mov_b32 s{SEL+8}, 0x05060102")
        if generic:
            a(f"s_cmp_lg_u32 s{S_MODE}, 0")
        sw = "src0_sel:WORD_1 src1_sel:WORD_1"
        for q in range(4):
            a(f"s_waitcnt vmcnt({12-4*q + (2 if self.o['ptouch'] and not generic else 0)})")
            if q in (0, 3) and not generic:
                self.stamp(9 + q // 3)
            for c in range(2):
                n = 2 * q + c
                for j in range(4):
                    a(f"v_perm_b32 v{Z+j}, v{W+4*q+j}, v{CJ+n}, s{SEL+4*c+j}")
                a(f"v_max3_f32 v{K}, |v{Z}|, |v{Z+1}|, |v{Z+2}|")
                a(f"v_med3_f32 v{K+1}, |v{Z}|, |v{Z+1}|, |v{Z+2}|")
                a(f"v_min3_f32 v{K+2}, |v{Z}|, |v{Z+1}|, |v{Z+2}|")
                a(f"v_med3_f32 v{K+4}, v{K}, v{K+1}, |v{Z+3}|")
                a(f"v_med3_f32 v{K+5}, v{K+1}, v{K+2}, |v{Z+3}|")
                a(f"v_max_f32 v{K+3}, v{K}, |v{Z+3}|")
                if generic:
                    a(f"v_cmp_eq_u32_sdwa vcc, v{K+5}, v{K+4} {sw}")
                    a(f"s_cbranch_scc0 L_rb{n}{sfx}")
                    a(f"v_min_f32 v{K+2}, v{K+2}, |v{Z+3}|")
                    a(f"v_cndmask_b32 v{K+3}, 0, v{K+5}, vcc")
                    a(f"v_cmp_eq_u32_sdwa vcc, v{K+2}, v{K+4} {sw}")
                    a("s_nop 1")
                    a(f"v_cndmask_b32 v{K+4}, 0, v{K+2}, vcc")
                    a(f"L_rb{n}{sfx}:")
                a(f"v_perm_b32 v{OA+4*c+q}, v{K+3}, v{K+4}, s{SEL+8}")
                nb = NB_ + 2 * c + (q >> 1)
                if q & 1 == 0:
                    a(f"v_bfi_b32 v{nb}, 3, v{K+4}, v{K+3}")
                else:
                    a(f"v_bfi_b32 v{K+3}, 3, v{K+4}, v{K+3}")
                    a(f"v_lshlrev_b32 v{K+3}, 4, v{K+3}")
                    a(f"v_bfi_b32 v{nb}, 15, v{nb}, v{K+3}")
                if not generic:
                    a(f"v_cmpx_eq_u32_sdwa vcc, v{K+5}, v{K+4} {sw}")
                    if n >= 3:
                        a(f"v_or_b32 v{EO}, v{EO}, v{EF+4}")
                    if n >= 2:
                        a(f"v_mov_b64 {vr(EF+4,2)}, {vr(EF+2,2)}")
                    if n >= 1:
                        a(f"v_mov_b64 {vr(EF+2,2)}, {vr(EF,2)}")
                    a(f"v_mov_b32 v{EF}, v{K+5}")
                    a(f"v_min_f32 v{EF+1}, v{K+2}, |v{Z+3}|")
                    a("s_mov_b64 exec, -1")
        x2 = "quad_perm:[2,3,0,1] row_mask:0xf bank_mask:0xf"
        a("s_mov_b32 vcc_lo, 0x33333333")
        a("s_mov_b32 vcc_hi, 0x33333333")
        for d in range(4):
            a(f"v_cndmask_b32_dpp v{Z+d}, v{OA+4+d}, v{OA+d}, vcc {x2}")
        a("s_not_b64 vcc, vcc")
        a(f"buffer_store_dwordx4 {vr(Z,4)}, v{VA}, {sr(S_WS,4)}, 0 offen {ws}")
        for d in range(4):
            a(f"v_cndmask_b32_dpp v{OA+4+d}, v{OA+d}, v{OA+4+d}, vcc {x2}")
        a(f"s_mov_b32 s{C+4}, 0x0c0c0400")
        a(f"s_mov_b32 s{C+5}, 0x04000c0c")
        a(f"buffer_store_dwordx4 {vr(OA+4,4)}, v{VA2}, {sr(S_WS,4)}, 0 offen {ws}")
        a(f"v_perm_b32 v{IX}, v{NB_+1}, v{NB_}, s{C+4}")
        a(f"v_perm_b32 v{IX+1}, v{NB_+3}, v{NB_+2}, s{C+5}")
        a(f"v_or_b32 v{IX}, v{IX}, v{IX+1}")
        a("s_nop 1")
        a(f"v_mov_b32_dpp v{IX+1}, v{IX} quad_perm:[2,3,0,1] row_mask:0xf bank_mask:0xf")
        a(f"v_perm_b32 v{IX}, v{IX+1}, v{IX}, v{VSEL}")
        a(f"buffer_store_dword v{IX}, v{VI}, {sr(S_WS,4)}, 0 offen {ws}")
        if not generic:
            self.stamp(11)
            a(f"v_cmp_lt_u32 {sr(C+2,2)}, s{SEL+10}, v{EO}")
            a(f"L_emit{sfx}:")
            a(f"v_cmp_lt_u32 vcc, s{SEL+10}, v{EF}")
            a(f"v_cmp_eq_u32_sdwa {sr(C,2)}, v{EF+1}, v{EF} {sw}")
            a(f"v_perm_b32 v{T1}, v{EF}, v{VM0}, s{SEL+9}")
            a(f"v_bfe_u32 v{T0}, v{EF}, 2, 4")
            a(f"v_and_b32 v{T2}, 0x80, v{EF}")
            a(f"v_lshl_add_u32 v{T1}, v{T0}, 1, v{T1}")
            a(f"v_mbcnt_lo_u32_b32 v{T0}, vcc_lo, 0")
            a(f"v_mbcnt_hi_u32_b32 v{T0}, vcc_hi, v{T0}")
            a(f"v_add_u32 v{T1}, v{T2}, v{T1}")
            a(f"v_add_u32 v{T0}, s{CNT}, v{T0}")
            a(f"s_bcnt1_i32_b64 s{C+4}, vcc")
            a(f"s_add_u32 s{CNT}, s{CNT}, s{C+4}")
            a(f"v_cmp_gt_u32 {sr(C+4,2)}, 15, v{T0}")
            a(f"v_and_b32 v{T2}, 12, v{T0}")
            a(f"v_mad_u32_u24 v{T0}, v{T2}, 3, v{T0}")
            a(f"v_lshl_add_u32 v{T0}, v{T0}, 2, s{C+10}")
            a(f"s_and_b64 {sr(C,2)}, {sr(C,2)}, vcc")
            a(f"s_and_b64 exec, {sr(C+4,2)}, vcc")
            a(f"s_cbranch_execz L_emit1{sfx}")
            a(f"buffer_store_dword v{T1}, v{T0}, {sr(S_WS,4)}, 0 offen {ws}")
            a(f"L_emit1{sfx}:")
            a(f"s_mov_b64 exec, {sr(C,2)}")
            a(f"v_mov_b32 v{EF}, v{EF+1}")
            a(f"v_mov_b32 v{EF+1}, 0")
            a(f"s_not_b64 exec, exec")
            a(f"v_mov_b64 {vr(EF,2)}, {vr(EF+2,2)}")
            a(f"v_mov_b64 {vr(EF+2,2)}, {vr(EF+4,2)}")
            a(f"v_mov_b64 {vr(EF+4,2)}, 0")
            a("s_mov_b64 exec, -1")
            a(f"v_or3_b32 v{T0}, v{EF}, v{EF+2}, v{EF+4}")
            a(f"v_cmp_lt_u32 vcc, s{SEL+10}, v{T0}")
            a(f"s_cmp_lg_u64 {sr(C+2,2)}, 0")
            a(f"s_cselect_b32 s{C+4}, 99, s{CNT}")
            a(f"s_cmp_gt_u32 s{C+4}, 15")
            a(f"s_cselect_b32 s{C+4}, -1, 0")
            a(f"s_min_u32 s{C+5}, s{CNT}, 15")
            a(f"s_cbranch_vccnz L_emit{sfx}")
            a(f"s_lshl_b32 s{C+5}, -1, s{C+5}")
            a(f"v_mov_b32 v{T0}, s{C+4}")
            a(f"s_and_b32 exec_lo, s{C+5}, {0xffff | (0x10000 if self.dyn else 0) | (0x20000 if self.o['sig'] == 3 else 0)}")
            a("s_mov_b32 exec_hi, 0")
            a(f"buffer_store_dword v{T0}, v{VLI}, {sr(S_WS,4)}, 0 offen {ws}")
            a("s_mov_b64 exec, -1")
            self.stamp(12)
        a("s_waitcnt vmcnt(0)")
        if not generic:
            self.stamp(13)

    def lane_setup(self):
        a = self.a
        ln = f"v{V_LANE}"
        T0, T1, T2 = 72, 73, 74
        a(f"v_lshrrev_b32 v{T0}, 3, {ln}")
        a(f"v_and_b32 v{T1}, 7, {ln}")
        a(f"v_xor_b32 v{T1}, v{T1}, v{T0}")
        a(f"v_mul_u32_u24 v{T0}, 1152, v{T0}")
        a(f"s_and_b32 s{S_T0}, s{S_WAVE}, 1")
        a(f"s_mul_i32 s{S_T0}, s{S_T0}, 9216")
        a(f"s_lshr_b32 s{S_T1}, s{S_WAVE}, 1")
        a(f"s_lshl_b32 s{S_T1}, s{S_T1}, 7")
        a(f"s_add_u32 s{S_T0}, s{S_T0}, s{S_T1}")
        a(f"v_lshl_add_u32 v{T0}, v{T1}, 4, v{T0}")
        a(f"v_add_u32 v{V_DMA}, s{S_T0}, v{T0}")
        a(f"s_lshl_b32 s{S_M0B}, s{S_WAVE}, 10")
        if self.o["split"]:
            a(f"s_bitcmp1_b32 s2, 0")
            a(f"s_cselect_b32 s{S_XOFF}, 256, 1")
            a(f"s_add_u32 s{S_XOFF}, s{S_XOFF}, s2")
            a(f"s_mul_i32 s{S_XOFF}, s{S_XOFF}, {TB}")
        else:
            a(f"s_mul_i32 s{S_XOFF}, s2, {TB}")
        a(f"s_mov_b32 s{S_OOFF}, s{S_XOFF}")

    def lane_setup2(self):
        a = self.a
        ln = f"v{V_LANE}"
        T0, T1, T2 = 72, 73, 74
        a(f"v_and_b32 v{T0}, 15, {ln}")
        a(f"v_lshrrev_b32 v{T1}, 4, {ln}")
        a(f"v_and_b32 v{T2}, 7, {ln}")
        a(f"v_xor_b32 v{T2}, v{T2}, v{T1}")
        a(f"v_lshlrev_b32 v{T2}, 4, v{T2}")
        a(f"v_lshl_add_u32 v{V_RD0}, v{T0}, 7, v{T2}")
        a(f"v_xor_b32 v{V_RD1}, 64, v{V_RD0}")
        a(f"s_mul_i32 s{S_C0}, s{S_WAVE}, {WV_SZ}")
        a(f"s_add_u32 s{S_C0}, s{S_C0}, {L_WV}")
        a(f"v_lshl_add_u32 v{V_TAB}, v{T1}, 4, s{S_C0}")
        a(f"v_and_b32 v{T2}, 14, {ln}")
        a(f"v_mul_u32_u24 v{V_ST}, 1152, v{T2}")
        a(f"v_and_b32 v{T2}, 1, {ln}")
        a(f"v_lshl_add_u32 v{V_ST}, v{T2}, 4, v{V_ST}")
        a(f"v_lshl_add_u32 v{V_ST}, v{T1}, 5, v{V_ST}")
        a(f"s_lshl_b32 s{S_T0}, s{S_WAVE}, 8")
        a(f"v_add_u32 v{V_ST}, s{S_T0}, v{V_ST}")
        if self.o["hack"] == "q4":
            a(f"v_lshrrev_b32 v{T2}, 3, {ln}")
            a(f"v_mul_u32_u24 v{V_ST}, 2304, v{T2}")
            a(f"v_and_b32 v{T2}, 7, {ln}")
            a(f"v_lshl_add_u32 v{V_ST}, v{T2}, 4, v{V_ST}")
            a(f"v_add_u32 v{V_ST}, s{S_T0}, v{V_ST}")
        a(f"s_lshl_b32 s{S_T0}, s{S_WAVE}, 5")
        a(f"s_add_u32 s{S_T0}, s{S_T0}, 1024")
        if self.o["bperm"]:
            a(f"v_lshrrev_b32 v{T0}, 2, {ln}")
            a(f"v_and_b32 v{T1}, 3, {ln}")
            a(f"v_lshl_add_u32 v{V_BP}, v{T1}, 4, v{T0}")
            a(f"v_lshlrev_b32 v{V_BP}, 2, v{V_BP}")
        else:
            a(f"v_lshlrev_b32 v{V_BP}, 2, {ln}")
        a(f"v_mul_u32_u24 v{V_ST8}, 1152, v{T0}")
        a(f"v_lshl_add_u32 v{V_ST8}, v{T1}, 3, v{V_ST8}")
        a(f"v_add_u32 v{V_ST8}, s{S_T0}, v{V_ST8}")
        a(f"s_mov_b32 s{S_EVEN}, 0x55555555")
        a(f"s_mov_b32 s{S_EVEN+1}, 0x55555555")
        a(f"s_mov_b32 s{S_ODD}, 0xaaaaaaaa")
        a(f"s_mov_b32 s{S_ODD+1}, 0xaaaaaaaa")

    def dma_setup(self):
        a = self.a
        a(f"s_lshr_b32 s{S_T0}, s{S_WAVE}, 1")
        a(f"s_lshl_b32 s{S_T1}, s{S_T0}, 11")
        a(f"s_sub_u32 s{S_M05}, {16384-896}, s{S_T1}")
        a(f"s_lshl_b32 s{S_T1}, s{S_T0}, 7")
        a(f"s_add_u32 s{S_XOFF5}, s{S_XOFF}, 128")
        a(f"s_sub_u32 s{S_XOFF5}, s{S_XOFF5}, s{S_T1}")
        a(f"s_sub_u32 s{S_HALF}, s{S_T0}, 1")
        a(f"s_sub_u32 s{S_HALF+1}, 0, s{S_T0}")
        a(f"s_mov_b32 s{S_M0W}, s{S_M0B}")
        a(f"s_mov_b32 s{S_XINC}, {256*TB}")
        if self.o["split"]:
            a(f"s_bitcmp1_b32 s2, 0")
            a(f"s_cselect_b32 s{S_XINC}, s{S_XINC}, {-TB}")
            a(f"s_cselect_b32 s{S_NT}, 15, 17")
        else:
            a(f"s_mov_b32 s{S_NT}, 16")
        a(f"s_mov_b32 s{S_OINC2}, s{S_XINC}")

    def dma_advance(self, first=False):
        x = [] if first else [f"s_add_u32 s{S_XOFF}, s{S_XOFF}, {256*TB}", f"s_add_u32 s{S_XOFF5}, s{S_XOFF5}, {256*TB}",
                              f"s_add_u32 s{S_M0B}, s{S_M0B}, s{S_CTB}"]
        return x + [f"s_cmp_ge_u32 s{S_M0B}, {NB*TBL}", f"s_cselect_b32 s{S_M0B}, s{S_M0W}, s{S_M0B}"]

    def dma_tile(self):
        a = self.a
        for j in range(5):
            a(f"s_add_u32 m0, s{S_M0B}, {3840*j if j < 4 else 's%d' % S_M05}")
            a("s_nop 0" if j < 4 else f"s_mov_b64 exec, {sr(S_HALF,2)}")
            a(f"buffer_load_dwordx4 v{V_DMA}, {sr(S_X,4)}, s{S_XOFF if j < 4 else S_XOFF5} offen offset:{256*j if j < 4 else 896} {self.o['ld']} lds")
        a("s_mov_b64 exec, -1")

    def prefetch(self, sh, lab="L_pf"):
        a = self.a
        a(f"s_bfe_u32 s{S_NB0}, s{S_DMASK}, {hex(4 << 16 | sh)}")
        if sh == 20 and self.o["pfw"]:
            a(f"s_cmp_ge_u32 s{S_NB0}, 6")
            a(f"s_cselect_b32 s{S_T1}, {self.o['pfw'][0]*TBL}, 0")
        if sh != 20 and self.n2min == 0:
            a(f"s_cbranch_scc0 {lab}_e")
        a(f"{lab}:")
        self.dma_tile()
        if sh == 20 and self.o["pfw"]:
            k, n = self.o["pfw"]
            a(f"s_cmp_ge_u32 s{S_M0B}, s{S_T1}")
            a(f"s_cbranch_scc1 {lab}_n")
            a(f"s_waitcnt vmcnt({n})")
            a(f"{lab}_n:")
        a(f"s_add_u32 s{S_XOFF5}, s{S_XOFF5}, s{S_XINC}")
        a(f"s_add_u32 s{S_M0B}, s{S_M0B}, {TBL}")
        a(f"s_add_u32 s{S_XOFF}, s{S_XOFF}, s{S_XINC}")
        a(f"s_mov_b32 s{S_XINC}, {256*TB}")
        a(f"s_sub_u32 s{S_NB0}, s{S_NB0}, 1")
        a(f"s_cmp_lg_u32 s{S_NB0}, 0")
        a(f"s_cbranch_scc1 {lab}")
        a(f"{lab}_e:")

    def bias_load(self):
        a = self.a
        ln = f"v{V_LANE}"
        a(f"v_and_b32 v80, 3, {ln}")
        a(f"v_bfe_u32 v81, {ln}, 2, 2")
        a(f"v_bfe_u32 v82, {ln}, 4, 1")
        a("v_lshlrev_b32 v81, 3, v81")
        a("v_lshl_add_u32 v81, v80, 5, v81")
        a("v_lshl_add_u32 v81, v82, 7, v81")
        a(f"s_lshl_b32 s{S_T0}, s{S_WAVE}, 8")
        a(f"v_add_u32 v81, s{S_T0}, v81")
        a(f"s_lshl_b32 s{S_T0}, s{S_WAVE}, 5")
        a(f"s_add_u32 s{S_T0}, s{S_T0}, 1024")
        a(f"v_lshl_add_u32 v80, v80, 3, s{S_T0}")
        a(f"v_cmp_gt_u32 vcc, 32, {ln}")
        a("s_nop 1")
        a("v_cndmask_b32 v80, v80, v81, vcc")
        a(f"buffer_load_dwordx2 v[110:111], v80, {sr(S_B,4)}, 0 offen")

    def tables_init(self):
        a = self.a
        ln = f"v{V_LANE}"
        a(f"v_lshl_add_u32 v109, {ln}, 4, s{S_C0}")
        a(f"v_lshl_add_u32 v89, {ln}, 2, s{S_C0}")
        for r in range(4):
            a(f"v_mov_b32 v{76+r}, 0")
        a("v_mov_b32 v90, 0xdddddddd")
        a("ds_write_b128 v109, v[76:79]")
        for r in range(7):
            a(f"ds_write_b32 v89, v90 offset:{O_IDX+256*r}")
        a(f"s_lshl_b32 s{S_T0}, s{S_WAVE}, 2")
        a(f"s_add_u32 s{S_T0}, s{S_T0}, {L_PL + 256}")
        a(f"v_mov_b32 v88, s{S_T0}")
        a("ds_write_b32 v88, v76")

    def bias_store(self):
        return ["v_lshlrev_b32 v114, 16, v110", "v_and_b32 v115, 0xffff0000, v110", "v_lshlrev_b32 v116, 16, v111",
                "v_and_b32 v117, 0xffff0000, v111", "s_mov_b32 exec_hi, 15", f"ds_write_b128 v109, v[114:117] offset:{O_BIAS}",
                "s_mov_b64 exec, -1"]

    def wload_list(self, VA, VI8, pairs=False):
        wl = self.o["wl"]
        G = []
        so = S_C0 + 6
        cur = None
        for sp in range(5):
            g = []
            if sp == 4:
                g.append(f"s_mov_b32 s{so}, 4096")
            g.append(f"buffer_load_dword v{V_I8+sp}, v{VI8}, {sr(S_WS,4)}, {'s%d' % so if sp == 4 else '0'} offen offset:{1024*(sp%4)} {wl}")
            G.append(g)
        order = [(s, t) for s in range(9) for t in [None] + list(range(9))]
        if pairs:
            order = order[:70] + [(7, None), (8, None)] + [(s, t) for t in PEEL_T for s in (7, 8)]
        for s, t in order:
            if t is None:
                G.append([f"s_mov_b32 s{so-1}, {1024*s}",
                          f"buffer_load_dwordx4 {vr(V_I+4*s,4)}, v{VA+1}, {sr(S_WS,4)}, s{so-1} offen {wl}"])
            else:
                f = 9 * s + t
                g = []
                if cur != f >> 2:
                    cur = f >> 2
                    g.append(f"s_mov_b32 s{so}, {4096*cur}")
                g.append(f"buffer_load_dwordx4 {afrag(s,t)}, v{VA}, {sr(S_WS,4)}, s{so} offen offset:{1024*(f&3)} {wl}")
                G.append(g)
        return G

    def waddr(self, VA, VI8):
        a = self.a
        ln = f"v{V_LANE}"
        a(f"s_mul_i32 s{S_T0}, s{S_WAVE}, 82944")
        a(f"s_add_u32 s{S_T0}, s{S_T0}, s{S_BASE}")
        a(f"v_lshl_add_u32 v{VA}, {ln}, 4, s{S_T0}")
        a(f"s_mul_i32 s{S_T0}, s{S_WAVE}, 9216")
        a(f"s_add_u32 s{S_T0}, s{S_T0}, s{S_BASE}")
        a(f"s_add_u32 s{S_T0}, s{S_T0}, {I_OFF}")
        a(f"v_lshl_add_u32 v{VA+1}, {ln}, 4, s{S_T0}")
        a(f"s_lshl_b32 s{S_T0}, s{S_WAVE}, 6")
        a(f"s_add_u32 s{S_T0}, s{S_T0}, s{S_BASE}")
        a(f"s_add_u32 s{S_T0}, s{S_T0}, {I8_OFF}")
        a(f"v_and_b32 v{VI8}, 15, {ln}")
        a(f"v_lshl_add_u32 v{VI8}, v{VI8}, 2, s{S_T0}")
        a(f"v_lshrrev_b32 v{VI8+1}, 4, {ln}")
        a(f"v_lshl_add_u32 v{VI8}, v{VI8+1}, 8, v{VI8}")

    def build(self):
        a = self.a
        o = self.o
        ln = f"v{V_LANE}"
        wl = o["wl"]
        VA, VI8 = (112 if o["peel"] else 104), 106
        E, TT, RK, ST = 8, 24, 40, 56
        T0, T1, T2, T3 = 72, 73, 74, 75
        WARM = 76
        ONE, VW, KB, VST, RX, VWARM, CM, CV, TM, TBS, HI, AB, BM, VH, VK, LO = range(88, 104)
        SW = S_C0
        a(f"s_mul_i32 s{S_T0}, s{S_WAVE}, 2304")
        a(f"s_add_u32 s{S_T0}, s{S_T0}, {R1_OFF}")
        a(f"v_and_b32 v{T1}, 60, {ln}")
        a(f"v_mad_u32_u24 v{T1}, v{T1}, 3, {ln}")
        a(f"v_lshl_add_u32 v{T0}, v{T1}, 4, s{S_T0}")
        a(f"s_mov_b32 s{S_T0}, {R8_OFF - 36*64}")
        a(f"v_lshl_add_u32 v{T1}, v{T1}, 4, s{S_T0}")
        a(f"v_lshrrev_b32 v{T2}, 2, {ln}")
        a(f"v_cmp_gt_u32 vcc, 36, {ln}")
        a(f"v_lshlrev_b32 v{KB}, 11, v{T2}")
        a(f"v_subrev_u32 v{T2}, 9, v{T2}")
        a(f"v_lshlrev_b32 v{T2}, 12, v{T2}")
        a(f"v_cndmask_b32 v{T0}, v{T1}, v{T0}, vcc")
        a(f"v_cndmask_b32 v{KB}, v{T2}, v{KB}, vcc")
        a(f"s_lshl_b32 s{S_T0}, s{S_WAVE}, 12")
        a(f"s_add_u32 s{S_T0}, s{S_T0}, 0x8001")
        a(f"v_mov_b32 v{ONE}, 1")
        a(f"v_mov_b32 v{CM}, 0xf001")
        a(f"v_mov_b32 v{CV}, s{S_T0}")
        a(f"v_cndmask_b32 v{CM}, v{CM}, v{ONE}, vcc")
        a(f"v_cndmask_b32 v{CV}, v{CV}, v{ONE}, vcc")
        a(f"v_cndmask_b32 v{TM}, 0, 28, vcc")
        a(f"v_cndmask_b32 v{TBS}, 32, 0, vcc")
        a(f"v_add_u32 v{TBS}, s{SW}, v{TBS}")
        a(f"v_cmp_gt_u32 vcc, 56, {ln}")
        a(f"v_mov_b32 v{T1}, 0x40000000")
        tw = o["warm"] == 2
        a(f"s_lshr_b32 s{S_T0}, s2, {4 if tw else 3}")
        a(f"s_lshl_b32 s{S_T0}, s{S_T0}, 2")
        a(f"s_add_u32 s{S_T0}, s{S_T0}, s{S_WAVE}")
        a(f"s_mul_i32 s{S_T0}, s{S_T0}, {6144 if tw else 3072}")
        a(f"v_cndmask_b32 v{T0}, v{T1}, v{T0}, vcc")
        if tw:
            a(f"v_min_u32 v{VWARM}, 47, {ln}")
            a(f"v_lshl_add_u32 v{VWARM}, v{VWARM}, 7, s{S_T0}")
        else:
            a(f"v_lshl_add_u32 v{VWARM}, {ln}, 4, s{S_T0}")
        self.waddr(VA, VI8)
        a(f"v_and_b32 v{T2}, 15, {ln}")
        a(f"v_and_b32 v{T1}, 7, {ln}")
        a(f"v_lshlrev_b32 v{BM}, 1, v{T1}")
        a(f"v_lshlrev_b32 v{BM}, v{BM}, v{ONE}")
        a(f"v_lshlrev_b32 v{T1}, 4, v{T1}")
        a(f"v_lshl_add_u32 v{RX}, v{T2}, 7, v{T1}")
        a(f"v_lshl_or_b32 v{RX}, v{RX}, 16, v{RX}")
        a(f"v_lshrrev_b32 v{HI}, 5, {ln}")
        a(f"v_bfe_u32 v{AB}, {ln}, 3, 2")
        a(f"v_lshl_add_u32 v{AB}, v{AB}, 6, s{SW}")
        a(f"v_lshl_add_u32 v{VH}, {ln}, 1, s{SW}")
        a(f"v_lshrrev_b32 v{VK}, 4, {ln}")
        a(f"v_lshl_add_u32 v{VK}, v{VK}, 3, s{SW}")
        a(f"v_lshrrev_b32 v{LO}, 1, {ln}")
        a(f"v_lshlrev_b32 v{LO}, 5, v{LO}")
        a(f"s_mov_b32 s{S_LINK}, 0")
        pre = [f"buffer_load_dwordx4 {vr(E+4*r,4)}, v{T0}, {sr(S_WS,4)}, 0 offen offset:{64*r} {wl}" for r in range(4)]
        warm = [[f"buffer_load_dwordx4 {vr(WARM+4*r,4)}, v{VWARM}, {sr(S_WS,4)}, 0 offen offset:{1024*r} {wl}"] for r in range(3)] if o["warm"] else []
        if tw:
            warm = [[f"buffer_load_dword v{WARM}, v{VWARM}, {sr(S_WS,4)}, 0 offen {wl}"]]
        C = []
        g = lambda *x: C.append(list(x))

        def rank(r):
            m = S_MASK + 2 * r
            return [f"v_and_b32 v{T1}, v{CM}, v{E+r}", f"v_lshrrev_b32 v{T0}, 10, v{E+r}", f"v_cmp_eq_u32 {sr(m,2)}, v{T1}, v{CV}",
                    f"v_and_or_b32 v{TT+r}, v{T0}, v{TM}, v{TBS}",
                    f"s_mov_b64 exec, {sr(m,2)}", f"ds_add_rtn_u32 v{RK+r}, v{TT+r}, v{ONE}", "s_mov_b64 exec, -1"]

        def place(r):
            m = S_MASK + 2 * r
            return [f"v_add_u32 v{T1}, v{RK+r}, v{ST+r}", f"v_and_b32 v{T0}, 0x87e, v{E+r}", f"v_lshl_add_u32 v{T1}, v{T1}, 1, s{SW}",
                    f"v_add_u32 v{T0}, v{KB}, v{T0}", f"s_andn2_b64 exec, {sr(m,2)}, {sr(S_BAD,2)}",
                    f"ds_write_b16_d16_hi v{T1}, v{E+r} offset:{O_X}", f"ds_write_b16 v{T1}, v{T0} offset:{O_K}",
                    f"ds_write_b16 v{T1}, v{E+r} offset:{O_M}", "s_mov_b64 exec, -1"]
        g("@WAIT_E")
        g(f"v_cmp_ne_u32 {sr(S_BAD,2)}, 0, v{E+15}", f"v_cmp_ne_u32 {sr(S_MORE,2)}, 0, v{E+8}")
        for r in range(8):
            g(*rank(r))
        g(f"s_cmp_lg_u64 {sr(S_MORE,2)}, 0", "s_cbranch_scc1 L_more1", "L_more1b:", f"ds_read_b32 v{T0}, v{VW}", f"v_mov_b32 v{T1}, 0")
        self.tailblocks.append("\n".join(["L_more1:"] + [x for r in range(8, 15) for x in rank(r)] + ["s_branch L_more1b"]))
        g("s_waitcnt lgkmcnt(0)", f"s_mov_b64 vcc, {sr(S_EVEN,2)}",
          f"v_cndmask_b32_dpp v{T1}, v{T0}, v{T1}, vcc quad_perm:[0,0,2,2] row_mask:0xf bank_mask:0xf",
          f"v_add_u32 v{VST}, v{LO}, v{T1}", f"v_add_u32 v{T1}, v{T0}, v{T1}", f"v_cmp_lt_u32 vcc, 32, v{T1}",
          f"s_or_b32 s{S_BAD}, s{S_BAD}, s{S_BAD+1}", f"s_and_b32 s{S_T0}, vcc_lo, 0x1ff", f"s_or_b32 s{S_T0}, s{S_T0}, s{S_BAD}",
          "s_cbranch_scc1 L_greedy", "L_greedyb:")
        x = ["L_greedy:", f"s_mov_b32 s{S_T0}, 0", f"s_mov_b32 s{S_LINK}, 1"]
        for t in range(9):
            lo = 32 * (t >> 1)
            x += [f"v_readlane_b32 s{S_T1}, v{T0}, {t}", f"s_max_u32 s{S_T0}, s{S_T0}, {lo}",
                  f"v_writelane_b32 v{VST}, s{S_T0}, {t}", "s_nop 1", f"s_add_u32 s{S_T0}, s{S_T0}, s{S_T1}",
                  f"s_cmp_gt_u32 s{S_T0}, {lo + (64 if t & 1 else 32)}", f"s_cselect_b32 s{S_BAD}, 1, s{S_BAD}"]
        x += [f"s_cmp_lg_u32 s{S_BAD}, 0", f"s_cselect_b64 {sr(S_BAD,2)}, -1, 0",
              f"v_mov_b32 v{T1}, {L_PL + 256}", f"s_mov_b64 exec, {sr(S_BAD,2)}", f"ds_write_b32 v{T1}, v{ONE}", "s_mov_b64 exec, -1",
              "s_branch L_greedyb"]
        self.tailblocks.append("\n".join(x))
        g(*[f"ds_bpermute_b32 v{ST+r}, v{TT+r}, v{VST}" for r in range(8)])
        for r in range(8):
            g(*([f"s_waitcnt lgkmcnt({(7, 9, 11, 13, 15, 15, 15, 15)[r] if r else 7})"] if r < 8 else []), *place(r))
        g(f"s_cmp_lg_u64 {sr(S_MORE,2)}, 0", "s_cbranch_scc1 L_more2", "L_more2b:",
          *[f"ds_read_u16 v{E+r}, v{VH} offset:{O_M+128*r}" for r in range(3)],
          *[f"ds_read2_b64 {vr(V_AD+4*j,4)}, v{VK} offset0:{(O_K+64*j)//8} offset1:{(O_K+64*j+32)//8}" for j in range(5)])
        self.tailblocks.append("\n".join(["L_more2:"] + [f"ds_bpermute_b32 v{ST+r}, v{TT+r}, v{VST}" for r in range(8, 15)] + ["s_waitcnt lgkmcnt(0)"]
                                         + [x for r in range(8, 15) for x in place(r)] + ["s_branch L_more2b"]))
        for r in range(3):
            g(*(["s_waitcnt lgkmcnt(5)"] if r == 0 else []),
              f"v_lshrrev_b32 v{T0}, 12, v{E+r}", f"v_cmp_ne_u32 vcc, 0, v{E+r}", f"v_min_u32 v{T0}, 8, v{T0}", f"v_add3_u32 v{T0}, v{T0}, v{HI}, {2*r}",
              f"v_lshlrev_b32 v{T1}, 4, v{T0}", f"v_lshrrev_b32 v{T0}, 1, v{T0}")
            g(f"v_lshlrev_b32 v{T1}, v{T1}, v{BM}", f"v_lshl_add_u32 v{T0}, v{T0}, 8, v{AB}", f"v_bfe_u32 v{T2}, v{E+r}, 7, 4",
              f"v_lshl_add_u32 v{T0}, v{T2}, 2, v{T0}", "s_mov_b64 exec, vcc", *(["s_mov_b32 exec_hi, 0"] if r == 2 else []),
              f"ds_xor_b32 v{T0}, v{T1} offset:{O_IDX}", "s_mov_b64 exec, -1")
        g(*[f"ds_read_b32 v{V_IR+r}, v{VW} offset:{O_IDX+256*r}" for r in range(7)])
        for j in range(5):
            g(*(["s_waitcnt lgkmcnt(10)"] if j == 0 else []), *[f"v_xor_b32 v{V_AD+4*j+q}, v{RX}, v{V_AD+4*j+q}" for q in range(4)])
        g(*self.bias_store())
        return pre, C, warm + self.wload_list(VA, VI8, o['peel'])

    def emit_build(self, pre, C, G):
        a = self.a
        for x in pre:
            a(x)
        nl = 0
        G = list(G)
        G0 = list(G)

        def load(n=1):
            nonlocal nl
            for _ in range(n):
                if G:
                    for x in G.pop(0):
                        a(x)
                    nl += 1
        acc = 0
        for grp in C:
            if grp[0] == "@WAIT_E":
                load(self.o["l0"])
                a(f"s_waitcnt vmcnt({nl})")
                continue
            if grp[0] in ("s_waitcnt lgkmcnt(0)", "s_waitcnt lgkmcnt(7)", "s_waitcnt lgkmcnt(5)"):
                load(self.o["lw"])
            for x in grp:
                a(x)
            acc += len(grp)
            while acc >= self.o["lper"]:
                acc -= self.o["lper"]
                load()
        if self.o["peel"]:
            self.issued, self.pending = G0[:len(G0) - len(G)], G
            return
        load(len(G) - self.o["ltail"])
        assert len(G) == self.o["ltail"]
        self.late_loads = [x for grp in G for x in grp]

    @staticmethod
    def regs(txt):
        k, body = txt[0], txt[1:].strip("[]")
        lo, hi = (body.split(":") + [body])[:2]
        return [(256 if k == "a" else 0) + r for r in range(int(lo), int(hi) + 1)]

    def emit_line(self, ops, vm, hist=()):
        a = self.a
        lds, hist = [], list(hist)

        def put(op):
            a(op.text)
            hist.append(op)
        for op in ops:
            touched = op.rd | op.wr
            for q, name, cap in ((lds, "lgkmcnt", 15), (vm, "vmcnt", self.o["vcap"])):
                hit = [i for i, w in enumerate(q) if w & touched]
                if hit:
                    n = min(len(q) - 1 - hit[-1], cap)
                    put(Op(f"s_waitcnt {name}({n})", "salu"))
                    del q[:len(q) - n]
            need = 0
            for d, p in enumerate(reversed(hist[-9:])):
                ws = sum(int(x.text[6:]) + 1 if x.text.startswith("s_nop") else 1 for x in hist[len(hist) - d:])
                r = 0
                if p.kind == "mx" and op.kind != "mx" and (p.wr & touched):
                    r = 8
                if p.kind in ("valu", "dpp") and op.kind in ("mx", "dpp") and (p.wr & op.rd):
                    r = 2
                if p.kind == "st" and (p.rd & op.wr):
                    r = 2
                need = max(need, r - ws)
            if need > 0:
                put(Op(f"s_nop {need-1}", "salu"))
            put(op)
            if op.kind == "lds":
                lds.append(op.wr)
            if op.kind in ("ld", "st"):
                vm.append(op.wr)

    def peel(self):
        o = self.o
        AX = V_BR
        acc = lambda m, t: (AX if m == 0 else V_ACC) + 4 * t
        Ba, Bb, Bc, Bd = (V_B + 8 * k for k in range(4))
        dst = lambda g: set(self.regs(g[-1].split()[1].rstrip(",")))
        vm = [dst(g) for g in self.issued]
        loads = [[Op(x, "salu") for x in g[:-1]] + [Op(g[-1], "ld", wr=dst(g))] for g in self.pending]

        def M(m, s, t, b):
            ir, h = aidx(s, t)
            return Op(f"v_smfmac_f32_16x16x64_bf16 {vr(acc(m,t),4)}, {afrag(s,t)}, {vr(b,8)}, v{ir}" + (" abid:1" if h else ""), "mx",
                      rd=list(rng(acc(m, t), 4)) + list(rng(b, 8)) + self.regs(afrag(s, t)) + [ir], wr=rng(acc(m, t), 4))

        def R(m, j, t):
            c, b = j + t, (Bc, Bd)[m]
            return Op(f"v_smfmac_f32_16x16x64_bf16 {vr(acc(m,t),4)}, {vr(V_X,4)}, {vr(b,8)}, v{V_IR+(c>>1)}" + (" abid:1" if c & 1 else ""), "mx",
                      rd=list(rng(acc(m, t), 4)) + list(rng(b, 8)) + list(rng(V_X, 4)), wr=rng(acc(m, t), 4))

        def B(m, s, b):
            return [Op(f"ds_read_b128 {vr(b+4*h,4)}, v{V_RD0+h} offset:{2048*s+TBL*m}", "lds", rd=[V_RD0 + h], wr=rng(b + 4 * h, 4)) for h in range(2)]

        def addr(j, b, r, base):
            ad = V_AD + 4 * j + (b >> 1)
            return Op(f"v_add_u32_sdwa v{r}, s{base}, v{ad} dst_sel:DWORD dst_unused:UNUSED_PAD src0_sel:DWORD src1_sel:WORD_{b&1}", "valu", rd=[ad], wr=[r])
        ops = [Op(f"ds_read_b32 v{V_X}, v{V_X}", "lds", rd=[V_X], wr=[V_X])] + B(0, 0, Ba)
        for m in range(2):
            ops += [Op(f"ds_read_b128 {vr(acc(m,t),4)}, v{V_TAB} offset:{O_BIAS+64*t}", "lds", rd=[V_TAB], wr=rng(acc(m, t), 4)) for t in range(9)]
            ops += loads.pop(0)
        ops += [Op(f"v_readfirstlane_b32 s{S_T0}, v{V_X}", "valu", rd=[V_X]), addr(0, 0, Bc, S_BUF), Op("s_nop 2", "salu"),
                Op(f"s_cmp_lg_u32 s{S_T0}, 0", "salu"), Op("s_cbranch_scc1 L_slow", "salu")]
        ngap = 126 + 26
        rho, credit = len(loads) / (ngap - o["ptail"]), 0.0

        def gap(mx, D=(), V=()):
            nonlocal credit
            ops.append(mx)
            credit += rho
            while credit >= 1 and loads:
                credit -= 1
                ops.extend(loads.pop(0))
            ops.extend(D)
            ops.extend(V)
        for s in range(7):
            for t in range(9):
                D, V = [], []
                if t == 0:
                    D += B(1, s, Bb)
                if s < 5:
                    if t == 8:
                        D.append(Op(f"ds_read_b128 {vr(V_X,4)}, v{V_TAB} offset:{O_X+64*s}", "lds", rd=[V_TAB], wr=rng(V_X, 4)))
                    else:
                        D += [Op(f"ds_read_u16 v{Bd+t}, v{Bc+t} offset:{TBL}", "lds", rd=[Bc + t], wr=[Bd + t]),
                              Op(f"ds_read_u16 v{Bc+t}, v{Bc+t}", "lds", rd=[Bc + t], wr=[Bc + t])]
                        if t < 7:
                            V.append(addr(s, t + 1, Bc + t + 1, S_BUF))
                elif t in (2, 3):
                    D.append(B(1, s + 2, Bc if s == 5 else Bd)[t - 2])
                gap(M(0, s, t, Ba), D, V)
            for t in range(9):
                gap(M(1, s, t, Bb), B(0, s + 1, Ba)[t:t + 1] if t < 2 else [])
            if s < 5:
                rs = [R(m, s, t) for m in (1, 0) for t in RT[s]]
                for n, x in enumerate(rs):
                    gap(x, [], [addr(s + 1, 0, Bc, S_BUF)] if n == len(rs) - 1 and s < 4 else [])
        assert not loads
        ops += B(0, 8, Bb)
        pk = lambda t, h: (AX + 32 + h) if t == 8 else AX + 2 * t + h
        cvt = lambda t: [Op(f"v_cvt_pk_bf16_f32 v{pk(t,h)}, v{acc(0,t)+2*h}, v{acc(0,t)+2*h+1}", "valu",
                            rd=[acc(0, t) + 2 * h, acc(0, t) + 2 * h + 1], wr=[pk(t, h)]) for h in range(2)]
        dpp = "quad_perm:[1,0,3,2] row_mask:0xf bank_mask:0xf"
        stp = o["st"] if o["stp"] is None else o["stp"]

        def exch(v):
            p0, p1, d0 = AX + 8 * v, AX + 8 * v + 4, (V_X, AX + 16)[v]
            x = []
            for half in range(2):
                for d in range(4):
                    if half == 0:
                        x.append(Op(f"v_cndmask_b32_dpp v{d0+d}, v{p1+d}, v{p0+d}, vcc {dpp}", "dpp", rd=[p0 + d, p1 + d], wr=[d0 + d]))
                    else:
                        x.append(Op(f"v_cndmask_b32_dpp v{p1+d}, v{p0+d}, v{p1+d}, vcc {dpp}", "dpp", rd=[p0 + d, p1 + d], wr=[p1 + d]))
                src = d0 if half == 0 else p1
                fl = stp[2 * v + half] if isinstance(stp, (tuple, list)) else stp
                x += [Op(f"buffer_store_dwordx4 {vr(src,4)}, v{V_ST}, {sr(S_OUT,4)}, s{S_OOFF} offen offset:{1152*half+128*v} {fl}", "st",
                         rd=list(rng(src, 4)) + [V_ST]), Op(f"s_mov_b64 vcc, {sr((S_ODD, S_EVEN)[half],2)}", "salu")]
            return x
        p8 = pk(8, 0)
        rdadv = [Op(f"v_add_u32 v{V_RD0+h}, {2*TBL}, v{V_RD0+h}", "valu", rd=[V_RD0 + h], wr=[V_RD0 + h]) for h in range(2)]
        after = {0: rdadv,
                 1: [Op(f"ds_bpermute_b32 v{p8+h}, v{V_BP}, v{p8+h}", "lds", rd=[V_BP, p8 + h], wr=[p8 + h]) for h in range(2)] if o["bperm"] else [],
                 3: [Op(f"buffer_store_dwordx2 {vr(p8,2)}, v{V_ST8}, {sr(S_OUT,4)}, s{S_OOFF} offen {o['st8']}", "st", rd=[p8, p8 + 1, V_ST8])],
                 5: exch(0)[:6], 6: exch(0)[6:], 7: [addr(0, b, V_BR + b, S_BUFN) for b in range(4)],
                 8: [addr(0, b, V_BR + b, S_BUFN) for b in range(4, 8)]}
        for n, t in enumerate(PEEL_T):
            ops += [M(0, 7, t, Ba), M(0, 8, t, Bb)]
            if n:
                ops += cvt(PEEL_T[n - 1])
            ops += after.get(n, [])
        ops += cvt(PEEL_T[-1]) + exch(1)
        self.emit_line(ops, vm)

    def slow_path(self, K):
        a = self.a
        o = self.o
        VA, VI8 = 104, 106
        a("L_slow:")
        a("s_waitcnt vmcnt(0) lgkmcnt(0)")
        a(f"s_mov_b32 s{S_MODE}, 0")
        a("L_sm:")
        a(f"s_lshl_b32 s{S_BASE}, s2, 1")
        a(f"s_add_u32 s{S_BASE}, s{S_BASE}, s{S_MODE}")
        a(f"s_add_u32 s{S_BASE}, s{S_BASE}, {PRIV0}")
        a(f"s_mul_i32 s{S_BASE}, s{S_BASE}, {COPY}")
        a(f"s_mov_b32 s{S_TASK}, 0")
        a("L_st:")
        self.producer("g", True)
        a(f"s_add_u32 s{S_TASK}, s{S_TASK}, 1")
        a(f"s_cmp_lt_u32 s{S_TASK}, {NTASK}")
        a("s_cbranch_scc1 L_st")
        a(f"s_add_u32 s{S_MODE}, s{S_MODE}, 1")
        a(f"s_cmp_lt_u32 s{S_MODE}, 2")
        a("s_cbranch_scc1 L_sm")
        self.lane_setup()
        self.dma_setup()
        a(f"s_mov_b32 s{S_OUT+2}, {XBYTES}")
        a(f"s_mov_b32 s{S_X+2}, {XBYTES}")
        a(f"s_mov_b32 s{S_IT}, 0")
        a("L_stile:")
        a("s_barrier")
        self.dma_tile()
        for t in range(9):
            a(f"ds_read_b128 {vr(V_ACC+4*t,4)}, v{V_TAB} offset:{O_BIAS+64*t}")
        a(f"s_mov_b32 s{S_MODE}, 0")
        a("L_spass:")
        a(f"s_lshl_b32 s{S_BASE}, s2, 1")
        a(f"s_add_u32 s{S_BASE}, s{S_BASE}, s{S_MODE}")
        a(f"s_add_u32 s{S_BASE}, s{S_BASE}, {PRIV0}")
        a(f"s_mul_i32 s{S_BASE}, s{S_BASE}, {COPY}")
        self.waddr(VA, VI8)
        for grp in self.wload_list(VA, VI8):
            for x in grp:
                a(x)
        a("s_waitcnt vmcnt(0)")
        a("s_barrier")
        for s in range(9):
            a(f"ds_read_b128 {vr(V_B,4)}, v{V_RD0} offset:{2048*s}")
            a(f"ds_read_b128 {vr(V_B+4,4)}, v{V_RD1} offset:{2048*s}")
            a("s_waitcnt lgkmcnt(0)")
            for t in range(9):
                ir, h = aidx(s, t)
                a(f"v_smfmac_f32_16x16x64_bf16 {vr(V_ACC+4*t,4)}, {afrag(s,t)}, {vr(V_B,8)}, v{ir}" + (" abid:1" if h else ""))
            a("s_nop 7")
        a(f"s_add_u32 s{S_MODE}, s{S_MODE}, 1")
        a(f"s_cmp_lt_u32 s{S_MODE}, 2")
        a("s_cbranch_scc1 L_spass")
        for t in range(7):
            for h in range(2):
                a(f"v_cvt_pk_bf16_f32 v{V_P+2*t+h}, v{V_ACC+4*t+2*h}, v{V_ACC+4*t+2*h+1}")
        a(f"s_mov_b64 vcc, {sr(S_EVEN,2)}")
        self.emit_epi(self.assemble_loop(False, "")[2])
        for r in (S_XOFF, S_XOFF5, S_OOFF):
            a(f"s_add_u32 s{r}, s{r}, s{S_XINC}")
        a(f"s_mov_b32 s{S_XINC}, {256*TB}")
        a(f"s_add_u32 s{S_IT}, s{S_IT}, 1")
        a(f"s_cmp_lt_u32 s{S_IT}, s{S_NT}")
        a("s_cbranch_scc1 L_stile")
        a("s_branch L_fin")

    def loop_ops(self, links, dma, clm=False):
        o = self.o
        acc = lambda t: rng(V_ACC + 4 * t, 4)
        ch = o["chain"]
        bb = lambda s: V_P if (ch and s == 6) else V_B + 8 * BBUF[s]
        RBUF = [V_BR, V_BR + 8, V_BR, V_P + 8 if ch else V_P, V_BR + 8]
        rt = RT if links else [[0, 1], [2, 3], [4, 5], [6, 7], [8]]
        ng = [8, 8, 8, 8, 8 if links else o["ng4"]]

        def M(s, t):
            ir, h = aidx(s, t)
            return Op(f"v_smfmac_f32_16x16x64_bf16 {vr(V_ACC+4*t,4)}, {afrag(s,t)}, {vr(bb(s),8)}, v{ir}" + (" abid:1" if h else ""),
                      "mx", rd=list(acc(t)) + list(rng(bb(s), 8)), wr=acc(t), tag=("M", s, t))

        def R(j, t):
            c = j + t
            return Op(f"v_smfmac_f32_16x16x64_bf16 {vr(V_ACC+4*t,4)}, {vr(V_X,4)}, {vr(RBUF[j],8)}, v{V_IR+(c>>1)}" + (" abid:1" if c & 1 else ""),
                      "mx", rd=list(acc(t)) + list(rng(RBUF[j], 8)) + list(rng(V_X, 4)), wr=acc(t), tag=("R", j, t))
        seq = []
        for t in range(9):
            seq += [M(0, t), M(1, t)]
        if ch:
            for steps, order, rs in (((2, 3), o["ord1"], (0, 1)), ((4, 5, 6), o["ord2"], (2, 3, 4))):
                for n, t in enumerate(order):
                    seq += [M(s, t) for s in steps]
                    if t // 2 in rs and t % 2 == 0:
                        j = t // 2
                        assert t == 8 or order[n + 1] == t + 1
                        seq += [R(j, t)] + ([R(j, t - 1)] if links and j else []) + ([R(j, t + 1)] if t < 8 else [])
        else:
            for s in range(2, 7):
                seq += [M(s, t) for t in range(9)]
        for t in range(9):
            seq += [M(7, t), M(8, t)]
        if ch:
            rpos = [min(i for i, x in enumerate(seq) if x.tag[:2] == ("R", j)) for j in range(5)]
        else:
            rpos = list(o["rposl"] if links else o["rpos"])
            for j in range(5):
                for n, t in enumerate(rt[j]):
                    seq.insert(rpos[j] + n, R(j, t))
        N = len(seq)
        pos = {x.tag: i for i, x in enumerate(seq)}
        BAR = rpos[4] + len(rt[4]) - 1
        c0 = N - 15 - BAR
        assert c0 == (4 if ch else 0)
        self.drain = rpos[4] - 1
        T = lambda g: (g - BAR - 1) % N
        first = lambda s: T(min(pos[("M", s, t)] for t in range(9)))
        lastu = lambda s: max(pos[("M", s, t)] for t in range(9))
        LEAD = o["lead"]
        ST = [[] for _ in range(N)]
        S = [[] for _ in range(N)]
        D = [[] for _ in range(N)]
        V = [[] for _ in range(N)]
        keep = lambda op: (dma or op.tag != "dma") and (clm or op.tag != "clm")

        def pdst(t, h):
            return V_P8 + h if t == 8 else V_P + 2 * t + h
        dq, vq = [], []
        for t in range(9):
            for h in range(2):
                V[c0 + 2 * t + h].append(Op(f"v_cvt_pk_bf16_f32 v{pdst(t,h)}, v{V_ACC+4*t+2*h}, v{V_ACC+4*t+2*h+1}", "valu",
                                       rd=[V_ACC + 4 * t + 2 * h, V_ACC + 4 * t + 2 * h + 1], wr=[pdst(t, h)], tag="epi"))
            dq.append([Op(f"ds_read_b128 {vr(V_ACC+4*t,4)}, v{V_TAB} offset:{O_BIAS+64*t}", "lds", rd=[V_TAB], wr=acc(t), tag="pre"),
                       c0 + 2 * t + 2, c0 + 2 * t + 2, None])
        def stf(e):
            f = o["stc"] if clm else (o["st"] if dma else o["stn"])
            f = o["st"] if f is None else f
            return f[e] if isinstance(f, (tuple, list)) else f
        dpp = "quad_perm:[1,0,3,2] row_mask:0xf bank_mask:0xf"
        stg = [T(g) for g in o["stg"]]
        for v in range(2):
            p0, p1 = V_P + 8 * v, V_P + 8 * v + 4
            d0 = V_T if v == 0 else V_P
            for half in range(2):
                e = 2 * v + half
                for d in range(4):
                    if half == 0:
                        op = Op(f"v_cndmask_b32_dpp v{d0+d}, v{p1+d}, v{p0+d}, vcc {dpp}", "dpp", rd=[p0 + d, p1 + d], wr=[d0 + d], tag="epi")
                    else:
                        op = Op(f"v_cndmask_b32_dpp v{p1+d}, v{p0+d}, v{p1+d}, vcc {dpp}", "dpp", rd=[p0 + d, p1 + d], wr=[p1 + d], tag="epi")
                    vq.append([op, stg[e - 1] if e else c0 + 18, stg[e] - 4 + d, None])
                src = d0 if half == 0 else p1
                ST[stg[e]].append(Op(f"buffer_store_dwordx4 {vr(src,4)}, v{V_ST}, {sr(S_OUT,4)}, s{S_OOFF} offen offset:{1152*half+128*v} {stf(e)}",
                                     "st", rd=list(rng(src, 4)) + [V_ST], tag="epi"))
                ST[stg[e]].append(Op(f"s_mov_b64 vcc, {sr((S_ODD, S_EVEN)[half],2)}", "salu", tag="epi"))
        if o["bperm"]:
            for h in range(2):
                dq.append([Op(f"ds_bpermute_b32 v{V_P8+h}, v{V_BP}, v{V_P8+h}", "lds", rd=[V_BP, V_P8 + h], wr=[V_P8 + h], tag="epi"),
                           c0 + 18, stg[4] - LEAD - 2 + h, None])
        ST[stg[4]].append(Op(f"buffer_store_dwordx2 {vr(V_P8,2)}, v{V_ST8}, {sr(S_OUT,4)}, s{S_OOFF} offen {o['st8']}", "st",
                             rd=[V_P8, V_P8 + 1, V_ST8], tag="epi"))
        rl = lambda j: T(rpos[j] + len(rt[j]) - 1)
        free = [rl(2), 1, rl(0), stg[3 if ch else 2] + 1, rl(1)]
        for j in range(5):
            dl = T(rpos[j]) - LEAD - 1
            for b in range(ng[j]):
                r = RBUF[j] + b
                ad = V_AD + 4 * j + (b >> 1)
                av = Op(f"v_add_u32_sdwa v{r}, s{S_BUFN if j == 0 else S_BUF}, v{ad} dst_sel:DWORD dst_unused:UNUSED_PAD src0_sel:DWORD src1_sel:WORD_{b&1}",
                        "valu", rd=[ad], wr=[r], tag="pre" if j == 0 else "")
                gd = dl - o["gsp"] * (ng[j] - 1 - b)
                vq.append([av, free[j], (N - 2 - (7 - b)) if j == 0 else gd - 1, None])
                dq.append([Op(f"ds_read_u16 v{r}, v{r}", "lds", rd=[r], wr=[r], tag="pre"), 0, gd, None if j == 0 else av])
            dq.append([Op(f"ds_read_b128 {vr(V_X,4)}, v{V_TAB} offset:{O_X+64*j}", "lds", rd=[V_TAB], wr=rng(V_X, 4), tag="pre"),
                       0 if j == 0 else rl(j - 1), dl, None])
        prev = {0: None, 1: None, 2: 7, 3: 8, 4: 0, 5: 1, 6: 4, 7: 2, 8: 3}
        lastb = []
        for s in range(9):
            for h in range(2):
                op = Op(f"ds_read_b128 {vr(bb(s)+4*h,4)}, v{(V_RD0, V_RD1)[h]} offset:{2048*s}", "lds",
                        rd=[(V_RD0, V_RD1)[h]], wr=rng(bb(s) + 4 * h, 4), tag="pre")
                fs = first(s) if s < 7 else (T(rpos[4]) - 2 * (9 - s) if ch else T(pos[("M", s, 0)]))
                rel = 0 if prev[s] is None else T(lastu(prev[s]))
                if ch and s == 6:
                    rel = stg[2] + 1
                dq.append([op, rel, fs - LEAD - 2 + h, None])
                lastb.append(op)
        for h in range(2):
            vq.append([Op(f"v_add_u32 v{V_RD0+h}, s{S_DELTA}, v{V_RD0+h}", "valu", rd=[V_RD0 + h], wr=[V_RD0 + h]), 0, N - 2, lastb])
        sq = []
        dmag = [g + (self.drain - 70) * (g > 50) for g in o["dmag"]]
        assert all(b - a_ >= 2 for a_, b in zip(dmag, dmag[1:]))
        if not o["nodma"]:
            for j, g in enumerate(dmag):
                g = T(g)
                ld = f"buffer_load_dwordx4 v{V_DMA}, {sr(S_X,4)}, s{S_XOFF if j < 4 else S_XOFF5} offen offset:{256*j if j < 4 else 896} {o['ld']} lds"
                if j < 4:
                    D[g].append(Op(ld, "dma", rd=[V_DMA], tag="dma"))
                    S[g - 1].append(Op(f"s_add_u32 m0, s{S_M0B}, {3840*j}", "salu", tag="dma"))
                else:
                    D[g] += [Op(f"s_mov_b64 exec, {sr(S_HALF,2)}", "salu", tag="dma"), Op(ld, "dma", rd=[V_DMA], tag="dma"),
                             Op("s_mov_b64 exec, -1", "salu", tag="dma")]
                    S[g - 1].append(Op(f"s_add_u32 m0, s{S_M0B}, s{S_M05}", "salu", tag="dma"))
                    V[g] = None
        XV = [[] for _ in range(N)]
        if self.dyn:
            gl = T(o["mbg"] + self.drain - 70) - 1
            XV[T(0)].append(Op(f"v_mov_b32 v{V_C}, 1", "valu", wr=[V_C], tag="clm"))
            D[T(1)].append(Op(f"buffer_atomic_add v{V_C}, v{V_BP}, {sr(S_B,4)}, 0 offen sc0 sc1", "dma", rd=[V_BP], tag="clm"))
            assert not D[gl + 1] and not S[gl + 1] and max(stg) <= gl
            gw = gl + 1 if o["cwg"] is None else T(o["cwg"])
            assert gw not in stg and T(1) < gw <= gl + 1
            S[gw].append(Op(f"s_waitcnt vmcnt({sum(1 for g in stg if g < gw) + sum(1 for g in dmag if T(g) < gw)})", "salu", tag="clm"))
            if o["dwg"] is not None and dma and not clm:
                gw = T(o["dwg"])
                assert gw not in stg
                S[gw].append(Op(f"s_waitcnt vmcnt({sum(1 for g in stg if g < gw) + sum(1 for g in dmag if T(g) < gw)})", "salu"))
            D[gl + 1] += [Op(f"s_mov_b64 exec, {sr(S_W0,2)}", "salu", tag="clm"),
                          Op(f"ds_write_b32 v{V_RD0}, v{V_C} offset:{TB}", "lds", rd=[V_RD0], tag="clm"), Op("s_mov_b64 exec, -1", "salu", tag="clm")]
            V[gl + 1] = None
            D[0].append(Op(f"ds_read_b32 v{V_C}, v{V_RD0} offset:{TB}", "lds", rd=[V_RD0], wr=[V_C], tag="clm"))
            XV[LEAD + 1].append(Op(f"v_readfirstlane_b32 s{S_CL}, v{V_C}", "valu", rd=[V_C], tag="clm"))
        placed = {}
        for g in range(N - 1):
            if not D[g] and g != T(N - 1):
                c = [x for x in dq if x[1] <= g and (x[3] is None or placed.get(id(x[3]), N) < g) and x[2] - g <= o["eager"]]
                if c:
                    x = min(c, key=lambda x: x[2])
                    dq.remove(x)
                    D[g].append(x[0])
                    placed[id(x[0])] = g
                    if g > x[2] and o["verbose"]:
                        print("; late D", g - x[2], x[0].text, file=sys.stderr)
            if V[g] is None:
                V[g] = []
                continue
            cap = 2 if (ST[g] and "x4" in ST[g][0].text) else 1
            while len(V[g]) < cap:
                c = [x for x in vq if x[1] <= g and (x[3] is None or all(placed.get(id(y), N) <= g for y in x[3]))]
                if not c:
                    break
                x = min(c, key=lambda x: x[2])
                vq.remove(x)
                V[g].append(x[0])
                placed[id(x[0])] = g
                assert g <= x[2] or x[0].kind != "dpp", ("late", x[0].text)
        assert not dq and not vq, ([x[0].text for x in dq], [x[0].text for x in vq])
        for g in range(N):
            V[g] += XV[g]
        if self.dyn:
            rdup = max(placed[id(x)] for gl_ in V for x in gl_ if id(x) in placed and f"s{S_DELTA}," in x.text)
            assert rdup <= gl and gl + 1 < T(self.drain) and T(min(o["stg"])) > T(1)
        S[N - 1] += ([] if clm else [Op(f"s_waitcnt vmcnt({o['vmw']})", "salu")]) + [Op("s_barrier", "bar")]
        lastdma = T(dmag[4])
        la = max(placed[id(x)] for gl in V for x in gl if id(x) in placed and f"s{S_BUF}," in x.text)
        fn = min(placed[id(x)] for gl in V for x in gl if id(x) in placed and (f"s{S_BUFN}," in x.text or f"s{S_DELTA}," in x.text))
        sq = [([f"s_mov_b32 s{S_BUF}, s{S_BUFN}"], 0, 0),
              ([f"s_cmp_eq_u32 s{S_BUFN}, {(NB-1)*TBL}", f"s_cselect_b32 s{S_DELTA}, {-(NB-1)*TBL}, s{S_CTB}", f"s_add_u32 s{S_BUFN}, s{S_BUFN}, s{S_DELTA}"], c0 + 18, fn),
              ]
        if self.dyn:
            LK = self.dyn[1]
            sq.append((([] if clm else [f"s_mov_b32 s{S_OUT+2}, {XBYTES}"]) + [f"s_mov_b32 s{S_OOFF}, s{S_Q}"]
                       + [f"s_mov_b32 s{S_Q+k}, s{S_Q+k+1}" for k in range(LK - 1)]
                       + [f"s_mov_b32 s{S_Q+LK-1}, s{S_XOFF}" if clm else f"s_add_u32 s{S_Q+LK-1}, s{S_Q+LK-1}, {256*TB}"], stg[4] + 1, N - 2))
        else:
            sq.append(([f"s_mov_b32 s{S_OUT+2}, {XBYTES}", f"s_add_u32 s{S_OOFF}, s{S_OOFF}, s{S_OINC}", f"s_mov_b32 s{S_OINC}, s{S_OINC2}",
                        f"s_mov_b32 s{S_OINC2}, {256*TB}"], stg[4] + 1, N - 2))
        if not clm or o["trace"]:
            sq.append(([f"s_add_u32 s{S_IT}, s{S_IT}, 1"], c0 + 18, N - 2))
        if clm:
            ps = o["psh"]
            sq += [([f"s_add_u32 s{S_XOFF5}, s{S_XOFF}, s{S_K5}"], c0 + 18, lastdma - 2),
                   (self.dma_advance()[2:], lastdma + 1, N + 8),
                   ([f"s_lshr_b32 s{S_CT}, s{S_CL}, {ps}", f"s_mul_i32 s{S_CT}, s{S_CT}, {(256 - (1 << ps))*TB}", f"s_mul_i32 s{S_CT+1}, s{S_CL}, {TB}",
                     f"s_add_u32 s{S_CT}, s{S_CT}, s{S_CB}", f"s_add_u32 s{S_XOFF}, s{S_CT}, s{S_CT+1}"], LEAD + 2, T(N - 1) - 2),
                   ([f"s_cmp_lt_u32 s{S_CL}, {(16 - self.dyn[0]) << ps}"], T(N - 1) - 1, T(N - 1) - 1)]
        else:
            if dma:
                sq += [(self.dma_advance(), lastdma + 1, N + 12)]
            sq.append(([f"s_bitcmp1_b32 s{S_DMASK if dma else S_NMASK}, s{S_IT}"], T(N - 1) - 1, T(N - 1) - 1))
        G = lambda A: [[x for x in A[T(g)] if keep(x)] for g in range(N)]
        return seq, G(ST), G(S), G(D), G(V), [(x, (lo + BAR + 1), (hi + BAR + 1)) for x, lo, hi in sq], BAR

    def assemble_loop(self, links, label, dma=True, clm=False):
        seq, ST, S, D, V, sq, BAR = self.loop_ops(links, dma, clm)
        N = len(seq)
        flat = []
        for rep in range(2):
            for g in range(N):
                a0 = rep * N + g
                flat.append((seq[g], a0 - 1))
                for x in ST[g]:
                    flat.append((x, a0 - 1))
                for x in D[g] + V[g]:
                    flat.append((x, a0))
        gap_of = {}
        k = 0
        lds = []
        for rep in range(2):
            for g in range(N):
                k += 1 + len(ST[g])
                for x in D[g] + V[g]:
                    if x.kind == "lds":
                        lds.append((k, rep * N + g))
                    k += 1
        done = -1
        W = {}
        minlead = 99
        for i, (op, wg) in enumerate(flat):
            touched = op.rd | op.wr
            need = -1
            for n, (k, g) in enumerate(lds):
                if k < i and n > done and (flat[k][0].wr & touched):
                    need = n
            if need >= 0:
                assert lds[need][1] < wg
                issued = [n for n, (k, g) in enumerate(lds) if g < wg]
                cnt = min(issued[-1] - need, 15)
                done = issued[-1] - cnt
                if wg >= N - 1 and wg < 2 * N - 1:
                    W[wg % N] = min(cnt, W.get(wg % N, 99))
                    if self.o["verbose"]:
                        print(f"; wait gap {wg % N} cnt {cnt} lead {wg - lds[need][1]} for {flat[lds[need][0]][0].text}", file=sys.stderr)
        W[self.drain] = 0
        if clm:
            mb = [g for g in range(N) if any("ds_write" in x.text for x in D[g])][0]
            assert not [g for g in W if mb < g < self.drain]
        for g, c in W.items():
            S[g].insert(0, Op(f"s_waitcnt lgkmcnt({c})", "salu"))
        if not self.o["drop"]:
            last = max(g for g in range(BAR + 1) if any(x.kind == "lds" for x in D[g]))
            assert any(W.get(g) == 0 for g in range(last + 1, BAR + 1)), "tile reads not drained at the barrier"

        def room(g, extra=0, resv=True):
            g %= N
            if g == BAR or g == N - 1 or any(x.kind == "dma" for x in D[g]):
                return False
            cap = 1 if D[g] else (2 if V[g] else 3)
            if label and not clm and resv:
                if g == self.drain - 1:
                    return False
                cap -= g == self.drain - 2
            return len(S[g]) + extra < cap and not ST[g]
        sccfree = lambda x: x.text.startswith(("s_waitcnt", "s_mov", "s_barrier"))
        locked = set()
        for texts, lo, hi in sq:
            g = lo
            n = 0
            while n < len(texts):
                chain = [texts[n]]
                if texts[n].startswith(("s_cmp", "s_bitcmp")):
                    while n + len(chain) < len(texts) and texts[n + len(chain)].startswith("s_cselect"):
                        chain.append(texts[n + len(chain)])
                while True:
                    assert g <= hi, ("no room", chain)
                    where, z = [], g
                    ok = room(g) and ((g % N) not in locked or chain[0].startswith("s_mov"))
                    cnt = {}
                    for k, tx in enumerate(chain):
                        while ok and not room(z, cnt.get(z, 0)):
                            z += 1
                            ok = z <= hi and all(sccfree(x) for x in S[z % N]) and (clm or z % N != self.drain - 1)
                        where.append(z)
                        cnt[z] = cnt.get(z, 0) + 1
                    if ok:
                        break
                    g += 1
                for z, tx in zip(where, chain):
                    S[z % N].append(Op(tx, "salu"))
                if len(chain) > 1:
                    locked.update(z % N for z in range(where[0], where[-1]))
                g = where[-1]
                n += len(chain)
        assert all(sccfree(x) for x in S[N - 1])
        if label and not clm:
            gz = self.drain - (2 if self.o["trace"] else 1)
            assert self.o["chain"] and (self.o["trace"] or (not (S[gz] or D[gz] or V[gz] or ST[gz]) and room(gz - 1, 0, False) and (gz - 1) not in locked))
            assert all(x.kind not in ("dma", "st") for g in range(gz, N) for x in D[g] + ST[g]) and max(self.o["stg"]) < min(self.o["dmag"])
            S[gz - (0 if self.o["trace"] else 1)].append(Op(f"s_bitcmp1_b32 s{S_WMASK}, s{S_IT}", "salu"))
            S[gz] += [Op(f"s_cbranch_scc1 {label}_w", "salu"), Op(f"{label}_wb:", "label")]
            self.tailblocks.append(f"{label}_w:\ns_bitcmp1_b32 s{S_WMASK2}, s{S_IT}\ns_waitcnt vmcnt({self.whi})\n"
                                   f"s_cbranch_scc0 {label}_wb\ns_waitcnt vmcnt({self.wlo})\ns_branch {label}_wb")
        if self.o["trace"]:
            g0 = max(g for g, c in W.items() if c == 0 and g <= BAR)
            S[g0 - 1] += [Op("s_memrealtime s[98:99]", "salu"), Op("s_memtime s[96:97]", "salu"), Op(f"s_add_u32 s95, s{S_IT}, 32", "salu")]
            V[g0] += [Op(f"s_mov_b32 m0, s{S_IT}", "salu"), Op("v_writelane_b32 v254, s98, m0", "salu"), Op("s_mov_b32 m0, s95", "salu"), Op("v_writelane_b32 v254, s96, m0", "salu")]
        body = []
        for g in range(N):
            body += [x for x in [seq[g]] if not any(d in x.text for d in self.o["dropm"])] + ST[g] + S[g] + D[g] + V[g]
            if self.o["pad"] and g % self.o["pad"] == 0 and g < N - 2:
                body.append(Op("s_nop 3", "salu"))
        body = [x for x in body if x.kind == "mx" or not any(d in x.text for d in self.o["drop"])]
        body.append(Op(f"s_cbranch_scc1 {label}", "salu"))
        if not self.o["drop"]:
            real = [x for x in body if x.kind != "label"]
            m = len(real)
            for i, op in enumerate(real):
                for d in range(1, 10):
                    p = real[(i - d) % m]
                    ws = d - 1
                    if p.kind == "mx" and op.kind != "mx" and (p.wr & (op.rd | op.wr)):
                        assert ws >= 8, ("mx->x", p.text, op.text, ws)
                    if p.kind in ("valu", "dpp") and op.kind == "mx" and (p.wr & op.rd):
                        assert ws >= 2, ("valu->mx", p.text, op.text, ws)
                    if p.kind in ("valu", "dpp") and op.kind == "dpp" and (p.wr & op.rd):
                        assert ws >= 2, ("valu->dpp", p.text, op.text, ws)
                    if p.kind == "st" and (p.rd & op.wr):
                        assert ws >= 2, ("st war", p.text, op.text, ws)
        pro = [x for g in range(N) for x in V[g] if x.tag == "pre" or (g > BAR and "sdwa" in x.text)] \
            + [x for g in range(BAR + 1, N) for x in D[g] if x.tag == "pre"]
        epi = [x for g in range(BAR) for x in ST[g] + D[g] + V[g] if x.tag == "epi"]
        return pro, body, epi

    def emit_epi(self, epi):
        cv = [x for x in epi if "v_cvt" in x.text]
        bp = [x for x in epi if x.kind == "lds"]
        rest = [x for x in epi if x not in cv and x not in bp]
        ops = rest[:6] + cv[2:] + bp + rest[6:12] + cv[:2] + rest[12:]
        if self.o["ste"] is not None:
            ops = [Op(x.text.replace(" sc1", " " + self.o["ste"]), x.kind, x.rd, x.wr) if x.kind == "st" else x for x in ops]
        hist = [Op("", "mx", wr=rng(V_ACC + 28, 8)), Op("", "valu", wr=rng(V_P, 14)), Op("", "salu")]
        self.emit_line(ops, [], hist)

    def main_loop(self, links, sfx):
        a = self.a
        pro, body, epi = self.assemble_loop(links, "L_loop" + sfx)
        if not self.o["peel"]:
            late = list(self.late_loads)
            for n, op in enumerate(pro):
                a(op.text)
                if n % 6 == 5:
                    while late and not late[0].startswith("buffer"):
                        a(late.pop(0))
                    if late:
                        a(late.pop(0))
            for x in late[:8]:
                a(x)
            a("s_waitcnt lgkmcnt(0)")
            a(f"v_readfirstlane_b32 s{S_T0}, v{V_T}")
            a("s_nop 3")
            a(f"s_cmp_lg_u32 s{S_T0}, 0")
            a("s_cbranch_scc1 L_slow")
            for x in late[8:]:
                a(x)
            if max(p[1] for p in self.pol):
                self.prefetch(24, "L_pf2" + sfx)
            for x in self.dma_advance(first=True):
                a(x)
            a(f"s_waitcnt vmcnt({(20 if self.o['early'] else 0) + 5 * self.n2min})")
            self.stamp(5)
            a(f"s_bitcmp1_b32 s{S_DMASK}, 0")
            a(f"s_cbranch_scc0 L_loopn{sfx}")
        a(".p2align 6")
        a(f"L_loop{sfx}:")
        for op in body:
            a(op.text)
        if self.o["wbl2"] is not None:
            a(f"s_lshr_b32 s{S_T0}, s2, 3")
            a(f"s_and_b32 s{S_T0}, s{S_T0}, {self.o['wbl2']}")
            a(f"s_or_b32 s{S_T0}, s{S_T0}, s{S_WAVE}")
            a(f"s_cbranch_scc1 L_loopn{sfx}")
            a("buffer_wbl2 sc1")
        if self.dyn:
            LK = self.dyn[1]
            a(f"s_cmp_lg_u32 s{S_IT}, {self.cl0}")
            a(f"s_cbranch_scc1 L_loopn{sfx}")
            a(".p2align 3")
            a(f"L_loopc{sfx}:")
            for op in self.assemble_loop(links, "L_loopc" + sfx, True, True)[1]:
                a(op.text)
            if self.o["trace"]:
                a(f"s_add_u32 s{S_NT}, s{S_IT}, {LK}")
                a(f"s_bfm_b32 s{S_NMASK}, s{S_NT}, 0")
                a(f"s_lshl_b32 s{S_WMASK}, {1 << (LK-1)}, s{S_IT}")
                a(f"s_lshl_b32 s{S_WMASK2}, {(1 << (LK-1)) if 5*(LK-1) < self.whi else 0}, s{S_IT}")
            else:
                a(f"s_mov_b32 s{S_IT}, 0")
                a(f"s_mov_b32 s{S_NT}, {LK}")
                a(f"s_mov_b32 s{S_NMASK}, {(1 << LK) - 1}")
                a(f"s_mov_b32 s{S_WMASK}, {(1 << (LK-1)) if 5*(LK-1) < self.o['vmw'] else 0}")
                a(f"s_mov_b32 s{S_WMASK2}, {(1 << (LK-1)) if 5*(LK-1) < self.whi else 0}")
            a(f"s_mov_b32 s{S_CL0}, -1")
            if self.o["stt"] is not None:
                keep, self.o["stn"] = self.o["stn"], self.o["stt"]
                for op in self.assemble_loop(links, "L_loopt" + sfx, False)[1][:-1]:
                    a(op.text)
                self.o["stn"] = keep
        if self.o["align2"]:
            a(".p2align 3")
        a(f"L_loopn{sfx}:")
        _, body, epi = self.assemble_loop(links, "L_loopn" + sfx, False)
        for op in body:
            a(op.text)
            if op.kind == "bar":
                a(f"L_loopn{sfx}_p3:")
        if self.dyn:
            a(f"s_cmp_eq_u32 s{S_IT}, s{S_CL0}")
            a(f"s_cbranch_scc1 L_loopc{sfx}")
        a(f"s_cmp_lt_u32 s{S_IT}, s{S_NT}")
        a(f"s_cbranch_scc1 L_loop{sfx}")
        self.emit_epi(epi)

    def loop_state(self):
        a = self.a
        pl = 2 if self.o["peel"] else 0
        a(f"s_mov_b32 s{S_IT}, {pl}")
        a(f"s_mov_b32 s{S_BUF}, 0")
        a(f"s_mov_b32 s{S_BUFN}, {pl*TBL}")
        if pl:
            a(f"s_mov_b32 s{S_OUT+2}, {XBYTES}")
        a(f"s_mov_b32 s{S_CTB}, {TBL}")
        a(f"s_mov_b32 s{S_OINC}, {256*TB if pl else 0}")
        a(f"s_mov_b64 vcc, {sr(S_EVEN,2)}")
        if self.dyn:
            NS, LK = self.dyn
            ps = self.o["psh"]
            a(f"s_andn2_b32 s{S_NMASK}, {(1 << self.cl0) - 1}, s{S_DMASK}")
            a(f"s_mov_b32 s{S_CL0}, {self.cl0}")
            a(f"s_add_u32 s{S_Q}, s{S_OOFF}, {pl*256*TB}")
            for k in range(1, LK):
                a(f"s_add_u32 s{S_Q+k}, s{S_Q+k-1}, {256*TB}")
            a(f"s_sub_u32 s{S_K5}, s{S_XOFF5}, s{S_XOFF}")
            a(f"s_lshr_b32 s{S_T0}, s2, {ps}")
            a(f"s_mul_i32 s{S_CB}, s{S_T0}, {TB << ps}")
            a(f"s_add_u32 s{S_CB}, s{S_CB}, {NS*256*TB}")
            a(f"s_lshl_b32 s{S_T0}, s{S_T0}, 7")
            a(f"s_add_u32 s{S_T0}, s{S_T0}, {CNT_OFF}")
            a(f"s_add_u32 s{S_B}, s{S_WS}, s{S_T0}")
            a(f"s_addc_u32 s{S_B+1}, s{S_WS+1}, 0")
            a(f"s_cmp_eq_u32 s{S_WAVE}, 0")
            a(f"s_cselect_b32 s{S_B+2}, 4, 0")
            a(f"s_cselect_b64 {sr(S_W0,2)}, 1, 0")
        else:
            a(f"s_bfm_b32 s{S_NMASK}, s{S_NT}, 0")
            a(f"s_andn2_b32 s{S_NMASK}, s{S_NMASK}, s{S_DMASK}")

    def stamp(self, n, r="s[98:99]"):
        if self.o["stamp"] and (self.o["stamp"] is True or n in self.o["stamp"]):
            a = self.a
            a(f"s_memtime {r}" if self.o["cyc"] and n in (5, 6) else f"s_memrealtime {r}")
            a("s_waitcnt lgkmcnt(0)")
            a(f"v_writelane_b32 v255, s{r[2:4]}, {n}")

    def descriptor(self, label, vg, ag):
        self.a(f""".amdhsa_kernel {label}
  .amdhsa_next_free_vgpr {vg}
  .amdhsa_next_free_sgpr 102
  .amdhsa_accum_offset {ag}
  .amdhsa_group_segment_fixed_size 0
  .amdhsa_float_denorm_mode_32 3
  .amdhsa_kernarg_size 48
  .amdhsa_user_sgpr_count 2
  .amdhsa_user_sgpr_kernarg_segment_ptr 1
  .amdhsa_system_sgpr_workgroup_id_x 1
.end_amdhsa_kernel""")

    def flush_tail(self):
        for b in self.tailblocks:
            self.a(b)
        self.tailblocks = []

    def gen(self):
        a = self.a
        o = self.o
        K = NAME + "_kernel"
        a(open("cdna_kernels/" + NAME + ".s.ref").read().split("; Override")[0].rstrip())
        if o["fused"]:
            a(f"; @launch grid=(256,1,1) block=(256,1,1) lds={LDS_BYTES}")
        else:
            a(f"; @launch kernel=prep_kernel grid=({NTASK},1,1) block=(256,1,1) lds={LDS_BYTES}")
            a(f"; @launch kernel={K} grid=(256,1,1) block=(256,1,1) lds={LDS_BYTES}")
        a('.amdgcn_target "amdgcn-amd-amdhsa--gfx950"\n.text')
        if not o["fused"]:
            self.entry("prep_kernel", NTASK)
            a(f"s_mov_b32 s{S_TASK}, s2\ns_mov_b32 s{S_BASE}, 0")
            self.producer("", False)
            a("L_end_prep_kernel:\ns_endpgm")
            self.flush_tail()
        self.entry(K, 256)
        a(f"s_mov_b32 s{S_BASE}, 0")
        msk = lambda p: hex(sum(1 << i for i in p[2] if not self.dyn or i < self.cl0) | p[0] << 20 | p[1] << 24)
        def pick(reg, vals):
            if len(set(vals)) == 1:
                a(f"s_mov_b32 s{reg}, {vals[0]}")
                return
            a(f"s_mov_b32 s{reg}, {vals[1]}")
            a(f"s_mov_b32 s{S_T0}, {vals[3]}")
            a(f"s_bitcmp1_b32 s2, {o['gsh']}")
            a(f"s_cselect_b32 s{reg}, s{reg}, {vals[0]}")
            a(f"s_cselect_b32 s{S_T0}, s{S_T0}, {vals[2]}")
            a(f"s_bitcmp1_b32 s2, {o['gsh2']}")
            a(f"s_cselect_b32 s{reg}, s{S_T0}, s{reg}")
        if o["fused"]:
            px = o["px"]
            if o["pspread"]:
                a(f"s_bfe_u32 s{S_TASK}, s2, {hex(2 << 16 | 3)}")
                a(f"s_mul_i32 s{S_TASK}, s{S_TASK}, {px}")
                a(f"s_and_b32 s{S_T0}, s2, 7")
                a(f"s_add_u32 s{S_TASK}, s{S_TASK}, s{S_T0}")
                a(f"s_lshr_b32 s{S_T1}, s2, 5")
                a(f"s_lshl3_add_u32 s{S_TASK}, s{S_TASK}, s{S_T1}")
            else:
                a(f"s_lshr_b32 s{S_TASK}, s2, 3")
                a(f"s_mul_i32 s{S_TASK}, s{S_TASK}, {px}")
                a(f"s_and_b32 s{S_T0}, s2, 7")
                a(f"s_add_u32 s{S_TASK}, s{S_TASK}, s{S_T0}")
            a(f"s_cmp_lt_u32 s{S_T0}, {px}")
            a(f"s_cselect_b32 s{S_TASK}, s{S_TASK}, 63")
            a(f"s_cmp_lt_u32 s{S_TASK}, {NTASK}")
            a("s_cbranch_scc1 L_prod")
        pick(S_DMASK, [msk(p) for p in self.pol[:4]])
        self.lane_setup()
        if o["fused"] and o["sig"] == 3:
            self.mb_addr(S_T0, S_T1)
            a(f"s_cmp_eq_u32 s{S_WAVE}, 0")
            a(f"s_cselect_b32 s{S_T0}, s{S_T0}, 0x40000000")
            a(f"v_mov_b32 v8, s{S_T0}")
            a("v_mov_b32 v9, 0")
        self.entry_wait()
        self.ptouch()
        if o["fused"] and o["sig"] == 3:
            a("s_mov_b64 exec, 1")
            a(f"buffer_store_dword v9, v8, {sr(S_WS,4)}, 0 offen sc1")
            a("s_mov_b64 exec, -1")
        a("L_cons3:")
        self.stamp(1)
        self.dma_setup()
        self.prefetch(20)
        self.stamp(2)
        if o["fused"]:
            a("s_branch L_rest")
            a("L_prod:")
            self.producer("", False)
            pick(S_DMASK, [msk(p) for p in self.pol[4:]] * 2)
            a("s_barrier")
            a(f"s_cmp_lg_u32 s{S_WAVE}, 0")
            a("s_cbranch_scc1 L_cons2")
            a("v_mov_b32 v8, 1")
            a("s_mov_b64 exec, 1")
            if o["sig"] == 2:
                a(f"s_lshr_b32 s{S_T0}, s{S_TASK}, 1")
                a(f"s_lshl_b32 s{S_T0}, s{S_T0}, 2")
                a(f"s_bitcmp1_b32 s{S_TASK}, 0")
                a(f"s_cselect_b32 s{S_T1}, 128, 0")
                a(f"s_add_u32 s{S_T0}, s{S_T0}, s{S_T1}")
                a(f"v_mov_b32 v9, s{S_T0}")
                a(f"buffer_store_dword v8, v9, {sr(S_DBG,4)}, 0 offen {o['fs']}")
            else:
                a(f"buffer_atomic_add v8, off, {sr(S_DBG,4)}, 0 offset:128 sc0 sc1")
                if o["sig"] == 3:
                    a("s_mov_b64 exec, -1")
                    a(f"s_mov_b32 s{S_T1}, {MB_OFF}")
                    a(f"v_lshl_add_u32 v10, v{V_LANE}, 7, s{S_T1}")
                    for k in range(1, 4):
                        a(f"v_add_u32 v{10+k}, {8192*k}, v10")
                a("v_mov_b32 v9, 1")
                a("s_waitcnt vmcnt(0)")
                a(f"v_readfirstlane_b32 s{S_T0}, v8")
                a("s_nop 3")
                a(f"s_cmp_lg_u32 s{S_T0}, {NTASK-1}")
                a("s_cbranch_scc1 L_notlast")
                if o["sig"] == 3:
                    for k in range(4):
                        a(f"buffer_store_dword v9, v{10+k}, {sr(S_WS,4)}, 0 offen sc1")
                    a("s_mov_b64 exec, 1")
                a(f"buffer_store_dword v9, off, {sr(S_DBG,4)}, 0 {o['fs']}")
                if o["diag"] and o["diag"][2] == "last":
                    a("s_mov_b32 s101, -1")
            a("L_notlast:")
            self.stamp(15)
            a("s_mov_b64 exec, -1")
            a("L_cons2:")
            self.lane_setup()
            if o["bar2"]:
                a("s_barrier")
            a("s_branch L_cons3")
            self.flush_tail()
            a("L_rest:")
        for reg, wm in ((S_WMASK, self.wmask), (S_WMASK2, self.wmask2)):
            pick(reg, [hex(x) for x in wm[:4]])
            if o["fused"]:
                pick(S_T1, [hex(x) for x in wm[4:]] * 2)
                a(f"s_cmp_lt_u32 s{S_TASK}, {NTASK}")
                a(f"s_cselect_b32 s{reg}, s{S_T1}, s{reg}")
        self.bias_load()
        self.lane_setup2()
        self.tables_init()
        pre, C, G = self.build()
        if o["fused"]:
            a(f"s_cmp_lg_u32 s{S_WAVE}, 0")
            a("s_cbranch_scc1 L_ready")
            if o["sig"] == 2:
                a(f"v_lshlrev_b32 v9, 2, v{V_LANE}")
                a("s_waitcnt vmcnt(0)")
            else:
                a("s_mov_b64 exec, 1")
            a(f"s_mov_b32 s{S_T1}, {o['maxpoll']}")
            if o["stamp"] and (o["stamp"] is True or 14 in o["stamp"]):
                a("s_waitcnt vmcnt(0)")
                self.stamp(14)
            if o["sig"] == 3:
                self.mb_addr(S_T0, S_MASK)
                a(f"v_mov_b32 v9, s{S_T0}")
                a(f"s_waitcnt vmcnt({5*min(p[0] for p in self.pol)})")
            a("L_poll:")
            if o["psleep"]:
                a(f"s_sleep {o['psleep']}")
            if o["sig"] == 3:
                a(f"s_and_b32 s{S_T0}, s{S_T1}, 15")
                a("s_cbranch_scc0 L_polld")
                a(f"buffer_load_dword v8, v9, {sr(S_WS,4)}, 0 offen sc1")
                a("L_pollb:")
                self.tailblocks.append(f"L_polld:\nbuffer_load_dword v8, off, {sr(S_DBG,4)}, 0 sc1\ns_branch L_pollb")
            else:
                a(f"buffer_load_dword v8, {'v9' if o['sig'] == 2 else 'off'}, {sr(S_DBG,4)}, 0 {'offen ' if o['sig'] == 2 else ''}{o['pl']}")
            a(f"s_sub_u32 s{S_T1}, s{S_T1}, 1")
            a("s_cbranch_scc1 L_giveup")
            a("s_waitcnt vmcnt(0)")
            if o["sig"] == 2:
                a("v_cmp_ne_u32 vcc, 0, v8")
                a(f"s_bcnt1_i32_b64 s{S_T0}, vcc")
                a(f"s_cmp_lt_u32 s{S_T0}, {NTASK}")
            else:
                a(f"v_readfirstlane_b32 s{S_T0}, v8")
                a("s_nop 3")
                a(f"s_cmp_lg_u32 s{S_T0}, 1")
            a("s_cbranch_scc1 L_poll")
            a("L_polled:")
            a("s_mov_b64 exec, -1")
            a("L_ready:")
            self.tailblocks.append(f"L_giveup:\ns_waitcnt vmcnt(0)\nv_mov_b32 v8, {L_PL + 256}\nv_mov_b32 v9, 1\nds_write_b32 v8, v9\ns_branch L_polled")
        a("s_waitcnt lgkmcnt(0)")
        a("s_barrier")
        self.stamp(3)
        self.emit_build(pre, C, G)
        self.stamp(4, "s[94:95]")
        self.loop_state()
        a("s_waitcnt lgkmcnt(0)")
        a(f"v_mov_b32 v{V_X if o['peel'] else V_T}, {L_PL + 256}")
        a("s_barrier")
        if o["peel"]:
            self.peel()
            if max(p[1] for p in self.pol):
                self.prefetch(24, "L_pf2")
            for x in self.dma_advance(first=True):
                a(x)
            a(f"s_add_u32 s{S_OOFF}, s{S_OOFF}, {256*TB}")
            self.stamp(5)
            a("s_waitcnt lgkmcnt(0)")
            a("s_barrier")
            if o["links"] is None:
                a(f"s_cmp_lg_u32 s{S_LINK}, 0")
                a("s_cbranch_scc1 L_loopnk_p3")
            a("s_branch L_loopn_p3")
        else:
            a(f"ds_read_b32 v{V_T}, v{V_T}")
            if o["links"] is None:
                a(f"s_cmp_lg_u32 s{S_LINK}, 0")
                a("s_cbranch_scc1 L_linked")
        self.main_loop(bool(o["links"]), "")
        a("L_fin:")
        if o["stamp"]:
            a(f"v_mbcnt_lo_u32_b32 v{V_LANE}, -1, 0\nv_mbcnt_hi_u32_b32 v{V_LANE}, -1, v{V_LANE}")
        self.stamp(6)
        if o["stamp"]:
            a("s_waitcnt vmcnt(0)")
            self.stamp(7)
            a("v_writelane_b32 v255, s100, 0")
            a(f"s_lshl_b32 s{S_T0}, s2, 2\ns_add_u32 s{S_T0}, s{S_T0}, s{S_WAVE}\ns_lshl_b32 s{S_T0}, s{S_T0}, 6")
            a(f"s_add_u32 s{S_T0}, s{S_T0}, {WSBYTES - 65536}")
            if o["trace"]:
                a(f"s_lshl_b32 s{S_T1}, s2, 2\ns_add_u32 s{S_T1}, s{S_T1}, s{S_WAVE}\ns_lshl_b32 s{S_T1}, s{S_T1}, 8")
                a(f"s_add_u32 s{S_T1}, s{S_T1}, {WSBYTES - 65536 - 262144}")
                a(f"v_lshl_add_u32 v8, v{V_LANE}, 2, s{S_T1}")
                a(f"buffer_store_dword v254, v8, {sr(S_WS,4)}, 0 offen")
                a("s_nop 1")
            a(f"v_lshl_add_u32 v254, v{V_LANE}, 2, s{S_T0}")
            a("s_mov_b32 exec_lo, 0xffff\ns_mov_b32 exec_hi, 0")
            a(f"buffer_store_dword v255, v254, {sr(S_WS,4)}, 0 offen")
            if o["diag"]:
                n1, n0, wg, mul = o["diag"]
                a(("s_cmp_lg_u32 s101, -1" if wg == "last" else f"s_cmp_lg_u32 s2, {wg}") + f"\ns_cbranch_scc1 L_end_{K}\ns_cmp_lg_u32 s{S_WAVE}, 0\ns_cbranch_scc1 L_end_{K}")
                a(f"v_readlane_b32 s60, v255, {n1}\nv_readlane_b32 s61, v255, {n0}\ns_nop 3\ns_sub_u32 s60, s60, s61\ns_mul_i32 s60, s60, {mul}")
                a("s_min_u32 s60, s60, 100000\ns_add_u32 s60, s60, 10000")
                a("L_diag:\ns_sleep 1\ns_memrealtime s[62:63]\ns_waitcnt lgkmcnt(0)\ns_sub_u32 s62, s62, s100\ns_cmp_lt_u32 s62, s60\ns_cbranch_scc1 L_diag")
        a(f"L_end_{K}:\ns_endpgm")
        self.flush_tail()
        if o["links"] is None:
            a("L_linked:")
            self.main_loop(True, "k")
            a("s_branch L_fin")
            self.flush_tail()
        self.slow_path(K)
        a('.section .rodata,"a"\n.p2align 6')
        if not o["fused"]:
            self.descriptor("prep_kernel", 128, 128)
            a(".p2align 6")
        self.descriptor(K, 512, 256)
        return "\n".join(self.L) + "\n"


if __name__ == "__main__":
    opts = eval("dict(" + (sys.argv[2] if len(sys.argv) > 2 else "") + ")")
    out = sys.argv[1] if len(sys.argv) > 1 else "cdna_kernels/" + NAME + ".s"
    open(out, "w").write(Gen(**opts).gen())
```

```python
import sys

NAME = "standalone__structured_sparse_n_m__ragged"
TB = 18432
TBL = TB + 128
NB = 8
CNT_OFF = 0x60000
MB_OFF = 0x68000
PRIV0 = 2
XBYTES = 75497472
WBYTES = 663552
WSBYTES = 301989888
A_OFF = 0
I_OFF = 331776
I8_OFF = I_OFF + 36864
R1_OFF = I8_OFF + 5120
R8_OFF = R1_OFF + 9216
COPY = 393216
NTASK = 41
L_WV = NB * TBL
WV_SZ = 3584
O_X, O_K, O_M, O_BIAS, O_IDX = 64, 384, 704, 1024, 1792
L_PL = L_WV + 4 * WV_SZ
LDS_BYTES = 163840
assert L_PL + 512 <= LDS_BYTES and L_WV % 256 == 0 and WV_SZ % 256 == 0

V_RD0, V_RD1, V_TAB, V_DMA, V_ST, V_ST8, V_BP, V_LANE = 0, 1, 2, 3, 4, 5, 6, 7
V_ACC = 8
V_B = 44
V_BR = 76
V_P = 92
V_T = 108
V_P8 = 112
V_X = 114
V_AD = 118
V_I = 138
V_I8 = 174
V_IR = 179
V_A = 186
S_X, S_OUT, S_WS, S_W, S_B, S_DBG = 16, 20, 24, 28, 32, 36
S_WAVE = 40
S_IT, S_BUF, S_DELTA, S_M0B, S_XOFF, S_OOFF = 41, 42, 43, 44, 45, 46
S_T0, S_T1 = 47, 3
S_MASK = 48
S_EVEN, S_ODD = 80, 82
S_TASK, S_TEND, S_BASE, S_MODE, S_CONT = 84, 85, 86, 87, 88
S_BAD = 90
S_MORE, S_LINK = 78, 89
S_C0 = 93
S_BUFN, S_CTB, S_OINC, S_XOFF5, S_M05, S_M0W, S_HALF = 4, 5, 6, 7, 8, 9, 10
S_NMASK = 12
S_WMASK, S_WMASK2 = 92, 87
S_XINC, S_OINC2, S_NT = 13, 14, 15
S_Q, S_CL, S_CB, S_K5, S_CL0, S_CT, S_W0 = 48, 56, 57, 58, 59, 60, 62
V_C = 7
S_DMASK, S_NB0 = 85, 88


def vr(b, n=1):
    return f"v{b}" if n == 1 else f"v[{b}:{b+n-1}]"


def sr(b, n=1):
    return f"s{b}" if n == 1 else f"s[{b}:{b+n-1}]"


def afrag(s, t):
    f = 9 * s + t
    return f"a[{4*f}:{4*f+3}]" if f < 64 else vr(V_A + 4 * (f - 64), 4)


def aidx(s, t):
    if t < 8:
        return V_I + 4 * s + (t >> 1), t & 1
    return V_I8 + (s >> 1), s & 1


BBUF = [0, 1, 2, 3, 0, 1, 0, 2, 3]
PEEL_T = [8, 0, 1, 2, 3, 4, 5, 6, 7]
RT = [[0, 1], [1, 2, 3], [3, 4, 5], [5, 6, 7], [7, 8]]


class Op:
    def __init__(self, text, kind, rd=(), wr=(), tag=""):
        self.text, self.kind, self.rd, self.wr, self.tag = text, kind, set(rd), set(wr), tag


def rng(b, n):
    return range(b, b + n)


class Gen:
    def __init__(self, **o):
        self.o = dict(fused=True, ld="nt", st="sc1", bperm=True, grp=None, nb0=None, gsh=3, gsh2=4, split=0, dyn=(10, 3), psh=6, peel=True, ptail=10, vcap=18, stp=None, stt=None, ste=None, mbg=64, cwg=46, dwg=20, wbl2=None, stn=None, pad=0, dropm=(), st8='', stc=None, stamp=False, nodma=False, wl="sc1", ws="sc1",
                      vmw=20, lper=14, drop=(), cyc=False, links=None, ng4=8, px=2, maxpoll=20015, warm=True, bcast=True, l0=12, lw=2, cwarm=True, ptouch=False, pspread=True, pfw=None, wtouch=False, bar2=True, early=True, ltail=24, coal=True, rpos=(18, 35, 50, 63, 75), rposl=(18, 36, 52, 66, 78),
                      lead=8, stg=(9, 16, 23, 30, 37), dmag=(44, 52, 60, 63, 66), gsp=2, eager=99, verbose=False, hack=None, diag=None, sig=1, psleep=0, pl='sc1', fs='sc1', isort=False, trace=False, chain=True, ord1=(0,1,4,5,6,2,3,7,8), ord2=(0,4,5,1,6,7,2,3,8), align2=True, order='hp')
        self.o.update(o)
        if self.o["grp"] is None and self.o["nb0"] is None:
            self.o.update(grp=[(3, 2, 2), (8, 0, 5), (3, 2, 2)])
        grp = self.o["grp"] or [(self.o["nb0"], 0, 0)] * 2
        if len(grp) != 6:
            grp = list(grp[:-1]) * (4 // (len(grp) - 1)) + [grp[-1]] * 2
        sp = self.o["split"]
        if sp:
            self.o["gsh"], self.o["gsh2"] = 0, 3
        self.pol, self.nt = [], []
        for c, (n1, n2, its) in enumerate(grp):
            nt = 16 + (sp if c % 2 == 0 else -sp)
            nb = n1 + n2
            its = list(its) if isinstance(its, (list, tuple)) else [its]
            while len(its) < nt - nb:
                its.append(its[-1] + 1)
            assert len(its) == nt - nb and all(nb + n - 7 <= i <= nb + n - 2 for n, i in enumerate(its)) and n1 >= 1, (n1, n2, its)
            self.pol.append((n1, n2, its))
            self.nt.append(nt)
        self.dyn = self.o["dyn"]
        if self.dyn:
            NS, LK = self.dyn
            self.cl0 = NS - LK - 1
            assert not sp and all(its[NS - 1 - n1 - n2] == self.cl0 and its[-1] == 15 - LK for n1, n2, its in self.pol) and self.cl0 >= 1
        self.n2min = min(p[1] for p in self.pol)
        req = []
        for (n1, n2, its), nt in zip(self.pol, self.nt):
            r = [63] * nt
            for tile in range(n1, nt):
                i = tile - 1
                a0 = (1 if self.o["peel"] else -1) if tile < n1 + n2 else its[tile - n1 - n2]
                r[i] = sum(10 if j in its else 5 for j in range(a0 + 1, i + 1)) + 5 * max(0, n1 + n2 - 1 - tile)
                if a0 < 0:
                    r[i] -= 5
            if self.o["peel"]:
                assert n1 >= 3 and its[0] >= 2 and not sp
            elif self.o["early"]:
                r[0] = min(r[0], 5 * n2 + (5 if 0 in its else 0))
            if self.dyn:
                r = r[:self.cl0] + [5 * (self.dyn[1] - 1)]
            req.append(r)
        low = sorted({x for r in req for x in r if x < self.o["vmw"]})
        self.wlo = low[0] if low else 0
        best = None
        for hi in low or [0]:
            cost = sum(x - (hi if x >= hi else self.wlo) for r in req[:4] for x in r[1:] if x < self.o["vmw"])
            if best is None or cost < best[0]:
                best = (cost, hi)
        self.whi = best[1]
        self.wmask = [sum(1 << (i + 1) for i, x in enumerate(r) if x < self.o["vmw"]) for r in req]
        self.wmask2 = [sum(1 << (i + 1) for i, x in enumerate(r) if x < self.whi) for r in req]
        self.req = req
        self.L = []
        self.tailblocks = []

    def a(self, s):
        self.L.extend(s.split("\n"))

    def entry(self, label, nwg):
        a = self.a
        a(f".globl {label}\n.p2align 8\n.type {label},@function\n{label}:")
        a("s_load_dwordx8 s[4:11], s[0:1], 0")
        a("s_load_dwordx4 s[12:15], s[0:1], 32")
        a(f"s_cmp_ge_u32 s2, {nwg}")
        a(f"s_cbranch_scc1 L_end_{label}")
        if self.o["stamp"]:
            a("s_memrealtime s[100:101]")
        a("v_lshlrev_b32 v3, 7, v0")
        if self.o["cwarm"]:
            a("s_getpc_b64 s[96:97]")
            a(f"v_min_u32 v2, L_slow-{label}, v3")
            a("global_load_dword v120, v2, s[96:97]")
        if self.o["wtouch"]:
            a(f"s_lshr_b32 s{S_T0}, s2, 3")
            a(f"s_mul_i32 s{S_T0}, s{S_T0}, {162*128}")
            a(f"v_add_u32 v3, s{S_T0}, v3")
            a(f"v_min_u32 v3, {WBYTES-128}, v3")
            a(f"s_and_b32 s{S_T0}, s2, {8 - self.o['px']}")
            a("s_waitcnt lgkmcnt(0)")
            a(f"s_cbranch_scc1 L_nt_{label}")
            a("global_load_dword v121, v3, s[6:7]")
            a(f"L_nt_{label}:")
        a("v_lshrrev_b32 v1, 6, v0")
        a(f"v_and_b32 v{V_LANE}, 63, v0")
        a(f"v_readfirstlane_b32 s{S_WAVE}, v1")

    def mb_addr(self, d, t):
        a = self.a
        a(f"s_lshr_b32 s{d}, s2, 4")
        a(f"s_and_b32 s{t}, s2, 7")
        a(f"s_lshl3_add_u32 s{d}, s{d}, s{t}")
        a(f"s_and_b32 s{t}, s2, 8")
        a(f"s_lshl4_add_u32 s{d}, s{t}, s{d}")
        a(f"s_lshl_b32 s{d}, s{d}, 7")
        a(f"s_add_u32 s{d}, s{d}, {MB_OFF}")

    def ptouch(self):
        if self.o["ptouch"]:
            a = self.a
            a("s_mov_b64 exec, 1")
            a(f"s_mov_b32 s{S_T0}, {MB_OFF + 0x8000}")
            a(f"buffer_load_dword v122, off, {sr(S_WS,4)}, s{S_T0} sc1")
            a(f"buffer_load_dword v123, off, {sr(S_DBG,4)}, 0 sc1")
            a("s_mov_b64 exec, -1")

    def srds(self, which):
        for srd, p, size in ((S_W, 6, WBYTES), (S_X, 4, XBYTES), (S_WS, 14, WSBYTES), (S_B, 8, 1152), (S_OUT, 10, 0), (S_DBG, 12, 256)):
            if srd in which:
                self.a(f"s_mov_b32 s{srd+2}, {size}")
                self.a(f"s_mov_b32 s{srd+3}, 0x20000")
                self.a(f"s_mov_b32 s{srd}, s{p}")
                self.a(f"s_and_b32 s{srd+1}, s{p+1}, 0xffff")

    def entry_wait(self, first=None):
        lst = (S_W, S_X, S_WS, S_B, S_OUT, S_DBG)
        if first is not False:
            self.a("s_waitcnt lgkmcnt(0)")
        self.srds(lst if first is None else (lst[:1] if first else lst[1:]))

    def producer(self, sfx, generic):
        a = self.a
        ws = self.o["ws"]
        W, Z, K = 8, 24, 28
        OA, NB_, IX = 36, 44, 48
        VL, VA, VI, VM0, VM1, VSEL, CJ = 50, 51, 52, 53, 54, 55, 56
        F0, F1, H, U, T0, T1, T2, VLI, VA2, VLD, VLR = 58, 59, 60, 61, 62, 63, 64, 65, 66, 67, 57
        C = S_MASK
        SEL = S_MASK + 16
        CNT = S_MASK + 27
        ln = f"v{V_LANE}"
        a(f"s_and_b32 s{C}, s{S_TASK}, 3")
        a(f"s_lshr_b32 s{C+1}, s{S_TASK}, 2")
        a(f"s_sub_u32 s{C+2}, s{S_TASK}, 36")
        a(f"s_lshl_b32 s{C+3}, s{S_WAVE}, 4")
        a(f"s_lshl_b32 s{C+4}, s{C+2}, 1")
        a(f"s_lshl_b32 s{C+5}, s{C}, 8")
        a(f"s_cmp_lt_u32 s{S_TASK}, 36")
        a(f"s_cselect_b32 s{C+4}, s{C+1}, s{C+4}")
        a(f"s_cselect_b32 s{C+5}, s{C+5}, 1024")
        a(f"s_cselect_b32 s{C+6}, 8, 73728")
        a(f"s_cselect_b32 s{C+7}, 32, 8")
        a(f"s_cselect_b32 s{C+8}, 16, 32")
        a(f"s_cselect_b32 s{C+9}, 128, 64")
        a(f"s_mul_i32 s{C+4}, s{C+4}, 73728")
        a(f"s_mul_i32 s{C+10}, s{S_WAVE}, 18432")
        a(f"v_and_b32 v{F0}, 1, {ln}")
        a(f"v_bfe_u32 v{F1}, {ln}, 1, 1")
        a(f"v_bfe_u32 v{H}, {ln}, 2, 2")
        a(f"v_bfe_u32 v{T0}, {ln}, 4, 1")
        a(f"v_lshrrev_b32 v{T1}, 5, {ln}")
        a(f"v_lshl_add_u32 v{VL}, v{F0}, 2, s{C+4}")
        a(f"v_mad_u32_u24 v{VL}, v{F1}, s{C+6}, v{VL}")
        a(f"v_mad_u32_u24 v{VL}, v{H}, s{C+7}, v{VL}")
        a(f"v_mad_u32_u24 v{VL}, v{T0}, s{C+8}, v{VL}")
        a(f"v_mad_u32_u24 v{VL}, v{T1}, s{C+9}, v{VL}")
        a(f"v_add_u32 v{VL}, s{C+5}, v{VL}")
        a(f"v_add_u32 v{VL}, s{C+10}, v{VL}")
        a(f"v_add_u32 v{T0}, 4608, v{VL}")
        a(f"v_add_u32 v{T1}, 9216, v{VL}")
        a(f"v_add_u32 v{T2}, 13824, v{VL}")
        if not generic:
            self.entry_wait(first=True)
        for q in range(4):
            for j in range(4):
                a(f"buffer_load_dword v{W+4*q+j}, v{(VL, T0, T1, T2)[q]}, {sr(S_W,4)}, 0 offen offset:{1152*j}")
        if not generic:
            self.stamp(8)
            self.entry_wait(first=False)
            self.ptouch()
        a(f"s_mul_i32 s{C+4}, s{C}, 9")
        a(f"s_add_u32 s{C+4}, s{C+4}, s{C+1}")
        a(f"s_mul_i32 s{C+5}, s{C+4}, 9")
        a(f"s_mul_i32 s{C+6}, s{C+2}, 18")
        a(f"s_add_u32 s{C+6}, s{C+6}, 8")
        a(f"s_lshl_b32 s{C+7}, s{C+4}, 2")
        a(f"s_add_u32 s{C+7}, s{C+7}, s{S_WAVE}")
        a(f"s_lshl_b32 s{C+8}, s{C+2}, 2")
        a(f"s_add_u32 s{C+8}, s{C+8}, s{S_WAVE}")
        a(f"s_cmp_eq_u32 s{S_TASK}, 40")
        a(f"s_cselect_b32 s{C+9}, 0x100000, 9")
        a(f"s_cmp_lt_u32 s{S_TASK}, 36")
        a(f"s_cselect_b32 s{C+5}, s{C+5}, s{C+6}")
        a(f"s_cselect_b32 s{C+6}, 2, 81")
        a(f"s_cselect_b32 s{C+9}, 1, s{C+9}")
        a(f"s_cselect_b32 s{C+7}, s{C+7}, s{C+8}")
        a(f"s_mov_b32 s{C+8}, {I_OFF}")
        a(f"s_cselect_b32 s{C+8}, s{C+8}, {I8_OFF}")
        a(f"s_mov_b32 s{C+10}, {R1_OFF}")
        a(f"s_cselect_b32 s{C+10}, s{C+10}, {R8_OFF}")
        a(f"s_cselect_b32 s{C+11}, 16, 4")
        a(f"s_cselect_b32 s{C+12}, 4, 64")
        a(f"s_cselect_b32 s{C+13}, 12, 11")
        a(f"s_cselect_b32 s{C+14}, 1, 0x8001")
        a(f"v_lshrrev_b32 v{U}, 4, {ln}")
        a(f"v_lshlrev_b32 v{T0}, 1, v{F0}")
        a(f"v_lshl_add_u32 v{H}, v{H}, 2, v{T0}")
        a(f"v_add_u32 v{T0}, v{H}, v{F1}")
        a(f"v_mul_u32_u24 v{VA}, s{C+6}, v{U}")
        a(f"v_add_lshl_u32 v{VA}, v{VA}, s{C+5}, 6")
        a(f"v_add3_u32 v{VA}, v{VA}, v{T0}, s{C+3}")
        a(f"v_lshl_add_u32 v{VA}, v{VA}, 4, s{S_BASE}")
        a(f"s_lshl_b32 s{C+9}, s{C+9}, 10")
        a(f"v_add_u32 v{VA2}, s{C+9}, v{VA}")
        a(f"s_lshl_b32 s{C+4}, s{C+7}, 8")
        a(f"s_add_u32 s{C+4}, s{C+4}, s{C+8}")
        a(f"s_add_u32 s{C+4}, s{C+4}, s{S_BASE}")
        a(f"v_mul_u32_u24 v{VI}, s{C+11}, v{T0}")
        a(f"v_mad_u32_u24 v{VI}, v{U}, s{C+12}, v{VI}")
        a(f"v_lshl_add_u32 v{VM1}, {ln}, 2, s{C+4}")
        if not generic:
            a(f"s_lshr_b32 s{C+4}, s{C+7}, 2")
            a(f"s_lshl_b32 s{C+4}, s{C+4}, 8")
            a(f"s_add_u32 s{C+10}, s{C+10}, s{C+4}")
            a(f"s_lshl2_add_u32 s{C+10}, s{C+3}, s{C+10}")
            a(f"s_lshl_b32 s{C+4}, s{C+3}, 1")
            a(f"s_add_u32 s{C+4}, s{C+4}, s{C+14}")
            a(f"v_lshl_add_u32 v{T0}, v{U}, 1, v{F1}")
            a(f"v_lshlrev_b32 v{T0}, s{C+13}, v{T0}")
            a(f"v_lshl_add_u32 v{VM0}, v{H}, 7, v{T0}")
            a(f"v_add_u32 v{VM0}, s{C+4}, v{VM0}")
            a(f"v_and_b32 v{T0}, 12, {ln}")
            a(f"v_and_b32 v{T1}, 15, {ln}")
            a(f"v_mad_u32_u24 v{T0}, v{T0}, 3, v{T1}")
            a(f"v_lshl_add_u32 v{T0}, v{T0}, 2, s{C+3}")
            a(f"v_mov_b32 v{VLD}, 0")
            a(f"ds_write_b32 v{T0}, v{VLD}")
            a(f"s_lshl2_add_u32 s{C+4}, s{S_TASK}, s{S_WAVE}")
            a(f"s_lshl_b32 s{C+4}, s{C+4}, 7")
            a(f"s_add_u32 s{C+4}, s{C+4}, {CNT_OFF - 64}")
            a(f"v_lshl_add_u32 v{VLI}, {ln}, 2, s{C+10}")
            a(f"v_lshl_add_u32 v{T0}, {ln}, 2, s{C+4}")
            a(f"v_cmp_gt_u32 vcc, 16, {ln}")
            a(f"s_lshl_b32 s{C+4}, s{C+3}, 2")
            a(f"v_lshl_add_u32 v{VLR}, {ln}, 2, s{C+4}")
            a(f"v_cndmask_b32 v{VLI}, v{T0}, v{VLI}, vcc")
            if self.o["sig"] == 3:
                self.mb_addr(C + 4, C + 5)
                a(f"s_sub_u32 s{C+4}, s{C+4}, 192")
                a(f"v_cmp_gt_u32 vcc, 48, {ln}")
                a(f"v_lshl_add_u32 v{T0}, {ln}, 2, s{C+4}")
                a("s_nop 0")
                a(f"v_cndmask_b32 v{VLI}, v{T0}, v{VLI}, vcc")
            a(f"s_mov_b32 s{CNT}, 0")
            a(f"s_mov_b32 s{SEL+9}, 0x05060100")
            a(f"s_mov_b32 s{SEL+10}, 0xffff")
        a(f"v_mov_b32 v{VSEL}, 0x05040100")
        a(f"v_mov_b32 v{T0}, 0x03020706")
        a(f"v_cmp_eq_u32 vcc, 1, v{F1}")
        CJ, EF, EO = 68, 76, 82
        for n in range(8):
            a(f"v_mov_b32 v{CJ+n}, {hex(0x0f0a0500 | 0x01010101 * (((n >> 1) << 4) | ((n & 1) << 7)))}")
        a(f"v_cndmask_b32 v{VSEL}, v{VSEL}, v{T0}, vcc")
        if not generic:
            for r in range(3):
                a(f"v_mov_b64 {vr(EF+2*r,2)}, 0")
            a(f"v_mov_b32 v{EO}, 0")
        for c in range(2):
            for j in range(4):
                a(f"s_mov_b32 s{SEL+4*c+j}, {hex(((5+2*c) << 24) | ((4+2*c) << 16) | ((5+2*c) << 8) | j)}")
        a(f"s_mov_b32 s{SEL+8}, 0x05060102")
        if generic:
            a(f"s_cmp_lg_u32 s{S_MODE}, 0")
        sw = "src0_sel:WORD_1 src1_sel:WORD_1"
        for q in range(4):
            a(f"s_waitcnt vmcnt({12-4*q + (2 if self.o['ptouch'] and not generic else 0)})")
            if q in (0, 3) and not generic:
                self.stamp(9 + q // 3)
            for c in range(2):
                n = 2 * q + c
                for j in range(4):
                    a(f"v_perm_b32 v{Z+j}, v{W+4*q+j}, v{CJ+n}, s{SEL+4*c+j}")
                a(f"v_max3_f32 v{K}, |v{Z}|, |v{Z+1}|, |v{Z+2}|")
                a(f"v_med3_f32 v{K+1}, |v{Z}|, |v{Z+1}|, |v{Z+2}|")
                a(f"v_min3_f32 v{K+2}, |v{Z}|, |v{Z+1}|, |v{Z+2}|")
                a(f"v_med3_f32 v{K+4}, v{K}, v{K+1}, |v{Z+3}|")
                a(f"v_med3_f32 v{K+5}, v{K+1}, v{K+2}, |v{Z+3}|")
                a(f"v_max_f32 v{K+3}, v{K}, |v{Z+3}|")
                if generic:
                    a(f"v_cmp_eq_u32_sdwa vcc, v{K+5}, v{K+4} {sw}")
                    a(f"s_cbranch_scc0 L_rb{n}{sfx}")
                    a(f"v_min_f32 v{K+2}, v{K+2}, |v{Z+3}|")
                    a(f"v_cndmask_b32 v{K+3}, 0, v{K+5}, vcc")
                    a(f"v_cmp_eq_u32_sdwa vcc, v{K+2}, v{K+4} {sw}")
                    a("s_nop 1")
                    a(f"v_cndmask_b32 v{K+4}, 0, v{K+2}, vcc")
                    a(f"L_rb{n}{sfx}:")
                a(f"v_perm_b32 v{OA+4*c+q}, v{K+3}, v{K+4}, s{SEL+8}")
                nb = NB_ + 2 * c + (q >> 1)
                if q & 1 == 0:
                    a(f"v_bfi_b32 v{nb}, 3, v{K+4}, v{K+3}")
                else:
                    a(f"v_bfi_b32 v{K+3}, 3, v{K+4}, v{K+3}")
                    a(f"v_lshlrev_b32 v{K+3}, 4, v{K+3}")
                    a(f"v_bfi_b32 v{nb}, 15, v{nb}, v{K+3}")
                if not generic:
                    a(f"v_cmpx_eq_u32_sdwa vcc, v{K+5}, v{K+4} {sw}")
                    if n >= 3:
                        a(f"v_or_b32 v{EO}, v{EO}, v{EF+4}")
                    if n >= 2:
                        a(f"v_mov_b64 {vr(EF+4,2)}, {vr(EF+2,2)}")
                    if n >= 1:
                        a(f"v_mov_b64 {vr(EF+2,2)}, {vr(EF,2)}")
                    a(f"v_mov_b32 v{EF}, v{K+5}")
                    a(f"v_min_f32 v{EF+1}, v{K+2}, |v{Z+3}|")
                    a("s_mov_b64 exec, -1")
        x2 = "quad_perm:[2,3,0,1] row_mask:0xf bank_mask:0xf"
        a("s_mov_b32 vcc_lo, 0x33333333")
        a("s_mov_b32 vcc_hi, 0x33333333")
        for d in range(4):
            a(f"v_cndmask_b32_dpp v{Z+d}, v{OA+4+d}, v{OA+d}, vcc {x2}")
        a("s_not_b64 vcc, vcc")
        a(f"buffer_store_dwordx4 {vr(Z,4)}, v{VA}, {sr(S_WS,4)}, 0 offen {ws}")
        for d in range(4):
            a(f"v_cndmask_b32_dpp v{OA+4+d}, v{OA+d}, v{OA+4+d}, vcc {x2}")
        a(f"s_mov_b32 s{C+4}, 0x0c0c0400")
        a(f"s_mov_b32 s{C+5}, 0x04000c0c")
        a(f"buffer_store_dwordx4 {vr(OA+4,4)}, v{VA2}, {sr(S_WS,4)}, 0 offen {ws}")
        a(f"v_perm_b32 v{IX}, v{NB_+1}, v{NB_}, s{C+4}")
        a(f"v_perm_b32 v{IX+1}, v{NB_+3}, v{NB_+2}, s{C+5}")
        a(f"v_or_b32 v{IX}, v{IX}, v{IX+1}")
        a("s_nop 1")
        a(f"v_mov_b32_dpp v{IX+1}, v{IX} quad_perm:[2,3,0,1] row_mask:0xf bank_mask:0xf")
        a(f"v_perm_b32 v{IX}, v{IX+1}, v{IX}, v{VSEL}")
        a(f"ds_permute_b32 v{IX}, v{VI}, v{IX}")
        if generic:
            a("s_waitcnt lgkmcnt(0)")
            a(f"buffer_store_dword v{IX}, v{VM1}, {sr(S_WS,4)}, 0 offen {ws}")
        if not generic:
            self.stamp(11)
            a(f"v_cmp_lt_u32 {sr(C+6,2)}, s{SEL+10}, v{EO}")
            a(f"L_emit{sfx}:")
            a(f"v_cmp_lt_u32 vcc, s{SEL+10}, v{EF}")
            a(f"v_cmp_eq_u32_sdwa {sr(C,2)}, v{EF+1}, v{EF} {sw}")
            a(f"v_perm_b32 v{T1}, v{EF}, v{VM0}, s{SEL+9}")
            a(f"v_bfe_u32 v{T0}, v{EF}, 2, 4")
            a(f"v_and_b32 v{T2}, 0x80, v{EF}")
            a(f"v_lshl_add_u32 v{T1}, v{T0}, 1, v{T1}")
            a(f"v_mbcnt_lo_u32_b32 v{T0}, vcc_lo, 0")
            a(f"v_mbcnt_hi_u32_b32 v{T0}, vcc_hi, v{T0}")
            a(f"v_add_u32 v{T1}, v{T2}, v{T1}")
            a(f"v_add_u32 v{T0}, s{CNT}, v{T0}")
            a(f"s_bcnt1_i32_b64 s{C+4}, vcc")
            a(f"s_add_u32 s{CNT}, s{CNT}, s{C+4}")
            a(f"v_cmp_gt_u32 {sr(C+4,2)}, 15, v{T0}")
            a(f"v_and_b32 v{T2}, 12, v{T0}")
            a(f"v_mad_u32_u24 v{T0}, v{T2}, 3, v{T0}")
            a(f"v_lshl_add_u32 v{T0}, v{T0}, 2, s{C+3}")
            a(f"s_and_b64 {sr(C,2)}, {sr(C,2)}, vcc")
            a(f"s_and_b64 exec, {sr(C+4,2)}, vcc")
            a(f"ds_write_b32 v{T0}, v{T1}")
            a(f"s_mov_b64 exec, {sr(C,2)}")
            a(f"v_mov_b32 v{EF}, v{EF+1}")
            a(f"v_mov_b32 v{EF+1}, 0")
            a(f"s_not_b64 exec, exec")
            a(f"v_mov_b64 {vr(EF,2)}, {vr(EF+2,2)}")
            a(f"v_mov_b64 {vr(EF+2,2)}, {vr(EF+4,2)}")
            a(f"v_mov_b64 {vr(EF+4,2)}, 0")
            a("s_mov_b64 exec, -1")
            a(f"v_or3_b32 v{T0}, v{EF}, v{EF+2}, v{EF+4}")
            a(f"v_cmp_lt_u32 vcc, s{SEL+10}, v{T0}")
            a(f"s_cmp_lg_u64 {sr(C+6,2)}, 0")
            a(f"s_cselect_b32 s{C+4}, 99, s{CNT}")
            a(f"s_cmp_gt_u32 s{C+4}, 15")
            a(f"s_cselect_b32 s{C+4}, -1, 0")
            a(f"v_mov_b32 v{T1}, s{C+3}")
            a(f"s_cbranch_vccnz L_emit{sfx}")
            a(f"v_mov_b32 v{T0}, s{C+4}")
            a(f"ds_write_b32 v{T1}, v{T0} offset:204")
            a("s_waitcnt lgkmcnt(0)")
            a("s_barrier")
            a("s_mov_b64 exec, 0xffff")
            a(f"ds_read_b32 v{VLD}, v{VLR}")
            a("s_mov_b64 exec, -1")
            a(f"buffer_store_dword v{IX}, v{VM1}, {sr(S_WS,4)}, 0 offen {ws}")
            if self.o["sig"] != 3:
                a("s_mov_b32 exec_hi, 0xffff")
            a("s_waitcnt lgkmcnt(0)")
            a(f"buffer_store_dword v{VLD}, v{VLI}, {sr(S_WS,4)}, 0 offen {ws}")
            a("s_mov_b64 exec, -1")
            self.stamp(12)
        a("s_waitcnt vmcnt(0)")
        if not generic:
            self.stamp(13)

    def lane_setup(self):
        a = self.a
        ln = f"v{V_LANE}"
        T0, T1, T2 = 72, 73, 74
        a(f"v_lshrrev_b32 v{T0}, 3, {ln}")
        a(f"v_and_b32 v{T1}, 7, {ln}")
        a(f"v_xor_b32 v{T1}, v{T1}, v{T0}")
        a(f"v_mul_u32_u24 v{T0}, 1152, v{T0}")
        a(f"s_and_b32 s{S_T0}, s{S_WAVE}, 1")
        a(f"s_mul_i32 s{S_T0}, s{S_T0}, 9216")
        a(f"s_lshr_b32 s{S_T1}, s{S_WAVE}, 1")
        a(f"s_lshl_b32 s{S_T1}, s{S_T1}, 7")
        a(f"s_add_u32 s{S_T0}, s{S_T0}, s{S_T1}")
        a(f"v_lshl_add_u32 v{T0}, v{T1}, 4, v{T0}")
        a(f"v_add_u32 v{V_DMA}, s{S_T0}, v{T0}")
        a(f"s_lshl_b32 s{S_M0B}, s{S_WAVE}, 10")
        if self.o["split"]:
            a(f"s_bitcmp1_b32 s2, 0")
            a(f"s_cselect_b32 s{S_XOFF}, 256, 1")
            a(f"s_add_u32 s{S_XOFF}, s{S_XOFF}, s2")
            a(f"s_mul_i32 s{S_XOFF}, s{S_XOFF}, {TB}")
        else:
            a(f"s_mul_i32 s{S_XOFF}, s2, {TB}")
        a(f"s_mov_b32 s{S_OOFF}, s{S_XOFF}")

    def lane_setup2(self):
        a = self.a
        ln = f"v{V_LANE}"
        T0, T1, T2 = 72, 73, 74
        a(f"v_and_b32 v{T0}, 15, {ln}")
        a(f"v_lshrrev_b32 v{T1}, 4, {ln}")
        a(f"v_and_b32 v{T2}, 7, {ln}")
        a(f"v_xor_b32 v{T2}, v{T2}, v{T1}")
        a(f"v_lshlrev_b32 v{T2}, 4, v{T2}")
        a(f"v_lshl_add_u32 v{V_RD0}, v{T0}, 7, v{T2}")
        a(f"v_xor_b32 v{V_RD1}, 64, v{V_RD0}")
        a(f"s_mul_i32 s{S_C0}, s{S_WAVE}, {WV_SZ}")
        a(f"s_add_u32 s{S_C0}, s{S_C0}, {L_WV}")
        a(f"v_lshl_add_u32 v{V_TAB}, v{T1}, 4, s{S_C0}")
        a(f"v_and_b32 v{T2}, 14, {ln}")
        a(f"v_mul_u32_u24 v{V_ST}, 1152, v{T2}")
        a(f"v_and_b32 v{T2}, 1, {ln}")
        a(f"v_lshl_add_u32 v{V_ST}, v{T2}, 4, v{V_ST}")
        a(f"v_lshl_add_u32 v{V_ST}, v{T1}, 5, v{V_ST}")
        a(f"s_lshl_b32 s{S_T0}, s{S_WAVE}, 8")
        a(f"v_add_u32 v{V_ST}, s{S_T0}, v{V_ST}")
        if self.o["hack"] == "q4":
            a(f"v_lshrrev_b32 v{T2}, 3, {ln}")
            a(f"v_mul_u32_u24 v{V_ST}, 2304, v{T2}")
            a(f"v_and_b32 v{T2}, 7, {ln}")
            a(f"v_lshl_add_u32 v{V_ST}, v{T2}, 4, v{V_ST}")
            a(f"v_add_u32 v{V_ST}, s{S_T0}, v{V_ST}")
        a(f"s_lshl_b32 s{S_T0}, s{S_WAVE}, 5")
        a(f"s_add_u32 s{S_T0}, s{S_T0}, 1024")
        if self.o["bperm"]:
            a(f"v_lshrrev_b32 v{T0}, 2, {ln}")
            a(f"v_and_b32 v{T1}, 3, {ln}")
            a(f"v_lshl_add_u32 v{V_BP}, v{T1}, 4, v{T0}")
            a(f"v_lshlrev_b32 v{V_BP}, 2, v{V_BP}")
        else:
            a(f"v_lshlrev_b32 v{V_BP}, 2, {ln}")
        a(f"v_mul_u32_u24 v{V_ST8}, 1152, v{T0}")
        a(f"v_lshl_add_u32 v{V_ST8}, v{T1}, 3, v{V_ST8}")
        a(f"v_add_u32 v{V_ST8}, s{S_T0}, v{V_ST8}")
        a(f"s_mov_b32 s{S_EVEN}, 0x55555555")
        a(f"s_mov_b32 s{S_EVEN+1}, 0x55555555")
        a(f"s_mov_b32 s{S_ODD}, 0xaaaaaaaa")
        a(f"s_mov_b32 s{S_ODD+1}, 0xaaaaaaaa")

    def dma_setup(self):
        a = self.a
        a(f"s_lshr_b32 s{S_T0}, s{S_WAVE}, 1")
        a(f"s_lshl_b32 s{S_T1}, s{S_T0}, 11")
        a(f"s_sub_u32 s{S_M05}, {16384-896}, s{S_T1}")
        a(f"s_lshl_b32 s{S_T1}, s{S_T0}, 7")
        a(f"s_add_u32 s{S_XOFF5}, s{S_XOFF}, 128")
        a(f"s_sub_u32 s{S_XOFF5}, s{S_XOFF5}, s{S_T1}")
        a(f"s_sub_u32 s{S_HALF}, s{S_T0}, 1")
        a(f"s_sub_u32 s{S_HALF+1}, 0, s{S_T0}")
        a(f"s_mov_b32 s{S_M0W}, s{S_M0B}")
        a(f"s_mov_b32 s{S_XINC}, {256*TB}")
        if self.o["split"]:
            a(f"s_bitcmp1_b32 s2, 0")
            a(f"s_cselect_b32 s{S_XINC}, s{S_XINC}, {-TB}")
            a(f"s_cselect_b32 s{S_NT}, 15, 17")
        else:
            a(f"s_mov_b32 s{S_NT}, 16")
        a(f"s_mov_b32 s{S_OINC2}, s{S_XINC}")

    def dma_advance(self, first=False):
        x = [] if first else [f"s_add_u32 s{S_XOFF}, s{S_XOFF}, {256*TB}", f"s_add_u32 s{S_XOFF5}, s{S_XOFF5}, {256*TB}",
                              f"s_add_u32 s{S_M0B}, s{S_M0B}, s{S_CTB}"]
        return x + [f"s_cmp_ge_u32 s{S_M0B}, {NB*TBL}", f"s_cselect_b32 s{S_M0B}, s{S_M0W}, s{S_M0B}"]

    def dma_tile(self):
        a = self.a
        for j in range(5):
            a(f"s_add_u32 m0, s{S_M0B}, {3840*j if j < 4 else 's%d' % S_M05}")
            a("s_nop 0" if j < 4 else f"s_mov_b64 exec, {sr(S_HALF,2)}")
            a(f"buffer_load_dwordx4 v{V_DMA}, {sr(S_X,4)}, s{S_XOFF if j < 4 else S_XOFF5} offen offset:{256*j if j < 4 else 896} {self.o['ld']} lds")
        a("s_mov_b64 exec, -1")

    def prefetch(self, sh, lab="L_pf"):
        a = self.a
        a(f"s_bfe_u32 s{S_NB0}, s{S_DMASK}, {hex(4 << 16 | sh)}")
        if sh == 20 and self.o["pfw"]:
            a(f"s_cmp_ge_u32 s{S_NB0}, 6")
            a(f"s_cselect_b32 s{S_T1}, {self.o['pfw'][0]*TBL}, 0")
        if sh != 20 and self.n2min == 0:
            a(f"s_cbranch_scc0 {lab}_e")
        a(f"{lab}:")
        self.dma_tile()
        if sh == 20 and self.o["pfw"]:
            k, n = self.o["pfw"]
            a(f"s_cmp_ge_u32 s{S_M0B}, s{S_T1}")
            a(f"s_cbranch_scc1 {lab}_n")
            a(f"s_waitcnt vmcnt({n})")
            a(f"{lab}_n:")
        a(f"s_add_u32 s{S_XOFF5}, s{S_XOFF5}, s{S_XINC}")
        a(f"s_add_u32 s{S_M0B}, s{S_M0B}, {TBL}")
        a(f"s_add_u32 s{S_XOFF}, s{S_XOFF}, s{S_XINC}")
        a(f"s_mov_b32 s{S_XINC}, {256*TB}")
        a(f"s_sub_u32 s{S_NB0}, s{S_NB0}, 1")
        a(f"s_cmp_lg_u32 s{S_NB0}, 0")
        a(f"s_cbranch_scc1 {lab}")
        a(f"{lab}_e:")

    def bias_load(self):
        a = self.a
        ln = f"v{V_LANE}"
        a(f"v_and_b32 v80, 3, {ln}")
        a(f"v_bfe_u32 v81, {ln}, 2, 2")
        a(f"v_bfe_u32 v82, {ln}, 4, 1")
        a("v_lshlrev_b32 v81, 3, v81")
        a("v_lshl_add_u32 v81, v80, 5, v81")
        a("v_lshl_add_u32 v81, v82, 7, v81")
        a(f"s_lshl_b32 s{S_T0}, s{S_WAVE}, 8")
        a(f"v_add_u32 v81, s{S_T0}, v81")
        a(f"s_lshl_b32 s{S_T0}, s{S_WAVE}, 5")
        a(f"s_add_u32 s{S_T0}, s{S_T0}, 1024")
        a(f"v_lshl_add_u32 v80, v80, 3, s{S_T0}")
        a(f"v_cmp_gt_u32 vcc, 32, {ln}")
        a("s_nop 1")
        a("v_cndmask_b32 v80, v80, v81, vcc")
        a(f"buffer_load_dwordx2 v[110:111], v80, {sr(S_B,4)}, 0 offen")

    def tables_init(self):
        a = self.a
        ln = f"v{V_LANE}"
        a(f"v_lshl_add_u32 v109, {ln}, 4, s{S_C0}")
        a(f"v_lshl_add_u32 v89, {ln}, 2, s{S_C0}")
        for r in range(4):
            a(f"v_mov_b32 v{76+r}, 0")
        a("v_mov_b32 v90, 0xdddddddd")
        a("ds_write_b128 v109, v[76:79]")
        for r in range(7):
            a(f"ds_write_b32 v89, v90 offset:{O_IDX+256*r}")
        a(f"s_lshl_b32 s{S_T0}, s{S_WAVE}, 2")
        a(f"s_add_u32 s{S_T0}, s{S_T0}, {L_PL + 256}")
        a(f"v_mov_b32 v88, s{S_T0}")
        a("ds_write_b32 v88, v76")

    def bias_store(self):
        return ["v_lshlrev_b32 v114, 16, v110", "v_and_b32 v115, 0xffff0000, v110", "v_lshlrev_b32 v116, 16, v111",
                "v_and_b32 v117, 0xffff0000, v111", "s_mov_b32 exec_hi, 15", f"ds_write_b128 v109, v[114:117] offset:{O_BIAS}",
                "s_mov_b64 exec, -1"]

    def wload_list(self, VA, VI8, pairs=False):
        wl = self.o["wl"]
        G = []
        so = S_C0 + 6
        cur = None
        for sp in range(5):
            g = []
            if sp == 4:
                g.append(f"s_mov_b32 s{so}, 4096")
            g.append(f"buffer_load_dword v{V_I8+sp}, v{VI8}, {sr(S_WS,4)}, {'s%d' % so if sp == 4 else '0'} offen offset:{1024*(sp%4)} {wl}")
            G.append(g)
        order = [(s, t) for s in range(9) for t in [None] + list(range(9))]
        if pairs:
            order = order[:70] + [(7, None), (8, None)] + [(s, t) for t in PEEL_T for s in (7, 8)]
        for s, t in order:
            if t is None:
                G.append([f"s_mov_b32 s{so-1}, {1024*s}",
                          f"buffer_load_dwordx4 {vr(V_I+4*s,4)}, v{VA+1}, {sr(S_WS,4)}, s{so-1} offen {wl}"])
            else:
                f = 9 * s + t
                g = []
                if cur != f >> 2:
                    cur = f >> 2
                    g.append(f"s_mov_b32 s{so}, {4096*cur}")
                g.append(f"buffer_load_dwordx4 {afrag(s,t)}, v{VA}, {sr(S_WS,4)}, s{so} offen offset:{1024*(f&3)} {wl}")
                G.append(g)
        return G

    def waddr(self, VA, VI8):
        a = self.a
        ln = f"v{V_LANE}"
        a(f"s_mul_i32 s{S_T0}, s{S_WAVE}, 82944")
        a(f"s_add_u32 s{S_T0}, s{S_T0}, s{S_BASE}")
        a(f"v_lshl_add_u32 v{VA}, {ln}, 4, s{S_T0}")
        a(f"s_mul_i32 s{S_T0}, s{S_WAVE}, 9216")
        a(f"s_add_u32 s{S_T0}, s{S_T0}, s{S_BASE}")
        a(f"s_add_u32 s{S_T0}, s{S_T0}, {I_OFF}")
        a(f"v_lshl_add_u32 v{VA+1}, {ln}, 4, s{S_T0}")
        a(f"s_lshl_b32 s{S_T0}, s{S_WAVE}, 6")
        a(f"s_add_u32 s{S_T0}, s{S_T0}, s{S_BASE}")
        a(f"s_add_u32 s{S_T0}, s{S_T0}, {I8_OFF}")
        a(f"v_and_b32 v{VI8}, 15, {ln}")
        a(f"v_lshl_add_u32 v{VI8}, v{VI8}, 2, s{S_T0}")
        a(f"v_lshrrev_b32 v{VI8+1}, 4, {ln}")
        a(f"v_lshl_add_u32 v{VI8}, v{VI8+1}, 8, v{VI8}")

    def build(self):
        a = self.a
        o = self.o
        ln = f"v{V_LANE}"
        wl = o["wl"]
        VA, VI8 = (112 if o["peel"] else 104), 106
        E, TT, RK, ST = 8, 24, 40, 56
        T0, T1, T2, T3 = 72, 73, 74, 75
        WARM = 76
        ONE, VW, KB, VST, RX, VWARM, CM, CV, TM, TBS, HI, AB, BM, VH, VK, LO = range(88, 104)
        SW = S_C0
        a(f"s_mul_i32 s{S_T0}, s{S_WAVE}, 2304")
        a(f"s_add_u32 s{S_T0}, s{S_T0}, {R1_OFF}")
        a(f"v_and_b32 v{T1}, 60, {ln}")
        a(f"v_mad_u32_u24 v{T1}, v{T1}, 3, {ln}")
        a(f"v_lshl_add_u32 v{T0}, v{T1}, 4, s{S_T0}")
        a(f"s_mov_b32 s{S_T0}, {R8_OFF - 36*64}")
        a(f"v_lshl_add_u32 v{T1}, v{T1}, 4, s{S_T0}")
        a(f"v_lshrrev_b32 v{T2}, 2, {ln}")
        a(f"v_cmp_gt_u32 vcc, 36, {ln}")
        a(f"v_lshlrev_b32 v{KB}, 11, v{T2}")
        a(f"v_subrev_u32 v{T2}, 9, v{T2}")
        a(f"v_lshlrev_b32 v{T2}, 12, v{T2}")
        a(f"v_cndmask_b32 v{T0}, v{T1}, v{T0}, vcc")
        a(f"v_cndmask_b32 v{KB}, v{T2}, v{KB}, vcc")
        a(f"s_lshl_b32 s{S_T0}, s{S_WAVE}, 12")
        a(f"s_add_u32 s{S_T0}, s{S_T0}, 0x8001")
        a(f"v_mov_b32 v{ONE}, 1")
        a(f"v_mov_b32 v{CM}, 0xf001")
        a(f"v_mov_b32 v{CV}, s{S_T0}")
        a(f"v_cndmask_b32 v{CM}, v{CM}, v{ONE}, vcc")
        a(f"v_cndmask_b32 v{CV}, v{CV}, v{ONE}, vcc")
        a(f"v_cndmask_b32 v{TM}, 0, 28, vcc")
        a(f"v_cndmask_b32 v{TBS}, 32, 0, vcc")
        a(f"v_add_u32 v{TBS}, s{SW}, v{TBS}")
        a(f"v_cmp_gt_u32 vcc, 56, {ln}")
        a(f"v_mov_b32 v{T1}, 0x40000000")
        tw = o["warm"] == 2
        a(f"s_lshr_b32 s{S_T0}, s2, {4 if tw else 3}")
        a(f"s_lshl_b32 s{S_T0}, s{S_T0}, 2")
        a(f"s_add_u32 s{S_T0}, s{S_T0}, s{S_WAVE}")
        a(f"s_mul_i32 s{S_T0}, s{S_T0}, {6144 if tw else 3072}")
        a(f"v_cndmask_b32 v{T0}, v{T1}, v{T0}, vcc")
        if tw:
            a(f"v_min_u32 v{VWARM}, 47, {ln}")
            a(f"v_lshl_add_u32 v{VWARM}, v{VWARM}, 7, s{S_T0}")
        else:
            a(f"v_lshl_add_u32 v{VWARM}, {ln}, 4, s{S_T0}")
        self.waddr(VA, VI8)
        a(f"v_and_b32 v{T2}, 15, {ln}")
        a(f"v_and_b32 v{T1}, 7, {ln}")
        a(f"v_lshlrev_b32 v{BM}, 1, v{T1}")
        a(f"v_lshlrev_b32 v{BM}, v{BM}, v{ONE}")
        a(f"v_lshlrev_b32 v{T1}, 4, v{T1}")
        a(f"v_lshl_add_u32 v{RX}, v{T2}, 7, v{T1}")
        a(f"v_lshl_or_b32 v{RX}, v{RX}, 16, v{RX}")
        a(f"v_lshrrev_b32 v{HI}, 5, {ln}")
        a(f"v_bfe_u32 v{AB}, {ln}, 3, 2")
        a(f"v_lshl_add_u32 v{AB}, v{AB}, 6, s{SW}")
        a(f"v_lshl_add_u32 v{VH}, {ln}, 1, s{SW}")
        a(f"v_lshrrev_b32 v{VK}, 4, {ln}")
        a(f"v_lshl_add_u32 v{VK}, v{VK}, 3, s{SW}")
        a(f"v_lshrrev_b32 v{LO}, 1, {ln}")
        a(f"v_lshlrev_b32 v{LO}, 5, v{LO}")
        a(f"s_mov_b32 s{S_LINK}, 0")
        pre = [f"buffer_load_dwordx4 {vr(E+4*r,4)}, v{T0}, {sr(S_WS,4)}, 0 offen offset:{64*r} {wl}" for r in range(4)]
        warm = [[f"buffer_load_dwordx4 {vr(WARM+4*r,4)}, v{VWARM}, {sr(S_WS,4)}, 0 offen offset:{1024*r} {wl}"] for r in range(3)] if o["warm"] else []
        if tw:
            warm = [[f"buffer_load_dword v{WARM}, v{VWARM}, {sr(S_WS,4)}, 0 offen {wl}"]]
        C = []
        g = lambda *x: C.append(list(x))

        def rank(r):
            m = S_MASK + 2 * r
            return [f"v_and_b32 v{T1}, v{CM}, v{E+r}", f"v_lshrrev_b32 v{T0}, 10, v{E+r}", f"v_cmp_eq_u32 {sr(m,2)}, v{T1}, v{CV}",
                    f"v_and_or_b32 v{TT+r}, v{T0}, v{TM}, v{TBS}",
                    f"s_mov_b64 exec, {sr(m,2)}", f"ds_add_rtn_u32 v{RK+r}, v{TT+r}, v{ONE}", "s_mov_b64 exec, -1"]

        def place(r):
            m = S_MASK + 2 * r
            return [f"v_add_u32 v{T1}, v{RK+r}, v{ST+r}", f"v_and_b32 v{T0}, 0x87e, v{E+r}", f"v_lshl_add_u32 v{T1}, v{T1}, 1, s{SW}",
                    f"v_add_u32 v{T0}, v{KB}, v{T0}", f"s_andn2_b64 exec, {sr(m,2)}, {sr(S_BAD,2)}",
                    f"ds_write_b16_d16_hi v{T1}, v{E+r} offset:{O_X}", f"ds_write_b16 v{T1}, v{T0} offset:{O_K}",
                    f"ds_write_b16 v{T1}, v{E+r} offset:{O_M}", "s_mov_b64 exec, -1"]
        g("@WAIT_E")
        g(f"v_cmp_ne_u32 {sr(S_BAD,2)}, 0, v{E+15}", f"v_cmp_ne_u32 {sr(S_MORE,2)}, 0, v{E+8}")
        for r in range(8):
            g(*rank(r))
        g(f"s_cmp_lg_u64 {sr(S_MORE,2)}, 0", "s_cbranch_scc1 L_more1", "L_more1b:", f"ds_read_b32 v{T0}, v{VW}", f"v_mov_b32 v{T1}, 0")
        self.tailblocks.append("\n".join(["L_more1:"] + [x for r in range(8, 15) for x in rank(r)] + ["s_branch L_more1b"]))
        g("s_waitcnt lgkmcnt(0)", f"s_mov_b64 vcc, {sr(S_EVEN,2)}",
          f"v_cndmask_b32_dpp v{T1}, v{T0}, v{T1}, vcc quad_perm:[0,0,2,2] row_mask:0xf bank_mask:0xf",
          f"v_add_u32 v{VST}, v{LO}, v{T1}", f"v_add_u32 v{T1}, v{T0}, v{T1}", f"v_cmp_lt_u32 vcc, 32, v{T1}",
          f"s_or_b32 s{S_BAD}, s{S_BAD}, s{S_BAD+1}", f"s_and_b32 s{S_T0}, vcc_lo, 0x1ff", f"s_or_b32 s{S_T0}, s{S_T0}, s{S_BAD}",
          "s_cbranch_scc1 L_greedy", "L_greedyb:")
        x = ["L_greedy:", f"s_mov_b32 s{S_T0}, 0", f"s_mov_b32 s{S_LINK}, 1"]
        for t in range(9):
            lo = 32 * (t >> 1)
            x += [f"v_readlane_b32 s{S_T1}, v{T0}, {t}", f"s_max_u32 s{S_T0}, s{S_T0}, {lo}",
                  f"v_writelane_b32 v{VST}, s{S_T0}, {t}", "s_nop 1", f"s_add_u32 s{S_T0}, s{S_T0}, s{S_T1}",
                  f"s_cmp_gt_u32 s{S_T0}, {lo + (64 if t & 1 else 32)}", f"s_cselect_b32 s{S_BAD}, 1, s{S_BAD}"]
        x += [f"s_cmp_lg_u32 s{S_BAD}, 0", f"s_cselect_b64 {sr(S_BAD,2)}, -1, 0",
              f"v_mov_b32 v{T1}, {L_PL + 256}", f"s_mov_b64 exec, {sr(S_BAD,2)}", f"ds_write_b32 v{T1}, v{ONE}", "s_mov_b64 exec, -1",
              "s_branch L_greedyb"]
        self.tailblocks.append("\n".join(x))
        g(*[f"ds_bpermute_b32 v{ST+r}, v{TT+r}, v{VST}" for r in range(8)])
        for r in range(8):
            g(*([f"s_waitcnt lgkmcnt({(7, 9, 11, 13, 15, 15, 15, 15)[r] if r else 7})"] if r < 8 else []), *place(r))
        g(f"s_cmp_lg_u64 {sr(S_MORE,2)}, 0", "s_cbranch_scc1 L_more2", "L_more2b:",
          *[f"ds_read_u16 v{E+r}, v{VH} offset:{O_M+128*r}" for r in range(3)],
          *[f"ds_read2_b64 {vr(V_AD+4*j,4)}, v{VK} offset0:{(O_K+64*j)//8} offset1:{(O_K+64*j+32)//8}" for j in range(5)])
        self.tailblocks.append("\n".join(["L_more2:"] + [f"ds_bpermute_b32 v{ST+r}, v{TT+r}, v{VST}" for r in range(8, 15)] + ["s_waitcnt lgkmcnt(0)"]
                                         + [x for r in range(8, 15) for x in place(r)] + ["s_branch L_more2b"]))
        for r in range(3):
            g(*(["s_waitcnt lgkmcnt(5)"] if r == 0 else []),
              f"v_lshrrev_b32 v{T0}, 12, v{E+r}", f"v_cmp_ne_u32 vcc, 0, v{E+r}", f"v_min_u32 v{T0}, 8, v{T0}", f"v_add3_u32 v{T0}, v{T0}, v{HI}, {2*r}",
              f"v_lshlrev_b32 v{T1}, 4, v{T0}", f"v_lshrrev_b32 v{T0}, 1, v{T0}")
            g(f"v_lshlrev_b32 v{T1}, v{T1}, v{BM}", f"v_lshl_add_u32 v{T0}, v{T0}, 8, v{AB}", f"v_bfe_u32 v{T2}, v{E+r}, 7, 4",
              f"v_lshl_add_u32 v{T0}, v{T2}, 2, v{T0}", "s_mov_b64 exec, vcc", *(["s_mov_b32 exec_hi, 0"] if r == 2 else []),
              f"ds_xor_b32 v{T0}, v{T1} offset:{O_IDX}", "s_mov_b64 exec, -1")
        g(*[f"ds_read_b32 v{V_IR+r}, v{VW} offset:{O_IDX+256*r}" for r in range(7)])
        for j in range(5):
            g(*(["s_waitcnt lgkmcnt(10)"] if j == 0 else []), *[f"v_xor_b32 v{V_AD+4*j+q}, v{RX}, v{V_AD+4*j+q}" for q in range(4)])
        g(*self.bias_store())
        return pre, C, warm + self.wload_list(VA, VI8, o['peel'])

    def emit_build(self, pre, C, G):
        a = self.a
        for x in pre:
            a(x)
        nl = 0
        G = list(G)
        G0 = list(G)

        def load(n=1):
            nonlocal nl
            for _ in range(n):
                if G:
                    for x in G.pop(0):
                        a(x)
                    nl += 1
        acc = 0
        for grp in C:
            if grp[0] == "@WAIT_E":
                load(self.o["l0"])
                a(f"s_waitcnt vmcnt({nl})")
                continue
            if grp[0] in ("s_waitcnt lgkmcnt(0)", "s_waitcnt lgkmcnt(7)", "s_waitcnt lgkmcnt(5)"):
                load(self.o["lw"])
            for x in grp:
                a(x)
            acc += len(grp)
            while acc >= self.o["lper"]:
                acc -= self.o["lper"]
                load()
        if self.o["peel"]:
            self.issued, self.pending = G0[:len(G0) - len(G)], G
            return
        load(len(G) - self.o["ltail"])
        assert len(G) == self.o["ltail"]
        self.late_loads = [x for grp in G for x in grp]

    @staticmethod
    def regs(txt):
        k, body = txt[0], txt[1:].strip("[]")
        lo, hi = (body.split(":") + [body])[:2]
        return [(256 if k == "a" else 0) + r for r in range(int(lo), int(hi) + 1)]

    def emit_line(self, ops, vm, hist=()):
        a = self.a
        lds, hist = [], list(hist)

        def put(op):
            a(op.text)
            hist.append(op)
        for op in ops:
            touched = op.rd | op.wr
            for q, name, cap in ((lds, "lgkmcnt", 15), (vm, "vmcnt", self.o["vcap"])):
                hit = [i for i, w in enumerate(q) if w & touched]
                if hit:
                    n = min(len(q) - 1 - hit[-1], cap)
                    put(Op(f"s_waitcnt {name}({n})", "salu"))
                    del q[:len(q) - n]
            need = 0
            for d, p in enumerate(reversed(hist[-9:])):
                ws = sum(int(x.text[6:]) + 1 if x.text.startswith("s_nop") else 1 for x in hist[len(hist) - d:])
                r = 0
                if p.kind == "mx" and op.kind != "mx" and (p.wr & touched):
                    r = 8
                if p.kind in ("valu", "dpp") and op.kind in ("mx", "dpp") and (p.wr & op.rd):
                    r = 2
                if p.kind == "st" and (p.rd & op.wr):
                    r = 2
                need = max(need, r - ws)
            if need > 0:
                put(Op(f"s_nop {need-1}", "salu"))
            put(op)
            if op.kind == "lds":
                lds.append(op.wr)
            if op.kind in ("ld", "st"):
                vm.append(op.wr)

    def peel(self):
        o = self.o
        AX = V_BR
        acc = lambda m, t: (AX if m == 0 else V_ACC) + 4 * t
        Ba, Bb, Bc, Bd = (V_B + 8 * k for k in range(4))
        dst = lambda g: set(self.regs(g[-1].split()[1].rstrip(",")))
        vm = [dst(g) for g in self.issued]
        loads = [[Op(x, "salu") for x in g[:-1]] + [Op(g[-1], "ld", wr=dst(g))] for g in self.pending]

        def M(m, s, t, b):
            ir, h = aidx(s, t)
            return Op(f"v_smfmac_f32_16x16x64_bf16 {vr(acc(m,t),4)}, {afrag(s,t)}, {vr(b,8)}, v{ir}" + (" abid:1" if h else ""), "mx",
                      rd=list(rng(acc(m, t), 4)) + list(rng(b, 8)) + self.regs(afrag(s, t)) + [ir], wr=rng(acc(m, t), 4))

        def R(m, j, t):
            c, b = j + t, (Bc, Bd)[m]
            return Op(f"v_smfmac_f32_16x16x64_bf16 {vr(acc(m,t),4)}, {vr(V_X,4)}, {vr(b,8)}, v{V_IR+(c>>1)}" + (" abid:1" if c & 1 else ""), "mx",
                      rd=list(rng(acc(m, t), 4)) + list(rng(b, 8)) + list(rng(V_X, 4)), wr=rng(acc(m, t), 4))

        def B(m, s, b):
            return [Op(f"ds_read_b128 {vr(b+4*h,4)}, v{V_RD0+h} offset:{2048*s+TBL*m}", "lds", rd=[V_RD0 + h], wr=rng(b + 4 * h, 4)) for h in range(2)]

        def addr(j, b, r, base):
            ad = V_AD + 4 * j + (b >> 1)
            return Op(f"v_add_u32_sdwa v{r}, s{base}, v{ad} dst_sel:DWORD dst_unused:UNUSED_PAD src0_sel:DWORD src1_sel:WORD_{b&1}", "valu", rd=[ad], wr=[r])
        ops = [Op(f"ds_read_b32 v{V_X}, v{V_X}", "lds", rd=[V_X], wr=[V_X])] + B(0, 0, Ba)
        for m in range(2):
            ops += [Op(f"ds_read_b128 {vr(acc(m,t),4)}, v{V_TAB} offset:{O_BIAS+64*t}", "lds", rd=[V_TAB], wr=rng(acc(m, t), 4)) for t in range(9)]
            ops += loads.pop(0)
        ops += [Op(f"v_readfirstlane_b32 s{S_T0}, v{V_X}", "valu", rd=[V_X]), addr(0, 0, Bc, S_BUF), Op("s_nop 2", "salu"),
                Op(f"s_cmp_lg_u32 s{S_T0}, 0", "salu"), Op("s_cbranch_scc1 L_slow", "salu")]
        ngap = 126 + 26
        rho, credit = len(loads) / (ngap - o["ptail"]), 0.0

        def gap(mx, D=(), V=()):
            nonlocal credit
            ops.append(mx)
            credit += rho
            while credit >= 1 and loads:
                credit -= 1
                ops.extend(loads.pop(0))
            ops.extend(D)
            ops.extend(V)
        for s in range(7):
            for t in range(9):
                D, V = [], []
                if t == 0:
                    D += B(1, s, Bb)
                if s < 5:
                    if t == 8:
                        D.append(Op(f"ds_read_b128 {vr(V_X,4)}, v{V_TAB} offset:{O_X+64*s}", "lds", rd=[V_TAB], wr=rng(V_X, 4)))
                    else:
                        D += [Op(f"ds_read_u16 v{Bd+t}, v{Bc+t} offset:{TBL}", "lds", rd=[Bc + t], wr=[Bd + t]),
                              Op(f"ds_read_u16 v{Bc+t}, v{Bc+t}", "lds", rd=[Bc + t], wr=[Bc + t])]
                        if t < 7:
                            V.append(addr(s, t + 1, Bc + t + 1, S_BUF))
                elif t in (2, 3):
                    D.append(B(1, s + 2, Bc if s == 5 else Bd)[t - 2])
                gap(M(0, s, t, Ba), D, V)
            for t in range(9):
                gap(M(1, s, t, Bb), B(0, s + 1, Ba)[t:t + 1] if t < 2 else [])
            if s < 5:
                rs = [R(m, s, t) for m in (1, 0) for t in RT[s]]
                for n, x in enumerate(rs):
                    gap(x, [], [addr(s + 1, 0, Bc, S_BUF)] if n == len(rs) - 1 and s < 4 else [])
        assert not loads
        ops += B(0, 8, Bb)
        pk = lambda t, h: (AX + 32 + h) if t == 8 else AX + 2 * t + h
        cvt = lambda t: [Op(f"v_cvt_pk_bf16_f32 v{pk(t,h)}, v{acc(0,t)+2*h}, v{acc(0,t)+2*h+1}", "valu",
                            rd=[acc(0, t) + 2 * h, acc(0, t) + 2 * h + 1], wr=[pk(t, h)]) for h in range(2)]
        dpp = "quad_perm:[1,0,3,2] row_mask:0xf bank_mask:0xf"
        stp = o["st"] if o["stp"] is None else o["stp"]

        def exch(v):
            p0, p1, d0 = AX + 8 * v, AX + 8 * v + 4, (V_X, AX + 16)[v]
            x = []
            for half in range(2):
                for d in range(4):
                    if half == 0:
                        x.append(Op(f"v_cndmask_b32_dpp v{d0+d}, v{p1+d}, v{p0+d}, vcc {dpp}", "dpp", rd=[p0 + d, p1 + d], wr=[d0 + d]))
                    else:
                        x.append(Op(f"v_cndmask_b32_dpp v{p1+d}, v{p0+d}, v{p1+d}, vcc {dpp}", "dpp", rd=[p0 + d, p1 + d], wr=[p1 + d]))
                src = d0 if half == 0 else p1
                fl = stp[2 * v + half] if isinstance(stp, (tuple, list)) else stp
                x += [Op(f"buffer_store_dwordx4 {vr(src,4)}, v{V_ST}, {sr(S_OUT,4)}, s{S_OOFF} offen offset:{1152*half+128*v} {fl}", "st",
                         rd=list(rng(src, 4)) + [V_ST]), Op(f"s_mov_b64 vcc, {sr((S_ODD, S_EVEN)[half],2)}", "salu")]
            return x
        p8 = pk(8, 0)
        rdadv = [Op(f"v_add_u32 v{V_RD0+h}, {2*TBL}, v{V_RD0+h}", "valu", rd=[V_RD0 + h], wr=[V_RD0 + h]) for h in range(2)]
        after = {0: rdadv,
                 1: [Op(f"ds_bpermute_b32 v{p8+h}, v{V_BP}, v{p8+h}", "lds", rd=[V_BP, p8 + h], wr=[p8 + h]) for h in range(2)] if o["bperm"] else [],
                 3: [Op(f"buffer_store_dwordx2 {vr(p8,2)}, v{V_ST8}, {sr(S_OUT,4)}, s{S_OOFF} offen {o['st8']}", "st", rd=[p8, p8 + 1, V_ST8])],
                 5: exch(0)[:6], 6: exch(0)[6:], 7: [addr(0, b, V_BR + b, S_BUFN) for b in range(4)],
                 8: [addr(0, b, V_BR + b, S_BUFN) for b in range(4, 8)]}
        for n, t in enumerate(PEEL_T):
            ops += [M(0, 7, t, Ba), M(0, 8, t, Bb)]
            if n:
                ops += cvt(PEEL_T[n - 1])
            ops += after.get(n, [])
        ops += cvt(PEEL_T[-1]) + exch(1)
        self.emit_line(ops, vm)

    def slow_path(self, K):
        a = self.a
        o = self.o
        VA, VI8 = 104, 106
        a("L_slow:")
        a("s_waitcnt vmcnt(0) lgkmcnt(0)")
        a(f"s_mov_b32 s{S_MODE}, 0")
        a("L_sm:")
        a(f"s_lshl_b32 s{S_BASE}, s2, 1")
        a(f"s_add_u32 s{S_BASE}, s{S_BASE}, s{S_MODE}")
        a(f"s_add_u32 s{S_BASE}, s{S_BASE}, {PRIV0}")
        a(f"s_mul_i32 s{S_BASE}, s{S_BASE}, {COPY}")
        a(f"s_mov_b32 s{S_TASK}, 0")
        a("L_st:")
        self.producer("g", True)
        a(f"s_add_u32 s{S_TASK}, s{S_TASK}, 1")
        a(f"s_cmp_lt_u32 s{S_TASK}, {NTASK}")
        a("s_cbranch_scc1 L_st")
        a(f"s_add_u32 s{S_MODE}, s{S_MODE}, 1")
        a(f"s_cmp_lt_u32 s{S_MODE}, 2")
        a("s_cbranch_scc1 L_sm")
        self.lane_setup()
        self.dma_setup()
        a(f"s_mov_b32 s{S_OUT+2}, {XBYTES}")
        a(f"s_mov_b32 s{S_X+2}, {XBYTES}")
        a(f"s_mov_b32 s{S_IT}, 0")
        a("L_stile:")
        a("s_barrier")
        self.dma_tile()
        for t in range(9):
            a(f"ds_read_b128 {vr(V_ACC+4*t,4)}, v{V_TAB} offset:{O_BIAS+64*t}")
        a(f"s_mov_b32 s{S_MODE}, 0")
        a("L_spass:")
        a(f"s_lshl_b32 s{S_BASE}, s2, 1")
        a(f"s_add_u32 s{S_BASE}, s{S_BASE}, s{S_MODE}")
        a(f"s_add_u32 s{S_BASE}, s{S_BASE}, {PRIV0}")
        a(f"s_mul_i32 s{S_BASE}, s{S_BASE}, {COPY}")
        self.waddr(VA, VI8)
        for grp in self.wload_list(VA, VI8):
            for x in grp:
                a(x)
        a("s_waitcnt vmcnt(0)")
        a("s_barrier")
        for s in range(9):
            a(f"ds_read_b128 {vr(V_B,4)}, v{V_RD0} offset:{2048*s}")
            a(f"ds_read_b128 {vr(V_B+4,4)}, v{V_RD1} offset:{2048*s}")
            a("s_waitcnt lgkmcnt(0)")
            for t in range(9):
                ir, h = aidx(s, t)
                a(f"v_smfmac_f32_16x16x64_bf16 {vr(V_ACC+4*t,4)}, {afrag(s,t)}, {vr(V_B,8)}, v{ir}" + (" abid:1" if h else ""))
            a("s_nop 7")
        a(f"s_add_u32 s{S_MODE}, s{S_MODE}, 1")
        a(f"s_cmp_lt_u32 s{S_MODE}, 2")
        a("s_cbranch_scc1 L_spass")
        for t in range(7):
            for h in range(2):
                a(f"v_cvt_pk_bf16_f32 v{V_P+2*t+h}, v{V_ACC+4*t+2*h}, v{V_ACC+4*t+2*h+1}")
        a(f"s_mov_b64 vcc, {sr(S_EVEN,2)}")
        self.emit_epi(self.assemble_loop(False, "")[2])
        for r in (S_XOFF, S_XOFF5, S_OOFF):
            a(f"s_add_u32 s{r}, s{r}, s{S_XINC}")
        a(f"s_mov_b32 s{S_XINC}, {256*TB}")
        a(f"s_add_u32 s{S_IT}, s{S_IT}, 1")
        a(f"s_cmp_lt_u32 s{S_IT}, s{S_NT}")
        a("s_cbranch_scc1 L_stile")
        a("s_branch L_fin")

    def loop_ops(self, links, dma, clm=False):
        o = self.o
        acc = lambda t: rng(V_ACC + 4 * t, 4)
        ch = o["chain"]
        bb = lambda s: V_P if (ch and s == 6) else V_B + 8 * BBUF[s]
        RBUF = [V_BR, V_BR + 8, V_BR, V_P + 8 if ch else V_P, V_BR + 8]
        rt = RT if links else [[0, 1], [2, 3], [4, 5], [6, 7], [8]]
        ng = [8, 8, 8, 8, 8 if links else o["ng4"]]

        def M(s, t):
            ir, h = aidx(s, t)
            return Op(f"v_smfmac_f32_16x16x64_bf16 {vr(V_ACC+4*t,4)}, {afrag(s,t)}, {vr(bb(s),8)}, v{ir}" + (" abid:1" if h else ""),
                      "mx", rd=list(acc(t)) + list(rng(bb(s), 8)), wr=acc(t), tag=("M", s, t))

        def R(j, t):
            c = j + t
            return Op(f"v_smfmac_f32_16x16x64_bf16 {vr(V_ACC+4*t,4)}, {vr(V_X,4)}, {vr(RBUF[j],8)}, v{V_IR+(c>>1)}" + (" abid:1" if c & 1 else ""),
                      "mx", rd=list(acc(t)) + list(rng(RBUF[j], 8)) + list(rng(V_X, 4)), wr=acc(t), tag=("R", j, t))
        seq = []
        for t in range(9):
            seq += [M(0, t), M(1, t)]
        if ch:
            for steps, order, rs in (((2, 3), o["ord1"], (0, 1)), ((4, 5, 6), o["ord2"], (2, 3, 4))):
                for n, t in enumerate(order):
                    seq += [M(s, t) for s in steps]
                    if t // 2 in rs and t % 2 == 0:
                        j = t // 2
                        assert t == 8 or order[n + 1] == t + 1
                        seq += [R(j, t)] + ([R(j, t - 1)] if links and j else []) + ([R(j, t + 1)] if t < 8 else [])
        else:
            for s in range(2, 7):
                seq += [M(s, t) for t in range(9)]
        for t in range(9):
            seq += [M(7, t), M(8, t)]
        if ch:
            rpos = [min(i for i, x in enumerate(seq) if x.tag[:2] == ("R", j)) for j in range(5)]
        else:
            rpos = list(o["rposl"] if links else o["rpos"])
            for j in range(5):
                for n, t in enumerate(rt[j]):
                    seq.insert(rpos[j] + n, R(j, t))
        N = len(seq)
        pos = {x.tag: i for i, x in enumerate(seq)}
        BAR = rpos[4] + len(rt[4]) - 1
        c0 = N - 15 - BAR
        assert c0 == (4 if ch else 0)
        self.drain = rpos[4] - 1
        T = lambda g: (g - BAR - 1) % N
        first = lambda s: T(min(pos[("M", s, t)] for t in range(9)))
        lastu = lambda s: max(pos[("M", s, t)] for t in range(9))
        LEAD = o["lead"]
        ST = [[] for _ in range(N)]
        S = [[] for _ in range(N)]
        D = [[] for _ in range(N)]
        V = [[] for _ in range(N)]
        keep = lambda op: (dma or op.tag != "dma") and (clm or op.tag != "clm")

        def pdst(t, h):
            return V_P8 + h if t == 8 else V_P + 2 * t + h
        dq, vq = [], []
        for t in range(9):
            for h in range(2):
                V[c0 + 2 * t + h].append(Op(f"v_cvt_pk_bf16_f32 v{pdst(t,h)}, v{V_ACC+4*t+2*h}, v{V_ACC+4*t+2*h+1}", "valu",
                                       rd=[V_ACC + 4 * t + 2 * h, V_ACC + 4 * t + 2 * h + 1], wr=[pdst(t, h)], tag="epi"))
            dq.append([Op(f"ds_read_b128 {vr(V_ACC+4*t,4)}, v{V_TAB} offset:{O_BIAS+64*t}", "lds", rd=[V_TAB], wr=acc(t), tag="pre"),
                       c0 + 2 * t + 2, c0 + 2 * t + 2, None])
        def stf(e):
            f = o["stc"] if clm else (o["st"] if dma else o["stn"])
            f = o["st"] if f is None else f
            return f[e] if isinstance(f, (tuple, list)) else f
        dpp = "quad_perm:[1,0,3,2] row_mask:0xf bank_mask:0xf"
        stg = [T(g) for g in o["stg"]]
        for v in range(2):
            p0, p1 = V_P + 8 * v, V_P + 8 * v + 4
            d0 = V_T if v == 0 else V_P
            for half in range(2):
                e = 2 * v + half
                for d in range(4):
                    if half == 0:
                        op = Op(f"v_cndmask_b32_dpp v{d0+d}, v{p1+d}, v{p0+d}, vcc {dpp}", "dpp", rd=[p0 + d, p1 + d], wr=[d0 + d], tag="epi")
                    else:
                        op = Op(f"v_cndmask_b32_dpp v{p1+d}, v{p0+d}, v{p1+d}, vcc {dpp}", "dpp", rd=[p0 + d, p1 + d], wr=[p1 + d], tag="epi")
                    vq.append([op, stg[e - 1] if e else c0 + 18, stg[e] - 4 + d, None])
                src = d0 if half == 0 else p1
                ST[stg[e]].append(Op(f"buffer_store_dwordx4 {vr(src,4)}, v{V_ST}, {sr(S_OUT,4)}, s{S_OOFF} offen offset:{1152*half+128*v} {stf(e)}",
                                     "st", rd=list(rng(src, 4)) + [V_ST], tag="epi"))
                ST[stg[e]].append(Op(f"s_mov_b64 vcc, {sr((S_ODD, S_EVEN)[half],2)}", "salu", tag="epi"))
        if o["bperm"]:
            for h in range(2):
                dq.append([Op(f"ds_bpermute_b32 v{V_P8+h}, v{V_BP}, v{V_P8+h}", "lds", rd=[V_BP, V_P8 + h], wr=[V_P8 + h], tag="epi"),
                           c0 + 18, stg[4] - LEAD - 2 + h, None])
        ST[stg[4]].append(Op(f"buffer_store_dwordx2 {vr(V_P8,2)}, v{V_ST8}, {sr(S_OUT,4)}, s{S_OOFF} offen {o['st8']}", "st",
                             rd=[V_P8, V_P8 + 1, V_ST8], tag="epi"))
        rl = lambda j: T(rpos[j] + len(rt[j]) - 1)
        free = [rl(2), 1, rl(0), stg[3 if ch else 2] + 1, rl(1)]
        for j in range(5):
            dl = T(rpos[j]) - LEAD - 1
            for b in range(ng[j]):
                r = RBUF[j] + b
                ad = V_AD + 4 * j + (b >> 1)
                av = Op(f"v_add_u32_sdwa v{r}, s{S_BUFN if j == 0 else S_BUF}, v{ad} dst_sel:DWORD dst_unused:UNUSED_PAD src0_sel:DWORD src1_sel:WORD_{b&1}",
                        "valu", rd=[ad], wr=[r], tag="pre" if j == 0 else "")
                gd = dl - o["gsp"] * (ng[j] - 1 - b)
                vq.append([av, free[j], (N - 2 - (7 - b)) if j == 0 else gd - 1, None])
                dq.append([Op(f"ds_read_u16 v{r}, v{r}", "lds", rd=[r], wr=[r], tag="pre"), 0, gd, None if j == 0 else av])
            dq.append([Op(f"ds_read_b128 {vr(V_X,4)}, v{V_TAB} offset:{O_X+64*j}", "lds", rd=[V_TAB], wr=rng(V_X, 4), tag="pre"),
                       0 if j == 0 else rl(j - 1), dl, None])
        prev = {0: None, 1: None, 2: 7, 3: 8, 4: 0, 5: 1, 6: 4, 7: 2, 8: 3}
        lastb = []
        for s in range(9):
            for h in range(2):
                op = Op(f"ds_read_b128 {vr(bb(s)+4*h,4)}, v{(V_RD0, V_RD1)[h]} offset:{2048*s}", "lds",
                        rd=[(V_RD0, V_RD1)[h]], wr=rng(bb(s) + 4 * h, 4), tag="pre")
                fs = first(s) if s < 7 else (T(rpos[4]) - 2 * (9 - s) if ch else T(pos[("M", s, 0)]))
                rel = 0 if prev[s] is None else T(lastu(prev[s]))
                if ch and s == 6:
                    rel = stg[2] + 1
                dq.append([op, rel, fs - LEAD - 2 + h, None])
                lastb.append(op)
        for h in range(2):
            vq.append([Op(f"v_add_u32 v{V_RD0+h}, s{S_DELTA}, v{V_RD0+h}", "valu", rd=[V_RD0 + h], wr=[V_RD0 + h]), 0, N - 2, lastb])
        sq = []
        dmag = [g + (self.drain - 70) * (g > 50) for g in o["dmag"]]
        assert all(b - a_ >= 2 for a_, b in zip(dmag, dmag[1:]))
        if not o["nodma"]:
            for j, g in enumerate(dmag):
                g = T(g)
                ld = f"buffer_load_dwordx4 v{V_DMA}, {sr(S_X,4)}, s{S_XOFF if j < 4 else S_XOFF5} offen offset:{256*j if j < 4 else 896} {o['ld']} lds"
                if j < 4:
                    D[g].append(Op(ld, "dma", rd=[V_DMA], tag="dma"))
                    S[g - 1].append(Op(f"s_add_u32 m0, s{S_M0B}, {3840*j}", "salu", tag="dma"))
                else:
                    D[g] += [Op(f"s_mov_b64 exec, {sr(S_HALF,2)}", "salu", tag="dma"), Op(ld, "dma", rd=[V_DMA], tag="dma"),
                             Op("s_mov_b64 exec, -1", "salu", tag="dma")]
                    S[g - 1].append(Op(f"s_add_u32 m0, s{S_M0B}, s{S_M05}", "salu", tag="dma"))
                    V[g] = None
        XV = [[] for _ in range(N)]
        if self.dyn:
            gl = T(o["mbg"] + self.drain - 70) - 1
            XV[T(0)].append(Op(f"v_mov_b32 v{V_C}, 1", "valu", wr=[V_C], tag="clm"))
            D[T(1)].append(Op(f"buffer_atomic_add v{V_C}, v{V_BP}, {sr(S_B,4)}, 0 offen sc0 sc1", "dma", rd=[V_BP], tag="clm"))
            assert not D[gl + 1] and not S[gl + 1] and max(stg) <= gl
            gw = gl + 1 if o["cwg"] is None else T(o["cwg"])
            assert gw not in stg and T(1) < gw <= gl + 1
            S[gw].append(Op(f"s_waitcnt vmcnt({sum(1 for g in stg if g < gw) + sum(1 for g in dmag if T(g) < gw)})", "salu", tag="clm"))
            if o["dwg"] is not None and dma and not clm:
                gw = T(o["dwg"])
                assert gw not in stg
                S[gw].append(Op(f"s_waitcnt vmcnt({sum(1 for g in stg if g < gw) + sum(1 for g in dmag if T(g) < gw)})", "salu"))
            D[gl + 1] += [Op(f"s_mov_b64 exec, {sr(S_W0,2)}", "salu", tag="clm"),
                          Op(f"ds_write_b32 v{V_RD0}, v{V_C} offset:{TB}", "lds", rd=[V_RD0], tag="clm"), Op("s_mov_b64 exec, -1", "salu", tag="clm")]
            V[gl + 1] = None
            D[0].append(Op(f"ds_read_b32 v{V_C}, v{V_RD0} offset:{TB}", "lds", rd=[V_RD0], wr=[V_C], tag="clm"))
            XV[LEAD + 1].append(Op(f"v_readfirstlane_b32 s{S_CL}, v{V_C}", "valu", rd=[V_C], tag="clm"))
        placed = {}
        for g in range(N - 1):
            if not D[g] and g != T(N - 1):
                c = [x for x in dq if x[1] <= g and (x[3] is None or placed.get(id(x[3]), N) < g) and x[2] - g <= o["eager"]]
                if c:
                    x = min(c, key=lambda x: x[2])
                    dq.remove(x)
                    D[g].append(x[0])
                    placed[id(x[0])] = g
                    if g > x[2] and o["verbose"]:
                        print("; late D", g - x[2], x[0].text, file=sys.stderr)
            if V[g] is None:
                V[g] = []
                continue
            cap = 2 if (ST[g] and "x4" in ST[g][0].text) else 1
            while len(V[g]) < cap:
                c = [x for x in vq if x[1] <= g and (x[3] is None or all(placed.get(id(y), N) <= g for y in x[3]))]
                if not c:
                    break
                x = min(c, key=lambda x: x[2])
                vq.remove(x)
                V[g].append(x[0])
                placed[id(x[0])] = g
                assert g <= x[2] or x[0].kind != "dpp", ("late", x[0].text)
        assert not dq and not vq, ([x[0].text for x in dq], [x[0].text for x in vq])
        for g in range(N):
            V[g] += XV[g]
        if self.dyn:
            rdup = max(placed[id(x)] for gl_ in V for x in gl_ if id(x) in placed and f"s{S_DELTA}," in x.text)
            assert rdup <= gl and gl + 1 < T(self.drain) and T(min(o["stg"])) > T(1)
        S[N - 1] += ([] if clm else [Op(f"s_waitcnt vmcnt({o['vmw']})", "salu")]) + [Op("s_barrier", "bar")]
        lastdma = T(dmag[4])
        la = max(placed[id(x)] for gl in V for x in gl if id(x) in placed and f"s{S_BUF}," in x.text)
        fn = min(placed[id(x)] for gl in V for x in gl if id(x) in placed and (f"s{S_BUFN}," in x.text or f"s{S_DELTA}," in x.text))
        sq = [([f"s_mov_b32 s{S_BUF}, s{S_BUFN}"], 0, 0),
              ([f"s_cmp_eq_u32 s{S_BUFN}, {(NB-1)*TBL}", f"s_cselect_b32 s{S_DELTA}, {-(NB-1)*TBL}, s{S_CTB}", f"s_add_u32 s{S_BUFN}, s{S_BUFN}, s{S_DELTA}"], c0 + 18, fn),
              ]
        if self.dyn:
            LK = self.dyn[1]
            sq.append((([] if clm else [f"s_mov_b32 s{S_OUT+2}, {XBYTES}"]) + [f"s_mov_b32 s{S_OOFF}, s{S_Q}"]
                       + [f"s_mov_b32 s{S_Q+k}, s{S_Q+k+1}" for k in range(LK - 1)]
                       + [f"s_mov_b32 s{S_Q+LK-1}, s{S_XOFF}" if clm else f"s_add_u32 s{S_Q+LK-1}, s{S_Q+LK-1}, {256*TB}"], stg[4] + 1, N - 2))
        else:
            sq.append(([f"s_mov_b32 s{S_OUT+2}, {XBYTES}", f"s_add_u32 s{S_OOFF}, s{S_OOFF}, s{S_OINC}", f"s_mov_b32 s{S_OINC}, s{S_OINC2}",
                        f"s_mov_b32 s{S_OINC2}, {256*TB}"], stg[4] + 1, N - 2))
        if not clm or o["trace"]:
            sq.append(([f"s_add_u32 s{S_IT}, s{S_IT}, 1"], c0 + 18, N - 2))
        if clm:
            ps = o["psh"]
            sq += [([f"s_add_u32 s{S_XOFF5}, s{S_XOFF}, s{S_K5}"], c0 + 18, lastdma - 2),
                   (self.dma_advance()[2:], lastdma + 1, N + 8),
                   ([f"s_lshr_b32 s{S_CT}, s{S_CL}, {ps}", f"s_mul_i32 s{S_CT}, s{S_CT}, {(256 - (1 << ps))*TB}", f"s_mul_i32 s{S_CT+1}, s{S_CL}, {TB}",
                     f"s_add_u32 s{S_CT}, s{S_CT}, s{S_CB}", f"s_add_u32 s{S_XOFF}, s{S_CT}, s{S_CT+1}"], LEAD + 2, T(N - 1) - 2),
                   ([f"s_cmp_lt_u32 s{S_CL}, {(16 - self.dyn[0]) << ps}"], T(N - 1) - 1, T(N - 1) - 1)]
        else:
            if dma:
                sq += [(self.dma_advance(), lastdma + 1, N + 12)]
            sq.append(([f"s_bitcmp1_b32 s{S_DMASK if dma else S_NMASK}, s{S_IT}"], T(N - 1) - 1, T(N - 1) - 1))
        G = lambda A: [[x for x in A[T(g)] if keep(x)] for g in range(N)]
        return seq, G(ST), G(S), G(D), G(V), [(x, (lo + BAR + 1), (hi + BAR + 1)) for x, lo, hi in sq], BAR

    def assemble_loop(self, links, label, dma=True, clm=False):
        seq, ST, S, D, V, sq, BAR = self.loop_ops(links, dma, clm)
        N = len(seq)
        flat = []
        for rep in range(2):
            for g in range(N):
                a0 = rep * N + g
                flat.append((seq[g], a0 - 1))
                for x in ST[g]:
                    flat.append((x, a0 - 1))
                for x in D[g] + V[g]:
                    flat.append((x, a0))
        gap_of = {}
        k = 0
        lds = []
        for rep in range(2):
            for g in range(N):
                k += 1 + len(ST[g])
                for x in D[g] + V[g]:
                    if x.kind == "lds":
                        lds.append((k, rep * N + g))
                    k += 1
        done = -1
        W = {}
        minlead = 99
        for i, (op, wg) in enumerate(flat):
            touched = op.rd | op.wr
            need = -1
            for n, (k, g) in enumerate(lds):
                if k < i and n > done and (flat[k][0].wr & touched):
                    need = n
            if need >= 0:
                assert lds[need][1] < wg
                issued = [n for n, (k, g) in enumerate(lds) if g < wg]
                cnt = min(issued[-1] - need, 15)
                done = issued[-1] - cnt
                if wg >= N - 1 and wg < 2 * N - 1:
                    W[wg % N] = min(cnt, W.get(wg % N, 99))
                    if self.o["verbose"]:
                        print(f"; wait gap {wg % N} cnt {cnt} lead {wg - lds[need][1]} for {flat[lds[need][0]][0].text}", file=sys.stderr)
        W[self.drain] = 0
        if clm:
            mb = [g for g in range(N) if any("ds_write" in x.text for x in D[g])][0]
            assert not [g for g in W if mb < g < self.drain]
        for g, c in W.items():
            S[g].insert(0, Op(f"s_waitcnt lgkmcnt({c})", "salu"))
        if not self.o["drop"]:
            last = max(g for g in range(BAR + 1) if any(x.kind == "lds" for x in D[g]))
            assert any(W.get(g) == 0 for g in range(last + 1, BAR + 1)), "tile reads not drained at the barrier"

        def room(g, extra=0, resv=True):
            g %= N
            if g == BAR or g == N - 1 or any(x.kind == "dma" for x in D[g]):
                return False
            cap = 1 if D[g] else (2 if V[g] else 3)
            if label and not clm and resv:
                if g == self.drain - 1:
                    return False
                cap -= g == self.drain - 2
            return len(S[g]) + extra < cap and not ST[g]
        sccfree = lambda x: x.text.startswith(("s_waitcnt", "s_mov", "s_barrier"))
        locked = set()
        for texts, lo, hi in sq:
            g = lo
            n = 0
            while n < len(texts):
                chain = [texts[n]]
                if texts[n].startswith(("s_cmp", "s_bitcmp")):
                    while n + len(chain) < len(texts) and texts[n + len(chain)].startswith("s_cselect"):
                        chain.append(texts[n + len(chain)])
                while True:
                    assert g <= hi, ("no room", chain)
                    where, z = [], g
                    ok = room(g) and ((g % N) not in locked or chain[0].startswith("s_mov"))
                    cnt = {}
                    for k, tx in enumerate(chain):
                        while ok and not room(z, cnt.get(z, 0)):
                            z += 1
                            ok = z <= hi and all(sccfree(x) for x in S[z % N]) and (clm or z % N != self.drain - 1)
                        where.append(z)
                        cnt[z] = cnt.get(z, 0) + 1
                    if ok:
                        break
                    g += 1
                for z, tx in zip(where, chain):
                    S[z % N].append(Op(tx, "salu"))
                if len(chain) > 1:
                    locked.update(z % N for z in range(where[0], where[-1]))
                g = where[-1]
                n += len(chain)
        assert all(sccfree(x) for x in S[N - 1])
        if label and not clm:
            gz = self.drain - (2 if self.o["trace"] else 1)
            assert self.o["chain"] and (self.o["trace"] or (not (S[gz] or D[gz] or V[gz] or ST[gz]) and room(gz - 1, 0, False) and (gz - 1) not in locked))
            assert all(x.kind not in ("dma", "st") for g in range(gz, N) for x in D[g] + ST[g]) and max(self.o["stg"]) < min(self.o["dmag"])
            S[gz - (0 if self.o["trace"] else 1)].append(Op(f"s_bitcmp1_b32 s{S_WMASK}, s{S_IT}", "salu"))
            S[gz] += [Op(f"s_cbranch_scc1 {label}_w", "salu"), Op(f"{label}_wb:", "label")]
            self.tailblocks.append(f"{label}_w:\ns_bitcmp1_b32 s{S_WMASK2}, s{S_IT}\ns_waitcnt vmcnt({self.whi})\n"
                                   f"s_cbranch_scc0 {label}_wb\ns_waitcnt vmcnt({self.wlo})\ns_branch {label}_wb")
        if self.o["trace"]:
            g0 = max(g for g, c in W.items() if c == 0 and g <= BAR)
            S[g0 - 1] += [Op("s_memrealtime s[98:99]", "salu"), Op("s_memtime s[96:97]", "salu"), Op(f"s_add_u32 s95, s{S_IT}, 32", "salu")]
            V[g0] += [Op(f"s_mov_b32 m0, s{S_IT}", "salu"), Op("v_writelane_b32 v254, s98, m0", "salu"), Op("s_mov_b32 m0, s95", "salu"), Op("v_writelane_b32 v254, s96, m0", "salu")]
        body = []
        for g in range(N):
            body += [x for x in [seq[g]] if not any(d in x.text for d in self.o["dropm"])] + ST[g] + S[g] + D[g] + V[g]
            if self.o["pad"] and g % self.o["pad"] == 0 and g < N - 2:
                body.append(Op("s_nop 3", "salu"))
        body = [x for x in body if x.kind == "mx" or not any(d in x.text for d in self.o["drop"])]
        body.append(Op(f"s_cbranch_scc1 {label}", "salu"))
        if not self.o["drop"]:
            real = [x for x in body if x.kind != "label"]
            m = len(real)
            for i, op in enumerate(real):
                for d in range(1, 10):
                    p = real[(i - d) % m]
                    ws = d - 1
                    if p.kind == "mx" and op.kind != "mx" and (p.wr & (op.rd | op.wr)):
                        assert ws >= 8, ("mx->x", p.text, op.text, ws)
                    if p.kind in ("valu", "dpp") and op.kind == "mx" and (p.wr & op.rd):
                        assert ws >= 2, ("valu->mx", p.text, op.text, ws)
                    if p.kind in ("valu", "dpp") and op.kind == "dpp" and (p.wr & op.rd):
                        assert ws >= 2, ("valu->dpp", p.text, op.text, ws)
                    if p.kind == "st" and (p.rd & op.wr):
                        assert ws >= 2, ("st war", p.text, op.text, ws)
        pro = [x for g in range(N) for x in V[g] if x.tag == "pre" or (g > BAR and "sdwa" in x.text)] \
            + [x for g in range(BAR + 1, N) for x in D[g] if x.tag == "pre"]
        epi = [x for g in range(BAR) for x in ST[g] + D[g] + V[g] if x.tag == "epi"]
        return pro, body, epi

    def emit_epi(self, epi):
        cv = [x for x in epi if "v_cvt" in x.text]
        bp = [x for x in epi if x.kind == "lds"]
        rest = [x for x in epi if x not in cv and x not in bp]
        ops = rest[:6] + cv[2:] + bp + rest[6:12] + cv[:2] + rest[12:]
        if self.o["ste"] is not None:
            ops = [Op(x.text.replace(" sc1", " " + self.o["ste"]), x.kind, x.rd, x.wr) if x.kind == "st" else x for x in ops]
        hist = [Op("", "mx", wr=rng(V_ACC + 28, 8)), Op("", "valu", wr=rng(V_P, 14)), Op("", "salu")]
        self.emit_line(ops, [], hist)

    def main_loop(self, links, sfx):
        a = self.a
        pro, body, epi = self.assemble_loop(links, "L_loop" + sfx)
        if not self.o["peel"]:
            late = list(self.late_loads)
            for n, op in enumerate(pro):
                a(op.text)
                if n % 6 == 5:
                    while late and not late[0].startswith("buffer"):
                        a(late.pop(0))
                    if late:
                        a(late.pop(0))
            for x in late[:8]:
                a(x)
            a("s_waitcnt lgkmcnt(0)")
            a(f"v_readfirstlane_b32 s{S_T0}, v{V_T}")
            a("s_nop 3")
            a(f"s_cmp_lg_u32 s{S_T0}, 0")
            a("s_cbranch_scc1 L_slow")
            for x in late[8:]:
                a(x)
            if max(p[1] for p in self.pol):
                self.prefetch(24, "L_pf2" + sfx)
            for x in self.dma_advance(first=True):
                a(x)
            a(f"s_waitcnt vmcnt({(20 if self.o['early'] else 0) + 5 * self.n2min})")
            self.stamp(5)
            a(f"s_bitcmp1_b32 s{S_DMASK}, 0")
            a(f"s_cbranch_scc0 L_loopn{sfx}")
        a(".p2align 6")
        a(f"L_loop{sfx}:")
        for op in body:
            a(op.text)
        if self.o["wbl2"] is not None:
            a(f"s_lshr_b32 s{S_T0}, s2, 3")
            a(f"s_and_b32 s{S_T0}, s{S_T0}, {self.o['wbl2']}")
            a(f"s_or_b32 s{S_T0}, s{S_T0}, s{S_WAVE}")
            a(f"s_cbranch_scc1 L_loopn{sfx}")
            a("buffer_wbl2 sc1")
        if self.dyn:
            LK = self.dyn[1]
            a(f"s_cmp_lg_u32 s{S_IT}, {self.cl0}")
            a(f"s_cbranch_scc1 L_loopn{sfx}")
            a(".p2align 3")
            a(f"L_loopc{sfx}:")
            for op in self.assemble_loop(links, "L_loopc" + sfx, True, True)[1]:
                a(op.text)
            if self.o["trace"]:
                a(f"s_add_u32 s{S_NT}, s{S_IT}, {LK}")
                a(f"s_bfm_b32 s{S_NMASK}, s{S_NT}, 0")
                a(f"s_lshl_b32 s{S_WMASK}, {1 << (LK-1)}, s{S_IT}")
                a(f"s_lshl_b32 s{S_WMASK2}, {(1 << (LK-1)) if 5*(LK-1) < self.whi else 0}, s{S_IT}")
            else:
                a(f"s_mov_b32 s{S_IT}, 0")
                a(f"s_mov_b32 s{S_NT}, {LK}")
                a(f"s_mov_b32 s{S_NMASK}, {(1 << LK) - 1}")
                a(f"s_mov_b32 s{S_WMASK}, {(1 << (LK-1)) if 5*(LK-1) < self.o['vmw'] else 0}")
                a(f"s_mov_b32 s{S_WMASK2}, {(1 << (LK-1)) if 5*(LK-1) < self.whi else 0}")
            a(f"s_mov_b32 s{S_CL0}, -1")
            if self.o["stt"] is not None:
                keep, self.o["stn"] = self.o["stn"], self.o["stt"]
                for op in self.assemble_loop(links, "L_loopt" + sfx, False)[1][:-1]:
                    a(op.text)
                self.o["stn"] = keep
        if self.o["align2"]:
            a(".p2align 3")
        a(f"L_loopn{sfx}:")
        _, body, epi = self.assemble_loop(links, "L_loopn" + sfx, False)
        for op in body:
            a(op.text)
            if op.kind == "bar":
                a(f"L_loopn{sfx}_p3:")
        if self.dyn:
            a(f"s_cmp_eq_u32 s{S_IT}, s{S_CL0}")
            a(f"s_cbranch_scc1 L_loopc{sfx}")
        a(f"s_cmp_lt_u32 s{S_IT}, s{S_NT}")
        a(f"s_cbranch_scc1 L_loop{sfx}")
        self.emit_epi(epi)

    def loop_state(self):
        a = self.a
        pl = 2 if self.o["peel"] else 0
        a(f"s_mov_b32 s{S_IT}, {pl}")
        a(f"s_mov_b32 s{S_BUF}, 0")
        a(f"s_mov_b32 s{S_BUFN}, {pl*TBL}")
        if pl:
            a(f"s_mov_b32 s{S_OUT+2}, {XBYTES}")
        a(f"s_mov_b32 s{S_CTB}, {TBL}")
        a(f"s_mov_b32 s{S_OINC}, {256*TB if pl else 0}")
        a(f"s_mov_b64 vcc, {sr(S_EVEN,2)}")
        if self.dyn:
            NS, LK = self.dyn
            ps = self.o["psh"]
            a(f"s_andn2_b32 s{S_NMASK}, {(1 << self.cl0) - 1}, s{S_DMASK}")
            a(f"s_mov_b32 s{S_CL0}, {self.cl0}")
            a(f"s_add_u32 s{S_Q}, s{S_OOFF}, {pl*256*TB}")
            for k in range(1, LK):
                a(f"s_add_u32 s{S_Q+k}, s{S_Q+k-1}, {256*TB}")
            a(f"s_sub_u32 s{S_K5}, s{S_XOFF5}, s{S_XOFF}")
            a(f"s_lshr_b32 s{S_T0}, s2, {ps}")
            a(f"s_mul_i32 s{S_CB}, s{S_T0}, {TB << ps}")
            a(f"s_add_u32 s{S_CB}, s{S_CB}, {NS*256*TB}")
            a(f"s_lshl_b32 s{S_T0}, s{S_T0}, 7")
            a(f"s_add_u32 s{S_T0}, s{S_T0}, {CNT_OFF}")
            a(f"s_add_u32 s{S_B}, s{S_WS}, s{S_T0}")
            a(f"s_addc_u32 s{S_B+1}, s{S_WS+1}, 0")
            a(f"s_cmp_eq_u32 s{S_WAVE}, 0")
            a(f"s_cselect_b32 s{S_B+2}, 4, 0")
            a(f"s_cselect_b64 {sr(S_W0,2)}, 1, 0")
        else:
            a(f"s_bfm_b32 s{S_NMASK}, s{S_NT}, 0")
            a(f"s_andn2_b32 s{S_NMASK}, s{S_NMASK}, s{S_DMASK}")

    def stamp(self, n, r="s[98:99]"):
        if self.o["stamp"] and (self.o["stamp"] is True or n in self.o["stamp"]):
            a = self.a
            a(f"s_memtime {r}" if self.o["cyc"] and n in (5, 6) else f"s_memrealtime {r}")
            a("s_waitcnt lgkmcnt(0)")
            a(f"v_writelane_b32 v255, s{r[2:4]}, {n}")

    def descriptor(self, label, vg, ag):
        self.a(f""".amdhsa_kernel {label}
  .amdhsa_next_free_vgpr {vg}
  .amdhsa_next_free_sgpr 102
  .amdhsa_accum_offset {ag}
  .amdhsa_group_segment_fixed_size 0
  .amdhsa_float_denorm_mode_32 3
  .amdhsa_kernarg_size 48
  .amdhsa_user_sgpr_count 2
  .amdhsa_user_sgpr_kernarg_segment_ptr 1
  .amdhsa_system_sgpr_workgroup_id_x 1
.end_amdhsa_kernel""")

    def flush_tail(self):
        for b in self.tailblocks:
            self.a(b)
        self.tailblocks = []

    def gen(self):
        a = self.a
        o = self.o
        K = NAME + "_kernel"
        a(open("cdna_kernels/" + NAME + ".s.ref").read().split("; Override")[0].rstrip())
        if o["fused"]:
            a(f"; @launch grid=(256,1,1) block=(256,1,1) lds={LDS_BYTES}")
        else:
            a(f"; @launch kernel=prep_kernel grid=({NTASK},1,1) block=(256,1,1) lds={LDS_BYTES}")
            a(f"; @launch kernel={K} grid=(256,1,1) block=(256,1,1) lds={LDS_BYTES}")
        a('.amdgcn_target "amdgcn-amd-amdhsa--gfx950"\n.text')
        if not o["fused"]:
            self.entry("prep_kernel", NTASK)
            a(f"s_mov_b32 s{S_TASK}, s2\ns_mov_b32 s{S_BASE}, 0")
            self.producer("", False)
            a("L_end_prep_kernel:\ns_endpgm")
            self.flush_tail()
        self.entry(K, 256)
        a(f"s_mov_b32 s{S_BASE}, 0")
        msk = lambda p: hex(sum(1 << i for i in p[2] if not self.dyn or i < self.cl0) | p[0] << 20 | p[1] << 24)
        def pick(reg, vals):
            if len(set(vals)) == 1:
                a(f"s_mov_b32 s{reg}, {vals[0]}")
                return
            a(f"s_mov_b32 s{reg}, {vals[1]}")
            a(f"s_mov_b32 s{S_T0}, {vals[3]}")
            a(f"s_bitcmp1_b32 s2, {o['gsh']}")
            a(f"s_cselect_b32 s{reg}, s{reg}, {vals[0]}")
            a(f"s_cselect_b32 s{S_T0}, s{S_T0}, {vals[2]}")
            a(f"s_bitcmp1_b32 s2, {o['gsh2']}")
            a(f"s_cselect_b32 s{reg}, s{S_T0}, s{reg}")
        if o["fused"]:
            px = o["px"]
            if o["pspread"]:
                a(f"s_bfe_u32 s{S_TASK}, s2, {hex(2 << 16 | 3)}")
                a(f"s_mul_i32 s{S_TASK}, s{S_TASK}, {px}")
                a(f"s_and_b32 s{S_T0}, s2, 7")
                a(f"s_add_u32 s{S_TASK}, s{S_TASK}, s{S_T0}")
                a(f"s_lshr_b32 s{S_T1}, s2, 5")
                a(f"s_lshl3_add_u32 s{S_TASK}, s{S_TASK}, s{S_T1}")
            else:
                a(f"s_lshr_b32 s{S_TASK}, s2, 3")
                a(f"s_mul_i32 s{S_TASK}, s{S_TASK}, {px}")
                a(f"s_and_b32 s{S_T0}, s2, 7")
                a(f"s_add_u32 s{S_TASK}, s{S_TASK}, s{S_T0}")
            a(f"s_cmp_lt_u32 s{S_T0}, {px}")
            a(f"s_cselect_b32 s{S_TASK}, s{S_TASK}, 63")
            a(f"s_cmp_lt_u32 s{S_TASK}, {NTASK}")
            a("s_cbranch_scc1 L_prod")
        pick(S_DMASK, [msk(p) for p in self.pol[:4]])
        self.lane_setup()
        if o["fused"] and o["sig"] == 3:
            self.mb_addr(S_T0, S_T1)
            a(f"s_cmp_eq_u32 s{S_WAVE}, 0")
            a(f"s_cselect_b32 s{S_T0}, s{S_T0}, 0x40000000")
            a(f"v_mov_b32 v8, s{S_T0}")
            a("v_mov_b32 v9, 0")
        self.entry_wait()
        self.ptouch()
        if o["fused"] and o["sig"] == 3:
            a("s_mov_b64 exec, 1")
            a(f"buffer_store_dword v9, v8, {sr(S_WS,4)}, 0 offen sc1")
            a("s_mov_b64 exec, -1")
        a("L_cons3:")
        self.stamp(1)
        self.dma_setup()
        self.prefetch(20)
        self.stamp(2)
        if o["fused"]:
            a("s_branch L_rest")
            a("L_prod:")
            self.producer("", False)
            pick(S_DMASK, [msk(p) for p in self.pol[4:]] * 2)
            a("s_barrier")
            a(f"s_cmp_lg_u32 s{S_WAVE}, 0")
            a("s_cbranch_scc1 L_cons2")
            a("v_mov_b32 v8, 1")
            a("s_mov_b64 exec, 1")
            if o["sig"] == 2:
                a(f"s_lshr_b32 s{S_T0}, s{S_TASK}, 1")
                a(f"s_lshl_b32 s{S_T0}, s{S_T0}, 2")
                a(f"s_bitcmp1_b32 s{S_TASK}, 0")
                a(f"s_cselect_b32 s{S_T1}, 128, 0")
                a(f"s_add_u32 s{S_T0}, s{S_T0}, s{S_T1}")
                a(f"v_mov_b32 v9, s{S_T0}")
                a(f"buffer_store_dword v8, v9, {sr(S_DBG,4)}, 0 offen {o['fs']}")
            else:
                a(f"buffer_atomic_add v8, off, {sr(S_DBG,4)}, 0 offset:128 sc0 sc1")
                if o["sig"] == 3:
                    a("s_mov_b64 exec, -1")
                    a(f"s_mov_b32 s{S_T1}, {MB_OFF}")
                    a(f"v_lshl_add_u32 v10, v{V_LANE}, 7, s{S_T1}")
                    for k in range(1, 4):
                        a(f"v_add_u32 v{10+k}, {8192*k}, v10")
                a("v_mov_b32 v9, 1")
                a("s_waitcnt vmcnt(0)")
                a(f"v_readfirstlane_b32 s{S_T0}, v8")
                a("s_nop 3")
                a(f"s_cmp_lg_u32 s{S_T0}, {NTASK-1}")
                a("s_cbranch_scc1 L_notlast")
                if o["sig"] == 3:
                    for k in range(4):
                        a(f"buffer_store_dword v9, v{10+k}, {sr(S_WS,4)}, 0 offen sc1")
                    a("s_mov_b64 exec, 1")
                a(f"buffer_store_dword v9, off, {sr(S_DBG,4)}, 0 {o['fs']}")
                if o["diag"] and o["diag"][2] == "last":
                    a("s_mov_b32 s101, -1")
            a("L_notlast:")
            self.stamp(15)
            a("s_mov_b64 exec, -1")
            a("L_cons2:")
            self.lane_setup()
            if o["bar2"]:
                a("s_barrier")
            a("s_branch L_cons3")
            self.flush_tail()
            a("L_rest:")
        for reg, wm in ((S_WMASK, self.wmask), (S_WMASK2, self.wmask2)):
            pick(reg, [hex(x) for x in wm[:4]])
            if o["fused"]:
                pick(S_T1, [hex(x) for x in wm[4:]] * 2)
                a(f"s_cmp_lt_u32 s{S_TASK}, {NTASK}")
                a(f"s_cselect_b32 s{reg}, s{S_T1}, s{reg}")
        self.bias_load()
        self.lane_setup2()
        self.tables_init()
        pre, C, G = self.build()
        if o["fused"]:
            a(f"s_cmp_lg_u32 s{S_WAVE}, 0")
            a("s_cbranch_scc1 L_ready")
            if o["sig"] == 2:
                a(f"v_lshlrev_b32 v9, 2, v{V_LANE}")
                a("s_waitcnt vmcnt(0)")
            else:
                a("s_mov_b64 exec, 1")
            a(f"s_mov_b32 s{S_T1}, {o['maxpoll']}")
            if o["stamp"] and (o["stamp"] is True or 14 in o["stamp"]):
                a("s_waitcnt vmcnt(0)")
                self.stamp(14)
            if o["sig"] == 3:
                self.mb_addr(S_T0, S_MASK)
                a(f"v_mov_b32 v9, s{S_T0}")
                a(f"s_waitcnt vmcnt({5*min(p[0] for p in self.pol)})")
            a("L_poll:")
            if o["psleep"]:
                a(f"s_sleep {o['psleep']}")
            if o["sig"] == 3:
                a(f"s_and_b32 s{S_T0}, s{S_T1}, 15")
                a("s_cbranch_scc0 L_polld")
                a(f"buffer_load_dword v8, v9, {sr(S_WS,4)}, 0 offen sc1")
                a("L_pollb:")
                self.tailblocks.append(f"L_polld:\nbuffer_load_dword v8, off, {sr(S_DBG,4)}, 0 sc1\ns_branch L_pollb")
            else:
                a(f"buffer_load_dword v8, {'v9' if o['sig'] == 2 else 'off'}, {sr(S_DBG,4)}, 0 {'offen ' if o['sig'] == 2 else ''}{o['pl']}")
            a(f"s_sub_u32 s{S_T1}, s{S_T1}, 1")
            a("s_cbranch_scc1 L_giveup")
            a("s_waitcnt vmcnt(0)")
            if o["sig"] == 2:
                a("v_cmp_ne_u32 vcc, 0, v8")
                a(f"s_bcnt1_i32_b64 s{S_T0}, vcc")
                a(f"s_cmp_lt_u32 s{S_T0}, {NTASK}")
            else:
                a(f"v_readfirstlane_b32 s{S_T0}, v8")
                a("s_nop 3")
                a(f"s_cmp_lg_u32 s{S_T0}, 1")
            a("s_cbranch_scc1 L_poll")
            a("L_polled:")
            a("s_mov_b64 exec, -1")
            a("L_ready:")
            self.tailblocks.append(f"L_giveup:\ns_waitcnt vmcnt(0)\nv_mov_b32 v8, {L_PL + 256}\nv_mov_b32 v9, 1\nds_write_b32 v8, v9\ns_branch L_polled")
        a("s_waitcnt lgkmcnt(0)")
        a("s_barrier")
        self.stamp(3)
        self.emit_build(pre, C, G)
        self.stamp(4, "s[94:95]")
        self.loop_state()
        a("s_waitcnt lgkmcnt(0)")
        a(f"v_mov_b32 v{V_X if o['peel'] else V_T}, {L_PL + 256}")
        a("s_barrier")
        if o["peel"]:
            self.peel()
            if max(p[1] for p in self.pol):
                self.prefetch(24, "L_pf2")
            for x in self.dma_advance(first=True):
                a(x)
            a(f"s_add_u32 s{S_OOFF}, s{S_OOFF}, {256*TB}")
            self.stamp(5)
            a("s_waitcnt lgkmcnt(0)")
            a("s_barrier")
            if o["links"] is None:
                a(f"s_cmp_lg_u32 s{S_LINK}, 0")
                a("s_cbranch_scc1 L_loopnk_p3")
            a("s_branch L_loopn_p3")
        else:
            a(f"ds_read_b32 v{V_T}, v{V_T}")
            if o["links"] is None:
                a(f"s_cmp_lg_u32 s{S_LINK}, 0")
                a("s_cbranch_scc1 L_linked")
        self.main_loop(bool(o["links"]), "")
        a("L_fin:")
        if o["stamp"]:
            a(f"v_mbcnt_lo_u32_b32 v{V_LANE}, -1, 0\nv_mbcnt_hi_u32_b32 v{V_LANE}, -1, v{V_LANE}")
        self.stamp(6)
        if o["stamp"]:
            a("s_waitcnt vmcnt(0)")
            self.stamp(7)
            a("v_writelane_b32 v255, s100, 0")
            a(f"s_lshl_b32 s{S_T0}, s2, 2\ns_add_u32 s{S_T0}, s{S_T0}, s{S_WAVE}\ns_lshl_b32 s{S_T0}, s{S_T0}, 6")
            a(f"s_add_u32 s{S_T0}, s{S_T0}, {WSBYTES - 65536}")
            if o["trace"]:
                a(f"s_lshl_b32 s{S_T1}, s2, 2\ns_add_u32 s{S_T1}, s{S_T1}, s{S_WAVE}\ns_lshl_b32 s{S_T1}, s{S_T1}, 8")
                a(f"s_add_u32 s{S_T1}, s{S_T1}, {WSBYTES - 65536 - 262144}")
                a(f"v_lshl_add_u32 v8, v{V_LANE}, 2, s{S_T1}")
                a(f"buffer_store_dword v254, v8, {sr(S_WS,4)}, 0 offen")
                a("s_nop 1")
            a(f"v_lshl_add_u32 v254, v{V_LANE}, 2, s{S_T0}")
            a("s_mov_b32 exec_lo, 0xffff\ns_mov_b32 exec_hi, 0")
            a(f"buffer_store_dword v255, v254, {sr(S_WS,4)}, 0 offen")
            if o["diag"]:
                n1, n0, wg, mul = o["diag"]
                a(("s_cmp_lg_u32 s101, -1" if wg == "last" else f"s_cmp_lg_u32 s2, {wg}") + f"\ns_cbranch_scc1 L_end_{K}\ns_cmp_lg_u32 s{S_WAVE}, 0\ns_cbranch_scc1 L_end_{K}")
                a(f"v_readlane_b32 s60, v255, {n1}\nv_readlane_b32 s61, v255, {n0}\ns_nop 3\ns_sub_u32 s60, s60, s61\ns_mul_i32 s60, s60, {mul}")
                a("s_min_u32 s60, s60, 100000\ns_add_u32 s60, s60, 10000")
                a("L_diag:\ns_sleep 1\ns_memrealtime s[62:63]\ns_waitcnt lgkmcnt(0)\ns_sub_u32 s62, s62, s100\ns_cmp_lt_u32 s62, s60\ns_cbranch_scc1 L_diag")
        a(f"L_end_{K}:\ns_endpgm")
        self.flush_tail()
        if o["links"] is None:
            a("L_linked:")
            self.main_loop(True, "k")
            a("s_branch L_fin")
            self.flush_tail()
        self.slow_path(K)
        a('.section .rodata,"a"\n.p2align 6')
        if not o["fused"]:
            self.descriptor("prep_kernel", 128, 128)
            a(".p2align 6")
        self.descriptor(K, 512, 256)
        return "\n".join(self.L) + "\n"


if __name__ == "__main__":
    opts = eval("dict(" + (sys.argv[2] if len(sys.argv) > 2 else "") + ")")
    out = sys.argv[1] if len(sys.argv) > 1 else "cdna_kernels/" + NAME + ".s"
    open(out, "w").write(Gen(**opts).gen())
```

```python
import sys

NAME = "standalone__structured_sparse_n_m__ragged"
TB = 18432
TBL = TB + 128
NB = 8
CNT_OFF = 0x60000
MB_OFF = 0x68000
FL_OFF = 0x70000
CLEARER = 24
PRIV0 = 2
XBYTES = 75497472
WBYTES = 663552
WSBYTES = 301989888
A_OFF = 0
I_OFF = 331776
I8_OFF = I_OFF + 36864
R1_OFF = I8_OFF + 5120
R8_OFF = R1_OFF + 9216
COPY = 393216
NTASK = 41
L_WV = NB * TBL
WV_SZ = 3584
O_X, O_K, O_M, O_BIAS, O_IDX = 64, 384, 704, 1024, 1792
L_PL = L_WV + 4 * WV_SZ
LDS_BYTES = 163840
assert L_PL + 512 <= LDS_BYTES and L_WV % 256 == 0 and WV_SZ % 256 == 0

V_RD0, V_RD1, V_TAB, V_DMA, V_ST, V_ST8, V_BP, V_LANE = 0, 1, 2, 3, 4, 5, 6, 7
V_ACC = 8
V_B = 44
V_BR = 76
V_P = 92
V_T = 108
V_P8 = 112
V_X = 114
V_AD = 118
V_I = 138
V_I8 = 174
V_IR = 179
V_A = 186
S_X, S_OUT, S_WS, S_W, S_B, S_DBG = 16, 20, 24, 28, 32, 36
S_WAVE = 40
S_IT, S_BUF, S_DELTA, S_M0B, S_XOFF, S_OOFF = 41, 42, 43, 44, 45, 46
S_T0, S_T1 = 47, 3
S_MASK = 48
S_EVEN, S_ODD = 80, 82
S_TASK, S_TEND, S_BASE, S_MODE, S_CONT = 84, 85, 86, 87, 88
S_BAD = 90
S_MORE, S_LINK = 78, 89
S_C0 = 93
S_BUFN, S_CTB, S_OINC, S_XOFF5, S_M05, S_M0W, S_HALF = 4, 5, 6, 7, 8, 9, 10
S_NMASK = 12
S_WMASK, S_WMASK2 = 92, 87
S_XINC, S_OINC2, S_NT = 13, 14, 15
S_Q, S_CL, S_CB, S_K5, S_CL0, S_CT, S_W0 = 48, 56, 57, 58, 59, 60, 62
V_C = 7
S_DMASK, S_NB0 = 85, 88


def vr(b, n=1):
    return f"v{b}" if n == 1 else f"v[{b}:{b+n-1}]"


def sr(b, n=1):
    return f"s{b}" if n == 1 else f"s[{b}:{b+n-1}]"


def afrag(s, t):
    f = 9 * s + t
    return f"a[{4*f}:{4*f+3}]" if f < 64 else vr(V_A + 4 * (f - 64), 4)


def aidx(s, t):
    if t < 8:
        return V_I + 4 * s + (t >> 1), t & 1
    return V_I8 + (s >> 1), s & 1


BBUF = [0, 1, 2, 3, 0, 1, 0, 2, 3]
PEEL_T = [8, 0, 1, 2, 3, 4, 5, 6, 7]
RT = [[0, 1], [1, 2, 3], [3, 4, 5], [5, 6, 7], [7, 8]]


class Op:
    def __init__(self, text, kind, rd=(), wr=(), tag=""):
        self.text, self.kind, self.rd, self.wr, self.tag = text, kind, set(rd), set(wr), tag


def rng(b, n):
    return range(b, b + n)


class Gen:
    def __init__(self, **o):
        self.o = dict(fused=True, ld="nt", st="sc1", bperm=True, grp=None, nb0=None, gsh=3, gsh2=4, split=0, dyn=(10, 3), psh=6, peel=True, ptail=10, vcap=18, stp=None, stt=None, ste=None, mbg=64, cwg=46, dwg=20, wbl2=None, stn=None, pad=0, dropm=(), st8='', stc=None, stamp=False, nodma=False, wl="sc1", ws="sc1",
                      vmw=20, lper=14, drop=(), cyc=False, links=None, ng4=8, px=2, maxpoll=20015, warm=True, bcast=True, l0=12, lw=2, cwarm=True, ptouch=False, pspread=True, pfw=None, wtouch=False, bar2=True, early=True, ltail=24, coal=True, rpos=(18, 35, 50, 63, 75), rposl=(18, 36, 52, 66, 78),
                      lead=8, stg=(9, 16, 23, 30, 37), dmag=(44, 52, 60, 63, 66), gsp=2, eager=99, verbose=False, hack=None, diag=None, sig=1, psleep=0, pl='sc1', fs='sc1', isort=False, trace=False, chain=True, ord1=(0,1,4,5,6,2,3,7,8), ord2=(0,4,5,1,6,7,2,3,8), align2=True, order='hp')
        self.o.update(o)
        if self.o["grp"] is None and self.o["nb0"] is None:
            self.o.update(grp=[(3, 2, 2), (8, 0, 5), (3, 2, 2)])
        grp = self.o["grp"] or [(self.o["nb0"], 0, 0)] * 2
        if len(grp) != 6:
            grp = list(grp[:-1]) * (4 // (len(grp) - 1)) + [grp[-1]] * 2
        sp = self.o["split"]
        if sp:
            self.o["gsh"], self.o["gsh2"] = 0, 3
        self.pol, self.nt = [], []
        for c, (n1, n2, its) in enumerate(grp):
            nt = 16 + (sp if c % 2 == 0 else -sp)
            nb = n1 + n2
            its = list(its) if isinstance(its, (list, tuple)) else [its]
            while len(its) < nt - nb:
                its.append(its[-1] + 1)
            assert len(its) == nt - nb and all(nb + n - 7 <= i <= nb + n - 2 for n, i in enumerate(its)) and n1 >= 1, (n1, n2, its)
            self.pol.append((n1, n2, its))
            self.nt.append(nt)
        self.dyn = self.o["dyn"]
        if self.dyn:
            NS, LK = self.dyn
            self.cl0 = NS - LK - 1
            assert not sp and all(its[NS - 1 - n1 - n2] == self.cl0 and its[-1] == 15 - LK for n1, n2, its in self.pol) and self.cl0 >= 1
        self.n2min = min(p[1] for p in self.pol)
        req = []
        for (n1, n2, its), nt in zip(self.pol, self.nt):
            r = [63] * nt
            for tile in range(n1, nt):
                i = tile - 1
                a0 = (1 if self.o["peel"] else -1) if tile < n1 + n2 else its[tile - n1 - n2]
                r[i] = sum(10 if j in its else 5 for j in range(a0 + 1, i + 1)) + 5 * max(0, n1 + n2 - 1 - tile)
                if a0 < 0:
                    r[i] -= 5
            if self.o["peel"]:
                assert n1 >= 3 and its[0] >= 2 and not sp
            elif self.o["early"]:
                r[0] = min(r[0], 5 * n2 + (5 if 0 in its else 0))
            if self.dyn:
                r = r[:self.cl0] + [5 * (self.dyn[1] - 1)]
            req.append(r)
        low = sorted({x for r in req for x in r if x < self.o["vmw"]})
        self.wlo = low[0] if low else 0
        best = None
        for hi in low or [0]:
            cost = sum(x - (hi if x >= hi else self.wlo) for r in req[:4] for x in r[1:] if x < self.o["vmw"])
            if best is None or cost < best[0]:
                best = (cost, hi)
        self.whi = best[1]
        self.wmask = [sum(1 << (i + 1) for i, x in enumerate(r) if x < self.o["vmw"]) for r in req]
        self.wmask2 = [sum(1 << (i + 1) for i, x in enumerate(r) if x < self.whi) for r in req]
        self.req = req
        self.L = []
        self.tailblocks = []

    def a(self, s):
        self.L.extend(s.split("\n"))

    def entry(self, label, nwg):
        a = self.a
        a(f".globl {label}\n.p2align 8\n.type {label},@function\n{label}:")
        a("s_load_dwordx8 s[4:11], s[0:1], 0")
        a("s_load_dwordx4 s[12:15], s[0:1], 32")
        a(f"s_cmp_ge_u32 s2, {nwg}")
        a(f"s_cbranch_scc1 L_end_{label}")
        if self.o["stamp"]:
            a("s_memrealtime s[100:101]")
        a("v_lshlrev_b32 v3, 7, v0")
        if self.o["cwarm"]:
            a("s_getpc_b64 s[96:97]")
            a(f"v_min_u32 v2, L_slow-{label}, v3")
            a("global_load_dword v120, v2, s[96:97]")
        if self.o["wtouch"]:
            a(f"s_lshr_b32 s{S_T0}, s2, 3")
            a(f"s_mul_i32 s{S_T0}, s{S_T0}, {162*128}")
            a(f"v_add_u32 v3, s{S_T0}, v3")
            a(f"v_min_u32 v3, {WBYTES-128}, v3")
            a(f"s_and_b32 s{S_T0}, s2, {8 - self.o['px']}")
            a("s_waitcnt lgkmcnt(0)")
            a(f"s_cbranch_scc1 L_nt_{label}")
            a("global_load_dword v121, v3, s[6:7]")
            a(f"L_nt_{label}:")
        a("v_lshrrev_b32 v1, 6, v0")
        a(f"v_and_b32 v{V_LANE}, 63, v0")
        a(f"v_readfirstlane_b32 s{S_WAVE}, v1")

    def mb_addr(self, d, t):
        a = self.a
        a(f"s_lshr_b32 s{d}, s2, 4")
        a(f"s_and_b32 s{t}, s2, 7")
        a(f"s_lshl3_add_u32 s{d}, s{d}, s{t}")
        a(f"s_and_b32 s{t}, s2, 8")
        a(f"s_lshl4_add_u32 s{d}, s{t}, s{d}")
        a(f"s_lshl_b32 s{d}, s{d}, 7")
        a(f"s_add_u32 s{d}, s{d}, {MB_OFF}")

    def ptouch(self):
        if self.o["ptouch"]:
            a = self.a
            a("s_mov_b64 exec, 1")
            a(f"s_mov_b32 s{S_T0}, {MB_OFF + 0x8000}")
            a(f"buffer_load_dword v122, off, {sr(S_WS,4)}, s{S_T0} sc1")
            a(f"buffer_load_dword v123, off, {sr(S_DBG,4)}, 0 sc1")
            a("s_mov_b64 exec, -1")

    def srds(self, which):
        for srd, p, size in ((S_W, 6, WBYTES), (S_X, 4, XBYTES), (S_WS, 14, WSBYTES), (S_B, 8, 1152), (S_OUT, 10, 0), (S_DBG, 12, 256)):
            if srd in which:
                self.a(f"s_mov_b32 s{srd+2}, {size}")
                self.a(f"s_mov_b32 s{srd+3}, 0x20000")
                self.a(f"s_mov_b32 s{srd}, s{p}")
                self.a(f"s_and_b32 s{srd+1}, s{p+1}, 0xffff")

    def entry_wait(self, first=None):
        lst = (S_W, S_X, S_WS, S_B, S_OUT, S_DBG)
        if first is not False:
            self.a("s_waitcnt lgkmcnt(0)")
        self.srds(lst if first is None else (lst[:1] if first else lst[1:]))

    def producer(self, sfx, generic):
        a = self.a
        ws = self.o["ws"]
        W, Z, K = 8, 24, 28
        OA, NB_, IX = 36, 44, 48
        VL, VA, VI, VM0, VM1, VSEL, CJ = 50, 51, 52, 53, 54, 55, 56
        F0, F1, H, U, T0, T1, T2, VLI, VA2, VLD, VLR = 58, 59, 60, 61, 62, 63, 64, 65, 66, 67, 57
        C = S_MASK
        SEL = S_MASK + 16
        CNT = S_MASK + 27
        ln = f"v{V_LANE}"
        a(f"s_and_b32 s{C}, s{S_TASK}, 3")
        a(f"s_lshr_b32 s{C+1}, s{S_TASK}, 2")
        a(f"s_sub_u32 s{C+2}, s{S_TASK}, 36")
        a(f"s_lshl_b32 s{C+3}, s{S_WAVE}, 4")
        a(f"s_lshl_b32 s{C+4}, s{C+2}, 1")
        a(f"s_lshl_b32 s{C+5}, s{C}, 8")
        a(f"s_cmp_lt_u32 s{S_TASK}, 36")
        a(f"s_cselect_b32 s{C+4}, s{C+1}, s{C+4}")
        a(f"s_cselect_b32 s{C+5}, s{C+5}, 1024")
        a(f"s_cselect_b32 s{C+6}, 8, 73728")
        a(f"s_cselect_b32 s{C+7}, 32, 8")
        a(f"s_cselect_b32 s{C+8}, 16, 32")
        a(f"s_cselect_b32 s{C+9}, 128, 64")
        a(f"s_mul_i32 s{C+4}, s{C+4}, 73728")
        a(f"s_mul_i32 s{C+10}, s{S_WAVE}, 18432")
        a(f"v_and_b32 v{F0}, 1, {ln}")
        a(f"v_bfe_u32 v{F1}, {ln}, 1, 1")
        a(f"v_bfe_u32 v{H}, {ln}, 2, 2")
        a(f"v_bfe_u32 v{T0}, {ln}, 4, 1")
        a(f"v_lshrrev_b32 v{T1}, 5, {ln}")
        a(f"v_lshl_add_u32 v{VL}, v{F0}, 2, s{C+4}")
        a(f"v_mad_u32_u24 v{VL}, v{F1}, s{C+6}, v{VL}")
        a(f"v_mad_u32_u24 v{VL}, v{H}, s{C+7}, v{VL}")
        a(f"v_mad_u32_u24 v{VL}, v{T0}, s{C+8}, v{VL}")
        a(f"v_mad_u32_u24 v{VL}, v{T1}, s{C+9}, v{VL}")
        a(f"v_add_u32 v{VL}, s{C+5}, v{VL}")
        a(f"v_add_u32 v{VL}, s{C+10}, v{VL}")
        a(f"v_add_u32 v{T0}, 4608, v{VL}")
        a(f"v_add_u32 v{T1}, 9216, v{VL}")
        a(f"v_add_u32 v{T2}, 13824, v{VL}")
        if not generic:
            self.entry_wait(first=True)
        for q in range(4):
            for j in range(4):
                a(f"buffer_load_dword v{W+4*q+j}, v{(VL, T0, T1, T2)[q]}, {sr(S_W,4)}, 0 offen offset:{1152*j}")
        if not generic:
            self.stamp(8)
            self.entry_wait(first=False)
            self.ptouch()
        a(f"s_mul_i32 s{C+4}, s{C}, 9")
        a(f"s_add_u32 s{C+4}, s{C+4}, s{C+1}")
        a(f"s_mul_i32 s{C+5}, s{C+4}, 9")
        a(f"s_mul_i32 s{C+6}, s{C+2}, 18")
        a(f"s_add_u32 s{C+6}, s{C+6}, 8")
        a(f"s_lshl_b32 s{C+7}, s{C+4}, 2")
        a(f"s_add_u32 s{C+7}, s{C+7}, s{S_WAVE}")
        a(f"s_lshl_b32 s{C+8}, s{C+2}, 2")
        a(f"s_add_u32 s{C+8}, s{C+8}, s{S_WAVE}")
        a(f"s_cmp_eq_u32 s{S_TASK}, 40")
        a(f"s_cselect_b32 s{C+9}, 0x100000, 9")
        a(f"s_cmp_lt_u32 s{S_TASK}, 36")
        a(f"s_cselect_b32 s{C+5}, s{C+5}, s{C+6}")
        a(f"s_cselect_b32 s{C+6}, 2, 81")
        a(f"s_cselect_b32 s{C+9}, 1, s{C+9}")
        a(f"s_cselect_b32 s{C+7}, s{C+7}, s{C+8}")
        a(f"s_mov_b32 s{C+8}, {I_OFF}")
        a(f"s_cselect_b32 s{C+8}, s{C+8}, {I8_OFF}")
        a(f"s_mov_b32 s{C+10}, {R1_OFF}")
        a(f"s_cselect_b32 s{C+10}, s{C+10}, {R8_OFF}")
        a(f"s_cselect_b32 s{C+11}, 16, 4")
        a(f"s_cselect_b32 s{C+12}, 4, 64")
        a(f"s_cselect_b32 s{C+13}, 12, 11")
        a(f"s_cselect_b32 s{C+14}, 1, 0x8001")
        a(f"v_lshrrev_b32 v{U}, 4, {ln}")
        a(f"v_lshlrev_b32 v{T0}, 1, v{F0}")
        a(f"v_lshl_add_u32 v{H}, v{H}, 2, v{T0}")
        a(f"v_add_u32 v{T0}, v{H}, v{F1}")
        a(f"v_mul_u32_u24 v{VA}, s{C+6}, v{U}")
        a(f"v_add_lshl_u32 v{VA}, v{VA}, s{C+5}, 6")
        a(f"v_add3_u32 v{VA}, v{VA}, v{T0}, s{C+3}")
        a(f"v_lshl_add_u32 v{VA}, v{VA}, 4, s{S_BASE}")
        a(f"s_lshl_b32 s{C+9}, s{C+9}, 10")
        a(f"v_add_u32 v{VA2}, s{C+9}, v{VA}")
        a(f"s_lshl_b32 s{C+4}, s{C+7}, 8")
        a(f"s_add_u32 s{C+4}, s{C+4}, s{C+8}")
        a(f"s_add_u32 s{C+4}, s{C+4}, s{S_BASE}")
        a(f"v_mul_u32_u24 v{VI}, s{C+11}, v{T0}")
        a(f"v_mad_u32_u24 v{VI}, v{U}, s{C+12}, v{VI}")
        a(f"v_lshl_add_u32 v{VM1}, {ln}, 2, s{C+4}")
        if not generic:
            a(f"s_lshr_b32 s{C+4}, s{C+7}, 2")
            a(f"s_lshl_b32 s{C+4}, s{C+4}, 8")
            a(f"s_add_u32 s{C+10}, s{C+10}, s{C+4}")
            a(f"s_lshl2_add_u32 s{C+10}, s{C+3}, s{C+10}")
            a(f"s_lshl_b32 s{C+4}, s{C+3}, 1")
            a(f"s_add_u32 s{C+4}, s{C+4}, s{C+14}")
            a(f"v_lshl_add_u32 v{T0}, v{U}, 1, v{F1}")
            a(f"v_lshlrev_b32 v{T0}, s{C+13}, v{T0}")
            a(f"v_lshl_add_u32 v{VM0}, v{H}, 7, v{T0}")
            a(f"v_add_u32 v{VM0}, s{C+4}, v{VM0}")
            a(f"v_and_b32 v{T0}, 12, {ln}")
            a(f"v_and_b32 v{T1}, 15, {ln}")
            a(f"v_mad_u32_u24 v{T0}, v{T0}, 3, v{T1}")
            a(f"v_lshl_add_u32 v{T0}, v{T0}, 2, s{C+3}")
            a(f"v_mov_b32 v{VLD}, 0")
            a(f"ds_write_b32 v{T0}, v{VLD}")
            a(f"s_lshl2_add_u32 s{C+4}, s{S_TASK}, s{S_WAVE}")
            a(f"s_lshl_b32 s{C+4}, s{C+4}, 7")
            a(f"s_add_u32 s{C+4}, s{C+4}, {CNT_OFF - 64}")
            a(f"v_lshl_add_u32 v{VLI}, {ln}, 2, s{C+10}")
            a(f"v_lshl_add_u32 v{T0}, {ln}, 2, s{C+4}")
            a(f"v_cmp_gt_u32 vcc, 16, {ln}")
            a(f"s_lshl_b32 s{C+4}, s{C+3}, 2")
            a(f"v_lshl_add_u32 v{VLR}, {ln}, 2, s{C+4}")
            a(f"v_cndmask_b32 v{VLI}, v{T0}, v{VLI}, vcc")
            if self.o["sig"] == 3:
                self.mb_addr(C + 4, C + 5)
                a(f"s_sub_u32 s{C+4}, s{C+4}, 192")
                a(f"v_cmp_gt_u32 vcc, 48, {ln}")
                a(f"v_lshl_add_u32 v{T0}, {ln}, 2, s{C+4}")
                a("s_nop 0")
                a(f"v_cndmask_b32 v{VLI}, v{T0}, v{VLI}, vcc")
            a(f"s_mov_b32 s{CNT}, 0")
            a(f"s_mov_b32 s{SEL+9}, 0x05060100")
            a(f"s_mov_b32 s{SEL+10}, 0xffff")
        a(f"v_mov_b32 v{VSEL}, 0x05040100")
        a(f"v_mov_b32 v{T0}, 0x03020706")
        a(f"v_cmp_eq_u32 vcc, 1, v{F1}")
        CJ, EF, EO = 68, 76, 82
        for n in range(8):
            a(f"v_mov_b32 v{CJ+n}, {hex(0x0f0a0500 | 0x01010101 * (((n >> 1) << 4) | ((n & 1) << 7)))}")
        a(f"v_cndmask_b32 v{VSEL}, v{VSEL}, v{T0}, vcc")
        if not generic:
            for r in range(3):
                a(f"v_mov_b64 {vr(EF+2*r,2)}, 0")
            a(f"v_mov_b32 v{EO}, 0")
        for c in range(2):
            for j in range(4):
                a(f"s_mov_b32 s{SEL+4*c+j}, {hex(((5+2*c) << 24) | ((4+2*c) << 16) | ((5+2*c) << 8) | j)}")
        a(f"s_mov_b32 s{SEL+8}, 0x05060102")
        if generic:
            a(f"s_cmp_lg_u32 s{S_MODE}, 0")
        sw = "src0_sel:WORD_1 src1_sel:WORD_1"
        for q in range(4):
            a(f"s_waitcnt vmcnt({12-4*q + (2 if self.o['ptouch'] and not generic else 0)})")
            if q in (0, 3) and not generic:
                self.stamp(9 + q // 3)
            for c in range(2):
                n = 2 * q + c
                for j in range(4):
                    a(f"v_perm_b32 v{Z+j}, v{W+4*q+j}, v{CJ+n}, s{SEL+4*c+j}")
                a(f"v_max3_f32 v{K}, |v{Z}|, |v{Z+1}|, |v{Z+2}|")
                a(f"v_med3_f32 v{K+1}, |v{Z}|, |v{Z+1}|, |v{Z+2}|")
                a(f"v_min3_f32 v{K+2}, |v{Z}|, |v{Z+1}|, |v{Z+2}|")
                a(f"v_med3_f32 v{K+4}, v{K}, v{K+1}, |v{Z+3}|")
                a(f"v_med3_f32 v{K+5}, v{K+1}, v{K+2}, |v{Z+3}|")
                a(f"v_max_f32 v{K+3}, v{K}, |v{Z+3}|")
                if generic:
                    a(f"v_cmp_eq_u32_sdwa vcc, v{K+5}, v{K+4} {sw}")
                    a(f"s_cbranch_scc0 L_rb{n}{sfx}")
                    a(f"v_min_f32 v{K+2}, v{K+2}, |v{Z+3}|")
                    a(f"v_cndmask_b32 v{K+3}, 0, v{K+5}, vcc")
                    a(f"v_cmp_eq_u32_sdwa vcc, v{K+2}, v{K+4} {sw}")
                    a("s_nop 1")
                    a(f"v_cndmask_b32 v{K+4}, 0, v{K+2}, vcc")
                    a(f"L_rb{n}{sfx}:")
                a(f"v_perm_b32 v{OA+4*c+q}, v{K+3}, v{K+4}, s{SEL+8}")
                nb = NB_ + 2 * c + (q >> 1)
                if q & 1 == 0:
                    a(f"v_bfi_b32 v{nb}, 3, v{K+4}, v{K+3}")
                else:
                    a(f"v_bfi_b32 v{K+3}, 3, v{K+4}, v{K+3}")
                    a(f"v_lshlrev_b32 v{K+3}, 4, v{K+3}")
                    a(f"v_bfi_b32 v{nb}, 15, v{nb}, v{K+3}")
                if not generic:
                    a(f"v_cmpx_eq_u32_sdwa vcc, v{K+5}, v{K+4} {sw}")
                    if n >= 3:
                        a(f"v_or_b32 v{EO}, v{EO}, v{EF+4}")
                    if n >= 2:
                        a(f"v_mov_b64 {vr(EF+4,2)}, {vr(EF+2,2)}")
                    if n >= 1:
                        a(f"v_mov_b64 {vr(EF+2,2)}, {vr(EF,2)}")
                    a(f"v_mov_b32 v{EF}, v{K+5}")
                    a(f"v_min_f32 v{EF+1}, v{K+2}, |v{Z+3}|")
                    a("s_mov_b64 exec, -1")
        x2 = "quad_perm:[2,3,0,1] row_mask:0xf bank_mask:0xf"
        a("s_mov_b32 vcc_lo, 0x33333333")
        a("s_mov_b32 vcc_hi, 0x33333333")
        for d in range(4):
            a(f"v_cndmask_b32_dpp v{Z+d}, v{OA+4+d}, v{OA+d}, vcc {x2}")
        a("s_not_b64 vcc, vcc")
        a(f"buffer_store_dwordx4 {vr(Z,4)}, v{VA}, {sr(S_WS,4)}, 0 offen {ws}")
        for d in range(4):
            a(f"v_cndmask_b32_dpp v{OA+4+d}, v{OA+d}, v{OA+4+d}, vcc {x2}")
        a(f"s_mov_b32 s{C+4}, 0x0c0c0400")
        a(f"s_mov_b32 s{C+5}, 0x04000c0c")
        a(f"buffer_store_dwordx4 {vr(OA+4,4)}, v{VA2}, {sr(S_WS,4)}, 0 offen {ws}")
        a(f"v_perm_b32 v{IX}, v{NB_+1}, v{NB_}, s{C+4}")
        a(f"v_perm_b32 v{IX+1}, v{NB_+3}, v{NB_+2}, s{C+5}")
        a(f"v_or_b32 v{IX}, v{IX}, v{IX+1}")
        a("s_nop 1")
        a(f"v_mov_b32_dpp v{IX+1}, v{IX} quad_perm:[2,3,0,1] row_mask:0xf bank_mask:0xf")
        a(f"v_perm_b32 v{IX}, v{IX+1}, v{IX}, v{VSEL}")
        a(f"ds_permute_b32 v{IX}, v{VI}, v{IX}")
        if generic:
            a("s_waitcnt lgkmcnt(0)")
            a(f"buffer_store_dword v{IX}, v{VM1}, {sr(S_WS,4)}, 0 offen {ws}")
        if not generic:
            self.stamp(11)
            a(f"v_cmp_lt_u32 {sr(C+6,2)}, s{SEL+10}, v{EO}")
            a(f"L_emit{sfx}:")
            a(f"v_cmp_lt_u32 vcc, s{SEL+10}, v{EF}")
            a(f"v_cmp_eq_u32_sdwa {sr(C,2)}, v{EF+1}, v{EF} {sw}")
            a(f"v_perm_b32 v{T1}, v{EF}, v{VM0}, s{SEL+9}")
            a(f"v_bfe_u32 v{T0}, v{EF}, 2, 4")
            a(f"v_and_b32 v{T2}, 0x80, v{EF}")
            a(f"v_lshl_add_u32 v{T1}, v{T0}, 1, v{T1}")
            a(f"v_mbcnt_lo_u32_b32 v{T0}, vcc_lo, 0")
            a(f"v_mbcnt_hi_u32_b32 v{T0}, vcc_hi, v{T0}")
            a(f"v_add_u32 v{T1}, v{T2}, v{T1}")
            a(f"v_add_u32 v{T0}, s{CNT}, v{T0}")
            a(f"s_bcnt1_i32_b64 s{C+4}, vcc")
            a(f"s_add_u32 s{CNT}, s{CNT}, s{C+4}")
            a(f"v_cmp_gt_u32 {sr(C+4,2)}, 15, v{T0}")
            a(f"v_and_b32 v{T2}, 12, v{T0}")
            a(f"v_mad_u32_u24 v{T0}, v{T2}, 3, v{T0}")
            a(f"v_lshl_add_u32 v{T0}, v{T0}, 2, s{C+3}")
            a(f"s_and_b64 {sr(C,2)}, {sr(C,2)}, vcc")
            a(f"s_and_b64 exec, {sr(C+4,2)}, vcc")
            a(f"ds_write_b32 v{T0}, v{T1}")
            a(f"s_mov_b64 exec, {sr(C,2)}")
            a(f"v_mov_b32 v{EF}, v{EF+1}")
            a(f"v_mov_b32 v{EF+1}, 0")
            a(f"s_not_b64 exec, exec")
            a(f"v_mov_b64 {vr(EF,2)}, {vr(EF+2,2)}")
            a(f"v_mov_b64 {vr(EF+2,2)}, {vr(EF+4,2)}")
            a(f"v_mov_b64 {vr(EF+4,2)}, 0")
            a("s_mov_b64 exec, -1")
            a(f"v_or3_b32 v{T0}, v{EF}, v{EF+2}, v{EF+4}")
            a(f"v_cmp_lt_u32 vcc, s{SEL+10}, v{T0}")
            a(f"s_cmp_lg_u64 {sr(C+6,2)}, 0")
            a(f"s_cselect_b32 s{C+4}, 99, s{CNT}")
            a(f"s_cmp_gt_u32 s{C+4}, 15")
            a(f"s_cselect_b32 s{C+4}, -1, 0")
            a(f"v_mov_b32 v{T1}, s{C+3}")
            a(f"s_cbranch_vccnz L_emit{sfx}")
            a(f"v_mov_b32 v{T0}, s{C+4}")
            a(f"ds_write_b32 v{T1}, v{T0} offset:204")
            if self.o["sig"] == 4:
                a(f"v_lshlrev_b32 v{W+3}, 4, v{T1}")
            a("s_waitcnt lgkmcnt(0)")
            a("s_barrier")
            a("s_mov_b64 exec, 0xffff")
            a(f"ds_read_b32 v{VLD}, v{VLR}")
            a("s_mov_b64 exec, -1")
            a(f"buffer_store_dword v{IX}, v{VM1}, {sr(S_WS,4)}, 0 offen {ws}")
            if self.o["sig"] != 3:
                a("s_mov_b32 exec_hi, 0xffff")
            a("s_waitcnt lgkmcnt(0)")
            a(f"buffer_store_dword v{VLD}, v{VLI}, {sr(S_WS,4)}, 0 offen {ws}")
            if self.o["sig"] == 4:
                a("s_mov_b64 exec, 1")
                a(f"buffer_load_dword v{W}, v{W+3}, {sr(S_DBG,4)}, 0 offen sc1")
            a("s_mov_b64 exec, -1")
            if self.o["sig"] == 4:
                a(f"s_lshl_b32 s{C+4}, s{S_TASK}, 7")
                a(f"s_add_u32 s{C+4}, s{C+4}, {FL_OFF}")
                a(f"v_lshl_add_u32 v{W+1}, {ln}, 2, s{C+4}")
                a(f"v_mov_b32 v{W+2}, 1")
            self.stamp(12)
        a("s_waitcnt vmcnt(0)")
        if not generic:
            self.stamp(13)

    def lane_setup(self):
        a = self.a
        ln = f"v{V_LANE}"
        T0, T1, T2 = 72, 73, 74
        a(f"v_lshrrev_b32 v{T0}, 3, {ln}")
        a(f"v_and_b32 v{T1}, 7, {ln}")
        a(f"v_xor_b32 v{T1}, v{T1}, v{T0}")
        a(f"v_mul_u32_u24 v{T0}, 1152, v{T0}")
        a(f"s_and_b32 s{S_T0}, s{S_WAVE}, 1")
        a(f"s_mul_i32 s{S_T0}, s{S_T0}, 9216")
        a(f"s_lshr_b32 s{S_T1}, s{S_WAVE}, 1")
        a(f"s_lshl_b32 s{S_T1}, s{S_T1}, 7")
        a(f"s_add_u32 s{S_T0}, s{S_T0}, s{S_T1}")
        a(f"v_lshl_add_u32 v{T0}, v{T1}, 4, v{T0}")
        a(f"v_add_u32 v{V_DMA}, s{S_T0}, v{T0}")
        a(f"s_lshl_b32 s{S_M0B}, s{S_WAVE}, 10")
        if self.o["split"]:
            a(f"s_bitcmp1_b32 s2, 0")
            a(f"s_cselect_b32 s{S_XOFF}, 256, 1")
            a(f"s_add_u32 s{S_XOFF}, s{S_XOFF}, s2")
            a(f"s_mul_i32 s{S_XOFF}, s{S_XOFF}, {TB}")
        else:
            a(f"s_mul_i32 s{S_XOFF}, s2, {TB}")
        a(f"s_mov_b32 s{S_OOFF}, s{S_XOFF}")

    def lane_setup2(self):
        a = self.a
        ln = f"v{V_LANE}"
        T0, T1, T2 = 72, 73, 74
        a(f"v_and_b32 v{T0}, 15, {ln}")
        a(f"v_lshrrev_b32 v{T1}, 4, {ln}")
        a(f"v_and_b32 v{T2}, 7, {ln}")
        a(f"v_xor_b32 v{T2}, v{T2}, v{T1}")
        a(f"v_lshlrev_b32 v{T2}, 4, v{T2}")
        a(f"v_lshl_add_u32 v{V_RD0}, v{T0}, 7, v{T2}")
        a(f"v_xor_b32 v{V_RD1}, 64, v{V_RD0}")
        a(f"s_mul_i32 s{S_C0}, s{S_WAVE}, {WV_SZ}")
        a(f"s_add_u32 s{S_C0}, s{S_C0}, {L_WV}")
        a(f"v_lshl_add_u32 v{V_TAB}, v{T1}, 4, s{S_C0}")
        a(f"v_and_b32 v{T2}, 14, {ln}")
        a(f"v_mul_u32_u24 v{V_ST}, 1152, v{T2}")
        a(f"v_and_b32 v{T2}, 1, {ln}")
        a(f"v_lshl_add_u32 v{V_ST}, v{T2}, 4, v{V_ST}")
        a(f"v_lshl_add_u32 v{V_ST}, v{T1}, 5, v{V_ST}")
        a(f"s_lshl_b32 s{S_T0}, s{S_WAVE}, 8")
        a(f"v_add_u32 v{V_ST}, s{S_T0}, v{V_ST}")
        if self.o["hack"] == "q4":
            a(f"v_lshrrev_b32 v{T2}, 3, {ln}")
            a(f"v_mul_u32_u24 v{V_ST}, 2304, v{T2}")
            a(f"v_and_b32 v{T2}, 7, {ln}")
            a(f"v_lshl_add_u32 v{V_ST}, v{T2}, 4, v{V_ST}")
            a(f"v_add_u32 v{V_ST}, s{S_T0}, v{V_ST}")
        a(f"s_lshl_b32 s{S_T0}, s{S_WAVE}, 5")
        a(f"s_add_u32 s{S_T0}, s{S_T0}, 1024")
        if self.o["bperm"]:
            a(f"v_lshrrev_b32 v{T0}, 2, {ln}")
            a(f"v_and_b32 v{T1}, 3, {ln}")
            a(f"v_lshl_add_u32 v{V_BP}, v{T1}, 4, v{T0}")
            a(f"v_lshlrev_b32 v{V_BP}, 2, v{V_BP}")
        else:
            a(f"v_lshlrev_b32 v{V_BP}, 2, {ln}")
        a(f"v_mul_u32_u24 v{V_ST8}, 1152, v{T0}")
        a(f"v_lshl_add_u32 v{V_ST8}, v{T1}, 3, v{V_ST8}")
        a(f"v_add_u32 v{V_ST8}, s{S_T0}, v{V_ST8}")
        a(f"s_mov_b32 s{S_EVEN}, 0x55555555")
        a(f"s_mov_b32 s{S_EVEN+1}, 0x55555555")
        a(f"s_mov_b32 s{S_ODD}, 0xaaaaaaaa")
        a(f"s_mov_b32 s{S_ODD+1}, 0xaaaaaaaa")

    def dma_setup(self):
        a = self.a
        a(f"s_lshr_b32 s{S_T0}, s{S_WAVE}, 1")
        a(f"s_lshl_b32 s{S_T1}, s{S_T0}, 11")
        a(f"s_sub_u32 s{S_M05}, {16384-896}, s{S_T1}")
        a(f"s_lshl_b32 s{S_T1}, s{S_T0}, 7")
        a(f"s_add_u32 s{S_XOFF5}, s{S_XOFF}, 128")
        a(f"s_sub_u32 s{S_XOFF5}, s{S_XOFF5}, s{S_T1}")
        a(f"s_sub_u32 s{S_HALF}, s{S_T0}, 1")
        a(f"s_sub_u32 s{S_HALF+1}, 0, s{S_T0}")
        a(f"s_mov_b32 s{S_M0W}, s{S_M0B}")
        a(f"s_mov_b32 s{S_XINC}, {256*TB}")
        if self.o["split"]:
            a(f"s_bitcmp1_b32 s2, 0")
            a(f"s_cselect_b32 s{S_XINC}, s{S_XINC}, {-TB}")
            a(f"s_cselect_b32 s{S_NT}, 15, 17")
        else:
            a(f"s_mov_b32 s{S_NT}, 16")
        a(f"s_mov_b32 s{S_OINC2}, s{S_XINC}")

    def dma_advance(self, first=False):
        x = [] if first else [f"s_add_u32 s{S_XOFF}, s{S_XOFF}, {256*TB}", f"s_add_u32 s{S_XOFF5}, s{S_XOFF5}, {256*TB}",
                              f"s_add_u32 s{S_M0B}, s{S_M0B}, s{S_CTB}"]
        return x + [f"s_cmp_ge_u32 s{S_M0B}, {NB*TBL}", f"s_cselect_b32 s{S_M0B}, s{S_M0W}, s{S_M0B}"]

    def dma_tile(self):
        a = self.a
        for j in range(5):
            a(f"s_add_u32 m0, s{S_M0B}, {3840*j if j < 4 else 's%d' % S_M05}")
            a("s_nop 0" if j < 4 else f"s_mov_b64 exec, {sr(S_HALF,2)}")
            a(f"buffer_load_dwordx4 v{V_DMA}, {sr(S_X,4)}, s{S_XOFF if j < 4 else S_XOFF5} offen offset:{256*j if j < 4 else 896} {self.o['ld']} lds")
        a("s_mov_b64 exec, -1")

    def prefetch(self, sh, lab="L_pf"):
        a = self.a
        a(f"s_bfe_u32 s{S_NB0}, s{S_DMASK}, {hex(4 << 16 | sh)}")
        if sh == 20 and self.o["pfw"]:
            k, n, ka, kp = self.o["pfw"]
            a(f"s_mov_b32 s{S_T1}, {k*TBL}")
            a(f"s_cmp_ge_u32 s{S_NB0}, 6")
            a(f"s_cselect_b32 s{S_T1}, s{S_T1}, {ka*TBL}")
            a(f"s_cmp_ge_u32 s{S_TASK}, {NTASK}")
            a(f"s_cselect_b32 s{S_T1}, s{S_T1}, {kp*TBL}")
        if sh != 20 and self.n2min == 0:
            a(f"s_cbranch_scc0 {lab}_e")
        a(f"{lab}:")
        self.dma_tile()
        if sh == 20 and self.o["sig"] == 4 and self.o["fused"]:
            a(f"s_cmp_lg_u32 s{S_M0B}, {2*TBL}")
            a(f"s_cbranch_scc1 {lab}_f")
            a("s_mov_b64 exec, 1")
            a(f"buffer_load_dword v124, off, {sr(S_DBG,4)}, 0 sc1")
            a("s_mov_b64 exec, -1")
            a(f"{lab}_f:")
        if sh == 20 and self.o["pfw"]:
            n = self.o["pfw"][1]
            a(f"s_cmp_ge_u32 s{S_M0B}, s{S_T1}")
            a(f"s_cbranch_scc1 {lab}_n")
            a(f"s_waitcnt vmcnt({n})")
            a(f"{lab}_n:")
        a(f"s_add_u32 s{S_XOFF5}, s{S_XOFF5}, s{S_XINC}")
        a(f"s_add_u32 s{S_M0B}, s{S_M0B}, {TBL}")
        a(f"s_add_u32 s{S_XOFF}, s{S_XOFF}, s{S_XINC}")
        a(f"s_mov_b32 s{S_XINC}, {256*TB}")
        a(f"s_sub_u32 s{S_NB0}, s{S_NB0}, 1")
        a(f"s_cmp_lg_u32 s{S_NB0}, 0")
        a(f"s_cbranch_scc1 {lab}")
        a(f"{lab}_e:")

    def bias_load(self):
        a = self.a
        ln = f"v{V_LANE}"
        a(f"v_and_b32 v80, 3, {ln}")
        a(f"v_bfe_u32 v81, {ln}, 2, 2")
        a(f"v_bfe_u32 v82, {ln}, 4, 1")
        a("v_lshlrev_b32 v81, 3, v81")
        a("v_lshl_add_u32 v81, v80, 5, v81")
        a("v_lshl_add_u32 v81, v82, 7, v81")
        a(f"s_lshl_b32 s{S_T0}, s{S_WAVE}, 8")
        a(f"v_add_u32 v81, s{S_T0}, v81")
        a(f"s_lshl_b32 s{S_T0}, s{S_WAVE}, 5")
        a(f"s_add_u32 s{S_T0}, s{S_T0}, 1024")
        a(f"v_lshl_add_u32 v80, v80, 3, s{S_T0}")
        a(f"v_cmp_gt_u32 vcc, 32, {ln}")
        a("s_nop 1")
        a("v_cndmask_b32 v80, v80, v81, vcc")
        a(f"buffer_load_dwordx2 v[110:111], v80, {sr(S_B,4)}, 0 offen")

    def tables_init(self):
        a = self.a
        ln = f"v{V_LANE}"
        a(f"v_lshl_add_u32 v109, {ln}, 4, s{S_C0}")
        a(f"v_lshl_add_u32 v89, {ln}, 2, s{S_C0}")
        for r in range(4):
            a(f"v_mov_b32 v{76+r}, 0")
        a("v_mov_b32 v90, 0xdddddddd")
        a("ds_write_b128 v109, v[76:79]")
        for r in range(7):
            a(f"ds_write_b32 v89, v90 offset:{O_IDX+256*r}")
        a(f"s_lshl_b32 s{S_T0}, s{S_WAVE}, 2")
        a(f"s_add_u32 s{S_T0}, s{S_T0}, {L_PL + 256}")
        a(f"v_mov_b32 v88, s{S_T0}")
        a("ds_write_b32 v88, v76")

    def bias_store(self):
        return ["v_lshlrev_b32 v114, 16, v110", "v_and_b32 v115, 0xffff0000, v110", "v_lshlrev_b32 v116, 16, v111",
                "v_and_b32 v117, 0xffff0000, v111", "s_mov_b32 exec_hi, 15", f"ds_write_b128 v109, v[114:117] offset:{O_BIAS}",
                "s_mov_b64 exec, -1"]

    def wload_list(self, VA, VI8, pairs=False):
        wl = self.o["wl"]
        G = []
        so = S_C0 + 6
        cur = None
        for sp in range(5):
            g = []
            if sp == 4:
                g.append(f"s_mov_b32 s{so}, 4096")
            g.append(f"buffer_load_dword v{V_I8+sp}, v{VI8}, {sr(S_WS,4)}, {'s%d' % so if sp == 4 else '0'} offen offset:{1024*(sp%4)} {wl}")
            G.append(g)
        order = [(s, t) for s in range(9) for t in [None] + list(range(9))]
        if pairs:
            order = order[:70] + [(7, None), (8, None)] + [(s, t) for t in PEEL_T for s in (7, 8)]
        for s, t in order:
            if t is None:
                G.append([f"s_mov_b32 s{so-1}, {1024*s}",
                          f"buffer_load_dwordx4 {vr(V_I+4*s,4)}, v{VA+1}, {sr(S_WS,4)}, s{so-1} offen {wl}"])
            else:
                f = 9 * s + t
                g = []
                if cur != f >> 2:
                    cur = f >> 2
                    g.append(f"s_mov_b32 s{so}, {4096*cur}")
                g.append(f"buffer_load_dwordx4 {afrag(s,t)}, v{VA}, {sr(S_WS,4)}, s{so} offen offset:{1024*(f&3)} {wl}")
                G.append(g)
        return G

    def waddr(self, VA, VI8):
        a = self.a
        ln = f"v{V_LANE}"
        a(f"s_mul_i32 s{S_T0}, s{S_WAVE}, 82944")
        a(f"s_add_u32 s{S_T0}, s{S_T0}, s{S_BASE}")
        a(f"v_lshl_add_u32 v{VA}, {ln}, 4, s{S_T0}")
        a(f"s_mul_i32 s{S_T0}, s{S_WAVE}, 9216")
        a(f"s_add_u32 s{S_T0}, s{S_T0}, s{S_BASE}")
        a(f"s_add_u32 s{S_T0}, s{S_T0}, {I_OFF}")
        a(f"v_lshl_add_u32 v{VA+1}, {ln}, 4, s{S_T0}")
        a(f"s_lshl_b32 s{S_T0}, s{S_WAVE}, 6")
        a(f"s_add_u32 s{S_T0}, s{S_T0}, s{S_BASE}")
        a(f"s_add_u32 s{S_T0}, s{S_T0}, {I8_OFF}")
        a(f"v_and_b32 v{VI8}, 15, {ln}")
        a(f"v_lshl_add_u32 v{VI8}, v{VI8}, 2, s{S_T0}")
        a(f"v_lshrrev_b32 v{VI8+1}, 4, {ln}")
        a(f"v_lshl_add_u32 v{VI8}, v{VI8+1}, 8, v{VI8}")

    def build(self):
        a = self.a
        o = self.o
        ln = f"v{V_LANE}"
        wl = o["wl"]
        VA, VI8 = (112 if o["peel"] else 104), 106
        E, TT, RK, ST = 8, 24, 40, 56
        T0, T1, T2, T3 = 72, 73, 74, 75
        WARM = 76
        ONE, VW, KB, VST, RX, VWARM, CM, CV, TM, TBS, HI, AB, BM, VH, VK, LO = range(88, 104)
        SW = S_C0
        a(f"s_mul_i32 s{S_T0}, s{S_WAVE}, 2304")
        a(f"s_add_u32 s{S_T0}, s{S_T0}, {R1_OFF}")
        a(f"v_and_b32 v{T1}, 60, {ln}")
        a(f"v_mad_u32_u24 v{T1}, v{T1}, 3, {ln}")
        a(f"v_lshl_add_u32 v{T0}, v{T1}, 4, s{S_T0}")
        a(f"s_mov_b32 s{S_T0}, {R8_OFF - 36*64}")
        a(f"v_lshl_add_u32 v{T1}, v{T1}, 4, s{S_T0}")
        a(f"v_lshrrev_b32 v{T2}, 2, {ln}")
        a(f"v_cmp_gt_u32 vcc, 36, {ln}")
        a(f"v_lshlrev_b32 v{KB}, 11, v{T2}")
        a(f"v_subrev_u32 v{T2}, 9, v{T2}")
        a(f"v_lshlrev_b32 v{T2}, 12, v{T2}")
        a(f"v_cndmask_b32 v{T0}, v{T1}, v{T0}, vcc")
        a(f"v_cndmask_b32 v{KB}, v{T2}, v{KB}, vcc")
        a(f"s_lshl_b32 s{S_T0}, s{S_WAVE}, 12")
        a(f"s_add_u32 s{S_T0}, s{S_T0}, 0x8001")
        a(f"v_mov_b32 v{ONE}, 1")
        a(f"v_mov_b32 v{CM}, 0xf001")
        a(f"v_mov_b32 v{CV}, s{S_T0}")
        a(f"v_cndmask_b32 v{CM}, v{CM}, v{ONE}, vcc")
        a(f"v_cndmask_b32 v{CV}, v{CV}, v{ONE}, vcc")
        a(f"v_cndmask_b32 v{TM}, 0, 28, vcc")
        a(f"v_cndmask_b32 v{TBS}, 32, 0, vcc")
        a(f"v_add_u32 v{TBS}, s{SW}, v{TBS}")
        a(f"v_cmp_gt_u32 vcc, 56, {ln}")
        a(f"v_mov_b32 v{T1}, 0x40000000")
        tw = o["warm"] == 2
        a(f"s_lshr_b32 s{S_T0}, s2, {4 if tw else 3}")
        a(f"s_lshl_b32 s{S_T0}, s{S_T0}, 2")
        a(f"s_add_u32 s{S_T0}, s{S_T0}, s{S_WAVE}")
        a(f"s_mul_i32 s{S_T0}, s{S_T0}, {6144 if tw else 3072}")
        a(f"v_cndmask_b32 v{T0}, v{T1}, v{T0}, vcc")
        if tw:
            a(f"v_min_u32 v{VWARM}, 47, {ln}")
            a(f"v_lshl_add_u32 v{VWARM}, v{VWARM}, 7, s{S_T0}")
        else:
            a(f"v_lshl_add_u32 v{VWARM}, {ln}, 4, s{S_T0}")
        self.waddr(VA, VI8)
        a(f"v_and_b32 v{T2}, 15, {ln}")
        a(f"v_and_b32 v{T1}, 7, {ln}")
        a(f"v_lshlrev_b32 v{BM}, 1, v{T1}")
        a(f"v_lshlrev_b32 v{BM}, v{BM}, v{ONE}")
        a(f"v_lshlrev_b32 v{T1}, 4, v{T1}")
        a(f"v_lshl_add_u32 v{RX}, v{T2}, 7, v{T1}")
        a(f"v_lshl_or_b32 v{RX}, v{RX}, 16, v{RX}")
        a(f"v_lshrrev_b32 v{HI}, 5, {ln}")
        a(f"v_bfe_u32 v{AB}, {ln}, 3, 2")
        a(f"v_lshl_add_u32 v{AB}, v{AB}, 6, s{SW}")
        a(f"v_lshl_add_u32 v{VH}, {ln}, 1, s{SW}")
        a(f"v_lshrrev_b32 v{VK}, 4, {ln}")
        a(f"v_lshl_add_u32 v{VK}, v{VK}, 3, s{SW}")
        a(f"v_lshrrev_b32 v{LO}, 1, {ln}")
        a(f"v_lshlrev_b32 v{LO}, 5, v{LO}")
        a(f"s_mov_b32 s{S_LINK}, 0")
        pre = [f"buffer_load_dwordx4 {vr(E+4*r,4)}, v{T0}, {sr(S_WS,4)}, 0 offen offset:{64*r} {wl}" for r in range(4)]
        warm = [[f"buffer_load_dwordx4 {vr(WARM+4*r,4)}, v{VWARM}, {sr(S_WS,4)}, 0 offen offset:{1024*r} {wl}"] for r in range(3)] if o["warm"] else []
        if tw:
            warm = [[f"buffer_load_dword v{WARM}, v{VWARM}, {sr(S_WS,4)}, 0 offen {wl}"]]
        C = []
        g = lambda *x: C.append(list(x))

        def rank(r):
            m = S_MASK + 2 * r
            return [f"v_and_b32 v{T1}, v{CM}, v{E+r}", f"v_lshrrev_b32 v{T0}, 10, v{E+r}", f"v_cmp_eq_u32 {sr(m,2)}, v{T1}, v{CV}",
                    f"v_and_or_b32 v{TT+r}, v{T0}, v{TM}, v{TBS}",
                    f"s_mov_b64 exec, {sr(m,2)}", f"ds_add_rtn_u32 v{RK+r}, v{TT+r}, v{ONE}", "s_mov_b64 exec, -1"]

        def place(r):
            m = S_MASK + 2 * r
            return [f"v_add_u32 v{T1}, v{RK+r}, v{ST+r}", f"v_and_b32 v{T0}, 0x87e, v{E+r}", f"v_lshl_add_u32 v{T1}, v{T1}, 1, s{SW}",
                    f"v_add_u32 v{T0}, v{KB}, v{T0}", f"s_andn2_b64 exec, {sr(m,2)}, {sr(S_BAD,2)}",
                    f"ds_write_b16_d16_hi v{T1}, v{E+r} offset:{O_X}", f"ds_write_b16 v{T1}, v{T0} offset:{O_K}",
                    f"ds_write_b16 v{T1}, v{E+r} offset:{O_M}", "s_mov_b64 exec, -1"]
        g("@WAIT_E")
        g(f"v_cmp_ne_u32 {sr(S_BAD,2)}, 0, v{E+15}", f"v_cmp_ne_u32 {sr(S_MORE,2)}, 0, v{E+8}")
        for r in range(8):
            g(*rank(r))
        g(f"s_cmp_lg_u64 {sr(S_MORE,2)}, 0", "s_cbranch_scc1 L_more1", "L_more1b:", f"ds_read_b32 v{T0}, v{VW}", f"v_mov_b32 v{T1}, 0")
        self.tailblocks.append("\n".join(["L_more1:"] + [x for r in range(8, 15) for x in rank(r)] + ["s_branch L_more1b"]))
        g("s_waitcnt lgkmcnt(0)", f"s_mov_b64 vcc, {sr(S_EVEN,2)}",
          f"v_cndmask_b32_dpp v{T1}, v{T0}, v{T1}, vcc quad_perm:[0,0,2,2] row_mask:0xf bank_mask:0xf",
          f"v_add_u32 v{VST}, v{LO}, v{T1}", f"v_add_u32 v{T1}, v{T0}, v{T1}", f"v_cmp_lt_u32 vcc, 32, v{T1}",
          f"s_or_b32 s{S_BAD}, s{S_BAD}, s{S_BAD+1}", f"s_and_b32 s{S_T0}, vcc_lo, 0x1ff", f"s_or_b32 s{S_T0}, s{S_T0}, s{S_BAD}",
          "s_cbranch_scc1 L_greedy", "L_greedyb:")
        x = ["L_greedy:", f"s_mov_b32 s{S_T0}, 0", f"s_mov_b32 s{S_LINK}, 1"]
        for t in range(9):
            lo = 32 * (t >> 1)
            x += [f"v_readlane_b32 s{S_T1}, v{T0}, {t}", f"s_max_u32 s{S_T0}, s{S_T0}, {lo}",
                  f"v_writelane_b32 v{VST}, s{S_T0}, {t}", "s_nop 1", f"s_add_u32 s{S_T0}, s{S_T0}, s{S_T1}",
                  f"s_cmp_gt_u32 s{S_T0}, {lo + (64 if t & 1 else 32)}", f"s_cselect_b32 s{S_BAD}, 1, s{S_BAD}"]
        x += [f"s_cmp_lg_u32 s{S_BAD}, 0", f"s_cselect_b64 {sr(S_BAD,2)}, -1, 0",
              f"v_mov_b32 v{T1}, {L_PL + 256}", f"s_mov_b64 exec, {sr(S_BAD,2)}", f"ds_write_b32 v{T1}, v{ONE}", "s_mov_b64 exec, -1",
              "s_branch L_greedyb"]
        self.tailblocks.append("\n".join(x))
        g(*[f"ds_bpermute_b32 v{ST+r}, v{TT+r}, v{VST}" for r in range(8)])
        for r in range(8):
            g(*([f"s_waitcnt lgkmcnt({(7, 9, 11, 13, 15, 15, 15, 15)[r] if r else 7})"] if r < 8 else []), *place(r))
        g(f"s_cmp_lg_u64 {sr(S_MORE,2)}, 0", "s_cbranch_scc1 L_more2", "L_more2b:",
          *[f"ds_read_u16 v{E+r}, v{VH} offset:{O_M+128*r}" for r in range(3)],
          *[f"ds_read2_b64 {vr(V_AD+4*j,4)}, v{VK} offset0:{(O_K+64*j)//8} offset1:{(O_K+64*j+32)//8}" for j in range(5)])
        self.tailblocks.append("\n".join(["L_more2:"] + [f"ds_bpermute_b32 v{ST+r}, v{TT+r}, v{VST}" for r in range(8, 15)] + ["s_waitcnt lgkmcnt(0)"]
                                         + [x for r in range(8, 15) for x in place(r)] + ["s_branch L_more2b"]))
        for r in range(3):
            g(*(["s_waitcnt lgkmcnt(5)"] if r == 0 else []),
              f"v_lshrrev_b32 v{T0}, 12, v{E+r}", f"v_cmp_ne_u32 vcc, 0, v{E+r}", f"v_min_u32 v{T0}, 8, v{T0}", f"v_add3_u32 v{T0}, v{T0}, v{HI}, {2*r}",
              f"v_lshlrev_b32 v{T1}, 4, v{T0}", f"v_lshrrev_b32 v{T0}, 1, v{T0}")
            g(f"v_lshlrev_b32 v{T1}, v{T1}, v{BM}", f"v_lshl_add_u32 v{T0}, v{T0}, 8, v{AB}", f"v_bfe_u32 v{T2}, v{E+r}, 7, 4",
              f"v_lshl_add_u32 v{T0}, v{T2}, 2, v{T0}", "s_mov_b64 exec, vcc", *(["s_mov_b32 exec_hi, 0"] if r == 2 else []),
              f"ds_xor_b32 v{T0}, v{T1} offset:{O_IDX}", "s_mov_b64 exec, -1")
        g(*[f"ds_read_b32 v{V_IR+r}, v{VW} offset:{O_IDX+256*r}" for r in range(7)])
        for j in range(5):
            g(*(["s_waitcnt lgkmcnt(10)"] if j == 0 else []), *[f"v_xor_b32 v{V_AD+4*j+q}, v{RX}, v{V_AD+4*j+q}" for q in range(4)])
        g(*self.bias_store())
        return pre, C, warm + self.wload_list(VA, VI8, o['peel'])

    def emit_build(self, pre, C, G):
        a = self.a
        for x in pre:
            a(x)
        nl = 0
        G = list(G)
        G0 = list(G)

        def load(n=1):
            nonlocal nl
            for _ in range(n):
                if G:
                    for x in G.pop(0):
                        a(x)
                    nl += 1
        acc = 0
        for grp in C:
            if grp[0] == "@WAIT_E":
                load(self.o["l0"])
                a(f"s_waitcnt vmcnt({nl})")
                continue
            if grp[0] in ("s_waitcnt lgkmcnt(0)", "s_waitcnt lgkmcnt(7)", "s_waitcnt lgkmcnt(5)"):
                load(self.o["lw"])
            for x in grp:
                a(x)
            acc += len(grp)
            while acc >= self.o["lper"]:
                acc -= self.o["lper"]
                load()
        if self.o["peel"]:
            self.issued, self.pending = G0[:len(G0) - len(G)], G
            return
        load(len(G) - self.o["ltail"])
        assert len(G) == self.o["ltail"]
        self.late_loads = [x for grp in G for x in grp]

    @staticmethod
    def regs(txt):
        k, body = txt[0], txt[1:].strip("[]")
        lo, hi = (body.split(":") + [body])[:2]
        return [(256 if k == "a" else 0) + r for r in range(int(lo), int(hi) + 1)]

    def emit_line(self, ops, vm, hist=()):
        a = self.a
        lds, hist = [], list(hist)

        def put(op):
            a(op.text)
            hist.append(op)
        for op in ops:
            touched = op.rd | op.wr
            for q, name, cap in ((lds, "lgkmcnt", 15), (vm, "vmcnt", self.o["vcap"])):
                hit = [i for i, w in enumerate(q) if w & touched]
                if hit:
                    n = min(len(q) - 1 - hit[-1], cap)
                    put(Op(f"s_waitcnt {name}({n})", "salu"))
                    del q[:len(q) - n]
            need = 0
            for d, p in enumerate(reversed(hist[-9:])):
                ws = sum(int(x.text[6:]) + 1 if x.text.startswith("s_nop") else 1 for x in hist[len(hist) - d:])
                r = 0
                if p.kind == "mx" and op.kind != "mx" and (p.wr & touched):
                    r = 8
                if p.kind in ("valu", "dpp") and op.kind in ("mx", "dpp") and (p.wr & op.rd):
                    r = 2
                if p.kind == "st" and (p.rd & op.wr):
                    r = 2
                need = max(need, r - ws)
            if need > 0:
                put(Op(f"s_nop {need-1}", "salu"))
            put(op)
            if op.kind == "lds":
                lds.append(op.wr)
            if op.kind in ("ld", "st"):
                vm.append(op.wr)

    def peel(self):
        o = self.o
        AX = V_BR
        acc = lambda m, t: (AX if m == 0 else V_ACC) + 4 * t
        Ba, Bb, Bc, Bd = (V_B + 8 * k for k in range(4))
        dst = lambda g: set(self.regs(g[-1].split()[1].rstrip(",")))
        vm = [dst(g) for g in self.issued]
        loads = [[Op(x, "salu") for x in g[:-1]] + [Op(g[-1], "ld", wr=dst(g))] for g in self.pending]

        def M(m, s, t, b):
            ir, h = aidx(s, t)
            return Op(f"v_smfmac_f32_16x16x64_bf16 {vr(acc(m,t),4)}, {afrag(s,t)}, {vr(b,8)}, v{ir}" + (" abid:1" if h else ""), "mx",
                      rd=list(rng(acc(m, t), 4)) + list(rng(b, 8)) + self.regs(afrag(s, t)) + [ir], wr=rng(acc(m, t), 4))

        def R(m, j, t):
            c, b = j + t, (Bc, Bd)[m]
            return Op(f"v_smfmac_f32_16x16x64_bf16 {vr(acc(m,t),4)}, {vr(V_X,4)}, {vr(b,8)}, v{V_IR+(c>>1)}" + (" abid:1" if c & 1 else ""), "mx",
                      rd=list(rng(acc(m, t), 4)) + list(rng(b, 8)) + list(rng(V_X, 4)), wr=rng(acc(m, t), 4))

        def B(m, s, b):
            return [Op(f"ds_read_b128 {vr(b+4*h,4)}, v{V_RD0+h} offset:{2048*s+TBL*m}", "lds", rd=[V_RD0 + h], wr=rng(b + 4 * h, 4)) for h in range(2)]

        def addr(j, b, r, base):
            ad = V_AD + 4 * j + (b >> 1)
            return Op(f"v_add_u32_sdwa v{r}, s{base}, v{ad} dst_sel:DWORD dst_unused:UNUSED_PAD src0_sel:DWORD src1_sel:WORD_{b&1}", "valu", rd=[ad], wr=[r])
        ops = [Op(f"ds_read_b32 v{V_X}, v{V_X}", "lds", rd=[V_X], wr=[V_X])] + B(0, 0, Ba)
        for m in range(2):
            ops += [Op(f"ds_read_b128 {vr(acc(m,t),4)}, v{V_TAB} offset:{O_BIAS+64*t}", "lds", rd=[V_TAB], wr=rng(acc(m, t), 4)) for t in range(9)]
            ops += loads.pop(0)
        ops += [Op(f"v_readfirstlane_b32 s{S_T0}, v{V_X}", "valu", rd=[V_X]), addr(0, 0, Bc, S_BUF), Op("s_nop 2", "salu"),
                Op(f"s_cmp_lg_u32 s{S_T0}, 0", "salu"), Op("s_cbranch_scc1 L_slow", "salu")]
        ngap = 126 + 26
        rho, credit = len(loads) / (ngap - o["ptail"]), 0.0

        def gap(mx, D=(), V=()):
            nonlocal credit
            ops.append(mx)
            credit += rho
            while credit >= 1 and loads:
                credit -= 1
                ops.extend(loads.pop(0))
            ops.extend(D)
            ops.extend(V)
        for s in range(7):
            for t in range(9):
                D, V = [], []
                if t == 0:
                    D += B(1, s, Bb)
                if s < 5:
                    if t == 8:
                        D.append(Op(f"ds_read_b128 {vr(V_X,4)}, v{V_TAB} offset:{O_X+64*s}", "lds", rd=[V_TAB], wr=rng(V_X, 4)))
                    else:
                        D += [Op(f"ds_read_u16 v{Bd+t}, v{Bc+t} offset:{TBL}", "lds", rd=[Bc + t], wr=[Bd + t]),
                              Op(f"ds_read_u16 v{Bc+t}, v{Bc+t}", "lds", rd=[Bc + t], wr=[Bc + t])]
                        if t < 7:
                            V.append(addr(s, t + 1, Bc + t + 1, S_BUF))
                elif t in (2, 3):
                    D.append(B(1, s + 2, Bc if s == 5 else Bd)[t - 2])
                gap(M(0, s, t, Ba), D, V)
            for t in range(9):
                gap(M(1, s, t, Bb), B(0, s + 1, Ba)[t:t + 1] if t < 2 else [])
            if s < 5:
                rs = [R(m, s, t) for m in (1, 0) for t in RT[s]]
                for n, x in enumerate(rs):
                    gap(x, [], [addr(s + 1, 0, Bc, S_BUF)] if n == len(rs) - 1 and s < 4 else [])
        assert not loads
        ops += B(0, 8, Bb)
        pk = lambda t, h: (AX + 32 + h) if t == 8 else AX + 2 * t + h
        cvt = lambda t: [Op(f"v_cvt_pk_bf16_f32 v{pk(t,h)}, v{acc(0,t)+2*h}, v{acc(0,t)+2*h+1}", "valu",
                            rd=[acc(0, t) + 2 * h, acc(0, t) + 2 * h + 1], wr=[pk(t, h)]) for h in range(2)]
        dpp = "quad_perm:[1,0,3,2] row_mask:0xf bank_mask:0xf"
        stp = o["st"] if o["stp"] is None else o["stp"]

        def exch(v):
            p0, p1, d0 = AX + 8 * v, AX + 8 * v + 4, (V_X, AX + 16)[v]
            x = []
            for half in range(2):
                for d in range(4):
                    if half == 0:
                        x.append(Op(f"v_cndmask_b32_dpp v{d0+d}, v{p1+d}, v{p0+d}, vcc {dpp}", "dpp", rd=[p0 + d, p1 + d], wr=[d0 + d]))
                    else:
                        x.append(Op(f"v_cndmask_b32_dpp v{p1+d}, v{p0+d}, v{p1+d}, vcc {dpp}", "dpp", rd=[p0 + d, p1 + d], wr=[p1 + d]))
                src = d0 if half == 0 else p1
                fl = stp[2 * v + half] if isinstance(stp, (tuple, list)) else stp
                x += [Op(f"buffer_store_dwordx4 {vr(src,4)}, v{V_ST}, {sr(S_OUT,4)}, s{S_OOFF} offen offset:{1152*half+128*v} {fl}", "st",
                         rd=list(rng(src, 4)) + [V_ST]), Op(f"s_mov_b64 vcc, {sr((S_ODD, S_EVEN)[half],2)}", "salu")]
            return x
        p8 = pk(8, 0)
        rdadv = [Op(f"v_add_u32 v{V_RD0+h}, {2*TBL}, v{V_RD0+h}", "valu", rd=[V_RD0 + h], wr=[V_RD0 + h]) for h in range(2)]
        after = {0: rdadv,
                 1: [Op(f"ds_bpermute_b32 v{p8+h}, v{V_BP}, v{p8+h}", "lds", rd=[V_BP, p8 + h], wr=[p8 + h]) for h in range(2)] if o["bperm"] else [],
                 3: [Op(f"buffer_store_dwordx2 {vr(p8,2)}, v{V_ST8}, {sr(S_OUT,4)}, s{S_OOFF} offen {o['st8']}", "st", rd=[p8, p8 + 1, V_ST8])],
                 5: exch(0)[:6], 6: exch(0)[6:], 7: [addr(0, b, V_BR + b, S_BUFN) for b in range(4)],
                 8: [addr(0, b, V_BR + b, S_BUFN) for b in range(4, 8)]}
        for n, t in enumerate(PEEL_T):
            ops += [M(0, 7, t, Ba), M(0, 8, t, Bb)]
            if n:
                ops += cvt(PEEL_T[n - 1])
            ops += after.get(n, [])
        ops += cvt(PEEL_T[-1]) + exch(1)
        self.emit_line(ops, vm)

    def slow_path(self, K):
        a = self.a
        o = self.o
        VA, VI8 = 104, 106
        a("L_slow:")
        a("s_waitcnt vmcnt(0) lgkmcnt(0)")
        a(f"s_mov_b32 s{S_MODE}, 0")
        a("L_sm:")
        a(f"s_lshl_b32 s{S_BASE}, s2, 1")
        a(f"s_add_u32 s{S_BASE}, s{S_BASE}, s{S_MODE}")
        a(f"s_add_u32 s{S_BASE}, s{S_BASE}, {PRIV0}")
        a(f"s_mul_i32 s{S_BASE}, s{S_BASE}, {COPY}")
        a(f"s_mov_b32 s{S_TASK}, 0")
        a("L_st:")
        self.producer("g", True)
        a(f"s_add_u32 s{S_TASK}, s{S_TASK}, 1")
        a(f"s_cmp_lt_u32 s{S_TASK}, {NTASK}")
        a("s_cbranch_scc1 L_st")
        a(f"s_add_u32 s{S_MODE}, s{S_MODE}, 1")
        a(f"s_cmp_lt_u32 s{S_MODE}, 2")
        a("s_cbranch_scc1 L_sm")
        self.lane_setup()
        self.dma_setup()
        a(f"s_mov_b32 s{S_OUT+2}, {XBYTES}")
        a(f"s_mov_b32 s{S_X+2}, {XBYTES}")
        a(f"s_mov_b32 s{S_IT}, 0")
        a("L_stile:")
        a("s_barrier")
        self.dma_tile()
        for t in range(9):
            a(f"ds_read_b128 {vr(V_ACC+4*t,4)}, v{V_TAB} offset:{O_BIAS+64*t}")
        a(f"s_mov_b32 s{S_MODE}, 0")
        a("L_spass:")
        a(f"s_lshl_b32 s{S_BASE}, s2, 1")
        a(f"s_add_u32 s{S_BASE}, s{S_BASE}, s{S_MODE}")
        a(f"s_add_u32 s{S_BASE}, s{S_BASE}, {PRIV0}")
        a(f"s_mul_i32 s{S_BASE}, s{S_BASE}, {COPY}")
        self.waddr(VA, VI8)
        for grp in self.wload_list(VA, VI8):
            for x in grp:
                a(x)
        a("s_waitcnt vmcnt(0)")
        a("s_barrier")
        for s in range(9):
            a(f"ds_read_b128 {vr(V_B,4)}, v{V_RD0} offset:{2048*s}")
            a(f"ds_read_b128 {vr(V_B+4,4)}, v{V_RD1} offset:{2048*s}")
            a("s_waitcnt lgkmcnt(0)")
            for t in range(9):
                ir, h = aidx(s, t)
                a(f"v_smfmac_f32_16x16x64_bf16 {vr(V_ACC+4*t,4)}, {afrag(s,t)}, {vr(V_B,8)}, v{ir}" + (" abid:1" if h else ""))
            a("s_nop 7")
        a(f"s_add_u32 s{S_MODE}, s{S_MODE}, 1")
        a(f"s_cmp_lt_u32 s{S_MODE}, 2")
        a("s_cbranch_scc1 L_spass")
        for t in range(7):
            for h in range(2):
                a(f"v_cvt_pk_bf16_f32 v{V_P+2*t+h}, v{V_ACC+4*t+2*h}, v{V_ACC+4*t+2*h+1}")
        a(f"s_mov_b64 vcc, {sr(S_EVEN,2)}")
        self.emit_epi(self.assemble_loop(False, "")[2])
        for r in (S_XOFF, S_XOFF5, S_OOFF):
            a(f"s_add_u32 s{r}, s{r}, s{S_XINC}")
        a(f"s_mov_b32 s{S_XINC}, {256*TB}")
        a(f"s_add_u32 s{S_IT}, s{S_IT}, 1")
        a(f"s_cmp_lt_u32 s{S_IT}, s{S_NT}")
        a("s_cbranch_scc1 L_stile")
        a("s_branch L_fin")

    def loop_ops(self, links, dma, clm=False):
        o = self.o
        acc = lambda t: rng(V_ACC + 4 * t, 4)
        ch = o["chain"]
        bb = lambda s: V_P if (ch and s == 6) else V_B + 8 * BBUF[s]
        RBUF = [V_BR, V_BR + 8, V_BR, V_P + 8 if ch else V_P, V_BR + 8]
        rt = RT if links else [[0, 1], [2, 3], [4, 5], [6, 7], [8]]
        ng = [8, 8, 8, 8, 8 if links else o["ng4"]]

        def M(s, t):
            ir, h = aidx(s, t)
            return Op(f"v_smfmac_f32_16x16x64_bf16 {vr(V_ACC+4*t,4)}, {afrag(s,t)}, {vr(bb(s),8)}, v{ir}" + (" abid:1" if h else ""),
                      "mx", rd=list(acc(t)) + list(rng(bb(s), 8)), wr=acc(t), tag=("M", s, t))

        def R(j, t):
            c = j + t
            return Op(f"v_smfmac_f32_16x16x64_bf16 {vr(V_ACC+4*t,4)}, {vr(V_X,4)}, {vr(RBUF[j],8)}, v{V_IR+(c>>1)}" + (" abid:1" if c & 1 else ""),
                      "mx", rd=list(acc(t)) + list(rng(RBUF[j], 8)) + list(rng(V_X, 4)), wr=acc(t), tag=("R", j, t))
        seq = []
        for t in range(9):
            seq += [M(0, t), M(1, t)]
        if ch:
            for steps, order, rs in (((2, 3), o["ord1"], (0, 1)), ((4, 5, 6), o["ord2"], (2, 3, 4))):
                for n, t in enumerate(order):
                    seq += [M(s, t) for s in steps]
                    if t // 2 in rs and t % 2 == 0:
                        j = t // 2
                        assert t == 8 or order[n + 1] == t + 1
                        seq += [R(j, t)] + ([R(j, t - 1)] if links and j else []) + ([R(j, t + 1)] if t < 8 else [])
        else:
            for s in range(2, 7):
                seq += [M(s, t) for t in range(9)]
        for t in range(9):
            seq += [M(7, t), M(8, t)]
        if ch:
            rpos = [min(i for i, x in enumerate(seq) if x.tag[:2] == ("R", j)) for j in range(5)]
        else:
            rpos = list(o["rposl"] if links else o["rpos"])
            for j in range(5):
                for n, t in enumerate(rt[j]):
                    seq.insert(rpos[j] + n, R(j, t))
        N = len(seq)
        pos = {x.tag: i for i, x in enumerate(seq)}
        BAR = rpos[4] + len(rt[4]) - 1
        c0 = N - 15 - BAR
        assert c0 == (4 if ch else 0)
        self.drain = rpos[4] - 1
        T = lambda g: (g - BAR - 1) % N
        first = lambda s: T(min(pos[("M", s, t)] for t in range(9)))
        lastu = lambda s: max(pos[("M", s, t)] for t in range(9))
        LEAD = o["lead"]
        ST = [[] for _ in range(N)]
        S = [[] for _ in range(N)]
        D = [[] for _ in range(N)]
        V = [[] for _ in range(N)]
        keep = lambda op: (dma or op.tag != "dma") and (clm or op.tag != "clm")

        def pdst(t, h):
            return V_P8 + h if t == 8 else V_P + 2 * t + h
        dq, vq = [], []
        for t in range(9):
            for h in range(2):
                V[c0 + 2 * t + h].append(Op(f"v_cvt_pk_bf16_f32 v{pdst(t,h)}, v{V_ACC+4*t+2*h}, v{V_ACC+4*t+2*h+1}", "valu",
                                       rd=[V_ACC + 4 * t + 2 * h, V_ACC + 4 * t + 2 * h + 1], wr=[pdst(t, h)], tag="epi"))
            dq.append([Op(f"ds_read_b128 {vr(V_ACC+4*t,4)}, v{V_TAB} offset:{O_BIAS+64*t}", "lds", rd=[V_TAB], wr=acc(t), tag="pre"),
                       c0 + 2 * t + 2, c0 + 2 * t + 2, None])
        def stf(e):
            f = o["stc"] if clm else (o["st"] if dma else o["stn"])
            f = o["st"] if f is None else f
            return f[e] if isinstance(f, (tuple, list)) else f
        dpp = "quad_perm:[1,0,3,2] row_mask:0xf bank_mask:0xf"
        stg = [T(g) for g in o["stg"]]
        for v in range(2):
            p0, p1 = V_P + 8 * v, V_P + 8 * v + 4
            d0 = V_T if v == 0 else V_P
            for half in range(2):
                e = 2 * v + half
                for d in range(4):
                    if half == 0:
                        op = Op(f"v_cndmask_b32_dpp v{d0+d}, v{p1+d}, v{p0+d}, vcc {dpp}", "dpp", rd=[p0 + d, p1 + d], wr=[d0 + d], tag="epi")
                    else:
                        op = Op(f"v_cndmask_b32_dpp v{p1+d}, v{p0+d}, v{p1+d}, vcc {dpp}", "dpp", rd=[p0 + d, p1 + d], wr=[p1 + d], tag="epi")
                    vq.append([op, stg[e - 1] if e else c0 + 18, stg[e] - 4 + d, None])
                src = d0 if half == 0 else p1
                ST[stg[e]].append(Op(f"buffer_store_dwordx4 {vr(src,4)}, v{V_ST}, {sr(S_OUT,4)}, s{S_OOFF} offen offset:{1152*half+128*v} {stf(e)}",
                                     "st", rd=list(rng(src, 4)) + [V_ST], tag="epi"))
                ST[stg[e]].append(Op(f"s_mov_b64 vcc, {sr((S_ODD, S_EVEN)[half],2)}", "salu", tag="epi"))
        if o["bperm"]:
            for h in range(2):
                dq.append([Op(f"ds_bpermute_b32 v{V_P8+h}, v{V_BP}, v{V_P8+h}", "lds", rd=[V_BP, V_P8 + h], wr=[V_P8 + h], tag="epi"),
                           c0 + 18, stg[4] - LEAD - 2 + h, None])
        ST[stg[4]].append(Op(f"buffer_store_dwordx2 {vr(V_P8,2)}, v{V_ST8}, {sr(S_OUT,4)}, s{S_OOFF} offen {o['st8']}", "st",
                             rd=[V_P8, V_P8 + 1, V_ST8], tag="epi"))
        rl = lambda j: T(rpos[j] + len(rt[j]) - 1)
        free = [rl(2), 1, rl(0), stg[3 if ch else 2] + 1, rl(1)]
        for j in range(5):
            dl = T(rpos[j]) - LEAD - 1
            for b in range(ng[j]):
                r = RBUF[j] + b
                ad = V_AD + 4 * j + (b >> 1)
                av = Op(f"v_add_u32_sdwa v{r}, s{S_BUFN if j == 0 else S_BUF}, v{ad} dst_sel:DWORD dst_unused:UNUSED_PAD src0_sel:DWORD src1_sel:WORD_{b&1}",
                        "valu", rd=[ad], wr=[r], tag="pre" if j == 0 else "")
                gd = dl - o["gsp"] * (ng[j] - 1 - b)
                vq.append([av, free[j], (N - 2 - (7 - b)) if j == 0 else gd - 1, None])
                dq.append([Op(f"ds_read_u16 v{r}, v{r}", "lds", rd=[r], wr=[r], tag="pre"), 0, gd, None if j == 0 else av])
            dq.append([Op(f"ds_read_b128 {vr(V_X,4)}, v{V_TAB} offset:{O_X+64*j}", "lds", rd=[V_TAB], wr=rng(V_X, 4), tag="pre"),
                       0 if j == 0 else rl(j - 1), dl, None])
        prev = {0: None, 1: None, 2: 7, 3: 8, 4: 0, 5: 1, 6: 4, 7: 2, 8: 3}
        lastb = []
        for s in range(9):
            for h in range(2):
                op = Op(f"ds_read_b128 {vr(bb(s)+4*h,4)}, v{(V_RD0, V_RD1)[h]} offset:{2048*s}", "lds",
                        rd=[(V_RD0, V_RD1)[h]], wr=rng(bb(s) + 4 * h, 4), tag="pre")
                fs = first(s) if s < 7 else (T(rpos[4]) - 2 * (9 - s) if ch else T(pos[("M", s, 0)]))
                rel = 0 if prev[s] is None else T(lastu(prev[s]))
                if ch and s == 6:
                    rel = stg[2] + 1
                dq.append([op, rel, fs - LEAD - 2 + h, None])
                lastb.append(op)
        for h in range(2):
            vq.append([Op(f"v_add_u32 v{V_RD0+h}, s{S_DELTA}, v{V_RD0+h}", "valu", rd=[V_RD0 + h], wr=[V_RD0 + h]), 0, N - 2, lastb])
        sq = []
        dmag = [g + (self.drain - 70) * (g > 50) for g in o["dmag"]]
        assert all(b - a_ >= 2 for a_, b in zip(dmag, dmag[1:]))
        if not o["nodma"]:
            for j, g in enumerate(dmag):
                g = T(g)
                ld = f"buffer_load_dwordx4 v{V_DMA}, {sr(S_X,4)}, s{S_XOFF if j < 4 else S_XOFF5} offen offset:{256*j if j < 4 else 896} {o['ld']} lds"
                if j < 4:
                    D[g].append(Op(ld, "dma", rd=[V_DMA], tag="dma"))
                    S[g - 1].append(Op(f"s_add_u32 m0, s{S_M0B}, {3840*j}", "salu", tag="dma"))
                else:
                    D[g] += [Op(f"s_mov_b64 exec, {sr(S_HALF,2)}", "salu", tag="dma"), Op(ld, "dma", rd=[V_DMA], tag="dma"),
                             Op("s_mov_b64 exec, -1", "salu", tag="dma")]
                    S[g - 1].append(Op(f"s_add_u32 m0, s{S_M0B}, s{S_M05}", "salu", tag="dma"))
                    V[g] = None
        XV = [[] for _ in range(N)]
        if self.dyn:
            gl = T(o["mbg"] + self.drain - 70) - 1
            XV[T(0)].append(Op(f"v_mov_b32 v{V_C}, 1", "valu", wr=[V_C], tag="clm"))
            D[T(1)].append(Op(f"buffer_atomic_add v{V_C}, v{V_BP}, {sr(S_B,4)}, 0 offen sc0 sc1", "dma", rd=[V_BP], tag="clm"))
            assert not D[gl + 1] and not S[gl + 1] and max(stg) <= gl
            gw = gl + 1 if o["cwg"] is None else T(o["cwg"])
            assert gw not in stg and T(1) < gw <= gl + 1
            S[gw].append(Op(f"s_waitcnt vmcnt({sum(1 for g in stg if g < gw) + sum(1 for g in dmag if T(g) < gw)})", "salu", tag="clm"))
            if o["dwg"] is not None and dma and not clm:
                gw = T(o["dwg"])
                assert gw not in stg
                S[gw].append(Op(f"s_waitcnt vmcnt({sum(1 for g in stg if g < gw) + sum(1 for g in dmag if T(g) < gw)})", "salu"))
            D[gl + 1] += [Op(f"s_mov_b64 exec, {sr(S_W0,2)}", "salu", tag="clm"),
                          Op(f"ds_write_b32 v{V_RD0}, v{V_C} offset:{TB}", "lds", rd=[V_RD0], tag="clm"), Op("s_mov_b64 exec, -1", "salu", tag="clm")]
            V[gl + 1] = None
            D[0].append(Op(f"ds_read_b32 v{V_C}, v{V_RD0} offset:{TB}", "lds", rd=[V_RD0], wr=[V_C], tag="clm"))
            XV[LEAD + 1].append(Op(f"v_readfirstlane_b32 s{S_CL}, v{V_C}", "valu", rd=[V_C], tag="clm"))
        placed = {}
        for g in range(N - 1):
            if not D[g] and g != T(N - 1):
                c = [x for x in dq if x[1] <= g and (x[3] is None or placed.get(id(x[3]), N) < g) and x[2] - g <= o["eager"]]
                if c:
                    x = min(c, key=lambda x: x[2])
                    dq.remove(x)
                    D[g].append(x[0])
                    placed[id(x[0])] = g
                    if g > x[2] and o["verbose"]:
                        print("; late D", g - x[2], x[0].text, file=sys.stderr)
            if V[g] is None:
                V[g] = []
                continue
            cap = 2 if (ST[g] and "x4" in ST[g][0].text) else 1
            while len(V[g]) < cap:
                c = [x for x in vq if x[1] <= g and (x[3] is None or all(placed.get(id(y), N) <= g for y in x[3]))]
                if not c:
                    break
                x = min(c, key=lambda x: x[2])
                vq.remove(x)
                V[g].append(x[0])
                placed[id(x[0])] = g
                assert g <= x[2] or x[0].kind != "dpp", ("late", x[0].text)
        assert not dq and not vq, ([x[0].text for x in dq], [x[0].text for x in vq])
        for g in range(N):
            V[g] += XV[g]
        if self.dyn:
            rdup = max(placed[id(x)] for gl_ in V for x in gl_ if id(x) in placed and f"s{S_DELTA}," in x.text)
            assert rdup <= gl and gl + 1 < T(self.drain) and T(min(o["stg"])) > T(1)
        S[N - 1] += ([] if clm else [Op(f"s_waitcnt vmcnt({o['vmw']})", "salu")]) + [Op("s_barrier", "bar")]
        lastdma = T(dmag[4])
        la = max(placed[id(x)] for gl in V for x in gl if id(x) in placed and f"s{S_BUF}," in x.text)
        fn = min(placed[id(x)] for gl in V for x in gl if id(x) in placed and (f"s{S_BUFN}," in x.text or f"s{S_DELTA}," in x.text))
        sq = [([f"s_mov_b32 s{S_BUF}, s{S_BUFN}"], 0, 0),
              ([f"s_cmp_eq_u32 s{S_BUFN}, {(NB-1)*TBL}", f"s_cselect_b32 s{S_DELTA}, {-(NB-1)*TBL}, s{S_CTB}", f"s_add_u32 s{S_BUFN}, s{S_BUFN}, s{S_DELTA}"], c0 + 18, fn),
              ]
        if self.dyn:
            LK = self.dyn[1]
            sq.append((([] if clm else [f"s_mov_b32 s{S_OUT+2}, {XBYTES}"]) + [f"s_mov_b32 s{S_OOFF}, s{S_Q}"]
                       + [f"s_mov_b32 s{S_Q+k}, s{S_Q+k+1}" for k in range(LK - 1)]
                       + [f"s_mov_b32 s{S_Q+LK-1}, s{S_XOFF}" if clm else f"s_add_u32 s{S_Q+LK-1}, s{S_Q+LK-1}, {256*TB}"], stg[4] + 1, N - 2))
        else:
            sq.append(([f"s_mov_b32 s{S_OUT+2}, {XBYTES}", f"s_add_u32 s{S_OOFF}, s{S_OOFF}, s{S_OINC}", f"s_mov_b32 s{S_OINC}, s{S_OINC2}",
                        f"s_mov_b32 s{S_OINC2}, {256*TB}"], stg[4] + 1, N - 2))
        if not clm or o["trace"]:
            sq.append(([f"s_add_u32 s{S_IT}, s{S_IT}, 1"], c0 + 18, N - 2))
        if clm:
            ps = o["psh"]
            sq += [([f"s_add_u32 s{S_XOFF5}, s{S_XOFF}, s{S_K5}"], c0 + 18, lastdma - 2),
                   (self.dma_advance()[2:], lastdma + 1, N + 8),
                   ([f"s_lshr_b32 s{S_CT}, s{S_CL}, {ps}", f"s_mul_i32 s{S_CT}, s{S_CT}, {(256 - (1 << ps))*TB}", f"s_mul_i32 s{S_CT+1}, s{S_CL}, {TB}",
                     f"s_add_u32 s{S_CT}, s{S_CT}, s{S_CB}", f"s_add_u32 s{S_XOFF}, s{S_CT}, s{S_CT+1}"], LEAD + 2, T(N - 1) - 2),
                   ([f"s_cmp_lt_u32 s{S_CL}, {(16 - self.dyn[0]) << ps}"], T(N - 1) - 1, T(N - 1) - 1)]
        else:
            if dma:
                sq += [(self.dma_advance(), lastdma + 1, N + 12)]
            sq.append(([f"s_bitcmp1_b32 s{S_DMASK if dma else S_NMASK}, s{S_IT}"], T(N - 1) - 1, T(N - 1) - 1))
        G = lambda A: [[x for x in A[T(g)] if keep(x)] for g in range(N)]
        return seq, G(ST), G(S), G(D), G(V), [(x, (lo + BAR + 1), (hi + BAR + 1)) for x, lo, hi in sq], BAR

    def assemble_loop(self, links, label, dma=True, clm=False):
        seq, ST, S, D, V, sq, BAR = self.loop_ops(links, dma, clm)
        N = len(seq)
        flat = []
        for rep in range(2):
            for g in range(N):
                a0 = rep * N + g
                flat.append((seq[g], a0 - 1))
                for x in ST[g]:
                    flat.append((x, a0 - 1))
                for x in D[g] + V[g]:
                    flat.append((x, a0))
        gap_of = {}
        k = 0
        lds = []
        for rep in range(2):
            for g in range(N):
                k += 1 + len(ST[g])
                for x in D[g] + V[g]:
                    if x.kind == "lds":
                        lds.append((k, rep * N + g))
                    k += 1
        done = -1
        W = {}
        minlead = 99
        for i, (op, wg) in enumerate(flat):
            touched = op.rd | op.wr
            need = -1
            for n, (k, g) in enumerate(lds):
                if k < i and n > done and (flat[k][0].wr & touched):
                    need = n
            if need >= 0:
                assert lds[need][1] < wg
                issued = [n for n, (k, g) in enumerate(lds) if g < wg]
                cnt = min(issued[-1] - need, 15)
                done = issued[-1] - cnt
                if wg >= N - 1 and wg < 2 * N - 1:
                    W[wg % N] = min(cnt, W.get(wg % N, 99))
                    if self.o["verbose"]:
                        print(f"; wait gap {wg % N} cnt {cnt} lead {wg - lds[need][1]} for {flat[lds[need][0]][0].text}", file=sys.stderr)
        W[self.drain] = 0
        if clm:
            mb = [g for g in range(N) if any("ds_write" in x.text for x in D[g])][0]
            assert not [g for g in W if mb < g < self.drain]
        for g, c in W.items():
            S[g].insert(0, Op(f"s_waitcnt lgkmcnt({c})", "salu"))
        if not self.o["drop"]:
            last = max(g for g in range(BAR + 1) if any(x.kind == "lds" for x in D[g]))
            assert any(W.get(g) == 0 for g in range(last + 1, BAR + 1)), "tile reads not drained at the barrier"

        def room(g, extra=0, resv=True):
            g %= N
            if g == BAR or g == N - 1 or any(x.kind == "dma" for x in D[g]):
                return False
            cap = 1 if D[g] else (2 if V[g] else 3)
            if label and not clm and resv:
                if g == self.drain - 1:
                    return False
                cap -= g == self.drain - 2
            return len(S[g]) + extra < cap and not ST[g]
        sccfree = lambda x: x.text.startswith(("s_waitcnt", "s_mov", "s_barrier"))
        locked = set()
        for texts, lo, hi in sq:
            g = lo
            n = 0
            while n < len(texts):
                chain = [texts[n]]
                if texts[n].startswith(("s_cmp", "s_bitcmp")):
                    while n + len(chain) < len(texts) and texts[n + len(chain)].startswith("s_cselect"):
                        chain.append(texts[n + len(chain)])
                while True:
                    assert g <= hi, ("no room", chain)
                    where, z = [], g
                    ok = room(g) and ((g % N) not in locked or chain[0].startswith("s_mov"))
                    cnt = {}
                    for k, tx in enumerate(chain):
                        while ok and not room(z, cnt.get(z, 0)):
                            z += 1
                            ok = z <= hi and all(sccfree(x) for x in S[z % N]) and (clm or z % N != self.drain - 1)
                        where.append(z)
                        cnt[z] = cnt.get(z, 0) + 1
                    if ok:
                        break
                    g += 1
                for z, tx in zip(where, chain):
                    S[z % N].append(Op(tx, "salu"))
                if len(chain) > 1:
                    locked.update(z % N for z in range(where[0], where[-1]))
                g = where[-1]
                n += len(chain)
        assert all(sccfree(x) for x in S[N - 1])
        if label and not clm:
            gz = self.drain - (2 if self.o["trace"] else 1)
            assert self.o["chain"] and (self.o["trace"] or (not (S[gz] or D[gz] or V[gz] or ST[gz]) and room(gz - 1, 0, False) and (gz - 1) not in locked))
            assert all(x.kind not in ("dma", "st") for g in range(gz, N) for x in D[g] + ST[g]) and max(self.o["stg"]) < min(self.o["dmag"])
            S[gz - (0 if self.o["trace"] else 1)].append(Op(f"s_bitcmp1_b32 s{S_WMASK}, s{S_IT}", "salu"))
            S[gz] += [Op(f"s_cbranch_scc1 {label}_w", "salu"), Op(f"{label}_wb:", "label")]
            self.tailblocks.append(f"{label}_w:\ns_bitcmp1_b32 s{S_WMASK2}, s{S_IT}\ns_waitcnt vmcnt({self.whi})\n"
                                   f"s_cbranch_scc0 {label}_wb\ns_waitcnt vmcnt({self.wlo})\ns_branch {label}_wb")
        if self.o["trace"]:
            g0 = max(g for g, c in W.items() if c == 0 and g <= BAR)
            S[g0 - 1] += [Op("s_memrealtime s[98:99]", "salu"), Op("s_memtime s[96:97]", "salu"), Op(f"s_add_u32 s95, s{S_IT}, 32", "salu")]
            V[g0] += [Op(f"s_mov_b32 m0, s{S_IT}", "salu"), Op("v_writelane_b32 v254, s98, m0", "salu"), Op("s_mov_b32 m0, s95", "salu"), Op("v_writelane_b32 v254, s96, m0", "salu")]
        body = []
        for g in range(N):
            body += [x for x in [seq[g]] if not any(d in x.text for d in self.o["dropm"])] + ST[g] + S[g] + D[g] + V[g]
            if self.o["pad"] and g % self.o["pad"] == 0 and g < N - 2:
                body.append(Op("s_nop 3", "salu"))
        body = [x for x in body if x.kind == "mx" or not any(d in x.text for d in self.o["drop"])]
        body.append(Op(f"s_cbranch_scc1 {label}", "salu"))
        if not self.o["drop"]:
            real = [x for x in body if x.kind != "label"]
            m = len(real)
            for i, op in enumerate(real):
                for d in range(1, 10):
                    p = real[(i - d) % m]
                    ws = d - 1
                    if p.kind == "mx" and op.kind != "mx" and (p.wr & (op.rd | op.wr)):
                        assert ws >= 8, ("mx->x", p.text, op.text, ws)
                    if p.kind in ("valu", "dpp") and op.kind == "mx" and (p.wr & op.rd):
                        assert ws >= 2, ("valu->mx", p.text, op.text, ws)
                    if p.kind in ("valu", "dpp") and op.kind == "dpp" and (p.wr & op.rd):
                        assert ws >= 2, ("valu->dpp", p.text, op.text, ws)
                    if p.kind == "st" and (p.rd & op.wr):
                        assert ws >= 2, ("st war", p.text, op.text, ws)
        pro = [x for g in range(N) for x in V[g] if x.tag == "pre" or (g > BAR and "sdwa" in x.text)] \
            + [x for g in range(BAR + 1, N) for x in D[g] if x.tag == "pre"]
        epi = [x for g in range(BAR) for x in ST[g] + D[g] + V[g] if x.tag == "epi"]
        return pro, body, epi

    def emit_epi(self, epi):
        cv = [x for x in epi if "v_cvt" in x.text]
        bp = [x for x in epi if x.kind == "lds"]
        rest = [x for x in epi if x not in cv and x not in bp]
        ops = rest[:6] + cv[2:] + bp + rest[6:12] + cv[:2] + rest[12:]
        if self.o["ste"] is not None:
            ops = [Op(x.text.replace(" sc1", " " + self.o["ste"]), x.kind, x.rd, x.wr) if x.kind == "st" else x for x in ops]
        hist = [Op("", "mx", wr=rng(V_ACC + 28, 8)), Op("", "valu", wr=rng(V_P, 14)), Op("", "salu")]
        self.emit_line(ops, [], hist)

    def main_loop(self, links, sfx):
        a = self.a
        pro, body, epi = self.assemble_loop(links, "L_loop" + sfx)
        if not self.o["peel"]:
            late = list(self.late_loads)
            for n, op in enumerate(pro):
                a(op.text)
                if n % 6 == 5:
                    while late and not late[0].startswith("buffer"):
                        a(late.pop(0))
                    if late:
                        a(late.pop(0))
            for x in late[:8]:
                a(x)
            a("s_waitcnt lgkmcnt(0)")
            a(f"v_readfirstlane_b32 s{S_T0}, v{V_T}")
            a("s_nop 3")
            a(f"s_cmp_lg_u32 s{S_T0}, 0")
            a("s_cbranch_scc1 L_slow")
            for x in late[8:]:
                a(x)
            if max(p[1] for p in self.pol):
                self.prefetch(24, "L_pf2" + sfx)
            for x in self.dma_advance(first=True):
                a(x)
            a(f"s_waitcnt vmcnt({(20 if self.o['early'] else 0) + 5 * self.n2min})")
            self.stamp(5)
            a(f"s_bitcmp1_b32 s{S_DMASK}, 0")
            a(f"s_cbranch_scc0 L_loopn{sfx}")
        a(".p2align 6")
        a(f"L_loop{sfx}:")
        for op in body:
            a(op.text)
        if self.o["wbl2"] is not None:
            a(f"s_lshr_b32 s{S_T0}, s2, 3")
            a(f"s_and_b32 s{S_T0}, s{S_T0}, {self.o['wbl2']}")
            a(f"s_or_b32 s{S_T0}, s{S_T0}, s{S_WAVE}")
            a(f"s_cbranch_scc1 L_loopn{sfx}")
            a("buffer_wbl2 sc1")
        if self.dyn:
            LK = self.dyn[1]
            a(f"s_cmp_lg_u32 s{S_IT}, {self.cl0}")
            a(f"s_cbranch_scc1 L_loopn{sfx}")
            a(".p2align 3")
            a(f"L_loopc{sfx}:")
            for op in self.assemble_loop(links, "L_loopc" + sfx, True, True)[1]:
                a(op.text)
            if self.o["trace"]:
                a(f"s_add_u32 s{S_NT}, s{S_IT}, {LK}")
                a(f"s_bfm_b32 s{S_NMASK}, s{S_NT}, 0")
                a(f"s_lshl_b32 s{S_WMASK}, {1 << (LK-1)}, s{S_IT}")
                a(f"s_lshl_b32 s{S_WMASK2}, {(1 << (LK-1)) if 5*(LK-1) < self.whi else 0}, s{S_IT}")
            else:
                a(f"s_mov_b32 s{S_IT}, 0")
                a(f"s_mov_b32 s{S_NT}, {LK}")
                a(f"s_mov_b32 s{S_NMASK}, {(1 << LK) - 1}")
                a(f"s_mov_b32 s{S_WMASK}, {(1 << (LK-1)) if 5*(LK-1) < self.o['vmw'] else 0}")
                a(f"s_mov_b32 s{S_WMASK2}, {(1 << (LK-1)) if 5*(LK-1) < self.whi else 0}")
            a(f"s_mov_b32 s{S_CL0}, -1")
            if self.o["stt"] is not None:
                keep, self.o["stn"] = self.o["stn"], self.o["stt"]
                for op in self.assemble_loop(links, "L_loopt" + sfx, False)[1][:-1]:
                    a(op.text)
                self.o["stn"] = keep
        if self.o["align2"]:
            a(".p2align 3")
        a(f"L_loopn{sfx}:")
        _, body, epi = self.assemble_loop(links, "L_loopn" + sfx, False)
        for op in body:
            a(op.text)
            if op.kind == "bar":
                a(f"L_loopn{sfx}_p3:")
        if self.dyn:
            a(f"s_cmp_eq_u32 s{S_IT}, s{S_CL0}")
            a(f"s_cbranch_scc1 L_loopc{sfx}")
        a(f"s_cmp_lt_u32 s{S_IT}, s{S_NT}")
        a(f"s_cbranch_scc1 L_loop{sfx}")
        self.emit_epi(epi)

    def loop_state(self):
        a = self.a
        pl = 2 if self.o["peel"] else 0
        a(f"s_mov_b32 s{S_IT}, {pl}")
        a(f"s_mov_b32 s{S_BUF}, 0")
        a(f"s_mov_b32 s{S_BUFN}, {pl*TBL}")
        if pl:
            a(f"s_mov_b32 s{S_OUT+2}, {XBYTES}")
        a(f"s_mov_b32 s{S_CTB}, {TBL}")
        a(f"s_mov_b32 s{S_OINC}, {256*TB if pl else 0}")
        a(f"s_mov_b64 vcc, {sr(S_EVEN,2)}")
        if self.dyn:
            NS, LK = self.dyn
            ps = self.o["psh"]
            a(f"s_andn2_b32 s{S_NMASK}, {(1 << self.cl0) - 1}, s{S_DMASK}")
            a(f"s_mov_b32 s{S_CL0}, {self.cl0}")
            a(f"s_add_u32 s{S_Q}, s{S_OOFF}, {pl*256*TB}")
            for k in range(1, LK):
                a(f"s_add_u32 s{S_Q+k}, s{S_Q+k-1}, {256*TB}")
            a(f"s_sub_u32 s{S_K5}, s{S_XOFF5}, s{S_XOFF}")
            a(f"s_lshr_b32 s{S_T0}, s2, {ps}")
            a(f"s_mul_i32 s{S_CB}, s{S_T0}, {TB << ps}")
            a(f"s_add_u32 s{S_CB}, s{S_CB}, {NS*256*TB}")
            a(f"s_lshl_b32 s{S_T0}, s{S_T0}, 7")
            a(f"s_add_u32 s{S_T0}, s{S_T0}, {CNT_OFF}")
            a(f"s_add_u32 s{S_B}, s{S_WS}, s{S_T0}")
            a(f"s_addc_u32 s{S_B+1}, s{S_WS+1}, 0")
            a(f"s_cmp_eq_u32 s{S_WAVE}, 0")
            a(f"s_cselect_b32 s{S_B+2}, 4, 0")
            a(f"s_cselect_b64 {sr(S_W0,2)}, 1, 0")
        else:
            a(f"s_bfm_b32 s{S_NMASK}, s{S_NT}, 0")
            a(f"s_andn2_b32 s{S_NMASK}, s{S_NMASK}, s{S_DMASK}")

    def stamp(self, n, r="s[98:99]"):
        if self.o["stamp"] and (self.o["stamp"] is True or n in self.o["stamp"]):
            a = self.a
            a(f"s_memtime {r}" if self.o["cyc"] and n in (5, 6) else f"s_memrealtime {r}")
            a("s_waitcnt lgkmcnt(0)")
            a(f"v_writelane_b32 v255, s{r[2:4]}, {n}")

    def descriptor(self, label, vg, ag):
        self.a(f""".amdhsa_kernel {label}
  .amdhsa_next_free_vgpr {vg}
  .amdhsa_next_free_sgpr 102
  .amdhsa_accum_offset {ag}
  .amdhsa_group_segment_fixed_size 0
  .amdhsa_float_denorm_mode_32 3
  .amdhsa_kernarg_size 48
  .amdhsa_user_sgpr_count 2
  .amdhsa_user_sgpr_kernarg_segment_ptr 1
  .amdhsa_system_sgpr_workgroup_id_x 1
.end_amdhsa_kernel""")

    def flush_tail(self):
        for b in self.tailblocks:
            self.a(b)
        self.tailblocks = []

    def gen(self):
        a = self.a
        o = self.o
        K = NAME + "_kernel"
        a(open("cdna_kernels/" + NAME + ".s.ref").read().split("; Override")[0].rstrip())
        if o["fused"]:
            a(f"; @launch grid=(256,1,1) block=(256,1,1) lds={LDS_BYTES}")
        else:
            a(f"; @launch kernel=prep_kernel grid=({NTASK},1,1) block=(256,1,1) lds={LDS_BYTES}")
            a(f"; @launch kernel={K} grid=(256,1,1) block=(256,1,1) lds={LDS_BYTES}")
        a('.amdgcn_target "amdgcn-amd-amdhsa--gfx950"\n.text')
        if not o["fused"]:
            self.entry("prep_kernel", NTASK)
            a(f"s_mov_b32 s{S_TASK}, s2\ns_mov_b32 s{S_BASE}, 0")
            self.producer("", False)
            a("L_end_prep_kernel:\ns_endpgm")
            self.flush_tail()
        self.entry(K, 256)
        a(f"s_mov_b32 s{S_BASE}, 0")
        msk = lambda p: hex(sum(1 << i for i in p[2] if not self.dyn or i < self.cl0) | p[0] << 20 | p[1] << 24)
        def pick(reg, vals):
            if len(set(vals)) == 1:
                a(f"s_mov_b32 s{reg}, {vals[0]}")
                return
            a(f"s_mov_b32 s{reg}, {vals[1]}")
            a(f"s_mov_b32 s{S_T0}, {vals[3]}")
            a(f"s_bitcmp1_b32 s2, {o['gsh']}")
            a(f"s_cselect_b32 s{reg}, s{reg}, {vals[0]}")
            a(f"s_cselect_b32 s{S_T0}, s{S_T0}, {vals[2]}")
            a(f"s_bitcmp1_b32 s2, {o['gsh2']}")
            a(f"s_cselect_b32 s{reg}, s{S_T0}, s{reg}")
        if o["fused"]:
            px = o["px"]
            if o["pspread"]:
                a(f"s_bfe_u32 s{S_TASK}, s2, {hex(2 << 16 | 3)}")
                a(f"s_mul_i32 s{S_TASK}, s{S_TASK}, {px}")
                a(f"s_and_b32 s{S_T0}, s2, 7")
                a(f"s_add_u32 s{S_TASK}, s{S_TASK}, s{S_T0}")
                a(f"s_lshr_b32 s{S_T1}, s2, 5")
                a(f"s_lshl3_add_u32 s{S_TASK}, s{S_TASK}, s{S_T1}")
            else:
                a(f"s_lshr_b32 s{S_TASK}, s2, 3")
                a(f"s_mul_i32 s{S_TASK}, s{S_TASK}, {px}")
                a(f"s_and_b32 s{S_T0}, s2, 7")
                a(f"s_add_u32 s{S_TASK}, s{S_TASK}, s{S_T0}")
            a(f"s_cmp_lt_u32 s{S_T0}, {px}")
            a(f"s_cselect_b32 s{S_TASK}, s{S_TASK}, 63")
            a(f"s_cmp_lt_u32 s{S_TASK}, {NTASK}")
            a("s_cbranch_scc1 L_prod")
        pick(S_DMASK, [msk(p) for p in self.pol[:4]])
        self.lane_setup()
        if o["fused"] and o["sig"] == 3:
            self.mb_addr(S_T0, S_T1)
            a(f"s_cmp_eq_u32 s{S_WAVE}, 0")
            a(f"s_cselect_b32 s{S_T0}, s{S_T0}, 0x40000000")
            a(f"v_mov_b32 v8, s{S_T0}")
            a("v_mov_b32 v9, 0")
        self.entry_wait()
        if o["fused"] and o["sig"] == 4:
            assert o["pspread"]
            a(f"s_cmp_lg_u32 s2, {CLEARER}")
            a("s_cbranch_scc1 L_cons3")
            a("v_lshrrev_b32 v8, 2, v0")
            a("v_and_b32 v9, 3, v0")
            a("v_lshlrev_b32 v9, 4, v9")
            a("v_lshl_add_u32 v8, v8, 7, v9")
            a(f"v_add_u32 v8, {FL_OFF}, v8")
            a("v_mov_b64 v[12:13], 0")
            a("v_mov_b64 v[14:15], 0")
            a(f"buffer_store_dwordx4 v[12:15], v8, {sr(S_WS,4)}, 0 offen sc1")
            a("v_mov_b32 v10, 1")
            a("v_lshlrev_b32 v11, 2, v0")
            a("s_waitcnt vmcnt(0)")
            a("s_barrier")
            a("s_mov_b64 exec, 0xffff")
            a(f"buffer_store_dword v10, v11, {sr(S_DBG,4)}, 0 offen sc1")
            a("s_mov_b64 exec, -1")
        self.ptouch()
        if o["fused"] and o["sig"] == 3:
            a("s_mov_b64 exec, 1")
            a(f"buffer_store_dword v9, v8, {sr(S_WS,4)}, 0 offen sc1")
            a("s_mov_b64 exec, -1")
        a("L_cons3:")
        self.stamp(1)
        self.dma_setup()
        self.prefetch(20)
        self.stamp(2)
        if o["fused"]:
            a("s_branch L_rest")
            a("L_prod:")
            self.producer("", False)
            pick(S_DMASK, [msk(p) for p in self.pol[4:]] * 2)
            a("s_barrier")
            a(f"s_cmp_lg_u32 s{S_WAVE}, 0")
            a("s_cbranch_scc1 L_cons2")
            if o["sig"] != 4:
                a("v_mov_b32 v8, 1")
                a("s_mov_b64 exec, 1")
            if o["sig"] == 4:
                a(f"v_readfirstlane_b32 s{S_T0}, v8")
                a("s_mov_b64 exec, 0xffff")
                a(f"s_cmp_lg_u32 s{S_T0}, 1")
                a("s_cbranch_scc1 L_pwait")
                a("L_pset:")
                a(f"buffer_store_dword v10, v9, {sr(S_WS,4)}, 0 offen sc1")
                self.tailblocks.append("\n".join([
                    "L_pwait:", f"s_mov_b32 s{S_T1}, {o['maxpoll']}", "L_pwait1:", f"buffer_load_dword v8, off, {sr(S_DBG,4)}, 0 sc1",
                    "s_waitcnt vmcnt(0)", f"v_readfirstlane_b32 s{S_T0}, v8", "s_nop 3", f"s_cmp_eq_u32 s{S_T0}, 1", "s_cbranch_scc1 L_pset",
                    f"s_sub_u32 s{S_T1}, s{S_T1}, 1", "s_cbranch_scc0 L_pwait1", "s_branch L_notlast"]))
            elif o["sig"] == 2:
                a(f"s_lshr_b32 s{S_T0}, s{S_TASK}, 1")
                a(f"s_lshl_b32 s{S_T0}, s{S_T0}, 2")
                a(f"s_bitcmp1_b32 s{S_TASK}, 0")
                a(f"s_cselect_b32 s{S_T1}, 128, 0")
                a(f"s_add_u32 s{S_T0}, s{S_T0}, s{S_T1}")
                a(f"v_mov_b32 v9, s{S_T0}")
                a(f"buffer_store_dword v8, v9, {sr(S_DBG,4)}, 0 offen {o['fs']}")
            else:
                a(f"buffer_atomic_add v8, off, {sr(S_DBG,4)}, 0 offset:128 sc0 sc1")
                if o["sig"] == 3:
                    a("s_mov_b64 exec, -1")
                    a(f"s_mov_b32 s{S_T1}, {MB_OFF}")
                    a(f"v_lshl_add_u32 v10, v{V_LANE}, 7, s{S_T1}")
                    for k in range(1, 4):
                        a(f"v_add_u32 v{10+k}, {8192*k}, v10")
                a("v_mov_b32 v9, 1")
                a("s_waitcnt vmcnt(0)")
                a(f"v_readfirstlane_b32 s{S_T0}, v8")
                a("s_nop 3")
                a(f"s_cmp_lg_u32 s{S_T0}, {NTASK-1}")
                a("s_cbranch_scc1 L_notlast")
                if o["sig"] == 3:
                    for k in range(4):
                        a(f"buffer_store_dword v9, v{10+k}, {sr(S_WS,4)}, 0 offen sc1")
                    a("s_mov_b64 exec, 1")
                a(f"buffer_store_dword v9, off, {sr(S_DBG,4)}, 0 {o['fs']}")
                if o["diag"] and o["diag"][2] == "last":
                    a("s_mov_b32 s101, -1")
            a("L_notlast:")
            self.stamp(15)
            a("s_mov_b64 exec, -1")
            a("L_cons2:")
            self.lane_setup()
            if o["bar2"] and o["sig"] != 4:
                a("s_barrier")
            a("s_branch L_cons3")
            self.flush_tail()
            a("L_rest:")
        for reg, wm in ((S_WMASK, self.wmask), (S_WMASK2, self.wmask2)):
            pick(reg, [hex(x) for x in wm[:4]])
            if o["fused"]:
                pick(S_T1, [hex(x) for x in wm[4:]] * 2)
                a(f"s_cmp_lt_u32 s{S_TASK}, {NTASK}")
                a(f"s_cselect_b32 s{reg}, s{S_T1}, s{reg}")
        self.bias_load()
        self.lane_setup2()
        self.tables_init()
        pre, C, G = self.build()
        if o["fused"]:
            a(f"s_cmp_lg_u32 s{S_WAVE}, 0")
            a("s_cbranch_scc1 L_ready")
            if o["sig"] == 4:
                assert min(p[0] for p in self.pol) >= 3
                a(f"s_mov_b32 s{S_T1}, {o['maxpoll']}")
                a(f"s_mov_b32 s{S_T0}, {FL_OFF}")
                a(f"v_lshl_add_u32 v9, v{V_LANE}, 7, s{S_T0}")
                a(f"s_bfe_u32 s{S_T0}, s{S_DMASK}, {hex(4 << 16 | 20)}")
                a(f"s_cmp_ge_u32 s{S_T0}, 6")
                a("s_waitcnt vmcnt(16)")
                a("s_cbranch_scc1 L_deep")
                a("s_waitcnt vmcnt(1)")
                a("L_deep:")
                self.stamp(14)
                a(f"v_readfirstlane_b32 s{S_T0}, v124")
                a(f"s_mov_b32 exec_hi, {(1 << (NTASK - 32)) - 1}")
                a(f"s_cmp_lg_u32 s{S_T0}, 1")
                a("s_cbranch_scc1 L_cwait")
                self.tailblocks.append("\n".join([
                    "L_cwait:", f"buffer_load_dword v8, off, {sr(S_DBG,4)}, 0 sc1", f"s_sub_u32 s{S_T1}, s{S_T1}, 1", "s_cbranch_scc1 L_giveup",
                    "s_waitcnt vmcnt(0)", f"v_readfirstlane_b32 s{S_T0}, v8", "s_nop 3", f"s_cmp_lg_u32 s{S_T0}, 1", "s_cbranch_scc1 L_cwait",
                    "s_branch L_poll"]))
                a("L_poll:")
                if o["psleep"]:
                    a(f"s_sleep {o['psleep']}")
                a(f"buffer_load_dword v8, v9, {sr(S_WS,4)}, 0 offen sc1")
                a(f"s_sub_u32 s{S_T1}, s{S_T1}, 1")
                a("s_cbranch_scc1 L_giveup")
                a("s_waitcnt vmcnt(0)")
                a("v_cmp_ne_u32 vcc, 1, v8")
                a("s_nop 4")
                a("s_cbranch_vccnz L_poll")
            else:
                if o["sig"] == 2:
                    a(f"v_lshlrev_b32 v9, 2, v{V_LANE}")
                    a("s_waitcnt vmcnt(0)")
                else:
                    a("s_mov_b64 exec, 1")
                a(f"s_mov_b32 s{S_T1}, {o['maxpoll']}")
                if o["stamp"] and (o["stamp"] is True or 14 in o["stamp"]):
                    a("s_waitcnt vmcnt(0)")
                    self.stamp(14)
                if o["sig"] == 3:
                    self.mb_addr(S_T0, S_MASK)
                    a(f"v_mov_b32 v9, s{S_T0}")
                    a(f"s_waitcnt vmcnt({5*min(p[0] for p in self.pol)})")
                a("L_poll:")
                if o["psleep"]:
                    a(f"s_sleep {o['psleep']}")
                if o["sig"] == 3:
                    a(f"s_and_b32 s{S_T0}, s{S_T1}, 15")
                    a("s_cbranch_scc0 L_polld")
                    a(f"buffer_load_dword v8, v9, {sr(S_WS,4)}, 0 offen sc1")
                    a("L_pollb:")
                    self.tailblocks.append(f"L_polld:\nbuffer_load_dword v8, off, {sr(S_DBG,4)}, 0 sc1\ns_branch L_pollb")
                else:
                    a(f"buffer_load_dword v8, {'v9' if o['sig'] == 2 else 'off'}, {sr(S_DBG,4)}, 0 {'offen ' if o['sig'] == 2 else ''}{o['pl']}")
                a(f"s_sub_u32 s{S_T1}, s{S_T1}, 1")
                a("s_cbranch_scc1 L_giveup")
                a("s_waitcnt vmcnt(0)")
                if o["sig"] == 2:
                    a("v_cmp_ne_u32 vcc, 0, v8")
                    a(f"s_bcnt1_i32_b64 s{S_T0}, vcc")
                    a(f"s_cmp_lt_u32 s{S_T0}, {NTASK}")
                else:
                    a(f"v_readfirstlane_b32 s{S_T0}, v8")
                    a("s_nop 3")
                    a(f"s_cmp_lg_u32 s{S_T0}, 1")
                a("s_cbranch_scc1 L_poll")
            a("L_polled:")
            a("s_mov_b64 exec, -1")
            a("L_ready:")
            self.tailblocks.append(f"L_giveup:\ns_waitcnt vmcnt(0)\nv_mov_b32 v8, {L_PL + 256}\nv_mov_b32 v9, 1\nds_write_b32 v8, v9\ns_branch L_polled")
        a("s_waitcnt lgkmcnt(0)")
        a("s_barrier")
        self.stamp(3)
        self.emit_build(pre, C, G)
        self.stamp(4, "s[94:95]")
        self.loop_state()
        a("s_waitcnt lgkmcnt(0)")
        a(f"v_mov_b32 v{V_X if o['peel'] else V_T}, {L_PL + 256}")
        a("s_barrier")
        if o["peel"]:
            self.peel()
            if max(p[1] for p in self.pol):
                self.prefetch(24, "L_pf2")
            for x in self.dma_advance(first=True):
                a(x)
            a(f"s_add_u32 s{S_OOFF}, s{S_OOFF}, {256*TB}")
            self.stamp(5)
            a("s_waitcnt lgkmcnt(0)")
            a("s_barrier")
            if o["links"] is None:
                a(f"s_cmp_lg_u32 s{S_LINK}, 0")
                a("s_cbranch_scc1 L_loopnk_p3")
            a("s_branch L_loopn_p3")
        else:
            a(f"ds_read_b32 v{V_T}, v{V_T}")
            if o["links"] is None:
                a(f"s_cmp_lg_u32 s{S_LINK}, 0")
                a("s_cbranch_scc1 L_linked")
        self.main_loop(bool(o["links"]), "")
        a("L_fin:")
        if o["stamp"]:
            a(f"v_mbcnt_lo_u32_b32 v{V_LANE}, -1, 0\nv_mbcnt_hi_u32_b32 v{V_LANE}, -1, v{V_LANE}")
        self.stamp(6)
        if o["stamp"]:
            a("s_waitcnt vmcnt(0)")
            self.stamp(7)
            a("v_writelane_b32 v255, s100, 0")
            a(f"s_lshl_b32 s{S_T0}, s2, 2\ns_add_u32 s{S_T0}, s{S_T0}, s{S_WAVE}\ns_lshl_b32 s{S_T0}, s{S_T0}, 6")
            a(f"s_add_u32 s{S_T0}, s{S_T0}, {WSBYTES - 65536}")
            if o["trace"]:
                a(f"s_lshl_b32 s{S_T1}, s2, 2\ns_add_u32 s{S_T1}, s{S_T1}, s{S_WAVE}\ns_lshl_b32 s{S_T1}, s{S_T1}, 8")
                a(f"s_add_u32 s{S_T1}, s{S_T1}, {WSBYTES - 65536 - 262144}")
                a(f"v_lshl_add_u32 v8, v{V_LANE}, 2, s{S_T1}")
                a(f"buffer_store_dword v254, v8, {sr(S_WS,4)}, 0 offen")
                a("s_nop 1")
            a(f"v_lshl_add_u32 v254, v{V_LANE}, 2, s{S_T0}")
            a("s_mov_b32 exec_lo, 0xffff\ns_mov_b32 exec_hi, 0")
            a(f"buffer_store_dword v255, v254, {sr(S_WS,4)}, 0 offen")
            if o["diag"]:
                n1, n0, wg, mul = o["diag"]
                a(("s_cmp_lg_u32 s101, -1" if wg == "last" else f"s_cmp_lg_u32 s2, {wg}") + f"\ns_cbranch_scc1 L_end_{K}\ns_cmp_lg_u32 s{S_WAVE}, 0\ns_cbranch_scc1 L_end_{K}")
                a(f"v_readlane_b32 s60, v255, {n1}\nv_readlane_b32 s61, v255, {n0}\ns_nop 3\ns_sub_u32 s60, s60, s61\ns_mul_i32 s60, s60, {mul}")
                a("s_min_u32 s60, s60, 100000\ns_add_u32 s60, s60, 10000")
                a("L_diag:\ns_sleep 1\ns_memrealtime s[62:63]\ns_waitcnt lgkmcnt(0)\ns_sub_u32 s62, s62, s100\ns_cmp_lt_u32 s62, s60\ns_cbranch_scc1 L_diag")
        a(f"L_end_{K}:\ns_endpgm")
        self.flush_tail()
        if o["links"] is None:
            a("L_linked:")
            self.main_loop(True, "k")
            a("s_branch L_fin")
            self.flush_tail()
        self.slow_path(K)
        a('.section .rodata,"a"\n.p2align 6')
        if not o["fused"]:
            self.descriptor("prep_kernel", 128, 128)
            a(".p2align 6")
        self.descriptor(K, 512, 256)
        return "\n".join(self.L) + "\n"


if __name__ == "__main__":
    opts = eval("dict(" + (sys.argv[2] if len(sys.argv) > 2 else "") + ")")
    out = sys.argv[1] if len(sys.argv) > 1 else "cdna_kernels/" + NAME + ".s"
    open(out, "w").write(Gen(**opts).gen())
```

```python
import sys

NAME = "standalone__structured_sparse_n_m__ragged"
TB = 18432
TBL = TB + 128
NB = 8
CNT_OFF = 0x60000
MB_OFF = 0x68000
FL_OFF = 0x70000
CLEARER = 24
PRIV0 = 2
XBYTES = 75497472
WBYTES = 663552
WSBYTES = 301989888
A_OFF = 0
I_OFF = 331776
I8_OFF = I_OFF + 36864
R1_OFF = I8_OFF + 5120
R8_OFF = R1_OFF + 9216
COPY = 393216
NTASK = 41
L_WV = NB * TBL
WV_SZ = 3584
O_X, O_K, O_M, O_BIAS, O_IDX = 64, 384, 704, 1024, 1792
L_PL = L_WV + 4 * WV_SZ
LDS_BYTES = 163840
assert L_PL + 512 <= LDS_BYTES and L_WV % 256 == 0 and WV_SZ % 256 == 0

V_RD0, V_RD1, V_TAB, V_DMA, V_ST, V_ST8, V_BP, V_LANE = 0, 1, 2, 3, 4, 5, 6, 7
V_ACC = 8
V_B = 44
V_BR = 76
V_P = 92
V_T = 108
V_P8 = 112
V_X = 114
V_AD = 118
V_I = 138
V_I8 = 174
V_IR = 179
V_A = 186
S_X, S_OUT, S_WS, S_W, S_B, S_DBG = 16, 20, 24, 28, 32, 36
S_WAVE = 40
S_IT, S_BUF, S_DELTA, S_M0B, S_XOFF, S_OOFF = 41, 42, 43, 44, 45, 46
S_T0, S_T1 = 47, 3
S_MASK = 48
S_EVEN, S_ODD = 80, 82
S_TASK, S_TEND, S_BASE, S_MODE, S_CONT = 84, 85, 86, 87, 88
S_BAD = 90
S_MORE, S_LINK = 78, 89
S_C0 = 93
S_BUFN, S_CTB, S_OINC, S_XOFF5, S_M05, S_M0W, S_HALF = 4, 5, 6, 7, 8, 9, 10
S_NMASK = 12
S_WMASK, S_WMASK2 = 92, 87
S_XINC, S_OINC2, S_NT = 13, 14, 15
S_Q, S_CL, S_CB, S_K5, S_CL0, S_CT, S_W0 = 48, 56, 57, 58, 59, 60, 62
V_C = 7
S_DMASK, S_NB0 = 85, 88


def vr(b, n=1):
    return f"v{b}" if n == 1 else f"v[{b}:{b+n-1}]"


def sr(b, n=1):
    return f"s{b}" if n == 1 else f"s[{b}:{b+n-1}]"


def afrag(s, t):
    f = 9 * s + t
    return f"a[{4*f}:{4*f+3}]" if f < 64 else vr(V_A + 4 * (f - 64), 4)


def aidx(s, t):
    if t < 8:
        return V_I + 4 * s + (t >> 1), t & 1
    return V_I8 + (s >> 1), s & 1


BBUF = [0, 1, 2, 3, 0, 1, 0, 2, 3]
PEEL_T = [8, 0, 1, 2, 3, 4, 5, 6, 7]
RT = [[0, 1], [1, 2, 3], [3, 4, 5], [5, 6, 7], [7, 8]]


class Op:
    def __init__(self, text, kind, rd=(), wr=(), tag=""):
        self.text, self.kind, self.rd, self.wr, self.tag = text, kind, set(rd), set(wr), tag


def rng(b, n):
    return range(b, b + n)


class Gen:
    def __init__(self, **o):
        self.o = dict(fused=True, ld="nt", st="sc1", bperm=True, grp=None, nb0=None, gsh=3, gsh2=4, split=0, dyn=(10, 3), psh=6, peel=True, ptail=10, vcap=18, stp=None, stt=None, ste=None, mbg=64, cwg=46, dwg=20, wbl2=None, stn=None, pad=0, dropm=(), st8='', stc=None, stamp=False, nodma=False, wl="sc1", ws="sc1",
                      vmw=20, lper=14, drop=(), cyc=False, links=None, ng4=8, px=2, maxpoll=20015, warm=True, bcast=True, l0=12, lw=2, cwarm=True, ldp=None, ptouch=False, pspread=True, pfw=None, wtouch=False, bar2=True, early=True, ltail=24, coal=True, rpos=(18, 35, 50, 63, 75), rposl=(18, 36, 52, 66, 78),
                      lead=8, stg=(9, 16, 23, 30, 37), dmag=(44, 52, 60, 63, 66), gsp=2, eager=99, verbose=False, hack=None, diag=None, sig=1, psleep=0, pl='sc1', fs='sc1', isort=False, trace=False, chain=True, ord1=(0,1,4,5,6,2,3,7,8), ord2=(0,4,5,1,6,7,2,3,8), align2=True, order='hp')
        self.o.update(o)
        if self.o["grp"] is None and self.o["nb0"] is None:
            self.o.update(grp=[(3, 2, 2), (8, 0, 5), (3, 2, 2)])
        grp = self.o["grp"] or [(self.o["nb0"], 0, 0)] * 2
        if len(grp) != 6:
            grp = list(grp[:-1]) * (4 // (len(grp) - 1)) + [grp[-1]] * 2
        sp = self.o["split"]
        if sp:
            self.o["gsh"], self.o["gsh2"] = 0, 3
        self.pol, self.nt = [], []
        for c, (n1, n2, its) in enumerate(grp):
            nt = 16 + (sp if c % 2 == 0 else -sp)
            nb = n1 + n2
            its = list(its) if isinstance(its, (list, tuple)) else [its]
            while len(its) < nt - nb:
                its.append(its[-1] + 1)
            assert len(its) == nt - nb and all(nb + n - 7 <= i <= nb + n - 2 for n, i in enumerate(its)) and n1 >= 1, (n1, n2, its)
            self.pol.append((n1, n2, its))
            self.nt.append(nt)
        self.dyn = self.o["dyn"]
        if self.dyn:
            NS, LK = self.dyn
            self.cl0 = NS - LK - 1
            assert not sp and all(its[NS - 1 - n1 - n2] == self.cl0 and its[-1] == 15 - LK for n1, n2, its in self.pol) and self.cl0 >= 1
        self.n2min = min(p[1] for p in self.pol)
        req = []
        for (n1, n2, its), nt in zip(self.pol, self.nt):
            r = [63] * nt
            for tile in range(n1, nt):
                i = tile - 1
                a0 = (1 if self.o["peel"] else -1) if tile < n1 + n2 else its[tile - n1 - n2]
                r[i] = sum(10 if j in its else 5 for j in range(a0 + 1, i + 1)) + 5 * max(0, n1 + n2 - 1 - tile)
                if a0 < 0:
                    r[i] -= 5
            if self.o["peel"]:
                assert n1 >= 3 and its[0] >= 2 and not sp
            elif self.o["early"]:
                r[0] = min(r[0], 5 * n2 + (5 if 0 in its else 0))
            if self.dyn:
                r = r[:self.cl0] + [5 * (self.dyn[1] - 1)]
            req.append(r)
        low = sorted({x for r in req for x in r if x < self.o["vmw"]})
        self.wlo = low[0] if low else 0
        best = None
        for hi in low or [0]:
            cost = sum(x - (hi if x >= hi else self.wlo) for r in req[:4] for x in r[1:] if x < self.o["vmw"])
            if best is None or cost < best[0]:
                best = (cost, hi)
        self.whi = best[1]
        self.wmask = [sum(1 << (i + 1) for i, x in enumerate(r) if x < self.o["vmw"]) for r in req]
        self.wmask2 = [sum(1 << (i + 1) for i, x in enumerate(r) if x < self.whi) for r in req]
        self.req = req
        self.L = []
        self.tailblocks = []

    def a(self, s):
        self.L.extend(s.split("\n"))

    def entry(self, label, nwg):
        a = self.a
        a(f".globl {label}\n.p2align 8\n.type {label},@function\n{label}:")
        a("s_load_dwordx8 s[4:11], s[0:1], 0")
        a("s_load_dwordx4 s[12:15], s[0:1], 32")
        a(f"s_cmp_ge_u32 s2, {nwg}")
        a(f"s_cbranch_scc1 L_end_{label}")
        if self.o["stamp"]:
            a("s_memrealtime s[100:101]")
        a("v_lshlrev_b32 v3, 7, v0")
        if self.o["cwarm"]:
            a("s_getpc_b64 s[96:97]")
            a(f"v_min_u32 v2, L_slow-{label}, v3")
            a("global_load_dword v120, v2, s[96:97]")
        if self.o["wtouch"]:
            a(f"s_lshr_b32 s{S_T0}, s2, 3")
            a(f"s_mul_i32 s{S_T0}, s{S_T0}, {162*128}")
            a(f"v_add_u32 v3, s{S_T0}, v3")
            a(f"v_min_u32 v3, {WBYTES-128}, v3")
            a(f"s_and_b32 s{S_T0}, s2, {8 - self.o['px']}")
            a("s_waitcnt lgkmcnt(0)")
            a(f"s_cbranch_scc1 L_nt_{label}")
            a("global_load_dword v121, v3, s[6:7]")
            a(f"L_nt_{label}:")
        a("v_lshrrev_b32 v1, 6, v0")
        a(f"v_and_b32 v{V_LANE}, 63, v0")
        a(f"v_readfirstlane_b32 s{S_WAVE}, v1")

    def mb_addr(self, d, t):
        a = self.a
        a(f"s_lshr_b32 s{d}, s2, 4")
        a(f"s_and_b32 s{t}, s2, 7")
        a(f"s_lshl3_add_u32 s{d}, s{d}, s{t}")
        a(f"s_and_b32 s{t}, s2, 8")
        a(f"s_lshl4_add_u32 s{d}, s{t}, s{d}")
        a(f"s_lshl_b32 s{d}, s{d}, 7")
        a(f"s_add_u32 s{d}, s{d}, {MB_OFF}")

    def ptouch(self):
        if self.o["ptouch"]:
            a = self.a
            a("s_mov_b64 exec, 1")
            a(f"s_mov_b32 s{S_T0}, {MB_OFF + 0x8000}")
            a(f"buffer_load_dword v122, off, {sr(S_WS,4)}, s{S_T0} sc1")
            a(f"buffer_load_dword v123, off, {sr(S_DBG,4)}, 0 sc1")
            a("s_mov_b64 exec, -1")

    def srds(self, which):
        for srd, p, size in ((S_W, 6, WBYTES), (S_X, 4, XBYTES), (S_WS, 14, WSBYTES), (S_B, 8, 1152), (S_OUT, 10, 0), (S_DBG, 12, 256)):
            if srd in which:
                self.a(f"s_mov_b32 s{srd+2}, {size}")
                self.a(f"s_mov_b32 s{srd+3}, 0x20000")
                self.a(f"s_mov_b32 s{srd}, s{p}")
                self.a(f"s_and_b32 s{srd+1}, s{p+1}, 0xffff")

    def entry_wait(self, first=None):
        lst = (S_W, S_X, S_WS, S_B, S_OUT, S_DBG)
        if first is not False:
            self.a("s_waitcnt lgkmcnt(0)")
        self.srds(lst if first is None else (lst[:1] if first else lst[1:]))

    def producer(self, sfx, generic):
        a = self.a
        ws = self.o["ws"]
        W, Z, K = 8, 24, 28
        OA, NB_, IX = 36, 44, 48
        VL, VA, VI, VM0, VM1, VSEL, CJ = 50, 51, 52, 53, 54, 55, 56
        F0, F1, H, U, T0, T1, T2, VLI, VA2, VLD, VLR = 58, 59, 60, 61, 62, 63, 64, 65, 66, 67, 57
        C = S_MASK
        SEL = S_MASK + 16
        CNT = S_MASK + 27
        ln = f"v{V_LANE}"
        a(f"s_and_b32 s{C}, s{S_TASK}, 3")
        a(f"s_lshr_b32 s{C+1}, s{S_TASK}, 2")
        a(f"s_sub_u32 s{C+2}, s{S_TASK}, 36")
        a(f"s_lshl_b32 s{C+3}, s{S_WAVE}, 4")
        a(f"s_lshl_b32 s{C+4}, s{C+2}, 1")
        a(f"s_lshl_b32 s{C+5}, s{C}, 8")
        a(f"s_cmp_lt_u32 s{S_TASK}, 36")
        a(f"s_cselect_b32 s{C+4}, s{C+1}, s{C+4}")
        a(f"s_cselect_b32 s{C+5}, s{C+5}, 1024")
        a(f"s_cselect_b32 s{C+6}, 8, 73728")
        a(f"s_cselect_b32 s{C+7}, 32, 8")
        a(f"s_cselect_b32 s{C+8}, 16, 32")
        a(f"s_cselect_b32 s{C+9}, 128, 64")
        a(f"s_mul_i32 s{C+4}, s{C+4}, 73728")
        a(f"s_mul_i32 s{C+10}, s{S_WAVE}, 18432")
        a(f"v_and_b32 v{F0}, 1, {ln}")
        a(f"v_bfe_u32 v{F1}, {ln}, 1, 1")
        a(f"v_bfe_u32 v{H}, {ln}, 2, 2")
        a(f"v_bfe_u32 v{T0}, {ln}, 4, 1")
        a(f"v_lshrrev_b32 v{T1}, 5, {ln}")
        a(f"v_lshl_add_u32 v{VL}, v{F0}, 2, s{C+4}")
        a(f"v_mad_u32_u24 v{VL}, v{F1}, s{C+6}, v{VL}")
        a(f"v_mad_u32_u24 v{VL}, v{H}, s{C+7}, v{VL}")
        a(f"v_mad_u32_u24 v{VL}, v{T0}, s{C+8}, v{VL}")
        a(f"v_mad_u32_u24 v{VL}, v{T1}, s{C+9}, v{VL}")
        a(f"v_add_u32 v{VL}, s{C+5}, v{VL}")
        a(f"v_add_u32 v{VL}, s{C+10}, v{VL}")
        a(f"v_add_u32 v{T0}, 4608, v{VL}")
        a(f"v_add_u32 v{T1}, 9216, v{VL}")
        a(f"v_add_u32 v{T2}, 13824, v{VL}")
        if not generic:
            self.entry_wait(first=True)
        for q in range(4):
            for j in range(4):
                a(f"buffer_load_dword v{W+4*q+j}, v{(VL, T0, T1, T2)[q]}, {sr(S_W,4)}, 0 offen offset:{1152*j}")
        if not generic:
            self.stamp(8)
            self.entry_wait(first=False)
            self.ptouch()
        a(f"s_mul_i32 s{C+4}, s{C}, 9")
        a(f"s_add_u32 s{C+4}, s{C+4}, s{C+1}")
        a(f"s_mul_i32 s{C+5}, s{C+4}, 9")
        a(f"s_mul_i32 s{C+6}, s{C+2}, 18")
        a(f"s_add_u32 s{C+6}, s{C+6}, 8")
        a(f"s_lshl_b32 s{C+7}, s{C+4}, 2")
        a(f"s_add_u32 s{C+7}, s{C+7}, s{S_WAVE}")
        a(f"s_lshl_b32 s{C+8}, s{C+2}, 2")
        a(f"s_add_u32 s{C+8}, s{C+8}, s{S_WAVE}")
        a(f"s_cmp_eq_u32 s{S_TASK}, 40")
        a(f"s_cselect_b32 s{C+9}, 0x100000, 9")
        a(f"s_cmp_lt_u32 s{S_TASK}, 36")
        a(f"s_cselect_b32 s{C+5}, s{C+5}, s{C+6}")
        a(f"s_cselect_b32 s{C+6}, 2, 81")
        a(f"s_cselect_b32 s{C+9}, 1, s{C+9}")
        a(f"s_cselect_b32 s{C+7}, s{C+7}, s{C+8}")
        a(f"s_mov_b32 s{C+8}, {I_OFF}")
        a(f"s_cselect_b32 s{C+8}, s{C+8}, {I8_OFF}")
        a(f"s_mov_b32 s{C+10}, {R1_OFF}")
        a(f"s_cselect_b32 s{C+10}, s{C+10}, {R8_OFF}")
        a(f"s_cselect_b32 s{C+11}, 16, 4")
        a(f"s_cselect_b32 s{C+12}, 4, 64")
        a(f"s_cselect_b32 s{C+13}, 12, 11")
        a(f"s_cselect_b32 s{C+14}, 1, 0x8001")
        a(f"v_lshrrev_b32 v{U}, 4, {ln}")
        a(f"v_lshlrev_b32 v{T0}, 1, v{F0}")
        a(f"v_lshl_add_u32 v{H}, v{H}, 2, v{T0}")
        a(f"v_add_u32 v{T0}, v{H}, v{F1}")
        a(f"v_mul_u32_u24 v{VA}, s{C+6}, v{U}")
        a(f"v_add_lshl_u32 v{VA}, v{VA}, s{C+5}, 6")
        a(f"v_add3_u32 v{VA}, v{VA}, v{T0}, s{C+3}")
        a(f"v_lshl_add_u32 v{VA}, v{VA}, 4, s{S_BASE}")
        a(f"s_lshl_b32 s{C+9}, s{C+9}, 10")
        a(f"v_add_u32 v{VA2}, s{C+9}, v{VA}")
        a(f"s_lshl_b32 s{C+4}, s{C+7}, 8")
        a(f"s_add_u32 s{C+4}, s{C+4}, s{C+8}")
        a(f"s_add_u32 s{C+4}, s{C+4}, s{S_BASE}")
        a(f"v_mul_u32_u24 v{VI}, s{C+11}, v{T0}")
        a(f"v_mad_u32_u24 v{VI}, v{U}, s{C+12}, v{VI}")
        a(f"v_lshl_add_u32 v{VM1}, {ln}, 2, s{C+4}")
        if not generic:
            a(f"s_lshr_b32 s{C+4}, s{C+7}, 2")
            a(f"s_lshl_b32 s{C+4}, s{C+4}, 8")
            a(f"s_add_u32 s{C+10}, s{C+10}, s{C+4}")
            a(f"s_lshl2_add_u32 s{C+10}, s{C+3}, s{C+10}")
            a(f"s_lshl_b32 s{C+4}, s{C+3}, 1")
            a(f"s_add_u32 s{C+4}, s{C+4}, s{C+14}")
            a(f"v_lshl_add_u32 v{T0}, v{U}, 1, v{F1}")
            a(f"v_lshlrev_b32 v{T0}, s{C+13}, v{T0}")
            a(f"v_lshl_add_u32 v{VM0}, v{H}, 7, v{T0}")
            a(f"v_add_u32 v{VM0}, s{C+4}, v{VM0}")
            a(f"v_and_b32 v{T0}, 12, {ln}")
            a(f"v_and_b32 v{T1}, 15, {ln}")
            a(f"v_mad_u32_u24 v{T0}, v{T0}, 3, v{T1}")
            a(f"v_lshl_add_u32 v{T0}, v{T0}, 2, s{C+3}")
            a(f"v_mov_b32 v{VLD}, 0")
            a(f"ds_write_b32 v{T0}, v{VLD}")
            a(f"s_lshl2_add_u32 s{C+4}, s{S_TASK}, s{S_WAVE}")
            a(f"s_lshl_b32 s{C+4}, s{C+4}, 7")
            a(f"s_add_u32 s{C+4}, s{C+4}, {CNT_OFF - 64}")
            a(f"v_lshl_add_u32 v{VLI}, {ln}, 2, s{C+10}")
            a(f"v_lshl_add_u32 v{T0}, {ln}, 2, s{C+4}")
            a(f"v_cmp_gt_u32 vcc, 16, {ln}")
            a(f"s_lshl_b32 s{C+4}, s{C+3}, 2")
            a(f"v_lshl_add_u32 v{VLR}, {ln}, 2, s{C+4}")
            a(f"v_cndmask_b32 v{VLI}, v{T0}, v{VLI}, vcc")
            if self.o["sig"] == 3:
                self.mb_addr(C + 4, C + 5)
                a(f"s_sub_u32 s{C+4}, s{C+4}, 192")
                a(f"v_cmp_gt_u32 vcc, 48, {ln}")
                a(f"v_lshl_add_u32 v{T0}, {ln}, 2, s{C+4}")
                a("s_nop 0")
                a(f"v_cndmask_b32 v{VLI}, v{T0}, v{VLI}, vcc")
            a(f"s_mov_b32 s{CNT}, 0")
            a(f"s_mov_b32 s{SEL+9}, 0x05060100")
            a(f"s_mov_b32 s{SEL+10}, 0xffff")
        a(f"v_mov_b32 v{VSEL}, 0x05040100")
        a(f"v_mov_b32 v{T0}, 0x03020706")
        a(f"v_cmp_eq_u32 vcc, 1, v{F1}")
        CJ, EF, EO = 68, 76, 82
        for n in range(8):
            a(f"v_mov_b32 v{CJ+n}, {hex(0x0f0a0500 | 0x01010101 * (((n >> 1) << 4) | ((n & 1) << 7)))}")
        a(f"v_cndmask_b32 v{VSEL}, v{VSEL}, v{T0}, vcc")
        if not generic:
            for r in range(3):
                a(f"v_mov_b64 {vr(EF+2*r,2)}, 0")
            a(f"v_mov_b32 v{EO}, 0")
        for c in range(2):
            for j in range(4):
                a(f"s_mov_b32 s{SEL+4*c+j}, {hex(((5+2*c) << 24) | ((4+2*c) << 16) | ((5+2*c) << 8) | j)}")
        a(f"s_mov_b32 s{SEL+8}, 0x05060102")
        if generic:
            a(f"s_cmp_lg_u32 s{S_MODE}, 0")
        sw = "src0_sel:WORD_1 src1_sel:WORD_1"
        for q in range(4):
            a(f"s_waitcnt vmcnt({12-4*q + (2 if self.o['ptouch'] and not generic else 0)})")
            if q in (0, 3) and not generic:
                self.stamp(9 + q // 3)
            for c in range(2):
                n = 2 * q + c
                for j in range(4):
                    a(f"v_perm_b32 v{Z+j}, v{W+4*q+j}, v{CJ+n}, s{SEL+4*c+j}")
                a(f"v_max3_f32 v{K}, |v{Z}|, |v{Z+1}|, |v{Z+2}|")
                a(f"v_med3_f32 v{K+1}, |v{Z}|, |v{Z+1}|, |v{Z+2}|")
                a(f"v_min3_f32 v{K+2}, |v{Z}|, |v{Z+1}|, |v{Z+2}|")
                a(f"v_med3_f32 v{K+4}, v{K}, v{K+1}, |v{Z+3}|")
                a(f"v_med3_f32 v{K+5}, v{K+1}, v{K+2}, |v{Z+3}|")
                a(f"v_max_f32 v{K+3}, v{K}, |v{Z+3}|")
                if generic:
                    a(f"v_cmp_eq_u32_sdwa vcc, v{K+5}, v{K+4} {sw}")
                    a(f"s_cbranch_scc0 L_rb{n}{sfx}")
                    a(f"v_min_f32 v{K+2}, v{K+2}, |v{Z+3}|")
                    a(f"v_cndmask_b32 v{K+3}, 0, v{K+5}, vcc")
                    a(f"v_cmp_eq_u32_sdwa vcc, v{K+2}, v{K+4} {sw}")
                    a("s_nop 1")
                    a(f"v_cndmask_b32 v{K+4}, 0, v{K+2}, vcc")
                    a(f"L_rb{n}{sfx}:")
                a(f"v_perm_b32 v{OA+4*c+q}, v{K+3}, v{K+4}, s{SEL+8}")
                nb = NB_ + 2 * c + (q >> 1)
                if q & 1 == 0:
                    a(f"v_bfi_b32 v{nb}, 3, v{K+4}, v{K+3}")
                else:
                    a(f"v_bfi_b32 v{K+3}, 3, v{K+4}, v{K+3}")
                    a(f"v_lshlrev_b32 v{K+3}, 4, v{K+3}")
                    a(f"v_bfi_b32 v{nb}, 15, v{nb}, v{K+3}")
                if not generic:
                    a(f"v_cmpx_eq_u32_sdwa vcc, v{K+5}, v{K+4} {sw}")
                    if n >= 3:
                        a(f"v_or_b32 v{EO}, v{EO}, v{EF+4}")
                    if n >= 2:
                        a(f"v_mov_b64 {vr(EF+4,2)}, {vr(EF+2,2)}")
                    if n >= 1:
                        a(f"v_mov_b64 {vr(EF+2,2)}, {vr(EF,2)}")
                    a(f"v_mov_b32 v{EF}, v{K+5}")
                    a(f"v_min_f32 v{EF+1}, v{K+2}, |v{Z+3}|")
                    a("s_mov_b64 exec, -1")
        x2 = "quad_perm:[2,3,0,1] row_mask:0xf bank_mask:0xf"
        a("s_mov_b32 vcc_lo, 0x33333333")
        a("s_mov_b32 vcc_hi, 0x33333333")
        for d in range(4):
            a(f"v_cndmask_b32_dpp v{Z+d}, v{OA+4+d}, v{OA+d}, vcc {x2}")
        a("s_not_b64 vcc, vcc")
        a(f"buffer_store_dwordx4 {vr(Z,4)}, v{VA}, {sr(S_WS,4)}, 0 offen {ws}")
        for d in range(4):
            a(f"v_cndmask_b32_dpp v{OA+4+d}, v{OA+d}, v{OA+4+d}, vcc {x2}")
        a(f"s_mov_b32 s{C+4}, 0x0c0c0400")
        a(f"s_mov_b32 s{C+5}, 0x04000c0c")
        a(f"buffer_store_dwordx4 {vr(OA+4,4)}, v{VA2}, {sr(S_WS,4)}, 0 offen {ws}")
        a(f"v_perm_b32 v{IX}, v{NB_+1}, v{NB_}, s{C+4}")
        a(f"v_perm_b32 v{IX+1}, v{NB_+3}, v{NB_+2}, s{C+5}")
        a(f"v_or_b32 v{IX}, v{IX}, v{IX+1}")
        a("s_nop 1")
        a(f"v_mov_b32_dpp v{IX+1}, v{IX} quad_perm:[2,3,0,1] row_mask:0xf bank_mask:0xf")
        a(f"v_perm_b32 v{IX}, v{IX+1}, v{IX}, v{VSEL}")
        a(f"ds_permute_b32 v{IX}, v{VI}, v{IX}")
        if generic:
            a("s_waitcnt lgkmcnt(0)")
            a(f"buffer_store_dword v{IX}, v{VM1}, {sr(S_WS,4)}, 0 offen {ws}")
        if not generic:
            self.stamp(11)
            a(f"v_cmp_lt_u32 {sr(C+6,2)}, s{SEL+10}, v{EO}")
            a(f"L_emit{sfx}:")
            a(f"v_cmp_lt_u32 vcc, s{SEL+10}, v{EF}")
            a(f"v_cmp_eq_u32_sdwa {sr(C,2)}, v{EF+1}, v{EF} {sw}")
            a(f"v_perm_b32 v{T1}, v{EF}, v{VM0}, s{SEL+9}")
            a(f"v_bfe_u32 v{T0}, v{EF}, 2, 4")
            a(f"v_and_b32 v{T2}, 0x80, v{EF}")
            a(f"v_lshl_add_u32 v{T1}, v{T0}, 1, v{T1}")
            a(f"v_mbcnt_lo_u32_b32 v{T0}, vcc_lo, 0")
            a(f"v_mbcnt_hi_u32_b32 v{T0}, vcc_hi, v{T0}")
            a(f"v_add_u32 v{T1}, v{T2}, v{T1}")
            a(f"v_add_u32 v{T0}, s{CNT}, v{T0}")
            a(f"s_bcnt1_i32_b64 s{C+4}, vcc")
            a(f"s_add_u32 s{CNT}, s{CNT}, s{C+4}")
            a(f"v_cmp_gt_u32 {sr(C+4,2)}, 15, v{T0}")
            a(f"v_and_b32 v{T2}, 12, v{T0}")
            a(f"v_mad_u32_u24 v{T0}, v{T2}, 3, v{T0}")
            a(f"v_lshl_add_u32 v{T0}, v{T0}, 2, s{C+3}")
            a(f"s_and_b64 {sr(C,2)}, {sr(C,2)}, vcc")
            a(f"s_and_b64 exec, {sr(C+4,2)}, vcc")
            a(f"ds_write_b32 v{T0}, v{T1}")
            a(f"s_mov_b64 exec, {sr(C,2)}")
            a(f"v_mov_b32 v{EF}, v{EF+1}")
            a(f"v_mov_b32 v{EF+1}, 0")
            a(f"s_not_b64 exec, exec")
            a(f"v_mov_b64 {vr(EF,2)}, {vr(EF+2,2)}")
            a(f"v_mov_b64 {vr(EF+2,2)}, {vr(EF+4,2)}")
            a(f"v_mov_b64 {vr(EF+4,2)}, 0")
            a("s_mov_b64 exec, -1")
            a(f"v_or3_b32 v{T0}, v{EF}, v{EF+2}, v{EF+4}")
            a(f"v_cmp_lt_u32 vcc, s{SEL+10}, v{T0}")
            a(f"s_cmp_lg_u64 {sr(C+6,2)}, 0")
            a(f"s_cselect_b32 s{C+4}, 99, s{CNT}")
            a(f"s_cmp_gt_u32 s{C+4}, 15")
            a(f"s_cselect_b32 s{C+4}, -1, 0")
            a(f"v_mov_b32 v{T1}, s{C+3}")
            a(f"s_cbranch_vccnz L_emit{sfx}")
            a(f"v_mov_b32 v{T0}, s{C+4}")
            a(f"ds_write_b32 v{T1}, v{T0} offset:204")
            if self.o["sig"] == 4:
                a(f"v_lshlrev_b32 v{W+3}, 4, v{T1}")
            a("s_waitcnt lgkmcnt(0)")
            a("s_barrier")
            a("s_mov_b64 exec, 0xffff")
            a(f"ds_read_b32 v{VLD}, v{VLR}")
            a("s_mov_b64 exec, -1")
            a(f"buffer_store_dword v{IX}, v{VM1}, {sr(S_WS,4)}, 0 offen {ws}")
            if self.o["sig"] != 3:
                a("s_mov_b32 exec_hi, 0xffff")
            a("s_waitcnt lgkmcnt(0)")
            a(f"buffer_store_dword v{VLD}, v{VLI}, {sr(S_WS,4)}, 0 offen {ws}")
            if self.o["sig"] == 4:
                a("s_mov_b64 exec, 1")
                a(f"buffer_load_dword v{W}, v{W+3}, {sr(S_DBG,4)}, 0 offen sc1")
            a("s_mov_b64 exec, -1")
            if self.o["sig"] == 4:
                a(f"s_lshl_b32 s{C+4}, s{S_TASK}, 7")
                a(f"s_add_u32 s{C+4}, s{C+4}, {FL_OFF}")
                a(f"v_lshl_add_u32 v{W+1}, {ln}, 2, s{C+4}")
                a(f"v_mov_b32 v{W+2}, 1")
            self.stamp(12)
        a("s_waitcnt vmcnt(0)")
        if not generic:
            self.stamp(13)

    def lane_setup(self):
        a = self.a
        ln = f"v{V_LANE}"
        T0, T1, T2 = 72, 73, 74
        a(f"v_lshrrev_b32 v{T0}, 3, {ln}")
        a(f"v_and_b32 v{T1}, 7, {ln}")
        a(f"v_xor_b32 v{T1}, v{T1}, v{T0}")
        a(f"v_mul_u32_u24 v{T0}, 1152, v{T0}")
        a(f"s_and_b32 s{S_T0}, s{S_WAVE}, 1")
        a(f"s_mul_i32 s{S_T0}, s{S_T0}, 9216")
        a(f"s_lshr_b32 s{S_T1}, s{S_WAVE}, 1")
        a(f"s_lshl_b32 s{S_T1}, s{S_T1}, 7")
        a(f"s_add_u32 s{S_T0}, s{S_T0}, s{S_T1}")
        a(f"v_lshl_add_u32 v{T0}, v{T1}, 4, v{T0}")
        a(f"v_add_u32 v{V_DMA}, s{S_T0}, v{T0}")
        a(f"s_lshl_b32 s{S_M0B}, s{S_WAVE}, 10")
        if self.o["split"]:
            a(f"s_bitcmp1_b32 s2, 0")
            a(f"s_cselect_b32 s{S_XOFF}, 256, 1")
            a(f"s_add_u32 s{S_XOFF}, s{S_XOFF}, s2")
            a(f"s_mul_i32 s{S_XOFF}, s{S_XOFF}, {TB}")
        else:
            a(f"s_mul_i32 s{S_XOFF}, s2, {TB}")
        a(f"s_mov_b32 s{S_OOFF}, s{S_XOFF}")

    def lane_setup2(self):
        a = self.a
        ln = f"v{V_LANE}"
        T0, T1, T2 = 72, 73, 74
        a(f"v_and_b32 v{T0}, 15, {ln}")
        a(f"v_lshrrev_b32 v{T1}, 4, {ln}")
        a(f"v_and_b32 v{T2}, 7, {ln}")
        a(f"v_xor_b32 v{T2}, v{T2}, v{T1}")
        a(f"v_lshlrev_b32 v{T2}, 4, v{T2}")
        a(f"v_lshl_add_u32 v{V_RD0}, v{T0}, 7, v{T2}")
        a(f"v_xor_b32 v{V_RD1}, 64, v{V_RD0}")
        a(f"s_mul_i32 s{S_C0}, s{S_WAVE}, {WV_SZ}")
        a(f"s_add_u32 s{S_C0}, s{S_C0}, {L_WV}")
        a(f"v_lshl_add_u32 v{V_TAB}, v{T1}, 4, s{S_C0}")
        a(f"v_and_b32 v{T2}, 14, {ln}")
        a(f"v_mul_u32_u24 v{V_ST}, 1152, v{T2}")
        a(f"v_and_b32 v{T2}, 1, {ln}")
        a(f"v_lshl_add_u32 v{V_ST}, v{T2}, 4, v{V_ST}")
        a(f"v_lshl_add_u32 v{V_ST}, v{T1}, 5, v{V_ST}")
        a(f"s_lshl_b32 s{S_T0}, s{S_WAVE}, 8")
        a(f"v_add_u32 v{V_ST}, s{S_T0}, v{V_ST}")
        if self.o["hack"] == "q4":
            a(f"v_lshrrev_b32 v{T2}, 3, {ln}")
            a(f"v_mul_u32_u24 v{V_ST}, 2304, v{T2}")
            a(f"v_and_b32 v{T2}, 7, {ln}")
            a(f"v_lshl_add_u32 v{V_ST}, v{T2}, 4, v{V_ST}")
            a(f"v_add_u32 v{V_ST}, s{S_T0}, v{V_ST}")
        a(f"s_lshl_b32 s{S_T0}, s{S_WAVE}, 5")
        a(f"s_add_u32 s{S_T0}, s{S_T0}, 1024")
        if self.o["bperm"]:
            a(f"v_lshrrev_b32 v{T0}, 2, {ln}")
            a(f"v_and_b32 v{T1}, 3, {ln}")
            a(f"v_lshl_add_u32 v{V_BP}, v{T1}, 4, v{T0}")
            a(f"v_lshlrev_b32 v{V_BP}, 2, v{V_BP}")
        else:
            a(f"v_lshlrev_b32 v{V_BP}, 2, {ln}")
        a(f"v_mul_u32_u24 v{V_ST8}, 1152, v{T0}")
        a(f"v_lshl_add_u32 v{V_ST8}, v{T1}, 3, v{V_ST8}")
        a(f"v_add_u32 v{V_ST8}, s{S_T0}, v{V_ST8}")
        a(f"s_mov_b32 s{S_EVEN}, 0x55555555")
        a(f"s_mov_b32 s{S_EVEN+1}, 0x55555555")
        a(f"s_mov_b32 s{S_ODD}, 0xaaaaaaaa")
        a(f"s_mov_b32 s{S_ODD+1}, 0xaaaaaaaa")

    def dma_setup(self):
        a = self.a
        a(f"s_lshr_b32 s{S_T0}, s{S_WAVE}, 1")
        a(f"s_lshl_b32 s{S_T1}, s{S_T0}, 11")
        a(f"s_sub_u32 s{S_M05}, {16384-896}, s{S_T1}")
        a(f"s_lshl_b32 s{S_T1}, s{S_T0}, 7")
        a(f"s_add_u32 s{S_XOFF5}, s{S_XOFF}, 128")
        a(f"s_sub_u32 s{S_XOFF5}, s{S_XOFF5}, s{S_T1}")
        a(f"s_sub_u32 s{S_HALF}, s{S_T0}, 1")
        a(f"s_sub_u32 s{S_HALF+1}, 0, s{S_T0}")
        a(f"s_mov_b32 s{S_M0W}, s{S_M0B}")
        a(f"s_mov_b32 s{S_XINC}, {256*TB}")
        if self.o["split"]:
            a(f"s_bitcmp1_b32 s2, 0")
            a(f"s_cselect_b32 s{S_XINC}, s{S_XINC}, {-TB}")
            a(f"s_cselect_b32 s{S_NT}, 15, 17")
        else:
            a(f"s_mov_b32 s{S_NT}, 16")
        a(f"s_mov_b32 s{S_OINC2}, s{S_XINC}")

    def dma_advance(self, first=False):
        x = [] if first else [f"s_add_u32 s{S_XOFF}, s{S_XOFF}, {256*TB}", f"s_add_u32 s{S_XOFF5}, s{S_XOFF5}, {256*TB}",
                              f"s_add_u32 s{S_M0B}, s{S_M0B}, s{S_CTB}"]
        return x + [f"s_cmp_ge_u32 s{S_M0B}, {NB*TBL}", f"s_cselect_b32 s{S_M0B}, s{S_M0W}, s{S_M0B}"]

    def dma_tile(self, ld=None):
        a = self.a
        ld = self.o["ld"] if ld is None else ld
        for j in range(5):
            a(f"s_add_u32 m0, s{S_M0B}, {3840*j if j < 4 else 's%d' % S_M05}")
            a("s_nop 0" if j < 4 else f"s_mov_b64 exec, {sr(S_HALF,2)}")
            a(f"buffer_load_dwordx4 v{V_DMA}, {sr(S_X,4)}, s{S_XOFF if j < 4 else S_XOFF5} offen offset:{256*j if j < 4 else 896} {ld} lds")
        a("s_mov_b64 exec, -1")

    def prefetch(self, sh, lab="L_pf"):
        a = self.a
        a(f"s_bfe_u32 s{S_NB0}, s{S_DMASK}, {hex(4 << 16 | sh)}")
        if sh == 20 and self.o["pfw"]:
            k, n, ka, kp = self.o["pfw"]
            a(f"s_mov_b32 s{S_T1}, {k*TBL}")
            a(f"s_cmp_ge_u32 s{S_NB0}, 6")
            a(f"s_cselect_b32 s{S_T1}, s{S_T1}, {ka*TBL}")
            a(f"s_cmp_ge_u32 s{S_TASK}, {NTASK}")
            a(f"s_cselect_b32 s{S_T1}, s{S_T1}, {kp*TBL}")
        if sh != 20 and self.n2min == 0:
            a(f"s_cbranch_scc0 {lab}_e")
        a(f"{lab}:")
        self.dma_tile(self.o["ldp"] if sh == 20 else None)
        if sh == 20 and self.o["sig"] == 4 and self.o["fused"]:
            a(f"s_cmp_lg_u32 s{S_M0B}, {2*TBL}")
            a(f"s_cbranch_scc1 {lab}_f")
            a("s_mov_b64 exec, 1")
            a(f"buffer_load_dword v124, off, {sr(S_DBG,4)}, 0 sc1")
            a("s_mov_b64 exec, -1")
            a(f"{lab}_f:")
        if sh == 20 and self.o["pfw"]:
            n = self.o["pfw"][1]
            a(f"s_cmp_ge_u32 s{S_M0B}, s{S_T1}")
            a(f"s_cbranch_scc1 {lab}_n")
            a(f"s_waitcnt vmcnt({n})")
            a(f"{lab}_n:")
        a(f"s_add_u32 s{S_XOFF5}, s{S_XOFF5}, s{S_XINC}")
        a(f"s_add_u32 s{S_M0B}, s{S_M0B}, {TBL}")
        a(f"s_add_u32 s{S_XOFF}, s{S_XOFF}, s{S_XINC}")
        a(f"s_mov_b32 s{S_XINC}, {256*TB}")
        a(f"s_sub_u32 s{S_NB0}, s{S_NB0}, 1")
        a(f"s_cmp_lg_u32 s{S_NB0}, 0")
        a(f"s_cbranch_scc1 {lab}")
        a(f"{lab}_e:")

    def bias_load(self):
        a = self.a
        ln = f"v{V_LANE}"
        a(f"v_and_b32 v80, 3, {ln}")
        a(f"v_bfe_u32 v81, {ln}, 2, 2")
        a(f"v_bfe_u32 v82, {ln}, 4, 1")
        a("v_lshlrev_b32 v81, 3, v81")
        a("v_lshl_add_u32 v81, v80, 5, v81")
        a("v_lshl_add_u32 v81, v82, 7, v81")
        a(f"s_lshl_b32 s{S_T0}, s{S_WAVE}, 8")
        a(f"v_add_u32 v81, s{S_T0}, v81")
        a(f"s_lshl_b32 s{S_T0}, s{S_WAVE}, 5")
        a(f"s_add_u32 s{S_T0}, s{S_T0}, 1024")
        a(f"v_lshl_add_u32 v80, v80, 3, s{S_T0}")
        a(f"v_cmp_gt_u32 vcc, 32, {ln}")
        a("s_nop 1")
        a("v_cndmask_b32 v80, v80, v81, vcc")
        a(f"buffer_load_dwordx2 v[110:111], v80, {sr(S_B,4)}, 0 offen")

    def tables_init(self):
        a = self.a
        ln = f"v{V_LANE}"
        a(f"v_lshl_add_u32 v109, {ln}, 4, s{S_C0}")
        a(f"v_lshl_add_u32 v89, {ln}, 2, s{S_C0}")
        for r in range(4):
            a(f"v_mov_b32 v{76+r}, 0")
        a("v_mov_b32 v90, 0xdddddddd")
        a("ds_write_b128 v109, v[76:79]")
        for r in range(7):
            a(f"ds_write_b32 v89, v90 offset:{O_IDX+256*r}")
        a(f"s_lshl_b32 s{S_T0}, s{S_WAVE}, 2")
        a(f"s_add_u32 s{S_T0}, s{S_T0}, {L_PL + 256}")
        a(f"v_mov_b32 v88, s{S_T0}")
        a("ds_write_b32 v88, v76")

    def bias_store(self):
        return ["v_lshlrev_b32 v114, 16, v110", "v_and_b32 v115, 0xffff0000, v110", "v_lshlrev_b32 v116, 16, v111",
                "v_and_b32 v117, 0xffff0000, v111", "s_mov_b32 exec_hi, 15", f"ds_write_b128 v109, v[114:117] offset:{O_BIAS}",
                "s_mov_b64 exec, -1"]

    def wload_list(self, VA, VI8, pairs=False):
        wl = self.o["wl"]
        G = []
        so = S_C0 + 6
        cur = None
        for sp in range(5):
            g = []
            if sp == 4:
                g.append(f"s_mov_b32 s{so}, 4096")
            g.append(f"buffer_load_dword v{V_I8+sp}, v{VI8}, {sr(S_WS,4)}, {'s%d' % so if sp == 4 else '0'} offen offset:{1024*(sp%4)} {wl}")
            G.append(g)
        order = [(s, t) for s in range(9) for t in [None] + list(range(9))]
        if pairs:
            order = order[:70] + [(7, None), (8, None)] + [(s, t) for t in PEEL_T for s in (7, 8)]
        for s, t in order:
            if t is None:
                G.append([f"s_mov_b32 s{so-1}, {1024*s}",
                          f"buffer_load_dwordx4 {vr(V_I+4*s,4)}, v{VA+1}, {sr(S_WS,4)}, s{so-1} offen {wl}"])
            else:
                f = 9 * s + t
                g = []
                if cur != f >> 2:
                    cur = f >> 2
                    g.append(f"s_mov_b32 s{so}, {4096*cur}")
                g.append(f"buffer_load_dwordx4 {afrag(s,t)}, v{VA}, {sr(S_WS,4)}, s{so} offen offset:{1024*(f&3)} {wl}")
                G.append(g)
        return G

    def waddr(self, VA, VI8):
        a = self.a
        ln = f"v{V_LANE}"
        a(f"s_mul_i32 s{S_T0}, s{S_WAVE}, 82944")
        a(f"s_add_u32 s{S_T0}, s{S_T0}, s{S_BASE}")
        a(f"v_lshl_add_u32 v{VA}, {ln}, 4, s{S_T0}")
        a(f"s_mul_i32 s{S_T0}, s{S_WAVE}, 9216")
        a(f"s_add_u32 s{S_T0}, s{S_T0}, s{S_BASE}")
        a(f"s_add_u32 s{S_T0}, s{S_T0}, {I_OFF}")
        a(f"v_lshl_add_u32 v{VA+1}, {ln}, 4, s{S_T0}")
        a(f"s_lshl_b32 s{S_T0}, s{S_WAVE}, 6")
        a(f"s_add_u32 s{S_T0}, s{S_T0}, s{S_BASE}")
        a(f"s_add_u32 s{S_T0}, s{S_T0}, {I8_OFF}")
        a(f"v_and_b32 v{VI8}, 15, {ln}")
        a(f"v_lshl_add_u32 v{VI8}, v{VI8}, 2, s{S_T0}")
        a(f"v_lshrrev_b32 v{VI8+1}, 4, {ln}")
        a(f"v_lshl_add_u32 v{VI8}, v{VI8+1}, 8, v{VI8}")

    def build(self):
        a = self.a
        o = self.o
        ln = f"v{V_LANE}"
        wl = o["wl"]
        VA, VI8 = (112 if o["peel"] else 104), 106
        E, TT, RK, ST = 8, 24, 40, 56
        T0, T1, T2, T3 = 72, 73, 74, 75
        WARM = 76
        ONE, VW, KB, VST, RX, VWARM, CM, CV, TM, TBS, HI, AB, BM, VH, VK, LO = range(88, 104)
        SW = S_C0
        a(f"s_mul_i32 s{S_T0}, s{S_WAVE}, 2304")
        a(f"s_add_u32 s{S_T0}, s{S_T0}, {R1_OFF}")
        a(f"v_and_b32 v{T1}, 60, {ln}")
        a(f"v_mad_u32_u24 v{T1}, v{T1}, 3, {ln}")
        a(f"v_lshl_add_u32 v{T0}, v{T1}, 4, s{S_T0}")
        a(f"s_mov_b32 s{S_T0}, {R8_OFF - 36*64}")
        a(f"v_lshl_add_u32 v{T1}, v{T1}, 4, s{S_T0}")
        a(f"v_lshrrev_b32 v{T2}, 2, {ln}")
        a(f"v_cmp_gt_u32 vcc, 36, {ln}")
        a(f"v_lshlrev_b32 v{KB}, 11, v{T2}")
        a(f"v_subrev_u32 v{T2}, 9, v{T2}")
        a(f"v_lshlrev_b32 v{T2}, 12, v{T2}")
        a(f"v_cndmask_b32 v{T0}, v{T1}, v{T0}, vcc")
        a(f"v_cndmask_b32 v{KB}, v{T2}, v{KB}, vcc")
        a(f"s_lshl_b32 s{S_T0}, s{S_WAVE}, 12")
        a(f"s_add_u32 s{S_T0}, s{S_T0}, 0x8001")
        a(f"v_mov_b32 v{ONE}, 1")
        a(f"v_mov_b32 v{CM}, 0xf001")
        a(f"v_mov_b32 v{CV}, s{S_T0}")
        a(f"v_cndmask_b32 v{CM}, v{CM}, v{ONE}, vcc")
        a(f"v_cndmask_b32 v{CV}, v{CV}, v{ONE}, vcc")
        a(f"v_cndmask_b32 v{TM}, 0, 28, vcc")
        a(f"v_cndmask_b32 v{TBS}, 32, 0, vcc")
        a(f"v_add_u32 v{TBS}, s{SW}, v{TBS}")
        a(f"v_cmp_gt_u32 vcc, 56, {ln}")
        a(f"v_mov_b32 v{T1}, 0x40000000")
        tw = o["warm"] == 2
        a(f"s_lshr_b32 s{S_T0}, s2, {4 if tw else 3}")
        a(f"s_lshl_b32 s{S_T0}, s{S_T0}, 2")
        a(f"s_add_u32 s{S_T0}, s{S_T0}, s{S_WAVE}")
        a(f"s_mul_i32 s{S_T0}, s{S_T0}, {6144 if tw else 3072}")
        a(f"v_cndmask_b32 v{T0}, v{T1}, v{T0}, vcc")
        if tw:
            a(f"v_min_u32 v{VWARM}, 47, {ln}")
            a(f"v_lshl_add_u32 v{VWARM}, v{VWARM}, 7, s{S_T0}")
        else:
            a(f"v_lshl_add_u32 v{VWARM}, {ln}, 4, s{S_T0}")
        self.waddr(VA, VI8)
        a(f"v_and_b32 v{T2}, 15, {ln}")
        a(f"v_and_b32 v{T1}, 7, {ln}")
        a(f"v_lshlrev_b32 v{BM}, 1, v{T1}")
        a(f"v_lshlrev_b32 v{BM}, v{BM}, v{ONE}")
        a(f"v_lshlrev_b32 v{T1}, 4, v{T1}")
        a(f"v_lshl_add_u32 v{RX}, v{T2}, 7, v{T1}")
        a(f"v_lshl_or_b32 v{RX}, v{RX}, 16, v{RX}")
        a(f"v_lshrrev_b32 v{HI}, 5, {ln}")
        a(f"v_bfe_u32 v{AB}, {ln}, 3, 2")
        a(f"v_lshl_add_u32 v{AB}, v{AB}, 6, s{SW}")
        a(f"v_lshl_add_u32 v{VH}, {ln}, 1, s{SW}")
        a(f"v_lshrrev_b32 v{VK}, 4, {ln}")
        a(f"v_lshl_add_u32 v{VK}, v{VK}, 3, s{SW}")
        a(f"v_lshrrev_b32 v{LO}, 1, {ln}")
        a(f"v_lshlrev_b32 v{LO}, 5, v{LO}")
        a(f"s_mov_b32 s{S_LINK}, 0")
        pre = [f"buffer_load_dwordx4 {vr(E+4*r,4)}, v{T0}, {sr(S_WS,4)}, 0 offen offset:{64*r} {wl}" for r in range(4)]
        warm = [[f"buffer_load_dwordx4 {vr(WARM+4*r,4)}, v{VWARM}, {sr(S_WS,4)}, 0 offen offset:{1024*r} {wl}"] for r in range(3)] if o["warm"] else []
        if tw:
            warm = [[f"buffer_load_dword v{WARM}, v{VWARM}, {sr(S_WS,4)}, 0 offen {wl}"]]
        C = []
        g = lambda *x: C.append(list(x))

        def rank(r):
            m = S_MASK + 2 * r
            return [f"v_and_b32 v{T1}, v{CM}, v{E+r}", f"v_lshrrev_b32 v{T0}, 10, v{E+r}", f"v_cmp_eq_u32 {sr(m,2)}, v{T1}, v{CV}",
                    f"v_and_or_b32 v{TT+r}, v{T0}, v{TM}, v{TBS}",
                    f"s_mov_b64 exec, {sr(m,2)}", f"ds_add_rtn_u32 v{RK+r}, v{TT+r}, v{ONE}", "s_mov_b64 exec, -1"]

        def place(r):
            m = S_MASK + 2 * r
            return [f"v_add_u32 v{T1}, v{RK+r}, v{ST+r}", f"v_and_b32 v{T0}, 0x87e, v{E+r}", f"v_lshl_add_u32 v{T1}, v{T1}, 1, s{SW}",
                    f"v_add_u32 v{T0}, v{KB}, v{T0}", f"s_andn2_b64 exec, {sr(m,2)}, {sr(S_BAD,2)}",
                    f"ds_write_b16_d16_hi v{T1}, v{E+r} offset:{O_X}", f"ds_write_b16 v{T1}, v{T0} offset:{O_K}",
                    f"ds_write_b16 v{T1}, v{E+r} offset:{O_M}", "s_mov_b64 exec, -1"]
        g("@WAIT_E")
        g(f"v_cmp_ne_u32 {sr(S_BAD,2)}, 0, v{E+15}", f"v_cmp_ne_u32 {sr(S_MORE,2)}, 0, v{E+8}")
        for r in range(8):
            g(*rank(r))
        g(f"s_cmp_lg_u64 {sr(S_MORE,2)}, 0", "s_cbranch_scc1 L_more1", "L_more1b:", f"ds_read_b32 v{T0}, v{VW}", f"v_mov_b32 v{T1}, 0")
        self.tailblocks.append("\n".join(["L_more1:"] + [x for r in range(8, 15) for x in rank(r)] + ["s_branch L_more1b"]))
        g("s_waitcnt lgkmcnt(0)", f"s_mov_b64 vcc, {sr(S_EVEN,2)}",
          f"v_cndmask_b32_dpp v{T1}, v{T0}, v{T1}, vcc quad_perm:[0,0,2,2] row_mask:0xf bank_mask:0xf",
          f"v_add_u32 v{VST}, v{LO}, v{T1}", f"v_add_u32 v{T1}, v{T0}, v{T1}", f"v_cmp_lt_u32 vcc, 32, v{T1}",
          f"s_or_b32 s{S_BAD}, s{S_BAD}, s{S_BAD+1}", f"s_and_b32 s{S_T0}, vcc_lo, 0x1ff", f"s_or_b32 s{S_T0}, s{S_T0}, s{S_BAD}",
          "s_cbranch_scc1 L_greedy", "L_greedyb:")
        x = ["L_greedy:", f"s_mov_b32 s{S_T0}, 0", f"s_mov_b32 s{S_LINK}, 1"]
        for t in range(9):
            lo = 32 * (t >> 1)
            x += [f"v_readlane_b32 s{S_T1}, v{T0}, {t}", f"s_max_u32 s{S_T0}, s{S_T0}, {lo}",
                  f"v_writelane_b32 v{VST}, s{S_T0}, {t}", "s_nop 1", f"s_add_u32 s{S_T0}, s{S_T0}, s{S_T1}",
                  f"s_cmp_gt_u32 s{S_T0}, {lo + (64 if t & 1 else 32)}", f"s_cselect_b32 s{S_BAD}, 1, s{S_BAD}"]
        x += [f"s_cmp_lg_u32 s{S_BAD}, 0", f"s_cselect_b64 {sr(S_BAD,2)}, -1, 0",
              f"v_mov_b32 v{T1}, {L_PL + 256}", f"s_mov_b64 exec, {sr(S_BAD,2)}", f"ds_write_b32 v{T1}, v{ONE}", "s_mov_b64 exec, -1",
              "s_branch L_greedyb"]
        self.tailblocks.append("\n".join(x))
        g(*[f"ds_bpermute_b32 v{ST+r}, v{TT+r}, v{VST}" for r in range(8)])
        for r in range(8):
            g(*([f"s_waitcnt lgkmcnt({(7, 9, 11, 13, 15, 15, 15, 15)[r] if r else 7})"] if r < 8 else []), *place(r))
        g(f"s_cmp_lg_u64 {sr(S_MORE,2)}, 0", "s_cbranch_scc1 L_more2", "L_more2b:",
          *[f"ds_read_u16 v{E+r}, v{VH} offset:{O_M+128*r}" for r in range(3)],
          *[f"ds_read2_b64 {vr(V_AD+4*j,4)}, v{VK} offset0:{(O_K+64*j)//8} offset1:{(O_K+64*j+32)//8}" for j in range(5)])
        self.tailblocks.append("\n".join(["L_more2:"] + [f"ds_bpermute_b32 v{ST+r}, v{TT+r}, v{VST}" for r in range(8, 15)] + ["s_waitcnt lgkmcnt(0)"]
                                         + [x for r in range(8, 15) for x in place(r)] + ["s_branch L_more2b"]))
        for r in range(3):
            g(*(["s_waitcnt lgkmcnt(5)"] if r == 0 else []),
              f"v_lshrrev_b32 v{T0}, 12, v{E+r}", f"v_cmp_ne_u32 vcc, 0, v{E+r}", f"v_min_u32 v{T0}, 8, v{T0}", f"v_add3_u32 v{T0}, v{T0}, v{HI}, {2*r}",
              f"v_lshlrev_b32 v{T1}, 4, v{T0}", f"v_lshrrev_b32 v{T0}, 1, v{T0}")
            g(f"v_lshlrev_b32 v{T1}, v{T1}, v{BM}", f"v_lshl_add_u32 v{T0}, v{T0}, 8, v{AB}", f"v_bfe_u32 v{T2}, v{E+r}, 7, 4",
              f"v_lshl_add_u32 v{T0}, v{T2}, 2, v{T0}", "s_mov_b64 exec, vcc", *(["s_mov_b32 exec_hi, 0"] if r == 2 else []),
              f"ds_xor_b32 v{T0}, v{T1} offset:{O_IDX}", "s_mov_b64 exec, -1")
        g(*[f"ds_read_b32 v{V_IR+r}, v{VW} offset:{O_IDX+256*r}" for r in range(7)])
        for j in range(5):
            g(*(["s_waitcnt lgkmcnt(10)"] if j == 0 else []), *[f"v_xor_b32 v{V_AD+4*j+q}, v{RX}, v{V_AD+4*j+q}" for q in range(4)])
        g(*self.bias_store())
        return pre, C, warm + self.wload_list(VA, VI8, o['peel'])

    def emit_build(self, pre, C, G):
        a = self.a
        for x in pre:
            a(x)
        nl = 0
        G = list(G)
        G0 = list(G)

        def load(n=1):
            nonlocal nl
            for _ in range(n):
                if G:
                    for x in G.pop(0):
                        a(x)
                    nl += 1
        acc = 0
        for grp in C:
            if grp[0] == "@WAIT_E":
                load(self.o["l0"])
                a(f"s_waitcnt vmcnt({nl})")
                continue
            if grp[0] in ("s_waitcnt lgkmcnt(0)", "s_waitcnt lgkmcnt(7)", "s_waitcnt lgkmcnt(5)"):
                load(self.o["lw"])
            for x in grp:
                a(x)
            acc += len(grp)
            while acc >= self.o["lper"]:
                acc -= self.o["lper"]
                load()
        if self.o["peel"]:
            self.issued, self.pending = G0[:len(G0) - len(G)], G
            return
        load(len(G) - self.o["ltail"])
        assert len(G) == self.o["ltail"]
        self.late_loads = [x for grp in G for x in grp]

    @staticmethod
    def regs(txt):
        k, body = txt[0], txt[1:].strip("[]")
        lo, hi = (body.split(":") + [body])[:2]
        return [(256 if k == "a" else 0) + r for r in range(int(lo), int(hi) + 1)]

    def emit_line(self, ops, vm, hist=()):
        a = self.a
        lds, hist = [], list(hist)

        def put(op):
            a(op.text)
            hist.append(op)
        for op in ops:
            touched = op.rd | op.wr
            for q, name, cap in ((lds, "lgkmcnt", 15), (vm, "vmcnt", self.o["vcap"])):
                hit = [i for i, w in enumerate(q) if w & touched]
                if hit:
                    n = min(len(q) - 1 - hit[-1], cap)
                    put(Op(f"s_waitcnt {name}({n})", "salu"))
                    del q[:len(q) - n]
            need = 0
            for d, p in enumerate(reversed(hist[-9:])):
                ws = sum(int(x.text[6:]) + 1 if x.text.startswith("s_nop") else 1 for x in hist[len(hist) - d:])
                r = 0
                if p.kind == "mx" and op.kind != "mx" and (p.wr & touched):
                    r = 8
                if p.kind in ("valu", "dpp") and op.kind in ("mx", "dpp") and (p.wr & op.rd):
                    r = 2
                if p.kind == "st" and (p.rd & op.wr):
                    r = 2
                need = max(need, r - ws)
            if need > 0:
                put(Op(f"s_nop {need-1}", "salu"))
            put(op)
            if op.kind == "lds":
                lds.append(op.wr)
            if op.kind in ("ld", "st"):
                vm.append(op.wr)

    def peel(self):
        o = self.o
        AX = V_BR
        acc = lambda m, t: (AX if m == 0 else V_ACC) + 4 * t
        Ba, Bb, Bc, Bd = (V_B + 8 * k for k in range(4))
        dst = lambda g: set(self.regs(g[-1].split()[1].rstrip(",")))
        vm = [dst(g) for g in self.issued]
        loads = [[Op(x, "salu") for x in g[:-1]] + [Op(g[-1], "ld", wr=dst(g))] for g in self.pending]

        def M(m, s, t, b):
            ir, h = aidx(s, t)
            return Op(f"v_smfmac_f32_16x16x64_bf16 {vr(acc(m,t),4)}, {afrag(s,t)}, {vr(b,8)}, v{ir}" + (" abid:1" if h else ""), "mx",
                      rd=list(rng(acc(m, t), 4)) + list(rng(b, 8)) + self.regs(afrag(s, t)) + [ir], wr=rng(acc(m, t), 4))

        def R(m, j, t):
            c, b = j + t, (Bc, Bd)[m]
            return Op(f"v_smfmac_f32_16x16x64_bf16 {vr(acc(m,t),4)}, {vr(V_X,4)}, {vr(b,8)}, v{V_IR+(c>>1)}" + (" abid:1" if c & 1 else ""), "mx",
                      rd=list(rng(acc(m, t), 4)) + list(rng(b, 8)) + list(rng(V_X, 4)), wr=rng(acc(m, t), 4))

        def B(m, s, b):
            return [Op(f"ds_read_b128 {vr(b+4*h,4)}, v{V_RD0+h} offset:{2048*s+TBL*m}", "lds", rd=[V_RD0 + h], wr=rng(b + 4 * h, 4)) for h in range(2)]

        def addr(j, b, r, base):
            ad = V_AD + 4 * j + (b >> 1)
            return Op(f"v_add_u32_sdwa v{r}, s{base}, v{ad} dst_sel:DWORD dst_unused:UNUSED_PAD src0_sel:DWORD src1_sel:WORD_{b&1}", "valu", rd=[ad], wr=[r])
        ops = [Op(f"ds_read_b32 v{V_X}, v{V_X}", "lds", rd=[V_X], wr=[V_X])] + B(0, 0, Ba)
        for m in range(2):
            ops += [Op(f"ds_read_b128 {vr(acc(m,t),4)}, v{V_TAB} offset:{O_BIAS+64*t}", "lds", rd=[V_TAB], wr=rng(acc(m, t), 4)) for t in range(9)]
            ops += loads.pop(0)
        ops += [Op(f"v_readfirstlane_b32 s{S_T0}, v{V_X}", "valu", rd=[V_X]), addr(0, 0, Bc, S_BUF), Op("s_nop 2", "salu"),
                Op(f"s_cmp_lg_u32 s{S_T0}, 0", "salu"), Op("s_cbranch_scc1 L_slow", "salu")]
        ngap = 126 + 26
        rho, credit = len(loads) / (ngap - o["ptail"]), 0.0

        def gap(mx, D=(), V=()):
            nonlocal credit
            ops.append(mx)
            credit += rho
            while credit >= 1 and loads:
                credit -= 1
                ops.extend(loads.pop(0))
            ops.extend(D)
            ops.extend(V)
        for s in range(7):
            for t in range(9):
                D, V = [], []
                if t == 0:
                    D += B(1, s, Bb)
                if s < 5:
                    if t == 8:
                        D.append(Op(f"ds_read_b128 {vr(V_X,4)}, v{V_TAB} offset:{O_X+64*s}", "lds", rd=[V_TAB], wr=rng(V_X, 4)))
                    else:
                        D += [Op(f"ds_read_u16 v{Bd+t}, v{Bc+t} offset:{TBL}", "lds", rd=[Bc + t], wr=[Bd + t]),
                              Op(f"ds_read_u16 v{Bc+t}, v{Bc+t}", "lds", rd=[Bc + t], wr=[Bc + t])]
                        if t < 7:
                            V.append(addr(s, t + 1, Bc + t + 1, S_BUF))
                elif t in (2, 3):
                    D.append(B(1, s + 2, Bc if s == 5 else Bd)[t - 2])
                gap(M(0, s, t, Ba), D, V)
            for t in range(9):
                gap(M(1, s, t, Bb), B(0, s + 1, Ba)[t:t + 1] if t < 2 else [])
            if s < 5:
                rs = [R(m, s, t) for m in (1, 0) for t in RT[s]]
                for n, x in enumerate(rs):
                    gap(x, [], [addr(s + 1, 0, Bc, S_BUF)] if n == len(rs) - 1 and s < 4 else [])
        assert not loads
        ops += B(0, 8, Bb)
        pk = lambda t, h: (AX + 32 + h) if t == 8 else AX + 2 * t + h
        cvt = lambda t: [Op(f"v_cvt_pk_bf16_f32 v{pk(t,h)}, v{acc(0,t)+2*h}, v{acc(0,t)+2*h+1}", "valu",
                            rd=[acc(0, t) + 2 * h, acc(0, t) + 2 * h + 1], wr=[pk(t, h)]) for h in range(2)]
        dpp = "quad_perm:[1,0,3,2] row_mask:0xf bank_mask:0xf"
        stp = o["st"] if o["stp"] is None else o["stp"]

        def exch(v):
            p0, p1, d0 = AX + 8 * v, AX + 8 * v + 4, (V_X, AX + 16)[v]
            x = []
            for half in range(2):
                for d in range(4):
                    if half == 0:
                        x.append(Op(f"v_cndmask_b32_dpp v{d0+d}, v{p1+d}, v{p0+d}, vcc {dpp}", "dpp", rd=[p0 + d, p1 + d], wr=[d0 + d]))
                    else:
                        x.append(Op(f"v_cndmask_b32_dpp v{p1+d}, v{p0+d}, v{p1+d}, vcc {dpp}", "dpp", rd=[p0 + d, p1 + d], wr=[p1 + d]))
                src = d0 if half == 0 else p1
                fl = stp[2 * v + half] if isinstance(stp, (tuple, list)) else stp
                x += [Op(f"buffer_store_dwordx4 {vr(src,4)}, v{V_ST}, {sr(S_OUT,4)}, s{S_OOFF} offen offset:{1152*half+128*v} {fl}", "st",
                         rd=list(rng(src, 4)) + [V_ST]), Op(f"s_mov_b64 vcc, {sr((S_ODD, S_EVEN)[half],2)}", "salu")]
            return x
        p8 = pk(8, 0)
        rdadv = [Op(f"v_add_u32 v{V_RD0+h}, {2*TBL}, v{V_RD0+h}", "valu", rd=[V_RD0 + h], wr=[V_RD0 + h]) for h in range(2)]
        after = {0: rdadv,
                 1: [Op(f"ds_bpermute_b32 v{p8+h}, v{V_BP}, v{p8+h}", "lds", rd=[V_BP, p8 + h], wr=[p8 + h]) for h in range(2)] if o["bperm"] else [],
                 3: [Op(f"buffer_store_dwordx2 {vr(p8,2)}, v{V_ST8}, {sr(S_OUT,4)}, s{S_OOFF} offen {o['st8']}", "st", rd=[p8, p8 + 1, V_ST8])],
                 5: exch(0)[:6], 6: exch(0)[6:], 7: [addr(0, b, V_BR + b, S_BUFN) for b in range(4)],
                 8: [addr(0, b, V_BR + b, S_BUFN) for b in range(4, 8)]}
        for n, t in enumerate(PEEL_T):
            ops += [M(0, 7, t, Ba), M(0, 8, t, Bb)]
            if n:
                ops += cvt(PEEL_T[n - 1])
            ops += after.get(n, [])
        ops += cvt(PEEL_T[-1]) + exch(1)
        self.emit_line(ops, vm)

    def slow_path(self, K):
        a = self.a
        o = self.o
        VA, VI8 = 104, 106
        a("L_slow:")
        a("s_waitcnt vmcnt(0) lgkmcnt(0)")
        a(f"s_mov_b32 s{S_MODE}, 0")
        a("L_sm:")
        a(f"s_lshl_b32 s{S_BASE}, s2, 1")
        a(f"s_add_u32 s{S_BASE}, s{S_BASE}, s{S_MODE}")
        a(f"s_add_u32 s{S_BASE}, s{S_BASE}, {PRIV0}")
        a(f"s_mul_i32 s{S_BASE}, s{S_BASE}, {COPY}")
        a(f"s_mov_b32 s{S_TASK}, 0")
        a("L_st:")
        self.producer("g", True)
        a(f"s_add_u32 s{S_TASK}, s{S_TASK}, 1")
        a(f"s_cmp_lt_u32 s{S_TASK}, {NTASK}")
        a("s_cbranch_scc1 L_st")
        a(f"s_add_u32 s{S_MODE}, s{S_MODE}, 1")
        a(f"s_cmp_lt_u32 s{S_MODE}, 2")
        a("s_cbranch_scc1 L_sm")
        self.lane_setup()
        self.dma_setup()
        a(f"s_mov_b32 s{S_OUT+2}, {XBYTES}")
        a(f"s_mov_b32 s{S_X+2}, {XBYTES}")
        a(f"s_mov_b32 s{S_IT}, 0")
        a("L_stile:")
        a("s_barrier")
        self.dma_tile()
        for t in range(9):
            a(f"ds_read_b128 {vr(V_ACC+4*t,4)}, v{V_TAB} offset:{O_BIAS+64*t}")
        a(f"s_mov_b32 s{S_MODE}, 0")
        a("L_spass:")
        a(f"s_lshl_b32 s{S_BASE}, s2, 1")
        a(f"s_add_u32 s{S_BASE}, s{S_BASE}, s{S_MODE}")
        a(f"s_add_u32 s{S_BASE}, s{S_BASE}, {PRIV0}")
        a(f"s_mul_i32 s{S_BASE}, s{S_BASE}, {COPY}")
        self.waddr(VA, VI8)
        for grp in self.wload_list(VA, VI8):
            for x in grp:
                a(x)
        a("s_waitcnt vmcnt(0)")
        a("s_barrier")
        for s in range(9):
            a(f"ds_read_b128 {vr(V_B,4)}, v{V_RD0} offset:{2048*s}")
            a(f"ds_read_b128 {vr(V_B+4,4)}, v{V_RD1} offset:{2048*s}")
            a("s_waitcnt lgkmcnt(0)")
            for t in range(9):
                ir, h = aidx(s, t)
                a(f"v_smfmac_f32_16x16x64_bf16 {vr(V_ACC+4*t,4)}, {afrag(s,t)}, {vr(V_B,8)}, v{ir}" + (" abid:1" if h else ""))
            a("s_nop 7")
        a(f"s_add_u32 s{S_MODE}, s{S_MODE}, 1")
        a(f"s_cmp_lt_u32 s{S_MODE}, 2")
        a("s_cbranch_scc1 L_spass")
        for t in range(7):
            for h in range(2):
                a(f"v_cvt_pk_bf16_f32 v{V_P+2*t+h}, v{V_ACC+4*t+2*h}, v{V_ACC+4*t+2*h+1}")
        a(f"s_mov_b64 vcc, {sr(S_EVEN,2)}")
        self.emit_epi(self.assemble_loop(False, "")[2])
        for r in (S_XOFF, S_XOFF5, S_OOFF):
            a(f"s_add_u32 s{r}, s{r}, s{S_XINC}")
        a(f"s_mov_b32 s{S_XINC}, {256*TB}")
        a(f"s_add_u32 s{S_IT}, s{S_IT}, 1")
        a(f"s_cmp_lt_u32 s{S_IT}, s{S_NT}")
        a("s_cbranch_scc1 L_stile")
        a("s_branch L_fin")

    def loop_ops(self, links, dma, clm=False):
        o = self.o
        acc = lambda t: rng(V_ACC + 4 * t, 4)
        ch = o["chain"]
        bb = lambda s: V_P if (ch and s == 6) else V_B + 8 * BBUF[s]
        RBUF = [V_BR, V_BR + 8, V_BR, V_P + 8 if ch else V_P, V_BR + 8]
        rt = RT if links else [[0, 1], [2, 3], [4, 5], [6, 7], [8]]
        ng = [8, 8, 8, 8, 8 if links else o["ng4"]]

        def M(s, t):
            ir, h = aidx(s, t)
            return Op(f"v_smfmac_f32_16x16x64_bf16 {vr(V_ACC+4*t,4)}, {afrag(s,t)}, {vr(bb(s),8)}, v{ir}" + (" abid:1" if h else ""),
                      "mx", rd=list(acc(t)) + list(rng(bb(s), 8)), wr=acc(t), tag=("M", s, t))

        def R(j, t):
            c = j + t
            return Op(f"v_smfmac_f32_16x16x64_bf16 {vr(V_ACC+4*t,4)}, {vr(V_X,4)}, {vr(RBUF[j],8)}, v{V_IR+(c>>1)}" + (" abid:1" if c & 1 else ""),
                      "mx", rd=list(acc(t)) + list(rng(RBUF[j], 8)) + list(rng(V_X, 4)), wr=acc(t), tag=("R", j, t))
        seq = []
        for t in range(9):
            seq += [M(0, t), M(1, t)]
        if ch:
            for steps, order, rs in (((2, 3), o["ord1"], (0, 1)), ((4, 5, 6), o["ord2"], (2, 3, 4))):
                for n, t in enumerate(order):
                    seq += [M(s, t) for s in steps]
                    if t // 2 in rs and t % 2 == 0:
                        j = t // 2
                        assert t == 8 or order[n + 1] == t + 1
                        seq += [R(j, t)] + ([R(j, t - 1)] if links and j else []) + ([R(j, t + 1)] if t < 8 else [])
        else:
            for s in range(2, 7):
                seq += [M(s, t) for t in range(9)]
        for t in range(9):
            seq += [M(7, t), M(8, t)]
        if ch:
            rpos = [min(i for i, x in enumerate(seq) if x.tag[:2] == ("R", j)) for j in range(5)]
        else:
            rpos = list(o["rposl"] if links else o["rpos"])
            for j in range(5):
                for n, t in enumerate(rt[j]):
                    seq.insert(rpos[j] + n, R(j, t))
        N = len(seq)
        pos = {x.tag: i for i, x in enumerate(seq)}
        BAR = rpos[4] + len(rt[4]) - 1
        c0 = N - 15 - BAR
        assert c0 == (4 if ch else 0)
        self.drain = rpos[4] - 1
        T = lambda g: (g - BAR - 1) % N
        first = lambda s: T(min(pos[("M", s, t)] for t in range(9)))
        lastu = lambda s: max(pos[("M", s, t)] for t in range(9))
        LEAD = o["lead"]
        ST = [[] for _ in range(N)]
        S = [[] for _ in range(N)]
        D = [[] for _ in range(N)]
        V = [[] for _ in range(N)]
        keep = lambda op: (dma or op.tag != "dma") and (clm or op.tag != "clm")

        def pdst(t, h):
            return V_P8 + h if t == 8 else V_P + 2 * t + h
        dq, vq = [], []
        for t in range(9):
            for h in range(2):
                V[c0 + 2 * t + h].append(Op(f"v_cvt_pk_bf16_f32 v{pdst(t,h)}, v{V_ACC+4*t+2*h}, v{V_ACC+4*t+2*h+1}", "valu",
                                       rd=[V_ACC + 4 * t + 2 * h, V_ACC + 4 * t + 2 * h + 1], wr=[pdst(t, h)], tag="epi"))
            dq.append([Op(f"ds_read_b128 {vr(V_ACC+4*t,4)}, v{V_TAB} offset:{O_BIAS+64*t}", "lds", rd=[V_TAB], wr=acc(t), tag="pre"),
                       c0 + 2 * t + 2, c0 + 2 * t + 2, None])
        def stf(e):
            f = o["stc"] if clm else (o["st"] if dma else o["stn"])
            f = o["st"] if f is None else f
            return f[e] if isinstance(f, (tuple, list)) else f
        dpp = "quad_perm:[1,0,3,2] row_mask:0xf bank_mask:0xf"
        stg = [T(g) for g in o["stg"]]
        for v in range(2):
            p0, p1 = V_P + 8 * v, V_P + 8 * v + 4
            d0 = V_T if v == 0 else V_P
            for half in range(2):
                e = 2 * v + half
                for d in range(4):
                    if half == 0:
                        op = Op(f"v_cndmask_b32_dpp v{d0+d}, v{p1+d}, v{p0+d}, vcc {dpp}", "dpp", rd=[p0 + d, p1 + d], wr=[d0 + d], tag="epi")
                    else:
                        op = Op(f"v_cndmask_b32_dpp v{p1+d}, v{p0+d}, v{p1+d}, vcc {dpp}", "dpp", rd=[p0 + d, p1 + d], wr=[p1 + d], tag="epi")
                    vq.append([op, stg[e - 1] if e else c0 + 18, stg[e] - 4 + d, None])
                src = d0 if half == 0 else p1
                ST[stg[e]].append(Op(f"buffer_store_dwordx4 {vr(src,4)}, v{V_ST}, {sr(S_OUT,4)}, s{S_OOFF} offen offset:{1152*half+128*v} {stf(e)}",
                                     "st", rd=list(rng(src, 4)) + [V_ST], tag="epi"))
                ST[stg[e]].append(Op(f"s_mov_b64 vcc, {sr((S_ODD, S_EVEN)[half],2)}", "salu", tag="epi"))
        if o["bperm"]:
            for h in range(2):
                dq.append([Op(f"ds_bpermute_b32 v{V_P8+h}, v{V_BP}, v{V_P8+h}", "lds", rd=[V_BP, V_P8 + h], wr=[V_P8 + h], tag="epi"),
                           c0 + 18, stg[4] - LEAD - 2 + h, None])
        ST[stg[4]].append(Op(f"buffer_store_dwordx2 {vr(V_P8,2)}, v{V_ST8}, {sr(S_OUT,4)}, s{S_OOFF} offen {o['st8']}", "st",
                             rd=[V_P8, V_P8 + 1, V_ST8], tag="epi"))
        rl = lambda j: T(rpos[j] + len(rt[j]) - 1)
        free = [rl(2), 1, rl(0), stg[3 if ch else 2] + 1, rl(1)]
        for j in range(5):
            dl = T(rpos[j]) - LEAD - 1
            for b in range(ng[j]):
                r = RBUF[j] + b
                ad = V_AD + 4 * j + (b >> 1)
                av = Op(f"v_add_u32_sdwa v{r}, s{S_BUFN if j == 0 else S_BUF}, v{ad} dst_sel:DWORD dst_unused:UNUSED_PAD src0_sel:DWORD src1_sel:WORD_{b&1}",
                        "valu", rd=[ad], wr=[r], tag="pre" if j == 0 else "")
                gd = dl - o["gsp"] * (ng[j] - 1 - b)
                vq.append([av, free[j], (N - 2 - (7 - b)) if j == 0 else gd - 1, None])
                dq.append([Op(f"ds_read_u16 v{r}, v{r}", "lds", rd=[r], wr=[r], tag="pre"), 0, gd, None if j == 0 else av])
            dq.append([Op(f"ds_read_b128 {vr(V_X,4)}, v{V_TAB} offset:{O_X+64*j}", "lds", rd=[V_TAB], wr=rng(V_X, 4), tag="pre"),
                       0 if j == 0 else rl(j - 1), dl, None])
        prev = {0: None, 1: None, 2: 7, 3: 8, 4: 0, 5: 1, 6: 4, 7: 2, 8: 3}
        lastb = []
        for s in range(9):
            for h in range(2):
                op = Op(f"ds_read_b128 {vr(bb(s)+4*h,4)}, v{(V_RD0, V_RD1)[h]} offset:{2048*s}", "lds",
                        rd=[(V_RD0, V_RD1)[h]], wr=rng(bb(s) + 4 * h, 4), tag="pre")
                fs = first(s) if s < 7 else (T(rpos[4]) - 2 * (9 - s) if ch else T(pos[("M", s, 0)]))
                rel = 0 if prev[s] is None else T(lastu(prev[s]))
                if ch and s == 6:
                    rel = stg[2] + 1
                dq.append([op, rel, fs - LEAD - 2 + h, None])
                lastb.append(op)
        for h in range(2):
            vq.append([Op(f"v_add_u32 v{V_RD0+h}, s{S_DELTA}, v{V_RD0+h}", "valu", rd=[V_RD0 + h], wr=[V_RD0 + h]), 0, N - 2, lastb])
        sq = []
        dmag = [g + (self.drain - 70) * (g > 50) for g in o["dmag"]]
        assert all(b - a_ >= 2 for a_, b in zip(dmag, dmag[1:]))
        if not o["nodma"]:
            for j, g in enumerate(dmag):
                g = T(g)
                ld = f"buffer_load_dwordx4 v{V_DMA}, {sr(S_X,4)}, s{S_XOFF if j < 4 else S_XOFF5} offen offset:{256*j if j < 4 else 896} {o['ld']} lds"
                if j < 4:
                    D[g].append(Op(ld, "dma", rd=[V_DMA], tag="dma"))
                    S[g - 1].append(Op(f"s_add_u32 m0, s{S_M0B}, {3840*j}", "salu", tag="dma"))
                else:
                    D[g] += [Op(f"s_mov_b64 exec, {sr(S_HALF,2)}", "salu", tag="dma"), Op(ld, "dma", rd=[V_DMA], tag="dma"),
                             Op("s_mov_b64 exec, -1", "salu", tag="dma")]
                    S[g - 1].append(Op(f"s_add_u32 m0, s{S_M0B}, s{S_M05}", "salu", tag="dma"))
                    V[g] = None
        XV = [[] for _ in range(N)]
        if self.dyn:
            gl = T(o["mbg"] + self.drain - 70) - 1
            XV[T(0)].append(Op(f"v_mov_b32 v{V_C}, 1", "valu", wr=[V_C], tag="clm"))
            D[T(1)].append(Op(f"buffer_atomic_add v{V_C}, v{V_BP}, {sr(S_B,4)}, 0 offen sc0 sc1", "dma", rd=[V_BP], tag="clm"))
            assert not D[gl + 1] and not S[gl + 1] and max(stg) <= gl
            gw = gl + 1 if o["cwg"] is None else T(o["cwg"])
            assert gw not in stg and T(1) < gw <= gl + 1
            S[gw].append(Op(f"s_waitcnt vmcnt({sum(1 for g in stg if g < gw) + sum(1 for g in dmag if T(g) < gw)})", "salu", tag="clm"))
            if o["dwg"] is not None and dma and not clm:
                gw = T(o["dwg"])
                assert gw not in stg
                S[gw].append(Op(f"s_waitcnt vmcnt({sum(1 for g in stg if g < gw) + sum(1 for g in dmag if T(g) < gw)})", "salu"))
            D[gl + 1] += [Op(f"s_mov_b64 exec, {sr(S_W0,2)}", "salu", tag="clm"),
                          Op(f"ds_write_b32 v{V_RD0}, v{V_C} offset:{TB}", "lds", rd=[V_RD0], tag="clm"), Op("s_mov_b64 exec, -1", "salu", tag="clm")]
            V[gl + 1] = None
            D[0].append(Op(f"ds_read_b32 v{V_C}, v{V_RD0} offset:{TB}", "lds", rd=[V_RD0], wr=[V_C], tag="clm"))
            XV[LEAD + 1].append(Op(f"v_readfirstlane_b32 s{S_CL}, v{V_C}", "valu", rd=[V_C], tag="clm"))
        placed = {}
        for g in range(N - 1):
            if not D[g] and g != T(N - 1):
                c = [x for x in dq if x[1] <= g and (x[3] is None or placed.get(id(x[3]), N) < g) and x[2] - g <= o["eager"]]
                if c:
                    x = min(c, key=lambda x: x[2])
                    dq.remove(x)
                    D[g].append(x[0])
                    placed[id(x[0])] = g
                    if g > x[2] and o["verbose"]:
                        print("; late D", g - x[2], x[0].text, file=sys.stderr)
            if V[g] is None:
                V[g] = []
                continue
            cap = 2 if (ST[g] and "x4" in ST[g][0].text) else 1
            while len(V[g]) < cap:
                c = [x for x in vq if x[1] <= g and (x[3] is None or all(placed.get(id(y), N) <= g for y in x[3]))]
                if not c:
                    break
                x = min(c, key=lambda x: x[2])
                vq.remove(x)
                V[g].append(x[0])
                placed[id(x[0])] = g
                assert g <= x[2] or x[0].kind != "dpp", ("late", x[0].text)
        assert not dq and not vq, ([x[0].text for x in dq], [x[0].text for x in vq])
        for g in range(N):
            V[g] += XV[g]
        if self.dyn:
            rdup = max(placed[id(x)] for gl_ in V for x in gl_ if id(x) in placed and f"s{S_DELTA}," in x.text)
            assert rdup <= gl and gl + 1 < T(self.drain) and T(min(o["stg"])) > T(1)
        S[N - 1] += ([] if clm else [Op(f"s_waitcnt vmcnt({o['vmw']})", "salu")]) + [Op("s_barrier", "bar")]
        lastdma = T(dmag[4])
        la = max(placed[id(x)] for gl in V for x in gl if id(x) in placed and f"s{S_BUF}," in x.text)
        fn = min(placed[id(x)] for gl in V for x in gl if id(x) in placed and (f"s{S_BUFN}," in x.text or f"s{S_DELTA}," in x.text))
        sq = [([f"s_mov_b32 s{S_BUF}, s{S_BUFN}"], 0, 0),
              ([f"s_cmp_eq_u32 s{S_BUFN}, {(NB-1)*TBL}", f"s_cselect_b32 s{S_DELTA}, {-(NB-1)*TBL}, s{S_CTB}", f"s_add_u32 s{S_BUFN}, s{S_BUFN}, s{S_DELTA}"], c0 + 18, fn),
              ]
        if self.dyn:
            LK = self.dyn[1]
            sq.append((([] if clm else [f"s_mov_b32 s{S_OUT+2}, {XBYTES}"]) + [f"s_mov_b32 s{S_OOFF}, s{S_Q}"]
                       + [f"s_mov_b32 s{S_Q+k}, s{S_Q+k+1}" for k in range(LK - 1)]
                       + [f"s_mov_b32 s{S_Q+LK-1}, s{S_XOFF}" if clm else f"s_add_u32 s{S_Q+LK-1}, s{S_Q+LK-1}, {256*TB}"], stg[4] + 1, N - 2))
        else:
            sq.append(([f"s_mov_b32 s{S_OUT+2}, {XBYTES}", f"s_add_u32 s{S_OOFF}, s{S_OOFF}, s{S_OINC}", f"s_mov_b32 s{S_OINC}, s{S_OINC2}",
                        f"s_mov_b32 s{S_OINC2}, {256*TB}"], stg[4] + 1, N - 2))
        if not clm or o["trace"]:
            sq.append(([f"s_add_u32 s{S_IT}, s{S_IT}, 1"], c0 + 18, N - 2))
        if clm:
            ps = o["psh"]
            sq += [([f"s_add_u32 s{S_XOFF5}, s{S_XOFF}, s{S_K5}"], c0 + 18, lastdma - 2),
                   (self.dma_advance()[2:], lastdma + 1, N + 8),
                   ([f"s_lshr_b32 s{S_CT}, s{S_CL}, {ps}", f"s_mul_i32 s{S_CT}, s{S_CT}, {(256 - (1 << ps))*TB}", f"s_mul_i32 s{S_CT+1}, s{S_CL}, {TB}",
                     f"s_add_u32 s{S_CT}, s{S_CT}, s{S_CB}", f"s_add_u32 s{S_XOFF}, s{S_CT}, s{S_CT+1}"], LEAD + 2, T(N - 1) - 2),
                   ([f"s_cmp_lt_u32 s{S_CL}, {(16 - self.dyn[0]) << ps}"], T(N - 1) - 1, T(N - 1) - 1)]
        else:
            if dma:
                sq += [(self.dma_advance(), lastdma + 1, N + 12)]
            sq.append(([f"s_bitcmp1_b32 s{S_DMASK if dma else S_NMASK}, s{S_IT}"], T(N - 1) - 1, T(N - 1) - 1))
        G = lambda A: [[x for x in A[T(g)] if keep(x)] for g in range(N)]
        return seq, G(ST), G(S), G(D), G(V), [(x, (lo + BAR + 1), (hi + BAR + 1)) for x, lo, hi in sq], BAR

    def assemble_loop(self, links, label, dma=True, clm=False):
        seq, ST, S, D, V, sq, BAR = self.loop_ops(links, dma, clm)
        N = len(seq)
        flat = []
        for rep in range(2):
            for g in range(N):
                a0 = rep * N + g
                flat.append((seq[g], a0 - 1))
                for x in ST[g]:
                    flat.append((x, a0 - 1))
                for x in D[g] + V[g]:
                    flat.append((x, a0))
        gap_of = {}
        k = 0
        lds = []
        for rep in range(2):
            for g in range(N):
                k += 1 + len(ST[g])
                for x in D[g] + V[g]:
                    if x.kind == "lds":
                        lds.append((k, rep * N + g))
                    k += 1
        done = -1
        W = {}
        minlead = 99
        for i, (op, wg) in enumerate(flat):
            touched = op.rd | op.wr
            need = -1
            for n, (k, g) in enumerate(lds):
                if k < i and n > done and (flat[k][0].wr & touched):
                    need = n
            if need >= 0:
                assert lds[need][1] < wg
                issued = [n for n, (k, g) in enumerate(lds) if g < wg]
                cnt = min(issued[-1] - need, 15)
                done = issued[-1] - cnt
                if wg >= N - 1 and wg < 2 * N - 1:
                    W[wg % N] = min(cnt, W.get(wg % N, 99))
                    if self.o["verbose"]:
                        print(f"; wait gap {wg % N} cnt {cnt} lead {wg - lds[need][1]} for {flat[lds[need][0]][0].text}", file=sys.stderr)
        W[self.drain] = 0
        if clm:
            mb = [g for g in range(N) if any("ds_write" in x.text for x in D[g])][0]
            assert not [g for g in W if mb < g < self.drain]
        for g, c in W.items():
            S[g].insert(0, Op(f"s_waitcnt lgkmcnt({c})", "salu"))
        if not self.o["drop"]:
            last = max(g for g in range(BAR + 1) if any(x.kind == "lds" for x in D[g]))
            assert any(W.get(g) == 0 for g in range(last + 1, BAR + 1)), "tile reads not drained at the barrier"

        def room(g, extra=0, resv=True):
            g %= N
            if g == BAR or g == N - 1 or any(x.kind == "dma" for x in D[g]):
                return False
            cap = 1 if D[g] else (2 if V[g] else 3)
            if label and not clm and resv:
                if g == self.drain - 1:
                    return False
                cap -= g == self.drain - 2
            return len(S[g]) + extra < cap and not ST[g]
        sccfree = lambda x: x.text.startswith(("s_waitcnt", "s_mov", "s_barrier"))
        locked = set()
        for texts, lo, hi in sq:
            g = lo
            n = 0
            while n < len(texts):
                chain = [texts[n]]
                if texts[n].startswith(("s_cmp", "s_bitcmp")):
                    while n + len(chain) < len(texts) and texts[n + len(chain)].startswith("s_cselect"):
                        chain.append(texts[n + len(chain)])
                while True:
                    assert g <= hi, ("no room", chain)
                    where, z = [], g
                    ok = room(g) and ((g % N) not in locked or chain[0].startswith("s_mov"))
                    cnt = {}
                    for k, tx in enumerate(chain):
                        while ok and not room(z, cnt.get(z, 0)):
                            z += 1
                            ok = z <= hi and all(sccfree(x) for x in S[z % N]) and (clm or z % N != self.drain - 1)
                        where.append(z)
                        cnt[z] = cnt.get(z, 0) + 1
                    if ok:
                        break
                    g += 1
                for z, tx in zip(where, chain):
                    S[z % N].append(Op(tx, "salu"))
                if len(chain) > 1:
                    locked.update(z % N for z in range(where[0], where[-1]))
                g = where[-1]
                n += len(chain)
        assert all(sccfree(x) for x in S[N - 1])
        if label and not clm:
            gz = self.drain - (2 if self.o["trace"] else 1)
            assert self.o["chain"] and (self.o["trace"] or (not (S[gz] or D[gz] or V[gz] or ST[gz]) and room(gz - 1, 0, False) and (gz - 1) not in locked))
            assert all(x.kind not in ("dma", "st") for g in range(gz, N) for x in D[g] + ST[g]) and max(self.o["stg"]) < min(self.o["dmag"])
            S[gz - (0 if self.o["trace"] else 1)].append(Op(f"s_bitcmp1_b32 s{S_WMASK}, s{S_IT}", "salu"))
            S[gz] += [Op(f"s_cbranch_scc1 {label}_w", "salu"), Op(f"{label}_wb:", "label")]
            self.tailblocks.append(f"{label}_w:\ns_bitcmp1_b32 s{S_WMASK2}, s{S_IT}\ns_waitcnt vmcnt({self.whi})\n"
                                   f"s_cbranch_scc0 {label}_wb\ns_waitcnt vmcnt({self.wlo})\ns_branch {label}_wb")
        if self.o["trace"]:
            g0 = max(g for g, c in W.items() if c == 0 and g <= BAR)
            S[g0 - 1] += [Op("s_memrealtime s[98:99]", "salu"), Op("s_memtime s[96:97]", "salu"), Op(f"s_add_u32 s95, s{S_IT}, 32", "salu")]
            V[g0] += [Op(f"s_mov_b32 m0, s{S_IT}", "salu"), Op("v_writelane_b32 v254, s98, m0", "salu"), Op("s_mov_b32 m0, s95", "salu"), Op("v_writelane_b32 v254, s96, m0", "salu")]
        body = []
        for g in range(N):
            body += [x for x in [seq[g]] if not any(d in x.text for d in self.o["dropm"])] + ST[g] + S[g] + D[g] + V[g]
            if self.o["pad"] and g % self.o["pad"] == 0 and g < N - 2:
                body.append(Op("s_nop 3", "salu"))
        body = [x for x in body if x.kind == "mx" or not any(d in x.text for d in self.o["drop"])]
        body.append(Op(f"s_cbranch_scc1 {label}", "salu"))
        if not self.o["drop"]:
            real = [x for x in body if x.kind != "label"]
            m = len(real)
            for i, op in enumerate(real):
                for d in range(1, 10):
                    p = real[(i - d) % m]
                    ws = d - 1
                    if p.kind == "mx" and op.kind != "mx" and (p.wr & (op.rd | op.wr)):
                        assert ws >= 8, ("mx->x", p.text, op.text, ws)
                    if p.kind in ("valu", "dpp") and op.kind == "mx" and (p.wr & op.rd):
                        assert ws >= 2, ("valu->mx", p.text, op.text, ws)
                    if p.kind in ("valu", "dpp") and op.kind == "dpp" and (p.wr & op.rd):
                        assert ws >= 2, ("valu->dpp", p.text, op.text, ws)
                    if p.kind == "st" and (p.rd & op.wr):
                        assert ws >= 2, ("st war", p.text, op.text, ws)
        pro = [x for g in range(N) for x in V[g] if x.tag == "pre" or (g > BAR and "sdwa" in x.text)] \
            + [x for g in range(BAR + 1, N) for x in D[g] if x.tag == "pre"]
        epi = [x for g in range(BAR) for x in ST[g] + D[g] + V[g] if x.tag == "epi"]
        return pro, body, epi

    def emit_epi(self, epi):
        cv = [x for x in epi if "v_cvt" in x.text]
        bp = [x for x in epi if x.kind == "lds"]
        rest = [x for x in epi if x not in cv and x not in bp]
        ops = rest[:6] + cv[2:] + bp + rest[6:12] + cv[:2] + rest[12:]
        if self.o["ste"] is not None:
            ops = [Op(x.text.replace(" sc1", " " + self.o["ste"]), x.kind, x.rd, x.wr) if x.kind == "st" else x for x in ops]
        hist = [Op("", "mx", wr=rng(V_ACC + 28, 8)), Op("", "valu", wr=rng(V_P, 14)), Op("", "salu")]
        self.emit_line(ops, [], hist)

    def main_loop(self, links, sfx):
        a = self.a
        pro, body, epi = self.assemble_loop(links, "L_loop" + sfx)
        if not self.o["peel"]:
            late = list(self.late_loads)
            for n, op in enumerate(pro):
                a(op.text)
                if n % 6 == 5:
                    while late and not late[0].startswith("buffer"):
                        a(late.pop(0))
                    if late:
                        a(late.pop(0))
            for x in late[:8]:
                a(x)
            a("s_waitcnt lgkmcnt(0)")
            a(f"v_readfirstlane_b32 s{S_T0}, v{V_T}")
            a("s_nop 3")
            a(f"s_cmp_lg_u32 s{S_T0}, 0")
            a("s_cbranch_scc1 L_slow")
            for x in late[8:]:
                a(x)
            if max(p[1] for p in self.pol):
                self.prefetch(24, "L_pf2" + sfx)
            for x in self.dma_advance(first=True):
                a(x)
            a(f"s_waitcnt vmcnt({(20 if self.o['early'] else 0) + 5 * self.n2min})")
            self.stamp(5)
            a(f"s_bitcmp1_b32 s{S_DMASK}, 0")
            a(f"s_cbranch_scc0 L_loopn{sfx}")
        a(".p2align 6")
        a(f"L_loop{sfx}:")
        for op in body:
            a(op.text)
        if self.o["wbl2"] is not None:
            a(f"s_lshr_b32 s{S_T0}, s2, 3")
            a(f"s_and_b32 s{S_T0}, s{S_T0}, {self.o['wbl2']}")
            a(f"s_or_b32 s{S_T0}, s{S_T0}, s{S_WAVE}")
            a(f"s_cbranch_scc1 L_loopn{sfx}")
            a("buffer_wbl2 sc1")
        if self.dyn:
            LK = self.dyn[1]
            a(f"s_cmp_lg_u32 s{S_IT}, {self.cl0}")
            a(f"s_cbranch_scc1 L_loopn{sfx}")
            a(".p2align 3")
            a(f"L_loopc{sfx}:")
            for op in self.assemble_loop(links, "L_loopc" + sfx, True, True)[1]:
                a(op.text)
            if self.o["trace"]:
                a(f"s_add_u32 s{S_NT}, s{S_IT}, {LK}")
                a(f"s_bfm_b32 s{S_NMASK}, s{S_NT}, 0")
                a(f"s_lshl_b32 s{S_WMASK}, {1 << (LK-1)}, s{S_IT}")
                a(f"s_lshl_b32 s{S_WMASK2}, {(1 << (LK-1)) if 5*(LK-1) < self.whi else 0}, s{S_IT}")
            else:
                a(f"s_mov_b32 s{S_IT}, 0")
                a(f"s_mov_b32 s{S_NT}, {LK}")
                a(f"s_mov_b32 s{S_NMASK}, {(1 << LK) - 1}")
                a(f"s_mov_b32 s{S_WMASK}, {(1 << (LK-1)) if 5*(LK-1) < self.o['vmw'] else 0}")
                a(f"s_mov_b32 s{S_WMASK2}, {(1 << (LK-1)) if 5*(LK-1) < self.whi else 0}")
            a(f"s_mov_b32 s{S_CL0}, -1")
            if self.o["stt"] is not None:
                keep, self.o["stn"] = self.o["stn"], self.o["stt"]
                for op in self.assemble_loop(links, "L_loopt" + sfx, False)[1][:-1]:
                    a(op.text)
                self.o["stn"] = keep
        if self.o["align2"]:
            a(".p2align 3")
        a(f"L_loopn{sfx}:")
        _, body, epi = self.assemble_loop(links, "L_loopn" + sfx, False)
        for op in body:
            a(op.text)
            if op.kind == "bar":
                a(f"L_loopn{sfx}_p3:")
        if self.dyn:
            a(f"s_cmp_eq_u32 s{S_IT}, s{S_CL0}")
            a(f"s_cbranch_scc1 L_loopc{sfx}")
        a(f"s_cmp_lt_u32 s{S_IT}, s{S_NT}")
        a(f"s_cbranch_scc1 L_loop{sfx}")
        self.emit_epi(epi)

    def loop_state(self):
        a = self.a
        pl = 2 if self.o["peel"] else 0
        a(f"s_mov_b32 s{S_IT}, {pl}")
        a(f"s_mov_b32 s{S_BUF}, 0")
        a(f"s_mov_b32 s{S_BUFN}, {pl*TBL}")
        if pl:
            a(f"s_mov_b32 s{S_OUT+2}, {XBYTES}")
        a(f"s_mov_b32 s{S_CTB}, {TBL}")
        a(f"s_mov_b32 s{S_OINC}, {256*TB if pl else 0}")
        a(f"s_mov_b64 vcc, {sr(S_EVEN,2)}")
        if self.dyn:
            NS, LK = self.dyn
            ps = self.o["psh"]
            a(f"s_andn2_b32 s{S_NMASK}, {(1 << self.cl0) - 1}, s{S_DMASK}")
            a(f"s_mov_b32 s{S_CL0}, {self.cl0}")
            a(f"s_add_u32 s{S_Q}, s{S_OOFF}, {pl*256*TB}")
            for k in range(1, LK):
                a(f"s_add_u32 s{S_Q+k}, s{S_Q+k-1}, {256*TB}")
            a(f"s_sub_u32 s{S_K5}, s{S_XOFF5}, s{S_XOFF}")
            a(f"s_lshr_b32 s{S_T0}, s2, {ps}")
            a(f"s_mul_i32 s{S_CB}, s{S_T0}, {TB << ps}")
            a(f"s_add_u32 s{S_CB}, s{S_CB}, {NS*256*TB}")
            a(f"s_lshl_b32 s{S_T0}, s{S_T0}, 7")
            a(f"s_add_u32 s{S_T0}, s{S_T0}, {CNT_OFF}")
            a(f"s_add_u32 s{S_B}, s{S_WS}, s{S_T0}")
            a(f"s_addc_u32 s{S_B+1}, s{S_WS+1}, 0")
            a(f"s_cmp_eq_u32 s{S_WAVE}, 0")
            a(f"s_cselect_b32 s{S_B+2}, 4, 0")
            a(f"s_cselect_b64 {sr(S_W0,2)}, 1, 0")
        else:
            a(f"s_bfm_b32 s{S_NMASK}, s{S_NT}, 0")
            a(f"s_andn2_b32 s{S_NMASK}, s{S_NMASK}, s{S_DMASK}")

    def stamp(self, n, r="s[98:99]"):
        if self.o["stamp"] and (self.o["stamp"] is True or n in self.o["stamp"]):
            a = self.a
            a(f"s_memtime {r}" if self.o["cyc"] and n in (5, 6) else f"s_memrealtime {r}")
            a("s_waitcnt lgkmcnt(0)")
            a(f"v_writelane_b32 v255, s{r[2:4]}, {n}")

    def descriptor(self, label, vg, ag):
        self.a(f""".amdhsa_kernel {label}
  .amdhsa_next_free_vgpr {vg}
  .amdhsa_next_free_sgpr 102
  .amdhsa_accum_offset {ag}
  .amdhsa_group_segment_fixed_size 0
  .amdhsa_float_denorm_mode_32 3
  .amdhsa_kernarg_size 48
  .amdhsa_user_sgpr_count 2
  .amdhsa_user_sgpr_kernarg_segment_ptr 1
  .amdhsa_system_sgpr_workgroup_id_x 1
.end_amdhsa_kernel""")

    def flush_tail(self):
        for b in self.tailblocks:
            self.a(b)
        self.tailblocks = []

    def gen(self):
        a = self.a
        o = self.o
        K = NAME + "_kernel"
        a(open("cdna_kernels/" + NAME + ".s.ref").read().split("; Override")[0].rstrip())
        if o["fused"]:
            a(f"; @launch grid=(256,1,1) block=(256,1,1) lds={LDS_BYTES}")
        else:
            a(f"; @launch kernel=prep_kernel grid=({NTASK},1,1) block=(256,1,1) lds={LDS_BYTES}")
            a(f"; @launch kernel={K} grid=(256,1,1) block=(256,1,1) lds={LDS_BYTES}")
        a('.amdgcn_target "amdgcn-amd-amdhsa--gfx950"\n.text')
        if not o["fused"]:
            self.entry("prep_kernel", NTASK)
            a(f"s_mov_b32 s{S_TASK}, s2\ns_mov_b32 s{S_BASE}, 0")
            self.producer("", False)
            a("L_end_prep_kernel:\ns_endpgm")
            self.flush_tail()
        self.entry(K, 256)
        a(f"s_mov_b32 s{S_BASE}, 0")
        msk = lambda p: hex(sum(1 << i for i in p[2] if not self.dyn or i < self.cl0) | p[0] << 20 | p[1] << 24)
        def pick(reg, vals):
            if len(set(vals)) == 1:
                a(f"s_mov_b32 s{reg}, {vals[0]}")
                return
            a(f"s_mov_b32 s{reg}, {vals[1]}")
            a(f"s_mov_b32 s{S_T0}, {vals[3]}")
            a(f"s_bitcmp1_b32 s2, {o['gsh']}")
            a(f"s_cselect_b32 s{reg}, s{reg}, {vals[0]}")
            a(f"s_cselect_b32 s{S_T0}, s{S_T0}, {vals[2]}")
            a(f"s_bitcmp1_b32 s2, {o['gsh2']}")
            a(f"s_cselect_b32 s{reg}, s{S_T0}, s{reg}")
        if o["fused"]:
            px = o["px"]
            if o["pspread"]:
                a(f"s_bfe_u32 s{S_TASK}, s2, {hex(2 << 16 | 3)}")
                a(f"s_mul_i32 s{S_TASK}, s{S_TASK}, {px}")
                a(f"s_and_b32 s{S_T0}, s2, 7")
                a(f"s_add_u32 s{S_TASK}, s{S_TASK}, s{S_T0}")
                a(f"s_lshr_b32 s{S_T1}, s2, 5")
                a(f"s_lshl3_add_u32 s{S_TASK}, s{S_TASK}, s{S_T1}")
            else:
                a(f"s_lshr_b32 s{S_TASK}, s2, 3")
                a(f"s_mul_i32 s{S_TASK}, s{S_TASK}, {px}")
                a(f"s_and_b32 s{S_T0}, s2, 7")
                a(f"s_add_u32 s{S_TASK}, s{S_TASK}, s{S_T0}")
            a(f"s_cmp_lt_u32 s{S_T0}, {px}")
            a(f"s_cselect_b32 s{S_TASK}, s{S_TASK}, 63")
            a(f"s_cmp_lt_u32 s{S_TASK}, {NTASK}")
            a("s_cbranch_scc1 L_prod")
        pick(S_DMASK, [msk(p) for p in self.pol[:4]])
        self.lane_setup()
        if o["fused"] and o["sig"] == 3:
            self.mb_addr(S_T0, S_T1)
            a(f"s_cmp_eq_u32 s{S_WAVE}, 0")
            a(f"s_cselect_b32 s{S_T0}, s{S_T0}, 0x40000000")
            a(f"v_mov_b32 v8, s{S_T0}")
            a("v_mov_b32 v9, 0")
        self.entry_wait()
        if o["fused"] and o["sig"] == 4:
            assert o["pspread"]
            a(f"s_cmp_lg_u32 s2, {CLEARER}")
            a("s_cbranch_scc1 L_cons3")
            a("v_lshrrev_b32 v8, 2, v0")
            a("v_and_b32 v9, 3, v0")
            a("v_lshlrev_b32 v9, 4, v9")
            a("v_lshl_add_u32 v8, v8, 7, v9")
            a(f"v_add_u32 v8, {FL_OFF}, v8")
            a("v_mov_b64 v[12:13], 0")
            a("v_mov_b64 v[14:15], 0")
            a(f"buffer_store_dwordx4 v[12:15], v8, {sr(S_WS,4)}, 0 offen sc1")
            a("v_mov_b32 v10, 1")
            a("v_lshlrev_b32 v11, 2, v0")
            a("s_waitcnt vmcnt(0)")
            a("s_barrier")
            a("s_mov_b64 exec, 0xffff")
            a(f"buffer_store_dword v10, v11, {sr(S_DBG,4)}, 0 offen sc1")
            a("s_mov_b64 exec, -1")
        self.ptouch()
        if o["fused"] and o["sig"] == 3:
            a("s_mov_b64 exec, 1")
            a(f"buffer_store_dword v9, v8, {sr(S_WS,4)}, 0 offen sc1")
            a("s_mov_b64 exec, -1")
        a("L_cons3:")
        self.stamp(1)
        self.dma_setup()
        self.prefetch(20)
        self.stamp(2)
        if o["fused"]:
            a("s_branch L_rest")
            a("L_prod:")
            self.producer("", False)
            pick(S_DMASK, [msk(p) for p in self.pol[4:]] * 2)
            a("s_barrier")
            a(f"s_cmp_lg_u32 s{S_WAVE}, 0")
            a("s_cbranch_scc1 L_cons2")
            if o["sig"] != 4:
                a("v_mov_b32 v8, 1")
                a("s_mov_b64 exec, 1")
            if o["sig"] == 4:
                a(f"v_readfirstlane_b32 s{S_T0}, v8")
                a("s_mov_b64 exec, 0xffff")
                a(f"s_cmp_lg_u32 s{S_T0}, 1")
                a("s_cbranch_scc1 L_pwait")
                a("L_pset:")
                a(f"buffer_store_dword v10, v9, {sr(S_WS,4)}, 0 offen sc1")
                self.tailblocks.append("\n".join([
                    "L_pwait:", f"s_mov_b32 s{S_T1}, {o['maxpoll']}", "L_pwait1:", f"buffer_load_dword v8, off, {sr(S_DBG,4)}, 0 sc1",
                    "s_waitcnt vmcnt(0)", f"v_readfirstlane_b32 s{S_T0}, v8", "s_nop 3", f"s_cmp_eq_u32 s{S_T0}, 1", "s_cbranch_scc1 L_pset",
                    f"s_sub_u32 s{S_T1}, s{S_T1}, 1", "s_cbranch_scc0 L_pwait1", "s_branch L_notlast"]))
            elif o["sig"] == 2:
                a(f"s_lshr_b32 s{S_T0}, s{S_TASK}, 1")
                a(f"s_lshl_b32 s{S_T0}, s{S_T0}, 2")
                a(f"s_bitcmp1_b32 s{S_TASK}, 0")
                a(f"s_cselect_b32 s{S_T1}, 128, 0")
                a(f"s_add_u32 s{S_T0}, s{S_T0}, s{S_T1}")
                a(f"v_mov_b32 v9, s{S_T0}")
                a(f"buffer_store_dword v8, v9, {sr(S_DBG,4)}, 0 offen {o['fs']}")
            else:
                a(f"buffer_atomic_add v8, off, {sr(S_DBG,4)}, 0 offset:128 sc0 sc1")
                if o["sig"] == 3:
                    a("s_mov_b64 exec, -1")
                    a(f"s_mov_b32 s{S_T1}, {MB_OFF}")
                    a(f"v_lshl_add_u32 v10, v{V_LANE}, 7, s{S_T1}")
                    for k in range(1, 4):
                        a(f"v_add_u32 v{10+k}, {8192*k}, v10")
                a("v_mov_b32 v9, 1")
                a("s_waitcnt vmcnt(0)")
                a(f"v_readfirstlane_b32 s{S_T0}, v8")
                a("s_nop 3")
                a(f"s_cmp_lg_u32 s{S_T0}, {NTASK-1}")
                a("s_cbranch_scc1 L_notlast")
                if o["sig"] == 3:
                    for k in range(4):
                        a(f"buffer_store_dword v9, v{10+k}, {sr(S_WS,4)}, 0 offen sc1")
                    a("s_mov_b64 exec, 1")
                a(f"buffer_store_dword v9, off, {sr(S_DBG,4)}, 0 {o['fs']}")
                if o["diag"] and o["diag"][2] == "last":
                    a("s_mov_b32 s101, -1")
            a("L_notlast:")
            self.stamp(15)
            a("s_mov_b64 exec, -1")
            a("L_cons2:")
            self.lane_setup()
            if o["bar2"] and o["sig"] != 4:
                a("s_barrier")
            a("s_branch L_cons3")
            self.flush_tail()
            a("L_rest:")
        for reg, wm in ((S_WMASK, self.wmask), (S_WMASK2, self.wmask2)):
            pick(reg, [hex(x) for x in wm[:4]])
            if o["fused"]:
                pick(S_T1, [hex(x) for x in wm[4:]] * 2)
                a(f"s_cmp_lt_u32 s{S_TASK}, {NTASK}")
                a(f"s_cselect_b32 s{reg}, s{S_T1}, s{reg}")
        self.bias_load()
        self.lane_setup2()
        self.tables_init()
        pre, C, G = self.build()
        if o["fused"]:
            a(f"s_cmp_lg_u32 s{S_WAVE}, 0")
            a("s_cbranch_scc1 L_ready")
            if o["sig"] == 4:
                assert min(p[0] for p in self.pol) >= 3
                a(f"s_mov_b32 s{S_T1}, {o['maxpoll']}")
                a(f"s_mov_b32 s{S_T0}, {FL_OFF}")
                a(f"v_lshl_add_u32 v9, v{V_LANE}, 7, s{S_T0}")
                a(f"s_bfe_u32 s{S_T0}, s{S_DMASK}, {hex(4 << 16 | 20)}")
                a(f"s_cmp_ge_u32 s{S_T0}, 6")
                a("s_waitcnt vmcnt(16)")
                a("s_cbranch_scc1 L_deep")
                a("s_waitcnt vmcnt(1)")
                a("L_deep:")
                self.stamp(14)
                a(f"v_readfirstlane_b32 s{S_T0}, v124")
                a(f"s_mov_b32 exec_hi, {(1 << (NTASK - 32)) - 1}")
                a(f"s_cmp_lg_u32 s{S_T0}, 1")
                a("s_cbranch_scc1 L_cwait")
                self.tailblocks.append("\n".join([
                    "L_cwait:", f"buffer_load_dword v8, off, {sr(S_DBG,4)}, 0 sc1", f"s_sub_u32 s{S_T1}, s{S_T1}, 1", "s_cbranch_scc1 L_giveup",
                    "s_waitcnt vmcnt(0)", f"v_readfirstlane_b32 s{S_T0}, v8", "s_nop 3", f"s_cmp_lg_u32 s{S_T0}, 1", "s_cbranch_scc1 L_cwait",
                    "s_branch L_poll"]))
                a("L_poll:")
                if o["psleep"]:
                    a(f"s_sleep {o['psleep']}")
                a(f"buffer_load_dword v8, v9, {sr(S_WS,4)}, 0 offen sc1")
                a(f"s_sub_u32 s{S_T1}, s{S_T1}, 1")
                a("s_cbranch_scc1 L_giveup")
                a("s_waitcnt vmcnt(0)")
                a("v_cmp_ne_u32 vcc, 1, v8")
                a("s_nop 4")
                a("s_cbranch_vccnz L_poll")
            else:
                if o["sig"] == 2:
                    a(f"v_lshlrev_b32 v9, 2, v{V_LANE}")
                    a("s_waitcnt vmcnt(0)")
                else:
                    a("s_mov_b64 exec, 1")
                a(f"s_mov_b32 s{S_T1}, {o['maxpoll']}")
                if o["stamp"] and (o["stamp"] is True or 14 in o["stamp"]):
                    a("s_waitcnt vmcnt(0)")
                    self.stamp(14)
                if o["sig"] == 3:
                    self.mb_addr(S_T0, S_MASK)
                    a(f"v_mov_b32 v9, s{S_T0}")
                    a(f"s_waitcnt vmcnt({5*min(p[0] for p in self.pol)})")
                a("L_poll:")
                if o["psleep"]:
                    a(f"s_sleep {o['psleep']}")
                if o["sig"] == 3:
                    a(f"s_and_b32 s{S_T0}, s{S_T1}, 15")
                    a("s_cbranch_scc0 L_polld")
                    a(f"buffer_load_dword v8, v9, {sr(S_WS,4)}, 0 offen sc1")
                    a("L_pollb:")
                    self.tailblocks.append(f"L_polld:\nbuffer_load_dword v8, off, {sr(S_DBG,4)}, 0 sc1\ns_branch L_pollb")
                else:
                    a(f"buffer_load_dword v8, {'v9' if o['sig'] == 2 else 'off'}, {sr(S_DBG,4)}, 0 {'offen ' if o['sig'] == 2 else ''}{o['pl']}")
                a(f"s_sub_u32 s{S_T1}, s{S_T1}, 1")
                a("s_cbranch_scc1 L_giveup")
                a("s_waitcnt vmcnt(0)")
                if o["sig"] == 2:
                    a("v_cmp_ne_u32 vcc, 0, v8")
                    a(f"s_bcnt1_i32_b64 s{S_T0}, vcc")
                    a(f"s_cmp_lt_u32 s{S_T0}, {NTASK}")
                else:
                    a(f"v_readfirstlane_b32 s{S_T0}, v8")
                    a("s_nop 3")
                    a(f"s_cmp_lg_u32 s{S_T0}, 1")
                a("s_cbranch_scc1 L_poll")
            a("L_polled:")
            a("s_mov_b64 exec, -1")
            a("L_ready:")
            self.tailblocks.append(f"L_giveup:\ns_waitcnt vmcnt(0)\nv_mov_b32 v8, {L_PL + 256}\nv_mov_b32 v9, 1\nds_write_b32 v8, v9\ns_branch L_polled")
        a("s_waitcnt lgkmcnt(0)")
        a("s_barrier")
        self.stamp(3)
        self.emit_build(pre, C, G)
        self.stamp(4, "s[94:95]")
        self.loop_state()
        a("s_waitcnt lgkmcnt(0)")
        a(f"v_mov_b32 v{V_X if o['peel'] else V_T}, {L_PL + 256}")
        a("s_barrier")
        if o["peel"]:
            self.peel()
            if max(p[1] for p in self.pol):
                self.prefetch(24, "L_pf2")
            for x in self.dma_advance(first=True):
                a(x)
            a(f"s_add_u32 s{S_OOFF}, s{S_OOFF}, {256*TB}")
            self.stamp(5)
            a("s_waitcnt lgkmcnt(0)")
            a("s_barrier")
            if o["links"] is None:
                a(f"s_cmp_lg_u32 s{S_LINK}, 0")
                a("s_cbranch_scc1 L_loopnk_p3")
            a("s_branch L_loopn_p3")
        else:
            a(f"ds_read_b32 v{V_T}, v{V_T}")
            if o["links"] is None:
                a(f"s_cmp_lg_u32 s{S_LINK}, 0")
                a("s_cbranch_scc1 L_linked")
        self.main_loop(bool(o["links"]), "")
        a("L_fin:")
        if o["stamp"]:
            a(f"v_mbcnt_lo_u32_b32 v{V_LANE}, -1, 0\nv_mbcnt_hi_u32_b32 v{V_LANE}, -1, v{V_LANE}")
        self.stamp(6)
        if o["stamp"]:
            a("s_waitcnt vmcnt(0)")
            self.stamp(7)
            a("v_writelane_b32 v255, s100, 0")
            a(f"s_lshl_b32 s{S_T0}, s2, 2\ns_add_u32 s{S_T0}, s{S_T0}, s{S_WAVE}\ns_lshl_b32 s{S_T0}, s{S_T0}, 6")
            a(f"s_add_u32 s{S_T0}, s{S_T0}, {WSBYTES - 65536}")
            if o["trace"]:
                a(f"s_lshl_b32 s{S_T1}, s2, 2\ns_add_u32 s{S_T1}, s{S_T1}, s{S_WAVE}\ns_lshl_b32 s{S_T1}, s{S_T1}, 8")
                a(f"s_add_u32 s{S_T1}, s{S_T1}, {WSBYTES - 65536 - 262144}")
                a(f"v_lshl_add_u32 v8, v{V_LANE}, 2, s{S_T1}")
                a(f"buffer_store_dword v254, v8, {sr(S_WS,4)}, 0 offen")
                a("s_nop 1")
            a(f"v_lshl_add_u32 v254, v{V_LANE}, 2, s{S_T0}")
            a("s_mov_b32 exec_lo, 0xffff\ns_mov_b32 exec_hi, 0")
            a(f"buffer_store_dword v255, v254, {sr(S_WS,4)}, 0 offen")
            if o["diag"]:
                n1, n0, wg, mul = o["diag"]
                a(("s_cmp_lg_u32 s101, -1" if wg == "last" else f"s_cmp_lg_u32 s2, {wg}") + f"\ns_cbranch_scc1 L_end_{K}\ns_cmp_lg_u32 s{S_WAVE}, 0\ns_cbranch_scc1 L_end_{K}")
                a(f"v_readlane_b32 s60, v255, {n1}\nv_readlane_b32 s61, v255, {n0}\ns_nop 3\ns_sub_u32 s60, s60, s61\ns_mul_i32 s60, s60, {mul}")
                a("s_min_u32 s60, s60, 100000\ns_add_u32 s60, s60, 10000")
                a("L_diag:\ns_sleep 1\ns_memrealtime s[62:63]\ns_waitcnt lgkmcnt(0)\ns_sub_u32 s62, s62, s100\ns_cmp_lt_u32 s62, s60\ns_cbranch_scc1 L_diag")
        a(f"L_end_{K}:\ns_endpgm")
        self.flush_tail()
        if o["links"] is None:
            a("L_linked:")
            self.main_loop(True, "k")
            a("s_branch L_fin")
            self.flush_tail()
        self.slow_path(K)
        a('.section .rodata,"a"\n.p2align 6')
        if not o["fused"]:
            self.descriptor("prep_kernel", 128, 128)
            a(".p2align 6")
        self.descriptor(K, 512, 256)
        return "\n".join(self.L) + "\n"


if __name__ == "__main__":
    opts = eval("dict(" + (sys.argv[2] if len(sys.argv) > 2 else "") + ")")
    out = sys.argv[1] if len(sys.argv) > 1 else "cdna_kernels/" + NAME + ".s"
    open(out, "w").write(Gen(**opts).gen())
```

```python
import sys

NAME = "standalone__structured_sparse_n_m__ragged"
TB = 18432
TBL = TB + 128
NB = 8
CNT_OFF = 0x60000
MB_OFF = 0x68000
FL_OFF = 0x70000
CLEARER = 24
PRIV0 = 2
XBYTES = 75497472
WBYTES = 663552
WSBYTES = 301989888
A_OFF = 0
I_OFF = 331776
I8_OFF = I_OFF + 36864
R1_OFF = I8_OFF + 5120
R8_OFF = R1_OFF + 9216
COPY = 393216
NTASK = 41
L_WV = NB * TBL
WV_SZ = 3584
O_X, O_K, O_M, O_BIAS, O_IDX = 64, 384, 704, 1024, 1792
L_PL = L_WV + 4 * WV_SZ
LDS_BYTES = 163840
assert L_PL + 512 <= LDS_BYTES and L_WV % 256 == 0 and WV_SZ % 256 == 0

V_RD0, V_RD1, V_TAB, V_DMA, V_ST, V_ST8, V_BP, V_LANE = 0, 1, 2, 3, 4, 5, 6, 7
V_ACC = 8
V_B = 44
V_BR = 76
V_P = 92
V_T = 108
V_P8 = 112
V_X = 114
V_AD = 118
V_I = 138
V_I8 = 174
V_IR = 179
V_A = 186
S_X, S_OUT, S_WS, S_W, S_B, S_DBG = 16, 20, 24, 28, 32, 36
S_WAVE = 40
S_IT, S_BUF, S_DELTA, S_M0B, S_XOFF, S_OOFF = 41, 42, 43, 44, 45, 46
S_T0, S_T1 = 47, 3
S_MASK = 48
S_EVEN, S_ODD = 80, 82
S_TASK, S_TEND, S_BASE, S_MODE, S_CONT = 84, 85, 86, 87, 88
S_BAD = 90
S_MORE, S_LINK = 78, 89
S_C0 = 93
S_BUFN, S_CTB, S_OINC, S_XOFF5, S_M05, S_M0W, S_HALF = 4, 5, 6, 7, 8, 9, 10
S_NMASK = 12
S_WMASK, S_WMASK2 = 92, 87
S_XINC, S_OINC2, S_NT = 13, 14, 15
S_Q, S_CL, S_CB, S_K5, S_CL0, S_CT, S_W0 = 48, 56, 57, 58, 59, 60, 62
V_C = 7
S_DMASK, S_NB0 = 85, 88


def vr(b, n=1):
    return f"v{b}" if n == 1 else f"v[{b}:{b+n-1}]"


def sr(b, n=1):
    return f"s{b}" if n == 1 else f"s[{b}:{b+n-1}]"


def afrag(s, t):
    f = 9 * s + t
    return f"a[{4*f}:{4*f+3}]" if f < 64 else vr(V_A + 4 * (f - 64), 4)


def aidx(s, t):
    if t < 8:
        return V_I + 4 * s + (t >> 1), t & 1
    return V_I8 + (s >> 1), s & 1


BBUF = [0, 1, 2, 3, 0, 1, 0, 2, 3]
PEEL_T = [8, 0, 1, 2, 3, 4, 5, 6, 7]
RT = [[0, 1], [1, 2, 3], [3, 4, 5], [5, 6, 7], [7, 8]]


class Op:
    def __init__(self, text, kind, rd=(), wr=(), tag=""):
        self.text, self.kind, self.rd, self.wr, self.tag = text, kind, set(rd), set(wr), tag


def rng(b, n):
    return range(b, b + n)


class Gen:
    def __init__(self, **o):
        self.o = dict(fused=True, ld="nt", st="sc1", bperm=True, grp=None, nb0=None, gsh=3, gsh2=4, split=0, dyn=(10, 3), psh=6, peel=True, ptail=10, midg=(12, 34, 58, 82, 106, 126), vcap=18, stp=None, stt=None, ste=None, mbg=64, cwg=46, dwg=20, wbl2=None, stn=None, pad=0, swp=(0, 0, 0), dropm=(), st8='', stc=None, stamp=False, nodma=False, wl="sc1", ws="sc1",
                      vmw=20, lper=14, drop=(), cyc=False, links=None, ng4=8, px=2, maxpoll=20015, warm=True, bcast=True, l0=12, lw=2, cwarm=True, bias0=True, ldp=None, ptouch=False, pspread=True, pfw=(3, 1, 0, 0), wtouch=False, bar2=True, early=True, ltail=24, coal=True, rpos=(18, 35, 50, 63, 75), rposl=(18, 36, 52, 66, 78),
                      lead=8, stg=(9, 16, 23, 30, 37), dmag=(44, 52, 60, 63, 66), gsp=2, eager=99, verbose=False, hack=None, diag=None, sig=4, psleep=0, pl='sc1', fs='sc1', isort=False, trace=False, chain=True, ord1=(0,1,4,5,6,2,3,7,8), ord2=(0,4,5,1,6,7,2,3,8), align2=True, order='hp')
        self.o.update(o)
        if self.o["grp"] is None and self.o["nb0"] is None:
            self.o.update(grp=[(3, 2, 2), (8, 0, 5), (3, 2, 2)])
        grp = self.o["grp"] or [(self.o["nb0"], 0, 0)] * 2
        if len(grp) != 6:
            grp = list(grp[:-1]) * (4 // (len(grp) - 1)) + [grp[-1]] * 2
        sp = self.o["split"]
        if sp:
            self.o["gsh"], self.o["gsh2"] = 0, 3
        self.pol, self.nt = [], []
        self.mid = []
        for c, (n1, n2, its) in enumerate(grp):
            self.mid.append(n1[1] if isinstance(n1, tuple) else 0)
            n1 = sum(n1) if isinstance(n1, tuple) else n1
            nt = 16 + (sp if c % 2 == 0 else -sp)
            nb = n1 + n2
            its = list(its) if isinstance(its, (list, tuple)) else [its]
            while len(its) < nt - nb:
                its.append(its[-1] + 1)
            assert len(its) == nt - nb and all(nb + n - 7 <= i <= nb + n - 2 for n, i in enumerate(its)) and n1 >= 1, (n1, n2, its)
            self.pol.append((n1, n2, its))
            self.nt.append(nt)
        self.dyn = self.o["dyn"]
        if self.dyn:
            NS, LK = self.dyn
            self.cl0 = NS - LK - 1
            assert not sp and all(its[NS - 1 - n1 - n2] == self.cl0 and its[-1] == 15 - LK for n1, n2, its in self.pol) and self.cl0 >= 1
        self.n2min = min(p[1] for p in self.pol)
        self.premin = min(p[0] - m for p, m in zip(self.pol, self.mid))
        assert not max(self.mid) or (self.o["peel"] and self.premin >= 2 and max(self.mid) <= len(self.o["midg"]))
        req = []
        for (n1, n2, its), nt in zip(self.pol, self.nt):
            r = [63] * nt
            for tile in range(n1, nt):
                i = tile - 1
                a0 = (1 if self.o["peel"] else -1) if tile < n1 + n2 else its[tile - n1 - n2]
                r[i] = sum(10 if j in its else 5 for j in range(a0 + 1, i + 1)) + 5 * max(0, n1 + n2 - 1 - tile)
                if a0 < 0:
                    r[i] -= 5
            if self.o["peel"]:
                assert n1 >= 3 and its[0] >= 2 and not sp
            elif self.o["early"]:
                r[0] = min(r[0], 5 * n2 + (5 if 0 in its else 0))
            if self.dyn:
                r = r[:self.cl0] + [5 * (self.dyn[1] - 1)]
            req.append(r)
        low = sorted({x for r in req for x in r if x < self.o["vmw"]})
        self.wlo = low[0] if low else 0
        best = None
        for hi in low or [0]:
            cost = sum(x - (hi if x >= hi else self.wlo) for r in req[:4] for x in r[1:] if x < self.o["vmw"])
            if best is None or cost < best[0]:
                best = (cost, hi)
        self.whi = best[1]
        self.wmask = [sum(1 << (i + 1) for i, x in enumerate(r) if x < self.o["vmw"]) for r in req]
        self.wmask2 = [sum(1 << (i + 1) for i, x in enumerate(r) if x < self.whi) for r in req]
        self.req = req
        self.L = []
        self.tailblocks = []

    def a(self, s):
        self.L.extend(s.split("\n"))

    def entry(self, label, nwg):
        a = self.a
        a(f".globl {label}\n.p2align 8\n.type {label},@function\n{label}:")
        a("s_load_dwordx8 s[4:11], s[0:1], 0")
        a("s_load_dwordx4 s[12:15], s[0:1], 32")
        a(f"s_cmp_ge_u32 s2, {nwg}")
        a(f"s_cbranch_scc1 L_end_{label}")
        if self.o["stamp"]:
            a("s_memrealtime s[100:101]")
        a("v_lshlrev_b32 v3, 7, v0")
        if self.o["cwarm"]:
            a("s_getpc_b64 s[96:97]")
            a(f"v_min_u32 v2, L_slow-{label}, v3")
            a("global_load_dword v120, v2, s[96:97]")
        if self.o["wtouch"]:
            a(f"s_lshr_b32 s{S_T0}, s2, 3")
            a(f"s_mul_i32 s{S_T0}, s{S_T0}, {162*128}")
            a(f"v_add_u32 v3, s{S_T0}, v3")
            a(f"v_min_u32 v3, {WBYTES-128}, v3")
            a(f"s_and_b32 s{S_T0}, s2, {8 - self.o['px']}")
            a("s_waitcnt lgkmcnt(0)")
            a(f"s_cbranch_scc1 L_nt_{label}")
            a("global_load_dword v121, v3, s[6:7]")
            a(f"L_nt_{label}:")
        a("v_lshrrev_b32 v1, 6, v0")
        a(f"v_and_b32 v{V_LANE}, 63, v0")
        a(f"v_readfirstlane_b32 s{S_WAVE}, v1")

    def mb_addr(self, d, t):
        a = self.a
        a(f"s_lshr_b32 s{d}, s2, 4")
        a(f"s_and_b32 s{t}, s2, 7")
        a(f"s_lshl3_add_u32 s{d}, s{d}, s{t}")
        a(f"s_and_b32 s{t}, s2, 8")
        a(f"s_lshl4_add_u32 s{d}, s{t}, s{d}")
        a(f"s_lshl_b32 s{d}, s{d}, 7")
        a(f"s_add_u32 s{d}, s{d}, {MB_OFF}")

    def ptouch(self):
        if self.o["ptouch"]:
            a = self.a
            a("s_mov_b64 exec, 1")
            a(f"s_mov_b32 s{S_T0}, {MB_OFF + 0x8000}")
            a(f"buffer_load_dword v122, off, {sr(S_WS,4)}, s{S_T0} sc1")
            a(f"buffer_load_dword v123, off, {sr(S_DBG,4)}, 0 sc1")
            a("s_mov_b64 exec, -1")

    def srds(self, which):
        for srd, p, size in ((S_W, 6, WBYTES), (S_X, 4, XBYTES), (S_WS, 14, WSBYTES), (S_B, 8, 1152), (S_OUT, 10, 0), (S_DBG, 12, 256)):
            if srd in which:
                self.a(f"s_mov_b32 s{srd+2}, {size}")
                self.a(f"s_mov_b32 s{srd+3}, 0x20000")
                self.a(f"s_mov_b32 s{srd}, s{p}")
                self.a(f"s_and_b32 s{srd+1}, s{p+1}, 0xffff")

    def entry_wait(self, first=None):
        lst = (S_W, S_X, S_WS, S_B, S_OUT, S_DBG)
        if first is not False:
            self.a("s_waitcnt lgkmcnt(0)")
        self.srds(lst if first is None else (lst[:1] if first else lst[1:]))

    def producer(self, sfx, generic):
        a = self.a
        ws = self.o["ws"]
        W, Z, K = 8, 24, 28
        OA, NB_, IX = 36, 44, 48
        VL, VA, VI, VM0, VM1, VSEL, CJ = 50, 51, 52, 53, 54, 55, 56
        F0, F1, H, U, T0, T1, T2, VLI, VA2, VLD, VLR = 58, 59, 60, 61, 62, 63, 64, 65, 66, 67, 57
        C = S_MASK
        SEL = S_MASK + 16
        CNT = S_MASK + 27
        ln = f"v{V_LANE}"
        a(f"s_and_b32 s{C}, s{S_TASK}, 3")
        a(f"s_lshr_b32 s{C+1}, s{S_TASK}, 2")
        a(f"s_sub_u32 s{C+2}, s{S_TASK}, 36")
        a(f"s_lshl_b32 s{C+3}, s{S_WAVE}, 4")
        a(f"s_lshl_b32 s{C+4}, s{C+2}, 1")
        a(f"s_lshl_b32 s{C+5}, s{C}, 8")
        a(f"s_cmp_lt_u32 s{S_TASK}, 36")
        a(f"s_cselect_b32 s{C+4}, s{C+1}, s{C+4}")
        a(f"s_cselect_b32 s{C+5}, s{C+5}, 1024")
        a(f"s_cselect_b32 s{C+6}, 8, 73728")
        a(f"s_cselect_b32 s{C+7}, 32, 8")
        a(f"s_cselect_b32 s{C+8}, 16, 32")
        a(f"s_cselect_b32 s{C+9}, 128, 64")
        a(f"s_mul_i32 s{C+4}, s{C+4}, 73728")
        a(f"s_mul_i32 s{C+10}, s{S_WAVE}, 18432")
        a(f"v_and_b32 v{F0}, 1, {ln}")
        a(f"v_bfe_u32 v{F1}, {ln}, 1, 1")
        a(f"v_bfe_u32 v{H}, {ln}, 2, 2")
        a(f"v_bfe_u32 v{T0}, {ln}, 4, 1")
        a(f"v_lshrrev_b32 v{T1}, 5, {ln}")
        a(f"v_lshl_add_u32 v{VL}, v{F0}, 2, s{C+4}")
        a(f"v_mad_u32_u24 v{VL}, v{F1}, s{C+6}, v{VL}")
        a(f"v_mad_u32_u24 v{VL}, v{H}, s{C+7}, v{VL}")
        a(f"v_mad_u32_u24 v{VL}, v{T0}, s{C+8}, v{VL}")
        a(f"v_mad_u32_u24 v{VL}, v{T1}, s{C+9}, v{VL}")
        a(f"v_add_u32 v{VL}, s{C+5}, v{VL}")
        a(f"v_add_u32 v{VL}, s{C+10}, v{VL}")
        a(f"v_add_u32 v{T0}, 4608, v{VL}")
        a(f"v_add_u32 v{T1}, 9216, v{VL}")
        a(f"v_add_u32 v{T2}, 13824, v{VL}")
        if not generic:
            self.entry_wait(first=True)
        for q in range(4):
            for j in range(4):
                a(f"buffer_load_dword v{W+4*q+j}, v{(VL, T0, T1, T2)[q]}, {sr(S_W,4)}, 0 offen offset:{1152*j}")
        if not generic:
            self.stamp(8)
            self.entry_wait(first=False)
            self.ptouch()
        a(f"s_mul_i32 s{C+4}, s{C}, 9")
        a(f"s_add_u32 s{C+4}, s{C+4}, s{C+1}")
        a(f"s_mul_i32 s{C+5}, s{C+4}, 9")
        a(f"s_mul_i32 s{C+6}, s{C+2}, 18")
        a(f"s_add_u32 s{C+6}, s{C+6}, 8")
        a(f"s_lshl_b32 s{C+7}, s{C+4}, 2")
        a(f"s_add_u32 s{C+7}, s{C+7}, s{S_WAVE}")
        a(f"s_lshl_b32 s{C+8}, s{C+2}, 2")
        a(f"s_add_u32 s{C+8}, s{C+8}, s{S_WAVE}")
        a(f"s_cmp_eq_u32 s{S_TASK}, 40")
        a(f"s_cselect_b32 s{C+9}, 0x100000, 9")
        a(f"s_cmp_lt_u32 s{S_TASK}, 36")
        a(f"s_cselect_b32 s{C+5}, s{C+5}, s{C+6}")
        a(f"s_cselect_b32 s{C+6}, 2, 81")
        a(f"s_cselect_b32 s{C+9}, 1, s{C+9}")
        a(f"s_cselect_b32 s{C+7}, s{C+7}, s{C+8}")
        a(f"s_mov_b32 s{C+8}, {I_OFF}")
        a(f"s_cselect_b32 s{C+8}, s{C+8}, {I8_OFF}")
        a(f"s_mov_b32 s{C+10}, {R1_OFF}")
        a(f"s_cselect_b32 s{C+10}, s{C+10}, {R8_OFF}")
        a(f"s_cselect_b32 s{C+11}, 16, 4")
        a(f"s_cselect_b32 s{C+12}, 4, 64")
        a(f"s_cselect_b32 s{C+13}, 12, 11")
        a(f"s_cselect_b32 s{C+14}, 1, 0x8001")
        a(f"v_lshrrev_b32 v{U}, 4, {ln}")
        a(f"v_lshlrev_b32 v{T0}, 1, v{F0}")
        a(f"v_lshl_add_u32 v{H}, v{H}, 2, v{T0}")
        a(f"v_add_u32 v{T0}, v{H}, v{F1}")
        a(f"v_mul_u32_u24 v{VA}, s{C+6}, v{U}")
        a(f"v_add_lshl_u32 v{VA}, v{VA}, s{C+5}, 6")
        a(f"v_add3_u32 v{VA}, v{VA}, v{T0}, s{C+3}")
        a(f"v_lshl_add_u32 v{VA}, v{VA}, 4, s{S_BASE}")
        a(f"s_lshl_b32 s{C+9}, s{C+9}, 10")
        a(f"v_add_u32 v{VA2}, s{C+9}, v{VA}")
        a(f"s_lshl_b32 s{C+4}, s{C+7}, 8")
        a(f"s_add_u32 s{C+4}, s{C+4}, s{C+8}")
        a(f"s_add_u32 s{C+4}, s{C+4}, s{S_BASE}")
        a(f"v_mul_u32_u24 v{VI}, s{C+11}, v{T0}")
        a(f"v_mad_u32_u24 v{VI}, v{U}, s{C+12}, v{VI}")
        a(f"v_lshl_add_u32 v{VM1}, {ln}, 2, s{C+4}")
        if not generic:
            a(f"s_lshr_b32 s{C+4}, s{C+7}, 2")
            a(f"s_lshl_b32 s{C+4}, s{C+4}, 8")
            a(f"s_add_u32 s{C+10}, s{C+10}, s{C+4}")
            a(f"s_lshl2_add_u32 s{C+10}, s{C+3}, s{C+10}")
            a(f"s_lshl_b32 s{C+4}, s{C+3}, 1")
            a(f"s_add_u32 s{C+4}, s{C+4}, s{C+14}")
            a(f"v_lshl_add_u32 v{T0}, v{U}, 1, v{F1}")
            a(f"v_lshlrev_b32 v{T0}, s{C+13}, v{T0}")
            a(f"v_lshl_add_u32 v{VM0}, v{H}, 7, v{T0}")
            a(f"v_add_u32 v{VM0}, s{C+4}, v{VM0}")
            a(f"v_and_b32 v{T0}, 12, {ln}")
            a(f"v_and_b32 v{T1}, 15, {ln}")
            a(f"v_mad_u32_u24 v{T0}, v{T0}, 3, v{T1}")
            a(f"v_lshl_add_u32 v{T0}, v{T0}, 2, s{C+3}")
            a(f"v_mov_b32 v{VLD}, 0")
            a(f"ds_write_b32 v{T0}, v{VLD}")
            a(f"s_lshl2_add_u32 s{C+4}, s{S_TASK}, s{S_WAVE}")
            a(f"s_lshl_b32 s{C+4}, s{C+4}, 7")
            a(f"s_add_u32 s{C+4}, s{C+4}, {CNT_OFF - 64}")
            a(f"v_lshl_add_u32 v{VLI}, {ln}, 2, s{C+10}")
            a(f"v_lshl_add_u32 v{T0}, {ln}, 2, s{C+4}")
            a(f"v_cmp_gt_u32 vcc, 16, {ln}")
            a(f"s_lshl_b32 s{C+4}, s{C+3}, 2")
            a(f"v_lshl_add_u32 v{VLR}, {ln}, 2, s{C+4}")
            a(f"v_cndmask_b32 v{VLI}, v{T0}, v{VLI}, vcc")
            if self.o["sig"] == 3:
                self.mb_addr(C + 4, C + 5)
                a(f"s_sub_u32 s{C+4}, s{C+4}, 192")
                a(f"v_cmp_gt_u32 vcc, 48, {ln}")
                a(f"v_lshl_add_u32 v{T0}, {ln}, 2, s{C+4}")
                a("s_nop 0")
                a(f"v_cndmask_b32 v{VLI}, v{T0}, v{VLI}, vcc")
            a(f"s_mov_b32 s{CNT}, 0")
            a(f"s_mov_b32 s{SEL+9}, 0x05060100")
            a(f"s_mov_b32 s{SEL+10}, 0xffff")
        a(f"v_mov_b32 v{VSEL}, 0x05040100")
        a(f"v_mov_b32 v{T0}, 0x03020706")
        a(f"v_cmp_eq_u32 vcc, 1, v{F1}")
        CJ, EF, EO = 68, 76, 82
        for n in range(8):
            a(f"v_mov_b32 v{CJ+n}, {hex(0x0f0a0500 | 0x01010101 * (((n >> 1) << 4) | ((n & 1) << 7)))}")
        a(f"v_cndmask_b32 v{VSEL}, v{VSEL}, v{T0}, vcc")
        if not generic:
            for r in range(3):
                a(f"v_mov_b64 {vr(EF+2*r,2)}, 0")
            a(f"v_mov_b32 v{EO}, 0")
        for c in range(2):
            for j in range(4):
                a(f"s_mov_b32 s{SEL+4*c+j}, {hex(((5+2*c) << 24) | ((4+2*c) << 16) | ((5+2*c) << 8) | j)}")
        a(f"s_mov_b32 s{SEL+8}, 0x05060102")
        if generic:
            a(f"s_cmp_lg_u32 s{S_MODE}, 0")
        sw = "src0_sel:WORD_1 src1_sel:WORD_1"
        for q in range(4):
            a(f"s_waitcnt vmcnt({12-4*q + (2 if self.o['ptouch'] and not generic else 0)})")
            if q in (0, 3) and not generic:
                self.stamp(9 + q // 3)
            for c in range(2):
                n = 2 * q + c
                for j in range(4):
                    a(f"v_perm_b32 v{Z+j}, v{W+4*q+j}, v{CJ+n}, s{SEL+4*c+j}")
                a(f"v_max3_f32 v{K}, |v{Z}|, |v{Z+1}|, |v{Z+2}|")
                a(f"v_med3_f32 v{K+1}, |v{Z}|, |v{Z+1}|, |v{Z+2}|")
                a(f"v_min3_f32 v{K+2}, |v{Z}|, |v{Z+1}|, |v{Z+2}|")
                a(f"v_med3_f32 v{K+4}, v{K}, v{K+1}, |v{Z+3}|")
                a(f"v_med3_f32 v{K+5}, v{K+1}, v{K+2}, |v{Z+3}|")
                a(f"v_max_f32 v{K+3}, v{K}, |v{Z+3}|")
                if generic:
                    a(f"v_cmp_eq_u32_sdwa vcc, v{K+5}, v{K+4} {sw}")
                    a(f"s_cbranch_scc0 L_rb{n}{sfx}")
                    a(f"v_min_f32 v{K+2}, v{K+2}, |v{Z+3}|")
                    a(f"v_cndmask_b32 v{K+3}, 0, v{K+5}, vcc")
                    a(f"v_cmp_eq_u32_sdwa vcc, v{K+2}, v{K+4} {sw}")
                    a("s_nop 1")
                    a(f"v_cndmask_b32 v{K+4}, 0, v{K+2}, vcc")
                    a(f"L_rb{n}{sfx}:")
                a(f"v_perm_b32 v{OA+4*c+q}, v{K+3}, v{K+4}, s{SEL+8}")
                nb = NB_ + 2 * c + (q >> 1)
                if q & 1 == 0:
                    a(f"v_bfi_b32 v{nb}, 3, v{K+4}, v{K+3}")
                else:
                    a(f"v_bfi_b32 v{K+3}, 3, v{K+4}, v{K+3}")
                    a(f"v_lshlrev_b32 v{K+3}, 4, v{K+3}")
                    a(f"v_bfi_b32 v{nb}, 15, v{nb}, v{K+3}")
                if not generic:
                    a(f"v_cmpx_eq_u32_sdwa vcc, v{K+5}, v{K+4} {sw}")
                    if n >= 3:
                        a(f"v_or_b32 v{EO}, v{EO}, v{EF+4}")
                    if n >= 2:
                        a(f"v_mov_b64 {vr(EF+4,2)}, {vr(EF+2,2)}")
                    if n >= 1:
                        a(f"v_mov_b64 {vr(EF+2,2)}, {vr(EF,2)}")
                    a(f"v_mov_b32 v{EF}, v{K+5}")
                    a(f"v_min_f32 v{EF+1}, v{K+2}, |v{Z+3}|")
                    a("s_mov_b64 exec, -1")
        x2 = "quad_perm:[2,3,0,1] row_mask:0xf bank_mask:0xf"
        a("s_mov_b32 vcc_lo, 0x33333333")
        a("s_mov_b32 vcc_hi, 0x33333333")
        for d in range(4):
            a(f"v_cndmask_b32_dpp v{Z+d}, v{OA+4+d}, v{OA+d}, vcc {x2}")
        a("s_not_b64 vcc, vcc")
        a(f"buffer_store_dwordx4 {vr(Z,4)}, v{VA}, {sr(S_WS,4)}, 0 offen {ws}")
        for d in range(4):
            a(f"v_cndmask_b32_dpp v{OA+4+d}, v{OA+d}, v{OA+4+d}, vcc {x2}")
        a(f"s_mov_b32 s{C+4}, 0x0c0c0400")
        a(f"s_mov_b32 s{C+5}, 0x04000c0c")
        a(f"buffer_store_dwordx4 {vr(OA+4,4)}, v{VA2}, {sr(S_WS,4)}, 0 offen {ws}")
        a(f"v_perm_b32 v{IX}, v{NB_+1}, v{NB_}, s{C+4}")
        a(f"v_perm_b32 v{IX+1}, v{NB_+3}, v{NB_+2}, s{C+5}")
        a(f"v_or_b32 v{IX}, v{IX}, v{IX+1}")
        a("s_nop 1")
        a(f"v_mov_b32_dpp v{IX+1}, v{IX} quad_perm:[2,3,0,1] row_mask:0xf bank_mask:0xf")
        a(f"v_perm_b32 v{IX}, v{IX+1}, v{IX}, v{VSEL}")
        a(f"ds_permute_b32 v{IX}, v{VI}, v{IX}")
        if generic:
            a("s_waitcnt lgkmcnt(0)")
            a(f"buffer_store_dword v{IX}, v{VM1}, {sr(S_WS,4)}, 0 offen {ws}")
        if not generic:
            self.stamp(11)
            a(f"v_cmp_lt_u32 {sr(C+6,2)}, s{SEL+10}, v{EO}")
            a(f"L_emit{sfx}:")
            a(f"v_cmp_lt_u32 vcc, s{SEL+10}, v{EF}")
            a(f"v_cmp_eq_u32_sdwa {sr(C,2)}, v{EF+1}, v{EF} {sw}")
            a(f"v_perm_b32 v{T1}, v{EF}, v{VM0}, s{SEL+9}")
            a(f"v_bfe_u32 v{T0}, v{EF}, 2, 4")
            a(f"v_and_b32 v{T2}, 0x80, v{EF}")
            a(f"v_lshl_add_u32 v{T1}, v{T0}, 1, v{T1}")
            a(f"v_mbcnt_lo_u32_b32 v{T0}, vcc_lo, 0")
            a(f"v_mbcnt_hi_u32_b32 v{T0}, vcc_hi, v{T0}")
            a(f"v_add_u32 v{T1}, v{T2}, v{T1}")
            a(f"v_add_u32 v{T0}, s{CNT}, v{T0}")
            a(f"s_bcnt1_i32_b64 s{C+4}, vcc")
            a(f"s_add_u32 s{CNT}, s{CNT}, s{C+4}")
            a(f"v_cmp_gt_u32 {sr(C+4,2)}, 15, v{T0}")
            a(f"v_and_b32 v{T2}, 12, v{T0}")
            a(f"v_mad_u32_u24 v{T0}, v{T2}, 3, v{T0}")
            a(f"v_lshl_add_u32 v{T0}, v{T0}, 2, s{C+3}")
            a(f"s_and_b64 {sr(C,2)}, {sr(C,2)}, vcc")
            a(f"s_and_b64 exec, {sr(C+4,2)}, vcc")
            a(f"ds_write_b32 v{T0}, v{T1}")
            a(f"s_mov_b64 exec, {sr(C,2)}")
            a(f"v_mov_b32 v{EF}, v{EF+1}")
            a(f"v_mov_b32 v{EF+1}, 0")
            a(f"s_not_b64 exec, exec")
            a(f"v_mov_b64 {vr(EF,2)}, {vr(EF+2,2)}")
            a(f"v_mov_b64 {vr(EF+2,2)}, {vr(EF+4,2)}")
            a(f"v_mov_b64 {vr(EF+4,2)}, 0")
            a("s_mov_b64 exec, -1")
            a(f"v_or3_b32 v{T0}, v{EF}, v{EF+2}, v{EF+4}")
            a(f"v_cmp_lt_u32 vcc, s{SEL+10}, v{T0}")
            a(f"s_cmp_lg_u64 {sr(C+6,2)}, 0")
            a(f"s_cselect_b32 s{C+4}, 99, s{CNT}")
            a(f"s_cmp_gt_u32 s{C+4}, 15")
            a(f"s_cselect_b32 s{C+4}, -1, 0")
            a(f"v_mov_b32 v{T1}, s{C+3}")
            a(f"s_cbranch_vccnz L_emit{sfx}")
            a(f"v_mov_b32 v{T0}, s{C+4}")
            a(f"ds_write_b32 v{T1}, v{T0} offset:204")
            if self.o["sig"] == 4:
                a(f"v_lshlrev_b32 v{W+3}, 4, v{T1}")
            a("s_waitcnt lgkmcnt(0)")
            a("s_barrier")
            a("s_mov_b64 exec, 0xffff")
            a(f"ds_read_b32 v{VLD}, v{VLR}")
            a("s_mov_b64 exec, -1")
            a(f"buffer_store_dword v{IX}, v{VM1}, {sr(S_WS,4)}, 0 offen {ws}")
            if self.o["sig"] != 3:
                a("s_mov_b32 exec_hi, 0xffff")
            a("s_waitcnt lgkmcnt(0)")
            a(f"buffer_store_dword v{VLD}, v{VLI}, {sr(S_WS,4)}, 0 offen {ws}")
            if self.o["sig"] == 4:
                a("s_mov_b64 exec, 1")
                a(f"buffer_load_dword v{W}, v{W+3}, {sr(S_DBG,4)}, 0 offen sc1")
            a("s_mov_b64 exec, -1")
            if self.o["sig"] == 4:
                a(f"s_lshl_b32 s{C+4}, s{S_TASK}, 7")
                a(f"s_add_u32 s{C+4}, s{C+4}, {FL_OFF}")
                a(f"v_lshl_add_u32 v{W+1}, {ln}, 2, s{C+4}")
                a(f"v_mov_b32 v{W+2}, 1")
            self.stamp(12)
        a("s_waitcnt vmcnt(0)")
        if not generic:
            self.stamp(13)

    def lane_setup(self):
        a = self.a
        ln = f"v{V_LANE}"
        T0, T1, T2 = 72, 73, 74
        a(f"v_lshrrev_b32 v{T0}, 3, {ln}")
        a(f"v_and_b32 v{T1}, 7, {ln}")
        a(f"v_xor_b32 v{T1}, v{T1}, v{T0}")
        a(f"v_mul_u32_u24 v{T0}, 1152, v{T0}")
        a(f"s_and_b32 s{S_T0}, s{S_WAVE}, 1")
        a(f"s_mul_i32 s{S_T0}, s{S_T0}, 9216")
        a(f"s_lshr_b32 s{S_T1}, s{S_WAVE}, 1")
        a(f"s_lshl_b32 s{S_T1}, s{S_T1}, 7")
        a(f"s_add_u32 s{S_T0}, s{S_T0}, s{S_T1}")
        a(f"v_lshl_add_u32 v{T0}, v{T1}, 4, v{T0}")
        a(f"v_add_u32 v{V_DMA}, s{S_T0}, v{T0}")
        a(f"s_lshl_b32 s{S_M0B}, s{S_WAVE}, 10")
        if self.o["split"]:
            a(f"s_bitcmp1_b32 s2, 0")
            a(f"s_cselect_b32 s{S_XOFF}, 256, 1")
            a(f"s_add_u32 s{S_XOFF}, s{S_XOFF}, s2")
            a(f"s_mul_i32 s{S_XOFF}, s{S_XOFF}, {TB}")
        else:
            a(f"s_mul_i32 s{S_XOFF}, s2, {TB}")
        a(f"s_mov_b32 s{S_OOFF}, s{S_XOFF}")

    def lane_setup2(self):
        a = self.a
        ln = f"v{V_LANE}"
        T0, T1, T2 = 72, 73, 74
        a(f"v_and_b32 v{T0}, 15, {ln}")
        a(f"v_lshrrev_b32 v{T1}, 4, {ln}")
        a(f"v_and_b32 v{T2}, 7, {ln}")
        a(f"v_xor_b32 v{T2}, v{T2}, v{T1}")
        a(f"v_lshlrev_b32 v{T2}, 4, v{T2}")
        a(f"v_lshl_add_u32 v{V_RD0}, v{T0}, 7, v{T2}")
        a(f"v_xor_b32 v{V_RD1}, 64, v{V_RD0}")
        a(f"s_mul_i32 s{S_C0}, s{S_WAVE}, {WV_SZ}")
        a(f"s_add_u32 s{S_C0}, s{S_C0}, {L_WV}")
        a(f"v_lshl_add_u32 v{V_TAB}, v{T1}, 4, s{S_C0}")
        a(f"v_and_b32 v{T2}, 14, {ln}")
        a(f"v_mul_u32_u24 v{V_ST}, 1152, v{T2}")
        a(f"v_and_b32 v{T2}, 1, {ln}")
        a(f"v_lshl_add_u32 v{V_ST}, v{T2}, 4, v{V_ST}")
        a(f"v_lshl_add_u32 v{V_ST}, v{T1}, 5, v{V_ST}")
        a(f"s_lshl_b32 s{S_T0}, s{S_WAVE}, 8")
        a(f"v_add_u32 v{V_ST}, s{S_T0}, v{V_ST}")
        if self.o["hack"] == "q4":
            a(f"v_lshrrev_b32 v{T2}, 3, {ln}")
            a(f"v_mul_u32_u24 v{V_ST}, 2304, v{T2}")
            a(f"v_and_b32 v{T2}, 7, {ln}")
            a(f"v_lshl_add_u32 v{V_ST}, v{T2}, 4, v{V_ST}")
            a(f"v_add_u32 v{V_ST}, s{S_T0}, v{V_ST}")
        a(f"s_lshl_b32 s{S_T0}, s{S_WAVE}, 5")
        a(f"s_add_u32 s{S_T0}, s{S_T0}, 1024")
        if self.o["bperm"]:
            a(f"v_lshrrev_b32 v{T0}, 2, {ln}")
            a(f"v_and_b32 v{T1}, 3, {ln}")
            a(f"v_lshl_add_u32 v{V_BP}, v{T1}, 4, v{T0}")
            a(f"v_lshlrev_b32 v{V_BP}, 2, v{V_BP}")
        else:
            a(f"v_lshlrev_b32 v{V_BP}, 2, {ln}")
        a(f"v_mul_u32_u24 v{V_ST8}, 1152, v{T0}")
        a(f"v_lshl_add_u32 v{V_ST8}, v{T1}, 3, v{V_ST8}")
        a(f"v_add_u32 v{V_ST8}, s{S_T0}, v{V_ST8}")
        a(f"s_mov_b32 s{S_EVEN}, 0x55555555")
        a(f"s_mov_b32 s{S_EVEN+1}, 0x55555555")
        a(f"s_mov_b32 s{S_ODD}, 0xaaaaaaaa")
        a(f"s_mov_b32 s{S_ODD+1}, 0xaaaaaaaa")

    def dma_setup(self):
        a = self.a
        a(f"s_lshr_b32 s{S_T0}, s{S_WAVE}, 1")
        a(f"s_lshl_b32 s{S_T1}, s{S_T0}, 11")
        a(f"s_sub_u32 s{S_M05}, {16384-896}, s{S_T1}")
        a(f"s_lshl_b32 s{S_T1}, s{S_T0}, 7")
        a(f"s_add_u32 s{S_XOFF5}, s{S_XOFF}, 128")
        a(f"s_sub_u32 s{S_XOFF5}, s{S_XOFF5}, s{S_T1}")
        a(f"s_sub_u32 s{S_HALF}, s{S_T0}, 1")
        a(f"s_sub_u32 s{S_HALF+1}, 0, s{S_T0}")
        a(f"s_mov_b32 s{S_M0W}, s{S_M0B}")
        a(f"s_mov_b32 s{S_XINC}, {256*TB}")
        if self.o["split"]:
            a(f"s_bitcmp1_b32 s2, 0")
            a(f"s_cselect_b32 s{S_XINC}, s{S_XINC}, {-TB}")
            a(f"s_cselect_b32 s{S_NT}, 15, 17")
        else:
            a(f"s_mov_b32 s{S_NT}, 16")
        a(f"s_mov_b32 s{S_OINC2}, s{S_XINC}")

    def dma_advance(self, first=False):
        x = [] if first else [f"s_add_u32 s{S_XOFF}, s{S_XOFF}, {256*TB}", f"s_add_u32 s{S_XOFF5}, s{S_XOFF5}, {256*TB}",
                              f"s_add_u32 s{S_M0B}, s{S_M0B}, s{S_CTB}"]
        return x + [f"s_cmp_ge_u32 s{S_M0B}, {NB*TBL}", f"s_cselect_b32 s{S_M0B}, s{S_M0W}, s{S_M0B}"]

    def dma_tile(self, ld=None):
        a = self.a
        ld = self.o["ld"] if ld is None else ld
        for j in range(5):
            a(f"s_add_u32 m0, s{S_M0B}, {3840*j if j < 4 else 's%d' % S_M05}")
            a("s_nop 0" if j < 4 else f"s_mov_b64 exec, {sr(S_HALF,2)}")
            a(f"buffer_load_dwordx4 v{V_DMA}, {sr(S_X,4)}, s{S_XOFF if j < 4 else S_XOFF5} offen offset:{256*j if j < 4 else 896} {ld} lds")
        a("s_mov_b64 exec, -1")

    def prefetch(self, sh, lab="L_pf"):
        a = self.a
        a(f"s_bfe_u32 s{S_NB0}, s{S_DMASK}, {hex(4 << 16 | sh)}")
        if sh == 20 and self.o["pfw"]:
            k, n, ka, kp = self.o["pfw"]
            a(f"s_mov_b32 s{S_T1}, {k*TBL}")
            a(f"s_cmp_ge_u32 s{S_NB0}, 6")
            a(f"s_cselect_b32 s{S_T1}, s{S_T1}, {ka*TBL}")
            a(f"s_cmp_ge_u32 s{S_TASK}, {NTASK}")
            a(f"s_cselect_b32 s{S_T1}, s{S_T1}, {kp*TBL}")
        if sh != 20 and self.n2min == 0:
            a(f"s_cbranch_scc0 {lab}_e")
        a(f"{lab}:")
        self.dma_tile(self.o["ldp"] if sh == 20 else None)
        if sh == 20 and self.o["sig"] == 4 and self.o["fused"]:
            a(f"s_cmp_lg_u32 s{S_M0B}, {(min(3, self.premin)-1)*TBL}")
            a(f"s_cbranch_scc1 {lab}_f")
            a("s_mov_b64 exec, 1")
            a(f"buffer_load_dword v124, off, {sr(S_DBG,4)}, 0 sc1")
            a("s_mov_b64 exec, -1")
            a(f"{lab}_f:")
        if sh == 20 and self.o["pfw"]:
            n = self.o["pfw"][1]
            a(f"s_cmp_ge_u32 s{S_M0B}, s{S_T1}")
            a(f"s_cbranch_scc1 {lab}_n")
            a(f"s_waitcnt vmcnt({n})")
            a(f"{lab}_n:")
        a(f"s_add_u32 s{S_XOFF5}, s{S_XOFF5}, s{S_XINC}")
        a(f"s_add_u32 s{S_M0B}, s{S_M0B}, {TBL}")
        a(f"s_add_u32 s{S_XOFF}, s{S_XOFF}, s{S_XINC}")
        a(f"s_mov_b32 s{S_XINC}, {256*TB}")
        a(f"s_sub_u32 s{S_NB0}, s{S_NB0}, 1")
        a(f"s_cmp_lg_u32 s{S_NB0}, 0")
        a(f"s_cbranch_scc1 {lab}")
        a(f"{lab}_e:")

    def bias_load(self):
        a = self.a
        ln = f"v{V_LANE}"
        a(f"v_and_b32 v80, 3, {ln}")
        a(f"v_bfe_u32 v81, {ln}, 2, 2")
        a(f"v_bfe_u32 v82, {ln}, 4, 1")
        a("v_lshlrev_b32 v81, 3, v81")
        a("v_lshl_add_u32 v81, v80, 5, v81")
        a("v_lshl_add_u32 v81, v82, 7, v81")
        a(f"s_lshl_b32 s{S_T0}, s{S_WAVE}, 8")
        a(f"v_add_u32 v81, s{S_T0}, v81")
        a(f"s_lshl_b32 s{S_T0}, s{S_WAVE}, 5")
        a(f"s_add_u32 s{S_T0}, s{S_T0}, 1024")
        a(f"v_lshl_add_u32 v80, v80, 3, s{S_T0}")
        a(f"v_cmp_gt_u32 vcc, 32, {ln}")
        a("s_nop 1")
        a("v_cndmask_b32 v80, v80, v81, vcc")
        a(f"buffer_load_dwordx2 v[110:111], v80, {sr(S_B,4)}, 0 offen")

    def tables_init(self):
        a = self.a
        ln = f"v{V_LANE}"
        a(f"v_lshl_add_u32 v109, {ln}, 4, s{S_C0}")
        a(f"v_lshl_add_u32 v89, {ln}, 2, s{S_C0}")
        for r in range(4):
            a(f"v_mov_b32 v{76+r}, 0")
        a("v_mov_b32 v90, 0xdddddddd")
        a("ds_write_b128 v109, v[76:79]")
        for r in range(7):
            a(f"ds_write_b32 v89, v90 offset:{O_IDX+256*r}")
        a(f"s_lshl_b32 s{S_T0}, s{S_WAVE}, 2")
        a(f"s_add_u32 s{S_T0}, s{S_T0}, {L_PL + 256}")
        a(f"v_mov_b32 v88, s{S_T0}")
        a("ds_write_b32 v88, v76")

    def bias_store(self):
        return ["v_lshlrev_b32 v114, 16, v110", "v_and_b32 v115, 0xffff0000, v110", "v_lshlrev_b32 v116, 16, v111",
                "v_and_b32 v117, 0xffff0000, v111", "s_mov_b32 exec_hi, 15", f"ds_write_b128 v109, v[114:117] offset:{O_BIAS}",
                "s_mov_b64 exec, -1"]

    def wload_list(self, VA, VI8, pairs=False):
        wl = self.o["wl"]
        G = []
        so = S_C0 + 6
        cur = None
        for sp in range(5):
            g = []
            if sp == 4:
                g.append(f"s_mov_b32 s{so}, 4096")
            g.append(f"buffer_load_dword v{V_I8+sp}, v{VI8}, {sr(S_WS,4)}, {'s%d' % so if sp == 4 else '0'} offen offset:{1024*(sp%4)} {wl}")
            G.append(g)
        order = [(s, t) for s in range(9) for t in [None] + list(range(9))]
        if pairs:
            order = order[:70] + [(7, None), (8, None)] + [(s, t) for t in PEEL_T for s in (7, 8)]
        for s, t in order:
            if t is None:
                G.append([f"s_mov_b32 s{so-1}, {1024*s}",
                          f"buffer_load_dwordx4 {vr(V_I+4*s,4)}, v{VA+1}, {sr(S_WS,4)}, s{so-1} offen {wl}"])
            else:
                f = 9 * s + t
                g = []
                if cur != f >> 2:
                    cur = f >> 2
                    g.append(f"s_mov_b32 s{so}, {4096*cur}")
                g.append(f"buffer_load_dwordx4 {afrag(s,t)}, v{VA}, {sr(S_WS,4)}, s{so} offen offset:{1024*(f&3)} {wl}")
                G.append(g)
        return G

    def waddr(self, VA, VI8):
        a = self.a
        ln = f"v{V_LANE}"
        a(f"s_mul_i32 s{S_T0}, s{S_WAVE}, 82944")
        a(f"s_add_u32 s{S_T0}, s{S_T0}, s{S_BASE}")
        a(f"v_lshl_add_u32 v{VA}, {ln}, 4, s{S_T0}")
        a(f"s_mul_i32 s{S_T0}, s{S_WAVE}, 9216")
        a(f"s_add_u32 s{S_T0}, s{S_T0}, s{S_BASE}")
        a(f"s_add_u32 s{S_T0}, s{S_T0}, {I_OFF}")
        a(f"v_lshl_add_u32 v{VA+1}, {ln}, 4, s{S_T0}")
        a(f"s_lshl_b32 s{S_T0}, s{S_WAVE}, 6")
        a(f"s_add_u32 s{S_T0}, s{S_T0}, s{S_BASE}")
        a(f"s_add_u32 s{S_T0}, s{S_T0}, {I8_OFF}")
        a(f"v_and_b32 v{VI8}, 15, {ln}")
        a(f"v_lshl_add_u32 v{VI8}, v{VI8}, 2, s{S_T0}")
        a(f"v_lshrrev_b32 v{VI8+1}, 4, {ln}")
        a(f"v_lshl_add_u32 v{VI8}, v{VI8+1}, 8, v{VI8}")

    def build(self):
        a = self.a
        o = self.o
        ln = f"v{V_LANE}"
        wl = o["wl"]
        VA, VI8 = (112 if o["peel"] else 104), 106
        E, TT, RK, ST = 8, 24, 40, 56
        T0, T1, T2, T3 = 72, 73, 74, 75
        WARM = 76
        ONE, VW, KB, VST, RX, VWARM, CM, CV, TM, TBS, HI, AB, BM, VH, VK, LO = range(88, 104)
        SW = S_C0
        a(f"s_mul_i32 s{S_T0}, s{S_WAVE}, 2304")
        a(f"s_add_u32 s{S_T0}, s{S_T0}, {R1_OFF}")
        a(f"v_and_b32 v{T1}, 60, {ln}")
        a(f"v_mad_u32_u24 v{T1}, v{T1}, 3, {ln}")
        a(f"v_lshl_add_u32 v{T0}, v{T1}, 4, s{S_T0}")
        a(f"s_mov_b32 s{S_T0}, {R8_OFF - 36*64}")
        a(f"v_lshl_add_u32 v{T1}, v{T1}, 4, s{S_T0}")
        a(f"v_lshrrev_b32 v{T2}, 2, {ln}")
        a(f"v_cmp_gt_u32 vcc, 36, {ln}")
        a(f"v_lshlrev_b32 v{KB}, 11, v{T2}")
        a(f"v_subrev_u32 v{T2}, 9, v{T2}")
        a(f"v_lshlrev_b32 v{T2}, 12, v{T2}")
        a(f"v_cndmask_b32 v{T0}, v{T1}, v{T0}, vcc")
        a(f"v_cndmask_b32 v{KB}, v{T2}, v{KB}, vcc")
        a(f"s_lshl_b32 s{S_T0}, s{S_WAVE}, 12")
        a(f"s_add_u32 s{S_T0}, s{S_T0}, 0x8001")
        a(f"v_mov_b32 v{ONE}, 1")
        a(f"v_mov_b32 v{CM}, 0xf001")
        a(f"v_mov_b32 v{CV}, s{S_T0}")
        a(f"v_cndmask_b32 v{CM}, v{CM}, v{ONE}, vcc")
        a(f"v_cndmask_b32 v{CV}, v{CV}, v{ONE}, vcc")
        a(f"v_cndmask_b32 v{TM}, 0, 28, vcc")
        a(f"v_cndmask_b32 v{TBS}, 32, 0, vcc")
        a(f"v_add_u32 v{TBS}, s{SW}, v{TBS}")
        a(f"v_cmp_gt_u32 vcc, 56, {ln}")
        a(f"v_mov_b32 v{T1}, 0x40000000")
        tw = o["warm"] == 2
        a(f"s_lshr_b32 s{S_T0}, s2, {4 if tw else 3}")
        a(f"s_lshl_b32 s{S_T0}, s{S_T0}, 2")
        a(f"s_add_u32 s{S_T0}, s{S_T0}, s{S_WAVE}")
        a(f"s_mul_i32 s{S_T0}, s{S_T0}, {6144 if tw else 2944}")
        a(f"v_cndmask_b32 v{T0}, v{T1}, v{T0}, vcc")
        if tw:
            a(f"v_min_u32 v{VWARM}, 47, {ln}")
            a(f"v_lshl_add_u32 v{VWARM}, v{VWARM}, 7, s{S_T0}")
        else:
            a(f"v_lshl_add_u32 v{VWARM}, {ln}, 4, s{S_T0}")
        self.waddr(VA, VI8)
        a(f"v_and_b32 v{T2}, 15, {ln}")
        a(f"v_and_b32 v{T1}, 7, {ln}")
        a(f"v_lshlrev_b32 v{BM}, 1, v{T1}")
        a(f"v_lshlrev_b32 v{BM}, v{BM}, v{ONE}")
        a(f"v_lshlrev_b32 v{T1}, 4, v{T1}")
        a(f"v_lshl_add_u32 v{RX}, v{T2}, 7, v{T1}")
        a(f"v_lshl_or_b32 v{RX}, v{RX}, 16, v{RX}")
        a(f"v_lshrrev_b32 v{HI}, 5, {ln}")
        a(f"v_bfe_u32 v{AB}, {ln}, 3, 2")
        a(f"v_lshl_add_u32 v{AB}, v{AB}, 6, s{SW}")
        a(f"v_lshl_add_u32 v{VH}, {ln}, 1, s{SW}")
        a(f"v_lshrrev_b32 v{VK}, 4, {ln}")
        a(f"v_lshl_add_u32 v{VK}, v{VK}, 3, s{SW}")
        a(f"v_lshrrev_b32 v{LO}, 1, {ln}")
        a(f"v_lshlrev_b32 v{LO}, 5, v{LO}")
        a(f"s_mov_b32 s{S_LINK}, 0")
        pre = [f"buffer_load_dwordx4 {vr(E+4*r,4)}, v{T0}, {sr(S_WS,4)}, 0 offen offset:{64*r} {wl}" for r in range(4)]
        warm = [[f"buffer_load_dwordx4 {vr(WARM+4*r,4)}, v{VWARM}, {sr(S_WS,4)}, 0 offen offset:{1024*r} {wl}"] for r in range(3)] if o["warm"] else []
        if tw:
            warm = [[f"buffer_load_dword v{WARM}, v{VWARM}, {sr(S_WS,4)}, 0 offen {wl}"]]
        C = []
        g = lambda *x: C.append(list(x))

        def rank(r):
            m = S_MASK + 2 * r
            return [f"v_and_b32 v{T1}, v{CM}, v{E+r}", f"v_lshrrev_b32 v{T0}, 10, v{E+r}", f"v_cmp_eq_u32 {sr(m,2)}, v{T1}, v{CV}",
                    f"v_and_or_b32 v{TT+r}, v{T0}, v{TM}, v{TBS}",
                    f"s_mov_b64 exec, {sr(m,2)}", f"ds_add_rtn_u32 v{RK+r}, v{TT+r}, v{ONE}", "s_mov_b64 exec, -1"]

        def place(r):
            m = S_MASK + 2 * r
            return [f"v_add_u32 v{T1}, v{RK+r}, v{ST+r}", f"v_and_b32 v{T0}, 0x87e, v{E+r}", f"v_lshl_add_u32 v{T1}, v{T1}, 1, s{SW}",
                    f"v_add_u32 v{T0}, v{KB}, v{T0}", f"s_andn2_b64 exec, {sr(m,2)}, {sr(S_BAD,2)}",
                    f"ds_write_b16_d16_hi v{T1}, v{E+r} offset:{O_X}", f"ds_write_b16 v{T1}, v{T0} offset:{O_K}",
                    f"ds_write_b16 v{T1}, v{E+r} offset:{O_M}", "s_mov_b64 exec, -1"]
        g("@WAIT_E")
        g(f"v_cmp_ne_u32 {sr(S_BAD,2)}, 0, v{E+15}", f"v_cmp_ne_u32 {sr(S_MORE,2)}, 0, v{E+8}")
        for r in range(8):
            g(*rank(r))
        g(f"s_cmp_lg_u64 {sr(S_MORE,2)}, 0", "s_cbranch_scc1 L_more1", "L_more1b:", f"ds_read_b32 v{T0}, v{VW}", f"v_mov_b32 v{T1}, 0")
        self.tailblocks.append("\n".join(["L_more1:"] + [x for r in range(8, 15) for x in rank(r)] + ["s_branch L_more1b"]))
        g("s_waitcnt lgkmcnt(0)", f"s_mov_b64 vcc, {sr(S_EVEN,2)}",
          f"v_cndmask_b32_dpp v{T1}, v{T0}, v{T1}, vcc quad_perm:[0,0,2,2] row_mask:0xf bank_mask:0xf",
          f"v_add_u32 v{VST}, v{LO}, v{T1}", f"v_add_u32 v{T1}, v{T0}, v{T1}", f"v_cmp_lt_u32 vcc, 32, v{T1}",
          f"s_or_b32 s{S_BAD}, s{S_BAD}, s{S_BAD+1}", f"s_and_b32 s{S_T0}, vcc_lo, 0x1ff", f"s_or_b32 s{S_T0}, s{S_T0}, s{S_BAD}",
          "s_cbranch_scc1 L_greedy", "L_greedyb:")
        x = ["L_greedy:", f"s_mov_b32 s{S_T0}, 0", f"s_mov_b32 s{S_LINK}, 1"]
        for t in range(9):
            lo = 32 * (t >> 1)
            x += [f"v_readlane_b32 s{S_T1}, v{T0}, {t}", f"s_max_u32 s{S_T0}, s{S_T0}, {lo}",
                  f"v_writelane_b32 v{VST}, s{S_T0}, {t}", "s_nop 1", f"s_add_u32 s{S_T0}, s{S_T0}, s{S_T1}",
                  f"s_cmp_gt_u32 s{S_T0}, {lo + (64 if t & 1 else 32)}", f"s_cselect_b32 s{S_BAD}, 1, s{S_BAD}"]
        x += [f"s_cmp_lg_u32 s{S_BAD}, 0", f"s_cselect_b64 {sr(S_BAD,2)}, -1, 0",
              f"v_mov_b32 v{T1}, {L_PL + 256}", f"s_mov_b64 exec, {sr(S_BAD,2)}", f"ds_write_b32 v{T1}, v{ONE}", "s_mov_b64 exec, -1",
              "s_branch L_greedyb"]
        self.tailblocks.append("\n".join(x))
        g(*[f"ds_bpermute_b32 v{ST+r}, v{TT+r}, v{VST}" for r in range(8)])
        for r in range(8):
            g(*([f"s_waitcnt lgkmcnt({(7, 9, 11, 13, 15, 15, 15, 15)[r] if r else 7})"] if r < 8 else []), *place(r))
        g(f"s_cmp_lg_u64 {sr(S_MORE,2)}, 0", "s_cbranch_scc1 L_more2", "L_more2b:",
          *[f"ds_read_u16 v{E+r}, v{VH} offset:{O_M+128*r}" for r in range(3)],
          *[f"ds_read2_b64 {vr(V_AD+4*j,4)}, v{VK} offset0:{(O_K+64*j)//8} offset1:{(O_K+64*j+32)//8}" for j in range(5)])
        self.tailblocks.append("\n".join(["L_more2:"] + [f"ds_bpermute_b32 v{ST+r}, v{TT+r}, v{VST}" for r in range(8, 15)] + ["s_waitcnt lgkmcnt(0)"]
                                         + [x for r in range(8, 15) for x in place(r)] + ["s_branch L_more2b"]))
        for r in range(3):
            g(*(["s_waitcnt lgkmcnt(5)"] if r == 0 else []),
              f"v_lshrrev_b32 v{T0}, 12, v{E+r}", f"v_cmp_ne_u32 vcc, 0, v{E+r}", f"v_min_u32 v{T0}, 8, v{T0}", f"v_add3_u32 v{T0}, v{T0}, v{HI}, {2*r}",
              f"v_lshlrev_b32 v{T1}, 4, v{T0}", f"v_lshrrev_b32 v{T0}, 1, v{T0}")
            g(f"v_lshlrev_b32 v{T1}, v{T1}, v{BM}", f"v_lshl_add_u32 v{T0}, v{T0}, 8, v{AB}", f"v_bfe_u32 v{T2}, v{E+r}, 7, 4",
              f"v_lshl_add_u32 v{T0}, v{T2}, 2, v{T0}", "s_mov_b64 exec, vcc", *(["s_mov_b32 exec_hi, 0"] if r == 2 else []),
              f"ds_xor_b32 v{T0}, v{T1} offset:{O_IDX}", "s_mov_b64 exec, -1")
        g(*[f"ds_read_b32 v{V_IR+r}, v{VW} offset:{O_IDX+256*r}" for r in range(7)])
        for j in range(5):
            g(*(["s_waitcnt lgkmcnt(10)"] if j == 0 else []), *[f"v_xor_b32 v{V_AD+4*j+q}, v{RX}, v{V_AD+4*j+q}" for q in range(4)])
        g(*self.bias_store())
        return pre, C, warm + self.wload_list(VA, VI8, o['peel'])

    def emit_build(self, pre, C, G):
        a = self.a
        for x in pre:
            a(x)
        nl = 0
        G = list(G)
        G0 = list(G)

        def load(n=1):
            nonlocal nl
            for _ in range(n):
                if G:
                    for x in G.pop(0):
                        a(x)
                    nl += 1
        acc = 0
        for grp in C:
            if grp[0] == "@WAIT_E":
                load(self.o["l0"])
                a(f"s_waitcnt vmcnt({nl})")
                continue
            if grp[0] in ("s_waitcnt lgkmcnt(0)", "s_waitcnt lgkmcnt(7)", "s_waitcnt lgkmcnt(5)"):
                load(self.o["lw"])
            for x in grp:
                a(x)
            acc += len(grp)
            while acc >= self.o["lper"]:
                acc -= self.o["lper"]
                load()
        if self.o["peel"]:
            self.issued, self.pending = G0[:len(G0) - len(G)], G
            return
        load(len(G) - self.o["ltail"])
        assert len(G) == self.o["ltail"]
        self.late_loads = [x for grp in G for x in grp]

    @staticmethod
    def regs(txt):
        k, body = txt[0], txt[1:].strip("[]")
        lo, hi = (body.split(":") + [body])[:2]
        return [(256 if k == "a" else 0) + r for r in range(int(lo), int(hi) + 1)]

    def emit_line(self, ops, vm, hist=()):
        a = self.a
        lds, hist = [], list(hist)

        def put(op):
            a(op.text)
            hist.append(op)
        for op in ops:
            touched = op.rd | op.wr
            for q, name, cap in ((lds, "lgkmcnt", 15), (vm, "vmcnt", self.o["vcap"])):
                hit = [i for i, w in enumerate(q) if w & touched]
                if hit:
                    n = min(len(q) - 1 - hit[-1], cap)
                    put(Op(f"s_waitcnt {name}({n})", "salu"))
                    del q[:len(q) - n]
            need = 0
            for d, p in enumerate(reversed(hist[-9:])):
                ws = sum(int(x.text[6:]) + 1 if x.text.startswith("s_nop") else 1 for x in hist[len(hist) - d:])
                r = 0
                if p.kind == "mx" and op.kind != "mx" and (p.wr & touched):
                    r = 8
                if p.kind in ("valu", "dpp") and op.kind in ("mx", "dpp") and (p.wr & op.rd):
                    r = 2
                if p.kind == "st" and (p.rd & op.wr):
                    r = 2
                need = max(need, r - ws)
            if need > 0:
                put(Op(f"s_nop {need-1}", "salu"))
            put(op)
            if op.kind == "lds":
                lds.append(op.wr)
            if op.kind in ("ld", "st"):
                vm.append(op.wr)

    def peel(self):
        o = self.o
        AX = V_BR
        acc = lambda m, t: (AX if m == 0 else V_ACC) + 4 * t
        Ba, Bb, Bc, Bd = (V_B + 8 * k for k in range(4))
        dst = lambda g: set(self.regs(g[-1].split()[1].rstrip(",")))
        vm = [dst(g) for g in self.issued]
        loads = [[Op(x, "salu") for x in g[:-1]] + [Op(g[-1], "ld", wr=dst(g))] for g in self.pending]

        def M(m, s, t, b):
            ir, h = aidx(s, t)
            return Op(f"v_smfmac_f32_16x16x64_bf16 {vr(acc(m,t),4)}, {afrag(s,t)}, {vr(b,8)}, v{ir}" + (" abid:1" if h else ""), "mx",
                      rd=list(rng(acc(m, t), 4)) + list(rng(b, 8)) + self.regs(afrag(s, t)) + [ir], wr=rng(acc(m, t), 4))

        def R(m, j, t):
            c, b = j + t, (Bc, Bd)[m]
            return Op(f"v_smfmac_f32_16x16x64_bf16 {vr(acc(m,t),4)}, {vr(V_X,4)}, {vr(b,8)}, v{V_IR+(c>>1)}" + (" abid:1" if c & 1 else ""), "mx",
                      rd=list(rng(acc(m, t), 4)) + list(rng(b, 8)) + list(rng(V_X, 4)), wr=rng(acc(m, t), 4))

        def B(m, s, b):
            return [Op(f"ds_read_b128 {vr(b+4*h,4)}, v{V_RD0+h} offset:{2048*s+TBL*m}", "lds", rd=[V_RD0 + h], wr=rng(b + 4 * h, 4)) for h in range(2)]

        def addr(j, b, r, base):
            ad = V_AD + 4 * j + (b >> 1)
            return Op(f"v_add_u32_sdwa v{r}, s{base}, v{ad} dst_sel:DWORD dst_unused:UNUSED_PAD src0_sel:DWORD src1_sel:WORD_{b&1}", "valu", rd=[ad], wr=[r])
        ops = [Op(f"ds_read_b32 v{V_X}, v{V_X}", "lds", rd=[V_X], wr=[V_X])] + B(0, 0, Ba)
        for m in range(2):
            ops += [Op(f"ds_read_b128 {vr(acc(m,t),4)}, v{V_TAB} offset:{O_BIAS+64*t}", "lds", rd=[V_TAB], wr=rng(acc(m, t), 4)) for t in range(9)]
            ops += loads.pop(0)
        ops += [Op(f"v_readfirstlane_b32 s{S_T0}, v{V_X}", "valu", rd=[V_X]), addr(0, 0, Bc, S_BUF), Op("s_nop 2", "salu"),
                Op(f"s_cmp_lg_u32 s{S_T0}, 0", "salu"), Op("s_cbranch_scc1 L_slow", "salu")]
        ngap = 126 + 26
        rho, credit = len(loads) / (ngap - o["ptail"]), 0.0

        ng = 0
        if max(self.mid):
            ops.append(Op(f"s_lshr_b32 s{S_NB0}, s{S_DMASK}, 28", "salu"))

        def midtile(k):
            keepL, self.L = self.L, []
            self.dma_tile(o["ldp"])
            x, self.L = self.L, keepL
            x = [f"s_cmp_le_u32 s{S_NB0}, {k}", f"s_cbranch_scc1 L_mid{k}"] + x + [
                f"s_add_u32 s{S_XOFF5}, s{S_XOFF5}, {256*TB}", f"s_add_u32 s{S_M0B}, s{S_M0B}, {TBL}", f"s_add_u32 s{S_XOFF}, s{S_XOFF}, {256*TB}",
                f"L_mid{k}:"]
            assert loads
            return Op("\n".join(x), "salu")

        def gap(mx, D=(), V=()):
            nonlocal credit, ng
            ops.append(mx)
            if ng in o["midg"][:max(self.mid)]:
                ops.append(midtile(o["midg"].index(ng)))
            ng += 1
            credit += rho
            while credit >= 1 and loads:
                credit -= 1
                ops.extend(loads.pop(0))
            ops.extend(D)
            ops.extend(V)
        for s in range(7):
            for t in range(9):
                D, V = [], []
                if t == 0:
                    D += B(1, s, Bb)
                if s < 5:
                    if t == 8:
                        D.append(Op(f"ds_read_b128 {vr(V_X,4)}, v{V_TAB} offset:{O_X+64*s}", "lds", rd=[V_TAB], wr=rng(V_X, 4)))
                    else:
                        D += [Op(f"ds_read_u16 v{Bd+t}, v{Bc+t} offset:{TBL}", "lds", rd=[Bc + t], wr=[Bd + t]),
                              Op(f"ds_read_u16 v{Bc+t}, v{Bc+t}", "lds", rd=[Bc + t], wr=[Bc + t])]
                        if t < 7:
                            V.append(addr(s, t + 1, Bc + t + 1, S_BUF))
                elif t in (2, 3):
                    D.append(B(1, s + 2, Bc if s == 5 else Bd)[t - 2])
                gap(M(0, s, t, Ba), D, V)
            for t in range(9):
                gap(M(1, s, t, Bb), B(0, s + 1, Ba)[t:t + 1] if t < 2 else [])
            if s < 5:
                rs = [R(m, s, t) for m in (1, 0) for t in RT[s]]
                for n, x in enumerate(rs):
                    gap(x, [], [addr(s + 1, 0, Bc, S_BUF)] if n == len(rs) - 1 and s < 4 else [])
        assert not loads
        ops += B(0, 8, Bb)
        pk = lambda t, h: (AX + 32 + h) if t == 8 else AX + 2 * t + h
        cvt = lambda t: [Op(f"v_cvt_pk_bf16_f32 v{pk(t,h)}, v{acc(0,t)+2*h}, v{acc(0,t)+2*h+1}", "valu",
                            rd=[acc(0, t) + 2 * h, acc(0, t) + 2 * h + 1], wr=[pk(t, h)]) for h in range(2)]
        dpp = "quad_perm:[1,0,3,2] row_mask:0xf bank_mask:0xf"
        stp = o["st"] if o["stp"] is None else o["stp"]

        def exch(v):
            p0, p1, d0 = AX + 8 * v, AX + 8 * v + 4, (V_X, AX + 16)[v]
            x = []
            for half in range(2):
                for d in range(4):
                    if half == 0:
                        x.append(Op(f"v_cndmask_b32_dpp v{d0+d}, v{p1+d}, v{p0+d}, vcc {dpp}", "dpp", rd=[p0 + d, p1 + d], wr=[d0 + d]))
                    else:
                        x.append(Op(f"v_cndmask_b32_dpp v{p1+d}, v{p0+d}, v{p1+d}, vcc {dpp}", "dpp", rd=[p0 + d, p1 + d], wr=[p1 + d]))
                src = d0 if half == 0 else p1
                fl = stp[2 * v + half] if isinstance(stp, (tuple, list)) else stp
                x += [Op(f"buffer_store_dwordx4 {vr(src,4)}, v{V_ST}, {sr(S_OUT,4)}, s{S_OOFF} offen offset:{1152*half+128*v} {fl}", "st",
                         rd=list(rng(src, 4)) + [V_ST]), Op(f"s_mov_b64 vcc, {sr((S_ODD, S_EVEN)[half],2)}", "salu")]
            return x
        p8 = pk(8, 0)
        rdadv = [Op(f"v_add_u32 v{V_RD0+h}, {2*TBL}, v{V_RD0+h}", "valu", rd=[V_RD0 + h], wr=[V_RD0 + h]) for h in range(2)]
        after = {0: rdadv,
                 1: [Op(f"ds_bpermute_b32 v{p8+h}, v{V_BP}, v{p8+h}", "lds", rd=[V_BP, p8 + h], wr=[p8 + h]) for h in range(2)] if o["bperm"] else [],
                 3: [Op(f"buffer_store_dwordx2 {vr(p8,2)}, v{V_ST8}, {sr(S_OUT,4)}, s{S_OOFF} offen {o['st8']}", "st", rd=[p8, p8 + 1, V_ST8])],
                 5: exch(0)[:6], 6: exch(0)[6:], 7: [addr(0, b, V_BR + b, S_BUFN) for b in range(4)],
                 8: [addr(0, b, V_BR + b, S_BUFN) for b in range(4, 8)]}
        for n, t in enumerate(PEEL_T):
            ops += [M(0, 7, t, Ba), M(0, 8, t, Bb)]
            if n:
                ops += cvt(PEEL_T[n - 1])
            ops += after.get(n, [])
        ops += cvt(PEEL_T[-1]) + exch(1)
        self.emit_line(ops, vm)

    def slow_path(self, K):
        a = self.a
        o = self.o
        VA, VI8 = 104, 106
        a("L_slow:")
        a("s_waitcnt vmcnt(0) lgkmcnt(0)")
        a(f"s_mov_b32 s{S_MODE}, 0")
        a("L_sm:")
        a(f"s_lshl_b32 s{S_BASE}, s2, 1")
        a(f"s_add_u32 s{S_BASE}, s{S_BASE}, s{S_MODE}")
        a(f"s_add_u32 s{S_BASE}, s{S_BASE}, {PRIV0}")
        a(f"s_mul_i32 s{S_BASE}, s{S_BASE}, {COPY}")
        a(f"s_mov_b32 s{S_TASK}, 0")
        a("L_st:")
        self.producer("g", True)
        a(f"s_add_u32 s{S_TASK}, s{S_TASK}, 1")
        a(f"s_cmp_lt_u32 s{S_TASK}, {NTASK}")
        a("s_cbranch_scc1 L_st")
        a(f"s_add_u32 s{S_MODE}, s{S_MODE}, 1")
        a(f"s_cmp_lt_u32 s{S_MODE}, 2")
        a("s_cbranch_scc1 L_sm")
        self.lane_setup()
        self.dma_setup()
        a(f"s_mov_b32 s{S_OUT+2}, {XBYTES}")
        a(f"s_mov_b32 s{S_X+2}, {XBYTES}")
        a(f"s_mov_b32 s{S_IT}, 0")
        a("L_stile:")
        a("s_barrier")
        self.dma_tile()
        for t in range(9):
            a(f"ds_read_b128 {vr(V_ACC+4*t,4)}, v{V_TAB} offset:{O_BIAS+64*t}")
        a(f"s_mov_b32 s{S_MODE}, 0")
        a("L_spass:")
        a(f"s_lshl_b32 s{S_BASE}, s2, 1")
        a(f"s_add_u32 s{S_BASE}, s{S_BASE}, s{S_MODE}")
        a(f"s_add_u32 s{S_BASE}, s{S_BASE}, {PRIV0}")
        a(f"s_mul_i32 s{S_BASE}, s{S_BASE}, {COPY}")
        self.waddr(VA, VI8)
        for grp in self.wload_list(VA, VI8):
            for x in grp:
                a(x)
        a("s_waitcnt vmcnt(0)")
        a("s_barrier")
        for s in range(9):
            a(f"ds_read_b128 {vr(V_B,4)}, v{V_RD0} offset:{2048*s}")
            a(f"ds_read_b128 {vr(V_B+4,4)}, v{V_RD1} offset:{2048*s}")
            a("s_waitcnt lgkmcnt(0)")
            for t in range(9):
                ir, h = aidx(s, t)
                a(f"v_smfmac_f32_16x16x64_bf16 {vr(V_ACC+4*t,4)}, {afrag(s,t)}, {vr(V_B,8)}, v{ir}" + (" abid:1" if h else ""))
            a("s_nop 7")
        a(f"s_add_u32 s{S_MODE}, s{S_MODE}, 1")
        a(f"s_cmp_lt_u32 s{S_MODE}, 2")
        a("s_cbranch_scc1 L_spass")
        for t in range(7):
            for h in range(2):
                a(f"v_cvt_pk_bf16_f32 v{V_P+2*t+h}, v{V_ACC+4*t+2*h}, v{V_ACC+4*t+2*h+1}")
        a(f"s_mov_b64 vcc, {sr(S_EVEN,2)}")
        self.emit_epi(self.assemble_loop(False, "")[2])
        for r in (S_XOFF, S_XOFF5, S_OOFF):
            a(f"s_add_u32 s{r}, s{r}, s{S_XINC}")
        a(f"s_mov_b32 s{S_XINC}, {256*TB}")
        a(f"s_add_u32 s{S_IT}, s{S_IT}, 1")
        a(f"s_cmp_lt_u32 s{S_IT}, s{S_NT}")
        a("s_cbranch_scc1 L_stile")
        a("s_branch L_fin")

    def loop_ops(self, links, dma, clm=False):
        o = self.o
        acc = lambda t: rng(V_ACC + 4 * t, 4)
        ch = o["chain"]
        bb = lambda s: V_P if (ch and s == 6) else V_B + 8 * BBUF[s]
        RBUF = [V_BR, V_BR + 8, V_BR, V_P + 8 if ch else V_P, V_BR + 8]
        rt = RT if links else [[0, 1], [2, 3], [4, 5], [6, 7], [8]]
        ng = [8, 8, 8, 8, 8 if links else o["ng4"]]

        def M(s, t):
            ir, h = aidx(s, t)
            return Op(f"v_smfmac_f32_16x16x64_bf16 {vr(V_ACC+4*t,4)}, {afrag(s,t)}, {vr(bb(s),8)}, v{ir}" + (" abid:1" if h else ""),
                      "mx", rd=list(acc(t)) + list(rng(bb(s), 8)), wr=acc(t), tag=("M", s, t))

        def R(j, t):
            c = j + t
            return Op(f"v_smfmac_f32_16x16x64_bf16 {vr(V_ACC+4*t,4)}, {vr(V_X,4)}, {vr(RBUF[j],8)}, v{V_IR+(c>>1)}" + (" abid:1" if c & 1 else ""),
                      "mx", rd=list(acc(t)) + list(rng(RBUF[j], 8)) + list(rng(V_X, 4)), wr=acc(t), tag=("R", j, t))
        seq = []
        for t in range(9):
            seq += [M(0, t), M(1, t)]
        if ch:
            for steps, order, rs in (((2, 3), o["ord1"], (0, 1)), ((4, 5, 6), o["ord2"], (2, 3, 4))):
                for n, t in enumerate(order):
                    seq += [M(s, t) for s in steps]
                    if t // 2 in rs and t % 2 == 0:
                        j = t // 2
                        assert t == 8 or order[n + 1] == t + 1
                        seq += [R(j, t)] + ([R(j, t - 1)] if links and j else []) + ([R(j, t + 1)] if t < 8 else [])
        else:
            for s in range(2, 7):
                seq += [M(s, t) for t in range(9)]
        for t in range(9):
            seq += [M(7, t), M(8, t)]
        if ch:
            rpos = [min(i for i, x in enumerate(seq) if x.tag[:2] == ("R", j)) for j in range(5)]
        else:
            rpos = list(o["rposl"] if links else o["rpos"])
            for j in range(5):
                for n, t in enumerate(rt[j]):
                    seq.insert(rpos[j] + n, R(j, t))
        N = len(seq)
        pos = {x.tag: i for i, x in enumerate(seq)}
        BAR = rpos[4] + len(rt[4]) - 1
        c0 = N - 15 - BAR
        assert c0 == (4 if ch else 0)
        self.drain = rpos[4] - 1
        T = lambda g: (g - BAR - 1) % N
        first = lambda s: T(min(pos[("M", s, t)] for t in range(9)))
        lastu = lambda s: max(pos[("M", s, t)] for t in range(9))
        LEAD = o["lead"]
        ST = [[] for _ in range(N)]
        S = [[] for _ in range(N)]
        D = [[] for _ in range(N)]
        V = [[] for _ in range(N)]
        keep = lambda op: (dma or op.tag != "dma") and (clm or op.tag != "clm")

        def pdst(t, h):
            return V_P8 + h if t == 8 else V_P + 2 * t + h
        dq, vq = [], []
        for t in range(9):
            for h in range(2):
                V[c0 + 2 * t + h].append(Op(f"v_cvt_pk_bf16_f32 v{pdst(t,h)}, v{V_ACC+4*t+2*h}, v{V_ACC+4*t+2*h+1}", "valu",
                                       rd=[V_ACC + 4 * t + 2 * h, V_ACC + 4 * t + 2 * h + 1], wr=[pdst(t, h)], tag="epi"))
            dq.append([Op(f"ds_read_b128 {vr(V_ACC+4*t,4)}, v{V_TAB} offset:{O_BIAS+64*t}", "lds", rd=[V_TAB], wr=acc(t), tag="pre"),
                       c0 + 2 * t + 2, c0 + 2 * t + 2, None])
        def stf(e):
            f = o["stc"] if clm else (o["st"] if dma else o["stn"])
            f = o["st"] if f is None else f
            return f[e] if isinstance(f, (tuple, list)) else f
        dpp = "quad_perm:[1,0,3,2] row_mask:0xf bank_mask:0xf"
        stg = [T(g) for g in o["stg"]]
        for v in range(2):
            p0, p1 = V_P + 8 * v, V_P + 8 * v + 4
            d0 = V_T if v == 0 else V_P
            for half in range(2):
                e = 2 * v + half
                for d in range(4):
                    if half == 0:
                        op = Op(f"v_cndmask_b32_dpp v{d0+d}, v{p1+d}, v{p0+d}, vcc {dpp}", "dpp", rd=[p0 + d, p1 + d], wr=[d0 + d], tag="epi")
                    else:
                        op = Op(f"v_cndmask_b32_dpp v{p1+d}, v{p0+d}, v{p1+d}, vcc {dpp}", "dpp", rd=[p0 + d, p1 + d], wr=[p1 + d], tag="epi")
                    vq.append([op, stg[e - 1] if e else c0 + 18, stg[e] - 4 + d, None])
                src = d0 if half == 0 else p1
                ST[stg[e]].append(Op(f"buffer_store_dwordx4 {vr(src,4)}, v{V_ST}, {sr(S_OUT,4)}, s{S_OOFF} offen offset:{1152*half+128*v} {stf(e)}",
                                     "st", rd=list(rng(src, 4)) + [V_ST], tag="epi"))
                ST[stg[e]].append(Op(f"s_mov_b64 vcc, {sr((S_ODD, S_EVEN)[half],2)}", "salu", tag="epi"))
        if o["bperm"]:
            for h in range(2):
                dq.append([Op(f"ds_bpermute_b32 v{V_P8+h}, v{V_BP}, v{V_P8+h}", "lds", rd=[V_BP, V_P8 + h], wr=[V_P8 + h], tag="epi"),
                           c0 + 18, stg[4] - LEAD - 2 + h, None])
        ST[stg[4]].append(Op(f"buffer_store_dwordx2 {vr(V_P8,2)}, v{V_ST8}, {sr(S_OUT,4)}, s{S_OOFF} offen {o['st8']}", "st",
                             rd=[V_P8, V_P8 + 1, V_ST8], tag="epi"))
        rl = lambda j: T(rpos[j] + len(rt[j]) - 1)
        free = [rl(2), 1, rl(0), stg[3 if ch else 2] + 1, rl(1)]
        for j in range(5):
            dl = T(rpos[j]) - LEAD - 1
            for b in range(ng[j]):
                r = RBUF[j] + b
                ad = V_AD + 4 * j + (b >> 1)
                av = Op(f"v_add_u32_sdwa v{r}, s{S_BUFN if j == 0 else S_BUF}, v{ad} dst_sel:DWORD dst_unused:UNUSED_PAD src0_sel:DWORD src1_sel:WORD_{b&1}",
                        "valu", rd=[ad], wr=[r], tag="pre" if j == 0 else "")
                gd = dl - o["gsp"] * (ng[j] - 1 - b)
                vq.append([av, free[j], (N - 2 - (7 - b)) if j == 0 else gd - 1, None])
                dq.append([Op(f"ds_read_u16 v{r}, v{r}", "lds", rd=[r], wr=[r], tag="pre"), 0, gd, None if j == 0 else av])
            dq.append([Op(f"ds_read_b128 {vr(V_X,4)}, v{V_TAB} offset:{O_X+64*j}", "lds", rd=[V_TAB], wr=rng(V_X, 4), tag="pre"),
                       0 if j == 0 else rl(j - 1), dl, None])
        prev = {0: None, 1: None, 2: 7, 3: 8, 4: 0, 5: 1, 6: 4, 7: 2, 8: 3}
        lastb = []
        for s in range(9):
            for h in range(2):
                op = Op(f"ds_read_b128 {vr(bb(s)+4*h,4)}, v{(V_RD0, V_RD1)[h]} offset:{2048*s}", "lds",
                        rd=[(V_RD0, V_RD1)[h]], wr=rng(bb(s) + 4 * h, 4), tag="pre")
                fs = first(s) if s < 7 else (T(rpos[4]) - 2 * (9 - s) if ch else T(pos[("M", s, 0)]))
                rel = 0 if prev[s] is None else T(lastu(prev[s]))
                if ch and s == 6:
                    rel = stg[2] + 1
                dq.append([op, rel, fs - LEAD - 2 + h, None])
                lastb.append(op)
        for h in range(2):
            vq.append([Op(f"v_add_u32 v{V_RD0+h}, s{S_DELTA}, v{V_RD0+h}", "valu", rd=[V_RD0 + h], wr=[V_RD0 + h]), 0, N - 2, lastb])
        sq = []
        dmag = [g + (self.drain - 70) * (g > 50) for g in o["dmag"]]
        assert all(b - a_ >= 2 for a_, b in zip(dmag, dmag[1:]))
        if not o["nodma"]:
            for j, g in enumerate(dmag):
                g = T(g)
                ld = f"buffer_load_dwordx4 v{V_DMA}, {sr(S_X,4)}, s{S_XOFF if j < 4 else S_XOFF5} offen offset:{256*j if j < 4 else 896} {o['ld']} lds"
                if j < 4:
                    D[g].append(Op(ld, "dma", rd=[V_DMA], tag="dma"))
                    S[g - 1].append(Op(f"s_add_u32 m0, s{S_M0B}, {3840*j}", "salu", tag="dma"))
                else:
                    D[g] += [Op(f"s_mov_b64 exec, {sr(S_HALF,2)}", "salu", tag="dma"), Op(ld, "dma", rd=[V_DMA], tag="dma"),
                             Op("s_mov_b64 exec, -1", "salu", tag="dma")]
                    S[g - 1].append(Op(f"s_add_u32 m0, s{S_M0B}, s{S_M05}", "salu", tag="dma"))
                    V[g] = None
        XV = [[] for _ in range(N)]
        if self.dyn:
            gl = T(o["mbg"] + self.drain - 70) - 1
            XV[T(0)].append(Op(f"v_mov_b32 v{V_C}, 1", "valu", wr=[V_C], tag="clm"))
            D[T(1)].append(Op(f"buffer_atomic_add v{V_C}, v{V_BP}, {sr(S_B,4)}, 0 offen sc0 sc1", "dma", rd=[V_BP], tag="clm"))
            assert not D[gl + 1] and not S[gl + 1] and max(stg) <= gl
            gw = gl + 1 if o["cwg"] is None else T(o["cwg"])
            assert gw not in stg and T(1) < gw <= gl + 1
            S[gw].append(Op(f"s_waitcnt vmcnt({sum(1 for g in stg if g < gw) + sum(1 for g in dmag if T(g) < gw)})", "salu", tag="clm"))
            if o["dwg"] is not None and dma and not clm:
                gw = T(o["dwg"])
                assert gw not in stg
                S[gw].append(Op(f"s_waitcnt vmcnt({sum(1 for g in stg if g < gw) + sum(1 for g in dmag if T(g) < gw)})", "salu"))
            D[gl + 1] += [Op(f"s_mov_b64 exec, {sr(S_W0,2)}", "salu", tag="clm"),
                          Op(f"ds_write_b32 v{V_RD0}, v{V_C} offset:{TB}", "lds", rd=[V_RD0], tag="clm"), Op("s_mov_b64 exec, -1", "salu", tag="clm")]
            V[gl + 1] = None
            D[0].append(Op(f"ds_read_b32 v{V_C}, v{V_RD0} offset:{TB}", "lds", rd=[V_RD0], wr=[V_C], tag="clm"))
            XV[LEAD + 1].append(Op(f"v_readfirstlane_b32 s{S_CL}, v{V_C}", "valu", rd=[V_C], tag="clm"))
        placed = {}
        for g in range(N - 1):
            if not D[g] and g != T(N - 1):
                c = [x for x in dq if x[1] <= g and (x[3] is None or placed.get(id(x[3]), N) < g) and x[2] - g <= o["eager"]]
                if c:
                    x = min(c, key=lambda x: x[2])
                    dq.remove(x)
                    D[g].append(x[0])
                    placed[id(x[0])] = g
                    if g > x[2] and o["verbose"]:
                        print("; late D", g - x[2], x[0].text, file=sys.stderr)
            if V[g] is None:
                V[g] = []
                continue
            cap = 2 if (ST[g] and "x4" in ST[g][0].text) else 1
            while len(V[g]) < cap:
                c = [x for x in vq if x[1] <= g and (x[3] is None or all(placed.get(id(y), N) <= g for y in x[3]))]
                if not c:
                    break
                x = min(c, key=lambda x: x[2])
                vq.remove(x)
                V[g].append(x[0])
                placed[id(x[0])] = g
                assert g <= x[2] or x[0].kind != "dpp", ("late", x[0].text)
        assert not dq and not vq, ([x[0].text for x in dq], [x[0].text for x in vq])
        for g in range(N):
            V[g] += XV[g]
        if self.dyn:
            rdup = max(placed[id(x)] for gl_ in V for x in gl_ if id(x) in placed and f"s{S_DELTA}," in x.text)
            assert rdup <= gl and gl + 1 < T(self.drain) and T(min(o["stg"])) > T(1)
        S[N - 1] += ([] if clm else [Op(f"s_waitcnt vmcnt({o['vmw']})", "salu")]) + [Op("s_barrier", "bar")]
        lastdma = T(dmag[4])
        la = max(placed[id(x)] for gl in V for x in gl if id(x) in placed and f"s{S_BUF}," in x.text)
        fn = min(placed[id(x)] for gl in V for x in gl if id(x) in placed and (f"s{S_BUFN}," in x.text or f"s{S_DELTA}," in x.text))
        sq = [([f"s_mov_b32 s{S_BUF}, s{S_BUFN}"], 0, 0),
              ([f"s_cmp_eq_u32 s{S_BUFN}, {(NB-1)*TBL}", f"s_cselect_b32 s{S_DELTA}, {-(NB-1)*TBL}, s{S_CTB}", f"s_add_u32 s{S_BUFN}, s{S_BUFN}, s{S_DELTA}"], c0 + 18, fn),
              ]
        if self.dyn:
            LK = self.dyn[1]
            sq.append((([] if clm else [f"s_mov_b32 s{S_OUT+2}, {XBYTES}"]) + [f"s_mov_b32 s{S_OOFF}, s{S_Q}"]
                       + [f"s_mov_b32 s{S_Q+k}, s{S_Q+k+1}" for k in range(LK - 1)]
                       + [f"s_mov_b32 s{S_Q+LK-1}, s{S_XOFF}" if clm else f"s_add_u32 s{S_Q+LK-1}, s{S_Q+LK-1}, {256*TB}"], stg[4] + 1, N - 2))
        else:
            sq.append(([f"s_mov_b32 s{S_OUT+2}, {XBYTES}", f"s_add_u32 s{S_OOFF}, s{S_OOFF}, s{S_OINC}", f"s_mov_b32 s{S_OINC}, s{S_OINC2}",
                        f"s_mov_b32 s{S_OINC2}, {256*TB}"], stg[4] + 1, N - 2))
        if not clm or o["trace"]:
            sq.append(([f"s_add_u32 s{S_IT}, s{S_IT}, 1"], c0 + 18, N - 2))
        if clm:
            ps = o["psh"]
            sq += [([f"s_add_u32 s{S_XOFF5}, s{S_XOFF}, s{S_K5}"], c0 + 18, lastdma - 2),
                   (self.dma_advance()[2:], lastdma + 1, N + 8),
                   ([f"s_lshr_b32 s{S_CT}, s{S_CL}, {ps}", f"s_mul_i32 s{S_CT}, s{S_CT}, {(256 - (1 << ps))*TB}", f"s_mul_i32 s{S_CT+1}, s{S_CL}, {TB}",
                     f"s_add_u32 s{S_CT}, s{S_CT}, s{S_CB}", f"s_add_u32 s{S_XOFF}, s{S_CT}, s{S_CT+1}"], LEAD + 2, T(N - 1) - 2),
                   ([f"s_cmp_lt_u32 s{S_CL}, {(16 - self.dyn[0]) << ps}"], T(N - 1) - 1, T(N - 1) - 1)]
        else:
            if dma:
                sq += [(self.dma_advance(), lastdma + 1, N + 12)]
            sq.append(([f"s_bitcmp1_b32 s{S_DMASK if dma else S_NMASK}, s{S_IT}"], T(N - 1) - 1, T(N - 1) - 1))
        G = lambda A: [[x for x in A[T(g)] if keep(x)] for g in range(N)]
        return seq, G(ST), G(S), G(D), G(V), [(x, (lo + BAR + 1), (hi + BAR + 1)) for x, lo, hi in sq], BAR

    def assemble_loop(self, links, label, dma=True, clm=False):
        seq, ST, S, D, V, sq, BAR = self.loop_ops(links, dma, clm)
        N = len(seq)
        flat = []
        for rep in range(2):
            for g in range(N):
                a0 = rep * N + g
                flat.append((seq[g], a0 - 1))
                for x in ST[g]:
                    flat.append((x, a0 - 1))
                for x in D[g] + V[g]:
                    flat.append((x, a0))
        gap_of = {}
        k = 0
        lds = []
        for rep in range(2):
            for g in range(N):
                k += 1 + len(ST[g])
                for x in D[g] + V[g]:
                    if x.kind == "lds":
                        lds.append((k, rep * N + g))
                    k += 1
        done = -1
        W = {}
        minlead = 99
        for i, (op, wg) in enumerate(flat):
            touched = op.rd | op.wr
            need = -1
            for n, (k, g) in enumerate(lds):
                if k < i and n > done and (flat[k][0].wr & touched):
                    need = n
            if need >= 0:
                assert lds[need][1] < wg
                issued = [n for n, (k, g) in enumerate(lds) if g < wg]
                cnt = min(issued[-1] - need, 15)
                done = issued[-1] - cnt
                if wg >= N - 1 and wg < 2 * N - 1:
                    W[wg % N] = min(cnt, W.get(wg % N, 99))
                    if self.o["verbose"]:
                        print(f"; wait gap {wg % N} cnt {cnt} lead {wg - lds[need][1]} for {flat[lds[need][0]][0].text}", file=sys.stderr)
        W[self.drain] = 0
        if clm:
            mb = [g for g in range(N) if any("ds_write" in x.text for x in D[g])][0]
            assert not [g for g in W if mb < g < self.drain]
        for g, c in W.items():
            S[g].insert(0, Op(f"s_waitcnt lgkmcnt({c})", "salu"))
        if not self.o["drop"]:
            last = max(g for g in range(BAR + 1) if any(x.kind == "lds" for x in D[g]))
            assert any(W.get(g) == 0 for g in range(last + 1, BAR + 1)), "tile reads not drained at the barrier"

        def room(g, extra=0, resv=True):
            g %= N
            if g == BAR or g == N - 1 or any(x.kind == "dma" for x in D[g]):
                return False
            cap = 1 if D[g] else (2 if V[g] else 3)
            if label and not clm and resv:
                if g == self.drain - 1:
                    return False
                cap -= g == self.drain - 2
            return len(S[g]) + extra < cap and not ST[g]
        sccfree = lambda x: x.text.startswith(("s_waitcnt", "s_mov", "s_barrier"))
        locked = set()
        for texts, lo, hi in sq:
            g = lo
            n = 0
            while n < len(texts):
                chain = [texts[n]]
                if texts[n].startswith(("s_cmp", "s_bitcmp")):
                    while n + len(chain) < len(texts) and texts[n + len(chain)].startswith("s_cselect"):
                        chain.append(texts[n + len(chain)])
                while True:
                    assert g <= hi, ("no room", chain)
                    where, z = [], g
                    ok = room(g) and ((g % N) not in locked or chain[0].startswith("s_mov"))
                    cnt = {}
                    for k, tx in enumerate(chain):
                        while ok and not room(z, cnt.get(z, 0)):
                            z += 1
                            ok = z <= hi and all(sccfree(x) for x in S[z % N]) and (clm or z % N != self.drain - 1)
                        where.append(z)
                        cnt[z] = cnt.get(z, 0) + 1
                    if ok:
                        break
                    g += 1
                for z, tx in zip(where, chain):
                    S[z % N].append(Op(tx, "salu"))
                if len(chain) > 1:
                    locked.update(z % N for z in range(where[0], where[-1]))
                g = where[-1]
                n += len(chain)
        assert all(sccfree(x) for x in S[N - 1])
        if label and not clm:
            gz = self.drain - (2 if self.o["trace"] else 1)
            assert self.o["chain"] and (self.o["trace"] or (not (S[gz] or D[gz] or V[gz] or ST[gz]) and room(gz - 1, 0, False) and (gz - 1) not in locked))
            assert all(x.kind not in ("dma", "st") for g in range(gz, N) for x in D[g] + ST[g]) and max(self.o["stg"]) < min(self.o["dmag"])
            S[gz - (0 if self.o["trace"] else 1)].append(Op(f"s_bitcmp1_b32 s{S_WMASK}, s{S_IT}", "salu"))
            S[gz] += [Op(f"s_cbranch_scc1 {label}_w", "salu"), Op(f"{label}_wb:", "label")]
            self.tailblocks.append(f"{label}_w:\ns_bitcmp1_b32 s{S_WMASK2}, s{S_IT}\ns_waitcnt vmcnt({self.whi})\n"
                                   f"s_cbranch_scc0 {label}_wb\ns_waitcnt vmcnt({self.wlo})\ns_branch {label}_wb")
        if self.o["trace"]:
            g0 = max(g for g, c in W.items() if c == 0 and g <= BAR)
            S[g0 - 1] += [Op("s_memrealtime s[98:99]", "salu"), Op("s_memtime s[96:97]", "salu"), Op(f"s_add_u32 s95, s{S_IT}, 32", "salu")]
            V[g0] += [Op(f"s_mov_b32 m0, s{S_IT}", "salu"), Op("v_writelane_b32 v254, s98, m0", "salu"), Op("s_mov_b32 m0, s95", "salu"), Op("v_writelane_b32 v254, s96, m0", "salu")]
        body = []
        pro = [x for g in range(N) for x in V[g] if x.tag == "pre" or (g > BAR and "sdwa" in x.text)] \
            + [x for g in range(BAR + 1, N) for x in D[g] if x.tag == "pre"]
        epi = [x for g in range(BAR) for x in ST[g] + D[g] + V[g] if x.tag == "epi"]
        nsw = 0
        for g in range(N):
            sw_ = self.o["swp"][2 if clm else (0 if dma else 1)]
            if sw_ and len(D[g]) == 1 and len(V[g]) == 1 and D[g][0].kind == "lds" and not ST[g] and "sdwa" in V[g][0].text \
                    and not (V[g][0].wr & (D[g][0].rd | D[g][0].wr)) and nsw < sw_:
                D[g], V[g] = V[g], D[g]
                nsw += 1
            body += [x for x in [seq[g]] if not any(d in x.text for d in self.o["dropm"])] + ST[g] + S[g] + D[g] + V[g]
            if self.o["pad"] and g % self.o["pad"] == 0 and g < N - 2:
                body.append(Op("s_nop 3", "salu"))
        body = [x for x in body if x.kind == "mx" or not any(d in x.text for d in self.o["drop"])]
        body.append(Op(f"s_cbranch_scc1 {label}", "salu"))
        if not self.o["drop"]:
            real = [x for x in body if x.kind != "label"]
            m = len(real)
            for i, op in enumerate(real):
                for d in range(1, 10):
                    p = real[(i - d) % m]
                    ws = d - 1
                    if p.kind == "mx" and op.kind != "mx" and (p.wr & (op.rd | op.wr)):
                        assert ws >= 8, ("mx->x", p.text, op.text, ws)
                    if p.kind in ("valu", "dpp") and op.kind == "mx" and (p.wr & op.rd):
                        assert ws >= 2, ("valu->mx", p.text, op.text, ws)
                    if p.kind in ("valu", "dpp") and op.kind == "dpp" and (p.wr & op.rd):
                        assert ws >= 2, ("valu->dpp", p.text, op.text, ws)
                    if p.kind == "st" and (p.rd & op.wr):
                        assert ws >= 2, ("st war", p.text, op.text, ws)
        return pro, body, epi

    def emit_epi(self, epi):
        cv = [x for x in epi if "v_cvt" in x.text]
        bp = [x for x in epi if x.kind == "lds"]
        rest = [x for x in epi if x not in cv and x not in bp]
        ops = rest[:6] + cv[2:] + bp + rest[6:12] + cv[:2] + rest[12:]
        if self.o["ste"] is not None:
            ops = [Op(x.text.replace(" sc1", " " + self.o["ste"]), x.kind, x.rd, x.wr) if x.kind == "st" else x for x in ops]
        hist = [Op("", "mx", wr=rng(V_ACC + 28, 8)), Op("", "valu", wr=rng(V_P, 14)), Op("", "salu")]
        self.emit_line(ops, [], hist)

    def main_loop(self, links, sfx):
        a = self.a
        pro, body, epi = self.assemble_loop(links, "L_loop" + sfx)
        if not self.o["peel"]:
            late = list(self.late_loads)
            for n, op in enumerate(pro):
                a(op.text)
                if n % 6 == 5:
                    while late and not late[0].startswith("buffer"):
                        a(late.pop(0))
                    if late:
                        a(late.pop(0))
            for x in late[:8]:
                a(x)
            a("s_waitcnt lgkmcnt(0)")
            a(f"v_readfirstlane_b32 s{S_T0}, v{V_T}")
            a("s_nop 3")
            a(f"s_cmp_lg_u32 s{S_T0}, 0")
            a("s_cbranch_scc1 L_slow")
            for x in late[8:]:
                a(x)
            if max(p[1] for p in self.pol):
                self.prefetch(24, "L_pf2" + sfx)
            for x in self.dma_advance(first=True):
                a(x)
            a(f"s_waitcnt vmcnt({(20 if self.o['early'] else 0) + 5 * self.n2min})")
            self.stamp(5)
            a(f"s_bitcmp1_b32 s{S_DMASK}, 0")
            a(f"s_cbranch_scc0 L_loopn{sfx}")
        a(".p2align 6")
        a(f"L_loop{sfx}:")
        for op in body:
            a(op.text)
        if self.o["wbl2"] is not None:
            a(f"s_lshr_b32 s{S_T0}, s2, 3")
            a(f"s_and_b32 s{S_T0}, s{S_T0}, {self.o['wbl2']}")
            a(f"s_or_b32 s{S_T0}, s{S_T0}, s{S_WAVE}")
            a(f"s_cbranch_scc1 L_loopn{sfx}")
            a("buffer_wbl2 sc1")
        if self.dyn:
            LK = self.dyn[1]
            a(f"s_cmp_lg_u32 s{S_IT}, {self.cl0}")
            a(f"s_cbranch_scc1 L_loopn{sfx}")
            a(".p2align 3")
            a(f"L_loopc{sfx}:")
            for op in self.assemble_loop(links, "L_loopc" + sfx, True, True)[1]:
                a(op.text)
            if self.o["trace"]:
                a(f"s_add_u32 s{S_NT}, s{S_IT}, {LK}")
                a(f"s_bfm_b32 s{S_NMASK}, s{S_NT}, 0")
                a(f"s_lshl_b32 s{S_WMASK}, {1 << (LK-1)}, s{S_IT}")
                a(f"s_lshl_b32 s{S_WMASK2}, {(1 << (LK-1)) if 5*(LK-1) < self.whi else 0}, s{S_IT}")
            else:
                a(f"s_mov_b32 s{S_IT}, 0")
                a(f"s_mov_b32 s{S_NT}, {LK}")
                a(f"s_mov_b32 s{S_NMASK}, {(1 << LK) - 1}")
                a(f"s_mov_b32 s{S_WMASK}, {(1 << (LK-1)) if 5*(LK-1) < self.o['vmw'] else 0}")
                a(f"s_mov_b32 s{S_WMASK2}, {(1 << (LK-1)) if 5*(LK-1) < self.whi else 0}")
            a(f"s_mov_b32 s{S_CL0}, -1")
            if self.o["stt"] is not None:
                keep, self.o["stn"] = self.o["stn"], self.o["stt"]
                for op in self.assemble_loop(links, "L_loopt" + sfx, False)[1][:-1]:
                    a(op.text)
                self.o["stn"] = keep
        if self.o["align2"]:
            a(".p2align 3")
        a(f"L_loopn{sfx}:")
        _, body, epi = self.assemble_loop(links, "L_loopn" + sfx, False)
        for op in body:
            a(op.text)
            if op.kind == "bar":
                a(f"L_loopn{sfx}_p3:")
        if self.dyn:
            a(f"s_cmp_eq_u32 s{S_IT}, s{S_CL0}")
            a(f"s_cbranch_scc1 L_loopc{sfx}")
        a(f"s_cmp_lt_u32 s{S_IT}, s{S_NT}")
        a(f"s_cbranch_scc1 L_loop{sfx}")
        self.emit_epi(epi)

    def loop_state(self):
        a = self.a
        pl = 2 if self.o["peel"] else 0
        a(f"s_mov_b32 s{S_IT}, {pl}")
        a(f"s_mov_b32 s{S_BUF}, 0")
        a(f"s_mov_b32 s{S_BUFN}, {pl*TBL}")
        if pl:
            a(f"s_mov_b32 s{S_OUT+2}, {XBYTES}")
        a(f"s_mov_b32 s{S_CTB}, {TBL}")
        a(f"s_mov_b32 s{S_OINC}, {256*TB if pl else 0}")
        a(f"s_mov_b64 vcc, {sr(S_EVEN,2)}")
        if self.dyn:
            NS, LK = self.dyn
            ps = self.o["psh"]
            a(f"s_andn2_b32 s{S_NMASK}, {(1 << self.cl0) - 1}, s{S_DMASK}")
            a(f"s_mov_b32 s{S_CL0}, {self.cl0}")
            a(f"s_add_u32 s{S_Q}, s{S_OOFF}, {pl*256*TB}")
            for k in range(1, LK):
                a(f"s_add_u32 s{S_Q+k}, s{S_Q+k-1}, {256*TB}")
            a(f"s_sub_u32 s{S_K5}, s{S_XOFF5}, s{S_XOFF}")
            a(f"s_lshr_b32 s{S_T0}, s2, {ps}")
            a(f"s_mul_i32 s{S_CB}, s{S_T0}, {TB << ps}")
            a(f"s_add_u32 s{S_CB}, s{S_CB}, {NS*256*TB}")
            a(f"s_lshl_b32 s{S_T0}, s{S_T0}, 7")
            a(f"s_add_u32 s{S_T0}, s{S_T0}, {CNT_OFF}")
            a(f"s_add_u32 s{S_B}, s{S_WS}, s{S_T0}")
            a(f"s_addc_u32 s{S_B+1}, s{S_WS+1}, 0")
            a(f"s_cmp_eq_u32 s{S_WAVE}, 0")
            a(f"s_cselect_b32 s{S_B+2}, 4, 0")
            a(f"s_cselect_b64 {sr(S_W0,2)}, 1, 0")
        else:
            a(f"s_bfm_b32 s{S_NMASK}, s{S_NT}, 0")
            a(f"s_andn2_b32 s{S_NMASK}, s{S_NMASK}, s{S_DMASK}")

    def stamp(self, n, r="s[98:99]"):
        if self.o["stamp"] and (self.o["stamp"] is True or n in self.o["stamp"]):
            a = self.a
            a(f"s_memtime {r}" if self.o["cyc"] and n in (5, 6) else f"s_memrealtime {r}")
            a("s_waitcnt lgkmcnt(0)")
            a(f"v_writelane_b32 v255, s{r[2:4]}, {n}")

    def descriptor(self, label, vg, ag):
        self.a(f""".amdhsa_kernel {label}
  .amdhsa_next_free_vgpr {vg}
  .amdhsa_next_free_sgpr 102
  .amdhsa_accum_offset {ag}
  .amdhsa_group_segment_fixed_size 0
  .amdhsa_float_denorm_mode_32 3
  .amdhsa_kernarg_size 48
  .amdhsa_user_sgpr_count 2
  .amdhsa_user_sgpr_kernarg_segment_ptr 1
  .amdhsa_system_sgpr_workgroup_id_x 1
.end_amdhsa_kernel""")

    def flush_tail(self):
        for b in self.tailblocks:
            self.a(b)
        self.tailblocks = []

    def gen(self):
        a = self.a
        o = self.o
        K = NAME + "_kernel"
        a(open("cdna_kernels/" + NAME + ".s.ref").read().split("; Override")[0].rstrip())
        if o["fused"]:
            a(f"; @launch grid=(256,1,1) block=(256,1,1) lds={LDS_BYTES}")
        else:
            a(f"; @launch kernel=prep_kernel grid=({NTASK},1,1) block=(256,1,1) lds={LDS_BYTES}")
            a(f"; @launch kernel={K} grid=(256,1,1) block=(256,1,1) lds={LDS_BYTES}")
        a('.amdgcn_target "amdgcn-amd-amdhsa--gfx950"\n.text')
        if not o["fused"]:
            self.entry("prep_kernel", NTASK)
            a(f"s_mov_b32 s{S_TASK}, s2\ns_mov_b32 s{S_BASE}, 0")
            self.producer("", False)
            a("L_end_prep_kernel:\ns_endpgm")
            self.flush_tail()
        self.entry(K, 256)
        a(f"s_mov_b32 s{S_BASE}, 0")
        mid = {id(p): m for p, m in zip(self.pol, self.mid)}
        msk = lambda p: hex(sum(1 << i for i in p[2] if not self.dyn or i < self.cl0) | (p[0] - mid[id(p)]) << 20 | p[1] << 24 | mid[id(p)] << 28)
        def pick(reg, vals):
            if len(set(vals)) == 1:
                a(f"s_mov_b32 s{reg}, {vals[0]}")
                return
            a(f"s_mov_b32 s{reg}, {vals[1]}")
            a(f"s_mov_b32 s{S_T0}, {vals[3]}")
            a(f"s_bitcmp1_b32 s2, {o['gsh']}")
            a(f"s_cselect_b32 s{reg}, s{reg}, {vals[0]}")
            a(f"s_cselect_b32 s{S_T0}, s{S_T0}, {vals[2]}")
            a(f"s_bitcmp1_b32 s2, {o['gsh2']}")
            a(f"s_cselect_b32 s{reg}, s{S_T0}, s{reg}")
        if o["fused"]:
            px = o["px"]
            if o["pspread"]:
                a(f"s_bfe_u32 s{S_TASK}, s2, {hex(2 << 16 | 3)}")
                a(f"s_mul_i32 s{S_TASK}, s{S_TASK}, {px}")
                a(f"s_and_b32 s{S_T0}, s2, 7")
                a(f"s_add_u32 s{S_TASK}, s{S_TASK}, s{S_T0}")
                a(f"s_lshr_b32 s{S_T1}, s2, 5")
                a(f"s_lshl3_add_u32 s{S_TASK}, s{S_TASK}, s{S_T1}")
            else:
                a(f"s_lshr_b32 s{S_TASK}, s2, 3")
                a(f"s_mul_i32 s{S_TASK}, s{S_TASK}, {px}")
                a(f"s_and_b32 s{S_T0}, s2, 7")
                a(f"s_add_u32 s{S_TASK}, s{S_TASK}, s{S_T0}")
            a(f"s_cmp_lt_u32 s{S_T0}, {px}")
            a(f"s_cselect_b32 s{S_TASK}, s{S_TASK}, 63")
            a(f"s_cmp_lt_u32 s{S_TASK}, {NTASK}")
            a("s_cbranch_scc1 L_prod")
        pick(S_DMASK, [msk(p) for p in self.pol[:4]])
        self.lane_setup()
        if o["fused"] and o["sig"] == 3:
            self.mb_addr(S_T0, S_T1)
            a(f"s_cmp_eq_u32 s{S_WAVE}, 0")
            a(f"s_cselect_b32 s{S_T0}, s{S_T0}, 0x40000000")
            a(f"v_mov_b32 v8, s{S_T0}")
            a("v_mov_b32 v9, 0")
        self.entry_wait()
        if o["fused"] and o["sig"] == 4:
            assert o["pspread"]
            a(f"s_cmp_lg_u32 s2, {CLEARER}")
            a("s_cbranch_scc1 L_cons3")
            a("v_lshlrev_b32 v8, 4, v0")
            a("v_mov_b64 v[12:13], 0")
            a("v_mov_b64 v[14:15], 0")
            a(f"buffer_store_dwordx4 v[12:15], v8, {sr(S_DBG,4)}, 0 offen sc1")
            a(f"v_add_u32 v8, {FL_OFF}, v8")
            a("v_add_u32 v9, 4096, v8")
            a(f"buffer_store_dwordx4 v[12:15], v8, {sr(S_WS,4)}, 0 offen sc1")
            a(f"buffer_store_dwordx4 v[12:15], v9, {sr(S_WS,4)}, 0 offen sc1")
            a("v_mov_b32 v10, 1")
            a("v_lshlrev_b32 v11, 2, v0")
            a("s_waitcnt vmcnt(0)")
            a("s_barrier")
            a("s_mov_b32 exec_hi, 0")
            a(f"buffer_store_dword v10, v11, {sr(S_DBG,4)}, 0 offen sc1")
            a("s_mov_b64 exec, -1")
        self.ptouch()
        if o["fused"] and o["sig"] == 3:
            a("s_mov_b64 exec, 1")
            a(f"buffer_store_dword v9, v8, {sr(S_WS,4)}, 0 offen sc1")
            a("s_mov_b64 exec, -1")
        a("L_cons3:")
        self.stamp(1)
        self.dma_setup()
        if o["bias0"]:
            self.bias_load()
        self.prefetch(20)
        self.stamp(2)
        if o["fused"]:
            a("s_branch L_rest")
            a("L_prod:")
            self.producer("", False)
            pick(S_DMASK, [msk(p) for p in self.pol[4:]] * 2)
            a("s_barrier")
            a(f"s_cmp_lg_u32 s{S_WAVE}, 0")
            a("s_cbranch_scc1 L_cons2")
            if o["sig"] != 4:
                a("v_mov_b32 v8, 1")
                a("s_mov_b64 exec, 1")
            if o["sig"] == 4:
                a(f"v_readfirstlane_b32 s{S_T0}, v8")
                a("s_mov_b64 exec, 0xffff")
                a(f"s_cmp_lg_u32 s{S_T0}, 1")
                a("s_cbranch_scc1 L_pwait")
                a("L_pset:")
                a(f"buffer_store_dword v10, v9, {sr(S_WS,4)}, 0 offen sc1")
                self.tailblocks.append("\n".join([
                    "L_pwait:", f"s_mov_b32 s{S_T1}, {o['maxpoll']}", "L_pwait1:", f"buffer_load_dword v8, off, {sr(S_DBG,4)}, 0 sc1",
                    "s_waitcnt vmcnt(0)", f"v_readfirstlane_b32 s{S_T0}, v8", "s_nop 3", f"s_cmp_eq_u32 s{S_T0}, 1", "s_cbranch_scc1 L_pset",
                    f"s_sub_u32 s{S_T1}, s{S_T1}, 1", "s_cbranch_scc0 L_pwait1", "s_branch L_notlast"]))
            elif o["sig"] == 2:
                a(f"s_lshr_b32 s{S_T0}, s{S_TASK}, 1")
                a(f"s_lshl_b32 s{S_T0}, s{S_T0}, 2")
                a(f"s_bitcmp1_b32 s{S_TASK}, 0")
                a(f"s_cselect_b32 s{S_T1}, 128, 0")
                a(f"s_add_u32 s{S_T0}, s{S_T0}, s{S_T1}")
                a(f"v_mov_b32 v9, s{S_T0}")
                a(f"buffer_store_dword v8, v9, {sr(S_DBG,4)}, 0 offen {o['fs']}")
            else:
                a(f"buffer_atomic_add v8, off, {sr(S_DBG,4)}, 0 offset:128 sc0 sc1")
                if o["sig"] == 3:
                    a("s_mov_b64 exec, -1")
                    a(f"s_mov_b32 s{S_T1}, {MB_OFF}")
                    a(f"v_lshl_add_u32 v10, v{V_LANE}, 7, s{S_T1}")
                    for k in range(1, 4):
                        a(f"v_add_u32 v{10+k}, {8192*k}, v10")
                a("v_mov_b32 v9, 1")
                a("s_waitcnt vmcnt(0)")
                a(f"v_readfirstlane_b32 s{S_T0}, v8")
                a("s_nop 3")
                a(f"s_cmp_lg_u32 s{S_T0}, {NTASK-1}")
                a("s_cbranch_scc1 L_notlast")
                if o["sig"] == 3:
                    for k in range(4):
                        a(f"buffer_store_dword v9, v{10+k}, {sr(S_WS,4)}, 0 offen sc1")
                    a("s_mov_b64 exec, 1")
                a(f"buffer_store_dword v9, off, {sr(S_DBG,4)}, 0 {o['fs']}")
                if o["diag"] and o["diag"][2] == "last":
                    a("s_mov_b32 s101, -1")
            a("L_notlast:")
            self.stamp(15)
            a("s_mov_b64 exec, -1")
            a("L_cons2:")
            self.lane_setup()
            if o["bar2"] and o["sig"] != 4:
                a("s_barrier")
            a("s_branch L_cons3")
            self.flush_tail()
            a("L_rest:")
        for reg, wm in ((S_WMASK, self.wmask), (S_WMASK2, self.wmask2)):
            pick(reg, [hex(x) for x in wm[:4]])
            if o["fused"]:
                pick(S_T1, [hex(x) for x in wm[4:]] * 2)
                a(f"s_cmp_lt_u32 s{S_TASK}, {NTASK}")
                a(f"s_cselect_b32 s{reg}, s{S_T1}, s{reg}")
        if not o["bias0"]:
            self.bias_load()
        self.lane_setup2()
        self.tables_init()
        pre, C, G = self.build()
        if o["fused"]:
            a(f"s_cmp_lg_u32 s{S_WAVE}, 0")
            a("s_cbranch_scc1 L_ready")
            if o["sig"] == 4:
                a(f"s_mov_b32 s{S_T1}, {o['maxpoll']}")
                a(f"s_mov_b32 s{S_T0}, {FL_OFF}")
                a(f"v_lshl_add_u32 v9, v{V_LANE}, 7, s{S_T0}")
                a(f"s_bfe_u32 s{S_T0}, s{S_DMASK}, {hex(4 << 16 | 20)}")
                a(f"s_cmp_ge_u32 s{S_T0}, 6")
                a("s_waitcnt vmcnt(15)")
                a("s_cbranch_scc1 L_deep")
                a(f"s_waitcnt vmcnt({0 if o['bias0'] else 1})")
                a("L_deep:")
                self.stamp(14)
                a(f"v_readfirstlane_b32 s{S_T0}, v124")
                a(f"s_mov_b32 exec_hi, {(1 << (NTASK - 32)) - 1}")
                a(f"s_cmp_lg_u32 s{S_T0}, 1")
                a("s_cbranch_scc1 L_cwait")
                self.tailblocks.append("\n".join([
                    "L_cwait:", f"buffer_load_dword v8, off, {sr(S_DBG,4)}, 0 sc1", f"s_sub_u32 s{S_T1}, s{S_T1}, 1", "s_cbranch_scc1 L_giveup",
                    "s_waitcnt vmcnt(0)", f"v_readfirstlane_b32 s{S_T0}, v8", "s_nop 3", f"s_cmp_lg_u32 s{S_T0}, 1", "s_cbranch_scc1 L_cwait",
                    "s_branch L_poll"]))
                a("L_poll:")
                if o["psleep"]:
                    a(f"s_sleep {o['psleep']}")
                a(f"buffer_load_dword v8, v9, {sr(S_WS,4)}, 0 offen sc1")
                a(f"s_sub_u32 s{S_T1}, s{S_T1}, 1")
                a("s_cbranch_scc1 L_giveup")
                a("s_waitcnt vmcnt(0)")
                a("v_cmp_ne_u32 vcc, 1, v8")
                a("s_nop 4")
                a("s_cbranch_vccnz L_poll")
            else:
                if o["sig"] == 2:
                    a(f"v_lshlrev_b32 v9, 2, v{V_LANE}")
                    a("s_waitcnt vmcnt(0)")
                else:
                    a("s_mov_b64 exec, 1")
                a(f"s_mov_b32 s{S_T1}, {o['maxpoll']}")
                if o["stamp"] and (o["stamp"] is True or 14 in o["stamp"]):
                    a("s_waitcnt vmcnt(0)")
                    self.stamp(14)
                if o["sig"] == 3:
                    self.mb_addr(S_T0, S_MASK)
                    a(f"v_mov_b32 v9, s{S_T0}")
                    a(f"s_waitcnt vmcnt({5*self.premin})")
                a("L_poll:")
                if o["psleep"]:
                    a(f"s_sleep {o['psleep']}")
                if o["sig"] == 3:
                    a(f"s_and_b32 s{S_T0}, s{S_T1}, 15")
                    a("s_cbranch_scc0 L_polld")
                    a(f"buffer_load_dword v8, v9, {sr(S_WS,4)}, 0 offen sc1")
                    a("L_pollb:")
                    self.tailblocks.append(f"L_polld:\nbuffer_load_dword v8, off, {sr(S_DBG,4)}, 0 sc1\ns_branch L_pollb")
                else:
                    a(f"buffer_load_dword v8, {'v9' if o['sig'] == 2 else 'off'}, {sr(S_DBG,4)}, 0 {'offen ' if o['sig'] == 2 else ''}{o['pl']}")
                a(f"s_sub_u32 s{S_T1}, s{S_T1}, 1")
                a("s_cbranch_scc1 L_giveup")
                a("s_waitcnt vmcnt(0)")
                if o["sig"] == 2:
                    a("v_cmp_ne_u32 vcc, 0, v8")
                    a(f"s_bcnt1_i32_b64 s{S_T0}, vcc")
                    a(f"s_cmp_lt_u32 s{S_T0}, {NTASK}")
                else:
                    a(f"v_readfirstlane_b32 s{S_T0}, v8")
                    a("s_nop 3")
                    a(f"s_cmp_lg_u32 s{S_T0}, 1")
                a("s_cbranch_scc1 L_poll")
            a("L_polled:")
            a("s_mov_b64 exec, -1")
            a("L_ready:")
            self.tailblocks.append(f"L_giveup:\ns_waitcnt vmcnt(0)\nv_mov_b32 v8, {L_PL + 256}\nv_mov_b32 v9, 1\nds_write_b32 v8, v9\ns_branch L_polled")
        a("s_waitcnt lgkmcnt(0)")
        a("s_barrier")
        self.stamp(3)
        self.emit_build(pre, C, G)
        self.stamp(4, "s[94:95]")
        self.loop_state()
        a("s_waitcnt lgkmcnt(0)")
        a(f"v_mov_b32 v{V_X if o['peel'] else V_T}, {L_PL + 256}")
        a("s_barrier")
        if o["peel"]:
            self.peel()
            if max(p[1] for p in self.pol):
                self.prefetch(24, "L_pf2")
            for x in self.dma_advance(first=True):
                a(x)
            a(f"s_add_u32 s{S_OOFF}, s{S_OOFF}, {256*TB}")
            self.stamp(5)
            a("s_waitcnt lgkmcnt(0)")
            a("s_barrier")
            if o["links"] is None:
                a(f"s_cmp_lg_u32 s{S_LINK}, 0")
                a("s_cbranch_scc1 L_loopnk_p3")
            a("s_branch L_loopn_p3")
        else:
            a(f"ds_read_b32 v{V_T}, v{V_T}")
            if o["links"] is None:
                a(f"s_cmp_lg_u32 s{S_LINK}, 0")
                a("s_cbranch_scc1 L_linked")
        self.main_loop(bool(o["links"]), "")
        a("L_fin:")
        if o["stamp"]:
            a(f"v_mbcnt_lo_u32_b32 v{V_LANE}, -1, 0\nv_mbcnt_hi_u32_b32 v{V_LANE}, -1, v{V_LANE}")
        self.stamp(6)
        if o["stamp"]:
            a("s_waitcnt vmcnt(0)")
            self.stamp(7)
            a("v_writelane_b32 v255, s100, 0")
            a(f"s_lshl_b32 s{S_T0}, s2, 2\ns_add_u32 s{S_T0}, s{S_T0}, s{S_WAVE}\ns_lshl_b32 s{S_T0}, s{S_T0}, 6")
            a(f"s_add_u32 s{S_T0}, s{S_T0}, {WSBYTES - 65536}")
            if o["trace"]:
                a(f"s_lshl_b32 s{S_T1}, s2, 2\ns_add_u32 s{S_T1}, s{S_T1}, s{S_WAVE}\ns_lshl_b32 s{S_T1}, s{S_T1}, 8")
                a(f"s_add_u32 s{S_T1}, s{S_T1}, {WSBYTES - 65536 - 262144}")
                a(f"v_lshl_add_u32 v8, v{V_LANE}, 2, s{S_T1}")
                a(f"buffer_store_dword v254, v8, {sr(S_WS,4)}, 0 offen")
                a("s_nop 1")
            a(f"v_lshl_add_u32 v254, v{V_LANE}, 2, s{S_T0}")
            a("s_mov_b32 exec_lo, 0xffff\ns_mov_b32 exec_hi, 0")
            a(f"buffer_store_dword v255, v254, {sr(S_WS,4)}, 0 offen")
            if o["diag"]:
                n1, n0, wg, mul = o["diag"]
                a(("s_cmp_lg_u32 s101, -1" if wg == "last" else f"s_cmp_lg_u32 s2, {wg}") + f"\ns_cbranch_scc1 L_end_{K}\ns_cmp_lg_u32 s{S_WAVE}, 0\ns_cbranch_scc1 L_end_{K}")
                a(f"v_readlane_b32 s60, v255, {n1}\nv_readlane_b32 s61, v255, {n0}\ns_nop 3\ns_sub_u32 s60, s60, s61\ns_mul_i32 s60, s60, {mul}")
                a("s_min_u32 s60, s60, 100000\ns_add_u32 s60, s60, 10000")
                a("L_diag:\ns_sleep 1\ns_memrealtime s[62:63]\ns_waitcnt lgkmcnt(0)\ns_sub_u32 s62, s62, s100\ns_cmp_lt_u32 s62, s60\ns_cbranch_scc1 L_diag")
        a(f"L_end_{K}:\ns_endpgm")
        self.flush_tail()
        if o["links"] is None:
            a("L_linked:")
            self.main_loop(True, "k")
            a("s_branch L_fin")
            self.flush_tail()
        self.slow_path(K)
        a('.section .rodata,"a"\n.p2align 6')
        if not o["fused"]:
            self.descriptor("prep_kernel", 128, 128)
            a(".p2align 6")
        self.descriptor(K, 512, 256)
        return "\n".join(self.L) + "\n"


if __name__ == "__main__":
    opts = eval("dict(" + (sys.argv[2] if len(sys.argv) > 2 else "") + ")")
    out = sys.argv[1] if len(sys.argv) > 1 else "cdna_kernels/" + NAME + ".s"
    open(out, "w").write(Gen(**opts).gen())
```

```python
import sys

NAME = "standalone__structured_sparse_n_m__ragged"
TB = 18432
TBL = TB + 128
NB = 8
CNT_OFF = 0x60000
MB_OFF = 0x68000
FL_OFF = 0x70000
CLEARER = 24
PRIV0 = 2
XBYTES = 75497472
WBYTES = 663552
WSBYTES = 301989888
A_OFF = 0
I_OFF = 331776
I8_OFF = I_OFF + 36864
R1_OFF = I8_OFF + 5120
R8_OFF = R1_OFF + 9216
COPY = 393216
NTASK = 41
L_WV = NB * TBL
WV_SZ = 3584
O_X, O_K, O_M, O_BIAS, O_IDX = 64, 384, 704, 1024, 1792
L_PL = L_WV + 4 * WV_SZ
LDS_BYTES = 163840
assert L_PL + 512 <= LDS_BYTES and L_WV % 256 == 0 and WV_SZ % 256 == 0

V_RD0, V_RD1, V_TAB, V_DMA, V_ST, V_ST8, V_BP, V_LANE = 0, 1, 2, 3, 4, 5, 6, 7
V_ACC = 8
V_B = 44
V_BR = 76
V_P = 92
V_T = 108
V_P8 = 112
V_X = 114
V_AD = 118
V_I = 138
V_I8 = 174
V_IR = 179
V_A = 186
S_X, S_OUT, S_WS, S_W, S_B, S_DBG = 16, 20, 24, 28, 32, 36
S_WAVE = 40
S_IT, S_BUF, S_DELTA, S_M0B, S_XOFF, S_OOFF = 41, 42, 43, 44, 45, 46
S_T0, S_T1 = 47, 3
S_MASK = 48
S_EVEN, S_ODD = 80, 82
S_TASK, S_TEND, S_BASE, S_MODE, S_CONT = 84, 85, 86, 87, 88
S_BAD = 90
S_MORE, S_LINK = 78, 89
S_C0 = 93
S_BUFN, S_CTB, S_OINC, S_XOFF5, S_M05, S_M0W, S_HALF = 4, 5, 6, 7, 8, 9, 10
S_NMASK = 12
S_WMASK, S_WMASK2 = 92, 87
S_XINC, S_OINC2, S_NT = 13, 14, 15
S_Q, S_CL, S_CB, S_K5, S_CL0, S_CT, S_W0 = 48, 56, 57, 58, 59, 60, 62
V_C = 7
S_DMASK, S_NB0 = 85, 88


def vr(b, n=1):
    return f"v{b}" if n == 1 else f"v[{b}:{b+n-1}]"


def sr(b, n=1):
    return f"s{b}" if n == 1 else f"s[{b}:{b+n-1}]"


def afrag(s, t):
    f = 9 * s + t
    return f"a[{4*f}:{4*f+3}]" if f < 64 else vr(V_A + 4 * (f - 64), 4)


def aidx(s, t):
    if t < 8:
        return V_I + 4 * s + (t >> 1), t & 1
    return V_I8 + (s >> 1), s & 1


BBUF = [0, 1, 2, 3, 0, 1, 0, 2, 3]
PEEL_T = [8, 0, 1, 2, 3, 4, 5, 6, 7]
RT = [[0, 1], [1, 2, 3], [3, 4, 5], [5, 6, 7], [7, 8]]


class Op:
    def __init__(self, text, kind, rd=(), wr=(), tag=""):
        self.text, self.kind, self.rd, self.wr, self.tag = text, kind, set(rd), set(wr), tag


def rng(b, n):
    return range(b, b + n)


class Gen:
    def __init__(self, **o):
        self.o = dict(fused=True, ld="nt", st="sc1", bperm=True, grp=None, nb0=None, gsh=3, gsh2=4, split=0, dyn=(10, 3), psh=6, peel=True, ptail=10, midg=(12, 34, 58, 82, 106, 126), vcap=18, stp=None, stt=None, ste=None, mbg=64, cwg=46, dwg=20, wbl2=None, stn=None, pad=0, swp=(0, 0, 0), dropm=(), st8='', stc=None, stamp=False, nodma=False, wl="sc1", ws="sc1",
                      vmw=20, lper=14, drop=(), cyc=False, links=None, ng4=8, px=2, maxpoll=20015, warm=True, bcast=True, l0=12, lw=2, cwarm=True, ldw='', ldc='', pfd=0, bias0=True, ldp=None, ptouch=False, pspread=True, pfw=(3, 1, 0, 0), wtouch=False, bar2=True, early=True, ltail=24, coal=True, rpos=(18, 35, 50, 63, 75), rposl=(18, 36, 52, 66, 78),
                      lead=8, stg=(9, 16, 23, 30, 37), dmag=(44, 52, 60, 63, 66), gsp=2, eager=99, verbose=False, hack=None, diag=None, sig=4, psleep=0, pl='sc1', fs='sc1', isort=False, trace=False, chain=True, ord1=(0,1,4,5,6,2,3,7,8), ord2=(0,4,5,1,6,7,2,3,8), align2=True, order='hp')
        self.o.update(o)
        if self.o["grp"] is None and self.o["nb0"] is None:
            self.o.update(grp=[(3, 2, 2), (8, 0, 5), (3, 2, 2)])
        grp = self.o["grp"] or [(self.o["nb0"], 0, 0)] * 2
        if len(grp) != 6:
            grp = list(grp[:-1]) * (4 // (len(grp) - 1)) + [grp[-1]] * 2
        sp = self.o["split"]
        if sp:
            self.o["gsh"], self.o["gsh2"] = 0, 3
        self.pol, self.nt = [], []
        self.mid = []
        for c, (n1, n2, its) in enumerate(grp):
            self.mid.append(n1[1] if isinstance(n1, tuple) else 0)
            n1 = sum(n1) if isinstance(n1, tuple) else n1
            nt = 16 + (sp if c % 2 == 0 else -sp)
            nb = n1 + n2
            its = list(its) if isinstance(its, (list, tuple)) else [its]
            while len(its) < nt - nb:
                its.append(its[-1] + 1)
            assert len(its) == nt - nb and all(nb + n - 7 <= i <= nb + n - 2 for n, i in enumerate(its)) and n1 >= 1, (n1, n2, its)
            self.pol.append((n1, n2, its))
            self.nt.append(nt)
        self.dyn = self.o["dyn"]
        if self.dyn:
            NS, LK = self.dyn
            self.cl0 = NS - LK - 1
            assert not sp and all(its[NS - 1 - n1 - n2] == self.cl0 and its[-1] == 15 - LK for n1, n2, its in self.pol) and self.cl0 >= 1
        self.n2min = min(p[1] for p in self.pol)
        self.premin = min(p[0] - m for p, m in zip(self.pol, self.mid))
        assert not max(self.mid) or (self.o["peel"] and self.premin >= 2 and max(self.mid) <= len(self.o["midg"]))
        req = []
        for (n1, n2, its), nt in zip(self.pol, self.nt):
            r = [63] * nt
            for tile in range(n1, nt):
                i = tile - 1
                a0 = (1 if self.o["peel"] else -1) if tile < n1 + n2 else its[tile - n1 - n2]
                r[i] = sum(10 if j in its else 5 for j in range(a0 + 1, i + 1)) + 5 * max(0, n1 + n2 - 1 - tile)
                if a0 < 0:
                    r[i] -= 5
            if self.o["peel"]:
                assert n1 >= 3 and its[0] >= 2 and not sp
            elif self.o["early"]:
                r[0] = min(r[0], 5 * n2 + (5 if 0 in its else 0))
            if self.dyn:
                r = r[:self.cl0] + [5 * (self.dyn[1] - 1)]
            req.append(r)
        low = sorted({x for r in req for x in r if x < self.o["vmw"]})
        self.wlo = low[0] if low else 0
        best = None
        for hi in low or [0]:
            cost = sum(x - (hi if x >= hi else self.wlo) for r in req[:4] for x in r[1:] if x < self.o["vmw"])
            if best is None or cost < best[0]:
                best = (cost, hi)
        self.whi = best[1]
        self.wmask = [sum(1 << (i + 1) for i, x in enumerate(r) if x < self.o["vmw"]) for r in req]
        self.wmask2 = [sum(1 << (i + 1) for i, x in enumerate(r) if x < self.whi) for r in req]
        self.req = req
        self.L = []
        self.tailblocks = []

    def a(self, s):
        self.L.extend(s.split("\n"))

    def entry(self, label, nwg):
        a = self.a
        a(f".globl {label}\n.p2align 8\n.type {label},@function\n{label}:")
        a("s_load_dwordx8 s[4:11], s[0:1], 0")
        a("s_load_dwordx4 s[12:15], s[0:1], 32")
        a(f"s_cmp_ge_u32 s2, {nwg}")
        a(f"s_cbranch_scc1 L_end_{label}")
        if self.o["stamp"]:
            a("s_memrealtime s[100:101]")
        a("v_lshlrev_b32 v3, 7, v0")
        if self.o["cwarm"]:
            a("s_getpc_b64 s[96:97]")
            a(f"v_min_u32 v2, L_slow-{label}, v3")
            a(f"global_load_dword v120, v2, s[96:97] {self.o['ldc']}")
        if self.o["wtouch"]:
            a(f"s_lshr_b32 s{S_T0}, s2, 3")
            a(f"s_mul_i32 s{S_T0}, s{S_T0}, {162*128}")
            a(f"v_add_u32 v3, s{S_T0}, v3")
            a(f"v_min_u32 v3, {WBYTES-128}, v3")
            a(f"s_and_b32 s{S_T0}, s2, {8 - self.o['px']}")
            a("s_waitcnt lgkmcnt(0)")
            a(f"s_cbranch_scc1 L_nt_{label}")
            a(f"global_load_dword v121, v3, s[6:7] {self.o['ldw']}")
            a(f"L_nt_{label}:")
        a("v_lshrrev_b32 v1, 6, v0")
        a(f"v_and_b32 v{V_LANE}, 63, v0")
        a(f"v_readfirstlane_b32 s{S_WAVE}, v1")

    def mb_addr(self, d, t):
        a = self.a
        a(f"s_lshr_b32 s{d}, s2, 4")
        a(f"s_and_b32 s{t}, s2, 7")
        a(f"s_lshl3_add_u32 s{d}, s{d}, s{t}")
        a(f"s_and_b32 s{t}, s2, 8")
        a(f"s_lshl4_add_u32 s{d}, s{t}, s{d}")
        a(f"s_lshl_b32 s{d}, s{d}, 7")
        a(f"s_add_u32 s{d}, s{d}, {MB_OFF}")

    def ptouch(self):
        if self.o["ptouch"]:
            a = self.a
            a("s_mov_b64 exec, 1")
            a(f"s_mov_b32 s{S_T0}, {MB_OFF + 0x8000}")
            a(f"buffer_load_dword v122, off, {sr(S_WS,4)}, s{S_T0} sc1")
            a(f"buffer_load_dword v123, off, {sr(S_DBG,4)}, 0 sc1")
            a("s_mov_b64 exec, -1")

    def srds(self, which):
        for srd, p, size in ((S_W, 6, WBYTES), (S_X, 4, XBYTES), (S_WS, 14, WSBYTES), (S_B, 8, 1152), (S_OUT, 10, 0), (S_DBG, 12, 256)):
            if srd in which:
                self.a(f"s_mov_b32 s{srd+2}, {size}")
                self.a(f"s_mov_b32 s{srd+3}, 0x20000")
                self.a(f"s_mov_b32 s{srd}, s{p}")
                self.a(f"s_and_b32 s{srd+1}, s{p+1}, 0xffff")

    def entry_wait(self, first=None):
        lst = (S_W, S_X, S_WS, S_B, S_OUT, S_DBG)
        if first is not False:
            self.a("s_waitcnt lgkmcnt(0)")
        self.srds(lst if first is None else (lst[:1] if first else lst[1:]))

    def producer(self, sfx, generic):
        a = self.a
        ws = self.o["ws"]
        W, Z, K = 8, 24, 28
        OA, NB_, IX = 36, 44, 48
        VL, VA, VI, VM0, VM1, VSEL, CJ = 50, 51, 52, 53, 54, 55, 56
        F0, F1, H, U, T0, T1, T2, VLI, VA2, VLD, VLR = 58, 59, 60, 61, 62, 63, 64, 65, 66, 67, 57
        C = S_MASK
        SEL = S_MASK + 16
        CNT = S_MASK + 27
        ln = f"v{V_LANE}"
        a(f"s_and_b32 s{C}, s{S_TASK}, 3")
        a(f"s_lshr_b32 s{C+1}, s{S_TASK}, 2")
        a(f"s_sub_u32 s{C+2}, s{S_TASK}, 36")
        a(f"s_lshl_b32 s{C+3}, s{S_WAVE}, 4")
        a(f"s_lshl_b32 s{C+4}, s{C+2}, 1")
        a(f"s_lshl_b32 s{C+5}, s{C}, 8")
        a(f"s_cmp_lt_u32 s{S_TASK}, 36")
        a(f"s_cselect_b32 s{C+4}, s{C+1}, s{C+4}")
        a(f"s_cselect_b32 s{C+5}, s{C+5}, 1024")
        a(f"s_cselect_b32 s{C+6}, 8, 73728")
        a(f"s_cselect_b32 s{C+7}, 32, 8")
        a(f"s_cselect_b32 s{C+8}, 16, 32")
        a(f"s_cselect_b32 s{C+9}, 128, 64")
        a(f"s_mul_i32 s{C+4}, s{C+4}, 73728")
        a(f"s_mul_i32 s{C+10}, s{S_WAVE}, 18432")
        a(f"v_and_b32 v{F0}, 1, {ln}")
        a(f"v_bfe_u32 v{F1}, {ln}, 1, 1")
        a(f"v_bfe_u32 v{H}, {ln}, 2, 2")
        a(f"v_bfe_u32 v{T0}, {ln}, 4, 1")
        a(f"v_lshrrev_b32 v{T1}, 5, {ln}")
        a(f"v_lshl_add_u32 v{VL}, v{F0}, 2, s{C+4}")
        a(f"v_mad_u32_u24 v{VL}, v{F1}, s{C+6}, v{VL}")
        a(f"v_mad_u32_u24 v{VL}, v{H}, s{C+7}, v{VL}")
        a(f"v_mad_u32_u24 v{VL}, v{T0}, s{C+8}, v{VL}")
        a(f"v_mad_u32_u24 v{VL}, v{T1}, s{C+9}, v{VL}")
        a(f"v_add_u32 v{VL}, s{C+5}, v{VL}")
        a(f"v_add_u32 v{VL}, s{C+10}, v{VL}")
        a(f"v_add_u32 v{T0}, 4608, v{VL}")
        a(f"v_add_u32 v{T1}, 9216, v{VL}")
        a(f"v_add_u32 v{T2}, 13824, v{VL}")
        if not generic:
            self.entry_wait(first=True)
        for q in range(4):
            for j in range(4):
                a(f"buffer_load_dword v{W+4*q+j}, v{(VL, T0, T1, T2)[q]}, {sr(S_W,4)}, 0 offen offset:{1152*j} {'' if generic else self.o['ldw']}")
        if not generic:
            self.stamp(8)
            self.entry_wait(first=False)
            self.ptouch()
        a(f"s_mul_i32 s{C+4}, s{C}, 9")
        a(f"s_add_u32 s{C+4}, s{C+4}, s{C+1}")
        a(f"s_mul_i32 s{C+5}, s{C+4}, 9")
        a(f"s_mul_i32 s{C+6}, s{C+2}, 18")
        a(f"s_add_u32 s{C+6}, s{C+6}, 8")
        a(f"s_lshl_b32 s{C+7}, s{C+4}, 2")
        a(f"s_add_u32 s{C+7}, s{C+7}, s{S_WAVE}")
        a(f"s_lshl_b32 s{C+8}, s{C+2}, 2")
        a(f"s_add_u32 s{C+8}, s{C+8}, s{S_WAVE}")
        a(f"s_cmp_eq_u32 s{S_TASK}, 40")
        a(f"s_cselect_b32 s{C+9}, 0x100000, 9")
        a(f"s_cmp_lt_u32 s{S_TASK}, 36")
        a(f"s_cselect_b32 s{C+5}, s{C+5}, s{C+6}")
        a(f"s_cselect_b32 s{C+6}, 2, 81")
        a(f"s_cselect_b32 s{C+9}, 1, s{C+9}")
        a(f"s_cselect_b32 s{C+7}, s{C+7}, s{C+8}")
        a(f"s_mov_b32 s{C+8}, {I_OFF}")
        a(f"s_cselect_b32 s{C+8}, s{C+8}, {I8_OFF}")
        a(f"s_mov_b32 s{C+10}, {R1_OFF}")
        a(f"s_cselect_b32 s{C+10}, s{C+10}, {R8_OFF}")
        a(f"s_cselect_b32 s{C+11}, 16, 4")
        a(f"s_cselect_b32 s{C+12}, 4, 64")
        a(f"s_cselect_b32 s{C+13}, 12, 11")
        a(f"s_cselect_b32 s{C+14}, 1, 0x8001")
        a(f"v_lshrrev_b32 v{U}, 4, {ln}")
        a(f"v_lshlrev_b32 v{T0}, 1, v{F0}")
        a(f"v_lshl_add_u32 v{H}, v{H}, 2, v{T0}")
        a(f"v_add_u32 v{T0}, v{H}, v{F1}")
        a(f"v_mul_u32_u24 v{VA}, s{C+6}, v{U}")
        a(f"v_add_lshl_u32 v{VA}, v{VA}, s{C+5}, 6")
        a(f"v_add3_u32 v{VA}, v{VA}, v{T0}, s{C+3}")
        a(f"v_lshl_add_u32 v{VA}, v{VA}, 4, s{S_BASE}")
        a(f"s_lshl_b32 s{C+9}, s{C+9}, 10")
        a(f"v_add_u32 v{VA2}, s{C+9}, v{VA}")
        a(f"s_lshl_b32 s{C+4}, s{C+7}, 8")
        a(f"s_add_u32 s{C+4}, s{C+4}, s{C+8}")
        a(f"s_add_u32 s{C+4}, s{C+4}, s{S_BASE}")
        a(f"v_mul_u32_u24 v{VI}, s{C+11}, v{T0}")
        a(f"v_mad_u32_u24 v{VI}, v{U}, s{C+12}, v{VI}")
        a(f"v_lshl_add_u32 v{VM1}, {ln}, 2, s{C+4}")
        if not generic:
            a(f"s_lshr_b32 s{C+4}, s{C+7}, 2")
            a(f"s_lshl_b32 s{C+4}, s{C+4}, 8")
            a(f"s_add_u32 s{C+10}, s{C+10}, s{C+4}")
            a(f"s_lshl2_add_u32 s{C+10}, s{C+3}, s{C+10}")
            a(f"s_lshl_b32 s{C+4}, s{C+3}, 1")
            a(f"s_add_u32 s{C+4}, s{C+4}, s{C+14}")
            a(f"v_lshl_add_u32 v{T0}, v{U}, 1, v{F1}")
            a(f"v_lshlrev_b32 v{T0}, s{C+13}, v{T0}")
            a(f"v_lshl_add_u32 v{VM0}, v{H}, 7, v{T0}")
            a(f"v_add_u32 v{VM0}, s{C+4}, v{VM0}")
            a(f"v_and_b32 v{T0}, 12, {ln}")
            a(f"v_and_b32 v{T1}, 15, {ln}")
            a(f"v_mad_u32_u24 v{T0}, v{T0}, 3, v{T1}")
            a(f"v_lshl_add_u32 v{T0}, v{T0}, 2, s{C+3}")
            a(f"v_mov_b32 v{VLD}, 0")
            a(f"ds_write_b32 v{T0}, v{VLD}")
            a(f"s_lshl2_add_u32 s{C+4}, s{S_TASK}, s{S_WAVE}")
            a(f"s_lshl_b32 s{C+4}, s{C+4}, 7")
            a(f"s_add_u32 s{C+4}, s{C+4}, {CNT_OFF - 64}")
            a(f"v_lshl_add_u32 v{VLI}, {ln}, 2, s{C+10}")
            a(f"v_lshl_add_u32 v{T0}, {ln}, 2, s{C+4}")
            a(f"v_cmp_gt_u32 vcc, 16, {ln}")
            a(f"s_lshl_b32 s{C+4}, s{C+3}, 2")
            a(f"v_lshl_add_u32 v{VLR}, {ln}, 2, s{C+4}")
            a(f"v_cndmask_b32 v{VLI}, v{T0}, v{VLI}, vcc")
            if self.o["sig"] == 3:
                self.mb_addr(C + 4, C + 5)
                a(f"s_sub_u32 s{C+4}, s{C+4}, 192")
                a(f"v_cmp_gt_u32 vcc, 48, {ln}")
                a(f"v_lshl_add_u32 v{T0}, {ln}, 2, s{C+4}")
                a("s_nop 0")
                a(f"v_cndmask_b32 v{VLI}, v{T0}, v{VLI}, vcc")
            a(f"s_mov_b32 s{CNT}, 0")
            a(f"s_mov_b32 s{SEL+9}, 0x05060100")
            a(f"s_mov_b32 s{SEL+10}, 0xffff")
        a(f"v_mov_b32 v{VSEL}, 0x05040100")
        a(f"v_mov_b32 v{T0}, 0x03020706")
        a(f"v_cmp_eq_u32 vcc, 1, v{F1}")
        CJ, EF, EO = 68, 76, 82
        for n in range(8):
            a(f"v_mov_b32 v{CJ+n}, {hex(0x0f0a0500 | 0x01010101 * (((n >> 1) << 4) | ((n & 1) << 7)))}")
        a(f"v_cndmask_b32 v{VSEL}, v{VSEL}, v{T0}, vcc")
        if not generic:
            for r in range(3):
                a(f"v_mov_b64 {vr(EF+2*r,2)}, 0")
            a(f"v_mov_b32 v{EO}, 0")
        for c in range(2):
            for j in range(4):
                a(f"s_mov_b32 s{SEL+4*c+j}, {hex(((5+2*c) << 24) | ((4+2*c) << 16) | ((5+2*c) << 8) | j)}")
        a(f"s_mov_b32 s{SEL+8}, 0x05060102")
        if generic:
            a(f"s_cmp_lg_u32 s{S_MODE}, 0")
        sw = "src0_sel:WORD_1 src1_sel:WORD_1"
        for q in range(4):
            a(f"s_waitcnt vmcnt({12-4*q + (2 if self.o['ptouch'] and not generic else 0)})")
            if q in (0, 3) and not generic:
                self.stamp(9 + q // 3)
            for c in range(2):
                n = 2 * q + c
                for j in range(4):
                    a(f"v_perm_b32 v{Z+j}, v{W+4*q+j}, v{CJ+n}, s{SEL+4*c+j}")
                a(f"v_max3_f32 v{K}, |v{Z}|, |v{Z+1}|, |v{Z+2}|")
                a(f"v_med3_f32 v{K+1}, |v{Z}|, |v{Z+1}|, |v{Z+2}|")
                a(f"v_min3_f32 v{K+2}, |v{Z}|, |v{Z+1}|, |v{Z+2}|")
                a(f"v_med3_f32 v{K+4}, v{K}, v{K+1}, |v{Z+3}|")
                a(f"v_med3_f32 v{K+5}, v{K+1}, v{K+2}, |v{Z+3}|")
                a(f"v_max_f32 v{K+3}, v{K}, |v{Z+3}|")
                if generic:
                    a(f"v_cmp_eq_u32_sdwa vcc, v{K+5}, v{K+4} {sw}")
                    a(f"s_cbranch_scc0 L_rb{n}{sfx}")
                    a(f"v_min_f32 v{K+2}, v{K+2}, |v{Z+3}|")
                    a(f"v_cndmask_b32 v{K+3}, 0, v{K+5}, vcc")
                    a(f"v_cmp_eq_u32_sdwa vcc, v{K+2}, v{K+4} {sw}")
                    a("s_nop 1")
                    a(f"v_cndmask_b32 v{K+4}, 0, v{K+2}, vcc")
                    a(f"L_rb{n}{sfx}:")
                a(f"v_perm_b32 v{OA+4*c+q}, v{K+3}, v{K+4}, s{SEL+8}")
                nb = NB_ + 2 * c + (q >> 1)
                if q & 1 == 0:
                    a(f"v_bfi_b32 v{nb}, 3, v{K+4}, v{K+3}")
                else:
                    a(f"v_bfi_b32 v{K+3}, 3, v{K+4}, v{K+3}")
                    a(f"v_lshlrev_b32 v{K+3}, 4, v{K+3}")
                    a(f"v_bfi_b32 v{nb}, 15, v{nb}, v{K+3}")
                if not generic:
                    a(f"v_cmpx_eq_u32_sdwa vcc, v{K+5}, v{K+4} {sw}")
                    if n >= 3:
                        a(f"v_or_b32 v{EO}, v{EO}, v{EF+4}")
                    if n >= 2:
                        a(f"v_mov_b64 {vr(EF+4,2)}, {vr(EF+2,2)}")
                    if n >= 1:
                        a(f"v_mov_b64 {vr(EF+2,2)}, {vr(EF,2)}")
                    a(f"v_mov_b32 v{EF}, v{K+5}")
                    a(f"v_min_f32 v{EF+1}, v{K+2}, |v{Z+3}|")
                    a("s_mov_b64 exec, -1")
        x2 = "quad_perm:[2,3,0,1] row_mask:0xf bank_mask:0xf"
        a("s_mov_b32 vcc_lo, 0x33333333")
        a("s_mov_b32 vcc_hi, 0x33333333")
        for d in range(4):
            a(f"v_cndmask_b32_dpp v{Z+d}, v{OA+4+d}, v{OA+d}, vcc {x2}")
        a("s_not_b64 vcc, vcc")
        a(f"buffer_store_dwordx4 {vr(Z,4)}, v{VA}, {sr(S_WS,4)}, 0 offen {ws}")
        for d in range(4):
            a(f"v_cndmask_b32_dpp v{OA+4+d}, v{OA+d}, v{OA+4+d}, vcc {x2}")
        a(f"s_mov_b32 s{C+4}, 0x0c0c0400")
        a(f"s_mov_b32 s{C+5}, 0x04000c0c")
        a(f"buffer_store_dwordx4 {vr(OA+4,4)}, v{VA2}, {sr(S_WS,4)}, 0 offen {ws}")
        a(f"v_perm_b32 v{IX}, v{NB_+1}, v{NB_}, s{C+4}")
        a(f"v_perm_b32 v{IX+1}, v{NB_+3}, v{NB_+2}, s{C+5}")
        a(f"v_or_b32 v{IX}, v{IX}, v{IX+1}")
        a("s_nop 1")
        a(f"v_mov_b32_dpp v{IX+1}, v{IX} quad_perm:[2,3,0,1] row_mask:0xf bank_mask:0xf")
        a(f"v_perm_b32 v{IX}, v{IX+1}, v{IX}, v{VSEL}")
        a(f"ds_permute_b32 v{IX}, v{VI}, v{IX}")
        if generic:
            a("s_waitcnt lgkmcnt(0)")
            a(f"buffer_store_dword v{IX}, v{VM1}, {sr(S_WS,4)}, 0 offen {ws}")
        if not generic:
            self.stamp(11)
            a(f"v_cmp_lt_u32 {sr(C+6,2)}, s{SEL+10}, v{EO}")
            a(f"L_emit{sfx}:")
            a(f"v_cmp_lt_u32 vcc, s{SEL+10}, v{EF}")
            a(f"v_cmp_eq_u32_sdwa {sr(C,2)}, v{EF+1}, v{EF} {sw}")
            a(f"v_perm_b32 v{T1}, v{EF}, v{VM0}, s{SEL+9}")
            a(f"v_bfe_u32 v{T0}, v{EF}, 2, 4")
            a(f"v_and_b32 v{T2}, 0x80, v{EF}")
            a(f"v_lshl_add_u32 v{T1}, v{T0}, 1, v{T1}")
            a(f"v_mbcnt_lo_u32_b32 v{T0}, vcc_lo, 0")
            a(f"v_mbcnt_hi_u32_b32 v{T0}, vcc_hi, v{T0}")
            a(f"v_add_u32 v{T1}, v{T2}, v{T1}")
            a(f"v_add_u32 v{T0}, s{CNT}, v{T0}")
            a(f"s_bcnt1_i32_b64 s{C+4}, vcc")
            a(f"s_add_u32 s{CNT}, s{CNT}, s{C+4}")
            a(f"v_cmp_gt_u32 {sr(C+4,2)}, 15, v{T0}")
            a(f"v_and_b32 v{T2}, 12, v{T0}")
            a(f"v_mad_u32_u24 v{T0}, v{T2}, 3, v{T0}")
            a(f"v_lshl_add_u32 v{T0}, v{T0}, 2, s{C+3}")
            a(f"s_and_b64 {sr(C,2)}, {sr(C,2)}, vcc")
            a(f"s_and_b64 exec, {sr(C+4,2)}, vcc")
            a(f"ds_write_b32 v{T0}, v{T1}")
            a(f"s_mov_b64 exec, {sr(C,2)}")
            a(f"v_mov_b32 v{EF}, v{EF+1}")
            a(f"v_mov_b32 v{EF+1}, 0")
            a(f"s_not_b64 exec, exec")
            a(f"v_mov_b64 {vr(EF,2)}, {vr(EF+2,2)}")
            a(f"v_mov_b64 {vr(EF+2,2)}, {vr(EF+4,2)}")
            a(f"v_mov_b64 {vr(EF+4,2)}, 0")
            a("s_mov_b64 exec, -1")
            a(f"v_or3_b32 v{T0}, v{EF}, v{EF+2}, v{EF+4}")
            a(f"v_cmp_lt_u32 vcc, s{SEL+10}, v{T0}")
            a(f"s_cmp_lg_u64 {sr(C+6,2)}, 0")
            a(f"s_cselect_b32 s{C+4}, 99, s{CNT}")
            a(f"s_cmp_gt_u32 s{C+4}, 15")
            a(f"s_cselect_b32 s{C+4}, -1, 0")
            a(f"v_mov_b32 v{T1}, s{C+3}")
            a(f"s_cbranch_vccnz L_emit{sfx}")
            a(f"v_mov_b32 v{T0}, s{C+4}")
            a(f"ds_write_b32 v{T1}, v{T0} offset:204")
            if self.o["sig"] == 4:
                a(f"v_lshlrev_b32 v{W+3}, 4, v{T1}")
            a("s_waitcnt lgkmcnt(0)")
            a("s_barrier")
            a("s_mov_b64 exec, 0xffff")
            a(f"ds_read_b32 v{VLD}, v{VLR}")
            a("s_mov_b64 exec, -1")
            a(f"buffer_store_dword v{IX}, v{VM1}, {sr(S_WS,4)}, 0 offen {ws}")
            if self.o["sig"] != 3:
                a("s_mov_b32 exec_hi, 0xffff")
            a("s_waitcnt lgkmcnt(0)")
            a(f"buffer_store_dword v{VLD}, v{VLI}, {sr(S_WS,4)}, 0 offen {ws}")
            if self.o["sig"] == 4:
                a("s_mov_b64 exec, 1")
                a(f"buffer_load_dword v{W}, v{W+3}, {sr(S_DBG,4)}, 0 offen sc1")
            a("s_mov_b64 exec, -1")
            if self.o["sig"] == 4:
                a(f"s_lshl_b32 s{C+4}, s{S_TASK}, 7")
                a(f"s_add_u32 s{C+4}, s{C+4}, {FL_OFF}")
                a(f"v_lshl_add_u32 v{W+1}, {ln}, 2, s{C+4}")
                a(f"v_mov_b32 v{W+2}, 1")
            self.stamp(12)
        a("s_waitcnt vmcnt(0)")
        if not generic:
            self.stamp(13)

    def lane_setup(self):
        a = self.a
        ln = f"v{V_LANE}"
        T0, T1, T2 = 72, 73, 74
        a(f"v_lshrrev_b32 v{T0}, 3, {ln}")
        a(f"v_and_b32 v{T1}, 7, {ln}")
        a(f"v_xor_b32 v{T1}, v{T1}, v{T0}")
        a(f"v_mul_u32_u24 v{T0}, 1152, v{T0}")
        a(f"s_and_b32 s{S_T0}, s{S_WAVE}, 1")
        a(f"s_mul_i32 s{S_T0}, s{S_T0}, 9216")
        a(f"s_lshr_b32 s{S_T1}, s{S_WAVE}, 1")
        a(f"s_lshl_b32 s{S_T1}, s{S_T1}, 7")
        a(f"s_add_u32 s{S_T0}, s{S_T0}, s{S_T1}")
        a(f"v_lshl_add_u32 v{T0}, v{T1}, 4, v{T0}")
        a(f"v_add_u32 v{V_DMA}, s{S_T0}, v{T0}")
        a(f"s_lshl_b32 s{S_M0B}, s{S_WAVE}, 10")
        if self.o["split"]:
            a(f"s_bitcmp1_b32 s2, 0")
            a(f"s_cselect_b32 s{S_XOFF}, 256, 1")
            a(f"s_add_u32 s{S_XOFF}, s{S_XOFF}, s2")
            a(f"s_mul_i32 s{S_XOFF}, s{S_XOFF}, {TB}")
        else:
            a(f"s_mul_i32 s{S_XOFF}, s2, {TB}")
        a(f"s_mov_b32 s{S_OOFF}, s{S_XOFF}")

    def lane_setup2(self):
        a = self.a
        ln = f"v{V_LANE}"
        T0, T1, T2 = 72, 73, 74
        a(f"v_and_b32 v{T0}, 15, {ln}")
        a(f"v_lshrrev_b32 v{T1}, 4, {ln}")
        a(f"v_and_b32 v{T2}, 7, {ln}")
        a(f"v_xor_b32 v{T2}, v{T2}, v{T1}")
        a(f"v_lshlrev_b32 v{T2}, 4, v{T2}")
        a(f"v_lshl_add_u32 v{V_RD0}, v{T0}, 7, v{T2}")
        a(f"v_xor_b32 v{V_RD1}, 64, v{V_RD0}")
        a(f"s_mul_i32 s{S_C0}, s{S_WAVE}, {WV_SZ}")
        a(f"s_add_u32 s{S_C0}, s{S_C0}, {L_WV}")
        a(f"v_lshl_add_u32 v{V_TAB}, v{T1}, 4, s{S_C0}")
        a(f"v_and_b32 v{T2}, 14, {ln}")
        a(f"v_mul_u32_u24 v{V_ST}, 1152, v{T2}")
        a(f"v_and_b32 v{T2}, 1, {ln}")
        a(f"v_lshl_add_u32 v{V_ST}, v{T2}, 4, v{V_ST}")
        a(f"v_lshl_add_u32 v{V_ST}, v{T1}, 5, v{V_ST}")
        a(f"s_lshl_b32 s{S_T0}, s{S_WAVE}, 8")
        a(f"v_add_u32 v{V_ST}, s{S_T0}, v{V_ST}")
        if self.o["hack"] == "q4":
            a(f"v_lshrrev_b32 v{T2}, 3, {ln}")
            a(f"v_mul_u32_u24 v{V_ST}, 2304, v{T2}")
            a(f"v_and_b32 v{T2}, 7, {ln}")
            a(f"v_lshl_add_u32 v{V_ST}, v{T2}, 4, v{V_ST}")
            a(f"v_add_u32 v{V_ST}, s{S_T0}, v{V_ST}")
        a(f"s_lshl_b32 s{S_T0}, s{S_WAVE}, 5")
        a(f"s_add_u32 s{S_T0}, s{S_T0}, 1024")
        if self.o["bperm"]:
            a(f"v_lshrrev_b32 v{T0}, 2, {ln}")
            a(f"v_and_b32 v{T1}, 3, {ln}")
            a(f"v_lshl_add_u32 v{V_BP}, v{T1}, 4, v{T0}")
            a(f"v_lshlrev_b32 v{V_BP}, 2, v{V_BP}")
        else:
            a(f"v_lshlrev_b32 v{V_BP}, 2, {ln}")
        a(f"v_mul_u32_u24 v{V_ST8}, 1152, v{T0}")
        a(f"v_lshl_add_u32 v{V_ST8}, v{T1}, 3, v{V_ST8}")
        a(f"v_add_u32 v{V_ST8}, s{S_T0}, v{V_ST8}")
        a(f"s_mov_b32 s{S_EVEN}, 0x55555555")
        a(f"s_mov_b32 s{S_EVEN+1}, 0x55555555")
        a(f"s_mov_b32 s{S_ODD}, 0xaaaaaaaa")
        a(f"s_mov_b32 s{S_ODD+1}, 0xaaaaaaaa")

    def dma_setup(self):
        a = self.a
        a(f"s_lshr_b32 s{S_T0}, s{S_WAVE}, 1")
        a(f"s_lshl_b32 s{S_T1}, s{S_T0}, 11")
        a(f"s_sub_u32 s{S_M05}, {16384-896}, s{S_T1}")
        a(f"s_lshl_b32 s{S_T1}, s{S_T0}, 7")
        a(f"s_add_u32 s{S_XOFF5}, s{S_XOFF}, 128")
        a(f"s_sub_u32 s{S_XOFF5}, s{S_XOFF5}, s{S_T1}")
        a(f"s_sub_u32 s{S_HALF}, s{S_T0}, 1")
        a(f"s_sub_u32 s{S_HALF+1}, 0, s{S_T0}")
        a(f"s_mov_b32 s{S_M0W}, s{S_M0B}")
        a(f"s_mov_b32 s{S_XINC}, {256*TB}")
        if self.o["split"]:
            a(f"s_bitcmp1_b32 s2, 0")
            a(f"s_cselect_b32 s{S_XINC}, s{S_XINC}, {-TB}")
            a(f"s_cselect_b32 s{S_NT}, 15, 17")
        else:
            a(f"s_mov_b32 s{S_NT}, 16")
        a(f"s_mov_b32 s{S_OINC2}, s{S_XINC}")

    def dma_advance(self, first=False):
        x = [] if first else [f"s_add_u32 s{S_XOFF}, s{S_XOFF}, {256*TB}", f"s_add_u32 s{S_XOFF5}, s{S_XOFF5}, {256*TB}",
                              f"s_add_u32 s{S_M0B}, s{S_M0B}, s{S_CTB}"]
        return x + [f"s_cmp_ge_u32 s{S_M0B}, {NB*TBL}", f"s_cselect_b32 s{S_M0B}, s{S_M0W}, s{S_M0B}"]

    def dma_tile(self, ld=None):
        a = self.a
        ld = self.o["ld"] if ld is None else ld
        for j in range(5):
            a(f"s_add_u32 m0, s{S_M0B}, {3840*j if j < 4 else 's%d' % S_M05}")
            a("s_nop 0" if j < 4 else f"s_mov_b64 exec, {sr(S_HALF,2)}")
            a(f"buffer_load_dwordx4 v{V_DMA}, {sr(S_X,4)}, s{S_XOFF if j < 4 else S_XOFF5} offen offset:{256*j if j < 4 else 896} {ld} lds")
        a("s_mov_b64 exec, -1")

    def prefetch(self, sh, lab="L_pf"):
        a = self.a
        a(f"s_bfe_u32 s{S_NB0}, s{S_DMASK}, {hex(4 << 16 | sh)}")
        if sh == 20 and self.o["pfw"]:
            k, n, ka, kp = self.o["pfw"]
            a(f"s_mov_b32 s{S_T1}, {k*TBL}")
            a(f"s_cmp_ge_u32 s{S_NB0}, 6")
            a(f"s_cselect_b32 s{S_T1}, s{S_T1}, {ka*TBL}")
            a(f"s_cmp_ge_u32 s{S_TASK}, {NTASK}")
            a(f"s_cselect_b32 s{S_T1}, s{S_T1}, {kp*TBL}")
        if sh != 20 and self.n2min == 0:
            a(f"s_cbranch_scc0 {lab}_e")
        a(f"{lab}:")
        self.dma_tile(self.o["ldp"] if sh == 20 else None)
        if sh == 20 and self.o["sig"] == 4 and self.o["fused"]:
            a(f"s_cmp_lg_u32 s{S_M0B}, {(min(3, self.premin)-1)*TBL}")
            a(f"s_cbranch_scc1 {lab}_f")
            a("s_mov_b64 exec, 1")
            a(f"buffer_load_dword v124, off, {sr(S_DBG,4)}, 0 sc1")
            a("s_mov_b64 exec, -1")
            a(f"{lab}_f:")
        if sh == 20 and self.o["pfw"]:
            n = self.o["pfw"][1]
            a(f"s_cmp_ge_u32 s{S_M0B}, s{S_T1}")
            a(f"s_cbranch_scc1 {lab}_n")
            a(f"s_waitcnt vmcnt({n})")
            a(f"{lab}_n:")
        a(f"s_add_u32 s{S_XOFF5}, s{S_XOFF5}, s{S_XINC}")
        a(f"s_add_u32 s{S_M0B}, s{S_M0B}, {TBL}")
        a(f"s_add_u32 s{S_XOFF}, s{S_XOFF}, s{S_XINC}")
        a(f"s_mov_b32 s{S_XINC}, {256*TB}")
        a(f"s_sub_u32 s{S_NB0}, s{S_NB0}, 1")
        a(f"s_cmp_lg_u32 s{S_NB0}, 0")
        a(f"s_cbranch_scc1 {lab}")
        a(f"{lab}_e:")

    def bias_load(self):
        a = self.a
        ln = f"v{V_LANE}"
        a(f"v_and_b32 v80, 3, {ln}")
        a(f"v_bfe_u32 v81, {ln}, 2, 2")
        a(f"v_bfe_u32 v82, {ln}, 4, 1")
        a("v_lshlrev_b32 v81, 3, v81")
        a("v_lshl_add_u32 v81, v80, 5, v81")
        a("v_lshl_add_u32 v81, v82, 7, v81")
        a(f"s_lshl_b32 s{S_T0}, s{S_WAVE}, 8")
        a(f"v_add_u32 v81, s{S_T0}, v81")
        a(f"s_lshl_b32 s{S_T0}, s{S_WAVE}, 5")
        a(f"s_add_u32 s{S_T0}, s{S_T0}, 1024")
        a(f"v_lshl_add_u32 v80, v80, 3, s{S_T0}")
        a(f"v_cmp_gt_u32 vcc, 32, {ln}")
        a("s_nop 1")
        a("v_cndmask_b32 v80, v80, v81, vcc")
        a(f"buffer_load_dwordx2 v[110:111], v80, {sr(S_B,4)}, 0 offen {self.o['ldc']}")

    def tables_init(self):
        a = self.a
        ln = f"v{V_LANE}"
        a(f"v_lshl_add_u32 v109, {ln}, 4, s{S_C0}")
        a(f"v_lshl_add_u32 v89, {ln}, 2, s{S_C0}")
        for r in range(4):
            a(f"v_mov_b32 v{76+r}, 0")
        a("v_mov_b32 v90, 0xdddddddd")
        a("ds_write_b128 v109, v[76:79]")
        for r in range(7):
            a(f"ds_write_b32 v89, v90 offset:{O_IDX+256*r}")
        a(f"s_lshl_b32 s{S_T0}, s{S_WAVE}, 2")
        a(f"s_add_u32 s{S_T0}, s{S_T0}, {L_PL + 256}")
        a(f"v_mov_b32 v88, s{S_T0}")
        a("ds_write_b32 v88, v76")

    def bias_store(self):
        return ["v_lshlrev_b32 v114, 16, v110", "v_and_b32 v115, 0xffff0000, v110", "v_lshlrev_b32 v116, 16, v111",
                "v_and_b32 v117, 0xffff0000, v111", "s_mov_b32 exec_hi, 15", f"ds_write_b128 v109, v[114:117] offset:{O_BIAS}",
                "s_mov_b64 exec, -1"]

    def wload_list(self, VA, VI8, pairs=False):
        wl = self.o["wl"]
        G = []
        so = S_C0 + 6
        cur = None
        for sp in range(5):
            g = []
            if sp == 4:
                g.append(f"s_mov_b32 s{so}, 4096")
            g.append(f"buffer_load_dword v{V_I8+sp}, v{VI8}, {sr(S_WS,4)}, {'s%d' % so if sp == 4 else '0'} offen offset:{1024*(sp%4)} {wl}")
            G.append(g)
        order = [(s, t) for s in range(9) for t in [None] + list(range(9))]
        if pairs:
            order = order[:70] + [(7, None), (8, None)] + [(s, t) for t in PEEL_T for s in (7, 8)]
        for s, t in order:
            if t is None:
                G.append([f"s_mov_b32 s{so-1}, {1024*s}",
                          f"buffer_load_dwordx4 {vr(V_I+4*s,4)}, v{VA+1}, {sr(S_WS,4)}, s{so-1} offen {wl}"])
            else:
                f = 9 * s + t
                g = []
                if cur != f >> 2:
                    cur = f >> 2
                    g.append(f"s_mov_b32 s{so}, {4096*cur}")
                g.append(f"buffer_load_dwordx4 {afrag(s,t)}, v{VA}, {sr(S_WS,4)}, s{so} offen offset:{1024*(f&3)} {wl}")
                G.append(g)
        return G

    def waddr(self, VA, VI8):
        a = self.a
        ln = f"v{V_LANE}"
        a(f"s_mul_i32 s{S_T0}, s{S_WAVE}, 82944")
        a(f"s_add_u32 s{S_T0}, s{S_T0}, s{S_BASE}")
        a(f"v_lshl_add_u32 v{VA}, {ln}, 4, s{S_T0}")
        a(f"s_mul_i32 s{S_T0}, s{S_WAVE}, 9216")
        a(f"s_add_u32 s{S_T0}, s{S_T0}, s{S_BASE}")
        a(f"s_add_u32 s{S_T0}, s{S_T0}, {I_OFF}")
        a(f"v_lshl_add_u32 v{VA+1}, {ln}, 4, s{S_T0}")
        a(f"s_lshl_b32 s{S_T0}, s{S_WAVE}, 6")
        a(f"s_add_u32 s{S_T0}, s{S_T0}, s{S_BASE}")
        a(f"s_add_u32 s{S_T0}, s{S_T0}, {I8_OFF}")
        a(f"v_and_b32 v{VI8}, 15, {ln}")
        a(f"v_lshl_add_u32 v{VI8}, v{VI8}, 2, s{S_T0}")
        a(f"v_lshrrev_b32 v{VI8+1}, 4, {ln}")
        a(f"v_lshl_add_u32 v{VI8}, v{VI8+1}, 8, v{VI8}")

    def build(self):
        a = self.a
        o = self.o
        ln = f"v{V_LANE}"
        wl = o["wl"]
        VA, VI8 = (112 if o["peel"] else 104), 106
        E, TT, RK, ST = 8, 24, 40, 56
        T0, T1, T2, T3 = 72, 73, 74, 75
        WARM = 76
        ONE, VW, KB, VST, RX, VWARM, CM, CV, TM, TBS, HI, AB, BM, VH, VK, LO = range(88, 104)
        SW = S_C0
        a(f"s_mul_i32 s{S_T0}, s{S_WAVE}, 2304")
        a(f"s_add_u32 s{S_T0}, s{S_T0}, {R1_OFF}")
        a(f"v_and_b32 v{T1}, 60, {ln}")
        a(f"v_mad_u32_u24 v{T1}, v{T1}, 3, {ln}")
        a(f"v_lshl_add_u32 v{T0}, v{T1}, 4, s{S_T0}")
        a(f"s_mov_b32 s{S_T0}, {R8_OFF - 36*64}")
        a(f"v_lshl_add_u32 v{T1}, v{T1}, 4, s{S_T0}")
        a(f"v_lshrrev_b32 v{T2}, 2, {ln}")
        a(f"v_cmp_gt_u32 vcc, 36, {ln}")
        a(f"v_lshlrev_b32 v{KB}, 11, v{T2}")
        a(f"v_subrev_u32 v{T2}, 9, v{T2}")
        a(f"v_lshlrev_b32 v{T2}, 12, v{T2}")
        a(f"v_cndmask_b32 v{T0}, v{T1}, v{T0}, vcc")
        a(f"v_cndmask_b32 v{KB}, v{T2}, v{KB}, vcc")
        a(f"s_lshl_b32 s{S_T0}, s{S_WAVE}, 12")
        a(f"s_add_u32 s{S_T0}, s{S_T0}, 0x8001")
        a(f"v_mov_b32 v{ONE}, 1")
        a(f"v_mov_b32 v{CM}, 0xf001")
        a(f"v_mov_b32 v{CV}, s{S_T0}")
        a(f"v_cndmask_b32 v{CM}, v{CM}, v{ONE}, vcc")
        a(f"v_cndmask_b32 v{CV}, v{CV}, v{ONE}, vcc")
        a(f"v_cndmask_b32 v{TM}, 0, 28, vcc")
        a(f"v_cndmask_b32 v{TBS}, 32, 0, vcc")
        a(f"v_add_u32 v{TBS}, s{SW}, v{TBS}")
        a(f"v_cmp_gt_u32 vcc, 56, {ln}")
        a(f"v_mov_b32 v{T1}, 0x40000000")
        tw = o["warm"] == 2
        a(f"s_lshr_b32 s{S_T0}, s2, {4 if tw else 3}")
        a(f"s_lshl_b32 s{S_T0}, s{S_T0}, 2")
        a(f"s_add_u32 s{S_T0}, s{S_T0}, s{S_WAVE}")
        a(f"s_mul_i32 s{S_T0}, s{S_T0}, {6144 if tw else 2944}")
        a(f"v_cndmask_b32 v{T0}, v{T1}, v{T0}, vcc")
        if tw:
            a(f"v_min_u32 v{VWARM}, 47, {ln}")
            a(f"v_lshl_add_u32 v{VWARM}, v{VWARM}, 7, s{S_T0}")
        else:
            a(f"v_lshl_add_u32 v{VWARM}, {ln}, 4, s{S_T0}")
        self.waddr(VA, VI8)
        a(f"v_and_b32 v{T2}, 15, {ln}")
        a(f"v_and_b32 v{T1}, 7, {ln}")
        a(f"v_lshlrev_b32 v{BM}, 1, v{T1}")
        a(f"v_lshlrev_b32 v{BM}, v{BM}, v{ONE}")
        a(f"v_lshlrev_b32 v{T1}, 4, v{T1}")
        a(f"v_lshl_add_u32 v{RX}, v{T2}, 7, v{T1}")
        a(f"v_lshl_or_b32 v{RX}, v{RX}, 16, v{RX}")
        a(f"v_lshrrev_b32 v{HI}, 5, {ln}")
        a(f"v_bfe_u32 v{AB}, {ln}, 3, 2")
        a(f"v_lshl_add_u32 v{AB}, v{AB}, 6, s{SW}")
        a(f"v_lshl_add_u32 v{VH}, {ln}, 1, s{SW}")
        a(f"v_lshrrev_b32 v{VK}, 4, {ln}")
        a(f"v_lshl_add_u32 v{VK}, v{VK}, 3, s{SW}")
        a(f"v_lshrrev_b32 v{LO}, 1, {ln}")
        a(f"v_lshlrev_b32 v{LO}, 5, v{LO}")
        a(f"s_mov_b32 s{S_LINK}, 0")
        pre = [f"buffer_load_dwordx4 {vr(E+4*r,4)}, v{T0}, {sr(S_WS,4)}, 0 offen offset:{64*r} {wl}" for r in range(4)]
        warm = [[f"buffer_load_dwordx4 {vr(WARM+4*r,4)}, v{VWARM}, {sr(S_WS,4)}, 0 offen offset:{1024*r} {wl}"] for r in range(3)] if o["warm"] else []
        if tw:
            warm = [[f"buffer_load_dword v{WARM}, v{VWARM}, {sr(S_WS,4)}, 0 offen {wl}"]]
        C = []
        g = lambda *x: C.append(list(x))

        def rank(r):
            m = S_MASK + 2 * r
            return [f"v_and_b32 v{T1}, v{CM}, v{E+r}", f"v_lshrrev_b32 v{T0}, 10, v{E+r}", f"v_cmp_eq_u32 {sr(m,2)}, v{T1}, v{CV}",
                    f"v_and_or_b32 v{TT+r}, v{T0}, v{TM}, v{TBS}",
                    f"s_mov_b64 exec, {sr(m,2)}", f"ds_add_rtn_u32 v{RK+r}, v{TT+r}, v{ONE}", "s_mov_b64 exec, -1"]

        def place(r):
            m = S_MASK + 2 * r
            return [f"v_add_u32 v{T1}, v{RK+r}, v{ST+r}", f"v_and_b32 v{T0}, 0x87e, v{E+r}", f"v_lshl_add_u32 v{T1}, v{T1}, 1, s{SW}",
                    f"v_add_u32 v{T0}, v{KB}, v{T0}", f"s_andn2_b64 exec, {sr(m,2)}, {sr(S_BAD,2)}",
                    f"ds_write_b16_d16_hi v{T1}, v{E+r} offset:{O_X}", f"ds_write_b16 v{T1}, v{T0} offset:{O_K}",
                    f"ds_write_b16 v{T1}, v{E+r} offset:{O_M}", "s_mov_b64 exec, -1"]
        g("@WAIT_E")
        g(f"v_cmp_ne_u32 {sr(S_BAD,2)}, 0, v{E+15}", f"v_cmp_ne_u32 {sr(S_MORE,2)}, 0, v{E+8}")
        for r in range(8):
            g(*rank(r))
        g(f"s_cmp_lg_u64 {sr(S_MORE,2)}, 0", "s_cbranch_scc1 L_more1", "L_more1b:", f"ds_read_b32 v{T0}, v{VW}", f"v_mov_b32 v{T1}, 0")
        self.tailblocks.append("\n".join(["L_more1:"] + [x for r in range(8, 15) for x in rank(r)] + ["s_branch L_more1b"]))
        g("s_waitcnt lgkmcnt(0)", f"s_mov_b64 vcc, {sr(S_EVEN,2)}",
          f"v_cndmask_b32_dpp v{T1}, v{T0}, v{T1}, vcc quad_perm:[0,0,2,2] row_mask:0xf bank_mask:0xf",
          f"v_add_u32 v{VST}, v{LO}, v{T1}", f"v_add_u32 v{T1}, v{T0}, v{T1}", f"v_cmp_lt_u32 vcc, 32, v{T1}",
          f"s_or_b32 s{S_BAD}, s{S_BAD}, s{S_BAD+1}", f"s_and_b32 s{S_T0}, vcc_lo, 0x1ff", f"s_or_b32 s{S_T0}, s{S_T0}, s{S_BAD}",
          "s_cbranch_scc1 L_greedy", "L_greedyb:")
        x = ["L_greedy:", f"s_mov_b32 s{S_T0}, 0", f"s_mov_b32 s{S_LINK}, 1"]
        for t in range(9):
            lo = 32 * (t >> 1)
            x += [f"v_readlane_b32 s{S_T1}, v{T0}, {t}", f"s_max_u32 s{S_T0}, s{S_T0}, {lo}",
                  f"v_writelane_b32 v{VST}, s{S_T0}, {t}", "s_nop 1", f"s_add_u32 s{S_T0}, s{S_T0}, s{S_T1}",
                  f"s_cmp_gt_u32 s{S_T0}, {lo + (64 if t & 1 else 32)}", f"s_cselect_b32 s{S_BAD}, 1, s{S_BAD}"]
        x += [f"s_cmp_lg_u32 s{S_BAD}, 0", f"s_cselect_b64 {sr(S_BAD,2)}, -1, 0",
              f"v_mov_b32 v{T1}, {L_PL + 256}", f"s_mov_b64 exec, {sr(S_BAD,2)}", f"ds_write_b32 v{T1}, v{ONE}", "s_mov_b64 exec, -1",
              "s_branch L_greedyb"]
        self.tailblocks.append("\n".join(x))
        g(*[f"ds_bpermute_b32 v{ST+r}, v{TT+r}, v{VST}" for r in range(8)])
        for r in range(8):
            g(*([f"s_waitcnt lgkmcnt({(7, 9, 11, 13, 15, 15, 15, 15)[r] if r else 7})"] if r < 8 else []), *place(r))
        g(f"s_cmp_lg_u64 {sr(S_MORE,2)}, 0", "s_cbranch_scc1 L_more2", "L_more2b:",
          *[f"ds_read_u16 v{E+r}, v{VH} offset:{O_M+128*r}" for r in range(3)],
          *[f"ds_read2_b64 {vr(V_AD+4*j,4)}, v{VK} offset0:{(O_K+64*j)//8} offset1:{(O_K+64*j+32)//8}" for j in range(5)])
        self.tailblocks.append("\n".join(["L_more2:"] + [f"ds_bpermute_b32 v{ST+r}, v{TT+r}, v{VST}" for r in range(8, 15)] + ["s_waitcnt lgkmcnt(0)"]
                                         + [x for r in range(8, 15) for x in place(r)] + ["s_branch L_more2b"]))
        for r in range(3):
            g(*(["s_waitcnt lgkmcnt(5)"] if r == 0 else []),
              f"v_lshrrev_b32 v{T0}, 12, v{E+r}", f"v_cmp_ne_u32 vcc, 0, v{E+r}", f"v_min_u32 v{T0}, 8, v{T0}", f"v_add3_u32 v{T0}, v{T0}, v{HI}, {2*r}",
              f"v_lshlrev_b32 v{T1}, 4, v{T0}", f"v_lshrrev_b32 v{T0}, 1, v{T0}")
            g(f"v_lshlrev_b32 v{T1}, v{T1}, v{BM}", f"v_lshl_add_u32 v{T0}, v{T0}, 8, v{AB}", f"v_bfe_u32 v{T2}, v{E+r}, 7, 4",
              f"v_lshl_add_u32 v{T0}, v{T2}, 2, v{T0}", "s_mov_b64 exec, vcc", *(["s_mov_b32 exec_hi, 0"] if r == 2 else []),
              f"ds_xor_b32 v{T0}, v{T1} offset:{O_IDX}", "s_mov_b64 exec, -1")
        g(*[f"ds_read_b32 v{V_IR+r}, v{VW} offset:{O_IDX+256*r}" for r in range(7)])
        for j in range(5):
            g(*(["s_waitcnt lgkmcnt(10)"] if j == 0 else []), *[f"v_xor_b32 v{V_AD+4*j+q}, v{RX}, v{V_AD+4*j+q}" for q in range(4)])
        g(*self.bias_store())
        return pre, C, warm + self.wload_list(VA, VI8, o['peel'])

    def emit_build(self, pre, C, G):
        a = self.a
        for x in pre:
            a(x)
        nl = 0
        G = list(G)
        G0 = list(G)

        def load(n=1):
            nonlocal nl
            for _ in range(n):
                if G:
                    for x in G.pop(0):
                        a(x)
                    nl += 1
        acc = 0
        for grp in C:
            if grp[0] == "@WAIT_E":
                load(self.o["l0"])
                a(f"s_waitcnt vmcnt({nl})")
                continue
            if grp[0] in ("s_waitcnt lgkmcnt(0)", "s_waitcnt lgkmcnt(7)", "s_waitcnt lgkmcnt(5)"):
                load(self.o["lw"])
            for x in grp:
                a(x)
            acc += len(grp)
            while acc >= self.o["lper"]:
                acc -= self.o["lper"]
                load()
        if self.o["peel"]:
            self.issued, self.pending = G0[:len(G0) - len(G)], G
            return
        load(len(G) - self.o["ltail"])
        assert len(G) == self.o["ltail"]
        self.late_loads = [x for grp in G for x in grp]

    @staticmethod
    def regs(txt):
        k, body = txt[0], txt[1:].strip("[]")
        lo, hi = (body.split(":") + [body])[:2]
        return [(256 if k == "a" else 0) + r for r in range(int(lo), int(hi) + 1)]

    def emit_line(self, ops, vm, hist=()):
        a = self.a
        lds, hist = [], list(hist)

        def put(op):
            a(op.text)
            hist.append(op)
        for op in ops:
            touched = op.rd | op.wr
            for q, name, cap in ((lds, "lgkmcnt", 15), (vm, "vmcnt", self.o["vcap"])):
                hit = [i for i, w in enumerate(q) if w & touched]
                if hit:
                    n = min(len(q) - 1 - hit[-1], cap)
                    put(Op(f"s_waitcnt {name}({n})", "salu"))
                    del q[:len(q) - n]
            need = 0
            for d, p in enumerate(reversed(hist[-9:])):
                ws = sum(int(x.text[6:]) + 1 if x.text.startswith("s_nop") else 1 for x in hist[len(hist) - d:])
                r = 0
                if p.kind == "mx" and op.kind != "mx" and (p.wr & touched):
                    r = 8
                if p.kind in ("valu", "dpp") and op.kind in ("mx", "dpp") and (p.wr & op.rd):
                    r = 2
                if p.kind == "st" and (p.rd & op.wr):
                    r = 2
                need = max(need, r - ws)
            if need > 0:
                put(Op(f"s_nop {need-1}", "salu"))
            put(op)
            if op.kind == "lds":
                lds.append(op.wr)
            if op.kind in ("ld", "st"):
                vm.append(op.wr)

    def peel(self):
        o = self.o
        AX = V_BR
        acc = lambda m, t: (AX if m == 0 else V_ACC) + 4 * t
        Ba, Bb, Bc, Bd = (V_B + 8 * k for k in range(4))
        dst = lambda g: set(self.regs(g[-1].split()[1].rstrip(",")))
        vm = [dst(g) for g in self.issued]
        loads = [[Op(x, "salu") for x in g[:-1]] + [Op(g[-1], "ld", wr=dst(g))] for g in self.pending]

        def M(m, s, t, b):
            ir, h = aidx(s, t)
            return Op(f"v_smfmac_f32_16x16x64_bf16 {vr(acc(m,t),4)}, {afrag(s,t)}, {vr(b,8)}, v{ir}" + (" abid:1" if h else ""), "mx",
                      rd=list(rng(acc(m, t), 4)) + list(rng(b, 8)) + self.regs(afrag(s, t)) + [ir], wr=rng(acc(m, t), 4))

        def R(m, j, t):
            c, b = j + t, (Bc, Bd)[m]
            return Op(f"v_smfmac_f32_16x16x64_bf16 {vr(acc(m,t),4)}, {vr(V_X,4)}, {vr(b,8)}, v{V_IR+(c>>1)}" + (" abid:1" if c & 1 else ""), "mx",
                      rd=list(rng(acc(m, t), 4)) + list(rng(b, 8)) + list(rng(V_X, 4)), wr=rng(acc(m, t), 4))

        def B(m, s, b):
            return [Op(f"ds_read_b128 {vr(b+4*h,4)}, v{V_RD0+h} offset:{2048*s+TBL*m}", "lds", rd=[V_RD0 + h], wr=rng(b + 4 * h, 4)) for h in range(2)]

        def addr(j, b, r, base):
            ad = V_AD + 4 * j + (b >> 1)
            return Op(f"v_add_u32_sdwa v{r}, s{base}, v{ad} dst_sel:DWORD dst_unused:UNUSED_PAD src0_sel:DWORD src1_sel:WORD_{b&1}", "valu", rd=[ad], wr=[r])
        ops = [Op(f"ds_read_b32 v{V_X}, v{V_X}", "lds", rd=[V_X], wr=[V_X])] + B(0, 0, Ba)
        for m in range(2):
            ops += [Op(f"ds_read_b128 {vr(acc(m,t),4)}, v{V_TAB} offset:{O_BIAS+64*t}", "lds", rd=[V_TAB], wr=rng(acc(m, t), 4)) for t in range(9)]
            ops += loads.pop(0)
        ops += [Op(f"v_readfirstlane_b32 s{S_T0}, v{V_X}", "valu", rd=[V_X]), addr(0, 0, Bc, S_BUF), Op("s_nop 2", "salu"),
                Op(f"s_cmp_lg_u32 s{S_T0}, 0", "salu"), Op("s_cbranch_scc1 L_slow", "salu")]
        ngap = 126 + 26
        rho, credit = len(loads) / (ngap - o["ptail"]), 0.0

        ng = 0
        if max(self.mid):
            ops.append(Op(f"s_lshr_b32 s{S_NB0}, s{S_DMASK}, 28", "salu"))

        def midtile(k):
            keepL, self.L = self.L, []
            self.dma_tile(o["ldp"])
            x, self.L = self.L, keepL
            x = [f"s_cmp_le_u32 s{S_NB0}, {k}", f"s_cbranch_scc1 L_mid{k}"] + x + [
                f"s_add_u32 s{S_XOFF5}, s{S_XOFF5}, {256*TB}", f"s_add_u32 s{S_M0B}, s{S_M0B}, {TBL}", f"s_add_u32 s{S_XOFF}, s{S_XOFF}, {256*TB}",
                f"L_mid{k}:"]
            assert loads
            return Op("\n".join(x), "salu")

        def gap(mx, D=(), V=()):
            nonlocal credit, ng
            ops.append(mx)
            if ng in o["midg"][:max(self.mid)]:
                ops.append(midtile(o["midg"].index(ng)))
            ng += 1
            credit += rho
            while credit >= 1 and loads:
                credit -= 1
                ops.extend(loads.pop(0))
            ops.extend(D)
            ops.extend(V)
        for s in range(7):
            for t in range(9):
                D, V = [], []
                if t == 0:
                    D += B(1, s, Bb)
                if s < 5:
                    if t == 8:
                        D.append(Op(f"ds_read_b128 {vr(V_X,4)}, v{V_TAB} offset:{O_X+64*s}", "lds", rd=[V_TAB], wr=rng(V_X, 4)))
                    else:
                        D += [Op(f"ds_read_u16 v{Bd+t}, v{Bc+t} offset:{TBL}", "lds", rd=[Bc + t], wr=[Bd + t]),
                              Op(f"ds_read_u16 v{Bc+t}, v{Bc+t}", "lds", rd=[Bc + t], wr=[Bc + t])]
                        if t < 7:
                            V.append(addr(s, t + 1, Bc + t + 1, S_BUF))
                elif t in (2, 3):
                    D.append(B(1, s + 2, Bc if s == 5 else Bd)[t - 2])
                gap(M(0, s, t, Ba), D, V)
            for t in range(9):
                gap(M(1, s, t, Bb), B(0, s + 1, Ba)[t:t + 1] if t < 2 else [])
            if s < 5:
                rs = [R(m, s, t) for m in (1, 0) for t in RT[s]]
                for n, x in enumerate(rs):
                    gap(x, [], [addr(s + 1, 0, Bc, S_BUF)] if n == len(rs) - 1 and s < 4 else [])
        assert not loads
        ops += B(0, 8, Bb)
        pk = lambda t, h: (AX + 32 + h) if t == 8 else AX + 2 * t + h
        cvt = lambda t: [Op(f"v_cvt_pk_bf16_f32 v{pk(t,h)}, v{acc(0,t)+2*h}, v{acc(0,t)+2*h+1}", "valu",
                            rd=[acc(0, t) + 2 * h, acc(0, t) + 2 * h + 1], wr=[pk(t, h)]) for h in range(2)]
        dpp = "quad_perm:[1,0,3,2] row_mask:0xf bank_mask:0xf"
        stp = o["st"] if o["stp"] is None else o["stp"]

        def exch(v):
            p0, p1, d0 = AX + 8 * v, AX + 8 * v + 4, (V_X, AX + 16)[v]
            x = []
            for half in range(2):
                for d in range(4):
                    if half == 0:
                        x.append(Op(f"v_cndmask_b32_dpp v{d0+d}, v{p1+d}, v{p0+d}, vcc {dpp}", "dpp", rd=[p0 + d, p1 + d], wr=[d0 + d]))
                    else:
                        x.append(Op(f"v_cndmask_b32_dpp v{p1+d}, v{p0+d}, v{p1+d}, vcc {dpp}", "dpp", rd=[p0 + d, p1 + d], wr=[p1 + d]))
                src = d0 if half == 0 else p1
                fl = stp[2 * v + half] if isinstance(stp, (tuple, list)) else stp
                x += [Op(f"buffer_store_dwordx4 {vr(src,4)}, v{V_ST}, {sr(S_OUT,4)}, s{S_OOFF} offen offset:{1152*half+128*v} {fl}", "st",
                         rd=list(rng(src, 4)) + [V_ST]), Op(f"s_mov_b64 vcc, {sr((S_ODD, S_EVEN)[half],2)}", "salu")]
            return x
        p8 = pk(8, 0)
        rdadv = [Op(f"v_add_u32 v{V_RD0+h}, {2*TBL}, v{V_RD0+h}", "valu", rd=[V_RD0 + h], wr=[V_RD0 + h]) for h in range(2)]
        after = {0: rdadv,
                 1: [Op(f"ds_bpermute_b32 v{p8+h}, v{V_BP}, v{p8+h}", "lds", rd=[V_BP, p8 + h], wr=[p8 + h]) for h in range(2)] if o["bperm"] else [],
                 3: [Op(f"buffer_store_dwordx2 {vr(p8,2)}, v{V_ST8}, {sr(S_OUT,4)}, s{S_OOFF} offen {o['st8']}", "st", rd=[p8, p8 + 1, V_ST8])],
                 5: exch(0)[:6], 6: exch(0)[6:], 7: [addr(0, b, V_BR + b, S_BUFN) for b in range(4)],
                 8: [addr(0, b, V_BR + b, S_BUFN) for b in range(4, 8)]}
        for n, t in enumerate(PEEL_T):
            ops += [M(0, 7, t, Ba), M(0, 8, t, Bb)]
            if n:
                ops += cvt(PEEL_T[n - 1])
            ops += after.get(n, [])
        ops += cvt(PEEL_T[-1]) + exch(1)
        self.emit_line(ops, vm)

    def slow_path(self, K):
        a = self.a
        o = self.o
        VA, VI8 = 104, 106
        a("L_slow:")
        a("s_waitcnt vmcnt(0) lgkmcnt(0)")
        a(f"s_mov_b32 s{S_MODE}, 0")
        a("L_sm:")
        a(f"s_lshl_b32 s{S_BASE}, s2, 1")
        a(f"s_add_u32 s{S_BASE}, s{S_BASE}, s{S_MODE}")
        a(f"s_add_u32 s{S_BASE}, s{S_BASE}, {PRIV0}")
        a(f"s_mul_i32 s{S_BASE}, s{S_BASE}, {COPY}")
        a(f"s_mov_b32 s{S_TASK}, 0")
        a("L_st:")
        self.producer("g", True)
        a(f"s_add_u32 s{S_TASK}, s{S_TASK}, 1")
        a(f"s_cmp_lt_u32 s{S_TASK}, {NTASK}")
        a("s_cbranch_scc1 L_st")
        a(f"s_add_u32 s{S_MODE}, s{S_MODE}, 1")
        a(f"s_cmp_lt_u32 s{S_MODE}, 2")
        a("s_cbranch_scc1 L_sm")
        self.lane_setup()
        self.dma_setup()
        a(f"s_mov_b32 s{S_OUT+2}, {XBYTES}")
        a(f"s_mov_b32 s{S_X+2}, {XBYTES}")
        a(f"s_mov_b32 s{S_IT}, 0")
        a("L_stile:")
        a("s_barrier")
        self.dma_tile()
        for t in range(9):
            a(f"ds_read_b128 {vr(V_ACC+4*t,4)}, v{V_TAB} offset:{O_BIAS+64*t}")
        a(f"s_mov_b32 s{S_MODE}, 0")
        a("L_spass:")
        a(f"s_lshl_b32 s{S_BASE}, s2, 1")
        a(f"s_add_u32 s{S_BASE}, s{S_BASE}, s{S_MODE}")
        a(f"s_add_u32 s{S_BASE}, s{S_BASE}, {PRIV0}")
        a(f"s_mul_i32 s{S_BASE}, s{S_BASE}, {COPY}")
        self.waddr(VA, VI8)
        for grp in self.wload_list(VA, VI8):
            for x in grp:
                a(x)
        a("s_waitcnt vmcnt(0)")
        a("s_barrier")
        for s in range(9):
            a(f"ds_read_b128 {vr(V_B,4)}, v{V_RD0} offset:{2048*s}")
            a(f"ds_read_b128 {vr(V_B+4,4)}, v{V_RD1} offset:{2048*s}")
            a("s_waitcnt lgkmcnt(0)")
            for t in range(9):
                ir, h = aidx(s, t)
                a(f"v_smfmac_f32_16x16x64_bf16 {vr(V_ACC+4*t,4)}, {afrag(s,t)}, {vr(V_B,8)}, v{ir}" + (" abid:1" if h else ""))
            a("s_nop 7")
        a(f"s_add_u32 s{S_MODE}, s{S_MODE}, 1")
        a(f"s_cmp_lt_u32 s{S_MODE}, 2")
        a("s_cbranch_scc1 L_spass")
        for t in range(7):
            for h in range(2):
                a(f"v_cvt_pk_bf16_f32 v{V_P+2*t+h}, v{V_ACC+4*t+2*h}, v{V_ACC+4*t+2*h+1}")
        a(f"s_mov_b64 vcc, {sr(S_EVEN,2)}")
        self.emit_epi(self.assemble_loop(False, "")[2])
        for r in (S_XOFF, S_XOFF5, S_OOFF):
            a(f"s_add_u32 s{r}, s{r}, s{S_XINC}")
        a(f"s_mov_b32 s{S_XINC}, {256*TB}")
        a(f"s_add_u32 s{S_IT}, s{S_IT}, 1")
        a(f"s_cmp_lt_u32 s{S_IT}, s{S_NT}")
        a("s_cbranch_scc1 L_stile")
        a("s_branch L_fin")

    def loop_ops(self, links, dma, clm=False):
        o = self.o
        acc = lambda t: rng(V_ACC + 4 * t, 4)
        ch = o["chain"]
        bb = lambda s: V_P if (ch and s == 6) else V_B + 8 * BBUF[s]
        RBUF = [V_BR, V_BR + 8, V_BR, V_P + 8 if ch else V_P, V_BR + 8]
        rt = RT if links else [[0, 1], [2, 3], [4, 5], [6, 7], [8]]
        ng = [8, 8, 8, 8, 8 if links else o["ng4"]]

        def M(s, t):
            ir, h = aidx(s, t)
            return Op(f"v_smfmac_f32_16x16x64_bf16 {vr(V_ACC+4*t,4)}, {afrag(s,t)}, {vr(bb(s),8)}, v{ir}" + (" abid:1" if h else ""),
                      "mx", rd=list(acc(t)) + list(rng(bb(s), 8)), wr=acc(t), tag=("M", s, t))

        def R(j, t):
            c = j + t
            return Op(f"v_smfmac_f32_16x16x64_bf16 {vr(V_ACC+4*t,4)}, {vr(V_X,4)}, {vr(RBUF[j],8)}, v{V_IR+(c>>1)}" + (" abid:1" if c & 1 else ""),
                      "mx", rd=list(acc(t)) + list(rng(RBUF[j], 8)) + list(rng(V_X, 4)), wr=acc(t), tag=("R", j, t))
        seq = []
        for t in range(9):
            seq += [M(0, t), M(1, t)]
        if ch:
            for steps, order, rs in (((2, 3), o["ord1"], (0, 1)), ((4, 5, 6), o["ord2"], (2, 3, 4))):
                for n, t in enumerate(order):
                    seq += [M(s, t) for s in steps]
                    if t // 2 in rs and t % 2 == 0:
                        j = t // 2
                        assert t == 8 or order[n + 1] == t + 1
                        seq += [R(j, t)] + ([R(j, t - 1)] if links and j else []) + ([R(j, t + 1)] if t < 8 else [])
        else:
            for s in range(2, 7):
                seq += [M(s, t) for t in range(9)]
        for t in range(9):
            seq += [M(7, t), M(8, t)]
        if ch:
            rpos = [min(i for i, x in enumerate(seq) if x.tag[:2] == ("R", j)) for j in range(5)]
        else:
            rpos = list(o["rposl"] if links else o["rpos"])
            for j in range(5):
                for n, t in enumerate(rt[j]):
                    seq.insert(rpos[j] + n, R(j, t))
        N = len(seq)
        pos = {x.tag: i for i, x in enumerate(seq)}
        BAR = rpos[4] + len(rt[4]) - 1
        c0 = N - 15 - BAR
        assert c0 == (4 if ch else 0)
        self.drain = rpos[4] - 1
        T = lambda g: (g - BAR - 1) % N
        first = lambda s: T(min(pos[("M", s, t)] for t in range(9)))
        lastu = lambda s: max(pos[("M", s, t)] for t in range(9))
        LEAD = o["lead"]
        ST = [[] for _ in range(N)]
        S = [[] for _ in range(N)]
        D = [[] for _ in range(N)]
        V = [[] for _ in range(N)]
        keep = lambda op: (dma or op.tag != "dma") and (clm or op.tag != "clm")

        def pdst(t, h):
            return V_P8 + h if t == 8 else V_P + 2 * t + h
        dq, vq = [], []
        for t in range(9):
            for h in range(2):
                V[c0 + 2 * t + h].append(Op(f"v_cvt_pk_bf16_f32 v{pdst(t,h)}, v{V_ACC+4*t+2*h}, v{V_ACC+4*t+2*h+1}", "valu",
                                       rd=[V_ACC + 4 * t + 2 * h, V_ACC + 4 * t + 2 * h + 1], wr=[pdst(t, h)], tag="epi"))
            dq.append([Op(f"ds_read_b128 {vr(V_ACC+4*t,4)}, v{V_TAB} offset:{O_BIAS+64*t}", "lds", rd=[V_TAB], wr=acc(t), tag="pre"),
                       c0 + 2 * t + 2, c0 + 2 * t + 2, None])
        def stf(e):
            f = o["stc"] if clm else (o["st"] if dma else o["stn"])
            f = o["st"] if f is None else f
            return f[e] if isinstance(f, (tuple, list)) else f
        dpp = "quad_perm:[1,0,3,2] row_mask:0xf bank_mask:0xf"
        stg = [T(g) for g in o["stg"]]
        for v in range(2):
            p0, p1 = V_P + 8 * v, V_P + 8 * v + 4
            d0 = V_T if v == 0 else V_P
            for half in range(2):
                e = 2 * v + half
                for d in range(4):
                    if half == 0:
                        op = Op(f"v_cndmask_b32_dpp v{d0+d}, v{p1+d}, v{p0+d}, vcc {dpp}", "dpp", rd=[p0 + d, p1 + d], wr=[d0 + d], tag="epi")
                    else:
                        op = Op(f"v_cndmask_b32_dpp v{p1+d}, v{p0+d}, v{p1+d}, vcc {dpp}", "dpp", rd=[p0 + d, p1 + d], wr=[p1 + d], tag="epi")
                    vq.append([op, stg[e - 1] if e else c0 + 18, stg[e] - 4 + d, None])
                src = d0 if half == 0 else p1
                ST[stg[e]].append(Op(f"buffer_store_dwordx4 {vr(src,4)}, v{V_ST}, {sr(S_OUT,4)}, s{S_OOFF} offen offset:{1152*half+128*v} {stf(e)}",
                                     "st", rd=list(rng(src, 4)) + [V_ST], tag="epi"))
                ST[stg[e]].append(Op(f"s_mov_b64 vcc, {sr((S_ODD, S_EVEN)[half],2)}", "salu", tag="epi"))
        if o["bperm"]:
            for h in range(2):
                dq.append([Op(f"ds_bpermute_b32 v{V_P8+h}, v{V_BP}, v{V_P8+h}", "lds", rd=[V_BP, V_P8 + h], wr=[V_P8 + h], tag="epi"),
                           c0 + 18, stg[4] - LEAD - 2 + h, None])
        ST[stg[4]].append(Op(f"buffer_store_dwordx2 {vr(V_P8,2)}, v{V_ST8}, {sr(S_OUT,4)}, s{S_OOFF} offen {o['st8']}", "st",
                             rd=[V_P8, V_P8 + 1, V_ST8], tag="epi"))
        rl = lambda j: T(rpos[j] + len(rt[j]) - 1)
        free = [rl(2), 1, rl(0), stg[3 if ch else 2] + 1, rl(1)]
        for j in range(5):
            dl = T(rpos[j]) - LEAD - 1
            for b in range(ng[j]):
                r = RBUF[j] + b
                ad = V_AD + 4 * j + (b >> 1)
                av = Op(f"v_add_u32_sdwa v{r}, s{S_BUFN if j == 0 else S_BUF}, v{ad} dst_sel:DWORD dst_unused:UNUSED_PAD src0_sel:DWORD src1_sel:WORD_{b&1}",
                        "valu", rd=[ad], wr=[r], tag="pre" if j == 0 else "")
                gd = dl - o["gsp"] * (ng[j] - 1 - b)
                vq.append([av, free[j], (N - 2 - (7 - b)) if j == 0 else gd - 1, None])
                dq.append([Op(f"ds_read_u16 v{r}, v{r}", "lds", rd=[r], wr=[r], tag="pre"), 0, gd, None if j == 0 else av])
            dq.append([Op(f"ds_read_b128 {vr(V_X,4)}, v{V_TAB} offset:{O_X+64*j}", "lds", rd=[V_TAB], wr=rng(V_X, 4), tag="pre"),
                       0 if j == 0 else rl(j - 1), dl, None])
        prev = {0: None, 1: None, 2: 7, 3: 8, 4: 0, 5: 1, 6: 4, 7: 2, 8: 3}
        lastb = []
        for s in range(9):
            for h in range(2):
                op = Op(f"ds_read_b128 {vr(bb(s)+4*h,4)}, v{(V_RD0, V_RD1)[h]} offset:{2048*s}", "lds",
                        rd=[(V_RD0, V_RD1)[h]], wr=rng(bb(s) + 4 * h, 4), tag="pre")
                fs = first(s) if s < 7 else (T(rpos[4]) - 2 * (9 - s) if ch else T(pos[("M", s, 0)]))
                rel = 0 if prev[s] is None else T(lastu(prev[s]))
                if ch and s == 6:
                    rel = stg[2] + 1
                dq.append([op, rel, fs - LEAD - 2 + h, None])
                lastb.append(op)
        for h in range(2):
            vq.append([Op(f"v_add_u32 v{V_RD0+h}, s{S_DELTA}, v{V_RD0+h}", "valu", rd=[V_RD0 + h], wr=[V_RD0 + h]), 0, N - 2, lastb])
        sq = []
        dmag = [g + (self.drain - 70) * (g > 50) for g in o["dmag"]]
        assert all(b - a_ >= 2 for a_, b in zip(dmag, dmag[1:]))
        if not o["nodma"]:
            for j, g in enumerate(dmag):
                g = T(g)
                ld = f"buffer_load_dwordx4 v{V_DMA}, {sr(S_X,4)}, s{S_XOFF if j < 4 else S_XOFF5} offen offset:{256*j if j < 4 else 896} {o['ld']} lds"
                if j < 4:
                    D[g].append(Op(ld, "dma", rd=[V_DMA], tag="dma"))
                    S[g - 1].append(Op(f"s_add_u32 m0, s{S_M0B}, {3840*j}", "salu", tag="dma"))
                else:
                    D[g] += [Op(f"s_mov_b64 exec, {sr(S_HALF,2)}", "salu", tag="dma"), Op(ld, "dma", rd=[V_DMA], tag="dma"),
                             Op("s_mov_b64 exec, -1", "salu", tag="dma")]
                    S[g - 1].append(Op(f"s_add_u32 m0, s{S_M0B}, s{S_M05}", "salu", tag="dma"))
                    V[g] = None
        XV = [[] for _ in range(N)]
        if self.dyn:
            gl = T(o["mbg"] + self.drain - 70) - 1
            XV[T(0)].append(Op(f"v_mov_b32 v{V_C}, 1", "valu", wr=[V_C], tag="clm"))
            D[T(1)].append(Op(f"buffer_atomic_add v{V_C}, v{V_BP}, {sr(S_B,4)}, 0 offen sc0 sc1", "dma", rd=[V_BP], tag="clm"))
            assert not D[gl + 1] and not S[gl + 1] and max(stg) <= gl
            gw = gl + 1 if o["cwg"] is None else T(o["cwg"])
            assert gw not in stg and T(1) < gw <= gl + 1
            S[gw].append(Op(f"s_waitcnt vmcnt({sum(1 for g in stg if g < gw) + sum(1 for g in dmag if T(g) < gw)})", "salu", tag="clm"))
            if o["dwg"] is not None and dma and not clm:
                gw = T(o["dwg"])
                assert gw not in stg
                S[gw].append(Op(f"s_waitcnt vmcnt({sum(1 for g in stg if g < gw) + sum(1 for g in dmag if T(g) < gw)})", "salu"))
            D[gl + 1] += [Op(f"s_mov_b64 exec, {sr(S_W0,2)}", "salu", tag="clm"),
                          Op(f"ds_write_b32 v{V_RD0}, v{V_C} offset:{TB}", "lds", rd=[V_RD0], tag="clm"), Op("s_mov_b64 exec, -1", "salu", tag="clm")]
            V[gl + 1] = None
            D[0].append(Op(f"ds_read_b32 v{V_C}, v{V_RD0} offset:{TB}", "lds", rd=[V_RD0], wr=[V_C], tag="clm"))
            XV[LEAD + 1].append(Op(f"v_readfirstlane_b32 s{S_CL}, v{V_C}", "valu", rd=[V_C], tag="clm"))
        placed = {}
        for g in range(N - 1):
            if not D[g] and g != T(N - 1):
                c = [x for x in dq if x[1] <= g and (x[3] is None or placed.get(id(x[3]), N) < g) and x[2] - g <= o["eager"]]
                if c:
                    x = min(c, key=lambda x: x[2])
                    dq.remove(x)
                    D[g].append(x[0])
                    placed[id(x[0])] = g
                    if g > x[2] and o["verbose"]:
                        print("; late D", g - x[2], x[0].text, file=sys.stderr)
            if V[g] is None:
                V[g] = []
                continue
            cap = 2 if (ST[g] and "x4" in ST[g][0].text) else 1
            while len(V[g]) < cap:
                c = [x for x in vq if x[1] <= g and (x[3] is None or all(placed.get(id(y), N) <= g for y in x[3]))]
                if not c:
                    break
                x = min(c, key=lambda x: x[2])
                vq.remove(x)
                V[g].append(x[0])
                placed[id(x[0])] = g
                assert g <= x[2] or x[0].kind != "dpp", ("late", x[0].text)
        assert not dq and not vq, ([x[0].text for x in dq], [x[0].text for x in vq])
        for g in range(N):
            V[g] += XV[g]
        if self.dyn:
            rdup = max(placed[id(x)] for gl_ in V for x in gl_ if id(x) in placed and f"s{S_DELTA}," in x.text)
            assert rdup <= gl and gl + 1 < T(self.drain) and T(min(o["stg"])) > T(1)
        S[N - 1] += ([] if clm else [Op(f"s_waitcnt vmcnt({o['vmw']})", "salu")]) + [Op("s_barrier", "bar")]
        lastdma = T(dmag[4])
        la = max(placed[id(x)] for gl in V for x in gl if id(x) in placed and f"s{S_BUF}," in x.text)
        fn = min(placed[id(x)] for gl in V for x in gl if id(x) in placed and (f"s{S_BUFN}," in x.text or f"s{S_DELTA}," in x.text))
        sq = [([f"s_mov_b32 s{S_BUF}, s{S_BUFN}"], 0, 0),
              ([f"s_cmp_eq_u32 s{S_BUFN}, {(NB-1)*TBL}", f"s_cselect_b32 s{S_DELTA}, {-(NB-1)*TBL}, s{S_CTB}", f"s_add_u32 s{S_BUFN}, s{S_BUFN}, s{S_DELTA}"], c0 + 18, fn),
              ]
        if self.dyn:
            LK = self.dyn[1]
            sq.append((([] if clm else [f"s_mov_b32 s{S_OUT+2}, {XBYTES}"]) + [f"s_mov_b32 s{S_OOFF}, s{S_Q}"]
                       + [f"s_mov_b32 s{S_Q+k}, s{S_Q+k+1}" for k in range(LK - 1)]
                       + [f"s_mov_b32 s{S_Q+LK-1}, s{S_XOFF}" if clm else f"s_add_u32 s{S_Q+LK-1}, s{S_Q+LK-1}, {256*TB}"], stg[4] + 1, N - 2))
        else:
            sq.append(([f"s_mov_b32 s{S_OUT+2}, {XBYTES}", f"s_add_u32 s{S_OOFF}, s{S_OOFF}, s{S_OINC}", f"s_mov_b32 s{S_OINC}, s{S_OINC2}",
                        f"s_mov_b32 s{S_OINC2}, {256*TB}"], stg[4] + 1, N - 2))
        if not clm or o["trace"]:
            sq.append(([f"s_add_u32 s{S_IT}, s{S_IT}, 1"], c0 + 18, N - 2))
        if clm:
            ps = o["psh"]
            sq += [([f"s_add_u32 s{S_XOFF5}, s{S_XOFF}, s{S_K5}"], c0 + 18, lastdma - 2),
                   (self.dma_advance()[2:], lastdma + 1, N + 8),
                   ([f"s_lshr_b32 s{S_CT}, s{S_CL}, {ps}", f"s_mul_i32 s{S_CT}, s{S_CT}, {(256 - (1 << ps))*TB}", f"s_mul_i32 s{S_CT+1}, s{S_CL}, {TB}",
                     f"s_add_u32 s{S_CT}, s{S_CT}, s{S_CB}", f"s_add_u32 s{S_XOFF}, s{S_CT}, s{S_CT+1}"], LEAD + 2, T(N - 1) - 2),
                   ([f"s_cmp_lt_u32 s{S_CL}, {(16 - self.dyn[0]) << ps}"], T(N - 1) - 1, T(N - 1) - 1)]
        else:
            if dma:
                sq += [(self.dma_advance(), lastdma + 1, N + 12)]
            sq.append(([f"s_bitcmp1_b32 s{S_DMASK if dma else S_NMASK}, s{S_IT}"], T(N - 1) - 1, T(N - 1) - 1))
        G = lambda A: [[x for x in A[T(g)] if keep(x)] for g in range(N)]
        return seq, G(ST), G(S), G(D), G(V), [(x, (lo + BAR + 1), (hi + BAR + 1)) for x, lo, hi in sq], BAR

    def assemble_loop(self, links, label, dma=True, clm=False):
        seq, ST, S, D, V, sq, BAR = self.loop_ops(links, dma, clm)
        N = len(seq)
        flat = []
        for rep in range(2):
            for g in range(N):
                a0 = rep * N + g
                flat.append((seq[g], a0 - 1))
                for x in ST[g]:
                    flat.append((x, a0 - 1))
                for x in D[g] + V[g]:
                    flat.append((x, a0))
        gap_of = {}
        k = 0
        lds = []
        for rep in range(2):
            for g in range(N):
                k += 1 + len(ST[g])
                for x in D[g] + V[g]:
                    if x.kind == "lds":
                        lds.append((k, rep * N + g))
                    k += 1
        done = -1
        W = {}
        minlead = 99
        for i, (op, wg) in enumerate(flat):
            touched = op.rd | op.wr
            need = -1
            for n, (k, g) in enumerate(lds):
                if k < i and n > done and (flat[k][0].wr & touched):
                    need = n
            if need >= 0:
                assert lds[need][1] < wg
                issued = [n for n, (k, g) in enumerate(lds) if g < wg]
                cnt = min(issued[-1] - need, 15)
                done = issued[-1] - cnt
                if wg >= N - 1 and wg < 2 * N - 1:
                    W[wg % N] = min(cnt, W.get(wg % N, 99))
                    if self.o["verbose"]:
                        print(f"; wait gap {wg % N} cnt {cnt} lead {wg - lds[need][1]} for {flat[lds[need][0]][0].text}", file=sys.stderr)
        W[self.drain] = 0
        if clm:
            mb = [g for g in range(N) if any("ds_write" in x.text for x in D[g])][0]
            assert not [g for g in W if mb < g < self.drain]
        for g, c in W.items():
            S[g].insert(0, Op(f"s_waitcnt lgkmcnt({c})", "salu"))
        if not self.o["drop"]:
            last = max(g for g in range(BAR + 1) if any(x.kind == "lds" for x in D[g]))
            assert any(W.get(g) == 0 for g in range(last + 1, BAR + 1)), "tile reads not drained at the barrier"

        def room(g, extra=0, resv=True):
            g %= N
            if g == BAR or g == N - 1 or any(x.kind == "dma" for x in D[g]):
                return False
            cap = 1 if D[g] else (2 if V[g] else 3)
            if label and not clm and resv:
                if g == self.drain - 1:
                    return False
                cap -= g == self.drain - 2
            return len(S[g]) + extra < cap and not ST[g]
        sccfree = lambda x: x.text.startswith(("s_waitcnt", "s_mov", "s_barrier"))
        locked = set()
        for texts, lo, hi in sq:
            g = lo
            n = 0
            while n < len(texts):
                chain = [texts[n]]
                if texts[n].startswith(("s_cmp", "s_bitcmp")):
                    while n + len(chain) < len(texts) and texts[n + len(chain)].startswith("s_cselect"):
                        chain.append(texts[n + len(chain)])
                while True:
                    assert g <= hi, ("no room", chain)
                    where, z = [], g
                    ok = room(g) and ((g % N) not in locked or chain[0].startswith("s_mov"))
                    cnt = {}
                    for k, tx in enumerate(chain):
                        while ok and not room(z, cnt.get(z, 0)):
                            z += 1
                            ok = z <= hi and all(sccfree(x) for x in S[z % N]) and (clm or z % N != self.drain - 1)
                        where.append(z)
                        cnt[z] = cnt.get(z, 0) + 1
                    if ok:
                        break
                    g += 1
                for z, tx in zip(where, chain):
                    S[z % N].append(Op(tx, "salu"))
                if len(chain) > 1:
                    locked.update(z % N for z in range(where[0], where[-1]))
                g = where[-1]
                n += len(chain)
        assert all(sccfree(x) for x in S[N - 1])
        if label and not clm:
            gz = self.drain - (2 if self.o["trace"] else 1)
            assert self.o["chain"] and (self.o["trace"] or (not (S[gz] or D[gz] or V[gz] or ST[gz]) and room(gz - 1, 0, False) and (gz - 1) not in locked))
            assert all(x.kind not in ("dma", "st") for g in range(gz, N) for x in D[g] + ST[g]) and max(self.o["stg"]) < min(self.o["dmag"])
            S[gz - (0 if self.o["trace"] else 1)].append(Op(f"s_bitcmp1_b32 s{S_WMASK}, s{S_IT}", "salu"))
            S[gz] += [Op(f"s_cbranch_scc1 {label}_w", "salu"), Op(f"{label}_wb:", "label")]
            self.tailblocks.append(f"{label}_w:\ns_bitcmp1_b32 s{S_WMASK2}, s{S_IT}\ns_waitcnt vmcnt({self.whi})\n"
                                   f"s_cbranch_scc0 {label}_wb\ns_waitcnt vmcnt({self.wlo})\ns_branch {label}_wb")
        if self.o["trace"]:
            g0 = max(g for g, c in W.items() if c == 0 and g <= BAR)
            S[g0 - 1] += [Op("s_memrealtime s[98:99]", "salu"), Op("s_memtime s[96:97]", "salu"), Op(f"s_add_u32 s95, s{S_IT}, 32", "salu")]
            V[g0] += [Op(f"s_mov_b32 m0, s{S_IT}", "salu"), Op("v_writelane_b32 v254, s98, m0", "salu"), Op("s_mov_b32 m0, s95", "salu"), Op("v_writelane_b32 v254, s96, m0", "salu")]
        body = []
        pro = [x for g in range(N) for x in V[g] if x.tag == "pre" or (g > BAR and "sdwa" in x.text)] \
            + [x for g in range(BAR + 1, N) for x in D[g] if x.tag == "pre"]
        epi = [x for g in range(BAR) for x in ST[g] + D[g] + V[g] if x.tag == "epi"]
        nsw = 0
        for g in range(N):
            sw_ = self.o["swp"][2 if clm else (0 if dma else 1)]
            if sw_ and len(D[g]) == 1 and len(V[g]) == 1 and D[g][0].kind == "lds" and not ST[g] and "sdwa" in V[g][0].text \
                    and not (V[g][0].wr & (D[g][0].rd | D[g][0].wr)) and nsw < sw_:
                D[g], V[g] = V[g], D[g]
                nsw += 1
            body += [x for x in [seq[g]] if not any(d in x.text for d in self.o["dropm"])] + ST[g] + S[g] + D[g] + V[g]
            if self.o["pad"] and g % self.o["pad"] == 0 and g < N - 2:
                body.append(Op("s_nop 3", "salu"))
        body = [x for x in body if x.kind == "mx" or not any(d in x.text for d in self.o["drop"])]
        body.append(Op(f"s_cbranch_scc1 {label}", "salu"))
        if not self.o["drop"]:
            real = [x for x in body if x.kind != "label"]
            m = len(real)
            for i, op in enumerate(real):
                for d in range(1, 10):
                    p = real[(i - d) % m]
                    ws = d - 1
                    if p.kind == "mx" and op.kind != "mx" and (p.wr & (op.rd | op.wr)):
                        assert ws >= 8, ("mx->x", p.text, op.text, ws)
                    if p.kind in ("valu", "dpp") and op.kind == "mx" and (p.wr & op.rd):
                        assert ws >= 2, ("valu->mx", p.text, op.text, ws)
                    if p.kind in ("valu", "dpp") and op.kind == "dpp" and (p.wr & op.rd):
                        assert ws >= 2, ("valu->dpp", p.text, op.text, ws)
                    if p.kind == "st" and (p.rd & op.wr):
                        assert ws >= 2, ("st war", p.text, op.text, ws)
        return pro, body, epi

    def emit_epi(self, epi):
        cv = [x for x in epi if "v_cvt" in x.text]
        bp = [x for x in epi if x.kind == "lds"]
        rest = [x for x in epi if x not in cv and x not in bp]
        ops = rest[:6] + cv[2:] + bp + rest[6:12] + cv[:2] + rest[12:]
        if self.o["ste"] is not None:
            ops = [Op(x.text.replace(" sc1", " " + self.o["ste"]), x.kind, x.rd, x.wr) if x.kind == "st" else x for x in ops]
        hist = [Op("", "mx", wr=rng(V_ACC + 28, 8)), Op("", "valu", wr=rng(V_P, 14)), Op("", "salu")]
        self.emit_line(ops, [], hist)

    def main_loop(self, links, sfx):
        a = self.a
        pro, body, epi = self.assemble_loop(links, "L_loop" + sfx)
        if not self.o["peel"]:
            late = list(self.late_loads)
            for n, op in enumerate(pro):
                a(op.text)
                if n % 6 == 5:
                    while late and not late[0].startswith("buffer"):
                        a(late.pop(0))
                    if late:
                        a(late.pop(0))
            for x in late[:8]:
                a(x)
            a("s_waitcnt lgkmcnt(0)")
            a(f"v_readfirstlane_b32 s{S_T0}, v{V_T}")
            a("s_nop 3")
            a(f"s_cmp_lg_u32 s{S_T0}, 0")
            a("s_cbranch_scc1 L_slow")
            for x in late[8:]:
                a(x)
            if max(p[1] for p in self.pol):
                self.prefetch(24, "L_pf2" + sfx)
            for x in self.dma_advance(first=True):
                a(x)
            a(f"s_waitcnt vmcnt({(20 if self.o['early'] else 0) + 5 * self.n2min})")
            self.stamp(5)
            a(f"s_bitcmp1_b32 s{S_DMASK}, 0")
            a(f"s_cbranch_scc0 L_loopn{sfx}")
        a(".p2align 6")
        a(f"L_loop{sfx}:")
        for op in body:
            a(op.text)
        if self.o["wbl2"] is not None:
            a(f"s_lshr_b32 s{S_T0}, s2, 3")
            a(f"s_and_b32 s{S_T0}, s{S_T0}, {self.o['wbl2']}")
            a(f"s_or_b32 s{S_T0}, s{S_T0}, s{S_WAVE}")
            a(f"s_cbranch_scc1 L_loopn{sfx}")
            a("buffer_wbl2 sc1")
        if self.dyn:
            LK = self.dyn[1]
            a(f"s_cmp_lg_u32 s{S_IT}, {self.cl0}")
            a(f"s_cbranch_scc1 L_loopn{sfx}")
            a(".p2align 3")
            a(f"L_loopc{sfx}:")
            for op in self.assemble_loop(links, "L_loopc" + sfx, True, True)[1]:
                a(op.text)
            if self.o["trace"]:
                a(f"s_add_u32 s{S_NT}, s{S_IT}, {LK}")
                a(f"s_bfm_b32 s{S_NMASK}, s{S_NT}, 0")
                a(f"s_lshl_b32 s{S_WMASK}, {1 << (LK-1)}, s{S_IT}")
                a(f"s_lshl_b32 s{S_WMASK2}, {(1 << (LK-1)) if 5*(LK-1) < self.whi else 0}, s{S_IT}")
            else:
                a(f"s_mov_b32 s{S_IT}, 0")
                a(f"s_mov_b32 s{S_NT}, {LK}")
                a(f"s_mov_b32 s{S_NMASK}, {(1 << LK) - 1}")
                a(f"s_mov_b32 s{S_WMASK}, {(1 << (LK-1)) if 5*(LK-1) < self.o['vmw'] else 0}")
                a(f"s_mov_b32 s{S_WMASK2}, {(1 << (LK-1)) if 5*(LK-1) < self.whi else 0}")
            a(f"s_mov_b32 s{S_CL0}, -1")
            if self.o["stt"] is not None:
                keep, self.o["stn"] = self.o["stn"], self.o["stt"]
                for op in self.assemble_loop(links, "L_loopt" + sfx, False)[1][:-1]:
                    a(op.text)
                self.o["stn"] = keep
        if self.o["align2"]:
            a(".p2align 3")
        a(f"L_loopn{sfx}:")
        _, body, epi = self.assemble_loop(links, "L_loopn" + sfx, False)
        for op in body:
            a(op.text)
            if op.kind == "bar":
                a(f"L_loopn{sfx}_p3:")
        if self.dyn:
            a(f"s_cmp_eq_u32 s{S_IT}, s{S_CL0}")
            a(f"s_cbranch_scc1 L_loopc{sfx}")
        a(f"s_cmp_lt_u32 s{S_IT}, s{S_NT}")
        a(f"s_cbranch_scc1 L_loop{sfx}")
        self.emit_epi(epi)

    def loop_state(self):
        a = self.a
        pl = 2 if self.o["peel"] else 0
        a(f"s_mov_b32 s{S_IT}, {pl}")
        a(f"s_mov_b32 s{S_BUF}, 0")
        a(f"s_mov_b32 s{S_BUFN}, {pl*TBL}")
        if pl:
            a(f"s_mov_b32 s{S_OUT+2}, {XBYTES}")
        a(f"s_mov_b32 s{S_CTB}, {TBL}")
        a(f"s_mov_b32 s{S_OINC}, {256*TB if pl else 0}")
        a(f"s_mov_b64 vcc, {sr(S_EVEN,2)}")
        if self.dyn:
            NS, LK = self.dyn
            ps = self.o["psh"]
            a(f"s_andn2_b32 s{S_NMASK}, {(1 << self.cl0) - 1}, s{S_DMASK}")
            a(f"s_mov_b32 s{S_CL0}, {self.cl0}")
            a(f"s_add_u32 s{S_Q}, s{S_OOFF}, {pl*256*TB}")
            for k in range(1, LK):
                a(f"s_add_u32 s{S_Q+k}, s{S_Q+k-1}, {256*TB}")
            a(f"s_sub_u32 s{S_K5}, s{S_XOFF5}, s{S_XOFF}")
            a(f"s_lshr_b32 s{S_T0}, s2, {ps}")
            a(f"s_mul_i32 s{S_CB}, s{S_T0}, {TB << ps}")
            a(f"s_add_u32 s{S_CB}, s{S_CB}, {NS*256*TB}")
            a(f"s_lshl_b32 s{S_T0}, s{S_T0}, 7")
            a(f"s_add_u32 s{S_T0}, s{S_T0}, {CNT_OFF}")
            a(f"s_add_u32 s{S_B}, s{S_WS}, s{S_T0}")
            a(f"s_addc_u32 s{S_B+1}, s{S_WS+1}, 0")
            a(f"s_cmp_eq_u32 s{S_WAVE}, 0")
            a(f"s_cselect_b32 s{S_B+2}, 4, 0")
            a(f"s_cselect_b64 {sr(S_W0,2)}, 1, 0")
        else:
            a(f"s_bfm_b32 s{S_NMASK}, s{S_NT}, 0")
            a(f"s_andn2_b32 s{S_NMASK}, s{S_NMASK}, s{S_DMASK}")

    def stamp(self, n, r="s[98:99]"):
        if self.o["stamp"] and (self.o["stamp"] is True or n in self.o["stamp"]):
            a = self.a
            a(f"s_memtime {r}" if self.o["cyc"] and n in (5, 6) else f"s_memrealtime {r}")
            a("s_waitcnt lgkmcnt(0)")
            a(f"v_writelane_b32 v255, s{r[2:4]}, {n}")

    def descriptor(self, label, vg, ag):
        self.a(f""".amdhsa_kernel {label}
  .amdhsa_next_free_vgpr {vg}
  .amdhsa_next_free_sgpr 102
  .amdhsa_accum_offset {ag}
  .amdhsa_group_segment_fixed_size 0
  .amdhsa_float_denorm_mode_32 3
  .amdhsa_kernarg_size 48
  .amdhsa_user_sgpr_count 2
  .amdhsa_user_sgpr_kernarg_segment_ptr 1
  .amdhsa_system_sgpr_workgroup_id_x 1
.end_amdhsa_kernel""")

    def flush_tail(self):
        for b in self.tailblocks:
            self.a(b)
        self.tailblocks = []

    def gen(self):
        a = self.a
        o = self.o
        K = NAME + "_kernel"
        a(open("cdna_kernels/" + NAME + ".s.ref").read().split("; Override")[0].rstrip())
        if o["fused"]:
            a(f"; @launch grid=(256,1,1) block=(256,1,1) lds={LDS_BYTES}")
        else:
            a(f"; @launch kernel=prep_kernel grid=({NTASK},1,1) block=(256,1,1) lds={LDS_BYTES}")
            a(f"; @launch kernel={K} grid=(256,1,1) block=(256,1,1) lds={LDS_BYTES}")
        a('.amdgcn_target "amdgcn-amd-amdhsa--gfx950"\n.text')
        if not o["fused"]:
            self.entry("prep_kernel", NTASK)
            a(f"s_mov_b32 s{S_TASK}, s2\ns_mov_b32 s{S_BASE}, 0")
            self.producer("", False)
            a("L_end_prep_kernel:\ns_endpgm")
            self.flush_tail()
        self.entry(K, 256)
        a(f"s_mov_b32 s{S_BASE}, 0")
        mid = {id(p): m for p, m in zip(self.pol, self.mid)}
        msk = lambda p: hex(sum(1 << i for i in p[2] if not self.dyn or i < self.cl0) | (p[0] - mid[id(p)]) << 20 | p[1] << 24 | mid[id(p)] << 28)
        def pick(reg, vals):
            if len(set(vals)) == 1:
                a(f"s_mov_b32 s{reg}, {vals[0]}")
                return
            a(f"s_mov_b32 s{reg}, {vals[1]}")
            a(f"s_mov_b32 s{S_T0}, {vals[3]}")
            a(f"s_bitcmp1_b32 s2, {o['gsh']}")
            a(f"s_cselect_b32 s{reg}, s{reg}, {vals[0]}")
            a(f"s_cselect_b32 s{S_T0}, s{S_T0}, {vals[2]}")
            a(f"s_bitcmp1_b32 s2, {o['gsh2']}")
            a(f"s_cselect_b32 s{reg}, s{S_T0}, s{reg}")
        if o["fused"]:
            px = o["px"]
            if o["pspread"]:
                a(f"s_bfe_u32 s{S_TASK}, s2, {hex(2 << 16 | 3)}")
                a(f"s_mul_i32 s{S_TASK}, s{S_TASK}, {px}")
                a(f"s_and_b32 s{S_T0}, s2, 7")
                a(f"s_add_u32 s{S_TASK}, s{S_TASK}, s{S_T0}")
                a(f"s_lshr_b32 s{S_T1}, s2, 5")
                a(f"s_lshl3_add_u32 s{S_TASK}, s{S_TASK}, s{S_T1}")
            else:
                a(f"s_lshr_b32 s{S_TASK}, s2, 3")
                a(f"s_mul_i32 s{S_TASK}, s{S_TASK}, {px}")
                a(f"s_and_b32 s{S_T0}, s2, 7")
                a(f"s_add_u32 s{S_TASK}, s{S_TASK}, s{S_T0}")
            a(f"s_cmp_lt_u32 s{S_T0}, {px}")
            a(f"s_cselect_b32 s{S_TASK}, s{S_TASK}, 63")
            a(f"s_cmp_lt_u32 s{S_TASK}, {NTASK}")
            a("s_cbranch_scc1 L_prod")
        pick(S_DMASK, [msk(p) for p in self.pol[:4]])
        self.lane_setup()
        if o["fused"] and o["sig"] == 3:
            self.mb_addr(S_T0, S_T1)
            a(f"s_cmp_eq_u32 s{S_WAVE}, 0")
            a(f"s_cselect_b32 s{S_T0}, s{S_T0}, 0x40000000")
            a(f"v_mov_b32 v8, s{S_T0}")
            a("v_mov_b32 v9, 0")
        self.entry_wait()
        if o["fused"] and o["sig"] == 4:
            assert o["pspread"]
            a(f"s_cmp_lg_u32 s2, {CLEARER}")
            a("s_cbranch_scc1 L_cons3")
            a("v_lshlrev_b32 v8, 4, v0")
            a("v_mov_b64 v[12:13], 0")
            a("v_mov_b64 v[14:15], 0")
            a(f"buffer_store_dwordx4 v[12:15], v8, {sr(S_DBG,4)}, 0 offen sc1")
            a(f"v_add_u32 v8, {FL_OFF}, v8")
            a("v_add_u32 v9, 4096, v8")
            a(f"buffer_store_dwordx4 v[12:15], v8, {sr(S_WS,4)}, 0 offen sc1")
            a(f"buffer_store_dwordx4 v[12:15], v9, {sr(S_WS,4)}, 0 offen sc1")
            a("v_mov_b32 v10, 1")
            a("v_lshlrev_b32 v11, 2, v0")
            a("s_waitcnt vmcnt(0)")
            a("s_barrier")
            a("s_mov_b32 exec_hi, 0")
            a(f"buffer_store_dword v10, v11, {sr(S_DBG,4)}, 0 offen sc1")
            a("s_mov_b64 exec, -1")
        self.ptouch()
        if o["fused"] and o["sig"] == 3:
            a("s_mov_b64 exec, 1")
            a(f"buffer_store_dword v9, v8, {sr(S_WS,4)}, 0 offen sc1")
            a("s_mov_b64 exec, -1")
        a("L_cons3:")
        self.stamp(1)
        self.dma_setup()
        if o["bias0"]:
            self.bias_load()
        if o["pfd"]:
            a(f"s_waitcnt vmcnt({2 - o['pfd']})")
        self.prefetch(20)
        self.stamp(2)
        if o["fused"]:
            a("s_branch L_rest")
            a("L_prod:")
            self.producer("", False)
            pick(S_DMASK, [msk(p) for p in self.pol[4:]] * 2)
            a("s_barrier")
            a(f"s_cmp_lg_u32 s{S_WAVE}, 0")
            a("s_cbranch_scc1 L_cons2")
            if o["sig"] != 4:
                a("v_mov_b32 v8, 1")
                a("s_mov_b64 exec, 1")
            if o["sig"] == 4:
                a(f"v_readfirstlane_b32 s{S_T0}, v8")
                a("s_mov_b64 exec, 0xffff")
                a(f"s_cmp_lg_u32 s{S_T0}, 1")
                a("s_cbranch_scc1 L_pwait")
                a("L_pset:")
                a(f"buffer_store_dword v10, v9, {sr(S_WS,4)}, 0 offen sc1")
                self.tailblocks.append("\n".join([
                    "L_pwait:", f"s_mov_b32 s{S_T1}, {o['maxpoll']}", "L_pwait1:", f"buffer_load_dword v8, off, {sr(S_DBG,4)}, 0 sc1",
                    "s_waitcnt vmcnt(0)", f"v_readfirstlane_b32 s{S_T0}, v8", "s_nop 3", f"s_cmp_eq_u32 s{S_T0}, 1", "s_cbranch_scc1 L_pset",
                    f"s_sub_u32 s{S_T1}, s{S_T1}, 1", "s_cbranch_scc0 L_pwait1", "s_branch L_notlast"]))
            elif o["sig"] == 2:
                a(f"s_lshr_b32 s{S_T0}, s{S_TASK}, 1")
                a(f"s_lshl_b32 s{S_T0}, s{S_T0}, 2")
                a(f"s_bitcmp1_b32 s{S_TASK}, 0")
                a(f"s_cselect_b32 s{S_T1}, 128, 0")
                a(f"s_add_u32 s{S_T0}, s{S_T0}, s{S_T1}")
                a(f"v_mov_b32 v9, s{S_T0}")
                a(f"buffer_store_dword v8, v9, {sr(S_DBG,4)}, 0 offen {o['fs']}")
            else:
                a(f"buffer_atomic_add v8, off, {sr(S_DBG,4)}, 0 offset:128 sc0 sc1")
                if o["sig"] == 3:
                    a("s_mov_b64 exec, -1")
                    a(f"s_mov_b32 s{S_T1}, {MB_OFF}")
                    a(f"v_lshl_add_u32 v10, v{V_LANE}, 7, s{S_T1}")
                    for k in range(1, 4):
                        a(f"v_add_u32 v{10+k}, {8192*k}, v10")
                a("v_mov_b32 v9, 1")
                a("s_waitcnt vmcnt(0)")
                a(f"v_readfirstlane_b32 s{S_T0}, v8")
                a("s_nop 3")
                a(f"s_cmp_lg_u32 s{S_T0}, {NTASK-1}")
                a("s_cbranch_scc1 L_notlast")
                if o["sig"] == 3:
                    for k in range(4):
                        a(f"buffer_store_dword v9, v{10+k}, {sr(S_WS,4)}, 0 offen sc1")
                    a("s_mov_b64 exec, 1")
                a(f"buffer_store_dword v9, off, {sr(S_DBG,4)}, 0 {o['fs']}")
                if o["diag"] and o["diag"][2] == "last":
                    a("s_mov_b32 s101, -1")
            a("L_notlast:")
            self.stamp(15)
            a("s_mov_b64 exec, -1")
            a("L_cons2:")
            self.lane_setup()
            if o["bar2"] and o["sig"] != 4:
                a("s_barrier")
            a("s_branch L_cons3")
            self.flush_tail()
            a("L_rest:")
        for reg, wm in ((S_WMASK, self.wmask), (S_WMASK2, self.wmask2)):
            pick(reg, [hex(x) for x in wm[:4]])
            if o["fused"]:
                pick(S_T1, [hex(x) for x in wm[4:]] * 2)
                a(f"s_cmp_lt_u32 s{S_TASK}, {NTASK}")
                a(f"s_cselect_b32 s{reg}, s{S_T1}, s{reg}")
        if not o["bias0"]:
            self.bias_load()
        self.lane_setup2()
        self.tables_init()
        pre, C, G = self.build()
        if o["fused"]:
            a(f"s_cmp_lg_u32 s{S_WAVE}, 0")
            a("s_cbranch_scc1 L_ready")
            if o["sig"] == 4:
                a(f"s_mov_b32 s{S_T1}, {o['maxpoll']}")
                a(f"s_mov_b32 s{S_T0}, {FL_OFF}")
                a(f"v_lshl_add_u32 v9, v{V_LANE}, 7, s{S_T0}")
                a(f"s_bfe_u32 s{S_T0}, s{S_DMASK}, {hex(4 << 16 | 20)}")
                a(f"s_cmp_ge_u32 s{S_T0}, 6")
                a("s_waitcnt vmcnt(15)")
                a("s_cbranch_scc1 L_deep")
                a(f"s_waitcnt vmcnt({0 if o['bias0'] else 1})")
                a("L_deep:")
                self.stamp(14)
                a(f"v_readfirstlane_b32 s{S_T0}, v124")
                a(f"s_mov_b32 exec_hi, {(1 << (NTASK - 32)) - 1}")
                a(f"s_cmp_lg_u32 s{S_T0}, 1")
                a("s_cbranch_scc1 L_cwait")
                self.tailblocks.append("\n".join([
                    "L_cwait:", f"buffer_load_dword v8, off, {sr(S_DBG,4)}, 0 sc1", f"s_sub_u32 s{S_T1}, s{S_T1}, 1", "s_cbranch_scc1 L_giveup",
                    "s_waitcnt vmcnt(0)", f"v_readfirstlane_b32 s{S_T0}, v8", "s_nop 3", f"s_cmp_lg_u32 s{S_T0}, 1", "s_cbranch_scc1 L_cwait",
                    "s_branch L_poll"]))
                a("L_poll:")
                if o["psleep"]:
                    a(f"s_sleep {o['psleep']}")
                a(f"buffer_load_dword v8, v9, {sr(S_WS,4)}, 0 offen sc1")
                a(f"s_sub_u32 s{S_T1}, s{S_T1}, 1")
                a("s_cbranch_scc1 L_giveup")
                a("s_waitcnt vmcnt(0)")
                a("v_cmp_ne_u32 vcc, 1, v8")
                a("s_nop 4")
                a("s_cbranch_vccnz L_poll")
            else:
                if o["sig"] == 2:
                    a(f"v_lshlrev_b32 v9, 2, v{V_LANE}")
                    a("s_waitcnt vmcnt(0)")
                else:
                    a("s_mov_b64 exec, 1")
                a(f"s_mov_b32 s{S_T1}, {o['maxpoll']}")
                if o["stamp"] and (o["stamp"] is True or 14 in o["stamp"]):
                    a("s_waitcnt vmcnt(0)")
                    self.stamp(14)
                if o["sig"] == 3:
                    self.mb_addr(S_T0, S_MASK)
                    a(f"v_mov_b32 v9, s{S_T0}")
                    a(f"s_waitcnt vmcnt({5*self.premin})")
                a("L_poll:")
                if o["psleep"]:
                    a(f"s_sleep {o['psleep']}")
                if o["sig"] == 3:
                    a(f"s_and_b32 s{S_T0}, s{S_T1}, 15")
                    a("s_cbranch_scc0 L_polld")
                    a(f"buffer_load_dword v8, v9, {sr(S_WS,4)}, 0 offen sc1")
                    a("L_pollb:")
                    self.tailblocks.append(f"L_polld:\nbuffer_load_dword v8, off, {sr(S_DBG,4)}, 0 sc1\ns_branch L_pollb")
                else:
                    a(f"buffer_load_dword v8, {'v9' if o['sig'] == 2 else 'off'}, {sr(S_DBG,4)}, 0 {'offen ' if o['sig'] == 2 else ''}{o['pl']}")
                a(f"s_sub_u32 s{S_T1}, s{S_T1}, 1")
                a("s_cbranch_scc1 L_giveup")
                a("s_waitcnt vmcnt(0)")
                if o["sig"] == 2:
                    a("v_cmp_ne_u32 vcc, 0, v8")
                    a(f"s_bcnt1_i32_b64 s{S_T0}, vcc")
                    a(f"s_cmp_lt_u32 s{S_T0}, {NTASK}")
                else:
                    a(f"v_readfirstlane_b32 s{S_T0}, v8")
                    a("s_nop 3")
                    a(f"s_cmp_lg_u32 s{S_T0}, 1")
                a("s_cbranch_scc1 L_poll")
            a("L_polled:")
            a("s_mov_b64 exec, -1")
            a("L_ready:")
            self.tailblocks.append(f"L_giveup:\ns_waitcnt vmcnt(0)\nv_mov_b32 v8, {L_PL + 256}\nv_mov_b32 v9, 1\nds_write_b32 v8, v9\ns_branch L_polled")
        a("s_waitcnt lgkmcnt(0)")
        a("s_barrier")
        self.stamp(3)
        self.emit_build(pre, C, G)
        self.stamp(4, "s[94:95]")
        self.loop_state()
        a("s_waitcnt lgkmcnt(0)")
        a(f"v_mov_b32 v{V_X if o['peel'] else V_T}, {L_PL + 256}")
        a("s_barrier")
        if o["peel"]:
            self.peel()
            if max(p[1] for p in self.pol):
                self.prefetch(24, "L_pf2")
            for x in self.dma_advance(first=True):
                a(x)
            a(f"s_add_u32 s{S_OOFF}, s{S_OOFF}, {256*TB}")
            self.stamp(5)
            a("s_waitcnt lgkmcnt(0)")
            a("s_barrier")
            if o["links"] is None:
                a(f"s_cmp_lg_u32 s{S_LINK}, 0")
                a("s_cbranch_scc1 L_loopnk_p3")
            a("s_branch L_loopn_p3")
        else:
            a(f"ds_read_b32 v{V_T}, v{V_T}")
            if o["links"] is None:
                a(f"s_cmp_lg_u32 s{S_LINK}, 0")
                a("s_cbranch_scc1 L_linked")
        self.main_loop(bool(o["links"]), "")
        a("L_fin:")
        if o["stamp"]:
            a(f"v_mbcnt_lo_u32_b32 v{V_LANE}, -1, 0\nv_mbcnt_hi_u32_b32 v{V_LANE}, -1, v{V_LANE}")
        self.stamp(6)
        if o["stamp"]:
            a("s_waitcnt vmcnt(0)")
            self.stamp(7)
            a("v_writelane_b32 v255, s100, 0")
            a(f"s_lshl_b32 s{S_T0}, s2, 2\ns_add_u32 s{S_T0}, s{S_T0}, s{S_WAVE}\ns_lshl_b32 s{S_T0}, s{S_T0}, 6")
            a(f"s_add_u32 s{S_T0}, s{S_T0}, {WSBYTES - 65536}")
            if o["trace"]:
                a(f"s_lshl_b32 s{S_T1}, s2, 2\ns_add_u32 s{S_T1}, s{S_T1}, s{S_WAVE}\ns_lshl_b32 s{S_T1}, s{S_T1}, 8")
                a(f"s_add_u32 s{S_T1}, s{S_T1}, {WSBYTES - 65536 - 262144}")
                a(f"v_lshl_add_u32 v8, v{V_LANE}, 2, s{S_T1}")
                a(f"buffer_store_dword v254, v8, {sr(S_WS,4)}, 0 offen")
                a("s_nop 1")
            a(f"v_lshl_add_u32 v254, v{V_LANE}, 2, s{S_T0}")
            a("s_mov_b32 exec_lo, 0xffff\ns_mov_b32 exec_hi, 0")
            a(f"buffer_store_dword v255, v254, {sr(S_WS,4)}, 0 offen")
            if o["diag"]:
                n1, n0, wg, mul = o["diag"]
                a(("s_cmp_lg_u32 s101, -1" if wg == "last" else f"s_cmp_lg_u32 s2, {wg}") + f"\ns_cbranch_scc1 L_end_{K}\ns_cmp_lg_u32 s{S_WAVE}, 0\ns_cbranch_scc1 L_end_{K}")
                a(f"v_readlane_b32 s60, v255, {n1}\nv_readlane_b32 s61, v255, {n0}\ns_nop 3\ns_sub_u32 s60, s60, s61\ns_mul_i32 s60, s60, {mul}")
                a("s_min_u32 s60, s60, 100000\ns_add_u32 s60, s60, 10000")
                a("L_diag:\ns_sleep 1\ns_memrealtime s[62:63]\ns_waitcnt lgkmcnt(0)\ns_sub_u32 s62, s62, s100\ns_cmp_lt_u32 s62, s60\ns_cbranch_scc1 L_diag")
        a(f"L_end_{K}:\ns_endpgm")
        self.flush_tail()
        if o["links"] is None:
            a("L_linked:")
            self.main_loop(True, "k")
            a("s_branch L_fin")
            self.flush_tail()
        self.slow_path(K)
        a('.section .rodata,"a"\n.p2align 6')
        if not o["fused"]:
            self.descriptor("prep_kernel", 128, 128)
            a(".p2align 6")
        self.descriptor(K, 512, 256)
        return "\n".join(self.L) + "\n"


if __name__ == "__main__":
    opts = eval("dict(" + (sys.argv[2] if len(sys.argv) > 2 else "") + ")")
    out = sys.argv[1] if len(sys.argv) > 1 else "cdna_kernels/" + NAME + ".s"
    open(out, "w").write(Gen(**opts).gen())
```

```python
import sys

NAME = "standalone__structured_sparse_n_m__ragged"
TB = 18432
TBL = TB + 128
NB = 8
CNT_OFF = 0x60000
MB_OFF = 0x68000
FL_OFF = 0x70000
CLEARER = 24
PRIV0 = 2
XBYTES = 75497472
WBYTES = 663552
WSBYTES = 301989888
A_OFF = 0
I_OFF = 331776
I8_OFF = I_OFF + 36864
R1_OFF = I8_OFF + 5120
R8_OFF = R1_OFF + 9216
COPY = 393216
NTASK = 41
L_WV = NB * TBL
WV_SZ = 3584
O_X, O_K, O_M, O_BIAS, O_IDX = 64, 384, 704, 1024, 1792
L_PL = L_WV + 4 * WV_SZ
LDS_BYTES = 163840
assert L_PL + 512 <= LDS_BYTES and L_WV % 256 == 0 and WV_SZ % 256 == 0

V_RD0, V_RD1, V_TAB, V_DMA, V_ST, V_ST8, V_BP, V_LANE = 0, 1, 2, 3, 4, 5, 6, 7
V_ACC = 8
V_B = 44
V_BR = 76
V_P = 92
V_T = 108
V_P8 = 112
V_X = 114
V_AD = 118
V_I = 138
V_I8 = 174
V_IR = 179
V_A = 186
S_X, S_OUT, S_WS, S_W, S_B, S_DBG = 16, 20, 24, 28, 32, 36
S_WAVE = 40
S_IT, S_BUF, S_DELTA, S_M0B, S_XOFF, S_OOFF = 41, 42, 43, 44, 45, 46
S_T0, S_T1 = 47, 3
S_MASK = 48
S_EVEN, S_ODD = 80, 82
S_TASK, S_TEND, S_BASE, S_MODE, S_CONT = 84, 85, 86, 87, 88
S_BAD = 90
S_MORE, S_LINK = 78, 89
S_C0 = 93
S_BUFN, S_CTB, S_OINC, S_XOFF5, S_M05, S_M0W, S_HALF = 4, 5, 6, 7, 8, 9, 10
S_NMASK = 12
S_WMASK, S_WMASK2 = 92, 87
S_XINC, S_OINC2, S_NT = 13, 14, 15
S_Q, S_CL, S_CB, S_K5, S_CL0, S_CT, S_W0 = 48, 56, 57, 58, 59, 60, 62
V_C = 7
S_DMASK, S_NB0 = 85, 88


def vr(b, n=1):
    return f"v{b}" if n == 1 else f"v[{b}:{b+n-1}]"


def sr(b, n=1):
    return f"s{b}" if n == 1 else f"s[{b}:{b+n-1}]"


def afrag(s, t):
    f = 9 * s + t
    return f"a[{4*f}:{4*f+3}]" if f < 64 else vr(V_A + 4 * (f - 64), 4)


def aidx(s, t):
    if t < 8:
        return V_I + 4 * s + (t >> 1), t & 1
    return V_I8 + (s >> 1), s & 1


BBUF = [0, 1, 2, 3, 0, 1, 0, 2, 3]
PEEL_T = [8, 0, 1, 2, 3, 4, 5, 6, 7]
RT = [[0, 1], [1, 2, 3], [3, 4, 5], [5, 6, 7], [7, 8]]


class Op:
    def __init__(self, text, kind, rd=(), wr=(), tag=""):
        self.text, self.kind, self.rd, self.wr, self.tag = text, kind, set(rd), set(wr), tag


def rng(b, n):
    return range(b, b + n)


class Gen:
    def __init__(self, **o):
        self.o = dict(fused=True, ld="nt", st="sc1", bperm=True, grp=None, nb0=None, gsh=3, gsh2=6, split=0, dyn=(10, 3), psh=6, peel=True, ptail=10, midg=(12, 34, 58, 82, 106, 126), vcap=18, stp=None, stt=None, ste=None, mbg=64, cwg=46, dwg=20, wbl2=None, stn=None, pad=0, swp=(0, 0, 0), dropm=(), st8='', stc=None, stamp=False, nodma=False, wl="sc1", ws="sc1",
                      vmw=20, lper=14, drop=(), cyc=False, links=None, ng4=8, px=2, maxpoll=20015, warm=True, bcast=True, l0=12, lw=2, cwarm=True, pil=True, pfl=False, ldw='nt', ldc='', pfd=2, bias0=True, ldp=None, ptouch=False, pspread=True, pfw=(3, 1, 0, 0), wtouch=False, bar2=True, early=True, ltail=24, coal=True, rpos=(18, 35, 50, 63, 75), rposl=(18, 36, 52, 66, 78),
                      lead=8, stg=(9, 16, 23, 30, 37), dmag=(44, 52, 60, 63, 66), gsp=2, eager=99, verbose=False, hack=None, diag=None, sig=4, psleep=0, pl='sc1', fs='sc1', isort=False, trace=False, chain=True, ord1=(0,1,4,5,6,2,3,7,8), ord2=(0,4,5,1,6,7,2,3,8), align2=True, order='hp')
        self.o.update(o)
        if self.o["grp"] is None and self.o["nb0"] is None:
            self.o.update(grp=[(3, 2, 2), (8, 0, 5), (3, 2, 2)])
        grp = self.o["grp"] or [(self.o["nb0"], 0, 0)] * 2
        if len(grp) != 6:
            grp = list(grp[:-1]) * (4 // (len(grp) - 1)) + [grp[-1]] * 2
        sp = self.o["split"]
        if sp:
            self.o["gsh"], self.o["gsh2"] = 0, 3
        self.pol, self.nt = [], []
        self.mid = []
        for c, (n1, n2, its) in enumerate(grp):
            self.mid.append(n1[1] if isinstance(n1, tuple) else 0)
            n1 = sum(n1) if isinstance(n1, tuple) else n1
            nt = 16 + (sp if c % 2 == 0 else -sp)
            nb = n1 + n2
            its = list(its) if isinstance(its, (list, tuple)) else [its]
            while len(its) < nt - nb:
                its.append(its[-1] + 1)
            assert len(its) == nt - nb and all(nb + n - 7 <= i <= nb + n - 2 for n, i in enumerate(its)) and n1 >= 1, (n1, n2, its)
            self.pol.append((n1, n2, its))
            self.nt.append(nt)
        self.dyn = self.o["dyn"]
        if self.dyn:
            NS, LK = self.dyn
            self.cl0 = NS - LK - 1
            assert not sp and all(its[NS - 1 - n1 - n2] == self.cl0 and its[-1] == 15 - LK for n1, n2, its in self.pol) and self.cl0 >= 1
        self.n2min = min(p[1] for p in self.pol)
        self.premin = min(p[0] - m for p, m in zip(self.pol, self.mid))
        assert not max(self.mid) or (self.o["peel"] and self.premin >= 2 and max(self.mid) <= len(self.o["midg"]))
        req = []
        for (n1, n2, its), nt in zip(self.pol, self.nt):
            r = [63] * nt
            for tile in range(n1, nt):
                i = tile - 1
                a0 = (1 if self.o["peel"] else -1) if tile < n1 + n2 else its[tile - n1 - n2]
                r[i] = sum(10 if j in its else 5 for j in range(a0 + 1, i + 1)) + 5 * max(0, n1 + n2 - 1 - tile)
                if a0 < 0:
                    r[i] -= 5
            if self.o["peel"]:
                assert n1 >= 3 and its[0] >= 2 and not sp
            elif self.o["early"]:
                r[0] = min(r[0], 5 * n2 + (5 if 0 in its else 0))
            if self.dyn:
                r = r[:self.cl0] + [5 * (self.dyn[1] - 1)]
            req.append(r)
        low = sorted({x for r in req for x in r if x < self.o["vmw"]})
        self.wlo = low[0] if low else 0
        best = None
        for hi in low or [0]:
            cost = sum(x - (hi if x >= hi else self.wlo) for r in req[:4] for x in r[1:] if x < self.o["vmw"])
            if best is None or cost < best[0]:
                best = (cost, hi)
        self.whi = best[1]
        self.wmask = [sum(1 << (i + 1) for i, x in enumerate(r) if x < self.o["vmw"]) for r in req]
        self.wmask2 = [sum(1 << (i + 1) for i, x in enumerate(r) if x < self.whi) for r in req]
        self.req = req
        self.L = []
        self.tailblocks = []

    def a(self, s):
        self.L.extend(s.split("\n"))

    def entry(self, label, nwg):
        a = self.a
        a(f".globl {label}\n.p2align 8\n.type {label},@function\n{label}:")
        a("s_load_dwordx8 s[4:11], s[0:1], 0")
        a("s_load_dwordx4 s[12:15], s[0:1], 32")
        a(f"s_cmp_ge_u32 s2, {nwg}")
        a(f"s_cbranch_scc1 L_end_{label}")
        if self.o["stamp"]:
            a("s_memrealtime s[100:101]")
        a("v_lshlrev_b32 v3, 7, v0")
        if self.o["cwarm"]:
            a("s_getpc_b64 s[96:97]")
            a(f"v_min_u32 v2, L_slow-{label}, v3")
            a(f"global_load_dword v120, v2, s[96:97] {self.o['ldc']}")
        if self.o["wtouch"]:
            a(f"s_lshr_b32 s{S_T0}, s2, 3")
            a(f"s_mul_i32 s{S_T0}, s{S_T0}, {162*128}")
            a(f"v_add_u32 v3, s{S_T0}, v3")
            a(f"v_min_u32 v3, {WBYTES-128}, v3")
            a(f"s_and_b32 s{S_T0}, s2, {8 - self.o['px']}")
            a("s_waitcnt lgkmcnt(0)")
            a(f"s_cbranch_scc1 L_nt_{label}")
            a(f"global_load_dword v121, v3, s[6:7] {self.o['ldw']}")
            a(f"L_nt_{label}:")
        a("v_lshrrev_b32 v1, 6, v0")
        a(f"v_and_b32 v{V_LANE}, 63, v0")
        a(f"v_readfirstlane_b32 s{S_WAVE}, v1")

    def mb_addr(self, d, t):
        a = self.a
        a(f"s_lshr_b32 s{d}, s2, 4")
        a(f"s_and_b32 s{t}, s2, 7")
        a(f"s_lshl3_add_u32 s{d}, s{d}, s{t}")
        a(f"s_and_b32 s{t}, s2, 8")
        a(f"s_lshl4_add_u32 s{d}, s{t}, s{d}")
        a(f"s_lshl_b32 s{d}, s{d}, 7")
        a(f"s_add_u32 s{d}, s{d}, {MB_OFF}")

    def ptouch(self):
        if self.o["ptouch"]:
            a = self.a
            a("s_mov_b64 exec, 1")
            a(f"s_mov_b32 s{S_T0}, {MB_OFF + 0x8000}")
            a(f"buffer_load_dword v122, off, {sr(S_WS,4)}, s{S_T0} sc1")
            a(f"buffer_load_dword v123, off, {sr(S_DBG,4)}, 0 sc1")
            a("s_mov_b64 exec, -1")

    def srds(self, which):
        for srd, p, size in ((S_W, 6, WBYTES), (S_X, 4, XBYTES), (S_WS, 14, WSBYTES), (S_B, 8, 1152), (S_OUT, 10, 0), (S_DBG, 12, 256)):
            if srd in which:
                self.a(f"s_mov_b32 s{srd+2}, {size}")
                self.a(f"s_mov_b32 s{srd+3}, 0x20000")
                self.a(f"s_mov_b32 s{srd}, s{p}")
                self.a(f"s_and_b32 s{srd+1}, s{p+1}, 0xffff")

    def entry_wait(self, first=None):
        lst = (S_W, S_X, S_WS, S_B, S_OUT, S_DBG)
        if first is not False:
            self.a("s_waitcnt lgkmcnt(0)")
        self.srds(lst if first is None else (lst[:1] if first else lst[1:]))

    def producer(self, sfx, generic):
        a = self.a
        ws = self.o["ws"]
        W, Z, K = 8, 24, 28
        OA, NB_, IX = 36, 44, 48
        VL, VA, VI, VM0, VM1, VSEL, CJ = 50, 51, 52, 53, 54, 55, 56
        F0, F1, H, U, T0, T1, T2, VLI, VA2, VLD, VLR = 58, 59, 60, 61, 62, 63, 64, 65, 66, 67, 57
        C = S_MASK
        SEL = S_MASK + 16
        CNT = S_MASK + 27
        ln = f"v{V_LANE}"
        a(f"s_and_b32 s{C}, s{S_TASK}, 3")
        a(f"s_lshr_b32 s{C+1}, s{S_TASK}, 2")
        a(f"s_sub_u32 s{C+2}, s{S_TASK}, 36")
        a(f"s_lshl_b32 s{C+3}, s{S_WAVE}, 4")
        a(f"s_lshl_b32 s{C+4}, s{C+2}, 1")
        a(f"s_lshl_b32 s{C+5}, s{C}, 8")
        a(f"s_cmp_lt_u32 s{S_TASK}, 36")
        a(f"s_cselect_b32 s{C+4}, s{C+1}, s{C+4}")
        a(f"s_cselect_b32 s{C+5}, s{C+5}, 1024")
        a(f"s_cselect_b32 s{C+6}, 8, 73728")
        a(f"s_cselect_b32 s{C+7}, 32, 8")
        a(f"s_cselect_b32 s{C+8}, 16, 32")
        a(f"s_cselect_b32 s{C+9}, 128, 64")
        a(f"s_mul_i32 s{C+4}, s{C+4}, 73728")
        a(f"s_mul_i32 s{C+10}, s{S_WAVE}, 18432")
        a(f"v_and_b32 v{F0}, 1, {ln}")
        a(f"v_bfe_u32 v{F1}, {ln}, 1, 1")
        a(f"v_bfe_u32 v{H}, {ln}, 2, 2")
        a(f"v_bfe_u32 v{T0}, {ln}, 4, 1")
        a(f"v_lshrrev_b32 v{T1}, 5, {ln}")
        a(f"v_lshl_add_u32 v{VL}, v{F0}, 2, s{C+4}")
        a(f"v_mad_u32_u24 v{VL}, v{F1}, s{C+6}, v{VL}")
        a(f"v_mad_u32_u24 v{VL}, v{H}, s{C+7}, v{VL}")
        a(f"v_mad_u32_u24 v{VL}, v{T0}, s{C+8}, v{VL}")
        a(f"v_mad_u32_u24 v{VL}, v{T1}, s{C+9}, v{VL}")
        a(f"v_add_u32 v{VL}, s{C+5}, v{VL}")
        a(f"v_add_u32 v{VL}, s{C+10}, v{VL}")
        a(f"v_add_u32 v{T0}, 4608, v{VL}")
        a(f"v_add_u32 v{T1}, 9216, v{VL}")
        a(f"v_add_u32 v{T2}, 13824, v{VL}")
        if not generic:
            self.entry_wait(first=True)
        for q in range(4):
            for j in range(4):
                a(f"buffer_load_dword v{W+4*q+j}, v{(VL, T0, T1, T2)[q]}, {sr(S_W,4)}, 0 offen offset:{1152*j} {'' if generic else self.o['ldw']}")
        if not generic:
            self.stamp(8)
            self.entry_wait(first=False)
            self.ptouch()
        a(f"s_mul_i32 s{C+4}, s{C}, 9")
        a(f"s_add_u32 s{C+4}, s{C+4}, s{C+1}")
        a(f"s_mul_i32 s{C+5}, s{C+4}, 9")
        a(f"s_mul_i32 s{C+6}, s{C+2}, 18")
        a(f"s_add_u32 s{C+6}, s{C+6}, 8")
        a(f"s_lshl_b32 s{C+7}, s{C+4}, 2")
        a(f"s_add_u32 s{C+7}, s{C+7}, s{S_WAVE}")
        a(f"s_lshl_b32 s{C+8}, s{C+2}, 2")
        a(f"s_add_u32 s{C+8}, s{C+8}, s{S_WAVE}")
        a(f"s_cmp_eq_u32 s{S_TASK}, 40")
        a(f"s_cselect_b32 s{C+9}, 0x100000, 9")
        a(f"s_cmp_lt_u32 s{S_TASK}, 36")
        a(f"s_cselect_b32 s{C+5}, s{C+5}, s{C+6}")
        a(f"s_cselect_b32 s{C+6}, 2, 81")
        a(f"s_cselect_b32 s{C+9}, 1, s{C+9}")
        a(f"s_cselect_b32 s{C+7}, s{C+7}, s{C+8}")
        a(f"s_mov_b32 s{C+8}, {I_OFF}")
        a(f"s_cselect_b32 s{C+8}, s{C+8}, {I8_OFF}")
        a(f"s_mov_b32 s{C+10}, {R1_OFF}")
        a(f"s_cselect_b32 s{C+10}, s{C+10}, {R8_OFF}")
        a(f"s_cselect_b32 s{C+11}, 16, 4")
        a(f"s_cselect_b32 s{C+12}, 4, 64")
        a(f"s_cselect_b32 s{C+13}, 12, 11")
        a(f"s_cselect_b32 s{C+14}, 1, 0x8001")
        a(f"v_lshrrev_b32 v{U}, 4, {ln}")
        a(f"v_lshlrev_b32 v{T0}, 1, v{F0}")
        a(f"v_lshl_add_u32 v{H}, v{H}, 2, v{T0}")
        a(f"v_add_u32 v{T0}, v{H}, v{F1}")
        a(f"v_mul_u32_u24 v{VA}, s{C+6}, v{U}")
        a(f"v_add_lshl_u32 v{VA}, v{VA}, s{C+5}, 6")
        a(f"v_add3_u32 v{VA}, v{VA}, v{T0}, s{C+3}")
        a(f"v_lshl_add_u32 v{VA}, v{VA}, 4, s{S_BASE}")
        a(f"s_lshl_b32 s{C+9}, s{C+9}, 10")
        a(f"v_add_u32 v{VA2}, s{C+9}, v{VA}")
        a(f"s_lshl_b32 s{C+4}, s{C+7}, 8")
        a(f"s_add_u32 s{C+4}, s{C+4}, s{C+8}")
        a(f"s_add_u32 s{C+4}, s{C+4}, s{S_BASE}")
        a(f"v_mul_u32_u24 v{VI}, s{C+11}, v{T0}")
        a(f"v_mad_u32_u24 v{VI}, v{U}, s{C+12}, v{VI}")
        a(f"v_lshl_add_u32 v{VM1}, {ln}, 2, s{C+4}")
        if not generic:
            a(f"s_lshr_b32 s{C+4}, s{C+7}, 2")
            a(f"s_lshl_b32 s{C+4}, s{C+4}, 8")
            a(f"s_add_u32 s{C+10}, s{C+10}, s{C+4}")
            a(f"s_lshl2_add_u32 s{C+10}, s{C+3}, s{C+10}")
            a(f"s_lshl_b32 s{C+4}, s{C+3}, 1")
            a(f"s_add_u32 s{C+4}, s{C+4}, s{C+14}")
            a(f"v_lshl_add_u32 v{T0}, v{U}, 1, v{F1}")
            a(f"v_lshlrev_b32 v{T0}, s{C+13}, v{T0}")
            a(f"v_lshl_add_u32 v{VM0}, v{H}, 7, v{T0}")
            a(f"v_add_u32 v{VM0}, s{C+4}, v{VM0}")
            a(f"v_and_b32 v{T0}, 12, {ln}")
            a(f"v_and_b32 v{T1}, 15, {ln}")
            a(f"v_mad_u32_u24 v{T0}, v{T0}, 3, v{T1}")
            a(f"v_lshl_add_u32 v{T0}, v{T0}, 2, s{C+3}")
            a(f"v_mov_b32 v{VLD}, 0")
            a(f"ds_write_b32 v{T0}, v{VLD}")
            a(f"s_lshl2_add_u32 s{C+4}, s{S_TASK}, s{S_WAVE}")
            a(f"s_lshl_b32 s{C+4}, s{C+4}, 7")
            a(f"s_add_u32 s{C+4}, s{C+4}, {CNT_OFF - 64}")
            a(f"v_lshl_add_u32 v{VLI}, {ln}, 2, s{C+10}")
            a(f"v_lshl_add_u32 v{T0}, {ln}, 2, s{C+4}")
            a(f"v_cmp_gt_u32 vcc, 16, {ln}")
            a(f"s_lshl_b32 s{C+4}, s{C+3}, 2")
            a(f"v_lshl_add_u32 v{VLR}, {ln}, 2, s{C+4}")
            a(f"v_cndmask_b32 v{VLI}, v{T0}, v{VLI}, vcc")
            if self.o["sig"] == 3:
                self.mb_addr(C + 4, C + 5)
                a(f"s_sub_u32 s{C+4}, s{C+4}, 192")
                a(f"v_cmp_gt_u32 vcc, 48, {ln}")
                a(f"v_lshl_add_u32 v{T0}, {ln}, 2, s{C+4}")
                a("s_nop 0")
                a(f"v_cndmask_b32 v{VLI}, v{T0}, v{VLI}, vcc")
            a(f"s_mov_b32 s{CNT}, 0")
            a(f"s_mov_b32 s{SEL+9}, 0x05060100")
            a(f"s_mov_b32 s{SEL+10}, 0xffff")
        a(f"v_mov_b32 v{VSEL}, 0x05040100")
        a(f"v_mov_b32 v{T0}, 0x03020706")
        a(f"v_cmp_eq_u32 vcc, 1, v{F1}")
        CJ, EF, EO = 68, 76, 82
        for n in range(8):
            a(f"v_mov_b32 v{CJ+n}, {hex(0x0f0a0500 | 0x01010101 * (((n >> 1) << 4) | ((n & 1) << 7)))}")
        a(f"v_cndmask_b32 v{VSEL}, v{VSEL}, v{T0}, vcc")
        if not generic:
            for r in range(3):
                a(f"v_mov_b64 {vr(EF+2*r,2)}, 0")
            a(f"v_mov_b32 v{EO}, 0")
        for c in range(2):
            for j in range(4):
                a(f"s_mov_b32 s{SEL+4*c+j}, {hex(((5+2*c) << 24) | ((4+2*c) << 16) | ((5+2*c) << 8) | j)}")
        a(f"s_mov_b32 s{SEL+8}, 0x05060102")
        if generic:
            a(f"s_cmp_lg_u32 s{S_MODE}, 0")
        sw = "src0_sel:WORD_1 src1_sel:WORD_1"
        for q in range(4):
            a(f"s_waitcnt vmcnt({12-4*q + (2 if self.o['ptouch'] and not generic else 0)})")
            if q in (0, 3) and not generic:
                self.stamp(9 + q // 3)
            for c in range(2):
                n = 2 * q + c
                for j in range(4):
                    a(f"v_perm_b32 v{Z+j}, v{W+4*q+j}, v{CJ+n}, s{SEL+4*c+j}")
                a(f"v_max3_f32 v{K}, |v{Z}|, |v{Z+1}|, |v{Z+2}|")
                a(f"v_med3_f32 v{K+1}, |v{Z}|, |v{Z+1}|, |v{Z+2}|")
                a(f"v_min3_f32 v{K+2}, |v{Z}|, |v{Z+1}|, |v{Z+2}|")
                a(f"v_med3_f32 v{K+4}, v{K}, v{K+1}, |v{Z+3}|")
                a(f"v_med3_f32 v{K+5}, v{K+1}, v{K+2}, |v{Z+3}|")
                a(f"v_max_f32 v{K+3}, v{K}, |v{Z+3}|")
                if generic:
                    a(f"v_cmp_eq_u32_sdwa vcc, v{K+5}, v{K+4} {sw}")
                    a(f"s_cbranch_scc0 L_rb{n}{sfx}")
                    a(f"v_min_f32 v{K+2}, v{K+2}, |v{Z+3}|")
                    a(f"v_cndmask_b32 v{K+3}, 0, v{K+5}, vcc")
                    a(f"v_cmp_eq_u32_sdwa vcc, v{K+2}, v{K+4} {sw}")
                    a("s_nop 1")
                    a(f"v_cndmask_b32 v{K+4}, 0, v{K+2}, vcc")
                    a(f"L_rb{n}{sfx}:")
                a(f"v_perm_b32 v{OA+4*c+q}, v{K+3}, v{K+4}, s{SEL+8}")
                nb = NB_ + 2 * c + (q >> 1)
                if q & 1 == 0:
                    a(f"v_bfi_b32 v{nb}, 3, v{K+4}, v{K+3}")
                else:
                    a(f"v_bfi_b32 v{K+3}, 3, v{K+4}, v{K+3}")
                    a(f"v_lshlrev_b32 v{K+3}, 4, v{K+3}")
                    a(f"v_bfi_b32 v{nb}, 15, v{nb}, v{K+3}")
                if not generic:
                    a(f"v_cmpx_eq_u32_sdwa vcc, v{K+5}, v{K+4} {sw}")
                    if n >= 3:
                        a(f"v_or_b32 v{EO}, v{EO}, v{EF+4}")
                    if n >= 2:
                        a(f"v_mov_b64 {vr(EF+4,2)}, {vr(EF+2,2)}")
                    if n >= 1:
                        a(f"v_mov_b64 {vr(EF+2,2)}, {vr(EF,2)}")
                    a(f"v_mov_b32 v{EF}, v{K+5}")
                    a(f"v_min_f32 v{EF+1}, v{K+2}, |v{Z+3}|")
                    a("s_mov_b64 exec, -1")
        x2 = "quad_perm:[2,3,0,1] row_mask:0xf bank_mask:0xf"
        a("s_mov_b32 vcc_lo, 0x33333333")
        a("s_mov_b32 vcc_hi, 0x33333333")
        for d in range(4):
            a(f"v_cndmask_b32_dpp v{Z+d}, v{OA+4+d}, v{OA+d}, vcc {x2}")
        a("s_not_b64 vcc, vcc")
        a(f"buffer_store_dwordx4 {vr(Z,4)}, v{VA}, {sr(S_WS,4)}, 0 offen {ws}")
        for d in range(4):
            a(f"v_cndmask_b32_dpp v{OA+4+d}, v{OA+d}, v{OA+4+d}, vcc {x2}")
        a(f"s_mov_b32 s{C+4}, 0x0c0c0400")
        a(f"s_mov_b32 s{C+5}, 0x04000c0c")
        a(f"buffer_store_dwordx4 {vr(OA+4,4)}, v{VA2}, {sr(S_WS,4)}, 0 offen {ws}")
        a(f"v_perm_b32 v{IX}, v{NB_+1}, v{NB_}, s{C+4}")
        a(f"v_perm_b32 v{IX+1}, v{NB_+3}, v{NB_+2}, s{C+5}")
        a(f"v_or_b32 v{IX}, v{IX}, v{IX+1}")
        a("s_nop 1")
        a(f"v_mov_b32_dpp v{IX+1}, v{IX} quad_perm:[2,3,0,1] row_mask:0xf bank_mask:0xf")
        a(f"v_perm_b32 v{IX}, v{IX+1}, v{IX}, v{VSEL}")
        a(f"ds_permute_b32 v{IX}, v{VI}, v{IX}")
        if generic:
            a("s_waitcnt lgkmcnt(0)")
            a(f"buffer_store_dword v{IX}, v{VM1}, {sr(S_WS,4)}, 0 offen {ws}")
        if not generic:
            self.stamp(11)
            a(f"v_cmp_lt_u32 {sr(C+6,2)}, s{SEL+10}, v{EO}")
            a(f"L_emit{sfx}:")
            a(f"v_cmp_lt_u32 vcc, s{SEL+10}, v{EF}")
            a(f"v_cmp_eq_u32_sdwa {sr(C,2)}, v{EF+1}, v{EF} {sw}")
            a(f"v_perm_b32 v{T1}, v{EF}, v{VM0}, s{SEL+9}")
            a(f"v_bfe_u32 v{T0}, v{EF}, 2, 4")
            a(f"v_and_b32 v{T2}, 0x80, v{EF}")
            a(f"v_lshl_add_u32 v{T1}, v{T0}, 1, v{T1}")
            a(f"v_mbcnt_lo_u32_b32 v{T0}, vcc_lo, 0")
            a(f"v_mbcnt_hi_u32_b32 v{T0}, vcc_hi, v{T0}")
            a(f"v_add_u32 v{T1}, v{T2}, v{T1}")
            a(f"v_add_u32 v{T0}, s{CNT}, v{T0}")
            a(f"s_bcnt1_i32_b64 s{C+4}, vcc")
            a(f"s_add_u32 s{CNT}, s{CNT}, s{C+4}")
            a(f"v_cmp_gt_u32 {sr(C+4,2)}, 15, v{T0}")
            a(f"v_and_b32 v{T2}, 12, v{T0}")
            a(f"v_mad_u32_u24 v{T0}, v{T2}, 3, v{T0}")
            a(f"v_lshl_add_u32 v{T0}, v{T0}, 2, s{C+3}")
            a(f"s_and_b64 {sr(C,2)}, {sr(C,2)}, vcc")
            a(f"s_and_b64 exec, {sr(C+4,2)}, vcc")
            a(f"ds_write_b32 v{T0}, v{T1}")
            a(f"s_mov_b64 exec, {sr(C,2)}")
            a(f"v_mov_b32 v{EF}, v{EF+1}")
            a(f"v_mov_b32 v{EF+1}, 0")
            a(f"s_not_b64 exec, exec")
            a(f"v_mov_b64 {vr(EF,2)}, {vr(EF+2,2)}")
            a(f"v_mov_b64 {vr(EF+2,2)}, {vr(EF+4,2)}")
            a(f"v_mov_b64 {vr(EF+4,2)}, 0")
            a("s_mov_b64 exec, -1")
            a(f"v_or3_b32 v{T0}, v{EF}, v{EF+2}, v{EF+4}")
            a(f"v_cmp_lt_u32 vcc, s{SEL+10}, v{T0}")
            a(f"s_cmp_lg_u64 {sr(C+6,2)}, 0")
            a(f"s_cselect_b32 s{C+4}, 99, s{CNT}")
            a(f"s_cmp_gt_u32 s{C+4}, 15")
            a(f"s_cselect_b32 s{C+4}, -1, 0")
            a(f"v_mov_b32 v{T1}, s{C+3}")
            a(f"s_cbranch_vccnz L_emit{sfx}")
            a(f"v_mov_b32 v{T0}, s{C+4}")
            a(f"ds_write_b32 v{T1}, v{T0} offset:204")
            if self.o["sig"] == 4:
                a(f"v_lshlrev_b32 v{W+3}, 4, v{T1}")
            a("s_waitcnt lgkmcnt(0)")
            a("s_barrier")
            a("s_mov_b64 exec, 0xffff")
            a(f"ds_read_b32 v{VLD}, v{VLR}")
            a("s_mov_b64 exec, -1")
            a(f"buffer_store_dword v{IX}, v{VM1}, {sr(S_WS,4)}, 0 offen {ws}")
            if self.o["sig"] != 3:
                a("s_mov_b32 exec_hi, 0xffff")
            a("s_waitcnt lgkmcnt(0)")
            a(f"buffer_store_dword v{VLD}, v{VLI}, {sr(S_WS,4)}, 0 offen {ws}")
            if self.o["sig"] == 4:
                a("s_mov_b64 exec, 1")
                a(f"buffer_load_dword v{W}, v{W+3}, {sr(S_DBG,4)}, 0 offen sc1")
            a("s_mov_b64 exec, -1")
            if self.o["sig"] == 4:
                a(f"s_lshl_b32 s{C+4}, s{S_TASK}, 7")
                a(f"s_add_u32 s{C+4}, s{C+4}, {FL_OFF}")
                a(f"v_lshl_add_u32 v{W+1}, {ln}, 2, s{C+4}")
                a(f"v_mov_b32 v{W+2}, 1")
            self.stamp(12)
        a("s_waitcnt vmcnt(0)")
        if not generic:
            self.stamp(13)

    def lane_setup(self):
        a = self.a
        ln = f"v{V_LANE}"
        T0, T1, T2 = 72, 73, 74
        a(f"v_lshrrev_b32 v{T0}, 3, {ln}")
        a(f"v_and_b32 v{T1}, 7, {ln}")
        a(f"v_xor_b32 v{T1}, v{T1}, v{T0}")
        a(f"v_mul_u32_u24 v{T0}, 1152, v{T0}")
        a(f"s_and_b32 s{S_T0}, s{S_WAVE}, 1")
        a(f"s_mul_i32 s{S_T0}, s{S_T0}, 9216")
        a(f"s_lshr_b32 s{S_T1}, s{S_WAVE}, 1")
        a(f"s_lshl_b32 s{S_T1}, s{S_T1}, 7")
        a(f"s_add_u32 s{S_T0}, s{S_T0}, s{S_T1}")
        a(f"v_lshl_add_u32 v{T0}, v{T1}, 4, v{T0}")
        a(f"v_add_u32 v{V_DMA}, s{S_T0}, v{T0}")
        a(f"s_lshl_b32 s{S_M0B}, s{S_WAVE}, 10")
        if self.o["split"]:
            a(f"s_bitcmp1_b32 s2, 0")
            a(f"s_cselect_b32 s{S_XOFF}, 256, 1")
            a(f"s_add_u32 s{S_XOFF}, s{S_XOFF}, s2")
            a(f"s_mul_i32 s{S_XOFF}, s{S_XOFF}, {TB}")
        else:
            a(f"s_mul_i32 s{S_XOFF}, s2, {TB}")
        a(f"s_mov_b32 s{S_OOFF}, s{S_XOFF}")

    def lane_setup2(self):
        a = self.a
        ln = f"v{V_LANE}"
        T0, T1, T2 = 72, 73, 74
        a(f"v_and_b32 v{T0}, 15, {ln}")
        a(f"v_lshrrev_b32 v{T1}, 4, {ln}")
        a(f"v_and_b32 v{T2}, 7, {ln}")
        a(f"v_xor_b32 v{T2}, v{T2}, v{T1}")
        a(f"v_lshlrev_b32 v{T2}, 4, v{T2}")
        a(f"v_lshl_add_u32 v{V_RD0}, v{T0}, 7, v{T2}")
        a(f"v_xor_b32 v{V_RD1}, 64, v{V_RD0}")
        a(f"s_mul_i32 s{S_C0}, s{S_WAVE}, {WV_SZ}")
        a(f"s_add_u32 s{S_C0}, s{S_C0}, {L_WV}")
        a(f"v_lshl_add_u32 v{V_TAB}, v{T1}, 4, s{S_C0}")
        a(f"v_and_b32 v{T2}, 14, {ln}")
        a(f"v_mul_u32_u24 v{V_ST}, 1152, v{T2}")
        a(f"v_and_b32 v{T2}, 1, {ln}")
        a(f"v_lshl_add_u32 v{V_ST}, v{T2}, 4, v{V_ST}")
        a(f"v_lshl_add_u32 v{V_ST}, v{T1}, 5, v{V_ST}")
        a(f"s_lshl_b32 s{S_T0}, s{S_WAVE}, 8")
        a(f"v_add_u32 v{V_ST}, s{S_T0}, v{V_ST}")
        if self.o["hack"] == "q4":
            a(f"v_lshrrev_b32 v{T2}, 3, {ln}")
            a(f"v_mul_u32_u24 v{V_ST}, 2304, v{T2}")
            a(f"v_and_b32 v{T2}, 7, {ln}")
            a(f"v_lshl_add_u32 v{V_ST}, v{T2}, 4, v{V_ST}")
            a(f"v_add_u32 v{V_ST}, s{S_T0}, v{V_ST}")
        a(f"s_lshl_b32 s{S_T0}, s{S_WAVE}, 5")
        a(f"s_add_u32 s{S_T0}, s{S_T0}, 1024")
        if self.o["bperm"]:
            a(f"v_lshrrev_b32 v{T0}, 2, {ln}")
            a(f"v_and_b32 v{T1}, 3, {ln}")
            a(f"v_lshl_add_u32 v{V_BP}, v{T1}, 4, v{T0}")
            a(f"v_lshlrev_b32 v{V_BP}, 2, v{V_BP}")
        else:
            a(f"v_lshlrev_b32 v{V_BP}, 2, {ln}")
        a(f"v_mul_u32_u24 v{V_ST8}, 1152, v{T0}")
        a(f"v_lshl_add_u32 v{V_ST8}, v{T1}, 3, v{V_ST8}")
        a(f"v_add_u32 v{V_ST8}, s{S_T0}, v{V_ST8}")
        a(f"s_mov_b32 s{S_EVEN}, 0x55555555")
        a(f"s_mov_b32 s{S_EVEN+1}, 0x55555555")
        a(f"s_mov_b32 s{S_ODD}, 0xaaaaaaaa")
        a(f"s_mov_b32 s{S_ODD+1}, 0xaaaaaaaa")

    def dma_setup(self):
        a = self.a
        a(f"s_lshr_b32 s{S_T0}, s{S_WAVE}, 1")
        a(f"s_lshl_b32 s{S_T1}, s{S_T0}, 11")
        a(f"s_sub_u32 s{S_M05}, {16384-896}, s{S_T1}")
        a(f"s_lshl_b32 s{S_T1}, s{S_T0}, 7")
        a(f"s_add_u32 s{S_XOFF5}, s{S_XOFF}, 128")
        a(f"s_sub_u32 s{S_XOFF5}, s{S_XOFF5}, s{S_T1}")
        a(f"s_sub_u32 s{S_HALF}, s{S_T0}, 1")
        a(f"s_sub_u32 s{S_HALF+1}, 0, s{S_T0}")
        a(f"s_mov_b32 s{S_M0W}, s{S_M0B}")
        a(f"s_mov_b32 s{S_XINC}, {256*TB}")
        if self.o["split"]:
            a(f"s_bitcmp1_b32 s2, 0")
            a(f"s_cselect_b32 s{S_XINC}, s{S_XINC}, {-TB}")
            a(f"s_cselect_b32 s{S_NT}, 15, 17")
        else:
            a(f"s_mov_b32 s{S_NT}, 16")
        a(f"s_mov_b32 s{S_OINC2}, s{S_XINC}")

    def dma_advance(self, first=False):
        x = [] if first else [f"s_add_u32 s{S_XOFF}, s{S_XOFF}, {256*TB}", f"s_add_u32 s{S_XOFF5}, s{S_XOFF5}, {256*TB}",
                              f"s_add_u32 s{S_M0B}, s{S_M0B}, s{S_CTB}"]
        return x + [f"s_cmp_ge_u32 s{S_M0B}, {NB*TBL}", f"s_cselect_b32 s{S_M0B}, s{S_M0W}, s{S_M0B}"]

    def dma_tile(self, ld=None):
        a = self.a
        ld = self.o["ld"] if ld is None else ld
        for j in range(5):
            a(f"s_add_u32 m0, s{S_M0B}, {3840*j if j < 4 else 's%d' % S_M05}")
            a("s_nop 0" if j < 4 else f"s_mov_b64 exec, {sr(S_HALF,2)}")
            a(f"buffer_load_dwordx4 v{V_DMA}, {sr(S_X,4)}, s{S_XOFF if j < 4 else S_XOFF5} offen offset:{256*j if j < 4 else 896} {ld} lds")
        a("s_mov_b64 exec, -1")

    def prefetch(self, sh, lab="L_pf"):
        a = self.a
        a(f"s_bfe_u32 s{S_NB0}, s{S_DMASK}, {hex(4 << 16 | sh)}")
        if sh == 20 and self.o["pfw"]:
            k, n, ka, kp = self.o["pfw"]
            a(f"s_mov_b32 s{S_T1}, {k*TBL}")
            a(f"s_cmp_ge_u32 s{S_NB0}, 6")
            a(f"s_cselect_b32 s{S_T1}, s{S_T1}, {ka*TBL}")
            a(f"s_cmp_ge_u32 s{S_TASK}, {NTASK}")
            a(f"s_cselect_b32 s{S_T1}, s{S_T1}, {kp*TBL}")
        if sh != 20 and self.n2min == 0:
            a(f"s_cbranch_scc0 {lab}_e")
        a(f"{lab}:")
        self.dma_tile(self.o["ldp"] if sh == 20 else None)
        if sh == 20 and self.o["sig"] == 4 and self.o["fused"]:
            a(f"s_cmp_lg_u32 s{S_M0B}, {(min(3, self.premin)-1)*TBL}")
            a(f"s_cbranch_scc1 {lab}_f")
            a("s_mov_b64 exec, 1")
            a(f"buffer_load_dword v124, off, {sr(S_DBG,4)}, 0 sc1")
            a("s_mov_b64 exec, -1")
            a(f"{lab}_f:")
        if sh == 20 and self.o["pfw"]:
            n = self.o["pfw"][1]
            a(f"s_cmp_ge_u32 s{S_M0B}, s{S_T1}")
            a(f"s_cbranch_scc1 {lab}_n")
            a(f"s_waitcnt vmcnt({n})")
            a(f"{lab}_n:")
        a(f"s_add_u32 s{S_XOFF5}, s{S_XOFF5}, s{S_XINC}")
        a(f"s_add_u32 s{S_M0B}, s{S_M0B}, {TBL}")
        a(f"s_add_u32 s{S_XOFF}, s{S_XOFF}, s{S_XINC}")
        a(f"s_mov_b32 s{S_XINC}, {256*TB}")
        a(f"s_sub_u32 s{S_NB0}, s{S_NB0}, 1")
        a(f"s_cmp_lg_u32 s{S_NB0}, 0")
        a(f"s_cbranch_scc1 {lab}")
        a(f"{lab}_e:")

    def bias_load(self):
        a = self.a
        ln = f"v{V_LANE}"
        a(f"v_and_b32 v80, 3, {ln}")
        a(f"v_bfe_u32 v81, {ln}, 2, 2")
        a(f"v_bfe_u32 v82, {ln}, 4, 1")
        a("v_lshlrev_b32 v81, 3, v81")
        a("v_lshl_add_u32 v81, v80, 5, v81")
        a("v_lshl_add_u32 v81, v82, 7, v81")
        a(f"s_lshl_b32 s{S_T0}, s{S_WAVE}, 8")
        a(f"v_add_u32 v81, s{S_T0}, v81")
        a(f"s_lshl_b32 s{S_T0}, s{S_WAVE}, 5")
        a(f"s_add_u32 s{S_T0}, s{S_T0}, 1024")
        a(f"v_lshl_add_u32 v80, v80, 3, s{S_T0}")
        a(f"v_cmp_gt_u32 vcc, 32, {ln}")
        a("s_nop 1")
        a("v_cndmask_b32 v80, v80, v81, vcc")
        a(f"buffer_load_dwordx2 v[110:111], v80, {sr(S_B,4)}, 0 offen {self.o['ldc']}")

    def tables_init(self):
        a = self.a
        ln = f"v{V_LANE}"
        a(f"v_lshl_add_u32 v109, {ln}, 4, s{S_C0}")
        a(f"v_lshl_add_u32 v89, {ln}, 2, s{S_C0}")
        for r in range(4):
            a(f"v_mov_b32 v{76+r}, 0")
        a("v_mov_b32 v90, 0xdddddddd")
        a("ds_write_b128 v109, v[76:79]")
        for r in range(7):
            a(f"ds_write_b32 v89, v90 offset:{O_IDX+256*r}")
        a(f"s_lshl_b32 s{S_T0}, s{S_WAVE}, 2")
        a(f"s_add_u32 s{S_T0}, s{S_T0}, {L_PL + 256}")
        a(f"v_mov_b32 v88, s{S_T0}")
        a("ds_write_b32 v88, v76")

    def bias_store(self):
        return ["v_lshlrev_b32 v114, 16, v110", "v_and_b32 v115, 0xffff0000, v110", "v_lshlrev_b32 v116, 16, v111",
                "v_and_b32 v117, 0xffff0000, v111", "s_mov_b32 exec_hi, 15", f"ds_write_b128 v109, v[114:117] offset:{O_BIAS}",
                "s_mov_b64 exec, -1"]

    def wload_list(self, VA, VI8, pairs=False):
        wl = self.o["wl"]
        G = []
        so = S_C0 + 6
        cur = None
        for sp in range(5):
            g = []
            if sp == 4:
                g.append(f"s_mov_b32 s{so}, 4096")
            g.append(f"buffer_load_dword v{V_I8+sp}, v{VI8}, {sr(S_WS,4)}, {'s%d' % so if sp == 4 else '0'} offen offset:{1024*(sp%4)} {wl}")
            G.append(g)
        order = [(s, t) for s in range(9) for t in [None] + list(range(9))]
        if pairs:
            order = order[:70] + [(7, None), (8, None)] + [(s, t) for t in PEEL_T for s in (7, 8)]
        for s, t in order:
            if t is None:
                G.append([f"s_mov_b32 s{so-1}, {1024*s}",
                          f"buffer_load_dwordx4 {vr(V_I+4*s,4)}, v{VA+1}, {sr(S_WS,4)}, s{so-1} offen {wl}"])
            else:
                f = 9 * s + t
                g = []
                if cur != f >> 2:
                    cur = f >> 2
                    g.append(f"s_mov_b32 s{so}, {4096*cur}")
                g.append(f"buffer_load_dwordx4 {afrag(s,t)}, v{VA}, {sr(S_WS,4)}, s{so} offen offset:{1024*(f&3)} {wl}")
                G.append(g)
        return G

    def waddr(self, VA, VI8):
        a = self.a
        ln = f"v{V_LANE}"
        a(f"s_mul_i32 s{S_T0}, s{S_WAVE}, 82944")
        a(f"s_add_u32 s{S_T0}, s{S_T0}, s{S_BASE}")
        a(f"v_lshl_add_u32 v{VA}, {ln}, 4, s{S_T0}")
        a(f"s_mul_i32 s{S_T0}, s{S_WAVE}, 9216")
        a(f"s_add_u32 s{S_T0}, s{S_T0}, s{S_BASE}")
        a(f"s_add_u32 s{S_T0}, s{S_T0}, {I_OFF}")
        a(f"v_lshl_add_u32 v{VA+1}, {ln}, 4, s{S_T0}")
        a(f"s_lshl_b32 s{S_T0}, s{S_WAVE}, 6")
        a(f"s_add_u32 s{S_T0}, s{S_T0}, s{S_BASE}")
        a(f"s_add_u32 s{S_T0}, s{S_T0}, {I8_OFF}")
        a(f"v_and_b32 v{VI8}, 15, {ln}")
        a(f"v_lshl_add_u32 v{VI8}, v{VI8}, 2, s{S_T0}")
        a(f"v_lshrrev_b32 v{VI8+1}, 4, {ln}")
        a(f"v_lshl_add_u32 v{VI8}, v{VI8+1}, 8, v{VI8}")

    def build(self):
        a = self.a
        o = self.o
        ln = f"v{V_LANE}"
        wl = o["wl"]
        VA, VI8 = (112 if o["peel"] else 104), 106
        E, TT, RK, ST = 8, 24, 40, 56
        T0, T1, T2, T3 = 72, 73, 74, 75
        WARM = 76
        ONE, VW, KB, VST, RX, VWARM, CM, CV, TM, TBS, HI, AB, BM, VH, VK, LO = range(88, 104)
        SW = S_C0
        a(f"s_mul_i32 s{S_T0}, s{S_WAVE}, 2304")
        a(f"s_add_u32 s{S_T0}, s{S_T0}, {R1_OFF}")
        a(f"v_and_b32 v{T1}, 60, {ln}")
        a(f"v_mad_u32_u24 v{T1}, v{T1}, 3, {ln}")
        a(f"v_lshl_add_u32 v{T0}, v{T1}, 4, s{S_T0}")
        a(f"s_mov_b32 s{S_T0}, {R8_OFF - 36*64}")
        a(f"v_lshl_add_u32 v{T1}, v{T1}, 4, s{S_T0}")
        a(f"v_lshrrev_b32 v{T2}, 2, {ln}")
        a(f"v_cmp_gt_u32 vcc, 36, {ln}")
        a(f"v_lshlrev_b32 v{KB}, 11, v{T2}")
        a(f"v_subrev_u32 v{T2}, 9, v{T2}")
        a(f"v_lshlrev_b32 v{T2}, 12, v{T2}")
        a(f"v_cndmask_b32 v{T0}, v{T1}, v{T0}, vcc")
        a(f"v_cndmask_b32 v{KB}, v{T2}, v{KB}, vcc")
        a(f"s_lshl_b32 s{S_T0}, s{S_WAVE}, 12")
        a(f"s_add_u32 s{S_T0}, s{S_T0}, 0x8001")
        a(f"v_mov_b32 v{ONE}, 1")
        a(f"v_mov_b32 v{CM}, 0xf001")
        a(f"v_mov_b32 v{CV}, s{S_T0}")
        a(f"v_cndmask_b32 v{CM}, v{CM}, v{ONE}, vcc")
        a(f"v_cndmask_b32 v{CV}, v{CV}, v{ONE}, vcc")
        a(f"v_cndmask_b32 v{TM}, 0, 28, vcc")
        a(f"v_cndmask_b32 v{TBS}, 32, 0, vcc")
        a(f"v_add_u32 v{TBS}, s{SW}, v{TBS}")
        a(f"v_cmp_gt_u32 vcc, 56, {ln}")
        a(f"v_mov_b32 v{T1}, 0x40000000")
        tw = o["warm"] == 2
        a(f"s_lshr_b32 s{S_T0}, s2, {4 if tw else 3}")
        a(f"s_lshl_b32 s{S_T0}, s{S_T0}, 2")
        a(f"s_add_u32 s{S_T0}, s{S_T0}, s{S_WAVE}")
        a(f"s_mul_i32 s{S_T0}, s{S_T0}, {6144 if tw else 2944}")
        a(f"v_cndmask_b32 v{T0}, v{T1}, v{T0}, vcc")
        if tw:
            a(f"v_min_u32 v{VWARM}, 47, {ln}")
            a(f"v_lshl_add_u32 v{VWARM}, v{VWARM}, 7, s{S_T0}")
        else:
            a(f"v_lshl_add_u32 v{VWARM}, {ln}, 4, s{S_T0}")
        self.waddr(VA, VI8)
        a(f"v_and_b32 v{T2}, 15, {ln}")
        a(f"v_and_b32 v{T1}, 7, {ln}")
        a(f"v_lshlrev_b32 v{BM}, 1, v{T1}")
        a(f"v_lshlrev_b32 v{BM}, v{BM}, v{ONE}")
        a(f"v_lshlrev_b32 v{T1}, 4, v{T1}")
        a(f"v_lshl_add_u32 v{RX}, v{T2}, 7, v{T1}")
        a(f"v_lshl_or_b32 v{RX}, v{RX}, 16, v{RX}")
        a(f"v_lshrrev_b32 v{HI}, 5, {ln}")
        a(f"v_bfe_u32 v{AB}, {ln}, 3, 2")
        a(f"v_lshl_add_u32 v{AB}, v{AB}, 6, s{SW}")
        a(f"v_lshl_add_u32 v{VH}, {ln}, 1, s{SW}")
        a(f"v_lshrrev_b32 v{VK}, 4, {ln}")
        a(f"v_lshl_add_u32 v{VK}, v{VK}, 3, s{SW}")
        a(f"v_lshrrev_b32 v{LO}, 1, {ln}")
        a(f"v_lshlrev_b32 v{LO}, 5, v{LO}")
        a(f"s_mov_b32 s{S_LINK}, 0")
        pre = [f"buffer_load_dwordx4 {vr(E+4*r,4)}, v{T0}, {sr(S_WS,4)}, 0 offen offset:{64*r} {wl}" for r in range(4)]
        warm = [[f"buffer_load_dwordx4 {vr(WARM+4*r,4)}, v{VWARM}, {sr(S_WS,4)}, 0 offen offset:{1024*r} {wl}"] for r in range(3)] if o["warm"] else []
        if tw:
            warm = [[f"buffer_load_dword v{WARM}, v{VWARM}, {sr(S_WS,4)}, 0 offen {wl}"]]
        C = []
        g = lambda *x: C.append(list(x))

        def rank(r):
            m = S_MASK + 2 * r
            return [f"v_and_b32 v{T1}, v{CM}, v{E+r}", f"v_lshrrev_b32 v{T0}, 10, v{E+r}", f"v_cmp_eq_u32 {sr(m,2)}, v{T1}, v{CV}",
                    f"v_and_or_b32 v{TT+r}, v{T0}, v{TM}, v{TBS}",
                    f"s_mov_b64 exec, {sr(m,2)}", f"ds_add_rtn_u32 v{RK+r}, v{TT+r}, v{ONE}", "s_mov_b64 exec, -1"]

        def place(r):
            m = S_MASK + 2 * r
            return [f"v_add_u32 v{T1}, v{RK+r}, v{ST+r}", f"v_and_b32 v{T0}, 0x87e, v{E+r}", f"v_lshl_add_u32 v{T1}, v{T1}, 1, s{SW}",
                    f"v_add_u32 v{T0}, v{KB}, v{T0}", f"s_andn2_b64 exec, {sr(m,2)}, {sr(S_BAD,2)}",
                    f"ds_write_b16_d16_hi v{T1}, v{E+r} offset:{O_X}", f"ds_write_b16 v{T1}, v{T0} offset:{O_K}",
                    f"ds_write_b16 v{T1}, v{E+r} offset:{O_M}", "s_mov_b64 exec, -1"]
        g("@WAIT_E")
        g(f"v_cmp_ne_u32 {sr(S_BAD,2)}, 0, v{E+15}", f"v_cmp_ne_u32 {sr(S_MORE,2)}, 0, v{E+8}")
        for r in range(8):
            g(*rank(r))
        g(f"s_cmp_lg_u64 {sr(S_MORE,2)}, 0", "s_cbranch_scc1 L_more1", "L_more1b:", f"ds_read_b32 v{T0}, v{VW}", f"v_mov_b32 v{T1}, 0")
        self.tailblocks.append("\n".join(["L_more1:"] + [x for r in range(8, 15) for x in rank(r)] + ["s_branch L_more1b"]))
        g("s_waitcnt lgkmcnt(0)", f"s_mov_b64 vcc, {sr(S_EVEN,2)}",
          f"v_cndmask_b32_dpp v{T1}, v{T0}, v{T1}, vcc quad_perm:[0,0,2,2] row_mask:0xf bank_mask:0xf",
          f"v_add_u32 v{VST}, v{LO}, v{T1}", f"v_add_u32 v{T1}, v{T0}, v{T1}", f"v_cmp_lt_u32 vcc, 32, v{T1}",
          f"s_or_b32 s{S_BAD}, s{S_BAD}, s{S_BAD+1}", f"s_and_b32 s{S_T0}, vcc_lo, 0x1ff", f"s_or_b32 s{S_T0}, s{S_T0}, s{S_BAD}",
          "s_cbranch_scc1 L_greedy", "L_greedyb:")
        x = ["L_greedy:", f"s_mov_b32 s{S_T0}, 0", f"s_mov_b32 s{S_LINK}, 1"]
        for t in range(9):
            lo = 32 * (t >> 1)
            x += [f"v_readlane_b32 s{S_T1}, v{T0}, {t}", f"s_max_u32 s{S_T0}, s{S_T0}, {lo}",
                  f"v_writelane_b32 v{VST}, s{S_T0}, {t}", "s_nop 1", f"s_add_u32 s{S_T0}, s{S_T0}, s{S_T1}",
                  f"s_cmp_gt_u32 s{S_T0}, {lo + (64 if t & 1 else 32)}", f"s_cselect_b32 s{S_BAD}, 1, s{S_BAD}"]
        x += [f"s_cmp_lg_u32 s{S_BAD}, 0", f"s_cselect_b64 {sr(S_BAD,2)}, -1, 0",
              f"v_mov_b32 v{T1}, {L_PL + 256}", f"s_mov_b64 exec, {sr(S_BAD,2)}", f"ds_write_b32 v{T1}, v{ONE}", "s_mov_b64 exec, -1",
              "s_branch L_greedyb"]
        self.tailblocks.append("\n".join(x))
        g(*[f"ds_bpermute_b32 v{ST+r}, v{TT+r}, v{VST}" for r in range(8)])
        for r in range(8):
            g(*([f"s_waitcnt lgkmcnt({(7, 9, 11, 13, 15, 15, 15, 15)[r] if r else 7})"] if r < 8 else []), *place(r))
        g(f"s_cmp_lg_u64 {sr(S_MORE,2)}, 0", "s_cbranch_scc1 L_more2", "L_more2b:",
          *[f"ds_read_u16 v{E+r}, v{VH} offset:{O_M+128*r}" for r in range(3)],
          *[f"ds_read2_b64 {vr(V_AD+4*j,4)}, v{VK} offset0:{(O_K+64*j)//8} offset1:{(O_K+64*j+32)//8}" for j in range(5)])
        self.tailblocks.append("\n".join(["L_more2:"] + [f"ds_bpermute_b32 v{ST+r}, v{TT+r}, v{VST}" for r in range(8, 15)] + ["s_waitcnt lgkmcnt(0)"]
                                         + [x for r in range(8, 15) for x in place(r)] + ["s_branch L_more2b"]))
        for r in range(3):
            g(*(["s_waitcnt lgkmcnt(5)"] if r == 0 else []),
              f"v_lshrrev_b32 v{T0}, 12, v{E+r}", f"v_cmp_ne_u32 vcc, 0, v{E+r}", f"v_min_u32 v{T0}, 8, v{T0}", f"v_add3_u32 v{T0}, v{T0}, v{HI}, {2*r}",
              f"v_lshlrev_b32 v{T1}, 4, v{T0}", f"v_lshrrev_b32 v{T0}, 1, v{T0}")
            g(f"v_lshlrev_b32 v{T1}, v{T1}, v{BM}", f"v_lshl_add_u32 v{T0}, v{T0}, 8, v{AB}", f"v_bfe_u32 v{T2}, v{E+r}, 7, 4",
              f"v_lshl_add_u32 v{T0}, v{T2}, 2, v{T0}", "s_mov_b64 exec, vcc", *(["s_mov_b32 exec_hi, 0"] if r == 2 else []),
              f"ds_xor_b32 v{T0}, v{T1} offset:{O_IDX}", "s_mov_b64 exec, -1")
        g(*[f"ds_read_b32 v{V_IR+r}, v{VW} offset:{O_IDX+256*r}" for r in range(7)])
        for j in range(5):
            g(*(["s_waitcnt lgkmcnt(10)"] if j == 0 else []), *[f"v_xor_b32 v{V_AD+4*j+q}, v{RX}, v{V_AD+4*j+q}" for q in range(4)])
        g(*self.bias_store())
        return pre, C, warm + self.wload_list(VA, VI8, o['peel'])

    def emit_build(self, pre, C, G):
        a = self.a
        for x in pre:
            a(x)
        nl = 0
        G = list(G)
        G0 = list(G)

        def load(n=1):
            nonlocal nl
            for _ in range(n):
                if G:
                    for x in G.pop(0):
                        a(x)
                    nl += 1
        acc = 0
        for grp in C:
            if grp[0] == "@WAIT_E":
                load(self.o["l0"])
                a(f"s_waitcnt vmcnt({nl})")
                continue
            if grp[0] in ("s_waitcnt lgkmcnt(0)", "s_waitcnt lgkmcnt(7)", "s_waitcnt lgkmcnt(5)"):
                load(self.o["lw"])
            for x in grp:
                a(x)
            acc += len(grp)
            while acc >= self.o["lper"]:
                acc -= self.o["lper"]
                load()
        if self.o["peel"]:
            self.issued, self.pending = G0[:len(G0) - len(G)], G
            return
        load(len(G) - self.o["ltail"])
        assert len(G) == self.o["ltail"]
        self.late_loads = [x for grp in G for x in grp]

    @staticmethod
    def regs(txt):
        k, body = txt[0], txt[1:].strip("[]")
        lo, hi = (body.split(":") + [body])[:2]
        return [(256 if k == "a" else 0) + r for r in range(int(lo), int(hi) + 1)]

    def emit_line(self, ops, vm, hist=()):
        a = self.a
        lds, hist = [], list(hist)

        def put(op):
            a(op.text)
            hist.append(op)
        for op in ops:
            touched = op.rd | op.wr
            for q, name, cap in ((lds, "lgkmcnt", 15), (vm, "vmcnt", self.o["vcap"])):
                hit = [i for i, w in enumerate(q) if w & touched]
                if hit:
                    n = min(len(q) - 1 - hit[-1], cap)
                    put(Op(f"s_waitcnt {name}({n})", "salu"))
                    del q[:len(q) - n]
            need = 0
            for d, p in enumerate(reversed(hist[-9:])):
                ws = sum(int(x.text[6:]) + 1 if x.text.startswith("s_nop") else 1 for x in hist[len(hist) - d:])
                r = 0
                if p.kind == "mx" and op.kind != "mx" and (p.wr & touched):
                    r = 8
                if p.kind in ("valu", "dpp") and op.kind in ("mx", "dpp") and (p.wr & op.rd):
                    r = 2
                if p.kind == "st" and (p.rd & op.wr):
                    r = 2
                need = max(need, r - ws)
            if need > 0:
                put(Op(f"s_nop {need-1}", "salu"))
            put(op)
            if op.kind == "lds":
                lds.append(op.wr)
            if op.kind in ("ld", "st"):
                vm.append(op.wr)

    def peel(self):
        o = self.o
        AX = V_BR
        acc = lambda m, t: (AX if m == 0 else V_ACC) + 4 * t
        Ba, Bb, Bc, Bd = (V_B + 8 * k for k in range(4))
        dst = lambda g: set(self.regs(g[-1].split()[1].rstrip(",")))
        vm = [dst(g) for g in self.issued]
        loads = [[Op(x, "salu") for x in g[:-1]] + [Op(g[-1], "ld", wr=dst(g))] for g in self.pending]

        def M(m, s, t, b):
            ir, h = aidx(s, t)
            return Op(f"v_smfmac_f32_16x16x64_bf16 {vr(acc(m,t),4)}, {afrag(s,t)}, {vr(b,8)}, v{ir}" + (" abid:1" if h else ""), "mx",
                      rd=list(rng(acc(m, t), 4)) + list(rng(b, 8)) + self.regs(afrag(s, t)) + [ir], wr=rng(acc(m, t), 4))

        def R(m, j, t):
            c, b = j + t, (Bc, Bd)[m]
            return Op(f"v_smfmac_f32_16x16x64_bf16 {vr(acc(m,t),4)}, {vr(V_X,4)}, {vr(b,8)}, v{V_IR+(c>>1)}" + (" abid:1" if c & 1 else ""), "mx",
                      rd=list(rng(acc(m, t), 4)) + list(rng(b, 8)) + list(rng(V_X, 4)), wr=rng(acc(m, t), 4))

        def B(m, s, b):
            return [Op(f"ds_read_b128 {vr(b+4*h,4)}, v{V_RD0+h} offset:{2048*s+TBL*m}", "lds", rd=[V_RD0 + h], wr=rng(b + 4 * h, 4)) for h in range(2)]

        def addr(j, b, r, base):
            ad = V_AD + 4 * j + (b >> 1)
            return Op(f"v_add_u32_sdwa v{r}, s{base}, v{ad} dst_sel:DWORD dst_unused:UNUSED_PAD src0_sel:DWORD src1_sel:WORD_{b&1}", "valu", rd=[ad], wr=[r])
        ops = [Op(f"ds_read_b32 v{V_X}, v{V_X}", "lds", rd=[V_X], wr=[V_X])] + B(0, 0, Ba)
        for m in range(2):
            ops += [Op(f"ds_read_b128 {vr(acc(m,t),4)}, v{V_TAB} offset:{O_BIAS+64*t}", "lds", rd=[V_TAB], wr=rng(acc(m, t), 4)) for t in range(9)]
            ops += loads.pop(0)
        ops += [Op(f"v_readfirstlane_b32 s{S_T0}, v{V_X}", "valu", rd=[V_X]), addr(0, 0, Bc, S_BUF), Op("s_nop 2", "salu"),
                Op(f"s_cmp_lg_u32 s{S_T0}, 0", "salu"), Op("s_cbranch_scc1 L_slow", "salu")]
        ngap = 126 + 26
        rho, credit = len(loads) / (ngap - o["ptail"]), 0.0

        ng = 0
        if max(self.mid):
            ops.append(Op(f"s_lshr_b32 s{S_NB0}, s{S_DMASK}, 28", "salu"))

        def midtile(k):
            keepL, self.L = self.L, []
            self.dma_tile(o["ldp"])
            x, self.L = self.L, keepL
            x = [f"s_cmp_le_u32 s{S_NB0}, {k}", f"s_cbranch_scc1 L_mid{k}"] + x + [
                f"s_add_u32 s{S_XOFF5}, s{S_XOFF5}, {256*TB}", f"s_add_u32 s{S_M0B}, s{S_M0B}, {TBL}", f"s_add_u32 s{S_XOFF}, s{S_XOFF}, {256*TB}",
                f"L_mid{k}:"]
            assert loads
            return Op("\n".join(x), "salu")

        def gap(mx, D=(), V=()):
            nonlocal credit, ng
            ops.append(mx)
            if ng in o["midg"][:max(self.mid)]:
                ops.append(midtile(o["midg"].index(ng)))
            ng += 1
            credit += rho
            while credit >= 1 and loads:
                credit -= 1
                ops.extend(loads.pop(0))
            ops.extend(D)
            ops.extend(V)
        for s in range(7):
            for t in range(9):
                D, V = [], []
                if t == 0:
                    D += B(1, s, Bb)
                if s < 5:
                    if t == 8:
                        D.append(Op(f"ds_read_b128 {vr(V_X,4)}, v{V_TAB} offset:{O_X+64*s}", "lds", rd=[V_TAB], wr=rng(V_X, 4)))
                    else:
                        D += [Op(f"ds_read_u16 v{Bd+t}, v{Bc+t} offset:{TBL}", "lds", rd=[Bc + t], wr=[Bd + t]),
                              Op(f"ds_read_u16 v{Bc+t}, v{Bc+t}", "lds", rd=[Bc + t], wr=[Bc + t])]
                        if t < 7:
                            V.append(addr(s, t + 1, Bc + t + 1, S_BUF))
                elif t in (2, 3):
                    D.append(B(1, s + 2, Bc if s == 5 else Bd)[t - 2])
                gap(M(0, s, t, Ba), D, V)
            for t in range(9):
                gap(M(1, s, t, Bb), B(0, s + 1, Ba)[t:t + 1] if t < 2 else [])
            if s < 5:
                rs = [R(m, s, t) for m in (1, 0) for t in RT[s]]
                for n, x in enumerate(rs):
                    gap(x, [], [addr(s + 1, 0, Bc, S_BUF)] if n == len(rs) - 1 and s < 4 else [])
        assert not loads
        ops += B(0, 8, Bb)
        pk = lambda t, h: (AX + 32 + h) if t == 8 else AX + 2 * t + h
        cvt = lambda t: [Op(f"v_cvt_pk_bf16_f32 v{pk(t,h)}, v{acc(0,t)+2*h}, v{acc(0,t)+2*h+1}", "valu",
                            rd=[acc(0, t) + 2 * h, acc(0, t) + 2 * h + 1], wr=[pk(t, h)]) for h in range(2)]
        dpp = "quad_perm:[1,0,3,2] row_mask:0xf bank_mask:0xf"
        stp = o["st"] if o["stp"] is None else o["stp"]

        def exch(v):
            p0, p1, d0 = AX + 8 * v, AX + 8 * v + 4, (V_X, AX + 16)[v]
            x = []
            for half in range(2):
                for d in range(4):
                    if half == 0:
                        x.append(Op(f"v_cndmask_b32_dpp v{d0+d}, v{p1+d}, v{p0+d}, vcc {dpp}", "dpp", rd=[p0 + d, p1 + d], wr=[d0 + d]))
                    else:
                        x.append(Op(f"v_cndmask_b32_dpp v{p1+d}, v{p0+d}, v{p1+d}, vcc {dpp}", "dpp", rd=[p0 + d, p1 + d], wr=[p1 + d]))
                src = d0 if half == 0 else p1
                fl = stp[2 * v + half] if isinstance(stp, (tuple, list)) else stp
                x += [Op(f"buffer_store_dwordx4 {vr(src,4)}, v{V_ST}, {sr(S_OUT,4)}, s{S_OOFF} offen offset:{1152*half+128*v} {fl}", "st",
                         rd=list(rng(src, 4)) + [V_ST]), Op(f"s_mov_b64 vcc, {sr((S_ODD, S_EVEN)[half],2)}", "salu")]
            return x
        p8 = pk(8, 0)
        rdadv = [Op(f"v_add_u32 v{V_RD0+h}, {2*TBL}, v{V_RD0+h}", "valu", rd=[V_RD0 + h], wr=[V_RD0 + h]) for h in range(2)]
        after = {0: rdadv,
                 1: [Op(f"ds_bpermute_b32 v{p8+h}, v{V_BP}, v{p8+h}", "lds", rd=[V_BP, p8 + h], wr=[p8 + h]) for h in range(2)] if o["bperm"] else [],
                 3: [Op(f"buffer_store_dwordx2 {vr(p8,2)}, v{V_ST8}, {sr(S_OUT,4)}, s{S_OOFF} offen {o['st8']}", "st", rd=[p8, p8 + 1, V_ST8])],
                 5: exch(0)[:6], 6: exch(0)[6:], 7: [addr(0, b, V_BR + b, S_BUFN) for b in range(4)],
                 8: [addr(0, b, V_BR + b, S_BUFN) for b in range(4, 8)]}
        for n, t in enumerate(PEEL_T):
            ops += [M(0, 7, t, Ba), M(0, 8, t, Bb)]
            if n:
                ops += cvt(PEEL_T[n - 1])
            ops += after.get(n, [])
        ops += cvt(PEEL_T[-1]) + exch(1)
        self.emit_line(ops, vm)

    def slow_path(self, K):
        a = self.a
        o = self.o
        VA, VI8 = 104, 106
        a("L_slow:")
        a("s_waitcnt vmcnt(0) lgkmcnt(0)")
        a(f"s_mov_b32 s{S_MODE}, 0")
        a("L_sm:")
        a(f"s_lshl_b32 s{S_BASE}, s2, 1")
        a(f"s_add_u32 s{S_BASE}, s{S_BASE}, s{S_MODE}")
        a(f"s_add_u32 s{S_BASE}, s{S_BASE}, {PRIV0}")
        a(f"s_mul_i32 s{S_BASE}, s{S_BASE}, {COPY}")
        a(f"s_mov_b32 s{S_TASK}, 0")
        a("L_st:")
        self.producer("g", True)
        a(f"s_add_u32 s{S_TASK}, s{S_TASK}, 1")
        a(f"s_cmp_lt_u32 s{S_TASK}, {NTASK}")
        a("s_cbranch_scc1 L_st")
        a(f"s_add_u32 s{S_MODE}, s{S_MODE}, 1")
        a(f"s_cmp_lt_u32 s{S_MODE}, 2")
        a("s_cbranch_scc1 L_sm")
        self.lane_setup()
        self.dma_setup()
        a(f"s_mov_b32 s{S_OUT+2}, {XBYTES}")
        a(f"s_mov_b32 s{S_X+2}, {XBYTES}")
        a(f"s_mov_b32 s{S_IT}, 0")
        a("L_stile:")
        a("s_barrier")
        self.dma_tile()
        for t in range(9):
            a(f"ds_read_b128 {vr(V_ACC+4*t,4)}, v{V_TAB} offset:{O_BIAS+64*t}")
        a(f"s_mov_b32 s{S_MODE}, 0")
        a("L_spass:")
        a(f"s_lshl_b32 s{S_BASE}, s2, 1")
        a(f"s_add_u32 s{S_BASE}, s{S_BASE}, s{S_MODE}")
        a(f"s_add_u32 s{S_BASE}, s{S_BASE}, {PRIV0}")
        a(f"s_mul_i32 s{S_BASE}, s{S_BASE}, {COPY}")
        self.waddr(VA, VI8)
        for grp in self.wload_list(VA, VI8):
            for x in grp:
                a(x)
        a("s_waitcnt vmcnt(0)")
        a("s_barrier")
        for s in range(9):
            a(f"ds_read_b128 {vr(V_B,4)}, v{V_RD0} offset:{2048*s}")
            a(f"ds_read_b128 {vr(V_B+4,4)}, v{V_RD1} offset:{2048*s}")
            a("s_waitcnt lgkmcnt(0)")
            for t in range(9):
                ir, h = aidx(s, t)
                a(f"v_smfmac_f32_16x16x64_bf16 {vr(V_ACC+4*t,4)}, {afrag(s,t)}, {vr(V_B,8)}, v{ir}" + (" abid:1" if h else ""))
            a("s_nop 7")
        a(f"s_add_u32 s{S_MODE}, s{S_MODE}, 1")
        a(f"s_cmp_lt_u32 s{S_MODE}, 2")
        a("s_cbranch_scc1 L_spass")
        for t in range(7):
            for h in range(2):
                a(f"v_cvt_pk_bf16_f32 v{V_P+2*t+h}, v{V_ACC+4*t+2*h}, v{V_ACC+4*t+2*h+1}")
        a(f"s_mov_b64 vcc, {sr(S_EVEN,2)}")
        self.emit_epi(self.assemble_loop(False, "")[2])
        for r in (S_XOFF, S_XOFF5, S_OOFF):
            a(f"s_add_u32 s{r}, s{r}, s{S_XINC}")
        a(f"s_mov_b32 s{S_XINC}, {256*TB}")
        a(f"s_add_u32 s{S_IT}, s{S_IT}, 1")
        a(f"s_cmp_lt_u32 s{S_IT}, s{S_NT}")
        a("s_cbranch_scc1 L_stile")
        a("s_branch L_fin")

    def loop_ops(self, links, dma, clm=False):
        o = self.o
        acc = lambda t: rng(V_ACC + 4 * t, 4)
        ch = o["chain"]
        bb = lambda s: V_P if (ch and s == 6) else V_B + 8 * BBUF[s]
        RBUF = [V_BR, V_BR + 8, V_BR, V_P + 8 if ch else V_P, V_BR + 8]
        rt = RT if links else [[0, 1], [2, 3], [4, 5], [6, 7], [8]]
        ng = [8, 8, 8, 8, 8 if links else o["ng4"]]

        def M(s, t):
            ir, h = aidx(s, t)
            return Op(f"v_smfmac_f32_16x16x64_bf16 {vr(V_ACC+4*t,4)}, {afrag(s,t)}, {vr(bb(s),8)}, v{ir}" + (" abid:1" if h else ""),
                      "mx", rd=list(acc(t)) + list(rng(bb(s), 8)), wr=acc(t), tag=("M", s, t))

        def R(j, t):
            c = j + t
            return Op(f"v_smfmac_f32_16x16x64_bf16 {vr(V_ACC+4*t,4)}, {vr(V_X,4)}, {vr(RBUF[j],8)}, v{V_IR+(c>>1)}" + (" abid:1" if c & 1 else ""),
                      "mx", rd=list(acc(t)) + list(rng(RBUF[j], 8)) + list(rng(V_X, 4)), wr=acc(t), tag=("R", j, t))
        seq = []
        for t in range(9):
            seq += [M(0, t), M(1, t)]
        if ch:
            for steps, order, rs in (((2, 3), o["ord1"], (0, 1)), ((4, 5, 6), o["ord2"], (2, 3, 4))):
                for n, t in enumerate(order):
                    seq += [M(s, t) for s in steps]
                    if t // 2 in rs and t % 2 == 0:
                        j = t // 2
                        assert t == 8 or order[n + 1] == t + 1
                        seq += [R(j, t)] + ([R(j, t - 1)] if links and j else []) + ([R(j, t + 1)] if t < 8 else [])
        else:
            for s in range(2, 7):
                seq += [M(s, t) for t in range(9)]
        for t in range(9):
            seq += [M(7, t), M(8, t)]
        if ch:
            rpos = [min(i for i, x in enumerate(seq) if x.tag[:2] == ("R", j)) for j in range(5)]
        else:
            rpos = list(o["rposl"] if links else o["rpos"])
            for j in range(5):
                for n, t in enumerate(rt[j]):
                    seq.insert(rpos[j] + n, R(j, t))
        N = len(seq)
        pos = {x.tag: i for i, x in enumerate(seq)}
        BAR = rpos[4] + len(rt[4]) - 1
        c0 = N - 15 - BAR
        assert c0 == (4 if ch else 0)
        self.drain = rpos[4] - 1
        T = lambda g: (g - BAR - 1) % N
        first = lambda s: T(min(pos[("M", s, t)] for t in range(9)))
        lastu = lambda s: max(pos[("M", s, t)] for t in range(9))
        LEAD = o["lead"]
        ST = [[] for _ in range(N)]
        S = [[] for _ in range(N)]
        D = [[] for _ in range(N)]
        V = [[] for _ in range(N)]
        keep = lambda op: (dma or op.tag != "dma") and (clm or op.tag != "clm")

        def pdst(t, h):
            return V_P8 + h if t == 8 else V_P + 2 * t + h
        dq, vq = [], []
        for t in range(9):
            for h in range(2):
                V[c0 + 2 * t + h].append(Op(f"v_cvt_pk_bf16_f32 v{pdst(t,h)}, v{V_ACC+4*t+2*h}, v{V_ACC+4*t+2*h+1}", "valu",
                                       rd=[V_ACC + 4 * t + 2 * h, V_ACC + 4 * t + 2 * h + 1], wr=[pdst(t, h)], tag="epi"))
            dq.append([Op(f"ds_read_b128 {vr(V_ACC+4*t,4)}, v{V_TAB} offset:{O_BIAS+64*t}", "lds", rd=[V_TAB], wr=acc(t), tag="pre"),
                       c0 + 2 * t + 2, c0 + 2 * t + 2, None])
        def stf(e):
            f = o["stc"] if clm else (o["st"] if dma else o["stn"])
            f = o["st"] if f is None else f
            return f[e] if isinstance(f, (tuple, list)) else f
        dpp = "quad_perm:[1,0,3,2] row_mask:0xf bank_mask:0xf"
        stg = [T(g) for g in o["stg"]]
        for v in range(2):
            p0, p1 = V_P + 8 * v, V_P + 8 * v + 4
            d0 = V_T if v == 0 else V_P
            for half in range(2):
                e = 2 * v + half
                for d in range(4):
                    if half == 0:
                        op = Op(f"v_cndmask_b32_dpp v{d0+d}, v{p1+d}, v{p0+d}, vcc {dpp}", "dpp", rd=[p0 + d, p1 + d], wr=[d0 + d], tag="epi")
                    else:
                        op = Op(f"v_cndmask_b32_dpp v{p1+d}, v{p0+d}, v{p1+d}, vcc {dpp}", "dpp", rd=[p0 + d, p1 + d], wr=[p1 + d], tag="epi")
                    vq.append([op, stg[e - 1] if e else c0 + 18, stg[e] - 4 + d, None])
                src = d0 if half == 0 else p1
                ST[stg[e]].append(Op(f"buffer_store_dwordx4 {vr(src,4)}, v{V_ST}, {sr(S_OUT,4)}, s{S_OOFF} offen offset:{1152*half+128*v} {stf(e)}",
                                     "st", rd=list(rng(src, 4)) + [V_ST], tag="epi"))
                ST[stg[e]].append(Op(f"s_mov_b64 vcc, {sr((S_ODD, S_EVEN)[half],2)}", "salu", tag="epi"))
        if o["bperm"]:
            for h in range(2):
                dq.append([Op(f"ds_bpermute_b32 v{V_P8+h}, v{V_BP}, v{V_P8+h}", "lds", rd=[V_BP, V_P8 + h], wr=[V_P8 + h], tag="epi"),
                           c0 + 18, stg[4] - LEAD - 2 + h, None])
        ST[stg[4]].append(Op(f"buffer_store_dwordx2 {vr(V_P8,2)}, v{V_ST8}, {sr(S_OUT,4)}, s{S_OOFF} offen {o['st8']}", "st",
                             rd=[V_P8, V_P8 + 1, V_ST8], tag="epi"))
        rl = lambda j: T(rpos[j] + len(rt[j]) - 1)
        free = [rl(2), 1, rl(0), stg[3 if ch else 2] + 1, rl(1)]
        for j in range(5):
            dl = T(rpos[j]) - LEAD - 1
            for b in range(ng[j]):
                r = RBUF[j] + b
                ad = V_AD + 4 * j + (b >> 1)
                av = Op(f"v_add_u32_sdwa v{r}, s{S_BUFN if j == 0 else S_BUF}, v{ad} dst_sel:DWORD dst_unused:UNUSED_PAD src0_sel:DWORD src1_sel:WORD_{b&1}",
                        "valu", rd=[ad], wr=[r], tag="pre" if j == 0 else "")
                gd = dl - o["gsp"] * (ng[j] - 1 - b)
                vq.append([av, free[j], (N - 2 - (7 - b)) if j == 0 else gd - 1, None])
                dq.append([Op(f"ds_read_u16 v{r}, v{r}", "lds", rd=[r], wr=[r], tag="pre"), 0, gd, None if j == 0 else av])
            dq.append([Op(f"ds_read_b128 {vr(V_X,4)}, v{V_TAB} offset:{O_X+64*j}", "lds", rd=[V_TAB], wr=rng(V_X, 4), tag="pre"),
                       0 if j == 0 else rl(j - 1), dl, None])
        prev = {0: None, 1: None, 2: 7, 3: 8, 4: 0, 5: 1, 6: 4, 7: 2, 8: 3}
        lastb = []
        for s in range(9):
            for h in range(2):
                op = Op(f"ds_read_b128 {vr(bb(s)+4*h,4)}, v{(V_RD0, V_RD1)[h]} offset:{2048*s}", "lds",
                        rd=[(V_RD0, V_RD1)[h]], wr=rng(bb(s) + 4 * h, 4), tag="pre")
                fs = first(s) if s < 7 else (T(rpos[4]) - 2 * (9 - s) if ch else T(pos[("M", s, 0)]))
                rel = 0 if prev[s] is None else T(lastu(prev[s]))
                if ch and s == 6:
                    rel = stg[2] + 1
                dq.append([op, rel, fs - LEAD - 2 + h, None])
                lastb.append(op)
        for h in range(2):
            vq.append([Op(f"v_add_u32 v{V_RD0+h}, s{S_DELTA}, v{V_RD0+h}", "valu", rd=[V_RD0 + h], wr=[V_RD0 + h]), 0, N - 2, lastb])
        sq = []
        dmag = [g + (self.drain - 70) * (g > 50) for g in o["dmag"]]
        assert all(b - a_ >= 2 for a_, b in zip(dmag, dmag[1:]))
        if not o["nodma"]:
            for j, g in enumerate(dmag):
                g = T(g)
                ld = f"buffer_load_dwordx4 v{V_DMA}, {sr(S_X,4)}, s{S_XOFF if j < 4 else S_XOFF5} offen offset:{256*j if j < 4 else 896} {o['ld']} lds"
                if j < 4:
                    D[g].append(Op(ld, "dma", rd=[V_DMA], tag="dma"))
                    S[g - 1].append(Op(f"s_add_u32 m0, s{S_M0B}, {3840*j}", "salu", tag="dma"))
                else:
                    D[g] += [Op(f"s_mov_b64 exec, {sr(S_HALF,2)}", "salu", tag="dma"), Op(ld, "dma", rd=[V_DMA], tag="dma"),
                             Op("s_mov_b64 exec, -1", "salu", tag="dma")]
                    S[g - 1].append(Op(f"s_add_u32 m0, s{S_M0B}, s{S_M05}", "salu", tag="dma"))
                    V[g] = None
        XV = [[] for _ in range(N)]
        if self.dyn:
            gl = T(o["mbg"] + self.drain - 70) - 1
            XV[T(0)].append(Op(f"v_mov_b32 v{V_C}, 1", "valu", wr=[V_C], tag="clm"))
            D[T(1)].append(Op(f"buffer_atomic_add v{V_C}, v{V_BP}, {sr(S_B,4)}, 0 offen sc0 sc1", "dma", rd=[V_BP], tag="clm"))
            assert not D[gl + 1] and not S[gl + 1] and max(stg) <= gl
            gw = gl + 1 if o["cwg"] is None else T(o["cwg"])
            assert gw not in stg and T(1) < gw <= gl + 1
            S[gw].append(Op(f"s_waitcnt vmcnt({sum(1 for g in stg if g < gw) + sum(1 for g in dmag if T(g) < gw)})", "salu", tag="clm"))
            if o["dwg"] is not None and dma and not clm:
                gw = T(o["dwg"])
                assert gw not in stg
                S[gw].append(Op(f"s_waitcnt vmcnt({sum(1 for g in stg if g < gw) + sum(1 for g in dmag if T(g) < gw)})", "salu"))
            D[gl + 1] += [Op(f"s_mov_b64 exec, {sr(S_W0,2)}", "salu", tag="clm"),
                          Op(f"ds_write_b32 v{V_RD0}, v{V_C} offset:{TB}", "lds", rd=[V_RD0], tag="clm"), Op("s_mov_b64 exec, -1", "salu", tag="clm")]
            V[gl + 1] = None
            D[0].append(Op(f"ds_read_b32 v{V_C}, v{V_RD0} offset:{TB}", "lds", rd=[V_RD0], wr=[V_C], tag="clm"))
            XV[LEAD + 1].append(Op(f"v_readfirstlane_b32 s{S_CL}, v{V_C}", "valu", rd=[V_C], tag="clm"))
        placed = {}
        for g in range(N - 1):
            if not D[g] and g != T(N - 1):
                c = [x for x in dq if x[1] <= g and (x[3] is None or placed.get(id(x[3]), N) < g) and x[2] - g <= o["eager"]]
                if c:
                    x = min(c, key=lambda x: x[2])
                    dq.remove(x)
                    D[g].append(x[0])
                    placed[id(x[0])] = g
                    if g > x[2] and o["verbose"]:
                        print("; late D", g - x[2], x[0].text, file=sys.stderr)
            if V[g] is None:
                V[g] = []
                continue
            cap = 2 if (ST[g] and "x4" in ST[g][0].text) else 1
            while len(V[g]) < cap:
                c = [x for x in vq if x[1] <= g and (x[3] is None or all(placed.get(id(y), N) <= g for y in x[3]))]
                if not c:
                    break
                x = min(c, key=lambda x: x[2])
                vq.remove(x)
                V[g].append(x[0])
                placed[id(x[0])] = g
                assert g <= x[2] or x[0].kind != "dpp", ("late", x[0].text)
        assert not dq and not vq, ([x[0].text for x in dq], [x[0].text for x in vq])
        for g in range(N):
            V[g] += XV[g]
        if self.dyn:
            rdup = max(placed[id(x)] for gl_ in V for x in gl_ if id(x) in placed and f"s{S_DELTA}," in x.text)
            assert rdup <= gl and gl + 1 < T(self.drain) and T(min(o["stg"])) > T(1)
        S[N - 1] += ([] if clm else [Op(f"s_waitcnt vmcnt({o['vmw']})", "salu")]) + [Op("s_barrier", "bar")]
        lastdma = T(dmag[4])
        la = max(placed[id(x)] for gl in V for x in gl if id(x) in placed and f"s{S_BUF}," in x.text)
        fn = min(placed[id(x)] for gl in V for x in gl if id(x) in placed and (f"s{S_BUFN}," in x.text or f"s{S_DELTA}," in x.text))
        sq = [([f"s_mov_b32 s{S_BUF}, s{S_BUFN}"], 0, 0),
              ([f"s_cmp_eq_u32 s{S_BUFN}, {(NB-1)*TBL}", f"s_cselect_b32 s{S_DELTA}, {-(NB-1)*TBL}, s{S_CTB}", f"s_add_u32 s{S_BUFN}, s{S_BUFN}, s{S_DELTA}"], c0 + 18, fn),
              ]
        if self.dyn:
            LK = self.dyn[1]
            sq.append((([] if clm else [f"s_mov_b32 s{S_OUT+2}, {XBYTES}"]) + [f"s_mov_b32 s{S_OOFF}, s{S_Q}"]
                       + [f"s_mov_b32 s{S_Q+k}, s{S_Q+k+1}" for k in range(LK - 1)]
                       + [f"s_mov_b32 s{S_Q+LK-1}, s{S_XOFF}" if clm else f"s_add_u32 s{S_Q+LK-1}, s{S_Q+LK-1}, {256*TB}"], stg[4] + 1, N - 2))
        else:
            sq.append(([f"s_mov_b32 s{S_OUT+2}, {XBYTES}", f"s_add_u32 s{S_OOFF}, s{S_OOFF}, s{S_OINC}", f"s_mov_b32 s{S_OINC}, s{S_OINC2}",
                        f"s_mov_b32 s{S_OINC2}, {256*TB}"], stg[4] + 1, N - 2))
        if not clm or o["trace"]:
            sq.append(([f"s_add_u32 s{S_IT}, s{S_IT}, 1"], c0 + 18, N - 2))
        if clm:
            ps = o["psh"]
            sq += [([f"s_add_u32 s{S_XOFF5}, s{S_XOFF}, s{S_K5}"], c0 + 18, lastdma - 2),
                   (self.dma_advance()[2:], lastdma + 1, N + 8),
                   ([f"s_lshr_b32 s{S_CT}, s{S_CL}, {4 if o['pil'] else ps}", f"s_mul_i32 s{S_CT}, s{S_CT}, {(48 if o['pil'] else 256 - (1 << ps))*TB}", f"s_mul_i32 s{S_CT+1}, s{S_CL}, {TB}",
                     f"s_add_u32 s{S_CT}, s{S_CT}, s{S_CB}", f"s_add_u32 s{S_XOFF}, s{S_CT}, s{S_CT+1}"], LEAD + 2, T(N - 1) - 2),
                   ([f"s_cmp_lt_u32 s{S_CL}, {(16 - self.dyn[0]) << ps}"], T(N - 1) - 1, T(N - 1) - 1)]
        else:
            if dma:
                sq += [(self.dma_advance(), lastdma + 1, N + 12)]
            sq.append(([f"s_bitcmp1_b32 s{S_DMASK if dma else S_NMASK}, s{S_IT}"], T(N - 1) - 1, T(N - 1) - 1))
        G = lambda A: [[x for x in A[T(g)] if keep(x)] for g in range(N)]
        return seq, G(ST), G(S), G(D), G(V), [(x, (lo + BAR + 1), (hi + BAR + 1)) for x, lo, hi in sq], BAR

    def assemble_loop(self, links, label, dma=True, clm=False):
        seq, ST, S, D, V, sq, BAR = self.loop_ops(links, dma, clm)
        N = len(seq)
        flat = []
        for rep in range(2):
            for g in range(N):
                a0 = rep * N + g
                flat.append((seq[g], a0 - 1))
                for x in ST[g]:
                    flat.append((x, a0 - 1))
                for x in D[g] + V[g]:
                    flat.append((x, a0))
        gap_of = {}
        k = 0
        lds = []
        for rep in range(2):
            for g in range(N):
                k += 1 + len(ST[g])
                for x in D[g] + V[g]:
                    if x.kind == "lds":
                        lds.append((k, rep * N + g))
                    k += 1
        done = -1
        W = {}
        minlead = 99
        for i, (op, wg) in enumerate(flat):
            touched = op.rd | op.wr
            need = -1
            for n, (k, g) in enumerate(lds):
                if k < i and n > done and (flat[k][0].wr & touched):
                    need = n
            if need >= 0:
                assert lds[need][1] < wg
                issued = [n for n, (k, g) in enumerate(lds) if g < wg]
                cnt = min(issued[-1] - need, 15)
                done = issued[-1] - cnt
                if wg >= N - 1 and wg < 2 * N - 1:
                    W[wg % N] = min(cnt, W.get(wg % N, 99))
                    if self.o["verbose"]:
                        print(f"; wait gap {wg % N} cnt {cnt} lead {wg - lds[need][1]} for {flat[lds[need][0]][0].text}", file=sys.stderr)
        W[self.drain] = 0
        if clm:
            mb = [g for g in range(N) if any("ds_write" in x.text for x in D[g])][0]
            assert not [g for g in W if mb < g < self.drain]
        for g, c in W.items():
            S[g].insert(0, Op(f"s_waitcnt lgkmcnt({c})", "salu"))
        if not self.o["drop"]:
            last = max(g for g in range(BAR + 1) if any(x.kind == "lds" for x in D[g]))
            assert any(W.get(g) == 0 for g in range(last + 1, BAR + 1)), "tile reads not drained at the barrier"

        def room(g, extra=0, resv=True):
            g %= N
            if g == BAR or g == N - 1 or any(x.kind == "dma" for x in D[g]):
                return False
            cap = 1 if D[g] else (2 if V[g] else 3)
            if label and not clm and resv:
                if g == self.drain - 1:
                    return False
                cap -= g == self.drain - 2
            return len(S[g]) + extra < cap and not ST[g]
        sccfree = lambda x: x.text.startswith(("s_waitcnt", "s_mov", "s_barrier"))
        locked = set()
        for texts, lo, hi in sq:
            g = lo
            n = 0
            while n < len(texts):
                chain = [texts[n]]
                if texts[n].startswith(("s_cmp", "s_bitcmp")):
                    while n + len(chain) < len(texts) and texts[n + len(chain)].startswith("s_cselect"):
                        chain.append(texts[n + len(chain)])
                while True:
                    assert g <= hi, ("no room", chain)
                    where, z = [], g
                    ok = room(g) and ((g % N) not in locked or chain[0].startswith("s_mov"))
                    cnt = {}
                    for k, tx in enumerate(chain):
                        while ok and not room(z, cnt.get(z, 0)):
                            z += 1
                            ok = z <= hi and all(sccfree(x) for x in S[z % N]) and (clm or z % N != self.drain - 1)
                        where.append(z)
                        cnt[z] = cnt.get(z, 0) + 1
                    if ok:
                        break
                    g += 1
                for z, tx in zip(where, chain):
                    S[z % N].append(Op(tx, "salu"))
                if len(chain) > 1:
                    locked.update(z % N for z in range(where[0], where[-1]))
                g = where[-1]
                n += len(chain)
        assert all(sccfree(x) for x in S[N - 1])
        if label and not clm:
            gz = self.drain - (2 if self.o["trace"] else 1)
            assert self.o["chain"] and (self.o["trace"] or (not (S[gz] or D[gz] or V[gz] or ST[gz]) and room(gz - 1, 0, False) and (gz - 1) not in locked))
            assert all(x.kind not in ("dma", "st") for g in range(gz, N) for x in D[g] + ST[g]) and max(self.o["stg"]) < min(self.o["dmag"])
            S[gz - (0 if self.o["trace"] else 1)].append(Op(f"s_bitcmp1_b32 s{S_WMASK}, s{S_IT}", "salu"))
            S[gz] += [Op(f"s_cbranch_scc1 {label}_w", "salu"), Op(f"{label}_wb:", "label")]
            self.tailblocks.append(f"{label}_w:\ns_bitcmp1_b32 s{S_WMASK2}, s{S_IT}\ns_waitcnt vmcnt({self.whi})\n"
                                   f"s_cbranch_scc0 {label}_wb\ns_waitcnt vmcnt({self.wlo})\ns_branch {label}_wb")
        if self.o["trace"]:
            g0 = max(g for g, c in W.items() if c == 0 and g <= BAR)
            S[g0 - 1] += [Op("s_memrealtime s[98:99]", "salu"), Op("s_memtime s[96:97]", "salu"), Op(f"s_add_u32 s95, s{S_IT}, 32", "salu")]
            V[g0] += [Op(f"s_mov_b32 m0, s{S_IT}", "salu"), Op("v_writelane_b32 v254, s98, m0", "salu"), Op("s_mov_b32 m0, s95", "salu"), Op("v_writelane_b32 v254, s96, m0", "salu")]
        body = []
        pro = [x for g in range(N) for x in V[g] if x.tag == "pre" or (g > BAR and "sdwa" in x.text)] \
            + [x for g in range(BAR + 1, N) for x in D[g] if x.tag == "pre"]
        epi = [x for g in range(BAR) for x in ST[g] + D[g] + V[g] if x.tag == "epi"]
        nsw = 0
        for g in range(N):
            sw_ = self.o["swp"][2 if clm else (0 if dma else 1)]
            if sw_ and len(D[g]) == 1 and len(V[g]) == 1 and D[g][0].kind == "lds" and not ST[g] and "sdwa" in V[g][0].text \
                    and not (V[g][0].wr & (D[g][0].rd | D[g][0].wr)) and nsw < sw_:
                D[g], V[g] = V[g], D[g]
                nsw += 1
            body += [x for x in [seq[g]] if not any(d in x.text for d in self.o["dropm"])] + ST[g] + S[g] + D[g] + V[g]
            if self.o["pad"] and g % self.o["pad"] == 0 and g < N - 2:
                body.append(Op("s_nop 3", "salu"))
        body = [x for x in body if x.kind == "mx" or not any(d in x.text for d in self.o["drop"])]
        body.append(Op(f"s_cbranch_scc1 {label}", "salu"))
        if not self.o["drop"]:
            real = [x for x in body if x.kind != "label"]
            m = len(real)
            for i, op in enumerate(real):
                for d in range(1, 10):
                    p = real[(i - d) % m]
                    ws = d - 1
                    if p.kind == "mx" and op.kind != "mx" and (p.wr & (op.rd | op.wr)):
                        assert ws >= 8, ("mx->x", p.text, op.text, ws)
                    if p.kind in ("valu", "dpp") and op.kind == "mx" and (p.wr & op.rd):
                        assert ws >= 2, ("valu->mx", p.text, op.text, ws)
                    if p.kind in ("valu", "dpp") and op.kind == "dpp" and (p.wr & op.rd):
                        assert ws >= 2, ("valu->dpp", p.text, op.text, ws)
                    if p.kind == "st" and (p.rd & op.wr):
                        assert ws >= 2, ("st war", p.text, op.text, ws)
        return pro, body, epi

    def emit_epi(self, epi):
        cv = [x for x in epi if "v_cvt" in x.text]
        bp = [x for x in epi if x.kind == "lds"]
        rest = [x for x in epi if x not in cv and x not in bp]
        ops = rest[:6] + cv[2:] + bp + rest[6:12] + cv[:2] + rest[12:]
        if self.o["ste"] is not None:
            ops = [Op(x.text.replace(" sc1", " " + self.o["ste"]), x.kind, x.rd, x.wr) if x.kind == "st" else x for x in ops]
        hist = [Op("", "mx", wr=rng(V_ACC + 28, 8)), Op("", "valu", wr=rng(V_P, 14)), Op("", "salu")]
        self.emit_line(ops, [], hist)

    def main_loop(self, links, sfx):
        a = self.a
        pro, body, epi = self.assemble_loop(links, "L_loop" + sfx)
        if not self.o["peel"]:
            late = list(self.late_loads)
            for n, op in enumerate(pro):
                a(op.text)
                if n % 6 == 5:
                    while late and not late[0].startswith("buffer"):
                        a(late.pop(0))
                    if late:
                        a(late.pop(0))
            for x in late[:8]:
                a(x)
            a("s_waitcnt lgkmcnt(0)")
            a(f"v_readfirstlane_b32 s{S_T0}, v{V_T}")
            a("s_nop 3")
            a(f"s_cmp_lg_u32 s{S_T0}, 0")
            a("s_cbranch_scc1 L_slow")
            for x in late[8:]:
                a(x)
            if max(p[1] for p in self.pol):
                self.prefetch(24, "L_pf2" + sfx)
            for x in self.dma_advance(first=True):
                a(x)
            a(f"s_waitcnt vmcnt({(20 if self.o['early'] else 0) + 5 * self.n2min})")
            self.stamp(5)
            a(f"s_bitcmp1_b32 s{S_DMASK}, 0")
            a(f"s_cbranch_scc0 L_loopn{sfx}")
        a(".p2align 6")
        a(f"L_loop{sfx}:")
        for op in body:
            a(op.text)
        if self.o["wbl2"] is not None:
            a(f"s_lshr_b32 s{S_T0}, s2, 3")
            a(f"s_and_b32 s{S_T0}, s{S_T0}, {self.o['wbl2']}")
            a(f"s_or_b32 s{S_T0}, s{S_T0}, s{S_WAVE}")
            a(f"s_cbranch_scc1 L_loopn{sfx}")
            a("buffer_wbl2 sc1")
        if self.dyn:
            LK = self.dyn[1]
            a(f"s_cmp_lg_u32 s{S_IT}, {self.cl0}")
            a(f"s_cbranch_scc1 L_loopn{sfx}")
            a(".p2align 3")
            a(f"L_loopc{sfx}:")
            for op in self.assemble_loop(links, "L_loopc" + sfx, True, True)[1]:
                a(op.text)
            if self.o["trace"]:
                a(f"s_add_u32 s{S_NT}, s{S_IT}, {LK}")
                a(f"s_bfm_b32 s{S_NMASK}, s{S_NT}, 0")
                a(f"s_lshl_b32 s{S_WMASK}, {1 << (LK-1)}, s{S_IT}")
                a(f"s_lshl_b32 s{S_WMASK2}, {(1 << (LK-1)) if 5*(LK-1) < self.whi else 0}, s{S_IT}")
            else:
                a(f"s_mov_b32 s{S_IT}, 0")
                a(f"s_mov_b32 s{S_NT}, {LK}")
                a(f"s_mov_b32 s{S_NMASK}, {(1 << LK) - 1}")
                a(f"s_mov_b32 s{S_WMASK}, {(1 << (LK-1)) if 5*(LK-1) < self.o['vmw'] else 0}")
                a(f"s_mov_b32 s{S_WMASK2}, {(1 << (LK-1)) if 5*(LK-1) < self.whi else 0}")
            a(f"s_mov_b32 s{S_CL0}, -1")
            if self.o["stt"] is not None:
                keep, self.o["stn"] = self.o["stn"], self.o["stt"]
                for op in self.assemble_loop(links, "L_loopt" + sfx, False)[1][:-1]:
                    a(op.text)
                self.o["stn"] = keep
        if self.o["align2"]:
            a(".p2align 3")
        a(f"L_loopn{sfx}:")
        _, body, epi = self.assemble_loop(links, "L_loopn" + sfx, False)
        for op in body:
            a(op.text)
            if op.kind == "bar":
                a(f"L_loopn{sfx}_p3:")
        if self.dyn:
            a(f"s_cmp_eq_u32 s{S_IT}, s{S_CL0}")
            a(f"s_cbranch_scc1 L_loopc{sfx}")
        a(f"s_cmp_lt_u32 s{S_IT}, s{S_NT}")
        a(f"s_cbranch_scc1 L_loop{sfx}")
        self.emit_epi(epi)

    def loop_state(self):
        a = self.a
        pl = 2 if self.o["peel"] else 0
        a(f"s_mov_b32 s{S_IT}, {pl}")
        a(f"s_mov_b32 s{S_BUF}, 0")
        a(f"s_mov_b32 s{S_BUFN}, {pl*TBL}")
        if pl:
            a(f"s_mov_b32 s{S_OUT+2}, {XBYTES}")
        a(f"s_mov_b32 s{S_CTB}, {TBL}")
        a(f"s_mov_b32 s{S_OINC}, {256*TB if pl else 0}")
        a(f"s_mov_b64 vcc, {sr(S_EVEN,2)}")
        if self.dyn:
            NS, LK = self.dyn
            ps = self.o["psh"]
            a(f"s_andn2_b32 s{S_NMASK}, {(1 << self.cl0) - 1}, s{S_DMASK}")
            a(f"s_mov_b32 s{S_CL0}, {self.cl0}")
            a(f"s_add_u32 s{S_Q}, s{S_OOFF}, {pl*256*TB}")
            for k in range(1, LK):
                a(f"s_add_u32 s{S_Q+k}, s{S_Q+k-1}, {256*TB}")
            a(f"s_sub_u32 s{S_K5}, s{S_XOFF5}, s{S_XOFF}")
            if self.o["pil"]:
                assert ps == 6
                a(f"s_bfe_u32 s{S_T0}, s2, {hex(2 << 16 | 4)}")
                a(f"s_mul_i32 s{S_CB}, s{S_T0}, {TB * 16}")
            else:
                a(f"s_lshr_b32 s{S_T0}, s2, {ps}")
                a(f"s_mul_i32 s{S_CB}, s{S_T0}, {TB << ps}")
            a(f"s_add_u32 s{S_CB}, s{S_CB}, {NS*256*TB}")
            a(f"s_lshl_b32 s{S_T0}, s{S_T0}, 7")
            a(f"s_add_u32 s{S_T0}, s{S_T0}, {CNT_OFF}")
            a(f"s_add_u32 s{S_B}, s{S_WS}, s{S_T0}")
            a(f"s_addc_u32 s{S_B+1}, s{S_WS+1}, 0")
            a(f"s_cmp_eq_u32 s{S_WAVE}, 0")
            a(f"s_cselect_b32 s{S_B+2}, 4, 0")
            a(f"s_cselect_b64 {sr(S_W0,2)}, 1, 0")
        else:
            a(f"s_bfm_b32 s{S_NMASK}, s{S_NT}, 0")
            a(f"s_andn2_b32 s{S_NMASK}, s{S_NMASK}, s{S_DMASK}")

    def stamp(self, n, r="s[98:99]"):
        if self.o["stamp"] and (self.o["stamp"] is True or n in self.o["stamp"]):
            a = self.a
            a(f"s_memtime {r}" if self.o["cyc"] and n in (5, 6) else f"s_memrealtime {r}")
            a("s_waitcnt lgkmcnt(0)")
            a(f"v_writelane_b32 v255, s{r[2:4]}, {n}")

    def descriptor(self, label, vg, ag):
        self.a(f""".amdhsa_kernel {label}
  .amdhsa_next_free_vgpr {vg}
  .amdhsa_next_free_sgpr 102
  .amdhsa_accum_offset {ag}
  .amdhsa_group_segment_fixed_size 0
  .amdhsa_float_denorm_mode_32 3
  .amdhsa_kernarg_size 48
  .amdhsa_user_sgpr_count 2
  .amdhsa_user_sgpr_kernarg_segment_ptr 1
  .amdhsa_system_sgpr_workgroup_id_x 1
.end_amdhsa_kernel""")

    def flush_tail(self):
        for b in self.tailblocks:
            self.a(b)
        self.tailblocks = []

    def gen(self):
        a = self.a
        o = self.o
        K = NAME + "_kernel"
        a(open("cdna_kernels/" + NAME + ".s.ref").read().split("; Override")[0].rstrip())
        if o["fused"]:
            a(f"; @launch grid=(256,1,1) block=(256,1,1) lds={LDS_BYTES}")
        else:
            a(f"; @launch kernel=prep_kernel grid=({NTASK},1,1) block=(256,1,1) lds={LDS_BYTES}")
            a(f"; @launch kernel={K} grid=(256,1,1) block=(256,1,1) lds={LDS_BYTES}")
        a('.amdgcn_target "amdgcn-amd-amdhsa--gfx950"\n.text')
        if not o["fused"]:
            self.entry("prep_kernel", NTASK)
            a(f"s_mov_b32 s{S_TASK}, s2\ns_mov_b32 s{S_BASE}, 0")
            self.producer("", False)
            a("L_end_prep_kernel:\ns_endpgm")
            self.flush_tail()
        self.entry(K, 256)
        a(f"s_mov_b32 s{S_BASE}, 0")
        mid = {id(p): m for p, m in zip(self.pol, self.mid)}
        msk = lambda p: hex(sum(1 << i for i in p[2] if not self.dyn or i < self.cl0) | (p[0] - mid[id(p)]) << 20 | p[1] << 24 | mid[id(p)] << 28)
        def pick(reg, vals):
            if len(set(vals)) == 1:
                a(f"s_mov_b32 s{reg}, {vals[0]}")
                return
            a(f"s_mov_b32 s{reg}, {vals[1]}")
            a(f"s_mov_b32 s{S_T0}, {vals[3]}")
            a(f"s_bitcmp1_b32 s2, {o['gsh']}")
            a(f"s_cselect_b32 s{reg}, s{reg}, {vals[0]}")
            a(f"s_cselect_b32 s{S_T0}, s{S_T0}, {vals[2]}")
            a(f"s_bitcmp1_b32 s2, {o['gsh2']}")
            a(f"s_cselect_b32 s{reg}, s{S_T0}, s{reg}")
        if o["fused"]:
            px = o["px"]
            if o["pil"]:
                a(f"s_lshr_b32 s{S_TASK}, s2, 6")
                a(f"s_and_b32 s{S_T0}, s2, 9")
                a(f"s_lshl1_add_u32 s{S_TASK}, s{S_TASK}, s{S_T0}")
                a(f"s_bfe_u32 s{S_T1}, s2, {hex(2 << 16 | 4)}")
                a(f"s_lshl2_add_u32 s{S_TASK}, s{S_TASK}, s{S_T1}")
                a(f"s_and_b32 s{S_T0}, s2, 7")
                assert px == 2
            elif o["pspread"]:
                a(f"s_bfe_u32 s{S_TASK}, s2, {hex(2 << 16 | 3)}")
                a(f"s_mul_i32 s{S_TASK}, s{S_TASK}, {px}")
                a(f"s_and_b32 s{S_T0}, s2, 7")
                a(f"s_add_u32 s{S_TASK}, s{S_TASK}, s{S_T0}")
                a(f"s_lshr_b32 s{S_T1}, s2, 5")
                a(f"s_lshl3_add_u32 s{S_TASK}, s{S_TASK}, s{S_T1}")
            else:
                a(f"s_lshr_b32 s{S_TASK}, s2, 3")
                a(f"s_mul_i32 s{S_TASK}, s{S_TASK}, {px}")
                a(f"s_and_b32 s{S_T0}, s2, 7")
                a(f"s_add_u32 s{S_TASK}, s{S_TASK}, s{S_T0}")
            a(f"s_cmp_lt_u32 s{S_T0}, {px}")
            a(f"s_cselect_b32 s{S_TASK}, s{S_TASK}, 63")
            a(f"s_cmp_lt_u32 s{S_TASK}, {NTASK}")
            a("s_cbranch_scc1 L_prod")
        pick(S_DMASK, [msk(p) for p in self.pol[:4]])
        self.lane_setup()
        if o["fused"] and o["sig"] == 3:
            self.mb_addr(S_T0, S_T1)
            a(f"s_cmp_eq_u32 s{S_WAVE}, 0")
            a(f"s_cselect_b32 s{S_T0}, s{S_T0}, 0x40000000")
            a(f"v_mov_b32 v8, s{S_T0}")
            a("v_mov_b32 v9, 0")
        self.entry_wait()
        if o["fused"] and o["sig"] == 4:
            assert o["pspread"]
            a(f"s_cmp_lg_u32 s2, {200 if o['pil'] else CLEARER}")
            a("s_cbranch_scc1 L_cons3")
            a("v_lshlrev_b32 v8, 4, v0")
            a("v_mov_b64 v[12:13], 0")
            a("v_mov_b64 v[14:15], 0")
            a(f"buffer_store_dwordx4 v[12:15], v8, {sr(S_DBG,4)}, 0 offen sc1")
            a(f"v_add_u32 v8, {FL_OFF}, v8")
            a("v_add_u32 v9, 4096, v8")
            a(f"buffer_store_dwordx4 v[12:15], v8, {sr(S_WS,4)}, 0 offen sc1")
            a(f"buffer_store_dwordx4 v[12:15], v9, {sr(S_WS,4)}, 0 offen sc1")
            a("v_mov_b32 v10, 1")
            a("v_lshlrev_b32 v11, 2, v0")
            a("s_waitcnt vmcnt(0)")
            a("s_barrier")
            a("s_mov_b32 exec_hi, 0")
            a(f"buffer_store_dword v10, v11, {sr(S_DBG,4)}, 0 offen sc1")
            a("s_mov_b64 exec, -1")
        self.ptouch()
        if o["fused"] and o["sig"] == 3:
            a("s_mov_b64 exec, 1")
            a(f"buffer_store_dword v9, v8, {sr(S_WS,4)}, 0 offen sc1")
            a("s_mov_b64 exec, -1")
        a("L_cons3:")
        self.stamp(1)
        self.dma_setup()
        if o["bias0"]:
            self.bias_load()
        if o["pfd"]:
            a(f"s_waitcnt vmcnt({2 - o['pfd']})")
        if o["pfl"]:
            a(f"s_cmp_ge_u32 s{S_TASK}, {NTASK}")
            a("s_cbranch_scc1 L_rest")
        a("L_pf0:")
        self.prefetch(20)
        self.stamp(2)
        if o["pfl"]:
            a(f"s_cmp_ge_u32 s{S_TASK}, {NTASK}")
            a("s_cbranch_scc1 L_rest2")
        if o["fused"]:
            a("s_branch L_rest")
            a("L_prod:")
            self.producer("", False)
            pick(S_DMASK, [msk(p) for p in self.pol[4:]] * 2)
            a("s_barrier")
            a(f"s_cmp_lg_u32 s{S_WAVE}, 0")
            a("s_cbranch_scc1 L_cons2")
            if o["sig"] != 4:
                a("v_mov_b32 v8, 1")
                a("s_mov_b64 exec, 1")
            if o["sig"] == 4:
                a(f"v_readfirstlane_b32 s{S_T0}, v8")
                a("s_mov_b64 exec, 0xffff")
                a(f"s_cmp_lg_u32 s{S_T0}, 1")
                a("s_cbranch_scc1 L_pwait")
                a("L_pset:")
                a(f"buffer_store_dword v10, v9, {sr(S_WS,4)}, 0 offen sc1")
                self.tailblocks.append("\n".join([
                    "L_pwait:", f"s_mov_b32 s{S_T1}, {o['maxpoll']}", "L_pwait1:", f"buffer_load_dword v8, off, {sr(S_DBG,4)}, 0 sc1",
                    "s_waitcnt vmcnt(0)", f"v_readfirstlane_b32 s{S_T0}, v8", "s_nop 3", f"s_cmp_eq_u32 s{S_T0}, 1", "s_cbranch_scc1 L_pset",
                    f"s_sub_u32 s{S_T1}, s{S_T1}, 1", "s_cbranch_scc0 L_pwait1", "s_branch L_notlast"]))
            elif o["sig"] == 2:
                a(f"s_lshr_b32 s{S_T0}, s{S_TASK}, 1")
                a(f"s_lshl_b32 s{S_T0}, s{S_T0}, 2")
                a(f"s_bitcmp1_b32 s{S_TASK}, 0")
                a(f"s_cselect_b32 s{S_T1}, 128, 0")
                a(f"s_add_u32 s{S_T0}, s{S_T0}, s{S_T1}")
                a(f"v_mov_b32 v9, s{S_T0}")
                a(f"buffer_store_dword v8, v9, {sr(S_DBG,4)}, 0 offen {o['fs']}")
            else:
                a(f"buffer_atomic_add v8, off, {sr(S_DBG,4)}, 0 offset:128 sc0 sc1")
                if o["sig"] == 3:
                    a("s_mov_b64 exec, -1")
                    a(f"s_mov_b32 s{S_T1}, {MB_OFF}")
                    a(f"v_lshl_add_u32 v10, v{V_LANE}, 7, s{S_T1}")
                    for k in range(1, 4):
                        a(f"v_add_u32 v{10+k}, {8192*k}, v10")
                a("v_mov_b32 v9, 1")
                a("s_waitcnt vmcnt(0)")
                a(f"v_readfirstlane_b32 s{S_T0}, v8")
                a("s_nop 3")
                a(f"s_cmp_lg_u32 s{S_T0}, {NTASK-1}")
                a("s_cbranch_scc1 L_notlast")
                if o["sig"] == 3:
                    for k in range(4):
                        a(f"buffer_store_dword v9, v{10+k}, {sr(S_WS,4)}, 0 offen sc1")
                    a("s_mov_b64 exec, 1")
                a(f"buffer_store_dword v9, off, {sr(S_DBG,4)}, 0 {o['fs']}")
                if o["diag"] and o["diag"][2] == "last":
                    a("s_mov_b32 s101, -1")
            a("L_notlast:")
            self.stamp(15)
            a("s_mov_b64 exec, -1")
            a("L_cons2:")
            self.lane_setup()
            if o["bar2"] and o["sig"] != 4:
                a("s_barrier")
            a("s_branch L_cons3")
            self.flush_tail()
            a("L_rest:")
        for reg, wm in ((S_WMASK, self.wmask), (S_WMASK2, self.wmask2)):
            pick(reg, [hex(x) for x in wm[:4]])
            if o["fused"]:
                pick(S_T1, [hex(x) for x in wm[4:]] * 2)
                a(f"s_cmp_lt_u32 s{S_TASK}, {NTASK}")
                a(f"s_cselect_b32 s{reg}, s{S_T1}, s{reg}")
        if not o["bias0"]:
            self.bias_load()
        self.lane_setup2()
        self.tables_init()
        pre, C, G = self.build()
        if o["pfl"]:
            a(f"s_cmp_ge_u32 s{S_TASK}, {NTASK}")
            a("s_cbranch_scc1 L_pf0")
            a("L_rest2:")
        if o["fused"]:
            a(f"s_cmp_lg_u32 s{S_WAVE}, 0")
            a("s_cbranch_scc1 L_ready")
            if o["sig"] == 4:
                a(f"s_mov_b32 s{S_T1}, {o['maxpoll']}")
                a(f"s_mov_b32 s{S_T0}, {FL_OFF}")
                a(f"v_lshl_add_u32 v9, v{V_LANE}, 7, s{S_T0}")
                a(f"s_bfe_u32 s{S_T0}, s{S_DMASK}, {hex(4 << 16 | 20)}")
                a(f"s_cmp_ge_u32 s{S_T0}, 6")
                a("s_waitcnt vmcnt(15)")
                a("s_cbranch_scc1 L_deep")
                a(f"s_waitcnt vmcnt({0 if o['bias0'] else 1})")
                a("L_deep:")
                self.stamp(14)
                a(f"v_readfirstlane_b32 s{S_T0}, v124")
                a(f"s_mov_b32 exec_hi, {(1 << (NTASK - 32)) - 1}")
                a(f"s_cmp_lg_u32 s{S_T0}, 1")
                a("s_cbranch_scc1 L_cwait")
                self.tailblocks.append("\n".join([
                    "L_cwait:", f"buffer_load_dword v8, off, {sr(S_DBG,4)}, 0 sc1", f"s_sub_u32 s{S_T1}, s{S_T1}, 1", "s_cbranch_scc1 L_giveup",
                    "s_waitcnt vmcnt(0)", f"v_readfirstlane_b32 s{S_T0}, v8", "s_nop 3", f"s_cmp_lg_u32 s{S_T0}, 1", "s_cbranch_scc1 L_cwait",
                    "s_branch L_poll"]))
                a("L_poll:")
                if o["psleep"]:
                    a(f"s_sleep {o['psleep']}")
                a(f"buffer_load_dword v8, v9, {sr(S_WS,4)}, 0 offen sc1")
                a(f"s_sub_u32 s{S_T1}, s{S_T1}, 1")
                a("s_cbranch_scc1 L_giveup")
                a("s_waitcnt vmcnt(0)")
                a("v_cmp_ne_u32 vcc, 1, v8")
                a("s_nop 4")
                a("s_cbranch_vccnz L_poll")
            else:
                if o["sig"] == 2:
                    a(f"v_lshlrev_b32 v9, 2, v{V_LANE}")
                    a("s_waitcnt vmcnt(0)")
                else:
                    a("s_mov_b64 exec, 1")
                a(f"s_mov_b32 s{S_T1}, {o['maxpoll']}")
                if o["stamp"] and (o["stamp"] is True or 14 in o["stamp"]):
                    a("s_waitcnt vmcnt(0)")
                    self.stamp(14)
                if o["sig"] == 3:
                    self.mb_addr(S_T0, S_MASK)
                    a(f"v_mov_b32 v9, s{S_T0}")
                    a(f"s_waitcnt vmcnt({5*self.premin})")
                a("L_poll:")
                if o["psleep"]:
                    a(f"s_sleep {o['psleep']}")
                if o["sig"] == 3:
                    a(f"s_and_b32 s{S_T0}, s{S_T1}, 15")
                    a("s_cbranch_scc0 L_polld")
                    a(f"buffer_load_dword v8, v9, {sr(S_WS,4)}, 0 offen sc1")
                    a("L_pollb:")
                    self.tailblocks.append(f"L_polld:\nbuffer_load_dword v8, off, {sr(S_DBG,4)}, 0 sc1\ns_branch L_pollb")
                else:
                    a(f"buffer_load_dword v8, {'v9' if o['sig'] == 2 else 'off'}, {sr(S_DBG,4)}, 0 {'offen ' if o['sig'] == 2 else ''}{o['pl']}")
                a(f"s_sub_u32 s{S_T1}, s{S_T1}, 1")
                a("s_cbranch_scc1 L_giveup")
                a("s_waitcnt vmcnt(0)")
                if o["sig"] == 2:
                    a("v_cmp_ne_u32 vcc, 0, v8")
                    a(f"s_bcnt1_i32_b64 s{S_T0}, vcc")
                    a(f"s_cmp_lt_u32 s{S_T0}, {NTASK}")
                else:
                    a(f"v_readfirstlane_b32 s{S_T0}, v8")
                    a("s_nop 3")
                    a(f"s_cmp_lg_u32 s{S_T0}, 1")
                a("s_cbranch_scc1 L_poll")
            a("L_polled:")
            a("s_mov_b64 exec, -1")
            a("L_ready:")
            self.tailblocks.append(f"L_giveup:\ns_waitcnt vmcnt(0)\nv_mov_b32 v8, {L_PL + 256}\nv_mov_b32 v9, 1\nds_write_b32 v8, v9\ns_branch L_polled")
        a("s_waitcnt lgkmcnt(0)")
        a("s_barrier")
        self.stamp(3)
        self.emit_build(pre, C, G)
        self.stamp(4, "s[94:95]")
        self.loop_state()
        a("s_waitcnt lgkmcnt(0)")
        a(f"v_mov_b32 v{V_X if o['peel'] else V_T}, {L_PL + 256}")
        a("s_barrier")
        if o["peel"]:
            self.peel()
            if max(p[1] for p in self.pol):
                self.prefetch(24, "L_pf2")
            for x in self.dma_advance(first=True):
                a(x)
            a(f"s_add_u32 s{S_OOFF}, s{S_OOFF}, {256*TB}")
            self.stamp(5)
            a("s_waitcnt lgkmcnt(0)")
            a("s_barrier")
            if o["links"] is None:
                a(f"s_cmp_lg_u32 s{S_LINK}, 0")
                a("s_cbranch_scc1 L_loopnk_p3")
            a("s_branch L_loopn_p3")
        else:
            a(f"ds_read_b32 v{V_T}, v{V_T}")
            if o["links"] is None:
                a(f"s_cmp_lg_u32 s{S_LINK}, 0")
                a("s_cbranch_scc1 L_linked")
        self.main_loop(bool(o["links"]), "")
        a("L_fin:")
        if o["stamp"]:
            a(f"v_mbcnt_lo_u32_b32 v{V_LANE}, -1, 0\nv_mbcnt_hi_u32_b32 v{V_LANE}, -1, v{V_LANE}")
        self.stamp(6)
        if o["stamp"]:
            a("s_waitcnt vmcnt(0)")
            self.stamp(7)
            a("v_writelane_b32 v255, s100, 0")
            a(f"s_lshl_b32 s{S_T0}, s2, 2\ns_add_u32 s{S_T0}, s{S_T0}, s{S_WAVE}\ns_lshl_b32 s{S_T0}, s{S_T0}, 6")
            a(f"s_add_u32 s{S_T0}, s{S_T0}, {WSBYTES - 65536}")
            if o["trace"]:
                a(f"s_lshl_b32 s{S_T1}, s2, 2\ns_add_u32 s{S_T1}, s{S_T1}, s{S_WAVE}\ns_lshl_b32 s{S_T1}, s{S_T1}, 8")
                a(f"s_add_u32 s{S_T1}, s{S_T1}, {WSBYTES - 65536 - 262144}")
                a(f"v_lshl_add_u32 v8, v{V_LANE}, 2, s{S_T1}")
                a(f"buffer_store_dword v254, v8, {sr(S_WS,4)}, 0 offen")
                a("s_nop 1")
            a(f"v_lshl_add_u32 v254, v{V_LANE}, 2, s{S_T0}")
            a("s_mov_b32 exec_lo, 0xffff\ns_mov_b32 exec_hi, 0")
            a(f"buffer_store_dword v255, v254, {sr(S_WS,4)}, 0 offen")
            if o["diag"]:
                n1, n0, wg, mul = o["diag"]
                a(("s_cmp_lg_u32 s101, -1" if wg == "last" else f"s_cmp_lg_u32 s2, {wg}") + f"\ns_cbranch_scc1 L_end_{K}\ns_cmp_lg_u32 s{S_WAVE}, 0\ns_cbranch_scc1 L_end_{K}")
                a(f"v_readlane_b32 s60, v255, {n1}\nv_readlane_b32 s61, v255, {n0}\ns_nop 3\ns_sub_u32 s60, s60, s61\ns_mul_i32 s60, s60, {mul}")
                a("s_min_u32 s60, s60, 100000\ns_add_u32 s60, s60, 10000")
                a("L_diag:\ns_sleep 1\ns_memrealtime s[62:63]\ns_waitcnt lgkmcnt(0)\ns_sub_u32 s62, s62, s100\ns_cmp_lt_u32 s62, s60\ns_cbranch_scc1 L_diag")
        a(f"L_end_{K}:\ns_endpgm")
        self.flush_tail()
        if o["links"] is None:
            a("L_linked:")
            self.main_loop(True, "k")
            a("s_branch L_fin")
            self.flush_tail()
        self.slow_path(K)
        a('.section .rodata,"a"\n.p2align 6')
        if not o["fused"]:
            self.descriptor("prep_kernel", 128, 128)
            a(".p2align 6")
        self.descriptor(K, 512, 256)
        return "\n".join(self.L) + "\n"


if __name__ == "__main__":
    opts = eval("dict(" + (sys.argv[2] if len(sys.argv) > 2 else "") + ")")
    out = sys.argv[1] if len(sys.argv) > 1 else "cdna_kernels/" + NAME + ".s"
    open(out, "w").write(Gen(**opts).gen())
```

```python
import sys

NAME = "standalone__structured_sparse_n_m__ragged"
TB = 18432
TBL = TB + 128
NB = 8
CNT_OFF = 0x60000
MB_OFF = 0x68000
FL_OFF = 0x70000
CLEARER = 24
PRIV0 = 2
XBYTES = 75497472
WBYTES = 663552
WSBYTES = 301989888
A_OFF = 0
I_OFF = 331776
I8_OFF = I_OFF + 36864
R1_OFF = I8_OFF + 5120
R8_OFF = R1_OFF + 9216
COPY = 393216
NTASK = 41
L_WV = NB * TBL
WV_SZ = 3584
O_X, O_K, O_M, O_BIAS, O_IDX = 64, 384, 704, 1024, 1792
L_PL = L_WV + 4 * WV_SZ
LDS_BYTES = 163840
assert L_PL + 512 <= LDS_BYTES and L_WV % 256 == 0 and WV_SZ % 256 == 0

V_RD0, V_RD1, V_TAB, V_DMA, V_ST, V_ST8, V_BP, V_LANE = 0, 1, 2, 3, 4, 5, 6, 7
V_ACC = 8
V_B = 44
V_BR = 76
V_P = 92
V_T = 108
V_P8 = 112
V_X = 114
V_AD = 118
V_I = 138
V_I8 = 174
V_IR = 179
V_A = 186
S_X, S_OUT, S_WS, S_W, S_B, S_DBG = 16, 20, 24, 28, 32, 36
S_WAVE = 40
S_IT, S_BUF, S_DELTA, S_M0B, S_XOFF, S_OOFF = 41, 42, 43, 44, 45, 46
S_T0, S_T1 = 47, 3
S_MASK = 48
S_EVEN, S_ODD = 80, 82
S_TASK, S_TEND, S_BASE, S_MODE, S_CONT = 84, 85, 86, 87, 88
S_BAD = 90
S_MORE, S_LINK = 78, 89
S_C0 = 93
S_BUFN, S_CTB, S_OINC, S_XOFF5, S_M05, S_M0W, S_HALF = 4, 5, 6, 7, 8, 9, 10
S_NMASK = 12
S_WMASK, S_WMASK2 = 92, 87
S_XINC, S_OINC2, S_NT = 13, 14, 15
S_Q, S_CL, S_CB, S_K5, S_CL0, S_CT, S_W0 = 48, 56, 57, 58, 59, 60, 62
S_LIM, S_THR = 64, 65
V_C = 7
S_DMASK, S_NB0 = 85, 88


def vr(b, n=1):
    return f"v{b}" if n == 1 else f"v[{b}:{b+n-1}]"


def sr(b, n=1):
    return f"s{b}" if n == 1 else f"s[{b}:{b+n-1}]"


def afrag(s, t):
    f = 9 * s + t
    return f"a[{4*f}:{4*f+3}]" if f < 64 else vr(V_A + 4 * (f - 64), 4)


def aidx(s, t):
    if t < 8:
        return V_I + 4 * s + (t >> 1), t & 1
    return V_I8 + (s >> 1), s & 1


BBUF = [0, 1, 2, 3, 0, 1, 0, 2, 3]
PEEL_T = [8, 0, 1, 2, 3, 4, 5, 6, 7]
RT = [[0, 1], [1, 2, 3], [3, 4, 5], [5, 6, 7], [7, 8]]


class Op:
    def __init__(self, text, kind, rd=(), wr=(), tag=""):
        self.text, self.kind, self.rd, self.wr, self.tag = text, kind, set(rd), set(wr), tag


def rng(b, n):
    return range(b, b + n)


class Gen:
    def __init__(self, **o):
        self.o = dict(fused=True, ld="nt", st="sc1", bperm=True, grp=None, nb0=None, gsh=3, gsh2=6, split=0, dyn=(10, 3), psh=6, peel=True, ptail=1, psch=True, n2in=4, midg=(12, 34, 58, 82, 106, 126), vcap=18, stp=None, stt=None, ste=None, mbg=64, cwg=46, dwg=20, wbl2=None, stn=None, pad=0, swp=(0, 0, 0), dropm=(), st8='', stc=None, stamp=False, nodma=False, wl="sc1", ws="sc1",
                      vmw=20, lper=9, drop=(), cyc=False, links=None, ng4=8, px=2, maxpoll=20015, warm=True, bcast=True, l0=12, lw=2, cwarm=True, othr=96, st2=False, pil=True, pfl=False, ldw='nt', ldc='', pfd=2, bias0=True, ldp=None, ptouch=False, pspread=True, pfw=(3, 1, 0, 0), wtouch=False, bar2=True, early=True, ltail=24, coal=True, rpos=(18, 35, 50, 63, 75), rposl=(18, 36, 52, 66, 78),
                      lead=8, stg=(9, 16, 23, 30, 37), dmag=(44, 52, 60, 63, 66), gsp=2, eager=99, verbose=False, hack=None, diag=None, sig=4, psleep=0, pl='sc1', fs='sc1', isort=False, trace=False, chain=True, ord1=(0,1,4,5,6,2,3,7,8), ord2=(0,4,5,1,6,7,2,3,8), align2=True, order='hp')
        self.o.update(o)
        if self.o["grp"] is None and self.o["nb0"] is None:
            self.o.update(grp=[(3, 2, 2), (8, 0, 5), (3, 2, 2)])
        grp = self.o["grp"] or [(self.o["nb0"], 0, 0)] * 2
        if len(grp) != 6:
            grp = list(grp[:-1]) * (4 // (len(grp) - 1)) + [grp[-1]] * 2
        sp = self.o["split"]
        if sp:
            self.o["gsh"], self.o["gsh2"] = 0, 3
        self.pol, self.nt = [], []
        self.mid = []
        for c, (n1, n2, its) in enumerate(grp):
            self.mid.append(n1[1] if isinstance(n1, tuple) else 0)
            n1 = sum(n1) if isinstance(n1, tuple) else n1
            nt = 16 + (sp if c % 2 == 0 else -sp)
            nb = n1 + n2
            its = list(its) if isinstance(its, (list, tuple)) else [its]
            while len(its) < nt - nb:
                its.append(its[-1] + 1)
            assert len(its) == nt - nb and all(nb + n - 7 <= i <= nb + n - 2 for n, i in enumerate(its)) and n1 >= 1, (n1, n2, its)
            self.pol.append((n1, n2, its))
            self.nt.append(nt)
        self.dyn = self.o["dyn"]
        if self.dyn:
            NS, LK = self.dyn
            self.cl0 = NS - LK - 1
            assert not sp and all(its[NS - 1 - n1 - n2] == self.cl0 and its[-1] == 15 - LK for n1, n2, its in self.pol) and self.cl0 >= 1
        self.n2min = min(p[1] for p in self.pol)
        self.premin = min(p[0] - m for p, m in zip(self.pol, self.mid))
        assert not max(self.mid) or (self.o["peel"] and self.premin >= 2 and max(self.mid) <= len(self.o["midg"]))
        req = []
        for (n1, n2, its), nt in zip(self.pol, self.nt):
            r = [63] * nt
            for tile in range(n1, nt):
                i = tile - 1
                a0 = (1 if self.o["peel"] else -1) if tile < n1 + n2 else its[tile - n1 - n2]
                r[i] = sum(10 if j in its else 5 for j in range(a0 + 1, i + 1)) + 5 * max(0, n1 + n2 - 1 - tile)
                if a0 < 0:
                    r[i] -= 5
            if self.o["peel"]:
                assert n1 >= 3 and its[0] >= 2 and not sp
            elif self.o["early"]:
                r[0] = min(r[0], 5 * n2 + (5 if 0 in its else 0))
            if self.dyn:
                r = r[:self.cl0] + [5 * (self.dyn[1] - 1)]
            req.append(r)
        low = sorted({x for r in req for x in r if x < self.o["vmw"]})
        self.wlo = low[0] if low else 0
        best = None
        for hi in low or [0]:
            cost = sum(x - (hi if x >= hi else self.wlo) for r in req[:4] for x in r[1:] if x < self.o["vmw"])
            if best is None or cost < best[0]:
                best = (cost, hi)
        self.whi = best[1]
        self.wmask = [sum(1 << (i + 1) for i, x in enumerate(r) if x < self.o["vmw"]) for r in req]
        self.wmask2 = [sum(1 << (i + 1) for i, x in enumerate(r) if x < self.whi) for r in req]
        self.req = req
        self.L = []
        self.tailblocks = []

    def a(self, s):
        self.L.extend(s.split("\n"))

    def entry(self, label, nwg):
        a = self.a
        a(f".globl {label}\n.p2align 8\n.type {label},@function\n{label}:")
        a("s_load_dwordx8 s[4:11], s[0:1], 0")
        a("s_load_dwordx4 s[12:15], s[0:1], 32")
        a(f"s_cmp_ge_u32 s2, {nwg}")
        a(f"s_cbranch_scc1 L_end_{label}")
        if self.o["stamp"]:
            a("s_memrealtime s[100:101]")
        a("v_lshlrev_b32 v3, 7, v0")
        if self.o["cwarm"]:
            a("s_getpc_b64 s[96:97]")
            a(f"v_min_u32 v2, L_slow-{label}, v3")
            a(f"global_load_dword v120, v2, s[96:97] {self.o['ldc']}")
        if self.o["wtouch"]:
            a(f"s_lshr_b32 s{S_T0}, s2, 3")
            a(f"s_mul_i32 s{S_T0}, s{S_T0}, {162*128}")
            a(f"v_add_u32 v3, s{S_T0}, v3")
            a(f"v_min_u32 v3, {WBYTES-128}, v3")
            a(f"s_and_b32 s{S_T0}, s2, {8 - self.o['px']}")
            a("s_waitcnt lgkmcnt(0)")
            a(f"s_cbranch_scc1 L_nt_{label}")
            a(f"global_load_dword v121, v3, s[6:7] {self.o['ldw']}")
            a(f"L_nt_{label}:")
        a("v_lshrrev_b32 v1, 6, v0")
        a(f"v_and_b32 v{V_LANE}, 63, v0")
        a(f"v_readfirstlane_b32 s{S_WAVE}, v1")

    def mb_addr(self, d, t):
        a = self.a
        a(f"s_lshr_b32 s{d}, s2, 4")
        a(f"s_and_b32 s{t}, s2, 7")
        a(f"s_lshl3_add_u32 s{d}, s{d}, s{t}")
        a(f"s_and_b32 s{t}, s2, 8")
        a(f"s_lshl4_add_u32 s{d}, s{t}, s{d}")
        a(f"s_lshl_b32 s{d}, s{d}, 7")
        a(f"s_add_u32 s{d}, s{d}, {MB_OFF}")

    def ptouch(self):
        if self.o["ptouch"]:
            a = self.a
            a("s_mov_b64 exec, 1")
            a(f"s_mov_b32 s{S_T0}, {MB_OFF + 0x8000}")
            a(f"buffer_load_dword v122, off, {sr(S_WS,4)}, s{S_T0} sc1")
            a(f"buffer_load_dword v123, off, {sr(S_DBG,4)}, 0 sc1")
            a("s_mov_b64 exec, -1")

    def srds(self, which):
        for srd, p, size in ((S_W, 6, WBYTES), (S_X, 4, XBYTES), (S_WS, 14, WSBYTES), (S_B, 8, 1152), (S_OUT, 10, 0), (S_DBG, 12, 256)):
            if srd in which:
                self.a(f"s_mov_b32 s{srd+2}, {size}")
                self.a(f"s_mov_b32 s{srd+3}, 0x20000")
                self.a(f"s_mov_b32 s{srd}, s{p}")
                self.a(f"s_and_b32 s{srd+1}, s{p+1}, 0xffff")

    def entry_wait(self, first=None):
        lst = (S_W, S_X, S_WS, S_B, S_OUT, S_DBG)
        if first is not False:
            self.a("s_waitcnt lgkmcnt(0)")
        self.srds(lst if first is None else (lst[:1] if first else lst[1:]))

    def producer(self, sfx, generic):
        a = self.a
        ws = self.o["ws"]
        W, Z, K = 8, 24, 28
        OA, NB_, IX = 36, 44, 48
        VL, VA, VI, VM0, VM1, VSEL, CJ = 50, 51, 52, 53, 54, 55, 56
        F0, F1, H, U, T0, T1, T2, VLI, VA2, VLD, VLR = 58, 59, 60, 61, 62, 63, 64, 65, 66, 67, 57
        C = S_MASK
        SEL = S_MASK + 16
        CNT = S_MASK + 27
        ln = f"v{V_LANE}"
        a(f"s_and_b32 s{C}, s{S_TASK}, 3")
        a(f"s_lshr_b32 s{C+1}, s{S_TASK}, 2")
        a(f"s_sub_u32 s{C+2}, s{S_TASK}, 36")
        a(f"s_lshl_b32 s{C+3}, s{S_WAVE}, 4")
        a(f"s_lshl_b32 s{C+4}, s{C+2}, 1")
        a(f"s_lshl_b32 s{C+5}, s{C}, 8")
        a(f"s_cmp_lt_u32 s{S_TASK}, 36")
        a(f"s_cselect_b32 s{C+4}, s{C+1}, s{C+4}")
        a(f"s_cselect_b32 s{C+5}, s{C+5}, 1024")
        a(f"s_cselect_b32 s{C+6}, 8, 73728")
        a(f"s_cselect_b32 s{C+7}, 32, 8")
        a(f"s_cselect_b32 s{C+8}, 16, 32")
        a(f"s_cselect_b32 s{C+9}, 128, 64")
        a(f"s_mul_i32 s{C+4}, s{C+4}, 73728")
        a(f"s_mul_i32 s{C+10}, s{S_WAVE}, 18432")
        a(f"v_and_b32 v{F0}, 1, {ln}")
        a(f"v_bfe_u32 v{F1}, {ln}, 1, 1")
        a(f"v_bfe_u32 v{H}, {ln}, 2, 2")
        a(f"v_bfe_u32 v{T0}, {ln}, 4, 1")
        a(f"v_lshrrev_b32 v{T1}, 5, {ln}")
        a(f"v_lshl_add_u32 v{VL}, v{F0}, 2, s{C+4}")
        a(f"v_mad_u32_u24 v{VL}, v{F1}, s{C+6}, v{VL}")
        a(f"v_mad_u32_u24 v{VL}, v{H}, s{C+7}, v{VL}")
        a(f"v_mad_u32_u24 v{VL}, v{T0}, s{C+8}, v{VL}")
        a(f"v_mad_u32_u24 v{VL}, v{T1}, s{C+9}, v{VL}")
        a(f"v_add_u32 v{VL}, s{C+5}, v{VL}")
        a(f"v_add_u32 v{VL}, s{C+10}, v{VL}")
        a(f"v_add_u32 v{T0}, 4608, v{VL}")
        a(f"v_add_u32 v{T1}, 9216, v{VL}")
        a(f"v_add_u32 v{T2}, 13824, v{VL}")
        if not generic:
            self.entry_wait(first=True)
        for q in range(4):
            for j in range(4):
                a(f"buffer_load_dword v{W+4*q+j}, v{(VL, T0, T1, T2)[q]}, {sr(S_W,4)}, 0 offen offset:{1152*j} {'' if generic else self.o['ldw']}")
        if not generic:
            self.stamp(8)
            self.entry_wait(first=False)
            self.ptouch()
        a(f"s_mul_i32 s{C+4}, s{C}, 9")
        a(f"s_add_u32 s{C+4}, s{C+4}, s{C+1}")
        a(f"s_mul_i32 s{C+5}, s{C+4}, 9")
        a(f"s_mul_i32 s{C+6}, s{C+2}, 18")
        a(f"s_add_u32 s{C+6}, s{C+6}, 8")
        a(f"s_lshl_b32 s{C+7}, s{C+4}, 2")
        a(f"s_add_u32 s{C+7}, s{C+7}, s{S_WAVE}")
        a(f"s_lshl_b32 s{C+8}, s{C+2}, 2")
        a(f"s_add_u32 s{C+8}, s{C+8}, s{S_WAVE}")
        a(f"s_cmp_eq_u32 s{S_TASK}, 40")
        a(f"s_cselect_b32 s{C+9}, 0x100000, 9")
        a(f"s_cmp_lt_u32 s{S_TASK}, 36")
        a(f"s_cselect_b32 s{C+5}, s{C+5}, s{C+6}")
        a(f"s_cselect_b32 s{C+6}, 2, 81")
        a(f"s_cselect_b32 s{C+9}, 1, s{C+9}")
        a(f"s_cselect_b32 s{C+7}, s{C+7}, s{C+8}")
        a(f"s_mov_b32 s{C+8}, {I_OFF}")
        a(f"s_cselect_b32 s{C+8}, s{C+8}, {I8_OFF}")
        a(f"s_mov_b32 s{C+10}, {R1_OFF}")
        a(f"s_cselect_b32 s{C+10}, s{C+10}, {R8_OFF}")
        a(f"s_cselect_b32 s{C+11}, 16, 4")
        a(f"s_cselect_b32 s{C+12}, 4, 64")
        a(f"s_cselect_b32 s{C+13}, 12, 11")
        a(f"s_cselect_b32 s{C+14}, 1, 0x8001")
        a(f"v_lshrrev_b32 v{U}, 4, {ln}")
        a(f"v_lshlrev_b32 v{T0}, 1, v{F0}")
        a(f"v_lshl_add_u32 v{H}, v{H}, 2, v{T0}")
        a(f"v_add_u32 v{T0}, v{H}, v{F1}")
        a(f"v_mul_u32_u24 v{VA}, s{C+6}, v{U}")
        a(f"v_add_lshl_u32 v{VA}, v{VA}, s{C+5}, 6")
        a(f"v_add3_u32 v{VA}, v{VA}, v{T0}, s{C+3}")
        a(f"v_lshl_add_u32 v{VA}, v{VA}, 4, s{S_BASE}")
        a(f"s_lshl_b32 s{C+9}, s{C+9}, 10")
        a(f"v_add_u32 v{VA2}, s{C+9}, v{VA}")
        a(f"s_lshl_b32 s{C+4}, s{C+7}, 8")
        a(f"s_add_u32 s{C+4}, s{C+4}, s{C+8}")
        a(f"s_add_u32 s{C+4}, s{C+4}, s{S_BASE}")
        a(f"v_mul_u32_u24 v{VI}, s{C+11}, v{T0}")
        a(f"v_mad_u32_u24 v{VI}, v{U}, s{C+12}, v{VI}")
        a(f"v_lshl_add_u32 v{VM1}, {ln}, 2, s{C+4}")
        if not generic:
            a(f"s_lshr_b32 s{C+4}, s{C+7}, 2")
            a(f"s_lshl_b32 s{C+4}, s{C+4}, 8")
            a(f"s_add_u32 s{C+10}, s{C+10}, s{C+4}")
            a(f"s_lshl2_add_u32 s{C+10}, s{C+3}, s{C+10}")
            a(f"s_lshl_b32 s{C+4}, s{C+3}, 1")
            a(f"s_add_u32 s{C+4}, s{C+4}, s{C+14}")
            a(f"v_lshl_add_u32 v{T0}, v{U}, 1, v{F1}")
            a(f"v_lshlrev_b32 v{T0}, s{C+13}, v{T0}")
            a(f"v_lshl_add_u32 v{VM0}, v{H}, 7, v{T0}")
            a(f"v_add_u32 v{VM0}, s{C+4}, v{VM0}")
            a(f"v_and_b32 v{T0}, 12, {ln}")
            a(f"v_and_b32 v{T1}, 15, {ln}")
            a(f"v_mad_u32_u24 v{T0}, v{T0}, 3, v{T1}")
            a(f"v_lshl_add_u32 v{T0}, v{T0}, 2, s{C+3}")
            a(f"v_mov_b32 v{VLD}, 0")
            a(f"ds_write_b32 v{T0}, v{VLD}")
            a(f"s_lshl2_add_u32 s{C+4}, s{S_TASK}, s{S_WAVE}")
            a(f"s_lshl_b32 s{C+4}, s{C+4}, 7")
            a(f"s_add_u32 s{C+4}, s{C+4}, {CNT_OFF - 64}")
            a(f"v_lshl_add_u32 v{VLI}, {ln}, 2, s{C+10}")
            a(f"v_lshl_add_u32 v{T0}, {ln}, 2, s{C+4}")
            a(f"v_cmp_gt_u32 vcc, 16, {ln}")
            a(f"s_lshl_b32 s{C+4}, s{C+3}, 2")
            a(f"v_lshl_add_u32 v{VLR}, {ln}, 2, s{C+4}")
            a(f"v_cndmask_b32 v{VLI}, v{T0}, v{VLI}, vcc")
            if self.o["sig"] == 3:
                self.mb_addr(C + 4, C + 5)
                a(f"s_sub_u32 s{C+4}, s{C+4}, 192")
                a(f"v_cmp_gt_u32 vcc, 48, {ln}")
                a(f"v_lshl_add_u32 v{T0}, {ln}, 2, s{C+4}")
                a("s_nop 0")
                a(f"v_cndmask_b32 v{VLI}, v{T0}, v{VLI}, vcc")
            a(f"s_mov_b32 s{CNT}, 0")
            a(f"s_mov_b32 s{SEL+9}, 0x05060100")
            a(f"s_mov_b32 s{SEL+10}, 0xffff")
        a(f"v_mov_b32 v{VSEL}, 0x05040100")
        a(f"v_mov_b32 v{T0}, 0x03020706")
        a(f"v_cmp_eq_u32 vcc, 1, v{F1}")
        CJ, EF, EO = 68, 76, 82
        for n in range(8):
            a(f"v_mov_b32 v{CJ+n}, {hex(0x0f0a0500 | 0x01010101 * (((n >> 1) << 4) | ((n & 1) << 7)))}")
        a(f"v_cndmask_b32 v{VSEL}, v{VSEL}, v{T0}, vcc")
        if not generic:
            for r in range(3):
                a(f"v_mov_b64 {vr(EF+2*r,2)}, 0")
            a(f"v_mov_b32 v{EO}, 0")
        for c in range(2):
            for j in range(4):
                a(f"s_mov_b32 s{SEL+4*c+j}, {hex(((5+2*c) << 24) | ((4+2*c) << 16) | ((5+2*c) << 8) | j)}")
        a(f"s_mov_b32 s{SEL+8}, 0x05060102")
        if generic:
            a(f"s_cmp_lg_u32 s{S_MODE}, 0")
        sw = "src0_sel:WORD_1 src1_sel:WORD_1"
        for q in range(4):
            a(f"s_waitcnt vmcnt({12-4*q + (2 if self.o['ptouch'] and not generic else 0)})")
            if q in (0, 3) and not generic:
                self.stamp(9 + q // 3)
            for c in range(2):
                n = 2 * q + c
                for j in range(4):
                    a(f"v_perm_b32 v{Z+j}, v{W+4*q+j}, v{CJ+n}, s{SEL+4*c+j}")
                a(f"v_max3_f32 v{K}, |v{Z}|, |v{Z+1}|, |v{Z+2}|")
                a(f"v_med3_f32 v{K+1}, |v{Z}|, |v{Z+1}|, |v{Z+2}|")
                a(f"v_min3_f32 v{K+2}, |v{Z}|, |v{Z+1}|, |v{Z+2}|")
                a(f"v_med3_f32 v{K+4}, v{K}, v{K+1}, |v{Z+3}|")
                a(f"v_med3_f32 v{K+5}, v{K+1}, v{K+2}, |v{Z+3}|")
                a(f"v_max_f32 v{K+3}, v{K}, |v{Z+3}|")
                if generic:
                    a(f"v_cmp_eq_u32_sdwa vcc, v{K+5}, v{K+4} {sw}")
                    a(f"s_cbranch_scc0 L_rb{n}{sfx}")
                    a(f"v_min_f32 v{K+2}, v{K+2}, |v{Z+3}|")
                    a(f"v_cndmask_b32 v{K+3}, 0, v{K+5}, vcc")
                    a(f"v_cmp_eq_u32_sdwa vcc, v{K+2}, v{K+4} {sw}")
                    a("s_nop 1")
                    a(f"v_cndmask_b32 v{K+4}, 0, v{K+2}, vcc")
                    a(f"L_rb{n}{sfx}:")
                a(f"v_perm_b32 v{OA+4*c+q}, v{K+3}, v{K+4}, s{SEL+8}")
                nb = NB_ + 2 * c + (q >> 1)
                if q & 1 == 0:
                    a(f"v_bfi_b32 v{nb}, 3, v{K+4}, v{K+3}")
                else:
                    a(f"v_bfi_b32 v{K+3}, 3, v{K+4}, v{K+3}")
                    a(f"v_lshlrev_b32 v{K+3}, 4, v{K+3}")
                    a(f"v_bfi_b32 v{nb}, 15, v{nb}, v{K+3}")
                if not generic:
                    a(f"v_cmpx_eq_u32_sdwa vcc, v{K+5}, v{K+4} {sw}")
                    if n >= 3:
                        a(f"v_or_b32 v{EO}, v{EO}, v{EF+4}")
                    if n >= 2:
                        a(f"v_mov_b64 {vr(EF+4,2)}, {vr(EF+2,2)}")
                    if n >= 1:
                        a(f"v_mov_b64 {vr(EF+2,2)}, {vr(EF,2)}")
                    a(f"v_mov_b32 v{EF}, v{K+5}")
                    a(f"v_min_f32 v{EF+1}, v{K+2}, |v{Z+3}|")
                    a("s_mov_b64 exec, -1")
        x2 = "quad_perm:[2,3,0,1] row_mask:0xf bank_mask:0xf"
        a("s_mov_b32 vcc_lo, 0x33333333")
        a("s_mov_b32 vcc_hi, 0x33333333")
        for d in range(4):
            a(f"v_cndmask_b32_dpp v{Z+d}, v{OA+4+d}, v{OA+d}, vcc {x2}")
        a("s_not_b64 vcc, vcc")
        a(f"buffer_store_dwordx4 {vr(Z,4)}, v{VA}, {sr(S_WS,4)}, 0 offen {ws}")
        for d in range(4):
            a(f"v_cndmask_b32_dpp v{OA+4+d}, v{OA+d}, v{OA+4+d}, vcc {x2}")
        a(f"s_mov_b32 s{C+4}, 0x0c0c0400")
        a(f"s_mov_b32 s{C+5}, 0x04000c0c")
        a(f"buffer_store_dwordx4 {vr(OA+4,4)}, v{VA2}, {sr(S_WS,4)}, 0 offen {ws}")
        a(f"v_perm_b32 v{IX}, v{NB_+1}, v{NB_}, s{C+4}")
        a(f"v_perm_b32 v{IX+1}, v{NB_+3}, v{NB_+2}, s{C+5}")
        a(f"v_or_b32 v{IX}, v{IX}, v{IX+1}")
        a("s_nop 1")
        a(f"v_mov_b32_dpp v{IX+1}, v{IX} quad_perm:[2,3,0,1] row_mask:0xf bank_mask:0xf")
        a(f"v_perm_b32 v{IX}, v{IX+1}, v{IX}, v{VSEL}")
        a(f"ds_permute_b32 v{IX}, v{VI}, v{IX}")
        if generic:
            a("s_waitcnt lgkmcnt(0)")
            a(f"buffer_store_dword v{IX}, v{VM1}, {sr(S_WS,4)}, 0 offen {ws}")
        if not generic:
            self.stamp(11)
            a(f"v_cmp_lt_u32 {sr(C+6,2)}, s{SEL+10}, v{EO}")
            a(f"L_emit{sfx}:")
            a(f"v_cmp_lt_u32 vcc, s{SEL+10}, v{EF}")
            a(f"v_cmp_eq_u32_sdwa {sr(C,2)}, v{EF+1}, v{EF} {sw}")
            a(f"v_perm_b32 v{T1}, v{EF}, v{VM0}, s{SEL+9}")
            a(f"v_bfe_u32 v{T0}, v{EF}, 2, 4")
            a(f"v_and_b32 v{T2}, 0x80, v{EF}")
            a(f"v_lshl_add_u32 v{T1}, v{T0}, 1, v{T1}")
            a(f"v_mbcnt_lo_u32_b32 v{T0}, vcc_lo, 0")
            a(f"v_mbcnt_hi_u32_b32 v{T0}, vcc_hi, v{T0}")
            a(f"v_add_u32 v{T1}, v{T2}, v{T1}")
            a(f"v_add_u32 v{T0}, s{CNT}, v{T0}")
            a(f"s_bcnt1_i32_b64 s{C+4}, vcc")
            a(f"s_add_u32 s{CNT}, s{CNT}, s{C+4}")
            a(f"v_cmp_gt_u32 {sr(C+4,2)}, 15, v{T0}")
            a(f"v_and_b32 v{T2}, 12, v{T0}")
            a(f"v_mad_u32_u24 v{T0}, v{T2}, 3, v{T0}")
            a(f"v_lshl_add_u32 v{T0}, v{T0}, 2, s{C+3}")
            a(f"s_and_b64 {sr(C,2)}, {sr(C,2)}, vcc")
            a(f"s_and_b64 exec, {sr(C+4,2)}, vcc")
            a(f"ds_write_b32 v{T0}, v{T1}")
            a(f"s_mov_b64 exec, {sr(C,2)}")
            a(f"v_mov_b32 v{EF}, v{EF+1}")
            a(f"v_mov_b32 v{EF+1}, 0")
            a(f"s_not_b64 exec, exec")
            a(f"v_mov_b64 {vr(EF,2)}, {vr(EF+2,2)}")
            a(f"v_mov_b64 {vr(EF+2,2)}, {vr(EF+4,2)}")
            a(f"v_mov_b64 {vr(EF+4,2)}, 0")
            a("s_mov_b64 exec, -1")
            a(f"v_or3_b32 v{T0}, v{EF}, v{EF+2}, v{EF+4}")
            a(f"v_cmp_lt_u32 vcc, s{SEL+10}, v{T0}")
            a(f"s_cmp_lg_u64 {sr(C+6,2)}, 0")
            a(f"s_cselect_b32 s{C+4}, 99, s{CNT}")
            a(f"s_cmp_gt_u32 s{C+4}, 15")
            a(f"s_cselect_b32 s{C+4}, -1, 0")
            a(f"v_mov_b32 v{T1}, s{C+3}")
            a(f"s_cbranch_vccnz L_emit{sfx}")
            a(f"v_mov_b32 v{T0}, s{C+4}")
            a(f"ds_write_b32 v{T1}, v{T0} offset:204")
            if self.o["sig"] == 4:
                a(f"v_lshlrev_b32 v{W+3}, 4, v{T1}")
            a("s_waitcnt lgkmcnt(0)")
            a("s_barrier")
            a("s_mov_b64 exec, 0xffff")
            a(f"ds_read_b32 v{VLD}, v{VLR}")
            a("s_mov_b64 exec, -1")
            a(f"buffer_store_dword v{IX}, v{VM1}, {sr(S_WS,4)}, 0 offen {ws}")
            if self.o["sig"] != 3:
                a("s_mov_b32 exec_hi, 0xffff")
            a("s_waitcnt lgkmcnt(0)")
            a(f"buffer_store_dword v{VLD}, v{VLI}, {sr(S_WS,4)}, 0 offen {ws}")
            if self.o["sig"] == 4:
                a("s_mov_b64 exec, 1")
                a(f"buffer_load_dword v{W}, v{W+3}, {sr(S_DBG,4)}, 0 offen sc1")
            a("s_mov_b64 exec, -1")
            if self.o["sig"] == 4:
                a(f"s_lshl_b32 s{C+4}, s{S_TASK}, 7")
                a(f"s_add_u32 s{C+4}, s{C+4}, {FL_OFF}")
                a(f"v_lshl_add_u32 v{W+1}, {ln}, 2, s{C+4}")
                a(f"v_mov_b32 v{W+2}, 1")
            self.stamp(12)
        a("s_waitcnt vmcnt(0)")
        if not generic:
            self.stamp(13)

    def lane_setup(self):
        a = self.a
        ln = f"v{V_LANE}"
        T0, T1, T2 = 72, 73, 74
        a(f"v_lshrrev_b32 v{T0}, 3, {ln}")
        a(f"v_and_b32 v{T1}, 7, {ln}")
        a(f"v_xor_b32 v{T1}, v{T1}, v{T0}")
        a(f"v_mul_u32_u24 v{T0}, 1152, v{T0}")
        a(f"s_and_b32 s{S_T0}, s{S_WAVE}, 1")
        a(f"s_mul_i32 s{S_T0}, s{S_T0}, 9216")
        a(f"s_lshr_b32 s{S_T1}, s{S_WAVE}, 1")
        a(f"s_lshl_b32 s{S_T1}, s{S_T1}, 7")
        a(f"s_add_u32 s{S_T0}, s{S_T0}, s{S_T1}")
        a(f"v_lshl_add_u32 v{T0}, v{T1}, 4, v{T0}")
        a(f"v_add_u32 v{V_DMA}, s{S_T0}, v{T0}")
        a(f"s_lshl_b32 s{S_M0B}, s{S_WAVE}, 10")
        if self.o["split"]:
            a(f"s_bitcmp1_b32 s2, 0")
            a(f"s_cselect_b32 s{S_XOFF}, 256, 1")
            a(f"s_add_u32 s{S_XOFF}, s{S_XOFF}, s2")
            a(f"s_mul_i32 s{S_XOFF}, s{S_XOFF}, {TB}")
        else:
            a(f"s_mul_i32 s{S_XOFF}, s2, {TB}")
        a(f"s_mov_b32 s{S_OOFF}, s{S_XOFF}")

    def lane_setup2(self):
        a = self.a
        ln = f"v{V_LANE}"
        T0, T1, T2 = 72, 73, 74
        a(f"v_and_b32 v{T0}, 15, {ln}")
        a(f"v_lshrrev_b32 v{T1}, 4, {ln}")
        a(f"v_and_b32 v{T2}, 7, {ln}")
        a(f"v_xor_b32 v{T2}, v{T2}, v{T1}")
        a(f"v_lshlrev_b32 v{T2}, 4, v{T2}")
        a(f"v_lshl_add_u32 v{V_RD0}, v{T0}, 7, v{T2}")
        a(f"v_xor_b32 v{V_RD1}, 64, v{V_RD0}")
        a(f"s_mul_i32 s{S_C0}, s{S_WAVE}, {WV_SZ}")
        a(f"s_add_u32 s{S_C0}, s{S_C0}, {L_WV}")
        a(f"v_lshl_add_u32 v{V_TAB}, v{T1}, 4, s{S_C0}")
        a(f"v_and_b32 v{T2}, 14, {ln}")
        a(f"v_mul_u32_u24 v{V_ST}, 1152, v{T2}")
        a(f"v_and_b32 v{T2}, 1, {ln}")
        a(f"v_lshl_add_u32 v{V_ST}, v{T2}, 4, v{V_ST}")
        a(f"v_lshl_add_u32 v{V_ST}, v{T1}, 5, v{V_ST}")
        a(f"s_lshl_b32 s{S_T0}, s{S_WAVE}, 8")
        a(f"v_add_u32 v{V_ST}, s{S_T0}, v{V_ST}")
        if self.o["hack"] == "q4":
            a(f"v_lshrrev_b32 v{T2}, 3, {ln}")
            a(f"v_mul_u32_u24 v{V_ST}, 2304, v{T2}")
            a(f"v_and_b32 v{T2}, 7, {ln}")
            a(f"v_lshl_add_u32 v{V_ST}, v{T2}, 4, v{V_ST}")
            a(f"v_add_u32 v{V_ST}, s{S_T0}, v{V_ST}")
        a(f"s_lshl_b32 s{S_T0}, s{S_WAVE}, 5")
        a(f"s_add_u32 s{S_T0}, s{S_T0}, 1024")
        if self.o["bperm"]:
            a(f"v_lshrrev_b32 v{T0}, 2, {ln}")
            a(f"v_and_b32 v{T1}, 3, {ln}")
            a(f"v_lshl_add_u32 v{V_BP}, v{T1}, 4, v{T0}")
            a(f"v_lshlrev_b32 v{V_BP}, 2, v{V_BP}")
        else:
            a(f"v_lshlrev_b32 v{V_BP}, 2, {ln}")
        a(f"v_mul_u32_u24 v{V_ST8}, 1152, v{T0}")
        a(f"v_lshl_add_u32 v{V_ST8}, v{T1}, 3, v{V_ST8}")
        a(f"v_add_u32 v{V_ST8}, s{S_T0}, v{V_ST8}")
        a(f"s_mov_b32 s{S_EVEN}, 0x55555555")
        a(f"s_mov_b32 s{S_EVEN+1}, 0x55555555")
        a(f"s_mov_b32 s{S_ODD}, 0xaaaaaaaa")
        a(f"s_mov_b32 s{S_ODD+1}, 0xaaaaaaaa")

    def dma_setup(self):
        a = self.a
        a(f"s_lshr_b32 s{S_T0}, s{S_WAVE}, 1")
        a(f"s_lshl_b32 s{S_T1}, s{S_T0}, 11")
        a(f"s_sub_u32 s{S_M05}, {16384-896}, s{S_T1}")
        a(f"s_lshl_b32 s{S_T1}, s{S_T0}, 7")
        a(f"s_add_u32 s{S_XOFF5}, s{S_XOFF}, 128")
        a(f"s_sub_u32 s{S_XOFF5}, s{S_XOFF5}, s{S_T1}")
        a(f"s_sub_u32 s{S_HALF}, s{S_T0}, 1")
        a(f"s_sub_u32 s{S_HALF+1}, 0, s{S_T0}")
        a(f"s_mov_b32 s{S_M0W}, s{S_M0B}")
        a(f"s_mov_b32 s{S_XINC}, {256*TB}")
        if self.o["split"]:
            a(f"s_bitcmp1_b32 s2, 0")
            a(f"s_cselect_b32 s{S_XINC}, s{S_XINC}, {-TB}")
            a(f"s_cselect_b32 s{S_NT}, 15, 17")
        else:
            a(f"s_mov_b32 s{S_NT}, 16")
        a(f"s_mov_b32 s{S_OINC2}, s{S_XINC}")

    def dma_advance(self, first=False):
        x = [] if first else [f"s_add_u32 s{S_XOFF}, s{S_XOFF}, {256*TB}", f"s_add_u32 s{S_XOFF5}, s{S_XOFF5}, {256*TB}",
                              f"s_add_u32 s{S_M0B}, s{S_M0B}, s{S_CTB}"]
        return x + [f"s_cmp_ge_u32 s{S_M0B}, {NB*TBL}", f"s_cselect_b32 s{S_M0B}, s{S_M0W}, s{S_M0B}"]

    def dma_tile(self, ld=None):
        a = self.a
        ld = self.o["ld"] if ld is None else ld
        for j in range(5):
            a(f"s_add_u32 m0, s{S_M0B}, {3840*j if j < 4 else 's%d' % S_M05}")
            a("s_nop 0" if j < 4 else f"s_mov_b64 exec, {sr(S_HALF,2)}")
            a(f"buffer_load_dwordx4 v{V_DMA}, {sr(S_X,4)}, s{S_XOFF if j < 4 else S_XOFF5} offen offset:{256*j if j < 4 else 896} {ld} lds")
        a("s_mov_b64 exec, -1")

    def prefetch(self, sh, lab="L_pf"):
        a = self.a
        a(f"s_bfe_u32 s{S_NB0}, s{S_DMASK}, {hex(4 << 16 | sh)}")
        if sh == 20 and self.o["pfw"]:
            k, n, ka, kp = self.o["pfw"]
            a(f"s_mov_b32 s{S_T1}, {k*TBL}")
            a(f"s_cmp_ge_u32 s{S_NB0}, 6")
            a(f"s_cselect_b32 s{S_T1}, s{S_T1}, {ka*TBL}")
            a(f"s_cmp_ge_u32 s{S_TASK}, {NTASK}")
            a(f"s_cselect_b32 s{S_T1}, s{S_T1}, {kp*TBL}")
        if sh != 20 and self.n2min == 0:
            a(f"s_cbranch_scc0 {lab}_e")
        a(f"{lab}:")
        self.dma_tile(self.o["ldp"] if sh == 20 else None)
        if sh == 20 and self.o["sig"] == 4 and self.o["fused"]:
            a(f"s_cmp_lg_u32 s{S_M0B}, {(min(3, self.premin)-1)*TBL}")
            a(f"s_cbranch_scc1 {lab}_f")
            a("s_mov_b64 exec, 1")
            a(f"buffer_load_dword v124, off, {sr(S_DBG,4)}, 0 sc1")
            a("s_mov_b64 exec, -1")
            a(f"{lab}_f:")
        if sh == 20 and self.o["pfw"]:
            n = self.o["pfw"][1]
            a(f"s_cmp_ge_u32 s{S_M0B}, s{S_T1}")
            a(f"s_cbranch_scc1 {lab}_n")
            a(f"s_waitcnt vmcnt({n})")
            a(f"{lab}_n:")
        a(f"s_add_u32 s{S_XOFF5}, s{S_XOFF5}, s{S_XINC}")
        a(f"s_add_u32 s{S_M0B}, s{S_M0B}, {TBL}")
        a(f"s_add_u32 s{S_XOFF}, s{S_XOFF}, s{S_XINC}")
        a(f"s_mov_b32 s{S_XINC}, {256*TB}")
        a(f"s_sub_u32 s{S_NB0}, s{S_NB0}, 1")
        a(f"s_cmp_lg_u32 s{S_NB0}, 0")
        a(f"s_cbranch_scc1 {lab}")
        a(f"{lab}_e:")

    def bias_load(self):
        a = self.a
        ln = f"v{V_LANE}"
        a(f"v_and_b32 v80, 3, {ln}")
        a(f"v_bfe_u32 v81, {ln}, 2, 2")
        a(f"v_bfe_u32 v82, {ln}, 4, 1")
        a("v_lshlrev_b32 v81, 3, v81")
        a("v_lshl_add_u32 v81, v80, 5, v81")
        a("v_lshl_add_u32 v81, v82, 7, v81")
        a(f"s_lshl_b32 s{S_T0}, s{S_WAVE}, 8")
        a(f"v_add_u32 v81, s{S_T0}, v81")
        a(f"s_lshl_b32 s{S_T0}, s{S_WAVE}, 5")
        a(f"s_add_u32 s{S_T0}, s{S_T0}, 1024")
        a(f"v_lshl_add_u32 v80, v80, 3, s{S_T0}")
        a(f"v_cmp_gt_u32 vcc, 32, {ln}")
        a("s_nop 1")
        a("v_cndmask_b32 v80, v80, v81, vcc")
        a(f"buffer_load_dwordx2 v[110:111], v80, {sr(S_B,4)}, 0 offen {self.o['ldc']}")

    def tables_init(self):
        a = self.a
        ln = f"v{V_LANE}"
        a(f"v_lshl_add_u32 v109, {ln}, 4, s{S_C0}")
        a(f"v_lshl_add_u32 v89, {ln}, 2, s{S_C0}")
        for r in range(4):
            a(f"v_mov_b32 v{76+r}, 0")
        a("v_mov_b32 v90, 0xdddddddd")
        a("ds_write_b128 v109, v[76:79]")
        for r in range(7):
            a(f"ds_write_b32 v89, v90 offset:{O_IDX+256*r}")
        a(f"s_lshl_b32 s{S_T0}, s{S_WAVE}, 2")
        a(f"s_add_u32 s{S_T0}, s{S_T0}, {L_PL + 256}")
        a(f"v_mov_b32 v88, s{S_T0}")
        a("ds_write_b32 v88, v76")

    def bias_store(self):
        return ["v_lshlrev_b32 v114, 16, v110", "v_and_b32 v115, 0xffff0000, v110", "v_lshlrev_b32 v116, 16, v111",
                "v_and_b32 v117, 0xffff0000, v111", "s_mov_b32 exec_hi, 15", f"ds_write_b128 v109, v[114:117] offset:{O_BIAS}",
                "s_mov_b64 exec, -1"]

    def wload_list(self, VA, VI8, pairs=False):
        wl = self.o["wl"]
        G = []
        so = S_C0 + 6
        cur = None
        for sp in range(5):
            g = []
            if sp == 4:
                g.append(f"s_mov_b32 s{so}, 4096")
            g.append(f"buffer_load_dword v{V_I8+sp}, v{VI8}, {sr(S_WS,4)}, {'s%d' % so if sp == 4 else '0'} offen offset:{1024*(sp%4)} {wl}")
            G.append(g)
        order = [(s, t) for s in range(9) for t in [None] + list(range(9))]
        if pairs:
            order = order[:70] + [(7, None), (8, None)] + [(s, t) for t in PEEL_T for s in (7, 8)]
        for s, t in order:
            if t is None:
                G.append([f"s_mov_b32 s{so-1}, {1024*s}",
                          f"buffer_load_dwordx4 {vr(V_I+4*s,4)}, v{VA+1}, {sr(S_WS,4)}, s{so-1} offen {wl}"])
            else:
                f = 9 * s + t
                g = []
                if cur != f >> 2:
                    cur = f >> 2
                    g.append(f"s_mov_b32 s{so}, {4096*cur}")
                g.append(f"buffer_load_dwordx4 {afrag(s,t)}, v{VA}, {sr(S_WS,4)}, s{so} offen offset:{1024*(f&3)} {wl}")
                G.append(g)
        return G

    def waddr(self, VA, VI8):
        a = self.a
        ln = f"v{V_LANE}"
        a(f"s_mul_i32 s{S_T0}, s{S_WAVE}, 82944")
        a(f"s_add_u32 s{S_T0}, s{S_T0}, s{S_BASE}")
        a(f"v_lshl_add_u32 v{VA}, {ln}, 4, s{S_T0}")
        a(f"s_mul_i32 s{S_T0}, s{S_WAVE}, 9216")
        a(f"s_add_u32 s{S_T0}, s{S_T0}, s{S_BASE}")
        a(f"s_add_u32 s{S_T0}, s{S_T0}, {I_OFF}")
        a(f"v_lshl_add_u32 v{VA+1}, {ln}, 4, s{S_T0}")
        a(f"s_lshl_b32 s{S_T0}, s{S_WAVE}, 6")
        a(f"s_add_u32 s{S_T0}, s{S_T0}, s{S_BASE}")
        a(f"s_add_u32 s{S_T0}, s{S_T0}, {I8_OFF}")
        a(f"v_and_b32 v{VI8}, 15, {ln}")
        a(f"v_lshl_add_u32 v{VI8}, v{VI8}, 2, s{S_T0}")
        a(f"v_lshrrev_b32 v{VI8+1}, 4, {ln}")
        a(f"v_lshl_add_u32 v{VI8}, v{VI8+1}, 8, v{VI8}")

    def build(self):
        a = self.a
        o = self.o
        ln = f"v{V_LANE}"
        wl = o["wl"]
        VA, VI8 = (112 if o["peel"] else 104), 106
        E, TT, RK, ST = 8, 24, 40, 56
        T0, T1, T2, T3 = 72, 73, 74, 75
        WARM = 76
        ONE, VW, KB, VST, RX, VWARM, CM, CV, TM, TBS, HI, AB, BM, VH, VK, LO = range(88, 104)
        SW = S_C0
        a(f"s_mul_i32 s{S_T0}, s{S_WAVE}, 2304")
        a(f"s_add_u32 s{S_T0}, s{S_T0}, {R1_OFF}")
        a(f"v_and_b32 v{T1}, 60, {ln}")
        a(f"v_mad_u32_u24 v{T1}, v{T1}, 3, {ln}")
        a(f"v_lshl_add_u32 v{T0}, v{T1}, 4, s{S_T0}")
        a(f"s_mov_b32 s{S_T0}, {R8_OFF - 36*64}")
        a(f"v_lshl_add_u32 v{T1}, v{T1}, 4, s{S_T0}")
        a(f"v_lshrrev_b32 v{T2}, 2, {ln}")
        a(f"v_cmp_gt_u32 vcc, 36, {ln}")
        a(f"v_lshlrev_b32 v{KB}, 11, v{T2}")
        a(f"v_subrev_u32 v{T2}, 9, v{T2}")
        a(f"v_lshlrev_b32 v{T2}, 12, v{T2}")
        a(f"v_cndmask_b32 v{T0}, v{T1}, v{T0}, vcc")
        a(f"v_cndmask_b32 v{KB}, v{T2}, v{KB}, vcc")
        a(f"s_lshl_b32 s{S_T0}, s{S_WAVE}, 12")
        a(f"s_add_u32 s{S_T0}, s{S_T0}, 0x8001")
        a(f"v_mov_b32 v{ONE}, 1")
        a(f"v_mov_b32 v{CM}, 0xf001")
        a(f"v_mov_b32 v{CV}, s{S_T0}")
        a(f"v_cndmask_b32 v{CM}, v{CM}, v{ONE}, vcc")
        a(f"v_cndmask_b32 v{CV}, v{CV}, v{ONE}, vcc")
        a(f"v_cndmask_b32 v{TM}, 0, 28, vcc")
        a(f"v_cndmask_b32 v{TBS}, 32, 0, vcc")
        a(f"v_add_u32 v{TBS}, s{SW}, v{TBS}")
        a(f"v_cmp_gt_u32 vcc, 56, {ln}")
        a(f"v_mov_b32 v{T1}, 0x40000000")
        tw = o["warm"] == 2
        a(f"s_lshr_b32 s{S_T0}, s2, {4 if tw else 3}")
        a(f"s_lshl_b32 s{S_T0}, s{S_T0}, 2")
        a(f"s_add_u32 s{S_T0}, s{S_T0}, s{S_WAVE}")
        a(f"s_mul_i32 s{S_T0}, s{S_T0}, {6144 if tw else 2944}")
        a(f"v_cndmask_b32 v{T0}, v{T1}, v{T0}, vcc")
        if tw:
            a(f"v_min_u32 v{VWARM}, 47, {ln}")
            a(f"v_lshl_add_u32 v{VWARM}, v{VWARM}, 7, s{S_T0}")
        else:
            a(f"v_lshl_add_u32 v{VWARM}, {ln}, 4, s{S_T0}")
        self.waddr(VA, VI8)
        a(f"v_and_b32 v{T2}, 15, {ln}")
        a(f"v_and_b32 v{T1}, 7, {ln}")
        a(f"v_lshlrev_b32 v{BM}, 1, v{T1}")
        a(f"v_lshlrev_b32 v{BM}, v{BM}, v{ONE}")
        a(f"v_lshlrev_b32 v{T1}, 4, v{T1}")
        a(f"v_lshl_add_u32 v{RX}, v{T2}, 7, v{T1}")
        a(f"v_lshl_or_b32 v{RX}, v{RX}, 16, v{RX}")
        a(f"v_lshrrev_b32 v{HI}, 5, {ln}")
        a(f"v_bfe_u32 v{AB}, {ln}, 3, 2")
        a(f"v_lshl_add_u32 v{AB}, v{AB}, 6, s{SW}")
        a(f"v_lshl_add_u32 v{VH}, {ln}, 1, s{SW}")
        a(f"v_lshrrev_b32 v{VK}, 4, {ln}")
        a(f"v_lshl_add_u32 v{VK}, v{VK}, 3, s{SW}")
        a(f"v_lshrrev_b32 v{LO}, 1, {ln}")
        a(f"v_lshlrev_b32 v{LO}, 5, v{LO}")
        a(f"s_mov_b32 s{S_LINK}, 0")
        pre = [f"buffer_load_dwordx4 {vr(E+4*r,4)}, v{T0}, {sr(S_WS,4)}, 0 offen offset:{64*r} {wl}" for r in range(4)]
        warm = [[f"buffer_load_dwordx4 {vr(WARM+4*r,4)}, v{VWARM}, {sr(S_WS,4)}, 0 offen offset:{1024*r} {wl}"] for r in range(3)] if o["warm"] else []
        if tw:
            warm = [[f"buffer_load_dword v{WARM}, v{VWARM}, {sr(S_WS,4)}, 0 offen {wl}"]]
        C = []
        g = lambda *x: C.append(list(x))

        def rank(r):
            m = S_MASK + 2 * r
            return [f"v_and_b32 v{T1}, v{CM}, v{E+r}", f"v_lshrrev_b32 v{T0}, 10, v{E+r}", f"v_cmp_eq_u32 {sr(m,2)}, v{T1}, v{CV}",
                    f"v_and_or_b32 v{TT+r}, v{T0}, v{TM}, v{TBS}",
                    f"s_mov_b64 exec, {sr(m,2)}", f"ds_add_rtn_u32 v{RK+r}, v{TT+r}, v{ONE}", "s_mov_b64 exec, -1"]

        def place(r):
            m = S_MASK + 2 * r
            return [f"v_add_u32 v{T1}, v{RK+r}, v{ST+r}", f"v_and_b32 v{T0}, 0x87e, v{E+r}", f"v_lshl_add_u32 v{T1}, v{T1}, 1, s{SW}",
                    f"v_add_u32 v{T0}, v{KB}, v{T0}", f"s_andn2_b64 exec, {sr(m,2)}, {sr(S_BAD,2)}",
                    f"ds_write_b16_d16_hi v{T1}, v{E+r} offset:{O_X}", f"ds_write_b16 v{T1}, v{T0} offset:{O_K}",
                    f"ds_write_b16 v{T1}, v{E+r} offset:{O_M}", "s_mov_b64 exec, -1"]
        g("@WAIT_E")
        g(f"v_cmp_ne_u32 {sr(S_BAD,2)}, 0, v{E+15}", f"v_cmp_ne_u32 {sr(S_MORE,2)}, 0, v{E+8}")
        for r in range(8):
            g(*rank(r))
        g(f"s_cmp_lg_u64 {sr(S_MORE,2)}, 0", "s_cbranch_scc1 L_more1", "L_more1b:", f"ds_read_b32 v{T0}, v{VW}", f"v_mov_b32 v{T1}, 0")
        self.tailblocks.append("\n".join(["L_more1:"] + [x for r in range(8, 15) for x in rank(r)] + ["s_branch L_more1b"]))
        g("s_waitcnt lgkmcnt(0)", f"s_mov_b64 vcc, {sr(S_EVEN,2)}",
          f"v_cndmask_b32_dpp v{T1}, v{T0}, v{T1}, vcc quad_perm:[0,0,2,2] row_mask:0xf bank_mask:0xf",
          f"v_add_u32 v{VST}, v{LO}, v{T1}", f"v_add_u32 v{T1}, v{T0}, v{T1}", f"v_cmp_lt_u32 vcc, 32, v{T1}",
          f"s_or_b32 s{S_BAD}, s{S_BAD}, s{S_BAD+1}", f"s_and_b32 s{S_T0}, vcc_lo, 0x1ff", f"s_or_b32 s{S_T0}, s{S_T0}, s{S_BAD}",
          "s_cbranch_scc1 L_greedy", "L_greedyb:")
        x = ["L_greedy:", f"s_mov_b32 s{S_T0}, 0", f"s_mov_b32 s{S_LINK}, 1"]
        for t in range(9):
            lo = 32 * (t >> 1)
            x += [f"v_readlane_b32 s{S_T1}, v{T0}, {t}", f"s_max_u32 s{S_T0}, s{S_T0}, {lo}",
                  f"v_writelane_b32 v{VST}, s{S_T0}, {t}", "s_nop 1", f"s_add_u32 s{S_T0}, s{S_T0}, s{S_T1}",
                  f"s_cmp_gt_u32 s{S_T0}, {lo + (64 if t & 1 else 32)}", f"s_cselect_b32 s{S_BAD}, 1, s{S_BAD}"]
        x += [f"s_cmp_lg_u32 s{S_BAD}, 0", f"s_cselect_b64 {sr(S_BAD,2)}, -1, 0",
              f"v_mov_b32 v{T1}, {L_PL + 256}", f"s_mov_b64 exec, {sr(S_BAD,2)}", f"ds_write_b32 v{T1}, v{ONE}", "s_mov_b64 exec, -1",
              "s_branch L_greedyb"]
        self.tailblocks.append("\n".join(x))
        g(*[f"ds_bpermute_b32 v{ST+r}, v{TT+r}, v{VST}" for r in range(8)])
        for r in range(8):
            g(*([f"s_waitcnt lgkmcnt({(7, 9, 11, 13, 15, 15, 15, 15)[r] if r else 7})"] if r < 8 else []), *place(r))
        g(f"s_cmp_lg_u64 {sr(S_MORE,2)}, 0", "s_cbranch_scc1 L_more2", "L_more2b:",
          *[f"ds_read_u16 v{E+r}, v{VH} offset:{O_M+128*r}" for r in range(3)],
          *[f"ds_read2_b64 {vr(V_AD+4*j,4)}, v{VK} offset0:{(O_K+64*j)//8} offset1:{(O_K+64*j+32)//8}" for j in range(5)])
        self.tailblocks.append("\n".join(["L_more2:"] + [f"ds_bpermute_b32 v{ST+r}, v{TT+r}, v{VST}" for r in range(8, 15)] + ["s_waitcnt lgkmcnt(0)"]
                                         + [x for r in range(8, 15) for x in place(r)] + ["s_branch L_more2b"]))
        for r in range(3):
            g(*(["s_waitcnt lgkmcnt(5)"] if r == 0 else []),
              f"v_lshrrev_b32 v{T0}, 12, v{E+r}", f"v_cmp_ne_u32 vcc, 0, v{E+r}", f"v_min_u32 v{T0}, 8, v{T0}", f"v_add3_u32 v{T0}, v{T0}, v{HI}, {2*r}",
              f"v_lshlrev_b32 v{T1}, 4, v{T0}", f"v_lshrrev_b32 v{T0}, 1, v{T0}")
            g(f"v_lshlrev_b32 v{T1}, v{T1}, v{BM}", f"v_lshl_add_u32 v{T0}, v{T0}, 8, v{AB}", f"v_bfe_u32 v{T2}, v{E+r}, 7, 4",
              f"v_lshl_add_u32 v{T0}, v{T2}, 2, v{T0}", "s_mov_b64 exec, vcc", *(["s_mov_b32 exec_hi, 0"] if r == 2 else []),
              f"ds_xor_b32 v{T0}, v{T1} offset:{O_IDX}", "s_mov_b64 exec, -1")
        g(*[f"ds_read_b32 v{V_IR+r}, v{VW} offset:{O_IDX+256*r}" for r in range(7)])
        for j in range(5):
            g(*(["s_waitcnt lgkmcnt(10)"] if j == 0 else []), *[f"v_xor_b32 v{V_AD+4*j+q}, v{RX}, v{V_AD+4*j+q}" for q in range(4)])
        g(*self.bias_store())
        return pre, C, warm + self.wload_list(VA, VI8, o['peel'])

    def emit_build(self, pre, C, G):
        a = self.a
        for x in pre:
            a(x)
        nl = 0
        G = list(G)
        G0 = list(G)

        def load(n=1):
            nonlocal nl
            for _ in range(n):
                if G:
                    for x in G.pop(0):
                        a(x)
                    nl += 1
        acc = 0
        for grp in C:
            if grp[0] == "@WAIT_E":
                load(self.o["l0"])
                a(f"s_waitcnt vmcnt({nl})")
                self.stamp(1, "s[94:95]") if self.o["st2"] else None
                continue
            if grp[0] in ("s_waitcnt lgkmcnt(0)", "s_waitcnt lgkmcnt(7)", "s_waitcnt lgkmcnt(5)"):
                load(self.o["lw"])
            for x in grp:
                a(x)
            acc += len(grp)
            while acc >= self.o["lper"]:
                acc -= self.o["lper"]
                load()
        if self.o["peel"]:
            self.issued, self.pending = G0[:len(G0) - len(G)], G
            return
        load(len(G) - self.o["ltail"])
        assert len(G) == self.o["ltail"]
        self.late_loads = [x for grp in G for x in grp]

    @staticmethod
    def regs(txt):
        k, body = txt[0], txt[1:].strip("[]")
        lo, hi = (body.split(":") + [body])[:2]
        return [(256 if k == "a" else 0) + r for r in range(int(lo), int(hi) + 1)]

    def emit_line(self, ops, vm, hist=(), lds=(), vcap=None, hoist=False):
        a = self.a
        lds, hist = list(lds), list(hist)

        def put(op):
            a(op.text)
            hist.append(op)

        def waits(touched):
            w = []
            for q, name, cap in ((vm, "vmcnt", vcap or self.o["vcap"]), (lds, "lgkmcnt", 15)):
                hit = [i for i, x in enumerate(q) if x & touched]
                if hit:
                    n = min(len(q) - 1 - hit[-1], cap)
                    w.append(f"{name}({n})")
                    del q[:len(q) - n]
            if w:
                put(Op("s_waitcnt " + " ".join(w), "salu"))
        for k, op in enumerate(ops):
            touched = op.rd | op.wr
            waits(touched)
            need = 0
            for d, p in enumerate(reversed(hist[-9:])):
                ws = sum(int(x.text[6:]) + 1 if x.text.startswith("s_nop") else 1 for x in hist[len(hist) - d:])
                r = 0
                if p.kind == "mx" and op.kind != "mx" and (p.wr & touched):
                    r = 8
                if p.kind in ("valu", "dpp") and op.kind in ("mx", "dpp") and (p.wr & op.rd):
                    r = 2
                if p.kind == "st" and (p.rd & op.wr):
                    r = 2
                need = max(need, r - ws)
            if need > 0:
                put(Op(f"s_nop {need-1}", "salu"))
            put(op)
            if op.kind == "lds":
                lds.append(op.wr)
            if op.kind in ("ld", "st"):
                vm.append(op.wr)
            if op.kind == "mx" and hoist:
                nxt = [x for x in ops[k + 1:k + 9] if x.kind == "mx"]
                if nxt:
                    waits(nxt[0].rd | nxt[0].wr)
        return hist, lds

    def peel(self):
        o = self.o
        AX = V_BR
        acc = lambda m, t: (AX if m == 0 else V_ACC) + 4 * t
        Ba, Bb, Bc, Bd = (V_B + 8 * k for k in range(4))
        dst = lambda g: set(self.regs(g[-1].split()[1].rstrip(",")))
        vm = [dst(g) for g in self.issued]
        loads = [[Op(x, "salu") for x in g[:-1]] + [Op(g[-1], "ld", wr=dst(g))] for g in self.pending]

        def M(m, s, t, b):
            ir, h = aidx(s, t)
            return Op(f"v_smfmac_f32_16x16x64_bf16 {vr(acc(m,t),4)}, {afrag(s,t)}, {vr(b,8)}, v{ir}" + (" abid:1" if h else ""), "mx",
                      rd=list(rng(acc(m, t), 4)) + list(rng(b, 8)) + self.regs(afrag(s, t)) + [ir], wr=rng(acc(m, t), 4))

        def R(m, j, t):
            c, b = j + t, (Bc, Bd)[m]
            return Op(f"v_smfmac_f32_16x16x64_bf16 {vr(acc(m,t),4)}, {vr(V_X,4)}, {vr(b,8)}, v{V_IR+(c>>1)}" + (" abid:1" if c & 1 else ""), "mx",
                      rd=list(rng(acc(m, t), 4)) + list(rng(b, 8)) + list(rng(V_X, 4)), wr=rng(acc(m, t), 4))

        def B(m, s, b):
            return [Op(f"ds_read_b128 {vr(b+4*h,4)}, v{V_RD0+h} offset:{2048*s+TBL*m}", "lds", rd=[V_RD0 + h], wr=rng(b + 4 * h, 4)) for h in range(2)]

        def addr(j, b, r, base):
            ad = V_AD + 4 * j + (b >> 1)
            return Op(f"v_add_u32_sdwa v{r}, s{base}, v{ad} dst_sel:DWORD dst_unused:UNUSED_PAD src0_sel:DWORD src1_sel:WORD_{b&1}", "valu", rd=[ad], wr=[r])
        ops = [Op(f"ds_read_b32 v{V_X}, v{V_X}", "lds", rd=[V_X], wr=[V_X])] + B(0, 0, Ba)
        for m in range(2):
            ops += [Op(f"ds_read_b128 {vr(acc(m,t),4)}, v{V_TAB} offset:{O_BIAS+64*t}", "lds", rd=[V_TAB], wr=rng(acc(m, t), 4)) for t in range(9)]
            ops += loads.pop(0)
        ops += [Op(f"v_readfirstlane_b32 s{S_T0}, v{V_X}", "valu", rd=[V_X]), addr(0, 0, Bc, S_BUF),
                Op(f"s_cmp_lg_u32 s{S_T0}, 0", "salu"), Op("s_cbranch_scc1 L_slow", "salu")]
        ngap = 126 + 26
        rho, credit = len(loads) / (ngap - o["ptail"]), 0.0

        ng = 0
        if max(self.mid):
            ops.append(Op(f"s_lshr_b32 s{S_NB0}, s{S_DMASK}, 28", "salu"))

        def midtile(k):
            keepL, self.L = self.L, []
            self.dma_tile(o["ldp"])
            x, self.L = self.L, keepL
            x = [f"s_cmp_le_u32 s{S_NB0}, {k}", f"s_cbranch_scc1 L_mid{k}"] + x + [
                f"s_add_u32 s{S_XOFF5}, s{S_XOFF5}, {256*TB}", f"s_add_u32 s{S_M0B}, s{S_M0B}, {TBL}", f"s_add_u32 s{S_XOFF}, s{S_XOFF}, {256*TB}",
                f"L_mid{k}:"]
            assert loads
            return Op("\n".join(x), "salu")

        def gap(mx, D=(), V=()):
            nonlocal credit, ng
            ops.append(mx)
            if ng in o["midg"][:max(self.mid)]:
                ops.append(midtile(o["midg"].index(ng)))
            ng += 1
            credit += rho
            while credit >= 1 and loads:
                credit -= 1
                ops.extend(loads.pop(0))
            ops.extend(D)
            ops.extend(V)
        if o["psch"]:
            for s in range(7):
                for m in range(2):
                    gb, gm = ((Bd, 1), (Bc, 0))[m]
                    nb_ = (Bc, Bd)[m]
                    Dq = B(1, s, Bb) if m == 0 else B(0, s + 1, Ba)
                    if s < 5 and m == 1:
                        Dq.insert(0, Op(f"ds_read_b128 {vr(V_X,4)}, v{V_TAB} offset:{O_X+64*s}", "lds", rd=[V_TAB], wr=rng(V_X, 4)))
                    if s < 5:
                        Dq += [Op(f"ds_read_u16 v{gb+b}, v{gb+b} offset:{TBL*gm}", "lds", rd=[gb + b], wr=[gb + b]) for b in range(8)]
                    if s == 5:
                        Dq += B(1, 8, Bd) if m == 0 else B(1, 7, Bc)
                    Vq = [addr(s, b, gb + b, S_BUF) for b in range(8)] if s < 5 else []
                    mx = [M(m, s, t, (Ba, Bb)[m]) for t in range(9)]
                    j = s - 1 if m == 0 else s
                    if 0 <= j < 5:
                        mx += [R(m, j, t) for t in RT[j]]
                    for n, x in enumerate(mx):
                        k = 1 if len(Dq) <= len(mx) - n else 2
                        D = [Dq.pop(0) for _ in range(min(k, len(Dq)))]
                        assert not any(d.rd & v.wr for d in D for v in Vq)
                        gap(x, D, Vq[:1])
                        Vq = Vq[1:]
                    assert not Dq and not Vq
        else:
            for s in range(7):
                for t in range(9):
                    D, V = [], []
                    if t == 0:
                        D += B(1, s, Bb)
                    if s < 5:
                        if t == 8:
                            D.append(Op(f"ds_read_b128 {vr(V_X,4)}, v{V_TAB} offset:{O_X+64*s}", "lds", rd=[V_TAB], wr=rng(V_X, 4)))
                        else:
                            D += [Op(f"ds_read_u16 v{Bd+t}, v{Bc+t} offset:{TBL}", "lds", rd=[Bc + t], wr=[Bd + t]),
                                  Op(f"ds_read_u16 v{Bc+t}, v{Bc+t}", "lds", rd=[Bc + t], wr=[Bc + t])]
                            if t < 7:
                                V.append(addr(s, t + 1, Bc + t + 1, S_BUF))
                    elif t in (2, 3):
                        D.append(B(1, s + 2, Bc if s == 5 else Bd)[t - 2])
                    gap(M(0, s, t, Ba), D, V)
                for t in range(9):
                    gap(M(1, s, t, Bb), B(0, s + 1, Ba)[t:t + 1] if t < 2 else [])
                if s < 5:
                    rs = [R(m, s, t) for m in (1, 0) for t in RT[s]]
                    for n, x in enumerate(rs):
                        gap(x, [], [addr(s + 1, 0, Bc, S_BUF)] if n == len(rs) - 1 and s < 4 else [])
        assert not loads
        if o["st2"]:
            ops.append(Op("s_memrealtime s[94:95]\ns_waitcnt lgkmcnt(0)\nv_writelane_b32 v255, s94, 2", "salu"))
        ops += B(0, 8, Bb)
        pk = lambda t, h: (AX + 32 + h) if t == 8 else AX + 2 * t + h
        cvt = lambda t: [Op(f"v_cvt_pk_bf16_f32 v{pk(t,h)}, v{acc(0,t)+2*h}, v{acc(0,t)+2*h+1}", "valu",
                            rd=[acc(0, t) + 2 * h, acc(0, t) + 2 * h + 1], wr=[pk(t, h)]) for h in range(2)]
        dpp = "quad_perm:[1,0,3,2] row_mask:0xf bank_mask:0xf"
        stp = o["st"] if o["stp"] is None else o["stp"]

        def exch(v):
            p0, p1, d0 = AX + 8 * v, AX + 8 * v + 4, (V_X, AX + 16)[v]
            x = []
            for half in range(2):
                for d in range(4):
                    if half == 0:
                        x.append(Op(f"v_cndmask_b32_dpp v{d0+d}, v{p1+d}, v{p0+d}, vcc {dpp}", "dpp", rd=[p0 + d, p1 + d], wr=[d0 + d]))
                    else:
                        x.append(Op(f"v_cndmask_b32_dpp v{p1+d}, v{p0+d}, v{p1+d}, vcc {dpp}", "dpp", rd=[p0 + d, p1 + d], wr=[p1 + d]))
                src = d0 if half == 0 else p1
                fl = stp[2 * v + half] if isinstance(stp, (tuple, list)) else stp
                x += [Op(f"buffer_store_dwordx4 {vr(src,4)}, v{V_ST}, {sr(S_OUT,4)}, s{S_OOFF} offen offset:{1152*half+128*v} {fl}", "st",
                         rd=list(rng(src, 4)) + [V_ST]), Op(f"s_mov_b64 vcc, {sr((S_ODD, S_EVEN)[half],2)}", "salu")]
            return x
        p8 = pk(8, 0)
        rdadv = [Op(f"v_add_u32 v{V_RD0+h}, {2*TBL}, v{V_RD0+h}", "valu", rd=[V_RD0 + h], wr=[V_RD0 + h]) for h in range(2)]
        after = {0: rdadv,
                 1: [Op(f"ds_bpermute_b32 v{p8+h}, v{V_BP}, v{p8+h}", "lds", rd=[V_BP, p8 + h], wr=[p8 + h]) for h in range(2)] if o["bperm"] else [],
                 3: [Op(f"buffer_store_dwordx2 {vr(p8,2)}, v{V_ST8}, {sr(S_OUT,4)}, s{S_OOFF} offen {o['st8']}", "st", rd=[p8, p8 + 1, V_ST8])],
                 5: exch(0)[:6], 6: exch(0)[6:], 7: [addr(0, b, V_BR + b, S_BUFN) for b in range(4)],
                 8: [addr(0, b, V_BR + b, S_BUFN) for b in range(4, 8)]}
        for n, t in enumerate(PEEL_T):
            ops += [M(0, 7, t, Ba), M(0, 8, t, Bb)]
            if n:
                ops += cvt(PEEL_T[n - 1])
            ops += after.get(n, [])
        ops += cvt(PEEL_T[-1]) + exch(1)
        n2 = {p[1] for p in self.pol} - {0}
        if not (o["n2in"] and len(n2) == 1):
            self.emit_line(ops, vm)
            if n2:
                self.prefetch(24, "L_pf2")
            return
        cut = max(i for i, x in enumerate(ops) if x.kind == "ld") + 1
        hist, lds = self.emit_line(ops[:cut], vm, hoist=o['psch'])
        pieces = []
        for k in range(n2.pop()):
            keepL, self.L = self.L, []
            self.dma_tile()
            x, self.L = self.L, keepL
            x += [f"s_add_u32 s{S_XOFF5}, s{S_XOFF5}, {256*TB}", f"s_add_u32 s{S_M0B}, s{S_M0B}, {TBL}", f"s_add_u32 s{S_XOFF}, s{S_XOFF}, {256*TB}"]
            pieces += [Op("\n".join(x[3*j:3*j+3] if j < 4 else x[12:]), "ld") for j in range(5)]
        nmx = sum(1 for x in ops[cut:] if x.kind == "mx") - o["n2in"]
        tail, seen, tot = [], 0, len(pieces)
        for x in ops[cut:]:
            tail.append(x)
            if x.kind == "mx":
                seen += 1
                while pieces and (tot - len(pieces)) * nmx < seen * tot:
                    tail.append(pieces.pop(0))
        assert not pieces
        if self.n2min == 0:
            self.a(f"s_bfe_u32 s{S_T0}, s{S_DMASK}, {hex(4 << 16 | 24)}")
            self.a("s_cbranch_scc0 L_ptail0")
        self.emit_line(tail, list(vm), hist, lds, 40)
        if self.n2min == 0:
            self.a("s_branch L_ptail1")
            self.a("L_ptail0:")
            self.emit_line(ops[cut:], list(vm), hist, lds)
            self.a("L_ptail1:")

    def slow_path(self, K):
        a = self.a
        o = self.o
        VA, VI8 = 104, 106
        a("L_slow:")
        a("s_waitcnt vmcnt(0) lgkmcnt(0)")
        a(f"s_mov_b32 s{S_MODE}, 0")
        a("L_sm:")
        a(f"s_lshl_b32 s{S_BASE}, s2, 1")
        a(f"s_add_u32 s{S_BASE}, s{S_BASE}, s{S_MODE}")
        a(f"s_add_u32 s{S_BASE}, s{S_BASE}, {PRIV0}")
        a(f"s_mul_i32 s{S_BASE}, s{S_BASE}, {COPY}")
        a(f"s_mov_b32 s{S_TASK}, 0")
        a("L_st:")
        self.producer("g", True)
        a(f"s_add_u32 s{S_TASK}, s{S_TASK}, 1")
        a(f"s_cmp_lt_u32 s{S_TASK}, {NTASK}")
        a("s_cbranch_scc1 L_st")
        a(f"s_add_u32 s{S_MODE}, s{S_MODE}, 1")
        a(f"s_cmp_lt_u32 s{S_MODE}, 2")
        a("s_cbranch_scc1 L_sm")
        self.lane_setup()
        self.dma_setup()
        a(f"s_mov_b32 s{S_OUT+2}, {XBYTES}")
        a(f"s_mov_b32 s{S_X+2}, {XBYTES}")
        a(f"s_mov_b32 s{S_IT}, 0")
        if self.dyn and o["othr"]:
            a("s_bitcmp1_b32 s2, 0")
            a(f"s_cselect_b32 s{S_NT}, 16, {32 - self.dyn[0]}")
        a("L_stile:")
        a("s_barrier")
        self.dma_tile()
        for t in range(9):
            a(f"ds_read_b128 {vr(V_ACC+4*t,4)}, v{V_TAB} offset:{O_BIAS+64*t}")
        a(f"s_mov_b32 s{S_MODE}, 0")
        a("L_spass:")
        a(f"s_lshl_b32 s{S_BASE}, s2, 1")
        a(f"s_add_u32 s{S_BASE}, s{S_BASE}, s{S_MODE}")
        a(f"s_add_u32 s{S_BASE}, s{S_BASE}, {PRIV0}")
        a(f"s_mul_i32 s{S_BASE}, s{S_BASE}, {COPY}")
        self.waddr(VA, VI8)
        for grp in self.wload_list(VA, VI8):
            for x in grp:
                a(x)
        a("s_waitcnt vmcnt(0)")
        a("s_barrier")
        for s in range(9):
            a(f"ds_read_b128 {vr(V_B,4)}, v{V_RD0} offset:{2048*s}")
            a(f"ds_read_b128 {vr(V_B+4,4)}, v{V_RD1} offset:{2048*s}")
            a("s_waitcnt lgkmcnt(0)")
            for t in range(9):
                ir, h = aidx(s, t)
                a(f"v_smfmac_f32_16x16x64_bf16 {vr(V_ACC+4*t,4)}, {afrag(s,t)}, {vr(V_B,8)}, v{ir}" + (" abid:1" if h else ""))
            a("s_nop 7")
        a(f"s_add_u32 s{S_MODE}, s{S_MODE}, 1")
        a(f"s_cmp_lt_u32 s{S_MODE}, 2")
        a("s_cbranch_scc1 L_spass")
        for t in range(7):
            for h in range(2):
                a(f"v_cvt_pk_bf16_f32 v{V_P+2*t+h}, v{V_ACC+4*t+2*h}, v{V_ACC+4*t+2*h+1}")
        a(f"s_mov_b64 vcc, {sr(S_EVEN,2)}")
        self.emit_epi(self.assemble_loop(False, "")[2])
        if self.dyn and o["othr"]:
            a(f"s_cmp_eq_u32 s{S_IT}, 15")
            a(f"s_cselect_b32 s{S_XINC}, {(1 - (15 - self.dyn[0]) * 256) * TB}, s{S_XINC}")
        for r in (S_XOFF, S_XOFF5, S_OOFF):
            a(f"s_add_u32 s{r}, s{r}, s{S_XINC}")
        a(f"s_mov_b32 s{S_XINC}, {256*TB}")
        a(f"s_add_u32 s{S_IT}, s{S_IT}, 1")
        a(f"s_cmp_lt_u32 s{S_IT}, s{S_NT}")
        a("s_cbranch_scc1 L_stile")
        a("s_branch L_fin")

    def loop_ops(self, links, dma, clm=False):
        o = self.o
        acc = lambda t: rng(V_ACC + 4 * t, 4)
        ch = o["chain"]
        bb = lambda s: V_P if (ch and s == 6) else V_B + 8 * BBUF[s]
        RBUF = [V_BR, V_BR + 8, V_BR, V_P + 8 if ch else V_P, V_BR + 8]
        rt = RT if links else [[0, 1], [2, 3], [4, 5], [6, 7], [8]]
        ng = [8, 8, 8, 8, 8 if links else o["ng4"]]

        def M(s, t):
            ir, h = aidx(s, t)
            return Op(f"v_smfmac_f32_16x16x64_bf16 {vr(V_ACC+4*t,4)}, {afrag(s,t)}, {vr(bb(s),8)}, v{ir}" + (" abid:1" if h else ""),
                      "mx", rd=list(acc(t)) + list(rng(bb(s), 8)), wr=acc(t), tag=("M", s, t))

        def R(j, t):
            c = j + t
            return Op(f"v_smfmac_f32_16x16x64_bf16 {vr(V_ACC+4*t,4)}, {vr(V_X,4)}, {vr(RBUF[j],8)}, v{V_IR+(c>>1)}" + (" abid:1" if c & 1 else ""),
                      "mx", rd=list(acc(t)) + list(rng(RBUF[j], 8)) + list(rng(V_X, 4)), wr=acc(t), tag=("R", j, t))
        seq = []
        for t in range(9):
            seq += [M(0, t), M(1, t)]
        if ch:
            for steps, order, rs in (((2, 3), o["ord1"], (0, 1)), ((4, 5, 6), o["ord2"], (2, 3, 4))):
                for n, t in enumerate(order):
                    seq += [M(s, t) for s in steps]
                    if t // 2 in rs and t % 2 == 0:
                        j = t // 2
                        assert t == 8 or order[n + 1] == t + 1
                        seq += [R(j, t)] + ([R(j, t - 1)] if links and j else []) + ([R(j, t + 1)] if t < 8 else [])
        else:
            for s in range(2, 7):
                seq += [M(s, t) for t in range(9)]
        for t in range(9):
            seq += [M(7, t), M(8, t)]
        if ch:
            rpos = [min(i for i, x in enumerate(seq) if x.tag[:2] == ("R", j)) for j in range(5)]
        else:
            rpos = list(o["rposl"] if links else o["rpos"])
            for j in range(5):
                for n, t in enumerate(rt[j]):
                    seq.insert(rpos[j] + n, R(j, t))
        N = len(seq)
        pos = {x.tag: i for i, x in enumerate(seq)}
        BAR = rpos[4] + len(rt[4]) - 1
        c0 = N - 15 - BAR
        assert c0 == (4 if ch else 0)
        self.drain = rpos[4] - 1
        T = lambda g: (g - BAR - 1) % N
        first = lambda s: T(min(pos[("M", s, t)] for t in range(9)))
        lastu = lambda s: max(pos[("M", s, t)] for t in range(9))
        LEAD = o["lead"]
        ST = [[] for _ in range(N)]
        S = [[] for _ in range(N)]
        D = [[] for _ in range(N)]
        V = [[] for _ in range(N)]
        keep = lambda op: (dma or op.tag != "dma") and (clm or op.tag != "clm")

        def pdst(t, h):
            return V_P8 + h if t == 8 else V_P + 2 * t + h
        dq, vq = [], []
        for t in range(9):
            for h in range(2):
                V[c0 + 2 * t + h].append(Op(f"v_cvt_pk_bf16_f32 v{pdst(t,h)}, v{V_ACC+4*t+2*h}, v{V_ACC+4*t+2*h+1}", "valu",
                                       rd=[V_ACC + 4 * t + 2 * h, V_ACC + 4 * t + 2 * h + 1], wr=[pdst(t, h)], tag="epi"))
            dq.append([Op(f"ds_read_b128 {vr(V_ACC+4*t,4)}, v{V_TAB} offset:{O_BIAS+64*t}", "lds", rd=[V_TAB], wr=acc(t), tag="pre"),
                       c0 + 2 * t + 2, c0 + 2 * t + 2, None])
        def stf(e):
            f = o["stc"] if clm else (o["st"] if dma else o["stn"])
            f = o["st"] if f is None else f
            return f[e] if isinstance(f, (tuple, list)) else f
        dpp = "quad_perm:[1,0,3,2] row_mask:0xf bank_mask:0xf"
        stg = [T(g) for g in o["stg"]]
        for v in range(2):
            p0, p1 = V_P + 8 * v, V_P + 8 * v + 4
            d0 = V_T if v == 0 else V_P
            for half in range(2):
                e = 2 * v + half
                for d in range(4):
                    if half == 0:
                        op = Op(f"v_cndmask_b32_dpp v{d0+d}, v{p1+d}, v{p0+d}, vcc {dpp}", "dpp", rd=[p0 + d, p1 + d], wr=[d0 + d], tag="epi")
                    else:
                        op = Op(f"v_cndmask_b32_dpp v{p1+d}, v{p0+d}, v{p1+d}, vcc {dpp}", "dpp", rd=[p0 + d, p1 + d], wr=[p1 + d], tag="epi")
                    vq.append([op, stg[e - 1] if e else c0 + 18, stg[e] - 4 + d, None])
                src = d0 if half == 0 else p1
                ST[stg[e]].append(Op(f"buffer_store_dwordx4 {vr(src,4)}, v{V_ST}, {sr(S_OUT,4)}, s{S_OOFF} offen offset:{1152*half+128*v} {stf(e)}",
                                     "st", rd=list(rng(src, 4)) + [V_ST], tag="epi"))
                ST[stg[e]].append(Op(f"s_mov_b64 vcc, {sr((S_ODD, S_EVEN)[half],2)}", "salu", tag="epi"))
        if o["bperm"]:
            for h in range(2):
                dq.append([Op(f"ds_bpermute_b32 v{V_P8+h}, v{V_BP}, v{V_P8+h}", "lds", rd=[V_BP, V_P8 + h], wr=[V_P8 + h], tag="epi"),
                           c0 + 18, stg[4] - LEAD - 2 + h, None])
        ST[stg[4]].append(Op(f"buffer_store_dwordx2 {vr(V_P8,2)}, v{V_ST8}, {sr(S_OUT,4)}, s{S_OOFF} offen {o['st8']}", "st",
                             rd=[V_P8, V_P8 + 1, V_ST8], tag="epi"))
        rl = lambda j: T(rpos[j] + len(rt[j]) - 1)
        free = [rl(2), 1, rl(0), stg[3 if ch else 2] + 1, rl(1)]
        for j in range(5):
            dl = T(rpos[j]) - LEAD - 1
            for b in range(ng[j]):
                r = RBUF[j] + b
                ad = V_AD + 4 * j + (b >> 1)
                av = Op(f"v_add_u32_sdwa v{r}, s{S_BUFN if j == 0 else S_BUF}, v{ad} dst_sel:DWORD dst_unused:UNUSED_PAD src0_sel:DWORD src1_sel:WORD_{b&1}",
                        "valu", rd=[ad], wr=[r], tag="pre" if j == 0 else "")
                gd = dl - o["gsp"] * (ng[j] - 1 - b)
                vq.append([av, free[j], (N - 2 - (7 - b)) if j == 0 else gd - 1, None])
                dq.append([Op(f"ds_read_u16 v{r}, v{r}", "lds", rd=[r], wr=[r], tag="pre"), 0, gd, None if j == 0 else av])
            dq.append([Op(f"ds_read_b128 {vr(V_X,4)}, v{V_TAB} offset:{O_X+64*j}", "lds", rd=[V_TAB], wr=rng(V_X, 4), tag="pre"),
                       0 if j == 0 else rl(j - 1), dl, None])
        prev = {0: None, 1: None, 2: 7, 3: 8, 4: 0, 5: 1, 6: 4, 7: 2, 8: 3}
        lastb = []
        for s in range(9):
            for h in range(2):
                op = Op(f"ds_read_b128 {vr(bb(s)+4*h,4)}, v{(V_RD0, V_RD1)[h]} offset:{2048*s}", "lds",
                        rd=[(V_RD0, V_RD1)[h]], wr=rng(bb(s) + 4 * h, 4), tag="pre")
                fs = first(s) if s < 7 else (T(rpos[4]) - 2 * (9 - s) if ch else T(pos[("M", s, 0)]))
                rel = 0 if prev[s] is None else T(lastu(prev[s]))
                if ch and s == 6:
                    rel = stg[2] + 1
                dq.append([op, rel, fs - LEAD - 2 + h, None])
                lastb.append(op)
        for h in range(2):
            vq.append([Op(f"v_add_u32 v{V_RD0+h}, s{S_DELTA}, v{V_RD0+h}", "valu", rd=[V_RD0 + h], wr=[V_RD0 + h]), 0, N - 2, lastb])
        sq = []
        dmag = [g + (self.drain - 70) * (g > 50) for g in o["dmag"]]
        assert all(b - a_ >= 2 for a_, b in zip(dmag, dmag[1:]))
        if not o["nodma"]:
            for j, g in enumerate(dmag):
                g = T(g)
                ld = f"buffer_load_dwordx4 v{V_DMA}, {sr(S_X,4)}, s{S_XOFF if j < 4 else S_XOFF5} offen offset:{256*j if j < 4 else 896} {o['ld']} lds"
                if j < 4:
                    D[g].append(Op(ld, "dma", rd=[V_DMA], tag="dma"))
                    S[g - 1].append(Op(f"s_add_u32 m0, s{S_M0B}, {3840*j}", "salu", tag="dma"))
                else:
                    D[g] += [Op(f"s_mov_b64 exec, {sr(S_HALF,2)}", "salu", tag="dma"), Op(ld, "dma", rd=[V_DMA], tag="dma"),
                             Op("s_mov_b64 exec, -1", "salu", tag="dma")]
                    S[g - 1].append(Op(f"s_add_u32 m0, s{S_M0B}, s{S_M05}", "salu", tag="dma"))
                    V[g] = None
        XV = [[] for _ in range(N)]
        if self.dyn:
            gl = T(o["mbg"] + self.drain - 70) - 1
            XV[T(0)].append(Op(f"v_mov_b32 v{V_C}, 1", "valu", wr=[V_C], tag="clm"))
            D[T(1)].append(Op(f"buffer_atomic_add v{V_C}, v{V_BP}, {sr(S_B,4)}, 0 offen sc0 sc1", "dma", rd=[V_BP], tag="clm"))
            assert not D[gl + 1] and not S[gl + 1] and max(stg) <= gl
            gw = gl + 1 if o["cwg"] is None else T(o["cwg"])
            assert gw not in stg and T(1) < gw <= gl + 1
            S[gw].append(Op(f"s_waitcnt vmcnt({sum(1 for g in stg if g < gw) + sum(1 for g in dmag if T(g) < gw)})", "salu", tag="clm"))
            if o["dwg"] is not None and dma and not clm:
                gw = T(o["dwg"])
                assert gw not in stg
                S[gw].append(Op(f"s_waitcnt vmcnt({sum(1 for g in stg if g < gw) + sum(1 for g in dmag if T(g) < gw)})", "salu"))
            D[gl + 1] += [Op(f"s_mov_b64 exec, {sr(S_W0,2)}", "salu", tag="clm"),
                          Op(f"ds_write_b32 v{V_RD0}, v{V_C} offset:{TB}", "lds", rd=[V_RD0], tag="clm"), Op("s_mov_b64 exec, -1", "salu", tag="clm")]
            V[gl + 1] = None
            D[0].append(Op(f"ds_read_b32 v{V_C}, v{V_RD0} offset:{TB}", "lds", rd=[V_RD0], wr=[V_C], tag="clm"))
            XV[LEAD + 1].append(Op(f"v_readfirstlane_b32 s{S_CL}, v{V_C}", "valu", rd=[V_C], tag="clm"))
        placed = {}
        for g in range(N - 1):
            if not D[g] and g != T(N - 1):
                c = [x for x in dq if x[1] <= g and (x[3] is None or placed.get(id(x[3]), N) < g) and x[2] - g <= o["eager"]]
                if c:
                    x = min(c, key=lambda x: x[2])
                    dq.remove(x)
                    D[g].append(x[0])
                    placed[id(x[0])] = g
                    if g > x[2] and o["verbose"]:
                        print("; late D", g - x[2], x[0].text, file=sys.stderr)
            if V[g] is None:
                V[g] = []
                continue
            cap = 2 if (ST[g] and "x4" in ST[g][0].text) else 1
            while len(V[g]) < cap:
                c = [x for x in vq if x[1] <= g and (x[3] is None or all(placed.get(id(y), N) <= g for y in x[3]))]
                if not c:
                    break
                x = min(c, key=lambda x: x[2])
                vq.remove(x)
                V[g].append(x[0])
                placed[id(x[0])] = g
                assert g <= x[2] or x[0].kind != "dpp", ("late", x[0].text)
        assert not dq and not vq, ([x[0].text for x in dq], [x[0].text for x in vq])
        for g in range(N):
            V[g] += XV[g]
        if self.dyn:
            rdup = max(placed[id(x)] for gl_ in V for x in gl_ if id(x) in placed and f"s{S_DELTA}," in x.text)
            assert rdup <= gl and gl + 1 < T(self.drain) and T(min(o["stg"])) > T(1)
        S[N - 1] += ([] if clm else [Op(f"s_waitcnt vmcnt({o['vmw']})", "salu")]) + [Op("s_barrier", "bar")]
        lastdma = T(dmag[4])
        la = max(placed[id(x)] for gl in V for x in gl if id(x) in placed and f"s{S_BUF}," in x.text)
        fn = min(placed[id(x)] for gl in V for x in gl if id(x) in placed and (f"s{S_BUFN}," in x.text or f"s{S_DELTA}," in x.text))
        sq = [([f"s_mov_b32 s{S_BUF}, s{S_BUFN}"], 0, 0),
              ([f"s_cmp_eq_u32 s{S_BUFN}, {(NB-1)*TBL}", f"s_cselect_b32 s{S_DELTA}, {-(NB-1)*TBL}, s{S_CTB}", f"s_add_u32 s{S_BUFN}, s{S_BUFN}, s{S_DELTA}"], c0 + 18, fn),
              ]
        if self.dyn:
            LK = self.dyn[1]
            sq.append((([] if clm else [f"s_mov_b32 s{S_OUT+2}, {XBYTES}"]) + [f"s_mov_b32 s{S_OOFF}, s{S_Q}"]
                       + [f"s_mov_b32 s{S_Q+k}, s{S_Q+k+1}" for k in range(LK - 1)]
                       + [f"s_mov_b32 s{S_Q+LK-1}, s{S_XOFF}" if clm else f"s_add_u32 s{S_Q+LK-1}, s{S_Q+LK-1}, {256*TB}"], stg[4] + 1, N - 2))
        else:
            sq.append(([f"s_mov_b32 s{S_OUT+2}, {XBYTES}", f"s_add_u32 s{S_OOFF}, s{S_OOFF}, s{S_OINC}", f"s_mov_b32 s{S_OINC}, s{S_OINC2}",
                        f"s_mov_b32 s{S_OINC2}, {256*TB}"], stg[4] + 1, N - 2))
        if not clm or o["trace"]:
            sq.append(([f"s_add_u32 s{S_IT}, s{S_IT}, 1"], c0 + 18, N - 2))
        if clm:
            ps = o["psh"]
            sq += [([f"s_add_u32 s{S_XOFF5}, s{S_XOFF}, s{S_K5}"], c0 + 18, lastdma - 2),
                   (self.dma_advance()[2:], lastdma + 1, N + 8),
                   ([f"s_lshr_b32 s{S_CT}, s{S_CL}, {4 if o['pil'] else ps}", f"s_mul_i32 s{S_CT}, s{S_CT}, {(48 if o['pil'] else 256 - (1 << ps))*TB}", f"s_mul_i32 s{S_CT+1}, s{S_CL}, {TB}",
                     f"s_add_u32 s{S_CT}, s{S_CT}, s{S_CB}", f"s_add_u32 s{S_XOFF}, s{S_CT}, s{S_CT+1}"], LEAD + 2, T(N - 1) - 2),
                   ([f"s_cmp_lt_u32 s{S_CL}, {'s%d' % S_LIM if o['othr'] else (16 - self.dyn[0]) << ps}"], T(N - 1) - 1, T(N - 1) - 1)]
            if o["othr"]:
                S[T(0)] += [Op(x, "salu") for x in (f"s_cmp_lt_u32 s{S_CL}, s{S_THR}", f"s_cselect_b32 s{S_B+2}, s{S_B+2}, 0",
                                                    f"s_cselect_b32 s{S_LIM}, s{S_LIM}, 0")]
        else:
            if dma:
                sq += [(self.dma_advance(), lastdma + 1, N + 12)]
            sq.append(([f"s_bitcmp1_b32 s{S_DMASK if dma else S_NMASK}, s{S_IT}"], T(N - 1) - 1, T(N - 1) - 1))
        G = lambda A: [[x for x in A[T(g)] if keep(x)] for g in range(N)]
        return seq, G(ST), G(S), G(D), G(V), [(x, (lo + BAR + 1), (hi + BAR + 1)) for x, lo, hi in sq], BAR

    def assemble_loop(self, links, label, dma=True, clm=False):
        seq, ST, S, D, V, sq, BAR = self.loop_ops(links, dma, clm)
        N = len(seq)
        flat = []
        for rep in range(2):
            for g in range(N):
                a0 = rep * N + g
                flat.append((seq[g], a0 - 1))
                for x in ST[g]:
                    flat.append((x, a0 - 1))
                for x in D[g] + V[g]:
                    flat.append((x, a0))
        gap_of = {}
        k = 0
        lds = []
        for rep in range(2):
            for g in range(N):
                k += 1 + len(ST[g])
                for x in D[g] + V[g]:
                    if x.kind == "lds":
                        lds.append((k, rep * N + g))
                    k += 1
        done = -1
        W = {}
        minlead = 99
        for i, (op, wg) in enumerate(flat):
            touched = op.rd | op.wr
            need = -1
            for n, (k, g) in enumerate(lds):
                if k < i and n > done and (flat[k][0].wr & touched):
                    need = n
            if need >= 0:
                assert lds[need][1] < wg
                issued = [n for n, (k, g) in enumerate(lds) if g < wg]
                cnt = min(issued[-1] - need, 15)
                done = issued[-1] - cnt
                if wg >= N - 1 and wg < 2 * N - 1:
                    W[wg % N] = min(cnt, W.get(wg % N, 99))
                    if self.o["verbose"]:
                        print(f"; wait gap {wg % N} cnt {cnt} lead {wg - lds[need][1]} for {flat[lds[need][0]][0].text}", file=sys.stderr)
        W[self.drain] = 0
        if clm:
            mb = [g for g in range(N) if any("ds_write" in x.text for x in D[g])][0]
            assert not [g for g in W if mb < g < self.drain]
        for g, c in W.items():
            S[g].insert(0, Op(f"s_waitcnt lgkmcnt({c})", "salu"))
        if not self.o["drop"]:
            last = max(g for g in range(BAR + 1) if any(x.kind == "lds" for x in D[g]))
            assert any(W.get(g) == 0 for g in range(last + 1, BAR + 1)), "tile reads not drained at the barrier"

        def room(g, extra=0, resv=True):
            g %= N
            if g == BAR or g == N - 1 or any(x.kind == "dma" for x in D[g]):
                return False
            cap = 1 if D[g] else (2 if V[g] else 3)
            if label and not clm and resv:
                if g == self.drain - 1:
                    return False
                cap -= g == self.drain - 2
            return len(S[g]) + extra < cap and not ST[g]
        sccfree = lambda x: x.text.startswith(("s_waitcnt", "s_mov", "s_barrier"))
        locked = set()
        for texts, lo, hi in sq:
            g = lo
            n = 0
            while n < len(texts):
                chain = [texts[n]]
                if texts[n].startswith(("s_cmp", "s_bitcmp")):
                    while n + len(chain) < len(texts) and texts[n + len(chain)].startswith("s_cselect"):
                        chain.append(texts[n + len(chain)])
                while True:
                    assert g <= hi, ("no room", chain)
                    where, z = [], g
                    ok = room(g) and ((g % N) not in locked or chain[0].startswith("s_mov"))
                    cnt = {}
                    for k, tx in enumerate(chain):
                        while ok and not room(z, cnt.get(z, 0)):
                            z += 1
                            ok = z <= hi and all(sccfree(x) for x in S[z % N]) and (clm or z % N != self.drain - 1)
                        where.append(z)
                        cnt[z] = cnt.get(z, 0) + 1
                    if ok:
                        break
                    g += 1
                for z, tx in zip(where, chain):
                    S[z % N].append(Op(tx, "salu"))
                if len(chain) > 1:
                    locked.update(z % N for z in range(where[0], where[-1]))
                g = where[-1]
                n += len(chain)
        assert all(sccfree(x) for x in S[N - 1])
        if label and not clm:
            gz = self.drain - (2 if self.o["trace"] else 1)
            assert self.o["chain"] and (self.o["trace"] or (not (S[gz] or D[gz] or V[gz] or ST[gz]) and room(gz - 1, 0, False) and (gz - 1) not in locked))
            assert all(x.kind not in ("dma", "st") for g in range(gz, N) for x in D[g] + ST[g]) and max(self.o["stg"]) < min(self.o["dmag"])
            S[gz - (0 if self.o["trace"] else 1)].append(Op(f"s_bitcmp1_b32 s{S_WMASK}, s{S_IT}", "salu"))
            S[gz] += [Op(f"s_cbranch_scc1 {label}_w", "salu"), Op(f"{label}_wb:", "label")]
            self.tailblocks.append(f"{label}_w:\ns_bitcmp1_b32 s{S_WMASK2}, s{S_IT}\ns_waitcnt vmcnt({self.whi})\n"
                                   f"s_cbranch_scc0 {label}_wb\ns_waitcnt vmcnt({self.wlo})\ns_branch {label}_wb")
        if self.o["trace"]:
            g0 = max(g for g, c in W.items() if c == 0 and g <= BAR)
            S[g0 - 1] += [Op("s_memrealtime s[98:99]", "salu"), Op("s_memtime s[96:97]", "salu"), Op(f"s_add_u32 s95, s{S_IT}, 32", "salu")]
            V[g0] += [Op(f"s_mov_b32 m0, s{S_IT}", "salu"), Op("v_writelane_b32 v254, s98, m0", "salu"), Op("s_mov_b32 m0, s95", "salu"), Op("v_writelane_b32 v254, s96, m0", "salu")]
        body = []
        pro = [x for g in range(N) for x in V[g] if x.tag == "pre" or (g > BAR and "sdwa" in x.text)] \
            + [x for g in range(BAR + 1, N) for x in D[g] if x.tag == "pre"]
        epi = [x for g in range(BAR) for x in ST[g] + D[g] + V[g] if x.tag == "epi"]
        nsw = 0
        for g in range(N):
            sw_ = self.o["swp"][2 if clm else (0 if dma else 1)]
            if sw_ and len(D[g]) == 1 and len(V[g]) == 1 and D[g][0].kind == "lds" and not ST[g] and "sdwa" in V[g][0].text \
                    and not (V[g][0].wr & (D[g][0].rd | D[g][0].wr)) and nsw < sw_:
                D[g], V[g] = V[g], D[g]
                nsw += 1
            body += [x for x in [seq[g]] if not any(d in x.text for d in self.o["dropm"])] + ST[g] + S[g] + D[g] + V[g]
            if self.o["pad"] and g % self.o["pad"] == 0 and g < N - 2:
                body.append(Op("s_nop 3", "salu"))
        body = [x for x in body if x.kind == "mx" or not any(d in x.text for d in self.o["drop"])]
        body.append(Op(f"s_cbranch_scc1 {label}", "salu"))
        if not self.o["drop"]:
            real = [x for x in body if x.kind != "label"]
            m = len(real)
            for i, op in enumerate(real):
                for d in range(1, 10):
                    p = real[(i - d) % m]
                    ws = d - 1
                    if p.kind == "mx" and op.kind != "mx" and (p.wr & (op.rd | op.wr)):
                        assert ws >= 8, ("mx->x", p.text, op.text, ws)
                    if p.kind in ("valu", "dpp") and op.kind == "mx" and (p.wr & op.rd):
                        assert ws >= 2, ("valu->mx", p.text, op.text, ws)
                    if p.kind in ("valu", "dpp") and op.kind == "dpp" and (p.wr & op.rd):
                        assert ws >= 2, ("valu->dpp", p.text, op.text, ws)
                    if p.kind == "st" and (p.rd & op.wr):
                        assert ws >= 2, ("st war", p.text, op.text, ws)
        return pro, body, epi

    def emit_epi(self, epi):
        cv = [x for x in epi if "v_cvt" in x.text]
        bp = [x for x in epi if x.kind == "lds"]
        rest = [x for x in epi if x not in cv and x not in bp]
        ops = rest[:6] + cv[2:] + bp + rest[6:12] + cv[:2] + rest[12:]
        if self.o["ste"] is not None:
            ops = [Op(x.text.replace(" sc1", " " + self.o["ste"]), x.kind, x.rd, x.wr) if x.kind == "st" else x for x in ops]
        hist = [Op("", "mx", wr=rng(V_ACC + 28, 8)), Op("", "valu", wr=rng(V_P, 14)), Op("", "salu")]
        self.emit_line(ops, [], hist)

    def main_loop(self, links, sfx):
        a = self.a
        pro, body, epi = self.assemble_loop(links, "L_loop" + sfx)
        if not self.o["peel"]:
            late = list(self.late_loads)
            for n, op in enumerate(pro):
                a(op.text)
                if n % 6 == 5:
                    while late and not late[0].startswith("buffer"):
                        a(late.pop(0))
                    if late:
                        a(late.pop(0))
            for x in late[:8]:
                a(x)
            a("s_waitcnt lgkmcnt(0)")
            a(f"v_readfirstlane_b32 s{S_T0}, v{V_T}")
            a("s_nop 3")
            a(f"s_cmp_lg_u32 s{S_T0}, 0")
            a("s_cbranch_scc1 L_slow")
            for x in late[8:]:
                a(x)
            if max(p[1] for p in self.pol):
                self.prefetch(24, "L_pf2" + sfx)
            for x in self.dma_advance(first=True):
                a(x)
            a(f"s_waitcnt vmcnt({(20 if self.o['early'] else 0) + 5 * self.n2min})")
            self.stamp(5)
            a(f"s_bitcmp1_b32 s{S_DMASK}, 0")
            a(f"s_cbranch_scc0 L_loopn{sfx}")
        a(".p2align 6")
        a(f"L_loop{sfx}:")
        for op in body:
            a(op.text)
        if self.o["wbl2"] is not None:
            a(f"s_lshr_b32 s{S_T0}, s2, 3")
            a(f"s_and_b32 s{S_T0}, s{S_T0}, {self.o['wbl2']}")
            a(f"s_or_b32 s{S_T0}, s{S_T0}, s{S_WAVE}")
            a(f"s_cbranch_scc1 L_loopn{sfx}")
            a("buffer_wbl2 sc1")
        if self.dyn:
            LK = self.dyn[1]
            a(f"s_cmp_lg_u32 s{S_IT}, {self.cl0}")
            a(f"s_cbranch_scc1 L_loopn{sfx}")
            a(".p2align 3")
            a(f"L_loopc{sfx}:")
            for op in self.assemble_loop(links, "L_loopc" + sfx, True, True)[1]:
                a(op.text)
            if self.o["trace"]:
                a(f"s_add_u32 s{S_NT}, s{S_IT}, {LK}")
                a(f"s_bfm_b32 s{S_NMASK}, s{S_NT}, 0")
                a(f"s_lshl_b32 s{S_WMASK}, {1 << (LK-1)}, s{S_IT}")
                a(f"s_lshl_b32 s{S_WMASK2}, {(1 << (LK-1)) if 5*(LK-1) < self.whi else 0}, s{S_IT}")
            else:
                a(f"s_mov_b32 s{S_IT}, 0")
                a(f"s_mov_b32 s{S_NT}, {LK}")
                a(f"s_mov_b32 s{S_NMASK}, {(1 << LK) - 1}")
                a(f"s_mov_b32 s{S_WMASK}, {(1 << (LK-1)) if 5*(LK-1) < self.o['vmw'] else 0}")
                a(f"s_mov_b32 s{S_WMASK2}, {(1 << (LK-1)) if 5*(LK-1) < self.whi else 0}")
            a(f"s_mov_b32 s{S_CL0}, -1")
            if self.o["stt"] is not None:
                keep, self.o["stn"] = self.o["stn"], self.o["stt"]
                for op in self.assemble_loop(links, "L_loopt" + sfx, False)[1][:-1]:
                    a(op.text)
                self.o["stn"] = keep
        if self.o["align2"]:
            a(".p2align 3")
        a(f"L_loopn{sfx}:")
        _, body, epi = self.assemble_loop(links, "L_loopn" + sfx, False)
        for op in body:
            a(op.text)
            if op.kind == "bar":
                a(f"L_loopn{sfx}_p3:")
        if self.dyn:
            a(f"s_cmp_eq_u32 s{S_IT}, s{S_CL0}")
            a(f"s_cbranch_scc1 L_loopc{sfx}")
        a(f"s_cmp_lt_u32 s{S_IT}, s{S_NT}")
        a(f"s_cbranch_scc1 L_loop{sfx}")
        self.emit_epi(epi)

    def loop_state(self):
        a = self.a
        pl = 2 if self.o["peel"] else 0
        a(f"s_mov_b32 s{S_IT}, {pl}")
        a(f"s_mov_b32 s{S_BUF}, 0")
        a(f"s_mov_b32 s{S_BUFN}, {pl*TBL}")
        if pl:
            a(f"s_mov_b32 s{S_OUT+2}, {XBYTES}")
        a(f"s_mov_b32 s{S_CTB}, {TBL}")
        a(f"s_mov_b32 s{S_OINC}, {256*TB if pl else 0}")
        a(f"s_mov_b64 vcc, {sr(S_EVEN,2)}")
        if self.dyn:
            NS, LK = self.dyn
            ps = self.o["psh"]
            a(f"s_andn2_b32 s{S_NMASK}, {(1 << self.cl0) - 1}, s{S_DMASK}")
            a(f"s_mov_b32 s{S_CL0}, {self.cl0}")
            if self.o["othr"]:
                a(f"s_mov_b32 s{S_CL}, 0")
                a(f"s_mov_b32 s{S_LIM}, {(16 - NS) << ps}")
                a("s_bitcmp1_b32 s2, 0")
                a(f"s_cselect_b32 s{S_THR}, {((16 - NS) << ps) - self.o['othr']}, -1")
            a(f"s_add_u32 s{S_Q}, s{S_OOFF}, {pl*256*TB}")
            for k in range(1, LK):
                a(f"s_add_u32 s{S_Q+k}, s{S_Q+k-1}, {256*TB}")
            a(f"s_sub_u32 s{S_K5}, s{S_XOFF5}, s{S_XOFF}")
            if self.o["pil"]:
                assert ps == 6
                a(f"s_bfe_u32 s{S_T0}, s2, {hex(2 << 16 | 4)}")
                a(f"s_mul_i32 s{S_CB}, s{S_T0}, {TB * 16}")
            else:
                a(f"s_lshr_b32 s{S_T0}, s2, {ps}")
                a(f"s_mul_i32 s{S_CB}, s{S_T0}, {TB << ps}")
            a(f"s_add_u32 s{S_CB}, s{S_CB}, {NS*256*TB}")
            a(f"s_lshl_b32 s{S_T0}, s{S_T0}, 7")
            a(f"s_add_u32 s{S_T0}, s{S_T0}, {CNT_OFF}")
            a(f"s_add_u32 s{S_B}, s{S_WS}, s{S_T0}")
            a(f"s_addc_u32 s{S_B+1}, s{S_WS+1}, 0")
            a(f"s_cmp_eq_u32 s{S_WAVE}, 0")
            a(f"s_cselect_b32 s{S_B+2}, 4, 0")
            a(f"s_cselect_b64 {sr(S_W0,2)}, 1, 0")
        else:
            a(f"s_bfm_b32 s{S_NMASK}, s{S_NT}, 0")
            a(f"s_andn2_b32 s{S_NMASK}, s{S_NMASK}, s{S_DMASK}")

    def stamp(self, n, r="s[98:99]"):
        if self.o["stamp"] and (self.o["stamp"] is True or n in self.o["stamp"]):
            a = self.a
            a(f"s_memtime {r}" if self.o["cyc"] and n in (5, 6) else f"s_memrealtime {r}")
            a("s_waitcnt lgkmcnt(0)")
            a(f"v_writelane_b32 v255, s{r[2:4]}, {n}")

    def descriptor(self, label, vg, ag):
        self.a(f""".amdhsa_kernel {label}
  .amdhsa_next_free_vgpr {vg}
  .amdhsa_next_free_sgpr 102
  .amdhsa_accum_offset {ag}
  .amdhsa_group_segment_fixed_size 0
  .amdhsa_float_denorm_mode_32 3
  .amdhsa_kernarg_size 48
  .amdhsa_user_sgpr_count 2
  .amdhsa_user_sgpr_kernarg_segment_ptr 1
  .amdhsa_system_sgpr_workgroup_id_x 1
.end_amdhsa_kernel""")

    def flush_tail(self):
        for b in self.tailblocks:
            self.a(b)
        self.tailblocks = []

    def gen(self):
        a = self.a
        o = self.o
        K = NAME + "_kernel"
        a(open("cdna_kernels/" + NAME + ".s.ref").read().split("; Override")[0].rstrip())
        if o["fused"]:
            a(f"; @launch grid=(256,1,1) block=(256,1,1) lds={LDS_BYTES}")
        else:
            a(f"; @launch kernel=prep_kernel grid=({NTASK},1,1) block=(256,1,1) lds={LDS_BYTES}")
            a(f"; @launch kernel={K} grid=(256,1,1) block=(256,1,1) lds={LDS_BYTES}")
        a('.amdgcn_target "amdgcn-amd-amdhsa--gfx950"\n.text')
        if not o["fused"]:
            self.entry("prep_kernel", NTASK)
            a(f"s_mov_b32 s{S_TASK}, s2\ns_mov_b32 s{S_BASE}, 0")
            self.producer("", False)
            a("L_end_prep_kernel:\ns_endpgm")
            self.flush_tail()
        self.entry(K, 256)
        a(f"s_mov_b32 s{S_BASE}, 0")
        mid = {id(p): m for p, m in zip(self.pol, self.mid)}
        msk = lambda p: hex(sum(1 << i for i in p[2] if not self.dyn or i < self.cl0) | (p[0] - mid[id(p)]) << 20 | p[1] << 24 | mid[id(p)] << 28)
        def pick(reg, vals):
            if len(set(vals)) == 1:
                a(f"s_mov_b32 s{reg}, {vals[0]}")
                return
            a(f"s_mov_b32 s{reg}, {vals[1]}")
            a(f"s_mov_b32 s{S_T0}, {vals[3]}")
            a(f"s_bitcmp1_b32 s2, {o['gsh']}")
            a(f"s_cselect_b32 s{reg}, s{reg}, {vals[0]}")
            a(f"s_cselect_b32 s{S_T0}, s{S_T0}, {vals[2]}")
            a(f"s_bitcmp1_b32 s2, {o['gsh2']}")
            a(f"s_cselect_b32 s{reg}, s{S_T0}, s{reg}")
        if o["fused"]:
            px = o["px"]
            if o["pil"]:
                a(f"s_lshr_b32 s{S_TASK}, s2, 6")
                a(f"s_and_b32 s{S_T0}, s2, 9")
                a(f"s_lshl1_add_u32 s{S_TASK}, s{S_TASK}, s{S_T0}")
                a(f"s_bfe_u32 s{S_T1}, s2, {hex(2 << 16 | 4)}")
                a(f"s_lshl2_add_u32 s{S_TASK}, s{S_TASK}, s{S_T1}")
                a(f"s_and_b32 s{S_T0}, s2, 7")
                assert px == 2
            elif o["pspread"]:
                a(f"s_bfe_u32 s{S_TASK}, s2, {hex(2 << 16 | 3)}")
                a(f"s_mul_i32 s{S_TASK}, s{S_TASK}, {px}")
                a(f"s_and_b32 s{S_T0}, s2, 7")
                a(f"s_add_u32 s{S_TASK}, s{S_TASK}, s{S_T0}")
                a(f"s_lshr_b32 s{S_T1}, s2, 5")
                a(f"s_lshl3_add_u32 s{S_TASK}, s{S_TASK}, s{S_T1}")
            else:
                a(f"s_lshr_b32 s{S_TASK}, s2, 3")
                a(f"s_mul_i32 s{S_TASK}, s{S_TASK}, {px}")
                a(f"s_and_b32 s{S_T0}, s2, 7")
                a(f"s_add_u32 s{S_TASK}, s{S_TASK}, s{S_T0}")
            a(f"s_cmp_lt_u32 s{S_T0}, {px}")
            a(f"s_cselect_b32 s{S_TASK}, s{S_TASK}, 63")
            a(f"s_cmp_lt_u32 s{S_TASK}, {NTASK}")
            a("s_cbranch_scc1 L_prod")
        pick(S_DMASK, [msk(p) for p in self.pol[:4]])
        self.lane_setup()
        if o["fused"] and o["sig"] == 3:
            self.mb_addr(S_T0, S_T1)
            a(f"s_cmp_eq_u32 s{S_WAVE}, 0")
            a(f"s_cselect_b32 s{S_T0}, s{S_T0}, 0x40000000")
            a(f"v_mov_b32 v8, s{S_T0}")
            a("v_mov_b32 v9, 0")
        self.entry_wait()
        if o["fused"] and o["sig"] == 4:
            assert o["pspread"]
            a(f"s_cmp_lg_u32 s2, {200 if o['pil'] else CLEARER}")
            a("s_cbranch_scc1 L_cons3")
            a("v_lshlrev_b32 v8, 4, v0")
            a("v_mov_b64 v[12:13], 0")
            a("v_mov_b64 v[14:15], 0")
            a(f"buffer_store_dwordx4 v[12:15], v8, {sr(S_DBG,4)}, 0 offen sc1")
            a(f"v_add_u32 v8, {FL_OFF}, v8")
            a("v_add_u32 v9, 4096, v8")
            a(f"buffer_store_dwordx4 v[12:15], v8, {sr(S_WS,4)}, 0 offen sc1")
            a(f"buffer_store_dwordx4 v[12:15], v9, {sr(S_WS,4)}, 0 offen sc1")
            a("v_mov_b32 v10, 1")
            a("v_lshlrev_b32 v11, 2, v0")
            a("s_waitcnt vmcnt(0)")
            a("s_barrier")
            a("s_mov_b32 exec_hi, 0")
            a(f"buffer_store_dword v10, v11, {sr(S_DBG,4)}, 0 offen sc1")
            a("s_mov_b64 exec, -1")
        self.ptouch()
        if o["fused"] and o["sig"] == 3:
            a("s_mov_b64 exec, 1")
            a(f"buffer_store_dword v9, v8, {sr(S_WS,4)}, 0 offen sc1")
            a("s_mov_b64 exec, -1")
        a("L_cons3:")
        self.stamp(1)
        self.dma_setup()
        if o["bias0"]:
            self.bias_load()
        if o["pfd"]:
            a(f"s_waitcnt vmcnt({2 - o['pfd']})")
        def late():
            a(f"s_bfe_u32 s{S_T0}, s{S_DMASK}, {hex(4 << 16 | 20)}")
            a(f"s_cmp_ge_u32 s{S_TASK}, {NTASK}")
            a(f"s_cselect_b32 s{S_T0}, s{S_T0}, 15")
            a(f"s_cmp_lt_u32 s{S_T0}, {6 if o['pfl'] == 2 else 15}")
        if o["pfl"]:
            late()
            a("s_cbranch_scc1 L_rest")
        self.prefetch(20)
        self.stamp(2)
        if o["fused"]:
            a("s_branch L_rest")
            a("L_prod:")
            self.producer("", False)
            pick(S_DMASK, [msk(p) for p in self.pol[4:]] * 2)
            a("s_barrier")
            a(f"s_cmp_lg_u32 s{S_WAVE}, 0")
            a("s_cbranch_scc1 L_cons2")
            if o["sig"] != 4:
                a("v_mov_b32 v8, 1")
                a("s_mov_b64 exec, 1")
            if o["sig"] == 4:
                a(f"v_readfirstlane_b32 s{S_T0}, v8")
                a("s_mov_b64 exec, 0xffff")
                a(f"s_cmp_lg_u32 s{S_T0}, 1")
                a("s_cbranch_scc1 L_pwait")
                a("L_pset:")
                a(f"buffer_store_dword v10, v9, {sr(S_WS,4)}, 0 offen sc1")
                self.tailblocks.append("\n".join([
                    "L_pwait:", f"s_mov_b32 s{S_T1}, {o['maxpoll']}", "L_pwait1:", f"buffer_load_dword v8, off, {sr(S_DBG,4)}, 0 sc1",
                    "s_waitcnt vmcnt(0)", f"v_readfirstlane_b32 s{S_T0}, v8", "s_nop 3", f"s_cmp_eq_u32 s{S_T0}, 1", "s_cbranch_scc1 L_pset",
                    f"s_sub_u32 s{S_T1}, s{S_T1}, 1", "s_cbranch_scc0 L_pwait1", "s_branch L_notlast"]))
            elif o["sig"] == 2:
                a(f"s_lshr_b32 s{S_T0}, s{S_TASK}, 1")
                a(f"s_lshl_b32 s{S_T0}, s{S_T0}, 2")
                a(f"s_bitcmp1_b32 s{S_TASK}, 0")
                a(f"s_cselect_b32 s{S_T1}, 128, 0")
                a(f"s_add_u32 s{S_T0}, s{S_T0}, s{S_T1}")
                a(f"v_mov_b32 v9, s{S_T0}")
                a(f"buffer_store_dword v8, v9, {sr(S_DBG,4)}, 0 offen {o['fs']}")
            else:
                a(f"buffer_atomic_add v8, off, {sr(S_DBG,4)}, 0 offset:128 sc0 sc1")
                if o["sig"] == 3:
                    a("s_mov_b64 exec, -1")
                    a(f"s_mov_b32 s{S_T1}, {MB_OFF}")
                    a(f"v_lshl_add_u32 v10, v{V_LANE}, 7, s{S_T1}")
                    for k in range(1, 4):
                        a(f"v_add_u32 v{10+k}, {8192*k}, v10")
                a("v_mov_b32 v9, 1")
                a("s_waitcnt vmcnt(0)")
                a(f"v_readfirstlane_b32 s{S_T0}, v8")
                a("s_nop 3")
                a(f"s_cmp_lg_u32 s{S_T0}, {NTASK-1}")
                a("s_cbranch_scc1 L_notlast")
                if o["sig"] == 3:
                    for k in range(4):
                        a(f"buffer_store_dword v9, v{10+k}, {sr(S_WS,4)}, 0 offen sc1")
                    a("s_mov_b64 exec, 1")
                a(f"buffer_store_dword v9, off, {sr(S_DBG,4)}, 0 {o['fs']}")
                if o["diag"] and o["diag"][2] == "last":
                    a("s_mov_b32 s101, -1")
            a("L_notlast:")
            self.stamp(15)
            a("s_mov_b64 exec, -1")
            a("L_cons2:")
            self.lane_setup()
            if o["bar2"] and o["sig"] != 4:
                a("s_barrier")
            a("s_branch L_cons3")
            self.flush_tail()
            a("L_rest:")
        for reg, wm in ((S_WMASK, self.wmask), (S_WMASK2, self.wmask2)):
            pick(reg, [hex(x) for x in wm[:4]])
            if o["fused"]:
                pick(S_T1, [hex(x) for x in wm[4:]] * 2)
                a(f"s_cmp_lt_u32 s{S_TASK}, {NTASK}")
                a(f"s_cselect_b32 s{reg}, s{S_T1}, s{reg}")
        if not o["bias0"]:
            self.bias_load()
        self.lane_setup2()
        self.tables_init()
        pre, C, G = self.build()
        if o["pfl"]:
            late()
            a("s_cbranch_scc0 L_pfl_e")
            self.prefetch(20, "L_pfl")
        if o["fused"]:
            a(f"s_cmp_lg_u32 s{S_WAVE}, 0")
            a("s_cbranch_scc1 L_ready")
            if o["sig"] == 4:
                a(f"s_mov_b32 s{S_T1}, {o['maxpoll']}")
                a(f"s_mov_b32 s{S_T0}, {FL_OFF}")
                a(f"v_lshl_add_u32 v9, v{V_LANE}, 7, s{S_T0}")
                a(f"s_bfe_u32 s{S_T0}, s{S_DMASK}, {hex(4 << 16 | 20)}")
                a(f"s_cmp_ge_u32 s{S_T0}, 6")
                a("s_waitcnt vmcnt(15)")
                a("s_cbranch_scc1 L_deep")
                a(f"s_waitcnt vmcnt({0 if o['bias0'] else 1})")
                a("L_deep:")
                self.stamp(14)
                a(f"v_readfirstlane_b32 s{S_T0}, v124")
                a(f"s_mov_b32 exec_hi, {(1 << (NTASK - 32)) - 1}")
                a(f"s_cmp_lg_u32 s{S_T0}, 1")
                a("s_cbranch_scc1 L_cwait")
                self.tailblocks.append("\n".join([
                    "L_cwait:", f"buffer_load_dword v8, off, {sr(S_DBG,4)}, 0 sc1", f"s_sub_u32 s{S_T1}, s{S_T1}, 1", "s_cbranch_scc1 L_giveup",
                    "s_waitcnt vmcnt(0)", f"v_readfirstlane_b32 s{S_T0}, v8", "s_nop 3", f"s_cmp_lg_u32 s{S_T0}, 1", "s_cbranch_scc1 L_cwait",
                    "s_branch L_poll"]))
                a("L_poll:")
                if o["psleep"]:
                    a(f"s_sleep {o['psleep']}")
                a(f"buffer_load_dword v8, v9, {sr(S_WS,4)}, 0 offen sc1")
                a(f"s_sub_u32 s{S_T1}, s{S_T1}, 1")
                a("s_cbranch_scc1 L_giveup")
                a("s_waitcnt vmcnt(0)")
                a("v_cmp_ne_u32 vcc, 1, v8")
                a("s_nop 4")
                a("s_cbranch_vccnz L_poll")
            else:
                if o["sig"] == 2:
                    a(f"v_lshlrev_b32 v9, 2, v{V_LANE}")
                    a("s_waitcnt vmcnt(0)")
                else:
                    a("s_mov_b64 exec, 1")
                a(f"s_mov_b32 s{S_T1}, {o['maxpoll']}")
                if o["stamp"] and (o["stamp"] is True or 14 in o["stamp"]):
                    a("s_waitcnt vmcnt(0)")
                    self.stamp(14)
                if o["sig"] == 3:
                    self.mb_addr(S_T0, S_MASK)
                    a(f"v_mov_b32 v9, s{S_T0}")
                    a(f"s_waitcnt vmcnt({5*self.premin})")
                a("L_poll:")
                if o["psleep"]:
                    a(f"s_sleep {o['psleep']}")
                if o["sig"] == 3:
                    a(f"s_and_b32 s{S_T0}, s{S_T1}, 15")
                    a("s_cbranch_scc0 L_polld")
                    a(f"buffer_load_dword v8, v9, {sr(S_WS,4)}, 0 offen sc1")
                    a("L_pollb:")
                    self.tailblocks.append(f"L_polld:\nbuffer_load_dword v8, off, {sr(S_DBG,4)}, 0 sc1\ns_branch L_pollb")
                else:
                    a(f"buffer_load_dword v8, {'v9' if o['sig'] == 2 else 'off'}, {sr(S_DBG,4)}, 0 {'offen ' if o['sig'] == 2 else ''}{o['pl']}")
                a(f"s_sub_u32 s{S_T1}, s{S_T1}, 1")
                a("s_cbranch_scc1 L_giveup")
                a("s_waitcnt vmcnt(0)")
                if o["sig"] == 2:
                    a("v_cmp_ne_u32 vcc, 0, v8")
                    a(f"s_bcnt1_i32_b64 s{S_T0}, vcc")
                    a(f"s_cmp_lt_u32 s{S_T0}, {NTASK}")
                else:
                    a(f"v_readfirstlane_b32 s{S_T0}, v8")
                    a("s_nop 3")
                    a(f"s_cmp_lg_u32 s{S_T0}, 1")
                a("s_cbranch_scc1 L_poll")
            a("L_polled:")
            a("s_mov_b64 exec, -1")
            a("L_ready:")
            self.tailblocks.append(f"L_giveup:\ns_waitcnt vmcnt(0)\nv_mov_b32 v8, {L_PL + 256}\nv_mov_b32 v9, 1\nds_write_b32 v8, v9\ns_branch L_polled")
        a("s_waitcnt lgkmcnt(0)")
        a("s_barrier")
        self.stamp(3)
        self.emit_build(pre, C, G)
        self.stamp(4, "s[94:95]")
        self.loop_state()
        a("s_waitcnt lgkmcnt(0)")
        a(f"v_mov_b32 v{V_X if o['peel'] else V_T}, {L_PL + 256}")
        a("s_barrier")
        if o["peel"]:
            self.peel()
            for x in self.dma_advance(first=True):
                a(x)
            a(f"s_add_u32 s{S_OOFF}, s{S_OOFF}, {256*TB}")
            self.stamp(5)
            a("s_waitcnt lgkmcnt(0)")
            a("s_barrier")
            if o["links"] is None:
                a(f"s_cmp_lg_u32 s{S_LINK}, 0")
                a("s_cbranch_scc1 L_loopnk_p3")
            a("s_branch L_loopn_p3")
        else:
            a(f"ds_read_b32 v{V_T}, v{V_T}")
            if o["links"] is None:
                a(f"s_cmp_lg_u32 s{S_LINK}, 0")
                a("s_cbranch_scc1 L_linked")
        self.main_loop(bool(o["links"]), "")
        a("L_fin:")
        if o["stamp"]:
            a(f"v_mbcnt_lo_u32_b32 v{V_LANE}, -1, 0\nv_mbcnt_hi_u32_b32 v{V_LANE}, -1, v{V_LANE}")
        self.stamp(6)
        if o["stamp"]:
            a("s_waitcnt vmcnt(0)")
            self.stamp(7)
            a("v_writelane_b32 v255, s100, 0")
            a(f"s_lshl_b32 s{S_T0}, s2, 2\ns_add_u32 s{S_T0}, s{S_T0}, s{S_WAVE}\ns_lshl_b32 s{S_T0}, s{S_T0}, 6")
            a(f"s_add_u32 s{S_T0}, s{S_T0}, {WSBYTES - 65536}")
            if o["trace"]:
                a(f"s_lshl_b32 s{S_T1}, s2, 2\ns_add_u32 s{S_T1}, s{S_T1}, s{S_WAVE}\ns_lshl_b32 s{S_T1}, s{S_T1}, 8")
                a(f"s_add_u32 s{S_T1}, s{S_T1}, {WSBYTES - 65536 - 262144}")
                a(f"v_lshl_add_u32 v8, v{V_LANE}, 2, s{S_T1}")
                a(f"buffer_store_dword v254, v8, {sr(S_WS,4)}, 0 offen")
                a("s_nop 1")
            a(f"v_lshl_add_u32 v254, v{V_LANE}, 2, s{S_T0}")
            a("s_mov_b32 exec_lo, 0xffff\ns_mov_b32 exec_hi, 0")
            a(f"buffer_store_dword v255, v254, {sr(S_WS,4)}, 0 offen")
            if o["diag"]:
                n1, n0, wg, mul = o["diag"]
                a(("s_cmp_lg_u32 s101, -1" if wg == "last" else f"s_cmp_lg_u32 s2, {wg}") + f"\ns_cbranch_scc1 L_end_{K}\ns_cmp_lg_u32 s{S_WAVE}, 0\ns_cbranch_scc1 L_end_{K}")
                a(f"v_readlane_b32 s60, v255, {n1}\nv_readlane_b32 s61, v255, {n0}\ns_nop 3\ns_sub_u32 s60, s60, s61\ns_mul_i32 s60, s60, {mul}")
                a("s_min_u32 s60, s60, 100000\ns_add_u32 s60, s60, 10000")
                a("L_diag:\ns_sleep 1\ns_memrealtime s[62:63]\ns_waitcnt lgkmcnt(0)\ns_sub_u32 s62, s62, s100\ns_cmp_lt_u32 s62, s60\ns_cbranch_scc1 L_diag")
        a(f"L_end_{K}:\ns_endpgm")
        self.flush_tail()
        if o["links"] is None:
            a("L_linked:")
            self.main_loop(True, "k")
            a("s_branch L_fin")
            self.flush_tail()
        self.slow_path(K)
        a('.section .rodata,"a"\n.p2align 6')
        if not o["fused"]:
            self.descriptor("prep_kernel", 128, 128)
            a(".p2align 6")
        self.descriptor(K, 512, 256)
        return "\n".join(self.L) + "\n"


if __name__ == "__main__":
    opts = eval("dict(" + (sys.argv[2] if len(sys.argv) > 2 else "") + ")")
    out = sys.argv[1] if len(sys.argv) > 1 else "cdna_kernels/" + NAME + ".s"
    open(out, "w").write(Gen(**opts).gen())
```

```python
import sys

NAME = "standalone__structured_sparse_n_m__ragged"
TB = 18432
TBL = TB + 128
NB = 8
CNT_OFF = 0x60000
MB_OFF = 0x68000
FL_OFF = 0x70000
CLEARER = 24
PRIV0 = 2
XBYTES = 75497472
WBYTES = 663552
WSBYTES = 301989888
A_OFF = 0
I_OFF = 331776
I8_OFF = I_OFF + 36864
R1_OFF = I8_OFF + 5120
R8_OFF = R1_OFF + 9216
COPY = 393216
NTASK = 41
L_WV = NB * TBL
WV_SZ = 3584
O_X, O_K, O_M, O_BIAS, O_IDX = 64, 384, 704, 1024, 1792
L_PL = L_WV + 4 * WV_SZ
LDS_BYTES = 163840
assert L_PL + 512 <= LDS_BYTES and L_WV % 256 == 0 and WV_SZ % 256 == 0

V_RD0, V_RD1, V_TAB, V_DMA, V_ST, V_ST8, V_BP, V_LANE = 0, 1, 2, 3, 4, 5, 6, 7
V_ACC = 8
V_B = 44
V_BR = 76
V_P = 92
V_T = 108
V_P8 = 112
V_X = 114
V_AD = 118
V_I = 138
V_I8 = 174
V_IR = 179
V_A = 186
S_X, S_OUT, S_WS, S_W, S_B, S_DBG = 16, 20, 24, 28, 32, 36
S_WAVE = 40
S_IT, S_BUF, S_DELTA, S_M0B, S_XOFF, S_OOFF = 41, 42, 43, 44, 45, 46
S_T0, S_T1 = 47, 3
S_MASK = 48
S_EVEN, S_ODD = 80, 82
S_TASK, S_TEND, S_BASE, S_MODE, S_CONT = 84, 85, 86, 87, 88
S_BAD = 90
S_MORE, S_LINK = 78, 89
S_C0 = 93
S_BUFN, S_CTB, S_OINC, S_XOFF5, S_M05, S_M0W, S_HALF = 4, 5, 6, 7, 8, 9, 10
S_NMASK = 12
S_WMASK, S_WMASK2 = 92, 87
S_XINC, S_OINC2, S_NT = 13, 14, 15
S_Q, S_CL, S_CB, S_K5, S_CL0, S_CT, S_W0 = 48, 56, 57, 58, 59, 60, 62
S_LIM, S_THR = 64, 65
V_C = 7
S_DMASK, S_NB0 = 85, 88


def vr(b, n=1):
    return f"v{b}" if n == 1 else f"v[{b}:{b+n-1}]"


def sr(b, n=1):
    return f"s{b}" if n == 1 else f"s[{b}:{b+n-1}]"


def afrag(s, t):
    f = 9 * s + t
    return f"a[{4*f}:{4*f+3}]" if f < 64 else vr(V_A + 4 * (f - 64), 4)


def aidx(s, t):
    if t < 8:
        return V_I + 4 * s + (t >> 1), t & 1
    return V_I8 + (s >> 1), s & 1


BBUF = [0, 1, 2, 3, 0, 1, 0, 2, 3]
PEEL_T = [8, 0, 1, 2, 3, 4, 5, 6, 7]
RT = [[0, 1], [1, 2, 3], [3, 4, 5], [5, 6, 7], [7, 8]]


class Op:
    def __init__(self, text, kind, rd=(), wr=(), tag=""):
        self.text, self.kind, self.rd, self.wr, self.tag = text, kind, set(rd), set(wr), tag


def rng(b, n):
    return range(b, b + n)


class Gen:
    def __init__(self, **o):
        self.o = dict(fused=True, ld="nt", st="sc1", bperm=True, grp=None, nb0=None, gsh=3, gsh2=6, split=0, dyn=(10, 3), psh=6, peel=True, ptail=1, psch=True, n2in=4, midg=(12, 34, 58, 82, 106, 126), vcap=18, stp=None, stt=None, ste=None, mbg=64, cwg=54, dwg=32, wbl2=None, stn=None, pad=0, swp=(0, 0, 0), dropm=(), st8='', stc=None, stamp=False, nodma=False, wl="sc1", ws="sc1",
                      vmw=20, lper=9, drop=(), cyc=False, links=None, ng4=8, px=2, maxpoll=20015, warm=True, bcast=True, l0=12, lw=2, cwarm=True, cwc=True, pfirst=1, ld0=0, othr=96, st2=False, pil=True, pfl=False, ldw='nt', ldc='', pfd=2, bias0=True, ldp=None, ptouch=False, pspread=True, pfw=(3, 1, 0, 0), wtouch=False, bar2=True, early=True, ltail=24, coal=True, rpos=(18, 35, 50, 63, 75), rposl=(18, 36, 52, 66, 78),
                      lead=8, stg=(9, 16, 23, 30, 37), dmag=(44, 52, 60, 63, 66), gsp=2, eager=99, verbose=False, hack=None, diag=None, sig=4, psleep=0, pl='sc1', fs='sc1', isort=False, trace=False, chain=True, ord1=(0,1,4,5,6,2,3,7,8), ord2=(0,4,5,1,6,7,2,3,8), align2=True, order='hp')
        self.o.update(o)
        if self.o["grp"] is None and self.o["nb0"] is None:
            self.o.update(grp=[(3, 2, 2), (8, 0, 5), (3, 2, 2)])
        grp = self.o["grp"] or [(self.o["nb0"], 0, 0)] * 2
        if len(grp) != 6:
            grp = list(grp[:-1]) * (4 // (len(grp) - 1)) + [grp[-1]] * 2
        sp = self.o["split"]
        if sp:
            self.o["gsh"], self.o["gsh2"] = 0, 3
        self.pol, self.nt = [], []
        self.mid = []
        for c, (n1, n2, its) in enumerate(grp):
            self.mid.append(n1[1] if isinstance(n1, tuple) else 0)
            n1 = sum(n1) if isinstance(n1, tuple) else n1
            nt = 16 + (sp if c % 2 == 0 else -sp)
            nb = n1 + n2
            its = list(its) if isinstance(its, (list, tuple)) else [its]
            while len(its) < nt - nb:
                its.append(its[-1] + 1)
            assert len(its) == nt - nb and all(nb + n - 7 <= i <= nb + n - 2 for n, i in enumerate(its)) and n1 >= 1, (n1, n2, its)
            self.pol.append((n1, n2, its))
            self.nt.append(nt)
        self.dyn = self.o["dyn"]
        if self.dyn:
            NS, LK = self.dyn
            self.cl0 = NS - LK - 1
            assert not sp and all(its[NS - 1 - n1 - n2] == self.cl0 and its[-1] == 15 - LK for n1, n2, its in self.pol) and self.cl0 >= 1
        self.n2min = min(p[1] for p in self.pol)
        self.premin = min(p[0] - m for p, m in zip(self.pol, self.mid))
        assert not max(self.mid) or (self.o["peel"] and self.premin >= 2 and max(self.mid) <= len(self.o["midg"]))
        req = []
        for (n1, n2, its), nt in zip(self.pol, self.nt):
            r = [63] * nt
            for tile in range(n1, nt):
                i = tile - 1
                a0 = (1 if self.o["peel"] else -1) if tile < n1 + n2 else its[tile - n1 - n2]
                r[i] = sum(10 if j in its else 5 for j in range(a0 + 1, i + 1)) + 5 * max(0, n1 + n2 - 1 - tile)
                if a0 < 0:
                    r[i] -= 5
            if self.o["peel"]:
                assert n1 >= 3 and its[0] >= 2 and not sp
            elif self.o["early"]:
                r[0] = min(r[0], 5 * n2 + (5 if 0 in its else 0))
            if self.dyn:
                r = r[:self.cl0] + [5 * (self.dyn[1] - 1)]
            req.append(r)
        low = sorted({x for r in req for x in r if x < self.o["vmw"]})
        self.wlo = low[0] if low else 0
        best = None
        for hi in low or [0]:
            cost = sum(x - (hi if x >= hi else self.wlo) for r in req[:4] for x in r[1:] if x < self.o["vmw"])
            if best is None or cost < best[0]:
                best = (cost, hi)
        self.whi = best[1]
        self.wmask = [sum(1 << (i + 1) for i, x in enumerate(r) if x < self.o["vmw"]) for r in req]
        self.wmask2 = [sum(1 << (i + 1) for i, x in enumerate(r) if x < self.whi) for r in req]
        self.req = req
        self.L = []
        self.tailblocks = []

    def a(self, s):
        self.L.extend(s.split("\n"))

    def entry(self, label, nwg):
        a = self.a
        a(f".globl {label}\n.p2align 8\n.type {label},@function\n{label}:")
        a("s_load_dwordx8 s[4:11], s[0:1], 0")
        a("s_load_dwordx4 s[12:15], s[0:1], 32")
        a(f"s_cmp_ge_u32 s2, {nwg}")
        a(f"s_cbranch_scc1 L_end_{label}")
        if self.o["stamp"]:
            a("s_memrealtime s[100:101]")
        self.cw = ["v_lshlrev_b32 v3, 7, v0", "s_getpc_b64 s[96:97]", f"v_min_u32 v2, L_slow-{label}, v3",
                   f"global_load_dword v120, v2, s[96:97] {self.o['ldc']}"] if self.o["cwarm"] else []
        if not (self.o["cwc"] and self.o["pfirst"] == 1):
            for x in self.cw:
                a(x)
        if self.o["wtouch"]:
            a(f"s_lshr_b32 s{S_T0}, s2, 3")
            a(f"s_mul_i32 s{S_T0}, s{S_T0}, {162*128}")
            a(f"v_add_u32 v3, s{S_T0}, v3")
            a(f"v_min_u32 v3, {WBYTES-128}, v3")
            a(f"s_and_b32 s{S_T0}, s2, {8 - self.o['px']}")
            a("s_waitcnt lgkmcnt(0)")
            a(f"s_cbranch_scc1 L_nt_{label}")
            a(f"global_load_dword v121, v3, s[6:7] {self.o['ldw']}")
            a(f"L_nt_{label}:")
        a("v_lshrrev_b32 v1, 6, v0")
        a(f"v_and_b32 v{V_LANE}, 63, v0")
        a(f"v_readfirstlane_b32 s{S_WAVE}, v1")

    def mb_addr(self, d, t):
        a = self.a
        a(f"s_lshr_b32 s{d}, s2, 4")
        a(f"s_and_b32 s{t}, s2, 7")
        a(f"s_lshl3_add_u32 s{d}, s{d}, s{t}")
        a(f"s_and_b32 s{t}, s2, 8")
        a(f"s_lshl4_add_u32 s{d}, s{t}, s{d}")
        a(f"s_lshl_b32 s{d}, s{d}, 7")
        a(f"s_add_u32 s{d}, s{d}, {MB_OFF}")

    def ptouch(self):
        if self.o["ptouch"]:
            a = self.a
            a("s_mov_b64 exec, 1")
            a(f"s_mov_b32 s{S_T0}, {MB_OFF + 0x8000}")
            a(f"buffer_load_dword v122, off, {sr(S_WS,4)}, s{S_T0} sc1")
            a(f"buffer_load_dword v123, off, {sr(S_DBG,4)}, 0 sc1")
            a("s_mov_b64 exec, -1")

    def srds(self, which):
        for srd, p, size in ((S_W, 6, WBYTES), (S_X, 4, XBYTES), (S_WS, 14, WSBYTES), (S_B, 8, 1152), (S_OUT, 10, 0), (S_DBG, 12, 256)):
            if srd in which:
                self.a(f"s_mov_b32 s{srd+2}, {size}")
                self.a(f"s_mov_b32 s{srd+3}, 0x20000")
                self.a(f"s_mov_b32 s{srd}, s{p}")
                self.a(f"s_and_b32 s{srd+1}, s{p+1}, 0xffff")

    def entry_wait(self, first=None):
        lst = (S_W, S_X, S_WS, S_B, S_OUT, S_DBG)
        if first is not False:
            self.a("s_waitcnt lgkmcnt(0)")
        self.srds(lst if first is None else (lst[:1] if first else lst[1:]))

    def producer(self, sfx, generic):
        a = self.a
        ws = self.o["ws"]
        W, Z, K = 8, 24, 28
        OA, NB_, IX = 36, 44, 48
        VL, VA, VI, VM0, VM1, VSEL, CJ = 50, 51, 52, 53, 54, 55, 56
        F0, F1, H, U, T0, T1, T2, VLI, VA2, VLD, VLR = 58, 59, 60, 61, 62, 63, 64, 65, 66, 67, 57
        C = S_MASK
        SEL = S_MASK + 16
        CNT = S_MASK + 27
        ln = f"v{V_LANE}"
        a(f"s_and_b32 s{C}, s{S_TASK}, 3")
        a(f"s_lshr_b32 s{C+1}, s{S_TASK}, 2")
        a(f"s_sub_u32 s{C+2}, s{S_TASK}, 36")
        a(f"s_lshl_b32 s{C+3}, s{S_WAVE}, 4")
        a(f"s_lshl_b32 s{C+4}, s{C+2}, 1")
        a(f"s_lshl_b32 s{C+5}, s{C}, 8")
        a(f"s_cmp_lt_u32 s{S_TASK}, 36")
        a(f"s_cselect_b32 s{C+4}, s{C+1}, s{C+4}")
        a(f"s_cselect_b32 s{C+5}, s{C+5}, 1024")
        a(f"s_cselect_b32 s{C+6}, 8, 73728")
        a(f"s_cselect_b32 s{C+7}, 32, 8")
        a(f"s_cselect_b32 s{C+8}, 16, 32")
        a(f"s_cselect_b32 s{C+9}, 128, 64")
        a(f"s_mul_i32 s{C+4}, s{C+4}, 73728")
        a(f"s_mul_i32 s{C+10}, s{S_WAVE}, 18432")
        a(f"v_and_b32 v{F0}, 1, {ln}")
        a(f"v_bfe_u32 v{F1}, {ln}, 1, 1")
        a(f"v_bfe_u32 v{H}, {ln}, 2, 2")
        a(f"v_bfe_u32 v{T0}, {ln}, 4, 1")
        a(f"v_lshrrev_b32 v{T1}, 5, {ln}")
        a(f"v_lshl_add_u32 v{VL}, v{F0}, 2, s{C+4}")
        a(f"v_mad_u32_u24 v{VL}, v{F1}, s{C+6}, v{VL}")
        a(f"v_mad_u32_u24 v{VL}, v{H}, s{C+7}, v{VL}")
        a(f"v_mad_u32_u24 v{VL}, v{T0}, s{C+8}, v{VL}")
        a(f"v_mad_u32_u24 v{VL}, v{T1}, s{C+9}, v{VL}")
        a(f"v_add_u32 v{VL}, s{C+5}, v{VL}")
        a(f"v_add_u32 v{VL}, s{C+10}, v{VL}")
        a(f"v_add_u32 v{T0}, 4608, v{VL}")
        a(f"v_add_u32 v{T1}, 9216, v{VL}")
        a(f"v_add_u32 v{T2}, 13824, v{VL}")
        if not generic:
            self.entry_wait(first=True)
        for q in range(4):
            for j in range(4):
                a(f"buffer_load_dword v{W+4*q+j}, v{(VL, T0, T1, T2)[q]}, {sr(S_W,4)}, 0 offen offset:{1152*j} {'' if generic else self.o['ldw']}")
        if not generic:
            self.stamp(8)
            self.entry_wait(first=False)
            self.ptouch()
        a(f"s_mul_i32 s{C+4}, s{C}, 9")
        a(f"s_add_u32 s{C+4}, s{C+4}, s{C+1}")
        a(f"s_mul_i32 s{C+5}, s{C+4}, 9")
        a(f"s_mul_i32 s{C+6}, s{C+2}, 18")
        a(f"s_add_u32 s{C+6}, s{C+6}, 8")
        a(f"s_lshl_b32 s{C+7}, s{C+4}, 2")
        a(f"s_add_u32 s{C+7}, s{C+7}, s{S_WAVE}")
        a(f"s_lshl_b32 s{C+8}, s{C+2}, 2")
        a(f"s_add_u32 s{C+8}, s{C+8}, s{S_WAVE}")
        a(f"s_cmp_eq_u32 s{S_TASK}, 40")
        a(f"s_cselect_b32 s{C+9}, 0x100000, 9")
        a(f"s_cmp_lt_u32 s{S_TASK}, 36")
        a(f"s_cselect_b32 s{C+5}, s{C+5}, s{C+6}")
        a(f"s_cselect_b32 s{C+6}, 2, 81")
        a(f"s_cselect_b32 s{C+9}, 1, s{C+9}")
        a(f"s_cselect_b32 s{C+7}, s{C+7}, s{C+8}")
        a(f"s_mov_b32 s{C+8}, {I_OFF}")
        a(f"s_cselect_b32 s{C+8}, s{C+8}, {I8_OFF}")
        a(f"s_mov_b32 s{C+10}, {R1_OFF}")
        a(f"s_cselect_b32 s{C+10}, s{C+10}, {R8_OFF}")
        a(f"s_cselect_b32 s{C+11}, 16, 4")
        a(f"s_cselect_b32 s{C+12}, 4, 64")
        a(f"s_cselect_b32 s{C+13}, 12, 11")
        a(f"s_cselect_b32 s{C+14}, 1, 0x8001")
        a(f"v_lshrrev_b32 v{U}, 4, {ln}")
        a(f"v_lshlrev_b32 v{T0}, 1, v{F0}")
        a(f"v_lshl_add_u32 v{H}, v{H}, 2, v{T0}")
        a(f"v_add_u32 v{T0}, v{H}, v{F1}")
        a(f"v_mul_u32_u24 v{VA}, s{C+6}, v{U}")
        a(f"v_add_lshl_u32 v{VA}, v{VA}, s{C+5}, 6")
        a(f"v_add3_u32 v{VA}, v{VA}, v{T0}, s{C+3}")
        a(f"v_lshl_add_u32 v{VA}, v{VA}, 4, s{S_BASE}")
        a(f"s_lshl_b32 s{C+9}, s{C+9}, 10")
        a(f"v_add_u32 v{VA2}, s{C+9}, v{VA}")
        a(f"s_lshl_b32 s{C+4}, s{C+7}, 8")
        a(f"s_add_u32 s{C+4}, s{C+4}, s{C+8}")
        a(f"s_add_u32 s{C+4}, s{C+4}, s{S_BASE}")
        a(f"v_mul_u32_u24 v{VI}, s{C+11}, v{T0}")
        a(f"v_mad_u32_u24 v{VI}, v{U}, s{C+12}, v{VI}")
        a(f"v_lshl_add_u32 v{VM1}, {ln}, 2, s{C+4}")
        if not generic:
            a(f"s_lshr_b32 s{C+4}, s{C+7}, 2")
            a(f"s_lshl_b32 s{C+4}, s{C+4}, 8")
            a(f"s_add_u32 s{C+10}, s{C+10}, s{C+4}")
            a(f"s_lshl2_add_u32 s{C+10}, s{C+3}, s{C+10}")
            a(f"s_lshl_b32 s{C+4}, s{C+3}, 1")
            a(f"s_add_u32 s{C+4}, s{C+4}, s{C+14}")
            a(f"v_lshl_add_u32 v{T0}, v{U}, 1, v{F1}")
            a(f"v_lshlrev_b32 v{T0}, s{C+13}, v{T0}")
            a(f"v_lshl_add_u32 v{VM0}, v{H}, 7, v{T0}")
            a(f"v_add_u32 v{VM0}, s{C+4}, v{VM0}")
            a(f"v_and_b32 v{T0}, 12, {ln}")
            a(f"v_and_b32 v{T1}, 15, {ln}")
            a(f"v_mad_u32_u24 v{T0}, v{T0}, 3, v{T1}")
            a(f"v_lshl_add_u32 v{T0}, v{T0}, 2, s{C+3}")
            a(f"v_mov_b32 v{VLD}, 0")
            a(f"ds_write_b32 v{T0}, v{VLD}")
            a(f"s_lshl2_add_u32 s{C+4}, s{S_TASK}, s{S_WAVE}")
            a(f"s_lshl_b32 s{C+4}, s{C+4}, 7")
            a(f"s_add_u32 s{C+4}, s{C+4}, {CNT_OFF - 64}")
            a(f"v_lshl_add_u32 v{VLI}, {ln}, 2, s{C+10}")
            a(f"v_lshl_add_u32 v{T0}, {ln}, 2, s{C+4}")
            a(f"v_cmp_gt_u32 vcc, 16, {ln}")
            a(f"s_lshl_b32 s{C+4}, s{C+3}, 2")
            a(f"v_lshl_add_u32 v{VLR}, {ln}, 2, s{C+4}")
            a(f"v_cndmask_b32 v{VLI}, v{T0}, v{VLI}, vcc")
            if self.o["sig"] == 3:
                self.mb_addr(C + 4, C + 5)
                a(f"s_sub_u32 s{C+4}, s{C+4}, 192")
                a(f"v_cmp_gt_u32 vcc, 48, {ln}")
                a(f"v_lshl_add_u32 v{T0}, {ln}, 2, s{C+4}")
                a("s_nop 0")
                a(f"v_cndmask_b32 v{VLI}, v{T0}, v{VLI}, vcc")
            a(f"s_mov_b32 s{CNT}, 0")
            a(f"s_mov_b32 s{SEL+9}, 0x05060100")
            a(f"s_mov_b32 s{SEL+10}, 0xffff")
        a(f"v_mov_b32 v{VSEL}, 0x05040100")
        a(f"v_mov_b32 v{T0}, 0x03020706")
        a(f"v_cmp_eq_u32 vcc, 1, v{F1}")
        CJ, EF, EO = 68, 76, 82
        for n in range(8):
            a(f"v_mov_b32 v{CJ+n}, {hex(0x0f0a0500 | 0x01010101 * (((n >> 1) << 4) | ((n & 1) << 7)))}")
        a(f"v_cndmask_b32 v{VSEL}, v{VSEL}, v{T0}, vcc")
        if not generic:
            for r in range(3):
                a(f"v_mov_b64 {vr(EF+2*r,2)}, 0")
            a(f"v_mov_b32 v{EO}, 0")
        for c in range(2):
            for j in range(4):
                a(f"s_mov_b32 s{SEL+4*c+j}, {hex(((5+2*c) << 24) | ((4+2*c) << 16) | ((5+2*c) << 8) | j)}")
        a(f"s_mov_b32 s{SEL+8}, 0x05060102")
        if generic:
            a(f"s_cmp_lg_u32 s{S_MODE}, 0")
        sw = "src0_sel:WORD_1 src1_sel:WORD_1"
        for q in range(4):
            a(f"s_waitcnt vmcnt({12-4*q + (2 if self.o['ptouch'] and not generic else 0)})")
            if q in (0, 3) and not generic:
                self.stamp(9 + q // 3)
            for c in range(2):
                n = 2 * q + c
                for j in range(4):
                    a(f"v_perm_b32 v{Z+j}, v{W+4*q+j}, v{CJ+n}, s{SEL+4*c+j}")
                a(f"v_max3_f32 v{K}, |v{Z}|, |v{Z+1}|, |v{Z+2}|")
                a(f"v_med3_f32 v{K+1}, |v{Z}|, |v{Z+1}|, |v{Z+2}|")
                a(f"v_min3_f32 v{K+2}, |v{Z}|, |v{Z+1}|, |v{Z+2}|")
                a(f"v_med3_f32 v{K+4}, v{K}, v{K+1}, |v{Z+3}|")
                a(f"v_med3_f32 v{K+5}, v{K+1}, v{K+2}, |v{Z+3}|")
                a(f"v_max_f32 v{K+3}, v{K}, |v{Z+3}|")
                if generic:
                    a(f"v_cmp_eq_u32_sdwa vcc, v{K+5}, v{K+4} {sw}")
                    a(f"s_cbranch_scc0 L_rb{n}{sfx}")
                    a(f"v_min_f32 v{K+2}, v{K+2}, |v{Z+3}|")
                    a(f"v_cndmask_b32 v{K+3}, 0, v{K+5}, vcc")
                    a(f"v_cmp_eq_u32_sdwa vcc, v{K+2}, v{K+4} {sw}")
                    a("s_nop 1")
                    a(f"v_cndmask_b32 v{K+4}, 0, v{K+2}, vcc")
                    a(f"L_rb{n}{sfx}:")
                a(f"v_perm_b32 v{OA+4*c+q}, v{K+3}, v{K+4}, s{SEL+8}")
                nb = NB_ + 2 * c + (q >> 1)
                if q & 1 == 0:
                    a(f"v_bfi_b32 v{nb}, 3, v{K+4}, v{K+3}")
                else:
                    a(f"v_bfi_b32 v{K+3}, 3, v{K+4}, v{K+3}")
                    a(f"v_lshlrev_b32 v{K+3}, 4, v{K+3}")
                    a(f"v_bfi_b32 v{nb}, 15, v{nb}, v{K+3}")
                if not generic:
                    a(f"v_cmpx_eq_u32_sdwa vcc, v{K+5}, v{K+4} {sw}")
                    if n >= 3:
                        a(f"v_or_b32 v{EO}, v{EO}, v{EF+4}")
                    if n >= 2:
                        a(f"v_mov_b64 {vr(EF+4,2)}, {vr(EF+2,2)}")
                    if n >= 1:
                        a(f"v_mov_b64 {vr(EF+2,2)}, {vr(EF,2)}")
                    a(f"v_mov_b32 v{EF}, v{K+5}")
                    a(f"v_min_f32 v{EF+1}, v{K+2}, |v{Z+3}|")
                    a("s_mov_b64 exec, -1")
        x2 = "quad_perm:[2,3,0,1] row_mask:0xf bank_mask:0xf"
        a("s_mov_b32 vcc_lo, 0x33333333")
        a("s_mov_b32 vcc_hi, 0x33333333")
        for d in range(4):
            a(f"v_cndmask_b32_dpp v{Z+d}, v{OA+4+d}, v{OA+d}, vcc {x2}")
        a("s_not_b64 vcc, vcc")
        a(f"buffer_store_dwordx4 {vr(Z,4)}, v{VA}, {sr(S_WS,4)}, 0 offen {ws}")
        for d in range(4):
            a(f"v_cndmask_b32_dpp v{OA+4+d}, v{OA+d}, v{OA+4+d}, vcc {x2}")
        a(f"s_mov_b32 s{C+4}, 0x0c0c0400")
        a(f"s_mov_b32 s{C+5}, 0x04000c0c")
        a(f"buffer_store_dwordx4 {vr(OA+4,4)}, v{VA2}, {sr(S_WS,4)}, 0 offen {ws}")
        a(f"v_perm_b32 v{IX}, v{NB_+1}, v{NB_}, s{C+4}")
        a(f"v_perm_b32 v{IX+1}, v{NB_+3}, v{NB_+2}, s{C+5}")
        a(f"v_or_b32 v{IX}, v{IX}, v{IX+1}")
        a("s_nop 1")
        a(f"v_mov_b32_dpp v{IX+1}, v{IX} quad_perm:[2,3,0,1] row_mask:0xf bank_mask:0xf")
        a(f"v_perm_b32 v{IX}, v{IX+1}, v{IX}, v{VSEL}")
        a(f"ds_permute_b32 v{IX}, v{VI}, v{IX}")
        if generic:
            a("s_waitcnt lgkmcnt(0)")
            a(f"buffer_store_dword v{IX}, v{VM1}, {sr(S_WS,4)}, 0 offen {ws}")
        if not generic:
            self.stamp(11)
            a(f"v_cmp_lt_u32 {sr(C+6,2)}, s{SEL+10}, v{EO}")
            a(f"L_emit{sfx}:")
            a(f"v_cmp_lt_u32 vcc, s{SEL+10}, v{EF}")
            a(f"v_cmp_eq_u32_sdwa {sr(C,2)}, v{EF+1}, v{EF} {sw}")
            a(f"v_perm_b32 v{T1}, v{EF}, v{VM0}, s{SEL+9}")
            a(f"v_bfe_u32 v{T0}, v{EF}, 2, 4")
            a(f"v_and_b32 v{T2}, 0x80, v{EF}")
            a(f"v_lshl_add_u32 v{T1}, v{T0}, 1, v{T1}")
            a(f"v_mbcnt_lo_u32_b32 v{T0}, vcc_lo, 0")
            a(f"v_mbcnt_hi_u32_b32 v{T0}, vcc_hi, v{T0}")
            a(f"v_add_u32 v{T1}, v{T2}, v{T1}")
            a(f"v_add_u32 v{T0}, s{CNT}, v{T0}")
            a(f"s_bcnt1_i32_b64 s{C+4}, vcc")
            a(f"s_add_u32 s{CNT}, s{CNT}, s{C+4}")
            a(f"v_cmp_gt_u32 {sr(C+4,2)}, 15, v{T0}")
            a(f"v_and_b32 v{T2}, 12, v{T0}")
            a(f"v_mad_u32_u24 v{T0}, v{T2}, 3, v{T0}")
            a(f"v_lshl_add_u32 v{T0}, v{T0}, 2, s{C+3}")
            a(f"s_and_b64 {sr(C,2)}, {sr(C,2)}, vcc")
            a(f"s_and_b64 exec, {sr(C+4,2)}, vcc")
            a(f"ds_write_b32 v{T0}, v{T1}")
            a(f"s_mov_b64 exec, {sr(C,2)}")
            a(f"v_mov_b32 v{EF}, v{EF+1}")
            a(f"v_mov_b32 v{EF+1}, 0")
            a(f"s_not_b64 exec, exec")
            a(f"v_mov_b64 {vr(EF,2)}, {vr(EF+2,2)}")
            a(f"v_mov_b64 {vr(EF+2,2)}, {vr(EF+4,2)}")
            a(f"v_mov_b64 {vr(EF+4,2)}, 0")
            a("s_mov_b64 exec, -1")
            a(f"v_or3_b32 v{T0}, v{EF}, v{EF+2}, v{EF+4}")
            a(f"v_cmp_lt_u32 vcc, s{SEL+10}, v{T0}")
            a(f"s_cmp_lg_u64 {sr(C+6,2)}, 0")
            a(f"s_cselect_b32 s{C+4}, 99, s{CNT}")
            a(f"s_cmp_gt_u32 s{C+4}, 15")
            a(f"s_cselect_b32 s{C+4}, -1, 0")
            a(f"v_mov_b32 v{T1}, s{C+3}")
            a(f"s_cbranch_vccnz L_emit{sfx}")
            a(f"v_mov_b32 v{T0}, s{C+4}")
            a(f"ds_write_b32 v{T1}, v{T0} offset:204")
            if self.o["sig"] == 4:
                a(f"v_lshlrev_b32 v{W+3}, 4, v{T1}")
            a("s_waitcnt lgkmcnt(0)")
            a("s_barrier")
            a("s_mov_b64 exec, 0xffff")
            a(f"ds_read_b32 v{VLD}, v{VLR}")
            a("s_mov_b64 exec, -1")
            a(f"buffer_store_dword v{IX}, v{VM1}, {sr(S_WS,4)}, 0 offen {ws}")
            if self.o["sig"] != 3:
                a("s_mov_b32 exec_hi, 0xffff")
            a("s_waitcnt lgkmcnt(0)")
            a(f"buffer_store_dword v{VLD}, v{VLI}, {sr(S_WS,4)}, 0 offen {ws}")
            if self.o["sig"] == 4:
                a("s_mov_b64 exec, 1")
                a(f"buffer_load_dword v{W}, v{W+3}, {sr(S_DBG,4)}, 0 offen sc1")
            a("s_mov_b64 exec, -1")
            if self.o["sig"] == 4:
                a(f"s_lshl_b32 s{C+4}, s{S_TASK}, 7")
                a(f"s_add_u32 s{C+4}, s{C+4}, {FL_OFF}")
                a(f"v_lshl_add_u32 v{W+1}, {ln}, 2, s{C+4}")
                a(f"v_mov_b32 v{W+2}, 1")
            self.stamp(12)
        a("s_waitcnt vmcnt(0)")
        if not generic:
            self.stamp(13)

    def lane_setup(self):
        a = self.a
        ln = f"v{V_LANE}"
        T0, T1, T2 = 72, 73, 74
        a(f"v_lshrrev_b32 v{T0}, 3, {ln}")
        a(f"v_and_b32 v{T1}, 7, {ln}")
        a(f"v_xor_b32 v{T1}, v{T1}, v{T0}")
        a(f"v_mul_u32_u24 v{T0}, 1152, v{T0}")
        a(f"s_and_b32 s{S_T0}, s{S_WAVE}, 1")
        a(f"s_mul_i32 s{S_T0}, s{S_T0}, 9216")
        a(f"s_lshr_b32 s{S_T1}, s{S_WAVE}, 1")
        a(f"s_lshl_b32 s{S_T1}, s{S_T1}, 7")
        a(f"s_add_u32 s{S_T0}, s{S_T0}, s{S_T1}")
        a(f"v_lshl_add_u32 v{T0}, v{T1}, 4, v{T0}")
        a(f"v_add_u32 v{V_DMA}, s{S_T0}, v{T0}")
        a(f"s_lshl_b32 s{S_M0B}, s{S_WAVE}, 10")
        if self.o["split"]:
            a(f"s_bitcmp1_b32 s2, 0")
            a(f"s_cselect_b32 s{S_XOFF}, 256, 1")
            a(f"s_add_u32 s{S_XOFF}, s{S_XOFF}, s2")
            a(f"s_mul_i32 s{S_XOFF}, s{S_XOFF}, {TB}")
        else:
            a(f"s_mul_i32 s{S_XOFF}, s2, {TB}")
        a(f"s_mov_b32 s{S_OOFF}, s{S_XOFF}")

    def lane_setup2(self):
        a = self.a
        ln = f"v{V_LANE}"
        T0, T1, T2 = 72, 73, 74
        a(f"v_and_b32 v{T0}, 15, {ln}")
        a(f"v_lshrrev_b32 v{T1}, 4, {ln}")
        a(f"v_and_b32 v{T2}, 7, {ln}")
        a(f"v_xor_b32 v{T2}, v{T2}, v{T1}")
        a(f"v_lshlrev_b32 v{T2}, 4, v{T2}")
        a(f"v_lshl_add_u32 v{V_RD0}, v{T0}, 7, v{T2}")
        a(f"v_xor_b32 v{V_RD1}, 64, v{V_RD0}")
        a(f"s_mul_i32 s{S_C0}, s{S_WAVE}, {WV_SZ}")
        a(f"s_add_u32 s{S_C0}, s{S_C0}, {L_WV}")
        a(f"v_lshl_add_u32 v{V_TAB}, v{T1}, 4, s{S_C0}")
        a(f"v_and_b32 v{T2}, 14, {ln}")
        a(f"v_mul_u32_u24 v{V_ST}, 1152, v{T2}")
        a(f"v_and_b32 v{T2}, 1, {ln}")
        a(f"v_lshl_add_u32 v{V_ST}, v{T2}, 4, v{V_ST}")
        a(f"v_lshl_add_u32 v{V_ST}, v{T1}, 5, v{V_ST}")
        a(f"s_lshl_b32 s{S_T0}, s{S_WAVE}, 8")
        a(f"v_add_u32 v{V_ST}, s{S_T0}, v{V_ST}")
        if self.o["hack"] == "q4":
            a(f"v_lshrrev_b32 v{T2}, 3, {ln}")
            a(f"v_mul_u32_u24 v{V_ST}, 2304, v{T2}")
            a(f"v_and_b32 v{T2}, 7, {ln}")
            a(f"v_lshl_add_u32 v{V_ST}, v{T2}, 4, v{V_ST}")
            a(f"v_add_u32 v{V_ST}, s{S_T0}, v{V_ST}")
        a(f"s_lshl_b32 s{S_T0}, s{S_WAVE}, 5")
        a(f"s_add_u32 s{S_T0}, s{S_T0}, 1024")
        if self.o["bperm"]:
            a(f"v_lshrrev_b32 v{T0}, 2, {ln}")
            a(f"v_and_b32 v{T1}, 3, {ln}")
            a(f"v_lshl_add_u32 v{V_BP}, v{T1}, 4, v{T0}")
            a(f"v_lshlrev_b32 v{V_BP}, 2, v{V_BP}")
        else:
            a(f"v_lshlrev_b32 v{V_BP}, 2, {ln}")
        a(f"v_mul_u32_u24 v{V_ST8}, 1152, v{T0}")
        a(f"v_lshl_add_u32 v{V_ST8}, v{T1}, 3, v{V_ST8}")
        a(f"v_add_u32 v{V_ST8}, s{S_T0}, v{V_ST8}")
        a(f"s_mov_b32 s{S_EVEN}, 0x55555555")
        a(f"s_mov_b32 s{S_EVEN+1}, 0x55555555")
        a(f"s_mov_b32 s{S_ODD}, 0xaaaaaaaa")
        a(f"s_mov_b32 s{S_ODD+1}, 0xaaaaaaaa")

    def dma_setup(self):
        a = self.a
        a(f"s_lshr_b32 s{S_T0}, s{S_WAVE}, 1")
        a(f"s_lshl_b32 s{S_T1}, s{S_T0}, 11")
        a(f"s_sub_u32 s{S_M05}, {16384-896}, s{S_T1}")
        a(f"s_lshl_b32 s{S_T1}, s{S_T0}, 7")
        a(f"s_add_u32 s{S_XOFF5}, s{S_XOFF}, 128")
        a(f"s_sub_u32 s{S_XOFF5}, s{S_XOFF5}, s{S_T1}")
        a(f"s_sub_u32 s{S_HALF}, s{S_T0}, 1")
        a(f"s_sub_u32 s{S_HALF+1}, 0, s{S_T0}")
        a(f"s_mov_b32 s{S_M0W}, s{S_M0B}")
        a(f"s_mov_b32 s{S_XINC}, {256*TB}")
        if self.o["split"]:
            a(f"s_bitcmp1_b32 s2, 0")
            a(f"s_cselect_b32 s{S_XINC}, s{S_XINC}, {-TB}")
            a(f"s_cselect_b32 s{S_NT}, 15, 17")
        else:
            a(f"s_mov_b32 s{S_NT}, 16")
        a(f"s_mov_b32 s{S_OINC2}, s{S_XINC}")

    def dma_advance(self, first=False):
        x = [] if first else [f"s_add_u32 s{S_XOFF}, s{S_XOFF}, {256*TB}", f"s_add_u32 s{S_XOFF5}, s{S_XOFF5}, {256*TB}",
                              f"s_add_u32 s{S_M0B}, s{S_M0B}, s{S_CTB}"]
        return x + [f"s_cmp_ge_u32 s{S_M0B}, {NB*TBL}", f"s_cselect_b32 s{S_M0B}, s{S_M0W}, s{S_M0B}"]

    def dma_tile(self, ld=None):
        a = self.a
        ld = self.o["ld"] if ld is None else ld
        for j in range(5):
            a(f"s_add_u32 m0, s{S_M0B}, {3840*j if j < 4 else 's%d' % S_M05}")
            a("s_nop 0" if j < 4 else f"s_mov_b64 exec, {sr(S_HALF,2)}")
            a(f"buffer_load_dwordx4 v{V_DMA}, {sr(S_X,4)}, s{S_XOFF if j < 4 else S_XOFF5} offen offset:{256*j if j < 4 else 896} {ld} lds")
        a("s_mov_b64 exec, -1")

    def prefetch(self, sh, lab="L_pf"):
        a = self.a
        a(f"s_bfe_u32 s{S_NB0}, s{S_DMASK}, {hex(4 << 16 | sh)}")
        if sh == 20 and self.o["pfw"]:
            k, n, ka, kp = self.o["pfw"]
            a(f"s_mov_b32 s{S_T1}, {k*TBL}")
            a(f"s_cmp_ge_u32 s{S_NB0}, 6")
            a(f"s_cselect_b32 s{S_T1}, s{S_T1}, {ka*TBL}")
            a(f"s_cmp_ge_u32 s{S_TASK}, {NTASK}")
            a(f"s_cselect_b32 s{S_T1}, s{S_T1}, {kp*TBL}")
        if sh != 20 and self.n2min == 0:
            a(f"s_cbranch_scc0 {lab}_e")
        a(f"{lab}:")
        if sh == 20 and self.o["ld0"]:
            a(f"s_cmp_ge_u32 s{S_M0B}, {self.o['ld0']*TBL}")
            a(f"s_cbranch_scc1 {lab}_a")
            self.dma_tile("")
            a(f"s_branch {lab}_b")
            a(f"{lab}_a:")
        self.dma_tile(self.o["ldp"] if sh == 20 else None)
        if sh == 20 and self.o["ld0"]:
            a(f"{lab}_b:")
        if sh == 20 and self.o["sig"] == 4 and self.o["fused"]:
            a(f"s_cmp_lg_u32 s{S_M0B}, {(min(3, self.premin)-1)*TBL}")
            a(f"s_cbranch_scc1 {lab}_f")
            a("s_mov_b64 exec, 1")
            a(f"buffer_load_dword v124, off, {sr(S_DBG,4)}, 0 sc1")
            a("s_mov_b64 exec, -1")
            a(f"{lab}_f:")
        if sh == 20 and self.o["pfw"]:
            n = self.o["pfw"][1]
            a(f"s_cmp_ge_u32 s{S_M0B}, s{S_T1}")
            a(f"s_cbranch_scc1 {lab}_n")
            a(f"s_waitcnt vmcnt({n})")
            a(f"{lab}_n:")
        a(f"s_add_u32 s{S_XOFF5}, s{S_XOFF5}, s{S_XINC}")
        a(f"s_add_u32 s{S_M0B}, s{S_M0B}, {TBL}")
        a(f"s_add_u32 s{S_XOFF}, s{S_XOFF}, s{S_XINC}")
        a(f"s_mov_b32 s{S_XINC}, {256*TB}")
        a(f"s_sub_u32 s{S_NB0}, s{S_NB0}, 1")
        a(f"s_cmp_lg_u32 s{S_NB0}, 0")
        a(f"s_cbranch_scc1 {lab}")
        a(f"{lab}_e:")

    def bias_load(self):
        a = self.a
        ln = f"v{V_LANE}"
        a(f"v_and_b32 v80, 3, {ln}")
        a(f"v_bfe_u32 v81, {ln}, 2, 2")
        a(f"v_bfe_u32 v82, {ln}, 4, 1")
        a("v_lshlrev_b32 v81, 3, v81")
        a("v_lshl_add_u32 v81, v80, 5, v81")
        a("v_lshl_add_u32 v81, v82, 7, v81")
        a(f"s_lshl_b32 s{S_T0}, s{S_WAVE}, 8")
        a(f"v_add_u32 v81, s{S_T0}, v81")
        a(f"s_lshl_b32 s{S_T0}, s{S_WAVE}, 5")
        a(f"s_add_u32 s{S_T0}, s{S_T0}, 1024")
        a(f"v_lshl_add_u32 v80, v80, 3, s{S_T0}")
        a(f"v_cmp_gt_u32 vcc, 32, {ln}")
        a("s_nop 1")
        a("v_cndmask_b32 v80, v80, v81, vcc")
        a(f"buffer_load_dwordx2 v[110:111], v80, {sr(S_B,4)}, 0 offen {self.o['ldc']}")

    def tables_init(self):
        a = self.a
        ln = f"v{V_LANE}"
        a(f"v_lshl_add_u32 v109, {ln}, 4, s{S_C0}")
        a(f"v_lshl_add_u32 v89, {ln}, 2, s{S_C0}")
        for r in range(4):
            a(f"v_mov_b32 v{76+r}, 0")
        a("v_mov_b32 v90, 0xdddddddd")
        a("ds_write_b128 v109, v[76:79]")
        for r in range(7):
            a(f"ds_write_b32 v89, v90 offset:{O_IDX+256*r}")
        a(f"s_lshl_b32 s{S_T0}, s{S_WAVE}, 2")
        a(f"s_add_u32 s{S_T0}, s{S_T0}, {L_PL + 256}")
        a(f"v_mov_b32 v88, s{S_T0}")
        a("ds_write_b32 v88, v76")

    def bias_store(self):
        return ["v_lshlrev_b32 v114, 16, v110", "v_and_b32 v115, 0xffff0000, v110", "v_lshlrev_b32 v116, 16, v111",
                "v_and_b32 v117, 0xffff0000, v111", "s_mov_b32 exec_hi, 15", f"ds_write_b128 v109, v[114:117] offset:{O_BIAS}",
                "s_mov_b64 exec, -1"]

    def wload_list(self, VA, VI8, pairs=False):
        wl = self.o["wl"]
        G = []
        so = S_C0 + 6
        cur = None
        for sp in range(5):
            g = []
            if sp == 4:
                g.append(f"s_mov_b32 s{so}, 4096")
            g.append(f"buffer_load_dword v{V_I8+sp}, v{VI8}, {sr(S_WS,4)}, {'s%d' % so if sp == 4 else '0'} offen offset:{1024*(sp%4)} {wl}")
            G.append(g)
        order = [(s, t) for s in range(9) for t in [None] + list(range(9))]
        if pairs:
            order = order[:70] + [(7, None), (8, None)] + [(s, t) for t in PEEL_T for s in (7, 8)]
        for s, t in order:
            if t is None:
                G.append([f"s_mov_b32 s{so-1}, {1024*s}",
                          f"buffer_load_dwordx4 {vr(V_I+4*s,4)}, v{VA+1}, {sr(S_WS,4)}, s{so-1} offen {wl}"])
            else:
                f = 9 * s + t
                g = []
                if cur != f >> 2:
                    cur = f >> 2
                    g.append(f"s_mov_b32 s{so}, {4096*cur}")
                g.append(f"buffer_load_dwordx4 {afrag(s,t)}, v{VA}, {sr(S_WS,4)}, s{so} offen offset:{1024*(f&3)} {wl}")
                G.append(g)
        return G

    def waddr(self, VA, VI8):
        a = self.a
        ln = f"v{V_LANE}"
        a(f"s_mul_i32 s{S_T0}, s{S_WAVE}, 82944")
        a(f"s_add_u32 s{S_T0}, s{S_T0}, s{S_BASE}")
        a(f"v_lshl_add_u32 v{VA}, {ln}, 4, s{S_T0}")
        a(f"s_mul_i32 s{S_T0}, s{S_WAVE}, 9216")
        a(f"s_add_u32 s{S_T0}, s{S_T0}, s{S_BASE}")
        a(f"s_add_u32 s{S_T0}, s{S_T0}, {I_OFF}")
        a(f"v_lshl_add_u32 v{VA+1}, {ln}, 4, s{S_T0}")
        a(f"s_lshl_b32 s{S_T0}, s{S_WAVE}, 6")
        a(f"s_add_u32 s{S_T0}, s{S_T0}, s{S_BASE}")
        a(f"s_add_u32 s{S_T0}, s{S_T0}, {I8_OFF}")
        a(f"v_and_b32 v{VI8}, 15, {ln}")
        a(f"v_lshl_add_u32 v{VI8}, v{VI8}, 2, s{S_T0}")
        a(f"v_lshrrev_b32 v{VI8+1}, 4, {ln}")
        a(f"v_lshl_add_u32 v{VI8}, v{VI8+1}, 8, v{VI8}")

    def build(self):
        a = self.a
        o = self.o
        ln = f"v{V_LANE}"
        wl = o["wl"]
        VA, VI8 = (112 if o["peel"] else 104), 106
        E, TT, RK, ST = 8, 24, 40, 56
        T0, T1, T2, T3 = 72, 73, 74, 75
        WARM = 76
        ONE, VW, KB, VST, RX, VWARM, CM, CV, TM, TBS, HI, AB, BM, VH, VK, LO = range(88, 104)
        SW = S_C0
        a(f"s_mul_i32 s{S_T0}, s{S_WAVE}, 2304")
        a(f"s_add_u32 s{S_T0}, s{S_T0}, {R1_OFF}")
        a(f"v_and_b32 v{T1}, 60, {ln}")
        a(f"v_mad_u32_u24 v{T1}, v{T1}, 3, {ln}")
        a(f"v_lshl_add_u32 v{T0}, v{T1}, 4, s{S_T0}")
        a(f"s_mov_b32 s{S_T0}, {R8_OFF - 36*64}")
        a(f"v_lshl_add_u32 v{T1}, v{T1}, 4, s{S_T0}")
        a(f"v_lshrrev_b32 v{T2}, 2, {ln}")
        a(f"v_cmp_gt_u32 vcc, 36, {ln}")
        a(f"v_lshlrev_b32 v{KB}, 11, v{T2}")
        a(f"v_subrev_u32 v{T2}, 9, v{T2}")
        a(f"v_lshlrev_b32 v{T2}, 12, v{T2}")
        a(f"v_cndmask_b32 v{T0}, v{T1}, v{T0}, vcc")
        a(f"v_cndmask_b32 v{KB}, v{T2}, v{KB}, vcc")
        a(f"s_lshl_b32 s{S_T0}, s{S_WAVE}, 12")
        a(f"s_add_u32 s{S_T0}, s{S_T0}, 0x8001")
        a(f"v_mov_b32 v{ONE}, 1")
        a(f"v_mov_b32 v{CM}, 0xf001")
        a(f"v_mov_b32 v{CV}, s{S_T0}")
        a(f"v_cndmask_b32 v{CM}, v{CM}, v{ONE}, vcc")
        a(f"v_cndmask_b32 v{CV}, v{CV}, v{ONE}, vcc")
        a(f"v_cndmask_b32 v{TM}, 0, 28, vcc")
        a(f"v_cndmask_b32 v{TBS}, 32, 0, vcc")
        a(f"v_add_u32 v{TBS}, s{SW}, v{TBS}")
        a(f"v_cmp_gt_u32 vcc, 56, {ln}")
        a(f"v_mov_b32 v{T1}, 0x40000000")
        tw = o["warm"] == 2
        a(f"s_lshr_b32 s{S_T0}, s2, {4 if tw else 3}")
        a(f"s_lshl_b32 s{S_T0}, s{S_T0}, 2")
        a(f"s_add_u32 s{S_T0}, s{S_T0}, s{S_WAVE}")
        a(f"s_mul_i32 s{S_T0}, s{S_T0}, {5888 if tw else 2944}")
        a(f"v_cndmask_b32 v{T0}, v{T1}, v{T0}, vcc")
        if tw:
            a(f"v_min_u32 v{VWARM}, 47, {ln}")
            a(f"v_lshl_add_u32 v{VWARM}, v{VWARM}, 7, s{S_T0}")
        else:
            a(f"v_lshl_add_u32 v{VWARM}, {ln}, 4, s{S_T0}")
        self.waddr(VA, VI8)
        a(f"v_and_b32 v{T2}, 15, {ln}")
        a(f"v_and_b32 v{T1}, 7, {ln}")
        a(f"v_lshlrev_b32 v{BM}, 1, v{T1}")
        a(f"v_lshlrev_b32 v{BM}, v{BM}, v{ONE}")
        a(f"v_lshlrev_b32 v{T1}, 4, v{T1}")
        a(f"v_lshl_add_u32 v{RX}, v{T2}, 7, v{T1}")
        a(f"v_lshl_or_b32 v{RX}, v{RX}, 16, v{RX}")
        a(f"v_lshrrev_b32 v{HI}, 5, {ln}")
        a(f"v_bfe_u32 v{AB}, {ln}, 3, 2")
        a(f"v_lshl_add_u32 v{AB}, v{AB}, 6, s{SW}")
        a(f"v_lshl_add_u32 v{VH}, {ln}, 1, s{SW}")
        a(f"v_lshrrev_b32 v{VK}, 4, {ln}")
        a(f"v_lshl_add_u32 v{VK}, v{VK}, 3, s{SW}")
        a(f"v_lshrrev_b32 v{LO}, 1, {ln}")
        a(f"v_lshlrev_b32 v{LO}, 5, v{LO}")
        a(f"s_mov_b32 s{S_LINK}, 0")
        pre = [f"buffer_load_dwordx4 {vr(E+4*r,4)}, v{T0}, {sr(S_WS,4)}, 0 offen offset:{64*r} {wl}" for r in range(4)]
        warm = [[f"buffer_load_dwordx4 {vr(WARM+4*r,4)}, v{VWARM}, {sr(S_WS,4)}, 0 offen offset:{1024*r} {wl}"] for r in range(3)] if o["warm"] else []
        if tw:
            warm = [[f"buffer_load_dword v{WARM}, v{VWARM}, {sr(S_WS,4)}, 0 offen {wl}"]]
        C = []
        g = lambda *x: C.append(list(x))

        def rank(r):
            m = S_MASK + 2 * r
            return [f"v_and_b32 v{T1}, v{CM}, v{E+r}", f"v_lshrrev_b32 v{T0}, 10, v{E+r}", f"v_cmp_eq_u32 {sr(m,2)}, v{T1}, v{CV}",
                    f"v_and_or_b32 v{TT+r}, v{T0}, v{TM}, v{TBS}",
                    f"s_mov_b64 exec, {sr(m,2)}", f"ds_add_rtn_u32 v{RK+r}, v{TT+r}, v{ONE}", "s_mov_b64 exec, -1"]

        def place(r):
            m = S_MASK + 2 * r
            return [f"v_add_u32 v{T1}, v{RK+r}, v{ST+r}", f"v_and_b32 v{T0}, 0x87e, v{E+r}", f"v_lshl_add_u32 v{T1}, v{T1}, 1, s{SW}",
                    f"v_add_u32 v{T0}, v{KB}, v{T0}", f"s_andn2_b64 exec, {sr(m,2)}, {sr(S_BAD,2)}",
                    f"ds_write_b16_d16_hi v{T1}, v{E+r} offset:{O_X}", f"ds_write_b16 v{T1}, v{T0} offset:{O_K}",
                    f"ds_write_b16 v{T1}, v{E+r} offset:{O_M}", "s_mov_b64 exec, -1"]
        g("@WAIT_E")
        g(f"v_cmp_ne_u32 {sr(S_BAD,2)}, 0, v{E+15}", f"v_cmp_ne_u32 {sr(S_MORE,2)}, 0, v{E+8}")
        for r in range(8):
            g(*rank(r))
        g(f"s_cmp_lg_u64 {sr(S_MORE,2)}, 0", "s_cbranch_scc1 L_more1", "L_more1b:", f"ds_read_b32 v{T0}, v{VW}", f"v_mov_b32 v{T1}, 0")
        self.tailblocks.append("\n".join(["L_more1:"] + [x for r in range(8, 15) for x in rank(r)] + ["s_branch L_more1b"]))
        g("s_waitcnt lgkmcnt(0)", f"s_mov_b64 vcc, {sr(S_EVEN,2)}",
          f"v_cndmask_b32_dpp v{T1}, v{T0}, v{T1}, vcc quad_perm:[0,0,2,2] row_mask:0xf bank_mask:0xf",
          f"v_add_u32 v{VST}, v{LO}, v{T1}", f"v_add_u32 v{T1}, v{T0}, v{T1}", f"v_cmp_lt_u32 vcc, 32, v{T1}",
          f"s_or_b32 s{S_BAD}, s{S_BAD}, s{S_BAD+1}", f"s_and_b32 s{S_T0}, vcc_lo, 0x1ff", f"s_or_b32 s{S_T0}, s{S_T0}, s{S_BAD}",
          "s_cbranch_scc1 L_greedy", "L_greedyb:")
        x = ["L_greedy:", f"s_mov_b32 s{S_T0}, 0", f"s_mov_b32 s{S_LINK}, 1"]
        for t in range(9):
            lo = 32 * (t >> 1)
            x += [f"v_readlane_b32 s{S_T1}, v{T0}, {t}", f"s_max_u32 s{S_T0}, s{S_T0}, {lo}",
                  f"v_writelane_b32 v{VST}, s{S_T0}, {t}", "s_nop 1", f"s_add_u32 s{S_T0}, s{S_T0}, s{S_T1}",
                  f"s_cmp_gt_u32 s{S_T0}, {lo + (64 if t & 1 else 32)}", f"s_cselect_b32 s{S_BAD}, 1, s{S_BAD}"]
        x += [f"s_cmp_lg_u32 s{S_BAD}, 0", f"s_cselect_b64 {sr(S_BAD,2)}, -1, 0",
              f"v_mov_b32 v{T1}, {L_PL + 256}", f"s_mov_b64 exec, {sr(S_BAD,2)}", f"ds_write_b32 v{T1}, v{ONE}", "s_mov_b64 exec, -1",
              "s_branch L_greedyb"]
        self.tailblocks.append("\n".join(x))
        g(*[f"ds_bpermute_b32 v{ST+r}, v{TT+r}, v{VST}" for r in range(8)])
        for r in range(8):
            g(*([f"s_waitcnt lgkmcnt({(7, 9, 11, 13, 15, 15, 15, 15)[r] if r else 7})"] if r < 8 else []), *place(r))
        g(f"s_cmp_lg_u64 {sr(S_MORE,2)}, 0", "s_cbranch_scc1 L_more2", "L_more2b:",
          *[f"ds_read_u16 v{E+r}, v{VH} offset:{O_M+128*r}" for r in range(3)],
          *[f"ds_read2_b64 {vr(V_AD+4*j,4)}, v{VK} offset0:{(O_K+64*j)//8} offset1:{(O_K+64*j+32)//8}" for j in range(5)])
        self.tailblocks.append("\n".join(["L_more2:"] + [f"ds_bpermute_b32 v{ST+r}, v{TT+r}, v{VST}" for r in range(8, 15)] + ["s_waitcnt lgkmcnt(0)"]
                                         + [x for r in range(8, 15) for x in place(r)] + ["s_branch L_more2b"]))
        for r in range(3):
            g(*(["s_waitcnt lgkmcnt(5)"] if r == 0 else []),
              f"v_lshrrev_b32 v{T0}, 12, v{E+r}", f"v_cmp_ne_u32 vcc, 0, v{E+r}", f"v_min_u32 v{T0}, 8, v{T0}", f"v_add3_u32 v{T0}, v{T0}, v{HI}, {2*r}",
              f"v_lshlrev_b32 v{T1}, 4, v{T0}", f"v_lshrrev_b32 v{T0}, 1, v{T0}")
            g(f"v_lshlrev_b32 v{T1}, v{T1}, v{BM}", f"v_lshl_add_u32 v{T0}, v{T0}, 8, v{AB}", f"v_bfe_u32 v{T2}, v{E+r}, 7, 4",
              f"v_lshl_add_u32 v{T0}, v{T2}, 2, v{T0}", "s_mov_b64 exec, vcc", *(["s_mov_b32 exec_hi, 0"] if r == 2 else []),
              f"ds_xor_b32 v{T0}, v{T1} offset:{O_IDX}", "s_mov_b64 exec, -1")
        g(*[f"ds_read_b32 v{V_IR+r}, v{VW} offset:{O_IDX+256*r}" for r in range(7)])
        for j in range(5):
            g(*(["s_waitcnt lgkmcnt(10)"] if j == 0 else []), *[f"v_xor_b32 v{V_AD+4*j+q}, v{RX}, v{V_AD+4*j+q}" for q in range(4)])
        g(*self.bias_store())
        return pre, C, warm + self.wload_list(VA, VI8, o['peel'])

    def emit_build(self, pre, C, G):
        a = self.a
        for x in pre:
            a(x)
        nl = 0
        G = list(G)
        G0 = list(G)

        def load(n=1):
            nonlocal nl
            for _ in range(n):
                if G:
                    for x in G.pop(0):
                        a(x)
                    nl += 1
        acc = 0
        for grp in C:
            if grp[0] == "@WAIT_E":
                load(self.o["l0"])
                a(f"s_waitcnt vmcnt({nl})")
                self.stamp(1, "s[94:95]") if self.o["st2"] else None
                continue
            if grp[0] in ("s_waitcnt lgkmcnt(0)", "s_waitcnt lgkmcnt(7)", "s_waitcnt lgkmcnt(5)"):
                load(self.o["lw"])
            for x in grp:
                a(x)
            acc += len(grp)
            while acc >= self.o["lper"]:
                acc -= self.o["lper"]
                load()
        if self.o["peel"]:
            self.issued, self.pending = G0[:len(G0) - len(G)], G
            return
        load(len(G) - self.o["ltail"])
        assert len(G) == self.o["ltail"]
        self.late_loads = [x for grp in G for x in grp]

    @staticmethod
    def regs(txt):
        k, body = txt[0], txt[1:].strip("[]")
        lo, hi = (body.split(":") + [body])[:2]
        return [(256 if k == "a" else 0) + r for r in range(int(lo), int(hi) + 1)]

    def emit_line(self, ops, vm, hist=(), lds=(), vcap=None, hoist=False):
        a = self.a
        lds, hist = list(lds), list(hist)

        def put(op):
            a(op.text)
            hist.append(op)

        def waits(touched):
            w = []
            for q, name, cap in ((vm, "vmcnt", vcap or self.o["vcap"]), (lds, "lgkmcnt", 15)):
                hit = [i for i, x in enumerate(q) if x & touched]
                if hit:
                    n = min(len(q) - 1 - hit[-1], cap)
                    w.append(f"{name}({n})")
                    del q[:len(q) - n]
            if w:
                put(Op("s_waitcnt " + " ".join(w), "salu"))
        for k, op in enumerate(ops):
            touched = op.rd | op.wr
            waits(touched)
            need = 0
            for d, p in enumerate(reversed(hist[-9:])):
                ws = sum(int(x.text[6:]) + 1 if x.text.startswith("s_nop") else 1 for x in hist[len(hist) - d:])
                r = 0
                if p.kind == "mx" and op.kind != "mx" and (p.wr & touched):
                    r = 8
                if p.kind in ("valu", "dpp") and op.kind in ("mx", "dpp") and (p.wr & op.rd):
                    r = 2
                if p.kind == "st" and (p.rd & op.wr):
                    r = 2
                need = max(need, r - ws)
            if need > 0:
                put(Op(f"s_nop {need-1}", "salu"))
            put(op)
            if op.kind == "lds":
                lds.append(op.wr)
            if op.kind in ("ld", "st"):
                vm.append(op.wr)
            if op.kind == "mx" and hoist:
                nxt = [x for x in ops[k + 1:k + 9] if x.kind == "mx"]
                if nxt:
                    waits(nxt[0].rd | nxt[0].wr)
        return hist, lds

    def peel(self):
        o = self.o
        AX = V_BR
        acc = lambda m, t: (AX if m == 0 else V_ACC) + 4 * t
        Ba, Bb, Bc, Bd = (V_B + 8 * k for k in range(4))
        dst = lambda g: set(self.regs(g[-1].split()[1].rstrip(",")))
        vm = [dst(g) for g in self.issued]
        loads = [[Op(x, "salu") for x in g[:-1]] + [Op(g[-1], "ld", wr=dst(g))] for g in self.pending]

        def M(m, s, t, b):
            ir, h = aidx(s, t)
            return Op(f"v_smfmac_f32_16x16x64_bf16 {vr(acc(m,t),4)}, {afrag(s,t)}, {vr(b,8)}, v{ir}" + (" abid:1" if h else ""), "mx",
                      rd=list(rng(acc(m, t), 4)) + list(rng(b, 8)) + self.regs(afrag(s, t)) + [ir], wr=rng(acc(m, t), 4))

        def R(m, j, t):
            c, b = j + t, (Bc, Bd)[m]
            return Op(f"v_smfmac_f32_16x16x64_bf16 {vr(acc(m,t),4)}, {vr(V_X,4)}, {vr(b,8)}, v{V_IR+(c>>1)}" + (" abid:1" if c & 1 else ""), "mx",
                      rd=list(rng(acc(m, t), 4)) + list(rng(b, 8)) + list(rng(V_X, 4)), wr=rng(acc(m, t), 4))

        def B(m, s, b):
            return [Op(f"ds_read_b128 {vr(b+4*h,4)}, v{V_RD0+h} offset:{2048*s+TBL*m}", "lds", rd=[V_RD0 + h], wr=rng(b + 4 * h, 4)) for h in range(2)]

        def addr(j, b, r, base):
            ad = V_AD + 4 * j + (b >> 1)
            return Op(f"v_add_u32_sdwa v{r}, s{base}, v{ad} dst_sel:DWORD dst_unused:UNUSED_PAD src0_sel:DWORD src1_sel:WORD_{b&1}", "valu", rd=[ad], wr=[r])
        ops = [Op(f"ds_read_b32 v{V_X}, v{V_X}", "lds", rd=[V_X], wr=[V_X])] + B(0, 0, Ba)
        for m in range(2):
            ops += [Op(f"ds_read_b128 {vr(acc(m,t),4)}, v{V_TAB} offset:{O_BIAS+64*t}", "lds", rd=[V_TAB], wr=rng(acc(m, t), 4)) for t in range(9)]
            ops += loads.pop(0)
        ops += [Op(f"v_readfirstlane_b32 s{S_T0}, v{V_X}", "valu", rd=[V_X]), addr(0, 0, Bc, S_BUF),
                Op(f"s_cmp_lg_u32 s{S_T0}, 0", "salu"), Op("s_cbranch_scc1 L_slow", "salu")]
        ngap = 126 + 26
        rho, credit = len(loads) / (ngap - o["ptail"]), 0.0

        ng = 0
        if max(self.mid):
            ops.append(Op(f"s_lshr_b32 s{S_NB0}, s{S_DMASK}, 28", "salu"))

        def midtile(k):
            keepL, self.L = self.L, []
            self.dma_tile(o["ldp"])
            x, self.L = self.L, keepL
            x = [f"s_cmp_le_u32 s{S_NB0}, {k}", f"s_cbranch_scc1 L_mid{k}"] + x + [
                f"s_add_u32 s{S_XOFF5}, s{S_XOFF5}, {256*TB}", f"s_add_u32 s{S_M0B}, s{S_M0B}, {TBL}", f"s_add_u32 s{S_XOFF}, s{S_XOFF}, {256*TB}",
                f"L_mid{k}:"]
            assert loads
            return Op("\n".join(x), "salu")

        def gap(mx, D=(), V=()):
            nonlocal credit, ng
            ops.append(mx)
            if ng in o["midg"][:max(self.mid)]:
                ops.append(midtile(o["midg"].index(ng)))
            ng += 1
            credit += rho
            while credit >= 1 and loads:
                credit -= 1
                ops.extend(loads.pop(0))
            ops.extend(D)
            ops.extend(V)
        if o["psch"]:
            for s in range(7):
                for m in range(2):
                    gb, gm = ((Bd, 1), (Bc, 0))[m]
                    nb_ = (Bc, Bd)[m]
                    Dq = B(1, s, Bb) if m == 0 else B(0, s + 1, Ba)
                    if s < 5 and m == 1:
                        Dq.insert(0, Op(f"ds_read_b128 {vr(V_X,4)}, v{V_TAB} offset:{O_X+64*s}", "lds", rd=[V_TAB], wr=rng(V_X, 4)))
                    if s < 5:
                        Dq += [Op(f"ds_read_u16 v{gb+b}, v{gb+b} offset:{TBL*gm}", "lds", rd=[gb + b], wr=[gb + b]) for b in range(8)]
                    if s == 5:
                        Dq += B(1, 8, Bd) if m == 0 else B(1, 7, Bc)
                    Vq = [addr(s, b, gb + b, S_BUF) for b in range(8)] if s < 5 else []
                    mx = [M(m, s, t, (Ba, Bb)[m]) for t in range(9)]
                    j = s - 1 if m == 0 else s
                    if 0 <= j < 5:
                        mx += [R(m, j, t) for t in RT[j]]
                    for n, x in enumerate(mx):
                        k = 1 if len(Dq) <= len(mx) - n else 2
                        D = [Dq.pop(0) for _ in range(min(k, len(Dq)))]
                        assert not any(d.rd & v.wr for d in D for v in Vq)
                        gap(x, D, Vq[:1])
                        Vq = Vq[1:]
                    assert not Dq and not Vq
        else:
            for s in range(7):
                for t in range(9):
                    D, V = [], []
                    if t == 0:
                        D += B(1, s, Bb)
                    if s < 5:
                        if t == 8:
                            D.append(Op(f"ds_read_b128 {vr(V_X,4)}, v{V_TAB} offset:{O_X+64*s}", "lds", rd=[V_TAB], wr=rng(V_X, 4)))
                        else:
                            D += [Op(f"ds_read_u16 v{Bd+t}, v{Bc+t} offset:{TBL}", "lds", rd=[Bc + t], wr=[Bd + t]),
                                  Op(f"ds_read_u16 v{Bc+t}, v{Bc+t}", "lds", rd=[Bc + t], wr=[Bc + t])]
                            if t < 7:
                                V.append(addr(s, t + 1, Bc + t + 1, S_BUF))
                    elif t in (2, 3):
                        D.append(B(1, s + 2, Bc if s == 5 else Bd)[t - 2])
                    gap(M(0, s, t, Ba), D, V)
                for t in range(9):
                    gap(M(1, s, t, Bb), B(0, s + 1, Ba)[t:t + 1] if t < 2 else [])
                if s < 5:
                    rs = [R(m, s, t) for m in (1, 0) for t in RT[s]]
                    for n, x in enumerate(rs):
                        gap(x, [], [addr(s + 1, 0, Bc, S_BUF)] if n == len(rs) - 1 and s < 4 else [])
        assert not loads
        if o["st2"]:
            ops.append(Op("s_memrealtime s[94:95]\ns_waitcnt lgkmcnt(0)\nv_writelane_b32 v255, s94, 2", "salu"))
        ops += B(0, 8, Bb)
        pk = lambda t, h: (AX + 32 + h) if t == 8 else AX + 2 * t + h
        cvt = lambda t: [Op(f"v_cvt_pk_bf16_f32 v{pk(t,h)}, v{acc(0,t)+2*h}, v{acc(0,t)+2*h+1}", "valu",
                            rd=[acc(0, t) + 2 * h, acc(0, t) + 2 * h + 1], wr=[pk(t, h)]) for h in range(2)]
        dpp = "quad_perm:[1,0,3,2] row_mask:0xf bank_mask:0xf"
        stp = o["st"] if o["stp"] is None else o["stp"]

        def exch(v):
            p0, p1, d0 = AX + 8 * v, AX + 8 * v + 4, (V_X, AX + 16)[v]
            x = []
            for half in range(2):
                for d in range(4):
                    if half == 0:
                        x.append(Op(f"v_cndmask_b32_dpp v{d0+d}, v{p1+d}, v{p0+d}, vcc {dpp}", "dpp", rd=[p0 + d, p1 + d], wr=[d0 + d]))
                    else:
                        x.append(Op(f"v_cndmask_b32_dpp v{p1+d}, v{p0+d}, v{p1+d}, vcc {dpp}", "dpp", rd=[p0 + d, p1 + d], wr=[p1 + d]))
                src = d0 if half == 0 else p1
                fl = stp[2 * v + half] if isinstance(stp, (tuple, list)) else stp
                x += [Op(f"buffer_store_dwordx4 {vr(src,4)}, v{V_ST}, {sr(S_OUT,4)}, s{S_OOFF} offen offset:{1152*half+128*v} {fl}", "st",
                         rd=list(rng(src, 4)) + [V_ST]), Op(f"s_mov_b64 vcc, {sr((S_ODD, S_EVEN)[half],2)}", "salu")]
            return x
        p8 = pk(8, 0)
        rdadv = [Op(f"v_add_u32 v{V_RD0+h}, {2*TBL}, v{V_RD0+h}", "valu", rd=[V_RD0 + h], wr=[V_RD0 + h]) for h in range(2)]
        after = {0: rdadv,
                 1: [Op(f"ds_bpermute_b32 v{p8+h}, v{V_BP}, v{p8+h}", "lds", rd=[V_BP, p8 + h], wr=[p8 + h]) for h in range(2)] if o["bperm"] else [],
                 3: [Op(f"buffer_store_dwordx2 {vr(p8,2)}, v{V_ST8}, {sr(S_OUT,4)}, s{S_OOFF} offen {o['st8']}", "st", rd=[p8, p8 + 1, V_ST8])],
                 5: exch(0)[:6], 6: exch(0)[6:], 7: [addr(0, b, V_BR + b, S_BUFN) for b in range(4)],
                 8: [addr(0, b, V_BR + b, S_BUFN) for b in range(4, 8)]}
        for n, t in enumerate(PEEL_T):
            ops += [M(0, 7, t, Ba), M(0, 8, t, Bb)]
            if n:
                ops += cvt(PEEL_T[n - 1])
            ops += after.get(n, [])
        ops += cvt(PEEL_T[-1]) + exch(1)
        n2 = {p[1] for p in self.pol} - {0}
        if not (o["n2in"] and len(n2) == 1):
            self.emit_line(ops, vm)
            if n2:
                self.prefetch(24, "L_pf2")
            return
        cut = max(i for i, x in enumerate(ops) if x.kind == "ld") + 1
        hist, lds = self.emit_line(ops[:cut], vm, hoist=o['psch'])
        pieces = []
        for k in range(n2.pop()):
            keepL, self.L = self.L, []
            self.dma_tile()
            x, self.L = self.L, keepL
            x += [f"s_add_u32 s{S_XOFF5}, s{S_XOFF5}, {256*TB}", f"s_add_u32 s{S_M0B}, s{S_M0B}, {TBL}", f"s_add_u32 s{S_XOFF}, s{S_XOFF}, {256*TB}"]
            pieces += [Op("\n".join(x[3*j:3*j+3] if j < 4 else x[12:]), "ld") for j in range(5)]
        nmx = sum(1 for x in ops[cut:] if x.kind == "mx") - o["n2in"]
        tail, seen, tot = [], 0, len(pieces)
        for x in ops[cut:]:
            tail.append(x)
            if x.kind == "mx":
                seen += 1
                while pieces and (tot - len(pieces)) * nmx < seen * tot:
                    tail.append(pieces.pop(0))
        assert not pieces
        if self.n2min == 0:
            self.a(f"s_bfe_u32 s{S_T0}, s{S_DMASK}, {hex(4 << 16 | 24)}")
            self.a("s_cbranch_scc0 L_ptail0")
        self.emit_line(tail, list(vm), hist, lds, 40)
        if self.n2min == 0:
            self.a("s_branch L_ptail1")
            self.a("L_ptail0:")
            self.emit_line(ops[cut:], list(vm), hist, lds)
            self.a("L_ptail1:")

    def slow_path(self, K):
        a = self.a
        o = self.o
        VA, VI8 = 104, 106
        a("L_slow:")
        a("s_waitcnt vmcnt(0) lgkmcnt(0)")
        a(f"s_mov_b32 s{S_MODE}, 0")
        a("L_sm:")
        a(f"s_lshl_b32 s{S_BASE}, s2, 1")
        a(f"s_add_u32 s{S_BASE}, s{S_BASE}, s{S_MODE}")
        a(f"s_add_u32 s{S_BASE}, s{S_BASE}, {PRIV0}")
        a(f"s_mul_i32 s{S_BASE}, s{S_BASE}, {COPY}")
        a(f"s_mov_b32 s{S_TASK}, 0")
        a("L_st:")
        self.producer("g", True)
        a(f"s_add_u32 s{S_TASK}, s{S_TASK}, 1")
        a(f"s_cmp_lt_u32 s{S_TASK}, {NTASK}")
        a("s_cbranch_scc1 L_st")
        a(f"s_add_u32 s{S_MODE}, s{S_MODE}, 1")
        a(f"s_cmp_lt_u32 s{S_MODE}, 2")
        a("s_cbranch_scc1 L_sm")
        self.lane_setup()
        self.dma_setup()
        a(f"s_mov_b32 s{S_OUT+2}, {XBYTES}")
        a(f"s_mov_b32 s{S_X+2}, {XBYTES}")
        a(f"s_mov_b32 s{S_IT}, 0")
        if self.dyn and o["othr"]:
            a("s_bitcmp1_b32 s2, 0")
            a(f"s_cselect_b32 s{S_NT}, 16, {32 - self.dyn[0]}")
        a("L_stile:")
        a("s_barrier")
        self.dma_tile()
        for t in range(9):
            a(f"ds_read_b128 {vr(V_ACC+4*t,4)}, v{V_TAB} offset:{O_BIAS+64*t}")
        a(f"s_mov_b32 s{S_MODE}, 0")
        a("L_spass:")
        a(f"s_lshl_b32 s{S_BASE}, s2, 1")
        a(f"s_add_u32 s{S_BASE}, s{S_BASE}, s{S_MODE}")
        a(f"s_add_u32 s{S_BASE}, s{S_BASE}, {PRIV0}")
        a(f"s_mul_i32 s{S_BASE}, s{S_BASE}, {COPY}")
        self.waddr(VA, VI8)
        for grp in self.wload_list(VA, VI8):
            for x in grp:
                a(x)
        a("s_waitcnt vmcnt(0)")
        a("s_barrier")
        for s in range(9):
            a(f"ds_read_b128 {vr(V_B,4)}, v{V_RD0} offset:{2048*s}")
            a(f"ds_read_b128 {vr(V_B+4,4)}, v{V_RD1} offset:{2048*s}")
            a("s_waitcnt lgkmcnt(0)")
            for t in range(9):
                ir, h = aidx(s, t)
                a(f"v_smfmac_f32_16x16x64_bf16 {vr(V_ACC+4*t,4)}, {afrag(s,t)}, {vr(V_B,8)}, v{ir}" + (" abid:1" if h else ""))
            a("s_nop 7")
        a(f"s_add_u32 s{S_MODE}, s{S_MODE}, 1")
        a(f"s_cmp_lt_u32 s{S_MODE}, 2")
        a("s_cbranch_scc1 L_spass")
        for t in range(7):
            for h in range(2):
                a(f"v_cvt_pk_bf16_f32 v{V_P+2*t+h}, v{V_ACC+4*t+2*h}, v{V_ACC+4*t+2*h+1}")
        a(f"s_mov_b64 vcc, {sr(S_EVEN,2)}")
        self.emit_epi(self.assemble_loop(False, "")[2])
        if self.dyn and o["othr"]:
            a(f"s_cmp_eq_u32 s{S_IT}, 15")
            a(f"s_cselect_b32 s{S_XINC}, {(1 - (15 - self.dyn[0]) * 256) * TB}, s{S_XINC}")
        for r in (S_XOFF, S_XOFF5, S_OOFF):
            a(f"s_add_u32 s{r}, s{r}, s{S_XINC}")
        a(f"s_mov_b32 s{S_XINC}, {256*TB}")
        a(f"s_add_u32 s{S_IT}, s{S_IT}, 1")
        a(f"s_cmp_lt_u32 s{S_IT}, s{S_NT}")
        a("s_cbranch_scc1 L_stile")
        a("s_branch L_fin")

    def loop_ops(self, links, dma, clm=False):
        o = self.o
        acc = lambda t: rng(V_ACC + 4 * t, 4)
        ch = o["chain"]
        bb = lambda s: V_P if (ch and s == 6) else V_B + 8 * BBUF[s]
        RBUF = [V_BR, V_BR + 8, V_BR, V_P + 8 if ch else V_P, V_BR + 8]
        rt = RT if links else [[0, 1], [2, 3], [4, 5], [6, 7], [8]]
        ng = [8, 8, 8, 8, 8 if links else o["ng4"]]

        def M(s, t):
            ir, h = aidx(s, t)
            return Op(f"v_smfmac_f32_16x16x64_bf16 {vr(V_ACC+4*t,4)}, {afrag(s,t)}, {vr(bb(s),8)}, v{ir}" + (" abid:1" if h else ""),
                      "mx", rd=list(acc(t)) + list(rng(bb(s), 8)), wr=acc(t), tag=("M", s, t))

        def R(j, t):
            c = j + t
            return Op(f"v_smfmac_f32_16x16x64_bf16 {vr(V_ACC+4*t,4)}, {vr(V_X,4)}, {vr(RBUF[j],8)}, v{V_IR+(c>>1)}" + (" abid:1" if c & 1 else ""),
                      "mx", rd=list(acc(t)) + list(rng(RBUF[j], 8)) + list(rng(V_X, 4)), wr=acc(t), tag=("R", j, t))
        seq = []
        for t in range(9):
            seq += [M(0, t), M(1, t)]
        if ch:
            for steps, order, rs in (((2, 3), o["ord1"], (0, 1)), ((4, 5, 6), o["ord2"], (2, 3, 4))):
                for n, t in enumerate(order):
                    seq += [M(s, t) for s in steps]
                    if t // 2 in rs and t % 2 == 0:
                        j = t // 2
                        assert t == 8 or order[n + 1] == t + 1
                        seq += [R(j, t)] + ([R(j, t - 1)] if links and j else []) + ([R(j, t + 1)] if t < 8 else [])
        else:
            for s in range(2, 7):
                seq += [M(s, t) for t in range(9)]
        for t in range(9):
            seq += [M(7, t), M(8, t)]
        if ch:
            rpos = [min(i for i, x in enumerate(seq) if x.tag[:2] == ("R", j)) for j in range(5)]
        else:
            rpos = list(o["rposl"] if links else o["rpos"])
            for j in range(5):
                for n, t in enumerate(rt[j]):
                    seq.insert(rpos[j] + n, R(j, t))
        N = len(seq)
        pos = {x.tag: i for i, x in enumerate(seq)}
        BAR = rpos[4] + len(rt[4]) - 1
        c0 = N - 15 - BAR
        assert c0 == (4 if ch else 0)
        self.drain = rpos[4] - 1
        T = lambda g: (g - BAR - 1) % N
        first = lambda s: T(min(pos[("M", s, t)] for t in range(9)))
        lastu = lambda s: max(pos[("M", s, t)] for t in range(9))
        LEAD = o["lead"]
        ST = [[] for _ in range(N)]
        S = [[] for _ in range(N)]
        D = [[] for _ in range(N)]
        V = [[] for _ in range(N)]
        keep = lambda op: (dma or op.tag != "dma") and (clm or op.tag != "clm")

        def pdst(t, h):
            return V_P8 + h if t == 8 else V_P + 2 * t + h
        dq, vq = [], []
        for t in range(9):
            for h in range(2):
                V[c0 + 2 * t + h].append(Op(f"v_cvt_pk_bf16_f32 v{pdst(t,h)}, v{V_ACC+4*t+2*h}, v{V_ACC+4*t+2*h+1}", "valu",
                                       rd=[V_ACC + 4 * t + 2 * h, V_ACC + 4 * t + 2 * h + 1], wr=[pdst(t, h)], tag="epi"))
            dq.append([Op(f"ds_read_b128 {vr(V_ACC+4*t,4)}, v{V_TAB} offset:{O_BIAS+64*t}", "lds", rd=[V_TAB], wr=acc(t), tag="pre"),
                       c0 + 2 * t + 2, c0 + 2 * t + 2, None])
        def stf(e):
            f = o["stc"] if clm else (o["st"] if dma else o["stn"])
            f = o["st"] if f is None else f
            return f[e] if isinstance(f, (tuple, list)) else f
        dpp = "quad_perm:[1,0,3,2] row_mask:0xf bank_mask:0xf"
        stg = [T(g) for g in o["stg"]]
        for v in range(2):
            p0, p1 = V_P + 8 * v, V_P + 8 * v + 4
            d0 = V_T if v == 0 else V_P
            for half in range(2):
                e = 2 * v + half
                for d in range(4):
                    if half == 0:
                        op = Op(f"v_cndmask_b32_dpp v{d0+d}, v{p1+d}, v{p0+d}, vcc {dpp}", "dpp", rd=[p0 + d, p1 + d], wr=[d0 + d], tag="epi")
                    else:
                        op = Op(f"v_cndmask_b32_dpp v{p1+d}, v{p0+d}, v{p1+d}, vcc {dpp}", "dpp", rd=[p0 + d, p1 + d], wr=[p1 + d], tag="epi")
                    vq.append([op, stg[e - 1] if e else c0 + 18, stg[e] - 4 + d, None])
                src = d0 if half == 0 else p1
                ST[stg[e]].append(Op(f"buffer_store_dwordx4 {vr(src,4)}, v{V_ST}, {sr(S_OUT,4)}, s{S_OOFF} offen offset:{1152*half+128*v} {stf(e)}",
                                     "st", rd=list(rng(src, 4)) + [V_ST], tag="epi"))
                ST[stg[e]].append(Op(f"s_mov_b64 vcc, {sr((S_ODD, S_EVEN)[half],2)}", "salu", tag="epi"))
        if o["bperm"]:
            for h in range(2):
                dq.append([Op(f"ds_bpermute_b32 v{V_P8+h}, v{V_BP}, v{V_P8+h}", "lds", rd=[V_BP, V_P8 + h], wr=[V_P8 + h], tag="epi"),
                           c0 + 18, stg[4] - LEAD - 2 + h, None])
        ST[stg[4]].append(Op(f"buffer_store_dwordx2 {vr(V_P8,2)}, v{V_ST8}, {sr(S_OUT,4)}, s{S_OOFF} offen {o['st8']}", "st",
                             rd=[V_P8, V_P8 + 1, V_ST8], tag="epi"))
        rl = lambda j: T(rpos[j] + len(rt[j]) - 1)
        free = [rl(2), 1, rl(0), stg[3 if ch else 2] + 1, rl(1)]
        for j in range(5):
            dl = T(rpos[j]) - LEAD - 1
            for b in range(ng[j]):
                r = RBUF[j] + b
                ad = V_AD + 4 * j + (b >> 1)
                av = Op(f"v_add_u32_sdwa v{r}, s{S_BUFN if j == 0 else S_BUF}, v{ad} dst_sel:DWORD dst_unused:UNUSED_PAD src0_sel:DWORD src1_sel:WORD_{b&1}",
                        "valu", rd=[ad], wr=[r], tag="pre" if j == 0 else "")
                gd = dl - o["gsp"] * (ng[j] - 1 - b)
                vq.append([av, free[j], (N - 2 - (7 - b)) if j == 0 else gd - 1, None])
                dq.append([Op(f"ds_read_u16 v{r}, v{r}", "lds", rd=[r], wr=[r], tag="pre"), 0, gd, None if j == 0 else av])
            dq.append([Op(f"ds_read_b128 {vr(V_X,4)}, v{V_TAB} offset:{O_X+64*j}", "lds", rd=[V_TAB], wr=rng(V_X, 4), tag="pre"),
                       0 if j == 0 else rl(j - 1), dl, None])
        prev = {0: None, 1: None, 2: 7, 3: 8, 4: 0, 5: 1, 6: 4, 7: 2, 8: 3}
        lastb = []
        for s in range(9):
            for h in range(2):
                op = Op(f"ds_read_b128 {vr(bb(s)+4*h,4)}, v{(V_RD0, V_RD1)[h]} offset:{2048*s}", "lds",
                        rd=[(V_RD0, V_RD1)[h]], wr=rng(bb(s) + 4 * h, 4), tag="pre")
                fs = first(s) if s < 7 else (T(rpos[4]) - 2 * (9 - s) if ch else T(pos[("M", s, 0)]))
                rel = 0 if prev[s] is None else T(lastu(prev[s]))
                if ch and s == 6:
                    rel = stg[2] + 1
                dq.append([op, rel, fs - LEAD - 2 + h, None])
                lastb.append(op)
        for h in range(2):
            vq.append([Op(f"v_add_u32 v{V_RD0+h}, s{S_DELTA}, v{V_RD0+h}", "valu", rd=[V_RD0 + h], wr=[V_RD0 + h]), 0, N - 2, lastb])
        sq = []
        dmag = [g + (self.drain - 70) * (g > 50) for g in o["dmag"]]
        assert all(b - a_ >= 2 for a_, b in zip(dmag, dmag[1:]))
        if not o["nodma"]:
            for j, g in enumerate(dmag):
                g = T(g)
                ld = f"buffer_load_dwordx4 v{V_DMA}, {sr(S_X,4)}, s{S_XOFF if j < 4 else S_XOFF5} offen offset:{256*j if j < 4 else 896} {o['ld']} lds"
                if j < 4:
                    D[g].append(Op(ld, "dma", rd=[V_DMA], tag="dma"))
                    S[g - 1].append(Op(f"s_add_u32 m0, s{S_M0B}, {3840*j}", "salu", tag="dma"))
                else:
                    D[g] += [Op(f"s_mov_b64 exec, {sr(S_HALF,2)}", "salu", tag="dma"), Op(ld, "dma", rd=[V_DMA], tag="dma"),
                             Op("s_mov_b64 exec, -1", "salu", tag="dma")]
                    S[g - 1].append(Op(f"s_add_u32 m0, s{S_M0B}, s{S_M05}", "salu", tag="dma"))
                    V[g] = None
        XV = [[] for _ in range(N)]
        if self.dyn:
            gl = T(o["mbg"] + self.drain - 70) - 1
            XV[T(0)].append(Op(f"v_mov_b32 v{V_C}, 1", "valu", wr=[V_C], tag="clm"))
            D[T(1)].append(Op(f"buffer_atomic_add v{V_C}, v{V_BP}, {sr(S_B,4)}, 0 offen sc0 sc1", "dma", rd=[V_BP], tag="clm"))
            assert not D[gl + 1] and not S[gl + 1] and max(stg) <= gl
            gw = gl + 1 if o["cwg"] is None else T(o["cwg"])
            assert gw not in stg and T(1) < gw <= gl + 1
            S[gw].append(Op(f"s_waitcnt vmcnt({sum(1 for g in stg if g < gw) + sum(1 for g in dmag if T(g) < gw)})", "salu", tag="clm"))
            if o["dwg"] is not None and dma and not clm:
                gw = T(o["dwg"])
                assert gw not in stg
                S[gw].append(Op(f"s_waitcnt vmcnt({sum(1 for g in stg if g < gw) + sum(1 for g in dmag if T(g) < gw)})", "salu"))
            D[gl + 1] += [Op(f"s_mov_b64 exec, {sr(S_W0,2)}", "salu", tag="clm"),
                          Op(f"ds_write_b32 v{V_RD0}, v{V_C} offset:{TB}", "lds", rd=[V_RD0], tag="clm"), Op("s_mov_b64 exec, -1", "salu", tag="clm")]
            V[gl + 1] = None
            D[0].append(Op(f"ds_read_b32 v{V_C}, v{V_RD0} offset:{TB}", "lds", rd=[V_RD0], wr=[V_C], tag="clm"))
            XV[LEAD + 1].append(Op(f"v_readfirstlane_b32 s{S_CL}, v{V_C}", "valu", rd=[V_C], tag="clm"))
        placed = {}
        for g in range(N - 1):
            if not D[g] and g != T(N - 1):
                c = [x for x in dq if x[1] <= g and (x[3] is None or placed.get(id(x[3]), N) < g) and x[2] - g <= o["eager"]]
                if c:
                    x = min(c, key=lambda x: x[2])
                    dq.remove(x)
                    D[g].append(x[0])
                    placed[id(x[0])] = g
                    if g > x[2] and o["verbose"]:
                        print("; late D", g - x[2], x[0].text, file=sys.stderr)
            if V[g] is None:
                V[g] = []
                continue
            cap = 2 if (ST[g] and "x4" in ST[g][0].text) else 1
            while len(V[g]) < cap:
                c = [x for x in vq if x[1] <= g and (x[3] is None or all(placed.get(id(y), N) <= g for y in x[3]))]
                if not c:
                    break
                x = min(c, key=lambda x: x[2])
                vq.remove(x)
                V[g].append(x[0])
                placed[id(x[0])] = g
                assert g <= x[2] or x[0].kind != "dpp", ("late", x[0].text)
        assert not dq and not vq, ([x[0].text for x in dq], [x[0].text for x in vq])
        for g in range(N):
            V[g] += XV[g]
        if self.dyn:
            rdup = max(placed[id(x)] for gl_ in V for x in gl_ if id(x) in placed and f"s{S_DELTA}," in x.text)
            assert rdup <= gl and gl + 1 < T(self.drain) and T(min(o["stg"])) > T(1)
        S[N - 1] += ([] if clm else [Op(f"s_waitcnt vmcnt({o['vmw']})", "salu")]) + [Op("s_barrier", "bar")]
        lastdma = T(dmag[4])
        la = max(placed[id(x)] for gl in V for x in gl if id(x) in placed and f"s{S_BUF}," in x.text)
        fn = min(placed[id(x)] for gl in V for x in gl if id(x) in placed and (f"s{S_BUFN}," in x.text or f"s{S_DELTA}," in x.text))
        sq = [([f"s_mov_b32 s{S_BUF}, s{S_BUFN}"], 0, 0),
              ([f"s_cmp_eq_u32 s{S_BUFN}, {(NB-1)*TBL}", f"s_cselect_b32 s{S_DELTA}, {-(NB-1)*TBL}, s{S_CTB}", f"s_add_u32 s{S_BUFN}, s{S_BUFN}, s{S_DELTA}"], c0 + 18, fn),
              ]
        if self.dyn:
            LK = self.dyn[1]
            sq.append((([] if clm else [f"s_mov_b32 s{S_OUT+2}, {XBYTES}"]) + [f"s_mov_b32 s{S_OOFF}, s{S_Q}"]
                       + [f"s_mov_b32 s{S_Q+k}, s{S_Q+k+1}" for k in range(LK - 1)]
                       + [f"s_mov_b32 s{S_Q+LK-1}, s{S_XOFF}" if clm else f"s_add_u32 s{S_Q+LK-1}, s{S_Q+LK-1}, {256*TB}"], stg[4] + 1, N - 2))
        else:
            sq.append(([f"s_mov_b32 s{S_OUT+2}, {XBYTES}", f"s_add_u32 s{S_OOFF}, s{S_OOFF}, s{S_OINC}", f"s_mov_b32 s{S_OINC}, s{S_OINC2}",
                        f"s_mov_b32 s{S_OINC2}, {256*TB}"], stg[4] + 1, N - 2))
        if not clm or o["trace"]:
            sq.append(([f"s_add_u32 s{S_IT}, s{S_IT}, 1"], c0 + 18, N - 2))
        if clm:
            ps = o["psh"]
            sq += [([f"s_add_u32 s{S_XOFF5}, s{S_XOFF}, s{S_K5}"], c0 + 18, lastdma - 2),
                   (self.dma_advance()[2:], lastdma + 1, N + 8),
                   ([f"s_lshr_b32 s{S_CT}, s{S_CL}, {4 if o['pil'] else ps}", f"s_mul_i32 s{S_CT}, s{S_CT}, {(48 if o['pil'] else 256 - (1 << ps))*TB}", f"s_mul_i32 s{S_CT+1}, s{S_CL}, {TB}",
                     f"s_add_u32 s{S_CT}, s{S_CT}, s{S_CB}", f"s_add_u32 s{S_XOFF}, s{S_CT}, s{S_CT+1}"], LEAD + 2, T(N - 1) - 2),
                   ([f"s_cmp_lt_u32 s{S_CL}, {'s%d' % S_LIM if o['othr'] else (16 - self.dyn[0]) << ps}"], T(N - 1) - 1, T(N - 1) - 1)]
            if o["othr"]:
                S[T(0)] += [Op(x, "salu") for x in (f"s_cmp_lt_u32 s{S_CL}, s{S_THR}", f"s_cselect_b32 s{S_B+2}, s{S_B+2}, 0",
                                                    f"s_cselect_b32 s{S_LIM}, s{S_LIM}, 0")]
        else:
            if dma:
                sq += [(self.dma_advance(), lastdma + 1, N + 12)]
            sq.append(([f"s_bitcmp1_b32 s{S_DMASK if dma else S_NMASK}, s{S_IT}"], T(N - 1) - 1, T(N - 1) - 1))
        G = lambda A: [[x for x in A[T(g)] if keep(x)] for g in range(N)]
        return seq, G(ST), G(S), G(D), G(V), [(x, (lo + BAR + 1), (hi + BAR + 1)) for x, lo, hi in sq], BAR

    def assemble_loop(self, links, label, dma=True, clm=False):
        seq, ST, S, D, V, sq, BAR = self.loop_ops(links, dma, clm)
        N = len(seq)
        flat = []
        for rep in range(2):
            for g in range(N):
                a0 = rep * N + g
                flat.append((seq[g], a0 - 1))
                for x in ST[g]:
                    flat.append((x, a0 - 1))
                for x in D[g] + V[g]:
                    flat.append((x, a0))
        gap_of = {}
        k = 0
        lds = []
        for rep in range(2):
            for g in range(N):
                k += 1 + len(ST[g])
                for x in D[g] + V[g]:
                    if x.kind == "lds":
                        lds.append((k, rep * N + g))
                    k += 1
        done = -1
        W = {}
        minlead = 99
        for i, (op, wg) in enumerate(flat):
            touched = op.rd | op.wr
            need = -1
            for n, (k, g) in enumerate(lds):
                if k < i and n > done and (flat[k][0].wr & touched):
                    need = n
            if need >= 0:
                assert lds[need][1] < wg
                issued = [n for n, (k, g) in enumerate(lds) if g < wg]
                cnt = min(issued[-1] - need, 15)
                done = issued[-1] - cnt
                if wg >= N - 1 and wg < 2 * N - 1:
                    W[wg % N] = min(cnt, W.get(wg % N, 99))
                    if self.o["verbose"]:
                        print(f"; wait gap {wg % N} cnt {cnt} lead {wg - lds[need][1]} for {flat[lds[need][0]][0].text}", file=sys.stderr)
        W[self.drain] = 0
        if clm:
            mb = [g for g in range(N) if any("ds_write" in x.text for x in D[g])][0]
            assert not [g for g in W if mb < g < self.drain]
        for g, c in W.items():
            S[g].insert(0, Op(f"s_waitcnt lgkmcnt({c})", "salu"))
        if not self.o["drop"]:
            last = max(g for g in range(BAR + 1) if any(x.kind == "lds" for x in D[g]))
            assert any(W.get(g) == 0 for g in range(last + 1, BAR + 1)), "tile reads not drained at the barrier"

        def room(g, extra=0, resv=True):
            g %= N
            if g == BAR or g == N - 1 or any(x.kind == "dma" for x in D[g]):
                return False
            cap = 1 if D[g] else (2 if V[g] else 3)
            if label and not clm and resv:
                if g == self.drain - 1:
                    return False
                cap -= g == self.drain - 2
            return len(S[g]) + extra < cap and not ST[g]
        sccfree = lambda x: x.text.startswith(("s_waitcnt", "s_mov", "s_barrier"))
        locked = set()
        for texts, lo, hi in sq:
            g = lo
            n = 0
            while n < len(texts):
                chain = [texts[n]]
                if texts[n].startswith(("s_cmp", "s_bitcmp")):
                    while n + len(chain) < len(texts) and texts[n + len(chain)].startswith("s_cselect"):
                        chain.append(texts[n + len(chain)])
                while True:
                    assert g <= hi, ("no room", chain)
                    where, z = [], g
                    ok = room(g) and ((g % N) not in locked or chain[0].startswith("s_mov"))
                    cnt = {}
                    for k, tx in enumerate(chain):
                        while ok and not room(z, cnt.get(z, 0)):
                            z += 1
                            ok = z <= hi and all(sccfree(x) for x in S[z % N]) and (clm or z % N != self.drain - 1)
                        where.append(z)
                        cnt[z] = cnt.get(z, 0) + 1
                    if ok:
                        break
                    g += 1
                for z, tx in zip(where, chain):
                    S[z % N].append(Op(tx, "salu"))
                if len(chain) > 1:
                    locked.update(z % N for z in range(where[0], where[-1]))
                g = where[-1]
                n += len(chain)
        assert all(sccfree(x) for x in S[N - 1])
        if label and not clm:
            gz = self.drain - (2 if self.o["trace"] else 1)
            assert self.o["chain"] and (self.o["trace"] or (not (S[gz] or D[gz] or V[gz] or ST[gz]) and room(gz - 1, 0, False) and (gz - 1) not in locked))
            assert all(x.kind not in ("dma", "st") for g in range(gz, N) for x in D[g] + ST[g]) and max(self.o["stg"]) < min(self.o["dmag"])
            S[gz - (0 if self.o["trace"] else 1)].append(Op(f"s_bitcmp1_b32 s{S_WMASK}, s{S_IT}", "salu"))
            S[gz] += [Op(f"s_cbranch_scc1 {label}_w", "salu"), Op(f"{label}_wb:", "label")]
            self.tailblocks.append(f"{label}_w:\ns_bitcmp1_b32 s{S_WMASK2}, s{S_IT}\ns_waitcnt vmcnt({self.whi})\n"
                                   f"s_cbranch_scc0 {label}_wb\ns_waitcnt vmcnt({self.wlo})\ns_branch {label}_wb")
        if self.o["trace"]:
            g0 = max(g for g, c in W.items() if c == 0 and g <= BAR)
            S[g0 - 1] += [Op("s_memrealtime s[98:99]", "salu"), Op("s_memtime s[96:97]", "salu"), Op(f"s_add_u32 s95, s{S_IT}, 32", "salu")]
            V[g0] += [Op(f"s_mov_b32 m0, s{S_IT}", "salu"), Op("v_writelane_b32 v254, s98, m0", "salu"), Op("s_mov_b32 m0, s95", "salu"), Op("v_writelane_b32 v254, s96, m0", "salu")]
        body = []
        pro = [x for g in range(N) for x in V[g] if x.tag == "pre" or (g > BAR and "sdwa" in x.text)] \
            + [x for g in range(BAR + 1, N) for x in D[g] if x.tag == "pre"]
        epi = [x for g in range(BAR) for x in ST[g] + D[g] + V[g] if x.tag == "epi"]
        nsw = 0
        for g in range(N):
            sw_ = self.o["swp"][2 if clm else (0 if dma else 1)]
            if sw_ and len(D[g]) == 1 and len(V[g]) == 1 and D[g][0].kind == "lds" and not ST[g] and "sdwa" in V[g][0].text \
                    and not (V[g][0].wr & (D[g][0].rd | D[g][0].wr)) and nsw < sw_:
                D[g], V[g] = V[g], D[g]
                nsw += 1
            body += [x for x in [seq[g]] if not any(d in x.text for d in self.o["dropm"])] + ST[g] + S[g] + D[g] + V[g]
            if self.o["pad"] and g % self.o["pad"] == 0 and g < N - 2:
                body.append(Op("s_nop 3", "salu"))
        body = [x for x in body if x.kind == "mx" or not any(d in x.text for d in self.o["drop"])]
        body.append(Op(f"s_cbranch_scc1 {label}", "salu"))
        if not self.o["drop"]:
            real = [x for x in body if x.kind != "label"]
            m = len(real)
            for i, op in enumerate(real):
                for d in range(1, 10):
                    p = real[(i - d) % m]
                    ws = d - 1
                    if p.kind == "mx" and op.kind != "mx" and (p.wr & (op.rd | op.wr)):
                        assert ws >= 8, ("mx->x", p.text, op.text, ws)
                    if p.kind in ("valu", "dpp") and op.kind == "mx" and (p.wr & op.rd):
                        assert ws >= 2, ("valu->mx", p.text, op.text, ws)
                    if p.kind in ("valu", "dpp") and op.kind == "dpp" and (p.wr & op.rd):
                        assert ws >= 2, ("valu->dpp", p.text, op.text, ws)
                    if p.kind == "st" and (p.rd & op.wr):
                        assert ws >= 2, ("st war", p.text, op.text, ws)
        return pro, body, epi

    def emit_epi(self, epi):
        cv = [x for x in epi if "v_cvt" in x.text]
        bp = [x for x in epi if x.kind == "lds"]
        rest = [x for x in epi if x not in cv and x not in bp]
        ops = rest[:6] + cv[2:] + bp + rest[6:12] + cv[:2] + rest[12:]
        if self.o["ste"] is not None:
            ops = [Op(x.text.replace(" sc1", " " + self.o["ste"]), x.kind, x.rd, x.wr) if x.kind == "st" else x for x in ops]
        hist = [Op("", "mx", wr=rng(V_ACC + 28, 8)), Op("", "valu", wr=rng(V_P, 14)), Op("", "salu")]
        self.emit_line(ops, [], hist)

    def main_loop(self, links, sfx):
        a = self.a
        pro, body, epi = self.assemble_loop(links, "L_loop" + sfx)
        if not self.o["peel"]:
            late = list(self.late_loads)
            for n, op in enumerate(pro):
                a(op.text)
                if n % 6 == 5:
                    while late and not late[0].startswith("buffer"):
                        a(late.pop(0))
                    if late:
                        a(late.pop(0))
            for x in late[:8]:
                a(x)
            a("s_waitcnt lgkmcnt(0)")
            a(f"v_readfirstlane_b32 s{S_T0}, v{V_T}")
            a("s_nop 3")
            a(f"s_cmp_lg_u32 s{S_T0}, 0")
            a("s_cbranch_scc1 L_slow")
            for x in late[8:]:
                a(x)
            if max(p[1] for p in self.pol):
                self.prefetch(24, "L_pf2" + sfx)
            for x in self.dma_advance(first=True):
                a(x)
            a(f"s_waitcnt vmcnt({(20 if self.o['early'] else 0) + 5 * self.n2min})")
            self.stamp(5)
            a(f"s_bitcmp1_b32 s{S_DMASK}, 0")
            a(f"s_cbranch_scc0 L_loopn{sfx}")
        a(".p2align 6")
        a(f"L_loop{sfx}:")
        for op in body:
            a(op.text)
        if self.o["wbl2"] is not None:
            a(f"s_lshr_b32 s{S_T0}, s2, 3")
            a(f"s_and_b32 s{S_T0}, s{S_T0}, {self.o['wbl2']}")
            a(f"s_or_b32 s{S_T0}, s{S_T0}, s{S_WAVE}")
            a(f"s_cbranch_scc1 L_loopn{sfx}")
            a("buffer_wbl2 sc1")
        if self.dyn:
            LK = self.dyn[1]
            a(f"s_cmp_lg_u32 s{S_IT}, {self.cl0}")
            a(f"s_cbranch_scc1 L_loopn{sfx}")
            a(".p2align 3")
            a(f"L_loopc{sfx}:")
            for op in self.assemble_loop(links, "L_loopc" + sfx, True, True)[1]:
                a(op.text)
            if self.o["trace"]:
                a(f"s_add_u32 s{S_NT}, s{S_IT}, {LK}")
                a(f"s_bfm_b32 s{S_NMASK}, s{S_NT}, 0")
                a(f"s_lshl_b32 s{S_WMASK}, {1 << (LK-1)}, s{S_IT}")
                a(f"s_lshl_b32 s{S_WMASK2}, {(1 << (LK-1)) if 5*(LK-1) < self.whi else 0}, s{S_IT}")
            else:
                a(f"s_mov_b32 s{S_IT}, 0")
                a(f"s_mov_b32 s{S_NT}, {LK}")
                a(f"s_mov_b32 s{S_NMASK}, {(1 << LK) - 1}")
                a(f"s_mov_b32 s{S_WMASK}, {(1 << (LK-1)) if 5*(LK-1) < self.o['vmw'] else 0}")
                a(f"s_mov_b32 s{S_WMASK2}, {(1 << (LK-1)) if 5*(LK-1) < self.whi else 0}")
            a(f"s_mov_b32 s{S_CL0}, -1")
            if self.o["stt"] is not None:
                keep, self.o["stn"] = self.o["stn"], self.o["stt"]
                for op in self.assemble_loop(links, "L_loopt" + sfx, False)[1][:-1]:
                    a(op.text)
                self.o["stn"] = keep
        if self.o["align2"]:
            a(".p2align 3")
        a(f"L_loopn{sfx}:")
        _, body, epi = self.assemble_loop(links, "L_loopn" + sfx, False)
        for op in body:
            a(op.text)
            if op.kind == "bar":
                a(f"L_loopn{sfx}_p3:")
        if self.dyn:
            a(f"s_cmp_eq_u32 s{S_IT}, s{S_CL0}")
            a(f"s_cbranch_scc1 L_loopc{sfx}")
        a(f"s_cmp_lt_u32 s{S_IT}, s{S_NT}")
        a(f"s_cbranch_scc1 L_loop{sfx}")
        self.emit_epi(epi)

    def loop_state(self):
        a = self.a
        pl = 2 if self.o["peel"] else 0
        a(f"s_mov_b32 s{S_IT}, {pl}")
        a(f"s_mov_b32 s{S_BUF}, 0")
        a(f"s_mov_b32 s{S_BUFN}, {pl*TBL}")
        if pl:
            a(f"s_mov_b32 s{S_OUT+2}, {XBYTES}")
        a(f"s_mov_b32 s{S_CTB}, {TBL}")
        a(f"s_mov_b32 s{S_OINC}, {256*TB if pl else 0}")
        a(f"s_mov_b64 vcc, {sr(S_EVEN,2)}")
        if self.dyn:
            NS, LK = self.dyn
            ps = self.o["psh"]
            a(f"s_andn2_b32 s{S_NMASK}, {(1 << self.cl0) - 1}, s{S_DMASK}")
            a(f"s_mov_b32 s{S_CL0}, {self.cl0}")
            if self.o["othr"]:
                a(f"s_mov_b32 s{S_CL}, 0")
                a(f"s_mov_b32 s{S_LIM}, {(16 - NS) << ps}")
                a("s_bitcmp1_b32 s2, 0")
                a(f"s_cselect_b32 s{S_THR}, {((16 - NS) << ps) - self.o['othr']}, -1")
            a(f"s_add_u32 s{S_Q}, s{S_OOFF}, {pl*256*TB}")
            for k in range(1, LK):
                a(f"s_add_u32 s{S_Q+k}, s{S_Q+k-1}, {256*TB}")
            a(f"s_sub_u32 s{S_K5}, s{S_XOFF5}, s{S_XOFF}")
            if self.o["pil"]:
                assert ps == 6
                a(f"s_bfe_u32 s{S_T0}, s2, {hex(2 << 16 | 4)}")
                a(f"s_mul_i32 s{S_CB}, s{S_T0}, {TB * 16}")
            else:
                a(f"s_lshr_b32 s{S_T0}, s2, {ps}")
                a(f"s_mul_i32 s{S_CB}, s{S_T0}, {TB << ps}")
            a(f"s_add_u32 s{S_CB}, s{S_CB}, {NS*256*TB}")
            a(f"s_lshl_b32 s{S_T0}, s{S_T0}, 7")
            a(f"s_add_u32 s{S_T0}, s{S_T0}, {CNT_OFF}")
            a(f"s_add_u32 s{S_B}, s{S_WS}, s{S_T0}")
            a(f"s_addc_u32 s{S_B+1}, s{S_WS+1}, 0")
            a(f"s_cmp_eq_u32 s{S_WAVE}, 0")
            a(f"s_cselect_b32 s{S_B+2}, 4, 0")
            a(f"s_cselect_b64 {sr(S_W0,2)}, 1, 0")
        else:
            a(f"s_bfm_b32 s{S_NMASK}, s{S_NT}, 0")
            a(f"s_andn2_b32 s{S_NMASK}, s{S_NMASK}, s{S_DMASK}")

    def stamp(self, n, r="s[98:99]"):
        if self.o["stamp"] and (self.o["stamp"] is True or n in self.o["stamp"]):
            a = self.a
            a(f"s_memtime {r}" if self.o["cyc"] and n in (5, 6) else f"s_memrealtime {r}")
            a("s_waitcnt lgkmcnt(0)")
            a(f"v_writelane_b32 v255, s{r[2:4]}, {n}")

    def descriptor(self, label, vg, ag):
        self.a(f""".amdhsa_kernel {label}
  .amdhsa_next_free_vgpr {vg}
  .amdhsa_next_free_sgpr 102
  .amdhsa_accum_offset {ag}
  .amdhsa_group_segment_fixed_size 0
  .amdhsa_float_denorm_mode_32 3
  .amdhsa_kernarg_size 48
  .amdhsa_user_sgpr_count 2
  .amdhsa_user_sgpr_kernarg_segment_ptr 1
  .amdhsa_system_sgpr_workgroup_id_x 1
.end_amdhsa_kernel""")

    def flush_tail(self):
        for b in self.tailblocks:
            self.a(b)
        self.tailblocks = []

    def gen(self):
        a = self.a
        o = self.o
        K = NAME + "_kernel"
        a(open("cdna_kernels/" + NAME + ".s.ref").read().split("; Override")[0].rstrip())
        if o["fused"]:
            a(f"; @launch grid=(256,1,1) block=(256,1,1) lds={LDS_BYTES}")
        else:
            a(f"; @launch kernel=prep_kernel grid=({NTASK},1,1) block=(256,1,1) lds={LDS_BYTES}")
            a(f"; @launch kernel={K} grid=(256,1,1) block=(256,1,1) lds={LDS_BYTES}")
        a('.amdgcn_target "amdgcn-amd-amdhsa--gfx950"\n.text')
        if not o["fused"]:
            self.entry("prep_kernel", NTASK)
            a(f"s_mov_b32 s{S_TASK}, s2\ns_mov_b32 s{S_BASE}, 0")
            self.producer("", False)
            a("L_end_prep_kernel:\ns_endpgm")
            self.flush_tail()
        self.entry(K, 256)
        a(f"s_mov_b32 s{S_BASE}, 0")
        mid = {id(p): m for p, m in zip(self.pol, self.mid)}
        msk = lambda p: hex(sum(1 << i for i in p[2] if not self.dyn or i < self.cl0) | (p[0] - mid[id(p)]) << 20 | p[1] << 24 | mid[id(p)] << 28)
        def pick(reg, vals):
            if len(set(vals)) == 1:
                a(f"s_mov_b32 s{reg}, {vals[0]}")
                return
            a(f"s_mov_b32 s{reg}, {vals[1]}")
            a(f"s_mov_b32 s{S_T0}, {vals[3]}")
            a(f"s_bitcmp1_b32 s2, {o['gsh']}")
            a(f"s_cselect_b32 s{reg}, s{reg}, {vals[0]}")
            a(f"s_cselect_b32 s{S_T0}, s{S_T0}, {vals[2]}")
            a(f"s_bitcmp1_b32 s2, {o['gsh2']}")
            a(f"s_cselect_b32 s{reg}, s{S_T0}, s{reg}")
        if o["fused"]:
            px = o["px"]
            if o["pil"]:
                a(f"s_lshr_b32 s{S_TASK}, s2, 6")
                a(f"s_and_b32 s{S_T0}, s2, 9")
                a(f"s_lshl1_add_u32 s{S_TASK}, s{S_TASK}, s{S_T0}")
                a(f"s_bfe_u32 s{S_T1}, s2, {hex(2 << 16 | 4)}")
                a(f"s_lshl2_add_u32 s{S_TASK}, s{S_TASK}, s{S_T1}")
                a(f"s_and_b32 s{S_T0}, s2, 7")
                assert px == 2
            elif o["pspread"]:
                a(f"s_bfe_u32 s{S_TASK}, s2, {hex(2 << 16 | 3)}")
                a(f"s_mul_i32 s{S_TASK}, s{S_TASK}, {px}")
                a(f"s_and_b32 s{S_T0}, s2, 7")
                a(f"s_add_u32 s{S_TASK}, s{S_TASK}, s{S_T0}")
                a(f"s_lshr_b32 s{S_T1}, s2, 5")
                a(f"s_lshl3_add_u32 s{S_TASK}, s{S_TASK}, s{S_T1}")
            else:
                a(f"s_lshr_b32 s{S_TASK}, s2, 3")
                a(f"s_mul_i32 s{S_TASK}, s{S_TASK}, {px}")
                a(f"s_and_b32 s{S_T0}, s2, 7")
                a(f"s_add_u32 s{S_TASK}, s{S_TASK}, s{S_T0}")
            a(f"s_cmp_lt_u32 s{S_T0}, {px}")
            a(f"s_cselect_b32 s{S_TASK}, s{S_TASK}, 63")
            a(f"s_cmp_lt_u32 s{S_TASK}, {NTASK}")
            a("s_cbranch_scc1 L_prod")
        mark0 = len(self.L)
        pick(S_DMASK, [msk(p) for p in self.pol[:4]])
        self.lane_setup()
        if o["fused"] and o["sig"] == 3:
            self.mb_addr(S_T0, S_T1)
            a(f"s_cmp_eq_u32 s{S_WAVE}, 0")
            a(f"s_cselect_b32 s{S_T0}, s{S_T0}, 0x40000000")
            a(f"v_mov_b32 v8, s{S_T0}")
            a("v_mov_b32 v9, 0")
        self.entry_wait()
        if o["fused"] and o["sig"] == 4:
            assert o["pspread"]
            a(f"s_cmp_lg_u32 s2, {200 if o['pil'] else CLEARER}")
            a("s_cbranch_scc1 L_cons3")
            a("v_lshlrev_b32 v8, 4, v0")
            a("v_mov_b64 v[12:13], 0")
            a("v_mov_b64 v[14:15], 0")
            a(f"buffer_store_dwordx4 v[12:15], v8, {sr(S_DBG,4)}, 0 offen sc1")
            a(f"v_add_u32 v8, {FL_OFF}, v8")
            a("v_add_u32 v9, 4096, v8")
            a(f"buffer_store_dwordx4 v[12:15], v8, {sr(S_WS,4)}, 0 offen sc1")
            a(f"buffer_store_dwordx4 v[12:15], v9, {sr(S_WS,4)}, 0 offen sc1")
            a("v_mov_b32 v10, 1")
            a("v_lshlrev_b32 v11, 2, v0")
            a("s_waitcnt vmcnt(0)")
            a("s_barrier")
            a("s_mov_b32 exec_hi, 0")
            a(f"buffer_store_dword v10, v11, {sr(S_DBG,4)}, 0 offen sc1")
            a("s_mov_b64 exec, -1")
        self.ptouch()
        if o["fused"] and o["sig"] == 3:
            a("s_mov_b64 exec, 1")
            a(f"buffer_store_dword v9, v8, {sr(S_WS,4)}, 0 offen sc1")
            a("s_mov_b64 exec, -1")
        a("L_cons3:")
        self.stamp(1)
        self.dma_setup()
        if o["bias0"]:
            self.bias_load()
        if o["pfd"]:
            a(f"s_cmp_lt_u32 s{S_TASK}, {NTASK}")
            a("s_cbranch_scc1 L_pfd")
            a(f"s_waitcnt vmcnt({2 - o['pfd']})")
            a("L_pfd:")
        def late():
            a(f"s_bfe_u32 s{S_T0}, s{S_DMASK}, {hex(4 << 16 | 20)}")
            a(f"s_cmp_ge_u32 s{S_TASK}, {NTASK}")
            a(f"s_cselect_b32 s{S_T0}, s{S_T0}, 15")
            a(f"s_cmp_lt_u32 s{S_T0}, {6 if o['pfl'] == 2 else 15}")
        if o["pfl"]:
            late()
            a("s_cbranch_scc1 L_rest")
        self.prefetch(20)
        self.stamp(2)
        if o["fused"]:
            mark1 = len(self.L)
            a("s_branch L_rest")
            a("L_prod:")
            self.producer("", False)
            pick(S_DMASK, [msk(p) for p in self.pol[4:]] * 2)
            a("s_barrier")
            a(f"s_cmp_lg_u32 s{S_WAVE}, 0")
            a("s_cbranch_scc1 L_cons2")
            if o["sig"] != 4:
                a("v_mov_b32 v8, 1")
                a("s_mov_b64 exec, 1")
            if o["sig"] == 4:
                a(f"v_readfirstlane_b32 s{S_T0}, v8")
                a("s_mov_b64 exec, 0xffff")
                a(f"s_cmp_lg_u32 s{S_T0}, 1")
                a("s_cbranch_scc1 L_pwait")
                a("L_pset:")
                a(f"buffer_store_dword v10, v9, {sr(S_WS,4)}, 0 offen sc1")
                self.tailblocks.append("\n".join([
                    "L_pwait:", f"s_mov_b32 s{S_T1}, {o['maxpoll']}", "L_pwait1:", f"buffer_load_dword v8, off, {sr(S_DBG,4)}, 0 sc1",
                    "s_waitcnt vmcnt(0)", f"v_readfirstlane_b32 s{S_T0}, v8", "s_nop 3", f"s_cmp_eq_u32 s{S_T0}, 1", "s_cbranch_scc1 L_pset",
                    f"s_sub_u32 s{S_T1}, s{S_T1}, 1", "s_cbranch_scc0 L_pwait1", "s_branch L_notlast"]))
            elif o["sig"] == 2:
                a(f"s_lshr_b32 s{S_T0}, s{S_TASK}, 1")
                a(f"s_lshl_b32 s{S_T0}, s{S_T0}, 2")
                a(f"s_bitcmp1_b32 s{S_TASK}, 0")
                a(f"s_cselect_b32 s{S_T1}, 128, 0")
                a(f"s_add_u32 s{S_T0}, s{S_T0}, s{S_T1}")
                a(f"v_mov_b32 v9, s{S_T0}")
                a(f"buffer_store_dword v8, v9, {sr(S_DBG,4)}, 0 offen {o['fs']}")
            else:
                a(f"buffer_atomic_add v8, off, {sr(S_DBG,4)}, 0 offset:128 sc0 sc1")
                if o["sig"] == 3:
                    a("s_mov_b64 exec, -1")
                    a(f"s_mov_b32 s{S_T1}, {MB_OFF}")
                    a(f"v_lshl_add_u32 v10, v{V_LANE}, 7, s{S_T1}")
                    for k in range(1, 4):
                        a(f"v_add_u32 v{10+k}, {8192*k}, v10")
                a("v_mov_b32 v9, 1")
                a("s_waitcnt vmcnt(0)")
                a(f"v_readfirstlane_b32 s{S_T0}, v8")
                a("s_nop 3")
                a(f"s_cmp_lg_u32 s{S_T0}, {NTASK-1}")
                a("s_cbranch_scc1 L_notlast")
                if o["sig"] == 3:
                    for k in range(4):
                        a(f"buffer_store_dword v9, v{10+k}, {sr(S_WS,4)}, 0 offen sc1")
                    a("s_mov_b64 exec, 1")
                a(f"buffer_store_dword v9, off, {sr(S_DBG,4)}, 0 {o['fs']}")
                if o["diag"] and o["diag"][2] == "last":
                    a("s_mov_b32 s101, -1")
            a("L_notlast:")
            self.stamp(15)
            a("s_mov_b64 exec, -1")
            a("L_cons2:")
            self.lane_setup()
            if o["bar2"] and o["sig"] != 4:
                a("s_barrier")
            a("s_branch L_cons3")
            self.flush_tail()
            if o["pfirst"]:
                cons, prod = self.L[mark0:mark1], self.L[mark1 + 2:]
                if o["pfirst"] == 2:
                    k = max(i for i, x in enumerate(prod) if f"{sr(S_W,4)}" in x) + 1
                    self.L[mark0 - 1:] = ["s_cbranch_scc0 L_cons"] + prod[:k] + ["s_branch L_prod", "L_cons:"] + cons + ["s_branch L_rest", "L_prod:"] + prod[k:]
                else:
                    head = ["s_cbranch_scc1 L_prod"] + self.cw + ["s_branch L_cons", "L_prod:"] if o["cwc"] else ["s_cbranch_scc0 L_cons"]
                    self.L[mark0 - 1:] = head + prod + ["L_cons:"] + cons
            a("L_rest:")
        for reg, wm in ((S_WMASK, self.wmask), (S_WMASK2, self.wmask2)):
            pick(reg, [hex(x) for x in wm[:4]])
            if o["fused"]:
                pick(S_T1, [hex(x) for x in wm[4:]] * 2)
                a(f"s_cmp_lt_u32 s{S_TASK}, {NTASK}")
                a(f"s_cselect_b32 s{reg}, s{S_T1}, s{reg}")
        if not o["bias0"]:
            self.bias_load()
        self.lane_setup2()
        self.tables_init()
        pre, C, G = self.build()
        if o["pfl"]:
            late()
            a("s_cbranch_scc0 L_pfl_e")
            self.prefetch(20, "L_pfl")
        if o["fused"]:
            a(f"s_cmp_lg_u32 s{S_WAVE}, 0")
            a("s_cbranch_scc1 L_ready")
            if o["sig"] == 4:
                a(f"s_mov_b32 s{S_T1}, {o['maxpoll']}")
                a(f"s_mov_b32 s{S_T0}, {FL_OFF}")
                a(f"v_lshl_add_u32 v9, v{V_LANE}, 7, s{S_T0}")
                a(f"s_bfe_u32 s{S_T0}, s{S_DMASK}, {hex(4 << 16 | 20)}")
                a(f"s_cmp_ge_u32 s{S_T0}, 6")
                a("s_waitcnt vmcnt(15)")
                a("s_cbranch_scc1 L_deep")
                a(f"s_waitcnt vmcnt({0 if o['bias0'] else 1})")
                a("L_deep:")
                self.stamp(14)
                a(f"v_readfirstlane_b32 s{S_T0}, v124")
                a(f"s_mov_b32 exec_hi, {(1 << (NTASK - 32)) - 1}")
                a(f"s_cmp_lg_u32 s{S_T0}, 1")
                a("s_cbranch_scc1 L_cwait")
                self.tailblocks.append("\n".join([
                    "L_cwait:", f"buffer_load_dword v8, off, {sr(S_DBG,4)}, 0 sc1", f"s_sub_u32 s{S_T1}, s{S_T1}, 1", "s_cbranch_scc1 L_giveup",
                    "s_waitcnt vmcnt(0)", f"v_readfirstlane_b32 s{S_T0}, v8", "s_nop 3", f"s_cmp_lg_u32 s{S_T0}, 1", "s_cbranch_scc1 L_cwait",
                    "s_branch L_poll"]))
                a("L_poll:")
                if o["psleep"]:
                    a(f"s_sleep {o['psleep']}")
                a(f"buffer_load_dword v8, v9, {sr(S_WS,4)}, 0 offen sc1")
                a(f"s_sub_u32 s{S_T1}, s{S_T1}, 1")
                a("s_cbranch_scc1 L_giveup")
                a("s_waitcnt vmcnt(0)")
                a("v_cmp_ne_u32 vcc, 1, v8")
                a("s_nop 4")
                a("s_cbranch_vccnz L_poll")
            else:
                if o["sig"] == 2:
                    a(f"v_lshlrev_b32 v9, 2, v{V_LANE}")
                    a("s_waitcnt vmcnt(0)")
                else:
                    a("s_mov_b64 exec, 1")
                a(f"s_mov_b32 s{S_T1}, {o['maxpoll']}")
                if o["stamp"] and (o["stamp"] is True or 14 in o["stamp"]):
                    a("s_waitcnt vmcnt(0)")
                    self.stamp(14)
                if o["sig"] == 3:
                    self.mb_addr(S_T0, S_MASK)
                    a(f"v_mov_b32 v9, s{S_T0}")
                    a(f"s_waitcnt vmcnt({5*self.premin})")
                a("L_poll:")
                if o["psleep"]:
                    a(f"s_sleep {o['psleep']}")
                if o["sig"] == 3:
                    a(f"s_and_b32 s{S_T0}, s{S_T1}, 15")
                    a("s_cbranch_scc0 L_polld")
                    a(f"buffer_load_dword v8, v9, {sr(S_WS,4)}, 0 offen sc1")
                    a("L_pollb:")
                    self.tailblocks.append(f"L_polld:\nbuffer_load_dword v8, off, {sr(S_DBG,4)}, 0 sc1\ns_branch L_pollb")
                else:
                    a(f"buffer_load_dword v8, {'v9' if o['sig'] == 2 else 'off'}, {sr(S_DBG,4)}, 0 {'offen ' if o['sig'] == 2 else ''}{o['pl']}")
                a(f"s_sub_u32 s{S_T1}, s{S_T1}, 1")
                a("s_cbranch_scc1 L_giveup")
                a("s_waitcnt vmcnt(0)")
                if o["sig"] == 2:
                    a("v_cmp_ne_u32 vcc, 0, v8")
                    a(f"s_bcnt1_i32_b64 s{S_T0}, vcc")
                    a(f"s_cmp_lt_u32 s{S_T0}, {NTASK}")
                else:
                    a(f"v_readfirstlane_b32 s{S_T0}, v8")
                    a("s_nop 3")
                    a(f"s_cmp_lg_u32 s{S_T0}, 1")
                a("s_cbranch_scc1 L_poll")
            a("L_polled:")
            a("s_mov_b64 exec, -1")
            a("L_ready:")
            self.tailblocks.append(f"L_giveup:\ns_waitcnt vmcnt(0)\nv_mov_b32 v8, {L_PL + 256}\nv_mov_b32 v9, 1\nds_write_b32 v8, v9\ns_branch L_polled")
        a("s_waitcnt lgkmcnt(0)")
        a("s_barrier")
        self.stamp(3)
        self.emit_build(pre, C, G)
        self.stamp(4, "s[94:95]")
        self.loop_state()
        a("s_waitcnt lgkmcnt(0)")
        a(f"v_mov_b32 v{V_X if o['peel'] else V_T}, {L_PL + 256}")
        a("s_barrier")
        if o["peel"]:
            self.peel()
            for x in self.dma_advance(first=True):
                a(x)
            a(f"s_add_u32 s{S_OOFF}, s{S_OOFF}, {256*TB}")
            self.stamp(5)
            a("s_waitcnt lgkmcnt(0)")
            a("s_barrier")
            if o["links"] is None:
                a(f"s_cmp_lg_u32 s{S_LINK}, 0")
                a("s_cbranch_scc1 L_loopnk_p3")
            a("s_branch L_loopn_p3")
        else:
            a(f"ds_read_b32 v{V_T}, v{V_T}")
            if o["links"] is None:
                a(f"s_cmp_lg_u32 s{S_LINK}, 0")
                a("s_cbranch_scc1 L_linked")
        self.main_loop(bool(o["links"]), "")
        a("L_fin:")
        if o["stamp"]:
            a(f"v_mbcnt_lo_u32_b32 v{V_LANE}, -1, 0\nv_mbcnt_hi_u32_b32 v{V_LANE}, -1, v{V_LANE}")
        self.stamp(6)
        if o["stamp"]:
            a("s_waitcnt vmcnt(0)")
            self.stamp(7)
            a("v_writelane_b32 v255, s100, 0")
            a(f"s_lshl_b32 s{S_T0}, s2, 2\ns_add_u32 s{S_T0}, s{S_T0}, s{S_WAVE}\ns_lshl_b32 s{S_T0}, s{S_T0}, 6")
            a(f"s_add_u32 s{S_T0}, s{S_T0}, {WSBYTES - 65536}")
            if o["trace"]:
                a(f"s_lshl_b32 s{S_T1}, s2, 2\ns_add_u32 s{S_T1}, s{S_T1}, s{S_WAVE}\ns_lshl_b32 s{S_T1}, s{S_T1}, 8")
                a(f"s_add_u32 s{S_T1}, s{S_T1}, {WSBYTES - 65536 - 262144}")
                a(f"v_lshl_add_u32 v8, v{V_LANE}, 2, s{S_T1}")
                a(f"buffer_store_dword v254, v8, {sr(S_WS,4)}, 0 offen")
                a("s_nop 1")
            a(f"v_lshl_add_u32 v254, v{V_LANE}, 2, s{S_T0}")
            a("s_mov_b32 exec_lo, 0xffff\ns_mov_b32 exec_hi, 0")
            a(f"buffer_store_dword v255, v254, {sr(S_WS,4)}, 0 offen")
            if o["diag"]:
                n1, n0, wg, mul = o["diag"]
                a(("s_cmp_lg_u32 s101, -1" if wg == "last" else f"s_cmp_lg_u32 s2, {wg}") + f"\ns_cbranch_scc1 L_end_{K}\ns_cmp_lg_u32 s{S_WAVE}, 0\ns_cbranch_scc1 L_end_{K}")
                a(f"v_readlane_b32 s60, v255, {n1}\nv_readlane_b32 s61, v255, {n0}\ns_nop 3\ns_sub_u32 s60, s60, s61\ns_mul_i32 s60, s60, {mul}")
                a("s_min_u32 s60, s60, 100000\ns_add_u32 s60, s60, 10000")
                a("L_diag:\ns_sleep 1\ns_memrealtime s[62:63]\ns_waitcnt lgkmcnt(0)\ns_sub_u32 s62, s62, s100\ns_cmp_lt_u32 s62, s60\ns_cbranch_scc1 L_diag")
        a(f"L_end_{K}:\ns_endpgm")
        self.flush_tail()
        if o["links"] is None:
            a("L_linked:")
            self.main_loop(True, "k")
            a("s_branch L_fin")
            self.flush_tail()
        self.slow_path(K)
        a('.section .rodata,"a"\n.p2align 6')
        if not o["fused"]:
            self.descriptor("prep_kernel", 128, 128)
            a(".p2align 6")
        self.descriptor(K, 512, 256)
        return "\n".join(self.L) + "\n"


if __name__ == "__main__":
    opts = eval("dict(" + (sys.argv[2] if len(sys.argv) > 2 else "") + ")")
    out = sys.argv[1] if len(sys.argv) > 1 else "cdna_kernels/" + NAME + ".s"
    open(out, "w").write(Gen(**opts).gen())
```

```python
import sys

NAME = "standalone__structured_sparse_n_m__ragged"
TB = 18432
TBL = TB + 128
NB = 8
CNT_OFF = 0x60000
MB_OFF = 0x68000
FL_OFF = 0x70000
CLEARER = 24
PRIV0 = 2
XBYTES = 75497472
WBYTES = 663552
WSBYTES = 301989888
A_OFF = 0
I_OFF = 331776
I8_OFF = I_OFF + 36864
R1_OFF = I8_OFF + 5120
R8_OFF = R1_OFF + 9216
COPY = 393216
NTASK = 41
L_WV = NB * TBL
WV_SZ = 3584
O_X, O_K, O_M, O_BIAS, O_IDX = 64, 384, 704, 1024, 1792
L_PL = L_WV + 4 * WV_SZ
LDS_BYTES = 163840
assert L_PL + 512 <= LDS_BYTES and L_WV % 256 == 0 and WV_SZ % 256 == 0

V_RD0, V_RD1, V_TAB, V_DMA, V_ST, V_ST8, V_BP, V_LANE = 0, 1, 2, 3, 4, 5, 6, 7
V_ACC = 8
V_B = 44
V_BR = 76
V_P = 92
V_T = 108
V_P8 = 112
V_X = 114
V_AD = 118
V_I = 138
V_I8 = 174
V_IR = 179
V_A = 186
S_X, S_OUT, S_WS, S_W, S_B, S_DBG = 16, 20, 24, 28, 32, 36
S_WAVE = 40
S_IT, S_BUF, S_DELTA, S_M0B, S_XOFF, S_OOFF = 41, 42, 43, 44, 45, 46
S_T0, S_T1 = 47, 3
S_MASK = 48
S_EVEN, S_ODD = 80, 82
S_TASK, S_TEND, S_BASE, S_MODE, S_CONT = 84, 85, 86, 87, 88
S_BAD = 90
S_MORE, S_LINK = 78, 89
S_C0 = 93
S_BUFN, S_CTB, S_OINC, S_XOFF5, S_M05, S_M0W, S_HALF = 4, 5, 6, 7, 8, 9, 10
S_NMASK = 12
S_WMASK, S_WMASK2 = 92, 87
S_XINC, S_OINC2, S_NT = 13, 14, 15
S_Q, S_CL, S_CB, S_K5, S_CL0, S_CT, S_W0 = 48, 56, 57, 58, 59, 60, 62
S_LIM, S_THR = 64, 65
V_C = 7
S_DMASK, S_NB0 = 85, 88


def vr(b, n=1):
    return f"v{b}" if n == 1 else f"v[{b}:{b+n-1}]"


def sr(b, n=1):
    return f"s{b}" if n == 1 else f"s[{b}:{b+n-1}]"


def afrag(s, t):
    f = 9 * s + t
    return f"a[{4*f}:{4*f+3}]" if f < 64 else vr(V_A + 4 * (f - 64), 4)


def aidx(s, t):
    if t < 8:
        return V_I + 4 * s + (t >> 1), t & 1
    return V_I8 + (s >> 1), s & 1


BBUF = [0, 1, 2, 3, 0, 1, 0, 2, 3]
PEEL_T = [8, 0, 1, 2, 3, 4, 5, 6, 7]
RT = [[0, 1], [1, 2, 3], [3, 4, 5], [5, 6, 7], [7, 8]]


class Op:
    def __init__(self, text, kind, rd=(), wr=(), tag=""):
        self.text, self.kind, self.rd, self.wr, self.tag = text, kind, set(rd), set(wr), tag


def rng(b, n):
    return range(b, b + n)


class Gen:
    def __init__(self, **o):
        self.o = dict(fused=True, ld="nt", st="sc1", bperm=True, grp=None, nb0=None, gsh=3, gsh2=6, split=0, dyn=(10, 3), psh=6, peel=True, ptail=1, psch=True, n2in=4, midg=(12, 34, 58, 82, 106, 126), vcap=18, stp=None, stt=None, ste=None, mbg=64, cwg=54, dwg=32, wbl2=None, stn=None, pad=0, swp=(0, 0, 0), dropm=(), st8='nt', stc=None, stamp=False, nodma=False, wl="sc1", ws="sc1",
                      vmw=20, lper=9, drop=(), cyc=False, links=None, ng4=8, px=2, maxpoll=20015, warm=True, bcast=True, l0=12, lw=2, cwarm=True, nbar=True, ldx2=False, ppre=0, bwarm=True, cwc=True, pfirst=1, ld0=0, othr=96, st2=False, pil=True, pfl=False, ldw='nt', ldc='', pfd=2, bias0=True, ldp=None, ptouch=False, pspread=True, pfw=(3, 1, 0, 0), wtouch=False, bar2=True, early=True, ltail=24, coal=True, rpos=(18, 35, 50, 63, 75), rposl=(18, 36, 52, 66, 78),
                      lead=8, stg=(9, 16, 23, 30, 37), dmag=(44, 52, 60, 63, 66), gsp=2, eager=99, verbose=False, hack=None, diag=None, sig=4, psleep=0, pl='sc1', fs='sc1', isort=False, trace=False, chain=True, ord1=(0,1,4,5,6,2,3,7,8), ord2=(0,4,5,1,6,7,2,3,8), align2=True, order='hp')
        self.o.update(o)
        if self.o["grp"] is None and self.o["nb0"] is None:
            self.o.update(grp=[(3, 2, 2), (7, 0, 4), (3, 2, 2)])
        grp = self.o["grp"] or [(self.o["nb0"], 0, 0)] * 2
        if len(grp) != 6:
            grp = list(grp[:-1]) * (4 // (len(grp) - 1)) + [grp[-1]] * 2
        sp = self.o["split"]
        if sp:
            self.o["gsh"], self.o["gsh2"] = 0, 3
        self.pol, self.nt = [], []
        self.mid = []
        for c, (n1, n2, its) in enumerate(grp):
            self.mid.append(n1[1] if isinstance(n1, tuple) else 0)
            n1 = sum(n1) if isinstance(n1, tuple) else n1
            nt = 16 + (sp if c % 2 == 0 else -sp)
            nb = n1 + n2
            its = list(its) if isinstance(its, (list, tuple)) else [its]
            while len(its) < nt - nb:
                its.append(its[-1] + 1)
            assert len(its) == nt - nb and all(nb + n - 7 <= i <= nb + n - 2 for n, i in enumerate(its)) and n1 >= 1, (n1, n2, its)
            self.pol.append((n1, n2, its))
            self.nt.append(nt)
        self.dyn = self.o["dyn"]
        assert not (self.dyn and (self.o["drop"] or self.o["nodma"])), "dropping ops breaks the counted wait of the claim (hang)"
        if self.dyn:
            NS, LK = self.dyn
            self.cl0 = NS - LK - 1
            assert not sp and all(its[NS - 1 - n1 - n2] == self.cl0 and its[-1] == 15 - LK for n1, n2, its in self.pol) and self.cl0 >= 1
        self.n2min = min(p[1] for p in self.pol)
        self.premin = min(p[0] - m for p, m in zip(self.pol, self.mid))
        assert not max(self.mid) or (self.o["peel"] and self.premin >= 2 and max(self.mid) <= len(self.o["midg"]))
        req = []
        for (n1, n2, its), nt in zip(self.pol, self.nt):
            r = [63] * nt
            for tile in range(n1, nt):
                i = tile - 1
                a0 = (1 if self.o["peel"] else -1) if tile < n1 + n2 else its[tile - n1 - n2]
                r[i] = sum(10 if j in its else 5 for j in range(a0 + 1, i + 1)) + 5 * max(0, n1 + n2 - 1 - tile)
                if a0 < 0:
                    r[i] -= 5
            if self.o["peel"]:
                assert n1 >= 3 and its[0] >= 2 and not sp
            elif self.o["early"]:
                r[0] = min(r[0], 5 * n2 + (5 if 0 in its else 0))
            if self.dyn:
                r = r[:self.cl0] + [5 * (self.dyn[1] - 1)]
            req.append(r)
        low = sorted({x for r in req for x in r if x < self.o["vmw"]})
        self.wlo = low[0] if low else 0
        best = None
        for hi in low or [0]:
            cost = sum(x - (hi if x >= hi else self.wlo) for r in req[:4] for x in r[1:] if x < self.o["vmw"])
            if best is None or cost < best[0]:
                best = (cost, hi)
        self.whi = best[1]
        self.wmask = [sum(1 << (i + 1) for i, x in enumerate(r) if x < self.o["vmw"]) for r in req]
        self.wmask2 = [sum(1 << (i + 1) for i, x in enumerate(r) if x < self.whi) for r in req]
        if self.o["nbar"]:
            assert self.o["peel"] and self.dyn and self.o["stt"] is None
            for c, ((n1, n2, its), r) in enumerate(zip(self.pol, req)):
                last = 1
                for i in range(2, self.cl0):
                    if i not in its:
                        war = i + 1 in its and n1 + n2 + its.index(i + 1) - NB > last
                        if not (r[i] < 63 or war):
                            continue
                        self.wmask[c] |= 1 << (i + 1)
                    last = i
        self.req = req
        self.L = []
        self.tailblocks = []

    def a(self, s):
        self.L.extend(s.split("\n"))

    def entry(self, label, nwg):
        a = self.a
        a(f".globl {label}\n.p2align 8\n.type {label},@function\n{label}:")
        a("s_load_dwordx8 s[4:11], s[0:1], 0")
        a("s_load_dwordx4 s[12:15], s[0:1], 32")
        a(f"s_cmp_ge_u32 s2, {nwg}")
        a(f"s_cbranch_scc1 L_end_{label}")
        if self.o["stamp"]:
            a("s_memrealtime s[100:101]")
        self.cw = ["v_lshlrev_b32 v3, 7, v0", "s_getpc_b64 s[96:97]", f"v_min_u32 v2, L_slow-{label}, v3",
                   f"global_load_dword v120, v2, s[96:97] {self.o['ldc']}"] if self.o["cwarm"] else []
        if not (self.o["cwc"] and self.o["pfirst"] == 1):
            for x in self.cw:
                a(x)
        if self.o["wtouch"]:
            a(f"s_lshr_b32 s{S_T0}, s2, 3")
            a(f"s_mul_i32 s{S_T0}, s{S_T0}, {162*128}")
            a(f"v_add_u32 v3, s{S_T0}, v3")
            a(f"v_min_u32 v3, {WBYTES-128}, v3")
            a(f"s_and_b32 s{S_T0}, s2, {8 - self.o['px']}")
            a("s_waitcnt lgkmcnt(0)")
            a(f"s_cbranch_scc1 L_nt_{label}")
            a(f"global_load_dword v121, v3, s[6:7] {self.o['ldw']}")
            a(f"L_nt_{label}:")
        a("v_lshrrev_b32 v1, 6, v0")
        a(f"v_and_b32 v{V_LANE}, 63, v0")
        if not (self.o["fused"] and self.o["pil"]):
            a(f"v_readfirstlane_b32 s{S_WAVE}, v1")

    def mb_addr(self, d, t):
        a = self.a
        a(f"s_lshr_b32 s{d}, s2, 4")
        a(f"s_and_b32 s{t}, s2, 7")
        a(f"s_lshl3_add_u32 s{d}, s{d}, s{t}")
        a(f"s_and_b32 s{t}, s2, 8")
        a(f"s_lshl4_add_u32 s{d}, s{t}, s{d}")
        a(f"s_lshl_b32 s{d}, s{d}, 7")
        a(f"s_add_u32 s{d}, s{d}, {MB_OFF}")

    def ptouch(self):
        if self.o["ptouch"]:
            a = self.a
            a("s_mov_b64 exec, 1")
            a(f"s_mov_b32 s{S_T0}, {MB_OFF + 0x8000}")
            a(f"buffer_load_dword v122, off, {sr(S_WS,4)}, s{S_T0} sc1")
            a(f"buffer_load_dword v123, off, {sr(S_DBG,4)}, 0 sc1")
            a("s_mov_b64 exec, -1")

    def srds(self, which):
        for srd, p, size in ((S_W, 6, WBYTES), (S_X, 4, XBYTES), (S_WS, 14, WSBYTES), (S_B, 8, 1152), (S_OUT, 10, 0), (S_DBG, 12, 256)):
            if srd in which:
                self.a(f"s_mov_b32 s{srd+2}, {size}")
                self.a(f"s_mov_b32 s{srd+3}, 0x20000")
                self.a(f"s_mov_b32 s{srd}, s{p}")
                self.a(f"s_and_b32 s{srd+1}, s{p+1}, 0xffff")

    def entry_wait(self, first=None):
        lst = (S_W, S_X, S_WS, S_B, S_OUT, S_DBG)
        if first:
            k = len(self.L)
            self.srds(lst[:1])
            self.L.insert(k + 2, "s_waitcnt lgkmcnt(0)")
            return
        if first is not False:
            self.a("s_waitcnt lgkmcnt(0)")
        self.srds(lst if first is None else (lst[:1] if first else lst[1:]))

    def producer(self, sfx, generic):
        a = self.a
        ws = self.o["ws"]
        W, Z, K = 8, 24, 28
        OA, NB_, IX = 36, 44, 48
        VL, VA, VI, VM0, VM1, VSEL, CJ = 50, 51, 52, 53, 54, 55, 56
        F0, F1, H, U, T0, T1, T2, VLI, VA2, VLD, VLR = 58, 59, 60, 61, 62, 63, 64, 65, 66, 67, 57
        C = S_MASK
        SEL = S_MASK + 16
        CNT = S_MASK + 27
        ln = f"v{V_LANE}"
        fast = not generic and self.o["fused"] and self.o["pil"]
        if not fast:
            a(f"s_and_b32 s{C}, s{S_TASK}, 3")
            a(f"s_lshr_b32 s{C+1}, s{S_TASK}, 2")
        a(f"s_cmp_ge_u32 s{S_TASK}, 36")
        a(f"s_cbranch_scc1 L_pb{sfx}")
        a(f"s_mul_i32 s{C+4}, s{C+1}, 288")
        a(f"s_add_u32 s{C+4}, s{C+4}, s{C}")
        a(f"s_lshl_b32 s{C+4}, s{C+4}, 8")
        a(f"v_lshl_add_u32 v{VL}, {ln}, 2, s{C+4}")
        a(f"L_pbb{sfx}:")
        if fast:
            a(f"v_mul_u32_u24 v{T0}, 18432, v1")
        else:
            a(f"s_mul_i32 s{C+4}, s{S_WAVE}, 18432")
            a(f"v_mov_b32 v{T0}, s{C+4}")
        x2l = self.o["ldx2"] and not generic
        if x2l:
            a(f"v_and_b32 v{T1}, 1, {ln}")
            a(f"v_mul_u32_u24 v{T1}, 9212, v{T1}")
            a(f"v_add3_u32 v{VL}, v{T0}, v{T1}, v{VL}")
        else:
            a(f"v_add_u32 v{VL}, v{T0}, v{VL}")
        RW = 84
        wrow = lambda r: (W + r if r < 8 else RW + 2 * (r - 8) + 1) if x2l else W + r
        m0 = len(self.L)
        if not generic:
            self.entry_wait(first=True)
        for q in range(2 if x2l else 4):
            if q:
                a(f"v_add_u32 v{VL}, 4608, v{VL}")
            for j in range(4):
                if x2l:
                    a(f"buffer_load_dwordx2 {vr(RW+8*q+2*j,2)}, v{VL}, {sr(S_W,4)}, 0 offen offset:{1152*j} {self.o['ldw']}")
                else:
                    a(f"buffer_load_dword v{W+4*q+j}, v{VL}, {sr(S_W,4)}, 0 offen offset:{1152*j} {'' if generic else self.o['ldw']}")
        a(f"s_branch L_pc{sfx}")
        a(f"L_pb{sfx}:")
        a(f"s_mul_i32 s{C+4}, s{S_TASK}, 147456")
        a(f"s_sub_u32 s{C+4}, s{C+4}, {36*147456 - 1024}")
        a(f"v_and_b32 v{T0}, 2, {ln}")
        a(f"v_mul_u32_u24 v{VL}, 36864, v{T0}")
        a(f"v_and_b32 v{T0}, 1, {ln}")
        a(f"v_lshl_add_u32 v{VL}, v{T0}, 2, v{VL}")
        a(f"v_and_b32 v{T0}, 4, {ln}")
        a(f"v_lshl_add_u32 v{VL}, v{T0}, 3, v{VL}")
        a(f"v_and_b32 v{T0}, 32, {ln}")
        a(f"v_lshl_add_u32 v{VL}, v{T0}, 1, v{VL}")
        a(f"v_and_b32 v{T0}, 24, {ln}")
        a(f"v_add3_u32 v{VL}, v{VL}, v{T0}, s{C+4}")
        a(f"s_branch L_pbb{sfx}")
        a(f"L_pc{sfx}:")
        if fast:
            a(f"v_readfirstlane_b32 s{S_WAVE}, v1")
            a(f"s_mov_b32 s{S_BASE}, 0")
        if not generic:
            self.stamp(8)
            self.entry_wait(first=False)
            self.ptouch()
        a(f"s_sub_u32 s{C+2}, s{S_TASK}, 36")
        a(f"s_lshl_b32 s{C+3}, s{S_WAVE}, 4")
        a(f"v_and_b32 v{F0}, 1, {ln}")
        a(f"v_bfe_u32 v{F1}, {ln}, 1, 1")
        a(f"v_bfe_u32 v{H}, {ln}, 3, 2")
        m1 = len(self.L)
        a(f"s_mul_i32 s{C+4}, s{C}, 9")
        a(f"s_add_u32 s{C+4}, s{C+4}, s{C+1}")
        a(f"s_mul_i32 s{C+5}, s{C+4}, 9")
        a(f"s_mul_i32 s{C+6}, s{C+2}, 18")
        a(f"s_add_u32 s{C+6}, s{C+6}, 8")
        a(f"s_lshl_b32 s{C+7}, s{C+4}, 2")
        a(f"s_add_u32 s{C+7}, s{C+7}, s{S_WAVE}")
        a(f"s_lshl_b32 s{C+8}, s{C+2}, 2")
        a(f"s_add_u32 s{C+8}, s{C+8}, s{S_WAVE}")
        a(f"s_cmp_eq_u32 s{S_TASK}, 40")
        a(f"s_cselect_b32 s{C+9}, 0x100000, 9")
        a(f"s_cmp_lt_u32 s{S_TASK}, 36")
        a(f"s_cselect_b32 s{C+5}, s{C+5}, s{C+6}")
        a(f"s_cselect_b32 s{C+6}, 2, 81")
        a(f"s_cselect_b32 s{C+9}, 1, s{C+9}")
        a(f"s_cselect_b32 s{C+7}, s{C+7}, s{C+8}")
        a(f"s_mov_b32 s{C+8}, {I_OFF}")
        a(f"s_cselect_b32 s{C+8}, s{C+8}, {I8_OFF}")
        a(f"s_mov_b32 s{C+10}, {R1_OFF}")
        a(f"s_cselect_b32 s{C+10}, s{C+10}, {R8_OFF}")
        a(f"s_cselect_b32 s{C+11}, 16, 4")
        a(f"s_cselect_b32 s{C+12}, 4, 64")
        a(f"s_cselect_b32 s{C+13}, 12, 11")
        a(f"s_cselect_b32 s{C+14}, 1, 0x8001")
        a(f"v_bfe_u32 v{U}, {ln}, 2, 1")
        a(f"v_lshrrev_b32 v{T0}, 5, {ln}")
        a(f"v_lshl_add_u32 v{U}, v{T0}, 1, v{U}")
        a(f"v_lshlrev_b32 v{T0}, 1, v{F0}")
        a(f"v_lshl_add_u32 v{H}, v{H}, 2, v{T0}")
        a(f"v_add_u32 v{T0}, v{H}, v{F1}")
        a(f"v_mul_u32_u24 v{VA}, s{C+6}, v{U}")
        a(f"v_add_lshl_u32 v{VA}, v{VA}, s{C+5}, 6")
        a(f"v_add3_u32 v{VA}, v{VA}, v{T0}, s{C+3}")
        a(f"v_lshl_add_u32 v{VA}, v{VA}, 4, s{S_BASE}")
        a(f"s_lshl_b32 s{C+9}, s{C+9}, 10")
        a(f"v_add_u32 v{VA2}, s{C+9}, v{VA}")
        a(f"s_lshl_b32 s{C+4}, s{C+7}, 8")
        a(f"s_add_u32 s{C+4}, s{C+4}, s{C+8}")
        a(f"s_add_u32 s{C+4}, s{C+4}, s{S_BASE}")
        a(f"v_mul_u32_u24 v{VI}, s{C+11}, v{T0}")
        a(f"v_mad_u32_u24 v{VI}, v{U}, s{C+12}, v{VI}")
        a(f"v_lshl_add_u32 v{VM1}, {ln}, 2, s{C+4}")
        if not generic and self.o["ppre"]:
            self.L[m0:] = self.L[m1:] + self.L[m0:m1]
            m0, m1 = len(self.L) - (m1 - m0), len(self.L)
        if not generic:
            a(f"s_lshr_b32 s{C+4}, s{C+7}, 2")
            a(f"s_lshl_b32 s{C+4}, s{C+4}, 8")
            a(f"s_add_u32 s{C+10}, s{C+10}, s{C+4}")
            a(f"s_lshl2_add_u32 s{C+10}, s{C+3}, s{C+10}")
            a(f"s_lshl_b32 s{C+4}, s{C+3}, 1")
            a(f"s_add_u32 s{C+4}, s{C+4}, s{C+14}")
            a(f"v_lshl_add_u32 v{T0}, v{U}, 1, v{F1}")
            a(f"v_lshlrev_b32 v{T0}, s{C+13}, v{T0}")
            a(f"v_lshl_add_u32 v{VM0}, v{H}, 7, v{T0}")
            a(f"v_add_u32 v{VM0}, s{C+4}, v{VM0}")
            a(f"v_and_b32 v{T0}, 12, {ln}")
            a(f"v_and_b32 v{T1}, 15, {ln}")
            a(f"v_mad_u32_u24 v{T0}, v{T0}, 3, v{T1}")
            a(f"v_lshl_add_u32 v{T0}, v{T0}, 2, s{C+3}")
            a(f"v_mov_b32 v{VLD}, 0")
            a(f"ds_write_b32 v{T0}, v{VLD}")
            a(f"s_lshl2_add_u32 s{C+4}, s{S_TASK}, s{S_WAVE}")
            a(f"s_lshl_b32 s{C+4}, s{C+4}, 7")
            a(f"s_add_u32 s{C+4}, s{C+4}, {CNT_OFF - 64}")
            a(f"v_lshl_add_u32 v{VLI}, {ln}, 2, s{C+10}")
            a(f"v_lshl_add_u32 v{T0}, {ln}, 2, s{C+4}")
            a(f"v_cmp_gt_u32 vcc, 16, {ln}")
            a(f"s_lshl_b32 s{C+4}, s{C+3}, 2")
            a(f"v_lshl_add_u32 v{VLR}, {ln}, 2, s{C+4}")
            a(f"v_cndmask_b32 v{VLI}, v{T0}, v{VLI}, vcc")
            if self.o["sig"] == 3:
                self.mb_addr(C + 4, C + 5)
                a(f"s_sub_u32 s{C+4}, s{C+4}, 192")
                a(f"v_cmp_gt_u32 vcc, 48, {ln}")
                a(f"v_lshl_add_u32 v{T0}, {ln}, 2, s{C+4}")
                a("s_nop 0")
                a(f"v_cndmask_b32 v{VLI}, v{T0}, v{VLI}, vcc")
            a(f"s_mov_b32 s{CNT}, 0")
            a(f"s_mov_b32 s{SEL+9}, 0x05060100")
            a(f"s_mov_b32 s{SEL+10}, 0xffff")
        if not generic and self.o["ppre"] > 1:
            self.L[m0:] = self.L[m1:] + self.L[m0:m1]
        a(f"v_mov_b32 v{VSEL}, 0x05040100")
        a(f"v_mov_b32 v{T0}, 0x03020706")
        a(f"v_cmp_eq_u32 vcc, 1, v{F1}")
        CJ, EF, EO = 68, 76, 82
        for n in range(8):
            a(f"v_mov_b32 v{CJ+n}, {hex(0x0f0a0500 | 0x01010101 * (((n >> 1) << 4) | ((n & 1) << 7)))}")
        a(f"v_cndmask_b32 v{VSEL}, v{VSEL}, v{T0}, vcc")
        if not generic:
            for r in range(3):
                a(f"v_mov_b64 {vr(EF+2*r,2)}, 0")
            a(f"v_mov_b32 v{EO}, 0")
        for c in range(2):
            for j in range(4):
                a(f"s_mov_b32 s{SEL+4*c+j}, {hex(((5+2*c) << 24) | ((4+2*c) << 16) | ((5+2*c) << 8) | j)}")
        a(f"s_mov_b32 s{SEL+8}, 0x05060102")
        if generic:
            a(f"s_cmp_lg_u32 s{S_MODE}, 0")
        sw = "src0_sel:WORD_1 src1_sel:WORD_1"
        if x2l:
            a(f"s_mov_b32 s{S_EVEN}, 0x55555555")
            a(f"s_mov_b32 s{S_EVEN+1}, 0x55555555")
        for q in range(4):
            if not x2l:
                a(f"s_waitcnt vmcnt({12-4*q + (2 if self.o['ptouch'] and not generic else 0)})")
            elif q < 2:
                a(f"s_mov_b64 vcc, {sr(S_EVEN,2)}")
                a(f"s_waitcnt vmcnt({4-4*q})")
                if q:
                    a("s_nop 1")
                x1 = "quad_perm:[1,0,3,2] row_mask:0xf bank_mask:0xf"
                for r in range(4 * q, 4 * q + 4):
                    a(f"v_cndmask_b32_dpp v{W+r}, v{RW+2*r+1}, v{RW+2*r}, vcc {x1}")
                a("s_not_b64 vcc, vcc")
                for r in range(4 * q, 4 * q + 4):
                    a(f"v_cndmask_b32_dpp v{RW+2*r+1}, v{RW+2*r}, v{RW+2*r+1}, vcc {x1}")
            if q in (0, 3) and not generic:
                self.stamp(9 + q // 3)
            for c in range(2):
                n = 2 * q + c
                for j in range(4):
                    a(f"v_perm_b32 v{Z+j}, v{wrow(4*q+j)}, v{CJ+n}, s{SEL+4*c+j}")
                a(f"v_max3_f32 v{K}, |v{Z}|, |v{Z+1}|, |v{Z+2}|")
                a(f"v_med3_f32 v{K+1}, |v{Z}|, |v{Z+1}|, |v{Z+2}|")
                a(f"v_min3_f32 v{K+2}, |v{Z}|, |v{Z+1}|, |v{Z+2}|")
                a(f"v_med3_f32 v{K+4}, v{K}, v{K+1}, |v{Z+3}|")
                a(f"v_med3_f32 v{K+5}, v{K+1}, v{K+2}, |v{Z+3}|")
                a(f"v_max_f32 v{K+3}, v{K}, |v{Z+3}|")
                if generic:
                    a(f"v_cmp_eq_u32_sdwa vcc, v{K+5}, v{K+4} {sw}")
                    a(f"s_cbranch_scc0 L_rb{n}{sfx}")
                    a(f"v_min_f32 v{K+2}, v{K+2}, |v{Z+3}|")
                    a(f"v_cndmask_b32 v{K+3}, 0, v{K+5}, vcc")
                    a(f"v_cmp_eq_u32_sdwa vcc, v{K+2}, v{K+4} {sw}")
                    a("s_nop 1")
                    a(f"v_cndmask_b32 v{K+4}, 0, v{K+2}, vcc")
                    a(f"L_rb{n}{sfx}:")
                a(f"v_perm_b32 v{OA+4*c+q}, v{K+3}, v{K+4}, s{SEL+8}")
                nb = NB_ + 2 * c + (q >> 1)
                if q & 1 == 0:
                    a(f"v_bfi_b32 v{nb}, 3, v{K+4}, v{K+3}")
                else:
                    a(f"v_bfi_b32 v{K+3}, 3, v{K+4}, v{K+3}")
                    a(f"v_lshlrev_b32 v{K+3}, 4, v{K+3}")
                    a(f"v_bfi_b32 v{nb}, 15, v{nb}, v{K+3}")
                if not generic:
                    a(f"v_cmpx_eq_u32_sdwa vcc, v{K+5}, v{K+4} {sw}")
                    if n >= 3:
                        a(f"v_or_b32 v{EO}, v{EO}, v{EF+4}")
                    if n >= 2:
                        a(f"v_mov_b64 {vr(EF+4,2)}, {vr(EF+2,2)}")
                    if n >= 1:
                        a(f"v_mov_b64 {vr(EF+2,2)}, {vr(EF,2)}")
                    a(f"v_mov_b32 v{EF}, v{K+5}")
                    a(f"v_min_f32 v{EF+1}, v{K+2}, |v{Z+3}|")
                    a("s_mov_b64 exec, -1")
        x2 = "quad_perm:[2,3,0,1] row_mask:0xf bank_mask:0xf"
        a("s_mov_b32 vcc_lo, 0x33333333")
        a("s_mov_b32 vcc_hi, 0x33333333")
        for d in range(4):
            a(f"v_cndmask_b32_dpp v{Z+d}, v{OA+4+d}, v{OA+d}, vcc {x2}")
        a("s_not_b64 vcc, vcc")
        a(f"buffer_store_dwordx4 {vr(Z,4)}, v{VA}, {sr(S_WS,4)}, 0 offen {ws}")
        for d in range(4):
            a(f"v_cndmask_b32_dpp v{OA+4+d}, v{OA+d}, v{OA+4+d}, vcc {x2}")
        a(f"s_mov_b32 s{C+4}, 0x0c0c0400")
        a(f"s_mov_b32 s{C+5}, 0x04000c0c")
        a(f"buffer_store_dwordx4 {vr(OA+4,4)}, v{VA2}, {sr(S_WS,4)}, 0 offen {ws}")
        a(f"v_perm_b32 v{IX}, v{NB_+1}, v{NB_}, s{C+4}")
        a(f"v_perm_b32 v{IX+1}, v{NB_+3}, v{NB_+2}, s{C+5}")
        a(f"v_or_b32 v{IX}, v{IX}, v{IX+1}")
        a("s_nop 1")
        a(f"v_mov_b32_dpp v{IX+1}, v{IX} quad_perm:[2,3,0,1] row_mask:0xf bank_mask:0xf")
        a(f"v_perm_b32 v{IX}, v{IX+1}, v{IX}, v{VSEL}")
        a(f"ds_permute_b32 v{IX}, v{VI}, v{IX}")
        if generic:
            a("s_waitcnt lgkmcnt(0)")
            a(f"buffer_store_dword v{IX}, v{VM1}, {sr(S_WS,4)}, 0 offen {ws}")
        if not generic:
            self.stamp(11)
            a(f"v_cmp_lt_u32 {sr(C+6,2)}, s{SEL+10}, v{EO}")
            a(f"L_emit{sfx}:")
            a(f"v_cmp_lt_u32 vcc, s{SEL+10}, v{EF}")
            a(f"v_cmp_eq_u32_sdwa {sr(C,2)}, v{EF+1}, v{EF} {sw}")
            a(f"v_perm_b32 v{T1}, v{EF}, v{VM0}, s{SEL+9}")
            a(f"v_bfe_u32 v{T0}, v{EF}, 2, 4")
            a(f"v_and_b32 v{T2}, 0x80, v{EF}")
            a(f"v_lshl_add_u32 v{T1}, v{T0}, 1, v{T1}")
            a(f"v_mbcnt_lo_u32_b32 v{T0}, vcc_lo, 0")
            a(f"v_mbcnt_hi_u32_b32 v{T0}, vcc_hi, v{T0}")
            a(f"v_add_u32 v{T1}, v{T2}, v{T1}")
            a(f"v_add_u32 v{T0}, s{CNT}, v{T0}")
            a(f"s_bcnt1_i32_b64 s{C+4}, vcc")
            a(f"s_add_u32 s{CNT}, s{CNT}, s{C+4}")
            a(f"v_cmp_gt_u32 {sr(C+4,2)}, 15, v{T0}")
            a(f"v_and_b32 v{T2}, 12, v{T0}")
            a(f"v_mad_u32_u24 v{T0}, v{T2}, 3, v{T0}")
            a(f"v_lshl_add_u32 v{T0}, v{T0}, 2, s{C+3}")
            a(f"s_and_b64 {sr(C,2)}, {sr(C,2)}, vcc")
            a(f"s_and_b64 exec, {sr(C+4,2)}, vcc")
            a(f"ds_write_b32 v{T0}, v{T1}")
            a(f"s_mov_b64 exec, {sr(C,2)}")
            a(f"v_mov_b32 v{EF}, v{EF+1}")
            a(f"v_mov_b32 v{EF+1}, 0")
            a(f"s_not_b64 exec, exec")
            a(f"v_mov_b64 {vr(EF,2)}, {vr(EF+2,2)}")
            a(f"v_mov_b64 {vr(EF+2,2)}, {vr(EF+4,2)}")
            a(f"v_mov_b64 {vr(EF+4,2)}, 0")
            a("s_mov_b64 exec, -1")
            a(f"v_or3_b32 v{T0}, v{EF}, v{EF+2}, v{EF+4}")
            a(f"v_cmp_lt_u32 vcc, s{SEL+10}, v{T0}")
            a(f"s_cmp_lg_u64 {sr(C+6,2)}, 0")
            a(f"s_cselect_b32 s{C+4}, 99, s{CNT}")
            a(f"s_cmp_gt_u32 s{C+4}, 15")
            a(f"s_cselect_b32 s{C+4}, -1, 0")
            a(f"v_mov_b32 v{T1}, s{C+3}")
            a(f"s_cbranch_vccnz L_emit{sfx}")
            a(f"v_mov_b32 v{T0}, s{C+4}")
            a(f"ds_write_b32 v{T1}, v{T0} offset:204")
            if self.o["sig"] == 4:
                a(f"v_lshlrev_b32 v{W+3}, 4, v{T1}")
            a("s_waitcnt lgkmcnt(0)")
            a("s_barrier")
            a("s_mov_b64 exec, 0xffff")
            a(f"ds_read_b32 v{VLD}, v{VLR}")
            a("s_mov_b64 exec, -1")
            a(f"buffer_store_dword v{IX}, v{VM1}, {sr(S_WS,4)}, 0 offen {ws}")
            if self.o["sig"] != 3:
                a("s_mov_b32 exec_hi, 0xffff")
            a("s_waitcnt lgkmcnt(0)")
            a(f"buffer_store_dword v{VLD}, v{VLI}, {sr(S_WS,4)}, 0 offen {ws}")
            if self.o["sig"] == 4:
                a("s_mov_b64 exec, 1")
                a(f"buffer_load_dword v{W}, v{W+3}, {sr(S_DBG,4)}, 0 offen sc1")
            a("s_mov_b64 exec, -1")
            if self.o["sig"] == 4:
                a(f"s_lshl_b32 s{C+4}, s{S_TASK}, 7")
                a(f"s_add_u32 s{C+4}, s{C+4}, {FL_OFF}")
                a(f"v_lshl_add_u32 v{W+1}, {ln}, 2, s{C+4}")
                a(f"v_mov_b32 v{W+2}, 1")
            self.stamp(12)
        a("s_waitcnt vmcnt(0)")
        if not generic:
            self.stamp(13)

    def lane_setup(self):
        a = self.a
        ln = f"v{V_LANE}"
        T0, T1, T2 = 72, 73, 74
        a(f"v_lshrrev_b32 v{T0}, 3, {ln}")
        a(f"v_and_b32 v{T1}, 7, {ln}")
        a(f"v_xor_b32 v{T1}, v{T1}, v{T0}")
        a(f"v_mul_u32_u24 v{T0}, 1152, v{T0}")
        a(f"s_and_b32 s{S_T0}, s{S_WAVE}, 1")
        a(f"s_mul_i32 s{S_T0}, s{S_T0}, 9216")
        a(f"s_lshr_b32 s{S_T1}, s{S_WAVE}, 1")
        a(f"s_lshl_b32 s{S_T1}, s{S_T1}, 7")
        a(f"s_add_u32 s{S_T0}, s{S_T0}, s{S_T1}")
        a(f"v_lshl_add_u32 v{T0}, v{T1}, 4, v{T0}")
        a(f"v_add_u32 v{V_DMA}, s{S_T0}, v{T0}")
        a(f"s_lshl_b32 s{S_M0B}, s{S_WAVE}, 10")
        if self.o["split"]:
            a(f"s_bitcmp1_b32 s2, 0")
            a(f"s_cselect_b32 s{S_XOFF}, 256, 1")
            a(f"s_add_u32 s{S_XOFF}, s{S_XOFF}, s2")
            a(f"s_mul_i32 s{S_XOFF}, s{S_XOFF}, {TB}")
        else:
            a(f"s_mul_i32 s{S_XOFF}, s2, {TB}")
        a(f"s_mov_b32 s{S_OOFF}, s{S_XOFF}")

    def lane_setup2(self):
        a = self.a
        ln = f"v{V_LANE}"
        T0, T1, T2 = 72, 73, 74
        a(f"v_and_b32 v{T0}, 15, {ln}")
        a(f"v_lshrrev_b32 v{T1}, 4, {ln}")
        a(f"v_and_b32 v{T2}, 7, {ln}")
        a(f"v_xor_b32 v{T2}, v{T2}, v{T1}")
        a(f"v_lshlrev_b32 v{T2}, 4, v{T2}")
        a(f"v_lshl_add_u32 v{V_RD0}, v{T0}, 7, v{T2}")
        a(f"v_xor_b32 v{V_RD1}, 64, v{V_RD0}")
        a(f"s_mul_i32 s{S_C0}, s{S_WAVE}, {WV_SZ}")
        a(f"s_add_u32 s{S_C0}, s{S_C0}, {L_WV}")
        a(f"v_lshl_add_u32 v{V_TAB}, v{T1}, 4, s{S_C0}")
        a(f"v_and_b32 v{T2}, 14, {ln}")
        a(f"v_mul_u32_u24 v{V_ST}, 1152, v{T2}")
        a(f"v_and_b32 v{T2}, 1, {ln}")
        a(f"v_lshl_add_u32 v{V_ST}, v{T2}, 4, v{V_ST}")
        a(f"v_lshl_add_u32 v{V_ST}, v{T1}, 5, v{V_ST}")
        a(f"s_lshl_b32 s{S_T0}, s{S_WAVE}, 8")
        a(f"v_add_u32 v{V_ST}, s{S_T0}, v{V_ST}")
        if self.o["hack"] == "q4":
            a(f"v_lshrrev_b32 v{T2}, 3, {ln}")
            a(f"v_mul_u32_u24 v{V_ST}, 2304, v{T2}")
            a(f"v_and_b32 v{T2}, 7, {ln}")
            a(f"v_lshl_add_u32 v{V_ST}, v{T2}, 4, v{V_ST}")
            a(f"v_add_u32 v{V_ST}, s{S_T0}, v{V_ST}")
        a(f"s_lshl_b32 s{S_T0}, s{S_WAVE}, 5")
        a(f"s_add_u32 s{S_T0}, s{S_T0}, 1024")
        if self.o["bperm"]:
            a(f"v_lshrrev_b32 v{T0}, 2, {ln}")
            a(f"v_and_b32 v{T1}, 3, {ln}")
            a(f"v_lshl_add_u32 v{V_BP}, v{T1}, 4, v{T0}")
            a(f"v_lshlrev_b32 v{V_BP}, 2, v{V_BP}")
        else:
            a(f"v_lshlrev_b32 v{V_BP}, 2, {ln}")
        a(f"v_mul_u32_u24 v{V_ST8}, 1152, v{T0}")
        a(f"v_lshl_add_u32 v{V_ST8}, v{T1}, 3, v{V_ST8}")
        a(f"v_add_u32 v{V_ST8}, s{S_T0}, v{V_ST8}")
        a(f"s_mov_b32 s{S_EVEN}, 0x55555555")
        a(f"s_mov_b32 s{S_EVEN+1}, 0x55555555")
        a(f"s_mov_b32 s{S_ODD}, 0xaaaaaaaa")
        a(f"s_mov_b32 s{S_ODD+1}, 0xaaaaaaaa")

    def dma_setup(self):
        a = self.a
        a(f"s_lshr_b32 s{S_T0}, s{S_WAVE}, 1")
        a(f"s_lshl_b32 s{S_T1}, s{S_T0}, 11")
        a(f"s_sub_u32 s{S_M05}, {16384-896}, s{S_T1}")
        a(f"s_lshl_b32 s{S_T1}, s{S_T0}, 7")
        a(f"s_add_u32 s{S_XOFF5}, s{S_XOFF}, 128")
        a(f"s_sub_u32 s{S_XOFF5}, s{S_XOFF5}, s{S_T1}")
        a(f"s_sub_u32 s{S_HALF}, s{S_T0}, 1")
        a(f"s_sub_u32 s{S_HALF+1}, 0, s{S_T0}")
        a(f"s_mov_b32 s{S_M0W}, s{S_M0B}")
        a(f"s_mov_b32 s{S_XINC}, {256*TB}")
        if self.o["split"]:
            a(f"s_bitcmp1_b32 s2, 0")
            a(f"s_cselect_b32 s{S_XINC}, s{S_XINC}, {-TB}")
            a(f"s_cselect_b32 s{S_NT}, 15, 17")
        else:
            a(f"s_mov_b32 s{S_NT}, 16")
        a(f"s_mov_b32 s{S_OINC2}, s{S_XINC}")

    def dma_advance(self, first=False):
        x = [] if first else [f"s_add_u32 s{S_XOFF}, s{S_XOFF}, {256*TB}", f"s_add_u32 s{S_XOFF5}, s{S_XOFF5}, {256*TB}",
                              f"s_add_u32 s{S_M0B}, s{S_M0B}, s{S_CTB}"]
        return x + [f"s_cmp_ge_u32 s{S_M0B}, {NB*TBL}", f"s_cselect_b32 s{S_M0B}, s{S_M0W}, s{S_M0B}"]

    def dma_tile(self, ld=None):
        a = self.a
        ld = self.o["ld"] if ld is None else ld
        for j in range(5):
            a(f"s_add_u32 m0, s{S_M0B}, {3840*j if j < 4 else 's%d' % S_M05}")
            a("s_nop 0" if j < 4 else f"s_mov_b64 exec, {sr(S_HALF,2)}")
            a(f"buffer_load_dwordx4 v{V_DMA}, {sr(S_X,4)}, s{S_XOFF if j < 4 else S_XOFF5} offen offset:{256*j if j < 4 else 896} {ld} lds")
        a("s_mov_b64 exec, -1")

    def prefetch(self, sh, lab="L_pf"):
        a = self.a
        a(f"s_bfe_u32 s{S_NB0}, s{S_DMASK}, {hex(4 << 16 | sh)}")
        if sh == 20 and self.o["pfw"]:
            k, n, ka, kp = self.o["pfw"]
            a(f"s_mov_b32 s{S_T1}, {k*TBL}")
            a(f"s_cmp_ge_u32 s{S_NB0}, 6")
            a(f"s_cselect_b32 s{S_T1}, s{S_T1}, {ka*TBL}")
            a(f"s_cmp_ge_u32 s{S_TASK}, {NTASK}")
            a(f"s_cselect_b32 s{S_T1}, s{S_T1}, {kp*TBL}")
        if sh != 20 and self.n2min == 0:
            a(f"s_cbranch_scc0 {lab}_e")
        a(f"{lab}:")
        if sh == 20 and self.o["ld0"]:
            a(f"s_cmp_ge_u32 s{S_M0B}, {self.o['ld0']*TBL}")
            a(f"s_cbranch_scc1 {lab}_a")
            self.dma_tile("")
            a(f"s_branch {lab}_b")
            a(f"{lab}_a:")
        self.dma_tile(self.o["ldp"] if sh == 20 else None)
        if sh == 20 and self.o["ld0"]:
            a(f"{lab}_b:")
        if sh == 20 and self.o["sig"] == 4 and self.o["fused"]:
            a(f"s_cmp_lg_u32 s{S_M0B}, {(min(3, self.premin)-1)*TBL}")
            a(f"s_cbranch_scc1 {lab}_f")
            a("s_mov_b64 exec, 1")
            a(f"buffer_load_dword v124, off, {sr(S_DBG,4)}, 0 sc1")
            a("s_mov_b64 exec, -1")
            a(f"{lab}_f:")
        if sh == 20 and self.o["pfw"]:
            n = self.o["pfw"][1]
            a(f"s_cmp_ge_u32 s{S_M0B}, s{S_T1}")
            a(f"s_cbranch_scc1 {lab}_n")
            a(f"s_waitcnt vmcnt({n})")
            a(f"{lab}_n:")
        a(f"s_add_u32 s{S_XOFF5}, s{S_XOFF5}, s{S_XINC}")
        a(f"s_add_u32 s{S_M0B}, s{S_M0B}, {TBL}")
        a(f"s_add_u32 s{S_XOFF}, s{S_XOFF}, s{S_XINC}")
        a(f"s_mov_b32 s{S_XINC}, {256*TB}")
        a(f"s_sub_u32 s{S_NB0}, s{S_NB0}, 1")
        a(f"s_cmp_lg_u32 s{S_NB0}, 0")
        a(f"s_cbranch_scc1 {lab}")
        a(f"{lab}_e:")

    def bias_load(self):
        a = self.a
        ln = f"v{V_LANE}"
        a(f"v_and_b32 v80, 3, {ln}")
        a(f"v_bfe_u32 v81, {ln}, 2, 2")
        a(f"v_bfe_u32 v82, {ln}, 4, 1")
        a("v_lshlrev_b32 v81, 3, v81")
        a("v_lshl_add_u32 v81, v80, 5, v81")
        a("v_lshl_add_u32 v81, v82, 7, v81")
        a(f"s_lshl_b32 s{S_T0}, s{S_WAVE}, 8")
        a(f"v_add_u32 v81, s{S_T0}, v81")
        a(f"s_lshl_b32 s{S_T0}, s{S_WAVE}, 5")
        a(f"s_add_u32 s{S_T0}, s{S_T0}, 1024")
        a(f"v_lshl_add_u32 v80, v80, 3, s{S_T0}")
        a(f"v_cmp_gt_u32 vcc, 32, {ln}")
        a("s_nop 1")
        a("v_cndmask_b32 v80, v80, v81, vcc")
        a(f"buffer_load_dwordx2 v[110:111], v80, {sr(S_B,4)}, 0 offen {self.o['ldc']}")

    def tables_init(self):
        a = self.a
        ln = f"v{V_LANE}"
        a(f"v_lshl_add_u32 v109, {ln}, 4, s{S_C0}")
        a(f"v_lshl_add_u32 v89, {ln}, 2, s{S_C0}")
        for r in range(4):
            a(f"v_mov_b32 v{76+r}, 0")
        a("v_mov_b32 v90, 0xdddddddd")
        a("ds_write_b128 v109, v[76:79]")
        for r in range(7):
            a(f"ds_write_b32 v89, v90 offset:{O_IDX+256*r}")
        a(f"s_lshl_b32 s{S_T0}, s{S_WAVE}, 2")
        a(f"s_add_u32 s{S_T0}, s{S_T0}, {L_PL + 256}")
        a(f"v_mov_b32 v88, s{S_T0}")
        a("ds_write_b32 v88, v76")

    def bias_store(self):
        return ["v_lshlrev_b32 v114, 16, v110", "v_and_b32 v115, 0xffff0000, v110", "v_lshlrev_b32 v116, 16, v111",
                "v_and_b32 v117, 0xffff0000, v111", "s_mov_b32 exec_hi, 15", f"ds_write_b128 v109, v[114:117] offset:{O_BIAS}",
                "s_mov_b64 exec, -1"]

    def wload_list(self, VA, VI8, pairs=False):
        wl = self.o["wl"]
        G = []
        so = S_C0 + 6
        cur = None
        for sp in range(5):
            g = []
            if sp == 4:
                g.append(f"s_mov_b32 s{so}, 4096")
            g.append(f"buffer_load_dword v{V_I8+sp}, v{VI8}, {sr(S_WS,4)}, {'s%d' % so if sp == 4 else '0'} offen offset:{1024*(sp%4)} {wl}")
            G.append(g)
        order = [(s, t) for s in range(9) for t in [None] + list(range(9))]
        if pairs:
            order = order[:70] + [(7, None), (8, None)] + [(s, t) for t in PEEL_T for s in (7, 8)]
        for s, t in order:
            if t is None:
                G.append([f"s_mov_b32 s{so-1}, {1024*s}",
                          f"buffer_load_dwordx4 {vr(V_I+4*s,4)}, v{VA+1}, {sr(S_WS,4)}, s{so-1} offen {wl}"])
            else:
                f = 9 * s + t
                g = []
                if cur != f >> 2:
                    cur = f >> 2
                    g.append(f"s_mov_b32 s{so}, {4096*cur}")
                g.append(f"buffer_load_dwordx4 {afrag(s,t)}, v{VA}, {sr(S_WS,4)}, s{so} offen offset:{1024*(f&3)} {wl}")
                G.append(g)
        return G

    def waddr(self, VA, VI8):
        a = self.a
        ln = f"v{V_LANE}"
        a(f"s_mul_i32 s{S_T0}, s{S_WAVE}, 82944")
        a(f"s_add_u32 s{S_T0}, s{S_T0}, s{S_BASE}")
        a(f"v_lshl_add_u32 v{VA}, {ln}, 4, s{S_T0}")
        a(f"s_mul_i32 s{S_T0}, s{S_WAVE}, 9216")
        a(f"s_add_u32 s{S_T0}, s{S_T0}, s{S_BASE}")
        a(f"s_add_u32 s{S_T0}, s{S_T0}, {I_OFF}")
        a(f"v_lshl_add_u32 v{VA+1}, {ln}, 4, s{S_T0}")
        a(f"s_lshl_b32 s{S_T0}, s{S_WAVE}, 6")
        a(f"s_add_u32 s{S_T0}, s{S_T0}, s{S_BASE}")
        a(f"s_add_u32 s{S_T0}, s{S_T0}, {I8_OFF}")
        a(f"v_and_b32 v{VI8}, 15, {ln}")
        a(f"v_lshl_add_u32 v{VI8}, v{VI8}, 2, s{S_T0}")
        a(f"v_lshrrev_b32 v{VI8+1}, 4, {ln}")
        a(f"v_lshl_add_u32 v{VI8}, v{VI8+1}, 8, v{VI8}")

    def build(self):
        a = self.a
        o = self.o
        ln = f"v{V_LANE}"
        wl = o["wl"]
        VA, VI8 = (112 if o["peel"] else 104), 106
        E, TT, RK, ST = 8, 24, 40, 56
        T0, T1, T2, T3 = 72, 73, 74, 75
        WARM = 76
        ONE, VW, KB, VST, RX, VWARM, CM, CV, TM, TBS, HI, AB, BM, VH, VK, LO = range(88, 104)
        SW = S_C0
        a(f"s_mul_i32 s{S_T0}, s{S_WAVE}, 2304")
        a(f"s_add_u32 s{S_T0}, s{S_T0}, {R1_OFF}")
        a(f"v_and_b32 v{T1}, 60, {ln}")
        a(f"v_mad_u32_u24 v{T1}, v{T1}, 3, {ln}")
        a(f"v_lshl_add_u32 v{T0}, v{T1}, 4, s{S_T0}")
        a(f"s_mov_b32 s{S_T0}, {R8_OFF - 36*64}")
        a(f"v_lshl_add_u32 v{T1}, v{T1}, 4, s{S_T0}")
        a(f"v_lshrrev_b32 v{T2}, 2, {ln}")
        a(f"v_cmp_gt_u32 vcc, 36, {ln}")
        a(f"v_lshlrev_b32 v{KB}, 11, v{T2}")
        a(f"v_subrev_u32 v{T2}, 9, v{T2}")
        a(f"v_lshlrev_b32 v{T2}, 12, v{T2}")
        a(f"v_cndmask_b32 v{T0}, v{T1}, v{T0}, vcc")
        a(f"v_cndmask_b32 v{KB}, v{T2}, v{KB}, vcc")
        a(f"s_lshl_b32 s{S_T0}, s{S_WAVE}, 12")
        a(f"s_add_u32 s{S_T0}, s{S_T0}, 0x8001")
        a(f"v_mov_b32 v{ONE}, 1")
        a(f"v_mov_b32 v{CM}, 0xf001")
        a(f"v_mov_b32 v{CV}, s{S_T0}")
        a(f"v_cndmask_b32 v{CM}, v{CM}, v{ONE}, vcc")
        a(f"v_cndmask_b32 v{CV}, v{CV}, v{ONE}, vcc")
        a(f"v_cndmask_b32 v{TM}, 0, 28, vcc")
        a(f"v_cndmask_b32 v{TBS}, 32, 0, vcc")
        a(f"v_add_u32 v{TBS}, s{SW}, v{TBS}")
        a(f"v_cmp_gt_u32 vcc, 56, {ln}")
        a(f"v_mov_b32 v{T1}, 0x40000000")
        tw = o["warm"] == 2
        a(f"s_lshr_b32 s{S_T0}, s2, {4 if tw else 3}")
        a(f"s_lshl_b32 s{S_T0}, s{S_T0}, 2")
        a(f"s_add_u32 s{S_T0}, s{S_T0}, s{S_WAVE}")
        a(f"s_mul_i32 s{S_T0}, s{S_T0}, {5888 if tw else 2944}")
        a(f"v_cndmask_b32 v{T0}, v{T1}, v{T0}, vcc")
        if tw:
            a(f"v_min_u32 v{VWARM}, 47, {ln}")
            a(f"v_lshl_add_u32 v{VWARM}, v{VWARM}, 7, s{S_T0}")
        else:
            a(f"v_lshl_add_u32 v{VWARM}, {ln}, 4, s{S_T0}")
        self.waddr(VA, VI8)
        a(f"v_and_b32 v{T2}, 15, {ln}")
        a(f"v_and_b32 v{T1}, 7, {ln}")
        a(f"v_lshlrev_b32 v{BM}, 1, v{T1}")
        a(f"v_lshlrev_b32 v{BM}, v{BM}, v{ONE}")
        a(f"v_lshlrev_b32 v{T1}, 4, v{T1}")
        a(f"v_lshl_add_u32 v{RX}, v{T2}, 7, v{T1}")
        a(f"v_lshl_or_b32 v{RX}, v{RX}, 16, v{RX}")
        a(f"v_lshrrev_b32 v{HI}, 5, {ln}")
        a(f"v_bfe_u32 v{AB}, {ln}, 3, 2")
        a(f"v_lshl_add_u32 v{AB}, v{AB}, 6, s{SW}")
        a(f"v_lshl_add_u32 v{VH}, {ln}, 1, s{SW}")
        a(f"v_lshrrev_b32 v{VK}, 4, {ln}")
        a(f"v_lshl_add_u32 v{VK}, v{VK}, 3, s{SW}")
        a(f"v_lshrrev_b32 v{LO}, 1, {ln}")
        a(f"v_lshlrev_b32 v{LO}, 5, v{LO}")
        a(f"s_mov_b32 s{S_LINK}, 0")
        pre = [f"buffer_load_dwordx4 {vr(E+4*r,4)}, v{T0}, {sr(S_WS,4)}, 0 offen offset:{64*r} {wl}" for r in range(4)]
        warm = [[f"buffer_load_dwordx4 {vr(WARM+4*r,4)}, v{VWARM}, {sr(S_WS,4)}, 0 offen offset:{1024*r} {wl}"] for r in range(3)] if o["warm"] else []
        if warm and not o["bwarm"]:
            warm[0] = [f"s_bfe_u32 s{S_T0}, s{S_DMASK}, {hex(4 << 16 | 20)}", f"s_cmp_ge_u32 s{S_T0}, 6", "s_cbranch_scc1 L_nowarm"] + warm[0]
        if tw:
            warm = [[f"buffer_load_dword v{WARM}, v{VWARM}, {sr(S_WS,4)}, 0 offen {wl}"]]
        C = []
        g = lambda *x: C.append(list(x))

        def rank(r):
            m = S_MASK + 2 * r
            return [f"v_and_b32 v{T1}, v{CM}, v{E+r}", f"v_lshrrev_b32 v{T0}, 10, v{E+r}", f"v_cmp_eq_u32 {sr(m,2)}, v{T1}, v{CV}",
                    f"v_and_or_b32 v{TT+r}, v{T0}, v{TM}, v{TBS}",
                    f"s_mov_b64 exec, {sr(m,2)}", f"ds_add_rtn_u32 v{RK+r}, v{TT+r}, v{ONE}", "s_mov_b64 exec, -1"]

        def place(r):
            m = S_MASK + 2 * r
            return [f"v_add_u32 v{T1}, v{RK+r}, v{ST+r}", f"v_and_b32 v{T0}, 0x87e, v{E+r}", f"v_lshl_add_u32 v{T1}, v{T1}, 1, s{SW}",
                    f"v_add_u32 v{T0}, v{KB}, v{T0}", f"s_andn2_b64 exec, {sr(m,2)}, {sr(S_BAD,2)}",
                    f"ds_write_b16_d16_hi v{T1}, v{E+r} offset:{O_X}", f"ds_write_b16 v{T1}, v{T0} offset:{O_K}",
                    f"ds_write_b16 v{T1}, v{E+r} offset:{O_M}", "s_mov_b64 exec, -1"]
        g("@WAIT_E")
        g(f"v_cmp_ne_u32 {sr(S_BAD,2)}, 0, v{E+15}", f"v_cmp_ne_u32 {sr(S_MORE,2)}, 0, v{E+8}")
        for r in range(8):
            g(*rank(r))
        g(f"s_cmp_lg_u64 {sr(S_MORE,2)}, 0", "s_cbranch_scc1 L_more1", "L_more1b:", f"ds_read_b32 v{T0}, v{VW}", f"v_mov_b32 v{T1}, 0")
        self.tailblocks.append("\n".join(["L_more1:"] + [x for r in range(8, 15) for x in rank(r)] + ["s_branch L_more1b"]))
        g("s_waitcnt lgkmcnt(0)", f"s_mov_b64 vcc, {sr(S_EVEN,2)}",
          f"v_cndmask_b32_dpp v{T1}, v{T0}, v{T1}, vcc quad_perm:[0,0,2,2] row_mask:0xf bank_mask:0xf",
          f"v_add_u32 v{VST}, v{LO}, v{T1}", f"v_add_u32 v{T1}, v{T0}, v{T1}", f"v_cmp_lt_u32 vcc, 32, v{T1}",
          f"s_or_b32 s{S_BAD}, s{S_BAD}, s{S_BAD+1}", f"s_and_b32 s{S_T0}, vcc_lo, 0x1ff", f"s_or_b32 s{S_T0}, s{S_T0}, s{S_BAD}",
          "s_cbranch_scc1 L_greedy", "L_greedyb:")
        x = ["L_greedy:", f"s_mov_b32 s{S_T0}, 0", f"s_mov_b32 s{S_LINK}, 1"]
        for t in range(9):
            lo = 32 * (t >> 1)
            x += [f"v_readlane_b32 s{S_T1}, v{T0}, {t}", f"s_max_u32 s{S_T0}, s{S_T0}, {lo}",
                  f"v_writelane_b32 v{VST}, s{S_T0}, {t}", "s_nop 1", f"s_add_u32 s{S_T0}, s{S_T0}, s{S_T1}",
                  f"s_cmp_gt_u32 s{S_T0}, {lo + (64 if t & 1 else 32)}", f"s_cselect_b32 s{S_BAD}, 1, s{S_BAD}"]
        x += [f"s_cmp_lg_u32 s{S_BAD}, 0", f"s_cselect_b64 {sr(S_BAD,2)}, -1, 0",
              f"v_mov_b32 v{T1}, {L_PL + 256}", f"s_mov_b64 exec, {sr(S_BAD,2)}", f"ds_write_b32 v{T1}, v{ONE}", "s_mov_b64 exec, -1",
              "s_branch L_greedyb"]
        self.tailblocks.append("\n".join(x))
        g(*[f"ds_bpermute_b32 v{ST+r}, v{TT+r}, v{VST}" for r in range(8)])
        for r in range(8):
            g(*([f"s_waitcnt lgkmcnt({(7, 9, 11, 13, 15, 15, 15, 15)[r] if r else 7})"] if r < 8 else []), *place(r))
        g(f"s_cmp_lg_u64 {sr(S_MORE,2)}, 0", "s_cbranch_scc1 L_more2", "L_more2b:",
          *[f"ds_read_u16 v{E+r}, v{VH} offset:{O_M+128*r}" for r in range(3)],
          *[f"ds_read2_b64 {vr(V_AD+4*j,4)}, v{VK} offset0:{(O_K+64*j)//8} offset1:{(O_K+64*j+32)//8}" for j in range(5)])
        self.tailblocks.append("\n".join(["L_more2:"] + [f"ds_bpermute_b32 v{ST+r}, v{TT+r}, v{VST}" for r in range(8, 15)] + ["s_waitcnt lgkmcnt(0)"]
                                         + [x for r in range(8, 15) for x in place(r)] + ["s_branch L_more2b"]))
        for r in range(3):
            g(*(["s_waitcnt lgkmcnt(5)"] if r == 0 else []),
              f"v_lshrrev_b32 v{T0}, 12, v{E+r}", f"v_cmp_ne_u32 vcc, 0, v{E+r}", f"v_min_u32 v{T0}, 8, v{T0}", f"v_add3_u32 v{T0}, v{T0}, v{HI}, {2*r}",
              f"v_lshlrev_b32 v{T1}, 4, v{T0}", f"v_lshrrev_b32 v{T0}, 1, v{T0}")
            g(f"v_lshlrev_b32 v{T1}, v{T1}, v{BM}", f"v_lshl_add_u32 v{T0}, v{T0}, 8, v{AB}", f"v_bfe_u32 v{T2}, v{E+r}, 7, 4",
              f"v_lshl_add_u32 v{T0}, v{T2}, 2, v{T0}", "s_mov_b64 exec, vcc", *(["s_mov_b32 exec_hi, 0"] if r == 2 else []),
              f"ds_xor_b32 v{T0}, v{T1} offset:{O_IDX}", "s_mov_b64 exec, -1")
        g(*[f"ds_read_b32 v{V_IR+r}, v{VW} offset:{O_IDX+256*r}" for r in range(7)])
        for j in range(5):
            g(*(["s_waitcnt lgkmcnt(10)"] if j == 0 else []), *[f"v_xor_b32 v{V_AD+4*j+q}, v{RX}, v{V_AD+4*j+q}" for q in range(4)])
        g(*self.bias_store())
        G = self.wload_list(VA, VI8, o['peel'])
        self.nskip = 0
        if warm and not o["bwarm"]:
            assert not tw
            G[0] = ["L_nowarm:"] + G[0]
            self.nskip = len(warm)
        return pre, C, warm + G

    def emit_build(self, pre, C, G):
        a = self.a
        for x in pre:
            a(x)
        nl = 0
        G = list(G)
        G0 = list(G)

        def load(n=1):
            nonlocal nl
            for _ in range(n):
                if G:
                    for x in G.pop(0):
                        a(x)
                    nl += 1
        acc = 0
        for grp in C:
            if grp[0] == "@WAIT_E":
                load(self.o["l0"])
                a(f"s_waitcnt vmcnt({nl - self.nskip})")
                self.stamp(1, "s[94:95]") if self.o["st2"] else None
                continue
            if grp[0] in ("s_waitcnt lgkmcnt(0)", "s_waitcnt lgkmcnt(7)", "s_waitcnt lgkmcnt(5)"):
                load(self.o["lw"])
            for x in grp:
                a(x)
            acc += len(grp)
            while acc >= self.o["lper"]:
                acc -= self.o["lper"]
                load()
        if self.o["peel"]:
            self.issued, self.pending = G0[:len(G0) - len(G)], G
            return
        load(len(G) - self.o["ltail"])
        assert len(G) == self.o["ltail"]
        self.late_loads = [x for grp in G for x in grp]

    @staticmethod
    def regs(txt):
        k, body = txt[0], txt[1:].strip("[]")
        lo, hi = (body.split(":") + [body])[:2]
        return [(256 if k == "a" else 0) + r for r in range(int(lo), int(hi) + 1)]

    def emit_line(self, ops, vm, hist=(), lds=(), vcap=None, hoist=False):
        a = self.a
        lds, hist = list(lds), list(hist)

        def put(op):
            a(op.text)
            hist.append(op)

        def waits(touched):
            w = []
            for q, name, cap in ((vm, "vmcnt", vcap or self.o["vcap"]), (lds, "lgkmcnt", 15)):
                hit = [i for i, x in enumerate(q) if x & touched]
                if hit:
                    n = min(len(q) - 1 - hit[-1], cap)
                    w.append(f"{name}({n})")
                    del q[:len(q) - n]
            if w:
                put(Op("s_waitcnt " + " ".join(w), "salu"))
        for k, op in enumerate(ops):
            touched = op.rd | op.wr
            waits(touched)
            need = 0
            for d, p in enumerate(reversed(hist[-9:])):
                ws = sum(int(x.text[6:]) + 1 if x.text.startswith("s_nop") else 1 for x in hist[len(hist) - d:])
                r = 0
                if p.kind == "mx" and op.kind != "mx" and (p.wr & touched):
                    r = 8
                if p.kind in ("valu", "dpp") and op.kind in ("mx", "dpp") and (p.wr & op.rd):
                    r = 2
                if p.kind == "st" and (p.rd & op.wr):
                    r = 2
                need = max(need, r - ws)
            if need > 0:
                put(Op(f"s_nop {need-1}", "salu"))
            put(op)
            if op.kind == "lds":
                lds.append(op.wr)
            if op.kind in ("ld", "st"):
                vm.append(op.wr)
            if op.kind == "mx" and hoist:
                nxt = [x for x in ops[k + 1:k + 9] if x.kind == "mx"]
                if nxt:
                    waits(nxt[0].rd | nxt[0].wr)
        return hist, lds

    def peel(self):
        o = self.o
        AX = V_BR
        acc = lambda m, t: (AX if m == 0 else V_ACC) + 4 * t
        Ba, Bb, Bc, Bd = (V_B + 8 * k for k in range(4))
        dst = lambda g: set(self.regs(g[-1].split()[1].rstrip(",")))
        vm = [dst(g) for g in self.issued]
        loads = [[Op(x, "salu") for x in g[:-1]] + [Op(g[-1], "ld", wr=dst(g))] for g in self.pending]

        def M(m, s, t, b):
            ir, h = aidx(s, t)
            return Op(f"v_smfmac_f32_16x16x64_bf16 {vr(acc(m,t),4)}, {afrag(s,t)}, {vr(b,8)}, v{ir}" + (" abid:1" if h else ""), "mx",
                      rd=list(rng(acc(m, t), 4)) + list(rng(b, 8)) + self.regs(afrag(s, t)) + [ir], wr=rng(acc(m, t), 4))

        def R(m, j, t):
            c, b = j + t, (Bc, Bd)[m]
            return Op(f"v_smfmac_f32_16x16x64_bf16 {vr(acc(m,t),4)}, {vr(V_X,4)}, {vr(b,8)}, v{V_IR+(c>>1)}" + (" abid:1" if c & 1 else ""), "mx",
                      rd=list(rng(acc(m, t), 4)) + list(rng(b, 8)) + list(rng(V_X, 4)), wr=rng(acc(m, t), 4))

        def B(m, s, b):
            return [Op(f"ds_read_b128 {vr(b+4*h,4)}, v{V_RD0+h} offset:{2048*s+TBL*m}", "lds", rd=[V_RD0 + h], wr=rng(b + 4 * h, 4)) for h in range(2)]

        def addr(j, b, r, base):
            ad = V_AD + 4 * j + (b >> 1)
            return Op(f"v_add_u32_sdwa v{r}, s{base}, v{ad} dst_sel:DWORD dst_unused:UNUSED_PAD src0_sel:DWORD src1_sel:WORD_{b&1}", "valu", rd=[ad], wr=[r])
        ops = [Op(f"ds_read_b32 v{V_X}, v{V_X}", "lds", rd=[V_X], wr=[V_X])] + B(0, 0, Ba)
        for m in range(2):
            ops += [Op(f"ds_read_b128 {vr(acc(m,t),4)}, v{V_TAB} offset:{O_BIAS+64*t}", "lds", rd=[V_TAB], wr=rng(acc(m, t), 4)) for t in range(9)]
            ops += loads.pop(0)
        ops += [Op(f"v_readfirstlane_b32 s{S_T0}, v{V_X}", "valu", rd=[V_X]), addr(0, 0, Bc, S_BUF),
                Op(f"s_cmp_lg_u32 s{S_T0}, 0", "salu"), Op("s_cbranch_scc1 L_slow", "salu")]
        ngap = 126 + 26
        rho, credit = len(loads) / (ngap - o["ptail"]), 0.0

        ng = 0
        if max(self.mid):
            ops.append(Op(f"s_lshr_b32 s{S_NB0}, s{S_DMASK}, 28", "salu"))

        def midtile(k):
            keepL, self.L = self.L, []
            self.dma_tile(o["ldp"])
            x, self.L = self.L, keepL
            x = [f"s_cmp_le_u32 s{S_NB0}, {k}", f"s_cbranch_scc1 L_mid{k}"] + x + [
                f"s_add_u32 s{S_XOFF5}, s{S_XOFF5}, {256*TB}", f"s_add_u32 s{S_M0B}, s{S_M0B}, {TBL}", f"s_add_u32 s{S_XOFF}, s{S_XOFF}, {256*TB}",
                f"L_mid{k}:"]
            assert loads
            return Op("\n".join(x), "salu")

        def gap(mx, D=(), V=()):
            nonlocal credit, ng
            ops.append(mx)
            if ng in o["midg"][:max(self.mid)]:
                ops.append(midtile(o["midg"].index(ng)))
            ng += 1
            credit += rho
            while credit >= 1 and loads:
                credit -= 1
                ops.extend(loads.pop(0))
            ops.extend(D)
            ops.extend(V)
        if o["psch"]:
            for s in range(7):
                for m in range(2):
                    gb, gm = ((Bd, 1), (Bc, 0))[m]
                    nb_ = (Bc, Bd)[m]
                    Dq = B(1, s, Bb) if m == 0 else B(0, s + 1, Ba)
                    if s < 5 and m == 1:
                        Dq.insert(0, Op(f"ds_read_b128 {vr(V_X,4)}, v{V_TAB} offset:{O_X+64*s}", "lds", rd=[V_TAB], wr=rng(V_X, 4)))
                    if s < 5:
                        Dq += [Op(f"ds_read_u16 v{gb+b}, v{gb+b} offset:{TBL*gm}", "lds", rd=[gb + b], wr=[gb + b]) for b in range(8)]
                    if s == 5:
                        Dq += B(1, 8, Bd) if m == 0 else B(1, 7, Bc)
                    Vq = [addr(s, b, gb + b, S_BUF) for b in range(8)] if s < 5 else []
                    mx = [M(m, s, t, (Ba, Bb)[m]) for t in range(9)]
                    j = s - 1 if m == 0 else s
                    if 0 <= j < 5:
                        mx += [R(m, j, t) for t in RT[j]]
                    for n, x in enumerate(mx):
                        k = 1 if len(Dq) <= len(mx) - n else 2
                        D = [Dq.pop(0) for _ in range(min(k, len(Dq)))]
                        assert not any(d.rd & v.wr for d in D for v in Vq)
                        gap(x, D, Vq[:1])
                        Vq = Vq[1:]
                    assert not Dq and not Vq
        else:
            for s in range(7):
                for t in range(9):
                    D, V = [], []
                    if t == 0:
                        D += B(1, s, Bb)
                    if s < 5:
                        if t == 8:
                            D.append(Op(f"ds_read_b128 {vr(V_X,4)}, v{V_TAB} offset:{O_X+64*s}", "lds", rd=[V_TAB], wr=rng(V_X, 4)))
                        else:
                            D += [Op(f"ds_read_u16 v{Bd+t}, v{Bc+t} offset:{TBL}", "lds", rd=[Bc + t], wr=[Bd + t]),
                                  Op(f"ds_read_u16 v{Bc+t}, v{Bc+t}", "lds", rd=[Bc + t], wr=[Bc + t])]
                            if t < 7:
                                V.append(addr(s, t + 1, Bc + t + 1, S_BUF))
                    elif t in (2, 3):
                        D.append(B(1, s + 2, Bc if s == 5 else Bd)[t - 2])
                    gap(M(0, s, t, Ba), D, V)
                for t in range(9):
                    gap(M(1, s, t, Bb), B(0, s + 1, Ba)[t:t + 1] if t < 2 else [])
                if s < 5:
                    rs = [R(m, s, t) for m in (1, 0) for t in RT[s]]
                    for n, x in enumerate(rs):
                        gap(x, [], [addr(s + 1, 0, Bc, S_BUF)] if n == len(rs) - 1 and s < 4 else [])
        assert not loads
        if o["st2"]:
            ops.append(Op("s_memrealtime s[94:95]\ns_waitcnt lgkmcnt(0)\nv_writelane_b32 v255, s94, 2", "salu"))
        ops += B(0, 8, Bb)
        pk = lambda t, h: (AX + 32 + h) if t == 8 else AX + 2 * t + h
        cvt = lambda t: [Op(f"v_cvt_pk_bf16_f32 v{pk(t,h)}, v{acc(0,t)+2*h}, v{acc(0,t)+2*h+1}", "valu",
                            rd=[acc(0, t) + 2 * h, acc(0, t) + 2 * h + 1], wr=[pk(t, h)]) for h in range(2)]
        dpp = "quad_perm:[1,0,3,2] row_mask:0xf bank_mask:0xf"
        stp = o["st"] if o["stp"] is None else o["stp"]

        def exch(v):
            p0, p1, d0 = AX + 8 * v, AX + 8 * v + 4, (V_X, AX + 16)[v]
            x = []
            for half in range(2):
                for d in range(4):
                    if half == 0:
                        x.append(Op(f"v_cndmask_b32_dpp v{d0+d}, v{p1+d}, v{p0+d}, vcc {dpp}", "dpp", rd=[p0 + d, p1 + d], wr=[d0 + d]))
                    else:
                        x.append(Op(f"v_cndmask_b32_dpp v{p1+d}, v{p0+d}, v{p1+d}, vcc {dpp}", "dpp", rd=[p0 + d, p1 + d], wr=[p1 + d]))
                src = d0 if half == 0 else p1
                fl = stp[2 * v + half] if isinstance(stp, (tuple, list)) else stp
                x += [Op(f"buffer_store_dwordx4 {vr(src,4)}, v{V_ST}, {sr(S_OUT,4)}, s{S_OOFF} offen offset:{1152*half+128*v} {fl}", "st",
                         rd=list(rng(src, 4)) + [V_ST]), Op(f"s_mov_b64 vcc, {sr((S_ODD, S_EVEN)[half],2)}", "salu")]
            return x
        p8 = pk(8, 0)
        rdadv = [Op(f"v_add_u32 v{V_RD0+h}, {2*TBL}, v{V_RD0+h}", "valu", rd=[V_RD0 + h], wr=[V_RD0 + h]) for h in range(2)]
        after = {0: rdadv,
                 1: [Op(f"ds_bpermute_b32 v{p8+h}, v{V_BP}, v{p8+h}", "lds", rd=[V_BP, p8 + h], wr=[p8 + h]) for h in range(2)] if o["bperm"] else [],
                 3: [Op(f"buffer_store_dwordx2 {vr(p8,2)}, v{V_ST8}, {sr(S_OUT,4)}, s{S_OOFF} offen {o['st8']}", "st", rd=[p8, p8 + 1, V_ST8])],
                 5: exch(0)[:6], 6: exch(0)[6:], 7: [addr(0, b, V_BR + b, S_BUFN) for b in range(4)],
                 8: [addr(0, b, V_BR + b, S_BUFN) for b in range(4, 8)]}
        for n, t in enumerate(PEEL_T):
            ops += [M(0, 7, t, Ba), M(0, 8, t, Bb)]
            if n:
                ops += cvt(PEEL_T[n - 1])
            ops += after.get(n, [])
        ops += cvt(PEEL_T[-1]) + exch(1)
        n2 = {p[1] for p in self.pol} - {0}
        if not (o["n2in"] and len(n2) == 1):
            self.emit_line(ops, vm)
            if n2:
                self.prefetch(24, "L_pf2")
            return
        cut = max(i for i, x in enumerate(ops) if x.kind == "ld") + 1
        hist, lds = self.emit_line(ops[:cut], vm, hoist=o['psch'])
        pieces = []
        for k in range(n2.pop()):
            keepL, self.L = self.L, []
            self.dma_tile()
            x, self.L = self.L, keepL
            x += [f"s_add_u32 s{S_XOFF5}, s{S_XOFF5}, {256*TB}", f"s_add_u32 s{S_M0B}, s{S_M0B}, {TBL}", f"s_add_u32 s{S_XOFF}, s{S_XOFF}, {256*TB}"]
            pieces += [Op("\n".join(x[3*j:3*j+3] if j < 4 else x[12:]), "ld") for j in range(5)]
        nmx = sum(1 for x in ops[cut:] if x.kind == "mx") - o["n2in"]
        tail, seen, tot = [], 0, len(pieces)
        for x in ops[cut:]:
            tail.append(x)
            if x.kind == "mx":
                seen += 1
                while pieces and (tot - len(pieces)) * nmx < seen * tot:
                    tail.append(pieces.pop(0))
        assert not pieces
        if self.n2min == 0:
            self.a(f"s_bfe_u32 s{S_T0}, s{S_DMASK}, {hex(4 << 16 | 24)}")
            self.a("s_cbranch_scc0 L_ptail0")
        self.emit_line(tail, list(vm), hist, lds, 40)
        if self.n2min == 0:
            self.a("s_branch L_ptail1")
            self.a("L_ptail0:")
            self.emit_line(ops[cut:], list(vm), hist, lds)
            self.a("L_ptail1:")

    def slow_path(self, K):
        a = self.a
        o = self.o
        VA, VI8 = 104, 106
        a("L_slow:")
        a("s_waitcnt vmcnt(0) lgkmcnt(0)")
        a(f"s_mov_b32 s{S_MODE}, 0")
        a("L_sm:")
        a(f"s_lshl_b32 s{S_BASE}, s2, 1")
        a(f"s_add_u32 s{S_BASE}, s{S_BASE}, s{S_MODE}")
        a(f"s_add_u32 s{S_BASE}, s{S_BASE}, {PRIV0}")
        a(f"s_mul_i32 s{S_BASE}, s{S_BASE}, {COPY}")
        a(f"s_mov_b32 s{S_TASK}, 0")
        a("L_st:")
        self.producer("g", True)
        a(f"s_add_u32 s{S_TASK}, s{S_TASK}, 1")
        a(f"s_cmp_lt_u32 s{S_TASK}, {NTASK}")
        a("s_cbranch_scc1 L_st")
        a(f"s_add_u32 s{S_MODE}, s{S_MODE}, 1")
        a(f"s_cmp_lt_u32 s{S_MODE}, 2")
        a("s_cbranch_scc1 L_sm")
        self.lane_setup()
        self.dma_setup()
        a(f"s_mov_b32 s{S_OUT+2}, {XBYTES}")
        a(f"s_mov_b32 s{S_X+2}, {XBYTES}")
        a(f"s_mov_b32 s{S_IT}, 0")
        if self.dyn and o["othr"]:
            a("s_bitcmp1_b32 s2, 0")
            a(f"s_cselect_b32 s{S_NT}, 16, {32 - self.dyn[0]}")
        a("L_stile:")
        a("s_barrier")
        self.dma_tile()
        for t in range(9):
            a(f"ds_read_b128 {vr(V_ACC+4*t,4)}, v{V_TAB} offset:{O_BIAS+64*t}")
        a(f"s_mov_b32 s{S_MODE}, 0")
        a("L_spass:")
        a(f"s_lshl_b32 s{S_BASE}, s2, 1")
        a(f"s_add_u32 s{S_BASE}, s{S_BASE}, s{S_MODE}")
        a(f"s_add_u32 s{S_BASE}, s{S_BASE}, {PRIV0}")
        a(f"s_mul_i32 s{S_BASE}, s{S_BASE}, {COPY}")
        self.waddr(VA, VI8)
        for grp in self.wload_list(VA, VI8):
            for x in grp:
                a(x)
        a("s_waitcnt vmcnt(0)")
        a("s_barrier")
        for s in range(9):
            a(f"ds_read_b128 {vr(V_B,4)}, v{V_RD0} offset:{2048*s}")
            a(f"ds_read_b128 {vr(V_B+4,4)}, v{V_RD1} offset:{2048*s}")
            a("s_waitcnt lgkmcnt(0)")
            for t in range(9):
                ir, h = aidx(s, t)
                a(f"v_smfmac_f32_16x16x64_bf16 {vr(V_ACC+4*t,4)}, {afrag(s,t)}, {vr(V_B,8)}, v{ir}" + (" abid:1" if h else ""))
            a("s_nop 7")
        a(f"s_add_u32 s{S_MODE}, s{S_MODE}, 1")
        a(f"s_cmp_lt_u32 s{S_MODE}, 2")
        a("s_cbranch_scc1 L_spass")
        for t in range(7):
            for h in range(2):
                a(f"v_cvt_pk_bf16_f32 v{V_P+2*t+h}, v{V_ACC+4*t+2*h}, v{V_ACC+4*t+2*h+1}")
        a(f"s_mov_b64 vcc, {sr(S_EVEN,2)}")
        self.emit_epi(self.assemble_loop(False, "")[2])
        if self.dyn and o["othr"]:
            a(f"s_cmp_eq_u32 s{S_IT}, 15")
            a(f"s_cselect_b32 s{S_XINC}, {(1 - (15 - self.dyn[0]) * 256) * TB}, s{S_XINC}")
        for r in (S_XOFF, S_XOFF5, S_OOFF):
            a(f"s_add_u32 s{r}, s{r}, s{S_XINC}")
        a(f"s_mov_b32 s{S_XINC}, {256*TB}")
        a(f"s_add_u32 s{S_IT}, s{S_IT}, 1")
        a(f"s_cmp_lt_u32 s{S_IT}, s{S_NT}")
        a("s_cbranch_scc1 L_stile")
        a("s_branch L_fin")

    def loop_ops(self, links, dma, clm=False):
        o = self.o
        acc = lambda t: rng(V_ACC + 4 * t, 4)
        ch = o["chain"]
        bb = lambda s: V_P if (ch and s == 6) else V_B + 8 * BBUF[s]
        RBUF = [V_BR, V_BR + 8, V_BR, V_P + 8 if ch else V_P, V_BR + 8]
        rt = RT if links else [[0, 1], [2, 3], [4, 5], [6, 7], [8]]
        ng = [8, 8, 8, 8, 8 if links else o["ng4"]]

        def M(s, t):
            ir, h = aidx(s, t)
            return Op(f"v_smfmac_f32_16x16x64_bf16 {vr(V_ACC+4*t,4)}, {afrag(s,t)}, {vr(bb(s),8)}, v{ir}" + (" abid:1" if h else ""),
                      "mx", rd=list(acc(t)) + list(rng(bb(s), 8)), wr=acc(t), tag=("M", s, t))

        def R(j, t):
            c = j + t
            return Op(f"v_smfmac_f32_16x16x64_bf16 {vr(V_ACC+4*t,4)}, {vr(V_X,4)}, {vr(RBUF[j],8)}, v{V_IR+(c>>1)}" + (" abid:1" if c & 1 else ""),
                      "mx", rd=list(acc(t)) + list(rng(RBUF[j], 8)) + list(rng(V_X, 4)), wr=acc(t), tag=("R", j, t))
        seq = []
        for t in range(9):
            seq += [M(0, t), M(1, t)]
        if ch:
            for steps, order, rs in (((2, 3), o["ord1"], (0, 1)), ((4, 5, 6), o["ord2"], (2, 3, 4))):
                for n, t in enumerate(order):
                    seq += [M(s, t) for s in steps]
                    if t // 2 in rs and t % 2 == 0:
                        j = t // 2
                        assert t == 8 or order[n + 1] == t + 1
                        seq += [R(j, t)] + ([R(j, t - 1)] if links and j else []) + ([R(j, t + 1)] if t < 8 else [])
        else:
            for s in range(2, 7):
                seq += [M(s, t) for t in range(9)]
        for t in range(9):
            seq += [M(7, t), M(8, t)]
        if ch:
            rpos = [min(i for i, x in enumerate(seq) if x.tag[:2] == ("R", j)) for j in range(5)]
        else:
            rpos = list(o["rposl"] if links else o["rpos"])
            for j in range(5):
                for n, t in enumerate(rt[j]):
                    seq.insert(rpos[j] + n, R(j, t))
        N = len(seq)
        pos = {x.tag: i for i, x in enumerate(seq)}
        BAR = rpos[4] + len(rt[4]) - 1
        c0 = N - 15 - BAR
        assert c0 == (4 if ch else 0)
        self.drain = rpos[4] - 1
        T = lambda g: (g - BAR - 1) % N
        first = lambda s: T(min(pos[("M", s, t)] for t in range(9)))
        lastu = lambda s: max(pos[("M", s, t)] for t in range(9))
        LEAD = o["lead"]
        ST = [[] for _ in range(N)]
        S = [[] for _ in range(N)]
        D = [[] for _ in range(N)]
        V = [[] for _ in range(N)]
        keep = lambda op: (dma or op.tag != "dma") and (clm or op.tag != "clm")

        def pdst(t, h):
            return V_P8 + h if t == 8 else V_P + 2 * t + h
        dq, vq = [], []
        for t in range(9):
            for h in range(2):
                V[c0 + 2 * t + h].append(Op(f"v_cvt_pk_bf16_f32 v{pdst(t,h)}, v{V_ACC+4*t+2*h}, v{V_ACC+4*t+2*h+1}", "valu",
                                       rd=[V_ACC + 4 * t + 2 * h, V_ACC + 4 * t + 2 * h + 1], wr=[pdst(t, h)], tag="epi"))
            dq.append([Op(f"ds_read_b128 {vr(V_ACC+4*t,4)}, v{V_TAB} offset:{O_BIAS+64*t}", "lds", rd=[V_TAB], wr=acc(t), tag="pre"),
                       c0 + 2 * t + 2, c0 + 2 * t + 2, None])
        def stf(e):
            f = o["stc"] if clm else (o["st"] if dma else o["stn"])
            f = o["st"] if f is None else f
            return f[e] if isinstance(f, (tuple, list)) else f
        dpp = "quad_perm:[1,0,3,2] row_mask:0xf bank_mask:0xf"
        stg = [T(g) for g in o["stg"]]
        for v in range(2):
            p0, p1 = V_P + 8 * v, V_P + 8 * v + 4
            d0 = V_T if v == 0 else V_P
            for half in range(2):
                e = 2 * v + half
                for d in range(4):
                    if half == 0:
                        op = Op(f"v_cndmask_b32_dpp v{d0+d}, v{p1+d}, v{p0+d}, vcc {dpp}", "dpp", rd=[p0 + d, p1 + d], wr=[d0 + d], tag="epi")
                    else:
                        op = Op(f"v_cndmask_b32_dpp v{p1+d}, v{p0+d}, v{p1+d}, vcc {dpp}", "dpp", rd=[p0 + d, p1 + d], wr=[p1 + d], tag="epi")
                    vq.append([op, stg[e - 1] if e else c0 + 18, stg[e] - 4 + d, None])
                src = d0 if half == 0 else p1
                ST[stg[e]].append(Op(f"buffer_store_dwordx4 {vr(src,4)}, v{V_ST}, {sr(S_OUT,4)}, s{S_OOFF} offen offset:{1152*half+128*v} {stf(e)}",
                                     "st", rd=list(rng(src, 4)) + [V_ST], tag="epi"))
                ST[stg[e]].append(Op(f"s_mov_b64 vcc, {sr((S_ODD, S_EVEN)[half],2)}", "salu", tag="epi"))
        if o["bperm"]:
            for h in range(2):
                dq.append([Op(f"ds_bpermute_b32 v{V_P8+h}, v{V_BP}, v{V_P8+h}", "lds", rd=[V_BP, V_P8 + h], wr=[V_P8 + h], tag="epi"),
                           c0 + 18, stg[4] - LEAD - 2 + h, None])
        ST[stg[4]].append(Op(f"buffer_store_dwordx2 {vr(V_P8,2)}, v{V_ST8}, {sr(S_OUT,4)}, s{S_OOFF} offen {o['st8']}", "st",
                             rd=[V_P8, V_P8 + 1, V_ST8], tag="epi"))
        rl = lambda j: T(rpos[j] + len(rt[j]) - 1)
        free = [rl(2), 1, rl(0), stg[3 if ch else 2] + 1, rl(1)]
        for j in range(5):
            dl = T(rpos[j]) - LEAD - 1
            for b in range(ng[j]):
                r = RBUF[j] + b
                ad = V_AD + 4 * j + (b >> 1)
                av = Op(f"v_add_u32_sdwa v{r}, s{S_BUFN if j == 0 else S_BUF}, v{ad} dst_sel:DWORD dst_unused:UNUSED_PAD src0_sel:DWORD src1_sel:WORD_{b&1}",
                        "valu", rd=[ad], wr=[r], tag="pre" if j == 0 else "")
                gd = dl - o["gsp"] * (ng[j] - 1 - b)
                vq.append([av, free[j], (N - 2 - (7 - b)) if j == 0 else gd - 1, None])
                dq.append([Op(f"ds_read_u16 v{r}, v{r}", "lds", rd=[r], wr=[r], tag="pre"), 0, gd, None if j == 0 else av])
            dq.append([Op(f"ds_read_b128 {vr(V_X,4)}, v{V_TAB} offset:{O_X+64*j}", "lds", rd=[V_TAB], wr=rng(V_X, 4), tag="pre"),
                       0 if j == 0 else rl(j - 1), dl, None])
        prev = {0: None, 1: None, 2: 7, 3: 8, 4: 0, 5: 1, 6: 4, 7: 2, 8: 3}
        lastb = []
        for s in range(9):
            for h in range(2):
                op = Op(f"ds_read_b128 {vr(bb(s)+4*h,4)}, v{(V_RD0, V_RD1)[h]} offset:{2048*s}", "lds",
                        rd=[(V_RD0, V_RD1)[h]], wr=rng(bb(s) + 4 * h, 4), tag="pre")
                fs = first(s) if s < 7 else (T(rpos[4]) - 2 * (9 - s) if ch else T(pos[("M", s, 0)]))
                rel = 0 if prev[s] is None else T(lastu(prev[s]))
                if ch and s == 6:
                    rel = stg[2] + 1
                dq.append([op, rel, fs - LEAD - 2 + h, None])
                lastb.append(op)
        for h in range(2):
            vq.append([Op(f"v_add_u32 v{V_RD0+h}, s{S_DELTA}, v{V_RD0+h}", "valu", rd=[V_RD0 + h], wr=[V_RD0 + h]), 0, N - 2, lastb])
        sq = []
        dmag = [g + (self.drain - 70) * (g > 50) for g in o["dmag"]]
        assert all(b - a_ >= 2 for a_, b in zip(dmag, dmag[1:]))
        if not o["nodma"]:
            for j, g in enumerate(dmag):
                g = T(g)
                ld = f"buffer_load_dwordx4 v{V_DMA}, {sr(S_X,4)}, s{S_XOFF if j < 4 else S_XOFF5} offen offset:{256*j if j < 4 else 896} {o['ld']} lds"
                if j < 4:
                    D[g].append(Op(ld, "dma", rd=[V_DMA], tag="dma"))
                    S[g - 1].append(Op(f"s_add_u32 m0, s{S_M0B}, {3840*j}", "salu", tag="dma"))
                else:
                    D[g] += [Op(f"s_mov_b64 exec, {sr(S_HALF,2)}", "salu", tag="dma"), Op(ld, "dma", rd=[V_DMA], tag="dma"),
                             Op("s_mov_b64 exec, -1", "salu", tag="dma")]
                    S[g - 1].append(Op(f"s_add_u32 m0, s{S_M0B}, s{S_M05}", "salu", tag="dma"))
                    V[g] = None
        XV = [[] for _ in range(N)]
        if self.dyn:
            gl = T(o["mbg"] + self.drain - 70) - 1
            XV[T(0)].append(Op(f"v_mov_b32 v{V_C}, 1", "valu", wr=[V_C], tag="clm"))
            D[T(1)].append(Op(f"buffer_atomic_add v{V_C}, v{V_BP}, {sr(S_B,4)}, 0 offen sc0 sc1", "dma", rd=[V_BP], tag="clm"))
            assert not D[gl + 1] and not S[gl + 1] and max(stg) <= gl
            gw = gl + 1 if o["cwg"] is None else T(o["cwg"])
            assert gw not in stg and T(1) < gw <= gl + 1
            S[gw].append(Op(f"s_waitcnt vmcnt({sum(1 for g in stg if g < gw) + sum(1 for g in dmag if T(g) < gw)})", "salu", tag="clm"))
            if o["dwg"] is not None and dma and not clm:
                gw = T(o["dwg"])
                assert gw not in stg
                S[gw].append(Op(f"s_waitcnt vmcnt({sum(1 for g in stg if g < gw) + sum(1 for g in dmag if T(g) < gw)})", "salu"))
            D[gl + 1] += [Op(f"s_mov_b64 exec, {sr(S_W0,2)}", "salu", tag="clm"),
                          Op(f"ds_write_b32 v{V_RD0}, v{V_C} offset:{TB}", "lds", rd=[V_RD0], tag="clm"), Op("s_mov_b64 exec, -1", "salu", tag="clm")]
            V[gl + 1] = None
            D[0].append(Op(f"ds_read_b32 v{V_C}, v{V_RD0} offset:{TB}", "lds", rd=[V_RD0], wr=[V_C], tag="clm"))
            XV[LEAD + 1].append(Op(f"v_readfirstlane_b32 s{S_CL}, v{V_C}", "valu", rd=[V_C], tag="clm"))
        placed = {}
        for g in range(N - 1):
            if not D[g] and g != T(N - 1):
                c = [x for x in dq if x[1] <= g and (x[3] is None or placed.get(id(x[3]), N) < g) and x[2] - g <= o["eager"]]
                if c:
                    x = min(c, key=lambda x: x[2])
                    dq.remove(x)
                    D[g].append(x[0])
                    placed[id(x[0])] = g
                    if g > x[2] and o["verbose"]:
                        print("; late D", g - x[2], x[0].text, file=sys.stderr)
            if V[g] is None:
                V[g] = []
                continue
            cap = 2 if (ST[g] and "x4" in ST[g][0].text) else 1
            while len(V[g]) < cap:
                c = [x for x in vq if x[1] <= g and (x[3] is None or all(placed.get(id(y), N) <= g for y in x[3]))]
                if not c:
                    break
                x = min(c, key=lambda x: x[2])
                vq.remove(x)
                V[g].append(x[0])
                placed[id(x[0])] = g
                assert g <= x[2] or x[0].kind != "dpp", ("late", x[0].text)
        assert not dq and not vq, ([x[0].text for x in dq], [x[0].text for x in vq])
        for g in range(N):
            V[g] += XV[g]
        if self.dyn:
            rdup = max(placed[id(x)] for gl_ in V for x in gl_ if id(x) in placed and f"s{S_DELTA}," in x.text)
            assert rdup <= gl and gl + 1 < T(self.drain) and T(min(o["stg"])) > T(1)
        if o["nbar"] and not dma:
            S[N - 1].append(Op("; no barrier here", "label", tag="bar"))
        else:
            S[N - 1] += ([] if clm else [Op(f"s_waitcnt vmcnt({o['vmw']})", "salu")]) + [Op("s_barrier", "bar")]
        lastdma = T(dmag[4])
        la = max(placed[id(x)] for gl in V for x in gl if id(x) in placed and f"s{S_BUF}," in x.text)
        fn = min(placed[id(x)] for gl in V for x in gl if id(x) in placed and (f"s{S_BUFN}," in x.text or f"s{S_DELTA}," in x.text))
        sq = [([f"s_mov_b32 s{S_BUF}, s{S_BUFN}"], 0, 0),
              ([f"s_cmp_eq_u32 s{S_BUFN}, {(NB-1)*TBL}", f"s_cselect_b32 s{S_DELTA}, {-(NB-1)*TBL}, s{S_CTB}", f"s_add_u32 s{S_BUFN}, s{S_BUFN}, s{S_DELTA}"], c0 + 18, fn),
              ]
        if self.dyn:
            LK = self.dyn[1]
            sq.append((([] if clm else [f"s_mov_b32 s{S_OUT+2}, {XBYTES}"]) + [f"s_mov_b32 s{S_OOFF}, s{S_Q}"]
                       + [f"s_mov_b32 s{S_Q+k}, s{S_Q+k+1}" for k in range(LK - 1)]
                       + [f"s_mov_b32 s{S_Q+LK-1}, s{S_XOFF}" if clm else f"s_add_u32 s{S_Q+LK-1}, s{S_Q+LK-1}, {256*TB}"], stg[4] + 1, N - 2))
        else:
            sq.append(([f"s_mov_b32 s{S_OUT+2}, {XBYTES}", f"s_add_u32 s{S_OOFF}, s{S_OOFF}, s{S_OINC}", f"s_mov_b32 s{S_OINC}, s{S_OINC2}",
                        f"s_mov_b32 s{S_OINC2}, {256*TB}"], stg[4] + 1, N - 2))
        if not clm or o["trace"]:
            sq.append(([f"s_add_u32 s{S_IT}, s{S_IT}, 1"], c0 + 18, N - 2))
        if clm:
            ps = o["psh"]
            sq += [([f"s_add_u32 s{S_XOFF5}, s{S_XOFF}, s{S_K5}"], c0 + 18, lastdma - 2),
                   (self.dma_advance()[2:], lastdma + 1, N + 8),
                   ([f"s_lshr_b32 s{S_CT}, s{S_CL}, {4 if o['pil'] else ps}", f"s_mul_i32 s{S_CT}, s{S_CT}, {(48 if o['pil'] else 256 - (1 << ps))*TB}", f"s_mul_i32 s{S_CT+1}, s{S_CL}, {TB}",
                     f"s_add_u32 s{S_CT}, s{S_CT}, s{S_CB}", f"s_add_u32 s{S_XOFF}, s{S_CT}, s{S_CT+1}"], LEAD + 2, T(N - 1) - 2),
                   ([f"s_cmp_lt_u32 s{S_CL}, {'s%d' % S_LIM if o['othr'] else (16 - self.dyn[0]) << ps}"], T(N - 1) - 1, T(N - 1) - 1)]
            if o["othr"]:
                S[T(0)] += [Op(x, "salu") for x in (f"s_cmp_lt_u32 s{S_CL}, s{S_THR}", f"s_cselect_b32 s{S_B+2}, s{S_B+2}, 0",
                                                    f"s_cselect_b32 s{S_LIM}, s{S_LIM}, 0")]
        else:
            if dma:
                sq += [(self.dma_advance(), lastdma + 1, N + 12)]
            sq.append(([f"s_bitcmp1_b32 s{S_DMASK if dma else S_NMASK}, s{S_IT}"], T(N - 1) - 1, T(N - 1) - 1))
        G = lambda A: [[x for x in A[T(g)] if keep(x)] for g in range(N)]
        return seq, G(ST), G(S), G(D), G(V), [(x, (lo + BAR + 1), (hi + BAR + 1)) for x, lo, hi in sq], BAR

    def assemble_loop(self, links, label, dma=True, clm=False):
        seq, ST, S, D, V, sq, BAR = self.loop_ops(links, dma, clm)
        N = len(seq)
        flat = []
        for rep in range(2):
            for g in range(N):
                a0 = rep * N + g
                flat.append((seq[g], a0 - 1))
                for x in ST[g]:
                    flat.append((x, a0 - 1))
                for x in D[g] + V[g]:
                    flat.append((x, a0))
        gap_of = {}
        k = 0
        lds = []
        for rep in range(2):
            for g in range(N):
                k += 1 + len(ST[g])
                for x in D[g] + V[g]:
                    if x.kind == "lds":
                        lds.append((k, rep * N + g))
                    k += 1
        done = -1
        W = {}
        minlead = 99
        for i, (op, wg) in enumerate(flat):
            touched = op.rd | op.wr
            need = -1
            for n, (k, g) in enumerate(lds):
                if k < i and n > done and (flat[k][0].wr & touched):
                    need = n
            if need >= 0:
                assert lds[need][1] < wg
                issued = [n for n, (k, g) in enumerate(lds) if g < wg]
                cnt = min(issued[-1] - need, 15)
                done = issued[-1] - cnt
                if wg >= N - 1 and wg < 2 * N - 1:
                    W[wg % N] = min(cnt, W.get(wg % N, 99))
                    if self.o["verbose"]:
                        print(f"; wait gap {wg % N} cnt {cnt} lead {wg - lds[need][1]} for {flat[lds[need][0]][0].text}", file=sys.stderr)
        W[self.drain] = 0
        if clm:
            mb = [g for g in range(N) if any("ds_write" in x.text for x in D[g])][0]
            assert not [g for g in W if mb < g < self.drain]
        for g, c in W.items():
            S[g].insert(0, Op(f"s_waitcnt lgkmcnt({c})", "salu"))
        if not self.o["drop"]:
            last = max(g for g in range(BAR + 1) if any(x.kind == "lds" for x in D[g]))
            assert any(W.get(g) == 0 for g in range(last + 1, BAR + 1)), "tile reads not drained at the barrier"

        def room(g, extra=0, resv=True):
            g %= N
            if g == BAR or g == N - 1 or any(x.kind == "dma" for x in D[g]):
                return False
            cap = 1 if D[g] else (2 if V[g] else 3)
            if label and not clm and resv:
                if g == self.drain - 1:
                    return False
                cap -= g == self.drain - 2
            return len(S[g]) + extra < cap and not ST[g]
        sccfree = lambda x: x.text.startswith(("s_waitcnt", "s_mov", "s_barrier", ";"))
        locked = set()
        for texts, lo, hi in sq:
            g = lo
            n = 0
            while n < len(texts):
                chain = [texts[n]]
                if texts[n].startswith(("s_cmp", "s_bitcmp")):
                    while n + len(chain) < len(texts) and texts[n + len(chain)].startswith("s_cselect"):
                        chain.append(texts[n + len(chain)])
                while True:
                    assert g <= hi, ("no room", chain)
                    where, z = [], g
                    ok = room(g) and ((g % N) not in locked or chain[0].startswith("s_mov"))
                    cnt = {}
                    for k, tx in enumerate(chain):
                        while ok and not room(z, cnt.get(z, 0)):
                            z += 1
                            ok = z <= hi and all(sccfree(x) for x in S[z % N]) and (clm or z % N != self.drain - 1)
                        where.append(z)
                        cnt[z] = cnt.get(z, 0) + 1
                    if ok:
                        break
                    g += 1
                for z, tx in zip(where, chain):
                    S[z % N].append(Op(tx, "salu"))
                if len(chain) > 1:
                    locked.update(z % N for z in range(where[0], where[-1]))
                g = where[-1]
                n += len(chain)
        assert all(sccfree(x) for x in S[N - 1])
        if label and not clm:
            gz = self.drain - (2 if self.o["trace"] else 1)
            assert self.o["chain"] and (self.o["trace"] or (not (S[gz] or D[gz] or V[gz] or ST[gz]) and room(gz - 1, 0, False) and (gz - 1) not in locked))
            assert all(x.kind not in ("dma", "st") for g in range(gz, N) for x in D[g] + ST[g]) and max(self.o["stg"]) < min(self.o["dmag"])
            S[gz - (0 if self.o["trace"] else 1)].append(Op(f"s_bitcmp1_b32 s{S_WMASK}, s{S_IT}", "salu"))
            S[gz] += [Op(f"s_cbranch_scc1 {label}_w", "salu"), Op(f"{label}_wb:", "label")]
            if self.o["nbar"] and not dma:
                self.tailblocks.append(f"{label}_w:\ns_bitcmp1_b32 s{S_WMASK2}, s{S_IT}\ns_waitcnt vmcnt({self.whi}) lgkmcnt(0)\n"
                                       f"s_cbranch_scc0 {label}_w1\ns_waitcnt vmcnt({self.wlo})\n{label}_w1:\ns_barrier\ns_branch {label}_wb")
                assert not any(x.kind == "lds" for g in range(gz, BAR + 1) for x in D[g])
            else:
                self.tailblocks.append(f"{label}_w:\ns_bitcmp1_b32 s{S_WMASK2}, s{S_IT}\ns_waitcnt vmcnt({self.whi})\n"
                                       f"s_cbranch_scc0 {label}_wb\ns_waitcnt vmcnt({self.wlo})\ns_branch {label}_wb")
        if self.o["trace"]:
            g0 = max(g for g, c in W.items() if c == 0 and g <= BAR)
            S[g0 - 1] += [Op("s_memrealtime s[98:99]", "salu"), Op("s_memtime s[96:97]", "salu"), Op(f"s_add_u32 s95, s{S_IT}, 32", "salu")]
            V[g0] += [Op(f"s_mov_b32 m0, s{S_IT}", "salu"), Op("v_writelane_b32 v254, s98, m0", "salu"), Op("s_mov_b32 m0, s95", "salu"), Op("v_writelane_b32 v254, s96, m0", "salu")]
        body = []
        pro = [x for g in range(N) for x in V[g] if x.tag == "pre" or (g > BAR and "sdwa" in x.text)] \
            + [x for g in range(BAR + 1, N) for x in D[g] if x.tag == "pre"]
        epi = [x for g in range(BAR) for x in ST[g] + D[g] + V[g] if x.tag == "epi"]
        nsw = 0
        for g in range(N):
            sw_ = self.o["swp"][2 if clm else (0 if dma else 1)]
            if sw_ and len(D[g]) == 1 and len(V[g]) == 1 and D[g][0].kind == "lds" and not ST[g] and "sdwa" in V[g][0].text \
                    and not (V[g][0].wr & (D[g][0].rd | D[g][0].wr)) and nsw < sw_:
                D[g], V[g] = V[g], D[g]
                nsw += 1
            body += [x for x in [seq[g]] if not any(d in x.text for d in self.o["dropm"])] + ST[g] + S[g] + D[g] + V[g]
            if self.o["pad"] and g % self.o["pad"] == 0 and g < N - 2:
                body.append(Op("s_nop 3", "salu"))
        body = [x for x in body if x.kind == "mx" or not any(d in x.text for d in self.o["drop"])]
        body.append(Op(f"s_cbranch_scc1 {label}", "salu"))
        if not self.o["drop"]:
            real = [x for x in body if x.kind != "label"]
            m = len(real)
            for i, op in enumerate(real):
                for d in range(1, 10):
                    p = real[(i - d) % m]
                    ws = d - 1
                    if p.kind == "mx" and op.kind != "mx" and (p.wr & (op.rd | op.wr)):
                        assert ws >= 8, ("mx->x", p.text, op.text, ws)
                    if p.kind in ("valu", "dpp") and op.kind == "mx" and (p.wr & op.rd):
                        assert ws >= 2, ("valu->mx", p.text, op.text, ws)
                    if p.kind in ("valu", "dpp") and op.kind == "dpp" and (p.wr & op.rd):
                        assert ws >= 2, ("valu->dpp", p.text, op.text, ws)
                    if p.kind == "st" and (p.rd & op.wr):
                        assert ws >= 2, ("st war", p.text, op.text, ws)
        return pro, body, epi

    def emit_epi(self, epi):
        cv = [x for x in epi if "v_cvt" in x.text]
        bp = [x for x in epi if x.kind == "lds"]
        rest = [x for x in epi if x not in cv and x not in bp]
        ops = rest[:6] + cv[2:] + bp + rest[6:12] + cv[:2] + rest[12:]
        if self.o["ste"] is not None:
            ops = [Op(x.text.replace(" sc1", " " + self.o["ste"]), x.kind, x.rd, x.wr) if x.kind == "st" else x for x in ops]
        hist = [Op("", "mx", wr=rng(V_ACC + 28, 8)), Op("", "valu", wr=rng(V_P, 14)), Op("", "salu")]
        self.emit_line(ops, [], hist)

    def main_loop(self, links, sfx):
        a = self.a
        pro, body, epi = self.assemble_loop(links, "L_loop" + sfx)
        if not self.o["peel"]:
            late = list(self.late_loads)
            for n, op in enumerate(pro):
                a(op.text)
                if n % 6 == 5:
                    while late and not late[0].startswith("buffer"):
                        a(late.pop(0))
                    if late:
                        a(late.pop(0))
            for x in late[:8]:
                a(x)
            a("s_waitcnt lgkmcnt(0)")
            a(f"v_readfirstlane_b32 s{S_T0}, v{V_T}")
            a("s_nop 3")
            a(f"s_cmp_lg_u32 s{S_T0}, 0")
            a("s_cbranch_scc1 L_slow")
            for x in late[8:]:
                a(x)
            if max(p[1] for p in self.pol):
                self.prefetch(24, "L_pf2" + sfx)
            for x in self.dma_advance(first=True):
                a(x)
            a(f"s_waitcnt vmcnt({(20 if self.o['early'] else 0) + 5 * self.n2min})")
            self.stamp(5)
            a(f"s_bitcmp1_b32 s{S_DMASK}, 0")
            a(f"s_cbranch_scc0 L_loopn{sfx}")
        a(".p2align 6")
        a(f"L_loop{sfx}:")
        for op in body:
            a(op.text)
        if self.o["wbl2"] is not None:
            a(f"s_lshr_b32 s{S_T0}, s2, 3")
            a(f"s_and_b32 s{S_T0}, s{S_T0}, {self.o['wbl2']}")
            a(f"s_or_b32 s{S_T0}, s{S_T0}, s{S_WAVE}")
            a(f"s_cbranch_scc1 L_loopn{sfx}")
            a("buffer_wbl2 sc1")
        if self.dyn:
            LK = self.dyn[1]
            a(f"s_cmp_lg_u32 s{S_IT}, {self.cl0}")
            a(f"s_cbranch_scc1 L_loopn{sfx}")
            a(".p2align 3")
            a(f"L_loopc{sfx}:")
            for op in self.assemble_loop(links, "L_loopc" + sfx, True, True)[1]:
                a(op.text)
            if self.o["trace"]:
                a(f"s_add_u32 s{S_NT}, s{S_IT}, {LK}")
                a(f"s_bfm_b32 s{S_NMASK}, s{S_NT}, 0")
                a(f"s_lshl_b32 s{S_WMASK}, {1 << (LK-1)}, s{S_IT}")
                a(f"s_lshl_b32 s{S_WMASK2}, {(1 << (LK-1)) if 5*(LK-1) < self.whi else 0}, s{S_IT}")
            else:
                a(f"s_mov_b32 s{S_IT}, 0")
                a(f"s_mov_b32 s{S_NT}, {LK}")
                a(f"s_mov_b32 s{S_NMASK}, {(1 << LK) - 1}")
                a(f"s_mov_b32 s{S_WMASK}, {(1 << (LK-1)) if 5*(LK-1) < self.o['vmw'] or self.o['nbar'] else 0}")
                a(f"s_mov_b32 s{S_WMASK2}, {(1 << (LK-1)) if 5*(LK-1) < self.whi else 0}")
            a(f"s_mov_b32 s{S_CL0}, -1")
            if self.o["stt"] is not None:
                keep, self.o["stn"] = self.o["stn"], self.o["stt"]
                for op in self.assemble_loop(links, "L_loopt" + sfx, False)[1][:-1]:
                    a(op.text)
                self.o["stn"] = keep
        if self.o["align2"]:
            a(".p2align 3")
        a(f"L_loopn{sfx}:")
        _, body, epi = self.assemble_loop(links, "L_loopn" + sfx, False)
        for op in body:
            a(op.text)
            if op.kind == "bar" or op.tag == "bar":
                a(f"L_loopn{sfx}_p3:")
        if self.dyn:
            a(f"s_cmp_eq_u32 s{S_IT}, s{S_CL0}")
            a(f"s_cbranch_scc1 L_loopc{sfx}")
        a(f"s_cmp_lt_u32 s{S_IT}, s{S_NT}")
        a(f"s_cbranch_scc1 L_loop{sfx}")
        self.emit_epi(epi)

    def loop_state(self):
        a = self.a
        pl = 2 if self.o["peel"] else 0
        a(f"s_mov_b32 s{S_IT}, {pl}")
        a(f"s_mov_b32 s{S_BUF}, 0")
        a(f"s_mov_b32 s{S_BUFN}, {pl*TBL}")
        if pl:
            a(f"s_mov_b32 s{S_OUT+2}, {XBYTES}")
        a(f"s_mov_b32 s{S_CTB}, {TBL}")
        a(f"s_mov_b32 s{S_OINC}, {256*TB if pl else 0}")
        a(f"s_mov_b64 vcc, {sr(S_EVEN,2)}")
        if self.dyn:
            NS, LK = self.dyn
            ps = self.o["psh"]
            a(f"s_andn2_b32 s{S_NMASK}, {(1 << self.cl0) - 1}, s{S_DMASK}")
            a(f"s_mov_b32 s{S_CL0}, {self.cl0}")
            if self.o["othr"]:
                a(f"s_mov_b32 s{S_CL}, 0")
                a(f"s_mov_b32 s{S_LIM}, {(16 - NS) << ps}")
                a("s_bitcmp1_b32 s2, 0")
                a(f"s_cselect_b32 s{S_THR}, {((16 - NS) << ps) - self.o['othr']}, -1")
            a(f"s_add_u32 s{S_Q}, s{S_OOFF}, {pl*256*TB}")
            for k in range(1, LK):
                a(f"s_add_u32 s{S_Q+k}, s{S_Q+k-1}, {256*TB}")
            a(f"s_sub_u32 s{S_K5}, s{S_XOFF5}, s{S_XOFF}")
            if self.o["pil"]:
                assert ps == 6
                a(f"s_bfe_u32 s{S_T0}, s2, {hex(2 << 16 | 4)}")
                a(f"s_mul_i32 s{S_CB}, s{S_T0}, {TB * 16}")
            else:
                a(f"s_lshr_b32 s{S_T0}, s2, {ps}")
                a(f"s_mul_i32 s{S_CB}, s{S_T0}, {TB << ps}")
            a(f"s_add_u32 s{S_CB}, s{S_CB}, {NS*256*TB}")
            a(f"s_lshl_b32 s{S_T0}, s{S_T0}, 7")
            a(f"s_add_u32 s{S_T0}, s{S_T0}, {CNT_OFF}")
            a(f"s_add_u32 s{S_B}, s{S_WS}, s{S_T0}")
            a(f"s_addc_u32 s{S_B+1}, s{S_WS+1}, 0")
            a(f"s_cmp_eq_u32 s{S_WAVE}, 0")
            a(f"s_cselect_b32 s{S_B+2}, 4, 0")
            a(f"s_cselect_b64 {sr(S_W0,2)}, 1, 0")
        else:
            a(f"s_bfm_b32 s{S_NMASK}, s{S_NT}, 0")
            a(f"s_andn2_b32 s{S_NMASK}, s{S_NMASK}, s{S_DMASK}")

    def stamp(self, n, r="s[98:99]"):
        if self.o["stamp"] and (self.o["stamp"] is True or n in self.o["stamp"]):
            a = self.a
            a(f"s_memtime {r}" if self.o["cyc"] and n in (5, 6) else f"s_memrealtime {r}")
            a("s_waitcnt lgkmcnt(0)")
            a(f"v_writelane_b32 v255, s{r[2:4]}, {n}")

    def descriptor(self, label, vg, ag):
        self.a(f""".amdhsa_kernel {label}
  .amdhsa_next_free_vgpr {vg}
  .amdhsa_next_free_sgpr 102
  .amdhsa_accum_offset {ag}
  .amdhsa_group_segment_fixed_size 0
  .amdhsa_float_denorm_mode_32 3
  .amdhsa_kernarg_size 48
  .amdhsa_user_sgpr_count 2
  .amdhsa_user_sgpr_kernarg_segment_ptr 1
  .amdhsa_system_sgpr_workgroup_id_x 1
.end_amdhsa_kernel""")

    def flush_tail(self):
        for b in self.tailblocks:
            self.a(b)
        self.tailblocks = []

    def gen(self):
        a = self.a
        o = self.o
        K = NAME + "_kernel"
        a(open("cdna_kernels/" + NAME + ".s.ref").read().split("; Override")[0].rstrip())
        if o["fused"]:
            a(f"; @launch grid=(256,1,1) block=(256,1,1) lds={LDS_BYTES}")
        else:
            a(f"; @launch kernel=prep_kernel grid=({NTASK},1,1) block=(256,1,1) lds={LDS_BYTES}")
            a(f"; @launch kernel={K} grid=(256,1,1) block=(256,1,1) lds={LDS_BYTES}")
        a('.amdgcn_target "amdgcn-amd-amdhsa--gfx950"\n.text')
        if not o["fused"]:
            self.entry("prep_kernel", NTASK)
            a(f"s_mov_b32 s{S_TASK}, s2\ns_mov_b32 s{S_BASE}, 0")
            self.producer("", False)
            a("L_end_prep_kernel:\ns_endpgm")
            self.flush_tail()
        self.entry(K, 256)
        if not (o["fused"] and o["pil"]):
            a(f"s_mov_b32 s{S_BASE}, 0")
        mid = {id(p): m for p, m in zip(self.pol, self.mid)}
        msk = lambda p: hex(sum(1 << i for i in p[2] if not self.dyn or i < self.cl0) | (p[0] - mid[id(p)]) << 20 | p[1] << 24 | mid[id(p)] << 28)
        def pick(reg, vals):
            if len(set(vals)) == 1:
                a(f"s_mov_b32 s{reg}, {vals[0]}")
                return
            a(f"s_mov_b32 s{reg}, {vals[1]}")
            a(f"s_mov_b32 s{S_T0}, {vals[3]}")
            a(f"s_bitcmp1_b32 s2, {o['gsh']}")
            a(f"s_cselect_b32 s{reg}, s{reg}, {vals[0]}")
            a(f"s_cselect_b32 s{S_T0}, s{S_T0}, {vals[2]}")
            a(f"s_bitcmp1_b32 s2, {o['gsh2']}")
            a(f"s_cselect_b32 s{reg}, s{S_T0}, s{reg}")
        if o["fused"]:
            px = o["px"]
            if o["pil"]:
                a(f"s_lshr_b32 s{S_MASK+1}, s2, 6")
                a(f"s_and_b32 s{S_T0}, s2, 9")
                a(f"s_lshl1_add_u32 s{S_MASK+1}, s{S_MASK+1}, s{S_T0}")
                a(f"s_bfe_u32 s{S_MASK}, s2, {hex(2 << 16 | 4)}")
                a(f"s_lshl2_add_u32 s{S_TASK}, s{S_MASK+1}, s{S_MASK}")
                a(f"s_and_b32 s{S_T0}, s2, 6")
                a(f"s_cselect_b32 s{S_TASK}, 63, s{S_TASK}")
                assert px == 2
            elif o["pspread"]:
                a(f"s_bfe_u32 s{S_TASK}, s2, {hex(2 << 16 | 3)}")
                a(f"s_mul_i32 s{S_TASK}, s{S_TASK}, {px}")
                a(f"s_and_b32 s{S_T0}, s2, 7")
                a(f"s_add_u32 s{S_TASK}, s{S_TASK}, s{S_T0}")
                a(f"s_lshr_b32 s{S_T1}, s2, 5")
                a(f"s_lshl3_add_u32 s{S_TASK}, s{S_TASK}, s{S_T1}")
            else:
                a(f"s_lshr_b32 s{S_TASK}, s2, 3")
                a(f"s_mul_i32 s{S_TASK}, s{S_TASK}, {px}")
                a(f"s_and_b32 s{S_T0}, s2, 7")
                a(f"s_add_u32 s{S_TASK}, s{S_TASK}, s{S_T0}")
            if not o["pil"]:
                a(f"s_cmp_lt_u32 s{S_T0}, {px}")
                a(f"s_cselect_b32 s{S_TASK}, s{S_TASK}, 63")
            a(f"s_cmp_lt_u32 s{S_TASK}, {NTASK}")
            a("s_cbranch_scc1 L_prod")
        mark0 = len(self.L)
        if o["fused"] and o["pil"]:
            a(f"v_readfirstlane_b32 s{S_WAVE}, v1")
            a(f"s_mov_b32 s{S_BASE}, 0")
        pick(S_DMASK, [msk(p) for p in self.pol[:4]])
        self.lane_setup()
        if o["fused"] and o["sig"] == 3:
            self.mb_addr(S_T0, S_T1)
            a(f"s_cmp_eq_u32 s{S_WAVE}, 0")
            a(f"s_cselect_b32 s{S_T0}, s{S_T0}, 0x40000000")
            a(f"v_mov_b32 v8, s{S_T0}")
            a("v_mov_b32 v9, 0")
        self.entry_wait()
        if o["fused"] and o["sig"] == 4:
            assert o["pspread"]
            a(f"s_cmp_lg_u32 s2, {200 if o['pil'] else CLEARER}")
            a("s_cbranch_scc1 L_cons3")
            a("v_lshlrev_b32 v8, 4, v0")
            a("v_mov_b64 v[12:13], 0")
            a("v_mov_b64 v[14:15], 0")
            a(f"buffer_store_dwordx4 v[12:15], v8, {sr(S_DBG,4)}, 0 offen sc1")
            a(f"v_add_u32 v8, {FL_OFF}, v8")
            a("v_add_u32 v9, 4096, v8")
            a(f"buffer_store_dwordx4 v[12:15], v8, {sr(S_WS,4)}, 0 offen sc1")
            a(f"buffer_store_dwordx4 v[12:15], v9, {sr(S_WS,4)}, 0 offen sc1")
            a("v_mov_b32 v10, 1")
            a("v_lshlrev_b32 v11, 2, v0")
            a("s_waitcnt vmcnt(0)")
            a("s_barrier")
            a("s_mov_b32 exec_hi, 0")
            a(f"buffer_store_dword v10, v11, {sr(S_DBG,4)}, 0 offen sc1")
            a("s_mov_b64 exec, -1")
        self.ptouch()
        if o["fused"] and o["sig"] == 3:
            a("s_mov_b64 exec, 1")
            a(f"buffer_store_dword v9, v8, {sr(S_WS,4)}, 0 offen sc1")
            a("s_mov_b64 exec, -1")
        a("L_cons3:")
        self.stamp(1)
        self.dma_setup()
        if o["bias0"]:
            self.bias_load()
        if o["pfd"]:
            a(f"s_cmp_lt_u32 s{S_TASK}, {NTASK}")
            a("s_cbranch_scc1 L_pfd")
            a(f"s_waitcnt vmcnt({2 - o['pfd']})")
            a("L_pfd:")
        def late():
            a(f"s_bfe_u32 s{S_T0}, s{S_DMASK}, {hex(4 << 16 | 20)}")
            a(f"s_cmp_ge_u32 s{S_TASK}, {NTASK}")
            a(f"s_cselect_b32 s{S_T0}, s{S_T0}, 15")
            a(f"s_cmp_lt_u32 s{S_T0}, {6 if o['pfl'] == 2 else 15}")
        if o["pfl"]:
            late()
            a("s_cbranch_scc1 L_rest")
        self.prefetch(20)
        self.stamp(2)
        if o["fused"]:
            mark1 = len(self.L)
            a("s_branch L_rest")
            a("L_prod:")
            self.producer("", False)
            pick(S_DMASK, [msk(p) for p in self.pol[4:]] * 2)
            a("s_barrier")
            a(f"s_cmp_lg_u32 s{S_WAVE}, 0")
            a("s_cbranch_scc1 L_cons2")
            if o["sig"] != 4:
                a("v_mov_b32 v8, 1")
                a("s_mov_b64 exec, 1")
            if o["sig"] == 4:
                a(f"v_readfirstlane_b32 s{S_T0}, v8")
                a("s_mov_b64 exec, 0xffff")
                a(f"s_cmp_lg_u32 s{S_T0}, 1")
                a("s_cbranch_scc1 L_pwait")
                a("L_pset:")
                a(f"buffer_store_dword v10, v9, {sr(S_WS,4)}, 0 offen sc1")
                self.tailblocks.append("\n".join([
                    "L_pwait:", f"s_mov_b32 s{S_T1}, {o['maxpoll']}", "L_pwait1:", f"buffer_load_dword v8, off, {sr(S_DBG,4)}, 0 sc1",
                    "s_waitcnt vmcnt(0)", f"v_readfirstlane_b32 s{S_T0}, v8", "s_nop 3", f"s_cmp_eq_u32 s{S_T0}, 1", "s_cbranch_scc1 L_pset",
                    f"s_sub_u32 s{S_T1}, s{S_T1}, 1", "s_cbranch_scc0 L_pwait1", "s_branch L_notlast"]))
            elif o["sig"] == 2:
                a(f"s_lshr_b32 s{S_T0}, s{S_TASK}, 1")
                a(f"s_lshl_b32 s{S_T0}, s{S_T0}, 2")
                a(f"s_bitcmp1_b32 s{S_TASK}, 0")
                a(f"s_cselect_b32 s{S_T1}, 128, 0")
                a(f"s_add_u32 s{S_T0}, s{S_T0}, s{S_T1}")
                a(f"v_mov_b32 v9, s{S_T0}")
                a(f"buffer_store_dword v8, v9, {sr(S_DBG,4)}, 0 offen {o['fs']}")
            else:
                a(f"buffer_atomic_add v8, off, {sr(S_DBG,4)}, 0 offset:128 sc0 sc1")
                if o["sig"] == 3:
                    a("s_mov_b64 exec, -1")
                    a(f"s_mov_b32 s{S_T1}, {MB_OFF}")
                    a(f"v_lshl_add_u32 v10, v{V_LANE}, 7, s{S_T1}")
                    for k in range(1, 4):
                        a(f"v_add_u32 v{10+k}, {8192*k}, v10")
                a("v_mov_b32 v9, 1")
                a("s_waitcnt vmcnt(0)")
                a(f"v_readfirstlane_b32 s{S_T0}, v8")
                a("s_nop 3")
                a(f"s_cmp_lg_u32 s{S_T0}, {NTASK-1}")
                a("s_cbranch_scc1 L_notlast")
                if o["sig"] == 3:
                    for k in range(4):
                        a(f"buffer_store_dword v9, v{10+k}, {sr(S_WS,4)}, 0 offen sc1")
                    a("s_mov_b64 exec, 1")
                a(f"buffer_store_dword v9, off, {sr(S_DBG,4)}, 0 {o['fs']}")
                if o["diag"] and o["diag"][2] == "last":
                    a("s_mov_b32 s101, -1")
            a("L_notlast:")
            self.stamp(15)
            a("s_mov_b64 exec, -1")
            a("L_cons2:")
            self.lane_setup()
            if o["bar2"] and o["sig"] != 4:
                a("s_barrier")
            a("s_branch L_cons3")
            self.flush_tail()
            if o["pfirst"]:
                cons, prod = self.L[mark0:mark1], self.L[mark1 + 2:]
                if o["pfirst"] == 2:
                    k = max(i for i, x in enumerate(prod) if f"{sr(S_W,4)}" in x) + 1
                    self.L[mark0 - 1:] = ["s_cbranch_scc0 L_cons"] + prod[:k] + ["s_branch L_prod", "L_cons:"] + cons + ["s_branch L_rest", "L_prod:"] + prod[k:]
                else:
                    head = ["s_cbranch_scc0 L_cons"]
                    if o["cwc"]:
                        head = ["s_cbranch_scc0 L_cw"]
                        k = prod.index("L_pc:")
                        prod[k:k] = ["L_cw:"] + self.cw + ["s_branch L_cons"]
                    self.L[mark0 - 1:] = head + prod + ["L_cons:"] + cons
            a("L_rest:")
        for reg, wm in ((S_WMASK, self.wmask), (S_WMASK2, self.wmask2)):
            pick(reg, [hex(x) for x in wm[:4]])
            if o["fused"]:
                pick(S_T1, [hex(x) for x in wm[4:]] * 2)
                a(f"s_cmp_lt_u32 s{S_TASK}, {NTASK}")
                a(f"s_cselect_b32 s{reg}, s{S_T1}, s{reg}")
        if not o["bias0"]:
            self.bias_load()
        self.lane_setup2()
        self.tables_init()
        pre, C, G = self.build()
        if o["pfl"]:
            late()
            a("s_cbranch_scc0 L_pfl_e")
            self.prefetch(20, "L_pfl")
        if o["fused"]:
            a(f"s_cmp_lg_u32 s{S_WAVE}, 0")
            a("s_cbranch_scc1 L_ready")
            if o["sig"] == 4:
                a(f"s_mov_b32 s{S_T1}, {o['maxpoll']}")
                a(f"s_mov_b32 s{S_T0}, {FL_OFF}")
                a(f"v_lshl_add_u32 v9, v{V_LANE}, 7, s{S_T0}")
                a(f"s_bfe_u32 s{S_T0}, s{S_DMASK}, {hex(4 << 16 | 20)}")
                a(f"s_cmp_ge_u32 s{S_T0}, 6")
                a("s_waitcnt vmcnt(15)")
                a("s_cbranch_scc1 L_deep")
                a(f"s_waitcnt vmcnt({0 if o['bias0'] else 1})")
                a("L_deep:")
                self.stamp(14)
                a(f"v_readfirstlane_b32 s{S_T0}, v124")
                a(f"s_mov_b32 exec_hi, {(1 << (NTASK - 32)) - 1}")
                a(f"s_cmp_lg_u32 s{S_T0}, 1")
                a("s_cbranch_scc1 L_cwait")
                self.tailblocks.append("\n".join([
                    "L_cwait:", f"buffer_load_dword v8, off, {sr(S_DBG,4)}, 0 sc1", f"s_sub_u32 s{S_T1}, s{S_T1}, 1", "s_cbranch_scc1 L_giveup",
                    "s_waitcnt vmcnt(0)", f"v_readfirstlane_b32 s{S_T0}, v8", "s_nop 3", f"s_cmp_lg_u32 s{S_T0}, 1", "s_cbranch_scc1 L_cwait",
                    "s_branch L_poll"]))
                a("L_poll:")
                if o["psleep"]:
                    a(f"s_sleep {o['psleep']}")
                a(f"buffer_load_dword v8, v9, {sr(S_WS,4)}, 0 offen sc1")
                a(f"s_sub_u32 s{S_T1}, s{S_T1}, 1")
                a("s_cbranch_scc1 L_giveup")
                a("s_waitcnt vmcnt(0)")
                a("v_cmp_ne_u32 vcc, 1, v8")
                a("s_nop 4")
                a("s_cbranch_vccnz L_poll")
            else:
                if o["sig"] == 2:
                    a(f"v_lshlrev_b32 v9, 2, v{V_LANE}")
                    a("s_waitcnt vmcnt(0)")
                else:
                    a("s_mov_b64 exec, 1")
                a(f"s_mov_b32 s{S_T1}, {o['maxpoll']}")
                if o["stamp"] and (o["stamp"] is True or 14 in o["stamp"]):
                    a("s_waitcnt vmcnt(0)")
                    self.stamp(14)
                if o["sig"] == 3:
                    self.mb_addr(S_T0, S_MASK)
                    a(f"v_mov_b32 v9, s{S_T0}")
                    a(f"s_waitcnt vmcnt({5*self.premin})")
                a("L_poll:")
                if o["psleep"]:
                    a(f"s_sleep {o['psleep']}")
                if o["sig"] == 3:
                    a(f"s_and_b32 s{S_T0}, s{S_T1}, 15")
                    a("s_cbranch_scc0 L_polld")
                    a(f"buffer_load_dword v8, v9, {sr(S_WS,4)}, 0 offen sc1")
                    a("L_pollb:")
                    self.tailblocks.append(f"L_polld:\nbuffer_load_dword v8, off, {sr(S_DBG,4)}, 0 sc1\ns_branch L_pollb")
                else:
                    a(f"buffer_load_dword v8, {'v9' if o['sig'] == 2 else 'off'}, {sr(S_DBG,4)}, 0 {'offen ' if o['sig'] == 2 else ''}{o['pl']}")
                a(f"s_sub_u32 s{S_T1}, s{S_T1}, 1")
                a("s_cbranch_scc1 L_giveup")
                a("s_waitcnt vmcnt(0)")
                if o["sig"] == 2:
                    a("v_cmp_ne_u32 vcc, 0, v8")
                    a(f"s_bcnt1_i32_b64 s{S_T0}, vcc")
                    a(f"s_cmp_lt_u32 s{S_T0}, {NTASK}")
                else:
                    a(f"v_readfirstlane_b32 s{S_T0}, v8")
                    a("s_nop 3")
                    a(f"s_cmp_lg_u32 s{S_T0}, 1")
                a("s_cbranch_scc1 L_poll")
            a("L_polled:")
            a("s_mov_b64 exec, -1")
            a("L_ready:")
            self.tailblocks.append(f"L_giveup:\ns_waitcnt vmcnt(0)\nv_mov_b32 v8, {L_PL + 256}\nv_mov_b32 v9, 1\nds_write_b32 v8, v9\ns_branch L_polled")
        a("s_waitcnt lgkmcnt(0)")
        a("s_barrier")
        self.stamp(3)
        self.emit_build(pre, C, G)
        self.stamp(4, "s[94:95]")
        self.loop_state()
        a("s_waitcnt lgkmcnt(0)")
        a(f"v_mov_b32 v{V_X if o['peel'] else V_T}, {L_PL + 256}")
        a("s_barrier")
        if o["peel"]:
            self.peel()
            for x in self.dma_advance(first=True):
                a(x)
            a(f"s_add_u32 s{S_OOFF}, s{S_OOFF}, {256*TB}")
            self.stamp(5)
            a("s_waitcnt lgkmcnt(0)")
            a("s_barrier")
            if o["links"] is None:
                a(f"s_cmp_lg_u32 s{S_LINK}, 0")
                a("s_cbranch_scc1 L_loopnk_p3")
            a("s_branch L_loopn_p3")
        else:
            a(f"ds_read_b32 v{V_T}, v{V_T}")
            if o["links"] is None:
                a(f"s_cmp_lg_u32 s{S_LINK}, 0")
                a("s_cbranch_scc1 L_linked")
        self.main_loop(bool(o["links"]), "")
        a("L_fin:")
        if o["stamp"]:
            a(f"v_mbcnt_lo_u32_b32 v{V_LANE}, -1, 0\nv_mbcnt_hi_u32_b32 v{V_LANE}, -1, v{V_LANE}")
        self.stamp(6)
        if o["stamp"]:
            a("s_waitcnt vmcnt(0)")
            self.stamp(7)
            a("v_writelane_b32 v255, s100, 0")
            a(f"s_lshl_b32 s{S_T0}, s2, 2\ns_add_u32 s{S_T0}, s{S_T0}, s{S_WAVE}\ns_lshl_b32 s{S_T0}, s{S_T0}, 6")
            a(f"s_add_u32 s{S_T0}, s{S_T0}, {WSBYTES - 65536}")
            if o["trace"]:
                a(f"s_lshl_b32 s{S_T1}, s2, 2\ns_add_u32 s{S_T1}, s{S_T1}, s{S_WAVE}\ns_lshl_b32 s{S_T1}, s{S_T1}, 8")
                a(f"s_add_u32 s{S_T1}, s{S_T1}, {WSBYTES - 65536 - 262144}")
                a(f"v_lshl_add_u32 v8, v{V_LANE}, 2, s{S_T1}")
                a(f"buffer_store_dword v254, v8, {sr(S_WS,4)}, 0 offen")
                a("s_nop 1")
            a(f"v_lshl_add_u32 v254, v{V_LANE}, 2, s{S_T0}")
            a("s_mov_b32 exec_lo, 0xffff\ns_mov_b32 exec_hi, 0")
            a(f"buffer_store_dword v255, v254, {sr(S_WS,4)}, 0 offen")
            if o["diag"]:
                n1, n0, wg, mul = o["diag"]
                a(("s_cmp_lg_u32 s101, -1" if wg == "last" else f"s_cmp_lg_u32 s2, {wg}") + f"\ns_cbranch_scc1 L_end_{K}\ns_cmp_lg_u32 s{S_WAVE}, 0\ns_cbranch_scc1 L_end_{K}")
                a(f"v_readlane_b32 s60, v255, {n1}\nv_readlane_b32 s61, v255, {n0}\ns_nop 3\ns_sub_u32 s60, s60, s61\ns_mul_i32 s60, s60, {mul}")
                a("s_min_u32 s60, s60, 100000\ns_add_u32 s60, s60, 10000")
                a("L_diag:\ns_sleep 1\ns_memrealtime s[62:63]\ns_waitcnt lgkmcnt(0)\ns_sub_u32 s62, s62, s100\ns_cmp_lt_u32 s62, s60\ns_cbranch_scc1 L_diag")
        a(f"L_end_{K}:\ns_endpgm")
        self.flush_tail()
        if o["links"] is None:
            a("L_linked:")
            self.main_loop(True, "k")
            a("s_branch L_fin")
            self.flush_tail()
        self.slow_path(K)
        a('.section .rodata,"a"\n.p2align 6')
        if not o["fused"]:
            self.descriptor("prep_kernel", 128, 128)
            a(".p2align 6")
        self.descriptor(K, 512, 256)
        return "\n".join(self.L) + "\n"


if __name__ == "__main__":
    opts = eval("dict(" + (sys.argv[2] if len(sys.argv) > 2 else "") + ")")
    out = sys.argv[1] if len(sys.argv) > 1 else "cdna_kernels/" + NAME + ".s"
    open(out, "w").write(Gen(**opts).gen())
```
